```python
import torch

def _softmax(x, axis=-1):
    return torch.softmax(x, dim=axis)
def _gelu(x):
    return torch.nn.functional.gelu(x, approximate="tanh")
def _silu(x):
    return torch.nn.functional.silu(x)
def _sigmoid(x):
    return torch.sigmoid(x)
def _layernorm(x, axis=-1, eps=1e-5):
    m = x.mean(dim=axis, keepdim=True)
    v = x.var(dim=axis, keepdim=True, unbiased=False)
    return (x - m) / torch.sqrt(v + eps)
def _scatter_add(tgt, idx, src, axis=0):
    return tgt.clone().index_add_(axis, idx, src)
def _segment_sum(src, seg, n):
    out = torch.zeros((n,) + src.shape[1:], dtype=src.dtype)
    return out.index_add_(0, seg, src)
def _pad(x, pw):
    flat = tuple(v for pair in reversed(pw) for v in pair)
    return torch.nn.functional.pad(x, flat)

kernel_name = 'parallel_sum__sliding_block_cached__swiglu_ffn__decode'

def setup_inputs():

    _w = (lambda a: (lambda t: t.to(torch.bfloat16) if t.is_floating_point() else t)(torch.as_tensor(a)))
    def _A_setup():
        B, Sq, D = 1, 1, 512
        Hq, Hkv, Sk, Dh = 32, 8, 65536, 128
        assert Hq % Hkv == 0, (Hq, Hkv)
        return {
            "x": _w((lambda *s: torch.randn(*s, dtype=torch.bfloat16) * 0.05)(B, Sq, D)),
            "k_cache": _w((lambda *s: torch.randn(*s, dtype=torch.bfloat16) * 3.2)(B, Hkv, Sk, Dh)),
            "v_cache": _w((lambda *s: torch.randn(*s, dtype=torch.bfloat16) * 1.6)(B, Hkv, Sk, Dh)),
            "wq": _w((lambda *s: torch.randn(*s, dtype=torch.bfloat16) * 3.2)(D, Hq * Dh) * (D ** -0.5)),
            "wo": _w((lambda *s: torch.randn(*s, dtype=torch.bfloat16) * 1.6)(Hq * Dh, D) * ((Hq * Dh) ** -0.5)),
        }
    _A_in = _A_setup()

    def _B_setup():
        B, S, D, F = 1, 1, 512, 1792
        return {
            "x": _w((lambda *s: torch.randn(*s, dtype=torch.bfloat16) * 0.05)(B, S, D)),
            "w_gate": _w((lambda *s: torch.randn(*s, dtype=torch.bfloat16) * 0.05)(D, F)),
            "w_up": _w((lambda *s: torch.randn(*s, dtype=torch.bfloat16) * 0.05)(D, F)),
            "w_down": _w((lambda *s: torch.randn(*s, dtype=torch.bfloat16) * 0.05)(F, D)),
        }
    _B_in = _B_setup()

    return {
        "A_x": _A_in["x"],
        "A_k_cache": _A_in["k_cache"],
        "A_v_cache": _A_in["v_cache"],
        "A_wq": _A_in["wq"],
        "A_wo": _A_in["wo"],
        "B_x": _B_in["x"],
        "B_w_gate": _B_in["w_gate"],
        "B_w_up": _B_in["w_up"],
        "B_w_down": _B_in["w_down"],
    }

def reference(A_x, A_k_cache, A_v_cache, A_wq, A_wo, B_x, B_w_gate, B_w_up, B_w_down):
    def _A_ref(x, k_cache, v_cache, wq, wo):
        B, Sq, D = x.shape
        Hq, Dh = 32, 128
        Hkv, Sk = k_cache.shape[1], k_cache.shape[2]
        W = min(4096, max(256, Sk // 4))
        rep = Hq // Hkv
        q = (lambda x, *d: x.permute(*d))((x @ wq).reshape(B, Sq, Hq, Dh), 0, 2, 1, 3)
        k = (lambda x, n, axis: torch.repeat_interleave(x, n, dim=axis))(k_cache[:, :, Sk - W:, :], rep, axis=1)
        v = (lambda x, n, axis: torch.repeat_interleave(x, n, dim=axis))(v_cache[:, :, Sk - W:, :], rep, axis=1)
        scores = torch.einsum("bhqd,bhkd->bhqk", q, k) * (Dh ** -0.5)
        p = _softmax(scores, axis=-1)
        o = torch.einsum("bhqk,bhkd->bhqd", p, v)
        return (lambda x, *d: x.permute(*d))(o, 0, 2, 1, 3).reshape(B, Sq, Hq * Dh) @ wo

    def _B_ref(x, w_gate, w_up, w_down):
        g = _silu(x @ w_gate)
        u = x @ w_up
        return (g * u) @ w_down

    x = A_x
    xn = _layernorm(x, axis=-1)
    return x + _A_ref(xn, A_k_cache, A_v_cache, A_wq, A_wo) + _B_ref(xn, B_w_gate, B_w_up, B_w_down)
```

```python
import sys

KNAME = "parallel_sum__sliding_block_cached__swiglu_ffn__decode_kernel"

HEADER = """; Kernarg layout for this problem (96 bytes, ptrs only, base s[0:1]):
;   offset  72: d_out     shape=(1, 1, 512) dtype=bfloat16
; @launch grid=(256,1,1) block=(320,1,1) lds={lds}
.amdgcn_target "amdgcn-amd-amdhsa--gfx950"
.text
.globl {k}
.p2align 8
.type {k},@function
{k}:
"""
FOOTER = """
.section .rodata,"a"
.p2align 6
.amdhsa_kernel {k}
  .amdhsa_next_free_vgpr {vg}
  .amdhsa_next_free_sgpr {sg}
  .amdhsa_accum_offset {vg}
  .amdhsa_group_segment_fixed_size 0
  .amdhsa_kernarg_size 96
  .amdhsa_user_sgpr_count 2
  .amdhsa_user_sgpr_kernarg_segment_ptr 1
  .amdhsa_system_sgpr_workgroup_id_x 1
.end_amdhsa_kernel
"""

MB1A = 0x40000
MB1B = 0x80000
MB2 = 0x100000
MB25 = 0x200000
MB3 = 0x300000
STAMPS = 0x10000000
L_WQ = 0
L_FF = 16384
L_XN = 32768
L_Q = 33792
L_H = 34816
L_FLAG = 34848
L_ML = 34880
L_O = 35072
L_K = L_O + 8192
L_K = (L_K + 1023) // 1024 * 1024
LDS_BYTES = L_K + 32768
TAGC = 0x9E3779B9
LOG2E = 0x3FB8AA3B
SCALE = 0x3DB504F3
EPS = 0x3727C5AC
DPP = "row_mask:0xf bank_mask:0xf"

DEF = dict(stamps=False, spinmax=200000, WK=4, W=6, Wtail=8, b0pos=40, nt="nt", pretouch="k", atries=24,
           prefetch=True, b2=5, ntail0=0, tlag=0, mask2=True, pt1=True)


def gen(**kw):
    o = dict(DEF); o.update(kw)
    L = []
    def A(s): L.append("    " + s)
    def LB(s): L.append(s + ":")
    def C(s): L.append("    ; " + s)
    nt = o["nt"]
    NSTAMP = 12
    role = ["U"]
    def stamp(i):
        if o["stamps"] and (i in (0, 11) or o.get("sel") is None or ("%s%d" % (role[0], i)) in o["sel"].split(",")):
            A("s_memrealtime s[%d:%d]" % (64 + 2 * i, 65 + 2 * i))
    def mfma(d, a, b, c):
        A("v_mfma_f32_16x16x32_bf16 v[%d:%d], v[%d:%d], v[%d:%d], %s" % (d, d + 3, a, a + 3, b, b + 3, "0" if c is None else "v[%d:%d]" % (c, c + 3)))
    def mfma16(d, a, b, c):
        A("v_mfma_f32_16x16x16_bf16 v[%d:%d], v[%d:%d], v[%d:%d], %s" % (d, d + 3, a, a + 1, b, b + 1, "0" if c is None else "v[%d:%d]" % (c, c + 3)))
    def allred(v, tmp, op, which):
        A("v_mov_b32 %s, %s" % (tmp, v))
        A("s_nop 1")
        A("v_permlane%d_swap_b32 %s, %s" % (which, tmp, v))
        A("%s %s, %s, %s" % (op, v, v, tmp))
    sX, sK, sV, sWQ, sWO, sG, sU, sDN, sOUT, sWS = "s[4:5]", "s[6:7]", "s[8:9]", "s[10:11]", "s[12:13]", "s[16:17]", "s[18:19]", "s[20:21]", "s[22:23]", "s[26:27]"
    sW, sH, sJ, sTAG, sXCC, sCNT, sFAST = "s30", "s31", "s32", "s33", "s34", "s35", "s36"
    t0, t1, t2, t3 = "s37", "s38", "s39", "s40"
    def dump_stamps():
        if not o["stamps"]: return
        A("s_mov_b64 exec, 1")
        stamp(11)
        A("s_waitcnt lgkmcnt(0)")
        A("s_mul_i32 %s, s2, 5" % t0)
        A("s_add_u32 %s, %s, %s" % (t0, t0, sW))
        A("s_lshl_b32 %s, %s, 7" % (t0, t0))
        A("s_add_u32 %s, %s, 0x%x" % (t0, t0, STAMPS))
        A("v_mov_b32 v2, %s" % t0)
        for i in range(NSTAMP):
            A("v_mov_b32 v3, s%d" % (64 + 2 * i))
            A("global_store_dword v2, v3, %s offset:%d" % (sWS, 4 * i))
        A("v_mov_b32 v3, %s" % sCNT)
        A("global_store_dword v2, v3, %s offset:%d" % (sWS, 4 * NSTAMP))
        if o.get("dbgfail"):
            for q_, r_ in enumerate(("s84", "s62", "s63")):
                A("v_mov_b32 v3, %s" % r_)
                A("global_store_dword v2, v3, %s offset:%d" % (sWS, 4 * NSTAMP + 8 + 4 * q_))
        A("s_getreg_b32 %s, hwreg(HW_REG_HW_ID)" % t1)
        A("v_mov_b32 v3, %s" % t1)
        A("global_store_dword v2, v3, %s offset:%d" % (sWS, 4 * NSTAMP + 4))

    stamp(0)
    if o.get("pad"): A("s_memrealtime s[90:91]")
    A("s_cmp_ge_u32 s2, 256")
    A("s_cbranch_scc1 L_end")
    A("s_load_dwordx16 s[4:19], s[0:1], 0")
    A("s_load_dwordx8 s[20:27], s[0:1], 64")
    A("v_lshrrev_b32 v1, 6, v0")
    A("v_and_b32 v0, 63, v0")
    A("v_readfirstlane_b32 %s, v1" % sW)
    A("s_and_b32 %s, s2, 7" % sH)
    A("s_lshr_b32 %s, s2, 3" % sJ)
    A("s_cmp_eq_u32 %s, 4" % sW)
    A("s_cbranch_scc0 L_attn")

    C("wave 4: layernorm, one [128 x 64] tile of wq and one of gate/up, exchange of q and of the FFN hidden values")
    A("s_setprio 3")
    if o["prefetch"]:
        A("s_getpc_b64 s[28:29]")
        LB("L_pc")
        A("v_lshlrev_b32 v2, 7, v0")
        A("v_min_u32 v2, L_end-L_pc, v2")
        A("global_load_dword v127, v2, s[28:29]")
    sQK, sNOFF = "s50", "s51"
    A("v_lshlrev_b32 v3, 4, v0")
    A("v_lshrrev_b32 v6, 3, v0")
    A("v_and_b32 v5, 2, v6")
    A("v_and_b32 v7, 7, v0")
    A("v_xor_b32 v5, v5, v7")
    A("v_lshlrev_b32 v7, 4, v5")
    A("s_and_b32 %s, %s, 3" % (sQK, sJ))
    A("s_lshl_b32 %s, %s, 10" % (t0, sH))
    A("s_lshr_b32 %s, %s, 2" % (t1, sJ))
    A("s_lshl_b32 %s, %s, 7" % (t1, t1))
    A("s_lshl_b32 %s, %s, 20" % (t2, sQK))
    A("s_add_u32 %s, %s, %s" % (t0, t0, t1))
    A("s_add_u32 %s, %s, %s" % (t0, t0, t2))
    A("v_lshl_add_u32 v4, v6, 13, v7")
    A("v_add_u32 v4, %s, v4" % t0)
    A("v_xor_b32 v5, 64, v4")
    A("v_add_u32 v5, 0x10000, v5")
    if o["pt1"]:
        C("pull this workgroup's own hand-off lines into L2 before anyone polls them")
        A("s_lshl_b32 %s, %s, 15" % (t0, sH))
        A("s_lshl_b32 %s, %s, 8" % (t1, sJ))
        A("s_add_u32 %s, %s, %s" % (t0, t0, t1))
        A("s_add_u32 %s, %s, 0x%x" % (t0, t0, MB1A))
        A("v_and_b32 v33, 1, v0")
        A("v_bfe_u32 v32, v0, 1, 1")
        A("v_lshlrev_b32 v33, 7, v33")
        A("v_lshl_add_u32 v33, v32, 13, v33")
        A("s_mul_i32 %s, %s, 240" % (t1, sJ))
        A("s_sub_u32 %s, 0x4000, %s" % (t1, t1))
        A("v_cmp_lt_u32 vcc, 3, v0")
        A("v_mov_b32 v32, %s" % t1)
        A("s_nop 0")
        A("v_cndmask_b32 v33, v33, v32, vcc")
        A("v_add_u32 v33, %s, v33" % t0)
    A("s_mov_b32 m0, %d" % L_WQ)
    A("s_mov_b32 %s, 0x20000" % t1)
    A("s_movk_i32 s41, 1024")
    A("s_waitcnt lgkmcnt(0)")
    A("global_load_dwordx4 v[8:11], v3, %s" % sX)
    A("s_load_dword %s, %s, 0" % (sTAG, sWS))
    if o["pt1"]:
        A("global_load_dword v119, v33, %s sc1" % sWS)
    def dma_loop(name, base, step):
        A("s_mov_b32 %s, 4" % t2)
        LB(name)
        for i in range(4):
            vv = ("v4", "v5")[i & 1]
            A("global_load_lds_dwordx4 %s, %s %s" % (vv, base, nt))
            A("s_add_u32 m0, m0, s41")
            A("v_add_u32 %s, %s, %s" % (vv, step, vv))
        A("s_sub_u32 %s, %s, 1" % (t2, t2))
        A("s_cmp_lg_u32 %s, 0" % t2)
        A("s_cbranch_scc1 %s" % name)
    dma_loop("L_wq_loop", sWQ, t1)
    if o["b0pos"] == 16: A("s_barrier")
    A("s_mul_i32 %s, %s, 7" % (t0, sH))
    A("s_add_u32 %s, %s, 1" % (t0, t0))
    A("s_lshr_b32 %s, %s, 1" % (t0, t0))
    A("s_lshr_b32 %s, %s, 3" % (t1, sJ))
    A("s_add_u32 %s, %s, %s" % (t0, t0, t1))
    A("s_mul_i32 %s, %s, 3584" % (t1, sQK))
    A("s_add_u32 %s, %s, %s" % (t0, t0, t1))
    A("s_lshl_b32 %s, %s, 7" % (t0, t0))
    A("v_mul_u32_u24 v4, 3584, v6")
    A("v_add3_u32 v4, v4, v7, %s" % t0)
    A("v_xor_b32 v5, 64, v4")
    A("v_add_u32 v5, %d, v5" % (8 * 3584))
    A("s_mov_b32 %s, %d" % (t1, 16 * 3584))
    A("s_bitcmp0_b32 %s, 2" % sJ)
    A("s_cselect_b64 s[42:43], %s, %s" % (sG, sU))
    A("s_and_b32 %s, %s, 1" % (t3, sH))
    A("s_lshl_b32 %s, %s, 3" % (t0, t3))
    A("s_add_u32 %s, %s, %s" % (sNOFF, t0, sJ))
    A("s_cmp_ge_u32 %s, 32" % sNOFF)
    A("s_cselect_b64 exec, 1, -1")
    dma_loop("L_ff_loop", "s[42:43]", t1)
    A("s_mov_b64 exec, -1")
    if o["b0pos"] == 32:
        if o.get("b0wait") is not None: A("s_waitcnt vmcnt(%d)" % o["b0wait"])
        A("s_barrier")
    stamp(1)
    XF = 12
    A("s_mov_b32 %s, 0xffff0000" % t1)
    A("s_waitcnt vmcnt(%d)" % (33 if o["pt1"] else 32))
    stamp(2)
    C("layernorm with the reference's bf16 roundings")
    for i in range(4):
        A("v_lshlrev_b32 v%d, 16, v%d" % (XF + 2 * i, 8 + i))
        A("v_and_b32 v%d, %s, v%d" % (XF + 2 * i + 1, t1, 8 + i))
    fill = []
    def F(s): fill.append(s)
    def nop2():
        n = 0
        while fill and n < 2:
            A(fill.pop(0)); n += 1
        if n < 2: A("s_nop %d" % (1 - n))
    TRB = 120
    vAX, vS1, vL1, vL1x, vL1a, vF, vTN, vTB = "v34", "v35", "v36", "v37", "v38", "v39", "v124", "v125"
    sRP, sB1 = "s52", "s53"
    F("v_lshrrev_b32 v126, 4, v0")
    F("v_bfe_u32 v4, v0, 2, 2")
    F("v_lshl_add_u32 v5, v126, 3, v4")
    F("v_and_b32 v6, 3, v0")
    F("v_lshlrev_b32 v7, 3, v6")
    F("v_lshl_add_u32 v5, v5, 7, v7")
    F("v_bfe_u32 v4, v0, 3, 2")
    for ct in range(4):
        F("v_xor_b32 v7, %d, v4" % ct)
        F("v_lshl_add_u32 v%d, v7, 5, v5" % (TRB + ct))
    F("s_lshl_b32 %s, %s, 8" % (t0, sQK))
    F("v_lshl_add_u32 %s, v126, 4, %s" % (vAX, t0))
    F("s_lshl_b32 %s, %s, 15" % (sB1, sH))
    F("s_add_u32 %s, %s, 0x%x" % (sB1, sB1, MB1A))
    def wavesum(v, tmp):
        for rot in (1, 2, 4, 8):
            nop2()
            A("v_add_f32_dpp %s, %s, %s row_ror:%d %s" % (v, v, v, rot, DPP))
        for which in (16, 32):
            A("v_mov_b32 %s, %s" % (tmp, v))
            nop2()
            A("v_permlane%d_swap_b32 %s, %s" % (which, tmp, v))
            A("v_add_f32 %s, %s, %s" % (v, v, tmp))
    def sum8(dst, base, tmp):
        A("v_add_f32 %s, v%d, v%d" % (dst, base, base + 1))
        A("v_add_f32 %s, v%d, v%d" % (tmp, base + 2, base + 3))
        A("v_add_f32 %s, %s, v%d" % (dst, dst, base + 4))
        A("v_add_f32 %s, %s, v%d" % (tmp, tmp, base + 5))
        A("v_add_f32 %s, %s, v%d" % (dst, dst, base + 6))
        A("v_add_f32 %s, %s, v%d" % (tmp, tmp, base + 7))
        A("v_add_f32 %s, %s, %s" % (dst, dst, tmp))
    sum8("v22", XF, "v23")
    wavesum("v22", "v23")
    A("v_mul_f32 v22, 0x3b000000, v22")
    DV = 24
    for i in range(8):
        A("v_sub_f32 v%d, v%d, v22" % (DV + i, XF + i))
    A("v_mul_f32 v32, v%d, v%d" % (DV, DV))
    A("v_mul_f32 v23, v%d, v%d" % (DV + 1, DV + 1))
    for i in range(2, 8):
        A("v_fmac_f32 %s, v%d, v%d" % (("v32", "v23")[i & 1], DV + i, DV + i))
    A("v_add_f32 v32, v32, v23")
    wavesum("v32", "v23")
    A("v_mul_f32 v32, 0x3b000000, v32")
    A("v_cvt_pk_bf16_f32 v22, v22, v32")
    A("v_and_b32 v32, %s, v22" % t1)
    A("v_lshlrev_b32 v22, 16, v22")
    A("v_add_f32 v32, 0x%x, v32" % EPS)
    A("v_cvt_pk_bf16_f32 v32, v32, v32")
    A("v_and_b32 v32, %s, v32" % t1)
    A("v_sqrt_f32 v32, v32")
    for i in range(8):
        A("v_sub_f32 v%d, v%d, v22" % (XF + i, XF + i))
    A("v_cvt_pk_bf16_f32 v32, v32, v32")
    A("v_and_b32 v32, %s, v32" % t1)
    A("v_rcp_f32 v32, v32")
    for i in range(4):
        A("v_cvt_pk_bf16_f32 v%d, v%d, v%d" % (8 + i, XF + 2 * i, XF + 2 * i + 1))
    for i in range(4):
        A("v_lshlrev_b32 v%d, 16, v%d" % (XF + 2 * i, 8 + i))
        A("v_and_b32 v%d, %s, v%d" % (XF + 2 * i + 1, t1, 8 + i))
    for i in range(8):
        A("v_mul_f32 v%d, v%d, v32" % (XF + i, XF + i))
    for i in range(4):
        A("v_cvt_pk_bf16_f32 v%d, v%d, v%d" % (8 + i, XF + 2 * i, XF + 2 * i + 1))
    while fill: A(fill.pop(0))
    A("ds_write_b128 v3, v[8:11] offset:%d" % L_XN)
    A("s_lshl_b32 %s, %s, 8" % (t2, sJ))
    A("s_add_u32 %s, %s, %s" % (t2, t2, sB1))
    A("v_lshrrev_b32 v4, 2, v0")
    A("v_lshl_add_u32 %s, v4, 4, %s" % (vS1, t2))
    A("s_waitcnt lgkmcnt(0)")
    AF = 40
    for m in range(4):
        A("ds_read_b128 v[%d:%d], %s offset:%d" % (AF + 4 * m, AF + 4 * m + 3, vAX, L_XN + m * 64))
    A("s_add_u32 %s, %s, 0x%x" % (sTAG, sTAG, TAGC))
    A("v_lshlrev_b32 v4, 2, v6")
    A("v_lshrrev_b32 %s, v4, %s" % (vTN, sTAG))
    A("v_and_b32 %s, 15, %s" % (vTN, vTN))
    A("v_lshlrev_b32 v4, 3, v6")
    A("v_lshrrev_b32 %s, v4, %s" % (vTB, sTAG))
    A("v_and_b32 %s, 0xff, %s" % (vTB, vTB))
    A("s_mov_b32 s44, 0")
    A("s_mov_b32 s45, -1")
    if o["b0pos"] == 40: A("s_barrier")
    stamp(3)
    BF = 56
    D0 = 88
    GR = 24
    def gemv(lbase, vm0):
        def rd(m, ct):
            b = BF + 16 * (m & 1)
            for hh in range(2):
                A("ds_read_b64_tr_b16 v[%d:%d], v%d offset:%d" % (b + 4 * ct + 2 * hh, b + 4 * ct + 2 * hh + 1, TRB + ct, lbase + m * 4096 + hh * 512))
        A("s_waitcnt vmcnt(%d)" % (vm0 + 12))
        for ct in range(4): rd(0, ct)
        for m in range(4):
            b = BF + 16 * (m & 1)
            if m < 3: A("s_waitcnt vmcnt(%d)" % (vm0 + 8 - 4 * m))
            for ct in range(4):
                A("s_waitcnt lgkmcnt(%d)" % (6 if m < 3 else 6 - 2 * ct))
                mfma(D0 + 4 * ct, AF + 4 * m, b + 4 * ct, None if m == 0 else D0 + 4 * ct)
                if m < 3: rd(m + 1, ct)
    def pack(maskc, vt):
        A("s_mov_b32 vcc_lo, 0xffff0000")
        A("s_mov_b32 vcc_hi, 0xffff0000")
        A("s_movk_i32 %s, 0x%x" % (t0, maskc))
        A("s_nop 2")
        A("v_cndmask_b32 v%d, v%d, v%d, vcc" % (GR, D0, D0 + 4))
        A("s_nop 0")
        A("v_cndmask_b32 v%d, v%d, v%d, vcc" % (GR + 1, D0 + 8, D0 + 12))
        A("v_cndmask_b32 v%d, v%d, v%d, s[44:45]" % (GR, GR, GR + 1))
        A("v_and_or_b32 v%d, v%d, %s, %s" % (GR, GR, t0, vt))
        A("v_add_u32 v22, 0x%x, %s" % (MB1B - MB1A, vS1))
        A("s_nop 0")
        for k in range(1, 4):
            A("v_mov_b32_dpp v%d, v%d quad_perm:[%d,%d,%d,%d] %s" % (GR + k, GR, k, k, k, k, DPP))
        A("s_mov_b32 exec_lo, 0x11111111")
        A("s_mov_b32 exec_hi, 0x11111111")
        A("global_store_dwordx4 %s, v[%d:%d], %s" % (vS1, GR, GR + 3, sWS))
        A("global_store_dwordx4 v22, v[%d:%d], %s sc1" % (GR, GR + 3, sWS))
        A("s_mov_b64 exec, -1")
    gemv(L_WQ, 16)
    if o["b0pos"] == 45: A("s_barrier")
    pack(0xfff0, vTN)
    stamp(4)
    XG = 28
    A("s_getreg_b32 %s, hwreg(HW_REG_XCC_ID, 0, 4)" % sXCC)
    A("s_and_b32 %s, %s, 0xff" % (t0, sTAG))
    A("s_lshl_b32 %s, %s, 8" % (t2, sXCC))
    A("s_or_b32 s54, %s, %s" % (t0, t2))
    A("v_mov_b32 v%d, s54" % XG)
    for k in range(1, 4):
        A("s_bfe_u32 %s, %s, 0x%x" % (t0, sTAG, 0x80000 | (8 * k)))
        A("v_mov_b32 v%d, %s" % (XG + k, t0))
    A("s_lshl_b32 %s, %s, 4" % (t2, sJ))
    A("s_add_u32 %s, %s, %s" % (t2, t2, sB1))
    A("s_add_u32 %s, %s, 0x4000" % (t2, t2))
    A("v_mov_b32 v22, %s" % t2)
    A("v_add_u32 v23, 0x%x, v22" % (MB1B - MB1A))
    A("s_mov_b64 exec, 1")
    A("global_store_dwordx4 v22, v[%d:%d], %s" % (XG, XG + 3, sWS))
    A("global_store_dwordx4 v23, v[%d:%d], %s sc1" % (XG, XG + 3, sWS))
    A("s_mov_b64 exec, -1")
    if o["b0pos"] == 50: A("s_barrier")
    A("v_add_u32 %s, 0x2000, %s" % (vS1, vS1))
    A("s_cmp_ge_u32 %s, 32" % sNOFF)
    A("s_cbranch_scc1 L_noff2")
    gemv(L_FF, 4)
    pack(0xff00, vTB)
    LB("L_noff2")
    stamp(7)
    if o.get("nosync"):
        A("s_barrier")
        A("s_mov_b32 %s, 0" % sCNT)
        dump_stamps()
        A("s_endpgm")
    A("v_and_b32 v4, 15, v0")
    A("v_lshlrev_b32 v4, 4, v4")
    A("v_lshl_add_u32 v4, v126, 10, v4")
    A("s_add_u32 %s, %s, 2432" % (t0, sB1))
    A("v_add_u32 %s, %s, v4" % (vL1, t0))
    A("v_and_b32 v4, 31, v0")
    A("s_add_u32 %s, %s, 0x4000" % (t0, sB1))
    A("v_lshl_add_u32 %s, v4, 4, %s" % (vL1x, t0))
    A("s_lshl_b32 %s, %s, 1" % (t2, t3))
    A("s_sub_u32 %s, 8, %s" % (sRP, t2))
    A("s_mul_i32 %s, %s, %s" % (t2, sRP, sJ))
    A("s_sub_u32 %s, %s, 1" % (t0, sRP))
    A("v_and_b32 v4, 7, v0")
    A("v_min_u32 v4, %s, v4" % t0)
    A("v_add_u32 %s, %s, v4" % (vF, t2))
    A("v_lshrrev_b32 v4, 6, %s" % vF)
    A("v_bfe_u32 v5, v0, 3, 1")
    A("v_lshl_add_u32 v4, v4, 1, v5")
    A("v_lshl_add_u32 v4, v4, 2, v126")
    A("v_bfe_u32 v5, %s, 2, 4" % vF)
    A("v_lshlrev_b32 v5, 4, v5")
    A("v_lshl_add_u32 v4, v4, 8, v5")
    A("s_add_u32 %s, %s, 0x2000" % (t0, sB1))
    A("v_add_u32 %s, %s, v4" % (vL1a, t0))
    for k in range(4):
        A("s_bfe_u32 s%d, %s, 0x%x" % (56 + k, sTAG, 0x40000 | (4 * k)))
    A("s_mov_b32 s60, 0x0c0c0400")
    A("s_mov_b32 s61, 0x04000c0c")
    P = 40
    PX, PA_ = 72, 76
    A("s_mov_b32 %s, 0" % sCNT)
    def switch_copy(regs):
        A("s_add_u32 %s, %s, 1" % (sCNT, sCNT))
        A("s_cmp_eq_u32 %s, %d" % (sCNT, o["atries"]))
        A("s_cselect_b32 %s, 0x%x, 0" % (t0, MB1B - MB1A))
        for r in regs: A("v_add_u32 %s, %s, %s" % (r, t0, r))
        A("s_cmp_gt_u32 %s, %d" % (sCNT, o["spinmax"]))
        A("s_cbranch_scc1 L_end")
    def bytecheck(p, dst):
        A("v_perm_b32 v22, v%d, v%d, s60" % (p + 1, p))
        A("v_perm_b32 v23, v%d, v%d, s61" % (p + 3, p + 2))
        A("v_or_b32 v22, v22, v23")
        A("v_cmp_ne_u32 %s, %s, v22" % (dst, sTAG))
    stamp(9)
    LB("L_poll1")
    stamp(8)
    for i in range(2):
        for q in range(4):
            r = P + 16 * i + 4 * q
            A("global_load_dwordx4 v[%d:%d], %s, %s offset:%d sc1" % (r, r + 3, vL1, sWS, i * 4096 + q * 256 - 2432))
    A("global_load_dwordx4 v[%d:%d], %s, %s sc1" % (PX, PX + 3, vL1x, sWS))
    A("global_load_dwordx4 v[%d:%d], %s, %s sc1" % (PA_, PA_ + 3, vL1a, sWS))
    switch_copy([vL1, vL1x, vL1a])
    for g_ in range(8):
        A("s_waitcnt vmcnt(%d)" % (9 - g_))
        for k in range(4):
            A("v_xor_b32 v%d, s%d, v%d" % (P + 4 * g_ + k, 56 + k, P + 4 * g_ + k))
        if g_ == 0:
            A("v_or3_b32 v21, v%d, v%d, v%d" % (P, P + 1, P + 2))
            A("v_or_b32 v21, v21, v%d" % (P + 3))
        else:
            A("v_or3_b32 v21, v21, v%d, v%d" % (P + 4 * g_, P + 4 * g_ + 1))
            A("v_or3_b32 v21, v21, v%d, v%d" % (P + 4 * g_ + 2, P + 4 * g_ + 3))
    A("v_and_b32 v21, 15, v21")
    A("s_waitcnt vmcnt(1)")
    bytecheck(PX, "vcc")
    A("v_cmp_ne_u32 s[46:47], 0, v21")
    if o.get("dbgfail"):
        A("s_cmp_eq_u32 %s, 1" % sCNT)
        A("s_cselect_b32 s84, vcc_lo, s84")
        A("s_cselect_b32 s62, s46, s62")
        A("s_cselect_b32 s63, s47, s63")
    A("s_or_b64 vcc, vcc, s[46:47]")
    A("s_cbranch_vccnz L_poll1")
    stamp(5)
    for i in range(2):
        b = P + 16 * i
        for k in range(4):
            A("v_add_f32 v%d, v%d, v%d" % (b + k, b + k, b + 4 + k))
            A("v_add_f32 v%d, v%d, v%d" % (b + 8 + k, b + 8 + k, b + 12 + k))
        for k in range(4):
            A("v_add_f32 v%d, v%d, v%d" % (b + k, b + k, b + 8 + k))
        A("v_cvt_pk_bf16_f32 v%d, v%d, v%d" % (b, b, b + 1))
        A("v_cvt_pk_bf16_f32 v%d, v%d, v%d" % (b + 1, b + 2, b + 3))
    A("v_lshlrev_b32 v22, 3, v0")
    A("ds_write_b64 v22, v[%d:%d] offset:%d" % (P, P + 1, L_Q))
    A("ds_write_b64 v22, v[%d:%d] offset:%d" % (P + 16, P + 17, L_Q + 512))
    A("v_cmp_ne_u32 vcc, s54, v%d" % PX)
    A("s_cmp_eq_u64 vcc, 0")
    A("s_cselect_b32 %s, 1, 0" % sFAST)
    if o.get("forceslow"): A("s_mov_b32 %s, 0" % sFAST)
    A("v_mov_b32 v26, %s" % sFAST)
    A("v_mov_b32 v22, %d" % L_FLAG)
    A("ds_write_b32 v22, v26")
    A("s_waitcnt vmcnt(0)")
    bytecheck(PA_, "vcc")
    A("s_cbranch_vccz L_aux_ok")
    A("global_load_dwordx4 v[%d:%d], %s, %s sc1" % (PA_, PA_ + 3, vL1a, sWS))
    A("s_waitcnt lgkmcnt(0)")
    A("s_barrier")
    A("s_mov_b32 s55, 1")
    A("s_branch L_chk_aux")
    LB("L_poll_aux")
    A("global_load_dwordx4 v[%d:%d], %s, %s sc1" % (PA_, PA_ + 3, vL1a, sWS))
    switch_copy([vL1a])
    LB("L_chk_aux")
    A("s_waitcnt vmcnt(0)")
    bytecheck(PA_, "vcc")
    A("s_cbranch_vccnz L_poll_aux")
    A("s_branch L_aux_go")
    LB("L_aux_ok")
    A("s_mov_b32 s55, 0")
    LB("L_aux_go")
    A("s_movk_i32 %s, 0xff00" % t0)
    A("v_and_b32 v23, 1, %s" % vF)
    A("v_cmp_eq_u32 vcc, 0, v23")
    A("v_and_b32 v23, 2, %s" % vF)
    A("v_cmp_eq_u32 s[46:47], 0, v23")
    A("v_cndmask_b32 v24, v%d, v%d, vcc" % (PA_ + 1, PA_))
    A("v_cndmask_b32 v25, v%d, v%d, vcc" % (PA_ + 3, PA_ + 2))
    A("v_cndmask_b32 v24, v25, v24, s[46:47]")
    A("v_and_b32 v24, %s, v24" % t0)
    allred("v24", "v23", "v_add_f32", 16)
    allred("v24", "v23", "v_add_f32", 32)
    A("v_cvt_pk_bf16_f32 v24, v24, v24")
    A("v_and_b32 v24, %s, v24" % t1)
    A("v_mul_f32 v25, 0x%x, v24" % (LOG2E | 0x80000000))
    A("v_exp_f32 v25, v25")
    A("v_mov_b32_dpp v26, v24 row_ror:8 %s" % DPP)
    A("v_add_f32 v25, 1.0, v25")
    A("v_rcp_f32 v25, v25")
    A("v_cmp_le_u32 vcc, %s, v0" % sRP)
    A("v_mul_f32 v25, v24, v25")
    A("v_cvt_pk_bf16_f32 v25, v25, v25")
    A("v_and_b32 v25, %s, v25" % t1)
    A("v_mul_f32 v25, v25, v26")
    A("v_cvt_pk_bf16_f32 v25, v25, v25")
    A("v_cndmask_b32 v25, v25, 0, vcc")
    A("v_lshlrev_b32 v22, 2, v0")
    A("s_mov_b64 exec, 0xff")
    A("ds_write_b32 v22, v25 offset:%d" % L_H)
    A("s_waitcnt lgkmcnt(0)")
    stamp(6)
    A("s_cmp_lg_u32 s55, 0")
    A("s_cbranch_scc1 L_unit_exit")
    A("s_barrier")
    LB("L_unit_exit")
    dump_stamps()
    A("s_endpgm")

    role[0] = "A"
    LB("L_attn")
    vK0, vK1, vV0, vV1 = "v2", "v3", "v4", "v5"
    vWO0, vWO1, vDN0, vDN1, vXF, vXP = "v6", "v7", "v8", "v9", "v10", "v1"
    vS2, vL2, vS25, vL25, vL3, vS3 = "v11", "v12", "v13", "v14", "v15", "v150"
    KR, VR, WOR, DNR, QR, SR, PA, MK = 16, 48, 80, 96, 104, 120, 128, 146
    vM0, vM1, vQA, vOW, vOR, vMLW, vHA = "v151", "v152", "v153", "v154", "v155", "v156", "v157"
    vN, vG, vN16, vP = "v120", "v121", "v122", "v123"
    u0, u1 = "v124", "v125"
    s4JW = "s41"
    C("K and V: load i = 1 KB block (4 keys) number 128 i + 4j + w of the head's window; K goes through LDS")
    A("s_lshl_b32 %s, %s, 24" % (t0, sH))
    A("s_lshl_b32 %s, %s, 2" % (s4JW, sJ))
    A("s_add_u32 %s, %s, %s" % (s4JW, s4JW, sW))
    A("s_lshl_b32 %s, %s, 10" % (t2, s4JW))
    A("s_add_u32 %s, %s, %s" % (t0, t0, t2))
    A("s_add_u32 %s, %s, 0xF00000" % (t0, t0))
    A("v_and_b32 %s, 15, v0" % vN)
    A("v_lshrrev_b32 %s, 4, v0" % vG)
    A("v_lshlrev_b32 %s, 4, %s" % (vN16, vN))
    A("v_lshl_add_u32 %s, v0, 4, %s" % (vV0, t0))
    A("v_lshlrev_b32 %s, 6, %s" % (u0, vG))
    A("v_xor_b32 %s, %s, %s" % (vK0, u0, vV0))
    A("s_lshl_b32 %s, %s, 13" % (t1, sW))
    A("s_add_u32 m0, %s, %d" % (t1, L_K))
    A("s_mov_b32 s42, 0x20000")
    A("s_movk_i32 s43, 1024")
    A("s_waitcnt lgkmcnt(0)")
    A("s_load_dword %s, %s, 0" % (sTAG, sWS))
    if o["b0pos"]: A("s_barrier")
    stamp(1)
    issued = [0]
    def load(w, txt):
        if issued[0] >= w:
            A("s_waitcnt vmcnt(%d)" % (w - 1))
        A(txt); issued[0] += 1
    def kload(i):
        load(o["WK"], "global_load_lds_dwordx4 %s, %s %s" % (vK0, sK, nt))
        if i < 7:
            A("s_add_u32 m0, m0, s43")
            A("v_xor_b32 %s, %d, %s" % (vK0, ((i & 3) ^ ((i + 1) & 3)) << 4, vK0))
            A("v_add_u32 %s, s42, %s" % (vK0, vK0))
    nk_first = min(o["WK"], 8)
    for i in range(nk_first): kload(i)
    C("address and mask setup in the shadow of the K loads")
    A("s_lshl_b32 %s, %s, 19" % (t0, sH))
    A("s_lshl_b32 %s, %s, 14" % (t2, sJ))
    A("s_add_u32 %s, %s, %s" % (t0, t0, t2))
    A("s_lshl_b32 %s, %s, 8" % (t3, sW))
    A("s_add_u32 %s, %s, %s" % (t0, t0, t3))
    A("v_and_b32 %s, 1, %s" % (u0, vG))
    A("v_lshlrev_b32 %s, 11, %s" % (u1, u0))
    A("v_lshrrev_b32 %s, 1, %s" % (vWO0, vG))
    A("v_lshl_add_u32 %s, %s, 10, %s" % (vWO0, vWO0, u1))
    A("v_add3_u32 %s, %s, %s, %s" % (vWO0, vWO0, vN16, t0))
    A("v_add_u32 %s, 0x1000, %s" % (vWO0, vWO0))
    A("v_add_u32 %s, 0x2000, %s" % (vWO1, vWO0))
    A("s_mul_i32 %s, %s, 7" % (t0, sH))
    A("s_add_u32 %s, %s, 1" % (t0, t0))
    A("s_lshr_b32 %s, %s, 1" % (t0, t0))
    A("s_lshl_b32 %s, %s, 6" % (t0, t0))
    A("s_and_b32 %s, %s, 1" % (t2, sH))
    A("s_lshl_b32 %s, %s, 1" % (t2, t2))
    A("s_sub_u32 %s, 8, %s" % (t1, t2))
    A("s_mul_i32 %s, %s, %s" % (t2, t1, sJ))
    A("s_add_u32 %s, %s, %s" % (t0, t0, t2))
    A("s_lshl_b32 %s, %s, 10" % (t0, t0))
    A("s_add_u32 %s, %s, %s" % (t0, t0, t3))
    A("v_lshl_add_u32 %s, %s, 10, %s" % (vDN0, vG, vN16))
    A("v_add_u32 %s, %s, %s" % (vDN0, t0, vDN0))
    A("s_sub_u32 %s, %s, 5" % (t1, t1))
    A("v_min_u32 %s, %s, %s" % (vDN1, t1, vG))
    A("v_lshl_add_u32 %s, %s, 10, %s" % (vDN1, vDN1, vN16))
    A("s_add_u32 %s, %s, 4096" % (t0, t0))
    A("v_add_u32 %s, %s, %s" % (vDN1, t0, vDN1))
    A("v_and_b32 %s, 1, v0" % vP)
    A("s_lshl_b32 %s, %s, 3" % (t2, s4JW))
    A("v_lshl_add_u32 %s, %s, 2, %s" % (vXF, vP, t2))
    A("s_lshl_b32 %s, %s, 17" % (t0, sH))
    A("s_lshl_b32 %s, %s, 15" % (t2, sW))
    A("s_lshl_b32 %s, %s, 7" % (t3, sJ))
    A("s_add_u32 %s, %s, %s" % (t2, t2, t3))
    A("s_add_u32 %s, %s, %s" % (t2, t2, t0))
    A("s_add_u32 %s, %s, 0x%x" % (t2, t2, MB2))
    A("v_lshrrev_b32 %s, 3, v0" % vS2)
    A("v_and_b32 %s, 7, v0" % u1)
    A("v_lshlrev_b32 %s, 4, %s" % (u1, u1))
    A("v_lshl_add_u32 %s, %s, 12, %s" % (vS2, vS2, u1))
    A("v_add_u32 %s, %s, %s" % (vS2, t2, vS2))
    A("v_lshrrev_b32 %s, 1, %s" % (vS25, vN))
    A("v_lshlrev_b32 %s, 6, %s" % (u1, vP))
    A("v_lshl_add_u32 %s, %s, 12, %s" % (vS25, vS25, u1))
    A("v_lshl_add_u32 %s, %s, 5, %s" % (vS25, u0, vS25))
    A("v_lshrrev_b32 %s, 1, %s" % (u1, vG))
    A("v_lshl_add_u32 %s, %s, 4, %s" % (vS25, u1, vS25))
    A("s_add_u32 %s, %s, 0x%x" % (t2, t2, MB25 - MB2))
    A("v_add_u32 %s, %s, %s" % (vS25, t2, vS25))
    A("s_lshl_b32 %s, %s, 12" % (t3, sJ))
    A("s_add_u32 %s, %s, %s" % (t0, t0, t3))
    A("s_add_u32 %s, %s, 0x%x" % (t0, t0, MB2))
    A("v_lshl_add_u32 %s, v0, 4, %s" % (vL2, t0))
    A("s_lshl_b32 %s, %s, 5" % (t3, sW))
    A("s_add_u32 %s, %s, %s" % (t0, t0, t3))
    A("s_add_u32 %s, %s, 0x%x" % (t0, t0, MB25 - MB2))
    A("v_lshrrev_b32 %s, 1, v0" % u0)
    A("v_lshlrev_b32 %s, 4, %s" % (u1, vP))
    A("v_lshl_add_u32 %s, %s, 7, %s" % (u0, u0, u1))
    A("v_add_u32 %s, %s, %s" % (vL25, t0, u0))
    A("s_lshl_b32 %s, %s, 10" % (t0, s4JW))
    A("s_add_u32 %s, %s, 0x%x" % (t0, t0, MB3))
    A("v_and_b32 %s, 0x3ff, %s" % (u0, u0))
    A("v_add_u32 %s, %s, %s" % (vL3, t0, u0))
    A("s_lshl_b32 %s, %s, 7" % (t3, sH))
    A("s_add_u32 %s, %s, %s" % (t0, t0, t3))
    A("v_add_u32 %s, %s, %s" % (vS3, t0, u1))
    def pretouch2():
        A("s_lshl_b32 %s, %s, 10" % (t0, sW))
        A("v_add_u32 %s, %s, %s" % (u0, t0, vL2))
        A("global_load_dword v158, %s, %s sc1" % (u0, sWS)); issued[0] += 1
        A("v_add_u32 %s, 0x%x, %s" % (u0, MB25 - MB2, u0))
        A("global_load_dword v159, %s, %s sc1" % (u0, sWS)); issued[0] += 1
    if o["pretouch"] == "r":
        A("s_lshl_b32 %s, %s, 10" % (t0, sW))
        A("v_add_u32 %s, %s, %s" % (u0, t0, vL2))
        A("global_load_dword v158, %s, %s sc1" % (u0, sWS)); issued[0] += 1
        A("v_add_u32 %s, 0x%x, %s" % (u0, MB25 - MB2, u0))
        A("global_load_dword v159, %s, %s sc1" % (u0, sWS)); issued[0] += 1
    elif o["pretouch"] == "w":
        A("s_waitcnt lgkmcnt(0)")
        for k in range(4): A("v_mov_b32 v%d, %s" % (PA + k, sTAG))
        A("global_store_dwordx4 %s, v[%d:%d], %s" % (vS2, PA, PA + 3, sWS)); issued[0] += 1
        A("global_store_dwordx4 %s, v[%d:%d], %s" % (vS25, PA, PA + 3, sWS)); issued[0] += 1
    A("v_mov_b32 %s, 0xffff" % u0)
    A("v_lshlrev_b32 %s, %s, %s" % (u0, u1, u0))
    A("v_and_b32 %s, 2, v0" % u1)
    A("v_cmp_eq_u32 vcc, 0, %s" % u1)
    A("v_lshrrev_b32 %s, 1, %s" % (u1, vN))
    A("v_lshlrev_b32 %s, 2, %s" % (vHA, vG))
    A("v_cndmask_b32 %s, 0, %s, vcc" % (vM0, u0))
    A("v_cndmask_b32 %s, %s, 0, vcc" % (vM1, u0))
    for r in range(4):
        A("v_cmp_eq_u32 s[%d:%d], %d, %s" % (44 + 2 * r, 45 + 2 * r, r, u1))
    A("v_lshrrev_b32 %s, 2, %s" % (vMLW, vN))
    A("v_lshlrev_b32 %s, 4, %s" % (u1, vG))
    A("v_lshl_add_u32 %s, %s, 8, %s" % (vQA, vMLW, u1))
    for r in range(4):
        A("v_cndmask_b32 v%d, 0, %s, s[%d:%d]" % (MK + r, u0, 44 + 2 * r, 45 + 2 * r))
    A("s_lshl_b32 %s, %s, 11" % (t0, sW))
    A("v_lshl_add_u32 %s, %s, 9, %s" % (vOW, vG, vN16))
    A("v_add_u32 %s, %s, %s" % (vOW, t0, vOW))
    A("s_lshl_b32 %s, %s, 3" % (t0, sW))
    A("v_lshl_add_u32 %s, %s, 5, %s" % (vMLW, vMLW, t0))
    A("v_bfe_u32 %s, v0, 1, 1" % u0)
    A("v_lshrrev_b32 %s, 2, v0" % u1)
    A("v_lshlrev_b32 %s, 4, %s" % (u1, u1))
    A("v_lshl_add_u32 %s, %s, 8, %s" % (u1, u0, u1))
    A("v_lshl_add_u32 %s, %s, 3, %s" % (u1, vP, u1))
    A("s_lshl_b32 %s, %s, 9" % (t0, sW))
    A("v_add_u32 %s, %s, %s" % (vOR, t0, u1))
    KA = 140
    A("v_and_b32 %s, 3, v0" % u0)
    A("v_lshrrev_b32 %s, 2, %s" % (u1, vN))
    A("v_lshlrev_b32 %s, 8, %s" % (u1, u1))
    A("v_lshl_add_u32 %s, %s, 10, %s" % (u0, u0, u1))
    A("v_xor_b32 %s, %s, %s" % (u1, vG, vN))
    A("v_lshl_add_u32 %s, %s, 4, %s" % (u0, u1, u0))
    A("s_lshl_b32 %s, %s, 13" % (t1, sW))
    A("v_add_u32 v%d, %s, %s" % (KA, t1, u0))
    for s_ in range(1, 4):
        A("v_xor_b32 v%d, %d, v%d" % (KA + s_, s_ << 6, KA))
    A("s_waitcnt lgkmcnt(0)")
    A("s_add_u32 %s, %s, 0x%x" % (sTAG, sTAG, TAGC))
    for i in range(nk_first, 8): kload(i)
    if o["pretouch"] == "k": pretouch2()
    for i in range(8):
        r = VR + i * 4
        load(o["W"], "global_load_dwordx4 v[%d:%d], %s, %s %s" % (r, r + 3, vV0, sV, nt))
        if i < 7: A("v_add_u32 %s, s42, %s" % (vV0, vV0))
    tail = []
    tail.append("global_load_dword %s, %s, %s" % (vXP, vXF, sX))
    for a in range(2):
        r = DNR + a * 4
        tail.append("global_load_dwordx4 v[%d:%d], %s, %s %s" % (r, r + 3, (vDN0, vDN1)[a], sDN, nt))
    for m in range(4):
        r = WOR + m * 4
        tail.append("global_load_dwordx4 v[%d:%d], %s, %s offset:%d %s" % (r, r + 3, (vWO0, vWO1)[m >> 1], sWO, (0, -4096)[(m & 1) == 0], nt))
    nav = [0]
    def tail_issue(n):
        for _ in range(n):
            if tail:
                A(tail.pop(0)); nav[0] += 1
    A("s_waitcnt vmcnt(8)")
    for t in range(2):
        for s in range(4):
            r = KR + (t * 4 + s) * 4
            A("ds_read_b128 v[%d:%d], v%d offset:%d" % (r, r + 3, KA + s, L_K + t * 4096))
    tail_issue(o["ntail0"])
    stamp(2)
    A("s_waitcnt lgkmcnt(0)")
    A("s_barrier")
    stamp(3)
    for s in range(4):
        A("ds_read_b128 v[%d:%d], %s offset:%d" % (QR + 4 * s, QR + 4 * s + 3, vQA, L_Q + s * 64))
    A("s_mov_b32 %s, 0x%x" % (t0, SCALE))
    A("s_mov_b32 %s, 0xffff0000" % t1)
    A("s_mov_b32 %s, 0x%x" % (t2, LOG2E))
    for s in range(4):
        A("s_waitcnt lgkmcnt(%d)" % (3 - s))
        for t in range(2):
            mfma(SR + 4 * t, KR + (t * 4 + s) * 4, QR + 4 * s, None if s == 0 else SR + 4 * t)
    T = KR
    vH0, vH1, vFL = "v%d" % (T + 28), "v%d" % (T + 29), "v%d" % (T + 30)
    A("v_mov_b32 %s, %d" % (vFL, L_FLAG))
    A("s_lshl_b32 %s, %s, 5" % (t3, sW))
    A("v_mov_b32 v%d, %s" % (T + 31, t3))
    A("ds_read_b32 %s, %s" % (vFL, vFL))
    A("s_nop 2")
    C("scores: bf16(qk) -> * scale -> bf16   (the reference's two roundings)")
    for i in range(4):
        A("v_cvt_pk_bf16_f32 v%d, v%d, v%d" % (T + i, SR + 2 * i, SR + 2 * i + 1))
    for i in range(4):
        A("v_lshlrev_b32 v%d, 16, v%d" % (SR + 2 * i, T + i))
        A("v_and_b32 v%d, %s, v%d" % (SR + 2 * i + 1, t1, T + i))
    for i in range(8):
        A("v_mul_f32 v%d, %s, v%d" % (SR + i, t0, SR + i))
    for i in range(4):
        A("v_cvt_pk_bf16_f32 v%d, v%d, v%d" % (T + i, SR + 2 * i, SR + 2 * i + 1))
    for i in range(4):
        A("v_lshlrev_b32 v%d, 16, v%d" % (SR + 2 * i, T + i))
        A("v_and_b32 v%d, %s, v%d" % (SR + 2 * i + 1, t1, T + i))
    vm, vt, vl = "v%d" % (T + 4), "v%d" % (T + 6), "v%d" % (T + 5)
    A("v_max3_f32 %s, v%d, v%d, v%d" % (vm, SR, SR + 1, SR + 2))
    A("v_max3_f32 %s, v%d, v%d, v%d" % (vt, SR + 3, SR + 4, SR + 5))
    A("v_max3_f32 %s, %s, v%d, v%d" % (vm, vm, SR + 6, SR + 7))
    A("v_max_f32 %s, %s, %s" % (vm, vm, vt))
    allred(vm, vt, "v_max_f32", 16)
    allred(vm, vt, "v_max_f32", 32)
    A("v_mul_f32 %s, %s, %s" % (vm, t2, vm))
    for i in range(8):
        A("v_fma_f32 v%d, v%d, %s, -%s" % (SR + i, SR + i, t2, vm))
    for i in range(8):
        A("v_exp_f32 v%d, v%d" % (SR + i, SR + i))
    for i in range(8):
        A("v_cvt_pk_bf16_f32 v%d, v%d, v%d" % (T + 8 + i, SR + i, SR + i))
    for i in range(8):
        A("v_and_b32 v%d, v%d, %s" % (PA + 2 * i, T + 8 + i, vM0))
        A("v_and_b32 v%d, v%d, %s" % (PA + 2 * i + 1, T + 8 + i, vM1))
    stamp(4)
    O0, O1, Y = QR, QR + 4, QR + 8
    def pv(i):
        A("s_waitcnt vmcnt(%d)" % (7 - i + nav[0]))
        if i >= o["tlag"]: tail_issue(1 if i < 7 else 9)
        vr = VR + 4 * i
        mfma16(O0, PA + 2 * i, vr, None if i == 0 else O0)
        mfma16(O1, PA + 2 * i, vr + 2, None if i == 0 else O1)
    A("v_add_f32 %s, v%d, v%d" % (vl, SR, SR + 1))
    A("v_add_f32 %s, v%d, v%d" % (vt, SR + 2, SR + 3))
    A("v_add_f32 v%d, v%d, v%d" % (SR + 4, SR + 4, SR + 5))
    A("v_add_f32 v%d, v%d, v%d" % (SR + 6, SR + 6, SR + 7))
    A("v_add_f32 %s, %s, %s" % (vl, vl, vt))
    A("v_add_f32 v%d, v%d, v%d" % (SR + 4, SR + 4, SR + 6))
    A("v_add_f32 %s, %s, v%d" % (vl, vl, SR + 4))
    allred(vl, vt, "v_add_f32", 16)
    allred(vl, vt, "v_add_f32", 32)
    A("ds_write_b64 %s, v[%d:%d] offset:%d" % (vMLW, T + 4, T + 5, L_ML))
    A("s_waitcnt lgkmcnt(0)")
    A("v_readfirstlane_b32 %s, %s" % (sFAST, vFL))
    HA = T + 16
    ML = T
    OB = T + 8
    G2 = SR
    vM, vLs = "v124", "v125"
    for i in range(o["b2"]): pv(i)
    A("s_barrier")
    A("ds_read_b128 v[%d:%d], v%d offset:%d" % (ML, ML + 3, T + 31, L_ML))
    A("ds_read_b128 v[%d:%d], v%d offset:%d" % (ML + 4, ML + 7, T + 31, L_ML + 16))
    A("ds_read_b32 %s, %s offset:%d" % (vH0, vHA, L_H))
    A("ds_read_b32 %s, %s offset:%d" % (vH1, vHA, L_H + 16))
    A("s_mov_b32 vcc_lo, 0xaaaaaaaa")
    A("s_mov_b32 vcc_hi, 0xaaaaaaaa")
    A("v_mov_b32 v%d, %s" % (G2 + 3, sTAG))
    A("s_waitcnt lgkmcnt(2)")
    A("v_max3_f32 %s, v%d, v%d, v%d" % (vM, ML, ML + 2, ML + 4))
    A("v_max_f32 %s, %s, v%d" % (vM, vM, ML + 6))
    for w_ in range(4):
        A("v_sub_f32 v%d, v%d, %s" % (ML + 2 * w_, ML + 2 * w_, vM))
    for w_ in range(4):
        A("v_exp_f32 v%d, v%d" % (ML + 2 * w_, ML + 2 * w_))
    A("s_waitcnt lgkmcnt(0)")
    A("v_mul_f32 %s, v%d, v%d" % (vLs, ML, ML + 1))
    for w_ in range(1, 4):
        A("v_fmac_f32 %s, v%d, v%d" % (vLs, ML + 2 * w_, ML + 2 * w_ + 1))
    for a in range(2):
        for r in range(4):
            A("v_and_b32 v%d, %s, v%d" % (HA + 4 * a + r, (vH0, vH1)[a], MK + r))
    A("v_cndmask_b32 v%d, %s, %s, vcc" % (G2 + 2, vM, vLs))
    for i in range(o["b2"], 8): pv(i)
    stamp(5)
    if o.get("nosync"):
        A("s_waitcnt vmcnt(0)")
        stamp(6)
        A("s_branch L_done")
    A("s_nop 6")
    A("ds_write_b128 %s, v[%d:%d] offset:%d" % (vOW, O0, O0 + 3, L_O))
    A("ds_write_b128 %s, v[%d:%d] offset:%d" % (vOW, O1, O1 + 3, L_O + 256))
    A("s_waitcnt lgkmcnt(0)")
    A("s_barrier")
    for w_ in range(4):
        A("ds_read_b64 v[%d:%d], %s offset:%d" % (OB + 2 * w_, OB + 2 * w_ + 1, vOR, L_O + w_ * 2048))
    A("s_cmp_eq_u32 %s, 0" % sFAST)
    for w_ in range(4):
        A("s_waitcnt lgkmcnt(%d)" % (3 - w_))
        op = "v_mul_f32" if w_ == 0 else "v_fmac_f32"
        A("%s v%d, v%d, v%d" % (op, G2, ML + 2 * w_, OB + 2 * w_))
        A("%s v%d, v%d, v%d" % (op, G2 + 1, ML + 2 * w_, OB + 2 * w_ + 1))
    tails = []
    def publish(addr, g, name):
        A("s_cbranch_scc1 L_slow_%s" % name)
        A("global_store_dwordx4 %s, v[%d:%d], %s" % (addr, g, g + 3, sWS))
        LB("L_back_%s" % name)
        tails.append((name, addr, g))
    publish(vS2, G2, "h2")
    stamp(6)
    P = T
    for i in range(4):
        A("global_load_dwordx4 v[%d:%d], %s, %s offset:%d sc1" % (P + 4 * i, P + 4 * i + 3, vL2, sWS, i * 1024))
    A("s_mov_b32 %s, %d" % (sCNT, o["spinmax"]))
    A("s_waitcnt vmcnt(5)")
    for a in range(2):
        mfma(Y, HA + 4 * a, DNR + 4 * a, None if a == 0 else Y)
    A("s_branch L_chk2")
    LB("L_poll2")
    MS = ["s[44:45]", "s[46:47]", "s[48:49]", "s[50:51]"]
    for i in range(4):
        if o["mask2"]: A("s_mov_b64 exec, %s" % MS[i])
        A("global_load_dwordx4 v[%d:%d], %s, %s offset:%d sc1" % (P + 4 * i, P + 4 * i + 3, vL2, sWS, i * 1024))
    if o["mask2"]: A("s_mov_b64 exec, -1")
    A("s_sub_u32 %s, %s, 1" % (sCNT, sCNT))
    A("s_cbranch_scc1 L_end")
    LB("L_chk2")
    A("s_waitcnt vmcnt(0)")
    for i in range(4):
        A("v_cmp_ne_u32 %s, %s, v%d" % (MS[i], sTAG, P + 4 * i + 3))
    A("v_max3_f32 %s, v%d, v%d, v%d" % (vM, P + 2, P + 6, P + 10))
    A("s_or_b64 vcc, %s, %s" % (MS[0], MS[1]))
    A("s_or_b64 s[52:53], %s, %s" % (MS[2], MS[3]))
    A("v_max_f32 %s, %s, v%d" % (vM, vM, P + 14))
    A("s_or_b64 vcc, vcc, s[52:53]")
    A("s_cbranch_vccnz L_poll2")
    stamp(7)
    vt2 = "v126"
    A("v_mov_b32_dpp %s, %s quad_perm:[0,0,2,2] %s" % (vM, vM, DPP))
    A("s_nop 1")
    A("v_max_f32_dpp %s, %s, %s row_ror:8 %s" % (vM, vM, vM, DPP))
    allred(vM, vt2, "v_max_f32", 16)
    allred(vM, vt2, "v_max_f32", 32)
    Wt_ = SR
    for i in range(4):
        A("v_sub_f32_dpp v%d, v%d, %s quad_perm:[0,0,2,2] %s" % (Wt_ + i, P + 4 * i + 2, vM, DPP))
    for i in range(4):
        A("v_exp_f32 v%d, v%d" % (Wt_ + i, Wt_ + i))
    a0, a1, den = "v124", "v125", "v126"
    A("v_mul_f32 %s, v%d, v%d" % (a0, Wt_, P))
    A("v_mul_f32 %s, v%d, v%d" % (a1, Wt_, P + 1))
    A("v_mul_f32_dpp %s, v%d, v%d quad_perm:[1,1,3,3] %s" % (den, P + 2, Wt_, DPP))
    for i in range(1, 4):
        A("v_fmac_f32 %s, v%d, v%d" % (a0, Wt_ + i, P + 4 * i))
        A("v_fmac_f32 %s, v%d, v%d" % (a1, Wt_ + i, P + 4 * i + 1))
        A("v_fmac_f32_dpp %s, v%d, v%d quad_perm:[1,1,3,3] %s" % (den, P + 4 * i + 2, Wt_ + i, DPP))
    A("v_add_f32_dpp %s, %s, %s row_ror:8 %s" % (a0, a0, a0, DPP))
    A("v_add_f32_dpp %s, %s, %s row_ror:8 %s" % (a1, a1, a1, DPP))
    A("v_add_f32_dpp %s, %s, %s row_ror:8 %s" % (den, den, den, DPP))
    tA, tB = "v120", "v121"
    A("s_nop 0")
    A("v_permlane32_swap_b32 %s, %s" % (a0, a1))
    A("v_mov_b32 %s, %s" % (tA, den))
    A("v_add_f32 %s, %s, %s" % (a0, a0, a1))
    A("s_nop 0")
    A("v_permlane32_swap_b32 %s, %s" % (tA, den))
    A("v_mov_b32 %s, %s" % (tB, a0))
    A("v_add_f32 %s, %s, %s" % (den, den, tA))
    A("s_nop 0")
    A("v_permlane16_swap_b32 %s, %s" % (tB, a0))
    A("v_mov_b32 %s, %s" % (tA, den))
    A("v_add_f32 %s, %s, %s" % (a0, a0, tB))
    A("s_cmp_eq_u32 %s, 0" % sFAST)
    A("v_permlane16_swap_b32 %s, %s" % (tA, den))
    A("v_add_f32 %s, %s, %s" % (den, den, tA))
    A("v_rcp_f32 %s, %s" % (den, den))
    A("s_nop 0")
    A("v_mul_f32 %s, %s, %s" % (a0, a0, den))
    A("v_cvt_pk_bf16_f32 %s, %s, %s" % (a0, a0, a0))
    A("s_nop 1")
    A("v_mov_b32_dpp %s, %s row_shl:1 row_mask:0xa bank_mask:0xf" % (a0, a0))
    A("s_nop 1")
    WA = T
    for m in range(4):
        for r in range(4):
            A("v_and_b32_dpp v%d, %s, v%d row_newbcast:%d %s" % (WA + 4 * m + r, a0, MK + r, 2 * m, DPP))
        if m > 0:
            mfma(Y, WA + 4 * (m - 1), WOR + 4 * (m - 1), Y)
    A("s_nop 1")
    mfma(Y, WA + 12, WOR + 12, Y)
    A("s_mov_b32 %s, %d" % (sCNT, o["spinmax"]))
    A("s_nop 6")
    A("v_permlane32_swap_b32 v%d, v%d" % (Y, Y + 2))
    A("v_permlane32_swap_b32 v%d, v%d" % (Y + 1, Y + 3))
    A("v_mov_b32 v%d, %s" % (Y + 3, sTAG))
    publish(vS25, Y, "h25")
    stamp(8)
    LB("L_poll25")
    A("global_load_dwordx4 v[%d:%d], %s, %s sc1" % (P, P + 3, vL25, sWS))
    A("s_sub_u32 %s, %s, 1" % (sCNT, sCNT))
    A("s_cbranch_scc1 L_end")
    A("s_waitcnt vmcnt(0)")
    A("v_cmp_ne_u32 vcc, %s, v%d" % (sTAG, P + 3))
    if o["mask2"]:
        A("s_and_b64 exec, exec, vcc")
        A("s_cbranch_scc1 L_poll25")
        A("s_mov_b64 exec, -1")
    else:
        A("s_cbranch_vccnz L_poll25")
    stamp(9)
    def rowsum2(x, y):
        for rot in (2, 4, 8):
            A("v_add_f32_dpp %s, %s, %s row_ror:%d %s" % (x, x, x, rot, DPP))
            A("v_add_f32_dpp %s, %s, %s row_ror:%d %s" % (y, y, y, rot, DPP))
            if rot == 2: A("s_and_b32 %s, %s, 7" % (t0, sJ))
            if rot == 4: A("s_cmp_eq_u32 %s, %s" % (t0, sH))
    x_, y_ = "v%d" % P, "v%d" % (P + 1)
    rowsum2(x_, y_)
    for which in (16, 32):
        A("v_mov_b32 %s, %s" % (tA, x_))
        A("v_mov_b32 %s, %s" % (tB, y_))
        A("s_nop 0")
        A("v_permlane%d_swap_b32 %s, %s" % (which, tA, x_))
        A("v_permlane%d_swap_b32 %s, %s" % (which, tB, y_))
        A("v_add_f32 %s, %s, %s" % (x_, x_, tA))
        A("v_add_f32 %s, %s, %s" % (y_, y_, tB))
    A("s_cbranch_scc1 L_final")
    A("s_mov_b64 exec, 3")
    A("global_store_dwordx4 %s, v[%d:%d], %s sc1" % (vS3, P, P + 3, sWS))
    A("s_branch L_done")
    LB("L_final")
    A("s_lshl_b32 %s, %s, 1" % (t0, sH))
    A("s_lshl_b32 %s, 3, %s" % (t0, t0))
    A("s_andn2_b32 exec_lo, 0xffff, %s" % t0)
    A("s_mov_b32 exec_hi, 0")
    A("s_mov_b32 %s, %d" % (sCNT, o["spinmax"]))
    LB("L_poll3")
    A("global_load_dwordx4 v[%d:%d], %s, %s sc1" % (P, P + 3, vL3, sWS))
    A("s_sub_u32 %s, %s, 1" % (sCNT, sCNT))
    A("s_cbranch_scc1 L_end")
    A("s_waitcnt vmcnt(0)")
    A("v_cmp_ne_u32 vcc, %s, v%d" % (sTAG, P + 3))
    if o["mask2"]:
        A("s_and_b64 exec, exec, vcc")
        A("s_cbranch_scc1 L_poll3")
    else:
        A("s_cbranch_vccnz L_poll3")
    stamp(10)
    A("s_mov_b64 exec, 0xffff")
    A("v_lshlrev_b32 %s, 16, %s" % (tA, vXP))
    A("v_and_b32 %s, 0xffff0000, %s" % (tB, vXP))
    rowsum2(x_, y_)
    A("v_add_f32 %s, %s, %s" % (x_, x_, tA))
    A("v_add_f32 %s, %s, %s" % (y_, y_, tB))
    A("v_cvt_pk_bf16_f32 %s, %s, %s" % (x_, x_, y_))
    A("s_mov_b64 exec, 3")
    A("global_store_dword %s, %s, %s" % (vXF, x_, sOUT))
    A("s_or_b32 %s, s2, %s" % (t0, sW))
    A("s_cbranch_scc1 L_done")
    C("the next launch must not mistake this launch's hand-off words for its own")
    A("v_mov_b32 %s, 0" % tA)
    A("v_mov_b32 %s, %s" % (tB, sTAG))
    A("global_store_dword %s, %s, %s sc1" % (tA, tB, sWS))
    LB("L_done")
    if o.get("pad"):
        LB("L_padspin")
        A("s_memrealtime s[92:93]")
        A("s_waitcnt lgkmcnt(0)")
        A("s_sub_u32 s92, s92, s90")
        A("s_cmp_lt_u32 s92, %d" % o["pad"])
        A("s_cbranch_scc1 L_padspin")
    dump_stamps()
    A("s_endpgm")
    for name, addr, g in tails:
        LB("L_slow_%s" % name)
        A("global_store_dwordx4 %s, v[%d:%d], %s sc1" % (addr, g, g + 3, sWS))
        A("s_branch L_back_%s" % name)
    LB("L_end")
    A("s_endpgm")
    return HEADER.format(lds=o.get("lds", LDS_BYTES), k=KNAME) + "\n".join(L) + FOOTER.format(k=KNAME, vg=o.get("vg", 160), sg=96)


if __name__ == "__main__":
    kw = {}
    out = "parallel_sum__sliding_block_cached__swiglu_ffn__decode.s"
    for a in sys.argv[1:]:
        k, v = a.split("=", 1)
        if k == "out": out = v; continue
        try: v = int(v)
        except ValueError: pass
        kw[k] = v
    open(out, "w").write(gen(**kw))
```

```python
import sys

KNAME = "parallel_sum__sliding_block_cached__swiglu_ffn__decode_kernel"

HEADER = """; Kernarg layout for this problem (96 bytes, ptrs only, base s[0:1]):
;   offset  72: d_out     shape=(1, 1, 512) dtype=bfloat16
; @launch grid=(256,1,1) block=(320,1,1) lds={lds}
.amdgcn_target "amdgcn-amd-amdhsa--gfx950"
.text
.globl {k}
.p2align 8
.type {k},@function
{k}:
"""
FOOTER = """
.section .rodata,"a"
.p2align 6
.amdhsa_kernel {k}
  .amdhsa_next_free_vgpr {vg}
  .amdhsa_next_free_sgpr {sg}
  .amdhsa_accum_offset {vg}
  .amdhsa_group_segment_fixed_size 0
  .amdhsa_kernarg_size 96
  .amdhsa_user_sgpr_count 2
  .amdhsa_user_sgpr_kernarg_segment_ptr 1
  .amdhsa_system_sgpr_workgroup_id_x 1
.end_amdhsa_kernel
"""

MB1A = 0x40000
MB1B = 0x80000
MB2 = 0x100000
MB25 = 0x180000
MB3 = 0x200000
STAMPS = 0x10000000
L_WQ = 0
L_FF = 16384
L_XN = 32768
L_Q = 33792
L_H = 34816
L_FLAG = 34848
L_ML = 34880
L_O = 35072
L_K = L_O + 8192
L_K = (L_K + 1023) // 1024 * 1024
LDS_BYTES = L_K + 32768
TAGC = 0x9E3779B9
LOG2E = 0x3FB8AA3B
SCALE = 0x3DB504F3
EPS = 0x3727C5AC
DPP = "row_mask:0xf bank_mask:0xf"

DEF = dict(stamps=False, spinmax=200000, WK=4, W=6, Wtail=8, b0pos=40, nt="nt", pretouch="k", atries=24,
           prefetch=True, b2=5, ntail0=0, tlag=0, mask2=True, pt1=True, rotm=4, rep3=True)


def gen(**kw):
    o = dict(DEF); o.update(kw)
    L = []
    def A(s): L.append("    " + s)
    def LB(s): L.append(s + ":")
    def C(s): L.append("    ; " + s)
    nt = o["nt"]
    NSTAMP = 12
    role = ["U"]
    def stamp(i):
        if o["stamps"] and (i in (0, 11) or o.get("sel") is None or ("%s%d" % (role[0], i)) in o["sel"].split(",")):
            A("s_memrealtime s[%d:%d]" % (64 + 2 * i, 65 + 2 * i))
    def mfma(d, a, b, c):
        A("v_mfma_f32_16x16x32_bf16 v[%d:%d], v[%d:%d], v[%d:%d], %s" % (d, d + 3, a, a + 3, b, b + 3, "0" if c is None else "v[%d:%d]" % (c, c + 3)))
    def mfma16(d, a, b, c):
        A("v_mfma_f32_16x16x16_bf16 v[%d:%d], v[%d:%d], v[%d:%d], %s" % (d, d + 3, a, a + 1, b, b + 1, "0" if c is None else "v[%d:%d]" % (c, c + 3)))
    def allred(v, tmp, op, which):
        A("v_mov_b32 %s, %s" % (tmp, v))
        A("s_nop 1")
        A("v_permlane%d_swap_b32 %s, %s" % (which, tmp, v))
        A("%s %s, %s, %s" % (op, v, v, tmp))
    sX, sK, sV, sWQ, sWO, sG, sU, sDN, sOUT, sWS = "s[4:5]", "s[6:7]", "s[8:9]", "s[10:11]", "s[12:13]", "s[16:17]", "s[18:19]", "s[20:21]", "s[22:23]", "s[26:27]"
    sW, sH, sJ, sTAG, sXCC, sCNT, sFAST = "s30", "s31", "s32", "s33", "s34", "s35", "s36"
    t0, t1, t2, t3 = "s37", "s38", "s39", "s40"
    def dump_stamps():
        if not o["stamps"]: return
        A("s_mov_b64 exec, 1")
        stamp(11)
        A("s_waitcnt lgkmcnt(0)")
        A("s_mul_i32 %s, s2, 5" % t0)
        A("s_add_u32 %s, %s, %s" % (t0, t0, sW))
        A("s_lshl_b32 %s, %s, 7" % (t0, t0))
        A("s_add_u32 %s, %s, 0x%x" % (t0, t0, STAMPS))
        A("v_mov_b32 v2, %s" % t0)
        for i in range(NSTAMP):
            A("v_mov_b32 v3, s%d" % (64 + 2 * i))
            A("global_store_dword v2, v3, %s offset:%d" % (sWS, 4 * i))
        A("v_mov_b32 v3, %s" % (sCNT if role[0] == "U" or not o.get("asym") else "s56"))
        A("global_store_dword v2, v3, %s offset:%d" % (sWS, 4 * NSTAMP))
        if o.get("dbgfail"):
            for q_, r_ in enumerate(("s84", "s62", "s63")):
                A("v_mov_b32 v3, %s" % r_)
                A("global_store_dword v2, v3, %s offset:%d" % (sWS, 4 * NSTAMP + 8 + 4 * q_))
        A("s_getreg_b32 %s, hwreg(HW_REG_HW_ID)" % t1)
        A("v_mov_b32 v3, %s" % t1)
        A("global_store_dword v2, v3, %s offset:%d" % (sWS, 4 * NSTAMP + 4))

    stamp(0)
    if o.get("pad"): A("s_memrealtime s[90:91]")
    A("s_cmp_ge_u32 s2, 256")
    A("s_cbranch_scc1 L_end")
    A("s_load_dwordx16 s[4:19], s[0:1], 0")
    A("s_load_dwordx8 s[20:27], s[0:1], 64")
    A("v_lshrrev_b32 v1, 6, v0")
    A("v_and_b32 v0, 63, v0")
    A("v_readfirstlane_b32 %s, v1" % sW)
    A("s_and_b32 %s, s2, 7" % sH)
    A("s_lshr_b32 %s, s2, 3" % sJ)
    A("s_cmp_eq_u32 %s, 4" % sW)
    A("s_cbranch_scc0 L_attn")

    C("wave 4: layernorm, one [128 x 64] tile of wq and one of gate/up, exchange of q and of the FFN hidden values")
    A("s_setprio 3")
    if o["prefetch"]:
        A("s_getpc_b64 s[28:29]")
        LB("L_pc")
        A("v_lshlrev_b32 v2, 7, v0")
        A("v_min_u32 v2, L_end-L_pc, v2")
        A("global_load_dword v127, v2, s[28:29]")
    sQK, sNOFF = "s50", "s51"
    A("v_lshlrev_b32 v3, 4, v0")
    A("v_lshrrev_b32 v6, 3, v0")
    A("v_and_b32 v5, 2, v6")
    A("v_and_b32 v7, 7, v0")
    A("v_xor_b32 v5, v5, v7")
    A("v_lshlrev_b32 v7, 4, v5")
    A("s_and_b32 %s, %s, 3" % (sQK, sJ))
    A("s_lshl_b32 %s, %s, 10" % (t0, sH))
    A("s_lshr_b32 %s, %s, 2" % (t1, sJ))
    A("s_lshl_b32 %s, %s, 7" % (t1, t1))
    A("s_lshl_b32 %s, %s, 20" % (t2, sQK))
    A("s_add_u32 %s, %s, %s" % (t0, t0, t1))
    A("s_add_u32 %s, %s, %s" % (t0, t0, t2))
    A("v_lshl_add_u32 v4, v6, 13, v7")
    A("v_add_u32 v4, %s, v4" % t0)
    A("v_xor_b32 v5, 64, v4")
    A("v_add_u32 v5, 0x10000, v5")
    if o["pt1"]:
        C("pull this workgroup's own hand-off lines into L2 before anyone polls them")
        A("s_lshl_b32 %s, %s, 15" % (t0, sH))
        A("s_lshl_b32 %s, %s, 8" % (t1, sJ))
        A("s_add_u32 %s, %s, %s" % (t0, t0, t1))
        A("s_add_u32 %s, %s, 0x%x" % (t0, t0, MB1A))
        A("v_and_b32 v33, 1, v0")
        A("v_bfe_u32 v32, v0, 1, 1")
        A("v_lshlrev_b32 v33, 7, v33")
        A("v_lshl_add_u32 v33, v32, 13, v33")
        A("s_mul_i32 %s, %s, 240" % (t1, sJ))
        A("s_sub_u32 %s, 0x4000, %s" % (t1, t1))
        A("v_cmp_lt_u32 vcc, 3, v0")
        A("v_mov_b32 v32, %s" % t1)
        A("s_nop 0")
        A("v_cndmask_b32 v33, v33, v32, vcc")
        A("v_add_u32 v33, %s, v33" % t0)
    A("s_mov_b32 m0, %d" % L_WQ)
    A("s_mov_b32 %s, 0x20000" % t1)
    if o.get("ucontig"):
        A("s_lshl_b32 %s, s2, 10" % t0)
        A("v_add_u32 v4, %s, v3" % t0)
        A("v_add_u32 v5, 0x40000, v4")
        A("s_mov_b32 %s, 0x80000" % t1)
    A("s_movk_i32 s41, 1024")
    A("s_waitcnt lgkmcnt(0)")
    A("global_load_dwordx4 v[8:11], v3, %s" % sX)
    A("s_load_dword %s, %s, 0" % (sTAG, sWS))
    if o["pt1"]:
        A("global_load_dword v119, v33, %s sc1" % sWS)
    def dma_loop(name, base, step):
        A("s_mov_b32 %s, 4" % t2)
        LB(name)
        for i in range(4):
            vv = ("v4", "v5")[i & 1]
            A("global_load_lds_dwordx4 %s, %s %s" % (vv, base, nt))
            A("s_add_u32 m0, m0, s41")
            A("v_add_u32 %s, %s, %s" % (vv, step, vv))
        A("s_sub_u32 %s, %s, 1" % (t2, t2))
        A("s_cmp_lg_u32 %s, 0" % t2)
        A("s_cbranch_scc1 %s" % name)
    dma_loop("L_wq_loop", sWQ, t1)
    if o["b0pos"] == 16: A("s_barrier")
    A("s_mul_i32 %s, %s, 7" % (t0, sH))
    A("s_add_u32 %s, %s, 1" % (t0, t0))
    A("s_lshr_b32 %s, %s, 1" % (t0, t0))
    A("s_lshr_b32 %s, %s, 3" % (t1, sJ))
    A("s_add_u32 %s, %s, %s" % (t0, t0, t1))
    A("s_mul_i32 %s, %s, 3584" % (t1, sQK))
    A("s_add_u32 %s, %s, %s" % (t0, t0, t1))
    A("s_lshl_b32 %s, %s, 7" % (t0, t0))
    A("v_mul_u32_u24 v4, 3584, v6")
    A("v_add3_u32 v4, v4, v7, %s" % t0)
    A("v_xor_b32 v5, 64, v4")
    A("v_add_u32 v5, %d, v5" % (8 * 3584))
    A("s_mov_b32 %s, %d" % (t1, 16 * 3584))
    if o.get("ucontig"):
        A("s_lshr_b32 %s, s2, 1" % t0)
        A("s_min_u32 %s, %s, 111" % (t0, t0))
        A("s_lshl_b32 %s, %s, 10" % (t0, t0))
        A("v_add_u32 v4, %s, v3" % t0)
        A("v_add_u32 v5, %d, v4" % (112 * 1024))
        A("s_mov_b32 %s, %d" % (t1, 224 * 1024))
    A("s_bitcmp0_b32 %s, %d" % (("s2", 0) if o.get("ucontig") else (sJ, 2)))
    A("s_cselect_b64 s[42:43], %s, %s" % (sG, sU))
    A("s_and_b32 %s, %s, 1" % (t3, sH))
    A("s_lshl_b32 %s, %s, 3" % (t0, t3))
    A("s_add_u32 %s, %s, %s" % (sNOFF, t0, sJ))
    A("s_cmp_ge_u32 %s, 32" % sNOFF)
    A("s_cselect_b64 exec, 1, -1")
    dma_loop("L_ff_loop", "s[42:43]", t1)
    A("s_mov_b64 exec, -1")
    if o["b0pos"] == 32:
        if o.get("b0wait") is not None: A("s_waitcnt vmcnt(%d)" % o["b0wait"])
        A("s_barrier")
    stamp(1)
    XF = 12
    A("s_mov_b32 %s, 0xffff0000" % t1)
    A("s_waitcnt vmcnt(%d)" % (33 if o["pt1"] else 32))
    stamp(2)
    C("layernorm with the reference's bf16 roundings")
    for i in range(4):
        A("v_lshlrev_b32 v%d, 16, v%d" % (XF + 2 * i, 8 + i))
        A("v_and_b32 v%d, %s, v%d" % (XF + 2 * i + 1, t1, 8 + i))
    fill = []
    def F(s): fill.append(s)
    def nop2():
        n = 0
        while fill and n < 2:
            A(fill.pop(0)); n += 1
        if n < 2: A("s_nop %d" % (1 - n))
    TRB = 120
    vAX, vS1, vL1, vL1x, vL1a, vF, vTN, vTB = "v34", "v35", "v36", "v37", "v38", "v39", "v124", "v125"
    sRP, sB1 = "s52", "s53"
    F("v_lshrrev_b32 v126, 4, v0")
    F("v_bfe_u32 v4, v0, 2, 2")
    F("v_lshl_add_u32 v5, v126, 3, v4")
    F("v_and_b32 v6, 3, v0")
    F("v_lshlrev_b32 v7, 3, v6")
    F("v_lshl_add_u32 v5, v5, 7, v7")
    F("v_bfe_u32 v4, v0, 3, 2")
    for ct in range(4):
        F("v_xor_b32 v7, %d, v4" % ct)
        F("v_lshl_add_u32 v%d, v7, 5, v5" % (TRB + ct))
    F("s_lshl_b32 %s, %s, 8" % (t0, sQK))
    F("v_lshl_add_u32 %s, v126, 4, %s" % (vAX, t0))
    F("s_lshl_b32 %s, %s, 15" % (sB1, sH))
    F("s_add_u32 %s, %s, 0x%x" % (sB1, sB1, MB1A))
    def wavesum(v, tmp):
        for rot in (1, 2, 4, 8):
            nop2()
            A("v_add_f32_dpp %s, %s, %s row_ror:%d %s" % (v, v, v, rot, DPP))
        for which in (16, 32):
            A("v_mov_b32 %s, %s" % (tmp, v))
            nop2()
            A("v_permlane%d_swap_b32 %s, %s" % (which, tmp, v))
            A("v_add_f32 %s, %s, %s" % (v, v, tmp))
    def sum8(dst, base, tmp):
        A("v_add_f32 %s, v%d, v%d" % (dst, base, base + 1))
        A("v_add_f32 %s, v%d, v%d" % (tmp, base + 2, base + 3))
        A("v_add_f32 %s, %s, v%d" % (dst, dst, base + 4))
        A("v_add_f32 %s, %s, v%d" % (tmp, tmp, base + 5))
        A("v_add_f32 %s, %s, v%d" % (dst, dst, base + 6))
        A("v_add_f32 %s, %s, v%d" % (tmp, tmp, base + 7))
        A("v_add_f32 %s, %s, %s" % (dst, dst, tmp))
    sum8("v22", XF, "v23")
    wavesum("v22", "v23")
    A("v_mul_f32 v22, 0x3b000000, v22")
    DV = 24
    for i in range(8):
        A("v_sub_f32 v%d, v%d, v22" % (DV + i, XF + i))
    A("v_mul_f32 v32, v%d, v%d" % (DV, DV))
    A("v_mul_f32 v23, v%d, v%d" % (DV + 1, DV + 1))
    for i in range(2, 8):
        A("v_fmac_f32 %s, v%d, v%d" % (("v32", "v23")[i & 1], DV + i, DV + i))
    A("v_add_f32 v32, v32, v23")
    wavesum("v32", "v23")
    A("v_mul_f32 v32, 0x3b000000, v32")
    A("v_cvt_pk_bf16_f32 v22, v22, v32")
    A("v_and_b32 v32, %s, v22" % t1)
    A("v_lshlrev_b32 v22, 16, v22")
    A("v_add_f32 v32, 0x%x, v32" % EPS)
    A("v_cvt_pk_bf16_f32 v32, v32, v32")
    A("v_and_b32 v32, %s, v32" % t1)
    A("v_sqrt_f32 v32, v32")
    for i in range(8):
        A("v_sub_f32 v%d, v%d, v22" % (XF + i, XF + i))
    A("v_cvt_pk_bf16_f32 v32, v32, v32")
    A("v_and_b32 v32, %s, v32" % t1)
    A("v_rcp_f32 v32, v32")
    for i in range(4):
        A("v_cvt_pk_bf16_f32 v%d, v%d, v%d" % (8 + i, XF + 2 * i, XF + 2 * i + 1))
    for i in range(4):
        A("v_lshlrev_b32 v%d, 16, v%d" % (XF + 2 * i, 8 + i))
        A("v_and_b32 v%d, %s, v%d" % (XF + 2 * i + 1, t1, 8 + i))
    for i in range(8):
        A("v_mul_f32 v%d, v%d, v32" % (XF + i, XF + i))
    for i in range(4):
        A("v_cvt_pk_bf16_f32 v%d, v%d, v%d" % (8 + i, XF + 2 * i, XF + 2 * i + 1))
    while fill: A(fill.pop(0))
    A("ds_write_b128 v3, v[8:11] offset:%d" % L_XN)
    A("s_lshl_b32 %s, %s, 8" % (t2, sJ))
    A("s_add_u32 %s, %s, %s" % (t2, t2, sB1))
    A("v_lshrrev_b32 v4, 2, v0")
    A("v_lshl_add_u32 %s, v4, 4, %s" % (vS1, t2))
    A("s_waitcnt lgkmcnt(0)")
    AF = 40
    for m in range(4):
        A("ds_read_b128 v[%d:%d], %s offset:%d" % (AF + 4 * m, AF + 4 * m + 3, vAX, L_XN + m * 64))
    A("s_add_u32 %s, %s, 0x%x" % (sTAG, sTAG, TAGC))
    A("v_lshlrev_b32 v4, 2, v6")
    A("v_lshrrev_b32 %s, v4, %s" % (vTN, sTAG))
    A("v_and_b32 %s, 15, %s" % (vTN, vTN))
    A("v_lshlrev_b32 v4, 3, v6")
    A("v_lshrrev_b32 %s, v4, %s" % (vTB, sTAG))
    A("v_and_b32 %s, 0xff, %s" % (vTB, vTB))
    A("s_mov_b32 s44, 0")
    A("s_mov_b32 s45, -1")
    if o["b0pos"] == 40: A("s_barrier")
    stamp(3)
    BF = 56
    D0 = 88
    GR = 24
    def gemv(lbase, vm0):
        def rd(m, ct):
            b = BF + 16 * (m & 1)
            for hh in range(2):
                A("ds_read_b64_tr_b16 v[%d:%d], v%d offset:%d" % (b + 4 * ct + 2 * hh, b + 4 * ct + 2 * hh + 1, TRB + ct, lbase + m * 4096 + hh * 512))
        A("s_waitcnt vmcnt(%d)" % (vm0 + 12))
        for ct in range(4): rd(0, ct)
        for m in range(4):
            b = BF + 16 * (m & 1)
            if m < 3: A("s_waitcnt vmcnt(%d)" % (vm0 + 8 - 4 * m))
            for ct in range(4):
                A("s_waitcnt lgkmcnt(%d)" % (6 if m < 3 else 6 - 2 * ct))
                mfma(D0 + 4 * ct, AF + 4 * m, b + 4 * ct, None if m == 0 else D0 + 4 * ct)
                if m < 3: rd(m + 1, ct)
    def pack(maskc, vt):
        A("s_mov_b32 vcc_lo, 0xffff0000")
        A("s_mov_b32 vcc_hi, 0xffff0000")
        A("s_movk_i32 %s, 0x%x" % (t0, maskc))
        A("s_nop 2")
        A("v_cndmask_b32 v%d, v%d, v%d, vcc" % (GR, D0, D0 + 4))
        A("s_nop 0")
        A("v_cndmask_b32 v%d, v%d, v%d, vcc" % (GR + 1, D0 + 8, D0 + 12))
        A("v_cndmask_b32 v%d, v%d, v%d, s[44:45]" % (GR, GR, GR + 1))
        A("v_and_or_b32 v%d, v%d, %s, %s" % (GR, GR, t0, vt))
        A("v_add_u32 v22, 0x%x, %s" % (MB1B - MB1A, vS1))
        A("s_nop 0")
        for k in range(1, 4):
            A("v_mov_b32_dpp v%d, v%d quad_perm:[%d,%d,%d,%d] %s" % (GR + k, GR, k, k, k, k, DPP))
        A("s_mov_b32 exec_lo, 0x11111111")
        A("s_mov_b32 exec_hi, 0x11111111")
        A("global_store_dwordx4 %s, v[%d:%d], %s" % (vS1, GR, GR + 3, sWS))
        A("global_store_dwordx4 v22, v[%d:%d], %s sc1" % (GR, GR + 3, sWS))
        A("s_mov_b64 exec, -1")
    gemv(L_WQ, 16)
    if o["b0pos"] == 45: A("s_barrier")
    pack(0xfff0, vTN)
    stamp(4)
    XG = 28
    A("s_getreg_b32 %s, hwreg(HW_REG_XCC_ID, 0, 4)" % sXCC)
    A("s_and_b32 %s, %s, 0xff" % (t0, sTAG))
    A("s_lshl_b32 %s, %s, 8" % (t2, sXCC))
    A("s_or_b32 s54, %s, %s" % (t0, t2))
    A("v_mov_b32 v%d, s54" % XG)
    for k in range(1, 4):
        A("s_bfe_u32 %s, %s, 0x%x" % (t0, sTAG, 0x80000 | (8 * k)))
        A("v_mov_b32 v%d, %s" % (XG + k, t0))
    A("s_lshl_b32 %s, %s, 4" % (t2, sJ))
    A("s_add_u32 %s, %s, %s" % (t2, t2, sB1))
    A("s_add_u32 %s, %s, 0x4000" % (t2, t2))
    A("v_mov_b32 v22, %s" % t2)
    A("v_add_u32 v23, 0x%x, v22" % (MB1B - MB1A))
    A("s_mov_b64 exec, 1")
    A("global_store_dwordx4 v22, v[%d:%d], %s" % (XG, XG + 3, sWS))
    A("global_store_dwordx4 v23, v[%d:%d], %s sc1" % (XG, XG + 3, sWS))
    A("s_mov_b64 exec, -1")
    if o["b0pos"] == 50: A("s_barrier")
    A("v_add_u32 %s, 0x2000, %s" % (vS1, vS1))
    A("s_cmp_ge_u32 %s, 32" % sNOFF)
    A("s_cbranch_scc1 L_noff2")
    gemv(L_FF, 4)
    pack(0xff00, vTB)
    LB("L_noff2")
    stamp(7)
    if o.get("nosync"):
        A("s_barrier")
        A("s_mov_b32 %s, 0" % sCNT)
        dump_stamps()
        A("s_endpgm")
    A("v_and_b32 v4, 15, v0")
    A("v_lshlrev_b32 v4, 4, v4")
    A("v_lshl_add_u32 v4, v126, 10, v4")
    A("s_add_u32 %s, %s, 2432" % (t0, sB1))
    A("v_add_u32 %s, %s, v4" % (vL1, t0))
    A("v_and_b32 v4, 31, v0")
    A("s_add_u32 %s, %s, 0x4000" % (t0, sB1))
    A("v_lshl_add_u32 %s, v4, 4, %s" % (vL1x, t0))
    A("s_lshl_b32 %s, %s, 1" % (t2, t3))
    A("s_sub_u32 %s, 8, %s" % (sRP, t2))
    A("s_mul_i32 %s, %s, %s" % (t2, sRP, sJ))
    A("s_sub_u32 %s, %s, 1" % (t0, sRP))
    A("v_and_b32 v4, 7, v0")
    A("v_min_u32 v4, %s, v4" % t0)
    A("v_add_u32 %s, %s, v4" % (vF, t2))
    A("v_lshrrev_b32 v4, 6, %s" % vF)
    A("v_bfe_u32 v5, v0, 3, 1")
    A("v_lshl_add_u32 v4, v4, 1, v5")
    A("v_lshl_add_u32 v4, v4, 2, v126")
    A("v_bfe_u32 v5, %s, 2, 4" % vF)
    A("v_lshlrev_b32 v5, 4, v5")
    A("v_lshl_add_u32 v4, v4, 8, v5")
    A("s_add_u32 %s, %s, 0x2000" % (t0, sB1))
    A("v_add_u32 %s, %s, v4" % (vL1a, t0))
    for k in range(4):
        A("s_bfe_u32 s%d, %s, 0x%x" % (56 + k, sTAG, 0x40000 | (4 * k)))
    A("s_mov_b32 s60, 0x0c0c0400")
    A("s_mov_b32 s61, 0x04000c0c")
    P = 40
    PX, PA_ = 72, 76
    A("s_mov_b32 %s, 0" % sCNT)
    def switch_copy(regs):
        A("s_add_u32 %s, %s, 1" % (sCNT, sCNT))
        A("s_cmp_eq_u32 %s, %d" % (sCNT, o["atries"]))
        A("s_cselect_b32 %s, 0x%x, 0" % (t0, MB1B - MB1A))
        for r in regs: A("v_add_u32 %s, %s, %s" % (r, t0, r))
        A("s_cmp_gt_u32 %s, %d" % (sCNT, o["spinmax"]))
        A("s_cbranch_scc1 L_end")
    def bytecheck(p, dst):
        A("v_perm_b32 v22, v%d, v%d, s60" % (p + 1, p))
        A("v_perm_b32 v23, v%d, v%d, s61" % (p + 3, p + 2))
        A("v_or_b32 v22, v22, v23")
        A("v_cmp_ne_u32 %s, %s, v22" % (dst, sTAG))
    stamp(9)
    LB("L_poll1")
    stamp(8)
    for i in range(2):
        for q in range(4):
            r = P + 16 * i + 4 * q
            A("global_load_dwordx4 v[%d:%d], %s, %s offset:%d sc1" % (r, r + 3, vL1, sWS, i * 4096 + q * 256 - 2432))
    A("global_load_dwordx4 v[%d:%d], %s, %s sc1" % (PX, PX + 3, vL1x, sWS))
    A("global_load_dwordx4 v[%d:%d], %s, %s sc1" % (PA_, PA_ + 3, vL1a, sWS))
    switch_copy([vL1, vL1x, vL1a])
    for g_ in range(8):
        A("s_waitcnt vmcnt(%d)" % (9 - g_))
        for k in range(4):
            A("v_xor_b32 v%d, s%d, v%d" % (P + 4 * g_ + k, 56 + k, P + 4 * g_ + k))
        if g_ == 0:
            A("v_or3_b32 v21, v%d, v%d, v%d" % (P, P + 1, P + 2))
            A("v_or_b32 v21, v21, v%d" % (P + 3))
        else:
            A("v_or3_b32 v21, v21, v%d, v%d" % (P + 4 * g_, P + 4 * g_ + 1))
            A("v_or3_b32 v21, v21, v%d, v%d" % (P + 4 * g_ + 2, P + 4 * g_ + 3))
    A("v_and_b32 v21, 15, v21")
    A("s_waitcnt vmcnt(1)")
    bytecheck(PX, "vcc")
    A("v_cmp_ne_u32 s[46:47], 0, v21")
    if o.get("dbgfail"):
        A("s_cmp_eq_u32 %s, 1" % sCNT)
        A("s_cselect_b32 s84, vcc_lo, s84")
        A("s_cselect_b32 s62, s46, s62")
        A("s_cselect_b32 s63, s47, s63")
    A("s_or_b64 vcc, vcc, s[46:47]")
    A("s_cbranch_vccnz L_poll1")
    stamp(5)
    for i in range(2):
        b = P + 16 * i
        for k in range(4):
            A("v_add_f32 v%d, v%d, v%d" % (b + k, b + k, b + 4 + k))
            A("v_add_f32 v%d, v%d, v%d" % (b + 8 + k, b + 8 + k, b + 12 + k))
        for k in range(4):
            A("v_add_f32 v%d, v%d, v%d" % (b + k, b + k, b + 8 + k))
        A("v_cvt_pk_bf16_f32 v%d, v%d, v%d" % (b, b, b + 1))
        A("v_cvt_pk_bf16_f32 v%d, v%d, v%d" % (b + 1, b + 2, b + 3))
    A("v_lshlrev_b32 v22, 3, v0")
    A("ds_write_b64 v22, v[%d:%d] offset:%d" % (P, P + 1, L_Q))
    A("ds_write_b64 v22, v[%d:%d] offset:%d" % (P + 16, P + 17, L_Q + 512))
    A("v_cmp_ne_u32 vcc, s54, v%d" % PX)
    A("s_cmp_eq_u64 vcc, 0")
    A("s_cselect_b32 %s, 1, 0" % sFAST)
    if o.get("forceslow"): A("s_mov_b32 %s, 0" % sFAST)
    A("v_mov_b32 v26, %s" % sFAST)
    A("v_mov_b32 v22, %d" % L_FLAG)
    A("ds_write_b32 v22, v26")
    A("s_waitcnt vmcnt(0)")
    bytecheck(PA_, "vcc")
    A("s_cbranch_vccz L_aux_ok")
    A("global_load_dwordx4 v[%d:%d], %s, %s sc1" % (PA_, PA_ + 3, vL1a, sWS))
    A("s_waitcnt lgkmcnt(0)")
    A("s_barrier")
    A("s_mov_b32 s55, 1")
    A("s_branch L_chk_aux")
    LB("L_poll_aux")
    A("global_load_dwordx4 v[%d:%d], %s, %s sc1" % (PA_, PA_ + 3, vL1a, sWS))
    switch_copy([vL1a])
    LB("L_chk_aux")
    A("s_waitcnt vmcnt(0)")
    bytecheck(PA_, "vcc")
    A("s_cbranch_vccnz L_poll_aux")
    A("s_branch L_aux_go")
    LB("L_aux_ok")
    A("s_mov_b32 s55, 0")
    LB("L_aux_go")
    A("s_movk_i32 %s, 0xff00" % t0)
    A("v_and_b32 v23, 1, %s" % vF)
    A("v_cmp_eq_u32 vcc, 0, v23")
    A("v_and_b32 v23, 2, %s" % vF)
    A("v_cmp_eq_u32 s[46:47], 0, v23")
    A("v_cndmask_b32 v24, v%d, v%d, vcc" % (PA_ + 1, PA_))
    A("v_cndmask_b32 v25, v%d, v%d, vcc" % (PA_ + 3, PA_ + 2))
    A("v_cndmask_b32 v24, v25, v24, s[46:47]")
    A("v_and_b32 v24, %s, v24" % t0)
    allred("v24", "v23", "v_add_f32", 16)
    allred("v24", "v23", "v_add_f32", 32)
    A("v_cvt_pk_bf16_f32 v24, v24, v24")
    A("v_and_b32 v24, %s, v24" % t1)
    A("v_mul_f32 v25, 0x%x, v24" % (LOG2E | 0x80000000))
    A("v_exp_f32 v25, v25")
    A("v_mov_b32_dpp v26, v24 row_ror:8 %s" % DPP)
    A("v_add_f32 v25, 1.0, v25")
    A("v_rcp_f32 v25, v25")
    A("v_cmp_le_u32 vcc, %s, v0" % sRP)
    A("v_mul_f32 v25, v24, v25")
    A("v_cvt_pk_bf16_f32 v25, v25, v25")
    A("v_and_b32 v25, %s, v25" % t1)
    A("v_mul_f32 v25, v25, v26")
    A("v_cvt_pk_bf16_f32 v25, v25, v25")
    A("v_cndmask_b32 v25, v25, 0, vcc")
    A("v_lshlrev_b32 v22, 2, v0")
    A("s_mov_b64 exec, 0xff")
    A("ds_write_b32 v22, v25 offset:%d" % L_H)
    A("s_waitcnt lgkmcnt(0)")
    stamp(6)
    A("s_cmp_lg_u32 s55, 0")
    A("s_cbranch_scc1 L_unit_exit")
    A("s_barrier")
    LB("L_unit_exit")
    dump_stamps()
    A("s_endpgm")

    role[0] = "A"
    LB("L_attn")
    vK0, vK1, vV0, vV1 = "v2", "v3", "v4", "v5"
    vWO0, vWO1, vDN0, vDN1, vXF, vXP = "v6", "v7", "v8", "v9", "v10", "v1"
    vS2, vL2, vS25, vL25, vL3, vS3 = "v11", "v12", "v13", "v14", "v15", "v150"
    KR, VR, WOR, DNR, QR, SR, PA, MK = 16, 48, 80, 96, 104, 120, 128, 146
    vM0, vM1, vQA, vOW, vOR, vMLW, vHA = "v151", "v152", "v153", "v154", "v155", "v156", "v157"
    vN, vG, vN16, vP = "v120", "v121", "v122", "v123"
    u0, u1 = "v124", "v125"
    s4JW = "s41"
    C("K and V: load i = 1 KB block (4 keys) number 128 i + 4j + w of the head's window; K goes through LDS")
    A("s_lshl_b32 %s, %s, 24" % (t0, sH))
    A("s_lshl_b32 %s, %s, 2" % (s4JW, sJ))
    A("s_add_u32 %s, %s, %s" % (s4JW, s4JW, sW))
    A("s_lshl_b32 %s, %s, 10" % (t2, s4JW))
    A("s_add_u32 %s, %s, %s" % (t0, t0, t2))
    A("s_add_u32 %s, %s, 0xF00000" % (t0, t0))
    A("v_and_b32 %s, 15, v0" % vN)
    A("v_lshrrev_b32 %s, 4, v0" % vG)
    A("v_lshlrev_b32 %s, 4, %s" % (vN16, vN))
    A("v_lshl_add_u32 %s, v0, 4, %s" % (vV0, t0))
    A("v_lshlrev_b32 %s, 6, %s" % (u0, vG))
    A("v_xor_b32 %s, %s, %s" % (vK0, u0, vV0))
    A("s_lshl_b32 %s, %s, 13" % (t1, sW))
    A("s_add_u32 m0, %s, %d" % (t1, L_K))
    A("s_mov_b32 s42, 0x20000")
    A("s_movk_i32 s43, 1024")
    A("s_waitcnt lgkmcnt(0)")
    A("s_load_dword %s, %s, 0" % (sTAG, sWS))
    if o.get("asym"):
        C("groups that started earlier have raised their flag: a late group asks memory with a wider window")
        A("v_and_b32 v158, 7, v0")
        A("v_lshlrev_b32 v158, 2, v158")
        A("global_load_dword v159, v158, s[24:25] sc1")
        A("s_or_b32 %s, %s, %s" % (t1, sJ, sW))
        A("s_cbranch_scc1 L_noflag")
        A("s_lshl_b32 %s, %s, 2" % (t1, sH))
        A("v_mov_b32 v158, %s" % t1)
        A("v_mov_b32 v157, 1")
        A("global_store_dword v158, v157, s[24:25] sc1")
        LB("L_noflag")
    if o["b0pos"]: A("s_barrier")
    stamp(1)
    issued = [0]
    uid = [0]
    if o.get("asym"):
        A("s_waitcnt vmcnt(0)")
        A("v_cmp_ne_u32 vcc, 0, v159")
        A("s_lshl_b32 %s, 1, %s" % (t1, sH))
        A("s_andn2_b32 %s, vcc_lo, %s" % (t1, t1))
        A("s_and_b32 %s, %s, 0xff" % (t1, t1))
        A("s_bcnt1_i32_b32 s56, %s" % t1)
        A("s_cmp_ge_u32 s56, %d" % o.get("lateth", 3))
        A("s_cselect_b64 s[54:55], -1, 0")
    def load(w, txt):
        if o.get("asym"):
            wb = w + o["asym"]
            if issued[0] >= wb: A("s_waitcnt vmcnt(%d)" % (wb - 1))
            if issued[0] >= w:
                uid[0] += 1
                A("s_mov_b64 vcc, s[54:55]")
                A("s_cbranch_vccnz L_sk%d" % uid[0])
                A("s_waitcnt vmcnt(%d)" % (w - 1))
                LB("L_sk%d" % uid[0])
        elif issued[0] >= w:
            A("s_waitcnt vmcnt(%d)" % (w - 1))
        A(txt); issued[0] += 1
    def rot(i): return (i * o["rotm"]) & 127
    def kload(i):
        load(o["WK"], "global_load_lds_dwordx4 %s, %s %s" % (vK0, sK, nt))
        if i < 7:
            A("s_add_u32 m0, m0, s43")
            A("v_xor_b32 %s, %d, %s" % (vK0, (((i & 3) ^ ((i + 1) & 3)) << 4) | ((rot(i) ^ rot(i + 1)) << 10), vK0))
            A("v_add_u32 %s, s42, %s" % (vK0, vK0))
    nk_first = min(o["WK"], 8)
    for i in range(nk_first): kload(i)
    C("address and mask setup in the shadow of the K loads")
    A("s_lshl_b32 %s, %s, 19" % (t0, sH))
    A("s_lshl_b32 %s, %s, 14" % (t2, sJ))
    A("s_add_u32 %s, %s, %s" % (t0, t0, t2))
    A("s_lshl_b32 %s, %s, 8" % (t3, sW))
    A("s_add_u32 %s, %s, %s" % (t0, t0, t3))
    A("s_add_u32 %s, %s, 0x1000" % (t0, t0))
    A("v_lshl_add_u32 %s, %s, 10, %s" % (vDN0, vG, vN16))
    A("v_add_u32 %s, %s, %s" % (vWO0, t0, vDN0))
    A("v_add_u32 %s, 0x2000, %s" % (vWO1, vWO0))
    A("s_mul_i32 %s, %s, 7" % (t0, sH))
    A("s_add_u32 %s, %s, 1" % (t0, t0))
    A("s_lshr_b32 %s, %s, 1" % (t0, t0))
    A("s_lshl_b32 %s, %s, 6" % (t0, t0))
    A("s_and_b32 %s, %s, 1" % (t2, sH))
    A("s_lshl_b32 %s, %s, 1" % (t2, t2))
    A("s_sub_u32 %s, 8, %s" % (t1, t2))
    A("s_mul_i32 %s, %s, %s" % (t2, t1, sJ))
    A("s_add_u32 %s, %s, %s" % (t0, t0, t2))
    A("s_lshl_b32 %s, %s, 10" % (t0, t0))
    A("s_add_u32 %s, %s, %s" % (t0, t0, t3))
    A("v_add_u32 %s, %s, %s" % (vDN0, t0, vDN0))
    A("s_sub_u32 %s, %s, 5" % (t1, t1))
    A("v_min_u32 %s, %s, %s" % (vDN1, t1, vG))
    A("v_lshl_add_u32 %s, %s, 10, %s" % (vDN1, vDN1, vN16))
    A("s_add_u32 %s, %s, 4096" % (t0, t0))
    A("v_add_u32 %s, %s, %s" % (vDN1, t0, vDN1))
    A("v_and_b32 %s, 1, v0" % vP)
    A("v_and_b32 %s, 1, %s" % (u0, vG))
    A("s_lshl_b32 %s, %s, 3" % (t2, s4JW))
    A("v_lshl_add_u32 %s, %s, 2, %s" % (vXF, u0, t2))
    A("s_lshl_b32 %s, %s, 16" % (t0, sH))
    A("s_lshl_b32 %s, %s, 14" % (t2, sW))
    A("s_lshl_b32 %s, %s, 6" % (t3, sJ))
    A("s_add_u32 %s, %s, %s" % (t2, t2, t3))
    A("s_add_u32 %s, %s, %s" % (t2, t2, t0))
    A("s_add_u32 %s, %s, 0x%x" % (t2, t2, MB2))
    A("v_lshrrev_b32 %s, 3, v0" % vS2)
    A("v_bfe_u32 %s, v0, 1, 2" % u1)
    A("v_lshlrev_b32 %s, 4, %s" % (u1, u1))
    A("v_lshl_add_u32 %s, %s, 11, %s" % (vS2, vS2, u1))
    A("v_add_u32 %s, %s, %s" % (vS2, t2, vS2))
    A("v_lshrrev_b32 %s, 1, %s" % (vS25, vN))
    A("v_lshlrev_b32 %s, 5, %s" % (u1, vP))
    A("v_lshl_add_u32 %s, %s, 11, %s" % (vS25, vS25, u1))
    A("v_lshl_add_u32 %s, %s, 4, %s" % (vS25, u0, vS25))
    A("s_add_u32 %s, %s, 0x%x" % (t2, t2, MB25 - MB2))
    A("v_add_u32 %s, %s, %s" % (vS25, t2, vS25))
    A("s_lshl_b32 %s, %s, 11" % (t3, sJ))
    A("s_add_u32 %s, %s, %s" % (t0, t0, t3))
    A("s_add_u32 %s, %s, 0x%x" % (t0, t0, MB2))
    A("v_lshl_add_u32 %s, v0, 4, %s" % (vL2, t0))
    A("s_lshl_b32 %s, %s, 4" % (t3, sW))
    A("s_add_u32 %s, %s, %s" % (t0, t0, t3))
    A("s_add_u32 %s, %s, 0x%x" % (t0, t0, MB25 - MB2))
    A("v_and_b32 %s, 31, v0" % u1)
    A("v_lshl_add_u32 %s, %s, 6, %s" % (vL25, u1, t0))
    A("s_lshr_b32 %s, %s, 3" % (t0, s4JW))
    A("s_lshl_b32 %s, %s, 14" % (t0, t0))
    A("s_and_b32 %s, %s, 7" % (t3, s4JW))
    A("s_lshl_b32 %s, %s, 10" % (t3, t3))
    A("s_add_u32 %s, %s, %s" % (t0, t0, t3))
    A("s_add_u32 %s, %s, 0x%x" % (t0, t0, MB3))
    A("v_lshl_add_u32 %s, %s, 4, %s" % (u0, u0, t0))
    A("v_and_b32 %s, 7, v0" % u1)
    A("v_lshl_add_u32 %s, %s, 7, %s" % (vL3, u1, u0))
    A("s_lshl_b32 %s, %s, 7" % (t3, sH))
    A("v_lshl_add_u32 %s, %s, 13, %s" % (u0, vP, u0))
    A("v_add_u32 %s, %s, %s" % (vS3, t3, u0))
    A("v_lshlrev_b32 %s, 4, %s" % (u1, vP))
    def pretouch2():
        C("pull this workgroup's incoming hand-off lines into L2 (waves 0,1: hop 2; waves 2,3: hop 2.5)")
        A("s_and_b32 %s, %s, 1" % (t0, sW))
        A("s_lshl_b32 %s, %s, 10" % (t0, t0))
        A("s_lshr_b32 %s, %s, 1" % (t3, sW))
        A("s_mul_i32 %s, %s, 0x%x" % (t3, t3, MB25 - MB2))
        A("s_add_u32 %s, %s, %s" % (t0, t0, t3))
        A("v_add_u32 v158, %s, %s" % (t0, vL2))
        A("global_load_dword v159, v158, %s sc1" % sWS); issued[0] += 1
    if o["pretouch"] == "r": pretouch2()
    A("v_mov_b32 %s, 0xffff" % u0)
    A("v_lshlrev_b32 %s, %s, %s" % (u0, u1, u0))
    A("v_and_b32 %s, 2, v0" % u1)
    A("v_cmp_eq_u32 vcc, 0, %s" % u1)
    A("v_lshrrev_b32 %s, 1, %s" % (u1, vN))
    A("v_lshlrev_b32 %s, 2, %s" % (vHA, vG))
    A("v_cndmask_b32 %s, 0, %s, vcc" % (vM0, u0))
    A("v_cndmask_b32 %s, %s, 0, vcc" % (vM1, u0))
    for r in range(4):
        A("v_cmp_eq_u32 s[%d:%d], %d, %s" % (44 + 2 * r, 45 + 2 * r, r, u1))
    A("v_lshrrev_b32 %s, 2, %s" % (vMLW, vN))
    A("v_lshlrev_b32 %s, 4, %s" % (u1, vG))
    A("v_lshl_add_u32 %s, %s, 8, %s" % (vQA, vMLW, u1))
    for r in range(4):
        A("v_cndmask_b32 v%d, 0, %s, s[%d:%d]" % (MK + r, u0, 44 + 2 * r, 45 + 2 * r))
    A("s_lshl_b32 %s, %s, 11" % (t0, sW))
    A("v_lshl_add_u32 %s, %s, 9, %s" % (vOW, vG, vN16))
    A("v_add_u32 %s, %s, %s" % (vOW, t0, vOW))
    A("s_lshl_b32 %s, %s, 3" % (t0, sW))
    A("v_lshl_add_u32 %s, %s, 5, %s" % (vMLW, vMLW, t0))
    A("v_bfe_u32 %s, v0, 1, 1" % u0)
    A("v_lshrrev_b32 %s, 2, v0" % u1)
    A("v_lshlrev_b32 %s, 4, %s" % (u1, u1))
    A("v_lshl_add_u32 %s, %s, 8, %s" % (u1, u0, u1))
    A("v_lshl_add_u32 %s, %s, 3, %s" % (u1, vP, u1))
    A("s_lshl_b32 %s, %s, 9" % (t0, sW))
    A("v_add_u32 %s, %s, %s" % (vOR, t0, u1))
    KA = 140
    A("v_and_b32 %s, 3, v0" % u0)
    A("v_lshrrev_b32 %s, 2, %s" % (u1, vN))
    A("v_lshlrev_b32 %s, 8, %s" % (u1, u1))
    A("v_lshl_add_u32 %s, %s, 10, %s" % (u0, u0, u1))
    A("v_xor_b32 %s, %s, %s" % (u1, vG, vN))
    A("v_lshl_add_u32 %s, %s, 4, %s" % (u0, u1, u0))
    A("s_lshl_b32 %s, %s, 13" % (t1, sW))
    A("v_add_u32 v%d, %s, %s" % (KA, t1, u0))
    for s_ in range(1, 4):
        A("v_xor_b32 v%d, %d, v%d" % (KA + s_, s_ << 6, KA))
    A("s_waitcnt lgkmcnt(0)")
    A("s_add_u32 %s, %s, 0x%x" % (sTAG, sTAG, TAGC))
    for i in range(nk_first, 8): kload(i)
    if o["pretouch"] == "k": pretouch2()
    for i in range(8):
        r = VR + i * 4
        load(o["W"], "global_load_dwordx4 v[%d:%d], %s, %s %s" % (r, r + 3, vV0, sV, nt))
        if i < 7:
            if rot(i) ^ rot(i + 1): A("v_xor_b32 %s, %d, %s" % (vV0, (rot(i) ^ rot(i + 1)) << 10, vV0))
            A("v_add_u32 %s, s42, %s" % (vV0, vV0))
    tail = []
    tail.append("global_load_dword %s, %s, %s" % (vXP, vXF, sX))
    for a in range(2):
        r = DNR + a * 4
        tail.append("global_load_dwordx4 v[%d:%d], %s, %s %s" % (r, r + 3, (vDN0, vDN1)[a], sDN, nt))
    for m in range(4):
        r = WOR + m * 4
        tail.append("global_load_dwordx4 v[%d:%d], %s, %s offset:%d %s" % (r, r + 3, (vWO0, vWO1)[m >> 1], sWO, (0, -4096)[(m & 1) == 0], nt))
    nav = [0]
    def tail_issue(n):
        for _ in range(n):
            if tail:
                A(tail.pop(0)); nav[0] += 1
    A("s_waitcnt vmcnt(8)")
    for t in range(2):
        for s in range(4):
            r = KR + (t * 4 + s) * 4
            A("ds_read_b128 v[%d:%d], v%d offset:%d" % (r, r + 3, KA + s, L_K + t * 4096))
    tail_issue(o["ntail0"])
    stamp(2)
    A("s_waitcnt lgkmcnt(0)")
    A("s_barrier")
    stamp(3)
    for s in range(4):
        A("ds_read_b128 v[%d:%d], %s offset:%d" % (QR + 4 * s, QR + 4 * s + 3, vQA, L_Q + s * 64))
    A("s_mov_b32 %s, 0x%x" % (t0, SCALE))
    A("s_mov_b32 %s, 0xffff0000" % t1)
    A("s_mov_b32 %s, 0x%x" % (t2, LOG2E))
    for s in range(4):
        A("s_waitcnt lgkmcnt(%d)" % (3 - s))
        for t in range(2):
            mfma(SR + 4 * t, KR + (t * 4 + s) * 4, QR + 4 * s, None if s == 0 else SR + 4 * t)
    T = KR
    vH0, vH1, vFL = "v%d" % (T + 28), "v%d" % (T + 29), "v%d" % (T + 30)
    A("v_mov_b32 %s, %d" % (vFL, L_FLAG))
    A("s_lshl_b32 %s, %s, 5" % (t3, sW))
    A("v_mov_b32 v%d, %s" % (T + 31, t3))
    A("ds_read_b32 %s, %s" % (vFL, vFL))
    A("s_nop 2")
    C("scores: bf16(qk) -> * scale -> bf16   (the reference's two roundings)")
    for i in range(4):
        A("v_cvt_pk_bf16_f32 v%d, v%d, v%d" % (T + i, SR + 2 * i, SR + 2 * i + 1))
    for i in range(4):
        A("v_lshlrev_b32 v%d, 16, v%d" % (SR + 2 * i, T + i))
        A("v_and_b32 v%d, %s, v%d" % (SR + 2 * i + 1, t1, T + i))
    for i in range(8):
        A("v_mul_f32 v%d, %s, v%d" % (SR + i, t0, SR + i))
    for i in range(4):
        A("v_cvt_pk_bf16_f32 v%d, v%d, v%d" % (T + i, SR + 2 * i, SR + 2 * i + 1))
    for i in range(4):
        A("v_lshlrev_b32 v%d, 16, v%d" % (SR + 2 * i, T + i))
        A("v_and_b32 v%d, %s, v%d" % (SR + 2 * i + 1, t1, T + i))
    vm, vt, vl = "v%d" % (T + 4), "v%d" % (T + 6), "v%d" % (T + 5)
    A("v_max3_f32 %s, v%d, v%d, v%d" % (vm, SR, SR + 1, SR + 2))
    A("v_max3_f32 %s, v%d, v%d, v%d" % (vt, SR + 3, SR + 4, SR + 5))
    A("v_max3_f32 %s, %s, v%d, v%d" % (vm, vm, SR + 6, SR + 7))
    A("v_max_f32 %s, %s, %s" % (vm, vm, vt))
    allred(vm, vt, "v_max_f32", 16)
    allred(vm, vt, "v_max_f32", 32)
    A("v_mul_f32 %s, %s, %s" % (vm, t2, vm))
    for i in range(8):
        A("v_fma_f32 v%d, v%d, %s, -%s" % (SR + i, SR + i, t2, vm))
    for i in range(8):
        A("v_exp_f32 v%d, v%d" % (SR + i, SR + i))
    for i in range(8):
        A("v_cvt_pk_bf16_f32 v%d, v%d, v%d" % (T + 8 + i, SR + i, SR + i))
    for i in range(8):
        A("v_and_b32 v%d, v%d, %s" % (PA + 2 * i, T + 8 + i, vM0))
        A("v_and_b32 v%d, v%d, %s" % (PA + 2 * i + 1, T + 8 + i, vM1))
    stamp(4)
    O0, O1, Y = QR, QR + 4, QR + 8
    def pv(i):
        A("s_waitcnt vmcnt(%d)" % (7 - i + nav[0]))
        if i >= o["tlag"]: tail_issue(1 if i < 7 else 9)
        vr = VR + 4 * i
        mfma16(O0, PA + 2 * i, vr, None if i == 0 else O0)
        mfma16(O1, PA + 2 * i, vr + 2, None if i == 0 else O1)
    A("v_add_f32 %s, v%d, v%d" % (vl, SR, SR + 1))
    A("v_add_f32 %s, v%d, v%d" % (vt, SR + 2, SR + 3))
    A("v_add_f32 v%d, v%d, v%d" % (SR + 4, SR + 4, SR + 5))
    A("v_add_f32 v%d, v%d, v%d" % (SR + 6, SR + 6, SR + 7))
    A("v_add_f32 %s, %s, %s" % (vl, vl, vt))
    A("v_add_f32 v%d, v%d, v%d" % (SR + 4, SR + 4, SR + 6))
    A("v_add_f32 %s, %s, v%d" % (vl, vl, SR + 4))
    allred(vl, vt, "v_add_f32", 16)
    allred(vl, vt, "v_add_f32", 32)
    A("ds_write_b64 %s, v[%d:%d] offset:%d" % (vMLW, T + 4, T + 5, L_ML))
    A("s_waitcnt lgkmcnt(0)")
    A("v_readfirstlane_b32 %s, %s" % (sFAST, vFL))
    HA = T + 16
    ML = T
    OB = T + 8
    G2 = SR
    vM, vLs = "v124", "v125"
    for i in range(o["b2"]): pv(i)
    A("s_barrier")
    A("ds_read_b128 v[%d:%d], v%d offset:%d" % (ML, ML + 3, T + 31, L_ML))
    A("ds_read_b128 v[%d:%d], v%d offset:%d" % (ML + 4, ML + 7, T + 31, L_ML + 16))
    A("ds_read_b32 %s, %s offset:%d" % (vH0, vHA, L_H))
    A("ds_read_b32 %s, %s offset:%d" % (vH1, vHA, L_H + 16))
    A("s_mov_b32 vcc_lo, 0xcccccccc")
    A("s_mov_b32 vcc_hi, 0xcccccccc")
    A("v_mov_b32 v%d, %s" % (G2 + 3, sTAG))
    A("s_waitcnt lgkmcnt(2)")
    A("v_max3_f32 %s, v%d, v%d, v%d" % (vM, ML, ML + 2, ML + 4))
    A("v_max_f32 %s, %s, v%d" % (vM, vM, ML + 6))
    for w_ in range(4):
        A("v_sub_f32 v%d, v%d, %s" % (ML + 2 * w_, ML + 2 * w_, vM))
    for w_ in range(4):
        A("v_exp_f32 v%d, v%d" % (ML + 2 * w_, ML + 2 * w_))
    A("s_waitcnt lgkmcnt(0)")
    A("v_mul_f32 %s, v%d, v%d" % (vLs, ML, ML + 1))
    for w_ in range(1, 4):
        A("v_fmac_f32 %s, v%d, v%d" % (vLs, ML + 2 * w_, ML + 2 * w_ + 1))
    for a in range(2):
        for r in range(4):
            A("v_and_b32 v%d, %s, v%d" % (HA + 4 * a + r, (vH0, vH1)[a], MK + r))
    A("v_cndmask_b32 v%d, %s, %s, vcc" % (G2 + 2, vM, vLs))
    for i in range(o["b2"], 8): pv(i)
    stamp(5)
    if o.get("nosync"):
        A("s_waitcnt vmcnt(0)")
        stamp(6)
        A("s_branch L_done")
    A("s_nop 6")
    A("ds_write_b128 %s, v[%d:%d] offset:%d" % (vOW, O0, O0 + 3, L_O))
    A("ds_write_b128 %s, v[%d:%d] offset:%d" % (vOW, O1, O1 + 3, L_O + 256))
    A("s_waitcnt lgkmcnt(0)")
    A("s_barrier")
    for w_ in range(4):
        A("ds_read_b64 v[%d:%d], %s offset:%d" % (OB + 2 * w_, OB + 2 * w_ + 1, vOR, L_O + w_ * 2048))
    A("s_cmp_eq_u32 %s, 0" % sFAST)
    for w_ in range(4):
        A("s_waitcnt lgkmcnt(%d)" % (3 - w_))
        op = "v_mul_f32" if w_ == 0 else "v_fmac_f32"
        A("%s v%d, v%d, v%d" % (op, G2, ML + 2 * w_, OB + 2 * w_))
        A("%s v%d, v%d, v%d" % (op, G2 + 1, ML + 2 * w_, OB + 2 * w_ + 1))
    tails = []
    def publish(addr, g, name):
        A("s_cbranch_scc1 L_slow_%s" % name)
        A("global_store_dwordx4 %s, v[%d:%d], %s" % (addr, g, g + 3, sWS))
        LB("L_back_%s" % name)
        tails.append((name, addr, g))
    A("v_cvt_pk_bf16_f32 v%d, v%d, v%d" % (G2, G2, G2 + 1))
    A("s_mov_b32 s44, 0x55555555")
    A("s_mov_b32 s45, 0x55555555")
    A("v_mov_b32_dpp v%d, v%d quad_perm:[1,1,3,3] %s" % (G2 + 1, G2, DPP))
    A("s_mov_b64 exec, s[44:45]")
    publish(vS2, G2, "h2")
    A("s_mov_b64 exec, -1")
    stamp(6)
    P = T
    for i in range(2):
        A("global_load_dwordx4 v[%d:%d], %s, %s offset:%d sc1" % (P + 4 * i, P + 4 * i + 3, vL2, sWS, i * 1024))
    A("s_mov_b32 %s, %d" % (sCNT, o["spinmax"]))
    vTAG = "v127"
    A("v_mov_b32 %s, %s" % (vTAG, sTAG))
    for k in range(4):
        A("s_mov_b32 s%d, 0x%x" % (56 + k, 0x07060500 | k))
        A("s_bfe_u32 s%d, %s, 0x%x" % (60 + k if k < 2 else 50 + k, sTAG, 0x80000 | (8 * k)))
    TB = ["s60", "s61", "s52", "s53"]
    A("s_waitcnt vmcnt(3)")
    for a in range(2):
        mfma(Y, HA + 4 * a, DNR + 4 * a, None if a == 0 else Y)
    A("s_branch L_chk2")
    LB("L_poll2")
    MS = ["s[44:45]", "s[46:47]"]
    for i in range(2):
        A("s_mov_b64 exec, %s" % MS[i])
        A("global_load_dwordx4 v[%d:%d], %s, %s offset:%d sc1" % (P + 4 * i, P + 4 * i + 3, vL2, sWS, i * 1024))
    A("s_mov_b64 exec, -1")
    A("s_sub_u32 %s, %s, 1" % (sCNT, sCNT))
    A("s_cbranch_scc1 L_end")
    LB("L_chk2")
    A("s_waitcnt vmcnt(0)")
    A("v_max_f32 %s, v%d, v%d" % (vM, P + 2, P + 6))
    for i in range(2):
        A("v_cmp_ne_u32 %s, %s, v%d" % (MS[i], sTAG, P + 4 * i + 3))
    A("v_mov_b32_dpp %s, %s quad_perm:[0,0,2,2] %s" % (vM, vM, DPP))
    A("s_or_b64 vcc, %s, %s" % (MS[0], MS[1]))
    A("s_cbranch_scc1 L_poll2")
    stamp(7)
    U = T + 8
    def unp(i, k):
        if k & 1: A("v_and_b32 v%d, %s, v%d" % (U + 4 * i + k, t1, P + 4 * i + (k >> 1)))
        else: A("v_lshlrev_b32 v%d, 16, v%d" % (U + 4 * i + k, P + 4 * i + (k >> 1)))
    vt2 = "v126"
    A("v_max_f32_dpp %s, %s, %s row_ror:4 %s" % (vM, vM, vM, DPP))
    unp(0, 0); unp(0, 1)
    A("v_max_f32_dpp %s, %s, %s row_ror:8 %s" % (vM, vM, vM, DPP))
    A("v_mov_b32 %s, %s" % (vt2, vM))
    unp(0, 2); unp(0, 3)
    A("v_permlane16_swap_b32 %s, %s" % (vt2, vM))
    A("v_max_f32 %s, %s, %s" % (vM, vM, vt2))
    A("v_mov_b32 %s, %s" % (vt2, vM))
    unp(1, 0); unp(1, 1)
    A("v_permlane32_swap_b32 %s, %s" % (vt2, vM))
    A("v_max_f32 %s, %s, %s" % (vM, vM, vt2))
    w0, w1 = "v120", "v121"
    A("v_sub_f32_dpp %s, v%d, %s quad_perm:[0,0,2,2] %s" % (w0, P + 2, vM, DPP))
    A("v_sub_f32_dpp %s, v%d, %s quad_perm:[0,0,2,2] %s" % (w1, P + 6, vM, DPP))
    A("v_exp_f32 %s, %s" % (w0, w0))
    A("v_exp_f32 %s, %s" % (w1, w1))
    unp(1, 2); unp(1, 3)
    den, tA, tB = "v126", "v122", "v123"
    A("v_mul_f32_dpp %s, v%d, %s quad_perm:[1,1,3,3] %s" % (den, P + 2, w0, DPP))
    A("v_fmac_f32_dpp %s, v%d, %s quad_perm:[1,1,3,3] %s" % (den, P + 6, w1, DPP))
    for k in range(4):
        A("v_mul_f32 v%d, %s, v%d" % (U + k, w0, U + k))
        if k == 1: A("v_add_f32_dpp %s, %s, %s row_ror:4 %s" % (den, den, den, DPP))
    A("v_add_f32_dpp %s, %s, %s row_ror:8 %s" % (den, den, den, DPP))
    for k in (0, 2, 1, 3):
        A("v_fmac_f32 v%d, %s, v%d" % (U + k, w1, U + 4 + k))
    A("v_mov_b32 %s, %s" % (tA, den))
    A("v_permlane32_swap_b32 v%d, v%d" % (U, U + 2))
    A("v_permlane32_swap_b32 v%d, v%d" % (U + 1, U + 3))
    A("v_permlane32_swap_b32 %s, %s" % (tA, den))
    A("v_add_f32 v%d, v%d, v%d" % (U, U, U + 2))
    A("v_add_f32 v%d, v%d, v%d" % (U + 1, U + 1, U + 3))
    A("v_add_f32 %s, %s, %s" % (den, den, tA))
    A("s_cmp_eq_u32 %s, 0" % sFAST)
    A("v_permlane16_swap_b32 v%d, v%d" % (U, U + 1))
    A("v_mov_b32 %s, %s" % (tA, den))
    A("v_add_f32 v%d, v%d, v%d" % (U, U, U + 1))
    A("s_nop 0")
    A("v_permlane16_swap_b32 %s, %s" % (tA, den))
    A("v_add_f32_dpp v%d, v%d, v%d row_ror:4 %s" % (U, U, U, DPP))
    A("v_add_f32 %s, %s, %s" % (den, den, tA))
    A("v_rcp_f32 %s, %s" % (den, den))
    A("v_add_f32_dpp v%d, v%d, v%d row_ror:8 %s" % (U, U, U, DPP))
    a0 = "v124"
    A("v_mul_f32 %s, v%d, %s" % (a0, U, den))
    A("v_cvt_pk_bf16_f32 %s, %s, %s" % (a0, a0, a0))
    A("s_mov_b32 %s, %d" % (sCNT, o["spinmax"]))
    A("s_nop 0")
    WA = T
    for m in range(4):
        for r in range(4):
            A("v_and_b32_dpp v%d, %s, v%d row_newbcast:%d %s" % (WA + 4 * m + r, a0, MK + r, m, DPP))
        if m > 0:
            mfma(Y, WA + 4 * (m - 1), WOR + 4 * (m - 1), Y)
    A("s_nop 1")
    mfma(Y, WA + 12, WOR + 12, Y)
    A("s_mov_b32 exec_hi, 0")
    A("s_nop 6")
    for k in range(4):
        A("v_perm_b32 v%d, v%d, %s, s%d" % (Y + k, Y + k, vTAG, 56 + k))
    publish(vS25, Y, "h25")
    stamp(8)
    LB("L_poll25")
    A("global_load_dwordx4 v[%d:%d], %s, %s sc1" % (P, P + 3, vL25, sWS))
    A("s_sub_u32 %s, %s, 1" % (sCNT, sCNT))
    A("s_cbranch_scc1 L_end")
    A("s_waitcnt vmcnt(0)")
    for k in range(4):
        A("v_xor_b32 v%d, %s, v%d" % (P + k, TB[k], P + k))
    A("v_or3_b32 %s, v%d, v%d, v%d" % (tA, P, P + 1, P + 2))
    A("v_or_b32 %s, %s, v%d" % (tA, tA, P + 3))
    A("v_and_b32 %s, 0xff, %s" % (tA, tA))
    A("v_cmp_ne_u32 vcc, 0, %s" % tA)
    A("s_and_b64 exec, exec, vcc")
    A("s_cbranch_scc1 L_poll25")
    A("s_mov_b64 exec, -1")
    stamp(9)
    x_, y_ = "v%d" % P, "v%d" % (P + 1)
    A("v_permlane16_swap_b32 v%d, v%d" % (P, P + 2))
    A("v_permlane16_swap_b32 v%d, v%d" % (P + 1, P + 3))
    A("v_add_f32 %s, %s, v%d" % (x_, x_, P + 2))
    A("v_add_f32 %s, %s, v%d" % (y_, y_, P + 3))
    fl = ["v_mov_b32 v%d, %s" % (P + 3, sTAG), "s_and_b32 %s, %s, 7" % (t0, sJ), "s_cmp_eq_u32 %s, %s" % (t0, sH), "s_nop 0"]
    for rot_ in (1, 2, 4, 8):
        A(fl.pop(0))
        A("v_add_f32_dpp %s, %s, %s row_ror:%d %s" % (x_, x_, x_, rot_, DPP))
        A("v_add_f32_dpp %s, %s, %s row_ror:%d %s" % (y_, y_, y_, rot_, DPP))
    A("s_cbranch_scc1 L_final")
    A("s_mov_b64 exec, 0x%x" % (0x30003 if o["rep3"] else 0x10001))
    A("global_store_dwordx4 %s, v[%d:%d], %s sc1" % (vS3, P, P + 3, sWS))
    A("s_branch L_done")
    LB("L_final")
    A("s_lshl_b32 %s, 0x10001, %s" % (t0, sH))
    A("s_andn2_b32 exec_lo, 0xff00ff, %s" % t0)
    A("s_mov_b32 exec_hi, 0")
    A("s_mov_b32 %s, %d" % (sCNT, o["spinmax"]))
    Q = P + 4
    if o["rep3"]: A("v_add_u32 %s, 0x2000, %s" % (vS3, vL3))
    LB("L_poll3")
    A("global_load_dwordx4 v[%d:%d], %s, %s sc1" % (P, P + 3, vL3, sWS))
    if o["rep3"]: A("global_load_dwordx4 v[%d:%d], %s, %s sc1" % (Q, Q + 3, vS3, sWS))
    A("s_sub_u32 %s, %s, 1" % (sCNT, sCNT))
    A("s_cbranch_scc1 L_end")
    if o["rep3"]:
        A("s_waitcnt vmcnt(1)")
        A("v_cmp_ne_u32 s[44:45], %s, v%d" % (sTAG, P + 3))
        A("s_and_b64 exec, exec, s[44:45]")
        A("s_cbranch_scc0 L_got3")
        A("s_waitcnt vmcnt(0)")
        A("v_cmp_ne_u32 vcc, %s, v%d" % (sTAG, Q + 3))
        A("v_mov_b32 v%d, v%d" % (P, Q))
        A("v_mov_b32 v%d, v%d" % (P + 1, Q + 1))
        A("s_and_b64 exec, exec, vcc")
        A("s_cbranch_scc1 L_poll3")
        LB("L_got3")
    else:
        A("s_waitcnt vmcnt(0)")
        A("v_cmp_ne_u32 vcc, %s, v%d" % (sTAG, P + 3))
        A("s_and_b64 exec, exec, vcc")
        A("s_cbranch_scc1 L_poll3")
    stamp(10)
    A("s_mov_b32 exec_lo, -1")
    A("v_lshlrev_b32 %s, 16, %s" % (tA, vXP))
    A("v_and_b32 %s, %s, %s" % (tB, t1, vXP))
    for pat in ("quad_perm:[1,0,3,2]", "quad_perm:[2,3,0,1]", "row_half_mirror"):
        A("v_add_f32_dpp %s, %s, %s %s %s" % (x_, x_, x_, pat, DPP))
        A("v_add_f32_dpp %s, %s, %s %s %s" % (y_, y_, y_, pat, DPP))
        if pat != "row_half_mirror": A("s_nop 0")
    A("v_add_f32 %s, %s, %s" % (x_, x_, tA))
    A("v_add_f32 %s, %s, %s" % (y_, y_, tB))
    A("v_cvt_pk_bf16_f32 %s, %s, %s" % (x_, x_, y_))
    A("s_mov_b64 exec, 0x10001")
    A("global_store_dword %s, %s, %s" % (vXF, x_, sOUT))
    A("s_or_b32 %s, s2, %s" % (t0, sW))
    A("s_cbranch_scc1 L_done")
    C("the next launch must not mistake this launch's hand-off words for its own")
    A("v_mov_b32 %s, 0" % tA)
    A("v_mov_b32 %s, %s" % (tB, sTAG))
    A("global_store_dword %s, %s, %s sc1" % (tA, tB, sWS))
    LB("L_done")
    if o.get("pad"):
        LB("L_padspin")
        A("s_memrealtime s[92:93]")
        A("s_waitcnt lgkmcnt(0)")
        A("s_sub_u32 s92, s92, s90")
        A("s_cmp_lt_u32 s92, %d" % o["pad"])
        A("s_cbranch_scc1 L_padspin")
    dump_stamps()
    A("s_endpgm")
    for name, addr, g in tails:
        LB("L_slow_%s" % name)
        A("global_store_dwordx4 %s, v[%d:%d], %s sc1" % (addr, g, g + 3, sWS))
        A("s_branch L_back_%s" % name)
    LB("L_end")
    A("s_endpgm")
    return HEADER.format(lds=o.get("lds", LDS_BYTES), k=KNAME) + "\n".join(L) + FOOTER.format(k=KNAME, vg=o.get("vg", 160), sg=96)


if __name__ == "__main__":
    kw = {}
    out = "parallel_sum__sliding_block_cached__swiglu_ffn__decode.s"
    for a in sys.argv[1:]:
        k, v = a.split("=", 1)
        if k == "out": out = v; continue
        try: v = int(v)
        except ValueError: pass
        kw[k] = v
    open(out, "w").write(gen(**kw))
```

```python
import sys

KNAME = "parallel_sum__sliding_block_cached__swiglu_ffn__decode_kernel"

HEADER = """; Kernarg layout for this problem (96 bytes, ptrs only, base s[0:1]):
;   offset  72: d_out     shape=(1, 1, 512) dtype=bfloat16
; @launch grid=(256,1,1) block=(320,1,1) lds={lds}
.amdgcn_target "amdgcn-amd-amdhsa--gfx950"
.text
.globl {k}
.p2align 8
.type {k},@function
{k}:
"""
FOOTER = """
.section .rodata,"a"
.p2align 6
.amdhsa_kernel {k}
  .amdhsa_next_free_vgpr {vg}
  .amdhsa_next_free_sgpr {sg}
  .amdhsa_accum_offset {vg}
  .amdhsa_group_segment_fixed_size 0
  .amdhsa_kernarg_size 96
  .amdhsa_user_sgpr_count 2
  .amdhsa_user_sgpr_kernarg_segment_ptr 1
  .amdhsa_system_sgpr_workgroup_id_x 1
.end_amdhsa_kernel
"""

MB1A = 0x40000
MB1B = 0x80000
MB2 = 0x100000
MB25 = 0x200000
MB3 = 0x300000
STAMPS = 0x10000000
L_WQ = 0
L_FF = 16384
L_XN = 32768
L_Q = 33792
L_H = 34816
L_FLAG = 34848
L_ML = 34880
L_O = 35072
L_K = L_O + 8192
L_K = (L_K + 1023) // 1024 * 1024
LDS_BYTES = L_K + 32768
TAGC = 0x9E3779B9
LOG2E = 0x3FB8AA3B
SCALE = 0x3DB504F3
EPS = 0x3727C5AC
DPP = "row_mask:0xf bank_mask:0xf"

DEF = dict(stamps=False, spinmax=200000, WK=4, W=6, Wtail=8, b0pos=40, nt="nt", pretouch="k", atries=24,
           prefetch=True, b2=5, ntail0=0, tlag=0, mask2=True, pt1=True)


def gen(**kw):
    o = dict(DEF); o.update(kw)
    L = []
    def A(s): L.append("    " + s)
    def LB(s): L.append(s + ":")
    def C(s): L.append("    ; " + s)
    nt = o["nt"]
    NSTAMP = 12
    role = ["U"]
    def stamp(i):
        if o["stamps"] and (i in (0, 11) or o.get("sel") is None or ("%s%d" % (role[0], i)) in o["sel"].split(",")):
            A("s_memrealtime s[%d:%d]" % (64 + 2 * i, 65 + 2 * i))
    def mfma(d, a, b, c):
        A("v_mfma_f32_16x16x32_bf16 v[%d:%d], v[%d:%d], v[%d:%d], %s" % (d, d + 3, a, a + 3, b, b + 3, "0" if c is None else "v[%d:%d]" % (c, c + 3)))
    def mfma16(d, a, b, c):
        A("v_mfma_f32_16x16x16_bf16 v[%d:%d], v[%d:%d], v[%d:%d], %s" % (d, d + 3, a, a + 1, b, b + 1, "0" if c is None else "v[%d:%d]" % (c, c + 3)))
    def allred(v, tmp, op, which):
        A("v_mov_b32 %s, %s" % (tmp, v))
        A("s_nop 1")
        A("v_permlane%d_swap_b32 %s, %s" % (which, tmp, v))
        A("%s %s, %s, %s" % (op, v, v, tmp))
    sX, sK, sV, sWQ, sWO, sG, sU, sDN, sOUT, sWS = "s[4:5]", "s[6:7]", "s[8:9]", "s[10:11]", "s[12:13]", "s[16:17]", "s[18:19]", "s[20:21]", "s[22:23]", "s[26:27]"
    sW, sH, sJ, sTAG, sXCC, sCNT, sFAST = "s30", "s31", "s32", "s33", "s34", "s35", "s36"
    t0, t1, t2, t3 = "s37", "s38", "s39", "s40"
    def dump_stamps():
        if not o["stamps"]: return
        A("s_mov_b64 exec, 1")
        stamp(11)
        A("s_waitcnt lgkmcnt(0)")
        A("s_mul_i32 %s, s2, 5" % t0)
        A("s_add_u32 %s, %s, %s" % (t0, t0, sW))
        A("s_lshl_b32 %s, %s, 7" % (t0, t0))
        A("s_add_u32 %s, %s, 0x%x" % (t0, t0, STAMPS))
        A("v_mov_b32 v2, %s" % t0)
        for i in range(NSTAMP):
            A("v_mov_b32 v3, s%d" % (64 + 2 * i))
            A("global_store_dword v2, v3, %s offset:%d" % (sWS, 4 * i))
        A("v_mov_b32 v3, %s" % (sCNT if role[0] == "U" or not o.get("asym") else "s56"))
        A("global_store_dword v2, v3, %s offset:%d" % (sWS, 4 * NSTAMP))
        if o.get("dbgfail"):
            for q_, r_ in enumerate(("s84", "s62", "s63")):
                A("v_mov_b32 v3, %s" % r_)
                A("global_store_dword v2, v3, %s offset:%d" % (sWS, 4 * NSTAMP + 8 + 4 * q_))
        A("s_getreg_b32 %s, hwreg(HW_REG_HW_ID)" % t1)
        A("v_mov_b32 v3, %s" % t1)
        A("global_store_dword v2, v3, %s offset:%d" % (sWS, 4 * NSTAMP + 4))

    stamp(0)
    if o.get("pad"): A("s_memrealtime s[90:91]")
    A("s_cmp_ge_u32 s2, 256")
    A("s_cbranch_scc1 L_end")
    A("s_load_dwordx16 s[4:19], s[0:1], 0")
    A("s_load_dwordx8 s[20:27], s[0:1], 64")
    A("v_lshrrev_b32 v1, 6, v0")
    A("v_and_b32 v0, 63, v0")
    A("v_readfirstlane_b32 %s, v1" % sW)
    A("s_and_b32 %s, s2, 7" % sH)
    A("s_lshr_b32 %s, s2, 3" % sJ)
    A("s_cmp_eq_u32 %s, 4" % sW)
    A("s_cbranch_scc0 L_attn")

    C("wave 4: layernorm, one [128 x 64] tile of wq and one of gate/up, exchange of q and of the FFN hidden values")
    A("s_setprio 3")
    if o["prefetch"]:
        A("s_getpc_b64 s[28:29]")
        LB("L_pc")
        A("v_lshlrev_b32 v2, 7, v0")
        A("v_min_u32 v2, L_end-L_pc, v2")
        A("global_load_dword v127, v2, s[28:29]")
    sQK, sNOFF = "s50", "s51"
    A("v_lshlrev_b32 v3, 4, v0")
    A("v_lshrrev_b32 v6, 3, v0")
    A("v_and_b32 v5, 2, v6")
    A("v_and_b32 v7, 7, v0")
    A("v_xor_b32 v5, v5, v7")
    A("v_lshlrev_b32 v7, 4, v5")
    A("s_and_b32 %s, %s, 3" % (sQK, sJ))
    A("s_lshl_b32 %s, %s, 10" % (t0, sH))
    A("s_lshr_b32 %s, %s, 2" % (t1, sJ))
    A("s_lshl_b32 %s, %s, 7" % (t1, t1))
    A("s_lshl_b32 %s, %s, 20" % (t2, sQK))
    A("s_add_u32 %s, %s, %s" % (t0, t0, t1))
    A("s_add_u32 %s, %s, %s" % (t0, t0, t2))
    A("v_lshl_add_u32 v4, v6, 13, v7")
    A("v_add_u32 v4, %s, v4" % t0)
    A("v_xor_b32 v5, 64, v4")
    A("v_add_u32 v5, 0x10000, v5")
    if o["pt1"]:
        C("pull this workgroup's own hand-off lines into L2 before anyone polls them")
        A("s_lshl_b32 %s, %s, 15" % (t0, sH))
        A("s_lshl_b32 %s, %s, 8" % (t1, sJ))
        A("s_add_u32 %s, %s, %s" % (t0, t0, t1))
        A("s_add_u32 %s, %s, 0x%x" % (t0, t0, MB1A))
        A("v_and_b32 v33, 1, v0")
        A("v_bfe_u32 v32, v0, 1, 1")
        A("v_lshlrev_b32 v33, 7, v33")
        A("v_lshl_add_u32 v33, v32, 13, v33")
        A("s_mul_i32 %s, %s, 240" % (t1, sJ))
        A("s_sub_u32 %s, 0x4000, %s" % (t1, t1))
        A("v_cmp_lt_u32 vcc, 3, v0")
        A("v_mov_b32 v32, %s" % t1)
        A("s_nop 0")
        A("v_cndmask_b32 v33, v33, v32, vcc")
        A("v_add_u32 v33, %s, v33" % t0)
    A("s_mov_b32 m0, %d" % L_WQ)
    A("s_mov_b32 %s, 0x20000" % t1)
    if o.get("ucontig"):
        A("s_lshl_b32 %s, s2, 10" % t0)
        A("v_add_u32 v4, %s, v3" % t0)
        A("v_add_u32 v5, 0x40000, v4")
        A("s_mov_b32 %s, 0x80000" % t1)
    A("s_movk_i32 s41, 1024")
    A("s_waitcnt lgkmcnt(0)")
    A("global_load_dwordx4 v[8:11], v3, %s" % sX)
    A("s_load_dword %s, %s, 0" % (sTAG, sWS))
    if o["pt1"]:
        A("global_load_dword v119, v33, %s sc1" % sWS)
    def dma_loop(name, base, step):
        A("s_mov_b32 %s, 4" % t2)
        LB(name)
        for i in range(4):
            vv = ("v4", "v5")[i & 1]
            A("global_load_lds_dwordx4 %s, %s %s" % (vv, base, nt))
            A("s_add_u32 m0, m0, s41")
            A("v_add_u32 %s, %s, %s" % (vv, step, vv))
        A("s_sub_u32 %s, %s, 1" % (t2, t2))
        A("s_cmp_lg_u32 %s, 0" % t2)
        A("s_cbranch_scc1 %s" % name)
    dma_loop("L_wq_loop", sWQ, t1)
    if o["b0pos"] == 16: A("s_barrier")
    A("s_mul_i32 %s, %s, 7" % (t0, sH))
    A("s_add_u32 %s, %s, 1" % (t0, t0))
    A("s_lshr_b32 %s, %s, 1" % (t0, t0))
    A("s_lshr_b32 %s, %s, 3" % (t1, sJ))
    A("s_add_u32 %s, %s, %s" % (t0, t0, t1))
    A("s_mul_i32 %s, %s, 3584" % (t1, sQK))
    A("s_add_u32 %s, %s, %s" % (t0, t0, t1))
    A("s_lshl_b32 %s, %s, 7" % (t0, t0))
    A("v_mul_u32_u24 v4, 3584, v6")
    A("v_add3_u32 v4, v4, v7, %s" % t0)
    A("v_xor_b32 v5, 64, v4")
    A("v_add_u32 v5, %d, v5" % (8 * 3584))
    A("s_mov_b32 %s, %d" % (t1, 16 * 3584))
    if o.get("ucontig"):
        A("s_lshr_b32 %s, s2, 1" % t0)
        A("s_min_u32 %s, %s, 111" % (t0, t0))
        A("s_lshl_b32 %s, %s, 10" % (t0, t0))
        A("v_add_u32 v4, %s, v3" % t0)
        A("v_add_u32 v5, %d, v4" % (112 * 1024))
        A("s_mov_b32 %s, %d" % (t1, 224 * 1024))
    A("s_bitcmp0_b32 %s, %d" % (("s2", 0) if o.get("ucontig") else (sJ, 2)))
    A("s_cselect_b64 s[42:43], %s, %s" % (sG, sU))
    A("s_and_b32 %s, %s, 1" % (t3, sH))
    A("s_lshl_b32 %s, %s, 3" % (t0, t3))
    A("s_add_u32 %s, %s, %s" % (sNOFF, t0, sJ))
    A("s_cmp_ge_u32 %s, 32" % sNOFF)
    A("s_cselect_b64 exec, 1, -1")
    dma_loop("L_ff_loop", "s[42:43]", t1)
    A("s_mov_b64 exec, -1")
    if o["b0pos"] == 32:
        if o.get("b0wait") is not None: A("s_waitcnt vmcnt(%d)" % o["b0wait"])
        A("s_barrier")
    stamp(1)
    XF = 12
    A("s_mov_b32 %s, 0xffff0000" % t1)
    A("s_waitcnt vmcnt(%d)" % (33 if o["pt1"] else 32))
    stamp(2)
    C("layernorm with the reference's bf16 roundings")
    for i in range(4):
        A("v_lshlrev_b32 v%d, 16, v%d" % (XF + 2 * i, 8 + i))
        A("v_and_b32 v%d, %s, v%d" % (XF + 2 * i + 1, t1, 8 + i))
    fill = []
    def F(s): fill.append(s)
    def nop2():
        n = 0
        while fill and n < 2:
            A(fill.pop(0)); n += 1
        if n < 2: A("s_nop %d" % (1 - n))
    TRB = 120
    vAX, vS1, vL1, vL1x, vL1a, vF, vTN, vTB = "v34", "v35", "v36", "v37", "v38", "v39", "v124", "v125"
    sRP, sB1 = "s52", "s53"
    F("v_lshrrev_b32 v126, 4, v0")
    F("v_bfe_u32 v4, v0, 2, 2")
    F("v_lshl_add_u32 v5, v126, 3, v4")
    F("v_and_b32 v6, 3, v0")
    F("v_lshlrev_b32 v7, 3, v6")
    F("v_lshl_add_u32 v5, v5, 7, v7")
    F("v_bfe_u32 v4, v0, 3, 2")
    for ct in range(4):
        F("v_xor_b32 v7, %d, v4" % ct)
        F("v_lshl_add_u32 v%d, v7, 5, v5" % (TRB + ct))
    F("s_lshl_b32 %s, %s, 8" % (t0, sQK))
    F("v_lshl_add_u32 %s, v126, 4, %s" % (vAX, t0))
    F("s_lshl_b32 %s, %s, 15" % (sB1, sH))
    F("s_add_u32 %s, %s, 0x%x" % (sB1, sB1, MB1A))
    def wavesum(v, tmp):
        for rot in (1, 2, 4, 8):
            nop2()
            A("v_add_f32_dpp %s, %s, %s row_ror:%d %s" % (v, v, v, rot, DPP))
        for which in (16, 32):
            A("v_mov_b32 %s, %s" % (tmp, v))
            nop2()
            A("v_permlane%d_swap_b32 %s, %s" % (which, tmp, v))
            A("v_add_f32 %s, %s, %s" % (v, v, tmp))
    def sum8(dst, base, tmp):
        A("v_add_f32 %s, v%d, v%d" % (dst, base, base + 1))
        A("v_add_f32 %s, v%d, v%d" % (tmp, base + 2, base + 3))
        A("v_add_f32 %s, %s, v%d" % (dst, dst, base + 4))
        A("v_add_f32 %s, %s, v%d" % (tmp, tmp, base + 5))
        A("v_add_f32 %s, %s, v%d" % (dst, dst, base + 6))
        A("v_add_f32 %s, %s, v%d" % (tmp, tmp, base + 7))
        A("v_add_f32 %s, %s, %s" % (dst, dst, tmp))
    sum8("v22", XF, "v23")
    wavesum("v22", "v23")
    A("v_mul_f32 v22, 0x3b000000, v22")
    DV = 24
    for i in range(8):
        A("v_sub_f32 v%d, v%d, v22" % (DV + i, XF + i))
    A("v_mul_f32 v32, v%d, v%d" % (DV, DV))
    A("v_mul_f32 v23, v%d, v%d" % (DV + 1, DV + 1))
    for i in range(2, 8):
        A("v_fmac_f32 %s, v%d, v%d" % (("v32", "v23")[i & 1], DV + i, DV + i))
    A("v_add_f32 v32, v32, v23")
    wavesum("v32", "v23")
    A("v_mul_f32 v32, 0x3b000000, v32")
    A("v_cvt_pk_bf16_f32 v22, v22, v32")
    A("v_and_b32 v32, %s, v22" % t1)
    A("v_lshlrev_b32 v22, 16, v22")
    A("v_add_f32 v32, 0x%x, v32" % EPS)
    A("v_cvt_pk_bf16_f32 v32, v32, v32")
    A("v_and_b32 v32, %s, v32" % t1)
    A("v_sqrt_f32 v32, v32")
    for i in range(8):
        A("v_sub_f32 v%d, v%d, v22" % (XF + i, XF + i))
    A("v_cvt_pk_bf16_f32 v32, v32, v32")
    A("v_and_b32 v32, %s, v32" % t1)
    A("v_rcp_f32 v32, v32")
    for i in range(4):
        A("v_cvt_pk_bf16_f32 v%d, v%d, v%d" % (8 + i, XF + 2 * i, XF + 2 * i + 1))
    for i in range(4):
        A("v_lshlrev_b32 v%d, 16, v%d" % (XF + 2 * i, 8 + i))
        A("v_and_b32 v%d, %s, v%d" % (XF + 2 * i + 1, t1, 8 + i))
    for i in range(8):
        A("v_mul_f32 v%d, v%d, v32" % (XF + i, XF + i))
    for i in range(4):
        A("v_cvt_pk_bf16_f32 v%d, v%d, v%d" % (8 + i, XF + 2 * i, XF + 2 * i + 1))
    while fill: A(fill.pop(0))
    A("ds_write_b128 v3, v[8:11] offset:%d" % L_XN)
    A("s_lshl_b32 %s, %s, 8" % (t2, sJ))
    A("s_add_u32 %s, %s, %s" % (t2, t2, sB1))
    A("v_lshrrev_b32 v4, 2, v0")
    A("v_lshl_add_u32 %s, v4, 4, %s" % (vS1, t2))
    A("s_waitcnt lgkmcnt(0)")
    AF = 40
    for m in range(4):
        A("ds_read_b128 v[%d:%d], %s offset:%d" % (AF + 4 * m, AF + 4 * m + 3, vAX, L_XN + m * 64))
    A("s_add_u32 %s, %s, 0x%x" % (sTAG, sTAG, TAGC))
    A("v_lshlrev_b32 v4, 2, v6")
    A("v_lshrrev_b32 %s, v4, %s" % (vTN, sTAG))
    A("v_and_b32 %s, 15, %s" % (vTN, vTN))
    A("v_lshlrev_b32 v4, 3, v6")
    A("v_lshrrev_b32 %s, v4, %s" % (vTB, sTAG))
    A("v_and_b32 %s, 0xff, %s" % (vTB, vTB))
    A("s_mov_b32 s44, 0")
    A("s_mov_b32 s45, -1")
    if o["b0pos"] == 40: A("s_barrier")
    stamp(3)
    BF = 56
    D0 = 88
    GR = 24
    def gemv(lbase, vm0):
        def rd(m, ct):
            b = BF + 16 * (m & 1)
            for hh in range(2):
                A("ds_read_b64_tr_b16 v[%d:%d], v%d offset:%d" % (b + 4 * ct + 2 * hh, b + 4 * ct + 2 * hh + 1, TRB + ct, lbase + m * 4096 + hh * 512))
        A("s_waitcnt vmcnt(%d)" % (vm0 + 12))
        for ct in range(4): rd(0, ct)
        for m in range(4):
            b = BF + 16 * (m & 1)
            if m < 3: A("s_waitcnt vmcnt(%d)" % (vm0 + 8 - 4 * m))
            for ct in range(4):
                A("s_waitcnt lgkmcnt(%d)" % (6 if m < 3 else 6 - 2 * ct))
                mfma(D0 + 4 * ct, AF + 4 * m, b + 4 * ct, None if m == 0 else D0 + 4 * ct)
                if m < 3: rd(m + 1, ct)
    def pack(maskc, vt):
        A("s_mov_b32 vcc_lo, 0xffff0000")
        A("s_mov_b32 vcc_hi, 0xffff0000")
        A("s_movk_i32 %s, 0x%x" % (t0, maskc))
        A("s_nop 2")
        A("v_cndmask_b32 v%d, v%d, v%d, vcc" % (GR, D0, D0 + 4))
        A("s_nop 0")
        A("v_cndmask_b32 v%d, v%d, v%d, vcc" % (GR + 1, D0 + 8, D0 + 12))
        A("v_cndmask_b32 v%d, v%d, v%d, s[44:45]" % (GR, GR, GR + 1))
        A("v_and_or_b32 v%d, v%d, %s, %s" % (GR, GR, t0, vt))
        A("v_add_u32 v22, 0x%x, %s" % (MB1B - MB1A, vS1))
        A("s_nop 0")
        for k in range(1, 4):
            A("v_mov_b32_dpp v%d, v%d quad_perm:[%d,%d,%d,%d] %s" % (GR + k, GR, k, k, k, k, DPP))
        A("s_mov_b32 exec_lo, 0x11111111")
        A("s_mov_b32 exec_hi, 0x11111111")
        A("global_store_dwordx4 %s, v[%d:%d], %s" % (vS1, GR, GR + 3, sWS))
        A("global_store_dwordx4 v22, v[%d:%d], %s sc1" % (GR, GR + 3, sWS))
        A("s_mov_b64 exec, -1")
    gemv(L_WQ, 16)
    if o["b0pos"] == 45: A("s_barrier")
    pack(0xfff0, vTN)
    stamp(4)
    XG = 28
    A("s_getreg_b32 %s, hwreg(HW_REG_XCC_ID, 0, 4)" % sXCC)
    A("s_and_b32 %s, %s, 0xff" % (t0, sTAG))
    A("s_lshl_b32 %s, %s, 8" % (t2, sXCC))
    A("s_or_b32 s54, %s, %s" % (t0, t2))
    A("v_mov_b32 v%d, s54" % XG)
    for k in range(1, 4):
        A("s_bfe_u32 %s, %s, 0x%x" % (t0, sTAG, 0x80000 | (8 * k)))
        A("v_mov_b32 v%d, %s" % (XG + k, t0))
    A("s_lshl_b32 %s, %s, 4" % (t2, sJ))
    A("s_add_u32 %s, %s, %s" % (t2, t2, sB1))
    A("s_add_u32 %s, %s, 0x4000" % (t2, t2))
    A("v_mov_b32 v22, %s" % t2)
    A("v_add_u32 v23, 0x%x, v22" % (MB1B - MB1A))
    A("s_mov_b64 exec, 1")
    A("global_store_dwordx4 v22, v[%d:%d], %s" % (XG, XG + 3, sWS))
    A("global_store_dwordx4 v23, v[%d:%d], %s sc1" % (XG, XG + 3, sWS))
    A("s_mov_b64 exec, -1")
    if o["b0pos"] == 50: A("s_barrier")
    A("v_add_u32 %s, 0x2000, %s" % (vS1, vS1))
    A("s_cmp_ge_u32 %s, 32" % sNOFF)
    A("s_cbranch_scc1 L_noff2")
    gemv(L_FF, 4)
    pack(0xff00, vTB)
    LB("L_noff2")
    stamp(7)
    if o.get("nosync"):
        A("s_barrier")
        A("s_mov_b32 %s, 0" % sCNT)
        dump_stamps()
        A("s_endpgm")
    A("v_and_b32 v4, 15, v0")
    A("v_lshlrev_b32 v4, 4, v4")
    A("v_lshl_add_u32 v4, v126, 10, v4")
    A("s_add_u32 %s, %s, 2432" % (t0, sB1))
    A("v_add_u32 %s, %s, v4" % (vL1, t0))
    A("v_and_b32 v4, 31, v0")
    A("s_add_u32 %s, %s, 0x4000" % (t0, sB1))
    A("v_lshl_add_u32 %s, v4, 4, %s" % (vL1x, t0))
    A("s_lshl_b32 %s, %s, 1" % (t2, t3))
    A("s_sub_u32 %s, 8, %s" % (sRP, t2))
    A("s_mul_i32 %s, %s, %s" % (t2, sRP, sJ))
    A("s_sub_u32 %s, %s, 1" % (t0, sRP))
    A("v_and_b32 v4, 7, v0")
    A("v_min_u32 v4, %s, v4" % t0)
    A("v_add_u32 %s, %s, v4" % (vF, t2))
    A("v_lshrrev_b32 v4, 6, %s" % vF)
    A("v_bfe_u32 v5, v0, 3, 1")
    A("v_lshl_add_u32 v4, v4, 1, v5")
    A("v_lshl_add_u32 v4, v4, 2, v126")
    A("v_bfe_u32 v5, %s, 2, 4" % vF)
    A("v_lshlrev_b32 v5, 4, v5")
    A("v_lshl_add_u32 v4, v4, 8, v5")
    A("s_add_u32 %s, %s, 0x2000" % (t0, sB1))
    A("v_add_u32 %s, %s, v4" % (vL1a, t0))
    for k in range(4):
        A("s_bfe_u32 s%d, %s, 0x%x" % (56 + k, sTAG, 0x40000 | (4 * k)))
    A("s_mov_b32 s60, 0x0c0c0400")
    A("s_mov_b32 s61, 0x04000c0c")
    P = 40
    PX, PA_ = 72, 76
    A("s_mov_b32 %s, 0" % sCNT)
    def switch_copy(regs):
        A("s_add_u32 %s, %s, 1" % (sCNT, sCNT))
        A("s_cmp_eq_u32 %s, %d" % (sCNT, o["atries"]))
        A("s_cselect_b32 %s, 0x%x, 0" % (t0, MB1B - MB1A))
        for r in regs: A("v_add_u32 %s, %s, %s" % (r, t0, r))
        A("s_cmp_gt_u32 %s, %d" % (sCNT, o["spinmax"]))
        A("s_cbranch_scc1 L_end")
    def bytecheck(p, dst):
        A("v_perm_b32 v22, v%d, v%d, s60" % (p + 1, p))
        A("v_perm_b32 v23, v%d, v%d, s61" % (p + 3, p + 2))
        A("v_or_b32 v22, v22, v23")
        A("v_cmp_ne_u32 %s, %s, v22" % (dst, sTAG))
    stamp(9)
    LB("L_poll1")
    stamp(8)
    for i in range(2):
        for q in range(4):
            r = P + 16 * i + 4 * q
            A("global_load_dwordx4 v[%d:%d], %s, %s offset:%d sc1" % (r, r + 3, vL1, sWS, i * 4096 + q * 256 - 2432))
    A("global_load_dwordx4 v[%d:%d], %s, %s sc1" % (PX, PX + 3, vL1x, sWS))
    A("global_load_dwordx4 v[%d:%d], %s, %s sc1" % (PA_, PA_ + 3, vL1a, sWS))
    switch_copy([vL1, vL1x, vL1a])
    for g_ in range(8):
        A("s_waitcnt vmcnt(%d)" % (9 - g_))
        for k in range(4):
            A("v_xor_b32 v%d, s%d, v%d" % (P + 4 * g_ + k, 56 + k, P + 4 * g_ + k))
        if g_ == 0:
            A("v_or3_b32 v21, v%d, v%d, v%d" % (P, P + 1, P + 2))
            A("v_or_b32 v21, v21, v%d" % (P + 3))
        else:
            A("v_or3_b32 v21, v21, v%d, v%d" % (P + 4 * g_, P + 4 * g_ + 1))
            A("v_or3_b32 v21, v21, v%d, v%d" % (P + 4 * g_ + 2, P + 4 * g_ + 3))
    A("v_and_b32 v21, 15, v21")
    A("s_waitcnt vmcnt(1)")
    bytecheck(PX, "vcc")
    A("v_cmp_ne_u32 s[46:47], 0, v21")
    if o.get("dbgfail"):
        A("s_cmp_eq_u32 %s, 1" % sCNT)
        A("s_cselect_b32 s84, vcc_lo, s84")
        A("s_cselect_b32 s62, s46, s62")
        A("s_cselect_b32 s63, s47, s63")
    A("s_or_b64 vcc, vcc, s[46:47]")
    A("s_cbranch_vccnz L_poll1")
    stamp(5)
    for i in range(2):
        b = P + 16 * i
        for k in range(4):
            A("v_add_f32 v%d, v%d, v%d" % (b + k, b + k, b + 4 + k))
            A("v_add_f32 v%d, v%d, v%d" % (b + 8 + k, b + 8 + k, b + 12 + k))
        for k in range(4):
            A("v_add_f32 v%d, v%d, v%d" % (b + k, b + k, b + 8 + k))
        A("v_cvt_pk_bf16_f32 v%d, v%d, v%d" % (b, b, b + 1))
        A("v_cvt_pk_bf16_f32 v%d, v%d, v%d" % (b + 1, b + 2, b + 3))
    A("v_lshlrev_b32 v22, 3, v0")
    A("ds_write_b64 v22, v[%d:%d] offset:%d" % (P, P + 1, L_Q))
    A("ds_write_b64 v22, v[%d:%d] offset:%d" % (P + 16, P + 17, L_Q + 512))
    A("v_cmp_ne_u32 vcc, s54, v%d" % PX)
    A("s_cmp_eq_u64 vcc, 0")
    A("s_cselect_b32 %s, 1, 0" % sFAST)
    if o.get("forceslow"): A("s_mov_b32 %s, 0" % sFAST)
    A("v_mov_b32 v26, %s" % sFAST)
    A("v_mov_b32 v22, %d" % L_FLAG)
    A("ds_write_b32 v22, v26")
    A("s_waitcnt vmcnt(0)")
    bytecheck(PA_, "vcc")
    A("s_cbranch_vccz L_aux_ok")
    A("global_load_dwordx4 v[%d:%d], %s, %s sc1" % (PA_, PA_ + 3, vL1a, sWS))
    A("s_waitcnt lgkmcnt(0)")
    A("s_barrier")
    A("s_mov_b32 s55, 1")
    A("s_branch L_chk_aux")
    LB("L_poll_aux")
    A("global_load_dwordx4 v[%d:%d], %s, %s sc1" % (PA_, PA_ + 3, vL1a, sWS))
    switch_copy([vL1a])
    LB("L_chk_aux")
    A("s_waitcnt vmcnt(0)")
    bytecheck(PA_, "vcc")
    A("s_cbranch_vccnz L_poll_aux")
    A("s_branch L_aux_go")
    LB("L_aux_ok")
    A("s_mov_b32 s55, 0")
    LB("L_aux_go")
    A("s_movk_i32 %s, 0xff00" % t0)
    A("v_and_b32 v23, 1, %s" % vF)
    A("v_cmp_eq_u32 vcc, 0, v23")
    A("v_and_b32 v23, 2, %s" % vF)
    A("v_cmp_eq_u32 s[46:47], 0, v23")
    A("v_cndmask_b32 v24, v%d, v%d, vcc" % (PA_ + 1, PA_))
    A("v_cndmask_b32 v25, v%d, v%d, vcc" % (PA_ + 3, PA_ + 2))
    A("v_cndmask_b32 v24, v25, v24, s[46:47]")
    A("v_and_b32 v24, %s, v24" % t0)
    allred("v24", "v23", "v_add_f32", 16)
    allred("v24", "v23", "v_add_f32", 32)
    A("v_cvt_pk_bf16_f32 v24, v24, v24")
    A("v_and_b32 v24, %s, v24" % t1)
    A("v_mul_f32 v25, 0x%x, v24" % (LOG2E | 0x80000000))
    A("v_exp_f32 v25, v25")
    A("v_mov_b32_dpp v26, v24 row_ror:8 %s" % DPP)
    A("v_add_f32 v25, 1.0, v25")
    A("v_rcp_f32 v25, v25")
    A("v_cmp_le_u32 vcc, %s, v0" % sRP)
    A("v_mul_f32 v25, v24, v25")
    A("v_cvt_pk_bf16_f32 v25, v25, v25")
    A("v_and_b32 v25, %s, v25" % t1)
    A("v_mul_f32 v25, v25, v26")
    A("v_cvt_pk_bf16_f32 v25, v25, v25")
    A("v_cndmask_b32 v25, v25, 0, vcc")
    A("v_lshlrev_b32 v22, 2, v0")
    A("s_mov_b64 exec, 0xff")
    A("ds_write_b32 v22, v25 offset:%d" % L_H)
    A("s_waitcnt lgkmcnt(0)")
    stamp(6)
    A("s_cmp_lg_u32 s55, 0")
    A("s_cbranch_scc1 L_unit_exit")
    A("s_barrier")
    LB("L_unit_exit")
    dump_stamps()
    A("s_endpgm")

    role[0] = "A"
    LB("L_attn")
    vK0, vK1, vV0, vV1 = "v2", "v3", "v4", "v5"
    vWO0, vWO1, vDN0, vDN1, vXF, vXP = "v6", "v7", "v8", "v9", "v10", "v1"
    vS2, vL2, vS25, vL25, vL3, vS3 = "v11", "v12", "v13", "v14", "v15", "v150"
    KR, VR, WOR, DNR, QR, SR, PA, MK = 16, 48, 80, 96, 104, 120, 128, 146
    vM0, vM1, vQA, vOW, vOR, vMLW, vHA = "v151", "v152", "v153", "v154", "v155", "v156", "v157"
    vN, vG, vN16, vP = "v120", "v121", "v122", "v123"
    u0, u1 = "v124", "v125"
    s4JW = "s41"
    C("K and V: load i = 1 KB block (4 keys) number 128 i + 4j + w of the head's window; K goes through LDS")
    A("s_lshl_b32 %s, %s, 24" % (t0, sH))
    A("s_lshl_b32 %s, %s, 2" % (s4JW, sJ))
    A("s_add_u32 %s, %s, %s" % (s4JW, s4JW, sW))
    A("s_lshl_b32 %s, %s, 10" % (t2, s4JW))
    A("s_add_u32 %s, %s, %s" % (t0, t0, t2))
    A("s_add_u32 %s, %s, 0xF00000" % (t0, t0))
    A("v_and_b32 %s, 15, v0" % vN)
    A("v_lshrrev_b32 %s, 4, v0" % vG)
    A("v_lshlrev_b32 %s, 4, %s" % (vN16, vN))
    A("v_lshl_add_u32 %s, v0, 4, %s" % (vV0, t0))
    A("v_lshlrev_b32 %s, 6, %s" % (u0, vG))
    A("v_xor_b32 %s, %s, %s" % (vK0, u0, vV0))
    A("s_lshl_b32 %s, %s, 13" % (t1, sW))
    A("s_add_u32 m0, %s, %d" % (t1, L_K))
    A("s_mov_b32 s42, 0x20000")
    A("s_movk_i32 s43, 1024")
    A("s_waitcnt lgkmcnt(0)")
    A("s_load_dword %s, %s, 0" % (sTAG, sWS))
    if o.get("asym"):
        C("groups that started earlier have raised their flag: a late group asks memory with a wider window")
        A("v_and_b32 v158, 7, v0")
        A("v_lshlrev_b32 v158, 2, v158")
        A("global_load_dword v159, v158, s[24:25] sc1")
        A("s_or_b32 %s, %s, %s" % (t1, sJ, sW))
        A("s_cbranch_scc1 L_noflag")
        A("s_lshl_b32 %s, %s, 2" % (t1, sH))
        A("v_mov_b32 v158, %s" % t1)
        A("v_mov_b32 v157, 1")
        A("global_store_dword v158, v157, s[24:25] sc1")
        LB("L_noflag")
    if o["b0pos"]: A("s_barrier")
    stamp(1)
    issued = [0]
    uid = [0]
    if o.get("asym"):
        A("s_waitcnt vmcnt(0)")
        A("v_cmp_ne_u32 vcc, 0, v159")
        A("s_lshl_b32 %s, 1, %s" % (t1, sH))
        A("s_andn2_b32 %s, vcc_lo, %s" % (t1, t1))
        A("s_and_b32 %s, %s, 0xff" % (t1, t1))
        A("s_bcnt1_i32_b32 s56, %s" % t1)
        A("s_cmp_ge_u32 s56, %d" % o.get("lateth", 3))
        A("s_cselect_b64 s[54:55], -1, 0")
    def load(w, txt):
        if o.get("asym"):
            wb = w + o["asym"]
            if issued[0] >= wb: A("s_waitcnt vmcnt(%d)" % (wb - 1))
            if issued[0] >= w:
                uid[0] += 1
                A("s_mov_b64 vcc, s[54:55]")
                A("s_cbranch_vccnz L_sk%d" % uid[0])
                A("s_waitcnt vmcnt(%d)" % (w - 1))
                LB("L_sk%d" % uid[0])
        elif issued[0] >= w:
            A("s_waitcnt vmcnt(%d)" % (w - 1))
        A(txt); issued[0] += 1
    def kload(i):
        load(o["WK"], "global_load_lds_dwordx4 %s, %s %s" % (vK0, sK, nt))
        if i < 7:
            A("s_add_u32 m0, m0, s43")
            A("v_xor_b32 %s, %d, %s" % (vK0, ((i & 3) ^ ((i + 1) & 3)) << 4, vK0))
            A("v_add_u32 %s, s42, %s" % (vK0, vK0))
    nk_first = min(o["WK"], 8)
    for i in range(nk_first): kload(i)
    C("address and mask setup in the shadow of the K loads")
    A("s_lshl_b32 %s, %s, 19" % (t0, sH))
    A("s_lshl_b32 %s, %s, 14" % (t2, sJ))
    A("s_add_u32 %s, %s, %s" % (t0, t0, t2))
    A("s_lshl_b32 %s, %s, 8" % (t3, sW))
    A("s_add_u32 %s, %s, %s" % (t0, t0, t3))
    A("v_and_b32 %s, 1, %s" % (u0, vG))
    A("v_lshlrev_b32 %s, 11, %s" % (u1, u0))
    A("v_lshrrev_b32 %s, 1, %s" % (vWO0, vG))
    A("v_lshl_add_u32 %s, %s, 10, %s" % (vWO0, vWO0, u1))
    A("v_add3_u32 %s, %s, %s, %s" % (vWO0, vWO0, vN16, t0))
    A("v_add_u32 %s, 0x1000, %s" % (vWO0, vWO0))
    A("v_add_u32 %s, 0x2000, %s" % (vWO1, vWO0))
    A("s_mul_i32 %s, %s, 7" % (t0, sH))
    A("s_add_u32 %s, %s, 1" % (t0, t0))
    A("s_lshr_b32 %s, %s, 1" % (t0, t0))
    A("s_lshl_b32 %s, %s, 6" % (t0, t0))
    A("s_and_b32 %s, %s, 1" % (t2, sH))
    A("s_lshl_b32 %s, %s, 1" % (t2, t2))
    A("s_sub_u32 %s, 8, %s" % (t1, t2))
    A("s_mul_i32 %s, %s, %s" % (t2, t1, sJ))
    A("s_add_u32 %s, %s, %s" % (t0, t0, t2))
    A("s_lshl_b32 %s, %s, 10" % (t0, t0))
    A("s_add_u32 %s, %s, %s" % (t0, t0, t3))
    A("v_lshl_add_u32 %s, %s, 10, %s" % (vDN0, vG, vN16))
    A("v_add_u32 %s, %s, %s" % (vDN0, t0, vDN0))
    A("s_sub_u32 %s, %s, 5" % (t1, t1))
    A("v_min_u32 %s, %s, %s" % (vDN1, t1, vG))
    A("v_lshl_add_u32 %s, %s, 10, %s" % (vDN1, vDN1, vN16))
    A("s_add_u32 %s, %s, 4096" % (t0, t0))
    A("v_add_u32 %s, %s, %s" % (vDN1, t0, vDN1))
    A("v_and_b32 %s, 1, v0" % vP)
    A("s_lshl_b32 %s, %s, 3" % (t2, s4JW))
    A("v_lshl_add_u32 %s, %s, 2, %s" % (vXF, vP, t2))
    A("s_lshl_b32 %s, %s, 17" % (t0, sH))
    A("s_lshl_b32 %s, %s, 15" % (t2, sW))
    A("s_lshl_b32 %s, %s, 7" % (t3, sJ))
    A("s_add_u32 %s, %s, %s" % (t2, t2, t3))
    A("s_add_u32 %s, %s, %s" % (t2, t2, t0))
    A("s_add_u32 %s, %s, 0x%x" % (t2, t2, MB2))
    A("v_lshrrev_b32 %s, 3, v0" % vS2)
    A("v_and_b32 %s, 7, v0" % u1)
    A("v_lshlrev_b32 %s, 4, %s" % (u1, u1))
    A("v_lshl_add_u32 %s, %s, 12, %s" % (vS2, vS2, u1))
    A("v_add_u32 %s, %s, %s" % (vS2, t2, vS2))
    A("v_lshrrev_b32 %s, 1, %s" % (vS25, vN))
    A("v_lshlrev_b32 %s, 6, %s" % (u1, vP))
    A("v_lshl_add_u32 %s, %s, 12, %s" % (vS25, vS25, u1))
    A("v_lshl_add_u32 %s, %s, 5, %s" % (vS25, u0, vS25))
    A("v_lshrrev_b32 %s, 1, %s" % (u1, vG))
    A("v_lshl_add_u32 %s, %s, 4, %s" % (vS25, u1, vS25))
    A("s_add_u32 %s, %s, 0x%x" % (t2, t2, MB25 - MB2))
    A("v_add_u32 %s, %s, %s" % (vS25, t2, vS25))
    A("s_lshl_b32 %s, %s, 12" % (t3, sJ))
    A("s_add_u32 %s, %s, %s" % (t0, t0, t3))
    A("s_add_u32 %s, %s, 0x%x" % (t0, t0, MB2))
    A("v_lshl_add_u32 %s, v0, 4, %s" % (vL2, t0))
    A("s_lshl_b32 %s, %s, 5" % (t3, sW))
    A("s_add_u32 %s, %s, %s" % (t0, t0, t3))
    A("s_add_u32 %s, %s, 0x%x" % (t0, t0, MB25 - MB2))
    A("v_lshrrev_b32 %s, 1, v0" % u0)
    A("v_lshlrev_b32 %s, 4, %s" % (u1, vP))
    A("v_lshl_add_u32 %s, %s, 7, %s" % (u0, u0, u1))
    A("v_add_u32 %s, %s, %s" % (vL25, t0, u0))
    A("s_lshl_b32 %s, %s, 10" % (t0, s4JW))
    A("s_add_u32 %s, %s, 0x%x" % (t0, t0, MB3))
    A("v_and_b32 %s, 0x3ff, %s" % (u0, u0))
    A("v_add_u32 %s, %s, %s" % (vL3, t0, u0))
    A("s_lshl_b32 %s, %s, 7" % (t3, sH))
    A("s_add_u32 %s, %s, %s" % (t0, t0, t3))
    A("v_add_u32 %s, %s, %s" % (vS3, t0, u1))
    def pretouch2():
        A("s_lshl_b32 %s, %s, 10" % (t0, sW))
        A("v_add_u32 %s, %s, %s" % (u0, t0, vL2))
        A("global_load_dword v158, %s, %s sc1" % (u0, sWS)); issued[0] += 1
        A("v_add_u32 %s, 0x%x, %s" % (u0, MB25 - MB2, u0))
        A("global_load_dword v159, %s, %s sc1" % (u0, sWS)); issued[0] += 1
    if o["pretouch"] == "r":
        A("s_lshl_b32 %s, %s, 10" % (t0, sW))
        A("v_add_u32 %s, %s, %s" % (u0, t0, vL2))
        A("global_load_dword v158, %s, %s sc1" % (u0, sWS)); issued[0] += 1
        A("v_add_u32 %s, 0x%x, %s" % (u0, MB25 - MB2, u0))
        A("global_load_dword v159, %s, %s sc1" % (u0, sWS)); issued[0] += 1
    elif o["pretouch"] == "w":
        A("s_waitcnt lgkmcnt(0)")
        for k in range(4): A("v_mov_b32 v%d, %s" % (PA + k, sTAG))
        A("global_store_dwordx4 %s, v[%d:%d], %s" % (vS2, PA, PA + 3, sWS)); issued[0] += 1
        A("global_store_dwordx4 %s, v[%d:%d], %s" % (vS25, PA, PA + 3, sWS)); issued[0] += 1
    A("v_mov_b32 %s, 0xffff" % u0)
    A("v_lshlrev_b32 %s, %s, %s" % (u0, u1, u0))
    A("v_and_b32 %s, 2, v0" % u1)
    A("v_cmp_eq_u32 vcc, 0, %s" % u1)
    A("v_lshrrev_b32 %s, 1, %s" % (u1, vN))
    A("v_lshlrev_b32 %s, 2, %s" % (vHA, vG))
    A("v_cndmask_b32 %s, 0, %s, vcc" % (vM0, u0))
    A("v_cndmask_b32 %s, %s, 0, vcc" % (vM1, u0))
    for r in range(4):
        A("v_cmp_eq_u32 s[%d:%d], %d, %s" % (44 + 2 * r, 45 + 2 * r, r, u1))
    A("v_lshrrev_b32 %s, 2, %s" % (vMLW, vN))
    A("v_lshlrev_b32 %s, 4, %s" % (u1, vG))
    A("v_lshl_add_u32 %s, %s, 8, %s" % (vQA, vMLW, u1))
    for r in range(4):
        A("v_cndmask_b32 v%d, 0, %s, s[%d:%d]" % (MK + r, u0, 44 + 2 * r, 45 + 2 * r))
    A("s_lshl_b32 %s, %s, 11" % (t0, sW))
    A("v_lshl_add_u32 %s, %s, 9, %s" % (vOW, vG, vN16))
    A("v_add_u32 %s, %s, %s" % (vOW, t0, vOW))
    A("s_lshl_b32 %s, %s, 3" % (t0, sW))
    A("v_lshl_add_u32 %s, %s, 5, %s" % (vMLW, vMLW, t0))
    A("v_bfe_u32 %s, v0, 1, 1" % u0)
    A("v_lshrrev_b32 %s, 2, v0" % u1)
    A("v_lshlrev_b32 %s, 4, %s" % (u1, u1))
    A("v_lshl_add_u32 %s, %s, 8, %s" % (u1, u0, u1))
    A("v_lshl_add_u32 %s, %s, 3, %s" % (u1, vP, u1))
    A("s_lshl_b32 %s, %s, 9" % (t0, sW))
    A("v_add_u32 %s, %s, %s" % (vOR, t0, u1))
    KA = 140
    A("v_and_b32 %s, 3, v0" % u0)
    A("v_lshrrev_b32 %s, 2, %s" % (u1, vN))
    A("v_lshlrev_b32 %s, 8, %s" % (u1, u1))
    A("v_lshl_add_u32 %s, %s, 10, %s" % (u0, u0, u1))
    A("v_xor_b32 %s, %s, %s" % (u1, vG, vN))
    A("v_lshl_add_u32 %s, %s, 4, %s" % (u0, u1, u0))
    A("s_lshl_b32 %s, %s, 13" % (t1, sW))
    A("v_add_u32 v%d, %s, %s" % (KA, t1, u0))
    for s_ in range(1, 4):
        A("v_xor_b32 v%d, %d, v%d" % (KA + s_, s_ << 6, KA))
    A("s_waitcnt lgkmcnt(0)")
    A("s_add_u32 %s, %s, 0x%x" % (sTAG, sTAG, TAGC))
    for i in range(nk_first, 8): kload(i)
    if o["pretouch"] == "k": pretouch2()
    for i in range(8):
        r = VR + i * 4
        load(o["W"], "global_load_dwordx4 v[%d:%d], %s, %s %s" % (r, r + 3, vV0, sV, nt))
        if i < 7: A("v_add_u32 %s, s42, %s" % (vV0, vV0))
    tail = []
    tail.append("global_load_dword %s, %s, %s" % (vXP, vXF, sX))
    for a in range(2):
        r = DNR + a * 4
        tail.append("global_load_dwordx4 v[%d:%d], %s, %s %s" % (r, r + 3, (vDN0, vDN1)[a], sDN, nt))
    for m in range(4):
        r = WOR + m * 4
        tail.append("global_load_dwordx4 v[%d:%d], %s, %s offset:%d %s" % (r, r + 3, (vWO0, vWO1)[m >> 1], sWO, (0, -4096)[(m & 1) == 0], nt))
    nav = [0]
    def tail_issue(n):
        for _ in range(n):
            if tail:
                A(tail.pop(0)); nav[0] += 1
    A("s_waitcnt vmcnt(8)")
    for t in range(2):
        for s in range(4):
            r = KR + (t * 4 + s) * 4
            A("ds_read_b128 v[%d:%d], v%d offset:%d" % (r, r + 3, KA + s, L_K + t * 4096))
    tail_issue(o["ntail0"])
    stamp(2)
    A("s_waitcnt lgkmcnt(0)")
    A("s_barrier")
    stamp(3)
    for s in range(4):
        A("ds_read_b128 v[%d:%d], %s offset:%d" % (QR + 4 * s, QR + 4 * s + 3, vQA, L_Q + s * 64))
    A("s_mov_b32 %s, 0x%x" % (t0, SCALE))
    A("s_mov_b32 %s, 0xffff0000" % t1)
    A("s_mov_b32 %s, 0x%x" % (t2, LOG2E))
    for s in range(4):
        A("s_waitcnt lgkmcnt(%d)" % (3 - s))
        for t in range(2):
            mfma(SR + 4 * t, KR + (t * 4 + s) * 4, QR + 4 * s, None if s == 0 else SR + 4 * t)
    T = KR
    vH0, vH1, vFL = "v%d" % (T + 28), "v%d" % (T + 29), "v%d" % (T + 30)
    A("v_mov_b32 %s, %d" % (vFL, L_FLAG))
    A("s_lshl_b32 %s, %s, 5" % (t3, sW))
    A("v_mov_b32 v%d, %s" % (T + 31, t3))
    A("ds_read_b32 %s, %s" % (vFL, vFL))
    A("s_nop 2")
    C("scores: bf16(qk) -> * scale -> bf16   (the reference's two roundings)")
    for i in range(4):
        A("v_cvt_pk_bf16_f32 v%d, v%d, v%d" % (T + i, SR + 2 * i, SR + 2 * i + 1))
    for i in range(4):
        A("v_lshlrev_b32 v%d, 16, v%d" % (SR + 2 * i, T + i))
        A("v_and_b32 v%d, %s, v%d" % (SR + 2 * i + 1, t1, T + i))
    for i in range(8):
        A("v_mul_f32 v%d, %s, v%d" % (SR + i, t0, SR + i))
    for i in range(4):
        A("v_cvt_pk_bf16_f32 v%d, v%d, v%d" % (T + i, SR + 2 * i, SR + 2 * i + 1))
    for i in range(4):
        A("v_lshlrev_b32 v%d, 16, v%d" % (SR + 2 * i, T + i))
        A("v_and_b32 v%d, %s, v%d" % (SR + 2 * i + 1, t1, T + i))
    vm, vt, vl = "v%d" % (T + 4), "v%d" % (T + 6), "v%d" % (T + 5)
    A("v_max3_f32 %s, v%d, v%d, v%d" % (vm, SR, SR + 1, SR + 2))
    A("v_max3_f32 %s, v%d, v%d, v%d" % (vt, SR + 3, SR + 4, SR + 5))
    A("v_max3_f32 %s, %s, v%d, v%d" % (vm, vm, SR + 6, SR + 7))
    A("v_max_f32 %s, %s, %s" % (vm, vm, vt))
    allred(vm, vt, "v_max_f32", 16)
    allred(vm, vt, "v_max_f32", 32)
    A("v_mul_f32 %s, %s, %s" % (vm, t2, vm))
    for i in range(8):
        A("v_fma_f32 v%d, v%d, %s, -%s" % (SR + i, SR + i, t2, vm))
    for i in range(8):
        A("v_exp_f32 v%d, v%d" % (SR + i, SR + i))
    for i in range(8):
        A("v_cvt_pk_bf16_f32 v%d, v%d, v%d" % (T + 8 + i, SR + i, SR + i))
    for i in range(8):
        A("v_and_b32 v%d, v%d, %s" % (PA + 2 * i, T + 8 + i, vM0))
        A("v_and_b32 v%d, v%d, %s" % (PA + 2 * i + 1, T + 8 + i, vM1))
    stamp(4)
    O0, O1, Y = QR, QR + 4, QR + 8
    def pv(i):
        A("s_waitcnt vmcnt(%d)" % (7 - i + nav[0]))
        if i >= o["tlag"]: tail_issue(1 if i < 7 else 9)
        vr = VR + 4 * i
        mfma16(O0, PA + 2 * i, vr, None if i == 0 else O0)
        mfma16(O1, PA + 2 * i, vr + 2, None if i == 0 else O1)
    A("v_add_f32 %s, v%d, v%d" % (vl, SR, SR + 1))
    A("v_add_f32 %s, v%d, v%d" % (vt, SR + 2, SR + 3))
    A("v_add_f32 v%d, v%d, v%d" % (SR + 4, SR + 4, SR + 5))
    A("v_add_f32 v%d, v%d, v%d" % (SR + 6, SR + 6, SR + 7))
    A("v_add_f32 %s, %s, %s" % (vl, vl, vt))
    A("v_add_f32 v%d, v%d, v%d" % (SR + 4, SR + 4, SR + 6))
    A("v_add_f32 %s, %s, v%d" % (vl, vl, SR + 4))
    allred(vl, vt, "v_add_f32", 16)
    allred(vl, vt, "v_add_f32", 32)
    A("ds_write_b64 %s, v[%d:%d] offset:%d" % (vMLW, T + 4, T + 5, L_ML))
    A("s_waitcnt lgkmcnt(0)")
    A("v_readfirstlane_b32 %s, %s" % (sFAST, vFL))
    HA = T + 16
    ML = T
    OB = T + 8
    G2 = SR
    vM, vLs = "v124", "v125"
    for i in range(o["b2"]): pv(i)
    A("s_barrier")
    A("ds_read_b128 v[%d:%d], v%d offset:%d" % (ML, ML + 3, T + 31, L_ML))
    A("ds_read_b128 v[%d:%d], v%d offset:%d" % (ML + 4, ML + 7, T + 31, L_ML + 16))
    A("ds_read_b32 %s, %s offset:%d" % (vH0, vHA, L_H))
    A("ds_read_b32 %s, %s offset:%d" % (vH1, vHA, L_H + 16))
    A("s_mov_b32 vcc_lo, 0xaaaaaaaa")
    A("s_mov_b32 vcc_hi, 0xaaaaaaaa")
    A("v_mov_b32 v%d, %s" % (G2 + 3, sTAG))
    A("s_waitcnt lgkmcnt(2)")
    A("v_max3_f32 %s, v%d, v%d, v%d" % (vM, ML, ML + 2, ML + 4))
    A("v_max_f32 %s, %s, v%d" % (vM, vM, ML + 6))
    for w_ in range(4):
        A("v_sub_f32 v%d, v%d, %s" % (ML + 2 * w_, ML + 2 * w_, vM))
    for w_ in range(4):
        A("v_exp_f32 v%d, v%d" % (ML + 2 * w_, ML + 2 * w_))
    A("s_waitcnt lgkmcnt(0)")
    A("v_mul_f32 %s, v%d, v%d" % (vLs, ML, ML + 1))
    for w_ in range(1, 4):
        A("v_fmac_f32 %s, v%d, v%d" % (vLs, ML + 2 * w_, ML + 2 * w_ + 1))
    for a in range(2):
        for r in range(4):
            A("v_and_b32 v%d, %s, v%d" % (HA + 4 * a + r, (vH0, vH1)[a], MK + r))
    A("v_cndmask_b32 v%d, %s, %s, vcc" % (G2 + 2, vM, vLs))
    for i in range(o["b2"], 8): pv(i)
    stamp(5)
    if o.get("nosync"):
        A("s_waitcnt vmcnt(0)")
        stamp(6)
        A("s_branch L_done")
    A("s_nop 6")
    A("ds_write_b128 %s, v[%d:%d] offset:%d" % (vOW, O0, O0 + 3, L_O))
    A("ds_write_b128 %s, v[%d:%d] offset:%d" % (vOW, O1, O1 + 3, L_O + 256))
    A("s_waitcnt lgkmcnt(0)")
    A("s_barrier")
    for w_ in range(4):
        A("ds_read_b64 v[%d:%d], %s offset:%d" % (OB + 2 * w_, OB + 2 * w_ + 1, vOR, L_O + w_ * 2048))
    A("s_cmp_eq_u32 %s, 0" % sFAST)
    for w_ in range(4):
        A("s_waitcnt lgkmcnt(%d)" % (3 - w_))
        op = "v_mul_f32" if w_ == 0 else "v_fmac_f32"
        A("%s v%d, v%d, v%d" % (op, G2, ML + 2 * w_, OB + 2 * w_))
        A("%s v%d, v%d, v%d" % (op, G2 + 1, ML + 2 * w_, OB + 2 * w_ + 1))
    tails = []
    def publish(addr, g, name):
        A("s_cbranch_scc1 L_slow_%s" % name)
        A("global_store_dwordx4 %s, v[%d:%d], %s" % (addr, g, g + 3, sWS))
        LB("L_back_%s" % name)
        tails.append((name, addr, g))
    publish(vS2, G2, "h2")
    stamp(6)
    P = T
    for i in range(4):
        A("global_load_dwordx4 v[%d:%d], %s, %s offset:%d sc1" % (P + 4 * i, P + 4 * i + 3, vL2, sWS, i * 1024))
    A("s_mov_b32 %s, %d" % (sCNT, o["spinmax"]))
    A("s_waitcnt vmcnt(5)")
    for a in range(2):
        mfma(Y, HA + 4 * a, DNR + 4 * a, None if a == 0 else Y)
    A("s_branch L_chk2")
    LB("L_poll2")
    MS = ["s[44:45]", "s[46:47]", "s[48:49]", "s[50:51]"]
    for i in range(4):
        if o["mask2"]: A("s_mov_b64 exec, %s" % MS[i])
        A("global_load_dwordx4 v[%d:%d], %s, %s offset:%d sc1" % (P + 4 * i, P + 4 * i + 3, vL2, sWS, i * 1024))
    if o["mask2"]: A("s_mov_b64 exec, -1")
    A("s_sub_u32 %s, %s, 1" % (sCNT, sCNT))
    A("s_cbranch_scc1 L_end")
    LB("L_chk2")
    A("s_waitcnt vmcnt(0)")
    for i in range(4):
        A("v_cmp_ne_u32 %s, %s, v%d" % (MS[i], sTAG, P + 4 * i + 3))
    A("v_max3_f32 %s, v%d, v%d, v%d" % (vM, P + 2, P + 6, P + 10))
    A("s_or_b64 vcc, %s, %s" % (MS[0], MS[1]))
    A("s_or_b64 s[52:53], %s, %s" % (MS[2], MS[3]))
    A("v_max_f32 %s, %s, v%d" % (vM, vM, P + 14))
    A("s_or_b64 vcc, vcc, s[52:53]")
    A("s_cbranch_vccnz L_poll2")
    stamp(7)
    vt2 = "v126"
    A("v_mov_b32_dpp %s, %s quad_perm:[0,0,2,2] %s" % (vM, vM, DPP))
    A("s_nop 1")
    A("v_max_f32_dpp %s, %s, %s row_ror:8 %s" % (vM, vM, vM, DPP))
    allred(vM, vt2, "v_max_f32", 16)
    allred(vM, vt2, "v_max_f32", 32)
    Wt_ = SR
    for i in range(4):
        A("v_sub_f32_dpp v%d, v%d, %s quad_perm:[0,0,2,2] %s" % (Wt_ + i, P + 4 * i + 2, vM, DPP))
    for i in range(4):
        A("v_exp_f32 v%d, v%d" % (Wt_ + i, Wt_ + i))
    a0, a1, den = "v124", "v125", "v126"
    A("v_mul_f32 %s, v%d, v%d" % (a0, Wt_, P))
    A("v_mul_f32 %s, v%d, v%d" % (a1, Wt_, P + 1))
    A("v_mul_f32_dpp %s, v%d, v%d quad_perm:[1,1,3,3] %s" % (den, P + 2, Wt_, DPP))
    for i in range(1, 4):
        A("v_fmac_f32 %s, v%d, v%d" % (a0, Wt_ + i, P + 4 * i))
        A("v_fmac_f32 %s, v%d, v%d" % (a1, Wt_ + i, P + 4 * i + 1))
        A("v_fmac_f32_dpp %s, v%d, v%d quad_perm:[1,1,3,3] %s" % (den, P + 4 * i + 2, Wt_ + i, DPP))
    A("v_add_f32_dpp %s, %s, %s row_ror:8 %s" % (a0, a0, a0, DPP))
    A("v_add_f32_dpp %s, %s, %s row_ror:8 %s" % (a1, a1, a1, DPP))
    A("v_add_f32_dpp %s, %s, %s row_ror:8 %s" % (den, den, den, DPP))
    tA, tB = "v120", "v121"
    A("s_nop 0")
    A("v_permlane32_swap_b32 %s, %s" % (a0, a1))
    A("v_mov_b32 %s, %s" % (tA, den))
    A("v_add_f32 %s, %s, %s" % (a0, a0, a1))
    A("s_nop 0")
    A("v_permlane32_swap_b32 %s, %s" % (tA, den))
    A("v_mov_b32 %s, %s" % (tB, a0))
    A("v_add_f32 %s, %s, %s" % (den, den, tA))
    A("s_nop 0")
    A("v_permlane16_swap_b32 %s, %s" % (tB, a0))
    A("v_mov_b32 %s, %s" % (tA, den))
    A("v_add_f32 %s, %s, %s" % (a0, a0, tB))
    A("s_cmp_eq_u32 %s, 0" % sFAST)
    A("v_permlane16_swap_b32 %s, %s" % (tA, den))
    A("v_add_f32 %s, %s, %s" % (den, den, tA))
    A("v_rcp_f32 %s, %s" % (den, den))
    A("s_nop 0")
    A("v_mul_f32 %s, %s, %s" % (a0, a0, den))
    A("v_cvt_pk_bf16_f32 %s, %s, %s" % (a0, a0, a0))
    A("s_nop 1")
    A("v_mov_b32_dpp %s, %s row_shl:1 row_mask:0xa bank_mask:0xf" % (a0, a0))
    A("s_nop 1")
    WA = T
    for m in range(4):
        for r in range(4):
            A("v_and_b32_dpp v%d, %s, v%d row_newbcast:%d %s" % (WA + 4 * m + r, a0, MK + r, 2 * m, DPP))
        if m > 0:
            mfma(Y, WA + 4 * (m - 1), WOR + 4 * (m - 1), Y)
    A("s_nop 1")
    mfma(Y, WA + 12, WOR + 12, Y)
    A("s_mov_b32 %s, %d" % (sCNT, o["spinmax"]))
    A("s_nop 6")
    A("v_permlane32_swap_b32 v%d, v%d" % (Y, Y + 2))
    A("v_permlane32_swap_b32 v%d, v%d" % (Y + 1, Y + 3))
    A("v_mov_b32 v%d, %s" % (Y + 3, sTAG))
    publish(vS25, Y, "h25")
    stamp(8)
    LB("L_poll25")
    A("global_load_dwordx4 v[%d:%d], %s, %s sc1" % (P, P + 3, vL25, sWS))
    A("s_sub_u32 %s, %s, 1" % (sCNT, sCNT))
    A("s_cbranch_scc1 L_end")
    A("s_waitcnt vmcnt(0)")
    A("v_cmp_ne_u32 vcc, %s, v%d" % (sTAG, P + 3))
    if o["mask2"]:
        A("s_and_b64 exec, exec, vcc")
        A("s_cbranch_scc1 L_poll25")
        A("s_mov_b64 exec, -1")
    else:
        A("s_cbranch_vccnz L_poll25")
    stamp(9)
    def rowsum2(x, y):
        for rot in (2, 4, 8):
            A("v_add_f32_dpp %s, %s, %s row_ror:%d %s" % (x, x, x, rot, DPP))
            A("v_add_f32_dpp %s, %s, %s row_ror:%d %s" % (y, y, y, rot, DPP))
            if rot == 2: A("s_and_b32 %s, %s, 7" % (t0, sJ))
            if rot == 4: A("s_cmp_eq_u32 %s, %s" % (t0, sH))
    x_, y_ = "v%d" % P, "v%d" % (P + 1)
    rowsum2(x_, y_)
    for which in (16, 32):
        A("v_mov_b32 %s, %s" % (tA, x_))
        A("v_mov_b32 %s, %s" % (tB, y_))
        A("s_nop 0")
        A("v_permlane%d_swap_b32 %s, %s" % (which, tA, x_))
        A("v_permlane%d_swap_b32 %s, %s" % (which, tB, y_))
        A("v_add_f32 %s, %s, %s" % (x_, x_, tA))
        A("v_add_f32 %s, %s, %s" % (y_, y_, tB))
    A("s_cbranch_scc1 L_final")
    A("s_mov_b64 exec, 3")
    A("global_store_dwordx4 %s, v[%d:%d], %s sc1" % (vS3, P, P + 3, sWS))
    A("s_branch L_done")
    LB("L_final")
    A("s_lshl_b32 %s, %s, 1" % (t0, sH))
    A("s_lshl_b32 %s, 3, %s" % (t0, t0))
    A("s_andn2_b32 exec_lo, 0xffff, %s" % t0)
    A("s_mov_b32 exec_hi, 0")
    A("s_mov_b32 %s, %d" % (sCNT, o["spinmax"]))
    LB("L_poll3")
    A("global_load_dwordx4 v[%d:%d], %s, %s sc1" % (P, P + 3, vL3, sWS))
    A("s_sub_u32 %s, %s, 1" % (sCNT, sCNT))
    A("s_cbranch_scc1 L_end")
    A("s_waitcnt vmcnt(0)")
    A("v_cmp_ne_u32 vcc, %s, v%d" % (sTAG, P + 3))
    if o["mask2"]:
        A("s_and_b64 exec, exec, vcc")
        A("s_cbranch_scc1 L_poll3")
    else:
        A("s_cbranch_vccnz L_poll3")
    stamp(10)
    A("s_mov_b64 exec, 0xffff")
    A("v_lshlrev_b32 %s, 16, %s" % (tA, vXP))
    A("v_and_b32 %s, 0xffff0000, %s" % (tB, vXP))
    rowsum2(x_, y_)
    A("v_add_f32 %s, %s, %s" % (x_, x_, tA))
    A("v_add_f32 %s, %s, %s" % (y_, y_, tB))
    A("v_cvt_pk_bf16_f32 %s, %s, %s" % (x_, x_, y_))
    A("s_mov_b64 exec, 3")
    A("global_store_dword %s, %s, %s" % (vXF, x_, sOUT))
    A("s_or_b32 %s, s2, %s" % (t0, sW))
    A("s_cbranch_scc1 L_done")
    C("the next launch must not mistake this launch's hand-off words for its own")
    A("v_mov_b32 %s, 0" % tA)
    A("v_mov_b32 %s, %s" % (tB, sTAG))
    A("global_store_dword %s, %s, %s sc1" % (tA, tB, sWS))
    LB("L_done")
    if o.get("pad"):
        LB("L_padspin")
        A("s_memrealtime s[92:93]")
        A("s_waitcnt lgkmcnt(0)")
        A("s_sub_u32 s92, s92, s90")
        A("s_cmp_lt_u32 s92, %d" % o["pad"])
        A("s_cbranch_scc1 L_padspin")
    dump_stamps()
    A("s_endpgm")
    for name, addr, g in tails:
        LB("L_slow_%s" % name)
        A("global_store_dwordx4 %s, v[%d:%d], %s sc1" % (addr, g, g + 3, sWS))
        A("s_branch L_back_%s" % name)
    LB("L_end")
    A("s_endpgm")
    return HEADER.format(lds=o.get("lds", LDS_BYTES), k=KNAME) + "\n".join(L) + FOOTER.format(k=KNAME, vg=o.get("vg", 160), sg=96)


if __name__ == "__main__":
    kw = {}
    out = "parallel_sum__sliding_block_cached__swiglu_ffn__decode.s"
    for a in sys.argv[1:]:
        k, v = a.split("=", 1)
        if k == "out": out = v; continue
        try: v = int(v)
        except ValueError: pass
        kw[k] = v
    open(out, "w").write(gen(**kw))
```

```python
import sys

KNAME = "parallel_sum__sliding_block_cached__swiglu_ffn__decode_kernel"

HEADER = """; Kernarg layout for this problem (96 bytes, ptrs only, base s[0:1]):
;   offset  72: d_out     shape=(1, 1, 512) dtype=bfloat16
; @launch grid=(256,1,1) block=(320,1,1) lds={lds}
.amdgcn_target "amdgcn-amd-amdhsa--gfx950"
.text
.globl {k}
.p2align 8
.type {k},@function
{k}:
"""
FOOTER = """
.section .rodata,"a"
.p2align 6
.amdhsa_kernel {k}
  .amdhsa_next_free_vgpr {vg}
  .amdhsa_next_free_sgpr {sg}
  .amdhsa_accum_offset {vg}
  .amdhsa_group_segment_fixed_size 0
  .amdhsa_kernarg_size 96
  .amdhsa_user_sgpr_count 2
  .amdhsa_user_sgpr_kernarg_segment_ptr 1
  .amdhsa_system_sgpr_workgroup_id_x 1
.end_amdhsa_kernel
"""

MB1A = 0x40000
MB1B = 0x80000
MB2 = 0x100000
MB25 = 0x180000
MB3 = 0x200000
STAMPS = 0x10000000
L_WQ = 0
L_FF = 16384
L_XN = 32768
L_Q = 33792
L_H = 34816
L_FLAG = 34848
L_ML = 34880
L_O = 35072
L_K = L_O + 8192
L_K = (L_K + 1023) // 1024 * 1024
LDS_BYTES = L_K + 32768
TAGC = 0x9E3779B9
LOG2E = 0x3FB8AA3B
SCALE = 0x3DB504F3
EPS = 0x3727C5AC
DPP = "row_mask:0xf bank_mask:0xf"

DEF = dict(stamps=False, spinmax=200000, WK=5, W=6, Wtail=8, b0pos=45, nt="nt", pretouch="k", atries=24,
           prefetch=True, b2=7, ntail0=0, tlag=0, mask2=True, pt1=True, rotm=4, rep3=False, tsp="", auxearly=True, hlate=False)


def gen(**kw):
    o = dict(DEF); o.update(kw)
    L = []
    def A(s): L.append("    " + s)
    def LB(s): L.append(s + ":")
    def C(s): L.append("    ; " + s)
    nt = o["nt"]
    NSTAMP = 12
    role = ["U"]
    def stamp(i):
        if o["stamps"] and (i in (0, 11) or o.get("sel") is None or ("%s%d" % (role[0], i)) in o["sel"].split(",")):
            A("s_memrealtime s[%d:%d]" % (64 + 2 * i, 65 + 2 * i))
    def mfma(d, a, b, c):
        A("v_mfma_f32_16x16x32_bf16 v[%d:%d], v[%d:%d], v[%d:%d], %s" % (d, d + 3, a, a + 3, b, b + 3, "0" if c is None else "v[%d:%d]" % (c, c + 3)))
    def mfma16(d, a, b, c):
        A("v_mfma_f32_16x16x16_bf16 v[%d:%d], v[%d:%d], v[%d:%d], %s" % (d, d + 3, a, a + 1, b, b + 1, "0" if c is None else "v[%d:%d]" % (c, c + 3)))
    def allred(v, tmp, op, which):
        A("v_mov_b32 %s, %s" % (tmp, v))
        A("s_nop 1")
        A("v_permlane%d_swap_b32 %s, %s" % (which, tmp, v))
        A("%s %s, %s, %s" % (op, v, v, tmp))
    sX, sK, sV, sWQ, sWO, sG, sU, sDN, sOUT, sWS = "s[4:5]", "s[6:7]", "s[8:9]", "s[10:11]", "s[12:13]", "s[16:17]", "s[18:19]", "s[20:21]", "s[22:23]", "s[26:27]"
    sW, sH, sJ, sTAG, sXCC, sCNT, sFAST = "s30", "s31", "s32", "s33", "s34", "s35", "s36"
    t0, t1, t2, t3 = "s37", "s38", "s39", "s40"
    def dump_stamps():
        if not o["stamps"]: return
        A("s_mov_b64 exec, 1")
        stamp(11)
        A("s_waitcnt lgkmcnt(0)")
        A("s_mul_i32 %s, s2, 5" % t0)
        A("s_add_u32 %s, %s, %s" % (t0, t0, sW))
        A("s_lshl_b32 %s, %s, 7" % (t0, t0))
        A("s_add_u32 %s, %s, 0x%x" % (t0, t0, STAMPS))
        A("v_mov_b32 v2, %s" % t0)
        for i in range(NSTAMP):
            A("v_mov_b32 v3, s%d" % (64 + 2 * i))
            A("global_store_dword v2, v3, %s offset:%d" % (sWS, 4 * i))
        A("v_mov_b32 v3, %s" % (sCNT if role[0] == "U" or not o.get("bal") else "s62"))
        A("global_store_dword v2, v3, %s offset:%d" % (sWS, 4 * NSTAMP))
        if o.get("dbgfail"):
            for q_, r_ in enumerate(("s84", "s62", "s63")):
                A("v_mov_b32 v3, %s" % r_)
                A("global_store_dword v2, v3, %s offset:%d" % (sWS, 4 * NSTAMP + 8 + 4 * q_))
        A("s_getreg_b32 %s, hwreg(HW_REG_HW_ID)" % t1)
        A("v_mov_b32 v3, %s" % t1)
        A("global_store_dword v2, v3, %s offset:%d" % (sWS, 4 * NSTAMP + 4))

    stamp(0)
    if o.get("pad") or o.get("bal"): A("s_memrealtime s[90:91]")
    A("s_cmp_ge_u32 s2, 256")
    A("s_cbranch_scc1 L_end")
    A("s_load_dwordx16 s[4:19], s[0:1], 0")
    A("s_load_dwordx8 s[20:27], s[0:1], 64")
    A("v_lshrrev_b32 v1, 6, v0")
    A("v_and_b32 v0, 63, v0")
    A("v_readfirstlane_b32 %s, v1" % sW)
    A("s_and_b32 %s, s2, 7" % sH)
    A("s_lshr_b32 %s, s2, 3" % sJ)
    if o.get("bal"):
        A("s_or_b32 %s, %s, %s" % (t0, sJ, sW))
        A("s_cbranch_scc1 L_noflag")
        A("s_lshl_b32 %s, %s, 2" % (t0, sH))
        A("v_mov_b32 v108, %s" % t0)
        A("s_waitcnt lgkmcnt(0)")
        A("s_or_b32 %s, s90, 1" % t0)
        A("v_mov_b32 v109, %s" % t0)
        A("global_store_dword v108, v109, s[24:25] sc1")
        LB("L_noflag")
    A("s_cmp_eq_u32 %s, 4" % sW)
    A("s_cbranch_scc0 L_attn")

    C("wave 4: layernorm, one [128 x 64] tile of wq and one of gate/up, exchange of q and of the FFN hidden values")
    A("s_setprio 3")
    if o["prefetch"]:
        A("s_getpc_b64 s[28:29]")
        LB("L_pc")
        A("v_lshlrev_b32 v2, 7, v0")
        A("v_min_u32 v2, L_end-L_pc, v2")
        A("global_load_dword v127, v2, s[28:29]")
    sQK, sNOFF = "s50", "s51"
    A("v_lshlrev_b32 v3, 4, v0")
    A("v_lshrrev_b32 v6, 3, v0")
    A("v_and_b32 v5, 2, v6")
    A("v_and_b32 v7, 7, v0")
    A("v_xor_b32 v5, v5, v7")
    A("v_lshlrev_b32 v7, 4, v5")
    A("s_and_b32 %s, %s, 3" % (sQK, sJ))
    A("s_lshl_b32 %s, %s, 10" % (t0, sH))
    A("s_lshr_b32 %s, %s, 2" % (t1, sJ))
    A("s_lshl_b32 %s, %s, 7" % (t1, t1))
    A("s_lshl_b32 %s, %s, 20" % (t2, sQK))
    A("s_add_u32 %s, %s, %s" % (t0, t0, t1))
    A("s_add_u32 %s, %s, %s" % (t0, t0, t2))
    A("v_lshl_add_u32 v4, v6, 13, v7")
    A("v_add_u32 v4, %s, v4" % t0)
    A("v_xor_b32 v5, 64, v4")
    A("v_add_u32 v5, 0x10000, v5")
    if o["pt1"]:
        C("pull this workgroup's own hand-off lines into L2 before anyone polls them")
        A("s_lshl_b32 %s, %s, 15" % (t0, sH))
        A("s_lshl_b32 %s, %s, 8" % (t1, sJ))
        A("s_add_u32 %s, %s, %s" % (t0, t0, t1))
        A("s_add_u32 %s, %s, 0x%x" % (t0, t0, MB1A))
        A("v_and_b32 v33, 1, v0")
        A("v_bfe_u32 v32, v0, 1, 1")
        A("v_lshlrev_b32 v33, 7, v33")
        A("v_lshl_add_u32 v33, v32, 13, v33")
        A("s_mul_i32 %s, %s, 240" % (t1, sJ))
        A("s_sub_u32 %s, 0x4000, %s" % (t1, t1))
        A("v_cmp_lt_u32 vcc, 3, v0")
        A("v_mov_b32 v32, %s" % t1)
        A("s_nop 0")
        A("v_cndmask_b32 v33, v33, v32, vcc")
        A("v_add_u32 v33, %s, v33" % t0)
    A("s_mov_b32 m0, %d" % L_WQ)
    A("s_mov_b32 %s, 0x20000" % t1)
    if o.get("ucontig"):
        A("s_lshl_b32 %s, s2, 10" % t0)
        A("v_add_u32 v4, %s, v3" % t0)
        A("v_add_u32 v5, 0x40000, v4")
        A("s_mov_b32 %s, 0x80000" % t1)
    A("s_movk_i32 s41, 1024")
    A("s_waitcnt lgkmcnt(0)")
    A("global_load_dwordx4 v[8:11], v3, %s" % sX)
    A("s_load_dword %s, %s, 0" % (sTAG, sWS))
    if o["pt1"]:
        A("global_load_dword v119, v33, %s sc1" % sWS)
    def dma_loop(name, base, step):
        A("s_mov_b32 %s, 4" % t2)
        LB(name)
        for i in range(4):
            vv = ("v4", "v5")[i & 1]
            A("global_load_lds_dwordx4 %s, %s %s" % (vv, base, nt))
            A("s_add_u32 m0, m0, s41")
            A("v_add_u32 %s, %s, %s" % (vv, step, vv))
        A("s_sub_u32 %s, %s, 1" % (t2, t2))
        A("s_cmp_lg_u32 %s, 0" % t2)
        A("s_cbranch_scc1 %s" % name)
    dma_loop("L_wq_loop", sWQ, t1)
    if o["b0pos"] == 16: A("s_barrier")
    A("s_mul_i32 %s, %s, 7" % (t0, sH))
    A("s_add_u32 %s, %s, 1" % (t0, t0))
    A("s_lshr_b32 %s, %s, 1" % (t0, t0))
    A("s_lshr_b32 %s, %s, 3" % (t1, sJ))
    A("s_add_u32 %s, %s, %s" % (t0, t0, t1))
    A("s_mul_i32 %s, %s, 3584" % (t1, sQK))
    A("s_add_u32 %s, %s, %s" % (t0, t0, t1))
    A("s_lshl_b32 %s, %s, 7" % (t0, t0))
    A("v_mul_u32_u24 v4, 3584, v6")
    A("v_add3_u32 v4, v4, v7, %s" % t0)
    A("v_xor_b32 v5, 64, v4")
    A("v_add_u32 v5, %d, v5" % (8 * 3584))
    A("s_mov_b32 %s, %d" % (t1, 16 * 3584))
    if o.get("ucontig"):
        A("s_lshr_b32 %s, s2, 1" % t0)
        A("s_min_u32 %s, %s, 111" % (t0, t0))
        A("s_lshl_b32 %s, %s, 10" % (t0, t0))
        A("v_add_u32 v4, %s, v3" % t0)
        A("v_add_u32 v5, %d, v4" % (112 * 1024))
        A("s_mov_b32 %s, %d" % (t1, 224 * 1024))
    A("s_bitcmp0_b32 %s, %d" % (("s2", 0) if o.get("ucontig") else (sJ, 2)))
    A("s_cselect_b64 s[42:43], %s, %s" % (sG, sU))
    A("s_and_b32 %s, %s, 1" % (t3, sH))
    A("s_lshl_b32 %s, %s, 3" % (t0, t3))
    A("s_add_u32 %s, %s, %s" % (sNOFF, t0, sJ))
    A("s_cmp_ge_u32 %s, 32" % sNOFF)
    A("s_cselect_b64 exec, 1, -1")
    dma_loop("L_ff_loop", "s[42:43]", t1)
    A("s_mov_b64 exec, -1")
    def tlbwarm():
        C("first touch of the pages the later loads use (address translation early, off their queue)")
        A("s_lshl_b32 %s, %s, 24" % (t0, sH))
        A("s_add_u32 %s, %s, 0xF00000" % (t0, t0))
        A("v_mov_b32 v112, %s" % t0)
        A("s_lshl_b32 %s, %s, 19" % (t0, sH))
        A("v_mov_b32 v113, %s" % t0)
        A("s_mul_i32 %s, %s, 0x38000" % (t0, sH))
        A("v_mov_b32 v114, %s" % t0)
        A("v_mov_b32 v115, 0x%x" % MB3)
        A("s_mov_b64 exec, 1")
        A("global_load_dword v116, v112, %s" % sK)
        A("global_load_dword v117, v112, %s" % sV)
        A("global_load_dword v118, v113, %s" % sWO)
        A("global_load_dword v111, v114, %s" % sDN)
        A("global_load_dword v110, v115, %s" % sWS)
        A("s_mov_b64 exec, -1")
    NW = 0
    if o.get("tlbw") == 2:
        tlbwarm(); NW = 5
    if o["b0pos"] == 32:
        if o.get("b0wait") is not None: A("s_waitcnt vmcnt(%d)" % o["b0wait"])
        A("s_barrier")
    stamp(1)
    XF = 12
    A("s_mov_b32 %s, 0xffff0000" % t1)
    A("s_waitcnt vmcnt(%d)" % ((33 if o["pt1"] else 32) + NW))
    stamp(2)
    C("layernorm with the reference's bf16 roundings")
    for i in range(4):
        A("v_lshlrev_b32 v%d, 16, v%d" % (XF + 2 * i, 8 + i))
        A("v_and_b32 v%d, %s, v%d" % (XF + 2 * i + 1, t1, 8 + i))
    fill = []
    def F(s): fill.append(s)
    def nop2():
        n = 0
        while fill and n < 2:
            A(fill.pop(0)); n += 1
        if n < 2: A("s_nop %d" % (1 - n))
    TRB = 120
    vAX, vS1, vL1, vL1x, vL1a, vF, vTN, vTB = "v34", "v35", "v36", "v37", "v38", "v39", "v124", "v125"
    sRP, sB1 = "s52", "s53"
    F("v_lshrrev_b32 v126, 4, v0")
    F("v_bfe_u32 v4, v0, 2, 2")
    F("v_lshl_add_u32 v5, v126, 3, v4")
    F("v_and_b32 v6, 3, v0")
    F("v_lshlrev_b32 v7, 3, v6")
    F("v_lshl_add_u32 v5, v5, 7, v7")
    F("v_bfe_u32 v4, v0, 3, 2")
    for ct in range(4):
        F("v_xor_b32 v7, %d, v4" % ct)
        F("v_lshl_add_u32 v%d, v7, 5, v5" % (TRB + ct))
    F("s_lshl_b32 %s, %s, 8" % (t0, sQK))
    F("v_lshl_add_u32 %s, v126, 4, %s" % (vAX, t0))
    F("s_lshl_b32 %s, %s, 15" % (sB1, sH))
    F("s_add_u32 %s, %s, 0x%x" % (sB1, sB1, MB1A))
    def wavesum(v, tmp):
        for rot in (1, 2, 4, 8):
            nop2()
            A("v_add_f32_dpp %s, %s, %s row_ror:%d %s" % (v, v, v, rot, DPP))
        for which in (16, 32):
            A("v_mov_b32 %s, %s" % (tmp, v))
            nop2()
            A("v_permlane%d_swap_b32 %s, %s" % (which, tmp, v))
            A("v_add_f32 %s, %s, %s" % (v, v, tmp))
    def P2(r): return "v[%d:%d]" % (r, r + 1)
    A("v_pk_add_f32 v[22:23], %s, %s" % (P2(XF), P2(XF + 2)))
    A("v_pk_add_f32 v[24:25], %s, %s" % (P2(XF + 4), P2(XF + 6)))
    A("v_pk_add_f32 v[22:23], v[22:23], v[24:25]")
    A("v_add_f32 v22, v22, v23")
    wavesum("v22", "v23")
    A("v_mul_f32 v22, 0x3b000000, v22")
    DV = 24
    for i in range(4):
        A("v_pk_add_f32 %s, %s, v[22:23] op_sel_hi:[1,0] neg_lo:[0,1] neg_hi:[0,1]" % (P2(DV + 2 * i), P2(XF + 2 * i)))
    A("v_cvt_pk_bf16_f32 v22, 0, v22")
    A("v_pk_mul_f32 v[32:33], %s, %s" % (P2(DV), P2(DV)))
    for i in range(1, 4):
        A("v_pk_fma_f32 v[32:33], %s, %s, v[32:33]" % (P2(DV + 2 * i), P2(DV + 2 * i)))
    A("v_add_f32 v32, v32, v33")
    pre = ["v_pk_add_f32 %s, %s, v[22:23] op_sel_hi:[1,0] neg_lo:[0,1] neg_hi:[0,1]" % (P2(XF + 2 * i), P2(XF + 2 * i)) for i in range(4)]
    pre += ["v_cvt_pk_bf16_f32 v%d, 0, v%d" % (XF + i, XF + i) for i in range(8)]
    rest = fill[:]; fill[:] = pre
    wavesum("v32", "v33")
    fill[:] = fill + rest
    A("v_mul_f32 v32, 0x3b000000, v32")
    A("v_cvt_pk_bf16_f32 v32, 0, v32")
    A("v_add_f32 v32, 0x%x, v32" % EPS)
    A("v_cvt_pk_bf16_f32 v32, 0, v32")
    A("v_sqrt_f32 v32, v32")
    A(fill.pop(0))
    A("v_cvt_pk_bf16_f32 v32, 0, v32")
    A("v_rcp_f32 v32, v32")
    A(fill.pop(0))
    for i in range(4):
        A("v_pk_mul_f32 %s, %s, v[32:33] op_sel_hi:[1,0]" % (P2(XF + 2 * i), P2(XF + 2 * i)))
    for i in range(4):
        A("v_cvt_pk_bf16_f32 v%d, v%d, v%d" % (8 + i, XF + 2 * i, XF + 2 * i + 1))
    A("ds_write_b128 v3, v[8:11] offset:%d" % L_XN)
    while fill: A(fill.pop(0))
    A("s_lshl_b32 %s, %s, 8" % (t2, sJ))
    A("s_add_u32 %s, %s, %s" % (t2, t2, sB1))
    A("v_lshrrev_b32 v4, 2, v0")
    A("v_lshl_add_u32 %s, v4, 4, %s" % (vS1, t2))
    A("s_waitcnt lgkmcnt(0)")
    AF = 40
    for m in range(4):
        A("ds_read_b128 v[%d:%d], %s offset:%d" % (AF + 4 * m, AF + 4 * m + 3, vAX, L_XN + m * 64))
    A("s_add_u32 %s, %s, 0x%x" % (sTAG, sTAG, TAGC))
    A("v_lshlrev_b32 v4, 2, v6")
    A("v_lshrrev_b32 %s, v4, %s" % (vTN, sTAG))
    A("v_and_b32 %s, 15, %s" % (vTN, vTN))
    A("v_lshlrev_b32 v4, 3, v6")
    A("v_lshrrev_b32 %s, v4, %s" % (vTB, sTAG))
    A("v_and_b32 %s, 0xff, %s" % (vTB, vTB))
    A("s_mov_b32 s44, 0")
    A("s_mov_b32 s45, -1")
    if o["b0pos"] == 40: A("s_barrier")
    stamp(3)
    BF = 56
    D0 = 88
    GR = 24
    def gemv(lbase, vm0):
        def rd(m, ct):
            b = BF + 16 * (m & 1)
            for hh in range(2):
                A("ds_read_b64_tr_b16 v[%d:%d], v%d offset:%d" % (b + 4 * ct + 2 * hh, b + 4 * ct + 2 * hh + 1, TRB + ct, lbase + m * 4096 + hh * 512))
        A("s_waitcnt vmcnt(%d)" % (vm0 + 12))
        for ct in range(4): rd(0, ct)
        for m in range(4):
            b = BF + 16 * (m & 1)
            if m < 3: A("s_waitcnt vmcnt(%d)" % (vm0 + 8 - 4 * m))
            for ct in range(4):
                A("s_waitcnt lgkmcnt(%d)" % (6 if m < 3 else 6 - 2 * ct))
                mfma(D0 + 4 * ct, AF + 4 * m, b + 4 * ct, None if m == 0 else D0 + 4 * ct)
                if m < 3: rd(m + 1, ct)
    def pack(maskc, vt):
        A("s_mov_b32 vcc_lo, 0xffff0000")
        A("s_mov_b32 vcc_hi, 0xffff0000")
        A("s_movk_i32 %s, 0x%x" % (t0, maskc))
        A("s_nop 2")
        A("v_cndmask_b32 v%d, v%d, v%d, vcc" % (GR, D0, D0 + 4))
        A("s_nop 0")
        A("v_cndmask_b32 v%d, v%d, v%d, vcc" % (GR + 1, D0 + 8, D0 + 12))
        A("v_cndmask_b32 v%d, v%d, v%d, s[44:45]" % (GR, GR, GR + 1))
        A("v_and_or_b32 v%d, v%d, %s, %s" % (GR, GR, t0, vt))
        A("v_add_u32 v22, 0x%x, %s" % (MB1B - MB1A, vS1))
        A("s_nop 0")
        for k in range(1, 4):
            A("v_mov_b32_dpp v%d, v%d quad_perm:[%d,%d,%d,%d] %s" % (GR + k, GR, k, k, k, k, DPP))
        A("s_mov_b32 exec_lo, 0x11111111")
        A("s_mov_b32 exec_hi, 0x11111111")
        A("global_store_dwordx4 %s, v[%d:%d], %s" % (vS1, GR, GR + 3, sWS))
        A("global_store_dwordx4 v22, v[%d:%d], %s sc1" % (GR, GR + 3, sWS))
        A("s_mov_b64 exec, -1")
    gemv(L_WQ, 16 + NW)
    if o["b0pos"] == 45: A("s_barrier")
    pack(0xfff0, vTN)
    stamp(4)
    XG = 28
    A("s_getreg_b32 %s, hwreg(HW_REG_XCC_ID, 0, 4)" % sXCC)
    A("s_and_b32 %s, %s, 0xff" % (t0, sTAG))
    A("s_lshl_b32 %s, %s, 8" % (t2, sXCC))
    A("s_or_b32 s54, %s, %s" % (t0, t2))
    A("v_mov_b32 v%d, s54" % XG)
    for k in range(1, 4):
        A("s_bfe_u32 %s, %s, 0x%x" % (t0, sTAG, 0x80000 | (8 * k)))
        A("v_mov_b32 v%d, %s" % (XG + k, t0))
    A("s_lshl_b32 %s, %s, 4" % (t2, sJ))
    A("s_add_u32 %s, %s, %s" % (t2, t2, sB1))
    A("s_add_u32 %s, %s, 0x4000" % (t2, t2))
    A("v_mov_b32 v22, %s" % t2)
    A("v_add_u32 v23, 0x%x, v22" % (MB1B - MB1A))
    A("s_mov_b64 exec, 1")
    A("global_store_dwordx4 v22, v[%d:%d], %s" % (XG, XG + 3, sWS))
    A("global_store_dwordx4 v23, v[%d:%d], %s sc1" % (XG, XG + 3, sWS))
    A("s_mov_b64 exec, -1")
    if o["b0pos"] == 50: A("s_barrier")
    A("v_add_u32 %s, 0x2000, %s" % (vS1, vS1))
    A("s_cmp_ge_u32 %s, 32" % sNOFF)
    A("s_cbranch_scc1 L_noff2")
    gemv(L_FF, 4 + NW)
    pack(0xff00, vTB)
    LB("L_noff2")
    stamp(7)
    if o.get("nosync"):
        A("s_barrier")
        A("s_mov_b32 %s, 0" % sCNT)
        dump_stamps()
        A("s_endpgm")
    A("v_and_b32 v4, 15, v0")
    A("v_lshlrev_b32 v4, 4, v4")
    A("v_lshl_add_u32 v4, v126, 10, v4")
    A("s_add_u32 %s, %s, 2432" % (t0, sB1))
    A("v_add_u32 %s, %s, v4" % (vL1, t0))
    A("v_and_b32 v4, 31, v0")
    A("s_add_u32 %s, %s, 0x4000" % (t0, sB1))
    A("v_lshl_add_u32 %s, v4, 4, %s" % (vL1x, t0))
    A("s_lshl_b32 %s, %s, 1" % (t2, t3))
    A("s_sub_u32 %s, 8, %s" % (sRP, t2))
    A("s_mul_i32 %s, %s, %s" % (t2, sRP, sJ))
    A("s_sub_u32 %s, %s, 1" % (t0, sRP))
    A("v_and_b32 v4, 7, v0")
    A("v_min_u32 v4, %s, v4" % t0)
    A("v_add_u32 %s, %s, v4" % (vF, t2))
    A("v_lshrrev_b32 v4, 6, %s" % vF)
    A("v_bfe_u32 v5, v0, 3, 1")
    A("v_lshl_add_u32 v4, v4, 1, v5")
    A("v_lshl_add_u32 v4, v4, 2, v126")
    A("v_bfe_u32 v5, %s, 2, 4" % vF)
    A("v_lshlrev_b32 v5, 4, v5")
    A("v_lshl_add_u32 v4, v4, 8, v5")
    A("s_add_u32 %s, %s, 0x2000" % (t0, sB1))
    A("v_add_u32 %s, %s, v4" % (vL1a, t0))
    for k in range(4):
        A("s_bfe_u32 s%d, %s, 0x%x" % (56 + k, sTAG, 0x40000 | (4 * k)))
    A("s_mov_b32 s60, 0x0c0c0400")
    A("s_mov_b32 s61, 0x04000c0c")
    P = 40
    PX, PA_ = 72, 76
    A("s_mov_b32 %s, 0" % sCNT)
    def switch_copy(regs):
        A("s_add_u32 %s, %s, 1" % (sCNT, sCNT))
        A("s_cmp_eq_u32 %s, %d" % (sCNT, o["atries"]))
        A("s_cselect_b32 %s, 0x%x, 0" % (t0, MB1B - MB1A))
        for r in regs: A("v_add_u32 %s, %s, %s" % (r, t0, r))
        A("s_cmp_gt_u32 %s, %d" % (sCNT, o["spinmax"]))
        A("s_cbranch_scc1 L_end")
    def bytecheck(p, dst):
        A("v_perm_b32 v22, v%d, v%d, s60" % (p + 1, p))
        A("v_perm_b32 v23, v%d, v%d, s61" % (p + 3, p + 2))
        A("v_or_b32 v22, v22, v23")
        A("v_cmp_ne_u32 %s, %s, v22" % (dst, sTAG))
    stamp(9)
    LB("L_poll1")
    stamp(8)
    for i in range(2):
        for q in range(4):
            r = P + 16 * i + 4 * q
            A("global_load_dwordx4 v[%d:%d], %s, %s offset:%d sc1" % (r, r + 3, vL1, sWS, i * 4096 + q * 256 - 2432))
    A("global_load_dwordx4 v[%d:%d], %s, %s sc1" % (PX, PX + 3, vL1x, sWS))
    A("global_load_dwordx4 v[%d:%d], %s, %s sc1" % (PA_, PA_ + 3, vL1a, sWS))
    switch_copy([vL1, vL1x, vL1a])
    for g_ in range(8):
        A("s_waitcnt vmcnt(%d)" % (9 - g_))
        for k in range(4):
            A("v_xor_b32 v%d, s%d, v%d" % (P + 4 * g_ + k, 56 + k, P + 4 * g_ + k))
        if g_ == 0:
            A("v_or3_b32 v21, v%d, v%d, v%d" % (P, P + 1, P + 2))
            A("v_or_b32 v21, v21, v%d" % (P + 3))
        else:
            A("v_or3_b32 v21, v21, v%d, v%d" % (P + 4 * g_, P + 4 * g_ + 1))
            A("v_or3_b32 v21, v21, v%d, v%d" % (P + 4 * g_ + 2, P + 4 * g_ + 3))
    A("v_and_b32 v21, 15, v21")
    A("s_waitcnt vmcnt(1)")
    bytecheck(PX, "vcc")
    A("v_cmp_ne_u32 s[46:47], 0, v21")
    if o.get("dbgfail"):
        A("s_cmp_eq_u32 %s, 1" % sCNT)
        A("s_cselect_b32 s84, vcc_lo, s84")
        A("s_cselect_b32 s62, s46, s62")
        A("s_cselect_b32 s63, s47, s63")
    A("s_or_b64 vcc, vcc, s[46:47]")
    A("s_cbranch_vccnz L_poll1")
    stamp(5)
    for i in range(2):
        b = P + 16 * i
        for k in range(4):
            A("v_add_f32 v%d, v%d, v%d" % (b + k, b + k, b + 4 + k))
            A("v_add_f32 v%d, v%d, v%d" % (b + 8 + k, b + 8 + k, b + 12 + k))
        for k in range(4):
            A("v_add_f32 v%d, v%d, v%d" % (b + k, b + k, b + 8 + k))
        A("v_cvt_pk_bf16_f32 v%d, v%d, v%d" % (b, b, b + 1))
        A("v_cvt_pk_bf16_f32 v%d, v%d, v%d" % (b + 1, b + 2, b + 3))
    A("v_lshlrev_b32 v22, 3, v0")
    A("ds_write_b64 v22, v[%d:%d] offset:%d" % (P, P + 1, L_Q))
    A("ds_write_b64 v22, v[%d:%d] offset:%d" % (P + 16, P + 17, L_Q + 512))
    A("v_cmp_ne_u32 vcc, s54, v%d" % PX)
    A("s_cmp_eq_u64 vcc, 0")
    A("s_cselect_b32 %s, 1, 0" % sFAST)
    if o.get("forceslow"): A("s_mov_b32 %s, 0" % sFAST)
    A("v_mov_b32 v26, %s" % sFAST)
    A("v_mov_b32 v22, %d" % L_FLAG)
    A("ds_write_b32 v22, v26")
    if o["auxearly"]:
        A("s_waitcnt vmcnt(0)")
        bytecheck(PA_, "vcc")
        A("s_cbranch_vccz L_aux_b1")
        A("global_load_dwordx4 v[%d:%d], %s, %s sc1" % (PA_, PA_ + 3, vL1a, sWS))
        LB("L_aux_b1")
    A("s_waitcnt lgkmcnt(0)")
    A("s_barrier")
    if o["hlate"]:
        A("s_setprio %d" % o.get("hprio", 0))
        A("s_barrier")
        A("s_barrier")
    A("s_branch L_chk_aux")
    LB("L_poll_aux")
    A("global_load_dwordx4 v[%d:%d], %s, %s sc1" % (PA_, PA_ + 3, vL1a, sWS))
    switch_copy([vL1a])
    LB("L_chk_aux")
    A("s_waitcnt vmcnt(0)")
    bytecheck(PA_, "vcc")
    A("s_cbranch_vccnz L_poll_aux")
    A("s_movk_i32 %s, 0xff00" % t0)
    A("v_and_b32 v23, 1, %s" % vF)
    A("v_cmp_eq_u32 vcc, 0, v23")
    A("v_and_b32 v23, 2, %s" % vF)
    A("v_cmp_eq_u32 s[46:47], 0, v23")
    A("v_cndmask_b32 v24, v%d, v%d, vcc" % (PA_ + 1, PA_))
    A("v_cndmask_b32 v25, v%d, v%d, vcc" % (PA_ + 3, PA_ + 2))
    A("v_cndmask_b32 v24, v25, v24, s[46:47]")
    A("v_and_b32 v24, %s, v24" % t0)
    allred("v24", "v23", "v_add_f32", 16)
    allred("v24", "v23", "v_add_f32", 32)
    A("v_cvt_pk_bf16_f32 v24, v24, v24")
    A("v_and_b32 v24, %s, v24" % t1)
    A("v_mul_f32 v25, 0x%x, v24" % (LOG2E | 0x80000000))
    A("v_exp_f32 v25, v25")
    A("v_mov_b32_dpp v26, v24 row_ror:8 %s" % DPP)
    A("v_add_f32 v25, 1.0, v25")
    A("v_rcp_f32 v25, v25")
    A("v_cmp_le_u32 vcc, %s, v0" % sRP)
    A("v_mul_f32 v25, v24, v25")
    A("v_cvt_pk_bf16_f32 v25, v25, v25")
    A("v_and_b32 v25, %s, v25" % t1)
    A("v_mul_f32 v25, v25, v26")
    A("v_cvt_pk_bf16_f32 v25, v25, v25")
    A("v_cndmask_b32 v25, v25, 0, vcc")
    A("v_lshlrev_b32 v22, 2, v0")
    A("s_mov_b64 exec, 0xff")
    A("ds_write_b32 v22, v25 offset:%d" % L_H)
    A("s_waitcnt lgkmcnt(0)")
    stamp(6)
    dump_stamps()
    A("s_endpgm")

    role[0] = "A"
    LB("L_attn")
    vK0, vK1, vV0, vV1 = "v2", "v3", "v4", "v5"
    vWO0, vWO1, vDN0, vDN1, vXF, vXP = "v6", "v7", "v8", "v9", "v10", "v1"
    vS2, vL2, vS25, vL25, vL3, vS3 = "v11", "v12", "v13", "v14", "v15", "v150"
    KR, VR, WOR, DNR, QR, SR, PA, MK = 16, 48, 80, 96, 104, 120, 128, 146
    vM0, vM1, vQA, vOW, vOR, vMLW, vHA = "v151", "v152", "v153", "v154", "v155", "v156", "v157"
    vN, vG, vN16, vP = "v120", "v121", "v122", "v123"
    u0, u1 = "v124", "v125"
    s4JW = "s41"
    C("K and V: load i = 1 KB block (4 keys) number 128 i + 4j + w of the head's window; K goes through LDS")
    A("s_lshl_b32 %s, %s, 24" % (t0, sH))
    A("s_lshl_b32 %s, %s, 2" % (s4JW, sJ))
    A("s_add_u32 %s, %s, %s" % (s4JW, s4JW, sW))
    A("s_lshl_b32 %s, %s, 10" % (t2, s4JW))
    A("s_add_u32 %s, %s, %s" % (t0, t0, t2))
    A("s_add_u32 %s, %s, 0xF00000" % (t0, t0))
    A("v_and_b32 %s, 15, v0" % vN)
    A("v_lshrrev_b32 %s, 4, v0" % vG)
    A("v_lshlrev_b32 %s, 4, %s" % (vN16, vN))
    A("v_lshl_add_u32 %s, v0, 4, %s" % (vV0, t0))
    A("v_lshlrev_b32 %s, 6, %s" % (u0, vG))
    A("v_xor_b32 %s, %s, %s" % (vK0, u0, vV0))
    A("s_lshl_b32 %s, %s, 13" % (t1, sW))
    A("s_add_u32 m0, %s, %d" % (t1, L_K))
    A("s_mov_b32 s42, 0x20000")
    A("s_movk_i32 s43, 1024")
    A("s_waitcnt lgkmcnt(0)")
    A("s_load_dword %s, %s, 0" % (sTAG, sWS))
    if o.get("tlbw") == 1:
        A("s_cmp_lg_u32 %s, 0" % sW)
        A("s_cbranch_scc1 L_notlb")
        tlbwarm()
        A("s_waitcnt vmcnt(0)")
        LB("L_notlb")
    if o["b0pos"]: A("s_barrier")
    stamp(1)
    issued = [0]
    def load(w, txt):
        if issued[0] >= w:
            A("s_waitcnt vmcnt(%d)" % (w - 1))
        A(txt); issued[0] += 1
    def rot(i): return (i * o["rotm"]) & 127
    def kload(i):
        load(o["WK"], "global_load_lds_dwordx4 %s, %s %s" % (vK0, sK, nt))
        if i < 7:
            A("s_add_u32 m0, m0, s43")
            A("v_xor_b32 %s, %d, %s" % (vK0, (((i & 3) ^ ((i + 1) & 3)) << 4) | ((rot(i) ^ rot(i + 1)) << 10), vK0))
            A("v_add_u32 %s, s42, %s" % (vK0, vK0))
    nk_first = min(o["WK"], 8)
    if o.get("bal"):
        A("v_and_b32 v158, 7, v0")
        A("v_lshlrev_b32 v158, 2, v158")
        A("global_load_dword v159, v158, s[24:25] sc1")
    for i in range(nk_first): kload(i)
    C("address and mask setup in the shadow of the K loads")
    A("s_lshl_b32 %s, %s, 19" % (t0, sH))
    A("s_lshl_b32 %s, %s, 14" % (t2, sJ))
    A("s_add_u32 %s, %s, %s" % (t0, t0, t2))
    A("s_lshl_b32 %s, %s, 8" % (t3, sW))
    A("s_add_u32 %s, %s, %s" % (t0, t0, t3))
    A("s_add_u32 %s, %s, 0x1000" % (t0, t0))
    A("v_lshl_add_u32 %s, %s, 10, %s" % (vDN0, vG, vN16))
    A("v_add_u32 %s, %s, %s" % (vWO0, t0, vDN0))
    A("v_add_u32 %s, 0x2000, %s" % (vWO1, vWO0))
    A("s_mul_i32 %s, %s, 7" % (t0, sH))
    A("s_add_u32 %s, %s, 1" % (t0, t0))
    A("s_lshr_b32 %s, %s, 1" % (t0, t0))
    A("s_lshl_b32 %s, %s, 6" % (t0, t0))
    A("s_and_b32 %s, %s, 1" % (t2, sH))
    A("s_lshl_b32 %s, %s, 1" % (t2, t2))
    A("s_sub_u32 %s, 8, %s" % (t1, t2))
    A("s_mul_i32 %s, %s, %s" % (t2, t1, sJ))
    A("s_add_u32 %s, %s, %s" % (t0, t0, t2))
    A("s_lshl_b32 %s, %s, 10" % (t0, t0))
    A("s_add_u32 %s, %s, %s" % (t0, t0, t3))
    A("v_add_u32 %s, %s, %s" % (vDN0, t0, vDN0))
    A("s_sub_u32 %s, %s, 5" % (t1, t1))
    A("v_min_u32 %s, %s, %s" % (vDN1, t1, vG))
    A("v_lshl_add_u32 %s, %s, 10, %s" % (vDN1, vDN1, vN16))
    A("s_add_u32 %s, %s, 4096" % (t0, t0))
    A("v_add_u32 %s, %s, %s" % (vDN1, t0, vDN1))
    A("v_and_b32 %s, 1, v0" % vP)
    A("v_and_b32 %s, 1, %s" % (u0, vG))
    A("s_lshl_b32 %s, %s, 3" % (t2, s4JW))
    A("v_lshl_add_u32 %s, %s, 2, %s" % (vXF, u0, t2))
    A("s_lshl_b32 %s, %s, 16" % (t0, sH))
    A("s_lshl_b32 %s, %s, 14" % (t2, sW))
    A("s_lshl_b32 %s, %s, 6" % (t3, sJ))
    A("s_add_u32 %s, %s, %s" % (t2, t2, t3))
    A("s_add_u32 %s, %s, %s" % (t2, t2, t0))
    A("s_add_u32 %s, %s, 0x%x" % (t2, t2, MB2))
    A("v_lshrrev_b32 %s, 3, v0" % vS2)
    A("v_bfe_u32 %s, v0, 1, 2" % u1)
    A("v_lshlrev_b32 %s, 4, %s" % (u1, u1))
    A("v_lshl_add_u32 %s, %s, 11, %s" % (vS2, vS2, u1))
    A("v_add_u32 %s, %s, %s" % (vS2, t2, vS2))
    A("v_lshrrev_b32 %s, 1, %s" % (vS25, vN))
    A("v_lshlrev_b32 %s, 5, %s" % (u1, vP))
    A("v_lshl_add_u32 %s, %s, 11, %s" % (vS25, vS25, u1))
    A("v_lshl_add_u32 %s, %s, 4, %s" % (vS25, u0, vS25))
    A("s_add_u32 %s, %s, 0x%x" % (t2, t2, MB25 - MB2))
    A("v_add_u32 %s, %s, %s" % (vS25, t2, vS25))
    A("s_lshl_b32 %s, %s, 11" % (t3, sJ))
    A("s_add_u32 %s, %s, %s" % (t0, t0, t3))
    A("s_add_u32 %s, %s, 0x%x" % (t0, t0, MB2))
    A("v_lshl_add_u32 %s, v0, 4, %s" % (vL2, t0))
    A("s_lshl_b32 %s, %s, 4" % (t3, sW))
    A("s_add_u32 %s, %s, %s" % (t0, t0, t3))
    A("s_add_u32 %s, %s, 0x%x" % (t0, t0, MB25 - MB2))
    A("v_and_b32 %s, 31, v0" % u1)
    A("v_lshl_add_u32 %s, %s, 6, %s" % (vL25, u1, t0))
    A("s_lshr_b32 %s, %s, 3" % (t0, s4JW))
    A("s_lshl_b32 %s, %s, 14" % (t0, t0))
    A("s_and_b32 %s, %s, 7" % (t3, s4JW))
    A("s_lshl_b32 %s, %s, 10" % (t3, t3))
    A("s_add_u32 %s, %s, %s" % (t0, t0, t3))
    A("s_add_u32 %s, %s, 0x%x" % (t0, t0, MB3))
    A("v_lshl_add_u32 %s, %s, 4, %s" % (u0, u0, t0))
    A("v_and_b32 %s, 7, v0" % u1)
    A("v_lshl_add_u32 %s, %s, 7, %s" % (vL3, u1, u0))
    A("s_lshl_b32 %s, %s, 7" % (t3, sH))
    A("v_lshl_add_u32 %s, %s, 13, %s" % (u0, vP, u0))
    A("v_add_u32 %s, %s, %s" % (vS3, t3, u0))
    A("v_lshlrev_b32 %s, 4, %s" % (u1, vP))
    def pretouch2():
        C("pull this workgroup's incoming hand-off lines into L2 (waves 0,1: hop 2; waves 2,3: hop 2.5)")
        A("s_and_b32 %s, %s, 1" % (t0, sW))
        A("s_lshl_b32 %s, %s, 10" % (t0, t0))
        A("s_lshr_b32 %s, %s, 1" % (t3, sW))
        A("s_mul_i32 %s, %s, 0x%x" % (t3, t3, MB25 - MB2))
        A("s_add_u32 %s, %s, %s" % (t0, t0, t3))
        A("v_add_u32 v158, %s, %s" % (t0, vL2))
        A("global_load_dword v159, v158, %s sc1" % sWS); issued[0] += 1
    if o["pretouch"] == "r": pretouch2()
    A("v_mov_b32 %s, 0xffff" % u0)
    A("v_lshlrev_b32 %s, %s, %s" % (u0, u1, u0))
    A("v_and_b32 %s, 2, v0" % u1)
    A("v_cmp_eq_u32 vcc, 0, %s" % u1)
    A("v_lshrrev_b32 %s, 1, %s" % (u1, vN))
    A("v_lshlrev_b32 %s, 2, %s" % (vHA, vG))
    SEL = 160
    A("v_mov_b32 v%d, 0x0c0c0c0c" % (SEL + 2))
    A("v_mov_b32 v%d, 0x01000100" % (SEL + 3))
    A("v_bfi_b32 v%d, %s, v%d, v%d" % (SEL + 3, u0, SEL + 3, SEL + 2))
    A("v_cndmask_b32 v%d, v%d, v%d, vcc" % (SEL, SEL + 2, SEL + 3))
    A("v_cndmask_b32 v%d, v%d, v%d, vcc" % (SEL + 1, SEL + 3, SEL + 2))
    A("v_and_b32 v%d, 0x02020202, %s" % (SEL + 3, u0))
    A("v_cndmask_b32 v%d, 0, v%d, vcc" % (SEL + 2, SEL + 3))
    A("v_cndmask_b32 v%d, v%d, 0, vcc" % (SEL + 3, SEL + 3))
    A("v_add_u32 v%d, v%d, v%d" % (SEL + 2, SEL + 2, SEL))
    A("v_add_u32 v%d, v%d, v%d" % (SEL + 3, SEL + 3, SEL + 1))
    for r in range(4):
        A("v_cmp_eq_u32 s[%d:%d], %d, %s" % (44 + 2 * r, 45 + 2 * r, r, u1))
    A("v_lshrrev_b32 %s, 2, %s" % (vMLW, vN))
    A("v_lshlrev_b32 %s, 4, %s" % (u1, vG))
    A("v_lshl_add_u32 %s, %s, 8, %s" % (vQA, vMLW, u1))
    for r in range(4):
        A("v_cndmask_b32 v%d, 0, %s, s[%d:%d]" % (MK + r, u0, 44 + 2 * r, 45 + 2 * r))
    A("s_lshl_b32 %s, %s, 11" % (t0, sW))
    A("v_lshl_add_u32 %s, %s, 9, %s" % (vOW, vG, vN16))
    A("v_add_u32 %s, %s, %s" % (vOW, t0, vOW))
    A("s_lshl_b32 %s, %s, 3" % (t0, sW))
    A("v_lshl_add_u32 %s, %s, 5, %s" % (vMLW, vMLW, t0))
    A("v_bfe_u32 %s, v0, 1, 1" % u0)
    A("v_lshrrev_b32 %s, 2, v0" % u1)
    A("v_lshlrev_b32 %s, 4, %s" % (u1, u1))
    A("v_lshl_add_u32 %s, %s, 8, %s" % (u1, u0, u1))
    A("v_lshl_add_u32 %s, %s, 3, %s" % (u1, vP, u1))
    A("s_lshl_b32 %s, %s, 9" % (t0, sW))
    A("v_add_u32 %s, %s, %s" % (vOR, t0, u1))
    KA = 140
    A("v_and_b32 %s, 3, v0" % u0)
    A("v_lshrrev_b32 %s, 2, %s" % (u1, vN))
    A("v_lshlrev_b32 %s, 8, %s" % (u1, u1))
    A("v_lshl_add_u32 %s, %s, 10, %s" % (u0, u0, u1))
    A("v_xor_b32 %s, %s, %s" % (u1, vG, vN))
    A("v_lshl_add_u32 %s, %s, 4, %s" % (u0, u1, u0))
    A("s_lshl_b32 %s, %s, 13" % (t1, sW))
    A("v_add_u32 v%d, %s, %s" % (KA, t1, u0))
    for s_ in range(1, 4):
        A("v_xor_b32 v%d, %d, v%d" % (KA + s_, s_ << 6, KA))
    A("s_waitcnt lgkmcnt(0)")
    A("s_add_u32 %s, %s, 0x%x" % (sTAG, sTAG, TAGC))
    def issue_rest(WK_, W_):
        o_wk = o["WK"]; o["WK"] = WK_
        for i in range(nk_first, 8): kload(i)
        o["WK"] = o_wk
        if o["pretouch"] == "k": pretouch2()
        for i in range(8):
            r = VR + i * 4
            load(W_, "global_load_dwordx4 v[%d:%d], %s, %s %s" % (r, r + 3, vV0, sV, nt))
            if i < 7:
                if rot(i) ^ rot(i + 1): A("v_xor_b32 %s, %d, %s" % (vV0, (rot(i) ^ rot(i + 1)) << 10, vV0))
                A("v_add_u32 %s, s42, %s" % (vV0, vV0))
    if o.get("bal"):
        C("a group that started well after others asks memory with a wider window")
        A("s_waitcnt vmcnt(%d)" % issued[0])
        A("v_sub_u32 v158, s90, v159")
        A("v_cmp_ne_u32 vcc, 0, v159")
        A("v_cmp_lt_i32 s[44:45], %d, v158" % o.get("theta", 40))
        A("s_and_b32 s62, vcc_lo, s44")
        A("s_and_b32 s62, s62, 0xff")
        A("s_bcnt1_i32_b32 s62, s62")
        A("s_cmp_ge_u32 s62, %d" % o.get("lateth", 2))
        A("s_cbranch_scc1 L_wide")
        keep = issued[0]
        issue_rest(o["WK"], o["W"])
        A("s_branch L_issued")
        LB("L_wide")
        issued[0] = keep
        issue_rest(o["WK"] + o["bal"], o["W"] + o["bal"])
        LB("L_issued")
    elif o.get("c3"):
        A("s_lshr_b32 %s, %s, 2" % (t0, sJ))
        A("s_cmp_eq_u32 %s, 3" % t0)
        A("s_cbranch_scc1 L_wide")
        keep = issued[0]
        issue_rest(o["WK"], o["W"])
        A("s_branch L_issued")
        LB("L_wide")
        issued[0] = keep
        issue_rest(o["WK"] + o["c3"], o["W"] + o.get("c3v", o["c3"]))
        LB("L_issued")
    else:
        issue_rest(o["WK"], o["W"])
    tail = []
    tail.append("global_load_dword %s, %s, %s" % (vXP, vXF, sX))
    for a in range(2):
        r = DNR + a * 4
        tail.append("global_load_dwordx4 v[%d:%d], %s, %s %s" % (r, r + 3, (vDN0, vDN1)[a], sDN, nt))
    for m in range(4):
        r = WOR + m * 4
        tail.append("global_load_dwordx4 v[%d:%d], %s, %s offset:%d %s" % (r, r + 3, (vWO0, vWO1)[m >> 1], sWO, (0, -4096)[(m & 1) == 0], nt))
    nav = [0]
    def tail_issue(n):
        for _ in range(n):
            if tail:
                A(tail.pop(0)); nav[0] += 1
    A("s_waitcnt vmcnt(8)")
    for t in range(2):
        for s in range(4):
            r = KR + (t * 4 + s) * 4
            A("ds_read_b128 v[%d:%d], v%d offset:%d" % (r, r + 3, KA + s, L_K + t * 4096))
    tail_issue(o["ntail0"])
    stamp(2)
    A("s_waitcnt lgkmcnt(0)")
    A("s_barrier")
    stamp(3)
    for s in range(4):
        A("ds_read_b128 v[%d:%d], %s offset:%d" % (QR + 4 * s, QR + 4 * s + 3, vQA, L_Q + s * 64))
    if "a" in o["tsp"]: tail_issue(1)
    A("s_mov_b32 s46, 0x%x" % SCALE)
    A("s_mov_b32 %s, 0xffff0000" % t1)
    A("s_mov_b32 s48, 0x%x" % LOG2E)
    for s in range(4):
        A("s_waitcnt lgkmcnt(%d)" % (3 - s))
        for t in range(2):
            mfma(SR + 4 * t, KR + (t * 4 + s) * 4, QR + 4 * s, None if s == 0 else SR + 4 * t)
    T = KR
    vH0, vH1, vFL = "v%d" % (T + 28), "v%d" % (T + 29), "v%d" % (T + 30)
    A("v_mov_b32 %s, %d" % (vFL, L_FLAG))
    A("s_lshl_b32 %s, %s, 5" % (t3, sW))
    A("v_mov_b32 v%d, %s" % (T + 31, t3))
    A("ds_read_b32 %s, %s" % (vFL, vFL))
    if "b" in o["tsp"]:
        tail_issue(1); A("s_nop 1")
    else: A("s_nop 2")
    C("scores: bf16(qk) -> * scale -> bf16   (the reference's two roundings)")
    for i in range(8):
        A("v_cvt_pk_bf16_f32 v%d, 0, v%d" % (SR + i, SR + i))
    for i in range(4):
        A("v_pk_mul_f32 %s, %s, s[46:47] op_sel_hi:[1,0]" % (P2(SR + 2 * i), P2(SR + 2 * i)))
    for i in range(8):
        A("v_cvt_pk_bf16_f32 v%d, 0, v%d" % (SR + i, SR + i))
    vm, vt, vl = "v%d" % (T + 4), "v%d" % (T + 6), "v%d" % (T + 5)
    A("v_max3_f32 %s, v%d, v%d, v%d" % (vm, SR, SR + 1, SR + 2))
    A("v_max3_f32 %s, v%d, v%d, v%d" % (vt, SR + 3, SR + 4, SR + 5))
    A("v_max3_f32 %s, %s, v%d, v%d" % (vm, vm, SR + 6, SR + 7))
    A("v_max_f32 %s, %s, %s" % (vm, vm, vt))
    allred(vm, vt, "v_max_f32", 16)
    if "c" in o["tsp"]: tail_issue(1)
    allred(vm, vt, "v_max_f32", 32)
    A("v_mul_f32 %s, s48, %s" % (vm, vm))
    for i in range(4):
        A("v_pk_fma_f32 %s, %s, s[48:49], %s op_sel_hi:[1,0,0] neg_lo:[0,0,1] neg_hi:[0,0,1]" % (P2(SR + 2 * i), P2(SR + 2 * i), P2(T + 4)))
    for i in range(8):
        A("v_exp_f32 v%d, v%d" % (SR + i, SR + i))
    if "d" in o["tsp"]: tail_issue(1)
    for i in range(4):
        A("v_cvt_pk_bf16_f32 v%d, v%d, v%d" % (T + 8 + i, SR + 2 * i, SR + 2 * i + 1))
    for i in range(8):
        for r in range(2):
            A("v_perm_b32 v%d, v%d, v%d, v%d" % (PA + 2 * i + r, T + 8 + (i >> 1), T + 8 + (i >> 1), SEL + 2 * (i & 1) + r))
    stamp(4)
    O0, O1, Y = QR, QR + 4, QR + 8
    def pv(i):
        A("s_waitcnt vmcnt(%d)" % (7 - i + nav[0]))
        if i >= o["tlag"]: tail_issue(1 if i < 7 else 9)
        vr = VR + 4 * i
        mfma16(O0, PA + 2 * i, vr, None if i == 0 else O0)
        mfma16(O1, PA + 2 * i, vr + 2, None if i == 0 else O1)
    A("v_pk_add_f32 %s, %s, %s" % (P2(SR), P2(SR), P2(SR + 2)))
    A("v_pk_add_f32 %s, %s, %s" % (P2(SR + 4), P2(SR + 4), P2(SR + 6)))
    A("v_pk_add_f32 %s, %s, %s" % (P2(SR), P2(SR), P2(SR + 4)))
    A("v_add_f32 %s, v%d, v%d" % (vl, SR, SR + 1))
    allred(vl, vt, "v_add_f32", 16)
    allred(vl, vt, "v_add_f32", 32)
    A("ds_write_b64 %s, v[%d:%d] offset:%d" % (vMLW, T + 4, T + 5, L_ML))
    A("s_waitcnt lgkmcnt(0)")
    A("v_readfirstlane_b32 %s, %s" % (sFAST, vFL))
    HA = T + 16
    ML = T
    OB = T + 8
    G2 = SR
    vM, vLs = "v124", "v125"
    for i in range(o["b2"]): pv(i)
    A("s_barrier")
    A("ds_read_b128 v[%d:%d], v%d offset:%d" % (ML, ML + 3, T + 31, L_ML))
    A("ds_read_b128 v[%d:%d], v%d offset:%d" % (ML + 4, ML + 7, T + 31, L_ML + 16))
    if not o["hlate"]:
        A("ds_read_b32 %s, %s offset:%d" % (vH0, vHA, L_H))
        A("ds_read_b32 %s, %s offset:%d" % (vH1, vHA, L_H + 16))
    A("s_mov_b32 vcc_lo, 0xcccccccc")
    A("s_mov_b32 vcc_hi, 0xcccccccc")
    A("v_mov_b32 v%d, %s" % (G2 + 3, sTAG))
    A("s_waitcnt lgkmcnt(%d)" % (0 if o["hlate"] else 2))
    A("v_max3_f32 %s, v%d, v%d, v%d" % (vM, ML, ML + 2, ML + 4))
    A("v_max_f32 %s, %s, v%d" % (vM, vM, ML + 6))
    for w_ in range(4):
        A("v_sub_f32 v%d, v%d, %s" % (ML + 2 * w_, ML + 2 * w_, vM))
    for w_ in range(4):
        A("v_exp_f32 v%d, v%d" % (ML + 2 * w_, ML + 2 * w_))
    A("s_waitcnt lgkmcnt(0)")
    A("v_mul_f32 %s, v%d, v%d" % (vLs, ML, ML + 1))
    for w_ in range(1, 4):
        A("v_fmac_f32 %s, v%d, v%d" % (vLs, ML + 2 * w_, ML + 2 * w_ + 1))
    def h_operands():
        for a in range(2):
            for r in range(4):
                A("v_and_b32 v%d, %s, v%d" % (HA + 4 * a + r, (vH0, vH1)[a], MK + r))
    if not o["hlate"]: h_operands()
    A("v_cndmask_b32 v%d, %s, %s, vcc" % (G2 + 2, vM, vLs))
    for i in range(o["b2"], 8): pv(i)
    stamp(5)
    if o.get("nosync"):
        A("s_waitcnt vmcnt(0)")
        stamp(6)
        A("s_branch L_done")
    A("s_nop 6")
    A("ds_write_b128 %s, v[%d:%d] offset:%d" % (vOW, O0, O0 + 3, L_O))
    A("ds_write_b128 %s, v[%d:%d] offset:%d" % (vOW, O1, O1 + 3, L_O + 256))
    A("s_waitcnt lgkmcnt(0)")
    A("s_barrier")
    for w_ in range(4):
        A("ds_read_b64 v[%d:%d], %s offset:%d" % (OB + 2 * w_, OB + 2 * w_ + 1, vOR, L_O + w_ * 2048))
    A("s_cmp_eq_u32 %s, 0" % sFAST)
    for w_ in range(4):
        A("s_waitcnt lgkmcnt(%d)" % (3 - w_))
        op = "v_mul_f32" if w_ == 0 else "v_fmac_f32"
        A("%s v%d, v%d, v%d" % (op, G2, ML + 2 * w_, OB + 2 * w_))
        A("%s v%d, v%d, v%d" % (op, G2 + 1, ML + 2 * w_, OB + 2 * w_ + 1))
    tails = []
    def publish(addr, g, name):
        A("s_cbranch_scc1 L_slow_%s" % name)
        A("global_store_dwordx4 %s, v[%d:%d], %s %s" % (addr, g, g + 3, sWS, o.get("stfl", "")))
        LB("L_back_%s" % name)
        tails.append((name, addr, g))
    A("v_cvt_pk_bf16_f32 v%d, v%d, v%d" % (G2, G2, G2 + 1))
    A("s_mov_b32 s44, 0x55555555")
    A("s_mov_b32 s45, 0x55555555")
    A("v_mov_b32_dpp v%d, v%d quad_perm:[1,1,3,3] %s" % (G2 + 1, G2, DPP))
    A("s_mov_b64 exec, s[44:45]")
    publish(vS2, G2, "h2")
    A("s_mov_b64 exec, -1")
    stamp(6)
    P = T
    for i in range(2):
        A("global_load_dwordx4 v[%d:%d], %s, %s offset:%d sc1" % (P + 4 * i, P + 4 * i + 3, vL2, sWS, i * 1024))
    if o["hlate"]:
        A("s_barrier")
        A("ds_read_b32 %s, %s offset:%d" % (vH0, vHA, L_H))
        A("ds_read_b32 %s, %s offset:%d" % (vH1, vHA, L_H + 16))
    A("s_mov_b32 %s, %d" % (sCNT, o["spinmax"]))
    vTAG = "v127"
    A("v_mov_b32 %s, %s" % (vTAG, sTAG))
    for k in range(4):
        A("s_mov_b32 s%d, 0x%x" % (56 + k, 0x07060500 | k))
        A("s_bfe_u32 s%d, %s, 0x%x" % (60 + k if k < 2 else 50 + k, sTAG, 0x80000 | (8 * k)))
    TB = ["s60", "s61", "s52", "s53"]
    if o["hlate"]:
        A("s_waitcnt lgkmcnt(0)")
        h_operands()
    A("s_waitcnt vmcnt(3)")
    for a in range(2):
        mfma(Y, HA + 4 * a, DNR + 4 * a, None if a == 0 else Y)
    A("s_branch L_chk2")
    LB("L_poll2")
    MS = ["s[44:45]", "s[46:47]"]
    for i in range(2):
        A("s_mov_b64 exec, %s" % MS[i])
        A("global_load_dwordx4 v[%d:%d], %s, %s offset:%d sc1" % (P + 4 * i, P + 4 * i + 3, vL2, sWS, i * 1024))
    A("s_mov_b64 exec, -1")
    A("s_sub_u32 %s, %s, 1" % (sCNT, sCNT))
    A("s_cbranch_scc1 L_end")
    LB("L_chk2")
    A("s_waitcnt vmcnt(0)")
    A("v_max_f32 %s, v%d, v%d" % (vM, P + 2, P + 6))
    for i in range(2):
        A("v_cmp_ne_u32 %s, %s, v%d" % (MS[i], sTAG, P + 4 * i + 3))
    A("v_mov_b32_dpp %s, %s quad_perm:[0,0,2,2] %s" % (vM, vM, DPP))
    A("s_or_b64 vcc, %s, %s" % (MS[0], MS[1]))
    A("s_cbranch_scc1 L_poll2")
    stamp(7)
    U = T + 8
    def unp(i, k):
        if k & 1: A("v_and_b32 v%d, %s, v%d" % (U + 4 * i + k, t1, P + 4 * i + (k >> 1)))
        else: A("v_lshlrev_b32 v%d, 16, v%d" % (U + 4 * i + k, P + 4 * i + (k >> 1)))
    vt2 = "v126"
    A("v_max_f32_dpp %s, %s, %s row_ror:4 %s" % (vM, vM, vM, DPP))
    unp(0, 0); unp(0, 1)
    A("v_max_f32_dpp %s, %s, %s row_ror:8 %s" % (vM, vM, vM, DPP))
    A("v_mov_b32 %s, %s" % (vt2, vM))
    unp(0, 2); unp(0, 3)
    A("v_permlane16_swap_b32 %s, %s" % (vt2, vM))
    A("v_max_f32 %s, %s, %s" % (vM, vM, vt2))
    A("v_mov_b32 %s, %s" % (vt2, vM))
    unp(1, 0); unp(1, 1)
    A("v_permlane32_swap_b32 %s, %s" % (vt2, vM))
    A("v_max_f32 %s, %s, %s" % (vM, vM, vt2))
    w0, w1 = "v120", "v121"
    A("v_sub_f32_dpp %s, v%d, %s quad_perm:[0,0,2,2] %s" % (w0, P + 2, vM, DPP))
    A("v_sub_f32_dpp %s, v%d, %s quad_perm:[0,0,2,2] %s" % (w1, P + 6, vM, DPP))
    A("v_exp_f32 %s, %s" % (w0, w0))
    A("v_exp_f32 %s, %s" % (w1, w1))
    unp(1, 2); unp(1, 3)
    den, tA, tB = "v126", "v122", "v123"
    A("v_mul_f32_dpp %s, v%d, %s quad_perm:[1,1,3,3] %s" % (den, P + 2, w0, DPP))
    A("v_fmac_f32_dpp %s, v%d, %s quad_perm:[1,1,3,3] %s" % (den, P + 6, w1, DPP))
    for k in range(4):
        A("v_mul_f32 v%d, %s, v%d" % (U + k, w0, U + k))
        if k == 1: A("v_add_f32_dpp %s, %s, %s row_ror:4 %s" % (den, den, den, DPP))
    A("v_add_f32_dpp %s, %s, %s row_ror:8 %s" % (den, den, den, DPP))
    for k in (0, 2, 1, 3):
        A("v_fmac_f32 v%d, %s, v%d" % (U + k, w1, U + 4 + k))
    A("v_mov_b32 %s, %s" % (tA, den))
    A("v_permlane32_swap_b32 v%d, v%d" % (U, U + 2))
    A("v_permlane32_swap_b32 v%d, v%d" % (U + 1, U + 3))
    A("v_permlane32_swap_b32 %s, %s" % (tA, den))
    A("v_add_f32 v%d, v%d, v%d" % (U, U, U + 2))
    A("v_add_f32 v%d, v%d, v%d" % (U + 1, U + 1, U + 3))
    A("v_add_f32 %s, %s, %s" % (den, den, tA))
    A("s_cmp_eq_u32 %s, 0" % sFAST)
    A("v_permlane16_swap_b32 v%d, v%d" % (U, U + 1))
    A("v_mov_b32 %s, %s" % (tA, den))
    A("v_add_f32 v%d, v%d, v%d" % (U, U, U + 1))
    A("s_nop 0")
    A("v_permlane16_swap_b32 %s, %s" % (tA, den))
    A("v_add_f32_dpp v%d, v%d, v%d row_ror:4 %s" % (U, U, U, DPP))
    A("v_add_f32 %s, %s, %s" % (den, den, tA))
    A("v_rcp_f32 %s, %s" % (den, den))
    A("v_add_f32_dpp v%d, v%d, v%d row_ror:8 %s" % (U, U, U, DPP))
    a0 = "v124"
    A("v_mul_f32 %s, v%d, %s" % (a0, U, den))
    A("v_cvt_pk_bf16_f32 %s, %s, %s" % (a0, a0, a0))
    A("s_mov_b32 %s, %d" % (sCNT, o["spinmax"]))
    A("s_nop 0")
    WA = T
    for m in range(4):
        for r in range(4):
            A("v_and_b32_dpp v%d, %s, v%d row_newbcast:%d %s" % (WA + 4 * m + r, a0, MK + r, m, DPP))
        if m > 0:
            mfma(Y, WA + 4 * (m - 1), WOR + 4 * (m - 1), Y)
    A("s_nop 1")
    mfma(Y, WA + 12, WOR + 12, Y)
    A("s_mov_b32 exec_hi, 0")
    A("s_nop 6")
    for k in range(4):
        A("v_perm_b32 v%d, v%d, %s, s%d" % (Y + k, Y + k, vTAG, 56 + k))
    publish(vS25, Y, "h25")
    stamp(8)
    LB("L_poll25")
    A("global_load_dwordx4 v[%d:%d], %s, %s sc1" % (P, P + 3, vL25, sWS))
    A("s_sub_u32 %s, %s, 1" % (sCNT, sCNT))
    A("s_cbranch_scc1 L_end")
    A("s_waitcnt vmcnt(0)")
    for k in range(4):
        A("v_xor_b32 v%d, %s, v%d" % (P + k, TB[k], P + k))
    A("v_or3_b32 %s, v%d, v%d, v%d" % (tA, P, P + 1, P + 2))
    A("v_or_b32 %s, %s, v%d" % (tA, tA, P + 3))
    A("v_and_b32 %s, 0xff, %s" % (tA, tA))
    A("v_cmp_ne_u32 vcc, 0, %s" % tA)
    A("s_and_b64 exec, exec, vcc")
    A("s_cbranch_scc1 L_poll25")
    A("s_mov_b64 exec, -1")
    stamp(9)
    x_, y_ = "v%d" % P, "v%d" % (P + 1)
    A("v_permlane16_swap_b32 v%d, v%d" % (P, P + 2))
    A("v_permlane16_swap_b32 v%d, v%d" % (P + 1, P + 3))
    A("v_add_f32 %s, %s, v%d" % (x_, x_, P + 2))
    A("v_add_f32 %s, %s, v%d" % (y_, y_, P + 3))
    fl = ["v_mov_b32 v%d, %s" % (P + 3, sTAG), "s_and_b32 %s, %s, 7" % (t0, sJ), "s_cmp_eq_u32 %s, %s" % (t0, sH), "s_nop 0"]
    for rot_ in (1, 2, 4, 8):
        A(fl.pop(0))
        A("v_add_f32_dpp %s, %s, %s row_ror:%d %s" % (x_, x_, x_, rot_, DPP))
        A("v_add_f32_dpp %s, %s, %s row_ror:%d %s" % (y_, y_, y_, rot_, DPP))
    A("s_cbranch_scc1 L_final")
    A("s_mov_b64 exec, 0x%x" % (0x30003 if o["rep3"] else 0x10001))
    A("global_store_dwordx4 %s, v[%d:%d], %s sc1" % (vS3, P, P + 3, sWS))
    if o.get("wb"):
        A("s_or_b32 %s, %s, %s" % (t0, sW, sJ) if o["wb"] == 1 else "s_and_b32 %s, %s, 3" % (t0, sW))
        A("s_cmp_lg_u32 %s, %d" % (t0, 8 if o["wb"] == 1 else 0))
        A("s_cbranch_scc1 L_done")
        A("buffer_wbl2 sc1")
    A("s_branch L_done")
    LB("L_final")
    A("s_lshl_b32 %s, 0x10001, %s" % (t0, sH))
    A("s_andn2_b32 exec_lo, 0xff00ff, %s" % t0)
    A("s_mov_b32 exec_hi, 0")
    A("s_mov_b32 %s, %d" % (sCNT, o["spinmax"]))
    Q = P + 4
    if o["rep3"]: A("v_add_u32 %s, 0x2000, %s" % (vS3, vL3))
    LB("L_poll3")
    A("global_load_dwordx4 v[%d:%d], %s, %s sc1" % (P, P + 3, vL3, sWS))
    if o["rep3"]: A("global_load_dwordx4 v[%d:%d], %s, %s sc1" % (Q, Q + 3, vS3, sWS))
    A("s_sub_u32 %s, %s, 1" % (sCNT, sCNT))
    A("s_cbranch_scc1 L_end")
    if o["rep3"]:
        A("s_waitcnt vmcnt(1)")
        A("v_cmp_ne_u32 s[44:45], %s, v%d" % (sTAG, P + 3))
        A("s_and_b64 exec, exec, s[44:45]")
        A("s_cbranch_scc0 L_got3")
        A("s_waitcnt vmcnt(0)")
        A("v_cmp_ne_u32 vcc, %s, v%d" % (sTAG, Q + 3))
        A("v_mov_b32 v%d, v%d" % (P, Q))
        A("v_mov_b32 v%d, v%d" % (P + 1, Q + 1))
        A("s_and_b64 exec, exec, vcc")
        A("s_cbranch_scc1 L_poll3")
        LB("L_got3")
    else:
        A("s_waitcnt vmcnt(0)")
        A("v_cmp_ne_u32 vcc, %s, v%d" % (sTAG, P + 3))
        A("s_and_b64 exec, exec, vcc")
        A("s_cbranch_scc1 L_poll3")
    stamp(10)
    A("s_mov_b32 exec_lo, -1")
    A("v_lshlrev_b32 %s, 16, %s" % (tA, vXP))
    A("v_and_b32 %s, %s, %s" % (tB, t1, vXP))
    for pat in ("quad_perm:[1,0,3,2]", "quad_perm:[2,3,0,1]", "row_half_mirror"):
        A("v_add_f32_dpp %s, %s, %s %s %s" % (x_, x_, x_, pat, DPP))
        A("v_add_f32_dpp %s, %s, %s %s %s" % (y_, y_, y_, pat, DPP))
        if pat != "row_half_mirror": A("s_nop 0")
    A("v_add_f32 %s, %s, %s" % (x_, x_, tA))
    A("v_add_f32 %s, %s, %s" % (y_, y_, tB))
    A("v_cvt_pk_bf16_f32 %s, %s, %s" % (x_, x_, y_))
    A("s_mov_b64 exec, 0x10001")
    A("global_store_dword %s, %s, %s" % (vXF, x_, sOUT))
    A("s_or_b32 %s, s2, %s" % (t0, sW))
    A("s_cbranch_scc1 L_done")
    C("the next launch must not mistake this launch's hand-off words for its own")
    A("v_mov_b32 %s, 0" % tA)
    A("v_mov_b32 %s, %s" % (tB, sTAG))
    A("global_store_dword %s, %s, %s sc1" % (tA, tB, sWS))
    LB("L_done")
    if o.get("pad"):
        LB("L_padspin")
        A("s_memrealtime s[92:93]")
        A("s_waitcnt lgkmcnt(0)")
        A("s_sub_u32 s92, s92, s90")
        A("s_cmp_lt_u32 s92, %d" % o["pad"])
        A("s_cbranch_scc1 L_padspin")
    dump_stamps()
    A("s_endpgm")
    for name, addr, g in tails:
        LB("L_slow_%s" % name)
        A("global_store_dwordx4 %s, v[%d:%d], %s sc1" % (addr, g, g + 3, sWS))
        A("s_branch L_back_%s" % name)
    LB("L_end")
    A("s_endpgm")
    return HEADER.format(lds=o.get("lds", LDS_BYTES), k=KNAME) + "\n".join(L) + FOOTER.format(k=KNAME, vg=o.get("vg", 168), sg=96)


if __name__ == "__main__":
    kw = {}
    out = "parallel_sum__sliding_block_cached__swiglu_ffn__decode.s"
    for a in sys.argv[1:]:
        k, v = a.split("=", 1)
        if k == "out": out = v; continue
        try: v = int(v)
        except ValueError: pass
        kw[k] = v
    open(out, "w").write(gen(**kw))
```

```python
import sys

KNAME = "parallel_sum__sliding_block_cached__swiglu_ffn__decode_kernel"

HEADER = """; Kernarg layout for this problem (96 bytes, ptrs only, base s[0:1]):
;   offset  72: d_out     shape=(1, 1, 512) dtype=bfloat16
; @launch grid=(256,1,1) block=(320,1,1) lds={lds}
.amdgcn_target "amdgcn-amd-amdhsa--gfx950"
.text
.globl {k}
.p2align 8
.type {k},@function
{k}:
"""
FOOTER = """
.section .rodata,"a"
.p2align 6
.amdhsa_kernel {k}
  .amdhsa_next_free_vgpr {vg}
  .amdhsa_next_free_sgpr {sg}
  .amdhsa_accum_offset {vg}
  .amdhsa_group_segment_fixed_size 0
  .amdhsa_kernarg_size 96
  .amdhsa_user_sgpr_count 2
  .amdhsa_user_sgpr_kernarg_segment_ptr 1
  .amdhsa_system_sgpr_workgroup_id_x 1
.end_amdhsa_kernel
"""

MB1A = 0x40000
MB1B = 0x80000
MB2 = 0x100000
MB25 = 0x180000
MB3 = 0x200000
STAMPS = 0x10000000
L_WQ = 0
L_FF = 16384
L_XN = 32768
L_Q = 33792
L_H = 34816
L_FLAG = 34848
L_ML = 34880
L_O = 35072
L_K = L_O + 8192
L_K = (L_K + 1023) // 1024 * 1024
LDS_BYTES = L_K + 32768
TAGC = 0x9E3779B9
LOG2E = 0x3FB8AA3B
SCALE = 0x3DB504F3
EPS = 0x3727C5AC
DPP = "row_mask:0xf bank_mask:0xf"

DEF = dict(stamps=False, spinmax=200000, WK=5, W=6, Wtail=8, b0pos=45, nt="nt", pretouch="k", atries=24,
           prefetch=True, b2=7, ntail0=0, tlag=0, mask2=True, pt1=True, rotm=4, rep3=False, tsp="", auxearly=True, hlate=False)


def gen(**kw):
    o = dict(DEF); o.update(kw)
    L = []
    def A(s): L.append("    " + s)
    def LB(s): L.append(s + ":")
    def C(s): L.append("    ; " + s)
    nt = o["nt"]
    NSTAMP = 12
    role = ["U"]
    def stamp(i):
        if o.get("amp") == "%s%d" % (role[0], i): A("s_memrealtime s[88:89]")
        if o["stamps"] and (i in (0, 11) or o.get("sel") is None or ("%s%d" % (role[0], i)) in o["sel"].split(",")):
            A("s_memrealtime s[%d:%d]" % (64 + 2 * i, 65 + 2 * i))
    def mfma(d, a, b, c):
        A("v_mfma_f32_16x16x32_bf16 v[%d:%d], v[%d:%d], v[%d:%d], %s" % (d, d + 3, a, a + 3, b, b + 3, "0" if c is None else "v[%d:%d]" % (c, c + 3)))
    def mfma16(d, a, b, c):
        A("v_mfma_f32_16x16x16_bf16 v[%d:%d], v[%d:%d], v[%d:%d], %s" % (d, d + 3, a, a + 1, b, b + 1, "0" if c is None else "v[%d:%d]" % (c, c + 3)))
    def allred(v, tmp, op, which):
        A("v_mov_b32 %s, %s" % (tmp, v))
        A("s_nop 1")
        A("v_permlane%d_swap_b32 %s, %s" % (which, tmp, v))
        A("%s %s, %s, %s" % (op, v, v, tmp))
    sX, sK, sV, sWQ, sWO, sG, sU, sDN, sOUT, sWS = "s[4:5]", "s[6:7]", "s[8:9]", "s[10:11]", "s[12:13]", "s[16:17]", "s[18:19]", "s[20:21]", "s[22:23]", "s[26:27]"
    sW, sH, sJ, sTAG, sXCC, sCNT, sFAST = "s30", "s31", "s32", "s33", "s34", "s35", "s36"
    t0, t1, t2, t3 = "s37", "s38", "s39", "s40"
    def dump_stamps():
        if not o["stamps"]: return
        A("s_mov_b64 exec, 1")
        stamp(11)
        A("s_waitcnt lgkmcnt(0)")
        A("s_mul_i32 %s, s2, 5" % t0)
        A("s_add_u32 %s, %s, %s" % (t0, t0, sW))
        A("s_lshl_b32 %s, %s, 7" % (t0, t0))
        A("s_add_u32 %s, %s, 0x%x" % (t0, t0, STAMPS))
        A("v_mov_b32 v2, %s" % t0)
        for i in range(NSTAMP):
            A("v_mov_b32 v3, s%d" % (64 + 2 * i))
            A("global_store_dword v2, v3, %s offset:%d" % (sWS, 4 * i))
        A("v_mov_b32 v3, %s" % (sCNT if role[0] == "U" or not o.get("bal") else "s62"))
        A("global_store_dword v2, v3, %s offset:%d" % (sWS, 4 * NSTAMP))
        if o.get("dbgfail"):
            for q_, r_ in enumerate(("s84", "s62", "s63")):
                A("v_mov_b32 v3, %s" % r_)
                A("global_store_dword v2, v3, %s offset:%d" % (sWS, 4 * NSTAMP + 8 + 4 * q_))
        A("s_getreg_b32 %s, hwreg(HW_REG_HW_ID)" % t1)
        A("v_mov_b32 v3, %s" % t1)
        A("global_store_dword v2, v3, %s offset:%d" % (sWS, 4 * NSTAMP + 4))

    stamp(0)
    if o.get("pad") or o.get("bal") or o.get("amp"): A("s_memrealtime s[90:91]")
    A("s_cmp_ge_u32 s2, 256")
    A("s_cbranch_scc1 L_end")
    A("s_load_dwordx16 s[4:19], s[0:1], 0")
    A("s_load_dwordx8 s[20:27], s[0:1], 64")
    A("v_lshrrev_b32 v1, 6, v0")
    A("v_and_b32 v0, 63, v0")
    A("v_readfirstlane_b32 %s, v1" % sW)
    A("s_and_b32 %s, s2, 7" % sH)
    A("s_lshr_b32 %s, s2, 3" % sJ)
    if o.get("bal"):
        A("s_or_b32 %s, %s, %s" % (t0, sJ, sW))
        A("s_cbranch_scc1 L_noflag")
        A("s_lshl_b32 %s, %s, 2" % (t0, sH))
        A("v_mov_b32 v108, %s" % t0)
        A("s_waitcnt lgkmcnt(0)")
        A("s_or_b32 %s, s90, 1" % t0)
        A("v_mov_b32 v109, %s" % t0)
        A("global_store_dword v108, v109, s[24:25] sc1")
        LB("L_noflag")
    A("s_cmp_eq_u32 %s, 4" % sW)
    A("s_cbranch_scc0 L_attn")

    C("wave 4: layernorm, one [128 x 64] tile of wq and one of gate/up, exchange of q and of the FFN hidden values")
    A("s_setprio 3")
    if o["prefetch"]:
        A("s_getpc_b64 s[28:29]")
        LB("L_pc")
        A("v_lshlrev_b32 v2, 7, v0")
        A("v_min_u32 v2, L_end-L_pc, v2")
        A("global_load_dword v127, v2, s[28:29]")
    sQK, sNOFF = "s50", "s51"
    A("v_lshlrev_b32 v3, 4, v0")
    A("v_lshrrev_b32 v6, 3, v0")
    A("v_and_b32 v5, 2, v6")
    A("v_and_b32 v7, 7, v0")
    A("v_xor_b32 v5, v5, v7")
    A("v_lshlrev_b32 v7, 4, v5")
    A("s_and_b32 %s, %s, 3" % (sQK, sJ))
    A("s_lshl_b32 %s, %s, 10" % (t0, sH))
    A("s_lshr_b32 %s, %s, 2" % (t1, sJ))
    A("s_lshl_b32 %s, %s, 7" % (t1, t1))
    A("s_lshl_b32 %s, %s, 20" % (t2, sQK))
    A("s_add_u32 %s, %s, %s" % (t0, t0, t1))
    A("s_add_u32 %s, %s, %s" % (t0, t0, t2))
    A("v_lshl_add_u32 v4, v6, 13, v7")
    A("v_add_u32 v4, %s, v4" % t0)
    A("v_xor_b32 v5, 64, v4")
    A("v_add_u32 v5, 0x10000, v5")
    if o["pt1"]:
        C("pull this workgroup's own hand-off lines into L2 before anyone polls them")
        A("s_lshl_b32 %s, %s, 15" % (t0, sH))
        A("s_lshl_b32 %s, %s, 8" % (t1, sJ))
        A("s_add_u32 %s, %s, %s" % (t0, t0, t1))
        A("s_add_u32 %s, %s, 0x%x" % (t0, t0, MB1A))
        A("v_and_b32 v33, 1, v0")
        A("v_bfe_u32 v32, v0, 1, 1")
        A("v_lshlrev_b32 v33, 7, v33")
        A("v_lshl_add_u32 v33, v32, 13, v33")
        A("s_mul_i32 %s, %s, 240" % (t1, sJ))
        A("s_sub_u32 %s, 0x4000, %s" % (t1, t1))
        A("v_cmp_lt_u32 vcc, 3, v0")
        A("v_mov_b32 v32, %s" % t1)
        A("s_nop 0")
        A("v_cndmask_b32 v33, v33, v32, vcc")
        A("v_add_u32 v33, %s, v33" % t0)
    A("s_mov_b32 m0, %d" % L_WQ)
    A("s_mov_b32 %s, 0x20000" % t1)
    if o.get("ucontig"):
        A("s_lshl_b32 %s, s2, 10" % t0)
        A("v_add_u32 v4, %s, v3" % t0)
        A("v_add_u32 v5, 0x40000, v4")
        A("s_mov_b32 %s, 0x80000" % t1)
    A("s_movk_i32 s41, 1024")
    A("s_waitcnt lgkmcnt(0)")
    A("global_load_dwordx4 v[8:11], v3, %s" % sX)
    A("s_load_dword %s, %s, 0" % (sTAG, sWS))
    if o["pt1"]:
        A("global_load_dword v119, v33, %s sc1" % sWS)
    def dma_loop(name, base, step):
        A("s_mov_b32 %s, 4" % t2)
        LB(name)
        for i in range(4):
            vv = ("v4", "v5")[i & 1]
            A("global_load_lds_dwordx4 %s, %s %s" % (vv, base, nt))
            A("s_add_u32 m0, m0, s41")
            A("v_add_u32 %s, %s, %s" % (vv, step, vv))
        A("s_sub_u32 %s, %s, 1" % (t2, t2))
        A("s_cmp_lg_u32 %s, 0" % t2)
        A("s_cbranch_scc1 %s" % name)
    dma_loop("L_wq_loop", sWQ, t1)
    if o["b0pos"] == 16: A("s_barrier")
    A("s_mul_i32 %s, %s, 7" % (t0, sH))
    A("s_add_u32 %s, %s, 1" % (t0, t0))
    A("s_lshr_b32 %s, %s, 1" % (t0, t0))
    A("s_lshr_b32 %s, %s, 3" % (t1, sJ))
    A("s_add_u32 %s, %s, %s" % (t0, t0, t1))
    A("s_mul_i32 %s, %s, 3584" % (t1, sQK))
    A("s_add_u32 %s, %s, %s" % (t0, t0, t1))
    A("s_lshl_b32 %s, %s, 7" % (t0, t0))
    A("v_mul_u32_u24 v4, 3584, v6")
    A("v_add3_u32 v4, v4, v7, %s" % t0)
    A("v_xor_b32 v5, 64, v4")
    A("v_add_u32 v5, %d, v5" % (8 * 3584))
    A("s_mov_b32 %s, %d" % (t1, 16 * 3584))
    if o.get("ucontig"):
        A("s_lshr_b32 %s, s2, 1" % t0)
        A("s_min_u32 %s, %s, 111" % (t0, t0))
        A("s_lshl_b32 %s, %s, 10" % (t0, t0))
        A("v_add_u32 v4, %s, v3" % t0)
        A("v_add_u32 v5, %d, v4" % (112 * 1024))
        A("s_mov_b32 %s, %d" % (t1, 224 * 1024))
    A("s_bitcmp0_b32 %s, %d" % (("s2", 0) if o.get("ucontig") else (sJ, 2)))
    A("s_cselect_b64 s[42:43], %s, %s" % (sG, sU))
    A("s_and_b32 %s, %s, 1" % (t3, sH))
    A("s_lshl_b32 %s, %s, 3" % (t0, t3))
    A("s_add_u32 %s, %s, %s" % (sNOFF, t0, sJ))
    A("s_cmp_ge_u32 %s, 32" % sNOFF)
    A("s_cselect_b64 exec, 1, -1")
    dma_loop("L_ff_loop", "s[42:43]", t1)
    A("s_mov_b64 exec, -1")
    def tlbwarm():
        C("first touch of the pages the later loads use (address translation early, off their queue)")
        A("s_lshl_b32 %s, %s, 24" % (t0, sH))
        A("s_add_u32 %s, %s, 0xF00000" % (t0, t0))
        A("v_mov_b32 v112, %s" % t0)
        A("s_lshl_b32 %s, %s, 19" % (t0, sH))
        A("v_mov_b32 v113, %s" % t0)
        A("s_mul_i32 %s, %s, 0x38000" % (t0, sH))
        A("v_mov_b32 v114, %s" % t0)
        A("v_mov_b32 v115, 0x%x" % MB3)
        A("s_mov_b64 exec, 1")
        A("global_load_dword v116, v112, %s" % sK)
        A("global_load_dword v117, v112, %s" % sV)
        A("global_load_dword v118, v113, %s" % sWO)
        A("global_load_dword v111, v114, %s" % sDN)
        A("global_load_dword v110, v115, %s" % sWS)
        A("s_mov_b64 exec, -1")
    NW = 0
    if o.get("tlbw") == 2:
        tlbwarm(); NW = 5
    if o["b0pos"] == 32:
        if o.get("b0wait") is not None: A("s_waitcnt vmcnt(%d)" % o["b0wait"])
        A("s_barrier")
    stamp(1)
    XF = 12
    A("s_mov_b32 %s, 0xffff0000" % t1)
    A("s_waitcnt vmcnt(%d)" % ((33 if o["pt1"] else 32) + NW))
    stamp(2)
    C("layernorm with the reference's bf16 roundings")
    for i in range(4):
        A("v_lshlrev_b32 v%d, 16, v%d" % (XF + 2 * i, 8 + i))
        A("v_and_b32 v%d, %s, v%d" % (XF + 2 * i + 1, t1, 8 + i))
    fill = []
    def F(s): fill.append(s)
    def nop2():
        n = 0
        while fill and n < 2:
            A(fill.pop(0)); n += 1
        if n < 2: A("s_nop %d" % (1 - n))
    TRB = 120
    vAX, vS1, vL1, vL1x, vL1a, vF, vTN, vTB = "v34", "v35", "v36", "v37", "v38", "v39", "v124", "v125"
    sRP, sB1 = "s52", "s53"
    F("v_lshrrev_b32 v126, 4, v0")
    F("v_bfe_u32 v4, v0, 2, 2")
    F("v_lshl_add_u32 v5, v126, 3, v4")
    F("v_and_b32 v6, 3, v0")
    F("v_lshlrev_b32 v7, 3, v6")
    F("v_lshl_add_u32 v5, v5, 7, v7")
    F("v_bfe_u32 v4, v0, 3, 2")
    for ct in range(4):
        F("v_xor_b32 v7, %d, v4" % ct)
        F("v_lshl_add_u32 v%d, v7, 5, v5" % (TRB + ct))
    F("s_lshl_b32 %s, %s, 8" % (t0, sQK))
    F("v_lshl_add_u32 %s, v126, 4, %s" % (vAX, t0))
    F("s_lshl_b32 %s, %s, 15" % (sB1, sH))
    F("s_add_u32 %s, %s, 0x%x" % (sB1, sB1, MB1A))
    def wavesum(v, tmp):
        for rot in (1, 2, 4, 8):
            nop2()
            A("v_add_f32_dpp %s, %s, %s row_ror:%d %s" % (v, v, v, rot, DPP))
        for which in (16, 32):
            A("v_mov_b32 %s, %s" % (tmp, v))
            nop2()
            A("v_permlane%d_swap_b32 %s, %s" % (which, tmp, v))
            A("v_add_f32 %s, %s, %s" % (v, v, tmp))
    def P2(r): return "v[%d:%d]" % (r, r + 1)
    A("v_pk_add_f32 v[22:23], %s, %s" % (P2(XF), P2(XF + 2)))
    A("v_pk_add_f32 v[24:25], %s, %s" % (P2(XF + 4), P2(XF + 6)))
    A("v_pk_add_f32 v[22:23], v[22:23], v[24:25]")
    A("v_add_f32 v22, v22, v23")
    wavesum("v22", "v23")
    A("v_mul_f32 v22, 0x3b000000, v22")
    DV = 24
    for i in range(4):
        A("v_pk_add_f32 %s, %s, v[22:23] op_sel_hi:[1,0] neg_lo:[0,1] neg_hi:[0,1]" % (P2(DV + 2 * i), P2(XF + 2 * i)))
    A("v_cvt_pk_bf16_f32 v22, 0, v22")
    A("v_pk_mul_f32 v[32:33], %s, %s" % (P2(DV), P2(DV)))
    for i in range(1, 4):
        A("v_pk_fma_f32 v[32:33], %s, %s, v[32:33]" % (P2(DV + 2 * i), P2(DV + 2 * i)))
    A("v_add_f32 v32, v32, v33")
    pre = ["v_pk_add_f32 %s, %s, v[22:23] op_sel_hi:[1,0] neg_lo:[0,1] neg_hi:[0,1]" % (P2(XF + 2 * i), P2(XF + 2 * i)) for i in range(4)]
    pre += ["v_cvt_pk_bf16_f32 v%d, 0, v%d" % (XF + i, XF + i) for i in range(8)]
    rest = fill[:]; fill[:] = pre
    wavesum("v32", "v33")
    fill[:] = fill + rest
    A("v_mul_f32 v32, 0x3b000000, v32")
    A("v_cvt_pk_bf16_f32 v32, 0, v32")
    A("v_add_f32 v32, 0x%x, v32" % EPS)
    A("v_cvt_pk_bf16_f32 v32, 0, v32")
    A("v_sqrt_f32 v32, v32")
    A(fill.pop(0))
    A("v_cvt_pk_bf16_f32 v32, 0, v32")
    A("v_rcp_f32 v32, v32")
    A(fill.pop(0))
    for i in range(4):
        A("v_pk_mul_f32 %s, %s, v[32:33] op_sel_hi:[1,0]" % (P2(XF + 2 * i), P2(XF + 2 * i)))
    for i in range(4):
        A("v_cvt_pk_bf16_f32 v%d, v%d, v%d" % (8 + i, XF + 2 * i, XF + 2 * i + 1))
    A("ds_write_b128 v3, v[8:11] offset:%d" % L_XN)
    while fill: A(fill.pop(0))
    A("s_lshl_b32 %s, %s, 8" % (t2, sJ))
    A("s_add_u32 %s, %s, %s" % (t2, t2, sB1))
    A("v_lshrrev_b32 v4, 2, v0")
    A("v_lshl_add_u32 %s, v4, 4, %s" % (vS1, t2))
    A("s_waitcnt lgkmcnt(0)")
    AF = 40
    for m in range(4):
        A("ds_read_b128 v[%d:%d], %s offset:%d" % (AF + 4 * m, AF + 4 * m + 3, vAX, L_XN + m * 64))
    A("s_add_u32 %s, %s, 0x%x" % (sTAG, sTAG, TAGC))
    A("v_lshlrev_b32 v4, 2, v6")
    A("v_lshrrev_b32 %s, v4, %s" % (vTN, sTAG))
    A("v_and_b32 %s, 15, %s" % (vTN, vTN))
    A("v_lshlrev_b32 v4, 3, v6")
    A("v_lshrrev_b32 %s, v4, %s" % (vTB, sTAG))
    A("v_and_b32 %s, 0xff, %s" % (vTB, vTB))
    A("s_mov_b32 s44, 0")
    A("s_mov_b32 s45, -1")
    if o["b0pos"] == 40: A("s_barrier")
    stamp(3)
    BF = 56
    D0 = 88
    GR = 24
    def gemv(lbase, vm0):
        def rd(m, ct):
            b = BF + 16 * (m & 1)
            for hh in range(2):
                A("ds_read_b64_tr_b16 v[%d:%d], v%d offset:%d" % (b + 4 * ct + 2 * hh, b + 4 * ct + 2 * hh + 1, TRB + ct, lbase + m * 4096 + hh * 512))
        A("s_waitcnt vmcnt(%d)" % (vm0 + 12))
        for ct in range(4): rd(0, ct)
        for m in range(4):
            b = BF + 16 * (m & 1)
            if m < 3: A("s_waitcnt vmcnt(%d)" % (vm0 + 8 - 4 * m))
            for ct in range(4):
                A("s_waitcnt lgkmcnt(%d)" % (6 if m < 3 else 6 - 2 * ct))
                mfma(D0 + 4 * ct, AF + 4 * m, b + 4 * ct, None if m == 0 else D0 + 4 * ct)
                if m < 3: rd(m + 1, ct)
    def pack(maskc, vt):
        A("s_mov_b32 vcc_lo, 0xffff0000")
        A("s_mov_b32 vcc_hi, 0xffff0000")
        A("s_movk_i32 %s, 0x%x" % (t0, maskc))
        A("s_nop 2")
        A("v_cndmask_b32 v%d, v%d, v%d, vcc" % (GR, D0, D0 + 4))
        A("s_nop 0")
        A("v_cndmask_b32 v%d, v%d, v%d, vcc" % (GR + 1, D0 + 8, D0 + 12))
        A("v_cndmask_b32 v%d, v%d, v%d, s[44:45]" % (GR, GR, GR + 1))
        A("v_and_or_b32 v%d, v%d, %s, %s" % (GR, GR, t0, vt))
        A("v_add_u32 v22, 0x%x, %s" % (MB1B - MB1A, vS1))
        A("s_nop 0")
        for k in range(1, 4):
            A("v_mov_b32_dpp v%d, v%d quad_perm:[%d,%d,%d,%d] %s" % (GR + k, GR, k, k, k, k, DPP))
        A("s_mov_b32 exec_lo, 0x11111111")
        A("s_mov_b32 exec_hi, 0x11111111")
        A("global_store_dwordx4 %s, v[%d:%d], %s" % (vS1, GR, GR + 3, sWS))
        A("global_store_dwordx4 v22, v[%d:%d], %s sc1" % (GR, GR + 3, sWS))
        A("s_mov_b64 exec, -1")
    gemv(L_WQ, 16 + NW)
    if o["b0pos"] == 45: A("s_barrier")
    pack(0xfff0, vTN)
    stamp(4)
    XG = 28
    A("s_getreg_b32 %s, hwreg(HW_REG_XCC_ID, 0, 4)" % sXCC)
    A("s_and_b32 %s, %s, 0xff" % (t0, sTAG))
    A("s_lshl_b32 %s, %s, 8" % (t2, sXCC))
    A("s_or_b32 s54, %s, %s" % (t0, t2))
    A("v_mov_b32 v%d, s54" % XG)
    for k in range(1, 4):
        A("s_bfe_u32 %s, %s, 0x%x" % (t0, sTAG, 0x80000 | (8 * k)))
        A("v_mov_b32 v%d, %s" % (XG + k, t0))
    A("s_lshl_b32 %s, %s, 4" % (t2, sJ))
    A("s_add_u32 %s, %s, %s" % (t2, t2, sB1))
    A("s_add_u32 %s, %s, 0x4000" % (t2, t2))
    A("v_mov_b32 v22, %s" % t2)
    A("v_add_u32 v23, 0x%x, v22" % (MB1B - MB1A))
    A("s_mov_b64 exec, 1")
    A("global_store_dwordx4 v22, v[%d:%d], %s" % (XG, XG + 3, sWS))
    A("global_store_dwordx4 v23, v[%d:%d], %s sc1" % (XG, XG + 3, sWS))
    A("s_mov_b64 exec, -1")
    if o["b0pos"] == 50: A("s_barrier")
    A("v_add_u32 %s, 0x2000, %s" % (vS1, vS1))
    A("s_cmp_ge_u32 %s, 32" % sNOFF)
    A("s_cbranch_scc1 L_noff2")
    gemv(L_FF, 4 + NW)
    pack(0xff00, vTB)
    LB("L_noff2")
    stamp(7)
    if o.get("nosync"):
        A("s_barrier")
        A("s_mov_b32 %s, 0" % sCNT)
        dump_stamps()
        A("s_endpgm")
    A("v_and_b32 v4, 15, v0")
    A("v_lshlrev_b32 v4, 4, v4")
    A("v_lshl_add_u32 v4, v126, 10, v4")
    A("s_add_u32 %s, %s, 2432" % (t0, sB1))
    A("v_add_u32 %s, %s, v4" % (vL1, t0))
    A("v_and_b32 v4, 31, v0")
    A("s_add_u32 %s, %s, 0x4000" % (t0, sB1))
    A("v_lshl_add_u32 %s, v4, 4, %s" % (vL1x, t0))
    A("s_lshl_b32 %s, %s, 1" % (t2, t3))
    A("s_sub_u32 %s, 8, %s" % (sRP, t2))
    A("s_mul_i32 %s, %s, %s" % (t2, sRP, sJ))
    A("s_sub_u32 %s, %s, 1" % (t0, sRP))
    A("v_and_b32 v4, 7, v0")
    A("v_min_u32 v4, %s, v4" % t0)
    A("v_add_u32 %s, %s, v4" % (vF, t2))
    A("v_lshrrev_b32 v4, 6, %s" % vF)
    A("v_bfe_u32 v5, v0, 3, 1")
    A("v_lshl_add_u32 v4, v4, 1, v5")
    A("v_lshl_add_u32 v4, v4, 2, v126")
    A("v_bfe_u32 v5, %s, 2, 4" % vF)
    A("v_lshlrev_b32 v5, 4, v5")
    A("v_lshl_add_u32 v4, v4, 8, v5")
    A("s_add_u32 %s, %s, 0x2000" % (t0, sB1))
    A("v_add_u32 %s, %s, v4" % (vL1a, t0))
    for k in range(4):
        A("s_bfe_u32 s%d, %s, 0x%x" % (56 + k, sTAG, 0x40000 | (4 * k)))
    A("s_mov_b32 s60, 0x0c0c0400")
    A("s_mov_b32 s61, 0x04000c0c")
    P = 40
    PX, PA_ = 72, 76
    A("s_mov_b32 %s, 0" % sCNT)
    def switch_copy(regs):
        A("s_add_u32 %s, %s, 1" % (sCNT, sCNT))
        A("s_cmp_eq_u32 %s, %d" % (sCNT, o["atries"]))
        A("s_cselect_b32 %s, 0x%x, 0" % (t0, MB1B - MB1A))
        for r in regs: A("v_add_u32 %s, %s, %s" % (r, t0, r))
        A("s_cmp_gt_u32 %s, %d" % (sCNT, o["spinmax"]))
        A("s_cbranch_scc1 L_end")
    def bytecheck(p, dst):
        A("v_perm_b32 v22, v%d, v%d, s60" % (p + 1, p))
        A("v_perm_b32 v23, v%d, v%d, s61" % (p + 3, p + 2))
        A("v_or_b32 v22, v22, v23")
        A("v_cmp_ne_u32 %s, %s, v22" % (dst, sTAG))
    stamp(9)
    LB("L_poll1")
    stamp(8)
    for i in range(2):
        for q in range(4):
            r = P + 16 * i + 4 * q
            A("global_load_dwordx4 v[%d:%d], %s, %s offset:%d sc1" % (r, r + 3, vL1, sWS, i * 4096 + q * 256 - 2432))
    A("global_load_dwordx4 v[%d:%d], %s, %s sc1" % (PX, PX + 3, vL1x, sWS))
    A("global_load_dwordx4 v[%d:%d], %s, %s sc1" % (PA_, PA_ + 3, vL1a, sWS))
    switch_copy([vL1, vL1x, vL1a])
    for g_ in range(8):
        A("s_waitcnt vmcnt(%d)" % (9 - g_))
        for k in range(4):
            A("v_xor_b32 v%d, s%d, v%d" % (P + 4 * g_ + k, 56 + k, P + 4 * g_ + k))
        if g_ == 0:
            A("v_or3_b32 v21, v%d, v%d, v%d" % (P, P + 1, P + 2))
            A("v_or_b32 v21, v21, v%d" % (P + 3))
        else:
            A("v_or3_b32 v21, v21, v%d, v%d" % (P + 4 * g_, P + 4 * g_ + 1))
            A("v_or3_b32 v21, v21, v%d, v%d" % (P + 4 * g_ + 2, P + 4 * g_ + 3))
    A("v_and_b32 v21, 15, v21")
    A("s_waitcnt vmcnt(1)")
    bytecheck(PX, "vcc")
    A("v_cmp_ne_u32 s[46:47], 0, v21")
    if o.get("dbgfail"):
        A("s_cmp_eq_u32 %s, 1" % sCNT)
        A("s_cselect_b32 s84, vcc_lo, s84")
        A("s_cselect_b32 s62, s46, s62")
        A("s_cselect_b32 s63, s47, s63")
    A("s_or_b64 vcc, vcc, s[46:47]")
    A("s_cbranch_vccnz L_poll1")
    stamp(5)
    for i in range(2):
        b = P + 16 * i
        for k in range(4):
            A("v_add_f32 v%d, v%d, v%d" % (b + k, b + k, b + 4 + k))
            A("v_add_f32 v%d, v%d, v%d" % (b + 8 + k, b + 8 + k, b + 12 + k))
        for k in range(4):
            A("v_add_f32 v%d, v%d, v%d" % (b + k, b + k, b + 8 + k))
        A("v_cvt_pk_bf16_f32 v%d, v%d, v%d" % (b, b, b + 1))
        A("v_cvt_pk_bf16_f32 v%d, v%d, v%d" % (b + 1, b + 2, b + 3))
    A("v_lshlrev_b32 v22, 3, v0")
    A("ds_write_b64 v22, v[%d:%d] offset:%d" % (P, P + 1, L_Q))
    A("ds_write_b64 v22, v[%d:%d] offset:%d" % (P + 16, P + 17, L_Q + 512))
    A("v_cmp_ne_u32 vcc, s54, v%d" % PX)
    A("s_cmp_eq_u64 vcc, 0")
    A("s_cselect_b32 %s, 1, 0" % sFAST)
    if o.get("forceslow"): A("s_mov_b32 %s, 0" % sFAST)
    A("v_mov_b32 v26, %s" % sFAST)
    A("v_mov_b32 v22, %d" % L_FLAG)
    A("ds_write_b32 v22, v26")
    if o["auxearly"]:
        A("s_waitcnt vmcnt(0)")
        bytecheck(PA_, "vcc")
        A("s_cbranch_vccz L_aux_b1")
        A("global_load_dwordx4 v[%d:%d], %s, %s sc1" % (PA_, PA_ + 3, vL1a, sWS))
        LB("L_aux_b1")
    A("s_waitcnt lgkmcnt(0)")
    A("s_barrier")
    if o["hlate"]:
        A("s_setprio %d" % o.get("hprio", 0))
        A("s_barrier")
        A("s_barrier")
    A("s_branch L_chk_aux")
    LB("L_poll_aux")
    A("global_load_dwordx4 v[%d:%d], %s, %s sc1" % (PA_, PA_ + 3, vL1a, sWS))
    switch_copy([vL1a])
    LB("L_chk_aux")
    A("s_waitcnt vmcnt(0)")
    bytecheck(PA_, "vcc")
    A("s_cbranch_vccnz L_poll_aux")
    A("s_movk_i32 %s, 0xff00" % t0)
    A("v_and_b32 v23, 1, %s" % vF)
    A("v_cmp_eq_u32 vcc, 0, v23")
    A("v_and_b32 v23, 2, %s" % vF)
    A("v_cmp_eq_u32 s[46:47], 0, v23")
    A("v_cndmask_b32 v24, v%d, v%d, vcc" % (PA_ + 1, PA_))
    A("v_cndmask_b32 v25, v%d, v%d, vcc" % (PA_ + 3, PA_ + 2))
    A("v_cndmask_b32 v24, v25, v24, s[46:47]")
    A("v_and_b32 v24, %s, v24" % t0)
    allred("v24", "v23", "v_add_f32", 16)
    allred("v24", "v23", "v_add_f32", 32)
    A("v_cvt_pk_bf16_f32 v24, v24, v24")
    A("v_and_b32 v24, %s, v24" % t1)
    A("v_mul_f32 v25, 0x%x, v24" % (LOG2E | 0x80000000))
    A("v_exp_f32 v25, v25")
    A("v_mov_b32_dpp v26, v24 row_ror:8 %s" % DPP)
    A("v_add_f32 v25, 1.0, v25")
    A("v_rcp_f32 v25, v25")
    A("v_cmp_le_u32 vcc, %s, v0" % sRP)
    A("v_mul_f32 v25, v24, v25")
    A("v_cvt_pk_bf16_f32 v25, v25, v25")
    A("v_and_b32 v25, %s, v25" % t1)
    A("v_mul_f32 v25, v25, v26")
    A("v_cvt_pk_bf16_f32 v25, v25, v25")
    A("v_cndmask_b32 v25, v25, 0, vcc")
    A("v_lshlrev_b32 v22, 2, v0")
    A("s_mov_b64 exec, 0xff")
    A("ds_write_b32 v22, v25 offset:%d" % L_H)
    A("s_waitcnt lgkmcnt(0)")
    stamp(6)
    dump_stamps()
    A("s_endpgm")

    role[0] = "A"
    LB("L_attn")
    vK0, vK1, vV0, vV1 = "v2", "v3", "v4", "v5"
    vWO0, vWO1, vDN0, vDN1, vXF, vXP = "v6", "v7", "v8", "v9", "v10", "v1"
    vS2, vL2, vS25, vL25, vL3, vS3 = "v11", "v12", "v13", "v14", "v15", "v150"
    KR, VR, WOR, DNR, QR, SR, PA, MK = 16, 48, 80, 96, 104, 120, 128, 146
    vM0, vM1, vQA, vOW, vOR, vMLW, vHA = "v151", "v152", "v153", "v154", "v155", "v156", "v157"
    vN, vG, vN16, vP = "v120", "v121", "v122", "v123"
    u0, u1 = "v124", "v125"
    s4JW = "s41"
    C("K and V: load i = 1 KB block (4 keys) number 128 i + 4j + w of the head's window; K goes through LDS")
    A("s_lshl_b32 %s, %s, 24" % (t0, sH))
    A("s_lshl_b32 %s, %s, 2" % (s4JW, sJ))
    A("s_add_u32 %s, %s, %s" % (s4JW, s4JW, sW))
    A("s_lshl_b32 %s, %s, 10" % (t2, s4JW))
    A("s_add_u32 %s, %s, %s" % (t0, t0, t2))
    A("s_add_u32 %s, %s, 0xF00000" % (t0, t0))
    A("v_and_b32 %s, 15, v0" % vN)
    A("v_lshrrev_b32 %s, 4, v0" % vG)
    A("v_lshlrev_b32 %s, 4, %s" % (vN16, vN))
    A("v_lshl_add_u32 %s, v0, 4, %s" % (vV0, t0))
    A("v_lshlrev_b32 %s, 6, %s" % (u0, vG))
    A("v_xor_b32 %s, %s, %s" % (vK0, u0, vV0))
    A("s_lshl_b32 %s, %s, 13" % (t1, sW))
    A("s_add_u32 m0, %s, %d" % (t1, L_K))
    A("s_mov_b32 s42, 0x20000")
    A("s_movk_i32 s43, 1024")
    A("s_waitcnt lgkmcnt(0)")
    A("s_load_dword %s, %s, 0" % (sTAG, sWS))
    if o.get("tlbw") == 1:
        A("s_cmp_lg_u32 %s, 0" % sW)
        A("s_cbranch_scc1 L_notlb")
        tlbwarm()
        A("s_waitcnt vmcnt(0)")
        LB("L_notlb")
    if o["b0pos"]: A("s_barrier")
    stamp(1)
    issued = [0]
    def load(w, txt):
        if issued[0] >= w:
            A("s_waitcnt vmcnt(%d)" % (w - 1))
        A(txt); issued[0] += 1
    def rot(i): return (i * o["rotm"]) & 127
    def kload(i):
        load(o["WK"], "global_load_lds_dwordx4 %s, %s %s" % (vK0, sK, nt))
        if i < 7:
            A("s_add_u32 m0, m0, s43")
            A("v_xor_b32 %s, %d, %s" % (vK0, (((i & 3) ^ ((i + 1) & 3)) << 4) | ((rot(i) ^ rot(i + 1)) << 10), vK0))
            A("v_add_u32 %s, s42, %s" % (vK0, vK0))
    nk_first = min(o["WK"], 8)
    if o.get("bal"):
        A("v_and_b32 v158, 7, v0")
        A("v_lshlrev_b32 v158, 2, v158")
        A("global_load_dword v159, v158, s[24:25] sc1")
    for i in range(nk_first): kload(i)
    C("address and mask setup in the shadow of the K loads")
    A("s_lshl_b32 %s, %s, 19" % (t0, sH))
    A("s_lshl_b32 %s, %s, 14" % (t2, sJ))
    A("s_add_u32 %s, %s, %s" % (t0, t0, t2))
    A("s_lshl_b32 %s, %s, 8" % (t3, sW))
    A("s_add_u32 %s, %s, %s" % (t0, t0, t3))
    A("s_add_u32 %s, %s, 0x1000" % (t0, t0))
    A("v_lshl_add_u32 %s, %s, 10, %s" % (vDN0, vG, vN16))
    A("v_add_u32 %s, %s, %s" % (vWO0, t0, vDN0))
    A("v_add_u32 %s, 0x2000, %s" % (vWO1, vWO0))
    A("s_mul_i32 %s, %s, 7" % (t0, sH))
    A("s_add_u32 %s, %s, 1" % (t0, t0))
    A("s_lshr_b32 %s, %s, 1" % (t0, t0))
    A("s_lshl_b32 %s, %s, 6" % (t0, t0))
    A("s_and_b32 %s, %s, 1" % (t2, sH))
    A("s_lshl_b32 %s, %s, 1" % (t2, t2))
    A("s_sub_u32 %s, 8, %s" % (t1, t2))
    A("s_mul_i32 %s, %s, %s" % (t2, t1, sJ))
    A("s_add_u32 %s, %s, %s" % (t0, t0, t2))
    A("s_lshl_b32 %s, %s, 10" % (t0, t0))
    A("s_add_u32 %s, %s, %s" % (t0, t0, t3))
    A("v_add_u32 %s, %s, %s" % (vDN0, t0, vDN0))
    A("s_sub_u32 %s, %s, 5" % (t1, t1))
    A("v_min_u32 %s, %s, %s" % (vDN1, t1, vG))
    A("v_lshl_add_u32 %s, %s, 10, %s" % (vDN1, vDN1, vN16))
    A("s_add_u32 %s, %s, 4096" % (t0, t0))
    A("v_add_u32 %s, %s, %s" % (vDN1, t0, vDN1))
    A("v_and_b32 %s, 1, v0" % vP)
    A("v_and_b32 %s, 1, %s" % (u0, vG))
    A("s_lshl_b32 %s, %s, 3" % (t2, s4JW))
    A("v_lshl_add_u32 %s, %s, 2, %s" % (vXF, u0, t2))
    A("s_lshl_b32 %s, %s, 16" % (t0, sH))
    A("s_lshl_b32 %s, %s, 14" % (t2, sW))
    A("s_lshl_b32 %s, %s, 6" % (t3, sJ))
    A("s_add_u32 %s, %s, %s" % (t2, t2, t3))
    A("s_add_u32 %s, %s, %s" % (t2, t2, t0))
    A("s_add_u32 %s, %s, 0x%x" % (t2, t2, MB2))
    A("v_lshrrev_b32 %s, 3, v0" % vS2)
    A("v_bfe_u32 %s, v0, 1, 2" % u1)
    A("v_lshlrev_b32 %s, 4, %s" % (u1, u1))
    A("v_lshl_add_u32 %s, %s, 11, %s" % (vS2, vS2, u1))
    A("v_add_u32 %s, %s, %s" % (vS2, t2, vS2))
    A("v_lshrrev_b32 %s, 1, %s" % (vS25, vN))
    A("v_lshlrev_b32 %s, 5, %s" % (u1, vP))
    A("v_lshl_add_u32 %s, %s, 11, %s" % (vS25, vS25, u1))
    A("v_lshl_add_u32 %s, %s, 4, %s" % (vS25, u0, vS25))
    A("s_add_u32 %s, %s, 0x%x" % (t2, t2, MB25 - MB2))
    A("v_add_u32 %s, %s, %s" % (vS25, t2, vS25))
    A("s_lshl_b32 %s, %s, 11" % (t3, sJ))
    A("s_add_u32 %s, %s, %s" % (t0, t0, t3))
    A("s_add_u32 %s, %s, 0x%x" % (t0, t0, MB2))
    A("v_lshl_add_u32 %s, v0, 4, %s" % (vL2, t0))
    A("s_lshl_b32 %s, %s, 4" % (t3, sW))
    A("s_add_u32 %s, %s, %s" % (t0, t0, t3))
    A("s_add_u32 %s, %s, 0x%x" % (t0, t0, MB25 - MB2))
    A("v_and_b32 %s, 31, v0" % u1)
    A("v_lshl_add_u32 %s, %s, 6, %s" % (vL25, u1, t0))
    A("s_lshr_b32 %s, %s, 3" % (t0, s4JW))
    A("s_lshl_b32 %s, %s, 14" % (t0, t0))
    A("s_and_b32 %s, %s, 7" % (t3, s4JW))
    A("s_lshl_b32 %s, %s, 10" % (t3, t3))
    A("s_add_u32 %s, %s, %s" % (t0, t0, t3))
    A("s_add_u32 %s, %s, 0x%x" % (t0, t0, MB3))
    A("v_lshl_add_u32 %s, %s, 4, %s" % (u0, u0, t0))
    A("v_and_b32 %s, 7, v0" % u1)
    A("v_lshl_add_u32 %s, %s, 7, %s" % (vL3, u1, u0))
    A("s_lshl_b32 %s, %s, 7" % (t3, sH))
    A("v_lshl_add_u32 %s, %s, 13, %s" % (u0, vP, u0))
    A("v_add_u32 %s, %s, %s" % (vS3, t3, u0))
    A("v_lshlrev_b32 %s, 4, %s" % (u1, vP))
    def pretouch2():
        C("pull this workgroup's incoming hand-off lines into L2 (waves 0,1: hop 2; waves 2,3: hop 2.5)")
        A("s_and_b32 %s, %s, 1" % (t0, sW))
        A("s_lshl_b32 %s, %s, 10" % (t0, t0))
        A("s_lshr_b32 %s, %s, 1" % (t3, sW))
        A("s_mul_i32 %s, %s, 0x%x" % (t3, t3, MB25 - MB2))
        A("s_add_u32 %s, %s, %s" % (t0, t0, t3))
        A("v_add_u32 v158, %s, %s" % (t0, vL2))
        A("global_load_dword v159, v158, %s sc1" % sWS); issued[0] += 1
    if o["pretouch"] == "r": pretouch2()
    A("v_mov_b32 %s, 0xffff" % u0)
    A("v_lshlrev_b32 %s, %s, %s" % (u0, u1, u0))
    A("v_and_b32 %s, 2, v0" % u1)
    A("v_cmp_eq_u32 vcc, 0, %s" % u1)
    A("v_lshrrev_b32 %s, 1, %s" % (u1, vN))
    A("v_lshlrev_b32 %s, 2, %s" % (vHA, vG))
    SEL = 160
    A("v_mov_b32 v%d, 0x0c0c0c0c" % (SEL + 2))
    A("v_mov_b32 v%d, 0x01000100" % (SEL + 3))
    A("v_bfi_b32 v%d, %s, v%d, v%d" % (SEL + 3, u0, SEL + 3, SEL + 2))
    A("v_cndmask_b32 v%d, v%d, v%d, vcc" % (SEL, SEL + 2, SEL + 3))
    A("v_cndmask_b32 v%d, v%d, v%d, vcc" % (SEL + 1, SEL + 3, SEL + 2))
    A("v_and_b32 v%d, 0x02020202, %s" % (SEL + 3, u0))
    A("v_cndmask_b32 v%d, 0, v%d, vcc" % (SEL + 2, SEL + 3))
    A("v_cndmask_b32 v%d, v%d, 0, vcc" % (SEL + 3, SEL + 3))
    A("v_add_u32 v%d, v%d, v%d" % (SEL + 2, SEL + 2, SEL))
    A("v_add_u32 v%d, v%d, v%d" % (SEL + 3, SEL + 3, SEL + 1))
    for r in range(4):
        A("v_cmp_eq_u32 s[%d:%d], %d, %s" % (44 + 2 * r, 45 + 2 * r, r, u1))
    A("v_lshrrev_b32 %s, 2, %s" % (vMLW, vN))
    A("v_lshlrev_b32 %s, 4, %s" % (u1, vG))
    A("v_lshl_add_u32 %s, %s, 8, %s" % (vQA, vMLW, u1))
    for r in range(4):
        A("v_cndmask_b32 v%d, 0, %s, s[%d:%d]" % (MK + r, u0, 44 + 2 * r, 45 + 2 * r))
    A("s_lshl_b32 %s, %s, 11" % (t0, sW))
    A("v_lshl_add_u32 %s, %s, 9, %s" % (vOW, vG, vN16))
    A("v_add_u32 %s, %s, %s" % (vOW, t0, vOW))
    A("s_lshl_b32 %s, %s, 3" % (t0, sW))
    A("v_lshl_add_u32 %s, %s, 5, %s" % (vMLW, vMLW, t0))
    A("v_bfe_u32 %s, v0, 1, 1" % u0)
    A("v_lshrrev_b32 %s, 2, v0" % u1)
    A("v_lshlrev_b32 %s, 4, %s" % (u1, u1))
    A("v_lshl_add_u32 %s, %s, 8, %s" % (u1, u0, u1))
    A("v_lshl_add_u32 %s, %s, 3, %s" % (u1, vP, u1))
    A("s_lshl_b32 %s, %s, 9" % (t0, sW))
    A("v_add_u32 %s, %s, %s" % (vOR, t0, u1))
    KA = 140
    A("v_and_b32 %s, 3, v0" % u0)
    A("v_lshrrev_b32 %s, 2, %s" % (u1, vN))
    A("v_lshlrev_b32 %s, 8, %s" % (u1, u1))
    A("v_lshl_add_u32 %s, %s, 10, %s" % (u0, u0, u1))
    A("v_xor_b32 %s, %s, %s" % (u1, vG, vN))
    A("v_lshl_add_u32 %s, %s, 4, %s" % (u0, u1, u0))
    A("s_lshl_b32 %s, %s, 13" % (t1, sW))
    A("v_add_u32 v%d, %s, %s" % (KA, t1, u0))
    for s_ in range(1, 4):
        A("v_xor_b32 v%d, %d, v%d" % (KA + s_, s_ << 6, KA))
    A("s_waitcnt lgkmcnt(0)")
    A("s_add_u32 %s, %s, 0x%x" % (sTAG, sTAG, TAGC))
    def issue_rest(WK_, W_):
        o_wk = o["WK"]; o["WK"] = WK_
        for i in range(nk_first, 8): kload(i)
        o["WK"] = o_wk
        if o["pretouch"] == "k": pretouch2()
        for i in range(8):
            r = VR + i * 4
            load(W_, "global_load_dwordx4 v[%d:%d], %s, %s %s" % (r, r + 3, vV0, sV, nt))
            if i < 7:
                if rot(i) ^ rot(i + 1): A("v_xor_b32 %s, %d, %s" % (vV0, (rot(i) ^ rot(i + 1)) << 10, vV0))
                A("v_add_u32 %s, s42, %s" % (vV0, vV0))
    if o.get("bal"):
        C("a group that started well after others asks memory with a wider window")
        A("s_waitcnt vmcnt(%d)" % issued[0])
        A("v_sub_u32 v158, s90, v159")
        A("v_cmp_ne_u32 vcc, 0, v159")
        A("v_cmp_lt_i32 s[44:45], %d, v158" % o.get("theta", 40))
        A("s_and_b32 s62, vcc_lo, s44")
        A("s_and_b32 s62, s62, 0xff")
        A("s_bcnt1_i32_b32 s62, s62")
        A("s_cmp_ge_u32 s62, %d" % o.get("lateth", 2))
        A("s_cbranch_scc1 L_wide")
        keep = issued[0]
        issue_rest(o["WK"], o["W"])
        A("s_branch L_issued")
        LB("L_wide")
        issued[0] = keep
        issue_rest(o["WK"] + o["bal"], o["W"] + o["bal"])
        LB("L_issued")
    elif o.get("c3"):
        A("s_lshr_b32 %s, %s, 2" % (t0, sJ))
        A("s_cmp_eq_u32 %s, 3" % t0)
        A("s_cbranch_scc1 L_wide")
        keep = issued[0]
        issue_rest(o["WK"], o["W"])
        A("s_branch L_issued")
        LB("L_wide")
        issued[0] = keep
        issue_rest(o["WK"] + o["c3"], o["W"] + o.get("c3v", o["c3"]))
        LB("L_issued")
    else:
        issue_rest(o["WK"], o["W"])
    tail = []
    tail.append("global_load_dword %s, %s, %s" % (vXP, vXF, sX))
    for a in range(2):
        r = DNR + a * 4
        tail.append("global_load_dwordx4 v[%d:%d], %s, %s %s" % (r, r + 3, (vDN0, vDN1)[a], sDN, nt))
    for m in range(4):
        r = WOR + m * 4
        tail.append("global_load_dwordx4 v[%d:%d], %s, %s offset:%d %s" % (r, r + 3, (vWO0, vWO1)[m >> 1], sWO, (0, -4096)[(m & 1) == 0], nt))
    nav = [0]
    def tail_issue(n):
        for _ in range(n):
            if tail:
                A(tail.pop(0)); nav[0] += 1
    A("s_waitcnt vmcnt(8)")
    for t in range(2):
        for s in range(4):
            r = KR + (t * 4 + s) * 4
            A("ds_read_b128 v[%d:%d], v%d offset:%d" % (r, r + 3, KA + s, L_K + t * 4096))
    tail_issue(o["ntail0"])
    stamp(2)
    A("s_waitcnt lgkmcnt(0)")
    A("s_barrier")
    stamp(3)
    for s in range(4):
        A("ds_read_b128 v[%d:%d], %s offset:%d" % (QR + 4 * s, QR + 4 * s + 3, vQA, L_Q + s * 64))
    if "a" in o["tsp"]: tail_issue(1)
    A("s_mov_b32 s46, 0x%x" % SCALE)
    A("s_mov_b32 %s, 0xffff0000" % t1)
    A("s_mov_b32 s48, 0x%x" % LOG2E)
    for s in range(4):
        A("s_waitcnt lgkmcnt(%d)" % (3 - s))
        for t in range(2):
            mfma(SR + 4 * t, KR + (t * 4 + s) * 4, QR + 4 * s, None if s == 0 else SR + 4 * t)
    T = KR
    vH0, vH1, vFL = "v%d" % (T + 28), "v%d" % (T + 29), "v%d" % (T + 30)
    A("v_mov_b32 %s, %d" % (vFL, L_FLAG))
    A("s_lshl_b32 %s, %s, 5" % (t3, sW))
    A("v_mov_b32 v%d, %s" % (T + 31, t3))
    A("ds_read_b32 %s, %s" % (vFL, vFL))
    if "b" in o["tsp"]:
        tail_issue(1); A("s_nop 1")
    else: A("s_nop 2")
    C("scores: bf16(qk) -> * scale -> bf16   (the reference's two roundings)")
    for i in range(8):
        A("v_cvt_pk_bf16_f32 v%d, 0, v%d" % (SR + i, SR + i))
    for i in range(4):
        A("v_pk_mul_f32 %s, %s, s[46:47] op_sel_hi:[1,0]" % (P2(SR + 2 * i), P2(SR + 2 * i)))
    for i in range(8):
        A("v_cvt_pk_bf16_f32 v%d, 0, v%d" % (SR + i, SR + i))
    vm, vt, vl = "v%d" % (T + 4), "v%d" % (T + 6), "v%d" % (T + 5)
    A("v_max3_f32 %s, v%d, v%d, v%d" % (vm, SR, SR + 1, SR + 2))
    A("v_max3_f32 %s, v%d, v%d, v%d" % (vt, SR + 3, SR + 4, SR + 5))
    A("v_max3_f32 %s, %s, v%d, v%d" % (vm, vm, SR + 6, SR + 7))
    A("v_max_f32 %s, %s, %s" % (vm, vm, vt))
    allred(vm, vt, "v_max_f32", 16)
    if "c" in o["tsp"]: tail_issue(1)
    allred(vm, vt, "v_max_f32", 32)
    A("v_mul_f32 %s, s48, %s" % (vm, vm))
    for i in range(4):
        A("v_pk_fma_f32 %s, %s, s[48:49], %s op_sel_hi:[1,0,0] neg_lo:[0,0,1] neg_hi:[0,0,1]" % (P2(SR + 2 * i), P2(SR + 2 * i), P2(T + 4)))
    for i in range(8):
        A("v_exp_f32 v%d, v%d" % (SR + i, SR + i))
    if "d" in o["tsp"]: tail_issue(1)
    for i in range(4):
        A("v_cvt_pk_bf16_f32 v%d, v%d, v%d" % (T + 8 + i, SR + 2 * i, SR + 2 * i + 1))
    for i in range(8):
        for r in range(2):
            A("v_perm_b32 v%d, v%d, v%d, v%d" % (PA + 2 * i + r, T + 8 + (i >> 1), T + 8 + (i >> 1), SEL + 2 * (i & 1) + r))
    stamp(4)
    O0, O1, Y = QR, QR + 4, QR + 8
    def pv(i):
        A("s_waitcnt vmcnt(%d)" % (7 - i + nav[0]))
        if i >= o["tlag"]: tail_issue(1 if i < 7 else 9)
        vr = VR + 4 * i
        mfma16(O0, PA + 2 * i, vr, None if i == 0 else O0)
        mfma16(O1, PA + 2 * i, vr + 2, None if i == 0 else O1)
    A("v_pk_add_f32 %s, %s, %s" % (P2(SR), P2(SR), P2(SR + 2)))
    A("v_pk_add_f32 %s, %s, %s" % (P2(SR + 4), P2(SR + 4), P2(SR + 6)))
    A("v_pk_add_f32 %s, %s, %s" % (P2(SR), P2(SR), P2(SR + 4)))
    A("v_add_f32 %s, v%d, v%d" % (vl, SR, SR + 1))
    allred(vl, vt, "v_add_f32", 16)
    allred(vl, vt, "v_add_f32", 32)
    A("ds_write_b64 %s, v[%d:%d] offset:%d" % (vMLW, T + 4, T + 5, L_ML))
    A("s_waitcnt lgkmcnt(0)")
    A("v_readfirstlane_b32 %s, %s" % (sFAST, vFL))
    HA = T + 16
    ML = T
    OB = T + 8
    G2 = SR
    vM, vLs = "v124", "v125"
    for i in range(o["b2"]): pv(i)
    A("s_barrier")
    A("ds_read_b128 v[%d:%d], v%d offset:%d" % (ML, ML + 3, T + 31, L_ML))
    A("ds_read_b128 v[%d:%d], v%d offset:%d" % (ML + 4, ML + 7, T + 31, L_ML + 16))
    if not o["hlate"]:
        A("ds_read_b32 %s, %s offset:%d" % (vH0, vHA, L_H))
        A("ds_read_b32 %s, %s offset:%d" % (vH1, vHA, L_H + 16))
    A("s_mov_b32 vcc_lo, 0xcccccccc")
    A("s_mov_b32 vcc_hi, 0xcccccccc")
    A("v_mov_b32 v%d, %s" % (G2 + 3, sTAG))
    A("s_waitcnt lgkmcnt(%d)" % (0 if o["hlate"] else 2))
    A("v_max3_f32 %s, v%d, v%d, v%d" % (vM, ML, ML + 2, ML + 4))
    A("v_max_f32 %s, %s, v%d" % (vM, vM, ML + 6))
    for w_ in range(4):
        A("v_sub_f32 v%d, v%d, %s" % (ML + 2 * w_, ML + 2 * w_, vM))
    for w_ in range(4):
        A("v_exp_f32 v%d, v%d" % (ML + 2 * w_, ML + 2 * w_))
    A("s_waitcnt lgkmcnt(0)")
    A("v_mul_f32 %s, v%d, v%d" % (vLs, ML, ML + 1))
    for w_ in range(1, 4):
        A("v_fmac_f32 %s, v%d, v%d" % (vLs, ML + 2 * w_, ML + 2 * w_ + 1))
    def h_operands():
        for a in range(2):
            for r in range(4):
                A("v_and_b32 v%d, %s, v%d" % (HA + 4 * a + r, (vH0, vH1)[a], MK + r))
    if not o["hlate"]: h_operands()
    A("v_cndmask_b32 v%d, %s, %s, vcc" % (G2 + 2, vM, vLs))
    for i in range(o["b2"], 8): pv(i)
    stamp(5)
    if o.get("nosync"):
        A("s_waitcnt vmcnt(0)")
        stamp(6)
        A("s_branch L_done")
    A("s_nop 6")
    A("ds_write_b128 %s, v[%d:%d] offset:%d" % (vOW, O0, O0 + 3, L_O))
    A("ds_write_b128 %s, v[%d:%d] offset:%d" % (vOW, O1, O1 + 3, L_O + 256))
    A("s_waitcnt lgkmcnt(0)")
    A("s_barrier")
    for w_ in range(4):
        A("ds_read_b64 v[%d:%d], %s offset:%d" % (OB + 2 * w_, OB + 2 * w_ + 1, vOR, L_O + w_ * 2048))
    A("s_cmp_eq_u32 %s, 0" % sFAST)
    for w_ in range(4):
        A("s_waitcnt lgkmcnt(%d)" % (3 - w_))
        op = "v_mul_f32" if w_ == 0 else "v_fmac_f32"
        A("%s v%d, v%d, v%d" % (op, G2, ML + 2 * w_, OB + 2 * w_))
        A("%s v%d, v%d, v%d" % (op, G2 + 1, ML + 2 * w_, OB + 2 * w_ + 1))
    tails = []
    def publish(addr, g, name):
        A("s_cbranch_scc1 L_slow_%s" % name)
        A("global_store_dwordx4 %s, v[%d:%d], %s %s" % (addr, g, g + 3, sWS, o.get("stfl", "")))
        LB("L_back_%s" % name)
        tails.append((name, addr, g))
    A("v_cvt_pk_bf16_f32 v%d, v%d, v%d" % (G2, G2, G2 + 1))
    A("s_mov_b32 s44, 0x55555555")
    A("s_mov_b32 s45, 0x55555555")
    A("v_mov_b32_dpp v%d, v%d quad_perm:[1,1,3,3] %s" % (G2 + 1, G2, DPP))
    A("s_mov_b64 exec, s[44:45]")
    publish(vS2, G2, "h2")
    A("s_mov_b64 exec, -1")
    stamp(6)
    P = T
    for i in range(2):
        A("global_load_dwordx4 v[%d:%d], %s, %s offset:%d sc1" % (P + 4 * i, P + 4 * i + 3, vL2, sWS, i * 1024))
    if o["hlate"]:
        A("s_barrier")
        A("ds_read_b32 %s, %s offset:%d" % (vH0, vHA, L_H))
        A("ds_read_b32 %s, %s offset:%d" % (vH1, vHA, L_H + 16))
    A("s_mov_b32 %s, %d" % (sCNT, o["spinmax"]))
    vTAG = "v127"
    A("v_mov_b32 %s, %s" % (vTAG, sTAG))
    for k in range(4):
        A("s_mov_b32 s%d, 0x%x" % (56 + k, 0x07060500 | k))
        A("s_bfe_u32 s%d, %s, 0x%x" % (60 + k if k < 2 else 50 + k, sTAG, 0x80000 | (8 * k)))
    TB = ["s60", "s61", "s52", "s53"]
    if o["hlate"]:
        A("s_waitcnt lgkmcnt(0)")
        h_operands()
    A("s_waitcnt vmcnt(3)")
    for a in range(2):
        mfma(Y, HA + 4 * a, DNR + 4 * a, None if a == 0 else Y)
    A("s_branch L_chk2")
    LB("L_poll2")
    MS = ["s[44:45]", "s[46:47]"]
    for i in range(2):
        A("s_mov_b64 exec, %s" % MS[i])
        A("global_load_dwordx4 v[%d:%d], %s, %s offset:%d sc1" % (P + 4 * i, P + 4 * i + 3, vL2, sWS, i * 1024))
    A("s_mov_b64 exec, -1")
    A("s_sub_u32 %s, %s, 1" % (sCNT, sCNT))
    A("s_cbranch_scc1 L_end")
    LB("L_chk2")
    A("s_waitcnt vmcnt(0)")
    A("v_max_f32 %s, v%d, v%d" % (vM, P + 2, P + 6))
    for i in range(2):
        A("v_cmp_ne_u32 %s, %s, v%d" % (MS[i], sTAG, P + 4 * i + 3))
    A("v_mov_b32_dpp %s, %s quad_perm:[0,0,2,2] %s" % (vM, vM, DPP))
    A("s_or_b64 vcc, %s, %s" % (MS[0], MS[1]))
    A("s_cbranch_scc1 L_poll2")
    stamp(7)
    U = T + 8
    def unp(i, k):
        if k & 1: A("v_and_b32 v%d, %s, v%d" % (U + 4 * i + k, t1, P + 4 * i + (k >> 1)))
        else: A("v_lshlrev_b32 v%d, 16, v%d" % (U + 4 * i + k, P + 4 * i + (k >> 1)))
    vt2 = "v126"
    A("v_max_f32_dpp %s, %s, %s row_ror:4 %s" % (vM, vM, vM, DPP))
    unp(0, 0); unp(0, 1)
    A("v_max_f32_dpp %s, %s, %s row_ror:8 %s" % (vM, vM, vM, DPP))
    A("v_mov_b32 %s, %s" % (vt2, vM))
    unp(0, 2); unp(0, 3)
    A("v_permlane16_swap_b32 %s, %s" % (vt2, vM))
    A("v_max_f32 %s, %s, %s" % (vM, vM, vt2))
    A("v_mov_b32 %s, %s" % (vt2, vM))
    unp(1, 0); unp(1, 1)
    A("v_permlane32_swap_b32 %s, %s" % (vt2, vM))
    A("v_max_f32 %s, %s, %s" % (vM, vM, vt2))
    w0, w1 = "v120", "v121"
    A("v_sub_f32_dpp %s, v%d, %s quad_perm:[0,0,2,2] %s" % (w0, P + 2, vM, DPP))
    A("v_sub_f32_dpp %s, v%d, %s quad_perm:[0,0,2,2] %s" % (w1, P + 6, vM, DPP))
    A("v_exp_f32 %s, %s" % (w0, w0))
    A("v_exp_f32 %s, %s" % (w1, w1))
    unp(1, 2); unp(1, 3)
    den, tA, tB = "v126", "v122", "v123"
    A("v_mul_f32_dpp %s, v%d, %s quad_perm:[1,1,3,3] %s" % (den, P + 2, w0, DPP))
    A("v_fmac_f32_dpp %s, v%d, %s quad_perm:[1,1,3,3] %s" % (den, P + 6, w1, DPP))
    for k in range(4):
        A("v_mul_f32 v%d, %s, v%d" % (U + k, w0, U + k))
        if k == 1: A("v_add_f32_dpp %s, %s, %s row_ror:4 %s" % (den, den, den, DPP))
    A("v_add_f32_dpp %s, %s, %s row_ror:8 %s" % (den, den, den, DPP))
    for k in (0, 2, 1, 3):
        A("v_fmac_f32 v%d, %s, v%d" % (U + k, w1, U + 4 + k))
    A("v_mov_b32 %s, %s" % (tA, den))
    A("v_permlane32_swap_b32 v%d, v%d" % (U, U + 2))
    A("v_permlane32_swap_b32 v%d, v%d" % (U + 1, U + 3))
    A("v_permlane32_swap_b32 %s, %s" % (tA, den))
    A("v_add_f32 v%d, v%d, v%d" % (U, U, U + 2))
    A("v_add_f32 v%d, v%d, v%d" % (U + 1, U + 1, U + 3))
    A("v_add_f32 %s, %s, %s" % (den, den, tA))
    A("s_cmp_eq_u32 %s, 0" % sFAST)
    A("v_permlane16_swap_b32 v%d, v%d" % (U, U + 1))
    A("v_mov_b32 %s, %s" % (tA, den))
    A("v_add_f32 v%d, v%d, v%d" % (U, U, U + 1))
    A("s_nop 0")
    A("v_permlane16_swap_b32 %s, %s" % (tA, den))
    A("v_add_f32_dpp v%d, v%d, v%d row_ror:4 %s" % (U, U, U, DPP))
    A("v_add_f32 %s, %s, %s" % (den, den, tA))
    A("v_rcp_f32 %s, %s" % (den, den))
    A("v_add_f32_dpp v%d, v%d, v%d row_ror:8 %s" % (U, U, U, DPP))
    a0 = "v124"
    A("v_mul_f32 %s, v%d, %s" % (a0, U, den))
    A("v_cvt_pk_bf16_f32 %s, %s, %s" % (a0, a0, a0))
    A("s_mov_b32 %s, %d" % (sCNT, o["spinmax"]))
    A("s_nop 0")
    WA = T
    for m in range(4):
        for r in range(4):
            A("v_and_b32_dpp v%d, %s, v%d row_newbcast:%d %s" % (WA + 4 * m + r, a0, MK + r, m, DPP))
        if m > 0:
            mfma(Y, WA + 4 * (m - 1), WOR + 4 * (m - 1), Y)
    A("s_nop 1")
    mfma(Y, WA + 12, WOR + 12, Y)
    A("s_mov_b32 exec_hi, 0")
    A("s_nop 6")
    for k in range(4):
        A("v_perm_b32 v%d, v%d, %s, s%d" % (Y + k, Y + k, vTAG, 56 + k))
    publish(vS25, Y, "h25")
    stamp(8)
    LB("L_poll25")
    A("global_load_dwordx4 v[%d:%d], %s, %s sc1" % (P, P + 3, vL25, sWS))
    A("s_sub_u32 %s, %s, 1" % (sCNT, sCNT))
    A("s_cbranch_scc1 L_end")
    A("s_waitcnt vmcnt(0)")
    for k in range(4):
        A("v_xor_b32 v%d, %s, v%d" % (P + k, TB[k], P + k))
    A("v_or3_b32 %s, v%d, v%d, v%d" % (tA, P, P + 1, P + 2))
    A("v_or_b32 %s, %s, v%d" % (tA, tA, P + 3))
    A("v_and_b32 %s, 0xff, %s" % (tA, tA))
    A("v_cmp_ne_u32 vcc, 0, %s" % tA)
    A("s_and_b64 exec, exec, vcc")
    A("s_cbranch_scc1 L_poll25")
    A("s_mov_b64 exec, -1")
    stamp(9)
    x_, y_ = "v%d" % P, "v%d" % (P + 1)
    A("v_permlane16_swap_b32 v%d, v%d" % (P, P + 2))
    A("v_permlane16_swap_b32 v%d, v%d" % (P + 1, P + 3))
    A("v_add_f32 %s, %s, v%d" % (x_, x_, P + 2))
    A("v_add_f32 %s, %s, v%d" % (y_, y_, P + 3))
    fl = ["v_mov_b32 v%d, %s" % (P + 3, sTAG), "s_and_b32 %s, %s, 7" % (t0, sJ), "s_cmp_eq_u32 %s, %s" % (t0, sH), "s_nop 0"]
    for rot_ in (1, 2, 4, 8):
        A(fl.pop(0))
        A("v_add_f32_dpp %s, %s, %s row_ror:%d %s" % (x_, x_, x_, rot_, DPP))
        A("v_add_f32_dpp %s, %s, %s row_ror:%d %s" % (y_, y_, y_, rot_, DPP))
    A("s_cbranch_scc1 L_final")
    A("s_mov_b64 exec, 0x%x" % (0x30003 if o["rep3"] else 0x10001))
    A("global_store_dwordx4 %s, v[%d:%d], %s sc1" % (vS3, P, P + 3, sWS))
    if o.get("wb"):
        A("s_or_b32 %s, %s, %s" % (t0, sW, sJ) if o["wb"] == 1 else "s_and_b32 %s, %s, 3" % (t0, sW))
        A("s_cmp_lg_u32 %s, %d" % (t0, 8 if o["wb"] == 1 else 0))
        A("s_cbranch_scc1 L_done")
        A("buffer_wbl2 sc1")
    A("s_branch L_done")
    LB("L_final")
    A("s_lshl_b32 %s, 0x10001, %s" % (t0, sH))
    A("s_andn2_b32 exec_lo, 0xff00ff, %s" % t0)
    A("s_mov_b32 exec_hi, 0")
    A("s_mov_b32 %s, %d" % (sCNT, o["spinmax"]))
    Q = P + 4
    if o["rep3"]: A("v_add_u32 %s, 0x2000, %s" % (vS3, vL3))
    LB("L_poll3")
    A("global_load_dwordx4 v[%d:%d], %s, %s sc1" % (P, P + 3, vL3, sWS))
    if o["rep3"]: A("global_load_dwordx4 v[%d:%d], %s, %s sc1" % (Q, Q + 3, vS3, sWS))
    A("s_sub_u32 %s, %s, 1" % (sCNT, sCNT))
    A("s_cbranch_scc1 L_end")
    if o["rep3"]:
        A("s_waitcnt vmcnt(1)")
        A("v_cmp_ne_u32 s[44:45], %s, v%d" % (sTAG, P + 3))
        A("s_and_b64 exec, exec, s[44:45]")
        A("s_cbranch_scc0 L_got3")
        A("s_waitcnt vmcnt(0)")
        A("v_cmp_ne_u32 vcc, %s, v%d" % (sTAG, Q + 3))
        A("v_mov_b32 v%d, v%d" % (P, Q))
        A("v_mov_b32 v%d, v%d" % (P + 1, Q + 1))
        A("s_and_b64 exec, exec, vcc")
        A("s_cbranch_scc1 L_poll3")
        LB("L_got3")
    else:
        A("s_waitcnt vmcnt(0)")
        A("v_cmp_ne_u32 vcc, %s, v%d" % (sTAG, P + 3))
        A("s_and_b64 exec, exec, vcc")
        A("s_cbranch_scc1 L_poll3")
    stamp(10)
    A("s_mov_b32 exec_lo, -1")
    A("v_lshlrev_b32 %s, 16, %s" % (tA, vXP))
    A("v_and_b32 %s, %s, %s" % (tB, t1, vXP))
    for pat in ("quad_perm:[1,0,3,2]", "quad_perm:[2,3,0,1]", "row_half_mirror"):
        A("v_add_f32_dpp %s, %s, %s %s %s" % (x_, x_, x_, pat, DPP))
        A("v_add_f32_dpp %s, %s, %s %s %s" % (y_, y_, y_, pat, DPP))
        if pat != "row_half_mirror": A("s_nop 0")
    A("v_add_f32 %s, %s, %s" % (x_, x_, tA))
    A("v_add_f32 %s, %s, %s" % (y_, y_, tB))
    A("v_cvt_pk_bf16_f32 %s, %s, %s" % (x_, x_, y_))
    A("s_mov_b64 exec, 0x10001")
    A("global_store_dword %s, %s, %s" % (vXF, x_, sOUT))
    A("s_or_b32 %s, s2, %s" % (t0, sW))
    A("s_cbranch_scc1 L_done")
    C("the next launch must not mistake this launch's hand-off words for its own")
    A("v_mov_b32 %s, 0" % tA)
    A("v_mov_b32 %s, %s" % (tB, sTAG))
    A("global_store_dword %s, %s, %s sc1" % (tA, tB, sWS))
    LB("L_done")
    if o.get("amp"):
        if o["amp"] == "end": A("s_memrealtime s[88:89]")
        A("s_waitcnt lgkmcnt(0)")
        A("s_sub_u32 s88, s88, s90")
        A("s_mul_i32 s88, s88, 10")
        A("s_min_u32 s88, s88, 20000")
        A("s_add_u32 s88, s88, 1500")
        LB("L_ampspin")
        A("s_memrealtime s[92:93]")
        A("s_waitcnt lgkmcnt(0)")
        A("s_sub_u32 s92, s92, s90")
        A("s_cmp_lt_u32 s92, s88")
        A("s_cbranch_scc1 L_ampspin")
    if o.get("pad"):
        LB("L_padspin")
        A("s_memrealtime s[92:93]")
        A("s_waitcnt lgkmcnt(0)")
        A("s_sub_u32 s92, s92, s90")
        A("s_cmp_lt_u32 s92, %d" % o["pad"])
        A("s_cbranch_scc1 L_padspin")
    dump_stamps()
    A("s_endpgm")
    for name, addr, g in tails:
        LB("L_slow_%s" % name)
        A("global_store_dwordx4 %s, v[%d:%d], %s sc1" % (addr, g, g + 3, sWS))
        A("s_branch L_back_%s" % name)
    LB("L_end")
    A("s_endpgm")
    return HEADER.format(lds=o.get("lds", LDS_BYTES), k=KNAME) + "\n".join(L) + FOOTER.format(k=KNAME, vg=o.get("vg", 168), sg=96)


if __name__ == "__main__":
    kw = {}
    out = "parallel_sum__sliding_block_cached__swiglu_ffn__decode.s"
    for a in sys.argv[1:]:
        k, v = a.split("=", 1)
        if k == "out": out = v; continue
        try: v = int(v)
        except ValueError: pass
        kw[k] = v
    open(out, "w").write(gen(**kw))
```

```python
import sys

KNAME = "parallel_sum__sliding_block_cached__swiglu_ffn__decode_kernel"

HEADER = """; Kernarg layout for this problem (96 bytes, ptrs only, base s[0:1]):
;   offset  72: d_out     shape=(1, 1, 512) dtype=bfloat16
; @launch grid=(256,1,1) block=(320,1,1) lds={lds}
.amdgcn_target "amdgcn-amd-amdhsa--gfx950"
.text
.globl {k}
.p2align 8
.type {k},@function
{k}:
"""
FOOTER = """
.section .rodata,"a"
.p2align 6
.amdhsa_kernel {k}
  .amdhsa_next_free_vgpr {vg}
  .amdhsa_next_free_sgpr {sg}
  .amdhsa_accum_offset {vg}
  .amdhsa_group_segment_fixed_size 0
  .amdhsa_kernarg_size 96
  .amdhsa_user_sgpr_count 2
  .amdhsa_user_sgpr_kernarg_segment_ptr 1
  .amdhsa_system_sgpr_workgroup_id_x 1
.end_amdhsa_kernel
"""

MB1A = 0x40000
MB1B = 0x80000
MB2 = 0x100000
MB25 = 0x180000
MB3 = 0x200000
STAMPS = 0x10000000
L_WQ = 0
L_FF = 16384
L_XN = 32768
L_Q = 33792
L_H = 34816
L_FLAG = 34848
L_ML = 34880
L_O = 35072
L_K = L_O + 8192
L_K = (L_K + 1023) // 1024 * 1024
LDS_BYTES = L_K + 32768
TAGC = 0x9E3779B9
LOG2E = 0x3FB8AA3B
SCALE = 0x3DB504F3
EPS = 0x3727C5AC
DPP = "row_mask:0xf bank_mask:0xf"

DEF = dict(stamps=False, spinmax=200000, WK=5, W=6, Wtail=8, b0pos=45, nt="nt", pretouch="k", atries=24,
           prefetch=True, b2=7, ntail0=0, tlag=0, mask2=True, pt1=True, rotm=4, rep3=False, tsp="", auxearly=True, hlate=False)


def gen(**kw):
    o = dict(DEF); o.update(kw)
    L = []
    def A(s): L.append("    " + s)
    def LB(s): L.append(s + ":")
    def C(s): L.append("    ; " + s)
    nt = o["nt"]
    NSTAMP = 12
    role = ["U"]
    def stamp(i):
        if o.get("amp") == "%s%d" % (role[0], i): A("s_memrealtime s[88:89]" if not o.get("cyc") else "s_memtime s[88:89]")
        if o.get("amp0") == "%s%d" % (role[0], i): A("s_memrealtime s[86:87]" if not o.get("cyc") else "s_memtime s[86:87]")
        if o["stamps"] and (i in (0, 11) or o.get("sel") is None or ("%s%d" % (role[0], i)) in o["sel"].split(",")):
            A("s_memrealtime s[%d:%d]" % (64 + 2 * i, 65 + 2 * i))
    def mfma(d, a, b, c):
        A("v_mfma_f32_16x16x32_bf16 v[%d:%d], v[%d:%d], v[%d:%d], %s" % (d, d + 3, a, a + 3, b, b + 3, "0" if c is None else "v[%d:%d]" % (c, c + 3)))
    def mfma16(d, a, b, c):
        A("v_mfma_f32_16x16x16_bf16 v[%d:%d], v[%d:%d], v[%d:%d], %s" % (d, d + 3, a, a + 1, b, b + 1, "0" if c is None else "v[%d:%d]" % (c, c + 3)))
    def allred(v, tmp, op, which):
        A("v_mov_b32 %s, %s" % (tmp, v))
        A("s_nop 1")
        A("v_permlane%d_swap_b32 %s, %s" % (which, tmp, v))
        A("%s %s, %s, %s" % (op, v, v, tmp))
    sX, sK, sV, sWQ, sWO, sG, sU, sDN, sOUT, sWS = "s[4:5]", "s[6:7]", "s[8:9]", "s[10:11]", "s[12:13]", "s[16:17]", "s[18:19]", "s[20:21]", "s[22:23]", "s[26:27]"
    sW, sH, sJ, sTAG, sXCC, sCNT, sFAST = "s30", "s31", "s32", "s33", "s34", "s35", "s36"
    t0, t1, t2, t3 = "s37", "s38", "s39", "s40"
    def dump_stamps():
        if not o["stamps"]: return
        A("s_mov_b64 exec, 1")
        stamp(11)
        A("s_waitcnt lgkmcnt(0)")
        A("s_mul_i32 %s, s2, 5" % t0)
        A("s_add_u32 %s, %s, %s" % (t0, t0, sW))
        A("s_lshl_b32 %s, %s, 7" % (t0, t0))
        A("s_add_u32 %s, %s, 0x%x" % (t0, t0, STAMPS))
        A("v_mov_b32 v2, %s" % t0)
        for i in range(NSTAMP):
            A("v_mov_b32 v3, s%d" % (64 + 2 * i))
            A("global_store_dword v2, v3, %s offset:%d" % (sWS, 4 * i))
        A("v_mov_b32 v3, %s" % (sCNT if role[0] == "U" or not o.get("bal") else "s62"))
        A("global_store_dword v2, v3, %s offset:%d" % (sWS, 4 * NSTAMP))
        if o.get("dbgfail"):
            for q_, r_ in enumerate(("s84", "s62", "s63")):
                A("v_mov_b32 v3, %s" % r_)
                A("global_store_dword v2, v3, %s offset:%d" % (sWS, 4 * NSTAMP + 8 + 4 * q_))
        A("s_getreg_b32 %s, hwreg(HW_REG_HW_ID)" % t1)
        A("v_mov_b32 v3, %s" % t1)
        A("global_store_dword v2, v3, %s offset:%d" % (sWS, 4 * NSTAMP + 4))

    stamp(0)
    if o.get("pad") or o.get("bal") or o.get("amp"): A("s_memrealtime s[90:91]")
    A("s_cmp_ge_u32 s2, 256")
    A("s_cbranch_scc1 L_end")
    A("s_load_dwordx16 s[4:19], s[0:1], 0")
    A("s_load_dwordx8 s[20:27], s[0:1], 64")
    A("v_lshrrev_b32 v1, 6, v0")
    A("v_and_b32 v0, 63, v0")
    A("v_readfirstlane_b32 %s, v1" % sW)
    A("s_and_b32 %s, s2, 7" % sH)
    A("s_lshr_b32 %s, s2, 3" % sJ)
    if o.get("bal"):
        A("s_or_b32 %s, %s, %s" % (t0, sJ, sW))
        A("s_cbranch_scc1 L_noflag")
        A("s_lshl_b32 %s, %s, 2" % (t0, sH))
        A("v_mov_b32 v108, %s" % t0)
        A("s_waitcnt lgkmcnt(0)")
        A("s_or_b32 %s, s90, 1" % t0)
        A("v_mov_b32 v109, %s" % t0)
        A("global_store_dword v108, v109, s[24:25] sc1")
        LB("L_noflag")
    A("s_cmp_eq_u32 %s, 4" % sW)
    A("s_cbranch_scc0 L_attn")

    C("wave 4: layernorm, one [128 x 64] tile of wq and one of gate/up, exchange of q and of the FFN hidden values")
    A("s_setprio 3")
    if o["prefetch"]:
        A("s_getpc_b64 s[28:29]")
        LB("L_pc")
        A("v_lshlrev_b32 v2, 7, v0")
        A("v_min_u32 v2, L_end-L_pc, v2")
        A("global_load_dword v127, v2, s[28:29]")
    sQK, sNOFF = "s50", "s51"
    A("v_lshlrev_b32 v3, 4, v0")
    A("v_lshrrev_b32 v6, 3, v0")
    A("v_and_b32 v5, 2, v6")
    A("v_and_b32 v7, 7, v0")
    A("v_xor_b32 v5, v5, v7")
    A("v_lshlrev_b32 v7, 4, v5")
    A("s_and_b32 %s, %s, 3" % (sQK, sJ))
    A("s_lshl_b32 %s, %s, 10" % (t0, sH))
    A("s_lshr_b32 %s, %s, 2" % (t1, sJ))
    A("s_lshl_b32 %s, %s, 7" % (t1, t1))
    A("s_lshl_b32 %s, %s, 20" % (t2, sQK))
    A("s_add_u32 %s, %s, %s" % (t0, t0, t1))
    A("s_add_u32 %s, %s, %s" % (t0, t0, t2))
    A("v_lshl_add_u32 v4, v6, 13, v7")
    A("v_add_u32 v4, %s, v4" % t0)
    A("v_xor_b32 v5, 64, v4")
    A("v_add_u32 v5, 0x10000, v5")
    if o["pt1"]:
        C("pull this workgroup's own hand-off lines into L2 before anyone polls them")
        A("s_lshl_b32 %s, %s, 15" % (t0, sH))
        A("s_lshl_b32 %s, %s, 8" % (t1, sJ))
        A("s_add_u32 %s, %s, %s" % (t0, t0, t1))
        A("s_add_u32 %s, %s, 0x%x" % (t0, t0, MB1A))
        A("v_and_b32 v33, 1, v0")
        A("v_bfe_u32 v32, v0, 1, 1")
        A("v_lshlrev_b32 v33, 7, v33")
        A("v_lshl_add_u32 v33, v32, 13, v33")
        A("s_mul_i32 %s, %s, 240" % (t1, sJ))
        A("s_sub_u32 %s, 0x4000, %s" % (t1, t1))
        A("v_cmp_lt_u32 vcc, 3, v0")
        A("v_mov_b32 v32, %s" % t1)
        A("s_nop 0")
        A("v_cndmask_b32 v33, v33, v32, vcc")
        A("v_add_u32 v33, %s, v33" % t0)
    A("s_mov_b32 m0, %d" % L_WQ)
    A("s_mov_b32 %s, 0x20000" % t1)
    if o.get("ucontig"):
        A("s_lshl_b32 %s, s2, 10" % t0)
        A("v_add_u32 v4, %s, v3" % t0)
        A("v_add_u32 v5, 0x40000, v4")
        A("s_mov_b32 %s, 0x80000" % t1)
    A("s_movk_i32 s41, 1024")
    A("s_waitcnt lgkmcnt(0)")
    A("global_load_dwordx4 v[8:11], v3, %s" % sX)
    A("s_load_dword %s, %s, 0" % (sTAG, sWS))
    if o["pt1"]:
        A("global_load_dword v119, v33, %s sc1" % sWS)
    def dma_loop(name, base, step):
        A("s_mov_b32 %s, 4" % t2)
        LB(name)
        for i in range(4):
            vv = ("v4", "v5")[i & 1]
            A("global_load_lds_dwordx4 %s, %s %s" % (vv, base, nt))
            A("s_add_u32 m0, m0, s41")
            A("v_add_u32 %s, %s, %s" % (vv, step, vv))
        A("s_sub_u32 %s, %s, 1" % (t2, t2))
        A("s_cmp_lg_u32 %s, 0" % t2)
        A("s_cbranch_scc1 %s" % name)
    dma_loop("L_wq_loop", sWQ, t1)
    if o["b0pos"] == 16: A("s_barrier")
    A("s_mul_i32 %s, %s, 7" % (t0, sH))
    A("s_add_u32 %s, %s, 1" % (t0, t0))
    A("s_lshr_b32 %s, %s, 1" % (t0, t0))
    A("s_lshr_b32 %s, %s, 3" % (t1, sJ))
    A("s_add_u32 %s, %s, %s" % (t0, t0, t1))
    A("s_mul_i32 %s, %s, 3584" % (t1, sQK))
    A("s_add_u32 %s, %s, %s" % (t0, t0, t1))
    A("s_lshl_b32 %s, %s, 7" % (t0, t0))
    A("v_mul_u32_u24 v4, 3584, v6")
    A("v_add3_u32 v4, v4, v7, %s" % t0)
    A("v_xor_b32 v5, 64, v4")
    A("v_add_u32 v5, %d, v5" % (8 * 3584))
    A("s_mov_b32 %s, %d" % (t1, 16 * 3584))
    if o.get("ucontig"):
        A("s_lshr_b32 %s, s2, 1" % t0)
        A("s_min_u32 %s, %s, 111" % (t0, t0))
        A("s_lshl_b32 %s, %s, 10" % (t0, t0))
        A("v_add_u32 v4, %s, v3" % t0)
        A("v_add_u32 v5, %d, v4" % (112 * 1024))
        A("s_mov_b32 %s, %d" % (t1, 224 * 1024))
    A("s_bitcmp0_b32 %s, %d" % (("s2", 0) if o.get("ucontig") else (sJ, 2)))
    A("s_cselect_b64 s[42:43], %s, %s" % (sG, sU))
    A("s_and_b32 %s, %s, 1" % (t3, sH))
    A("s_lshl_b32 %s, %s, 3" % (t0, t3))
    A("s_add_u32 %s, %s, %s" % (sNOFF, t0, sJ))
    A("s_cmp_ge_u32 %s, 32" % sNOFF)
    A("s_cselect_b64 exec, 1, -1")
    dma_loop("L_ff_loop", "s[42:43]", t1)
    A("s_mov_b64 exec, -1")
    def tlbwarm():
        C("first touch of the pages the later loads use (address translation early, off their queue)")
        A("s_lshl_b32 %s, %s, 24" % (t0, sH))
        A("s_add_u32 %s, %s, 0xF00000" % (t0, t0))
        A("v_mov_b32 v112, %s" % t0)
        A("s_lshl_b32 %s, %s, 19" % (t0, sH))
        A("v_mov_b32 v113, %s" % t0)
        A("s_mul_i32 %s, %s, 0x38000" % (t0, sH))
        A("v_mov_b32 v114, %s" % t0)
        A("v_mov_b32 v115, 0x%x" % MB3)
        A("s_mov_b64 exec, 1")
        A("global_load_dword v116, v112, %s" % sK)
        A("global_load_dword v117, v112, %s" % sV)
        A("global_load_dword v118, v113, %s" % sWO)
        A("global_load_dword v111, v114, %s" % sDN)
        A("global_load_dword v110, v115, %s" % sWS)
        A("s_mov_b64 exec, -1")
    NW = 0
    if o.get("tlbw") == 2:
        tlbwarm(); NW = 5
    if o["b0pos"] == 32:
        if o.get("b0wait") is not None: A("s_waitcnt vmcnt(%d)" % o["b0wait"])
        A("s_barrier")
    stamp(1)
    XF = 12
    A("s_mov_b32 %s, 0xffff0000" % t1)
    A("s_waitcnt vmcnt(%d)" % ((33 if o["pt1"] else 32) + NW))
    stamp(2)
    C("layernorm with the reference's bf16 roundings")
    for i in range(4):
        A("v_lshlrev_b32 v%d, 16, v%d" % (XF + 2 * i, 8 + i))
        A("v_and_b32 v%d, %s, v%d" % (XF + 2 * i + 1, t1, 8 + i))
    fill = []
    def F(s): fill.append(s)
    def nop2():
        n = 0
        while fill and n < 2:
            A(fill.pop(0)); n += 1
        if n < 2: A("s_nop %d" % (1 - n))
    TRB = 120
    vAX, vS1, vL1, vL1x, vL1a, vF, vTN, vTB = "v34", "v35", "v36", "v37", "v38", "v39", "v124", "v125"
    sRP, sB1 = "s52", "s53"
    F("v_lshrrev_b32 v126, 4, v0")
    F("v_bfe_u32 v4, v0, 2, 2")
    F("v_lshl_add_u32 v5, v126, 3, v4")
    F("v_and_b32 v6, 3, v0")
    F("v_lshlrev_b32 v7, 3, v6")
    F("v_lshl_add_u32 v5, v5, 7, v7")
    F("v_bfe_u32 v4, v0, 3, 2")
    for ct in range(4):
        F("v_xor_b32 v7, %d, v4" % ct)
        F("v_lshl_add_u32 v%d, v7, 5, v5" % (TRB + ct))
    F("s_lshl_b32 %s, %s, 8" % (t0, sQK))
    F("v_lshl_add_u32 %s, v126, 4, %s" % (vAX, t0))
    F("s_lshl_b32 %s, %s, 15" % (sB1, sH))
    F("s_add_u32 %s, %s, 0x%x" % (sB1, sB1, MB1A))
    def wavesum(v, tmp):
        for rot in (1, 2, 4, 8):
            nop2()
            A("v_add_f32_dpp %s, %s, %s row_ror:%d %s" % (v, v, v, rot, DPP))
        for which in (16, 32):
            A("v_mov_b32 %s, %s" % (tmp, v))
            nop2()
            A("v_permlane%d_swap_b32 %s, %s" % (which, tmp, v))
            A("v_add_f32 %s, %s, %s" % (v, v, tmp))
    def P2(r): return "v[%d:%d]" % (r, r + 1)
    A("v_pk_add_f32 v[22:23], %s, %s" % (P2(XF), P2(XF + 2)))
    A("v_pk_add_f32 v[24:25], %s, %s" % (P2(XF + 4), P2(XF + 6)))
    A("v_pk_add_f32 v[22:23], v[22:23], v[24:25]")
    A("v_add_f32 v22, v22, v23")
    wavesum("v22", "v23")
    A("v_mul_f32 v22, 0x3b000000, v22")
    DV = 24
    for i in range(4):
        A("v_pk_add_f32 %s, %s, v[22:23] op_sel_hi:[1,0] neg_lo:[0,1] neg_hi:[0,1]" % (P2(DV + 2 * i), P2(XF + 2 * i)))
    A("v_cvt_pk_bf16_f32 v22, 0, v22")
    A("v_pk_mul_f32 v[32:33], %s, %s" % (P2(DV), P2(DV)))
    for i in range(1, 4):
        A("v_pk_fma_f32 v[32:33], %s, %s, v[32:33]" % (P2(DV + 2 * i), P2(DV + 2 * i)))
    A("v_add_f32 v32, v32, v33")
    pre = ["v_pk_add_f32 %s, %s, v[22:23] op_sel_hi:[1,0] neg_lo:[0,1] neg_hi:[0,1]" % (P2(XF + 2 * i), P2(XF + 2 * i)) for i in range(4)]
    pre += ["v_cvt_pk_bf16_f32 v%d, 0, v%d" % (XF + i, XF + i) for i in range(8)]
    rest = fill[:]; fill[:] = pre
    wavesum("v32", "v33")
    fill[:] = fill + rest
    A("v_mul_f32 v32, 0x3b000000, v32")
    A("v_cvt_pk_bf16_f32 v32, 0, v32")
    A("v_add_f32 v32, 0x%x, v32" % EPS)
    A("v_cvt_pk_bf16_f32 v32, 0, v32")
    A("v_sqrt_f32 v32, v32")
    A(fill.pop(0))
    A("v_cvt_pk_bf16_f32 v32, 0, v32")
    A("v_rcp_f32 v32, v32")
    A(fill.pop(0))
    for i in range(4):
        A("v_pk_mul_f32 %s, %s, v[32:33] op_sel_hi:[1,0]" % (P2(XF + 2 * i), P2(XF + 2 * i)))
    for i in range(4):
        A("v_cvt_pk_bf16_f32 v%d, v%d, v%d" % (8 + i, XF + 2 * i, XF + 2 * i + 1))
    A("ds_write_b128 v3, v[8:11] offset:%d" % L_XN)
    while fill: A(fill.pop(0))
    A("s_lshl_b32 %s, %s, 8" % (t2, sJ))
    A("s_add_u32 %s, %s, %s" % (t2, t2, sB1))
    A("v_lshrrev_b32 v4, 2, v0")
    A("v_lshl_add_u32 %s, v4, 4, %s" % (vS1, t2))
    A("s_waitcnt lgkmcnt(0)")
    AF = 40
    for m in range(4):
        A("ds_read_b128 v[%d:%d], %s offset:%d" % (AF + 4 * m, AF + 4 * m + 3, vAX, L_XN + m * 64))
    A("s_add_u32 %s, %s, 0x%x" % (sTAG, sTAG, TAGC))
    A("v_lshlrev_b32 v4, 2, v6")
    A("v_lshrrev_b32 %s, v4, %s" % (vTN, sTAG))
    A("v_and_b32 %s, 15, %s" % (vTN, vTN))
    A("v_lshlrev_b32 v4, 3, v6")
    A("v_lshrrev_b32 %s, v4, %s" % (vTB, sTAG))
    A("v_and_b32 %s, 0xff, %s" % (vTB, vTB))
    A("s_mov_b32 s44, 0")
    A("s_mov_b32 s45, -1")
    if o["b0pos"] == 40: A("s_barrier")
    stamp(3)
    BF = 56
    D0 = 88
    GR = 24
    def gemv(lbase, vm0):
        def rd(m, ct):
            b = BF + 16 * (m & 1)
            for hh in range(2):
                A("ds_read_b64_tr_b16 v[%d:%d], v%d offset:%d" % (b + 4 * ct + 2 * hh, b + 4 * ct + 2 * hh + 1, TRB + ct, lbase + m * 4096 + hh * 512))
        A("s_waitcnt vmcnt(%d)" % (vm0 + 12))
        for ct in range(4): rd(0, ct)
        for m in range(4):
            b = BF + 16 * (m & 1)
            if m < 3: A("s_waitcnt vmcnt(%d)" % (vm0 + 8 - 4 * m))
            for ct in range(4):
                A("s_waitcnt lgkmcnt(%d)" % (6 if m < 3 else 6 - 2 * ct))
                mfma(D0 + 4 * ct, AF + 4 * m, b + 4 * ct, None if m == 0 else D0 + 4 * ct)
                if m < 3: rd(m + 1, ct)
    def pack(maskc, vt):
        A("s_mov_b32 vcc_lo, 0xffff0000")
        A("s_mov_b32 vcc_hi, 0xffff0000")
        A("s_movk_i32 %s, 0x%x" % (t0, maskc))
        A("s_nop 2")
        A("v_cndmask_b32 v%d, v%d, v%d, vcc" % (GR, D0, D0 + 4))
        A("s_nop 0")
        A("v_cndmask_b32 v%d, v%d, v%d, vcc" % (GR + 1, D0 + 8, D0 + 12))
        A("v_cndmask_b32 v%d, v%d, v%d, s[44:45]" % (GR, GR, GR + 1))
        A("v_and_or_b32 v%d, v%d, %s, %s" % (GR, GR, t0, vt))
        A("v_add_u32 v22, 0x%x, %s" % (MB1B - MB1A, vS1))
        A("s_nop 0")
        for k in range(1, 4):
            A("v_mov_b32_dpp v%d, v%d quad_perm:[%d,%d,%d,%d] %s" % (GR + k, GR, k, k, k, k, DPP))
        A("s_mov_b32 exec_lo, 0x11111111")
        A("s_mov_b32 exec_hi, 0x11111111")
        A("global_store_dwordx4 %s, v[%d:%d], %s" % (vS1, GR, GR + 3, sWS))
        A("global_store_dwordx4 v22, v[%d:%d], %s sc1" % (GR, GR + 3, sWS))
        A("s_mov_b64 exec, -1")
    gemv(L_WQ, 16 + NW)
    if o["b0pos"] == 45: A("s_barrier")
    pack(0xfff0, vTN)
    stamp(4)
    XG = 28
    A("s_getreg_b32 %s, hwreg(HW_REG_XCC_ID, 0, 4)" % sXCC)
    A("s_and_b32 %s, %s, 0xff" % (t0, sTAG))
    A("s_lshl_b32 %s, %s, 8" % (t2, sXCC))
    A("s_or_b32 s54, %s, %s" % (t0, t2))
    A("v_mov_b32 v%d, s54" % XG)
    for k in range(1, 4):
        A("s_bfe_u32 %s, %s, 0x%x" % (t0, sTAG, 0x80000 | (8 * k)))
        A("v_mov_b32 v%d, %s" % (XG + k, t0))
    A("s_lshl_b32 %s, %s, 4" % (t2, sJ))
    A("s_add_u32 %s, %s, %s" % (t2, t2, sB1))
    A("s_add_u32 %s, %s, 0x4000" % (t2, t2))
    A("v_mov_b32 v22, %s" % t2)
    A("v_add_u32 v23, 0x%x, v22" % (MB1B - MB1A))
    A("s_mov_b64 exec, 1")
    A("global_store_dwordx4 v22, v[%d:%d], %s" % (XG, XG + 3, sWS))
    A("global_store_dwordx4 v23, v[%d:%d], %s sc1" % (XG, XG + 3, sWS))
    A("s_mov_b64 exec, -1")
    if o["b0pos"] == 50: A("s_barrier")
    A("v_add_u32 %s, 0x2000, %s" % (vS1, vS1))
    A("s_cmp_ge_u32 %s, 32" % sNOFF)
    A("s_cbranch_scc1 L_noff2")
    gemv(L_FF, 4 + NW)
    pack(0xff00, vTB)
    LB("L_noff2")
    stamp(7)
    if o.get("nosync"):
        A("s_barrier")
        A("s_mov_b32 %s, 0" % sCNT)
        dump_stamps()
        A("s_endpgm")
    A("v_and_b32 v4, 15, v0")
    A("v_lshlrev_b32 v4, 4, v4")
    A("v_lshl_add_u32 v4, v126, 10, v4")
    A("s_add_u32 %s, %s, 2432" % (t0, sB1))
    A("v_add_u32 %s, %s, v4" % (vL1, t0))
    A("v_and_b32 v4, 31, v0")
    A("s_add_u32 %s, %s, 0x4000" % (t0, sB1))
    A("v_lshl_add_u32 %s, v4, 4, %s" % (vL1x, t0))
    A("s_lshl_b32 %s, %s, 1" % (t2, t3))
    A("s_sub_u32 %s, 8, %s" % (sRP, t2))
    A("s_mul_i32 %s, %s, %s" % (t2, sRP, sJ))
    A("s_sub_u32 %s, %s, 1" % (t0, sRP))
    A("v_and_b32 v4, 7, v0")
    A("v_min_u32 v4, %s, v4" % t0)
    A("v_add_u32 %s, %s, v4" % (vF, t2))
    A("v_lshrrev_b32 v4, 6, %s" % vF)
    A("v_bfe_u32 v5, v0, 3, 1")
    A("v_lshl_add_u32 v4, v4, 1, v5")
    A("v_lshl_add_u32 v4, v4, 2, v126")
    A("v_bfe_u32 v5, %s, 2, 4" % vF)
    A("v_lshlrev_b32 v5, 4, v5")
    A("v_lshl_add_u32 v4, v4, 8, v5")
    A("s_add_u32 %s, %s, 0x2000" % (t0, sB1))
    A("v_add_u32 %s, %s, v4" % (vL1a, t0))
    for k in range(4):
        A("s_bfe_u32 s%d, %s, 0x%x" % (56 + k, sTAG, 0x40000 | (4 * k)))
    A("s_mov_b32 s60, 0x0c0c0400")
    A("s_mov_b32 s61, 0x04000c0c")
    P = 40
    PX, PA_ = 72, 76
    A("s_mov_b32 %s, 0" % sCNT)
    def switch_copy(regs):
        A("s_add_u32 %s, %s, 1" % (sCNT, sCNT))
        A("s_cmp_eq_u32 %s, %d" % (sCNT, o["atries"]))
        A("s_cselect_b32 %s, 0x%x, 0" % (t0, MB1B - MB1A))
        for r in regs: A("v_add_u32 %s, %s, %s" % (r, t0, r))
        A("s_cmp_gt_u32 %s, %d" % (sCNT, o["spinmax"]))
        A("s_cbranch_scc1 L_end")
    def bytecheck(p, dst):
        A("v_perm_b32 v22, v%d, v%d, s60" % (p + 1, p))
        A("v_perm_b32 v23, v%d, v%d, s61" % (p + 3, p + 2))
        A("v_or_b32 v22, v22, v23")
        A("v_cmp_ne_u32 %s, %s, v22" % (dst, sTAG))
    stamp(9)
    LB("L_poll1")
    stamp(8)
    for i in range(2):
        for q in range(4):
            r = P + 16 * i + 4 * q
            A("global_load_dwordx4 v[%d:%d], %s, %s offset:%d sc1" % (r, r + 3, vL1, sWS, i * 4096 + q * 256 - 2432))
    A("global_load_dwordx4 v[%d:%d], %s, %s sc1" % (PX, PX + 3, vL1x, sWS))
    A("global_load_dwordx4 v[%d:%d], %s, %s sc1" % (PA_, PA_ + 3, vL1a, sWS))
    switch_copy([vL1, vL1x, vL1a])
    for g_ in range(8):
        A("s_waitcnt vmcnt(%d)" % (9 - g_))
        for k in range(4):
            A("v_xor_b32 v%d, s%d, v%d" % (P + 4 * g_ + k, 56 + k, P + 4 * g_ + k))
        if g_ == 0:
            A("v_or3_b32 v21, v%d, v%d, v%d" % (P, P + 1, P + 2))
            A("v_or_b32 v21, v21, v%d" % (P + 3))
        else:
            A("v_or3_b32 v21, v21, v%d, v%d" % (P + 4 * g_, P + 4 * g_ + 1))
            A("v_or3_b32 v21, v21, v%d, v%d" % (P + 4 * g_ + 2, P + 4 * g_ + 3))
    A("v_and_b32 v21, 15, v21")
    A("s_waitcnt vmcnt(1)")
    bytecheck(PX, "vcc")
    A("v_cmp_ne_u32 s[46:47], 0, v21")
    if o.get("dbgfail"):
        A("s_cmp_eq_u32 %s, 1" % sCNT)
        A("s_cselect_b32 s84, vcc_lo, s84")
        A("s_cselect_b32 s62, s46, s62")
        A("s_cselect_b32 s63, s47, s63")
    A("s_or_b64 vcc, vcc, s[46:47]")
    A("s_cbranch_vccnz L_poll1")
    stamp(5)
    for i in range(2):
        b = P + 16 * i
        for k in range(4):
            A("v_add_f32 v%d, v%d, v%d" % (b + k, b + k, b + 4 + k))
            A("v_add_f32 v%d, v%d, v%d" % (b + 8 + k, b + 8 + k, b + 12 + k))
        for k in range(4):
            A("v_add_f32 v%d, v%d, v%d" % (b + k, b + k, b + 8 + k))
        A("v_cvt_pk_bf16_f32 v%d, v%d, v%d" % (b, b, b + 1))
        A("v_cvt_pk_bf16_f32 v%d, v%d, v%d" % (b + 1, b + 2, b + 3))
    A("v_lshlrev_b32 v22, 3, v0")
    A("ds_write_b64 v22, v[%d:%d] offset:%d" % (P, P + 1, L_Q))
    A("ds_write_b64 v22, v[%d:%d] offset:%d" % (P + 16, P + 17, L_Q + 512))
    A("v_cmp_ne_u32 vcc, s54, v%d" % PX)
    A("s_cmp_eq_u64 vcc, 0")
    A("s_cselect_b32 %s, 1, 0" % sFAST)
    if o.get("forceslow"): A("s_mov_b32 %s, 0" % sFAST)
    A("v_mov_b32 v26, %s" % sFAST)
    A("v_mov_b32 v22, %d" % L_FLAG)
    A("ds_write_b32 v22, v26")
    if o["auxearly"]:
        A("s_waitcnt vmcnt(0)")
        bytecheck(PA_, "vcc")
        A("s_cbranch_vccz L_aux_b1")
        A("global_load_dwordx4 v[%d:%d], %s, %s sc1" % (PA_, PA_ + 3, vL1a, sWS))
        LB("L_aux_b1")
    A("s_waitcnt lgkmcnt(0)")
    A("s_barrier")
    if o["hlate"]:
        A("s_setprio %d" % o.get("hprio", 0))
        A("s_barrier")
        A("s_barrier")
    A("s_branch L_chk_aux")
    LB("L_poll_aux")
    A("global_load_dwordx4 v[%d:%d], %s, %s sc1" % (PA_, PA_ + 3, vL1a, sWS))
    switch_copy([vL1a])
    LB("L_chk_aux")
    A("s_waitcnt vmcnt(0)")
    bytecheck(PA_, "vcc")
    A("s_cbranch_vccnz L_poll_aux")
    A("s_movk_i32 %s, 0xff00" % t0)
    A("v_and_b32 v23, 1, %s" % vF)
    A("v_cmp_eq_u32 vcc, 0, v23")
    A("v_and_b32 v23, 2, %s" % vF)
    A("v_cmp_eq_u32 s[46:47], 0, v23")
    A("v_cndmask_b32 v24, v%d, v%d, vcc" % (PA_ + 1, PA_))
    A("v_cndmask_b32 v25, v%d, v%d, vcc" % (PA_ + 3, PA_ + 2))
    A("v_cndmask_b32 v24, v25, v24, s[46:47]")
    A("v_and_b32 v24, %s, v24" % t0)
    allred("v24", "v23", "v_add_f32", 16)
    allred("v24", "v23", "v_add_f32", 32)
    A("v_cvt_pk_bf16_f32 v24, v24, v24")
    A("v_and_b32 v24, %s, v24" % t1)
    A("v_mul_f32 v25, 0x%x, v24" % (LOG2E | 0x80000000))
    A("v_exp_f32 v25, v25")
    A("v_mov_b32_dpp v26, v24 row_ror:8 %s" % DPP)
    A("v_add_f32 v25, 1.0, v25")
    A("v_rcp_f32 v25, v25")
    A("v_cmp_le_u32 vcc, %s, v0" % sRP)
    A("v_mul_f32 v25, v24, v25")
    A("v_cvt_pk_bf16_f32 v25, v25, v25")
    A("v_and_b32 v25, %s, v25" % t1)
    A("v_mul_f32 v25, v25, v26")
    A("v_cvt_pk_bf16_f32 v25, v25, v25")
    A("v_cndmask_b32 v25, v25, 0, vcc")
    A("v_lshlrev_b32 v22, 2, v0")
    A("s_mov_b64 exec, 0xff")
    A("ds_write_b32 v22, v25 offset:%d" % L_H)
    A("s_waitcnt lgkmcnt(0)")
    stamp(6)
    dump_stamps()
    A("s_endpgm")

    role[0] = "A"
    LB("L_attn")
    vK0, vK1, vV0, vV1 = "v2", "v3", "v4", "v5"
    vWO0, vWO1, vDN0, vDN1, vXF, vXP = "v6", "v7", "v8", "v9", "v10", "v1"
    vS2, vL2, vS25, vL25, vL3, vS3 = "v11", "v12", "v13", "v14", "v15", "v150"
    KR, VR, WOR, DNR, QR, SR, PA, MK = 16, 48, 80, 96, 104, 120, 128, 146
    vM0, vM1, vQA, vOW, vOR, vMLW, vHA = "v151", "v152", "v153", "v154", "v155", "v156", "v157"
    vN, vG, vN16, vP = "v120", "v121", "v122", "v123"
    u0, u1 = "v124", "v125"
    s4JW = "s41"
    C("K and V: load i = 1 KB block (4 keys) number 128 i + 4j + w of the head's window; K goes through LDS")
    A("s_lshl_b32 %s, %s, 24" % (t0, sH))
    A("s_lshl_b32 %s, %s, 2" % (s4JW, sJ))
    A("s_add_u32 %s, %s, %s" % (s4JW, s4JW, sW))
    A("s_lshl_b32 %s, %s, 10" % (t2, s4JW))
    A("s_add_u32 %s, %s, %s" % (t0, t0, t2))
    A("s_add_u32 %s, %s, 0xF00000" % (t0, t0))
    A("v_and_b32 %s, 15, v0" % vN)
    A("v_lshrrev_b32 %s, 4, v0" % vG)
    A("v_lshlrev_b32 %s, 4, %s" % (vN16, vN))
    A("v_lshl_add_u32 %s, v0, 4, %s" % (vV0, t0))
    A("v_lshlrev_b32 %s, 6, %s" % (u0, vG))
    A("v_xor_b32 %s, %s, %s" % (vK0, u0, vV0))
    A("s_lshl_b32 %s, %s, 13" % (t1, sW))
    A("s_add_u32 m0, %s, %d" % (t1, L_K))
    A("s_mov_b32 s42, 0x20000")
    A("s_movk_i32 s43, 1024")
    A("s_waitcnt lgkmcnt(0)")
    A("s_load_dword %s, %s, 0" % (sTAG, sWS))
    if o.get("tlbw") == 1:
        A("s_cmp_lg_u32 %s, 0" % sW)
        A("s_cbranch_scc1 L_notlb")
        tlbwarm()
        A("s_waitcnt vmcnt(0)")
        LB("L_notlb")
    if o["b0pos"]: A("s_barrier")
    stamp(1)
    issued = [0]
    def load(w, txt):
        if issued[0] >= w:
            A("s_waitcnt vmcnt(%d)" % (w - 1))
        A(txt); issued[0] += 1
    def rot(i): return (i * o["rotm"]) & 127
    def kload(i):
        load(o["WK"], "global_load_lds_dwordx4 %s, %s %s" % (vK0, sK, nt))
        if i < 7:
            A("s_add_u32 m0, m0, s43")
            A("v_xor_b32 %s, %d, %s" % (vK0, (((i & 3) ^ ((i + 1) & 3)) << 4) | ((rot(i) ^ rot(i + 1)) << 10), vK0))
            A("v_add_u32 %s, s42, %s" % (vK0, vK0))
    nk_first = min(o["WK"], 8)
    if o.get("bal"):
        A("v_and_b32 v158, 7, v0")
        A("v_lshlrev_b32 v158, 2, v158")
        A("global_load_dword v159, v158, s[24:25] sc1")
    for i in range(nk_first): kload(i)
    C("address and mask setup in the shadow of the K loads")
    A("s_lshl_b32 %s, %s, 19" % (t0, sH))
    A("s_lshl_b32 %s, %s, 14" % (t2, sJ))
    A("s_add_u32 %s, %s, %s" % (t0, t0, t2))
    A("s_lshl_b32 %s, %s, 8" % (t3, sW))
    A("s_add_u32 %s, %s, %s" % (t0, t0, t3))
    A("s_add_u32 %s, %s, 0x1000" % (t0, t0))
    A("v_lshl_add_u32 %s, %s, 10, %s" % (vDN0, vG, vN16))
    A("v_add_u32 %s, %s, %s" % (vWO0, t0, vDN0))
    A("v_add_u32 %s, 0x2000, %s" % (vWO1, vWO0))
    A("s_mul_i32 %s, %s, 7" % (t0, sH))
    A("s_add_u32 %s, %s, 1" % (t0, t0))
    A("s_lshr_b32 %s, %s, 1" % (t0, t0))
    A("s_lshl_b32 %s, %s, 6" % (t0, t0))
    A("s_and_b32 %s, %s, 1" % (t2, sH))
    A("s_lshl_b32 %s, %s, 1" % (t2, t2))
    A("s_sub_u32 %s, 8, %s" % (t1, t2))
    A("s_mul_i32 %s, %s, %s" % (t2, t1, sJ))
    A("s_add_u32 %s, %s, %s" % (t0, t0, t2))
    A("s_lshl_b32 %s, %s, 10" % (t0, t0))
    A("s_add_u32 %s, %s, %s" % (t0, t0, t3))
    A("v_add_u32 %s, %s, %s" % (vDN0, t0, vDN0))
    A("s_sub_u32 %s, %s, 5" % (t1, t1))
    A("v_min_u32 %s, %s, %s" % (vDN1, t1, vG))
    A("v_lshl_add_u32 %s, %s, 10, %s" % (vDN1, vDN1, vN16))
    A("s_add_u32 %s, %s, 4096" % (t0, t0))
    A("v_add_u32 %s, %s, %s" % (vDN1, t0, vDN1))
    A("v_and_b32 %s, 1, v0" % vP)
    A("v_and_b32 %s, 1, %s" % (u0, vG))
    A("s_lshl_b32 %s, %s, 3" % (t2, s4JW))
    A("v_lshl_add_u32 %s, %s, 2, %s" % (vXF, u0, t2))
    A("s_lshl_b32 %s, %s, 16" % (t0, sH))
    A("s_lshl_b32 %s, %s, 14" % (t2, sW))
    A("s_lshl_b32 %s, %s, 6" % (t3, sJ))
    A("s_add_u32 %s, %s, %s" % (t2, t2, t3))
    A("s_add_u32 %s, %s, %s" % (t2, t2, t0))
    A("s_add_u32 %s, %s, 0x%x" % (t2, t2, MB2))
    A("v_lshrrev_b32 %s, 3, v0" % vS2)
    A("v_bfe_u32 %s, v0, 1, 2" % u1)
    A("v_lshlrev_b32 %s, 4, %s" % (u1, u1))
    A("v_lshl_add_u32 %s, %s, 11, %s" % (vS2, vS2, u1))
    A("v_add_u32 %s, %s, %s" % (vS2, t2, vS2))
    A("v_lshrrev_b32 %s, 1, %s" % (vS25, vN))
    A("v_lshlrev_b32 %s, 5, %s" % (u1, vP))
    A("v_lshl_add_u32 %s, %s, 11, %s" % (vS25, vS25, u1))
    A("v_lshl_add_u32 %s, %s, 4, %s" % (vS25, u0, vS25))
    A("s_add_u32 %s, %s, 0x%x" % (t2, t2, MB25 - MB2))
    A("v_add_u32 %s, %s, %s" % (vS25, t2, vS25))
    A("s_lshl_b32 %s, %s, 11" % (t3, sJ))
    A("s_add_u32 %s, %s, %s" % (t0, t0, t3))
    A("s_add_u32 %s, %s, 0x%x" % (t0, t0, MB2))
    A("v_lshl_add_u32 %s, v0, 4, %s" % (vL2, t0))
    A("s_lshl_b32 %s, %s, 4" % (t3, sW))
    A("s_add_u32 %s, %s, %s" % (t0, t0, t3))
    A("s_add_u32 %s, %s, 0x%x" % (t0, t0, MB25 - MB2))
    A("v_and_b32 %s, 31, v0" % u1)
    A("v_lshl_add_u32 %s, %s, 6, %s" % (vL25, u1, t0))
    A("s_lshr_b32 %s, %s, 3" % (t0, s4JW))
    A("s_lshl_b32 %s, %s, 14" % (t0, t0))
    A("s_and_b32 %s, %s, 7" % (t3, s4JW))
    A("s_lshl_b32 %s, %s, 10" % (t3, t3))
    A("s_add_u32 %s, %s, %s" % (t0, t0, t3))
    A("s_add_u32 %s, %s, 0x%x" % (t0, t0, MB3))
    A("v_lshl_add_u32 %s, %s, 4, %s" % (u0, u0, t0))
    A("v_and_b32 %s, 7, v0" % u1)
    A("v_lshl_add_u32 %s, %s, 7, %s" % (vL3, u1, u0))
    A("s_lshl_b32 %s, %s, 7" % (t3, sH))
    A("v_lshl_add_u32 %s, %s, 13, %s" % (u0, vP, u0))
    A("v_add_u32 %s, %s, %s" % (vS3, t3, u0))
    A("v_lshlrev_b32 %s, 4, %s" % (u1, vP))
    def pretouch2():
        C("pull this workgroup's incoming hand-off lines into L2 (waves 0,1: hop 2; waves 2,3: hop 2.5)")
        A("s_and_b32 %s, %s, 1" % (t0, sW))
        A("s_lshl_b32 %s, %s, 10" % (t0, t0))
        A("s_lshr_b32 %s, %s, 1" % (t3, sW))
        A("s_mul_i32 %s, %s, 0x%x" % (t3, t3, MB25 - MB2))
        A("s_add_u32 %s, %s, %s" % (t0, t0, t3))
        A("v_add_u32 v158, %s, %s" % (t0, vL2))
        A("global_load_dword v159, v158, %s sc1" % sWS); issued[0] += 1
    if o["pretouch"] == "r": pretouch2()
    A("v_mov_b32 %s, 0xffff" % u0)
    A("v_lshlrev_b32 %s, %s, %s" % (u0, u1, u0))
    A("v_and_b32 %s, 2, v0" % u1)
    A("v_cmp_eq_u32 vcc, 0, %s" % u1)
    A("v_lshrrev_b32 %s, 1, %s" % (u1, vN))
    A("v_lshlrev_b32 %s, 2, %s" % (vHA, vG))
    SEL = 160
    A("v_mov_b32 v%d, 0x0c0c0c0c" % (SEL + 2))
    A("v_mov_b32 v%d, 0x01000100" % (SEL + 3))
    A("v_bfi_b32 v%d, %s, v%d, v%d" % (SEL + 3, u0, SEL + 3, SEL + 2))
    A("v_cndmask_b32 v%d, v%d, v%d, vcc" % (SEL, SEL + 2, SEL + 3))
    A("v_cndmask_b32 v%d, v%d, v%d, vcc" % (SEL + 1, SEL + 3, SEL + 2))
    A("v_and_b32 v%d, 0x02020202, %s" % (SEL + 3, u0))
    A("v_cndmask_b32 v%d, 0, v%d, vcc" % (SEL + 2, SEL + 3))
    A("v_cndmask_b32 v%d, v%d, 0, vcc" % (SEL + 3, SEL + 3))
    A("v_add_u32 v%d, v%d, v%d" % (SEL + 2, SEL + 2, SEL))
    A("v_add_u32 v%d, v%d, v%d" % (SEL + 3, SEL + 3, SEL + 1))
    for r in range(4):
        A("v_cmp_eq_u32 s[%d:%d], %d, %s" % (44 + 2 * r, 45 + 2 * r, r, u1))
    A("v_lshrrev_b32 %s, 2, %s" % (vMLW, vN))
    A("v_lshlrev_b32 %s, 4, %s" % (u1, vG))
    A("v_lshl_add_u32 %s, %s, 8, %s" % (vQA, vMLW, u1))
    for r in range(4):
        A("v_cndmask_b32 v%d, 0, %s, s[%d:%d]" % (MK + r, u0, 44 + 2 * r, 45 + 2 * r))
    A("s_lshl_b32 %s, %s, 11" % (t0, sW))
    A("v_lshl_add_u32 %s, %s, 9, %s" % (vOW, vG, vN16))
    A("v_add_u32 %s, %s, %s" % (vOW, t0, vOW))
    A("s_lshl_b32 %s, %s, 3" % (t0, sW))
    A("v_lshl_add_u32 %s, %s, 5, %s" % (vMLW, vMLW, t0))
    A("v_bfe_u32 %s, v0, 1, 1" % u0)
    A("v_lshrrev_b32 %s, 2, v0" % u1)
    A("v_lshlrev_b32 %s, 4, %s" % (u1, u1))
    A("v_lshl_add_u32 %s, %s, 8, %s" % (u1, u0, u1))
    A("v_lshl_add_u32 %s, %s, 3, %s" % (u1, vP, u1))
    A("s_lshl_b32 %s, %s, 9" % (t0, sW))
    A("v_add_u32 %s, %s, %s" % (vOR, t0, u1))
    KA = 140
    A("v_and_b32 %s, 3, v0" % u0)
    A("v_lshrrev_b32 %s, 2, %s" % (u1, vN))
    A("v_lshlrev_b32 %s, 8, %s" % (u1, u1))
    A("v_lshl_add_u32 %s, %s, 10, %s" % (u0, u0, u1))
    A("v_xor_b32 %s, %s, %s" % (u1, vG, vN))
    A("v_lshl_add_u32 %s, %s, 4, %s" % (u0, u1, u0))
    A("s_lshl_b32 %s, %s, 13" % (t1, sW))
    A("v_add_u32 v%d, %s, %s" % (KA, t1, u0))
    for s_ in range(1, 4):
        A("v_xor_b32 v%d, %d, v%d" % (KA + s_, s_ << 6, KA))
    A("s_waitcnt lgkmcnt(0)")
    A("s_add_u32 %s, %s, 0x%x" % (sTAG, sTAG, TAGC))
    def issue_rest(WK_, W_):
        o_wk = o["WK"]; o["WK"] = WK_
        for i in range(nk_first, 8): kload(i)
        o["WK"] = o_wk
        if o["pretouch"] == "k": pretouch2()
        for i in range(8):
            r = VR + i * 4
            load(W_, "global_load_dwordx4 v[%d:%d], %s, %s %s" % (r, r + 3, vV0, sV, nt))
            if i < 7:
                if rot(i) ^ rot(i + 1): A("v_xor_b32 %s, %d, %s" % (vV0, (rot(i) ^ rot(i + 1)) << 10, vV0))
                A("v_add_u32 %s, s42, %s" % (vV0, vV0))
    if o.get("bal"):
        C("a group that started well after others asks memory with a wider window")
        A("s_waitcnt vmcnt(%d)" % issued[0])
        A("v_sub_u32 v158, s90, v159")
        A("v_cmp_ne_u32 vcc, 0, v159")
        A("v_cmp_lt_i32 s[44:45], %d, v158" % o.get("theta", 40))
        A("s_and_b32 s62, vcc_lo, s44")
        A("s_and_b32 s62, s62, 0xff")
        A("s_bcnt1_i32_b32 s62, s62")
        A("s_cmp_ge_u32 s62, %d" % o.get("lateth", 2))
        A("s_cbranch_scc1 L_wide")
        keep = issued[0]
        issue_rest(o["WK"], o["W"])
        A("s_branch L_issued")
        LB("L_wide")
        issued[0] = keep
        issue_rest(o["WK"] + o["bal"], o["W"] + o["bal"])
        LB("L_issued")
    elif o.get("c3"):
        A("s_lshr_b32 %s, %s, 2" % (t0, sJ))
        A("s_cmp_eq_u32 %s, 3" % t0)
        A("s_cbranch_scc1 L_wide")
        keep = issued[0]
        issue_rest(o["WK"], o["W"])
        A("s_branch L_issued")
        LB("L_wide")
        issued[0] = keep
        issue_rest(o["WK"] + o["c3"], o["W"] + o.get("c3v", o["c3"]))
        LB("L_issued")
    else:
        issue_rest(o["WK"], o["W"])
    tail = []
    tail.append("global_load_dword %s, %s, %s" % (vXP, vXF, sX))
    for a in range(2):
        r = DNR + a * 4
        tail.append("global_load_dwordx4 v[%d:%d], %s, %s %s" % (r, r + 3, (vDN0, vDN1)[a], sDN, nt))
    for m in range(4):
        r = WOR + m * 4
        tail.append("global_load_dwordx4 v[%d:%d], %s, %s offset:%d %s" % (r, r + 3, (vWO0, vWO1)[m >> 1], sWO, (0, -4096)[(m & 1) == 0], nt))
    nav = [0]
    def tail_issue(n):
        for _ in range(n):
            if tail:
                A(tail.pop(0)); nav[0] += 1
    A("s_waitcnt vmcnt(8)")
    for t in range(2):
        for s in range(4):
            r = KR + (t * 4 + s) * 4
            A("ds_read_b128 v[%d:%d], v%d offset:%d" % (r, r + 3, KA + s, L_K + t * 4096))
    tail_issue(o["ntail0"])
    stamp(2)
    A("s_waitcnt lgkmcnt(0)")
    A("s_barrier")
    stamp(3)
    for s in range(4):
        A("ds_read_b128 v[%d:%d], %s offset:%d" % (QR + 4 * s, QR + 4 * s + 3, vQA, L_Q + s * 64))
    if "a" in o["tsp"]: tail_issue(1)
    A("s_mov_b32 s46, 0x%x" % SCALE)
    A("s_mov_b32 %s, 0xffff0000" % t1)
    A("s_mov_b32 s48, 0x%x" % LOG2E)
    for s in range(4):
        A("s_waitcnt lgkmcnt(%d)" % (3 - s))
        for t in range(2):
            mfma(SR + 4 * t, KR + (t * 4 + s) * 4, QR + 4 * s, None if s == 0 else SR + 4 * t)
    T = KR
    vH0, vH1, vFL = "v%d" % (T + 28), "v%d" % (T + 29), "v%d" % (T + 30)
    A("v_mov_b32 %s, %d" % (vFL, L_FLAG))
    A("s_lshl_b32 %s, %s, 5" % (t3, sW))
    A("v_mov_b32 v%d, %s" % (T + 31, t3))
    A("ds_read_b32 %s, %s" % (vFL, vFL))
    if "b" in o["tsp"]:
        tail_issue(1); A("s_nop 1")
    else: A("s_nop 2")
    C("scores: bf16(qk) -> * scale -> bf16   (the reference's two roundings)")
    for i in range(8):
        A("v_cvt_pk_bf16_f32 v%d, 0, v%d" % (SR + i, SR + i))
    for i in range(4):
        A("v_pk_mul_f32 %s, %s, s[46:47] op_sel_hi:[1,0]" % (P2(SR + 2 * i), P2(SR + 2 * i)))
    for i in range(8):
        A("v_cvt_pk_bf16_f32 v%d, 0, v%d" % (SR + i, SR + i))
    vm, vt, vl = "v%d" % (T + 4), "v%d" % (T + 6), "v%d" % (T + 5)
    A("v_max3_f32 %s, v%d, v%d, v%d" % (vm, SR, SR + 1, SR + 2))
    A("v_max3_f32 %s, v%d, v%d, v%d" % (vt, SR + 3, SR + 4, SR + 5))
    A("v_max3_f32 %s, %s, v%d, v%d" % (vm, vm, SR + 6, SR + 7))
    A("v_max_f32 %s, %s, %s" % (vm, vm, vt))
    allred(vm, vt, "v_max_f32", 16)
    if "c" in o["tsp"]: tail_issue(1)
    allred(vm, vt, "v_max_f32", 32)
    A("v_mul_f32 %s, s48, %s" % (vm, vm))
    for i in range(4):
        A("v_pk_fma_f32 %s, %s, s[48:49], %s op_sel_hi:[1,0,0] neg_lo:[0,0,1] neg_hi:[0,0,1]" % (P2(SR + 2 * i), P2(SR + 2 * i), P2(T + 4)))
    for i in range(8):
        A("v_exp_f32 v%d, v%d" % (SR + i, SR + i))
    if "d" in o["tsp"]: tail_issue(1)
    for i in range(4):
        A("v_cvt_pk_bf16_f32 v%d, v%d, v%d" % (T + 8 + i, SR + 2 * i, SR + 2 * i + 1))
    for i in range(8):
        for r in range(2):
            A("v_perm_b32 v%d, v%d, v%d, v%d" % (PA + 2 * i + r, T + 8 + (i >> 1), T + 8 + (i >> 1), SEL + 2 * (i & 1) + r))
    stamp(4)
    O0, O1, Y = QR, QR + 4, QR + 8
    def pv(i):
        A("s_waitcnt vmcnt(%d)" % (7 - i + nav[0]))
        if i >= o["tlag"]: tail_issue(1 if i < 7 else 9)
        vr = VR + 4 * i
        mfma16(O0, PA + 2 * i, vr, None if i == 0 else O0)
        mfma16(O1, PA + 2 * i, vr + 2, None if i == 0 else O1)
    A("v_pk_add_f32 %s, %s, %s" % (P2(SR), P2(SR), P2(SR + 2)))
    A("v_pk_add_f32 %s, %s, %s" % (P2(SR + 4), P2(SR + 4), P2(SR + 6)))
    A("v_pk_add_f32 %s, %s, %s" % (P2(SR), P2(SR), P2(SR + 4)))
    A("v_add_f32 %s, v%d, v%d" % (vl, SR, SR + 1))
    allred(vl, vt, "v_add_f32", 16)
    allred(vl, vt, "v_add_f32", 32)
    A("ds_write_b64 %s, v[%d:%d] offset:%d" % (vMLW, T + 4, T + 5, L_ML))
    A("s_waitcnt lgkmcnt(0)")
    A("v_readfirstlane_b32 %s, %s" % (sFAST, vFL))
    HA = T + 16
    ML = T
    OB = T + 8
    G2 = SR
    vM, vLs = "v124", "v125"
    for i in range(o["b2"]): pv(i)
    A("s_barrier")
    A("ds_read_b128 v[%d:%d], v%d offset:%d" % (ML, ML + 3, T + 31, L_ML))
    A("ds_read_b128 v[%d:%d], v%d offset:%d" % (ML + 4, ML + 7, T + 31, L_ML + 16))
    if not o["hlate"]:
        A("ds_read_b32 %s, %s offset:%d" % (vH0, vHA, L_H))
        A("ds_read_b32 %s, %s offset:%d" % (vH1, vHA, L_H + 16))
    A("s_mov_b32 vcc_lo, 0xcccccccc")
    A("s_mov_b32 vcc_hi, 0xcccccccc")
    A("v_mov_b32 v%d, %s" % (G2 + 3, sTAG))
    A("s_waitcnt lgkmcnt(%d)" % (0 if o["hlate"] else 2))
    A("v_max3_f32 %s, v%d, v%d, v%d" % (vM, ML, ML + 2, ML + 4))
    A("v_max_f32 %s, %s, v%d" % (vM, vM, ML + 6))
    for w_ in range(4):
        A("v_sub_f32 v%d, v%d, %s" % (ML + 2 * w_, ML + 2 * w_, vM))
    for w_ in range(4):
        A("v_exp_f32 v%d, v%d" % (ML + 2 * w_, ML + 2 * w_))
    A("s_waitcnt lgkmcnt(0)")
    A("v_mul_f32 %s, v%d, v%d" % (vLs, ML, ML + 1))
    for w_ in range(1, 4):
        A("v_fmac_f32 %s, v%d, v%d" % (vLs, ML + 2 * w_, ML + 2 * w_ + 1))
    def h_operands():
        for a in range(2):
            for r in range(4):
                A("v_and_b32 v%d, %s, v%d" % (HA + 4 * a + r, (vH0, vH1)[a], MK + r))
    if not o["hlate"]: h_operands()
    A("v_cndmask_b32 v%d, %s, %s, vcc" % (G2 + 2, vM, vLs))
    for i in range(o["b2"], 8): pv(i)
    stamp(5)
    if o.get("nosync"):
        A("s_waitcnt vmcnt(0)")
        stamp(6)
        A("s_branch L_done")
    A("s_nop 6")
    A("ds_write_b128 %s, v[%d:%d] offset:%d" % (vOW, O0, O0 + 3, L_O))
    A("ds_write_b128 %s, v[%d:%d] offset:%d" % (vOW, O1, O1 + 3, L_O + 256))
    A("s_waitcnt lgkmcnt(0)")
    A("s_barrier")
    for w_ in range(4):
        A("ds_read_b64 v[%d:%d], %s offset:%d" % (OB + 2 * w_, OB + 2 * w_ + 1, vOR, L_O + w_ * 2048))
    A("s_cmp_eq_u32 %s, 0" % sFAST)
    for w_ in range(4):
        A("s_waitcnt lgkmcnt(%d)" % (3 - w_))
        op = "v_mul_f32" if w_ == 0 else "v_fmac_f32"
        A("%s v%d, v%d, v%d" % (op, G2, ML + 2 * w_, OB + 2 * w_))
        A("%s v%d, v%d, v%d" % (op, G2 + 1, ML + 2 * w_, OB + 2 * w_ + 1))
    tails = []
    def publish(addr, g, name):
        A("s_cbranch_scc1 L_slow_%s" % name)
        A("global_store_dwordx4 %s, v[%d:%d], %s %s" % (addr, g, g + 3, sWS, o.get("stfl", "")))
        LB("L_back_%s" % name)
        tails.append((name, addr, g))
    A("v_cvt_pk_bf16_f32 v%d, v%d, v%d" % (G2, G2, G2 + 1))
    A("s_mov_b32 s44, 0x55555555")
    A("s_mov_b32 s45, 0x55555555")
    A("v_mov_b32_dpp v%d, v%d quad_perm:[1,1,3,3] %s" % (G2 + 1, G2, DPP))
    A("s_mov_b64 exec, s[44:45]")
    publish(vS2, G2, "h2")
    A("s_mov_b64 exec, -1")
    stamp(6)
    P = T
    for i in range(2):
        A("global_load_dwordx4 v[%d:%d], %s, %s offset:%d sc1" % (P + 4 * i, P + 4 * i + 3, vL2, sWS, i * 1024))
    if o["hlate"]:
        A("s_barrier")
        A("ds_read_b32 %s, %s offset:%d" % (vH0, vHA, L_H))
        A("ds_read_b32 %s, %s offset:%d" % (vH1, vHA, L_H + 16))
    A("s_mov_b32 %s, %d" % (sCNT, o["spinmax"]))
    vTAG = "v127"
    A("v_mov_b32 %s, %s" % (vTAG, sTAG))
    for k in range(4):
        A("s_mov_b32 s%d, 0x%x" % (56 + k, 0x07060500 | k))
        A("s_bfe_u32 s%d, %s, 0x%x" % (60 + k if k < 2 else 50 + k, sTAG, 0x80000 | (8 * k)))
    TB = ["s60", "s61", "s52", "s53"]
    if o["hlate"]:
        A("s_waitcnt lgkmcnt(0)")
        h_operands()
    A("s_waitcnt vmcnt(3)")
    for a in range(2):
        mfma(Y, HA + 4 * a, DNR + 4 * a, None if a == 0 else Y)
    A("s_branch L_chk2")
    LB("L_poll2")
    MS = ["s[44:45]", "s[46:47]"]
    for i in range(2):
        A("s_mov_b64 exec, %s" % MS[i])
        A("global_load_dwordx4 v[%d:%d], %s, %s offset:%d sc1" % (P + 4 * i, P + 4 * i + 3, vL2, sWS, i * 1024))
    A("s_mov_b64 exec, -1")
    A("s_sub_u32 %s, %s, 1" % (sCNT, sCNT))
    A("s_cbranch_scc1 L_end")
    LB("L_chk2")
    A("s_waitcnt vmcnt(0)")
    A("v_max_f32 %s, v%d, v%d" % (vM, P + 2, P + 6))
    for i in range(2):
        A("v_cmp_ne_u32 %s, %s, v%d" % (MS[i], sTAG, P + 4 * i + 3))
    A("v_mov_b32_dpp %s, %s quad_perm:[0,0,2,2] %s" % (vM, vM, DPP))
    A("s_or_b64 vcc, %s, %s" % (MS[0], MS[1]))
    A("s_cbranch_scc1 L_poll2")
    stamp(7)
    U = T + 8
    def unp(i, k):
        if k & 1: A("v_and_b32 v%d, %s, v%d" % (U + 4 * i + k, t1, P + 4 * i + (k >> 1)))
        else: A("v_lshlrev_b32 v%d, 16, v%d" % (U + 4 * i + k, P + 4 * i + (k >> 1)))
    vt2 = "v126"
    A("v_max_f32_dpp %s, %s, %s row_ror:4 %s" % (vM, vM, vM, DPP))
    unp(0, 0); unp(0, 1)
    A("v_max_f32_dpp %s, %s, %s row_ror:8 %s" % (vM, vM, vM, DPP))
    A("v_mov_b32 %s, %s" % (vt2, vM))
    unp(0, 2); unp(0, 3)
    A("v_permlane16_swap_b32 %s, %s" % (vt2, vM))
    A("v_max_f32 %s, %s, %s" % (vM, vM, vt2))
    A("v_mov_b32 %s, %s" % (vt2, vM))
    unp(1, 0); unp(1, 1)
    A("v_permlane32_swap_b32 %s, %s" % (vt2, vM))
    A("v_max_f32 %s, %s, %s" % (vM, vM, vt2))
    w0, w1 = "v120", "v121"
    A("v_sub_f32_dpp %s, v%d, %s quad_perm:[0,0,2,2] %s" % (w0, P + 2, vM, DPP))
    A("v_sub_f32_dpp %s, v%d, %s quad_perm:[0,0,2,2] %s" % (w1, P + 6, vM, DPP))
    A("v_exp_f32 %s, %s" % (w0, w0))
    A("v_exp_f32 %s, %s" % (w1, w1))
    unp(1, 2); unp(1, 3)
    den, tA, tB = "v126", "v122", "v123"
    A("v_mul_f32_dpp %s, v%d, %s quad_perm:[1,1,3,3] %s" % (den, P + 2, w0, DPP))
    A("v_fmac_f32_dpp %s, v%d, %s quad_perm:[1,1,3,3] %s" % (den, P + 6, w1, DPP))
    for k in range(4):
        A("v_mul_f32 v%d, %s, v%d" % (U + k, w0, U + k))
        if k == 1: A("v_add_f32_dpp %s, %s, %s row_ror:4 %s" % (den, den, den, DPP))
    A("v_add_f32_dpp %s, %s, %s row_ror:8 %s" % (den, den, den, DPP))
    for k in (0, 2, 1, 3):
        A("v_fmac_f32 v%d, %s, v%d" % (U + k, w1, U + 4 + k))
    A("v_mov_b32 %s, %s" % (tA, den))
    A("v_permlane32_swap_b32 v%d, v%d" % (U, U + 2))
    A("v_permlane32_swap_b32 v%d, v%d" % (U + 1, U + 3))
    A("v_permlane32_swap_b32 %s, %s" % (tA, den))
    A("v_add_f32 v%d, v%d, v%d" % (U, U, U + 2))
    A("v_add_f32 v%d, v%d, v%d" % (U + 1, U + 1, U + 3))
    A("v_add_f32 %s, %s, %s" % (den, den, tA))
    A("s_cmp_eq_u32 %s, 0" % sFAST)
    A("v_permlane16_swap_b32 v%d, v%d" % (U, U + 1))
    A("v_mov_b32 %s, %s" % (tA, den))
    A("v_add_f32 v%d, v%d, v%d" % (U, U, U + 1))
    A("s_nop 0")
    A("v_permlane16_swap_b32 %s, %s" % (tA, den))
    A("v_add_f32_dpp v%d, v%d, v%d row_ror:4 %s" % (U, U, U, DPP))
    A("v_add_f32 %s, %s, %s" % (den, den, tA))
    A("v_rcp_f32 %s, %s" % (den, den))
    A("v_add_f32_dpp v%d, v%d, v%d row_ror:8 %s" % (U, U, U, DPP))
    a0 = "v124"
    A("v_mul_f32 %s, v%d, %s" % (a0, U, den))
    A("v_cvt_pk_bf16_f32 %s, %s, %s" % (a0, a0, a0))
    A("s_mov_b32 %s, %d" % (sCNT, o["spinmax"]))
    A("s_nop 0")
    WA = T
    for m in range(4):
        for r in range(4):
            A("v_and_b32_dpp v%d, %s, v%d row_newbcast:%d %s" % (WA + 4 * m + r, a0, MK + r, m, DPP))
        if m > 0:
            mfma(Y, WA + 4 * (m - 1), WOR + 4 * (m - 1), Y)
    A("s_nop 1")
    mfma(Y, WA + 12, WOR + 12, Y)
    A("s_mov_b32 exec_hi, 0")
    A("s_nop 6")
    for k in range(4):
        A("v_perm_b32 v%d, v%d, %s, s%d" % (Y + k, Y + k, vTAG, 56 + k))
    publish(vS25, Y, "h25")
    stamp(8)
    LB("L_poll25")
    A("global_load_dwordx4 v[%d:%d], %s, %s sc1" % (P, P + 3, vL25, sWS))
    A("s_sub_u32 %s, %s, 1" % (sCNT, sCNT))
    A("s_cbranch_scc1 L_end")
    A("s_waitcnt vmcnt(0)")
    for k in range(4):
        A("v_xor_b32 v%d, %s, v%d" % (P + k, TB[k], P + k))
    A("v_or3_b32 %s, v%d, v%d, v%d" % (tA, P, P + 1, P + 2))
    A("v_or_b32 %s, %s, v%d" % (tA, tA, P + 3))
    A("v_and_b32 %s, 0xff, %s" % (tA, tA))
    A("v_cmp_ne_u32 vcc, 0, %s" % tA)
    A("s_and_b64 exec, exec, vcc")
    A("s_cbranch_scc1 L_poll25")
    A("s_mov_b64 exec, -1")
    stamp(9)
    x_, y_ = "v%d" % P, "v%d" % (P + 1)
    A("v_permlane16_swap_b32 v%d, v%d" % (P, P + 2))
    A("v_permlane16_swap_b32 v%d, v%d" % (P + 1, P + 3))
    A("v_add_f32 %s, %s, v%d" % (x_, x_, P + 2))
    A("v_add_f32 %s, %s, v%d" % (y_, y_, P + 3))
    fl = ["v_mov_b32 v%d, %s" % (P + 3, sTAG), "s_and_b32 %s, %s, 7" % (t0, sJ), "s_cmp_eq_u32 %s, %s" % (t0, sH), "s_nop 0"]
    for rot_ in (1, 2, 4, 8):
        A(fl.pop(0))
        A("v_add_f32_dpp %s, %s, %s row_ror:%d %s" % (x_, x_, x_, rot_, DPP))
        A("v_add_f32_dpp %s, %s, %s row_ror:%d %s" % (y_, y_, y_, rot_, DPP))
    A("s_cbranch_scc1 L_final")
    A("s_mov_b64 exec, 0x%x" % (0x30003 if o["rep3"] else 0x10001))
    A("global_store_dwordx4 %s, v[%d:%d], %s sc1" % (vS3, P, P + 3, sWS))
    if o.get("wb"):
        A("s_or_b32 %s, %s, %s" % (t0, sW, sJ) if o["wb"] == 1 else "s_and_b32 %s, %s, 3" % (t0, sW))
        A("s_cmp_lg_u32 %s, %d" % (t0, 8 if o["wb"] == 1 else 0))
        A("s_cbranch_scc1 L_done")
        A("buffer_wbl2 sc1")
    A("s_branch L_done")
    LB("L_final")
    A("s_lshl_b32 %s, 0x10001, %s" % (t0, sH))
    A("s_andn2_b32 exec_lo, 0xff00ff, %s" % t0)
    A("s_mov_b32 exec_hi, 0")
    A("s_mov_b32 %s, %d" % (sCNT, o["spinmax"]))
    Q = P + 4
    if o["rep3"]: A("v_add_u32 %s, 0x2000, %s" % (vS3, vL3))
    LB("L_poll3")
    A("global_load_dwordx4 v[%d:%d], %s, %s sc1" % (P, P + 3, vL3, sWS))
    if o["rep3"]: A("global_load_dwordx4 v[%d:%d], %s, %s sc1" % (Q, Q + 3, vS3, sWS))
    A("s_sub_u32 %s, %s, 1" % (sCNT, sCNT))
    A("s_cbranch_scc1 L_end")
    if o["rep3"]:
        A("s_waitcnt vmcnt(1)")
        A("v_cmp_ne_u32 s[44:45], %s, v%d" % (sTAG, P + 3))
        A("s_and_b64 exec, exec, s[44:45]")
        A("s_cbranch_scc0 L_got3")
        A("s_waitcnt vmcnt(0)")
        A("v_cmp_ne_u32 vcc, %s, v%d" % (sTAG, Q + 3))
        A("v_mov_b32 v%d, v%d" % (P, Q))
        A("v_mov_b32 v%d, v%d" % (P + 1, Q + 1))
        A("s_and_b64 exec, exec, vcc")
        A("s_cbranch_scc1 L_poll3")
        LB("L_got3")
    else:
        A("s_waitcnt vmcnt(0)")
        A("v_cmp_ne_u32 vcc, %s, v%d" % (sTAG, P + 3))
        A("s_and_b64 exec, exec, vcc")
        A("s_cbranch_scc1 L_poll3")
    stamp(10)
    A("s_mov_b32 exec_lo, -1")
    A("v_lshlrev_b32 %s, 16, %s" % (tA, vXP))
    A("v_and_b32 %s, %s, %s" % (tB, t1, vXP))
    for pat in ("quad_perm:[1,0,3,2]", "quad_perm:[2,3,0,1]", "row_half_mirror"):
        A("v_add_f32_dpp %s, %s, %s %s %s" % (x_, x_, x_, pat, DPP))
        A("v_add_f32_dpp %s, %s, %s %s %s" % (y_, y_, y_, pat, DPP))
        if pat != "row_half_mirror": A("s_nop 0")
    A("v_add_f32 %s, %s, %s" % (x_, x_, tA))
    A("v_add_f32 %s, %s, %s" % (y_, y_, tB))
    A("v_cvt_pk_bf16_f32 %s, %s, %s" % (x_, x_, y_))
    A("s_mov_b64 exec, 0x10001")
    A("global_store_dword %s, %s, %s" % (vXF, x_, sOUT))
    A("s_or_b32 %s, s2, %s" % (t0, sW))
    A("s_cbranch_scc1 L_done")
    C("the next launch must not mistake this launch's hand-off words for its own")
    A("v_mov_b32 %s, 0" % tA)
    A("v_mov_b32 %s, %s" % (tB, sTAG))
    A("global_store_dword %s, %s, %s sc1" % (tA, tB, sWS))
    LB("L_done")
    if o.get("amp"):
        if o["amp"] == "end": A("s_memrealtime s[88:89]")
        A("s_waitcnt lgkmcnt(0)")
        A("s_sub_u32 s88, s88, %s" % ("s86" if o.get("amp0") else "s90"))
        A("s_mul_i32 s88, s88, %d" % o.get("ampk", 10))
        A("s_min_u32 s88, s88, 20000")
        A("s_add_u32 s88, s88, 1500")
        LB("L_ampspin")
        A("s_memrealtime s[92:93]")
        A("s_waitcnt lgkmcnt(0)")
        A("s_sub_u32 s92, s92, s90")
        A("s_cmp_lt_u32 s92, s88")
        A("s_cbranch_scc1 L_ampspin")
    if o.get("pad"):
        LB("L_padspin")
        A("s_memrealtime s[92:93]")
        A("s_waitcnt lgkmcnt(0)")
        A("s_sub_u32 s92, s92, s90")
        A("s_cmp_lt_u32 s92, %d" % o["pad"])
        A("s_cbranch_scc1 L_padspin")
    dump_stamps()
    A("s_endpgm")
    for name, addr, g in tails:
        LB("L_slow_%s" % name)
        A("global_store_dwordx4 %s, v[%d:%d], %s sc1" % (addr, g, g + 3, sWS))
        A("s_branch L_back_%s" % name)
    LB("L_end")
    A("s_endpgm")
    return HEADER.format(lds=o.get("lds", LDS_BYTES), k=KNAME) + "\n".join(L) + FOOTER.format(k=KNAME, vg=o.get("vg", 168), sg=96)


if __name__ == "__main__":
    kw = {}
    out = "parallel_sum__sliding_block_cached__swiglu_ffn__decode.s"
    for a in sys.argv[1:]:
        k, v = a.split("=", 1)
        if k == "out": out = v; continue
        try: v = int(v)
        except ValueError: pass
        kw[k] = v
    open(out, "w").write(gen(**kw))
```

```python
import sys

KNAME = "parallel_sum__sliding_block_cached__swiglu_ffn__decode_kernel"

HEADER = """; Kernarg layout for this problem (96 bytes, ptrs only, base s[0:1]):
;   offset  72: d_out     shape=(1, 1, 512) dtype=bfloat16
; @launch grid=(256,1,1) block=(320,1,1) lds={lds}
.amdgcn_target "amdgcn-amd-amdhsa--gfx950"
.text
.globl {k}
.p2align 8
.type {k},@function
{k}:
"""
FOOTER = """
.section .rodata,"a"
.p2align 6
.amdhsa_kernel {k}
  .amdhsa_next_free_vgpr {vg}
  .amdhsa_next_free_sgpr {sg}
  .amdhsa_accum_offset {vg}
  .amdhsa_group_segment_fixed_size 0
  .amdhsa_kernarg_size 96
  .amdhsa_user_sgpr_count 2
  .amdhsa_user_sgpr_kernarg_segment_ptr 1
  .amdhsa_system_sgpr_workgroup_id_x 1
.end_amdhsa_kernel
"""

MB1A = 0x40000
MB1B = 0x80000
MB2 = 0x100000
MB25 = 0x180000
MB3 = 0x200000
STAMPS = 0x10000000
L_WQ = 0
L_FF = 16384
L_XN = 32768
L_Q = 33792
L_H = 34816
L_FLAG = 34848
L_VOTE = 34864
L_ML = 34880
L_O = 35072
L_K = L_O + 8192
L_K = (L_K + 1023) // 1024 * 1024
LDS_BYTES = L_K + 32768
TAGC = 0x9E3779B9
LOG2E = 0x3FB8AA3B
SCALE = 0x3DB504F3
EPS = 0x3727C5AC
DPP = "row_mask:0xf bank_mask:0xf"

DEF = dict(stamps=False, spinmax=200000, WK=6, W=5, Wtail=8, b0pos=45, nt="nt", pretouch="k", atries=24,
           prefetch=True, b2=7, ntail0=0, tlag=0, mask2=False, pt1=True, rotm=4, rep3=False, tsp="", auxearly=True, hlate=False, vote=True, np25=1, np3=1, ack25=1, align=1, unr=2, mask25=False, lperm=0)


def _sizes(text):
    import subprocess, tempfile, os, re
    d = tempfile.mkdtemp()
    open(d + "/a.s", "w").write(text)
    subprocess.run(["clang", "-x", "assembler", "-target", "amdgcn-amd-amdhsa", "-mcpu=gfx950", "-c", d + "/a.s", "-o", d + "/a.o"], check=True)
    out = subprocess.run(["llvm-objdump", "-d", "--mcpu=gfx950", d + "/a.o"], capture_output=True, text=True).stdout
    r = []
    for ln in out.split("\n"):
        m = re.search(r"^\s+(\S+).*// ([0-9A-F]{12}): ((?:[0-9A-F]{8} ?)+)", ln)
        if m: r.append((m.group(1), 4 * len(m.group(3).split())))
    return r


def align_runs(L, head, foot, minrun=3, nopmin=6):
    ins = [i for i, l in enumerate(L) if l.startswith("    ") and not l.strip().startswith(";")]
    sz = _sizes(head + "\n".join(L) + foot)
    assert len(sz) == len(ins), (len(sz), len(ins))
    size = {i: s_[1] for i, s_ in zip(ins, sz)}
    mn = {i: s_[0] for i, s_ in zip(ins, sz)}
    out = list(L); extra = {}
    off = 0; k = 0
    while k < len(ins):
        i = ins[k]
        if size[i] == 8 and off % 8 == 4:
            run = 0
            while k + run < len(ins) and size[ins[k + run]] == 8: run += 1
            if run >= minrun:
                b = k - 1; done = False
                while b >= 0 and size[ins[b]] == 4:
                    j = ins[b]
                    if mn[j].endswith("_e32") and not mn[j].startswith(("v_readfirstlane", "v_permlane")):
                        op = out[j].split()[0]
                        out[j] = out[j].replace(op, op.replace("_e32", "") + "_e64", 1)
                        size[j] = 8; off += 4; done = True
                        break
                    b -= 1
                if not done and run >= nopmin and k > 0 and not mn[ins[k - 1]].startswith(("s_branch", "s_endpgm")):
                    extra[i] = True; off += 4; done = True
                if not done and k > 0 and mn[ins[k - 1]].startswith(("s_branch", "s_endpgm")):
                    extra[ins[k - 1] + 1] = True; off += 4
            for q in range(run): off += 8
            k += run
            continue
        off += size[i]; k += 1
    res = []
    for i, l in enumerate(out):
        if i in extra: res.append("    s_nop 0")
        res.append(l)
    return res


def gen(**kw):
    o = dict(DEF); o.update(kw)
    L = []
    def A(s): L.append("    " + s)
    def LB(s): L.append(s + ":")
    def C(s): L.append("    ; " + s)
    nt = o["nt"]
    NSTAMP = 12
    role = ["U"]
    def stamp(i):
        if o.get("amp") == "%s%d" % (role[0], i): A("s_memrealtime s[88:89]" if not o.get("cyc") else "s_memtime s[88:89]")
        if o.get("amp0") == "%s%d" % (role[0], i): A("s_memrealtime s[86:87]" if not o.get("cyc") else "s_memtime s[86:87]")
        if o["stamps"] and (i in (0, 11) or o.get("sel") is None or ("%s%d" % (role[0], i)) in o["sel"].split(",")):
            A("s_memrealtime s[%d:%d]" % (64 + 2 * i, 65 + 2 * i))
    def mfma(d, a, b, c):
        A("v_mfma_f32_16x16x32_bf16 v[%d:%d], v[%d:%d], v[%d:%d], %s" % (d, d + 3, a, a + 3, b, b + 3, "0" if c is None else "v[%d:%d]" % (c, c + 3)))
    def mfma16(d, a, b, c):
        A("v_mfma_f32_16x16x16_bf16 v[%d:%d], v[%d:%d], v[%d:%d], %s" % (d, d + 3, a, a + 1, b, b + 1, "0" if c is None else "v[%d:%d]" % (c, c + 3)))
    def allred(v, tmp, op, which):
        A("v_mov_b32 %s, %s" % (tmp, v))
        A("s_nop 1")
        A("v_permlane%d_swap_b32 %s, %s" % (which, tmp, v))
        A("%s %s, %s, %s" % (op, v, v, tmp))
    sX, sK, sV, sWQ, sWO, sG, sU, sDN, sOUT, sWS = "s[4:5]", "s[6:7]", "s[8:9]", "s[10:11]", "s[12:13]", "s[16:17]", "s[18:19]", "s[20:21]", "s[22:23]", "s[26:27]"
    sW, sH, sJ, sTAG, sXCC, sCNT, sFAST = "s30", "s31", "s32", "s33", "s34", "s35", "s36"
    t0, t1, t2, t3 = "s37", "s38", "s39", "s40"
    def dump_stamps():
        if not o["stamps"]: return
        if role[0] == "U" and o.get("sel") is not None and "U" not in o["sel"]: return
        A("s_mov_b64 exec, 1")
        stamp(11)
        A("s_waitcnt lgkmcnt(0)")
        A("s_mul_i32 %s, s2, 5" % t0)
        A("s_add_u32 %s, %s, %s" % (t0, t0, sW))
        A("s_lshl_b32 %s, %s, 7" % (t0, t0))
        A("s_add_u32 %s, %s, 0x%x" % (t0, t0, STAMPS))
        A("v_mov_b32 v2, %s" % t0)
        for i in range(NSTAMP):
            A("v_mov_b32 v3, s%d" % (64 + 2 * i))
            A("global_store_dword v2, v3, %s offset:%d" % (sWS, 4 * i))
        A("v_mov_b32 v3, %s" % ("s63" if role[0] == "U" and o["vote"] else sCNT))
        A("global_store_dword v2, v3, %s offset:%d" % (sWS, 4 * NSTAMP))
        if o.get("dbgfail"):
            for q_, r_ in enumerate(("s84", "s62", "s63")):
                A("v_mov_b32 v3, %s" % r_)
                A("global_store_dword v2, v3, %s offset:%d" % (sWS, 4 * NSTAMP + 8 + 4 * q_))
        A("s_getreg_b32 %s, hwreg(HW_REG_HW_ID)" % t1)
        A("v_mov_b32 v3, %s" % t1)
        A("global_store_dword v2, v3, %s offset:%d" % (sWS, 4 * NSTAMP + 4))

    stamp(0)
    if o.get("pad") or o.get("bal") or o.get("amp"): A("s_memrealtime s[90:91]")
    A("s_cmp_ge_u32 s2, 256")
    A("s_cbranch_scc1 L_end")
    A("s_load_dwordx16 s[4:19], s[0:1], 0")
    A("s_load_dwordx8 s[20:27], s[0:1], 64")
    A("v_lshrrev_b32 v1, 6, v0")
    A("v_and_b32 v0, 63, v0")
    A("v_readfirstlane_b32 %s, v1" % sW)
    A("s_and_b32 %s, s2, 7" % sH)
    A("s_lshr_b32 %s, s2, 3" % sJ)
    if o.get("bal"):
        A("s_or_b32 %s, %s, %s" % (t0, sJ, sW))
        A("s_cbranch_scc1 L_noflag")
        A("s_lshl_b32 %s, %s, 2" % (t0, sH))
        A("v_mov_b32 v108, %s" % t0)
        A("s_waitcnt lgkmcnt(0)")
        A("s_or_b32 %s, s90, 1" % t0)
        A("v_mov_b32 v109, %s" % t0)
        A("global_store_dword v108, v109, s[24:25] sc1")
        LB("L_noflag")
    A("s_cmp_eq_u32 %s, 4" % sW)
    A("s_cbranch_scc0 %s" % ("L_race" if o["vote"] else "L_attn"))

    C("wave 4: layernorm, one [128 x 64] tile of wq and one of gate/up, exchange of q and of the FFN hidden values")
    A("s_setprio 3")
    if o["prefetch"]:
        A("s_getpc_b64 s[28:29]")
        LB("L_pc")
        A("v_lshlrev_b32 v2, 7, v0")
        A("v_min_u32 v2, L_end-L_pc, v2")
        A("global_load_dword v127, v2, s[28:29]")
    sQK, sNOFF = "s50", "s51"
    A("v_lshlrev_b32 v3, 4, v0")
    A("v_lshrrev_b32 v6, 3, v0")
    A("v_and_b32 v5, 2, v6")
    A("v_and_b32 v7, 7, v0")
    A("v_xor_b32 v5, v5, v7")
    A("v_lshlrev_b32 v7, 4, v5")
    A("s_and_b32 %s, %s, 3" % (sQK, sJ))
    A("s_lshl_b32 %s, %s, 10" % (t0, sH))
    if o["lperm"]:
        A("s_andn2_b32 %s, %s, 3" % (t1, sJ))
        A("s_lshr_b32 %s, 0x%x, %s" % (t1, o["lperm"], t1))
        A("s_and_b32 s55, %s, 7" % t1)
    else:
        A("s_lshr_b32 s55, %s, 2" % sJ)
    A("s_lshl_b32 %s, s55, 7" % t1)
    A("s_lshl_b32 %s, %s, 20" % (t2, sQK))
    A("s_add_u32 %s, %s, %s" % (t0, t0, t1))
    A("s_add_u32 %s, %s, %s" % (t0, t0, t2))
    A("v_lshl_add_u32 v4, v6, 13, v7")
    A("v_add_u32 v4, %s, v4" % t0)
    A("v_xor_b32 v5, 64, v4")
    A("v_add_u32 v5, 0x10000, v5")
    A("s_mov_b32 m0, %d" % L_WQ)
    A("s_mov_b32 %s, 0x20000" % t1)
    if o.get("ucontig"):
        A("s_lshl_b32 %s, s2, 10" % t0)
        A("v_add_u32 v4, %s, v3" % t0)
        A("v_add_u32 v5, 0x40000, v4")
        A("s_mov_b32 %s, 0x80000" % t1)
    A("s_movk_i32 s41, 1024")
    A("s_waitcnt lgkmcnt(0)")
    A("global_load_dwordx4 v[8:11], v3, %s" % sX)
    A("s_load_dword %s, %s, 0" % (sTAG, sWS))
    def dma_loop(name, base, step):
        A("s_mov_b32 %s, %d" % (t2, 16 // o["unr"]))
        LB(name)
        for i in range(o["unr"]):
            vv = ("v4", "v5")[i & 1]
            A("global_load_lds_dwordx4 %s, %s %s" % (vv, base, nt))
            A("s_add_u32 m0, m0, s41")
            A("v_add_u32 %s, %s, %s" % (vv, step, vv))
        A("s_sub_u32 %s, %s, 1" % (t2, t2))
        A("s_cmp_lg_u32 %s, 0" % t2)
        A("s_cbranch_scc1 %s" % name)
    dma_loop("L_wq_loop", sWQ, t1)
    if o["b0pos"] == 16: A("s_barrier")
    A("s_mul_i32 %s, %s, 7" % (t0, sH))
    A("s_add_u32 %s, %s, 1" % (t0, t0))
    A("s_lshr_b32 %s, %s, 1" % (t0, t0))
    A("s_lshr_b32 %s, %s, 3" % (t1, sJ))
    A("s_add_u32 %s, %s, %s" % (t0, t0, t1))
    A("s_mul_i32 %s, %s, 3584" % (t1, sQK))
    A("s_add_u32 %s, %s, %s" % (t0, t0, t1))
    A("s_lshl_b32 %s, %s, 7" % (t0, t0))
    A("v_mul_u32_u24 v4, 3584, v6")
    A("v_add3_u32 v4, v4, v7, %s" % t0)
    A("v_xor_b32 v5, 64, v4")
    A("v_add_u32 v5, %d, v5" % (8 * 3584))
    A("s_mov_b32 %s, %d" % (t1, 16 * 3584))
    if o.get("ucontig"):
        A("s_lshr_b32 %s, s2, 1" % t0)
        A("s_min_u32 %s, %s, 111" % (t0, t0))
        A("s_lshl_b32 %s, %s, 10" % (t0, t0))
        A("v_add_u32 v4, %s, v3" % t0)
        A("v_add_u32 v5, %d, v4" % (112 * 1024))
        A("s_mov_b32 %s, %d" % (t1, 224 * 1024))
    A("s_bitcmp0_b32 %s, %d" % (("s2", 0) if o.get("ucontig") else (sJ, 2)))
    A("s_cselect_b64 s[42:43], %s, %s" % (sG, sU))
    A("s_and_b32 %s, %s, 1" % (t3, sH))
    A("s_lshl_b32 %s, %s, 3" % (t0, t3))
    A("s_add_u32 %s, %s, %s" % (sNOFF, t0, sJ))
    A("s_cmp_ge_u32 %s, 32" % sNOFF)
    A("s_cselect_b64 exec, 1, -1")
    dma_loop("L_ff_loop", "s[42:43]", t1)
    A("s_mov_b64 exec, -1")
    if o["vote"]:
        A("s_branch L_unit2")
        LB("L_race")
        C("which of the two copies of the last hand-off lives nearer to this die: race two cold scalar loads of this wave's own lines")
        A("s_lshl_b32 %s, s2, 2" % t0)
        A("s_add_u32 %s, %s, %s" % (t0, t0, sW))
        A("s_lshr_b32 %s, %s, 6" % (t1, t0))
        A("s_lshl_b32 %s, %s, 14" % (t1, t1))
        A("s_and_b32 %s, %s, 63" % (t0, t0))
        A("s_lshl_b32 %s, %s, 7" % (t0, t0))
        A("s_add_u32 %s, %s, %s" % (t0, t0, t1))
        A("s_bitset1_b32 %s, 21" % t0)
        A("s_lshl_b32 %s, %s, 13" % (t1, sW))
        A("s_and_b32 %s, %s, 0x2000" % (t1, t1))
        A("s_or_b32 s46, %s, %s" % (t0, t1))
        A("s_xor_b32 s47, s46, 0x2000")
        A("s_movk_i32 s28, 0x5bd1")
        A("s_movk_i32 s29, 0x5bd1")
        A("s_waitcnt lgkmcnt(0)")
        A("s_load_dword s28, %s, s46" % sWS)
        A("s_load_dword s29, %s, s47" % sWS)
        A("s_waitcnt lgkmcnt(1)")
        A("s_mov_b64 s[48:49], s[28:29]")
        LB("L_race_done")
        A("s_cmpk_lg_i32 s48, 0x5bd1")
        A("s_cselect_b32 %s, 1, 0" % t0)
        A("s_cmpk_lg_i32 s49, 0x5bd1")
        A("s_cselect_b32 %s, 1, 0" % t2)
        A("s_sub_i32 %s, %s, %s" % (t0, t0, t2))
        A("s_sub_i32 %s, 0, %s" % (t2, t0))
        A("s_cmp_eq_u32 %s, 0" % t1)
        A("s_cselect_b32 %s, %s, %s" % (t0, t0, t2))
        A("s_lshl_b32 %s, %s, 2" % (t2, sW))
        A("v_mov_b32 v158, %s" % t2)
        A("v_mov_b32 v159, %s" % t0)
        A("ds_write_b32 v158, v159 offset:%d" % L_VOTE)
        A("s_branch L_attn")
        LB("L_unit2")
    if o["pt1"]:
        C("pull this workgroup's own hand-off lines into L2 before anyone polls them")
        A("s_lshl_b32 %s, %s, 15" % (t0, sH))
        A("s_lshl_b32 %s, %s, 8" % (t1, sJ))
        A("s_add_u32 %s, %s, %s" % (t0, t0, t1))
        A("s_add_u32 %s, %s, 0x%x" % (t0, t0, MB1A))
        A("v_and_b32 v33, 1, v0")
        A("v_bfe_u32 v32, v0, 1, 1")
        A("v_lshlrev_b32 v33, 7, v33")
        A("v_lshl_add_u32 v33, v32, 13, v33")
        A("s_mul_i32 %s, %s, 240" % (t1, sJ))
        A("s_sub_u32 %s, 0x4000, %s" % (t1, t1))
        A("v_cmp_lt_u32 vcc, 3, v0")
        A("v_mov_b32 v32, %s" % t1)
        A("s_nop 0")
        A("v_cndmask_b32 v33, v33, v32, vcc")
        A("v_add_u32 v33, %s, v33" % t0)
        A("global_load_dword v119, v33, %s sc1" % sWS)
    def tlbwarm():
        C("first touch of the pages the later loads use (address translation early, off their queue)")
        A("s_lshl_b32 %s, %s, 24" % (t0, sH))
        A("s_add_u32 %s, %s, 0xF00000" % (t0, t0))
        A("v_mov_b32 v112, %s" % t0)
        A("s_lshl_b32 %s, %s, 19" % (t0, sH))
        A("v_mov_b32 v113, %s" % t0)
        A("s_mul_i32 %s, %s, 0x38000" % (t0, sH))
        A("v_mov_b32 v114, %s" % t0)
        A("v_mov_b32 v115, 0x%x" % MB3)
        A("s_mov_b64 exec, 1")
        A("global_load_dword v116, v112, %s" % sK)
        A("global_load_dword v117, v112, %s" % sV)
        A("global_load_dword v118, v113, %s" % sWO)
        A("global_load_dword v111, v114, %s" % sDN)
        A("global_load_dword v110, v115, %s" % sWS)
        A("s_mov_b64 exec, -1")
    NW = 1 if o["pt1"] else 0
    if o.get("tlbw") == 2:
        tlbwarm(); NW += 5
    if o["b0pos"] == 32:
        if o.get("b0wait") is not None: A("s_waitcnt vmcnt(%d)" % o["b0wait"])
        A("s_barrier")
    stamp(1)
    XF = 12
    A("s_mov_b32 %s, 0xffff0000" % t1)
    A("s_waitcnt vmcnt(%d)" % (32 + NW))
    stamp(2)
    C("layernorm with the reference's bf16 roundings")
    for i in range(4):
        A("v_lshlrev_b32 v%d, 16, v%d" % (XF + 2 * i, 8 + i))
        A("v_and_b32 v%d, %s, v%d" % (XF + 2 * i + 1, t1, 8 + i))
    fill = []
    def F(s): fill.append(s)
    def nop2():
        n = 0
        while fill and n < 2:
            A(fill.pop(0)); n += 1
        if n < 2: A("s_nop %d" % (1 - n))
    TRB = 120
    vAX, vS1, vL1, vL1x, vL1a, vF, vTN, vTB = "v34", "v35", "v36", "v37", "v38", "v39", "v124", "v125"
    sRP, sB1 = "s52", "s53"
    F("v_lshrrev_b32 v126, 4, v0")
    F("v_bfe_u32 v4, v0, 2, 2")
    F("v_lshl_add_u32 v5, v126, 3, v4")
    F("v_and_b32 v6, 3, v0")
    F("v_lshlrev_b32 v7, 3, v6")
    F("v_lshl_add_u32 v5, v5, 7, v7")
    F("v_bfe_u32 v4, v0, 3, 2")
    for ct in range(4):
        F("v_xor_b32 v7, %d, v4" % ct)
        F("v_lshl_add_u32 v%d, v7, 5, v5" % (TRB + ct))
    F("s_lshl_b32 %s, %s, 8" % (t0, sQK))
    F("v_lshl_add_u32 %s, v126, 4, %s" % (vAX, t0))
    F("s_lshl_b32 %s, %s, 15" % (sB1, sH))
    F("s_add_u32 %s, %s, 0x%x" % (sB1, sB1, MB1A))
    def wavesum(v, tmp):
        for rot in (1, 2, 4, 8):
            nop2()
            A("v_add_f32_dpp %s, %s, %s row_ror:%d %s" % (v, v, v, rot, DPP))
        for which in (16, 32):
            A("v_mov_b32 %s, %s" % (tmp, v))
            nop2()
            A("v_permlane%d_swap_b32 %s, %s" % (which, tmp, v))
            A("v_add_f32 %s, %s, %s" % (v, v, tmp))
    def P2(r): return "v[%d:%d]" % (r, r + 1)
    A("v_pk_add_f32 v[22:23], %s, %s" % (P2(XF), P2(XF + 2)))
    A("v_pk_add_f32 v[24:25], %s, %s" % (P2(XF + 4), P2(XF + 6)))
    A("v_pk_add_f32 v[22:23], v[22:23], v[24:25]")
    A("v_add_f32 v22, v22, v23")
    wavesum("v22", "v23")
    A("v_mul_f32 v22, 0x3b000000, v22")
    DV = 24
    for i in range(4):
        A("v_pk_add_f32 %s, %s, v[22:23] op_sel_hi:[1,0] neg_lo:[0,1] neg_hi:[0,1]" % (P2(DV + 2 * i), P2(XF + 2 * i)))
    A("v_cvt_pk_bf16_f32 v22, 0, v22")
    A("v_pk_mul_f32 v[32:33], %s, %s" % (P2(DV), P2(DV)))
    for i in range(1, 4):
        A("v_pk_fma_f32 v[32:33], %s, %s, v[32:33]" % (P2(DV + 2 * i), P2(DV + 2 * i)))
    A("v_add_f32 v32, v32, v33")
    pre = ["v_pk_add_f32 %s, %s, v[22:23] op_sel_hi:[1,0] neg_lo:[0,1] neg_hi:[0,1]" % (P2(XF + 2 * i), P2(XF + 2 * i)) for i in range(4)]
    pre += ["v_cvt_pk_bf16_f32 v%d, 0, v%d" % (XF + i, XF + i) for i in range(8)]
    rest = fill[:]; fill[:] = pre
    wavesum("v32", "v33")
    fill[:] = fill + rest
    A("v_mul_f32 v32, 0x3b000000, v32")
    A("v_cvt_pk_bf16_f32 v32, 0, v32")
    A("v_add_f32 v32, 0x%x, v32" % EPS)
    A("v_cvt_pk_bf16_f32 v32, 0, v32")
    A("v_sqrt_f32 v32, v32")
    A(fill.pop(0))
    A("v_cvt_pk_bf16_f32 v32, 0, v32")
    A("v_rcp_f32 v32, v32")
    A(fill.pop(0))
    for i in range(4):
        A("v_pk_mul_f32 %s, %s, v[32:33] op_sel_hi:[1,0]" % (P2(XF + 2 * i), P2(XF + 2 * i)))
    for i in range(4):
        A("v_cvt_pk_bf16_f32 v%d, v%d, v%d" % (8 + i, XF + 2 * i, XF + 2 * i + 1))
    A("ds_write_b128 v3, v[8:11] offset:%d" % L_XN)
    while fill: A(fill.pop(0))
    A("s_lshl_b32 %s, s55, 2" % t2)
    A("s_add_u32 s55, %s, %s" % (t2, sQK))
    A("s_lshl_b32 %s, s55, 8" % t2)
    A("s_add_u32 %s, %s, %s" % (t2, t2, sB1))
    A("v_lshrrev_b32 v4, 2, v0")
    A("v_lshl_add_u32 %s, v4, 4, %s" % (vS1, t2))
    A("s_waitcnt lgkmcnt(0)")
    AF = 40
    for m in range(4):
        A("ds_read_b128 v[%d:%d], %s offset:%d" % (AF + 4 * m, AF + 4 * m + 3, vAX, L_XN + m * 64))
    A("s_add_u32 %s, %s, 0x%x" % (sTAG, sTAG, TAGC))
    A("v_lshlrev_b32 v4, 2, v6")
    A("v_lshrrev_b32 %s, v4, %s" % (vTN, sTAG))
    A("v_and_b32 %s, 15, %s" % (vTN, vTN))
    A("v_lshlrev_b32 v4, 3, v6")
    A("v_lshrrev_b32 %s, v4, %s" % (vTB, sTAG))
    A("v_and_b32 %s, 0xff, %s" % (vTB, vTB))
    A("s_mov_b32 s44, 0")
    A("s_mov_b32 s45, -1")
    if o["b0pos"] == 40: A("s_barrier")
    stamp(3)
    BF = 56
    D0 = 88
    GR = 24
    def gemv(lbase, vm0):
        def rd(m, ct):
            b = BF + 16 * (m & 1)
            for hh in range(2):
                A("ds_read_b64_tr_b16 v[%d:%d], v%d offset:%d" % (b + 4 * ct + 2 * hh, b + 4 * ct + 2 * hh + 1, TRB + ct, lbase + m * 4096 + hh * 512))
        A("s_waitcnt vmcnt(%d)" % (vm0 + 12))
        for ct in range(4): rd(0, ct)
        for m in range(4):
            b = BF + 16 * (m & 1)
            if m < 3: A("s_waitcnt vmcnt(%d)" % (vm0 + 8 - 4 * m))
            if lbase == L_WQ and o["b0pos"] == 41 + m: A("s_barrier")
            for ct in range(4):
                A("s_waitcnt lgkmcnt(%d)" % (6 if m < 3 else 6 - 2 * ct))
                mfma(D0 + 4 * ct, AF + 4 * m, b + 4 * ct, None if m == 0 else D0 + 4 * ct)
                if m < 3: rd(m + 1, ct)
    def pack(maskc, vt):
        A("s_mov_b32 vcc_lo, 0xffff0000")
        A("s_mov_b32 vcc_hi, 0xffff0000")
        A("s_movk_i32 %s, 0x%x" % (t0, maskc))
        A("s_nop 2")
        A("v_cndmask_b32 v%d, v%d, v%d, vcc" % (GR, D0, D0 + 4))
        A("s_nop 0")
        A("v_cndmask_b32 v%d, v%d, v%d, vcc" % (GR + 1, D0 + 8, D0 + 12))
        A("v_cndmask_b32 v%d, v%d, v%d, s[44:45]" % (GR, GR, GR + 1))
        A("v_and_or_b32 v%d, v%d, %s, %s" % (GR, GR, t0, vt))
        A("v_add_u32 v22, 0x%x, %s" % (MB1B - MB1A, vS1))
        A("s_nop 0")
        for k in range(1, 4):
            A("v_mov_b32_dpp v%d, v%d quad_perm:[%d,%d,%d,%d] %s" % (GR + k, GR, k, k, k, k, DPP))
        A("s_mov_b32 exec_lo, 0x11111111")
        A("s_mov_b32 exec_hi, 0x11111111")
        A("global_store_dwordx4 %s, v[%d:%d], %s" % (vS1, GR, GR + 3, sWS))
        A("global_store_dwordx4 v22, v[%d:%d], %s sc1" % (GR, GR + 3, sWS))
        A("s_mov_b64 exec, -1")
    gemv(L_WQ, 16 + NW)
    if o["b0pos"] == 45: A("s_barrier")
    pack(0xfff0, vTN)
    if o["b0pos"] == 47: A("s_barrier")
    stamp(4)
    XG = 28
    if o["vote"]:
        assert o["b0pos"] <= 47 and not o["hlate"]
        A("v_mov_b32 v4, 0")
        A("ds_read_b128 v[112:115], v4 offset:%d" % L_VOTE)
    A("s_getreg_b32 %s, hwreg(HW_REG_XCC_ID, 0, 4)" % sXCC)
    A("s_and_b32 %s, %s, 0xff" % (t0, sTAG))
    A("s_lshl_b32 %s, %s, 8" % (t2, sXCC))
    A("s_or_b32 s54, %s, %s" % (t0, t2))
    A("v_mov_b32 v%d, s54" % XG)
    for k in range(1, 4):
        A("s_bfe_u32 %s, %s, 0x%x" % (t0, sTAG, 0x80000 | (8 * k)))
        A("v_mov_b32 v%d, %s" % (XG + k, t0))
    if o["vote"]:
        A("s_waitcnt lgkmcnt(0)")
        A("v_add3_u32 v112, v112, v113, v114")
        A("v_add_u32 v112, v112, v115")
        A("v_lshl_add_u32 v%d, v112, 8, v%d" % (XG + 1, XG + 1))
    A("s_lshl_b32 %s, %s, 4" % (t2, sJ))
    A("s_add_u32 %s, %s, %s" % (t2, t2, sB1))
    A("s_add_u32 %s, %s, 0x4000" % (t2, t2))
    A("v_mov_b32 v22, %s" % t2)
    A("v_add_u32 v23, 0x%x, v22" % (MB1B - MB1A))
    A("s_mov_b64 exec, 1")
    A("global_store_dwordx4 v22, v[%d:%d], %s" % (XG, XG + 3, sWS))
    A("global_store_dwordx4 v23, v[%d:%d], %s sc1" % (XG, XG + 3, sWS))
    A("s_mov_b64 exec, -1")
    if o["b0pos"] == 50: A("s_barrier")
    A("s_sub_i32 %s, %s, s55" % (t2, sJ))
    A("s_lshl_b32 %s, %s, 8" % (t2, t2))
    A("s_add_u32 %s, %s, 0x2000" % (t2, t2))
    A("v_add_u32 %s, %s, %s" % (vS1, t2, vS1))
    A("s_cmp_ge_u32 %s, 32" % sNOFF)
    A("s_cbranch_scc1 L_noff2")
    gemv(L_FF, 4 + NW)
    pack(0xff00, vTB)
    LB("L_noff2")
    stamp(7)
    if o.get("nosync"):
        A("s_barrier")
        A("s_mov_b32 %s, 0" % sCNT)
        dump_stamps()
        A("s_endpgm")
    A("v_and_b32 v4, 15, v0")
    A("v_lshlrev_b32 v4, 4, v4")
    A("v_lshl_add_u32 v4, v126, 10, v4")
    A("s_add_u32 %s, %s, 2432" % (t0, sB1))
    A("v_add_u32 %s, %s, v4" % (vL1, t0))
    A("v_and_b32 v4, 31, v0")
    A("s_add_u32 %s, %s, 0x4000" % (t0, sB1))
    A("v_lshl_add_u32 %s, v4, 4, %s" % (vL1x, t0))
    A("s_lshl_b32 %s, %s, 1" % (t2, t3))
    A("s_sub_u32 %s, 8, %s" % (sRP, t2))
    A("s_mul_i32 %s, %s, %s" % (t2, sRP, sJ))
    A("s_sub_u32 %s, %s, 1" % (t0, sRP))
    A("v_and_b32 v4, 7, v0")
    A("v_min_u32 v4, %s, v4" % t0)
    A("v_add_u32 %s, %s, v4" % (vF, t2))
    A("v_lshrrev_b32 v4, 6, %s" % vF)
    A("v_bfe_u32 v5, v0, 3, 1")
    A("v_lshl_add_u32 v4, v4, 1, v5")
    A("v_lshl_add_u32 v4, v4, 2, v126")
    A("v_bfe_u32 v5, %s, 2, 4" % vF)
    A("v_lshlrev_b32 v5, 4, v5")
    A("v_lshl_add_u32 v4, v4, 8, v5")
    A("s_add_u32 %s, %s, 0x2000" % (t0, sB1))
    A("v_add_u32 %s, %s, v4" % (vL1a, t0))
    for k in range(4):
        A("s_bfe_u32 s%d, %s, 0x%x" % (56 + k, sTAG, 0x40000 | (4 * k)))
    A("s_movk_i32 s62, 255")
    A("s_mov_b32 s60, 0x0c0c0400")
    A("s_mov_b32 s61, 0x04000c0c")
    P = 40
    PX, PA_ = 72, 76
    A("s_mov_b32 %s, 0" % sCNT)
    def switch_copy(regs):
        A("s_add_u32 %s, %s, 1" % (sCNT, sCNT))
        A("s_cmp_eq_u32 %s, %d" % (sCNT, o["atries"]))
        A("s_cselect_b32 %s, 0x%x, 0" % (t0, MB1B - MB1A))
        for r in regs: A("v_add_u32 %s, %s, %s" % (r, t0, r))
        A("s_cmp_gt_u32 %s, %d" % (sCNT, o["spinmax"]))
        A("s_cbranch_scc1 L_end")
    def bytecheck(p, dst):
        A("v_perm_b32 v22, v%d, v%d, s60" % (p + 1, p))
        A("v_perm_b32 v23, v%d, v%d, s61" % (p + 3, p + 2))
        A("v_or_b32 v22, v22, v23")
        A("v_cmp_ne_u32 %s, %s, v22" % (dst, sTAG))
    stamp(9)
    LB("L_poll1")
    stamp(8)
    for i in range(2):
        for q in range(4):
            r = P + 16 * i + 4 * q
            A("global_load_dwordx4 v[%d:%d], %s, %s offset:%d sc1" % (r, r + 3, vL1, sWS, i * 4096 + q * 256 - 2432))
    A("global_load_dwordx4 v[%d:%d], %s, %s sc1" % (PX, PX + 3, vL1x, sWS))
    A("global_load_dwordx4 v[%d:%d], %s, %s sc1" % (PA_, PA_ + 3, vL1a, sWS))
    switch_copy([vL1, vL1x, vL1a])
    for g_ in range(8):
        A("s_waitcnt vmcnt(%d)" % (9 - g_))
        for k in range(4):
            A("v_xor_b32 v%d, s%d, v%d" % (P + 4 * g_ + k, 56 + k, P + 4 * g_ + k))
        if g_ == 0:
            A("v_or3_b32 v21, v%d, v%d, v%d" % (P, P + 1, P + 2))
            A("v_or_b32 v21, v21, v%d" % (P + 3))
        else:
            A("v_or3_b32 v21, v21, v%d, v%d" % (P + 4 * g_, P + 4 * g_ + 1))
            A("v_or3_b32 v21, v21, v%d, v%d" % (P + 4 * g_ + 2, P + 4 * g_ + 3))
    A("v_and_b32 v21, 15, v21")
    A("s_waitcnt vmcnt(1)")
    bytecheck(PX, "vcc")
    A("v_cmp_ne_u32 s[46:47], 0, v21")
    if o.get("dbgfail"):
        A("s_cmp_eq_u32 %s, 1" % sCNT)
        A("s_cselect_b32 s84, vcc_lo, s84")
        A("s_cselect_b32 s62, s46, s62")
        A("s_cselect_b32 s63, s47, s63")
    A("s_or_b64 vcc, vcc, s[46:47]")
    A("s_cbranch_vccnz L_poll1")
    stamp(5)
    for i in range(2):
        b = P + 16 * i
        for k in range(4):
            A("v_add_f32 v%d, v%d, v%d" % (b + k, b + k, b + 4 + k))
            A("v_add_f32 v%d, v%d, v%d" % (b + 8 + k, b + 8 + k, b + 12 + k))
        for k in range(4):
            A("v_add_f32 v%d, v%d, v%d" % (b + k, b + k, b + 8 + k))
        A("v_cvt_pk_bf16_f32 v%d, v%d, v%d" % (b, b, b + 1))
        A("v_cvt_pk_bf16_f32 v%d, v%d, v%d" % (b + 1, b + 2, b + 3))
    A("v_lshlrev_b32 v22, 3, v0")
    A("ds_write_b64 v22, v[%d:%d] offset:%d" % (P, P + 1, L_Q))
    A("ds_write_b64 v22, v[%d:%d] offset:%d" % (P + 16, P + 17, L_Q + 512))
    A("v_cmp_ne_u32 vcc, s54, v%d" % PX)
    A("s_cmp_eq_u64 vcc, 0")
    A("s_cselect_b32 %s, 1, 0" % sFAST)
    if o.get("forceslow"): A("s_mov_b32 %s, 0" % sFAST)
    A("v_mov_b32 v26, %s" % sFAST)
    A("v_mov_b32 v27, %s" % sTAG)
    A("v_mov_b32 v22, %d" % L_FLAG)
    A("ds_write_b64 v22, v[26:27]")
    if o["auxearly"]:
        A("s_waitcnt vmcnt(0)")
        bytecheck(PA_, "vcc")
        A("s_cbranch_vccz L_aux_b1")
        A("global_load_dwordx4 v[%d:%d], %s, %s sc1" % (PA_, PA_ + 3, vL1a, sWS))
        LB("L_aux_b1")
    A("s_waitcnt lgkmcnt(0)")
    A("s_barrier")
    if o["vote"]:
        A("v_cmp_gt_i32 vcc, 0, v%d" % (PX + 1))
        A("v_cmp_lt_i32 s[46:47], %s, v%d" % ("s62", PX + 1))
        A("s_bcnt1_i32_b32 %s, vcc_lo" % t0)
        A("s_bcnt1_i32_b32 %s, s46" % t2)
        A("s_cmp_gt_u32 %s, %s" % (t0, t2))
        A("s_cselect_b32 s55, 0x2000, 0")
        if o.get("voteinv"): A("s_xor_b32 s55, s55, 0x2000")
        if o["stamps"]:
            A("s_bcnt1_i32_b32 s63, vcc_lo")
            A("s_lshl_b32 %s, %s, 8" % (t2, t2))
            A("s_or_b32 s63, s63, %s" % t2)
    if o["hlate"]:
        A("s_setprio %d" % o.get("hprio", 0))
        A("s_barrier")
        A("s_barrier")
    A("s_branch L_chk_aux")
    LB("L_poll_aux")
    A("global_load_dwordx4 v[%d:%d], %s, %s sc1" % (PA_, PA_ + 3, vL1a, sWS))
    switch_copy([vL1a])
    LB("L_chk_aux")
    A("s_waitcnt vmcnt(0)")
    bytecheck(PA_, "vcc")
    A("s_cbranch_vccnz L_poll_aux")
    A("s_movk_i32 %s, 0xff00" % t0)
    A("v_and_b32 v23, 1, %s" % vF)
    A("v_cmp_eq_u32 vcc, 0, v23")
    A("v_and_b32 v23, 2, %s" % vF)
    A("v_cmp_eq_u32 s[46:47], 0, v23")
    A("v_cndmask_b32 v24, v%d, v%d, vcc" % (PA_ + 1, PA_))
    A("v_cndmask_b32 v25, v%d, v%d, vcc" % (PA_ + 3, PA_ + 2))
    A("v_cndmask_b32 v24, v25, v24, s[46:47]")
    A("v_and_b32 v24, %s, v24" % t0)
    allred("v24", "v23", "v_add_f32", 16)
    allred("v24", "v23", "v_add_f32", 32)
    A("v_cvt_pk_bf16_f32 v24, v24, v24")
    A("v_and_b32 v24, %s, v24" % t1)
    A("v_mul_f32 v25, 0x%x, v24" % (LOG2E | 0x80000000))
    A("v_exp_f32 v25, v25")
    A("v_mov_b32_dpp v26, v24 row_ror:8 %s" % DPP)
    A("v_add_f32 v25, 1.0, v25")
    A("v_rcp_f32 v25, v25")
    A("v_cmp_le_u32 vcc, %s, v0" % sRP)
    A("v_mul_f32 v25, v24, v25")
    A("v_cvt_pk_bf16_f32 v25, v25, v25")
    A("v_and_b32 v25, %s, v25" % t1)
    A("v_mul_f32 v25, v25, v26")
    A("v_cvt_pk_bf16_f32 v25, v25, v25")
    A("v_cndmask_b32 v25, v25, 0, vcc")
    A("v_lshlrev_b32 v22, 2, v0")
    if o["vote"]:
        A("v_mov_b32 v26, s55")
        A("v_mov_b32 v27, 0")
        A("ds_write_b32 v27, v26 offset:%d" % (L_FLAG + 8))
    A("s_mov_b64 exec, 0xff")
    A("ds_write_b32 v22, v25 offset:%d" % L_H)
    A("s_waitcnt lgkmcnt(0)")
    stamp(6)
    dump_stamps()
    A("s_endpgm")

    role[0] = "A"
    if o.get("alignA"): L.append(".p2align %d" % o["alignA"])
    for _ in range(o.get("shiftA", 0)): A("s_nop 0")
    LB("L_attn")
    vK0, vK1, vV0, vV1 = "v2", "v3", "v4", "v5"
    vWO0, vWO1, vDN0, vDN1, vXF, vXP = "v6", "v7", "v8", "v9", "v10", "v1"
    vS2, vL2, vS25, vL25, vL3, vS3 = "v11", "v12", "v13", "v14", "v15", "v150"
    KR, VR, WOR, DNR, QR, SR, PA, MK = 16, 48, 80, 96, 104, 120, 128, 146
    vM0, vM1, vQA, vOW, vOR, vMLW, vHA = "v151", "v152", "v153", "v154", "v155", "v156", "v157"
    vN, vG, vN16, vP = "v120", "v121", "v122", "v123"
    u0, u1 = "v124", "v125"
    s4JW = "s41"
    C("K and V: load i = 1 KB block (4 keys) number 128 i + 4j + w of the head's window; K goes through LDS")
    A("s_lshl_b32 %s, %s, 24" % (t0, sH))
    A("s_lshl_b32 %s, %s, 2" % (s4JW, sJ))
    A("s_add_u32 %s, %s, %s" % (s4JW, s4JW, sW))
    A("s_lshl_b32 %s, %s, 10" % (t2, s4JW))
    A("s_add_u32 %s, %s, %s" % (t0, t0, t2))
    A("s_add_u32 %s, %s, 0xF00000" % (t0, t0))
    A("v_and_b32 %s, 15, v0" % vN)
    A("v_lshrrev_b32 %s, 4, v0" % vG)
    A("v_lshlrev_b32 %s, 4, %s" % (vN16, vN))
    A("v_lshl_add_u32 %s, v0, 4, %s" % (vV0, t0))
    A("v_lshlrev_b32 %s, 6, %s" % (u0, vG))
    A("v_xor_b32 %s, %s, %s" % (vK0, u0, vV0))
    A("s_lshl_b32 %s, %s, 13" % (t1, sW))
    A("s_add_u32 m0, %s, %d" % (t1, L_K))
    A("s_mov_b32 s42, 0x20000")
    A("s_movk_i32 s43, 1024")
    if not o["vote"]: A("s_waitcnt lgkmcnt(0)")
    if o.get("tlbw") == 1:
        A("s_cmp_lg_u32 %s, 0" % sW)
        A("s_cbranch_scc1 L_notlb")
        tlbwarm()
        A("s_waitcnt vmcnt(0)")
        LB("L_notlb")
    if o["vote"]: A("s_waitcnt lgkmcnt(1)")
    if o["b0pos"]: A("s_barrier")
    stamp(1)
    issued = [0]
    def load(w, txt):
        if issued[0] >= w:
            A("s_waitcnt vmcnt(%d)" % (w - 1))
        A(txt); issued[0] += 1
    def rot(i): return (i * o["rotm"]) & 127
    def kload(i):
        load(o["WK"], "global_load_lds_dwordx4 %s, %s %s" % (vK0, sK, nt))
        if i < 7:
            A("s_add_u32 m0, m0, s43")
            A("v_xor_b32 %s, %d, %s" % (vK0, (((i & 3) ^ ((i + 1) & 3)) << 4) | ((rot(i) ^ rot(i + 1)) << 10), vK0))
            A("v_add_u32 %s, s42, %s" % (vK0, vK0))
    nk_first = min(o["WK"], 8)
    if o.get("bal"):
        A("v_and_b32 v158, 7, v0")
        A("v_lshlrev_b32 v158, 2, v158")
        A("global_load_dword v159, v158, s[24:25] sc1")
    for i in range(nk_first): kload(i)
    C("address and mask setup in the shadow of the K loads")
    A("s_lshl_b32 %s, %s, 19" % (t0, sH))
    A("s_lshl_b32 %s, %s, 14" % (t2, sJ))
    A("s_add_u32 %s, %s, %s" % (t0, t0, t2))
    A("s_lshl_b32 %s, %s, 8" % (t3, sW))
    A("s_add_u32 %s, %s, %s" % (t0, t0, t3))
    A("s_add_u32 %s, %s, 0x1000" % (t0, t0))
    A("v_lshl_add_u32 %s, %s, 10, %s" % (vDN0, vG, vN16))
    A("v_add_u32 %s, %s, %s" % (vWO0, t0, vDN0))
    A("v_add_u32 %s, 0x2000, %s" % (vWO1, vWO0))
    A("s_mul_i32 %s, %s, 7" % (t0, sH))
    A("s_add_u32 %s, %s, 1" % (t0, t0))
    A("s_lshr_b32 %s, %s, 1" % (t0, t0))
    A("s_lshl_b32 %s, %s, 6" % (t0, t0))
    A("s_and_b32 %s, %s, 1" % (t2, sH))
    A("s_lshl_b32 %s, %s, 1" % (t2, t2))
    A("s_sub_u32 %s, 8, %s" % (t1, t2))
    A("s_mul_i32 %s, %s, %s" % (t2, t1, sJ))
    A("s_add_u32 %s, %s, %s" % (t0, t0, t2))
    A("s_lshl_b32 %s, %s, 10" % (t0, t0))
    A("s_add_u32 %s, %s, %s" % (t0, t0, t3))
    A("v_add_u32 %s, %s, %s" % (vDN0, t0, vDN0))
    A("s_sub_u32 %s, %s, 5" % (t1, t1))
    A("v_min_u32 %s, %s, %s" % (vDN1, t1, vG))
    A("v_lshl_add_u32 %s, %s, 10, %s" % (vDN1, vDN1, vN16))
    A("s_add_u32 %s, %s, 4096" % (t0, t0))
    A("v_add_u32 %s, %s, %s" % (vDN1, t0, vDN1))
    A("v_and_b32 %s, 1, v0" % vP)
    A("v_and_b32 %s, 1, %s" % (u0, vG))
    A("s_lshl_b32 %s, %s, 3" % (t2, s4JW))
    A("v_lshl_add_u32 %s, %s, 2, %s" % (vXF, u0, t2))
    A("s_lshl_b32 %s, %s, 16" % (t0, sH))
    A("s_lshl_b32 %s, %s, 14" % (t2, sW))
    A("s_lshl_b32 %s, %s, 6" % (t3, sJ))
    A("s_add_u32 %s, %s, %s" % (t2, t2, t3))
    A("s_add_u32 %s, %s, %s" % (t2, t2, t0))
    A("s_add_u32 %s, %s, 0x%x" % (t2, t2, MB2))
    A("v_lshrrev_b32 %s, 3, v0" % vS2)
    A("v_bfe_u32 %s, v0, 1, 2" % u1)
    A("v_lshlrev_b32 %s, 4, %s" % (u1, u1))
    A("v_lshl_add_u32 %s, %s, 11, %s" % (vS2, vS2, u1))
    A("v_add_u32 %s, %s, %s" % (vS2, t2, vS2))
    lay = o.get("lay25", 0)
    A("v_lshrrev_b32 %s, 1, %s" % (vS25, vN))
    A("v_lshlrev_b32 %s, %d, %s" % (u1, (5, 10, 10, 5)[lay], vP))
    A("v_lshl_add_u32 %s, %s, 11, %s" % (vS25, vS25, u1))
    A("v_lshl_add_u32 %s, %s, %d, %s" % (vS25, u0, (4, 9, 4, 4)[lay], vS25))
    if lay:
        A("s_mul_i32 %s, %s, %d" % (t3, sJ, (0, 48, 32, 0)[lay]))
        A("s_sub_u32 %s, %s, %s" % (t2, t2, t3))
    A("s_add_u32 %s, %s, 0x%x" % (t2, t2, MB25 - MB2))
    A("v_add_u32 %s, %s, %s" % (vS25, t2, vS25))
    A("s_lshl_b32 %s, %s, 11" % (t3, sJ))
    A("s_add_u32 %s, %s, %s" % (t0, t0, t3))
    A("s_add_u32 %s, %s, 0x%x" % (t0, t0, MB2))
    A("v_lshl_add_u32 %s, v0, 4, %s" % (vL2, t0))
    if lay == 2:
        A("s_lshr_b32 %s, %s, 1" % (t3, sW))
        A("s_lshl_b32 %s, %s, 10" % (t3, t3))
        A("s_add_u32 %s, %s, %s" % (t0, t0, t3))
        A("s_and_b32 %s, %s, 1" % (t3, sW))
        A("s_lshl_b32 %s, %s, 4" % (t3, t3))
    else:
        A("s_lshl_b32 %s, %s, %d" % (t3, sW, (4, 9, 0, 4)[lay]))
    A("s_add_u32 %s, %s, %s" % (t0, t0, t3))
    A("s_add_u32 %s, %s, 0x%x" % (t0, t0, MB25 - MB2))
    A("v_and_b32 %s, 31, v0" % u1)
    A("v_lshl_add_u32 %s, %s, %d, %s" % (vL25, u1, (6, 4, 5, 6)[lay], t0))
    if lay == 3:
        A("s_lshl_b32 %s, %s, 16" % (t0, sH))
        A("s_add_u32 %s, %s, 0x%x" % (t0, t0, MB25))
        A("s_lshl_b32 %s, %s, 11" % (t2, sJ))
        A("s_lshl_b32 %s, %s, 9" % (t3, sW))
        A("s_add_u32 %s, %s, %s" % (t2, t2, t3))
        A("s_add_u32 %s, %s, %s" % (t2, t2, t0))
        A("v_lshl_add_u32 %s, %s, 5, %s" % (vS25, vN, t2))
        A("v_lshl_add_u32 %s, %s, 4, %s" % (vS25, u0, vS25))
        A("s_lshl_b32 %s, %s, 6" % (t2, sJ))
        A("s_lshl_b32 %s, %s, 4" % (t3, sW))
        A("s_add_u32 %s, %s, %s" % (t2, t2, t3))
        A("s_add_u32 %s, %s, %s" % (t2, t2, t0))
        A("v_lshl_add_u32 %s, %s, 11, %s" % (vL25, u1, t2))
    A("s_lshr_b32 %s, %s, 1" % (t0, sJ))
    A("s_lshl_b32 %s, %s, 14" % (t0, t0))
    A("s_and_b32 %s, %s, 1" % (t3, sJ))
    A("s_lshl_b32 %s, %s, 12" % (t3, t3))
    A("s_add_u32 %s, %s, %s" % (t0, t0, t3))
    A("s_lshl_b32 %s, %s, 7" % (t3, sW))
    A("s_add_u32 %s, %s, %s" % (t0, t0, t3))
    A("s_add_u32 %s, %s, 0x%x" % (t0, t0, MB3))
    A("v_lshl_add_u32 %s, %s, 4, %s" % (u0, u0, t0))
    A("v_and_b32 %s, 7, v0" % u1)
    A("v_lshl_add_u32 %s, %s, 9, %s" % (vL3, u1, u0))
    A("s_lshl_b32 %s, %s, 9" % (t3, sH))
    A("v_lshl_add_u32 %s, %s, 13, %s" % (u0, vP, u0))
    A("v_add_u32 %s, %s, %s" % (vS3, t3, u0))
    A("v_lshlrev_b32 %s, 4, %s" % (u1, vP))
    def pretouch2():
        C("pull this workgroup's incoming hand-off lines into L2 (waves 0,1: hop 2; waves 2,3: hop 2.5)")
        A("s_and_b32 %s, %s, 1" % (t0, sW))
        A("s_lshl_b32 %s, %s, 10" % (t0, t0))
        A("s_lshr_b32 %s, %s, 1" % (t3, sW))
        A("s_mul_i32 %s, %s, 0x%x" % (t3, t3, MB25 - MB2))
        A("s_add_u32 %s, %s, %s" % (t0, t0, t3))
        A("v_add_u32 v158, %s, %s" % (t0, vL2))
        if o["pretouch"] in ("r", "k"):
            A("global_load_dword v159, v158, %s sc1" % sWS); issued[0] += 1
    if o["pretouch"] == "r" or isinstance(o["pretouch"], int): pretouch2()
    A("v_mov_b32 %s, 0xffff" % u0)
    A("v_lshlrev_b32 %s, %s, %s" % (u0, u1, u0))
    A("v_and_b32 %s, 2, v0" % u1)
    A("v_cmp_eq_u32 vcc, 0, %s" % u1)
    A("v_lshrrev_b32 %s, 1, %s" % (u1, vN))
    A("v_lshlrev_b32 %s, 2, %s" % (vHA, vG))
    SEL = 160
    A("v_mov_b32 v%d, 0x0c0c0c0c" % (SEL + 2))
    A("v_mov_b32 v%d, 0x01000100" % (SEL + 3))
    A("v_bfi_b32 v%d, %s, v%d, v%d" % (SEL + 3, u0, SEL + 3, SEL + 2))
    A("v_cndmask_b32 v%d, v%d, v%d, vcc" % (SEL, SEL + 2, SEL + 3))
    A("v_cndmask_b32 v%d, v%d, v%d, vcc" % (SEL + 1, SEL + 3, SEL + 2))
    A("v_and_b32 v%d, 0x02020202, %s" % (SEL + 3, u0))
    A("v_cndmask_b32 v%d, 0, v%d, vcc" % (SEL + 2, SEL + 3))
    A("v_cndmask_b32 v%d, v%d, 0, vcc" % (SEL + 3, SEL + 3))
    A("v_add_u32 v%d, v%d, v%d" % (SEL + 2, SEL + 2, SEL))
    A("v_add_u32 v%d, v%d, v%d" % (SEL + 3, SEL + 3, SEL + 1))
    for r in range(4):
        A("v_cmp_eq_u32 s[%d:%d], %d, %s" % (44 + 2 * r, 45 + 2 * r, r, u1))
    A("v_lshrrev_b32 %s, 2, %s" % (vMLW, vN))
    A("v_lshlrev_b32 %s, 4, %s" % (u1, vG))
    A("v_lshl_add_u32 %s, %s, 8, %s" % (vQA, vMLW, u1))
    for r in range(4):
        A("v_cndmask_b32 v%d, 0, %s, s[%d:%d]" % (MK + r, u0, 44 + 2 * r, 45 + 2 * r))
    A("s_lshl_b32 %s, %s, 11" % (t0, sW))
    A("v_lshl_add_u32 %s, %s, 9, %s" % (vOW, vG, vN16))
    A("v_add_u32 %s, %s, %s" % (vOW, t0, vOW))
    A("s_lshl_b32 %s, %s, 3" % (t0, sW))
    A("v_lshl_add_u32 %s, %s, 5, %s" % (vMLW, vMLW, t0))
    A("v_bfe_u32 %s, v0, 1, 1" % u0)
    A("v_lshrrev_b32 %s, 2, v0" % u1)
    A("v_lshlrev_b32 %s, 4, %s" % (u1, u1))
    A("v_lshl_add_u32 %s, %s, 8, %s" % (u1, u0, u1))
    A("v_lshl_add_u32 %s, %s, 3, %s" % (u1, vP, u1))
    A("s_lshl_b32 %s, %s, 9" % (t0, sW))
    A("v_add_u32 %s, %s, %s" % (vOR, t0, u1))
    KA = 140
    A("v_and_b32 %s, 3, v0" % u0)
    A("v_lshrrev_b32 %s, 2, %s" % (u1, vN))
    A("v_lshlrev_b32 %s, 8, %s" % (u1, u1))
    A("v_lshl_add_u32 %s, %s, 10, %s" % (u0, u0, u1))
    A("v_xor_b32 %s, %s, %s" % (u1, vG, vN))
    A("v_lshl_add_u32 %s, %s, 4, %s" % (u0, u1, u0))
    A("s_lshl_b32 %s, %s, 13" % (t1, sW))
    A("v_add_u32 v%d, %s, %s" % (KA, t1, u0))
    for s_ in range(1, 4):
        A("v_xor_b32 v%d, %d, v%d" % (KA + s_, s_ << 6, KA))
    for _ in range(o.get("delayA", 0)): A("s_nop 3")
    def issue_rest(WK_, W_):
        o_wk = o["WK"]; o["WK"] = WK_
        for i in range(nk_first, 8): kload(i)
        o["WK"] = o_wk
        if o["pretouch"] == "k": pretouch2()
        if o.get("xearly"):
            A("global_load_dword %s, %s, %s" % (vXP, vXF, sX)); issued[0] += 1
        for i in range(8):
            r = VR + i * 4
            load(W_, "global_load_dwordx4 v[%d:%d], %s, %s %s" % (r, r + 3, vV0, sV, nt))
            if i < 7:
                if rot(i) ^ rot(i + 1): A("v_xor_b32 %s, %d, %s" % (vV0, (rot(i) ^ rot(i + 1)) << 10, vV0))
                A("v_add_u32 %s, s42, %s" % (vV0, vV0))
    if o.get("bal"):
        C("a group that started well after others asks memory with a wider window")
        A("s_waitcnt vmcnt(%d)" % issued[0])
        A("v_sub_u32 v158, s90, v159")
        A("v_cmp_ne_u32 vcc, 0, v159")
        A("v_cmp_lt_i32 s[44:45], %d, v158" % o.get("theta", 40))
        A("s_and_b32 s62, vcc_lo, s44")
        A("s_and_b32 s62, s62, 0xff")
        A("s_bcnt1_i32_b32 s62, s62")
        A("s_cmp_ge_u32 s62, %d" % o.get("lateth", 2))
        A("s_cbranch_scc1 L_wide")
        keep = issued[0]
        issue_rest(o["WK"], o["W"])
        A("s_branch L_issued")
        LB("L_wide")
        issued[0] = keep
        issue_rest(o["WK"] + o["bal"], o["W"] + o["bal"])
        LB("L_issued")
    elif o.get("c3"):
        A("s_lshr_b32 %s, %s, 2" % (t0, sJ))
        A("s_cmp_eq_u32 %s, 3" % t0)
        A("s_cbranch_scc1 L_wide")
        keep = issued[0]
        issue_rest(o["WK"], o["W"])
        A("s_branch L_issued")
        LB("L_wide")
        issued[0] = keep
        issue_rest(o["WK"] + o["c3"], o["W"] + o.get("c3v", o["c3"]))
        LB("L_issued")
    else:
        issue_rest(o["WK"], o["W"])
    tail = []
    tail.append("global_load_dword %s, %s, %s" % (vXP, vXF, sX))
    for a in range(2):
        r = DNR + a * 4
        tail.append("global_load_dwordx4 v[%d:%d], %s, %s %s" % (r, r + 3, (vDN0, vDN1)[a], sDN, nt))
    for m in range(4):
        r = WOR + m * 4
        tail.append("global_load_dwordx4 v[%d:%d], %s, %s offset:%d %s" % (r, r + 3, (vWO0, vWO1)[m >> 1], sWO, (0, -4096)[(m & 1) == 0], nt))
    if isinstance(o["pretouch"], int):
        tail.insert(o["pretouch"], "global_load_dword v159, v158, %s sc1" % sWS)
    if o.get("xearly"):
        xl = [t_ for t_ in tail if vXP + "," in t_][0]; tail.remove(xl)
    nav = [0]
    def tail_issue(n):
        for _ in range(n):
            if tail:
                A(tail.pop(0)); nav[0] += 1
    A("s_waitcnt vmcnt(8)")
    for t in range(2):
        for s in range(4):
            r = KR + (t * 4 + s) * 4
            A("ds_read_b128 v[%d:%d], v%d offset:%d" % (r, r + 3, KA + s, L_K + t * 4096))
    tail_issue(o["ntail0"])
    stamp(2)
    A("s_waitcnt lgkmcnt(0)")
    A("s_barrier")
    stamp(3)
    for s in range(4):
        A("ds_read_b128 v[%d:%d], %s offset:%d" % (QR + 4 * s, QR + 4 * s + 3, vQA, L_Q + s * 64))
    if "a" in o["tsp"]: tail_issue(1)
    A("s_mov_b32 s46, 0x%x" % SCALE)
    A("s_mov_b32 %s, 0xffff0000" % t1)
    A("s_mov_b32 s48, 0x%x" % LOG2E)
    for s in range(4):
        A("s_waitcnt lgkmcnt(%d)" % (3 - s))
        for t in range(2):
            mfma(SR + 4 * t, KR + (t * 4 + s) * 4, QR + 4 * s, None if s == 0 else SR + 4 * t)
    T = KR
    vH0, vH1, vFL, vTG = "v%d" % (T + 28), "v%d" % (T + 29), "v%d" % (T + 26), "v%d" % (T + 27)
    A("v_mov_b32 %s, %d" % (vFL, L_FLAG))
    A("s_lshl_b32 %s, %s, 5" % (t3, sW))
    A("v_mov_b32 v%d, %s" % (T + 31, t3))
    A("ds_read_b64 v[%d:%d], %s" % (T + 26, T + 27, vFL))
    if "b" in o["tsp"]:
        tail_issue(1); A("s_nop 1")
    else: A("s_nop 2")
    C("scores: bf16(qk) -> * scale -> bf16   (the reference's two roundings)")
    for i in range(8):
        A("v_cvt_pk_bf16_f32 v%d, 0, v%d" % (SR + i, SR + i))
    for i in range(4):
        A("v_pk_mul_f32 %s, %s, s[46:47] op_sel_hi:[1,0]" % (P2(SR + 2 * i), P2(SR + 2 * i)))
    for i in range(8):
        A("v_cvt_pk_bf16_f32 v%d, 0, v%d" % (SR + i, SR + i))
    vm, vt, vl = "v%d" % (T + 4), "v%d" % (T + 6), "v%d" % (T + 5)
    A("v_max3_f32 %s, v%d, v%d, v%d" % (vm, SR, SR + 1, SR + 2))
    A("v_max3_f32 %s, v%d, v%d, v%d" % (vt, SR + 3, SR + 4, SR + 5))
    A("v_max3_f32 %s, %s, v%d, v%d" % (vm, vm, SR + 6, SR + 7))
    A("v_max_f32 %s, %s, %s" % (vm, vm, vt))
    allred(vm, vt, "v_max_f32", 16)
    if "c" in o["tsp"]: tail_issue(1)
    allred(vm, vt, "v_max_f32", 32)
    A("v_mul_f32 %s, s48, %s" % (vm, vm))
    for i in range(4):
        A("v_pk_fma_f32 %s, %s, s[48:49], %s op_sel_hi:[1,0,0] neg_lo:[0,0,1] neg_hi:[0,0,1]" % (P2(SR + 2 * i), P2(SR + 2 * i), P2(T + 4)))
    for i in range(8):
        A("v_exp_f32 v%d, v%d" % (SR + i, SR + i))
    if "d" in o["tsp"]: tail_issue(1)
    for i in range(4):
        A("v_cvt_pk_bf16_f32 v%d, v%d, v%d" % (T + 8 + i, SR + 2 * i, SR + 2 * i + 1))
    for i in range(8):
        for r in range(2):
            A("v_perm_b32 v%d, v%d, v%d, v%d" % (PA + 2 * i + r, T + 8 + (i >> 1), T + 8 + (i >> 1), SEL + 2 * (i & 1) + r))
    stamp(4)
    O0, O1, Y = QR, QR + 4, QR + 8
    def pv(i):
        A("s_waitcnt vmcnt(%d)" % (7 - i + nav[0]))
        if i >= o["tlag"]: tail_issue((2 if i < o.get("tdbl", 0) else 1) if i < o.get("tlast", 7) else 9)
        vr = VR + 4 * i
        mfma16(O0, PA + 2 * i, vr, None if i == 0 else O0)
        mfma16(O1, PA + 2 * i, vr + 2, None if i == 0 else O1)
    A("v_pk_add_f32 %s, %s, %s" % (P2(SR), P2(SR), P2(SR + 2)))
    A("v_pk_add_f32 %s, %s, %s" % (P2(SR + 4), P2(SR + 4), P2(SR + 6)))
    A("v_pk_add_f32 %s, %s, %s" % (P2(SR), P2(SR), P2(SR + 4)))
    A("v_add_f32 %s, v%d, v%d" % (vl, SR, SR + 1))
    allred(vl, vt, "v_add_f32", 16)
    allred(vl, vt, "v_add_f32", 32)
    A("ds_write_b64 %s, v[%d:%d] offset:%d" % (vMLW, T + 4, T + 5, L_ML))
    A("s_waitcnt lgkmcnt(0)")
    A("v_readfirstlane_b32 %s, %s" % (sFAST, vFL))
    A("v_readfirstlane_b32 %s, %s" % (sTAG, vTG))
    HA = T + 16
    ML = T
    OB = T + 8
    G2 = SR
    vM, vLs = "v124", "v125"
    for i in range(o["b2"]): pv(i)
    if o.get("dbgb2"): A("s_memrealtime s[70:71]")
    A("s_barrier")
    if o.get("dbgb2"): A("s_memrealtime s[72:73]")
    A("ds_read_b128 v[%d:%d], v%d offset:%d" % (ML, ML + 3, T + 31, L_ML))
    A("ds_read_b128 v[%d:%d], v%d offset:%d" % (ML + 4, ML + 7, T + 31, L_ML + 16))
    if not o["hlate"]:
        A("ds_read_b32 %s, %s offset:%d" % (vH0, vHA, L_H))
        A("ds_read_b32 %s, %s offset:%d" % (vH1, vHA, L_H + 16))
    if o["vote"]:
        A("v_mov_b32 v%d, 0" % (T + 30))
        A("ds_read_b32 v%d, v%d offset:%d" % (T + 30, T + 30, L_FLAG + 8))
    A("s_mov_b32 vcc_lo, 0xcccccccc")
    A("s_mov_b32 vcc_hi, 0xcccccccc")
    A("v_mov_b32 v%d, %s" % (G2 + 3, sTAG))
    A("s_waitcnt lgkmcnt(%d)" % ((0 if o["hlate"] else 2) + (1 if o["vote"] else 0)))
    A("v_max3_f32 %s, v%d, v%d, v%d" % (vM, ML, ML + 2, ML + 4))
    A("v_max_f32 %s, %s, v%d" % (vM, vM, ML + 6))
    for w_ in range(4):
        A("v_sub_f32 v%d, v%d, %s" % (ML + 2 * w_, ML + 2 * w_, vM))
    for w_ in range(4):
        A("v_exp_f32 v%d, v%d" % (ML + 2 * w_, ML + 2 * w_))
    A("s_waitcnt lgkmcnt(0)")
    A("v_mul_f32 %s, v%d, v%d" % (vLs, ML, ML + 1))
    for w_ in range(1, 4):
        A("v_fmac_f32 %s, v%d, v%d" % (vLs, ML + 2 * w_, ML + 2 * w_ + 1))
    def h_operands():
        for a in range(2):
            for r in range(4):
                A("v_and_b32 v%d, %s, v%d" % (HA + 4 * a + r, (vH0, vH1)[a], MK + r))
    if not o["hlate"]: h_operands()
    if o["vote"]: A("v_add_u32 %s, v%d, %s" % (vL3, T + 30, vL3))
    A("v_cndmask_b32 v%d, %s, %s, vcc" % (G2 + 2, vM, vLs))
    for i in range(o["b2"], 8): pv(i)
    stamp(5)
    if o.get("nosync"):
        A("s_waitcnt vmcnt(0)")
        stamp(6)
        A("s_branch L_done")
    A("s_nop 6")
    A("ds_write_b128 %s, v[%d:%d] offset:%d" % (vOW, O0, O0 + 3, L_O))
    A("ds_write_b128 %s, v[%d:%d] offset:%d" % (vOW, O1, O1 + 3, L_O + 256))
    A("s_waitcnt lgkmcnt(0)")
    A("s_barrier")
    for w_ in range(4):
        A("ds_read_b64 v[%d:%d], %s offset:%d" % (OB + 2 * w_, OB + 2 * w_ + 1, vOR, L_O + w_ * 2048))
    A("s_cmp_eq_u32 %s, 0" % sFAST)
    for w_ in range(4):
        A("s_waitcnt lgkmcnt(%d)" % (3 - w_))
        op = "v_mul_f32" if w_ == 0 else "v_fmac_f32"
        A("%s v%d, v%d, v%d" % (op, G2, ML + 2 * w_, OB + 2 * w_))
        A("%s v%d, v%d, v%d" % (op, G2 + 1, ML + 2 * w_, OB + 2 * w_ + 1))
    tails = []
    def publish(addr, g, name):
        A("s_cbranch_scc1 L_slow_%s" % name)
        A("global_store_dwordx4 %s, v[%d:%d], %s %s" % (addr, g, g + 3, sWS, o.get("stfl", "")))
        LB("L_back_%s" % name)
        tails.append((name, addr, g))
    A("v_cvt_pk_bf16_f32 v%d, v%d, v%d" % (G2, G2, G2 + 1))
    A("s_mov_b32 s44, 0x55555555")
    A("s_mov_b32 s45, 0x55555555")
    A("v_mov_b32_dpp v%d, v%d quad_perm:[1,1,3,3] %s" % (G2 + 1, G2, DPP))
    A("s_mov_b64 exec, s[44:45]")
    publish(vS2, G2, "h2")
    A("s_mov_b64 exec, -1")
    stamp(6)
    P = T
    for i in range(2):
        A("global_load_dwordx4 v[%d:%d], %s, %s offset:%d sc1" % (P + 4 * i, P + 4 * i + 3, vL2, sWS, i * 1024))
    if o["hlate"]:
        A("s_barrier")
        A("ds_read_b32 %s, %s offset:%d" % (vH0, vHA, L_H))
        A("ds_read_b32 %s, %s offset:%d" % (vH1, vHA, L_H + 16))
    A("s_mov_b32 %s, %d" % (sCNT, o["spinmax"]))
    vTAG = "v127"
    A("v_mov_b32 %s, %s" % (vTAG, sTAG))
    for k in range(4):
        A("s_mov_b32 s%d, 0x%x" % (56 + k, 0x07060500 | k))
        A("s_bfe_u32 s%d, %s, 0x%x" % (60 + k if k < 2 else 50 + k, sTAG, 0x80000 | (8 * k)))
    TB = ["s60", "s61", "s52", "s53"]
    if o["hlate"]:
        A("s_waitcnt lgkmcnt(0)")
        h_operands()
    A("s_waitcnt vmcnt(3)")
    for a in range(2):
        mfma(Y, HA + 4 * a, DNR + 4 * a, None if a == 0 else Y)
    A("s_branch L_chk2")
    LB("L_poll2")
    MS = ["s[44:45]", "s[46:47]"]
    for i in range(2):
        if o["mask2"]: A("s_mov_b64 exec, %s" % MS[i])
        A("global_load_dwordx4 v[%d:%d], %s, %s offset:%d sc1" % (P + 4 * i, P + 4 * i + 3, vL2, sWS, i * 1024))
    if o["mask2"]: A("s_mov_b64 exec, -1")
    A("s_sub_u32 %s, %s, 1" % (sCNT, sCNT))
    A("s_cbranch_scc1 L_end")
    LB("L_chk2")
    A("s_waitcnt vmcnt(0)")
    A("v_max_f32 %s, v%d, v%d" % (vM, P + 2, P + 6))
    for i in range(2):
        A("v_cmp_ne_u32 %s, %s, v%d" % (MS[i], sTAG, P + 4 * i + 3))
    A("v_mov_b32_dpp %s, %s quad_perm:[0,0,2,2] %s" % (vM, vM, DPP))
    A("s_or_b64 vcc, %s, %s" % (MS[0], MS[1]))
    A("s_cbranch_scc1 L_poll2")
    stamp(7)
    U = T + 8
    def unp(i, k):
        if k & 1: A("v_and_b32 v%d, %s, v%d" % (U + 4 * i + k, t1, P + 4 * i + (k >> 1)))
        else: A("v_lshlrev_b32 v%d, 16, v%d" % (U + 4 * i + k, P + 4 * i + (k >> 1)))
    vt2 = "v126"
    A("v_max_f32_dpp %s, %s, %s row_ror:4 %s" % (vM, vM, vM, DPP))
    unp(0, 0); unp(0, 1)
    A("v_max_f32_dpp %s, %s, %s row_ror:8 %s" % (vM, vM, vM, DPP))
    A("v_mov_b32 %s, %s" % (vt2, vM))
    unp(0, 2); unp(0, 3)
    A("v_permlane16_swap_b32 %s, %s" % (vt2, vM))
    A("v_max_f32 %s, %s, %s" % (vM, vM, vt2))
    A("v_mov_b32 %s, %s" % (vt2, vM))
    unp(1, 0); unp(1, 1)
    A("v_permlane32_swap_b32 %s, %s" % (vt2, vM))
    A("v_max_f32 %s, %s, %s" % (vM, vM, vt2))
    w0, w1 = "v120", "v121"
    A("v_sub_f32_dpp %s, v%d, %s quad_perm:[0,0,2,2] %s" % (w0, P + 2, vM, DPP))
    A("v_sub_f32_dpp %s, v%d, %s quad_perm:[0,0,2,2] %s" % (w1, P + 6, vM, DPP))
    A("v_exp_f32 %s, %s" % (w0, w0))
    A("v_exp_f32 %s, %s" % (w1, w1))
    unp(1, 2); unp(1, 3)
    den, tA, tB = "v126", "v122", "v123"
    A("v_mul_f32_dpp %s, v%d, %s quad_perm:[1,1,3,3] %s" % (den, P + 2, w0, DPP))
    A("v_fmac_f32_dpp %s, v%d, %s quad_perm:[1,1,3,3] %s" % (den, P + 6, w1, DPP))
    for k in range(4):
        A("v_mul_f32 v%d, %s, v%d" % (U + k, w0, U + k))
        if k == 1: A("v_add_f32_dpp %s, %s, %s row_ror:4 %s" % (den, den, den, DPP))
    A("v_add_f32_dpp %s, %s, %s row_ror:8 %s" % (den, den, den, DPP))
    for k in (0, 2, 1, 3):
        A("v_fmac_f32 v%d, %s, v%d" % (U + k, w1, U + 4 + k))
    A("v_mov_b32 %s, %s" % (tA, den))
    A("v_permlane32_swap_b32 v%d, v%d" % (U, U + 2))
    A("v_permlane32_swap_b32 v%d, v%d" % (U + 1, U + 3))
    A("v_permlane32_swap_b32 %s, %s" % (tA, den))
    A("v_add_f32 v%d, v%d, v%d" % (U, U, U + 2))
    A("v_add_f32 v%d, v%d, v%d" % (U + 1, U + 1, U + 3))
    A("v_add_f32 %s, %s, %s" % (den, den, tA))
    A("s_cmp_eq_u32 %s, 0" % sFAST)
    A("v_permlane16_swap_b32 v%d, v%d" % (U, U + 1))
    A("v_mov_b32 %s, %s" % (tA, den))
    A("v_add_f32 v%d, v%d, v%d" % (U, U, U + 1))
    A("s_nop 0")
    A("v_permlane16_swap_b32 %s, %s" % (tA, den))
    A("v_add_f32_dpp v%d, v%d, v%d row_ror:4 %s" % (U, U, U, DPP))
    A("v_add_f32 %s, %s, %s" % (den, den, tA))
    A("v_rcp_f32 %s, %s" % (den, den))
    A("v_add_f32_dpp v%d, v%d, v%d row_ror:8 %s" % (U, U, U, DPP))
    a0 = "v124"
    A("v_mul_f32 %s, v%d, %s" % (a0, U, den))
    A("v_cvt_pk_bf16_f32 %s, %s, %s" % (a0, a0, a0))
    A("s_mov_b32 %s, %d" % (sCNT, o["spinmax"]))
    A("s_nop 0")
    WA = T
    for m in range(4):
        for r in range(4):
            A("v_and_b32_dpp v%d, %s, v%d row_newbcast:%d %s" % (WA + 4 * m + r, a0, MK + r, m, DPP))
        if m > 0:
            mfma(Y, WA + 4 * (m - 1), WOR + 4 * (m - 1), Y)
    A("s_nop 1")
    mfma(Y, WA + 12, WOR + 12, Y)
    A("s_mov_b32 exec_hi, 0")
    A("s_nop 6")
    for k in range(4):
        A("v_perm_b32 v%d, v%d, %s, s%d" % (Y + k, Y + k, vTAG, 56 + k))
    publish(vS25, Y, "h25")
    stamp(8)
    NP = o["np25"]
    PS = T + 16
    if o.get("ack25"): A("s_waitcnt vmcnt(0)")
    for k in range(NP):
        A("global_load_dwordx4 v[%d:%d], %s, %s sc1" % (PS + 4 * k, PS + 4 * k + 3, vL25, sWS))
    LB("L_poll25")
    for k in range(NP):
        A("s_waitcnt vmcnt(%d)" % (NP - 1))
        for q in range(4):
            A("v_xor_b32 v%d, %s, v%d" % (P + q, TB[q], PS + 4 * k + q))
        A("v_or3_b32 %s, v%d, v%d, v%d" % (tA, P, P + 1, P + 2))
        A("v_or_b32 %s, %s, v%d" % (tA, tA, P + 3))
        A("v_and_b32 %s, 0xff, %s" % (tA, tA))
        A("v_cmp_ne_u32 vcc, 0, %s" % tA)
        if o["mask25"]:
            A("s_and_b64 exec, exec, vcc")
            A("s_cbranch_scc0 L_got25")
        else:
            A("s_cbranch_vccz L_got25")
        A("global_load_dwordx4 v[%d:%d], %s, %s sc1" % (PS + 4 * k, PS + 4 * k + 3, vL25, sWS))
    A("s_sub_u32 %s, %s, 1" % (sCNT, sCNT))
    A("s_cbranch_scc0 L_poll25")
    A("s_endpgm")
    LB("L_got25")
    A("s_mov_b64 exec, -1")
    stamp(9)
    x_, y_ = "v%d" % P, "v%d" % (P + 1)
    A("v_permlane16_swap_b32 v%d, v%d" % (P, P + 2))
    A("v_permlane16_swap_b32 v%d, v%d" % (P + 1, P + 3))
    A("v_add_f32 %s, %s, v%d" % (x_, x_, P + 2))
    A("v_add_f32 %s, %s, v%d" % (y_, y_, P + 3))
    fl = ["v_mov_b32 v%d, %s" % (P + 3, sTAG), "s_and_b32 %s, %s, 7" % (t0, sJ), "s_cmp_eq_u32 %s, %s" % (t0, sH), "s_nop 0"]
    for rot_ in (1, 2, 4, 8):
        A(fl.pop(0))
        A("v_add_f32_dpp %s, %s, %s row_ror:%d %s" % (x_, x_, x_, rot_, DPP))
        A("v_add_f32_dpp %s, %s, %s row_ror:%d %s" % (y_, y_, y_, rot_, DPP))
    A("s_cbranch_scc1 L_final")
    A("s_mov_b64 exec, 0x%x" % (0x30003 if o["rep3"] or o["vote"] else 0x10001))
    A("global_store_dwordx4 %s, v[%d:%d], %s sc1" % (vS3, P, P + 3, sWS))
    if o.get("wb"):
        A("s_or_b32 %s, %s, %s" % (t0, sW, sJ) if o["wb"] == 1 else "s_and_b32 %s, %s, 3" % (t0, sW))
        A("s_cmp_lg_u32 %s, %d" % (t0, 8 if o["wb"] == 1 else 0))
        A("s_cbranch_scc1 L_done")
        A("buffer_wbl2 sc1")
    A("s_branch L_done")
    LB("L_final")
    A("s_lshl_b32 %s, 0x10001, %s" % (t0, sH))
    A("s_andn2_b32 exec_lo, 0xff00ff, %s" % t0)
    A("s_mov_b32 exec_hi, 0")
    A("s_mov_b32 %s, %d" % (sCNT, o["spinmax"]))
    NP = o["np3"]
    PS = VR
    for k in range(NP):
        A("global_load_dwordx4 v[%d:%d], %s, %s sc1" % (PS + 4 * k, PS + 4 * k + 3, vL3, sWS))
    LB("L_poll3")
    for k in range(NP):
        A("s_waitcnt vmcnt(%d)" % (NP - 1))
        A("v_cmp_ne_u32 vcc, %s, v%d" % (sTAG, PS + 4 * k + 3))
        A("v_mov_b32 v%d, v%d" % (P, PS + 4 * k))
        A("v_mov_b32 v%d, v%d" % (P + 1, PS + 4 * k + 1))
        A("s_and_b64 exec, exec, vcc")
        A("s_cbranch_scc0 L_got3")
        A("global_load_dwordx4 v[%d:%d], %s, %s sc1" % (PS + 4 * k, PS + 4 * k + 3, vL3, sWS))
    A("s_sub_u32 %s, %s, 1" % (sCNT, sCNT))
    A("s_cbranch_scc0 L_poll3")
    A("s_endpgm")
    LB("L_got3")
    stamp(10)
    A("s_mov_b32 exec_lo, -1")
    A("v_lshlrev_b32 %s, 16, %s" % (tA, vXP))
    A("v_and_b32 %s, %s, %s" % (tB, t1, vXP))
    for pat in ("quad_perm:[1,0,3,2]", "quad_perm:[2,3,0,1]", "row_half_mirror"):
        A("v_add_f32_dpp %s, %s, %s %s %s" % (x_, x_, x_, pat, DPP))
        A("v_add_f32_dpp %s, %s, %s %s %s" % (y_, y_, y_, pat, DPP))
        if pat != "row_half_mirror": A("s_nop 0")
    A("v_add_f32 %s, %s, %s" % (x_, x_, tA))
    A("v_add_f32 %s, %s, %s" % (y_, y_, tB))
    A("v_cvt_pk_bf16_f32 %s, %s, %s" % (x_, x_, y_))
    A("s_mov_b64 exec, 0x10001")
    A("global_store_dword %s, %s, %s" % (vXF, x_, sOUT))
    A("s_or_b32 %s, s2, %s" % (t0, sW))
    A("s_cbranch_scc1 L_done")
    C("the next launch must not mistake this launch's hand-off words for its own")
    A("v_mov_b32 %s, 0" % tA)
    A("v_mov_b32 %s, %s" % (tB, sTAG))
    A("global_store_dword %s, %s, %s sc1" % (tA, tB, sWS))
    LB("L_done")
    if o.get("amp"):
        if o["amp"] == "end": A("s_memrealtime s[88:89]")
        A("s_waitcnt lgkmcnt(0)")
        A("s_sub_u32 s88, s88, %s" % ("s86" if o.get("amp0") else "s90"))
        A("s_mul_i32 s88, s88, %d" % o.get("ampk", 10))
        A("s_min_u32 s88, s88, 20000")
        A("s_add_u32 s88, s88, 1500")
        LB("L_ampspin")
        A("s_memrealtime s[92:93]")
        A("s_waitcnt lgkmcnt(0)")
        A("s_sub_u32 s92, s92, s90")
        A("s_cmp_lt_u32 s92, s88")
        A("s_cbranch_scc1 L_ampspin")
    if o.get("pad"):
        LB("L_padspin")
        A("s_memrealtime s[92:93]")
        A("s_waitcnt lgkmcnt(0)")
        A("s_sub_u32 s92, s92, s90")
        A("s_cmp_lt_u32 s92, %d" % o["pad"])
        A("s_cbranch_scc1 L_padspin")
    dump_stamps()
    A("s_endpgm")
    for name, addr, g in tails:
        LB("L_slow_%s" % name)
        A("global_store_dwordx4 %s, v[%d:%d], %s sc1" % (addr, g, g + 3, sWS))
        A("s_branch L_back_%s" % name)
    LB("L_end")
    A("s_endpgm")
    head = HEADER.format(lds=o.get("lds", LDS_BYTES), k=KNAME); foot = FOOTER.format(k=KNAME, vg=o.get("vg", 168), sg=96)
    if o["align"]: L = align_runs(L, head, foot, o.get("minrun", 3), o.get("nopmin", 6))
    return head + "\n".join(L) + foot


if __name__ == "__main__":
    kw = {}
    out = "parallel_sum__sliding_block_cached__swiglu_ffn__decode.s"
    for a in sys.argv[1:]:
        k, v = a.split("=", 1)
        if k == "out": out = v; continue
        try: v = int(v)
        except ValueError: pass
        kw[k] = v
    open(out, "w").write(gen(**kw))
```

```python
import sys

KNAME = "parallel_sum__sliding_block_cached__swiglu_ffn__decode_kernel"

HEADER = """; Kernarg layout for this problem (96 bytes, ptrs only, base s[0:1]):
;   offset  72: d_out     shape=(1, 1, 512) dtype=bfloat16
; @launch grid=(256,1,1) block=(320,1,1) lds={lds}
.amdgcn_target "amdgcn-amd-amdhsa--gfx950"
.text
.globl {k}
.p2align 8
.type {k},@function
{k}:
"""
FOOTER = """
.section .rodata,"a"
.p2align 6
.amdhsa_kernel {k}
  .amdhsa_next_free_vgpr {vg}
  .amdhsa_next_free_sgpr {sg}
  .amdhsa_accum_offset {vg}
  .amdhsa_group_segment_fixed_size 0
  .amdhsa_kernarg_size 96
  .amdhsa_user_sgpr_count 2
  .amdhsa_user_sgpr_kernarg_segment_ptr 1
  .amdhsa_system_sgpr_workgroup_id_x 1
.end_amdhsa_kernel
"""

MB1A = 0x40000
MB1B = 0x80000
MB2 = 0x100000
MB25 = 0x180000
MB3 = 0x200000
STAMPS = 0x10000000
L_WQ = 0
L_FF = 16384
L_XN = 32768
L_Q = 33792
L_H = 34816
L_FLAG = 34848
L_ML = 34880
L_O = 35072
L_K = L_O + 8192
L_K = (L_K + 1023) // 1024 * 1024
LDS_BYTES = L_K + 32768
TAGC = 0x9E3779B9
LOG2E = 0x3FB8AA3B
SCALE = 0x3DB504F3
EPS = 0x3727C5AC
DPP = "row_mask:0xf bank_mask:0xf"

DEF = dict(stamps=False, spinmax=200000, WK=4, W=6, Wtail=8, b0pos=40, nt="nt", pretouch="k", atries=24,
           prefetch=True, b2=5, ntail0=0, tlag=0, mask2=True, pt1=True, rotm=4, rep3=True)


def gen(**kw):
    o = dict(DEF); o.update(kw)
    L = []
    def A(s): L.append("    " + s)
    def LB(s): L.append(s + ":")
    def C(s): L.append("    ; " + s)
    nt = o["nt"]
    NSTAMP = 12
    role = ["U"]
    def stamp(i):
        if o["stamps"] and (i in (0, 11) or o.get("sel") is None or ("%s%d" % (role[0], i)) in o["sel"].split(",")):
            A("s_memrealtime s[%d:%d]" % (64 + 2 * i, 65 + 2 * i))
    def mfma(d, a, b, c):
        A("v_mfma_f32_16x16x32_bf16 v[%d:%d], v[%d:%d], v[%d:%d], %s" % (d, d + 3, a, a + 3, b, b + 3, "0" if c is None else "v[%d:%d]" % (c, c + 3)))
    def mfma16(d, a, b, c):
        A("v_mfma_f32_16x16x16_bf16 v[%d:%d], v[%d:%d], v[%d:%d], %s" % (d, d + 3, a, a + 1, b, b + 1, "0" if c is None else "v[%d:%d]" % (c, c + 3)))
    def allred(v, tmp, op, which):
        A("v_mov_b32 %s, %s" % (tmp, v))
        A("s_nop 1")
        A("v_permlane%d_swap_b32 %s, %s" % (which, tmp, v))
        A("%s %s, %s, %s" % (op, v, v, tmp))
    sX, sK, sV, sWQ, sWO, sG, sU, sDN, sOUT, sWS = "s[4:5]", "s[6:7]", "s[8:9]", "s[10:11]", "s[12:13]", "s[16:17]", "s[18:19]", "s[20:21]", "s[22:23]", "s[26:27]"
    sW, sH, sJ, sTAG, sXCC, sCNT, sFAST = "s30", "s31", "s32", "s33", "s34", "s35", "s36"
    t0, t1, t2, t3 = "s37", "s38", "s39", "s40"
    def dump_stamps():
        if not o["stamps"]: return
        A("s_mov_b64 exec, 1")
        stamp(11)
        A("s_waitcnt lgkmcnt(0)")
        A("s_mul_i32 %s, s2, 5" % t0)
        A("s_add_u32 %s, %s, %s" % (t0, t0, sW))
        A("s_lshl_b32 %s, %s, 7" % (t0, t0))
        A("s_add_u32 %s, %s, 0x%x" % (t0, t0, STAMPS))
        A("v_mov_b32 v2, %s" % t0)
        for i in range(NSTAMP):
            A("v_mov_b32 v3, s%d" % (64 + 2 * i))
            A("global_store_dword v2, v3, %s offset:%d" % (sWS, 4 * i))
        A("v_mov_b32 v3, %s" % (sCNT if role[0] == "U" or not o.get("asym") else "s56"))
        A("global_store_dword v2, v3, %s offset:%d" % (sWS, 4 * NSTAMP))
        if o.get("dbgfail"):
            for q_, r_ in enumerate(("s84", "s62", "s63")):
                A("v_mov_b32 v3, %s" % r_)
                A("global_store_dword v2, v3, %s offset:%d" % (sWS, 4 * NSTAMP + 8 + 4 * q_))
        A("s_getreg_b32 %s, hwreg(HW_REG_HW_ID)" % t1)
        A("v_mov_b32 v3, %s" % t1)
        A("global_store_dword v2, v3, %s offset:%d" % (sWS, 4 * NSTAMP + 4))

    stamp(0)
    if o.get("pad"): A("s_memrealtime s[90:91]")
    A("s_cmp_ge_u32 s2, 256")
    A("s_cbranch_scc1 L_end")
    A("s_load_dwordx16 s[4:19], s[0:1], 0")
    A("s_load_dwordx8 s[20:27], s[0:1], 64")
    A("v_lshrrev_b32 v1, 6, v0")
    A("v_and_b32 v0, 63, v0")
    A("v_readfirstlane_b32 %s, v1" % sW)
    A("s_and_b32 %s, s2, 7" % sH)
    A("s_lshr_b32 %s, s2, 3" % sJ)
    A("s_cmp_eq_u32 %s, 4" % sW)
    A("s_cbranch_scc0 L_attn")

    C("wave 4: layernorm, one [128 x 64] tile of wq and one of gate/up, exchange of q and of the FFN hidden values")
    A("s_setprio 3")
    if o["prefetch"]:
        A("s_getpc_b64 s[28:29]")
        LB("L_pc")
        A("v_lshlrev_b32 v2, 7, v0")
        A("v_min_u32 v2, L_end-L_pc, v2")
        A("global_load_dword v127, v2, s[28:29]")
    sQK, sNOFF = "s50", "s51"
    A("v_lshlrev_b32 v3, 4, v0")
    A("v_lshrrev_b32 v6, 3, v0")
    A("v_and_b32 v5, 2, v6")
    A("v_and_b32 v7, 7, v0")
    A("v_xor_b32 v5, v5, v7")
    A("v_lshlrev_b32 v7, 4, v5")
    A("s_and_b32 %s, %s, 3" % (sQK, sJ))
    A("s_lshl_b32 %s, %s, 10" % (t0, sH))
    A("s_lshr_b32 %s, %s, 2" % (t1, sJ))
    A("s_lshl_b32 %s, %s, 7" % (t1, t1))
    A("s_lshl_b32 %s, %s, 20" % (t2, sQK))
    A("s_add_u32 %s, %s, %s" % (t0, t0, t1))
    A("s_add_u32 %s, %s, %s" % (t0, t0, t2))
    A("v_lshl_add_u32 v4, v6, 13, v7")
    A("v_add_u32 v4, %s, v4" % t0)
    A("v_xor_b32 v5, 64, v4")
    A("v_add_u32 v5, 0x10000, v5")
    if o["pt1"]:
        C("pull this workgroup's own hand-off lines into L2 before anyone polls them")
        A("s_lshl_b32 %s, %s, 15" % (t0, sH))
        A("s_lshl_b32 %s, %s, 8" % (t1, sJ))
        A("s_add_u32 %s, %s, %s" % (t0, t0, t1))
        A("s_add_u32 %s, %s, 0x%x" % (t0, t0, MB1A))
        A("v_and_b32 v33, 1, v0")
        A("v_bfe_u32 v32, v0, 1, 1")
        A("v_lshlrev_b32 v33, 7, v33")
        A("v_lshl_add_u32 v33, v32, 13, v33")
        A("s_mul_i32 %s, %s, 240" % (t1, sJ))
        A("s_sub_u32 %s, 0x4000, %s" % (t1, t1))
        A("v_cmp_lt_u32 vcc, 3, v0")
        A("v_mov_b32 v32, %s" % t1)
        A("s_nop 0")
        A("v_cndmask_b32 v33, v33, v32, vcc")
        A("v_add_u32 v33, %s, v33" % t0)
    A("s_mov_b32 m0, %d" % L_WQ)
    A("s_mov_b32 %s, 0x20000" % t1)
    if o.get("ucontig"):
        A("s_lshl_b32 %s, s2, 10" % t0)
        A("v_add_u32 v4, %s, v3" % t0)
        A("v_add_u32 v5, 0x40000, v4")
        A("s_mov_b32 %s, 0x80000" % t1)
    A("s_movk_i32 s41, 1024")
    A("s_waitcnt lgkmcnt(0)")
    A("global_load_dwordx4 v[8:11], v3, %s" % sX)
    A("s_load_dword %s, %s, 0" % (sTAG, sWS))
    if o["pt1"]:
        A("global_load_dword v119, v33, %s sc1" % sWS)
    def dma_loop(name, base, step):
        A("s_mov_b32 %s, 4" % t2)
        LB(name)
        for i in range(4):
            vv = ("v4", "v5")[i & 1]
            A("global_load_lds_dwordx4 %s, %s %s" % (vv, base, nt))
            A("s_add_u32 m0, m0, s41")
            A("v_add_u32 %s, %s, %s" % (vv, step, vv))
        A("s_sub_u32 %s, %s, 1" % (t2, t2))
        A("s_cmp_lg_u32 %s, 0" % t2)
        A("s_cbranch_scc1 %s" % name)
    dma_loop("L_wq_loop", sWQ, t1)
    if o["b0pos"] == 16: A("s_barrier")
    A("s_mul_i32 %s, %s, 7" % (t0, sH))
    A("s_add_u32 %s, %s, 1" % (t0, t0))
    A("s_lshr_b32 %s, %s, 1" % (t0, t0))
    A("s_lshr_b32 %s, %s, 3" % (t1, sJ))
    A("s_add_u32 %s, %s, %s" % (t0, t0, t1))
    A("s_mul_i32 %s, %s, 3584" % (t1, sQK))
    A("s_add_u32 %s, %s, %s" % (t0, t0, t1))
    A("s_lshl_b32 %s, %s, 7" % (t0, t0))
    A("v_mul_u32_u24 v4, 3584, v6")
    A("v_add3_u32 v4, v4, v7, %s" % t0)
    A("v_xor_b32 v5, 64, v4")
    A("v_add_u32 v5, %d, v5" % (8 * 3584))
    A("s_mov_b32 %s, %d" % (t1, 16 * 3584))
    if o.get("ucontig"):
        A("s_lshr_b32 %s, s2, 1" % t0)
        A("s_min_u32 %s, %s, 111" % (t0, t0))
        A("s_lshl_b32 %s, %s, 10" % (t0, t0))
        A("v_add_u32 v4, %s, v3" % t0)
        A("v_add_u32 v5, %d, v4" % (112 * 1024))
        A("s_mov_b32 %s, %d" % (t1, 224 * 1024))
    A("s_bitcmp0_b32 %s, %d" % (("s2", 0) if o.get("ucontig") else (sJ, 2)))
    A("s_cselect_b64 s[42:43], %s, %s" % (sG, sU))
    A("s_and_b32 %s, %s, 1" % (t3, sH))
    A("s_lshl_b32 %s, %s, 3" % (t0, t3))
    A("s_add_u32 %s, %s, %s" % (sNOFF, t0, sJ))
    A("s_cmp_ge_u32 %s, 32" % sNOFF)
    A("s_cselect_b64 exec, 1, -1")
    dma_loop("L_ff_loop", "s[42:43]", t1)
    A("s_mov_b64 exec, -1")
    def tlbwarm():
        C("first touch of the pages the later loads use (address translation early, off their queue)")
        A("s_lshl_b32 %s, %s, 24" % (t0, sH))
        A("s_add_u32 %s, %s, 0xF00000" % (t0, t0))
        A("v_mov_b32 v112, %s" % t0)
        A("s_lshl_b32 %s, %s, 19" % (t0, sH))
        A("v_mov_b32 v113, %s" % t0)
        A("s_mul_i32 %s, %s, 0x38000" % (t0, sH))
        A("v_mov_b32 v114, %s" % t0)
        A("v_mov_b32 v115, 0x%x" % MB3)
        A("s_mov_b64 exec, 1")
        A("global_load_dword v116, v112, %s" % sK)
        A("global_load_dword v117, v112, %s" % sV)
        A("global_load_dword v118, v113, %s" % sWO)
        A("global_load_dword v111, v114, %s" % sDN)
        A("global_load_dword v110, v115, %s" % sWS)
        A("s_mov_b64 exec, -1")
    NW = 0
    if o.get("tlbw") == 2:
        tlbwarm(); NW = 5
    if o["b0pos"] == 32:
        if o.get("b0wait") is not None: A("s_waitcnt vmcnt(%d)" % o["b0wait"])
        A("s_barrier")
    stamp(1)
    XF = 12
    A("s_mov_b32 %s, 0xffff0000" % t1)
    A("s_waitcnt vmcnt(%d)" % ((33 if o["pt1"] else 32) + NW))
    stamp(2)
    C("layernorm with the reference's bf16 roundings")
    for i in range(4):
        A("v_lshlrev_b32 v%d, 16, v%d" % (XF + 2 * i, 8 + i))
        A("v_and_b32 v%d, %s, v%d" % (XF + 2 * i + 1, t1, 8 + i))
    fill = []
    def F(s): fill.append(s)
    def nop2():
        n = 0
        while fill and n < 2:
            A(fill.pop(0)); n += 1
        if n < 2: A("s_nop %d" % (1 - n))
    TRB = 120
    vAX, vS1, vL1, vL1x, vL1a, vF, vTN, vTB = "v34", "v35", "v36", "v37", "v38", "v39", "v124", "v125"
    sRP, sB1 = "s52", "s53"
    F("v_lshrrev_b32 v126, 4, v0")
    F("v_bfe_u32 v4, v0, 2, 2")
    F("v_lshl_add_u32 v5, v126, 3, v4")
    F("v_and_b32 v6, 3, v0")
    F("v_lshlrev_b32 v7, 3, v6")
    F("v_lshl_add_u32 v5, v5, 7, v7")
    F("v_bfe_u32 v4, v0, 3, 2")
    for ct in range(4):
        F("v_xor_b32 v7, %d, v4" % ct)
        F("v_lshl_add_u32 v%d, v7, 5, v5" % (TRB + ct))
    F("s_lshl_b32 %s, %s, 8" % (t0, sQK))
    F("v_lshl_add_u32 %s, v126, 4, %s" % (vAX, t0))
    F("s_lshl_b32 %s, %s, 15" % (sB1, sH))
    F("s_add_u32 %s, %s, 0x%x" % (sB1, sB1, MB1A))
    def wavesum(v, tmp):
        for rot in (1, 2, 4, 8):
            nop2()
            A("v_add_f32_dpp %s, %s, %s row_ror:%d %s" % (v, v, v, rot, DPP))
        for which in (16, 32):
            A("v_mov_b32 %s, %s" % (tmp, v))
            nop2()
            A("v_permlane%d_swap_b32 %s, %s" % (which, tmp, v))
            A("v_add_f32 %s, %s, %s" % (v, v, tmp))
    def sum8(dst, base, tmp):
        A("v_add_f32 %s, v%d, v%d" % (dst, base, base + 1))
        A("v_add_f32 %s, v%d, v%d" % (tmp, base + 2, base + 3))
        A("v_add_f32 %s, %s, v%d" % (dst, dst, base + 4))
        A("v_add_f32 %s, %s, v%d" % (tmp, tmp, base + 5))
        A("v_add_f32 %s, %s, v%d" % (dst, dst, base + 6))
        A("v_add_f32 %s, %s, v%d" % (tmp, tmp, base + 7))
        A("v_add_f32 %s, %s, %s" % (dst, dst, tmp))
    sum8("v22", XF, "v23")
    wavesum("v22", "v23")
    A("v_mul_f32 v22, 0x3b000000, v22")
    DV = 24
    for i in range(8):
        A("v_sub_f32 v%d, v%d, v22" % (DV + i, XF + i))
    A("v_mul_f32 v32, v%d, v%d" % (DV, DV))
    A("v_mul_f32 v23, v%d, v%d" % (DV + 1, DV + 1))
    for i in range(2, 8):
        A("v_fmac_f32 %s, v%d, v%d" % (("v32", "v23")[i & 1], DV + i, DV + i))
    A("v_add_f32 v32, v32, v23")
    wavesum("v32", "v23")
    A("v_mul_f32 v32, 0x3b000000, v32")
    A("v_cvt_pk_bf16_f32 v22, v22, v32")
    A("v_and_b32 v32, %s, v22" % t1)
    A("v_lshlrev_b32 v22, 16, v22")
    A("v_add_f32 v32, 0x%x, v32" % EPS)
    A("v_cvt_pk_bf16_f32 v32, v32, v32")
    A("v_and_b32 v32, %s, v32" % t1)
    A("v_sqrt_f32 v32, v32")
    for i in range(8):
        A("v_sub_f32 v%d, v%d, v22" % (XF + i, XF + i))
    A("v_cvt_pk_bf16_f32 v32, v32, v32")
    A("v_and_b32 v32, %s, v32" % t1)
    A("v_rcp_f32 v32, v32")
    for i in range(4):
        A("v_cvt_pk_bf16_f32 v%d, v%d, v%d" % (8 + i, XF + 2 * i, XF + 2 * i + 1))
    for i in range(4):
        A("v_lshlrev_b32 v%d, 16, v%d" % (XF + 2 * i, 8 + i))
        A("v_and_b32 v%d, %s, v%d" % (XF + 2 * i + 1, t1, 8 + i))
    for i in range(8):
        A("v_mul_f32 v%d, v%d, v32" % (XF + i, XF + i))
    for i in range(4):
        A("v_cvt_pk_bf16_f32 v%d, v%d, v%d" % (8 + i, XF + 2 * i, XF + 2 * i + 1))
    while fill: A(fill.pop(0))
    A("ds_write_b128 v3, v[8:11] offset:%d" % L_XN)
    A("s_lshl_b32 %s, %s, 8" % (t2, sJ))
    A("s_add_u32 %s, %s, %s" % (t2, t2, sB1))
    A("v_lshrrev_b32 v4, 2, v0")
    A("v_lshl_add_u32 %s, v4, 4, %s" % (vS1, t2))
    A("s_waitcnt lgkmcnt(0)")
    AF = 40
    for m in range(4):
        A("ds_read_b128 v[%d:%d], %s offset:%d" % (AF + 4 * m, AF + 4 * m + 3, vAX, L_XN + m * 64))
    A("s_add_u32 %s, %s, 0x%x" % (sTAG, sTAG, TAGC))
    A("v_lshlrev_b32 v4, 2, v6")
    A("v_lshrrev_b32 %s, v4, %s" % (vTN, sTAG))
    A("v_and_b32 %s, 15, %s" % (vTN, vTN))
    A("v_lshlrev_b32 v4, 3, v6")
    A("v_lshrrev_b32 %s, v4, %s" % (vTB, sTAG))
    A("v_and_b32 %s, 0xff, %s" % (vTB, vTB))
    A("s_mov_b32 s44, 0")
    A("s_mov_b32 s45, -1")
    if o["b0pos"] == 40: A("s_barrier")
    stamp(3)
    BF = 56
    D0 = 88
    GR = 24
    def gemv(lbase, vm0):
        def rd(m, ct):
            b = BF + 16 * (m & 1)
            for hh in range(2):
                A("ds_read_b64_tr_b16 v[%d:%d], v%d offset:%d" % (b + 4 * ct + 2 * hh, b + 4 * ct + 2 * hh + 1, TRB + ct, lbase + m * 4096 + hh * 512))
        A("s_waitcnt vmcnt(%d)" % (vm0 + 12))
        for ct in range(4): rd(0, ct)
        for m in range(4):
            b = BF + 16 * (m & 1)
            if m < 3: A("s_waitcnt vmcnt(%d)" % (vm0 + 8 - 4 * m))
            for ct in range(4):
                A("s_waitcnt lgkmcnt(%d)" % (6 if m < 3 else 6 - 2 * ct))
                mfma(D0 + 4 * ct, AF + 4 * m, b + 4 * ct, None if m == 0 else D0 + 4 * ct)
                if m < 3: rd(m + 1, ct)
    def pack(maskc, vt):
        A("s_mov_b32 vcc_lo, 0xffff0000")
        A("s_mov_b32 vcc_hi, 0xffff0000")
        A("s_movk_i32 %s, 0x%x" % (t0, maskc))
        A("s_nop 2")
        A("v_cndmask_b32 v%d, v%d, v%d, vcc" % (GR, D0, D0 + 4))
        A("s_nop 0")
        A("v_cndmask_b32 v%d, v%d, v%d, vcc" % (GR + 1, D0 + 8, D0 + 12))
        A("v_cndmask_b32 v%d, v%d, v%d, s[44:45]" % (GR, GR, GR + 1))
        A("v_and_or_b32 v%d, v%d, %s, %s" % (GR, GR, t0, vt))
        A("v_add_u32 v22, 0x%x, %s" % (MB1B - MB1A, vS1))
        A("s_nop 0")
        for k in range(1, 4):
            A("v_mov_b32_dpp v%d, v%d quad_perm:[%d,%d,%d,%d] %s" % (GR + k, GR, k, k, k, k, DPP))
        A("s_mov_b32 exec_lo, 0x11111111")
        A("s_mov_b32 exec_hi, 0x11111111")
        A("global_store_dwordx4 %s, v[%d:%d], %s" % (vS1, GR, GR + 3, sWS))
        A("global_store_dwordx4 v22, v[%d:%d], %s sc1" % (GR, GR + 3, sWS))
        A("s_mov_b64 exec, -1")
    gemv(L_WQ, 16 + NW)
    if o["b0pos"] == 45: A("s_barrier")
    pack(0xfff0, vTN)
    stamp(4)
    XG = 28
    A("s_getreg_b32 %s, hwreg(HW_REG_XCC_ID, 0, 4)" % sXCC)
    A("s_and_b32 %s, %s, 0xff" % (t0, sTAG))
    A("s_lshl_b32 %s, %s, 8" % (t2, sXCC))
    A("s_or_b32 s54, %s, %s" % (t0, t2))
    A("v_mov_b32 v%d, s54" % XG)
    for k in range(1, 4):
        A("s_bfe_u32 %s, %s, 0x%x" % (t0, sTAG, 0x80000 | (8 * k)))
        A("v_mov_b32 v%d, %s" % (XG + k, t0))
    A("s_lshl_b32 %s, %s, 4" % (t2, sJ))
    A("s_add_u32 %s, %s, %s" % (t2, t2, sB1))
    A("s_add_u32 %s, %s, 0x4000" % (t2, t2))
    A("v_mov_b32 v22, %s" % t2)
    A("v_add_u32 v23, 0x%x, v22" % (MB1B - MB1A))
    A("s_mov_b64 exec, 1")
    A("global_store_dwordx4 v22, v[%d:%d], %s" % (XG, XG + 3, sWS))
    A("global_store_dwordx4 v23, v[%d:%d], %s sc1" % (XG, XG + 3, sWS))
    A("s_mov_b64 exec, -1")
    if o["b0pos"] == 50: A("s_barrier")
    A("v_add_u32 %s, 0x2000, %s" % (vS1, vS1))
    A("s_cmp_ge_u32 %s, 32" % sNOFF)
    A("s_cbranch_scc1 L_noff2")
    gemv(L_FF, 4 + NW)
    pack(0xff00, vTB)
    LB("L_noff2")
    stamp(7)
    if o.get("nosync"):
        A("s_barrier")
        A("s_mov_b32 %s, 0" % sCNT)
        dump_stamps()
        A("s_endpgm")
    A("v_and_b32 v4, 15, v0")
    A("v_lshlrev_b32 v4, 4, v4")
    A("v_lshl_add_u32 v4, v126, 10, v4")
    A("s_add_u32 %s, %s, 2432" % (t0, sB1))
    A("v_add_u32 %s, %s, v4" % (vL1, t0))
    A("v_and_b32 v4, 31, v0")
    A("s_add_u32 %s, %s, 0x4000" % (t0, sB1))
    A("v_lshl_add_u32 %s, v4, 4, %s" % (vL1x, t0))
    A("s_lshl_b32 %s, %s, 1" % (t2, t3))
    A("s_sub_u32 %s, 8, %s" % (sRP, t2))
    A("s_mul_i32 %s, %s, %s" % (t2, sRP, sJ))
    A("s_sub_u32 %s, %s, 1" % (t0, sRP))
    A("v_and_b32 v4, 7, v0")
    A("v_min_u32 v4, %s, v4" % t0)
    A("v_add_u32 %s, %s, v4" % (vF, t2))
    A("v_lshrrev_b32 v4, 6, %s" % vF)
    A("v_bfe_u32 v5, v0, 3, 1")
    A("v_lshl_add_u32 v4, v4, 1, v5")
    A("v_lshl_add_u32 v4, v4, 2, v126")
    A("v_bfe_u32 v5, %s, 2, 4" % vF)
    A("v_lshlrev_b32 v5, 4, v5")
    A("v_lshl_add_u32 v4, v4, 8, v5")
    A("s_add_u32 %s, %s, 0x2000" % (t0, sB1))
    A("v_add_u32 %s, %s, v4" % (vL1a, t0))
    for k in range(4):
        A("s_bfe_u32 s%d, %s, 0x%x" % (56 + k, sTAG, 0x40000 | (4 * k)))
    A("s_mov_b32 s60, 0x0c0c0400")
    A("s_mov_b32 s61, 0x04000c0c")
    P = 40
    PX, PA_ = 72, 76
    A("s_mov_b32 %s, 0" % sCNT)
    def switch_copy(regs):
        A("s_add_u32 %s, %s, 1" % (sCNT, sCNT))
        A("s_cmp_eq_u32 %s, %d" % (sCNT, o["atries"]))
        A("s_cselect_b32 %s, 0x%x, 0" % (t0, MB1B - MB1A))
        for r in regs: A("v_add_u32 %s, %s, %s" % (r, t0, r))
        A("s_cmp_gt_u32 %s, %d" % (sCNT, o["spinmax"]))
        A("s_cbranch_scc1 L_end")
    def bytecheck(p, dst):
        A("v_perm_b32 v22, v%d, v%d, s60" % (p + 1, p))
        A("v_perm_b32 v23, v%d, v%d, s61" % (p + 3, p + 2))
        A("v_or_b32 v22, v22, v23")
        A("v_cmp_ne_u32 %s, %s, v22" % (dst, sTAG))
    stamp(9)
    LB("L_poll1")
    stamp(8)
    for i in range(2):
        for q in range(4):
            r = P + 16 * i + 4 * q
            A("global_load_dwordx4 v[%d:%d], %s, %s offset:%d sc1" % (r, r + 3, vL1, sWS, i * 4096 + q * 256 - 2432))
    A("global_load_dwordx4 v[%d:%d], %s, %s sc1" % (PX, PX + 3, vL1x, sWS))
    A("global_load_dwordx4 v[%d:%d], %s, %s sc1" % (PA_, PA_ + 3, vL1a, sWS))
    switch_copy([vL1, vL1x, vL1a])
    for g_ in range(8):
        A("s_waitcnt vmcnt(%d)" % (9 - g_))
        for k in range(4):
            A("v_xor_b32 v%d, s%d, v%d" % (P + 4 * g_ + k, 56 + k, P + 4 * g_ + k))
        if g_ == 0:
            A("v_or3_b32 v21, v%d, v%d, v%d" % (P, P + 1, P + 2))
            A("v_or_b32 v21, v21, v%d" % (P + 3))
        else:
            A("v_or3_b32 v21, v21, v%d, v%d" % (P + 4 * g_, P + 4 * g_ + 1))
            A("v_or3_b32 v21, v21, v%d, v%d" % (P + 4 * g_ + 2, P + 4 * g_ + 3))
    A("v_and_b32 v21, 15, v21")
    A("s_waitcnt vmcnt(1)")
    bytecheck(PX, "vcc")
    A("v_cmp_ne_u32 s[46:47], 0, v21")
    if o.get("dbgfail"):
        A("s_cmp_eq_u32 %s, 1" % sCNT)
        A("s_cselect_b32 s84, vcc_lo, s84")
        A("s_cselect_b32 s62, s46, s62")
        A("s_cselect_b32 s63, s47, s63")
    A("s_or_b64 vcc, vcc, s[46:47]")
    A("s_cbranch_vccnz L_poll1")
    stamp(5)
    for i in range(2):
        b = P + 16 * i
        for k in range(4):
            A("v_add_f32 v%d, v%d, v%d" % (b + k, b + k, b + 4 + k))
            A("v_add_f32 v%d, v%d, v%d" % (b + 8 + k, b + 8 + k, b + 12 + k))
        for k in range(4):
            A("v_add_f32 v%d, v%d, v%d" % (b + k, b + k, b + 8 + k))
        A("v_cvt_pk_bf16_f32 v%d, v%d, v%d" % (b, b, b + 1))
        A("v_cvt_pk_bf16_f32 v%d, v%d, v%d" % (b + 1, b + 2, b + 3))
    A("v_lshlrev_b32 v22, 3, v0")
    A("ds_write_b64 v22, v[%d:%d] offset:%d" % (P, P + 1, L_Q))
    A("ds_write_b64 v22, v[%d:%d] offset:%d" % (P + 16, P + 17, L_Q + 512))
    A("v_cmp_ne_u32 vcc, s54, v%d" % PX)
    A("s_cmp_eq_u64 vcc, 0")
    A("s_cselect_b32 %s, 1, 0" % sFAST)
    if o.get("forceslow"): A("s_mov_b32 %s, 0" % sFAST)
    A("v_mov_b32 v26, %s" % sFAST)
    A("v_mov_b32 v22, %d" % L_FLAG)
    A("ds_write_b32 v22, v26")
    A("s_waitcnt vmcnt(0)")
    bytecheck(PA_, "vcc")
    A("s_cbranch_vccz L_aux_ok")
    A("global_load_dwordx4 v[%d:%d], %s, %s sc1" % (PA_, PA_ + 3, vL1a, sWS))
    A("s_waitcnt lgkmcnt(0)")
    A("s_barrier")
    A("s_mov_b32 s55, 1")
    A("s_branch L_chk_aux")
    LB("L_poll_aux")
    A("global_load_dwordx4 v[%d:%d], %s, %s sc1" % (PA_, PA_ + 3, vL1a, sWS))
    switch_copy([vL1a])
    LB("L_chk_aux")
    A("s_waitcnt vmcnt(0)")
    bytecheck(PA_, "vcc")
    A("s_cbranch_vccnz L_poll_aux")
    A("s_branch L_aux_go")
    LB("L_aux_ok")
    A("s_mov_b32 s55, 0")
    LB("L_aux_go")
    A("s_movk_i32 %s, 0xff00" % t0)
    A("v_and_b32 v23, 1, %s" % vF)
    A("v_cmp_eq_u32 vcc, 0, v23")
    A("v_and_b32 v23, 2, %s" % vF)
    A("v_cmp_eq_u32 s[46:47], 0, v23")
    A("v_cndmask_b32 v24, v%d, v%d, vcc" % (PA_ + 1, PA_))
    A("v_cndmask_b32 v25, v%d, v%d, vcc" % (PA_ + 3, PA_ + 2))
    A("v_cndmask_b32 v24, v25, v24, s[46:47]")
    A("v_and_b32 v24, %s, v24" % t0)
    allred("v24", "v23", "v_add_f32", 16)
    allred("v24", "v23", "v_add_f32", 32)
    A("v_cvt_pk_bf16_f32 v24, v24, v24")
    A("v_and_b32 v24, %s, v24" % t1)
    A("v_mul_f32 v25, 0x%x, v24" % (LOG2E | 0x80000000))
    A("v_exp_f32 v25, v25")
    A("v_mov_b32_dpp v26, v24 row_ror:8 %s" % DPP)
    A("v_add_f32 v25, 1.0, v25")
    A("v_rcp_f32 v25, v25")
    A("v_cmp_le_u32 vcc, %s, v0" % sRP)
    A("v_mul_f32 v25, v24, v25")
    A("v_cvt_pk_bf16_f32 v25, v25, v25")
    A("v_and_b32 v25, %s, v25" % t1)
    A("v_mul_f32 v25, v25, v26")
    A("v_cvt_pk_bf16_f32 v25, v25, v25")
    A("v_cndmask_b32 v25, v25, 0, vcc")
    A("v_lshlrev_b32 v22, 2, v0")
    A("s_mov_b64 exec, 0xff")
    A("ds_write_b32 v22, v25 offset:%d" % L_H)
    A("s_waitcnt lgkmcnt(0)")
    stamp(6)
    A("s_cmp_lg_u32 s55, 0")
    A("s_cbranch_scc1 L_unit_exit")
    A("s_barrier")
    LB("L_unit_exit")
    dump_stamps()
    A("s_endpgm")

    role[0] = "A"
    LB("L_attn")
    vK0, vK1, vV0, vV1 = "v2", "v3", "v4", "v5"
    vWO0, vWO1, vDN0, vDN1, vXF, vXP = "v6", "v7", "v8", "v9", "v10", "v1"
    vS2, vL2, vS25, vL25, vL3, vS3 = "v11", "v12", "v13", "v14", "v15", "v150"
    KR, VR, WOR, DNR, QR, SR, PA, MK = 16, 48, 80, 96, 104, 120, 128, 146
    vM0, vM1, vQA, vOW, vOR, vMLW, vHA = "v151", "v152", "v153", "v154", "v155", "v156", "v157"
    vN, vG, vN16, vP = "v120", "v121", "v122", "v123"
    u0, u1 = "v124", "v125"
    s4JW = "s41"
    C("K and V: load i = 1 KB block (4 keys) number 128 i + 4j + w of the head's window; K goes through LDS")
    A("s_lshl_b32 %s, %s, 24" % (t0, sH))
    A("s_lshl_b32 %s, %s, 2" % (s4JW, sJ))
    A("s_add_u32 %s, %s, %s" % (s4JW, s4JW, sW))
    A("s_lshl_b32 %s, %s, 10" % (t2, s4JW))
    A("s_add_u32 %s, %s, %s" % (t0, t0, t2))
    A("s_add_u32 %s, %s, 0xF00000" % (t0, t0))
    A("v_and_b32 %s, 15, v0" % vN)
    A("v_lshrrev_b32 %s, 4, v0" % vG)
    A("v_lshlrev_b32 %s, 4, %s" % (vN16, vN))
    A("v_lshl_add_u32 %s, v0, 4, %s" % (vV0, t0))
    A("v_lshlrev_b32 %s, 6, %s" % (u0, vG))
    A("v_xor_b32 %s, %s, %s" % (vK0, u0, vV0))
    A("s_lshl_b32 %s, %s, 13" % (t1, sW))
    A("s_add_u32 m0, %s, %d" % (t1, L_K))
    A("s_mov_b32 s42, 0x20000")
    A("s_movk_i32 s43, 1024")
    A("s_waitcnt lgkmcnt(0)")
    A("s_load_dword %s, %s, 0" % (sTAG, sWS))
    if o.get("tlbw") == 1:
        A("s_cmp_lg_u32 %s, 0" % sW)
        A("s_cbranch_scc1 L_notlb")
        tlbwarm()
        A("s_waitcnt vmcnt(0)")
        LB("L_notlb")
    if o.get("asym"):
        C("groups that started earlier have raised their flag: a late group asks memory with a wider window")
        A("v_and_b32 v158, 7, v0")
        A("v_lshlrev_b32 v158, 2, v158")
        A("global_load_dword v159, v158, s[24:25] sc1")
        A("s_or_b32 %s, %s, %s" % (t1, sJ, sW))
        A("s_cbranch_scc1 L_noflag")
        A("s_lshl_b32 %s, %s, 2" % (t1, sH))
        A("v_mov_b32 v158, %s" % t1)
        A("v_mov_b32 v157, 1")
        A("global_store_dword v158, v157, s[24:25] sc1")
        LB("L_noflag")
    if o["b0pos"]: A("s_barrier")
    stamp(1)
    issued = [0]
    uid = [0]
    if o.get("asym"):
        A("s_waitcnt vmcnt(0)")
        A("v_cmp_ne_u32 vcc, 0, v159")
        A("s_lshl_b32 %s, 1, %s" % (t1, sH))
        A("s_andn2_b32 %s, vcc_lo, %s" % (t1, t1))
        A("s_and_b32 %s, %s, 0xff" % (t1, t1))
        A("s_bcnt1_i32_b32 s56, %s" % t1)
        A("s_cmp_ge_u32 s56, %d" % o.get("lateth", 3))
        A("s_cselect_b64 s[54:55], -1, 0")
    def load(w, txt):
        if o.get("asym"):
            wb = w + o["asym"]
            if issued[0] >= wb: A("s_waitcnt vmcnt(%d)" % (wb - 1))
            if issued[0] >= w:
                uid[0] += 1
                A("s_mov_b64 vcc, s[54:55]")
                A("s_cbranch_vccnz L_sk%d" % uid[0])
                A("s_waitcnt vmcnt(%d)" % (w - 1))
                LB("L_sk%d" % uid[0])
        elif issued[0] >= w:
            A("s_waitcnt vmcnt(%d)" % (w - 1))
        A(txt); issued[0] += 1
    def rot(i): return (i * o["rotm"]) & 127
    def kload(i):
        load(o["WK"], "global_load_lds_dwordx4 %s, %s %s" % (vK0, sK, nt))
        if i < 7:
            A("s_add_u32 m0, m0, s43")
            A("v_xor_b32 %s, %d, %s" % (vK0, (((i & 3) ^ ((i + 1) & 3)) << 4) | ((rot(i) ^ rot(i + 1)) << 10), vK0))
            A("v_add_u32 %s, s42, %s" % (vK0, vK0))
    nk_first = min(o["WK"], 8)
    for i in range(nk_first): kload(i)
    C("address and mask setup in the shadow of the K loads")
    A("s_lshl_b32 %s, %s, 19" % (t0, sH))
    A("s_lshl_b32 %s, %s, 14" % (t2, sJ))
    A("s_add_u32 %s, %s, %s" % (t0, t0, t2))
    A("s_lshl_b32 %s, %s, 8" % (t3, sW))
    A("s_add_u32 %s, %s, %s" % (t0, t0, t3))
    A("s_add_u32 %s, %s, 0x1000" % (t0, t0))
    A("v_lshl_add_u32 %s, %s, 10, %s" % (vDN0, vG, vN16))
    A("v_add_u32 %s, %s, %s" % (vWO0, t0, vDN0))
    A("v_add_u32 %s, 0x2000, %s" % (vWO1, vWO0))
    A("s_mul_i32 %s, %s, 7" % (t0, sH))
    A("s_add_u32 %s, %s, 1" % (t0, t0))
    A("s_lshr_b32 %s, %s, 1" % (t0, t0))
    A("s_lshl_b32 %s, %s, 6" % (t0, t0))
    A("s_and_b32 %s, %s, 1" % (t2, sH))
    A("s_lshl_b32 %s, %s, 1" % (t2, t2))
    A("s_sub_u32 %s, 8, %s" % (t1, t2))
    A("s_mul_i32 %s, %s, %s" % (t2, t1, sJ))
    A("s_add_u32 %s, %s, %s" % (t0, t0, t2))
    A("s_lshl_b32 %s, %s, 10" % (t0, t0))
    A("s_add_u32 %s, %s, %s" % (t0, t0, t3))
    A("v_add_u32 %s, %s, %s" % (vDN0, t0, vDN0))
    A("s_sub_u32 %s, %s, 5" % (t1, t1))
    A("v_min_u32 %s, %s, %s" % (vDN1, t1, vG))
    A("v_lshl_add_u32 %s, %s, 10, %s" % (vDN1, vDN1, vN16))
    A("s_add_u32 %s, %s, 4096" % (t0, t0))
    A("v_add_u32 %s, %s, %s" % (vDN1, t0, vDN1))
    A("v_and_b32 %s, 1, v0" % vP)
    A("v_and_b32 %s, 1, %s" % (u0, vG))
    A("s_lshl_b32 %s, %s, 3" % (t2, s4JW))
    A("v_lshl_add_u32 %s, %s, 2, %s" % (vXF, u0, t2))
    A("s_lshl_b32 %s, %s, 16" % (t0, sH))
    A("s_lshl_b32 %s, %s, 14" % (t2, sW))
    A("s_lshl_b32 %s, %s, 6" % (t3, sJ))
    A("s_add_u32 %s, %s, %s" % (t2, t2, t3))
    A("s_add_u32 %s, %s, %s" % (t2, t2, t0))
    A("s_add_u32 %s, %s, 0x%x" % (t2, t2, MB2))
    A("v_lshrrev_b32 %s, 3, v0" % vS2)
    A("v_bfe_u32 %s, v0, 1, 2" % u1)
    A("v_lshlrev_b32 %s, 4, %s" % (u1, u1))
    A("v_lshl_add_u32 %s, %s, 11, %s" % (vS2, vS2, u1))
    A("v_add_u32 %s, %s, %s" % (vS2, t2, vS2))
    A("v_lshrrev_b32 %s, 1, %s" % (vS25, vN))
    A("v_lshlrev_b32 %s, 5, %s" % (u1, vP))
    A("v_lshl_add_u32 %s, %s, 11, %s" % (vS25, vS25, u1))
    A("v_lshl_add_u32 %s, %s, 4, %s" % (vS25, u0, vS25))
    A("s_add_u32 %s, %s, 0x%x" % (t2, t2, MB25 - MB2))
    A("v_add_u32 %s, %s, %s" % (vS25, t2, vS25))
    A("s_lshl_b32 %s, %s, 11" % (t3, sJ))
    A("s_add_u32 %s, %s, %s" % (t0, t0, t3))
    A("s_add_u32 %s, %s, 0x%x" % (t0, t0, MB2))
    A("v_lshl_add_u32 %s, v0, 4, %s" % (vL2, t0))
    A("s_lshl_b32 %s, %s, 4" % (t3, sW))
    A("s_add_u32 %s, %s, %s" % (t0, t0, t3))
    A("s_add_u32 %s, %s, 0x%x" % (t0, t0, MB25 - MB2))
    A("v_and_b32 %s, 31, v0" % u1)
    A("v_lshl_add_u32 %s, %s, 6, %s" % (vL25, u1, t0))
    A("s_lshr_b32 %s, %s, 3" % (t0, s4JW))
    A("s_lshl_b32 %s, %s, 14" % (t0, t0))
    A("s_and_b32 %s, %s, 7" % (t3, s4JW))
    A("s_lshl_b32 %s, %s, 10" % (t3, t3))
    A("s_add_u32 %s, %s, %s" % (t0, t0, t3))
    A("s_add_u32 %s, %s, 0x%x" % (t0, t0, MB3))
    A("v_lshl_add_u32 %s, %s, 4, %s" % (u0, u0, t0))
    A("v_and_b32 %s, 7, v0" % u1)
    A("v_lshl_add_u32 %s, %s, 7, %s" % (vL3, u1, u0))
    A("s_lshl_b32 %s, %s, 7" % (t3, sH))
    A("v_lshl_add_u32 %s, %s, 13, %s" % (u0, vP, u0))
    A("v_add_u32 %s, %s, %s" % (vS3, t3, u0))
    A("v_lshlrev_b32 %s, 4, %s" % (u1, vP))
    def pretouch2():
        C("pull this workgroup's incoming hand-off lines into L2 (waves 0,1: hop 2; waves 2,3: hop 2.5)")
        A("s_and_b32 %s, %s, 1" % (t0, sW))
        A("s_lshl_b32 %s, %s, 10" % (t0, t0))
        A("s_lshr_b32 %s, %s, 1" % (t3, sW))
        A("s_mul_i32 %s, %s, 0x%x" % (t3, t3, MB25 - MB2))
        A("s_add_u32 %s, %s, %s" % (t0, t0, t3))
        A("v_add_u32 v158, %s, %s" % (t0, vL2))
        A("global_load_dword v159, v158, %s sc1" % sWS); issued[0] += 1
    if o["pretouch"] == "r": pretouch2()
    A("v_mov_b32 %s, 0xffff" % u0)
    A("v_lshlrev_b32 %s, %s, %s" % (u0, u1, u0))
    A("v_and_b32 %s, 2, v0" % u1)
    A("v_cmp_eq_u32 vcc, 0, %s" % u1)
    A("v_lshrrev_b32 %s, 1, %s" % (u1, vN))
    A("v_lshlrev_b32 %s, 2, %s" % (vHA, vG))
    A("v_cndmask_b32 %s, 0, %s, vcc" % (vM0, u0))
    A("v_cndmask_b32 %s, %s, 0, vcc" % (vM1, u0))
    for r in range(4):
        A("v_cmp_eq_u32 s[%d:%d], %d, %s" % (44 + 2 * r, 45 + 2 * r, r, u1))
    A("v_lshrrev_b32 %s, 2, %s" % (vMLW, vN))
    A("v_lshlrev_b32 %s, 4, %s" % (u1, vG))
    A("v_lshl_add_u32 %s, %s, 8, %s" % (vQA, vMLW, u1))
    for r in range(4):
        A("v_cndmask_b32 v%d, 0, %s, s[%d:%d]" % (MK + r, u0, 44 + 2 * r, 45 + 2 * r))
    A("s_lshl_b32 %s, %s, 11" % (t0, sW))
    A("v_lshl_add_u32 %s, %s, 9, %s" % (vOW, vG, vN16))
    A("v_add_u32 %s, %s, %s" % (vOW, t0, vOW))
    A("s_lshl_b32 %s, %s, 3" % (t0, sW))
    A("v_lshl_add_u32 %s, %s, 5, %s" % (vMLW, vMLW, t0))
    A("v_bfe_u32 %s, v0, 1, 1" % u0)
    A("v_lshrrev_b32 %s, 2, v0" % u1)
    A("v_lshlrev_b32 %s, 4, %s" % (u1, u1))
    A("v_lshl_add_u32 %s, %s, 8, %s" % (u1, u0, u1))
    A("v_lshl_add_u32 %s, %s, 3, %s" % (u1, vP, u1))
    A("s_lshl_b32 %s, %s, 9" % (t0, sW))
    A("v_add_u32 %s, %s, %s" % (vOR, t0, u1))
    KA = 140
    A("v_and_b32 %s, 3, v0" % u0)
    A("v_lshrrev_b32 %s, 2, %s" % (u1, vN))
    A("v_lshlrev_b32 %s, 8, %s" % (u1, u1))
    A("v_lshl_add_u32 %s, %s, 10, %s" % (u0, u0, u1))
    A("v_xor_b32 %s, %s, %s" % (u1, vG, vN))
    A("v_lshl_add_u32 %s, %s, 4, %s" % (u0, u1, u0))
    A("s_lshl_b32 %s, %s, 13" % (t1, sW))
    A("v_add_u32 v%d, %s, %s" % (KA, t1, u0))
    for s_ in range(1, 4):
        A("v_xor_b32 v%d, %d, v%d" % (KA + s_, s_ << 6, KA))
    A("s_waitcnt lgkmcnt(0)")
    A("s_add_u32 %s, %s, 0x%x" % (sTAG, sTAG, TAGC))
    for i in range(nk_first, 8): kload(i)
    if o["pretouch"] == "k": pretouch2()
    for i in range(8):
        r = VR + i * 4
        load(o["W"], "global_load_dwordx4 v[%d:%d], %s, %s %s" % (r, r + 3, vV0, sV, nt))
        if i < 7:
            if rot(i) ^ rot(i + 1): A("v_xor_b32 %s, %d, %s" % (vV0, (rot(i) ^ rot(i + 1)) << 10, vV0))
            A("v_add_u32 %s, s42, %s" % (vV0, vV0))
    tail = []
    tail.append("global_load_dword %s, %s, %s" % (vXP, vXF, sX))
    for a in range(2):
        r = DNR + a * 4
        tail.append("global_load_dwordx4 v[%d:%d], %s, %s %s" % (r, r + 3, (vDN0, vDN1)[a], sDN, nt))
    for m in range(4):
        r = WOR + m * 4
        tail.append("global_load_dwordx4 v[%d:%d], %s, %s offset:%d %s" % (r, r + 3, (vWO0, vWO1)[m >> 1], sWO, (0, -4096)[(m & 1) == 0], nt))
    nav = [0]
    def tail_issue(n):
        for _ in range(n):
            if tail:
                A(tail.pop(0)); nav[0] += 1
    A("s_waitcnt vmcnt(8)")
    for t in range(2):
        for s in range(4):
            r = KR + (t * 4 + s) * 4
            A("ds_read_b128 v[%d:%d], v%d offset:%d" % (r, r + 3, KA + s, L_K + t * 4096))
    tail_issue(o["ntail0"])
    stamp(2)
    A("s_waitcnt lgkmcnt(0)")
    A("s_barrier")
    stamp(3)
    for s in range(4):
        A("ds_read_b128 v[%d:%d], %s offset:%d" % (QR + 4 * s, QR + 4 * s + 3, vQA, L_Q + s * 64))
    A("s_mov_b32 %s, 0x%x" % (t0, SCALE))
    A("s_mov_b32 %s, 0xffff0000" % t1)
    A("s_mov_b32 %s, 0x%x" % (t2, LOG2E))
    for s in range(4):
        A("s_waitcnt lgkmcnt(%d)" % (3 - s))
        for t in range(2):
            mfma(SR + 4 * t, KR + (t * 4 + s) * 4, QR + 4 * s, None if s == 0 else SR + 4 * t)
    T = KR
    vH0, vH1, vFL = "v%d" % (T + 28), "v%d" % (T + 29), "v%d" % (T + 30)
    A("v_mov_b32 %s, %d" % (vFL, L_FLAG))
    A("s_lshl_b32 %s, %s, 5" % (t3, sW))
    A("v_mov_b32 v%d, %s" % (T + 31, t3))
    A("ds_read_b32 %s, %s" % (vFL, vFL))
    A("s_nop 2")
    C("scores: bf16(qk) -> * scale -> bf16   (the reference's two roundings)")
    for i in range(4):
        A("v_cvt_pk_bf16_f32 v%d, v%d, v%d" % (T + i, SR + 2 * i, SR + 2 * i + 1))
    for i in range(4):
        A("v_lshlrev_b32 v%d, 16, v%d" % (SR + 2 * i, T + i))
        A("v_and_b32 v%d, %s, v%d" % (SR + 2 * i + 1, t1, T + i))
    for i in range(8):
        A("v_mul_f32 v%d, %s, v%d" % (SR + i, t0, SR + i))
    for i in range(4):
        A("v_cvt_pk_bf16_f32 v%d, v%d, v%d" % (T + i, SR + 2 * i, SR + 2 * i + 1))
    for i in range(4):
        A("v_lshlrev_b32 v%d, 16, v%d" % (SR + 2 * i, T + i))
        A("v_and_b32 v%d, %s, v%d" % (SR + 2 * i + 1, t1, T + i))
    vm, vt, vl = "v%d" % (T + 4), "v%d" % (T + 6), "v%d" % (T + 5)
    A("v_max3_f32 %s, v%d, v%d, v%d" % (vm, SR, SR + 1, SR + 2))
    A("v_max3_f32 %s, v%d, v%d, v%d" % (vt, SR + 3, SR + 4, SR + 5))
    A("v_max3_f32 %s, %s, v%d, v%d" % (vm, vm, SR + 6, SR + 7))
    A("v_max_f32 %s, %s, %s" % (vm, vm, vt))
    allred(vm, vt, "v_max_f32", 16)
    allred(vm, vt, "v_max_f32", 32)
    A("v_mul_f32 %s, %s, %s" % (vm, t2, vm))
    for i in range(8):
        A("v_fma_f32 v%d, v%d, %s, -%s" % (SR + i, SR + i, t2, vm))
    for i in range(8):
        A("v_exp_f32 v%d, v%d" % (SR + i, SR + i))
    for i in range(8):
        A("v_cvt_pk_bf16_f32 v%d, v%d, v%d" % (T + 8 + i, SR + i, SR + i))
    for i in range(8):
        A("v_and_b32 v%d, v%d, %s" % (PA + 2 * i, T + 8 + i, vM0))
        A("v_and_b32 v%d, v%d, %s" % (PA + 2 * i + 1, T + 8 + i, vM1))
    stamp(4)
    O0, O1, Y = QR, QR + 4, QR + 8
    def pv(i):
        A("s_waitcnt vmcnt(%d)" % (7 - i + nav[0]))
        if i >= o["tlag"]: tail_issue(1 if i < 7 else 9)
        vr = VR + 4 * i
        mfma16(O0, PA + 2 * i, vr, None if i == 0 else O0)
        mfma16(O1, PA + 2 * i, vr + 2, None if i == 0 else O1)
    A("v_add_f32 %s, v%d, v%d" % (vl, SR, SR + 1))
    A("v_add_f32 %s, v%d, v%d" % (vt, SR + 2, SR + 3))
    A("v_add_f32 v%d, v%d, v%d" % (SR + 4, SR + 4, SR + 5))
    A("v_add_f32 v%d, v%d, v%d" % (SR + 6, SR + 6, SR + 7))
    A("v_add_f32 %s, %s, %s" % (vl, vl, vt))
    A("v_add_f32 v%d, v%d, v%d" % (SR + 4, SR + 4, SR + 6))
    A("v_add_f32 %s, %s, v%d" % (vl, vl, SR + 4))
    allred(vl, vt, "v_add_f32", 16)
    allred(vl, vt, "v_add_f32", 32)
    A("ds_write_b64 %s, v[%d:%d] offset:%d" % (vMLW, T + 4, T + 5, L_ML))
    A("s_waitcnt lgkmcnt(0)")
    A("v_readfirstlane_b32 %s, %s" % (sFAST, vFL))
    HA = T + 16
    ML = T
    OB = T + 8
    G2 = SR
    vM, vLs = "v124", "v125"
    for i in range(o["b2"]): pv(i)
    A("s_barrier")
    A("ds_read_b128 v[%d:%d], v%d offset:%d" % (ML, ML + 3, T + 31, L_ML))
    A("ds_read_b128 v[%d:%d], v%d offset:%d" % (ML + 4, ML + 7, T + 31, L_ML + 16))
    A("ds_read_b32 %s, %s offset:%d" % (vH0, vHA, L_H))
    A("ds_read_b32 %s, %s offset:%d" % (vH1, vHA, L_H + 16))
    A("s_mov_b32 vcc_lo, 0xcccccccc")
    A("s_mov_b32 vcc_hi, 0xcccccccc")
    A("v_mov_b32 v%d, %s" % (G2 + 3, sTAG))
    A("s_waitcnt lgkmcnt(2)")
    A("v_max3_f32 %s, v%d, v%d, v%d" % (vM, ML, ML + 2, ML + 4))
    A("v_max_f32 %s, %s, v%d" % (vM, vM, ML + 6))
    for w_ in range(4):
        A("v_sub_f32 v%d, v%d, %s" % (ML + 2 * w_, ML + 2 * w_, vM))
    for w_ in range(4):
        A("v_exp_f32 v%d, v%d" % (ML + 2 * w_, ML + 2 * w_))
    A("s_waitcnt lgkmcnt(0)")
    A("v_mul_f32 %s, v%d, v%d" % (vLs, ML, ML + 1))
    for w_ in range(1, 4):
        A("v_fmac_f32 %s, v%d, v%d" % (vLs, ML + 2 * w_, ML + 2 * w_ + 1))
    for a in range(2):
        for r in range(4):
            A("v_and_b32 v%d, %s, v%d" % (HA + 4 * a + r, (vH0, vH1)[a], MK + r))
    A("v_cndmask_b32 v%d, %s, %s, vcc" % (G2 + 2, vM, vLs))
    for i in range(o["b2"], 8): pv(i)
    stamp(5)
    if o.get("nosync"):
        A("s_waitcnt vmcnt(0)")
        stamp(6)
        A("s_branch L_done")
    A("s_nop 6")
    A("ds_write_b128 %s, v[%d:%d] offset:%d" % (vOW, O0, O0 + 3, L_O))
    A("ds_write_b128 %s, v[%d:%d] offset:%d" % (vOW, O1, O1 + 3, L_O + 256))
    A("s_waitcnt lgkmcnt(0)")
    A("s_barrier")
    for w_ in range(4):
        A("ds_read_b64 v[%d:%d], %s offset:%d" % (OB + 2 * w_, OB + 2 * w_ + 1, vOR, L_O + w_ * 2048))
    A("s_cmp_eq_u32 %s, 0" % sFAST)
    for w_ in range(4):
        A("s_waitcnt lgkmcnt(%d)" % (3 - w_))
        op = "v_mul_f32" if w_ == 0 else "v_fmac_f32"
        A("%s v%d, v%d, v%d" % (op, G2, ML + 2 * w_, OB + 2 * w_))
        A("%s v%d, v%d, v%d" % (op, G2 + 1, ML + 2 * w_, OB + 2 * w_ + 1))
    tails = []
    def publish(addr, g, name):
        A("s_cbranch_scc1 L_slow_%s" % name)
        A("global_store_dwordx4 %s, v[%d:%d], %s" % (addr, g, g + 3, sWS))
        LB("L_back_%s" % name)
        tails.append((name, addr, g))
    A("v_cvt_pk_bf16_f32 v%d, v%d, v%d" % (G2, G2, G2 + 1))
    A("s_mov_b32 s44, 0x55555555")
    A("s_mov_b32 s45, 0x55555555")
    A("v_mov_b32_dpp v%d, v%d quad_perm:[1,1,3,3] %s" % (G2 + 1, G2, DPP))
    A("s_mov_b64 exec, s[44:45]")
    publish(vS2, G2, "h2")
    A("s_mov_b64 exec, -1")
    stamp(6)
    P = T
    for i in range(2):
        A("global_load_dwordx4 v[%d:%d], %s, %s offset:%d sc1" % (P + 4 * i, P + 4 * i + 3, vL2, sWS, i * 1024))
    A("s_mov_b32 %s, %d" % (sCNT, o["spinmax"]))
    vTAG = "v127"
    A("v_mov_b32 %s, %s" % (vTAG, sTAG))
    for k in range(4):
        A("s_mov_b32 s%d, 0x%x" % (56 + k, 0x07060500 | k))
        A("s_bfe_u32 s%d, %s, 0x%x" % (60 + k if k < 2 else 50 + k, sTAG, 0x80000 | (8 * k)))
    TB = ["s60", "s61", "s52", "s53"]
    A("s_waitcnt vmcnt(3)")
    for a in range(2):
        mfma(Y, HA + 4 * a, DNR + 4 * a, None if a == 0 else Y)
    A("s_branch L_chk2")
    LB("L_poll2")
    MS = ["s[44:45]", "s[46:47]"]
    for i in range(2):
        A("s_mov_b64 exec, %s" % MS[i])
        A("global_load_dwordx4 v[%d:%d], %s, %s offset:%d sc1" % (P + 4 * i, P + 4 * i + 3, vL2, sWS, i * 1024))
    A("s_mov_b64 exec, -1")
    A("s_sub_u32 %s, %s, 1" % (sCNT, sCNT))
    A("s_cbranch_scc1 L_end")
    LB("L_chk2")
    A("s_waitcnt vmcnt(0)")
    A("v_max_f32 %s, v%d, v%d" % (vM, P + 2, P + 6))
    for i in range(2):
        A("v_cmp_ne_u32 %s, %s, v%d" % (MS[i], sTAG, P + 4 * i + 3))
    A("v_mov_b32_dpp %s, %s quad_perm:[0,0,2,2] %s" % (vM, vM, DPP))
    A("s_or_b64 vcc, %s, %s" % (MS[0], MS[1]))
    A("s_cbranch_scc1 L_poll2")
    stamp(7)
    U = T + 8
    def unp(i, k):
        if k & 1: A("v_and_b32 v%d, %s, v%d" % (U + 4 * i + k, t1, P + 4 * i + (k >> 1)))
        else: A("v_lshlrev_b32 v%d, 16, v%d" % (U + 4 * i + k, P + 4 * i + (k >> 1)))
    vt2 = "v126"
    A("v_max_f32_dpp %s, %s, %s row_ror:4 %s" % (vM, vM, vM, DPP))
    unp(0, 0); unp(0, 1)
    A("v_max_f32_dpp %s, %s, %s row_ror:8 %s" % (vM, vM, vM, DPP))
    A("v_mov_b32 %s, %s" % (vt2, vM))
    unp(0, 2); unp(0, 3)
    A("v_permlane16_swap_b32 %s, %s" % (vt2, vM))
    A("v_max_f32 %s, %s, %s" % (vM, vM, vt2))
    A("v_mov_b32 %s, %s" % (vt2, vM))
    unp(1, 0); unp(1, 1)
    A("v_permlane32_swap_b32 %s, %s" % (vt2, vM))
    A("v_max_f32 %s, %s, %s" % (vM, vM, vt2))
    w0, w1 = "v120", "v121"
    A("v_sub_f32_dpp %s, v%d, %s quad_perm:[0,0,2,2] %s" % (w0, P + 2, vM, DPP))
    A("v_sub_f32_dpp %s, v%d, %s quad_perm:[0,0,2,2] %s" % (w1, P + 6, vM, DPP))
    A("v_exp_f32 %s, %s" % (w0, w0))
    A("v_exp_f32 %s, %s" % (w1, w1))
    unp(1, 2); unp(1, 3)
    den, tA, tB = "v126", "v122", "v123"
    A("v_mul_f32_dpp %s, v%d, %s quad_perm:[1,1,3,3] %s" % (den, P + 2, w0, DPP))
    A("v_fmac_f32_dpp %s, v%d, %s quad_perm:[1,1,3,3] %s" % (den, P + 6, w1, DPP))
    for k in range(4):
        A("v_mul_f32 v%d, %s, v%d" % (U + k, w0, U + k))
        if k == 1: A("v_add_f32_dpp %s, %s, %s row_ror:4 %s" % (den, den, den, DPP))
    A("v_add_f32_dpp %s, %s, %s row_ror:8 %s" % (den, den, den, DPP))
    for k in (0, 2, 1, 3):
        A("v_fmac_f32 v%d, %s, v%d" % (U + k, w1, U + 4 + k))
    A("v_mov_b32 %s, %s" % (tA, den))
    A("v_permlane32_swap_b32 v%d, v%d" % (U, U + 2))
    A("v_permlane32_swap_b32 v%d, v%d" % (U + 1, U + 3))
    A("v_permlane32_swap_b32 %s, %s" % (tA, den))
    A("v_add_f32 v%d, v%d, v%d" % (U, U, U + 2))
    A("v_add_f32 v%d, v%d, v%d" % (U + 1, U + 1, U + 3))
    A("v_add_f32 %s, %s, %s" % (den, den, tA))
    A("s_cmp_eq_u32 %s, 0" % sFAST)
    A("v_permlane16_swap_b32 v%d, v%d" % (U, U + 1))
    A("v_mov_b32 %s, %s" % (tA, den))
    A("v_add_f32 v%d, v%d, v%d" % (U, U, U + 1))
    A("s_nop 0")
    A("v_permlane16_swap_b32 %s, %s" % (tA, den))
    A("v_add_f32_dpp v%d, v%d, v%d row_ror:4 %s" % (U, U, U, DPP))
    A("v_add_f32 %s, %s, %s" % (den, den, tA))
    A("v_rcp_f32 %s, %s" % (den, den))
    A("v_add_f32_dpp v%d, v%d, v%d row_ror:8 %s" % (U, U, U, DPP))
    a0 = "v124"
    A("v_mul_f32 %s, v%d, %s" % (a0, U, den))
    A("v_cvt_pk_bf16_f32 %s, %s, %s" % (a0, a0, a0))
    A("s_mov_b32 %s, %d" % (sCNT, o["spinmax"]))
    A("s_nop 0")
    WA = T
    for m in range(4):
        for r in range(4):
            A("v_and_b32_dpp v%d, %s, v%d row_newbcast:%d %s" % (WA + 4 * m + r, a0, MK + r, m, DPP))
        if m > 0:
            mfma(Y, WA + 4 * (m - 1), WOR + 4 * (m - 1), Y)
    A("s_nop 1")
    mfma(Y, WA + 12, WOR + 12, Y)
    A("s_mov_b32 exec_hi, 0")
    A("s_nop 6")
    for k in range(4):
        A("v_perm_b32 v%d, v%d, %s, s%d" % (Y + k, Y + k, vTAG, 56 + k))
    publish(vS25, Y, "h25")
    stamp(8)
    LB("L_poll25")
    A("global_load_dwordx4 v[%d:%d], %s, %s sc1" % (P, P + 3, vL25, sWS))
    A("s_sub_u32 %s, %s, 1" % (sCNT, sCNT))
    A("s_cbranch_scc1 L_end")
    A("s_waitcnt vmcnt(0)")
    for k in range(4):
        A("v_xor_b32 v%d, %s, v%d" % (P + k, TB[k], P + k))
    A("v_or3_b32 %s, v%d, v%d, v%d" % (tA, P, P + 1, P + 2))
    A("v_or_b32 %s, %s, v%d" % (tA, tA, P + 3))
    A("v_and_b32 %s, 0xff, %s" % (tA, tA))
    A("v_cmp_ne_u32 vcc, 0, %s" % tA)
    A("s_and_b64 exec, exec, vcc")
    A("s_cbranch_scc1 L_poll25")
    A("s_mov_b64 exec, -1")
    stamp(9)
    x_, y_ = "v%d" % P, "v%d" % (P + 1)
    A("v_permlane16_swap_b32 v%d, v%d" % (P, P + 2))
    A("v_permlane16_swap_b32 v%d, v%d" % (P + 1, P + 3))
    A("v_add_f32 %s, %s, v%d" % (x_, x_, P + 2))
    A("v_add_f32 %s, %s, v%d" % (y_, y_, P + 3))
    fl = ["v_mov_b32 v%d, %s" % (P + 3, sTAG), "s_and_b32 %s, %s, 7" % (t0, sJ), "s_cmp_eq_u32 %s, %s" % (t0, sH), "s_nop 0"]
    for rot_ in (1, 2, 4, 8):
        A(fl.pop(0))
        A("v_add_f32_dpp %s, %s, %s row_ror:%d %s" % (x_, x_, x_, rot_, DPP))
        A("v_add_f32_dpp %s, %s, %s row_ror:%d %s" % (y_, y_, y_, rot_, DPP))
    A("s_cbranch_scc1 L_final")
    A("s_mov_b64 exec, 0x%x" % (0x30003 if o["rep3"] else 0x10001))
    A("global_store_dwordx4 %s, v[%d:%d], %s sc1" % (vS3, P, P + 3, sWS))
    A("s_branch L_done")
    LB("L_final")
    A("s_lshl_b32 %s, 0x10001, %s" % (t0, sH))
    A("s_andn2_b32 exec_lo, 0xff00ff, %s" % t0)
    A("s_mov_b32 exec_hi, 0")
    A("s_mov_b32 %s, %d" % (sCNT, o["spinmax"]))
    Q = P + 4
    if o["rep3"]: A("v_add_u32 %s, 0x2000, %s" % (vS3, vL3))
    LB("L_poll3")
    A("global_load_dwordx4 v[%d:%d], %s, %s sc1" % (P, P + 3, vL3, sWS))
    if o["rep3"]: A("global_load_dwordx4 v[%d:%d], %s, %s sc1" % (Q, Q + 3, vS3, sWS))
    A("s_sub_u32 %s, %s, 1" % (sCNT, sCNT))
    A("s_cbranch_scc1 L_end")
    if o["rep3"]:
        A("s_waitcnt vmcnt(1)")
        A("v_cmp_ne_u32 s[44:45], %s, v%d" % (sTAG, P + 3))
        A("s_and_b64 exec, exec, s[44:45]")
        A("s_cbranch_scc0 L_got3")
        A("s_waitcnt vmcnt(0)")
        A("v_cmp_ne_u32 vcc, %s, v%d" % (sTAG, Q + 3))
        A("v_mov_b32 v%d, v%d" % (P, Q))
        A("v_mov_b32 v%d, v%d" % (P + 1, Q + 1))
        A("s_and_b64 exec, exec, vcc")
        A("s_cbranch_scc1 L_poll3")
        LB("L_got3")
    else:
        A("s_waitcnt vmcnt(0)")
        A("v_cmp_ne_u32 vcc, %s, v%d" % (sTAG, P + 3))
        A("s_and_b64 exec, exec, vcc")
        A("s_cbranch_scc1 L_poll3")
    stamp(10)
    A("s_mov_b32 exec_lo, -1")
    A("v_lshlrev_b32 %s, 16, %s" % (tA, vXP))
    A("v_and_b32 %s, %s, %s" % (tB, t1, vXP))
    for pat in ("quad_perm:[1,0,3,2]", "quad_perm:[2,3,0,1]", "row_half_mirror"):
        A("v_add_f32_dpp %s, %s, %s %s %s" % (x_, x_, x_, pat, DPP))
        A("v_add_f32_dpp %s, %s, %s %s %s" % (y_, y_, y_, pat, DPP))
        if pat != "row_half_mirror": A("s_nop 0")
    A("v_add_f32 %s, %s, %s" % (x_, x_, tA))
    A("v_add_f32 %s, %s, %s" % (y_, y_, tB))
    A("v_cvt_pk_bf16_f32 %s, %s, %s" % (x_, x_, y_))
    A("s_mov_b64 exec, 0x10001")
    A("global_store_dword %s, %s, %s" % (vXF, x_, sOUT))
    A("s_or_b32 %s, s2, %s" % (t0, sW))
    A("s_cbranch_scc1 L_done")
    C("the next launch must not mistake this launch's hand-off words for its own")
    A("v_mov_b32 %s, 0" % tA)
    A("v_mov_b32 %s, %s" % (tB, sTAG))
    A("global_store_dword %s, %s, %s sc1" % (tA, tB, sWS))
    LB("L_done")
    if o.get("pad"):
        LB("L_padspin")
        A("s_memrealtime s[92:93]")
        A("s_waitcnt lgkmcnt(0)")
        A("s_sub_u32 s92, s92, s90")
        A("s_cmp_lt_u32 s92, %d" % o["pad"])
        A("s_cbranch_scc1 L_padspin")
    dump_stamps()
    A("s_endpgm")
    for name, addr, g in tails:
        LB("L_slow_%s" % name)
        A("global_store_dwordx4 %s, v[%d:%d], %s sc1" % (addr, g, g + 3, sWS))
        A("s_branch L_back_%s" % name)
    LB("L_end")
    A("s_endpgm")
    return HEADER.format(lds=o.get("lds", LDS_BYTES), k=KNAME) + "\n".join(L) + FOOTER.format(k=KNAME, vg=o.get("vg", 160), sg=96)


if __name__ == "__main__":
    kw = {}
    out = "parallel_sum__sliding_block_cached__swiglu_ffn__decode.s"
    for a in sys.argv[1:]:
        k, v = a.split("=", 1)
        if k == "out": out = v; continue
        try: v = int(v)
        except ValueError: pass
        kw[k] = v
    open(out, "w").write(gen(**kw))
```

```python
import sys

KNAME = "parallel_sum__sliding_block_cached__swiglu_ffn__decode_kernel"

HEADER = """; Kernarg layout for this problem (96 bytes, ptrs only, base s[0:1]):
;   offset  72: d_out     shape=(1, 1, 512) dtype=bfloat16
; @launch grid=(256,1,1) block=(320,1,1) lds={lds}
.amdgcn_target "amdgcn-amd-amdhsa--gfx950"
.text
.globl {k}
.p2align 8
.type {k},@function
{k}:
"""
FOOTER = """
.section .rodata,"a"
.p2align 6
.amdhsa_kernel {k}
  .amdhsa_next_free_vgpr {vg}
  .amdhsa_next_free_sgpr {sg}
  .amdhsa_accum_offset {vg}
  .amdhsa_group_segment_fixed_size 0
  .amdhsa_kernarg_size 96
  .amdhsa_user_sgpr_count 2
  .amdhsa_user_sgpr_kernarg_segment_ptr 1
  .amdhsa_system_sgpr_workgroup_id_x 1
.end_amdhsa_kernel
"""

MB1A = 0x40000
MB1B = 0x80000
MB2 = 0x100000
MB25 = 0x180000
MB3 = 0x200000
STAMPS = 0x10000000
L_WQ = 0
L_FF = 16384
L_XN = 32768
L_Q = 33792
L_H = 34816
L_FLAG = 34848
L_VOTE = 34864
L_ML = 34880
L_O = 35072
L_K = L_O + 8192
L_K = (L_K + 1023) // 1024 * 1024
LDS_BYTES = L_K + 32768
TAGC = 0x9E3779B9
LOG2E = 0x3FB8AA3B
SCALE = 0x3DB504F3
EPS = 0x3727C5AC
DPP = "row_mask:0xf bank_mask:0xf"

DEF = dict(stamps=False, spinmax=200000, WK=6, W=5, Wtail=8, b0pos=45, nt="nt", pretouch="k", atries=24,
           prefetch=True, b2=7, ntail0=0, tlag=0, mask2=False, pt1=True, rotm=4, rep3=False, tsp="", auxearly=True, hlate=False, vote=True, np25=1, np3=1, ack25=1, align=1, unr=2, mask25=False, lperm=0)


def _sizes(text):
    import subprocess, tempfile, os, re
    d = tempfile.mkdtemp()
    open(d + "/a.s", "w").write(text)
    subprocess.run(["clang", "-x", "assembler", "-target", "amdgcn-amd-amdhsa", "-mcpu=gfx950", "-c", d + "/a.s", "-o", d + "/a.o"], check=True)
    out = subprocess.run(["llvm-objdump", "-d", "--mcpu=gfx950", d + "/a.o"], capture_output=True, text=True).stdout
    r = []
    for ln in out.split("\n"):
        m = re.search(r"^\s+(\S+).*// ([0-9A-F]{12}): ((?:[0-9A-F]{8} ?)+)", ln)
        if m: r.append((m.group(1), 4 * len(m.group(3).split())))
    return r


def align_runs(L, head, foot, minrun=3, nopmin=6):
    ins = [i for i, l in enumerate(L) if l.startswith("    ") and not l.strip().startswith(";")]
    sz = _sizes(head + "\n".join(L) + foot)
    assert len(sz) == len(ins), (len(sz), len(ins))
    size = {i: s_[1] for i, s_ in zip(ins, sz)}
    mn = {i: s_[0] for i, s_ in zip(ins, sz)}
    out = list(L); extra = {}
    off = 0; k = 0
    while k < len(ins):
        i = ins[k]
        if size[i] == 8 and off % 8 == 4:
            run = 0
            while k + run < len(ins) and size[ins[k + run]] == 8: run += 1
            if run >= minrun:
                b = k - 1; done = False
                while b >= 0 and size[ins[b]] == 4:
                    j = ins[b]
                    if mn[j] == "s_nop" and int(out[j].split()[1]) >= 1:
                        out[j] = "    s_nop 0\n    s_nop %d" % (int(out[j].split()[1]) - 1)
                        size[j] = 8; off += 4; done = True
                        break
                    if mn[j].endswith("_e32") and not mn[j].startswith(("v_readfirstlane", "v_permlane")):
                        op = out[j].split()[0]
                        out[j] = out[j].replace(op, op.replace("_e32", "") + "_e64", 1)
                        size[j] = 8; off += 4; done = True
                        break
                    b -= 1
                if not done and run >= nopmin and k > 0 and not mn[ins[k - 1]].startswith(("s_branch", "s_endpgm")):
                    extra[i] = True; off += 4; done = True
                if not done and k > 0 and mn[ins[k - 1]].startswith(("s_branch", "s_endpgm")):
                    extra[ins[k - 1] + 1] = True; off += 4
            for q in range(run): off += 8
            k += run
            continue
        off += size[i]; k += 1
    res = []
    for i, l in enumerate(out):
        if i in extra: res.append("    s_nop 0")
        res.append(l)
    return res


def gen(**kw):
    o = dict(DEF); o.update(kw)
    L = []
    def A(s): L.append("    " + s)
    def LB(s): L.append(s + ":")
    def C(s): L.append("    ; " + s)
    nt = o["nt"]
    NSTAMP = 12
    role = ["U"]
    def stamp(i):
        if o.get("amp") == "%s%d" % (role[0], i): A("s_memrealtime s[88:89]" if not o.get("cyc") else "s_memtime s[88:89]")
        if o.get("amp0") == "%s%d" % (role[0], i): A("s_memrealtime s[86:87]" if not o.get("cyc") else "s_memtime s[86:87]")
        if o["stamps"] and (i in (0, 11) or o.get("sel") is None or ("%s%d" % (role[0], i)) in o["sel"].split(",")):
            A("s_memrealtime s[%d:%d]" % (64 + 2 * i, 65 + 2 * i))
    def mfma(d, a, b, c):
        A("v_mfma_f32_16x16x32_bf16 v[%d:%d], v[%d:%d], v[%d:%d], %s" % (d, d + 3, a, a + 3, b, b + 3, "0" if c is None else "v[%d:%d]" % (c, c + 3)))
    def mfma16(d, a, b, c):
        A("v_mfma_f32_16x16x16_bf16 v[%d:%d], v[%d:%d], v[%d:%d], %s" % (d, d + 3, a, a + 1, b, b + 1, "0" if c is None else "v[%d:%d]" % (c, c + 3)))
    def allred(v, tmp, op, which):
        A("v_mov_b32 %s, %s" % (tmp, v))
        A("s_nop 1")
        A("v_permlane%d_swap_b32 %s, %s" % (which, tmp, v))
        A("%s %s, %s, %s" % (op, v, v, tmp))
    sX, sK, sV, sWQ, sWO, sG, sU, sDN, sOUT, sWS = "s[4:5]", "s[6:7]", "s[8:9]", "s[10:11]", "s[12:13]", "s[16:17]", "s[18:19]", "s[20:21]", "s[22:23]", "s[26:27]"
    sW, sH, sJ, sTAG, sXCC, sCNT, sFAST = "s30", "s31", "s32", "s33", "s34", "s35", "s36"
    t0, t1, t2, t3 = "s37", "s38", "s39", "s40"
    def dump_stamps():
        if not o["stamps"]: return
        if role[0] == "U" and o.get("sel") is not None and "U" not in o["sel"]: return
        A("s_mov_b64 exec, 1")
        stamp(11)
        A("s_waitcnt lgkmcnt(0)")
        A("s_mul_i32 %s, s2, 5" % t0)
        A("s_add_u32 %s, %s, %s" % (t0, t0, sW))
        A("s_lshl_b32 %s, %s, 7" % (t0, t0))
        A("s_add_u32 %s, %s, 0x%x" % (t0, t0, STAMPS))
        A("v_mov_b32 v2, %s" % t0)
        for i in range(NSTAMP):
            A("v_mov_b32 v3, s%d" % (64 + 2 * i))
            A("global_store_dword v2, v3, %s offset:%d" % (sWS, 4 * i))
        A("v_mov_b32 v3, %s" % ("s63" if role[0] == "U" and o["vote"] else sCNT))
        A("global_store_dword v2, v3, %s offset:%d" % (sWS, 4 * NSTAMP))
        if o.get("dbgfail"):
            for q_, r_ in enumerate(("s84", "s62", "s63")):
                A("v_mov_b32 v3, %s" % r_)
                A("global_store_dword v2, v3, %s offset:%d" % (sWS, 4 * NSTAMP + 8 + 4 * q_))
        A("s_getreg_b32 %s, hwreg(HW_REG_HW_ID)" % t1)
        A("v_mov_b32 v3, %s" % t1)
        A("global_store_dword v2, v3, %s offset:%d" % (sWS, 4 * NSTAMP + 4))

    stamp(0)
    if o.get("pad") or o.get("bal") or o.get("amp"): A("s_memrealtime s[90:91]")
    A("s_cmp_ge_u32 s2, 256")
    A("s_cbranch_scc1 L_end")
    A("s_load_dwordx16 s[4:19], s[0:1], 0")
    A("s_load_dwordx8 s[20:27], s[0:1], 64")
    A("v_lshrrev_b32 v1, 6, v0")
    A("v_and_b32 v0, 63, v0")
    A("v_readfirstlane_b32 %s, v1" % sW)
    A("s_and_b32 %s, s2, 7" % sH)
    A("s_lshr_b32 %s, s2, 3" % sJ)
    if o.get("bal"):
        A("s_or_b32 %s, %s, %s" % (t0, sJ, sW))
        A("s_cbranch_scc1 L_noflag")
        A("s_lshl_b32 %s, %s, 2" % (t0, sH))
        A("v_mov_b32 v108, %s" % t0)
        A("s_waitcnt lgkmcnt(0)")
        A("s_or_b32 %s, s90, 1" % t0)
        A("v_mov_b32 v109, %s" % t0)
        A("global_store_dword v108, v109, s[24:25] sc1")
        LB("L_noflag")
    A("s_cmp_eq_u32 %s, 4" % sW)
    A("s_cbranch_scc0 %s" % ("L_race" if o["vote"] else "L_attn"))

    C("wave 4: layernorm, one [128 x 64] tile of wq and one of gate/up, exchange of q and of the FFN hidden values")
    A("s_setprio 3")
    if o["prefetch"]:
        A("s_getpc_b64 s[28:29]")
        LB("L_pc")
        A("v_lshlrev_b32 v2, 7, v0")
        A("v_min_u32 v2, L_end-L_pc, v2")
        A("global_load_dword v127, v2, s[28:29]")
    sQK, sNOFF = "s50", "s51"
    A("v_lshlrev_b32 v3, 4, v0")
    A("v_lshrrev_b32 v6, 3, v0")
    A("v_and_b32 v5, 2, v6")
    A("v_and_b32 v7, 7, v0")
    A("v_xor_b32 v5, v5, v7")
    A("v_lshlrev_b32 v7, 4, v5")
    A("s_and_b32 %s, %s, 3" % (sQK, sJ))
    A("s_lshl_b32 %s, %s, 10" % (t0, sH))
    if o["lperm"]:
        A("s_andn2_b32 %s, %s, 3" % (t1, sJ))
        A("s_lshr_b32 %s, 0x%x, %s" % (t1, o["lperm"], t1))
        A("s_and_b32 s55, %s, 7" % t1)
    else:
        A("s_lshr_b32 s55, %s, 2" % sJ)
    A("s_lshl_b32 %s, s55, 7" % t1)
    A("s_lshl_b32 %s, %s, 20" % (t2, sQK))
    A("s_add_u32 %s, %s, %s" % (t0, t0, t1))
    A("s_add_u32 %s, %s, %s" % (t0, t0, t2))
    A("v_lshl_add_u32 v4, v6, 13, v7")
    A("v_add_u32 v4, %s, v4" % t0)
    A("v_xor_b32 v5, 64, v4")
    A("v_add_u32 v5, 0x10000, v5")
    A("s_mov_b32 m0, %d" % L_WQ)
    A("s_mov_b32 %s, 0x20000" % t1)
    if o.get("ucontig"):
        A("s_lshl_b32 %s, s2, 10" % t0)
        A("v_add_u32 v4, %s, v3" % t0)
        A("v_add_u32 v5, 0x40000, v4")
        A("s_mov_b32 %s, 0x80000" % t1)
    A("s_movk_i32 s41, 1024")
    A("s_waitcnt lgkmcnt(0)")
    A("global_load_dwordx4 v[8:11], v3, %s" % sX)
    A("s_load_dword %s, %s, 0" % (sTAG, sWS))
    def dma_loop(name, base, step):
        A("s_mov_b32 %s, %d" % (t2, 16 // o["unr"]))
        LB(name)
        for i in range(o["unr"]):
            vv = ("v4", "v5")[i & 1]
            A("global_load_lds_dwordx4 %s, %s %s" % (vv, base, nt))
            A("s_add_u32 m0, m0, s41")
            A("v_add_u32 %s, %s, %s" % (vv, step, vv))
        A("s_sub_u32 %s, %s, 1" % (t2, t2))
        A("s_cmp_lg_u32 %s, 0" % t2)
        A("s_cbranch_scc1 %s" % name)
    dma_loop("L_wq_loop", sWQ, t1)
    if o["b0pos"] == 16: A("s_barrier")
    A("s_mul_i32 %s, %s, 7" % (t0, sH))
    A("s_add_u32 %s, %s, 1" % (t0, t0))
    A("s_lshr_b32 %s, %s, 1" % (t0, t0))
    A("s_lshr_b32 %s, %s, 3" % (t1, sJ))
    A("s_add_u32 %s, %s, %s" % (t0, t0, t1))
    A("s_mul_i32 %s, %s, 3584" % (t1, sQK))
    A("s_add_u32 %s, %s, %s" % (t0, t0, t1))
    A("s_lshl_b32 %s, %s, 7" % (t0, t0))
    A("v_mul_u32_u24 v4, 3584, v6")
    A("v_add3_u32 v4, v4, v7, %s" % t0)
    A("v_xor_b32 v5, 64, v4")
    A("v_add_u32 v5, %d, v5" % (8 * 3584))
    A("s_mov_b32 %s, %d" % (t1, 16 * 3584))
    if o.get("ucontig"):
        A("s_lshr_b32 %s, s2, 1" % t0)
        A("s_min_u32 %s, %s, 111" % (t0, t0))
        A("s_lshl_b32 %s, %s, 10" % (t0, t0))
        A("v_add_u32 v4, %s, v3" % t0)
        A("v_add_u32 v5, %d, v4" % (112 * 1024))
        A("s_mov_b32 %s, %d" % (t1, 224 * 1024))
    A("s_bitcmp0_b32 %s, %d" % (("s2", 0) if o.get("ucontig") else (sJ, 2)))
    A("s_cselect_b64 s[42:43], %s, %s" % (sG, sU))
    A("s_and_b32 %s, %s, 1" % (t3, sH))
    A("s_lshl_b32 %s, %s, 3" % (t0, t3))
    A("s_add_u32 %s, %s, %s" % (sNOFF, t0, sJ))
    A("s_cmp_ge_u32 %s, 32" % sNOFF)
    A("s_cselect_b64 exec, 1, -1")
    dma_loop("L_ff_loop", "s[42:43]", t1)
    A("s_mov_b64 exec, -1")
    if o["vote"]:
        A("s_branch L_unit2")
        LB("L_race")
        C("which of the two copies of the last hand-off lives nearer to this die: race two cold scalar loads of this wave's own lines")
        A("s_lshl_b32 %s, s2, 2" % t0)
        A("s_add_u32 %s, %s, %s" % (t0, t0, sW))
        A("s_lshr_b32 %s, %s, 6" % (t1, t0))
        A("s_lshl_b32 %s, %s, 14" % (t1, t1))
        A("s_and_b32 %s, %s, 63" % (t0, t0))
        A("s_lshl_b32 %s, %s, 7" % (t0, t0))
        A("s_add_u32 %s, %s, %s" % (t0, t0, t1))
        A("s_bitset1_b32 %s, 21" % t0)
        A("s_lshl_b32 %s, %s, 13" % (t1, sW))
        A("s_and_b32 %s, %s, 0x2000" % (t1, t1))
        A("s_or_b32 s46, %s, %s" % (t0, t1))
        A("s_xor_b32 s47, s46, 0x2000")
        A("s_movk_i32 s28, 0x5bd1")
        A("s_movk_i32 s29, 0x5bd1")
        A("s_waitcnt lgkmcnt(0)")
        A("s_load_dword s28, %s, s46" % sWS)
        A("s_load_dword s29, %s, s47" % sWS)
        A("s_waitcnt lgkmcnt(1)")
        A("s_mov_b64 s[48:49], s[28:29]")
        LB("L_race_done")
        A("s_cmpk_lg_i32 s48, 0x5bd1")
        A("s_cselect_b32 %s, 1, 0" % t0)
        A("s_cmpk_lg_i32 s49, 0x5bd1")
        A("s_cselect_b32 %s, 1, 0" % t2)
        A("s_sub_i32 %s, %s, %s" % (t0, t0, t2))
        A("s_sub_i32 %s, 0, %s" % (t2, t0))
        A("s_cmp_eq_u32 %s, 0" % t1)
        A("s_cselect_b32 %s, %s, %s" % (t0, t0, t2))
        A("s_lshl_b32 %s, %s, 2" % (t2, sW))
        A("v_mov_b32 v158, %s" % t2)
        A("v_mov_b32 v159, %s" % t0)
        A("ds_write_b32 v158, v159 offset:%d" % L_VOTE)
        A("s_branch L_attn")
        LB("L_unit2")
    if o["pt1"]:
        C("pull this workgroup's own hand-off lines into L2 before anyone polls them")
        A("s_lshl_b32 %s, %s, 15" % (t0, sH))
        A("s_lshl_b32 %s, %s, 8" % (t1, sJ))
        A("s_add_u32 %s, %s, %s" % (t0, t0, t1))
        A("s_add_u32 %s, %s, 0x%x" % (t0, t0, MB1A))
        A("v_and_b32 v33, 1, v0")
        A("v_bfe_u32 v32, v0, 1, 1")
        A("v_lshlrev_b32 v33, 7, v33")
        A("v_lshl_add_u32 v33, v32, 13, v33")
        A("s_mul_i32 %s, %s, 240" % (t1, sJ))
        A("s_sub_u32 %s, 0x4000, %s" % (t1, t1))
        A("v_cmp_lt_u32 vcc, 3, v0")
        A("v_mov_b32 v32, %s" % t1)
        A("s_nop 0")
        A("v_cndmask_b32 v33, v33, v32, vcc")
        A("v_add_u32 v33, %s, v33" % t0)
        A("global_load_dword v119, v33, %s sc1" % sWS)
    def tlbwarm():
        C("first touch of the pages the later loads use (address translation early, off their queue)")
        A("s_lshl_b32 %s, %s, 24" % (t0, sH))
        A("s_add_u32 %s, %s, 0xF00000" % (t0, t0))
        A("v_mov_b32 v112, %s" % t0)
        A("s_lshl_b32 %s, %s, 19" % (t0, sH))
        A("v_mov_b32 v113, %s" % t0)
        A("s_mul_i32 %s, %s, 0x38000" % (t0, sH))
        A("v_mov_b32 v114, %s" % t0)
        A("v_mov_b32 v115, 0x%x" % MB3)
        A("s_mov_b64 exec, 1")
        A("global_load_dword v116, v112, %s" % sK)
        A("global_load_dword v117, v112, %s" % sV)
        A("global_load_dword v118, v113, %s" % sWO)
        A("global_load_dword v111, v114, %s" % sDN)
        A("global_load_dword v110, v115, %s" % sWS)
        A("s_mov_b64 exec, -1")
    NW = 1 if o["pt1"] else 0
    if o.get("tlbw") == 2:
        tlbwarm(); NW += 5
    if o["b0pos"] == 32:
        if o.get("b0wait") is not None: A("s_waitcnt vmcnt(%d)" % o["b0wait"])
        A("s_barrier")
    stamp(1)
    XF = 12
    A("s_mov_b32 %s, 0xffff0000" % t1)
    A("s_waitcnt vmcnt(%d)" % (32 + NW))
    stamp(2)
    C("layernorm with the reference's bf16 roundings")
    for i in range(4):
        A("v_lshlrev_b32 v%d, 16, v%d" % (XF + 2 * i, 8 + i))
        A("v_and_b32 v%d, %s, v%d" % (XF + 2 * i + 1, t1, 8 + i))
    fill = []
    def F(s): fill.append(s)
    def nop2():
        n = 0
        while fill and n < 2:
            A(fill.pop(0)); n += 1
        if n < 2: A("s_nop %d" % (1 - n))
    TRB = 120
    vAX, vS1, vL1, vL1x, vL1a, vF, vTN, vTB = "v34", "v35", "v36", "v37", "v38", "v39", "v124", "v125"
    sRP, sB1 = "s52", "s53"
    F("v_lshrrev_b32 v126, 4, v0")
    F("v_bfe_u32 v4, v0, 2, 2")
    F("v_lshl_add_u32 v5, v126, 3, v4")
    F("v_and_b32 v6, 3, v0")
    F("v_lshlrev_b32 v7, 3, v6")
    F("v_lshl_add_u32 v5, v5, 7, v7")
    F("v_bfe_u32 v4, v0, 3, 2")
    for ct in range(4):
        F("v_xor_b32 v7, %d, v4" % ct)
        F("v_lshl_add_u32 v%d, v7, 5, v5" % (TRB + ct))
    F("s_lshl_b32 %s, %s, 8" % (t0, sQK))
    F("v_lshl_add_u32 %s, v126, 4, %s" % (vAX, t0))
    F("s_lshl_b32 %s, %s, 15" % (sB1, sH))
    F("s_add_u32 %s, %s, 0x%x" % (sB1, sB1, MB1A))
    def wavesum(v, tmp):
        for rot in (1, 2, 4, 8):
            nop2()
            A("v_add_f32_dpp %s, %s, %s row_ror:%d %s" % (v, v, v, rot, DPP))
        for which in (16, 32):
            A("v_mov_b32 %s, %s" % (tmp, v))
            nop2()
            A("v_permlane%d_swap_b32 %s, %s" % (which, tmp, v))
            A("v_add_f32 %s, %s, %s" % (v, v, tmp))
    def P2(r): return "v[%d:%d]" % (r, r + 1)
    A("v_pk_add_f32 v[22:23], %s, %s" % (P2(XF), P2(XF + 2)))
    A("v_pk_add_f32 v[24:25], %s, %s" % (P2(XF + 4), P2(XF + 6)))
    A("v_pk_add_f32 v[22:23], v[22:23], v[24:25]")
    A("v_add_f32 v22, v22, v23")
    wavesum("v22", "v23")
    A("v_mul_f32 v22, 0x3b000000, v22")
    DV = 24
    for i in range(4):
        A("v_pk_add_f32 %s, %s, v[22:23] op_sel_hi:[1,0] neg_lo:[0,1] neg_hi:[0,1]" % (P2(DV + 2 * i), P2(XF + 2 * i)))
    A("v_cvt_pk_bf16_f32 v22, 0, v22")
    A("v_pk_mul_f32 v[32:33], %s, %s" % (P2(DV), P2(DV)))
    for i in range(1, 4):
        A("v_pk_fma_f32 v[32:33], %s, %s, v[32:33]" % (P2(DV + 2 * i), P2(DV + 2 * i)))
    A("v_add_f32 v32, v32, v33")
    pre = ["v_pk_add_f32 %s, %s, v[22:23] op_sel_hi:[1,0] neg_lo:[0,1] neg_hi:[0,1]" % (P2(XF + 2 * i), P2(XF + 2 * i)) for i in range(4)]
    pre += ["v_cvt_pk_bf16_f32 v%d, 0, v%d" % (XF + i, XF + i) for i in range(8)]
    rest = fill[:]; fill[:] = pre
    wavesum("v32", "v33")
    fill[:] = fill + rest
    A("v_mul_f32 v32, 0x3b000000, v32")
    A("v_cvt_pk_bf16_f32 v32, 0, v32")
    A("v_add_f32 v32, 0x%x, v32" % EPS)
    A("v_cvt_pk_bf16_f32 v32, 0, v32")
    A("v_sqrt_f32 v32, v32")
    A(fill.pop(0))
    A("v_cvt_pk_bf16_f32 v32, 0, v32")
    A("v_rcp_f32 v32, v32")
    A(fill.pop(0))
    for i in range(4):
        A("v_pk_mul_f32 %s, %s, v[32:33] op_sel_hi:[1,0]" % (P2(XF + 2 * i), P2(XF + 2 * i)))
    for i in range(4):
        A("v_cvt_pk_bf16_f32 v%d, v%d, v%d" % (8 + i, XF + 2 * i, XF + 2 * i + 1))
    A("ds_write_b128 v3, v[8:11] offset:%d" % L_XN)
    while fill: A(fill.pop(0))
    A("s_lshl_b32 %s, s55, 2" % t2)
    A("s_add_u32 s55, %s, %s" % (t2, sQK))
    A("s_lshl_b32 %s, s55, 8" % t2)
    A("s_add_u32 %s, %s, %s" % (t2, t2, sB1))
    A("v_lshrrev_b32 v4, 2, v0")
    A("v_lshl_add_u32 %s, v4, 4, %s" % (vS1, t2))
    A("s_waitcnt lgkmcnt(0)")
    AF = 40
    for m in range(4):
        A("ds_read_b128 v[%d:%d], %s offset:%d" % (AF + 4 * m, AF + 4 * m + 3, vAX, L_XN + m * 64))
    A("s_add_u32 %s, %s, 0x%x" % (sTAG, sTAG, TAGC))
    A("v_lshlrev_b32 v4, 2, v6")
    A("v_lshrrev_b32 %s, v4, %s" % (vTN, sTAG))
    A("v_and_b32 %s, 15, %s" % (vTN, vTN))
    A("v_lshlrev_b32 v4, 3, v6")
    A("v_lshrrev_b32 %s, v4, %s" % (vTB, sTAG))
    A("v_and_b32 %s, 0xff, %s" % (vTB, vTB))
    A("s_mov_b32 s44, 0")
    A("s_mov_b32 s45, -1")
    if o["b0pos"] == 40: A("s_barrier")
    stamp(3)
    BF = 56
    D0 = 88
    GR = 24
    def gemv(lbase, vm0):
        def rd(m, ct):
            b = BF + 16 * (m & 1)
            for hh in range(2):
                A("ds_read_b64_tr_b16 v[%d:%d], v%d offset:%d" % (b + 4 * ct + 2 * hh, b + 4 * ct + 2 * hh + 1, TRB + ct, lbase + m * 4096 + hh * 512))
        A("s_waitcnt vmcnt(%d)" % (vm0 + 12))
        for ct in range(4): rd(0, ct)
        for m in range(4):
            b = BF + 16 * (m & 1)
            if m < 3: A("s_waitcnt vmcnt(%d)" % (vm0 + 8 - 4 * m))
            if lbase == L_WQ and o["b0pos"] == 41 + m: A("s_barrier")
            for ct in range(4):
                A("s_waitcnt lgkmcnt(%d)" % (6 if m < 3 else 6 - 2 * ct))
                mfma(D0 + 4 * ct, AF + 4 * m, b + 4 * ct, None if m == 0 else D0 + 4 * ct)
                if m < 3: rd(m + 1, ct)
    def pack(maskc, vt):
        A("s_mov_b32 vcc_lo, 0xffff0000")
        A("s_mov_b32 vcc_hi, 0xffff0000")
        A("s_movk_i32 %s, 0x%x" % (t0, maskc))
        A("s_nop 2")
        A("v_cndmask_b32 v%d, v%d, v%d, vcc" % (GR, D0, D0 + 4))
        A("s_nop 0")
        A("v_cndmask_b32 v%d, v%d, v%d, vcc" % (GR + 1, D0 + 8, D0 + 12))
        A("v_cndmask_b32 v%d, v%d, v%d, s[44:45]" % (GR, GR, GR + 1))
        A("v_and_or_b32 v%d, v%d, %s, %s" % (GR, GR, t0, vt))
        A("v_add_u32 v22, 0x%x, %s" % (MB1B - MB1A, vS1))
        A("s_nop 0")
        for k in range(1, 4):
            A("v_mov_b32_dpp v%d, v%d quad_perm:[%d,%d,%d,%d] %s" % (GR + k, GR, k, k, k, k, DPP))
        A("s_mov_b32 exec_lo, 0x11111111")
        A("s_mov_b32 exec_hi, 0x11111111")
        A("global_store_dwordx4 %s, v[%d:%d], %s" % (vS1, GR, GR + 3, sWS))
        A("global_store_dwordx4 v22, v[%d:%d], %s sc1" % (GR, GR + 3, sWS))
        A("s_mov_b64 exec, -1")
    gemv(L_WQ, 16 + NW)
    if o["b0pos"] == 45: A("s_barrier")
    pack(0xfff0, vTN)
    if o["b0pos"] == 47: A("s_barrier")
    stamp(4)
    XG = 28
    if o["vote"]:
        assert o["b0pos"] <= 47 and not o["hlate"]
        A("v_mov_b32 v4, 0")
        A("ds_read_b128 v[112:115], v4 offset:%d" % L_VOTE)
    A("s_getreg_b32 %s, hwreg(HW_REG_XCC_ID, 0, 4)" % sXCC)
    A("s_and_b32 %s, %s, 0xff" % (t0, sTAG))
    A("s_lshl_b32 %s, %s, 8" % (t2, sXCC))
    A("s_or_b32 s54, %s, %s" % (t0, t2))
    A("v_mov_b32 v%d, s54" % XG)
    for k in range(1, 4):
        A("s_bfe_u32 %s, %s, 0x%x" % (t0, sTAG, 0x80000 | (8 * k)))
        A("v_mov_b32 v%d, %s" % (XG + k, t0))
    if o["vote"]:
        A("s_waitcnt lgkmcnt(0)")
        A("v_add3_u32 v112, v112, v113, v114")
        A("v_add_u32 v112, v112, v115")
        A("v_lshl_add_u32 v%d, v112, 8, v%d" % (XG + 1, XG + 1))
    A("s_lshl_b32 %s, %s, 4" % (t2, sJ))
    A("s_add_u32 %s, %s, %s" % (t2, t2, sB1))
    A("s_add_u32 %s, %s, 0x4000" % (t2, t2))
    A("v_mov_b32 v22, %s" % t2)
    A("v_add_u32 v23, 0x%x, v22" % (MB1B - MB1A))
    A("s_mov_b64 exec, 1")
    A("global_store_dwordx4 v22, v[%d:%d], %s" % (XG, XG + 3, sWS))
    A("global_store_dwordx4 v23, v[%d:%d], %s sc1" % (XG, XG + 3, sWS))
    A("s_mov_b64 exec, -1")
    if o["b0pos"] == 50: A("s_barrier")
    A("s_sub_i32 %s, %s, s55" % (t2, sJ))
    A("s_lshl_b32 %s, %s, 8" % (t2, t2))
    A("s_add_u32 %s, %s, 0x2000" % (t2, t2))
    A("v_add_u32 %s, %s, %s" % (vS1, t2, vS1))
    A("s_cmp_ge_u32 %s, 32" % sNOFF)
    A("s_cbranch_scc1 L_noff2")
    gemv(L_FF, 4 + NW)
    pack(0xff00, vTB)
    LB("L_noff2")
    stamp(7)
    if o.get("nosync"):
        A("s_barrier")
        A("s_mov_b32 %s, 0" % sCNT)
        dump_stamps()
        A("s_endpgm")
    A("v_and_b32 v4, 15, v0")
    A("v_lshlrev_b32 v4, 4, v4")
    A("v_lshl_add_u32 v4, v126, 10, v4")
    A("s_add_u32 %s, %s, 2432" % (t0, sB1))
    A("v_add_u32 %s, %s, v4" % (vL1, t0))
    A("v_and_b32 v4, 31, v0")
    A("s_add_u32 %s, %s, 0x4000" % (t0, sB1))
    A("v_lshl_add_u32 %s, v4, 4, %s" % (vL1x, t0))
    A("s_lshl_b32 %s, %s, 1" % (t2, t3))
    A("s_sub_u32 %s, 8, %s" % (sRP, t2))
    A("s_mul_i32 %s, %s, %s" % (t2, sRP, sJ))
    A("s_sub_u32 %s, %s, 1" % (t0, sRP))
    A("v_and_b32 v4, 7, v0")
    A("v_min_u32 v4, %s, v4" % t0)
    A("v_add_u32 %s, %s, v4" % (vF, t2))
    A("v_lshrrev_b32 v4, 6, %s" % vF)
    A("v_bfe_u32 v5, v0, 3, 1")
    A("v_lshl_add_u32 v4, v4, 1, v5")
    A("v_lshl_add_u32 v4, v4, 2, v126")
    A("v_bfe_u32 v5, %s, 2, 4" % vF)
    A("v_lshlrev_b32 v5, 4, v5")
    A("v_lshl_add_u32 v4, v4, 8, v5")
    A("s_add_u32 %s, %s, 0x2000" % (t0, sB1))
    A("v_add_u32 %s, %s, v4" % (vL1a, t0))
    for k in range(4):
        A("s_bfe_u32 s%d, %s, 0x%x" % (56 + k, sTAG, 0x40000 | (4 * k)))
    A("s_movk_i32 s62, 255")
    A("s_mov_b32 s60, 0x0c0c0400")
    A("s_mov_b32 s61, 0x04000c0c")
    P = 40
    PX, PA_ = 72, 76
    A("s_mov_b32 %s, 0" % sCNT)
    def switch_copy(regs):
        A("s_add_u32 %s, %s, 1" % (sCNT, sCNT))
        A("s_cmp_eq_u32 %s, %d" % (sCNT, o["atries"]))
        A("s_cselect_b32 %s, 0x%x, 0" % (t0, MB1B - MB1A))
        for r in regs: A("v_add_u32 %s, %s, %s" % (r, t0, r))
        A("s_cmp_gt_u32 %s, %d" % (sCNT, o["spinmax"]))
        A("s_cbranch_scc1 L_end")
    def bytecheck(p, dst):
        A("v_perm_b32 v22, v%d, v%d, s60" % (p + 1, p))
        A("v_perm_b32 v23, v%d, v%d, s61" % (p + 3, p + 2))
        A("v_or_b32 v22, v22, v23")
        A("v_cmp_ne_u32 %s, %s, v22" % (dst, sTAG))
    stamp(9)
    LB("L_poll1")
    stamp(8)
    for i in range(2):
        for q in range(4):
            r = P + 16 * i + 4 * q
            A("global_load_dwordx4 v[%d:%d], %s, %s offset:%d sc1" % (r, r + 3, vL1, sWS, i * 4096 + q * 256 - 2432))
    A("global_load_dwordx4 v[%d:%d], %s, %s sc1" % (PX, PX + 3, vL1x, sWS))
    A("global_load_dwordx4 v[%d:%d], %s, %s sc1" % (PA_, PA_ + 3, vL1a, sWS))
    switch_copy([vL1, vL1x, vL1a])
    for g_ in range(8):
        A("s_waitcnt vmcnt(%d)" % (9 - g_))
        for k in range(4):
            A("v_xor_b32 v%d, s%d, v%d" % (P + 4 * g_ + k, 56 + k, P + 4 * g_ + k))
        if g_ == 0:
            A("v_or3_b32 v21, v%d, v%d, v%d" % (P, P + 1, P + 2))
            A("v_or_b32 v21, v21, v%d" % (P + 3))
        else:
            A("v_or3_b32 v21, v21, v%d, v%d" % (P + 4 * g_, P + 4 * g_ + 1))
            A("v_or3_b32 v21, v21, v%d, v%d" % (P + 4 * g_ + 2, P + 4 * g_ + 3))
    A("v_and_b32 v21, 15, v21")
    A("s_waitcnt vmcnt(1)")
    bytecheck(PX, "vcc")
    A("v_cmp_ne_u32 s[46:47], 0, v21")
    if o.get("dbgfail"):
        A("s_cmp_eq_u32 %s, 1" % sCNT)
        A("s_cselect_b32 s84, vcc_lo, s84")
        A("s_cselect_b32 s62, s46, s62")
        A("s_cselect_b32 s63, s47, s63")
    A("s_or_b64 vcc, vcc, s[46:47]")
    A("s_cbranch_vccnz L_poll1")
    stamp(5)
    for i in range(2):
        b = P + 16 * i
        for k in range(4):
            A("v_add_f32 v%d, v%d, v%d" % (b + k, b + k, b + 4 + k))
            A("v_add_f32 v%d, v%d, v%d" % (b + 8 + k, b + 8 + k, b + 12 + k))
        for k in range(4):
            A("v_add_f32 v%d, v%d, v%d" % (b + k, b + k, b + 8 + k))
        A("v_cvt_pk_bf16_f32 v%d, v%d, v%d" % (b, b, b + 1))
        A("v_cvt_pk_bf16_f32 v%d, v%d, v%d" % (b + 1, b + 2, b + 3))
    A("v_lshlrev_b32 v22, 3, v0")
    A("ds_write_b64 v22, v[%d:%d] offset:%d" % (P, P + 1, L_Q))
    A("ds_write_b64 v22, v[%d:%d] offset:%d" % (P + 16, P + 17, L_Q + 512))
    A("v_cmp_ne_u32 vcc, s54, v%d" % PX)
    A("s_cmp_eq_u64 vcc, 0")
    A("s_cselect_b32 %s, 1, 0" % sFAST)
    if o.get("forceslow"): A("s_mov_b32 %s, 0" % sFAST)
    A("v_mov_b32 v26, %s" % sFAST)
    A("v_mov_b32 v27, %s" % sTAG)
    A("v_mov_b32 v22, %d" % L_FLAG)
    A("ds_write_b64 v22, v[26:27]")
    if o["auxearly"]:
        A("s_waitcnt vmcnt(0)")
        bytecheck(PA_, "vcc")
        A("s_cbranch_vccz L_aux_b1")
        A("global_load_dwordx4 v[%d:%d], %s, %s sc1" % (PA_, PA_ + 3, vL1a, sWS))
        LB("L_aux_b1")
    A("s_waitcnt lgkmcnt(0)")
    A("s_barrier")
    if o["vote"]:
        A("v_cmp_gt_i32 vcc, 0, v%d" % (PX + 1))
        A("v_cmp_lt_i32 s[46:47], %s, v%d" % ("s62", PX + 1))
        A("s_bcnt1_i32_b32 %s, vcc_lo" % t0)
        A("s_bcnt1_i32_b32 %s, s46" % t2)
        A("s_cmp_gt_u32 %s, %s" % (t0, t2))
        A("s_cselect_b32 s55, 0x2000, 0")
        if o.get("voteinv"): A("s_xor_b32 s55, s55, 0x2000")
        if o["stamps"]:
            A("s_bcnt1_i32_b32 s63, vcc_lo")
            A("s_lshl_b32 %s, %s, 8" % (t2, t2))
            A("s_or_b32 s63, s63, %s" % t2)
    if o["hlate"]:
        A("s_setprio %d" % o.get("hprio", 0))
        A("s_barrier")
        A("s_barrier")
    A("s_branch L_chk_aux")
    LB("L_poll_aux")
    A("global_load_dwordx4 v[%d:%d], %s, %s sc1" % (PA_, PA_ + 3, vL1a, sWS))
    switch_copy([vL1a])
    LB("L_chk_aux")
    A("s_waitcnt vmcnt(0)")
    bytecheck(PA_, "vcc")
    A("s_cbranch_vccnz L_poll_aux")
    A("s_movk_i32 %s, 0xff00" % t0)
    A("v_and_b32 v23, 1, %s" % vF)
    A("v_cmp_eq_u32 vcc, 0, v23")
    A("v_and_b32 v23, 2, %s" % vF)
    A("v_cmp_eq_u32 s[46:47], 0, v23")
    A("v_cndmask_b32 v24, v%d, v%d, vcc" % (PA_ + 1, PA_))
    A("v_cndmask_b32 v25, v%d, v%d, vcc" % (PA_ + 3, PA_ + 2))
    A("v_cndmask_b32 v24, v25, v24, s[46:47]")
    A("v_and_b32 v24, %s, v24" % t0)
    allred("v24", "v23", "v_add_f32", 16)
    allred("v24", "v23", "v_add_f32", 32)
    A("v_cvt_pk_bf16_f32 v24, v24, v24")
    A("v_and_b32 v24, %s, v24" % t1)
    A("v_mul_f32 v25, 0x%x, v24" % (LOG2E | 0x80000000))
    A("v_exp_f32 v25, v25")
    A("v_mov_b32_dpp v26, v24 row_ror:8 %s" % DPP)
    A("v_add_f32 v25, 1.0, v25")
    A("v_rcp_f32 v25, v25")
    A("v_cmp_le_u32 vcc, %s, v0" % sRP)
    A("v_mul_f32 v25, v24, v25")
    A("v_cvt_pk_bf16_f32 v25, v25, v25")
    A("v_and_b32 v25, %s, v25" % t1)
    A("v_mul_f32 v25, v25, v26")
    A("v_cvt_pk_bf16_f32 v25, v25, v25")
    A("v_cndmask_b32 v25, v25, 0, vcc")
    A("v_lshlrev_b32 v22, 2, v0")
    if o["vote"]:
        A("v_mov_b32 v26, s55")
        A("v_mov_b32 v27, 0")
        A("ds_write_b32 v27, v26 offset:%d" % (L_FLAG + 8))
    A("s_mov_b64 exec, 0xff")
    A("ds_write_b32 v22, v25 offset:%d" % L_H)
    A("s_waitcnt lgkmcnt(0)")
    stamp(6)
    dump_stamps()
    A("s_endpgm")

    role[0] = "A"
    if o.get("alignA"): L.append(".p2align %d" % o["alignA"])
    for _ in range(o.get("shiftA", 0)): A("s_nop 0")
    LB("L_attn")
    vK0, vK1, vV0, vV1 = "v2", "v3", "v4", "v5"
    vWO0, vWO1, vDN0, vDN1, vXF, vXP = "v6", "v7", "v8", "v9", "v10", "v1"
    vS2, vL2, vS25, vL25, vL3, vS3 = "v11", "v12", "v13", "v14", "v15", "v150"
    KR, VR, WOR, DNR, QR, SR, PA, MK = 16, 48, 80, 96, 104, 120, 128, 146
    vM0, vM1, vQA, vOW, vOR, vMLW, vHA = "v151", "v152", "v153", "v154", "v155", "v156", "v157"
    vN, vG, vN16, vP = "v120", "v121", "v122", "v123"
    u0, u1 = "v124", "v125"
    s4JW = "s41"
    C("K and V: load i = 1 KB block (4 keys) number 128 i + 4j + w of the head's window; K goes through LDS")
    A("s_lshl_b32 %s, %s, 24" % (t0, sH))
    A("s_lshl_b32 %s, %s, 2" % (s4JW, sJ))
    A("s_add_u32 %s, %s, %s" % (s4JW, s4JW, sW))
    A("s_lshl_b32 %s, %s, 10" % (t2, s4JW))
    A("s_add_u32 %s, %s, %s" % (t0, t0, t2))
    A("s_add_u32 %s, %s, 0xF00000" % (t0, t0))
    A("v_and_b32 %s, 15, v0" % vN)
    A("v_lshrrev_b32 %s, 4, v0" % vG)
    A("v_lshlrev_b32 %s, 4, %s" % (vN16, vN))
    A("v_lshl_add_u32 %s, v0, 4, %s" % (vV0, t0))
    A("v_lshlrev_b32 %s, 6, %s" % (u0, vG))
    A("v_xor_b32 %s, %s, %s" % (vK0, u0, vV0))
    A("s_lshl_b32 %s, %s, 13" % (t1, sW))
    A("s_add_u32 m0, %s, %d" % (t1, L_K))
    A("s_mov_b32 s42, 0x20000")
    A("s_movk_i32 s43, 1024")
    if not o["vote"]: A("s_waitcnt lgkmcnt(0)")
    if o.get("tlbw") == 1:
        A("s_cmp_lg_u32 %s, 0" % sW)
        A("s_cbranch_scc1 L_notlb")
        tlbwarm()
        A("s_waitcnt vmcnt(0)")
        LB("L_notlb")
    if o["vote"]: A("s_waitcnt lgkmcnt(1)")
    if o["b0pos"]: A("s_barrier")
    stamp(1)
    issued = [0]
    def load(w, txt):
        if issued[0] >= w:
            A("s_waitcnt vmcnt(%d)" % (w - 1))
        A(txt); issued[0] += 1
    def rot(i): return (i * o["rotm"]) & 127
    def kload(i):
        load(o["WK"], "global_load_lds_dwordx4 %s, %s %s" % (vK0, sK, nt))
        if i < 7:
            A("s_add_u32 m0, m0, s43")
            A("v_xor_b32 %s, %d, %s" % (vK0, (((i & 3) ^ ((i + 1) & 3)) << 4) | ((rot(i) ^ rot(i + 1)) << 10), vK0))
            A("v_add_u32 %s, s42, %s" % (vK0, vK0))
    nk_first = min(o["WK"], 8)
    if o.get("bal"):
        A("v_and_b32 v158, 7, v0")
        A("v_lshlrev_b32 v158, 2, v158")
        A("global_load_dword v159, v158, s[24:25] sc1")
    for i in range(nk_first): kload(i)
    C("address and mask setup in the shadow of the K loads")
    A("s_lshl_b32 %s, %s, 19" % (t0, sH))
    A("s_lshl_b32 %s, %s, 14" % (t2, sJ))
    A("s_add_u32 %s, %s, %s" % (t0, t0, t2))
    A("s_lshl_b32 %s, %s, 8" % (t3, sW))
    A("s_add_u32 %s, %s, %s" % (t0, t0, t3))
    A("s_add_u32 %s, %s, 0x1000" % (t0, t0))
    A("v_lshl_add_u32 %s, %s, 10, %s" % (vDN0, vG, vN16))
    A("v_add_u32 %s, %s, %s" % (vWO0, t0, vDN0))
    A("v_add_u32 %s, 0x2000, %s" % (vWO1, vWO0))
    A("s_mul_i32 %s, %s, 7" % (t0, sH))
    A("s_add_u32 %s, %s, 1" % (t0, t0))
    A("s_lshr_b32 %s, %s, 1" % (t0, t0))
    A("s_lshl_b32 %s, %s, 6" % (t0, t0))
    A("s_and_b32 %s, %s, 1" % (t2, sH))
    A("s_lshl_b32 %s, %s, 1" % (t2, t2))
    A("s_sub_u32 %s, 8, %s" % (t1, t2))
    A("s_mul_i32 %s, %s, %s" % (t2, t1, sJ))
    A("s_add_u32 %s, %s, %s" % (t0, t0, t2))
    A("s_lshl_b32 %s, %s, 10" % (t0, t0))
    A("s_add_u32 %s, %s, %s" % (t0, t0, t3))
    A("v_add_u32 %s, %s, %s" % (vDN0, t0, vDN0))
    A("s_sub_u32 %s, %s, 5" % (t1, t1))
    A("v_min_u32 %s, %s, %s" % (vDN1, t1, vG))
    A("v_lshl_add_u32 %s, %s, 10, %s" % (vDN1, vDN1, vN16))
    A("s_add_u32 %s, %s, 4096" % (t0, t0))
    A("v_add_u32 %s, %s, %s" % (vDN1, t0, vDN1))
    A("v_and_b32 %s, 1, v0" % vP)
    A("v_and_b32 %s, 1, %s" % (u0, vG))
    A("s_lshl_b32 %s, %s, 3" % (t2, s4JW))
    A("v_lshl_add_u32 %s, %s, 2, %s" % (vXF, u0, t2))
    A("s_lshl_b32 %s, %s, 16" % (t0, sH))
    A("s_lshl_b32 %s, %s, 14" % (t2, sW))
    A("s_lshl_b32 %s, %s, 6" % (t3, sJ))
    A("s_add_u32 %s, %s, %s" % (t2, t2, t3))
    A("s_add_u32 %s, %s, %s" % (t2, t2, t0))
    A("s_add_u32 %s, %s, 0x%x" % (t2, t2, MB2))
    A("v_lshrrev_b32 %s, 3, v0" % vS2)
    A("v_bfe_u32 %s, v0, 1, 2" % u1)
    A("v_lshlrev_b32 %s, 4, %s" % (u1, u1))
    A("v_lshl_add_u32 %s, %s, 11, %s" % (vS2, vS2, u1))
    A("v_add_u32 %s, %s, %s" % (vS2, t2, vS2))
    lay = o.get("lay25", 0)
    A("v_lshrrev_b32 %s, 1, %s" % (vS25, vN))
    A("v_lshlrev_b32 %s, %d, %s" % (u1, (5, 10, 10, 5)[lay], vP))
    A("v_lshl_add_u32 %s, %s, 11, %s" % (vS25, vS25, u1))
    A("v_lshl_add_u32 %s, %s, %d, %s" % (vS25, u0, (4, 9, 4, 4)[lay], vS25))
    if lay:
        A("s_mul_i32 %s, %s, %d" % (t3, sJ, (0, 48, 32, 0)[lay]))
        A("s_sub_u32 %s, %s, %s" % (t2, t2, t3))
    A("s_add_u32 %s, %s, 0x%x" % (t2, t2, MB25 - MB2))
    A("v_add_u32 %s, %s, %s" % (vS25, t2, vS25))
    A("s_lshl_b32 %s, %s, 11" % (t3, sJ))
    A("s_add_u32 %s, %s, %s" % (t0, t0, t3))
    A("s_add_u32 %s, %s, 0x%x" % (t0, t0, MB2))
    A("v_lshl_add_u32 %s, v0, 4, %s" % (vL2, t0))
    if lay == 2:
        A("s_lshr_b32 %s, %s, 1" % (t3, sW))
        A("s_lshl_b32 %s, %s, 10" % (t3, t3))
        A("s_add_u32 %s, %s, %s" % (t0, t0, t3))
        A("s_and_b32 %s, %s, 1" % (t3, sW))
        A("s_lshl_b32 %s, %s, 4" % (t3, t3))
    else:
        A("s_lshl_b32 %s, %s, %d" % (t3, sW, (4, 9, 0, 4)[lay]))
    A("s_add_u32 %s, %s, %s" % (t0, t0, t3))
    A("s_add_u32 %s, %s, 0x%x" % (t0, t0, MB25 - MB2))
    A("v_and_b32 %s, 31, v0" % u1)
    A("v_lshl_add_u32 %s, %s, %d, %s" % (vL25, u1, (6, 4, 5, 6)[lay], t0))
    if lay == 3:
        A("s_lshl_b32 %s, %s, 16" % (t0, sH))
        A("s_add_u32 %s, %s, 0x%x" % (t0, t0, MB25))
        A("s_lshl_b32 %s, %s, 11" % (t2, sJ))
        A("s_lshl_b32 %s, %s, 9" % (t3, sW))
        A("s_add_u32 %s, %s, %s" % (t2, t2, t3))
        A("s_add_u32 %s, %s, %s" % (t2, t2, t0))
        A("v_lshl_add_u32 %s, %s, 5, %s" % (vS25, vN, t2))
        A("v_lshl_add_u32 %s, %s, 4, %s" % (vS25, u0, vS25))
        A("s_lshl_b32 %s, %s, 6" % (t2, sJ))
        A("s_lshl_b32 %s, %s, 4" % (t3, sW))
        A("s_add_u32 %s, %s, %s" % (t2, t2, t3))
        A("s_add_u32 %s, %s, %s" % (t2, t2, t0))
        A("v_lshl_add_u32 %s, %s, 11, %s" % (vL25, u1, t2))
    A("s_lshr_b32 %s, %s, 1" % (t0, sJ))
    A("s_lshl_b32 %s, %s, 14" % (t0, t0))
    A("s_and_b32 %s, %s, 1" % (t3, sJ))
    A("s_lshl_b32 %s, %s, 12" % (t3, t3))
    A("s_add_u32 %s, %s, %s" % (t0, t0, t3))
    A("s_lshl_b32 %s, %s, 7" % (t3, sW))
    A("s_add_u32 %s, %s, %s" % (t0, t0, t3))
    A("s_add_u32 %s, %s, 0x%x" % (t0, t0, MB3))
    A("v_lshl_add_u32 %s, %s, 4, %s" % (u0, u0, t0))
    A("v_and_b32 %s, 7, v0" % u1)
    A("v_lshl_add_u32 %s, %s, 9, %s" % (vL3, u1, u0))
    A("s_lshl_b32 %s, %s, 9" % (t3, sH))
    A("v_lshl_add_u32 %s, %s, 13, %s" % (u0, vP, u0))
    A("v_add_u32 %s, %s, %s" % (vS3, t3, u0))
    A("v_lshlrev_b32 %s, 4, %s" % (u1, vP))
    def pretouch2():
        C("pull this workgroup's incoming hand-off lines into L2 (waves 0,1: hop 2; waves 2,3: hop 2.5)")
        A("s_and_b32 %s, %s, 1" % (t0, sW))
        A("s_lshl_b32 %s, %s, 10" % (t0, t0))
        A("s_lshr_b32 %s, %s, 1" % (t3, sW))
        A("s_mul_i32 %s, %s, 0x%x" % (t3, t3, MB25 - MB2))
        A("s_add_u32 %s, %s, %s" % (t0, t0, t3))
        A("v_add_u32 v158, %s, %s" % (t0, vL2))
        if o["pretouch"] in ("r", "k"):
            A("global_load_dword v159, v158, %s sc1" % sWS); issued[0] += 1
    if o["pretouch"] == "r" or isinstance(o["pretouch"], int): pretouch2()
    A("v_mov_b32 %s, 0xffff" % u0)
    A("v_lshlrev_b32 %s, %s, %s" % (u0, u1, u0))
    A("v_and_b32 %s, 2, v0" % u1)
    A("v_cmp_eq_u32 vcc, 0, %s" % u1)
    A("v_lshrrev_b32 %s, 1, %s" % (u1, vN))
    A("v_lshlrev_b32 %s, 2, %s" % (vHA, vG))
    SEL = 160
    A("v_mov_b32 v%d, 0x0c0c0c0c" % (SEL + 2))
    A("v_mov_b32 v%d, 0x01000100" % (SEL + 3))
    A("v_bfi_b32 v%d, %s, v%d, v%d" % (SEL + 3, u0, SEL + 3, SEL + 2))
    A("v_cndmask_b32 v%d, v%d, v%d, vcc" % (SEL, SEL + 2, SEL + 3))
    A("v_cndmask_b32 v%d, v%d, v%d, vcc" % (SEL + 1, SEL + 3, SEL + 2))
    A("v_and_b32 v%d, 0x02020202, %s" % (SEL + 3, u0))
    A("v_cndmask_b32 v%d, 0, v%d, vcc" % (SEL + 2, SEL + 3))
    A("v_cndmask_b32 v%d, v%d, 0, vcc" % (SEL + 3, SEL + 3))
    A("v_add_u32 v%d, v%d, v%d" % (SEL + 2, SEL + 2, SEL))
    A("v_add_u32 v%d, v%d, v%d" % (SEL + 3, SEL + 3, SEL + 1))
    for r in range(4):
        A("v_cmp_eq_u32 s[%d:%d], %d, %s" % (44 + 2 * r, 45 + 2 * r, r, u1))
    A("v_lshrrev_b32 %s, 2, %s" % (vMLW, vN))
    A("v_lshlrev_b32 %s, 4, %s" % (u1, vG))
    A("v_lshl_add_u32 %s, %s, 8, %s" % (vQA, vMLW, u1))
    for r in range(4):
        A("v_cndmask_b32 v%d, 0, %s, s[%d:%d]" % (MK + r, u0, 44 + 2 * r, 45 + 2 * r))
    A("s_lshl_b32 %s, %s, 11" % (t0, sW))
    A("v_lshl_add_u32 %s, %s, 9, %s" % (vOW, vG, vN16))
    A("v_add_u32 %s, %s, %s" % (vOW, t0, vOW))
    A("s_lshl_b32 %s, %s, 3" % (t0, sW))
    A("v_lshl_add_u32 %s, %s, 5, %s" % (vMLW, vMLW, t0))
    A("v_bfe_u32 %s, v0, 1, 1" % u0)
    A("v_lshrrev_b32 %s, 2, v0" % u1)
    A("v_lshlrev_b32 %s, 4, %s" % (u1, u1))
    A("v_lshl_add_u32 %s, %s, 8, %s" % (u1, u0, u1))
    A("v_lshl_add_u32 %s, %s, 3, %s" % (u1, vP, u1))
    A("s_lshl_b32 %s, %s, 9" % (t0, sW))
    A("v_add_u32 %s, %s, %s" % (vOR, t0, u1))
    KA = 140
    A("v_and_b32 %s, 3, v0" % u0)
    A("v_lshrrev_b32 %s, 2, %s" % (u1, vN))
    A("v_lshlrev_b32 %s, 8, %s" % (u1, u1))
    A("v_lshl_add_u32 %s, %s, 10, %s" % (u0, u0, u1))
    A("v_xor_b32 %s, %s, %s" % (u1, vG, vN))
    A("v_lshl_add_u32 %s, %s, 4, %s" % (u0, u1, u0))
    A("s_lshl_b32 %s, %s, 13" % (t1, sW))
    A("v_add_u32 v%d, %s, %s" % (KA, t1, u0))
    for s_ in range(1, 4):
        A("v_xor_b32 v%d, %d, v%d" % (KA + s_, s_ << 6, KA))
    for _ in range(o.get("delayA", 0)): A("s_nop 3")
    def issue_rest(WK_, W_):
        o_wk = o["WK"]; o["WK"] = WK_
        for i in range(nk_first, 8): kload(i)
        o["WK"] = o_wk
        if o["pretouch"] == "k": pretouch2()
        if o.get("xearly"):
            A("global_load_dword %s, %s, %s" % (vXP, vXF, sX)); issued[0] += 1
        for i in range(8):
            r = VR + i * 4
            load(W_, "global_load_dwordx4 v[%d:%d], %s, %s %s" % (r, r + 3, vV0, sV, nt))
            if i < 7:
                if rot(i) ^ rot(i + 1): A("v_xor_b32 %s, %d, %s" % (vV0, (rot(i) ^ rot(i + 1)) << 10, vV0))
                A("v_add_u32 %s, s42, %s" % (vV0, vV0))
    if o.get("bal"):
        C("a group that started well after others asks memory with a wider window")
        A("s_waitcnt vmcnt(%d)" % issued[0])
        A("v_sub_u32 v158, s90, v159")
        A("v_cmp_ne_u32 vcc, 0, v159")
        A("v_cmp_lt_i32 s[44:45], %d, v158" % o.get("theta", 40))
        A("s_and_b32 s62, vcc_lo, s44")
        A("s_and_b32 s62, s62, 0xff")
        A("s_bcnt1_i32_b32 s62, s62")
        A("s_cmp_ge_u32 s62, %d" % o.get("lateth", 2))
        A("s_cbranch_scc1 L_wide")
        keep = issued[0]
        issue_rest(o["WK"], o["W"])
        A("s_branch L_issued")
        LB("L_wide")
        issued[0] = keep
        issue_rest(o["WK"] + o["bal"], o["W"] + o["bal"])
        LB("L_issued")
    elif o.get("c3"):
        A("s_lshr_b32 %s, %s, 2" % (t0, sJ))
        A("s_cmp_eq_u32 %s, 3" % t0)
        A("s_cbranch_scc1 L_wide")
        keep = issued[0]
        issue_rest(o["WK"], o["W"])
        A("s_branch L_issued")
        LB("L_wide")
        issued[0] = keep
        issue_rest(o["WK"] + o["c3"], o["W"] + o.get("c3v", o["c3"]))
        LB("L_issued")
    else:
        issue_rest(o["WK"], o["W"])
    tail = []
    tail.append("global_load_dword %s, %s, %s" % (vXP, vXF, sX))
    for a in range(2):
        r = DNR + a * 4
        tail.append("global_load_dwordx4 v[%d:%d], %s, %s %s" % (r, r + 3, (vDN0, vDN1)[a], sDN, nt))
    for m in range(4):
        r = WOR + m * 4
        tail.append("global_load_dwordx4 v[%d:%d], %s, %s offset:%d %s" % (r, r + 3, (vWO0, vWO1)[m >> 1], sWO, (0, -4096)[(m & 1) == 0], nt))
    dnl = []
    if o.get("dnlate"):
        dnl = tail[1:1 + 2]
        if o["dnlate"] == 2: dnl = dnl[1:]
        for t_ in dnl: tail.remove(t_)
        tail.append(tail.pop(0))
    if isinstance(o["pretouch"], int):
        tail.insert(o["pretouch"], "global_load_dword v159, v158, %s sc1" % sWS)
    if o.get("xearly"):
        xl = [t_ for t_ in tail if vXP + "," in t_][0]; tail.remove(xl)
    nav = [0]
    def tail_issue(n):
        for _ in range(n):
            if tail:
                A(tail.pop(0)); nav[0] += 1
    A("s_waitcnt vmcnt(8)")
    for t in range(2):
        for s in range(4):
            r = KR + (t * 4 + s) * 4
            A("ds_read_b128 v[%d:%d], v%d offset:%d" % (r, r + 3, KA + s, L_K + t * 4096))
    tail_issue(o["ntail0"])
    stamp(2)
    A("s_waitcnt lgkmcnt(0)")
    A("s_barrier")
    stamp(3)
    for s in range(4):
        A("ds_read_b128 v[%d:%d], %s offset:%d" % (QR + 4 * s, QR + 4 * s + 3, vQA, L_Q + s * 64))
    if "a" in o["tsp"]: tail_issue(1)
    A("s_mov_b32 s46, 0x%x" % SCALE)
    A("s_mov_b32 %s, 0xffff0000" % t1)
    A("s_mov_b32 s48, 0x%x" % LOG2E)
    for s in range(4):
        A("s_waitcnt lgkmcnt(%d)" % (3 - s))
        for t in range(2):
            mfma(SR + 4 * t, KR + (t * 4 + s) * 4, QR + 4 * s, None if s == 0 else SR + 4 * t)
    T = KR
    vH0, vH1, vFL, vTG = "v%d" % (T + 28), "v%d" % (T + 29), "v%d" % (T + 26), "v%d" % (T + 27)
    A("v_mov_b32 %s, %d" % (vFL, L_FLAG))
    A("s_lshl_b32 %s, %s, 5" % (t3, sW))
    A("v_mov_b32 v%d, %s" % (T + 31, t3))
    A("ds_read_b64 v[%d:%d], %s" % (T + 26, T + 27, vFL))
    if "b" in o["tsp"]:
        tail_issue(1); A("s_nop 1")
    else: A("s_nop 2")
    C("scores: bf16(qk) -> * scale -> bf16   (the reference's two roundings)")
    for i in range(8):
        A("v_cvt_pk_bf16_f32 v%d, 0, v%d" % (SR + i, SR + i))
    for i in range(4):
        A("v_pk_mul_f32 %s, %s, s[46:47] op_sel_hi:[1,0]" % (P2(SR + 2 * i), P2(SR + 2 * i)))
    for i in range(8):
        A("v_cvt_pk_bf16_f32 v%d, 0, v%d" % (SR + i, SR + i))
    vm, vt, vl = "v%d" % (T + 4), "v%d" % (T + 6), "v%d" % (T + 5)
    A("v_max3_f32 %s, v%d, v%d, v%d" % (vm, SR, SR + 1, SR + 2))
    A("v_max3_f32 %s, v%d, v%d, v%d" % (vt, SR + 3, SR + 4, SR + 5))
    A("v_max3_f32 %s, %s, v%d, v%d" % (vm, vm, SR + 6, SR + 7))
    A("v_max_f32 %s, %s, %s" % (vm, vm, vt))
    allred(vm, vt, "v_max_f32", 16)
    if "c" in o["tsp"]: tail_issue(1)
    allred(vm, vt, "v_max_f32", 32)
    A("v_mul_f32 %s, s48, %s" % (vm, vm))
    for i in range(4):
        A("v_pk_fma_f32 %s, %s, s[48:49], %s op_sel_hi:[1,0,0] neg_lo:[0,0,1] neg_hi:[0,0,1]" % (P2(SR + 2 * i), P2(SR + 2 * i), P2(T + 4)))
    for i in range(8):
        A("v_exp_f32 v%d, v%d" % (SR + i, SR + i))
    if "d" in o["tsp"]: tail_issue(1)
    for i in range(4):
        A("v_cvt_pk_bf16_f32 v%d, v%d, v%d" % (T + 8 + i, SR + 2 * i, SR + 2 * i + 1))
    for i in range(8):
        for r in range(2):
            A("v_perm_b32 v%d, v%d, v%d, v%d" % (PA + 2 * i + r, T + 8 + (i >> 1), T + 8 + (i >> 1), SEL + 2 * (i & 1) + r))
    stamp(4)
    O0, O1, Y = QR, QR + 4, QR + 8
    def pv(i):
        A("s_waitcnt vmcnt(%d)" % (7 - i + nav[0]))
        if i >= o["tlag"]: tail_issue((2 if i < o.get("tdbl", 0) else 1) if i < o.get("tlast", 7) else 9)
        vr = VR + 4 * i
        mfma16(O0, PA + 2 * i, vr, None if i == 0 else O0)
        mfma16(O1, PA + 2 * i, vr + 2, None if i == 0 else O1)
    A("v_pk_add_f32 %s, %s, %s" % (P2(SR), P2(SR), P2(SR + 2)))
    A("v_pk_add_f32 %s, %s, %s" % (P2(SR + 4), P2(SR + 4), P2(SR + 6)))
    A("v_pk_add_f32 %s, %s, %s" % (P2(SR), P2(SR), P2(SR + 4)))
    A("v_add_f32 %s, v%d, v%d" % (vl, SR, SR + 1))
    allred(vl, vt, "v_add_f32", 16)
    allred(vl, vt, "v_add_f32", 32)
    A("ds_write_b64 %s, v[%d:%d] offset:%d" % (vMLW, T + 4, T + 5, L_ML))
    A("s_waitcnt lgkmcnt(0)")
    A("v_readfirstlane_b32 %s, %s" % (sFAST, vFL))
    A("v_readfirstlane_b32 %s, %s" % (sTAG, vTG))
    HA = T + 16
    ML = T
    OB = T + 8
    G2 = SR
    vM, vLs = "v124", "v125"
    for i in range(o["b2"]): pv(i)
    if o.get("dbgb2"): A("s_memrealtime s[70:71]")
    A("s_barrier")
    if o.get("dbgb2"): A("s_memrealtime s[72:73]")
    A("ds_read_b128 v[%d:%d], v%d offset:%d" % (ML, ML + 3, T + 31, L_ML))
    A("ds_read_b128 v[%d:%d], v%d offset:%d" % (ML + 4, ML + 7, T + 31, L_ML + 16))
    if not o["hlate"]:
        A("ds_read_b32 %s, %s offset:%d" % (vH0, vHA, L_H))
        A("ds_read_b32 %s, %s offset:%d" % (vH1, vHA, L_H + 16))
    if o["vote"]:
        A("v_mov_b32 v%d, 0" % (T + 30))
        A("ds_read_b32 v%d, v%d offset:%d" % (T + 30, T + 30, L_FLAG + 8))
    A("s_mov_b32 s54, 0x55555555")
    A("s_mov_b32 s55, 0x55555555")
    A("v_mov_b32 v%d, %s" % (G2 + 3, sTAG))
    A("s_waitcnt lgkmcnt(%d)" % ((0 if o["hlate"] else 2) + (1 if o["vote"] else 0)))
    A("v_max3_f32 %s, v%d, v%d, v%d" % (vM, ML, ML + 2, ML + 4))
    A("v_max_f32 %s, %s, v%d" % (vM, vM, ML + 6))
    for w_ in range(4):
        A("v_sub_f32 v%d, v%d, %s" % (ML + 2 * w_, ML + 2 * w_, vM))
    for w_ in range(4):
        A("v_exp_f32 v%d, v%d" % (ML + 2 * w_, ML + 2 * w_))
    A("s_waitcnt lgkmcnt(0)")
    A("v_mul_f32 %s, v%d, v%d" % (vLs, ML, ML + 1))
    for w_ in range(1, 4):
        A("v_fmac_f32 %s, v%d, v%d" % (vLs, ML + 2 * w_, ML + 2 * w_ + 1))
    def h_operands():
        for a in range(2):
            for r in range(4):
                A("v_and_b32 v%d, %s, v%d" % (HA + 4 * a + r, (vH0, vH1)[a], MK + r))
    A("v_log_f32 v%d, %s" % (G2 + 2, vLs))
    A("v_rcp_f32 %s, %s" % (vLs, vLs))
    if not o["hlate"]: h_operands()
    else: A("s_nop 0")
    if o["vote"]: A("v_add_u32 %s, v%d, %s" % (vL3, T + 30, vL3))
    A("v_add_f32 v%d, v%d, %s" % (G2 + 2, G2 + 2, vM))
    for w_ in range(4):
        A("v_mul_f32 v%d, v%d, %s" % (ML + 2 * w_, ML + 2 * w_, vLs))
    for i in range(o["b2"], 8): pv(i)
    stamp(5)
    if o.get("nosync"):
        A("s_waitcnt vmcnt(0)")
        stamp(6)
        A("s_branch L_done")
    A("s_nop 6")
    A("ds_write_b128 %s, v[%d:%d] offset:%d" % (vOW, O0, O0 + 3, L_O))
    A("ds_write_b128 %s, v[%d:%d] offset:%d" % (vOW, O1, O1 + 3, L_O + 256))
    A("s_waitcnt lgkmcnt(0)")
    A("s_barrier")
    for w_ in range(4):
        A("ds_read_b64 v[%d:%d], %s offset:%d" % (OB + 2 * w_, OB + 2 * w_ + 1, vOR, L_O + w_ * 2048))
    A("s_cmp_eq_u32 %s, 0" % sFAST)
    for w_ in range(4):
        A("s_waitcnt lgkmcnt(%d)" % (3 - w_))
        op = "v_mul_f32" if w_ == 0 else "v_fmac_f32"
        A("%s v%d, v%d, v%d" % (op, G2, ML + 2 * w_, OB + 2 * w_))
        A("%s v%d, v%d, v%d" % (op, G2 + 1, ML + 2 * w_, OB + 2 * w_ + 1))
    tails = []
    def publish(addr, g, name):
        A("s_cbranch_scc1 L_slow_%s" % name)
        A("global_store_dwordx4 %s, v[%d:%d], %s %s" % (addr, g, g + 3, sWS, o.get("stfl", "")))
        LB("L_back_%s" % name)
        tails.append((name, addr, g))
    A("v_cvt_pk_bf16_f32 v%d, v%d, v%d" % (G2, G2, G2 + 1))
    A("s_nop 1")
    A("v_mov_b32_dpp v%d, v%d quad_perm:[1,1,3,3] %s" % (G2 + 1, G2, DPP))
    A("s_mov_b64 exec, s[54:55]")
    publish(vS2, G2, "h2")
    A("s_mov_b64 exec, -1")
    stamp(6)
    P = T
    for i in range(2):
        A("global_load_dwordx4 v[%d:%d], %s, %s offset:%d sc1" % (P + 4 * i, P + 4 * i + 3, vL2, sWS, i * 1024))
    for t_ in dnl: A(t_)
    if o["hlate"]:
        A("s_barrier")
        A("ds_read_b32 %s, %s offset:%d" % (vH0, vHA, L_H))
        A("ds_read_b32 %s, %s offset:%d" % (vH1, vHA, L_H + 16))
    A("s_mov_b32 %s, %d" % (sCNT, o["spinmax"]))
    vTAG = "v127"
    A("v_mov_b32 %s, %s" % (vTAG, sTAG))
    for k in range(4):
        A("s_mov_b32 s%d, 0x%x" % (56 + k, 0x07060500 | k))
        A("s_bfe_u32 s%d, %s, 0x%x" % (60 + k if k < 2 else 50 + k, sTAG, 0x80000 | (8 * k)))
    TB = ["s60", "s61", "s52", "s53"]
    if o["hlate"]:
        A("s_waitcnt lgkmcnt(0)")
        h_operands()
    ndn_early = 2 - len(dnl)
    A("s_waitcnt vmcnt(%d)" % (3 + len(dnl)))
    for a in range(ndn_early):
        mfma(Y, HA + 4 * a, DNR + 4 * a, None if a == 0 else Y)
    if dnl:
        A("s_waitcnt vmcnt(%d)" % len(dnl))
        A("s_branch L_chk2b")
    else:
        A("s_branch L_chk2")
    LB("L_poll2")
    MS = ["s[44:45]", "s[46:47]"]
    for i in range(2):
        if o["mask2"]: A("s_mov_b64 exec, %s" % MS[i])
        A("global_load_dwordx4 v[%d:%d], %s, %s offset:%d sc1" % (P + 4 * i, P + 4 * i + 3, vL2, sWS, i * 1024))
    if o["mask2"]: A("s_mov_b64 exec, -1")
    A("s_sub_u32 %s, %s, 1" % (sCNT, sCNT))
    A("s_cbranch_scc1 L_end")
    LB("L_chk2")
    A("s_waitcnt vmcnt(0)")
    LB("L_chk2b")
    A("v_max_f32 %s, v%d, v%d" % (vM, P + 2, P + 6))
    for i in range(2):
        A("v_cmp_ne_u32 %s, %s, v%d" % (MS[i], sTAG, P + 4 * i + 3))
    A("v_max_f32_dpp %s, %s, %s row_ror:4 %s" % (vM, vM, vM, DPP))
    A("s_or_b64 vcc, %s, %s" % (MS[0], MS[1]))
    A("s_cbranch_scc1 L_poll2")
    stamp(7)
    U = T + 8
    def unp(i, k):
        if k & 1: A("v_and_b32 v%d, %s, v%d" % (U + 4 * i + k, t1, P + 4 * i + (k >> 1)))
        else: A("v_lshlrev_b32 v%d, 16, v%d" % (U + 4 * i + k, P + 4 * i + (k >> 1)))
    vt2 = "v126"
    A("v_max_f32_dpp %s, %s, %s row_ror:8 %s" % (vM, vM, vM, DPP))
    A("v_mov_b32 %s, %s" % (vt2, vM))
    unp(0, 0); unp(0, 1)
    A("v_permlane16_swap_b32 %s, %s" % (vt2, vM))
    A("v_max_f32 %s, %s, %s" % (vM, vM, vt2))
    A("v_mov_b32 %s, %s" % (vt2, vM))
    unp(0, 2); unp(0, 3)
    A("v_permlane32_swap_b32 %s, %s" % (vt2, vM))
    A("v_max_f32 %s, %s, %s" % (vM, vM, vt2))
    w0, w1 = "v120", "v122"
    A("v_sub_f32 %s, v%d, %s" % (w0, P + 2, vM))
    A("v_sub_f32 %s, v%d, %s" % (w1, P + 6, vM))
    A("v_exp_f32 %s, %s" % (w0, w0))
    A("v_exp_f32 %s, %s" % (w1, w1))
    unp(1, 0)
    den, tA, tB = "v126", "v124", "v123"
    A("v_add_f32 %s, %s, %s" % (den, w0, w1))
    unp(1, 1); unp(1, 2)
    A("v_add_f32_dpp %s, %s, %s row_ror:4 %s" % (den, den, den, DPP))
    unp(1, 3)
    A("v_pk_mul_f32 %s, %s, v[120:121] op_sel_hi:[1,0]" % (P2(U), P2(U)))
    A("v_add_f32_dpp %s, %s, %s row_ror:8 %s" % (den, den, den, DPP))
    A("v_pk_mul_f32 %s, %s, v[120:121] op_sel_hi:[1,0]" % (P2(U + 2), P2(U + 2)))
    A("v_pk_fma_f32 %s, %s, v[122:123], %s op_sel_hi:[1,0,1]" % (P2(U), P2(U + 4), P2(U)))
    A("v_pk_fma_f32 %s, %s, v[122:123], %s op_sel_hi:[1,0,1]" % (P2(U + 2), P2(U + 6), P2(U + 2)))
    A("v_mov_b32 %s, %s" % (tA, den))
    A("s_cmp_eq_u32 %s, 0" % sFAST)
    A("v_permlane32_swap_b32 v%d, v%d" % (U, U + 2))
    A("v_permlane32_swap_b32 v%d, v%d" % (U + 1, U + 3))
    A("v_permlane32_swap_b32 %s, %s" % (tA, den))
    A("v_pk_add_f32 %s, %s, %s" % (P2(U), P2(U), P2(U + 2)))
    A("v_add_f32 %s, %s, %s" % (den, den, tA))
    A("s_mov_b32 %s, %d" % (sCNT, o["spinmax"]))
    A("v_permlane16_swap_b32 v%d, v%d" % (U, U + 1))
    A("v_mov_b32 %s, %s" % (tA, den))
    A("v_add_f32 v%d, v%d, v%d" % (U, U, U + 1))
    A("s_nop 0")
    A("v_permlane16_swap_b32 %s, %s" % (tA, den))
    A("v_add_f32_dpp v%d, v%d, v%d row_ror:4 %s" % (U, U, U, DPP))
    A("v_add_f32 %s, %s, %s" % (den, den, tA))
    A("v_rcp_f32 %s, %s" % (den, den))
    A("v_add_f32_dpp v%d, v%d, v%d row_ror:8 %s" % (U, U, U, DPP))
    a0 = "v125"
    A("v_mul_f32 %s, v%d, %s" % (a0, U, den))
    A("v_cvt_pk_bf16_f32 %s, %s, %s" % (a0, a0, a0))
    A("s_nop 1")
    WA = T
    for m in range(4):
        for r in range(4):
            A("v_and_b32_dpp v%d, %s, v%d row_newbcast:%d %s" % (WA + 4 * m + r, a0, MK + r, m, DPP))
        if m > 0:
            mfma(Y, WA + 4 * (m - 1), WOR + 4 * (m - 1), Y if (m > 1 or ndn_early) else None)
    if dnl:
        A("s_waitcnt vmcnt(0)")
        for a in range(ndn_early, 2):
            mfma(Y, HA + 4 * a, DNR + 4 * a, Y)
    else:
        A("s_nop 1")
    mfma(Y, WA + 12, WOR + 12, Y)
    A("s_mov_b32 exec_hi, 0")
    A("s_nop 6")
    for k in range(4):
        A("v_perm_b32 v%d, v%d, %s, s%d" % (Y + k, Y + k, vTAG, 56 + k))
    publish(vS25, Y, "h25")
    stamp(8)
    NP = o["np25"]
    PS = T + 16
    if o.get("ack25"): A("s_waitcnt vmcnt(0)")
    for _ in range(o.get("dly25", 0)): A("s_nop 7")
    for k in range(NP):
        A("global_load_dwordx4 v[%d:%d], %s, %s sc1" % (PS + 4 * k, PS + 4 * k + 3, vL25, sWS))
    LB("L_poll25")
    for k in range(NP):
        A("s_waitcnt vmcnt(%d)" % (NP - 1))
        for q in range(4):
            A("v_xor_b32 v%d, %s, v%d" % (P + q, TB[q], PS + 4 * k + q))
        A("v_or3_b32 %s, v%d, v%d, v%d" % (tA, P, P + 1, P + 2))
        A("v_or_b32_sdwa %s, %s, v%d dst_sel:DWORD dst_unused:UNUSED_PAD src0_sel:BYTE_0 src1_sel:BYTE_0" % (tA, tA, P + 3))
        A("v_cmp_ne_u32 vcc, 0, %s" % tA)
        if o["mask25"]:
            A("s_and_b64 exec, exec, vcc")
            A("s_cbranch_scc0 L_got25")
        else:
            A("s_cbranch_vccz L_got25")
        A("global_load_dwordx4 v[%d:%d], %s, %s sc1" % (PS + 4 * k, PS + 4 * k + 3, vL25, sWS))
    A("s_sub_u32 %s, %s, 1" % (sCNT, sCNT))
    A("s_cbranch_scc0 L_poll25")
    A("s_endpgm")
    LB("L_got25")
    A("s_mov_b64 exec, -1")
    stamp(9)
    x_, y_ = "v%d" % P, "v%d" % (P + 1)
    A("v_permlane16_swap_b32 v%d, v%d" % (P, P + 2))
    A("v_permlane16_swap_b32 v%d, v%d" % (P + 1, P + 3))
    A("v_add_f32 %s, %s, v%d" % (x_, x_, P + 2))
    A("v_add_f32 %s, %s, v%d" % (y_, y_, P + 3))
    fl = ["v_mov_b32 v%d, %s" % (P + 3, sTAG), "s_and_b32 %s, %s, 7" % (t0, sJ), "s_cmp_eq_u32 %s, %s" % (t0, sH), "s_nop 0"]
    for rot_ in (1, 2, 4, 8):
        A(fl.pop(0))
        A("v_add_f32_dpp %s, %s, %s row_ror:%d %s" % (x_, x_, x_, rot_, DPP))
        A("v_add_f32_dpp %s, %s, %s row_ror:%d %s" % (y_, y_, y_, rot_, DPP))
    A("s_cbranch_scc1 L_final")
    A("s_mov_b64 exec, 0x%x" % (0x30003 if o["rep3"] or o["vote"] else 0x10001))
    A("global_store_dwordx4 %s, v[%d:%d], %s sc1" % (vS3, P, P + 3, sWS))
    if o.get("wb"):
        A("s_or_b32 %s, %s, %s" % (t0, sW, sJ) if o["wb"] == 1 else "s_and_b32 %s, %s, 3" % (t0, sW))
        A("s_cmp_lg_u32 %s, %d" % (t0, 8 if o["wb"] == 1 else 0))
        A("s_cbranch_scc1 L_done")
        A("buffer_wbl2 sc1")
    A("s_branch L_done")
    LB("L_final")
    A("s_lshl_b32 %s, 0x10001, %s" % (t0, sH))
    A("s_andn2_b32 exec_lo, 0xff00ff, %s" % t0)
    A("s_mov_b32 exec_hi, 0")
    A("s_mov_b32 %s, %d" % (sCNT, o["spinmax"]))
    NP = o["np3"]
    PS = VR
    for k in range(NP):
        A("global_load_dwordx4 v[%d:%d], %s, %s sc1" % (PS + 4 * k, PS + 4 * k + 3, vL3, sWS))
    LB("L_poll3")
    for k in range(NP):
        A("s_waitcnt vmcnt(%d)" % (NP - 1))
        A("v_cmp_ne_u32 vcc, %s, v%d" % (sTAG, PS + 4 * k + 3))
        A("v_mov_b32 v%d, v%d" % (P, PS + 4 * k))
        A("v_mov_b32 v%d, v%d" % (P + 1, PS + 4 * k + 1))
        A("s_and_b64 exec, exec, vcc")
        A("s_cbranch_scc0 L_got3")
        A("global_load_dwordx4 v[%d:%d], %s, %s sc1" % (PS + 4 * k, PS + 4 * k + 3, vL3, sWS))
    A("s_sub_u32 %s, %s, 1" % (sCNT, sCNT))
    A("s_cbranch_scc0 L_poll3")
    A("s_endpgm")
    LB("L_got3")
    stamp(10)
    A("s_mov_b32 exec_lo, -1")
    A("v_lshlrev_b32 %s, 16, %s" % (tA, vXP))
    A("v_and_b32 %s, %s, %s" % (tB, t1, vXP))
    for pat in ("quad_perm:[1,0,3,2]", "quad_perm:[2,3,0,1]", "row_half_mirror"):
        A("v_add_f32_dpp %s, %s, %s %s %s" % (x_, x_, x_, pat, DPP))
        A("v_add_f32_dpp %s, %s, %s %s %s" % (y_, y_, y_, pat, DPP))
        if pat != "row_half_mirror": A("s_nop 0")
    A("v_add_f32 %s, %s, %s" % (x_, x_, tA))
    A("v_add_f32 %s, %s, %s" % (y_, y_, tB))
    A("v_cvt_pk_bf16_f32 %s, %s, %s" % (x_, x_, y_))
    A("s_mov_b64 exec, 0x10001")
    A("global_store_dword %s, %s, %s" % (vXF, x_, sOUT))
    A("s_or_b32 %s, s2, %s" % (t0, sW))
    A("s_cbranch_scc1 L_done")
    C("the next launch must not mistake this launch's hand-off words for its own")
    A("v_mov_b32 %s, 0" % tA)
    A("v_mov_b32 %s, %s" % (tB, sTAG))
    A("global_store_dword %s, %s, %s sc1" % (tA, tB, sWS))
    LB("L_done")
    if o.get("amp"):
        if o["amp"] == "end": A("s_memrealtime s[88:89]")
        A("s_waitcnt lgkmcnt(0)")
        A("s_sub_u32 s88, s88, %s" % ("s86" if o.get("amp0") else "s90"))
        A("s_mul_i32 s88, s88, %d" % o.get("ampk", 10))
        A("s_min_u32 s88, s88, 20000")
        A("s_add_u32 s88, s88, 1500")
        LB("L_ampspin")
        A("s_memrealtime s[92:93]")
        A("s_waitcnt lgkmcnt(0)")
        A("s_sub_u32 s92, s92, s90")
        A("s_cmp_lt_u32 s92, s88")
        A("s_cbranch_scc1 L_ampspin")
    if o.get("pad"):
        LB("L_padspin")
        A("s_memrealtime s[92:93]")
        A("s_waitcnt lgkmcnt(0)")
        A("s_sub_u32 s92, s92, s90")
        A("s_cmp_lt_u32 s92, %d" % o["pad"])
        A("s_cbranch_scc1 L_padspin")
    dump_stamps()
    A("s_endpgm")
    for name, addr, g in tails:
        LB("L_slow_%s" % name)
        A("global_store_dwordx4 %s, v[%d:%d], %s sc1" % (addr, g, g + 3, sWS))
        A("s_branch L_back_%s" % name)
    LB("L_end")
    A("s_endpgm")
    head = HEADER.format(lds=o.get("lds", LDS_BYTES), k=KNAME); foot = FOOTER.format(k=KNAME, vg=o.get("vg", 168), sg=96)
    if o["align"]: L = align_runs(L, head, foot, o.get("minrun", 3), o.get("nopmin", 6))
    return head + "\n".join(L) + foot


if __name__ == "__main__":
    kw = {}
    out = "parallel_sum__sliding_block_cached__swiglu_ffn__decode.s"
    for a in sys.argv[1:]:
        k, v = a.split("=", 1)
        if k == "out": out = v; continue
        try: v = int(v)
        except ValueError: pass
        kw[k] = v
    open(out, "w").write(gen(**kw))
```

```python
import sys

KNAME = "parallel_sum__sliding_block_cached__swiglu_ffn__decode_kernel"

HEADER = """; Kernarg layout for this problem (96 bytes, ptrs only, base s[0:1]):
;   offset  72: d_out     shape=(1, 1, 512) dtype=bfloat16
; @launch grid=(256,1,1) block=(320,1,1) lds={lds}
.amdgcn_target "amdgcn-amd-amdhsa--gfx950"
.text
.globl {k}
.p2align 8
.type {k},@function
{k}:
"""
FOOTER = """
.section .rodata,"a"
.p2align 6
.amdhsa_kernel {k}
  .amdhsa_next_free_vgpr {vg}
  .amdhsa_next_free_sgpr {sg}
  .amdhsa_accum_offset {vg}
  .amdhsa_group_segment_fixed_size 0
  .amdhsa_kernarg_size 96
  .amdhsa_user_sgpr_count 2
  .amdhsa_user_sgpr_kernarg_segment_ptr 1
  .amdhsa_system_sgpr_workgroup_id_x 1
.end_amdhsa_kernel
"""

MB1A = 0x40000
MB1B = 0x80000
MB2 = 0x100000
MB25 = 0x180000
MB3 = 0x200000
STAMPS = 0x10000000
L_WQ = 0
L_FF = 16384
L_XN = 32768
L_Q = 33792
L_H = 34816
L_FLAG = 34848
L_VOTE = 34864
L_ML = 34880
L_O = 35072
L_K = L_O + 8192
L_K = (L_K + 1023) // 1024 * 1024
LDS_BYTES = L_K + 32768
TAGC = 0x9E3779B9
LOG2E = 0x3FB8AA3B
SCALE = 0x3DB504F3
EPS = 0x3727C5AC
DPP = "row_mask:0xf bank_mask:0xf"

DEF = dict(stamps=False, spinmax=200000, WK=6, W=5, Wtail=8, b0pos=45, nt="nt", pretouch="k", atries=24,
           prefetch=True, b2=7, ntail0=0, tlag=0, mask2=False, pt1=True, rotm=4, rep3=False, tsp="", auxearly=True, hlate=False, vote=True, np25=1, np3=1, ack25=1, align=1, unr=2, mask25=False, lperm=0)


def _sizes(text):
    import subprocess, tempfile, os, re
    d = tempfile.mkdtemp()
    open(d + "/a.s", "w").write(text)
    subprocess.run(["clang", "-x", "assembler", "-target", "amdgcn-amd-amdhsa", "-mcpu=gfx950", "-c", d + "/a.s", "-o", d + "/a.o"], check=True)
    out = subprocess.run(["llvm-objdump", "-d", "--mcpu=gfx950", d + "/a.o"], capture_output=True, text=True).stdout
    r = []
    for ln in out.split("\n"):
        m = re.search(r"^\s+(\S+).*// ([0-9A-F]{12}): ((?:[0-9A-F]{8} ?)+)", ln)
        if m: r.append((m.group(1), 4 * len(m.group(3).split())))
    return r


def align_runs(L, head, foot, minrun=3, nopmin=6):
    ins = [i for i, l in enumerate(L) if l.startswith("    ") and not l.strip().startswith(";")]
    sz = _sizes(head + "\n".join(L) + foot)
    assert len(sz) == len(ins), (len(sz), len(ins))
    size = {i: s_[1] for i, s_ in zip(ins, sz)}
    mn = {i: s_[0] for i, s_ in zip(ins, sz)}
    out = list(L); extra = {}
    off = 0; k = 0
    while k < len(ins):
        i = ins[k]
        if size[i] == 8 and off % 8 == 4:
            run = 0
            while k + run < len(ins) and size[ins[k + run]] == 8: run += 1
            if run >= minrun:
                b = k - 1; done = False
                while b >= 0 and size[ins[b]] == 4:
                    j = ins[b]
                    if mn[j] == "s_nop" and int(out[j].split()[1]) >= 1:
                        out[j] = "    s_nop 0\n    s_nop %d" % (int(out[j].split()[1]) - 1)
                        size[j] = 8; off += 4; done = True
                        break
                    if mn[j].endswith("_e32") and not mn[j].startswith(("v_readfirstlane", "v_permlane")):
                        op = out[j].split()[0]
                        out[j] = out[j].replace(op, op.replace("_e32", "") + "_e64", 1)
                        size[j] = 8; off += 4; done = True
                        break
                    b -= 1
                if not done and run >= nopmin and k > 0 and not mn[ins[k - 1]].startswith(("s_branch", "s_endpgm")):
                    extra[i] = True; off += 4; done = True
                if not done and k > 0 and mn[ins[k - 1]].startswith(("s_branch", "s_endpgm")):
                    extra[ins[k - 1] + 1] = True; off += 4
            for q in range(run): off += 8
            k += run
            continue
        off += size[i]; k += 1
    res = []
    for i, l in enumerate(out):
        if i in extra: res.append("    s_nop 0")
        res.append(l)
    return res


def gen(**kw):
    o = dict(DEF); o.update(kw)
    L = []
    def A(s): L.append("    " + s)
    def LB(s): L.append(s + ":")
    def C(s): L.append("    ; " + s)
    nt = o["nt"]
    NSTAMP = 12
    role = ["U"]
    def stamp(i):
        if o.get("amp") == "%s%d" % (role[0], i): A("s_memrealtime s[88:89]" if not o.get("cyc") else "s_memtime s[88:89]")
        if o.get("amp0") == "%s%d" % (role[0], i): A("s_memrealtime s[86:87]" if not o.get("cyc") else "s_memtime s[86:87]")
        if o["stamps"] and (i in (0, 11) or o.get("sel") is None or ("%s%d" % (role[0], i)) in o["sel"].split(",")):
            A("s_memrealtime s[%d:%d]" % (64 + 2 * i, 65 + 2 * i))
    def mfma(d, a, b, c):
        A("v_mfma_f32_16x16x32_bf16 v[%d:%d], v[%d:%d], v[%d:%d], %s" % (d, d + 3, a, a + 3, b, b + 3, "0" if c is None else "v[%d:%d]" % (c, c + 3)))
    def mfma16(d, a, b, c):
        A("v_mfma_f32_16x16x16_bf16 v[%d:%d], v[%d:%d], v[%d:%d], %s" % (d, d + 3, a, a + 1, b, b + 1, "0" if c is None else "v[%d:%d]" % (c, c + 3)))
    def allred(v, tmp, op, which):
        A("v_mov_b32 %s, %s" % (tmp, v))
        A("s_nop 1")
        A("v_permlane%d_swap_b32 %s, %s" % (which, tmp, v))
        A("%s %s, %s, %s" % (op, v, v, tmp))
    sX, sK, sV, sWQ, sWO, sG, sU, sDN, sOUT, sWS = "s[4:5]", "s[6:7]", "s[8:9]", "s[10:11]", "s[12:13]", "s[16:17]", "s[18:19]", "s[20:21]", "s[22:23]", "s[26:27]"
    sW, sH, sJ, sTAG, sXCC, sCNT, sFAST = "s30", "s31", "s32", "s33", "s34", "s35", "s36"
    t0, t1, t2, t3 = "s37", "s38", "s39", "s40"
    def dump_stamps():
        if not o["stamps"]: return
        if role[0] == "U" and o.get("sel") is not None and "U" not in o["sel"]: return
        A("s_mov_b64 exec, 1")
        stamp(11)
        A("s_waitcnt lgkmcnt(0)")
        A("s_mul_i32 %s, s2, 5" % t0)
        A("s_add_u32 %s, %s, %s" % (t0, t0, sW))
        A("s_lshl_b32 %s, %s, 7" % (t0, t0))
        A("s_add_u32 %s, %s, 0x%x" % (t0, t0, STAMPS))
        A("v_mov_b32 v2, %s" % t0)
        for i in range(NSTAMP):
            A("v_mov_b32 v3, s%d" % (64 + 2 * i))
            A("global_store_dword v2, v3, %s offset:%d" % (sWS, 4 * i))
        A("v_mov_b32 v3, %s" % ("s63" if role[0] == "U" and o["vote"] else sCNT))
        A("global_store_dword v2, v3, %s offset:%d" % (sWS, 4 * NSTAMP))
        if o.get("dbgfail"):
            for q_, r_ in enumerate(("s84", "s62", "s63")):
                A("v_mov_b32 v3, %s" % r_)
                A("global_store_dword v2, v3, %s offset:%d" % (sWS, 4 * NSTAMP + 8 + 4 * q_))
        A("s_getreg_b32 %s, hwreg(HW_REG_HW_ID)" % t1)
        A("v_mov_b32 v3, %s" % t1)
        A("global_store_dword v2, v3, %s offset:%d" % (sWS, 4 * NSTAMP + 4))

    stamp(0)
    if o.get("pad") or o.get("bal") or o.get("amp") or o.get("lateh") is not None: A("s_memrealtime s[90:91]")
    A("s_cmp_ge_u32 s2, 256")
    A("s_cbranch_scc1 L_end")
    A("s_load_dwordx16 s[4:19], s[0:1], 0")
    A("s_load_dwordx8 s[20:27], s[0:1], 64")
    A("v_lshrrev_b32 v1, 6, v0")
    A("v_and_b32 v0, 63, v0")
    A("v_readfirstlane_b32 %s, v1" % sW)
    A("s_and_b32 %s, s2, 7" % sH)
    A("s_lshr_b32 %s, s2, 3" % sJ)
    if o.get("bal") or o.get("lateh") is not None:
        A("s_or_b32 %s, %s, %s" % (t0, sJ, sW))
        A("s_cbranch_scc1 L_noflag")
        A("s_lshl_b32 %s, %s, 2" % (t0, sH))
        A("v_mov_b32 v108, %s" % t0)
        A("s_waitcnt lgkmcnt(0)")
        A("s_or_b32 %s, s90, 1" % t0)
        A("v_mov_b32 v109, %s" % t0)
        A("global_store_dword v108, v109, s[24:25] sc1")
        LB("L_noflag")
    A("s_cmp_eq_u32 %s, 4" % sW)
    A("s_cbranch_scc0 %s" % ("L_race" if o["vote"] else "L_attn"))

    C("wave 4: layernorm, one [128 x 64] tile of wq and one of gate/up, exchange of q and of the FFN hidden values")
    A("s_setprio 3")
    if o["prefetch"]:
        A("s_getpc_b64 s[28:29]")
        LB("L_pc")
        A("v_lshlrev_b32 v2, 7, v0")
        A("v_min_u32 v2, L_end-L_pc, v2")
        A("global_load_dword v127, v2, s[28:29]")
    sQK, sNOFF = "s50", "s51"
    A("v_lshlrev_b32 v3, 4, v0")
    A("v_lshrrev_b32 v6, 3, v0")
    A("v_and_b32 v5, 2, v6")
    A("v_and_b32 v7, 7, v0")
    A("v_xor_b32 v5, v5, v7")
    A("v_lshlrev_b32 v7, 4, v5")
    A("s_and_b32 %s, %s, 3" % (sQK, sJ))
    A("s_lshl_b32 %s, %s, 10" % (t0, sH))
    if o["lperm"]:
        A("s_andn2_b32 %s, %s, 3" % (t1, sJ))
        A("s_lshr_b32 %s, 0x%x, %s" % (t1, o["lperm"], t1))
        A("s_and_b32 s55, %s, 7" % t1)
    else:
        A("s_lshr_b32 s55, %s, 2" % sJ)
    A("s_lshl_b32 %s, s55, 7" % t1)
    A("s_lshl_b32 %s, %s, 20" % (t2, sQK))
    A("s_add_u32 %s, %s, %s" % (t0, t0, t1))
    A("s_add_u32 %s, %s, %s" % (t0, t0, t2))
    A("v_lshl_add_u32 v4, v6, 13, v7")
    A("v_add_u32 v4, %s, v4" % t0)
    A("v_xor_b32 v5, 64, v4")
    A("v_add_u32 v5, 0x10000, v5")
    A("s_mov_b32 m0, %d" % L_WQ)
    A("s_mov_b32 %s, 0x20000" % t1)
    if o.get("ucontig"):
        A("s_lshl_b32 %s, s2, 10" % t0)
        A("v_add_u32 v4, %s, v3" % t0)
        A("v_add_u32 v5, 0x40000, v4")
        A("s_mov_b32 %s, 0x80000" % t1)
    A("s_movk_i32 s41, 1024")
    A("s_waitcnt lgkmcnt(0)")
    A("global_load_dwordx4 v[8:11], v3, %s" % sX)
    A("s_load_dword %s, %s, 0" % (sTAG, sWS))
    def dma_loop(name, base, step):
        A("s_mov_b32 %s, %d" % (t2, 16 // o["unr"]))
        LB(name)
        for i in range(o["unr"]):
            vv = ("v4", "v5")[i & 1]
            A("global_load_lds_dwordx4 %s, %s %s" % (vv, base, nt))
            A("s_add_u32 m0, m0, s41")
            A("v_add_u32 %s, %s, %s" % (vv, step, vv))
        A("s_sub_u32 %s, %s, 1" % (t2, t2))
        A("s_cmp_lg_u32 %s, 0" % t2)
        A("s_cbranch_scc1 %s" % name)
    dma_loop("L_wq_loop", sWQ, t1)
    if o["b0pos"] == 16: A("s_barrier")
    A("s_mul_i32 %s, %s, 7" % (t0, sH))
    A("s_add_u32 %s, %s, 1" % (t0, t0))
    A("s_lshr_b32 %s, %s, 1" % (t0, t0))
    A("s_lshr_b32 %s, %s, 3" % (t1, sJ))
    A("s_add_u32 %s, %s, %s" % (t0, t0, t1))
    A("s_mul_i32 %s, %s, 3584" % (t1, sQK))
    A("s_add_u32 %s, %s, %s" % (t0, t0, t1))
    A("s_lshl_b32 %s, %s, 7" % (t0, t0))
    A("v_mul_u32_u24 v4, 3584, v6")
    A("v_add3_u32 v4, v4, v7, %s" % t0)
    A("v_xor_b32 v5, 64, v4")
    A("v_add_u32 v5, %d, v5" % (8 * 3584))
    A("s_mov_b32 %s, %d" % (t1, 16 * 3584))
    if o.get("ucontig"):
        A("s_lshr_b32 %s, s2, 1" % t0)
        A("s_min_u32 %s, %s, 111" % (t0, t0))
        A("s_lshl_b32 %s, %s, 10" % (t0, t0))
        A("v_add_u32 v4, %s, v3" % t0)
        A("v_add_u32 v5, %d, v4" % (112 * 1024))
        A("s_mov_b32 %s, %d" % (t1, 224 * 1024))
    A("s_bitcmp0_b32 %s, %d" % (("s2", 0) if o.get("ucontig") else (sJ, 2)))
    A("s_cselect_b64 s[42:43], %s, %s" % (sG, sU))
    A("s_and_b32 %s, %s, 1" % (t3, sH))
    A("s_lshl_b32 %s, %s, 3" % (t0, t3))
    A("s_add_u32 %s, %s, %s" % (sNOFF, t0, sJ))
    A("s_cmp_ge_u32 %s, 32" % sNOFF)
    A("s_cselect_b64 exec, 1, -1")
    dma_loop("L_ff_loop", "s[42:43]", t1)
    A("s_mov_b64 exec, -1")
    if o["vote"]:
        A("s_branch L_unit2")
        LB("L_race")
        C("which of the two copies of the last hand-off lives nearer to this die: race two cold scalar loads of this wave's own lines")
        A("s_lshl_b32 %s, s2, 2" % t0)
        A("s_add_u32 %s, %s, %s" % (t0, t0, sW))
        A("s_lshr_b32 %s, %s, 6" % (t1, t0))
        A("s_lshl_b32 %s, %s, 14" % (t1, t1))
        A("s_and_b32 %s, %s, 63" % (t0, t0))
        A("s_lshl_b32 %s, %s, 7" % (t0, t0))
        A("s_add_u32 %s, %s, %s" % (t0, t0, t1))
        A("s_bitset1_b32 %s, 21" % t0)
        A("s_lshl_b32 %s, %s, 13" % (t1, sW))
        A("s_and_b32 %s, %s, 0x2000" % (t1, t1))
        A("s_or_b32 s46, %s, %s" % (t0, t1))
        A("s_xor_b32 s47, s46, 0x2000")
        A("s_movk_i32 s28, 0x5bd1")
        A("s_movk_i32 s29, 0x5bd1")
        A("s_waitcnt lgkmcnt(0)")
        A("s_load_dword s28, %s, s46" % sWS)
        A("s_load_dword s29, %s, s47" % sWS)
        A("s_waitcnt lgkmcnt(1)")
        A("s_mov_b64 s[48:49], s[28:29]")
        LB("L_race_done")
        A("s_cmpk_lg_i32 s48, 0x5bd1")
        A("s_cselect_b32 %s, 1, 0" % t0)
        A("s_cmpk_lg_i32 s49, 0x5bd1")
        A("s_cselect_b32 %s, 1, 0" % t2)
        A("s_sub_i32 %s, %s, %s" % (t0, t0, t2))
        A("s_sub_i32 %s, 0, %s" % (t2, t0))
        A("s_cmp_eq_u32 %s, 0" % t1)
        A("s_cselect_b32 %s, %s, %s" % (t0, t0, t2))
        A("s_lshl_b32 %s, %s, 2" % (t2, sW))
        A("v_mov_b32 v158, %s" % t2)
        A("v_mov_b32 v159, %s" % t0)
        A("ds_write_b32 v158, v159 offset:%d" % L_VOTE)
        A("s_branch L_attn")
        LB("L_unit2")
    if o["pt1"]:
        C("pull this workgroup's own hand-off lines into L2 before anyone polls them")
        A("s_lshl_b32 %s, %s, 15" % (t0, sH))
        A("s_lshl_b32 %s, %s, 8" % (t1, sJ))
        A("s_add_u32 %s, %s, %s" % (t0, t0, t1))
        A("s_add_u32 %s, %s, 0x%x" % (t0, t0, MB1A))
        A("v_and_b32 v33, 1, v0")
        A("v_bfe_u32 v32, v0, 1, 1")
        A("v_lshlrev_b32 v33, 7, v33")
        A("v_lshl_add_u32 v33, v32, 13, v33")
        A("s_mul_i32 %s, %s, 240" % (t1, sJ))
        A("s_sub_u32 %s, 0x4000, %s" % (t1, t1))
        A("v_cmp_lt_u32 vcc, 3, v0")
        A("v_mov_b32 v32, %s" % t1)
        A("s_nop 0")
        A("v_cndmask_b32 v33, v33, v32, vcc")
        A("v_add_u32 v33, %s, v33" % t0)
        A("global_load_dword v119, v33, %s sc1" % sWS)
    def tlbwarm():
        C("first touch of the pages the later loads use (address translation early, off their queue)")
        A("s_lshl_b32 %s, %s, 24" % (t0, sH))
        A("s_add_u32 %s, %s, 0xF00000" % (t0, t0))
        A("v_mov_b32 v112, %s" % t0)
        A("s_lshl_b32 %s, %s, 19" % (t0, sH))
        A("v_mov_b32 v113, %s" % t0)
        A("s_mul_i32 %s, %s, 0x38000" % (t0, sH))
        A("v_mov_b32 v114, %s" % t0)
        A("v_mov_b32 v115, 0x%x" % MB3)
        A("s_mov_b64 exec, 1")
        A("global_load_dword v116, v112, %s" % sK)
        A("global_load_dword v117, v112, %s" % sV)
        A("global_load_dword v118, v113, %s" % sWO)
        A("global_load_dword v111, v114, %s" % sDN)
        A("global_load_dword v110, v115, %s" % sWS)
        A("s_mov_b64 exec, -1")
    NW = 1 if o["pt1"] else 0
    if o.get("tlbw") == 2:
        tlbwarm(); NW += 5
    if o["b0pos"] == 32:
        if o.get("b0wait") is not None: A("s_waitcnt vmcnt(%d)" % o["b0wait"])
        A("s_barrier")
    stamp(1)
    XF = 12
    A("s_mov_b32 %s, 0xffff0000" % t1)
    A("s_waitcnt vmcnt(%d)" % (32 + NW))
    stamp(2)
    C("layernorm with the reference's bf16 roundings")
    for i in range(4):
        A("v_lshlrev_b32 v%d, 16, v%d" % (XF + 2 * i, 8 + i))
        A("v_and_b32 v%d, %s, v%d" % (XF + 2 * i + 1, t1, 8 + i))
    fill = []
    def F(s): fill.append(s)
    def nop2():
        n = 0
        while fill and n < 2:
            A(fill.pop(0)); n += 1
        if n < 2: A("s_nop %d" % (1 - n))
    TRB = 120
    vAX, vS1, vL1, vL1x, vL1a, vF, vTN, vTB = "v34", "v35", "v36", "v37", "v38", "v39", "v124", "v125"
    sRP, sB1 = "s52", "s53"
    F("v_lshrrev_b32 v126, 4, v0")
    F("v_bfe_u32 v4, v0, 2, 2")
    F("v_lshl_add_u32 v5, v126, 3, v4")
    F("v_and_b32 v6, 3, v0")
    F("v_lshlrev_b32 v7, 3, v6")
    F("v_lshl_add_u32 v5, v5, 7, v7")
    F("v_bfe_u32 v4, v0, 3, 2")
    for ct in range(4):
        F("v_xor_b32 v7, %d, v4" % ct)
        F("v_lshl_add_u32 v%d, v7, 5, v5" % (TRB + ct))
    F("s_lshl_b32 %s, %s, 8" % (t0, sQK))
    F("v_lshl_add_u32 %s, v126, 4, %s" % (vAX, t0))
    F("s_lshl_b32 %s, %s, 15" % (sB1, sH))
    F("s_add_u32 %s, %s, 0x%x" % (sB1, sB1, MB1A))
    def wavesum(v, tmp):
        for rot in (1, 2, 4, 8):
            nop2()
            A("v_add_f32_dpp %s, %s, %s row_ror:%d %s" % (v, v, v, rot, DPP))
        for which in (16, 32):
            A("v_mov_b32 %s, %s" % (tmp, v))
            nop2()
            A("v_permlane%d_swap_b32 %s, %s" % (which, tmp, v))
            A("v_add_f32 %s, %s, %s" % (v, v, tmp))
    def P2(r): return "v[%d:%d]" % (r, r + 1)
    A("v_pk_add_f32 v[22:23], %s, %s" % (P2(XF), P2(XF + 2)))
    A("v_pk_add_f32 v[24:25], %s, %s" % (P2(XF + 4), P2(XF + 6)))
    A("v_pk_add_f32 v[22:23], v[22:23], v[24:25]")
    A("v_add_f32 v22, v22, v23")
    wavesum("v22", "v23")
    A("v_mul_f32 v22, 0x3b000000, v22")
    DV = 24
    for i in range(4):
        A("v_pk_add_f32 %s, %s, v[22:23] op_sel_hi:[1,0] neg_lo:[0,1] neg_hi:[0,1]" % (P2(DV + 2 * i), P2(XF + 2 * i)))
    A("v_cvt_pk_bf16_f32 v22, 0, v22")
    A("v_pk_mul_f32 v[32:33], %s, %s" % (P2(DV), P2(DV)))
    for i in range(1, 4):
        A("v_pk_fma_f32 v[32:33], %s, %s, v[32:33]" % (P2(DV + 2 * i), P2(DV + 2 * i)))
    A("v_add_f32 v32, v32, v33")
    pre = ["v_pk_add_f32 %s, %s, v[22:23] op_sel_hi:[1,0] neg_lo:[0,1] neg_hi:[0,1]" % (P2(XF + 2 * i), P2(XF + 2 * i)) for i in range(4)]
    pre += ["v_cvt_pk_bf16_f32 v%d, 0, v%d" % (XF + i, XF + i) for i in range(8)]
    rest = fill[:]; fill[:] = pre
    wavesum("v32", "v33")
    fill[:] = fill + rest
    A("v_mul_f32 v32, 0x3b000000, v32")
    A("v_cvt_pk_bf16_f32 v32, 0, v32")
    A("v_add_f32 v32, 0x%x, v32" % EPS)
    A("v_cvt_pk_bf16_f32 v32, 0, v32")
    A("v_sqrt_f32 v32, v32")
    A(fill.pop(0))
    A("v_cvt_pk_bf16_f32 v32, 0, v32")
    A("v_rcp_f32 v32, v32")
    A(fill.pop(0))
    for i in range(4):
        A("v_pk_mul_f32 %s, %s, v[32:33] op_sel_hi:[1,0]" % (P2(XF + 2 * i), P2(XF + 2 * i)))
    for i in range(4):
        A("v_cvt_pk_bf16_f32 v%d, v%d, v%d" % (8 + i, XF + 2 * i, XF + 2 * i + 1))
    A("ds_write_b128 v3, v[8:11] offset:%d" % L_XN)
    while fill: A(fill.pop(0))
    A("s_lshl_b32 %s, s55, 2" % t2)
    A("s_add_u32 s55, %s, %s" % (t2, sQK))
    A("s_lshl_b32 %s, s55, 8" % t2)
    A("s_add_u32 %s, %s, %s" % (t2, t2, sB1))
    A("v_lshrrev_b32 v4, 2, v0")
    A("v_lshl_add_u32 %s, v4, 4, %s" % (vS1, t2))
    A("s_waitcnt lgkmcnt(0)")
    AF = 40
    for m in range(4):
        A("ds_read_b128 v[%d:%d], %s offset:%d" % (AF + 4 * m, AF + 4 * m + 3, vAX, L_XN + m * 64))
    A("s_add_u32 %s, %s, 0x%x" % (sTAG, sTAG, TAGC))
    A("v_lshlrev_b32 v4, 2, v6")
    A("v_lshrrev_b32 %s, v4, %s" % (vTN, sTAG))
    A("v_and_b32 %s, 15, %s" % (vTN, vTN))
    A("v_lshlrev_b32 v4, 3, v6")
    A("v_lshrrev_b32 %s, v4, %s" % (vTB, sTAG))
    A("v_and_b32 %s, 0xff, %s" % (vTB, vTB))
    A("s_mov_b32 s44, 0")
    A("s_mov_b32 s45, -1")
    if o["b0pos"] == 40: A("s_barrier")
    stamp(3)
    BF = 56
    D0 = 88
    GR = 24
    def gemv(lbase, vm0):
        def rd(m, ct):
            b = BF + 16 * (m & 1)
            for hh in range(2):
                A("ds_read_b64_tr_b16 v[%d:%d], v%d offset:%d" % (b + 4 * ct + 2 * hh, b + 4 * ct + 2 * hh + 1, TRB + ct, lbase + m * 4096 + hh * 512))
        A("s_waitcnt vmcnt(%d)" % (vm0 + 12))
        for ct in range(4): rd(0, ct)
        for m in range(4):
            b = BF + 16 * (m & 1)
            if m < 3: A("s_waitcnt vmcnt(%d)" % (vm0 + 8 - 4 * m))
            if lbase == L_WQ and o["b0pos"] == 41 + m: A("s_barrier")
            for ct in range(4):
                A("s_waitcnt lgkmcnt(%d)" % (6 if m < 3 else 6 - 2 * ct))
                mfma(D0 + 4 * ct, AF + 4 * m, b + 4 * ct, None if m == 0 else D0 + 4 * ct)
                if m < 3: rd(m + 1, ct)
    def pack(maskc, vt):
        A("s_mov_b32 vcc_lo, 0xffff0000")
        A("s_mov_b32 vcc_hi, 0xffff0000")
        A("s_movk_i32 %s, 0x%x" % (t0, maskc))
        A("s_nop 2")
        A("v_cndmask_b32 v%d, v%d, v%d, vcc" % (GR, D0, D0 + 4))
        A("s_nop 0")
        A("v_cndmask_b32 v%d, v%d, v%d, vcc" % (GR + 1, D0 + 8, D0 + 12))
        A("v_cndmask_b32 v%d, v%d, v%d, s[44:45]" % (GR, GR, GR + 1))
        A("v_and_or_b32 v%d, v%d, %s, %s" % (GR, GR, t0, vt))
        A("v_add_u32 v22, 0x%x, %s" % (MB1B - MB1A, vS1))
        A("s_nop 0")
        for k in range(1, 4):
            A("v_mov_b32_dpp v%d, v%d quad_perm:[%d,%d,%d,%d] %s" % (GR + k, GR, k, k, k, k, DPP))
        A("s_mov_b32 exec_lo, 0x11111111")
        A("s_mov_b32 exec_hi, 0x11111111")
        A("global_store_dwordx4 %s, v[%d:%d], %s" % (vS1, GR, GR + 3, sWS))
        A("global_store_dwordx4 v22, v[%d:%d], %s sc1" % (GR, GR + 3, sWS))
        A("s_mov_b64 exec, -1")
    gemv(L_WQ, 16 + NW)
    if o["b0pos"] == 45: A("s_barrier")
    pack(0xfff0, vTN)
    if o["b0pos"] == 47: A("s_barrier")
    stamp(4)
    XG = 28
    if o["vote"]:
        assert o["b0pos"] <= 47 and not o["hlate"]
        A("v_mov_b32 v4, 0")
        A("ds_read_b128 v[112:115], v4 offset:%d" % L_VOTE)
    A("s_getreg_b32 %s, hwreg(HW_REG_XCC_ID, 0, 4)" % sXCC)
    A("s_and_b32 %s, %s, 0xff" % (t0, sTAG))
    A("s_lshl_b32 %s, %s, 8" % (t2, sXCC))
    A("s_or_b32 s54, %s, %s" % (t0, t2))
    A("v_mov_b32 v%d, s54" % XG)
    for k in range(1, 4):
        A("s_bfe_u32 %s, %s, 0x%x" % (t0, sTAG, 0x80000 | (8 * k)))
        A("v_mov_b32 v%d, %s" % (XG + k, t0))
    if o["vote"]:
        A("s_waitcnt lgkmcnt(0)")
        A("v_add3_u32 v112, v112, v113, v114")
        A("v_add_u32 v112, v112, v115")
        A("v_lshl_add_u32 v%d, v112, 8, v%d" % (XG + 1, XG + 1))
    A("s_lshl_b32 %s, %s, 4" % (t2, sJ))
    A("s_add_u32 %s, %s, %s" % (t2, t2, sB1))
    A("s_add_u32 %s, %s, 0x4000" % (t2, t2))
    A("v_mov_b32 v22, %s" % t2)
    A("v_add_u32 v23, 0x%x, v22" % (MB1B - MB1A))
    A("s_mov_b64 exec, 1")
    A("global_store_dwordx4 v22, v[%d:%d], %s" % (XG, XG + 3, sWS))
    A("global_store_dwordx4 v23, v[%d:%d], %s sc1" % (XG, XG + 3, sWS))
    A("s_mov_b64 exec, -1")
    if o["b0pos"] == 50: A("s_barrier")
    A("s_sub_i32 %s, %s, s55" % (t2, sJ))
    A("s_lshl_b32 %s, %s, 8" % (t2, t2))
    A("s_add_u32 %s, %s, 0x2000" % (t2, t2))
    A("v_add_u32 %s, %s, %s" % (vS1, t2, vS1))
    A("s_cmp_ge_u32 %s, 32" % sNOFF)
    A("s_cbranch_scc1 L_noff2")
    gemv(L_FF, 4 + NW)
    pack(0xff00, vTB)
    LB("L_noff2")
    stamp(7)
    if o.get("nosync"):
        A("s_barrier")
        A("s_mov_b32 %s, 0" % sCNT)
        dump_stamps()
        A("s_endpgm")
    A("v_and_b32 v4, 15, v0")
    A("v_lshlrev_b32 v4, 4, v4")
    A("v_lshl_add_u32 v4, v126, 10, v4")
    A("s_add_u32 %s, %s, 2432" % (t0, sB1))
    A("v_add_u32 %s, %s, v4" % (vL1, t0))
    A("v_and_b32 v4, 31, v0")
    A("s_add_u32 %s, %s, 0x4000" % (t0, sB1))
    A("v_lshl_add_u32 %s, v4, 4, %s" % (vL1x, t0))
    A("s_lshl_b32 %s, %s, 1" % (t2, t3))
    A("s_sub_u32 %s, 8, %s" % (sRP, t2))
    A("s_mul_i32 %s, %s, %s" % (t2, sRP, sJ))
    A("s_sub_u32 %s, %s, 1" % (t0, sRP))
    A("v_and_b32 v4, 7, v0")
    A("v_min_u32 v4, %s, v4" % t0)
    A("v_add_u32 %s, %s, v4" % (vF, t2))
    A("v_lshrrev_b32 v4, 6, %s" % vF)
    A("v_bfe_u32 v5, v0, 3, 1")
    A("v_lshl_add_u32 v4, v4, 1, v5")
    A("v_lshl_add_u32 v4, v4, 2, v126")
    A("v_bfe_u32 v5, %s, 2, 4" % vF)
    A("v_lshlrev_b32 v5, 4, v5")
    A("v_lshl_add_u32 v4, v4, 8, v5")
    A("s_add_u32 %s, %s, 0x2000" % (t0, sB1))
    A("v_add_u32 %s, %s, v4" % (vL1a, t0))
    for k in range(4):
        A("s_bfe_u32 s%d, %s, 0x%x" % (56 + k, sTAG, 0x40000 | (4 * k)))
    A("s_movk_i32 s62, 255")
    A("s_mov_b32 s60, 0x0c0c0400")
    A("s_mov_b32 s61, 0x04000c0c")
    P = 40
    PX, PA_ = 72, 76
    A("s_mov_b32 %s, 0" % sCNT)
    def switch_copy(regs):
        A("s_add_u32 %s, %s, 1" % (sCNT, sCNT))
        A("s_cmp_eq_u32 %s, %d" % (sCNT, o["atries"]))
        A("s_cselect_b32 %s, 0x%x, 0" % (t0, MB1B - MB1A))
        for r in regs: A("v_add_u32 %s, %s, %s" % (r, t0, r))
        A("s_cmp_gt_u32 %s, %d" % (sCNT, o["spinmax"]))
        A("s_cbranch_scc1 L_end")
    def bytecheck(p, dst):
        A("v_perm_b32 v22, v%d, v%d, s60" % (p + 1, p))
        A("v_perm_b32 v23, v%d, v%d, s61" % (p + 3, p + 2))
        A("v_or_b32 v22, v22, v23")
        A("v_cmp_ne_u32 %s, %s, v22" % (dst, sTAG))
    stamp(9)
    LB("L_poll1")
    stamp(8)
    for i in range(2):
        for q in range(4):
            r = P + 16 * i + 4 * q
            A("global_load_dwordx4 v[%d:%d], %s, %s offset:%d sc1" % (r, r + 3, vL1, sWS, i * 4096 + q * 256 - 2432))
    A("global_load_dwordx4 v[%d:%d], %s, %s sc1" % (PX, PX + 3, vL1x, sWS))
    A("global_load_dwordx4 v[%d:%d], %s, %s sc1" % (PA_, PA_ + 3, vL1a, sWS))
    switch_copy([vL1, vL1x, vL1a])
    for g_ in range(8):
        A("s_waitcnt vmcnt(%d)" % (9 - g_))
        for k in range(4):
            A("v_xor_b32 v%d, s%d, v%d" % (P + 4 * g_ + k, 56 + k, P + 4 * g_ + k))
        if g_ == 0:
            A("v_or3_b32 v21, v%d, v%d, v%d" % (P, P + 1, P + 2))
            A("v_or_b32 v21, v21, v%d" % (P + 3))
        else:
            A("v_or3_b32 v21, v21, v%d, v%d" % (P + 4 * g_, P + 4 * g_ + 1))
            A("v_or3_b32 v21, v21, v%d, v%d" % (P + 4 * g_ + 2, P + 4 * g_ + 3))
    A("v_and_b32 v21, 15, v21")
    A("s_waitcnt vmcnt(1)")
    bytecheck(PX, "vcc")
    A("v_cmp_ne_u32 s[46:47], 0, v21")
    if o.get("dbgfail"):
        A("s_cmp_eq_u32 %s, 1" % sCNT)
        A("s_cselect_b32 s84, vcc_lo, s84")
        A("s_cselect_b32 s62, s46, s62")
        A("s_cselect_b32 s63, s47, s63")
    A("s_or_b64 vcc, vcc, s[46:47]")
    A("s_cbranch_vccnz L_poll1")
    stamp(5)
    for i in range(2):
        b = P + 16 * i
        for k in range(4):
            A("v_add_f32 v%d, v%d, v%d" % (b + k, b + k, b + 4 + k))
            A("v_add_f32 v%d, v%d, v%d" % (b + 8 + k, b + 8 + k, b + 12 + k))
        for k in range(4):
            A("v_add_f32 v%d, v%d, v%d" % (b + k, b + k, b + 8 + k))
        A("v_cvt_pk_bf16_f32 v%d, v%d, v%d" % (b, b, b + 1))
        A("v_cvt_pk_bf16_f32 v%d, v%d, v%d" % (b + 1, b + 2, b + 3))
    A("v_lshlrev_b32 v22, 3, v0")
    A("ds_write_b64 v22, v[%d:%d] offset:%d" % (P, P + 1, L_Q))
    A("ds_write_b64 v22, v[%d:%d] offset:%d" % (P + 16, P + 17, L_Q + 512))
    A("v_cmp_ne_u32 vcc, s54, v%d" % PX)
    A("s_cmp_eq_u64 vcc, 0")
    A("s_cselect_b32 %s, 1, 0" % sFAST)
    if o.get("forceslow"): A("s_mov_b32 %s, 0" % sFAST)
    A("v_mov_b32 v26, %s" % sFAST)
    A("v_mov_b32 v27, %s" % sTAG)
    A("v_mov_b32 v22, %d" % L_FLAG)
    A("ds_write_b64 v22, v[26:27]")
    if o["auxearly"]:
        A("s_waitcnt vmcnt(0)")
        bytecheck(PA_, "vcc")
        A("s_cbranch_vccz L_aux_b1")
        A("global_load_dwordx4 v[%d:%d], %s, %s sc1" % (PA_, PA_ + 3, vL1a, sWS))
        LB("L_aux_b1")
    A("s_waitcnt lgkmcnt(0)")
    A("s_barrier")
    if o["vote"]:
        A("v_cmp_gt_i32 vcc, 0, v%d" % (PX + 1))
        A("v_cmp_lt_i32 s[46:47], %s, v%d" % ("s62", PX + 1))
        A("s_bcnt1_i32_b32 %s, vcc_lo" % t0)
        A("s_bcnt1_i32_b32 %s, s46" % t2)
        A("s_cmp_gt_u32 %s, %s" % (t0, t2))
        A("s_cselect_b32 s55, 0x2000, 0")
        if o.get("voteinv"): A("s_xor_b32 s55, s55, 0x2000")
        if o["stamps"]:
            A("s_bcnt1_i32_b32 s63, vcc_lo")
            A("s_lshl_b32 %s, %s, 8" % (t2, t2))
            A("s_or_b32 s63, s63, %s" % t2)
    if o["hlate"]:
        A("s_setprio %d" % o.get("hprio", 0))
        A("s_barrier")
        A("s_barrier")
    A("s_branch L_chk_aux")
    LB("L_poll_aux")
    A("global_load_dwordx4 v[%d:%d], %s, %s sc1" % (PA_, PA_ + 3, vL1a, sWS))
    switch_copy([vL1a])
    LB("L_chk_aux")
    A("s_waitcnt vmcnt(0)")
    bytecheck(PA_, "vcc")
    A("s_cbranch_vccnz L_poll_aux")
    A("s_movk_i32 %s, 0xff00" % t0)
    A("v_and_b32 v23, 1, %s" % vF)
    A("v_cmp_eq_u32 vcc, 0, v23")
    A("v_and_b32 v23, 2, %s" % vF)
    A("v_cmp_eq_u32 s[46:47], 0, v23")
    A("v_cndmask_b32 v24, v%d, v%d, vcc" % (PA_ + 1, PA_))
    A("v_cndmask_b32 v25, v%d, v%d, vcc" % (PA_ + 3, PA_ + 2))
    A("v_cndmask_b32 v24, v25, v24, s[46:47]")
    A("v_and_b32 v24, %s, v24" % t0)
    allred("v24", "v23", "v_add_f32", 16)
    allred("v24", "v23", "v_add_f32", 32)
    A("v_cvt_pk_bf16_f32 v24, v24, v24")
    A("v_and_b32 v24, %s, v24" % t1)
    A("v_mul_f32 v25, 0x%x, v24" % (LOG2E | 0x80000000))
    A("v_exp_f32 v25, v25")
    A("v_mov_b32_dpp v26, v24 row_ror:8 %s" % DPP)
    A("v_add_f32 v25, 1.0, v25")
    A("v_rcp_f32 v25, v25")
    A("v_cmp_le_u32 vcc, %s, v0" % sRP)
    A("v_mul_f32 v25, v24, v25")
    A("v_cvt_pk_bf16_f32 v25, v25, v25")
    A("v_and_b32 v25, %s, v25" % t1)
    A("v_mul_f32 v25, v25, v26")
    A("v_cvt_pk_bf16_f32 v25, v25, v25")
    A("v_cndmask_b32 v25, v25, 0, vcc")
    A("v_lshlrev_b32 v22, 2, v0")
    if o["vote"]:
        A("v_mov_b32 v26, s55")
        A("v_mov_b32 v27, 0")
        A("ds_write_b32 v27, v26 offset:%d" % (L_FLAG + 8))
    A("s_mov_b64 exec, 0xff")
    A("ds_write_b32 v22, v25 offset:%d" % L_H)
    A("s_waitcnt lgkmcnt(0)")
    stamp(6)
    dump_stamps()
    A("s_endpgm")

    role[0] = "A"
    if o.get("alignA"): L.append(".p2align %d" % o["alignA"])
    for _ in range(o.get("shiftA", 0)): A("s_nop 0")
    LB("L_attn")
    vK0, vK1, vV0, vV1 = "v2", "v3", "v4", "v5"
    vWO0, vWO1, vDN0, vDN1, vXF, vXP = "v6", "v7", "v8", "v9", "v10", "v1"
    vS2, vL2, vS25, vL25, vL3, vS3 = "v11", "v12", "v13", "v14", "v15", "v150"
    KR, VR, WOR, DNR, QR, SR, PA, MK = 16, 48, 80, 96, 104, 120, 128, 146
    vM0, vM1, vQA, vOW, vOR, vMLW, vHA = "v151", "v152", "v153", "v154", "v155", "v156", "v157"
    vN, vG, vN16, vP = "v120", "v121", "v122", "v123"
    u0, u1 = "v124", "v125"
    s4JW = "s41"
    C("K and V: load i = 1 KB block (4 keys) number 128 i + 4j + w of the head's window; K goes through LDS")
    A("s_lshl_b32 %s, %s, 24" % (t0, sH))
    A("s_lshl_b32 %s, %s, 2" % (s4JW, sJ))
    A("s_add_u32 %s, %s, %s" % (s4JW, s4JW, sW))
    A("s_lshl_b32 %s, %s, 10" % (t2, s4JW))
    A("s_add_u32 %s, %s, %s" % (t0, t0, t2))
    A("s_add_u32 %s, %s, 0xF00000" % (t0, t0))
    A("v_and_b32 %s, 15, v0" % vN)
    A("v_lshrrev_b32 %s, 4, v0" % vG)
    A("v_lshlrev_b32 %s, 4, %s" % (vN16, vN))
    A("v_lshl_add_u32 %s, v0, 4, %s" % (vV0, t0))
    A("v_lshlrev_b32 %s, 6, %s" % (u0, vG))
    A("v_xor_b32 %s, %s, %s" % (vK0, u0, vV0))
    A("s_lshl_b32 %s, %s, 13" % (t1, sW))
    A("s_add_u32 m0, %s, %d" % (t1, L_K))
    A("s_mov_b32 s42, 0x20000")
    A("s_movk_i32 s43, 1024")
    if not o["vote"]: A("s_waitcnt lgkmcnt(0)")
    if o.get("tlbw") == 1:
        A("s_cmp_lg_u32 %s, 0" % sW)
        A("s_cbranch_scc1 L_notlb")
        tlbwarm()
        A("s_waitcnt vmcnt(0)")
        LB("L_notlb")
    if o["vote"]: A("s_waitcnt lgkmcnt(1)")
    if o["b0pos"]: A("s_barrier")
    stamp(1)
    issued = [0]
    def load(w, txt):
        if issued[0] >= w:
            A("s_waitcnt vmcnt(%d)" % (w - 1))
        A(txt); issued[0] += 1
    def rot(i): return (i * o["rotm"]) & 127
    def kload(i):
        load(o["WK"], "global_load_lds_dwordx4 %s, %s %s" % (vK0, sK, nt))
        if i < 7:
            A("s_add_u32 m0, m0, s43")
            A("v_xor_b32 %s, %d, %s" % (vK0, (((i & 3) ^ ((i + 1) & 3)) << 4) | ((rot(i) ^ rot(i + 1)) << 10), vK0))
            A("v_add_u32 %s, s42, %s" % (vK0, vK0))
    nk_first = min(o["WK"], 8)
    if o.get("bal"):
        A("v_and_b32 v158, 7, v0")
        A("v_lshlrev_b32 v158, 2, v158")
        A("global_load_dword v159, v158, s[24:25] sc1")
    for i in range(nk_first): kload(i)
    C("address and mask setup in the shadow of the K loads")
    A("s_lshl_b32 %s, %s, 19" % (t0, sH))
    A("s_lshl_b32 %s, %s, 14" % (t2, sJ))
    A("s_add_u32 %s, %s, %s" % (t0, t0, t2))
    A("s_lshl_b32 %s, %s, 8" % (t3, sW))
    A("s_add_u32 %s, %s, %s" % (t0, t0, t3))
    A("s_add_u32 %s, %s, 0x1000" % (t0, t0))
    A("v_lshl_add_u32 %s, %s, 10, %s" % (vDN0, vG, vN16))
    A("v_add_u32 %s, %s, %s" % (vWO0, t0, vDN0))
    A("v_add_u32 %s, 0x2000, %s" % (vWO1, vWO0))
    A("s_mul_i32 %s, %s, 7" % (t0, sH))
    A("s_add_u32 %s, %s, 1" % (t0, t0))
    A("s_lshr_b32 %s, %s, 1" % (t0, t0))
    A("s_lshl_b32 %s, %s, 6" % (t0, t0))
    A("s_and_b32 %s, %s, 1" % (t2, sH))
    A("s_lshl_b32 %s, %s, 1" % (t2, t2))
    A("s_sub_u32 %s, 8, %s" % (t1, t2))
    A("s_mul_i32 %s, %s, %s" % (t2, t1, sJ))
    A("s_add_u32 %s, %s, %s" % (t0, t0, t2))
    A("s_lshl_b32 %s, %s, 10" % (t0, t0))
    A("s_add_u32 %s, %s, %s" % (t0, t0, t3))
    A("v_add_u32 %s, %s, %s" % (vDN0, t0, vDN0))
    A("s_sub_u32 %s, %s, 5" % (t1, t1))
    A("v_min_u32 %s, %s, %s" % (vDN1, t1, vG))
    A("v_lshl_add_u32 %s, %s, 10, %s" % (vDN1, vDN1, vN16))
    A("s_add_u32 %s, %s, 4096" % (t0, t0))
    A("v_add_u32 %s, %s, %s" % (vDN1, t0, vDN1))
    A("v_and_b32 %s, 1, v0" % vP)
    A("v_and_b32 %s, 1, %s" % (u0, vG))
    A("s_lshl_b32 %s, %s, 3" % (t2, s4JW))
    A("v_lshl_add_u32 %s, %s, 2, %s" % (vXF, u0, t2))
    A("s_lshl_b32 %s, %s, 16" % (t0, sH))
    A("s_lshl_b32 %s, %s, 14" % (t2, sW))
    A("s_lshl_b32 %s, %s, 6" % (t3, sJ))
    A("s_add_u32 %s, %s, %s" % (t2, t2, t3))
    A("s_add_u32 %s, %s, %s" % (t2, t2, t0))
    A("s_add_u32 %s, %s, 0x%x" % (t2, t2, MB2))
    A("v_lshrrev_b32 %s, 3, v0" % vS2)
    A("v_bfe_u32 %s, v0, 1, 2" % u1)
    A("v_lshlrev_b32 %s, 4, %s" % (u1, u1))
    A("v_lshl_add_u32 %s, %s, 11, %s" % (vS2, vS2, u1))
    A("v_add_u32 %s, %s, %s" % (vS2, t2, vS2))
    lay = o.get("lay25", 0)
    A("v_lshrrev_b32 %s, 1, %s" % (vS25, vN))
    A("v_lshlrev_b32 %s, %d, %s" % (u1, (5, 10, 10, 5)[lay], vP))
    A("v_lshl_add_u32 %s, %s, 11, %s" % (vS25, vS25, u1))
    A("v_lshl_add_u32 %s, %s, %d, %s" % (vS25, u0, (4, 9, 4, 4)[lay], vS25))
    if lay:
        A("s_mul_i32 %s, %s, %d" % (t3, sJ, (0, 48, 32, 0)[lay]))
        A("s_sub_u32 %s, %s, %s" % (t2, t2, t3))
    A("s_add_u32 %s, %s, 0x%x" % (t2, t2, MB25 - MB2))
    A("v_add_u32 %s, %s, %s" % (vS25, t2, vS25))
    A("s_lshl_b32 %s, %s, 11" % (t3, sJ))
    A("s_add_u32 %s, %s, %s" % (t0, t0, t3))
    A("s_add_u32 %s, %s, 0x%x" % (t0, t0, MB2))
    A("v_lshl_add_u32 %s, v0, 4, %s" % (vL2, t0))
    if lay == 2:
        A("s_lshr_b32 %s, %s, 1" % (t3, sW))
        A("s_lshl_b32 %s, %s, 10" % (t3, t3))
        A("s_add_u32 %s, %s, %s" % (t0, t0, t3))
        A("s_and_b32 %s, %s, 1" % (t3, sW))
        A("s_lshl_b32 %s, %s, 4" % (t3, t3))
    else:
        A("s_lshl_b32 %s, %s, %d" % (t3, sW, (4, 9, 0, 4)[lay]))
    A("s_add_u32 %s, %s, %s" % (t0, t0, t3))
    A("s_add_u32 %s, %s, 0x%x" % (t0, t0, MB25 - MB2))
    A("v_and_b32 %s, 31, v0" % u1)
    A("v_lshl_add_u32 %s, %s, %d, %s" % (vL25, u1, (6, 4, 5, 6)[lay], t0))
    if lay == 3:
        A("s_lshl_b32 %s, %s, 16" % (t0, sH))
        A("s_add_u32 %s, %s, 0x%x" % (t0, t0, MB25))
        A("s_lshl_b32 %s, %s, 11" % (t2, sJ))
        A("s_lshl_b32 %s, %s, 9" % (t3, sW))
        A("s_add_u32 %s, %s, %s" % (t2, t2, t3))
        A("s_add_u32 %s, %s, %s" % (t2, t2, t0))
        A("v_lshl_add_u32 %s, %s, 5, %s" % (vS25, vN, t2))
        A("v_lshl_add_u32 %s, %s, 4, %s" % (vS25, u0, vS25))
        A("s_lshl_b32 %s, %s, 6" % (t2, sJ))
        A("s_lshl_b32 %s, %s, 4" % (t3, sW))
        A("s_add_u32 %s, %s, %s" % (t2, t2, t3))
        A("s_add_u32 %s, %s, %s" % (t2, t2, t0))
        A("v_lshl_add_u32 %s, %s, 11, %s" % (vL25, u1, t2))
    A("s_lshr_b32 %s, %s, 1" % (t0, sJ))
    A("s_lshl_b32 %s, %s, 14" % (t0, t0))
    A("s_and_b32 %s, %s, 1" % (t3, sJ))
    A("s_lshl_b32 %s, %s, 12" % (t3, t3))
    A("s_add_u32 %s, %s, %s" % (t0, t0, t3))
    A("s_lshl_b32 %s, %s, 7" % (t3, sW))
    A("s_add_u32 %s, %s, %s" % (t0, t0, t3))
    A("s_add_u32 %s, %s, 0x%x" % (t0, t0, MB3))
    A("v_lshl_add_u32 %s, %s, 4, %s" % (u0, u0, t0))
    A("v_and_b32 %s, 7, v0" % u1)
    A("v_lshl_add_u32 %s, %s, 9, %s" % (vL3, u1, u0))
    A("s_lshl_b32 %s, %s, 9" % (t3, sH))
    A("v_lshl_add_u32 %s, %s, 13, %s" % (u0, vP, u0))
    A("v_add_u32 %s, %s, %s" % (vS3, t3, u0))
    A("v_lshlrev_b32 %s, 4, %s" % (u1, vP))
    def pretouch2():
        C("pull this workgroup's incoming hand-off lines into L2 (waves 0,1: hop 2; waves 2,3: hop 2.5)")
        A("s_and_b32 %s, %s, 1" % (t0, sW))
        A("s_lshl_b32 %s, %s, 10" % (t0, t0))
        A("s_lshr_b32 %s, %s, 1" % (t3, sW))
        A("s_mul_i32 %s, %s, 0x%x" % (t3, t3, MB25 - MB2))
        A("s_add_u32 %s, %s, %s" % (t0, t0, t3))
        A("v_add_u32 v158, %s, %s" % (t0, vL2))
        if o["pretouch"] in ("r", "k"):
            A("global_load_dword v159, v158, %s sc1" % sWS); issued[0] += 1
    if o["pretouch"] == "r" or isinstance(o["pretouch"], int): pretouch2()
    A("v_mov_b32 %s, 0xffff" % u0)
    A("v_lshlrev_b32 %s, %s, %s" % (u0, u1, u0))
    A("v_and_b32 %s, 2, v0" % u1)
    A("v_cmp_eq_u32 vcc, 0, %s" % u1)
    A("v_lshrrev_b32 %s, 1, %s" % (u1, vN))
    A("v_lshlrev_b32 %s, 2, %s" % (vHA, vG))
    SEL = 160
    A("v_mov_b32 v%d, 0x0c0c0c0c" % (SEL + 2))
    A("v_mov_b32 v%d, 0x01000100" % (SEL + 3))
    A("v_bfi_b32 v%d, %s, v%d, v%d" % (SEL + 3, u0, SEL + 3, SEL + 2))
    A("v_cndmask_b32 v%d, v%d, v%d, vcc" % (SEL, SEL + 2, SEL + 3))
    A("v_cndmask_b32 v%d, v%d, v%d, vcc" % (SEL + 1, SEL + 3, SEL + 2))
    A("v_and_b32 v%d, 0x02020202, %s" % (SEL + 3, u0))
    A("v_cndmask_b32 v%d, 0, v%d, vcc" % (SEL + 2, SEL + 3))
    A("v_cndmask_b32 v%d, v%d, 0, vcc" % (SEL + 3, SEL + 3))
    A("v_add_u32 v%d, v%d, v%d" % (SEL + 2, SEL + 2, SEL))
    A("v_add_u32 v%d, v%d, v%d" % (SEL + 3, SEL + 3, SEL + 1))
    for r in range(4):
        A("v_cmp_eq_u32 s[%d:%d], %d, %s" % (44 + 2 * r, 45 + 2 * r, r, u1))
    A("v_lshrrev_b32 %s, 2, %s" % (vMLW, vN))
    A("v_lshlrev_b32 %s, 4, %s" % (u1, vG))
    A("v_lshl_add_u32 %s, %s, 8, %s" % (vQA, vMLW, u1))
    for r in range(4):
        A("v_cndmask_b32 v%d, 0, %s, s[%d:%d]" % (MK + r, u0, 44 + 2 * r, 45 + 2 * r))
    A("s_lshl_b32 %s, %s, 11" % (t0, sW))
    A("v_lshl_add_u32 %s, %s, 9, %s" % (vOW, vG, vN16))
    A("v_add_u32 %s, %s, %s" % (vOW, t0, vOW))
    A("s_lshl_b32 %s, %s, 3" % (t0, sW))
    A("v_lshl_add_u32 %s, %s, 5, %s" % (vMLW, vMLW, t0))
    A("v_bfe_u32 %s, v0, 1, 1" % u0)
    A("v_lshrrev_b32 %s, 2, v0" % u1)
    A("v_lshlrev_b32 %s, 4, %s" % (u1, u1))
    A("v_lshl_add_u32 %s, %s, 8, %s" % (u1, u0, u1))
    A("v_lshl_add_u32 %s, %s, 3, %s" % (u1, vP, u1))
    A("s_lshl_b32 %s, %s, 9" % (t0, sW))
    A("v_add_u32 %s, %s, %s" % (vOR, t0, u1))
    KA = 140
    A("v_and_b32 %s, 3, v0" % u0)
    A("v_lshrrev_b32 %s, 2, %s" % (u1, vN))
    A("v_lshlrev_b32 %s, 8, %s" % (u1, u1))
    A("v_lshl_add_u32 %s, %s, 10, %s" % (u0, u0, u1))
    A("v_xor_b32 %s, %s, %s" % (u1, vG, vN))
    A("v_lshl_add_u32 %s, %s, 4, %s" % (u0, u1, u0))
    A("s_lshl_b32 %s, %s, 13" % (t1, sW))
    A("v_add_u32 v%d, %s, %s" % (KA, t1, u0))
    for s_ in range(1, 4):
        A("v_xor_b32 v%d, %d, v%d" % (KA + s_, s_ << 6, KA))
    for _ in range(o.get("delayA", 0)): A("s_nop 3")
    def issue_rest(WK_, W_):
        o_wk = o["WK"]; o["WK"] = WK_
        for i in range(nk_first, 8): kload(i)
        o["WK"] = o_wk
        if o["pretouch"] == "k": pretouch2()
        if o.get("xearly"):
            A("global_load_dword %s, %s, %s" % (vXP, vXF, sX)); issued[0] += 1
        for i in range(8):
            r = VR + i * 4
            load(W_, "global_load_dwordx4 v[%d:%d], %s, %s %s" % (r, r + 3, vV0, sV, nt))
            if i < 7:
                if rot(i) ^ rot(i + 1): A("v_xor_b32 %s, %d, %s" % (vV0, (rot(i) ^ rot(i + 1)) << 10, vV0))
                A("v_add_u32 %s, s42, %s" % (vV0, vV0))
    if o.get("bal"):
        C("a group that started well after others asks memory with a wider window")
        A("s_waitcnt vmcnt(%d)" % issued[0])
        A("v_sub_u32 v158, s90, v159")
        A("v_cmp_ne_u32 vcc, 0, v159")
        A("v_cmp_lt_i32 s[44:45], %d, v158" % o.get("theta", 40))
        A("s_and_b32 s62, vcc_lo, s44")
        A("s_and_b32 s62, s62, 0xff")
        A("s_bcnt1_i32_b32 s62, s62")
        A("s_cmp_ge_u32 s62, %d" % o.get("lateth", 2))
        A("s_cbranch_scc1 L_wide")
        keep = issued[0]
        issue_rest(o["WK"], o["W"])
        A("s_branch L_issued")
        LB("L_wide")
        issued[0] = keep
        issue_rest(o["WK"] + o["bal"], o["W"] + o["bal"])
        LB("L_issued")
    elif o.get("c3"):
        A("s_lshr_b32 %s, %s, 2" % (t0, sJ))
        A("s_cmp_eq_u32 %s, 3" % t0)
        A("s_cbranch_scc1 L_wide")
        keep = issued[0]
        issue_rest(o["WK"], o["W"])
        A("s_branch L_issued")
        LB("L_wide")
        issued[0] = keep
        issue_rest(o["WK"] + o["c3"], o["W"] + o.get("c3v", o["c3"]))
        LB("L_issued")
    else:
        issue_rest(o["WK"], o["W"])
    tail = []
    tail.append("global_load_dword %s, %s, %s" % (vXP, vXF, sX))
    for a in range(2):
        r = DNR + a * 4
        tail.append("global_load_dwordx4 v[%d:%d], %s, %s %s" % (r, r + 3, (vDN0, vDN1)[a], sDN, nt))
    for m in range(4):
        r = WOR + m * 4
        tail.append("global_load_dwordx4 v[%d:%d], %s, %s offset:%d %s" % (r, r + 3, (vWO0, vWO1)[m >> 1], sWO, (0, -4096)[(m & 1) == 0], nt))
    dnl = []
    if o.get("dnlate"):
        dnl = tail[1:1 + 2]
        if o["dnlate"] == 2: dnl = dnl[1:]
        for t_ in dnl: tail.remove(t_)
        tail.append(tail.pop(0))
    if isinstance(o["pretouch"], int):
        tail.insert(o["pretouch"], "global_load_dword v159, v158, %s sc1" % sWS)
    if o.get("xearly"):
        xl = [t_ for t_ in tail if vXP + "," in t_][0]; tail.remove(xl)
    nav = [0]
    def tail_issue(n):
        for _ in range(n):
            if tail:
                A(tail.pop(0)); nav[0] += 1
    A("s_waitcnt vmcnt(8)")
    for t in range(2):
        for s in range(4):
            r = KR + (t * 4 + s) * 4
            A("ds_read_b128 v[%d:%d], v%d offset:%d" % (r, r + 3, KA + s, L_K + t * 4096))
    tail_issue(o["ntail0"])
    stamp(2)
    A("s_waitcnt lgkmcnt(0)")
    A("s_barrier")
    stamp(3)
    for s in range(4):
        A("ds_read_b128 v[%d:%d], %s offset:%d" % (QR + 4 * s, QR + 4 * s + 3, vQA, L_Q + s * 64))
    if "a" in o["tsp"]: tail_issue(1)
    A("s_mov_b32 s46, 0x%x" % SCALE)
    A("s_mov_b32 %s, 0xffff0000" % t1)
    A("s_mov_b32 s48, 0x%x" % LOG2E)
    for s in range(4):
        A("s_waitcnt lgkmcnt(%d)" % (3 - s))
        for t in range(2):
            mfma(SR + 4 * t, KR + (t * 4 + s) * 4, QR + 4 * s, None if s == 0 else SR + 4 * t)
    T = KR
    vH0, vH1, vFL, vTG = "v%d" % (T + 28), "v%d" % (T + 29), "v%d" % (T + 26), "v%d" % (T + 27)
    A("v_mov_b32 %s, %d" % (vFL, L_FLAG))
    A("s_lshl_b32 %s, %s, 5" % (t3, sW))
    A("v_mov_b32 v%d, %s" % (T + 31, t3))
    A("ds_read_b64 v[%d:%d], %s" % (T + 26, T + 27, vFL))
    if "b" in o["tsp"]:
        tail_issue(1); A("s_nop 1")
    else: A("s_nop 2")
    C("scores: bf16(qk) -> * scale -> bf16   (the reference's two roundings)")
    for i in range(8):
        A("v_cvt_pk_bf16_f32 v%d, 0, v%d" % (SR + i, SR + i))
    for i in range(4):
        A("v_pk_mul_f32 %s, %s, s[46:47] op_sel_hi:[1,0]" % (P2(SR + 2 * i), P2(SR + 2 * i)))
    for i in range(8):
        A("v_cvt_pk_bf16_f32 v%d, 0, v%d" % (SR + i, SR + i))
    vm, vt, vl = "v%d" % (T + 4), "v%d" % (T + 6), "v%d" % (T + 5)
    A("v_max3_f32 %s, v%d, v%d, v%d" % (vm, SR, SR + 1, SR + 2))
    A("v_max3_f32 %s, v%d, v%d, v%d" % (vt, SR + 3, SR + 4, SR + 5))
    A("v_max3_f32 %s, %s, v%d, v%d" % (vm, vm, SR + 6, SR + 7))
    A("v_max_f32 %s, %s, %s" % (vm, vm, vt))
    allred(vm, vt, "v_max_f32", 16)
    if "c" in o["tsp"]: tail_issue(1)
    allred(vm, vt, "v_max_f32", 32)
    A("v_mul_f32 %s, s48, %s" % (vm, vm))
    for i in range(4):
        A("v_pk_fma_f32 %s, %s, s[48:49], %s op_sel_hi:[1,0,0] neg_lo:[0,0,1] neg_hi:[0,0,1]" % (P2(SR + 2 * i), P2(SR + 2 * i), P2(T + 4)))
    for i in range(8):
        A("v_exp_f32 v%d, v%d" % (SR + i, SR + i))
    if "d" in o["tsp"]: tail_issue(1)
    for i in range(4):
        A("v_cvt_pk_bf16_f32 v%d, v%d, v%d" % (T + 8 + i, SR + 2 * i, SR + 2 * i + 1))
    for i in range(8):
        for r in range(2):
            A("v_perm_b32 v%d, v%d, v%d, v%d" % (PA + 2 * i + r, T + 8 + (i >> 1), T + 8 + (i >> 1), SEL + 2 * (i & 1) + r))
    stamp(4)
    O0, O1, Y = QR, QR + 4, QR + 8
    def pv(i):
        A("s_waitcnt vmcnt(%d)" % (7 - i + nav[0]))
        if i >= o["tlag"]: tail_issue((2 if i < o.get("tdbl", 0) else 1) if i < o.get("tlast", 7) else 9)
        vr = VR + 4 * i
        mfma16(O0, PA + 2 * i, vr, None if i == 0 else O0)
        mfma16(O1, PA + 2 * i, vr + 2, None if i == 0 else O1)
    A("v_pk_add_f32 %s, %s, %s" % (P2(SR), P2(SR), P2(SR + 2)))
    A("v_pk_add_f32 %s, %s, %s" % (P2(SR + 4), P2(SR + 4), P2(SR + 6)))
    A("v_pk_add_f32 %s, %s, %s" % (P2(SR), P2(SR), P2(SR + 4)))
    A("v_add_f32 %s, v%d, v%d" % (vl, SR, SR + 1))
    allred(vl, vt, "v_add_f32", 16)
    allred(vl, vt, "v_add_f32", 32)
    A("ds_write_b64 %s, v[%d:%d] offset:%d" % (vMLW, T + 4, T + 5, L_ML))
    A("s_waitcnt lgkmcnt(0)")
    A("v_readfirstlane_b32 %s, %s" % (sFAST, vFL))
    A("v_readfirstlane_b32 %s, %s" % (sTAG, vTG))
    HA = T + 16
    ML = T
    OB = T + 8
    G2 = SR
    vM, vLs = "v124", "v125"
    for i in range(o["b2"]): pv(i)
    if o.get("dbgb2"): A("s_memrealtime s[70:71]")
    A("s_barrier")
    if o.get("dbgb2"): A("s_memrealtime s[72:73]")
    A("ds_read_b128 v[%d:%d], v%d offset:%d" % (ML, ML + 3, T + 31, L_ML))
    A("ds_read_b128 v[%d:%d], v%d offset:%d" % (ML + 4, ML + 7, T + 31, L_ML + 16))
    if not o["hlate"]:
        A("ds_read_b32 %s, %s offset:%d" % (vH0, vHA, L_H))
        A("ds_read_b32 %s, %s offset:%d" % (vH1, vHA, L_H + 16))
    if o["vote"]:
        A("v_mov_b32 v%d, 0" % (T + 30))
        A("ds_read_b32 v%d, v%d offset:%d" % (T + 30, T + 30, L_FLAG + 8))
    A("s_mov_b32 s54, 0x55555555")
    A("s_mov_b32 s55, 0x55555555")
    A("v_mov_b32 v%d, %s" % (G2 + 3, sTAG))
    A("s_waitcnt lgkmcnt(%d)" % ((0 if o["hlate"] else 2) + (1 if o["vote"] else 0)))
    A("v_max3_f32 %s, v%d, v%d, v%d" % (vM, ML, ML + 2, ML + 4))
    A("v_max_f32 %s, %s, v%d" % (vM, vM, ML + 6))
    for w_ in range(4):
        A("v_sub_f32 v%d, v%d, %s" % (ML + 2 * w_, ML + 2 * w_, vM))
    for w_ in range(4):
        A("v_exp_f32 v%d, v%d" % (ML + 2 * w_, ML + 2 * w_))
    A("s_waitcnt lgkmcnt(0)")
    A("v_mul_f32 %s, v%d, v%d" % (vLs, ML, ML + 1))
    for w_ in range(1, 4):
        A("v_fmac_f32 %s, v%d, v%d" % (vLs, ML + 2 * w_, ML + 2 * w_ + 1))
    def h_operands():
        for a in range(2):
            for r in range(4):
                A("v_and_b32 v%d, %s, v%d" % (HA + 4 * a + r, (vH0, vH1)[a], MK + r))
    A("v_log_f32 v%d, %s" % (G2 + 2, vLs))
    A("v_rcp_f32 %s, %s" % (vLs, vLs))
    if not o["hlate"]: h_operands()
    else: A("s_nop 0")
    if o["vote"]: A("v_add_u32 %s, v%d, %s" % (vL3, T + 30, vL3))
    A("v_add_f32 v%d, v%d, %s" % (G2 + 2, G2 + 2, vM))
    for w_ in range(4):
        A("v_mul_f32 v%d, v%d, %s" % (ML + 2 * w_, ML + 2 * w_, vLs))
    for i in range(o["b2"], 8): pv(i)
    stamp(5)
    if o.get("nosync"):
        A("s_waitcnt vmcnt(0)")
        stamp(6)
        A("s_branch L_done")
    A("s_nop 6")
    A("ds_write_b128 %s, v[%d:%d] offset:%d" % (vOW, O0, O0 + 3, L_O))
    A("ds_write_b128 %s, v[%d:%d] offset:%d" % (vOW, O1, O1 + 3, L_O + 256))
    A("s_waitcnt lgkmcnt(0)")
    A("s_barrier")
    for w_ in range(4):
        A("ds_read_b64 v[%d:%d], %s offset:%d" % (OB + 2 * w_, OB + 2 * w_ + 1, vOR, L_O + w_ * 2048))
    A("s_cmp_eq_u32 %s, 0" % sFAST)
    for w_ in range(4):
        A("s_waitcnt lgkmcnt(%d)" % (3 - w_))
        op = "v_mul_f32" if w_ == 0 else "v_fmac_f32"
        A("%s v%d, v%d, v%d" % (op, G2, ML + 2 * w_, OB + 2 * w_))
        A("%s v%d, v%d, v%d" % (op, G2 + 1, ML + 2 * w_, OB + 2 * w_ + 1))
    tails = []
    def publish(addr, g, name):
        A("s_cbranch_scc1 L_slow_%s" % name)
        A("global_store_dwordx4 %s, v[%d:%d], %s %s" % (addr, g, g + 3, sWS, o.get("stfl", "")))
        LB("L_back_%s" % name)
        tails.append((name, addr, g))
    A("v_cvt_pk_bf16_f32 v%d, v%d, v%d" % (G2, G2, G2 + 1))
    A("s_nop 1")
    A("v_mov_b32_dpp v%d, v%d quad_perm:[1,1,3,3] %s" % (G2 + 1, G2, DPP))
    A("s_mov_b64 exec, s[54:55]")
    publish(vS2, G2, "h2")
    A("s_mov_b64 exec, -1")
    stamp(6)
    P = T
    for i in range(2):
        A("global_load_dwordx4 v[%d:%d], %s, %s offset:%d sc1" % (P + 4 * i, P + 4 * i + 3, vL2, sWS, i * 1024))
    for t_ in dnl: A(t_)
    if o["hlate"]:
        A("s_barrier")
        A("ds_read_b32 %s, %s offset:%d" % (vH0, vHA, L_H))
        A("ds_read_b32 %s, %s offset:%d" % (vH1, vHA, L_H + 16))
    A("s_mov_b32 %s, %d" % (sCNT, o["spinmax"]))
    vTAG = "v127"
    A("v_mov_b32 %s, %s" % (vTAG, sTAG))
    for k in range(4):
        A("s_mov_b32 s%d, 0x%x" % (56 + k, 0x07060500 | k))
        A("s_bfe_u32 s%d, %s, 0x%x" % (60 + k if k < 2 else 50 + k, sTAG, 0x80000 | (8 * k)))
    TB = ["s60", "s61", "s52", "s53"]
    if o["hlate"]:
        A("s_waitcnt lgkmcnt(0)")
        h_operands()
    ndn_early = 2 - len(dnl)
    A("s_waitcnt vmcnt(%d)" % (3 + len(dnl)))
    for a in range(ndn_early):
        mfma(Y, HA + 4 * a, DNR + 4 * a, None if a == 0 else Y)
    if dnl:
        A("s_waitcnt vmcnt(%d)" % len(dnl))
        A("s_branch L_chk2b")
    else:
        A("s_branch L_chk2")
    LB("L_poll2")
    MS = ["s[44:45]", "s[46:47]"]
    for i in range(2):
        if o["mask2"]: A("s_mov_b64 exec, %s" % MS[i])
        A("global_load_dwordx4 v[%d:%d], %s, %s offset:%d sc1" % (P + 4 * i, P + 4 * i + 3, vL2, sWS, i * 1024))
    if o["mask2"]: A("s_mov_b64 exec, -1")
    A("s_sub_u32 %s, %s, 1" % (sCNT, sCNT))
    A("s_cbranch_scc1 L_end")
    LB("L_chk2")
    A("s_waitcnt vmcnt(0)")
    LB("L_chk2b")
    A("v_max_f32 %s, v%d, v%d" % (vM, P + 2, P + 6))
    for i in range(2):
        A("v_cmp_ne_u32 %s, %s, v%d" % (MS[i], sTAG, P + 4 * i + 3))
    A("v_max_f32_dpp %s, %s, %s row_ror:4 %s" % (vM, vM, vM, DPP))
    A("s_or_b64 vcc, %s, %s" % (MS[0], MS[1]))
    A("s_cbranch_scc1 L_poll2")
    stamp(7)
    U = T + 8
    def unp(i, k):
        if k & 1: A("v_and_b32 v%d, %s, v%d" % (U + 4 * i + k, t1, P + 4 * i + (k >> 1)))
        else: A("v_lshlrev_b32 v%d, 16, v%d" % (U + 4 * i + k, P + 4 * i + (k >> 1)))
    vt2 = "v126"
    A("v_max_f32_dpp %s, %s, %s row_ror:8 %s" % (vM, vM, vM, DPP))
    A("v_mov_b32 %s, %s" % (vt2, vM))
    unp(0, 0); unp(0, 1)
    A("v_permlane16_swap_b32 %s, %s" % (vt2, vM))
    A("v_max_f32 %s, %s, %s" % (vM, vM, vt2))
    A("v_mov_b32 %s, %s" % (vt2, vM))
    unp(0, 2); unp(0, 3)
    A("v_permlane32_swap_b32 %s, %s" % (vt2, vM))
    A("v_max_f32 %s, %s, %s" % (vM, vM, vt2))
    w0, w1 = "v120", "v122"
    A("v_sub_f32 %s, v%d, %s" % (w0, P + 2, vM))
    A("v_sub_f32 %s, v%d, %s" % (w1, P + 6, vM))
    A("v_exp_f32 %s, %s" % (w0, w0))
    A("v_exp_f32 %s, %s" % (w1, w1))
    unp(1, 0)
    den, tA, tB = "v126", "v124", "v123"
    A("v_add_f32 %s, %s, %s" % (den, w0, w1))
    unp(1, 1); unp(1, 2)
    A("v_add_f32_dpp %s, %s, %s row_ror:4 %s" % (den, den, den, DPP))
    unp(1, 3)
    A("v_pk_mul_f32 %s, %s, v[120:121] op_sel_hi:[1,0]" % (P2(U), P2(U)))
    A("v_add_f32_dpp %s, %s, %s row_ror:8 %s" % (den, den, den, DPP))
    A("v_pk_mul_f32 %s, %s, v[120:121] op_sel_hi:[1,0]" % (P2(U + 2), P2(U + 2)))
    A("v_pk_fma_f32 %s, %s, v[122:123], %s op_sel_hi:[1,0,1]" % (P2(U), P2(U + 4), P2(U)))
    A("v_pk_fma_f32 %s, %s, v[122:123], %s op_sel_hi:[1,0,1]" % (P2(U + 2), P2(U + 6), P2(U + 2)))
    A("v_mov_b32 %s, %s" % (tA, den))
    A("s_cmp_eq_u32 %s, 0" % sFAST)
    A("v_permlane32_swap_b32 v%d, v%d" % (U, U + 2))
    A("v_permlane32_swap_b32 v%d, v%d" % (U + 1, U + 3))
    A("v_permlane32_swap_b32 %s, %s" % (tA, den))
    A("v_pk_add_f32 %s, %s, %s" % (P2(U), P2(U), P2(U + 2)))
    A("v_add_f32 %s, %s, %s" % (den, den, tA))
    A("s_mov_b32 %s, %d" % (sCNT, o["spinmax"]))
    A("v_permlane16_swap_b32 v%d, v%d" % (U, U + 1))
    A("v_mov_b32 %s, %s" % (tA, den))
    A("v_add_f32 v%d, v%d, v%d" % (U, U, U + 1))
    A("s_nop 0")
    A("v_permlane16_swap_b32 %s, %s" % (tA, den))
    A("v_add_f32_dpp v%d, v%d, v%d row_ror:4 %s" % (U, U, U, DPP))
    A("v_add_f32 %s, %s, %s" % (den, den, tA))
    A("v_rcp_f32 %s, %s" % (den, den))
    A("v_add_f32_dpp v%d, v%d, v%d row_ror:8 %s" % (U, U, U, DPP))
    a0 = "v125"
    A("v_mul_f32 %s, v%d, %s" % (a0, U, den))
    A("v_cvt_pk_bf16_f32 %s, %s, %s" % (a0, a0, a0))
    A("s_nop 1")
    WA = T
    for m in range(4):
        for r in range(4):
            A("v_and_b32_dpp v%d, %s, v%d row_newbcast:%d %s" % (WA + 4 * m + r, a0, MK + r, m, DPP))
        if m > 0:
            mfma(Y, WA + 4 * (m - 1), WOR + 4 * (m - 1), Y if (m > 1 or ndn_early) else None)
    if dnl:
        A("s_waitcnt vmcnt(0)")
        for a in range(ndn_early, 2):
            mfma(Y, HA + 4 * a, DNR + 4 * a, Y)
    else:
        A("s_nop 1")
    mfma(Y, WA + 12, WOR + 12, Y)
    A("s_mov_b32 exec_hi, 0")
    A("s_nop 6")
    for k in range(4):
        A("v_perm_b32 v%d, v%d, %s, s%d" % (Y + k, Y + k, vTAG, 56 + k))
    publish(vS25, Y, "h25")
    stamp(8)
    NP = o["np25"]
    PS = T + 16
    if o.get("ack25"): A("s_waitcnt vmcnt(0)")
    for _ in range(o.get("dly25", 0)): A("s_nop 7")
    for k in range(NP):
        A("global_load_dwordx4 v[%d:%d], %s, %s sc1" % (PS + 4 * k, PS + 4 * k + 3, vL25, sWS))
    LB("L_poll25")
    for k in range(NP):
        A("s_waitcnt vmcnt(%d)" % (NP - 1))
        for q in range(4):
            A("v_xor_b32 v%d, %s, v%d" % (P + q, TB[q], PS + 4 * k + q))
        A("v_or3_b32 %s, v%d, v%d, v%d" % (tA, P, P + 1, P + 2))
        A("v_or_b32_sdwa %s, %s, v%d dst_sel:DWORD dst_unused:UNUSED_PAD src0_sel:BYTE_0 src1_sel:BYTE_0" % (tA, tA, P + 3))
        A("v_cmp_ne_u32 vcc, 0, %s" % tA)
        if o["mask25"]:
            A("s_and_b64 exec, exec, vcc")
            A("s_cbranch_scc0 L_got25")
        else:
            A("s_cbranch_vccz L_got25")
        A("global_load_dwordx4 v[%d:%d], %s, %s sc1" % (PS + 4 * k, PS + 4 * k + 3, vL25, sWS))
    A("s_sub_u32 %s, %s, 1" % (sCNT, sCNT))
    A("s_cbranch_scc0 L_poll25")
    A("s_endpgm")
    LB("L_got25")
    A("s_mov_b64 exec, -1")
    stamp(9)
    x_, y_ = "v%d" % P, "v%d" % (P + 1)
    A("v_permlane16_swap_b32 v%d, v%d" % (P, P + 2))
    A("v_permlane16_swap_b32 v%d, v%d" % (P + 1, P + 3))
    A("v_add_f32 %s, %s, v%d" % (x_, x_, P + 2))
    A("v_add_f32 %s, %s, v%d" % (y_, y_, P + 3))
    fl = ["v_mov_b32 v%d, %s" % (P + 3, sTAG), "s_and_b32 %s, %s, 7" % (t0, sJ), "s_cmp_eq_u32 %s, %s" % (t0, sH), "s_nop 0"]
    for rot_ in (1, 2, 4, 8):
        A(fl.pop(0))
        A("v_add_f32_dpp %s, %s, %s row_ror:%d %s" % (x_, x_, x_, rot_, DPP))
        A("v_add_f32_dpp %s, %s, %s row_ror:%d %s" % (y_, y_, y_, rot_, DPP))
    A("s_cbranch_scc1 L_final")
    A("s_mov_b64 exec, 0x%x" % (0x30003 if o["rep3"] or o["vote"] else 0x10001))
    A("global_store_dwordx4 %s, v[%d:%d], %s sc1" % (vS3, P, P + 3, sWS))
    if o.get("wb"):
        A("s_or_b32 %s, %s, %s" % (t0, sW, sJ) if o["wb"] == 1 else "s_and_b32 %s, %s, 3" % (t0, sW))
        A("s_cmp_lg_u32 %s, %d" % (t0, 8 if o["wb"] == 1 else 0))
        A("s_cbranch_scc1 L_done")
        A("buffer_wbl2 sc1")
    A("s_branch L_done")
    LB("L_final")
    A("s_lshl_b32 %s, 0x10001, %s" % (t0, sH))
    A("s_andn2_b32 exec_lo, 0xff00ff, %s" % t0)
    A("s_mov_b32 exec_hi, 0")
    A("s_mov_b32 %s, %d" % (sCNT, o["spinmax"]))
    NP = o["np3"]
    PS = VR
    for k in range(NP):
        A("global_load_dwordx4 v[%d:%d], %s, %s sc1" % (PS + 4 * k, PS + 4 * k + 3, vL3, sWS))
    LB("L_poll3")
    for k in range(NP):
        A("s_waitcnt vmcnt(%d)" % (NP - 1))
        A("v_cmp_ne_u32 vcc, %s, v%d" % (sTAG, PS + 4 * k + 3))
        A("v_mov_b32 v%d, v%d" % (P, PS + 4 * k))
        A("v_mov_b32 v%d, v%d" % (P + 1, PS + 4 * k + 1))
        A("s_and_b64 exec, exec, vcc")
        A("s_cbranch_scc0 L_got3")
        A("global_load_dwordx4 v[%d:%d], %s, %s sc1" % (PS + 4 * k, PS + 4 * k + 3, vL3, sWS))
    A("s_sub_u32 %s, %s, 1" % (sCNT, sCNT))
    A("s_cbranch_scc0 L_poll3")
    A("s_endpgm")
    LB("L_got3")
    stamp(10)
    A("s_mov_b32 exec_lo, -1")
    A("v_lshlrev_b32 %s, 16, %s" % (tA, vXP))
    A("v_and_b32 %s, %s, %s" % (tB, t1, vXP))
    for pat in ("quad_perm:[1,0,3,2]", "quad_perm:[2,3,0,1]", "row_half_mirror"):
        A("v_add_f32_dpp %s, %s, %s %s %s" % (x_, x_, x_, pat, DPP))
        A("v_add_f32_dpp %s, %s, %s %s %s" % (y_, y_, y_, pat, DPP))
        if pat != "row_half_mirror": A("s_nop 0")
    A("v_add_f32 %s, %s, %s" % (x_, x_, tA))
    A("v_add_f32 %s, %s, %s" % (y_, y_, tB))
    if o.get("perturb"):
        import struct
        bits = struct.unpack("<I", struct.pack("<f", float(o["perturb"])))[0]
        if o.get("pall"):
            A("v_mul_f32 %s, 0x%x, %s" % (x_, bits, x_)); A("v_mul_f32 %s, 0x%x, %s" % (y_, bits, y_))
        else:
            A("s_or_b32 %s, s2, %s" % (t0, sW))
            A("s_cselect_b32 %s, 0, 0x%x" % (t0, bits))
            A("v_add_f32 %s, %s, %s" % (x_, t0, x_))
    A("v_cvt_pk_bf16_f32 %s, %s, %s" % (x_, x_, y_))
    A("s_mov_b64 exec, 0x10001")
    A("global_store_dword %s, %s, %s" % (vXF, x_, sOUT))
    A("s_or_b32 %s, s2, %s" % (t0, sW))
    A("s_cbranch_scc1 L_done")
    C("the next launch must not mistake this launch's hand-off words for its own")
    A("v_mov_b32 %s, 0" % tA)
    A("v_mov_b32 %s, %s" % (tB, sTAG))
    A("global_store_dword %s, %s, %s sc1" % (tA, tB, sWS))
    LB("L_done")
    if o.get("lateh") is not None:
        A("s_or_b32 %s, s2, %s" % (t0, sW))
        A("s_cbranch_scc1 L_nolate")
        A("s_mov_b64 exec, -1")
        A("v_and_b32 v2, 7, v0")
        A("v_lshlrev_b32 v2, 2, v2")
        A("global_load_dword v3, v2, s[24:25] sc1")
        A("s_waitcnt vmcnt(0)")
        for g_ in range(8): A("v_readlane_b32 s%d, v3, %d" % (64 + g_, g_))
        A("s_nop 3")
        for g_ in range(8): A("s_sub_u32 s%d, s%d, s90" % (64 + g_, 64 + g_))
        A("s_mov_b32 s72, s64")
        for g_ in range(1, 8): A("s_min_i32 s72, s72, s%d" % (64 + g_))
        if o["lateh"] == 8:
            A("s_mov_b32 s88, s64")
            for g_ in range(1, 8): A("s_max_i32 s88, s88, s%d" % (64 + g_))
        else:
            A("s_mov_b32 s88, s%d" % (64 + o["lateh"]))
        A("s_sub_u32 s88, s88, s72")
        A("s_mul_i32 s88, s88, 20")
        A("s_min_u32 s88, s88, 20000")
        A("s_add_u32 s88, s88, 1500")
        A("s_add_u32 s88, s88, s72")
        LB("L_latespin")
        A("s_memrealtime s[92:93]")
        A("s_waitcnt lgkmcnt(0)")
        A("s_sub_u32 s92, s92, s90")
        A("s_cmp_lt_u32 s92, s88")
        A("s_cbranch_scc1 L_latespin")
        LB("L_nolate")
    if o.get("amp"):
        if o["amp"] == "end": A("s_memrealtime s[88:89]")
        A("s_waitcnt lgkmcnt(0)")
        A("s_sub_u32 s88, s88, %s" % ("s86" if o.get("amp0") else "s90"))
        A("s_mul_i32 s88, s88, %d" % o.get("ampk", 10))
        A("s_min_u32 s88, s88, 20000")
        A("s_add_u32 s88, s88, 1500")
        LB("L_ampspin")
        A("s_memrealtime s[92:93]")
        A("s_waitcnt lgkmcnt(0)")
        A("s_sub_u32 s92, s92, s90")
        A("s_cmp_lt_u32 s92, s88")
        A("s_cbranch_scc1 L_ampspin")
    if o.get("pad"):
        LB("L_padspin")
        A("s_memrealtime s[92:93]")
        A("s_waitcnt lgkmcnt(0)")
        A("s_sub_u32 s92, s92, s90")
        A("s_cmp_lt_u32 s92, %d" % o["pad"])
        A("s_cbranch_scc1 L_padspin")
    dump_stamps()
    A("s_endpgm")
    for name, addr, g in tails:
        LB("L_slow_%s" % name)
        A("global_store_dwordx4 %s, v[%d:%d], %s sc1" % (addr, g, g + 3, sWS))
        A("s_branch L_back_%s" % name)
    LB("L_end")
    A("s_endpgm")
    head = HEADER.format(lds=o.get("lds", LDS_BYTES), k=KNAME); foot = FOOTER.format(k=KNAME, vg=o.get("vg", 168), sg=96)
    if o["align"]: L = align_runs(L, head, foot, o.get("minrun", 3), o.get("nopmin", 6))
    return head + "\n".join(L) + foot


if __name__ == "__main__":
    kw = {}
    out = "parallel_sum__sliding_block_cached__swiglu_ffn__decode.s"
    for a in sys.argv[1:]:
        k, v = a.split("=", 1)
        if k == "out": out = v; continue
        try: v = int(v)
        except ValueError: pass
        kw[k] = v
    open(out, "w").write(gen(**kw))
```

```python
import sys

KNAME = "parallel_sum__sliding_block_cached__swiglu_ffn__decode_kernel"

HEADER = """; Kernarg layout for this problem (96 bytes, ptrs only, base s[0:1]):
;   offset  72: d_out     shape=(1, 1, 512) dtype=bfloat16
; @launch grid=(256,1,1) block=(320,1,1) lds={lds}
.amdgcn_target "amdgcn-amd-amdhsa--gfx950"
.text
.globl {k}
.p2align 8
.type {k},@function
{k}:
"""
FOOTER = """
.section .rodata,"a"
.p2align 6
.amdhsa_kernel {k}
  .amdhsa_next_free_vgpr {vg}
  .amdhsa_next_free_sgpr {sg}
  .amdhsa_accum_offset {vg}
  .amdhsa_group_segment_fixed_size 0
  .amdhsa_kernarg_size 96
  .amdhsa_user_sgpr_count 2
  .amdhsa_user_sgpr_kernarg_segment_ptr 1
  .amdhsa_system_sgpr_workgroup_id_x 1
.end_amdhsa_kernel
"""

MB1A = 0x40000
MB1B = 0x80000
MB2 = 0x100000
MB25 = 0x180000
MB3 = 0x200000
STAMPS = 0x10000000
L_WQ = 0
L_FF = 16384
L_XN = 32768
L_Q = 33792
L_H = 34816
L_FLAG = 34848
L_VOTE = 34864
L_ML = 34880
L_O = 35072
L_K = L_O + 8192
L_K = (L_K + 1023) // 1024 * 1024
LDS_BYTES = L_K + 32768
TAGC = 0x9E3779B9
LOG2E = 0x3FB8AA3B
SCALE = 0x3DB504F3
EPS = 0x3727C5AC
DPP = "row_mask:0xf bank_mask:0xf"

DEF = dict(stamps=False, spinmax=200000, WK=6, W=5, Wtail=8, b0pos=45, nt="nt", pretouch="k", atries=24,
           prefetch=True, b2=7, ntail0=0, tlag=0, mask2=False, pt1=True, rotm=4, rep3=False, tsp="", auxearly=True, hlate=False, vote=True, np25=1, np3=1, ack25=1, align=1, unr=2, mask25=False, lperm=0, nlv="43434343")


def _sizes(text):
    import subprocess, tempfile, os, re
    d = tempfile.mkdtemp()
    open(d + "/a.s", "w").write(text)
    subprocess.run(["clang", "-x", "assembler", "-target", "amdgcn-amd-amdhsa", "-mcpu=gfx950", "-c", d + "/a.s", "-o", d + "/a.o"], check=True)
    out = subprocess.run(["llvm-objdump", "-d", "--mcpu=gfx950", d + "/a.o"], capture_output=True, text=True).stdout
    r = []
    for ln in out.split("\n"):
        m = re.search(r"^\s+(\S+).*// ([0-9A-F]{12}): ((?:[0-9A-F]{8} ?)+)", ln)
        if m: r.append((m.group(1), 4 * len(m.group(3).split())))
    return r


def align_runs(L, head, foot, minrun=3, nopmin=6):
    ins = [i for i, l in enumerate(L) if l.startswith("    ") and not l.strip().startswith(";")]
    sz = _sizes(head + "\n".join(L) + foot)
    assert len(sz) == len(ins), (len(sz), len(ins))
    size = {i: s_[1] for i, s_ in zip(ins, sz)}
    mn = {i: s_[0] for i, s_ in zip(ins, sz)}
    out = list(L); extra = {}
    off = 0; k = 0
    while k < len(ins):
        i = ins[k]
        if size[i] == 8 and off % 8 == 4:
            run = 0
            while k + run < len(ins) and size[ins[k + run]] == 8: run += 1
            if run >= minrun:
                b = k - 1; done = False
                while b >= 0 and size[ins[b]] == 4:
                    j = ins[b]
                    if mn[j] == "s_nop" and int(out[j].split()[1]) >= 1:
                        out[j] = "    s_nop 0\n    s_nop %d" % (int(out[j].split()[1]) - 1)
                        size[j] = 8; off += 4; done = True
                        break
                    if mn[j].endswith("_e32") and not mn[j].startswith(("v_readfirstlane", "v_permlane")):
                        op = out[j].split()[0]
                        out[j] = out[j].replace(op, op.replace("_e32", "") + "_e64", 1)
                        size[j] = 8; off += 4; done = True
                        break
                    b -= 1
                if not done and run >= nopmin and k > 0 and not mn[ins[k - 1]].startswith(("s_branch", "s_endpgm")):
                    extra[i] = True; off += 4; done = True
                if not done and k > 0 and mn[ins[k - 1]].startswith(("s_branch", "s_endpgm")):
                    extra[ins[k - 1] + 1] = True; off += 4
            for q in range(run): off += 8
            k += run
            continue
        off += size[i]; k += 1
    res = []
    for i, l in enumerate(out):
        if i in extra: res.append("    s_nop 0")
        res.append(l)
    return res


def gen(**kw):
    o = dict(DEF); o.update(kw)
    L = []
    def A(s): L.append("    " + s)
    def LB(s): L.append(s + ":")
    def C(s): L.append("    ; " + s)
    nt = o["nt"]
    NSTAMP = 12
    role = ["U"]
    def stamp(i):
        if o.get("amp") == "%s%d" % (role[0], i): A("s_memrealtime s[88:89]" if not o.get("cyc") else "s_memtime s[88:89]")
        if o.get("amp0") == "%s%d" % (role[0], i): A("s_memrealtime s[86:87]" if not o.get("cyc") else "s_memtime s[86:87]")
        if o["stamps"] and (i in (0, 11) or o.get("sel") is None or ("%s%d" % (role[0], i)) in o["sel"].split(",")):
            A("s_memrealtime s[%d:%d]" % (64 + 2 * i, 65 + 2 * i))
    def mfma(d, a, b, c):
        A("v_mfma_f32_16x16x32_bf16 v[%d:%d], v[%d:%d], v[%d:%d], %s" % (d, d + 3, a, a + 3, b, b + 3, "0" if c is None else "v[%d:%d]" % (c, c + 3)))
    def mfma16(d, a, b, c):
        A("v_mfma_f32_16x16x16_bf16 v[%d:%d], v[%d:%d], v[%d:%d], %s" % (d, d + 3, a, a + 1, b, b + 1, "0" if c is None else "v[%d:%d]" % (c, c + 3)))
    def allred(v, tmp, op, which):
        A("v_mov_b32 %s, %s" % (tmp, v))
        A("s_nop 1")
        A("v_permlane%d_swap_b32 %s, %s" % (which, tmp, v))
        A("%s %s, %s, %s" % (op, v, v, tmp))
    sX, sK, sV, sWQ, sWO, sG, sU, sDN, sOUT, sWS = "s[4:5]", "s[6:7]", "s[8:9]", "s[10:11]", "s[12:13]", "s[16:17]", "s[18:19]", "s[20:21]", "s[22:23]", "s[26:27]"
    sW, sH, sJ, sTAG, sXCC, sCNT, sFAST = "s30", "s31", "s32", "s33", "s34", "s35", "s36"
    t0, t1, t2, t3 = "s37", "s38", "s39", "s40"
    def dump_stamps():
        if not o["stamps"]: return
        if role[0] == "U" and o.get("sel") is not None and "U" not in o["sel"]: return
        A("s_mov_b64 exec, 1")
        stamp(11)
        A("s_waitcnt lgkmcnt(0)")
        A("s_mul_i32 %s, s2, 5" % t0)
        A("s_add_u32 %s, %s, %s" % (t0, t0, sW))
        A("s_lshl_b32 %s, %s, 7" % (t0, t0))
        A("s_add_u32 %s, %s, 0x%x" % (t0, t0, STAMPS))
        A("v_mov_b32 v2, %s" % t0)
        for i in range(NSTAMP):
            A("v_mov_b32 v3, s%d" % (64 + 2 * i))
            A("global_store_dword v2, v3, %s offset:%d" % (sWS, 4 * i))
        A("v_mov_b32 v3, %s" % ("s63" if role[0] == "U" and o["vote"] else sCNT))
        A("global_store_dword v2, v3, %s offset:%d" % (sWS, 4 * NSTAMP))
        if o.get("dbgfail"):
            for q_, r_ in enumerate(("s84", "s62", "s63")):
                A("v_mov_b32 v3, %s" % r_)
                A("global_store_dword v2, v3, %s offset:%d" % (sWS, 4 * NSTAMP + 8 + 4 * q_))
        A("s_getreg_b32 %s, hwreg(HW_REG_HW_ID)" % t1)
        A("v_mov_b32 v3, %s" % t1)
        A("global_store_dword v2, v3, %s offset:%d" % (sWS, 4 * NSTAMP + 4))

    nlv = [int(c) for c in str(o["nlv"])]
    assert len(nlv) == 8 and sum(nlv) == 28 and min(nlv) >= 0 and max(nlv) <= 4
    LUT_d = sum((4 - n) << (4 * i) for i, n in enumerate(nlv))
    LUT_D = sum((4 * i - sum(nlv[:i])) << (4 * i) for i in range(8))
    def ffn_share(l0, d):
        A("s_lshl_b32 %s, %s, 2" % (l0, sH))
        A("s_lshr_b32 %s, 0x%x, %s" % (d, LUT_D, l0))
        A("s_and_b32 %s, %s, 7" % (d, d))
        A("s_sub_u32 s3, %s, %s" % (l0, d))
        A("s_lshr_b32 %s, 0x%x, %s" % (d, LUT_d, l0))
        A("s_and_b32 %s, %s, 7" % (d, d))
    stamp(0)
    if o.get("pad") or o.get("bal") or o.get("amp") or o.get("lateh") is not None: A("s_memrealtime s[90:91]")
    A("s_cmp_ge_u32 s2, 256")
    A("s_cbranch_scc1 L_end")
    A("s_load_dwordx16 s[4:19], s[0:1], 0")
    A("s_load_dwordx8 s[20:27], s[0:1], 64")
    A("v_lshrrev_b32 v1, 6, v0")
    A("v_and_b32 v0, 63, v0")
    A("v_readfirstlane_b32 %s, v1" % sW)
    A("s_and_b32 %s, s2, 7" % sH)
    A("s_lshr_b32 %s, s2, 3" % sJ)
    if o.get("bal") or o.get("lateh") is not None:
        A("s_or_b32 %s, %s, %s" % (t0, sJ, sW))
        A("s_cbranch_scc1 L_noflag")
        A("s_lshl_b32 %s, %s, 2" % (t0, sH))
        A("v_mov_b32 v108, %s" % t0)
        A("s_waitcnt lgkmcnt(0)")
        A("s_or_b32 %s, s90, 1" % t0)
        A("v_mov_b32 v109, %s" % t0)
        A("global_store_dword v108, v109, s[24:25] sc1")
        LB("L_noflag")
    A("s_cmp_eq_u32 %s, 4" % sW)
    A("s_cbranch_scc0 %s" % ("L_race" if o["vote"] else "L_attn"))

    C("wave 4: layernorm, one [128 x 64] tile of wq and one of gate/up, exchange of q and of the FFN hidden values")
    A("s_setprio 3")
    if o["prefetch"]:
        A("s_getpc_b64 s[28:29]")
        LB("L_pc")
        A("v_lshlrev_b32 v2, 7, v0")
        A("v_min_u32 v2, L_end-L_pc, v2")
        A("global_load_dword v127, v2, s[28:29]")
    sQK, sNOFF = "s50", "s51"
    A("v_lshlrev_b32 v3, 4, v0")
    A("v_lshrrev_b32 v6, 3, v0")
    A("v_and_b32 v5, 2, v6")
    A("v_and_b32 v7, 7, v0")
    A("v_xor_b32 v5, v5, v7")
    A("v_lshlrev_b32 v7, 4, v5")
    A("s_and_b32 %s, %s, 3" % (sQK, sJ))
    A("s_lshl_b32 %s, %s, 10" % (t0, sH))
    if o["lperm"]:
        A("s_andn2_b32 %s, %s, 3" % (t1, sJ))
        A("s_lshr_b32 %s, 0x%x, %s" % (t1, o["lperm"], t1))
        A("s_and_b32 s55, %s, 7" % t1)
    else:
        A("s_lshr_b32 s55, %s, 2" % sJ)
    A("s_lshl_b32 %s, s55, 7" % t1)
    A("s_lshl_b32 %s, %s, 20" % (t2, sQK))
    A("s_add_u32 %s, %s, %s" % (t0, t0, t1))
    A("s_add_u32 %s, %s, %s" % (t0, t0, t2))
    A("v_lshl_add_u32 v4, v6, 13, v7")
    A("v_add_u32 v4, %s, v4" % t0)
    A("v_xor_b32 v5, 64, v4")
    A("v_add_u32 v5, 0x10000, v5")
    A("s_mov_b32 m0, %d" % L_WQ)
    A("s_mov_b32 %s, 0x20000" % t1)
    if o.get("ucontig"):
        A("s_lshl_b32 %s, s2, 10" % t0)
        A("v_add_u32 v4, %s, v3" % t0)
        A("v_add_u32 v5, 0x40000, v4")
        A("s_mov_b32 %s, 0x80000" % t1)
    A("s_movk_i32 s41, 1024")
    A("s_waitcnt lgkmcnt(0)")
    A("global_load_dwordx4 v[8:11], v3, %s" % sX)
    A("s_load_dword %s, %s, 0" % (sTAG, sWS))
    def dma_loop(name, base, step):
        A("s_mov_b32 %s, %d" % (t2, 16 // o["unr"]))
        LB(name)
        for i in range(o["unr"]):
            vv = ("v4", "v5")[i & 1]
            A("global_load_lds_dwordx4 %s, %s %s" % (vv, base, nt))
            A("s_add_u32 m0, m0, s41")
            A("v_add_u32 %s, %s, %s" % (vv, step, vv))
        A("s_sub_u32 %s, %s, 1" % (t2, t2))
        A("s_cmp_lg_u32 %s, 0" % t2)
        A("s_cbranch_scc1 %s" % name)
    dma_loop("L_wq_loop", sWQ, t1)
    if o["b0pos"] == 16: A("s_barrier")
    ffn_share(t0, t3)
    A("s_lshr_b32 %s, %s, 3" % (t1, sJ))
    A("s_add_u32 %s, s3, %s" % (t0, t1))
    A("s_add_u32 %s, %s, %s" % (sNOFF, t1, t3))
    A("s_mul_i32 %s, %s, 3584" % (t1, sQK))
    A("s_add_u32 %s, %s, %s" % (t0, t0, t1))
    A("s_lshl_b32 %s, %s, 7" % (t0, t0))
    A("v_mul_u32_u24 v4, 3584, v6")
    A("v_add3_u32 v4, v4, v7, %s" % t0)
    A("v_xor_b32 v5, 64, v4")
    A("v_add_u32 v5, %d, v5" % (8 * 3584))
    A("s_mov_b32 %s, %d" % (t1, 16 * 3584))
    if o.get("ucontig"):
        A("s_lshr_b32 %s, s2, 1" % t0)
        A("s_min_u32 %s, %s, 111" % (t0, t0))
        A("s_lshl_b32 %s, %s, 10" % (t0, t0))
        A("v_add_u32 v4, %s, v3" % t0)
        A("v_add_u32 v5, %d, v4" % (112 * 1024))
        A("s_mov_b32 %s, %d" % (t1, 224 * 1024))
    A("s_bitcmp0_b32 %s, %d" % (("s2", 0) if o.get("ucontig") else (sJ, 2)))
    A("s_cselect_b64 s[42:43], %s, %s" % (sG, sU))
    A("s_cmp_ge_u32 %s, 4" % sNOFF)
    A("s_cselect_b64 exec, 1, -1")
    dma_loop("L_ff_loop", "s[42:43]", t1)
    A("s_mov_b64 exec, -1")
    if o["vote"]:
        A("s_branch L_unit2")
        LB("L_race")
        C("which of the two copies of the last hand-off lives nearer to this die: race two cold scalar loads of this wave's own lines")
        A("s_lshl_b32 %s, s2, 2" % t0)
        A("s_add_u32 %s, %s, %s" % (t0, t0, sW))
        A("s_lshr_b32 %s, %s, 6" % (t1, t0))
        A("s_lshl_b32 %s, %s, 14" % (t1, t1))
        A("s_and_b32 %s, %s, 63" % (t0, t0))
        A("s_lshl_b32 %s, %s, 7" % (t0, t0))
        A("s_add_u32 %s, %s, %s" % (t0, t0, t1))
        A("s_bitset1_b32 %s, 21" % t0)
        A("s_lshl_b32 %s, %s, 13" % (t1, sW))
        A("s_and_b32 %s, %s, 0x2000" % (t1, t1))
        A("s_or_b32 s46, %s, %s" % (t0, t1))
        A("s_xor_b32 s47, s46, 0x2000")
        A("s_movk_i32 s28, 0x5bd1")
        A("s_movk_i32 s29, 0x5bd1")
        A("s_waitcnt lgkmcnt(0)")
        A("s_load_dword s28, %s, s46" % sWS)
        A("s_load_dword s29, %s, s47" % sWS)
        A("s_waitcnt lgkmcnt(1)")
        A("s_mov_b64 s[48:49], s[28:29]")
        LB("L_race_done")
        A("s_cmpk_lg_i32 s48, 0x5bd1")
        A("s_cselect_b32 %s, 1, 0" % t0)
        A("s_cmpk_lg_i32 s49, 0x5bd1")
        A("s_cselect_b32 %s, 1, 0" % t2)
        A("s_sub_i32 %s, %s, %s" % (t0, t0, t2))
        A("s_sub_i32 %s, 0, %s" % (t2, t0))
        A("s_cmp_eq_u32 %s, 0" % t1)
        A("s_cselect_b32 %s, %s, %s" % (t0, t0, t2))
        A("s_lshl_b32 %s, %s, 2" % (t2, sW))
        A("v_mov_b32 v158, %s" % t2)
        A("v_mov_b32 v159, %s" % t0)
        A("ds_write_b32 v158, v159 offset:%d" % L_VOTE)
        A("s_branch L_attn")
        LB("L_unit2")
    if o["pt1"]:
        C("pull this workgroup's own hand-off lines into L2 before anyone polls them")
        A("s_lshl_b32 %s, %s, 15" % (t0, sH))
        A("s_lshl_b32 %s, %s, 8" % (t1, sJ))
        A("s_add_u32 %s, %s, %s" % (t0, t0, t1))
        A("s_add_u32 %s, %s, 0x%x" % (t0, t0, MB1A))
        A("v_and_b32 v33, 1, v0")
        A("v_bfe_u32 v32, v0, 1, 1")
        A("v_lshlrev_b32 v33, 7, v33")
        A("v_lshl_add_u32 v33, v32, 13, v33")
        A("s_mul_i32 %s, %s, 240" % (t1, sJ))
        A("s_sub_u32 %s, 0x4000, %s" % (t1, t1))
        A("v_cmp_lt_u32 vcc, 3, v0")
        A("v_mov_b32 v32, %s" % t1)
        A("s_nop 0")
        A("v_cndmask_b32 v33, v33, v32, vcc")
        A("v_add_u32 v33, %s, v33" % t0)
        A("global_load_dword v119, v33, %s sc1" % sWS)
    def tlbwarm():
        C("first touch of the pages the later loads use (address translation early, off their queue)")
        A("s_lshl_b32 %s, %s, 24" % (t0, sH))
        A("s_add_u32 %s, %s, 0xF00000" % (t0, t0))
        A("v_mov_b32 v112, %s" % t0)
        A("s_lshl_b32 %s, %s, 19" % (t0, sH))
        A("v_mov_b32 v113, %s" % t0)
        A("s_mul_i32 %s, %s, 0x38000" % (t0, sH))
        A("v_mov_b32 v114, %s" % t0)
        A("v_mov_b32 v115, 0x%x" % MB3)
        A("s_mov_b64 exec, 1")
        A("global_load_dword v116, v112, %s" % sK)
        A("global_load_dword v117, v112, %s" % sV)
        A("global_load_dword v118, v113, %s" % sWO)
        A("global_load_dword v111, v114, %s" % sDN)
        A("global_load_dword v110, v115, %s" % sWS)
        A("s_mov_b64 exec, -1")
    NW = 1 if o["pt1"] else 0
    if o.get("tlbw") == 2:
        tlbwarm(); NW += 5
    if o["b0pos"] == 32:
        if o.get("b0wait") is not None: A("s_waitcnt vmcnt(%d)" % o["b0wait"])
        A("s_barrier")
    stamp(1)
    XF = 12
    A("s_mov_b32 %s, 0xffff0000" % t1)
    A("s_waitcnt vmcnt(%d)" % (32 + NW))
    stamp(2)
    C("layernorm with the reference's bf16 roundings")
    for i in range(4):
        A("v_lshlrev_b32 v%d, 16, v%d" % (XF + 2 * i, 8 + i))
        A("v_and_b32 v%d, %s, v%d" % (XF + 2 * i + 1, t1, 8 + i))
    fill = []
    def F(s): fill.append(s)
    def nop2():
        n = 0
        while fill and n < 2:
            A(fill.pop(0)); n += 1
        if n < 2: A("s_nop %d" % (1 - n))
    TRB = 120
    vAX, vS1, vL1, vL1x, vL1a, vF, vTN, vTB = "v34", "v35", "v36", "v37", "v38", "v39", "v124", "v125"
    sRP, sB1 = "s52", "s53"
    F("v_lshrrev_b32 v126, 4, v0")
    F("v_bfe_u32 v4, v0, 2, 2")
    F("v_lshl_add_u32 v5, v126, 3, v4")
    F("v_and_b32 v6, 3, v0")
    F("v_lshlrev_b32 v7, 3, v6")
    F("v_lshl_add_u32 v5, v5, 7, v7")
    F("v_bfe_u32 v4, v0, 3, 2")
    for ct in range(4):
        F("v_xor_b32 v7, %d, v4" % ct)
        F("v_lshl_add_u32 v%d, v7, 5, v5" % (TRB + ct))
    F("s_lshl_b32 %s, %s, 8" % (t0, sQK))
    F("v_lshl_add_u32 %s, v126, 4, %s" % (vAX, t0))
    F("s_lshl_b32 %s, %s, 15" % (sB1, sH))
    F("s_add_u32 %s, %s, 0x%x" % (sB1, sB1, MB1A))
    def wavesum(v, tmp):
        for rot in (1, 2, 4, 8):
            nop2()
            A("v_add_f32_dpp %s, %s, %s row_ror:%d %s" % (v, v, v, rot, DPP))
        for which in (16, 32):
            A("v_mov_b32 %s, %s" % (tmp, v))
            nop2()
            A("v_permlane%d_swap_b32 %s, %s" % (which, tmp, v))
            A("v_add_f32 %s, %s, %s" % (v, v, tmp))
    def P2(r): return "v[%d:%d]" % (r, r + 1)
    A("v_pk_add_f32 v[22:23], %s, %s" % (P2(XF), P2(XF + 2)))
    A("v_pk_add_f32 v[24:25], %s, %s" % (P2(XF + 4), P2(XF + 6)))
    A("v_pk_add_f32 v[22:23], v[22:23], v[24:25]")
    A("v_add_f32 v22, v22, v23")
    wavesum("v22", "v23")
    A("v_mul_f32 v22, 0x3b000000, v22")
    DV = 24
    for i in range(4):
        A("v_pk_add_f32 %s, %s, v[22:23] op_sel_hi:[1,0] neg_lo:[0,1] neg_hi:[0,1]" % (P2(DV + 2 * i), P2(XF + 2 * i)))
    A("v_cvt_pk_bf16_f32 v22, 0, v22")
    A("v_pk_mul_f32 v[32:33], %s, %s" % (P2(DV), P2(DV)))
    for i in range(1, 4):
        A("v_pk_fma_f32 v[32:33], %s, %s, v[32:33]" % (P2(DV + 2 * i), P2(DV + 2 * i)))
    A("v_add_f32 v32, v32, v33")
    pre = ["v_pk_add_f32 %s, %s, v[22:23] op_sel_hi:[1,0] neg_lo:[0,1] neg_hi:[0,1]" % (P2(XF + 2 * i), P2(XF + 2 * i)) for i in range(4)]
    pre += ["v_cvt_pk_bf16_f32 v%d, 0, v%d" % (XF + i, XF + i) for i in range(8)]
    rest = fill[:]; fill[:] = pre
    wavesum("v32", "v33")
    fill[:] = fill + rest
    A("v_mul_f32 v32, 0x3b000000, v32")
    A("v_cvt_pk_bf16_f32 v32, 0, v32")
    A("v_add_f32 v32, 0x%x, v32" % EPS)
    A("v_cvt_pk_bf16_f32 v32, 0, v32")
    A("v_sqrt_f32 v32, v32")
    A(fill.pop(0))
    A("v_cvt_pk_bf16_f32 v32, 0, v32")
    A("v_rcp_f32 v32, v32")
    A(fill.pop(0))
    for i in range(4):
        A("v_pk_mul_f32 %s, %s, v[32:33] op_sel_hi:[1,0]" % (P2(XF + 2 * i), P2(XF + 2 * i)))
    for i in range(4):
        A("v_cvt_pk_bf16_f32 v%d, v%d, v%d" % (8 + i, XF + 2 * i, XF + 2 * i + 1))
    A("ds_write_b128 v3, v[8:11] offset:%d" % L_XN)
    while fill: A(fill.pop(0))
    A("s_lshl_b32 %s, s55, 2" % t2)
    A("s_add_u32 s55, %s, %s" % (t2, sQK))
    A("s_lshl_b32 %s, s55, 8" % t2)
    A("s_add_u32 %s, %s, %s" % (t2, t2, sB1))
    A("v_lshrrev_b32 v4, 2, v0")
    A("v_lshl_add_u32 %s, v4, 4, %s" % (vS1, t2))
    A("s_waitcnt lgkmcnt(0)")
    AF = 40
    for m in range(4):
        A("ds_read_b128 v[%d:%d], %s offset:%d" % (AF + 4 * m, AF + 4 * m + 3, vAX, L_XN + m * 64))
    A("s_add_u32 %s, %s, 0x%x" % (sTAG, sTAG, TAGC))
    A("v_lshlrev_b32 v4, 2, v6")
    A("v_lshrrev_b32 %s, v4, %s" % (vTN, sTAG))
    A("v_and_b32 %s, 15, %s" % (vTN, vTN))
    A("v_lshlrev_b32 v4, 3, v6")
    A("v_lshrrev_b32 %s, v4, %s" % (vTB, sTAG))
    A("v_and_b32 %s, 0xff, %s" % (vTB, vTB))
    A("s_mov_b32 s44, 0")
    A("s_mov_b32 s45, -1")
    if o["b0pos"] == 40: A("s_barrier")
    stamp(3)
    BF = 56
    D0 = 88
    GR = 24
    def gemv(lbase, vm0):
        def rd(m, ct):
            b = BF + 16 * (m & 1)
            for hh in range(2):
                A("ds_read_b64_tr_b16 v[%d:%d], v%d offset:%d" % (b + 4 * ct + 2 * hh, b + 4 * ct + 2 * hh + 1, TRB + ct, lbase + m * 4096 + hh * 512))
        A("s_waitcnt vmcnt(%d)" % (vm0 + 12))
        for ct in range(4): rd(0, ct)
        for m in range(4):
            b = BF + 16 * (m & 1)
            if m < 3: A("s_waitcnt vmcnt(%d)" % (vm0 + 8 - 4 * m))
            if lbase == L_WQ and o["b0pos"] == 41 + m: A("s_barrier")
            for ct in range(4):
                A("s_waitcnt lgkmcnt(%d)" % (6 if m < 3 else 6 - 2 * ct))
                mfma(D0 + 4 * ct, AF + 4 * m, b + 4 * ct, None if m == 0 else D0 + 4 * ct)
                if m < 3: rd(m + 1, ct)
    def pack(maskc, vt):
        A("s_mov_b32 vcc_lo, 0xffff0000")
        A("s_mov_b32 vcc_hi, 0xffff0000")
        A("s_movk_i32 %s, 0x%x" % (t0, maskc))
        A("s_nop 2")
        A("v_cndmask_b32 v%d, v%d, v%d, vcc" % (GR, D0, D0 + 4))
        A("s_nop 0")
        A("v_cndmask_b32 v%d, v%d, v%d, vcc" % (GR + 1, D0 + 8, D0 + 12))
        A("v_cndmask_b32 v%d, v%d, v%d, s[44:45]" % (GR, GR, GR + 1))
        A("v_and_or_b32 v%d, v%d, %s, %s" % (GR, GR, t0, vt))
        A("v_add_u32 v22, 0x%x, %s" % (MB1B - MB1A, vS1))
        A("s_nop 0")
        for k in range(1, 4):
            A("v_mov_b32_dpp v%d, v%d quad_perm:[%d,%d,%d,%d] %s" % (GR + k, GR, k, k, k, k, DPP))
        A("s_mov_b32 exec_lo, 0x11111111")
        A("s_mov_b32 exec_hi, 0x11111111")
        A("global_store_dwordx4 %s, v[%d:%d], %s" % (vS1, GR, GR + 3, sWS))
        A("global_store_dwordx4 v22, v[%d:%d], %s sc1" % (GR, GR + 3, sWS))
        A("s_mov_b64 exec, -1")
    gemv(L_WQ, 16 + NW)
    if o["b0pos"] == 45: A("s_barrier")
    pack(0xfff0, vTN)
    if o["b0pos"] == 47: A("s_barrier")
    stamp(4)
    XG = 28
    if o["vote"]:
        assert o["b0pos"] <= 47 and not o["hlate"]
        A("v_mov_b32 v4, 0")
        A("ds_read_b128 v[112:115], v4 offset:%d" % L_VOTE)
    A("s_getreg_b32 %s, hwreg(HW_REG_XCC_ID, 0, 4)" % sXCC)
    A("s_and_b32 %s, %s, 0xff" % (t0, sTAG))
    A("s_lshl_b32 %s, %s, 8" % (t2, sXCC))
    A("s_or_b32 s54, %s, %s" % (t0, t2))
    A("v_mov_b32 v%d, s54" % XG)
    for k in range(1, 4):
        A("s_bfe_u32 %s, %s, 0x%x" % (t0, sTAG, 0x80000 | (8 * k)))
        A("v_mov_b32 v%d, %s" % (XG + k, t0))
    if o["vote"]:
        A("s_waitcnt lgkmcnt(0)")
        A("v_add3_u32 v112, v112, v113, v114")
        A("v_add_u32 v112, v112, v115")
        A("v_lshl_add_u32 v%d, v112, 8, v%d" % (XG + 1, XG + 1))
    A("s_lshl_b32 %s, %s, 4" % (t2, sJ))
    A("s_add_u32 %s, %s, %s" % (t2, t2, sB1))
    A("s_add_u32 %s, %s, 0x4000" % (t2, t2))
    A("v_mov_b32 v22, %s" % t2)
    A("v_add_u32 v23, 0x%x, v22" % (MB1B - MB1A))
    A("s_mov_b64 exec, 1")
    A("global_store_dwordx4 v22, v[%d:%d], %s" % (XG, XG + 3, sWS))
    A("global_store_dwordx4 v23, v[%d:%d], %s sc1" % (XG, XG + 3, sWS))
    A("s_mov_b64 exec, -1")
    if o["b0pos"] == 50: A("s_barrier")
    A("s_sub_i32 %s, %s, s55" % (t2, sJ))
    A("s_lshl_b32 %s, %s, 8" % (t2, t2))
    A("s_add_u32 %s, %s, 0x2000" % (t2, t2))
    A("v_add_u32 %s, %s, %s" % (vS1, t2, vS1))
    A("s_cmp_ge_u32 %s, 4" % sNOFF)
    A("s_cbranch_scc1 L_noff2")
    gemv(L_FF, 4 + NW)
    pack(0xff00, vTB)
    LB("L_noff2")
    stamp(7)
    if o.get("nosync"):
        A("s_barrier")
        A("s_mov_b32 %s, 0" % sCNT)
        dump_stamps()
        A("s_endpgm")
    A("v_and_b32 v4, 15, v0")
    A("v_lshlrev_b32 v4, 4, v4")
    A("v_lshl_add_u32 v4, v126, 10, v4")
    A("s_add_u32 %s, %s, 2432" % (t0, sB1))
    A("v_add_u32 %s, %s, v4" % (vL1, t0))
    A("v_and_b32 v4, 31, v0")
    A("s_add_u32 %s, %s, 0x4000" % (t0, sB1))
    A("v_lshl_add_u32 %s, v4, 4, %s" % (vL1x, t0))
    A("s_lshl_b32 %s, %s, 1" % (t2, t3))
    A("s_sub_u32 %s, 8, %s" % (sRP, t2))
    A("s_mul_i32 %s, %s, %s" % (t2, sRP, sJ))
    A("s_sub_u32 %s, %s, 1" % (t0, sRP))
    A("v_and_b32 v4, 7, v0")
    A("v_min_u32 v4, %s, v4" % t0)
    A("v_add_u32 %s, %s, v4" % (vF, t2))
    A("v_lshrrev_b32 v4, 6, %s" % vF)
    A("v_bfe_u32 v5, v0, 3, 1")
    A("v_lshl_add_u32 v4, v4, 1, v5")
    A("v_lshl_add_u32 v4, v4, 2, v126")
    A("v_bfe_u32 v5, %s, 2, 4" % vF)
    A("v_lshlrev_b32 v5, 4, v5")
    A("v_lshl_add_u32 v4, v4, 8, v5")
    A("s_add_u32 %s, %s, 0x2000" % (t0, sB1))
    A("v_add_u32 %s, %s, v4" % (vL1a, t0))
    if min(nlv) == 0:
        A("s_cmp_lg_u32 %s, 0" % sRP)
        A("s_cbranch_scc1 L_has_ffn")
        A("v_mov_b32 %s, %s" % (vL1a, vL1x))
        LB("L_has_ffn")
    for k in range(4):
        A("s_bfe_u32 s%d, %s, 0x%x" % (56 + k, sTAG, 0x40000 | (4 * k)))
    A("s_movk_i32 s62, 255")
    A("s_mov_b32 s60, 0x0c0c0400")
    A("s_mov_b32 s61, 0x04000c0c")
    P = 40
    PX, PA_ = 72, 76
    A("s_mov_b32 %s, 0" % sCNT)
    def switch_copy(regs):
        A("s_add_u32 %s, %s, 1" % (sCNT, sCNT))
        A("s_cmp_eq_u32 %s, %d" % (sCNT, o["atries"]))
        A("s_cselect_b32 %s, 0x%x, 0" % (t0, MB1B - MB1A))
        for r in regs: A("v_add_u32 %s, %s, %s" % (r, t0, r))
        A("s_cmp_gt_u32 %s, %d" % (sCNT, o["spinmax"]))
        A("s_cbranch_scc1 L_end")
    def bytecheck(p, dst):
        A("v_perm_b32 v22, v%d, v%d, s60" % (p + 1, p))
        A("v_perm_b32 v23, v%d, v%d, s61" % (p + 3, p + 2))
        A("v_or_b32 v22, v22, v23")
        A("v_cmp_ne_u32 %s, %s, v22" % (dst, sTAG))
    stamp(9)
    LB("L_poll1")
    stamp(8)
    for i in range(2):
        for q in range(4):
            r = P + 16 * i + 4 * q
            A("global_load_dwordx4 v[%d:%d], %s, %s offset:%d sc1" % (r, r + 3, vL1, sWS, i * 4096 + q * 256 - 2432))
    A("global_load_dwordx4 v[%d:%d], %s, %s sc1" % (PX, PX + 3, vL1x, sWS))
    A("global_load_dwordx4 v[%d:%d], %s, %s sc1" % (PA_, PA_ + 3, vL1a, sWS))
    switch_copy([vL1, vL1x, vL1a])
    for g_ in range(8):
        A("s_waitcnt vmcnt(%d)" % (9 - g_))
        for k in range(4):
            A("v_xor_b32 v%d, s%d, v%d" % (P + 4 * g_ + k, 56 + k, P + 4 * g_ + k))
        if g_ == 0:
            A("v_or3_b32 v21, v%d, v%d, v%d" % (P, P + 1, P + 2))
            A("v_or_b32 v21, v21, v%d" % (P + 3))
        else:
            A("v_or3_b32 v21, v21, v%d, v%d" % (P + 4 * g_, P + 4 * g_ + 1))
            A("v_or3_b32 v21, v21, v%d, v%d" % (P + 4 * g_ + 2, P + 4 * g_ + 3))
    A("v_and_b32 v21, 15, v21")
    A("s_waitcnt vmcnt(1)")
    bytecheck(PX, "vcc")
    A("v_cmp_ne_u32 s[46:47], 0, v21")
    if o.get("dbgfail"):
        A("s_cmp_eq_u32 %s, 1" % sCNT)
        A("s_cselect_b32 s84, vcc_lo, s84")
        A("s_cselect_b32 s62, s46, s62")
        A("s_cselect_b32 s63, s47, s63")
    A("s_or_b64 vcc, vcc, s[46:47]")
    A("s_cbranch_vccnz L_poll1")
    stamp(5)
    for i in range(2):
        b = P + 16 * i
        for k in range(4):
            A("v_add_f32 v%d, v%d, v%d" % (b + k, b + k, b + 4 + k))
            A("v_add_f32 v%d, v%d, v%d" % (b + 8 + k, b + 8 + k, b + 12 + k))
        for k in range(4):
            A("v_add_f32 v%d, v%d, v%d" % (b + k, b + k, b + 8 + k))
        A("v_cvt_pk_bf16_f32 v%d, v%d, v%d" % (b, b, b + 1))
        A("v_cvt_pk_bf16_f32 v%d, v%d, v%d" % (b + 1, b + 2, b + 3))
    A("v_lshlrev_b32 v22, 3, v0")
    A("ds_write_b64 v22, v[%d:%d] offset:%d" % (P, P + 1, L_Q))
    A("ds_write_b64 v22, v[%d:%d] offset:%d" % (P + 16, P + 17, L_Q + 512))
    A("v_cmp_ne_u32 vcc, s54, v%d" % PX)
    A("s_cmp_eq_u64 vcc, 0")
    A("s_cselect_b32 %s, 1, 0" % sFAST)
    if o.get("forceslow"): A("s_mov_b32 %s, 0" % sFAST)
    A("v_mov_b32 v26, %s" % sFAST)
    A("v_mov_b32 v27, %s" % sTAG)
    A("v_mov_b32 v22, %d" % L_FLAG)
    A("ds_write_b64 v22, v[26:27]")
    if o["auxearly"]:
        A("s_waitcnt vmcnt(0)")
        bytecheck(PA_, "vcc")
        A("s_cbranch_vccz L_aux_b1")
        A("global_load_dwordx4 v[%d:%d], %s, %s sc1" % (PA_, PA_ + 3, vL1a, sWS))
        LB("L_aux_b1")
    A("s_waitcnt lgkmcnt(0)")
    A("s_barrier")
    if o["vote"]:
        A("v_cmp_gt_i32 vcc, 0, v%d" % (PX + 1))
        A("v_cmp_lt_i32 s[46:47], %s, v%d" % ("s62", PX + 1))
        A("s_bcnt1_i32_b32 %s, vcc_lo" % t0)
        A("s_bcnt1_i32_b32 %s, s46" % t2)
        A("s_cmp_gt_u32 %s, %s" % (t0, t2))
        A("s_cselect_b32 s55, 0x2000, 0")
        if o.get("voteinv"): A("s_xor_b32 s55, s55, 0x2000")
        if o["stamps"]:
            A("s_bcnt1_i32_b32 s63, vcc_lo")
            A("s_lshl_b32 %s, %s, 8" % (t2, t2))
            A("s_or_b32 s63, s63, %s" % t2)
    if o["hlate"]:
        A("s_setprio %d" % o.get("hprio", 0))
        A("s_barrier")
        A("s_barrier")
    A("s_branch L_chk_aux")
    LB("L_poll_aux")
    A("global_load_dwordx4 v[%d:%d], %s, %s sc1" % (PA_, PA_ + 3, vL1a, sWS))
    switch_copy([vL1a])
    LB("L_chk_aux")
    A("s_waitcnt vmcnt(0)")
    bytecheck(PA_, "vcc")
    A("s_cbranch_vccnz L_poll_aux")
    A("s_movk_i32 %s, 0xff00" % t0)
    A("v_and_b32 v23, 1, %s" % vF)
    A("v_cmp_eq_u32 vcc, 0, v23")
    A("v_and_b32 v23, 2, %s" % vF)
    A("v_cmp_eq_u32 s[46:47], 0, v23")
    A("v_cndmask_b32 v24, v%d, v%d, vcc" % (PA_ + 1, PA_))
    A("v_cndmask_b32 v25, v%d, v%d, vcc" % (PA_ + 3, PA_ + 2))
    A("v_cndmask_b32 v24, v25, v24, s[46:47]")
    A("v_and_b32 v24, %s, v24" % t0)
    allred("v24", "v23", "v_add_f32", 16)
    allred("v24", "v23", "v_add_f32", 32)
    A("v_cvt_pk_bf16_f32 v24, v24, v24")
    A("v_and_b32 v24, %s, v24" % t1)
    A("v_mul_f32 v25, 0x%x, v24" % (LOG2E | 0x80000000))
    A("v_exp_f32 v25, v25")
    A("v_mov_b32_dpp v26, v24 row_ror:8 %s" % DPP)
    A("v_add_f32 v25, 1.0, v25")
    A("v_rcp_f32 v25, v25")
    A("v_cmp_le_u32 vcc, %s, v0" % sRP)
    A("v_mul_f32 v25, v24, v25")
    A("v_cvt_pk_bf16_f32 v25, v25, v25")
    A("v_and_b32 v25, %s, v25" % t1)
    A("v_mul_f32 v25, v25, v26")
    A("v_cvt_pk_bf16_f32 v25, v25, v25")
    A("v_cndmask_b32 v25, v25, 0, vcc")
    A("v_lshlrev_b32 v22, 2, v0")
    if o["vote"]:
        A("v_mov_b32 v26, s55")
        A("v_mov_b32 v27, 0")
        A("ds_write_b32 v27, v26 offset:%d" % (L_FLAG + 8))
    A("s_mov_b64 exec, 0xff")
    A("ds_write_b32 v22, v25 offset:%d" % L_H)
    A("s_waitcnt lgkmcnt(0)")
    stamp(6)
    dump_stamps()
    A("s_endpgm")

    role[0] = "A"
    if o.get("alignA"): L.append(".p2align %d" % o["alignA"])
    for _ in range(o.get("shiftA", 0)): A("s_nop 0")
    LB("L_attn")
    vK0, vK1, vV0, vV1 = "v2", "v3", "v4", "v5"
    vWO0, vWO1, vDN0, vDN1, vXF, vXP = "v6", "v7", "v8", "v9", "v10", "v1"
    vS2, vL2, vS25, vL25, vL3, vS3 = "v11", "v12", "v13", "v14", "v15", "v150"
    KR, VR, WOR, DNR, QR, SR, PA, MK = 16, 48, 80, 96, 104, 120, 128, 146
    vM0, vM1, vQA, vOW, vOR, vMLW, vHA = "v151", "v152", "v153", "v154", "v155", "v156", "v157"
    vN, vG, vN16, vP = "v120", "v121", "v122", "v123"
    u0, u1 = "v124", "v125"
    s4JW = "s41"
    C("K and V: load i = 1 KB block (4 keys) number 128 i + 4j + w of the head's window; K goes through LDS")
    A("s_lshl_b32 %s, %s, 24" % (t0, sH))
    A("s_lshl_b32 %s, %s, 2" % (s4JW, sJ))
    A("s_add_u32 %s, %s, %s" % (s4JW, s4JW, sW))
    A("s_lshl_b32 %s, %s, 10" % (t2, s4JW))
    A("s_add_u32 %s, %s, %s" % (t0, t0, t2))
    A("s_add_u32 %s, %s, 0xF00000" % (t0, t0))
    A("v_and_b32 %s, 15, v0" % vN)
    A("v_lshrrev_b32 %s, 4, v0" % vG)
    A("v_lshlrev_b32 %s, 4, %s" % (vN16, vN))
    A("v_lshl_add_u32 %s, v0, 4, %s" % (vV0, t0))
    A("v_lshlrev_b32 %s, 6, %s" % (u0, vG))
    A("v_xor_b32 %s, %s, %s" % (vK0, u0, vV0))
    A("s_lshl_b32 %s, %s, 13" % (t1, sW))
    A("s_add_u32 m0, %s, %d" % (t1, L_K))
    A("s_mov_b32 s42, 0x20000")
    A("s_movk_i32 s43, 1024")
    if not o["vote"]: A("s_waitcnt lgkmcnt(0)")
    if o.get("tlbw") == 1:
        A("s_cmp_lg_u32 %s, 0" % sW)
        A("s_cbranch_scc1 L_notlb")
        tlbwarm()
        A("s_waitcnt vmcnt(0)")
        LB("L_notlb")
    if o["vote"]: A("s_waitcnt lgkmcnt(1)")
    if o["b0pos"]: A("s_barrier")
    stamp(1)
    issued = [0]
    def load(w, txt):
        if issued[0] >= w:
            A("s_waitcnt vmcnt(%d)" % (w - 1))
        A(txt); issued[0] += 1
    def rot(i): return (i * o["rotm"]) & 127
    def kload(i):
        load(o["WK"], "global_load_lds_dwordx4 %s, %s %s" % (vK0, sK, nt))
        if i < 7:
            A("s_add_u32 m0, m0, s43")
            A("v_xor_b32 %s, %d, %s" % (vK0, (((i & 3) ^ ((i + 1) & 3)) << 4) | ((rot(i) ^ rot(i + 1)) << 10), vK0))
            A("v_add_u32 %s, s42, %s" % (vK0, vK0))
    nk_first = min(o["WK"], 8)
    if o.get("bal"):
        A("v_and_b32 v158, 7, v0")
        A("v_lshlrev_b32 v158, 2, v158")
        A("global_load_dword v159, v158, s[24:25] sc1")
    for i in range(nk_first): kload(i)
    C("address and mask setup in the shadow of the K loads")
    A("s_lshl_b32 %s, %s, 19" % (t0, sH))
    A("s_lshl_b32 %s, %s, 14" % (t2, sJ))
    A("s_add_u32 %s, %s, %s" % (t0, t0, t2))
    A("s_lshl_b32 %s, %s, 8" % (t3, sW))
    A("s_add_u32 %s, %s, %s" % (t0, t0, t3))
    A("s_add_u32 %s, %s, 0x1000" % (t0, t0))
    A("v_lshl_add_u32 %s, %s, 10, %s" % (vDN0, vG, vN16))
    A("v_add_u32 %s, %s, %s" % (vWO0, t0, vDN0))
    A("v_add_u32 %s, 0x2000, %s" % (vWO1, vWO0))
    ffn_share(t0, t2)
    A("s_lshl_b32 %s, s3, 6" % t0)
    A("s_lshl_b32 %s, %s, 1" % (t2, t2))
    A("s_sub_u32 %s, 8, %s" % (t1, t2))
    A("s_mul_i32 %s, %s, %s" % (t2, t1, sJ))
    A("s_add_u32 %s, %s, %s" % (t0, t0, t2))
    A("s_lshl_b32 %s, %s, 10" % (t0, t0))
    A("s_add_u32 %s, %s, %s" % (t0, t0, t3))
    A("s_sub_u32 %s, %s, 1" % (t1, t1))
    A("v_add_u32 %s, %s, %s" % (u1, t0, vN16))
    A("v_min_u32 %s, %s, %s" % (vDN0, t1, vG))
    A("v_lshl_add_u32 %s, %s, 10, %s" % (vDN0, vDN0, u1))
    A("v_add_u32 %s, 4, %s" % (vDN1, vG))
    A("v_min_u32 %s, %s, %s" % (vDN1, t1, vDN1))
    A("v_lshl_add_u32 %s, %s, 10, %s" % (vDN1, vDN1, u1))
    A("v_and_b32 %s, 1, v0" % vP)
    A("v_and_b32 %s, 1, %s" % (u0, vG))
    A("s_lshl_b32 %s, %s, 3" % (t2, s4JW))
    A("v_lshl_add_u32 %s, %s, 2, %s" % (vXF, u0, t2))
    A("s_lshl_b32 %s, %s, 16" % (t0, sH))
    A("s_lshl_b32 %s, %s, 14" % (t2, sW))
    A("s_lshl_b32 %s, %s, 6" % (t3, sJ))
    A("s_add_u32 %s, %s, %s" % (t2, t2, t3))
    A("s_add_u32 %s, %s, %s" % (t2, t2, t0))
    A("s_add_u32 %s, %s, 0x%x" % (t2, t2, MB2))
    A("v_lshrrev_b32 %s, 3, v0" % vS2)
    A("v_bfe_u32 %s, v0, 1, 2" % u1)
    A("v_lshlrev_b32 %s, 4, %s" % (u1, u1))
    A("v_lshl_add_u32 %s, %s, 11, %s" % (vS2, vS2, u1))
    A("v_add_u32 %s, %s, %s" % (vS2, t2, vS2))
    lay = o.get("lay25", 0)
    A("v_lshrrev_b32 %s, 1, %s" % (vS25, vN))
    A("v_lshlrev_b32 %s, %d, %s" % (u1, (5, 10, 10, 5)[lay], vP))
    A("v_lshl_add_u32 %s, %s, 11, %s" % (vS25, vS25, u1))
    A("v_lshl_add_u32 %s, %s, %d, %s" % (vS25, u0, (4, 9, 4, 4)[lay], vS25))
    if lay:
        A("s_mul_i32 %s, %s, %d" % (t3, sJ, (0, 48, 32, 0)[lay]))
        A("s_sub_u32 %s, %s, %s" % (t2, t2, t3))
    A("s_add_u32 %s, %s, 0x%x" % (t2, t2, MB25 - MB2))
    A("v_add_u32 %s, %s, %s" % (vS25, t2, vS25))
    A("s_lshl_b32 %s, %s, 11" % (t3, sJ))
    A("s_add_u32 %s, %s, %s" % (t0, t0, t3))
    A("s_add_u32 %s, %s, 0x%x" % (t0, t0, MB2))
    A("v_lshl_add_u32 %s, v0, 4, %s" % (vL2, t0))
    if lay == 2:
        A("s_lshr_b32 %s, %s, 1" % (t3, sW))
        A("s_lshl_b32 %s, %s, 10" % (t3, t3))
        A("s_add_u32 %s, %s, %s" % (t0, t0, t3))
        A("s_and_b32 %s, %s, 1" % (t3, sW))
        A("s_lshl_b32 %s, %s, 4" % (t3, t3))
    else:
        A("s_lshl_b32 %s, %s, %d" % (t3, sW, (4, 9, 0, 4)[lay]))
    A("s_add_u32 %s, %s, %s" % (t0, t0, t3))
    A("s_add_u32 %s, %s, 0x%x" % (t0, t0, MB25 - MB2))
    A("v_and_b32 %s, 31, v0" % u1)
    A("v_lshl_add_u32 %s, %s, %d, %s" % (vL25, u1, (6, 4, 5, 6)[lay], t0))
    if lay == 3:
        A("s_lshl_b32 %s, %s, 16" % (t0, sH))
        A("s_add_u32 %s, %s, 0x%x" % (t0, t0, MB25))
        A("s_lshl_b32 %s, %s, 11" % (t2, sJ))
        A("s_lshl_b32 %s, %s, 9" % (t3, sW))
        A("s_add_u32 %s, %s, %s" % (t2, t2, t3))
        A("s_add_u32 %s, %s, %s" % (t2, t2, t0))
        A("v_lshl_add_u32 %s, %s, 5, %s" % (vS25, vN, t2))
        A("v_lshl_add_u32 %s, %s, 4, %s" % (vS25, u0, vS25))
        A("s_lshl_b32 %s, %s, 6" % (t2, sJ))
        A("s_lshl_b32 %s, %s, 4" % (t3, sW))
        A("s_add_u32 %s, %s, %s" % (t2, t2, t3))
        A("s_add_u32 %s, %s, %s" % (t2, t2, t0))
        A("v_lshl_add_u32 %s, %s, 11, %s" % (vL25, u1, t2))
    A("s_lshr_b32 %s, %s, 1" % (t0, sJ))
    A("s_lshl_b32 %s, %s, 14" % (t0, t0))
    A("s_and_b32 %s, %s, 1" % (t3, sJ))
    A("s_lshl_b32 %s, %s, 12" % (t3, t3))
    A("s_add_u32 %s, %s, %s" % (t0, t0, t3))
    A("s_lshl_b32 %s, %s, 7" % (t3, sW))
    A("s_add_u32 %s, %s, %s" % (t0, t0, t3))
    A("s_add_u32 %s, %s, 0x%x" % (t0, t0, MB3))
    A("v_lshl_add_u32 %s, %s, 4, %s" % (u0, u0, t0))
    A("v_and_b32 %s, 7, v0" % u1)
    A("v_lshl_add_u32 %s, %s, 9, %s" % (vL3, u1, u0))
    A("s_lshl_b32 %s, %s, 9" % (t3, sH))
    A("v_lshl_add_u32 %s, %s, 13, %s" % (u0, vP, u0))
    A("v_add_u32 %s, %s, %s" % (vS3, t3, u0))
    A("v_lshlrev_b32 %s, 4, %s" % (u1, vP))
    def pretouch2():
        C("pull this workgroup's incoming hand-off lines into L2 (waves 0,1: hop 2; waves 2,3: hop 2.5)")
        A("s_and_b32 %s, %s, 1" % (t0, sW))
        A("s_lshl_b32 %s, %s, 10" % (t0, t0))
        A("s_lshr_b32 %s, %s, 1" % (t3, sW))
        A("s_mul_i32 %s, %s, 0x%x" % (t3, t3, MB25 - MB2))
        A("s_add_u32 %s, %s, %s" % (t0, t0, t3))
        A("v_add_u32 v158, %s, %s" % (t0, vL2))
        if o["pretouch"] in ("r", "k"):
            A("global_load_dword v159, v158, %s sc1" % sWS); issued[0] += 1
    if o["pretouch"] == "r" or isinstance(o["pretouch"], int): pretouch2()
    A("v_mov_b32 %s, 0xffff" % u0)
    A("v_lshlrev_b32 %s, %s, %s" % (u0, u1, u0))
    A("v_and_b32 %s, 2, v0" % u1)
    A("v_cmp_eq_u32 vcc, 0, %s" % u1)
    A("v_lshrrev_b32 %s, 1, %s" % (u1, vN))
    A("v_lshlrev_b32 %s, 2, %s" % (vHA, vG))
    SEL = 160
    A("v_mov_b32 v%d, 0x0c0c0c0c" % (SEL + 2))
    A("v_mov_b32 v%d, 0x01000100" % (SEL + 3))
    A("v_bfi_b32 v%d, %s, v%d, v%d" % (SEL + 3, u0, SEL + 3, SEL + 2))
    A("v_cndmask_b32 v%d, v%d, v%d, vcc" % (SEL, SEL + 2, SEL + 3))
    A("v_cndmask_b32 v%d, v%d, v%d, vcc" % (SEL + 1, SEL + 3, SEL + 2))
    A("v_and_b32 v%d, 0x02020202, %s" % (SEL + 3, u0))
    A("v_cndmask_b32 v%d, 0, v%d, vcc" % (SEL + 2, SEL + 3))
    A("v_cndmask_b32 v%d, v%d, 0, vcc" % (SEL + 3, SEL + 3))
    A("v_add_u32 v%d, v%d, v%d" % (SEL + 2, SEL + 2, SEL))
    A("v_add_u32 v%d, v%d, v%d" % (SEL + 3, SEL + 3, SEL + 1))
    for r in range(4):
        A("v_cmp_eq_u32 s[%d:%d], %d, %s" % (44 + 2 * r, 45 + 2 * r, r, u1))
    A("v_lshrrev_b32 %s, 2, %s" % (vMLW, vN))
    A("v_lshlrev_b32 %s, 4, %s" % (u1, vG))
    A("v_lshl_add_u32 %s, %s, 8, %s" % (vQA, vMLW, u1))
    for r in range(4):
        A("v_cndmask_b32 v%d, 0, %s, s[%d:%d]" % (MK + r, u0, 44 + 2 * r, 45 + 2 * r))
    A("s_lshl_b32 %s, %s, 11" % (t0, sW))
    A("v_lshl_add_u32 %s, %s, 9, %s" % (vOW, vG, vN16))
    A("v_add_u32 %s, %s, %s" % (vOW, t0, vOW))
    A("s_lshl_b32 %s, %s, 3" % (t0, sW))
    A("v_lshl_add_u32 %s, %s, 5, %s" % (vMLW, vMLW, t0))
    A("v_bfe_u32 %s, v0, 1, 1" % u0)
    A("v_lshrrev_b32 %s, 2, v0" % u1)
    A("v_lshlrev_b32 %s, 4, %s" % (u1, u1))
    A("v_lshl_add_u32 %s, %s, 8, %s" % (u1, u0, u1))
    A("v_lshl_add_u32 %s, %s, 3, %s" % (u1, vP, u1))
    A("s_lshl_b32 %s, %s, 9" % (t0, sW))
    A("v_add_u32 %s, %s, %s" % (vOR, t0, u1))
    KA = 140
    A("v_and_b32 %s, 3, v0" % u0)
    A("v_lshrrev_b32 %s, 2, %s" % (u1, vN))
    A("v_lshlrev_b32 %s, 8, %s" % (u1, u1))
    A("v_lshl_add_u32 %s, %s, 10, %s" % (u0, u0, u1))
    A("v_xor_b32 %s, %s, %s" % (u1, vG, vN))
    A("v_lshl_add_u32 %s, %s, 4, %s" % (u0, u1, u0))
    A("s_lshl_b32 %s, %s, 13" % (t1, sW))
    A("v_add_u32 v%d, %s, %s" % (KA, t1, u0))
    for s_ in range(1, 4):
        A("v_xor_b32 v%d, %d, v%d" % (KA + s_, s_ << 6, KA))
    for _ in range(o.get("delayA", 0)): A("s_nop 3")
    def issue_rest(WK_, W_):
        o_wk = o["WK"]; o["WK"] = WK_
        for i in range(nk_first, 8): kload(i)
        o["WK"] = o_wk
        if o["pretouch"] == "k": pretouch2()
        if o.get("xearly"):
            A("global_load_dword %s, %s, %s" % (vXP, vXF, sX)); issued[0] += 1
        for i in range(8):
            r = VR + i * 4
            load(W_, "global_load_dwordx4 v[%d:%d], %s, %s %s" % (r, r + 3, vV0, sV, nt))
            if i < 7:
                if rot(i) ^ rot(i + 1): A("v_xor_b32 %s, %d, %s" % (vV0, (rot(i) ^ rot(i + 1)) << 10, vV0))
                A("v_add_u32 %s, s42, %s" % (vV0, vV0))
    if o.get("bal"):
        C("a group that started well after others asks memory with a wider window")
        A("s_waitcnt vmcnt(%d)" % issued[0])
        A("v_sub_u32 v158, s90, v159")
        A("v_cmp_ne_u32 vcc, 0, v159")
        A("v_cmp_lt_i32 s[44:45], %d, v158" % o.get("theta", 40))
        A("s_and_b32 s62, vcc_lo, s44")
        A("s_and_b32 s62, s62, 0xff")
        A("s_bcnt1_i32_b32 s62, s62")
        A("s_cmp_ge_u32 s62, %d" % o.get("lateth", 2))
        A("s_cbranch_scc1 L_wide")
        keep = issued[0]
        issue_rest(o["WK"], o["W"])
        A("s_branch L_issued")
        LB("L_wide")
        issued[0] = keep
        issue_rest(o["WK"] + o["bal"], o["W"] + o["bal"])
        LB("L_issued")
    elif o.get("c3"):
        A("s_lshr_b32 %s, %s, 2" % (t0, sJ))
        A("s_cmp_eq_u32 %s, 3" % t0)
        A("s_cbranch_scc1 L_wide")
        keep = issued[0]
        issue_rest(o["WK"], o["W"])
        A("s_branch L_issued")
        LB("L_wide")
        issued[0] = keep
        issue_rest(o["WK"] + o["c3"], o["W"] + o.get("c3v", o["c3"]))
        LB("L_issued")
    else:
        issue_rest(o["WK"], o["W"])
    tail = []
    tail.append("global_load_dword %s, %s, %s" % (vXP, vXF, sX))
    for a in range(2):
        r = DNR + a * 4
        tail.append("global_load_dwordx4 v[%d:%d], %s, %s %s" % (r, r + 3, (vDN0, vDN1)[a], sDN, nt))
    for m in range(4):
        r = WOR + m * 4
        tail.append("global_load_dwordx4 v[%d:%d], %s, %s offset:%d %s" % (r, r + 3, (vWO0, vWO1)[m >> 1], sWO, (0, -4096)[(m & 1) == 0], nt))
    dnl = []
    if o.get("dnlate"):
        dnl = tail[1:1 + 2]
        if o["dnlate"] == 2: dnl = dnl[1:]
        for t_ in dnl: tail.remove(t_)
        tail.append(tail.pop(0))
    if isinstance(o["pretouch"], int):
        tail.insert(o["pretouch"], "global_load_dword v159, v158, %s sc1" % sWS)
    if o.get("xearly"):
        xl = [t_ for t_ in tail if vXP + "," in t_][0]; tail.remove(xl)
    nav = [0]
    def tail_issue(n):
        for _ in range(n):
            if tail:
                A(tail.pop(0)); nav[0] += 1
    A("s_waitcnt vmcnt(8)")
    for t in range(2):
        for s in range(4):
            r = KR + (t * 4 + s) * 4
            A("ds_read_b128 v[%d:%d], v%d offset:%d" % (r, r + 3, KA + s, L_K + t * 4096))
    tail_issue(o["ntail0"])
    stamp(2)
    A("s_waitcnt lgkmcnt(0)")
    A("s_barrier")
    stamp(3)
    for s in range(4):
        A("ds_read_b128 v[%d:%d], %s offset:%d" % (QR + 4 * s, QR + 4 * s + 3, vQA, L_Q + s * 64))
    if "a" in o["tsp"]: tail_issue(1)
    A("s_mov_b32 s46, 0x%x" % SCALE)
    A("s_mov_b32 %s, 0xffff0000" % t1)
    A("s_mov_b32 s48, 0x%x" % LOG2E)
    for s in range(4):
        A("s_waitcnt lgkmcnt(%d)" % (3 - s))
        for t in range(2):
            mfma(SR + 4 * t, KR + (t * 4 + s) * 4, QR + 4 * s, None if s == 0 else SR + 4 * t)
    T = KR
    vH0, vH1, vFL, vTG = "v%d" % (T + 28), "v%d" % (T + 29), "v%d" % (T + 26), "v%d" % (T + 27)
    A("v_mov_b32 %s, %d" % (vFL, L_FLAG))
    A("s_lshl_b32 %s, %s, 5" % (t3, sW))
    A("v_mov_b32 v%d, %s" % (T + 31, t3))
    A("ds_read_b64 v[%d:%d], %s" % (T + 26, T + 27, vFL))
    if "b" in o["tsp"]:
        tail_issue(1); A("s_nop 1")
    else: A("s_nop 2")
    C("scores: bf16(qk) -> * scale -> bf16   (the reference's two roundings)")
    for i in range(8):
        A("v_cvt_pk_bf16_f32 v%d, 0, v%d" % (SR + i, SR + i))
    for i in range(4):
        A("v_pk_mul_f32 %s, %s, s[46:47] op_sel_hi:[1,0]" % (P2(SR + 2 * i), P2(SR + 2 * i)))
    for i in range(8):
        A("v_cvt_pk_bf16_f32 v%d, 0, v%d" % (SR + i, SR + i))
    vm, vt, vl = "v%d" % (T + 4), "v%d" % (T + 6), "v%d" % (T + 5)
    A("v_max3_f32 %s, v%d, v%d, v%d" % (vm, SR, SR + 1, SR + 2))
    A("v_max3_f32 %s, v%d, v%d, v%d" % (vt, SR + 3, SR + 4, SR + 5))
    A("v_max3_f32 %s, %s, v%d, v%d" % (vm, vm, SR + 6, SR + 7))
    A("v_max_f32 %s, %s, %s" % (vm, vm, vt))
    allred(vm, vt, "v_max_f32", 16)
    if "c" in o["tsp"]: tail_issue(1)
    allred(vm, vt, "v_max_f32", 32)
    A("v_mul_f32 %s, s48, %s" % (vm, vm))
    for i in range(4):
        A("v_pk_fma_f32 %s, %s, s[48:49], %s op_sel_hi:[1,0,0] neg_lo:[0,0,1] neg_hi:[0,0,1]" % (P2(SR + 2 * i), P2(SR + 2 * i), P2(T + 4)))
    for i in range(8):
        A("v_exp_f32 v%d, v%d" % (SR + i, SR + i))
    if "d" in o["tsp"]: tail_issue(1)
    for i in range(4):
        A("v_cvt_pk_bf16_f32 v%d, v%d, v%d" % (T + 8 + i, SR + 2 * i, SR + 2 * i + 1))
    for i in range(8):
        for r in range(2):
            A("v_perm_b32 v%d, v%d, v%d, v%d" % (PA + 2 * i + r, T + 8 + (i >> 1), T + 8 + (i >> 1), SEL + 2 * (i & 1) + r))
    stamp(4)
    O0, O1, Y = QR, QR + 4, QR + 8
    def pv(i):
        A("s_waitcnt vmcnt(%d)" % (7 - i + nav[0]))
        if i >= o["tlag"]: tail_issue((2 if i < o.get("tdbl", 0) else 1) if i < o.get("tlast", 7) else 9)
        vr = VR + 4 * i
        mfma16(O0, PA + 2 * i, vr, None if i == 0 else O0)
        mfma16(O1, PA + 2 * i, vr + 2, None if i == 0 else O1)
    A("v_pk_add_f32 %s, %s, %s" % (P2(SR), P2(SR), P2(SR + 2)))
    A("v_pk_add_f32 %s, %s, %s" % (P2(SR + 4), P2(SR + 4), P2(SR + 6)))
    A("v_pk_add_f32 %s, %s, %s" % (P2(SR), P2(SR), P2(SR + 4)))
    A("v_add_f32 %s, v%d, v%d" % (vl, SR, SR + 1))
    allred(vl, vt, "v_add_f32", 16)
    allred(vl, vt, "v_add_f32", 32)
    A("ds_write_b64 %s, v[%d:%d] offset:%d" % (vMLW, T + 4, T + 5, L_ML))
    A("s_waitcnt lgkmcnt(0)")
    A("v_readfirstlane_b32 %s, %s" % (sFAST, vFL))
    A("v_readfirstlane_b32 %s, %s" % (sTAG, vTG))
    HA = T + 16
    ML = T
    OB = T + 8
    G2 = SR
    vM, vLs = "v124", "v125"
    for i in range(o["b2"]): pv(i)
    if o.get("dbgb2"): A("s_memrealtime s[70:71]")
    A("s_barrier")
    if o.get("dbgb2"): A("s_memrealtime s[72:73]")
    A("ds_read_b128 v[%d:%d], v%d offset:%d" % (ML, ML + 3, T + 31, L_ML))
    A("ds_read_b128 v[%d:%d], v%d offset:%d" % (ML + 4, ML + 7, T + 31, L_ML + 16))
    if not o["hlate"]:
        A("ds_read_b32 %s, %s offset:%d" % (vH0, vHA, L_H))
        A("ds_read_b32 %s, %s offset:%d" % (vH1, vHA, L_H + 16))
    if o["vote"]:
        A("v_mov_b32 v%d, 0" % (T + 30))
        A("ds_read_b32 v%d, v%d offset:%d" % (T + 30, T + 30, L_FLAG + 8))
    A("s_mov_b32 s54, 0x55555555")
    A("s_mov_b32 s55, 0x55555555")
    A("v_mov_b32 v%d, %s" % (G2 + 3, sTAG))
    A("s_waitcnt lgkmcnt(%d)" % ((0 if o["hlate"] else 2) + (1 if o["vote"] else 0)))
    A("v_max3_f32 %s, v%d, v%d, v%d" % (vM, ML, ML + 2, ML + 4))
    A("v_max_f32 %s, %s, v%d" % (vM, vM, ML + 6))
    for w_ in range(4):
        A("v_sub_f32 v%d, v%d, %s" % (ML + 2 * w_, ML + 2 * w_, vM))
    for w_ in range(4):
        A("v_exp_f32 v%d, v%d" % (ML + 2 * w_, ML + 2 * w_))
    A("s_waitcnt lgkmcnt(0)")
    A("v_mul_f32 %s, v%d, v%d" % (vLs, ML, ML + 1))
    for w_ in range(1, 4):
        A("v_fmac_f32 %s, v%d, v%d" % (vLs, ML + 2 * w_, ML + 2 * w_ + 1))
    def h_operands():
        for a in range(2):
            for r in range(4):
                A("v_and_b32 v%d, %s, v%d" % (HA + 4 * a + r, (vH0, vH1)[a], MK + r))
    A("v_log_f32 v%d, %s" % (G2 + 2, vLs))
    A("v_rcp_f32 %s, %s" % (vLs, vLs))
    if not o["hlate"]: h_operands()
    else: A("s_nop 0")
    if o["vote"]: A("v_add_u32 %s, v%d, %s" % (vL3, T + 30, vL3))
    A("v_add_f32 v%d, v%d, %s" % (G2 + 2, G2 + 2, vM))
    for w_ in range(4):
        A("v_mul_f32 v%d, v%d, %s" % (ML + 2 * w_, ML + 2 * w_, vLs))
    for i in range(o["b2"], 8): pv(i)
    stamp(5)
    if o.get("nosync"):
        A("s_waitcnt vmcnt(0)")
        stamp(6)
        A("s_branch L_done")
    A("s_nop 6")
    A("ds_write_b128 %s, v[%d:%d] offset:%d" % (vOW, O0, O0 + 3, L_O))
    A("ds_write_b128 %s, v[%d:%d] offset:%d" % (vOW, O1, O1 + 3, L_O + 256))
    A("s_waitcnt lgkmcnt(0)")
    A("s_barrier")
    for w_ in range(4):
        A("ds_read_b64 v[%d:%d], %s offset:%d" % (OB + 2 * w_, OB + 2 * w_ + 1, vOR, L_O + w_ * 2048))
    A("s_cmp_eq_u32 %s, 0" % sFAST)
    for w_ in range(4):
        A("s_waitcnt lgkmcnt(%d)" % (3 - w_))
        op = "v_mul_f32" if w_ == 0 else "v_fmac_f32"
        A("%s v%d, v%d, v%d" % (op, G2, ML + 2 * w_, OB + 2 * w_))
        A("%s v%d, v%d, v%d" % (op, G2 + 1, ML + 2 * w_, OB + 2 * w_ + 1))
    tails = []
    def publish(addr, g, name):
        A("s_cbranch_scc1 L_slow_%s" % name)
        A("global_store_dwordx4 %s, v[%d:%d], %s %s" % (addr, g, g + 3, sWS, o.get("stfl", "")))
        LB("L_back_%s" % name)
        tails.append((name, addr, g))
    A("v_cvt_pk_bf16_f32 v%d, v%d, v%d" % (G2, G2, G2 + 1))
    A("s_nop 1")
    A("v_mov_b32_dpp v%d, v%d quad_perm:[1,1,3,3] %s" % (G2 + 1, G2, DPP))
    A("s_mov_b64 exec, s[54:55]")
    publish(vS2, G2, "h2")
    A("s_mov_b64 exec, -1")
    stamp(6)
    P = T
    for i in range(2):
        A("global_load_dwordx4 v[%d:%d], %s, %s offset:%d sc1" % (P + 4 * i, P + 4 * i + 3, vL2, sWS, i * 1024))
    for t_ in dnl: A(t_)
    if o["hlate"]:
        A("s_barrier")
        A("ds_read_b32 %s, %s offset:%d" % (vH0, vHA, L_H))
        A("ds_read_b32 %s, %s offset:%d" % (vH1, vHA, L_H + 16))
    A("s_mov_b32 %s, %d" % (sCNT, o["spinmax"]))
    vTAG = "v127"
    A("v_mov_b32 %s, %s" % (vTAG, sTAG))
    for k in range(4):
        A("s_mov_b32 s%d, 0x%x" % (56 + k, 0x07060500 | k))
        A("s_bfe_u32 s%d, %s, 0x%x" % (60 + k if k < 2 else 50 + k, sTAG, 0x80000 | (8 * k)))
    TB = ["s60", "s61", "s52", "s53"]
    if o["hlate"]:
        A("s_waitcnt lgkmcnt(0)")
        h_operands()
    ndn_early = 2 - len(dnl)
    A("s_waitcnt vmcnt(%d)" % (3 + len(dnl)))
    for a in range(ndn_early):
        mfma(Y, HA + 4 * a, DNR + 4 * a, None if a == 0 else Y)
    if dnl:
        A("s_waitcnt vmcnt(%d)" % len(dnl))
        A("s_branch L_chk2b")
    else:
        A("s_branch L_chk2")
    LB("L_poll2")
    MS = ["s[44:45]", "s[46:47]"]
    for i in range(2):
        if o["mask2"]: A("s_mov_b64 exec, %s" % MS[i])
        A("global_load_dwordx4 v[%d:%d], %s, %s offset:%d sc1" % (P + 4 * i, P + 4 * i + 3, vL2, sWS, i * 1024))
    if o["mask2"]: A("s_mov_b64 exec, -1")
    A("s_sub_u32 %s, %s, 1" % (sCNT, sCNT))
    A("s_cbranch_scc1 L_end")
    LB("L_chk2")
    A("s_waitcnt vmcnt(0)")
    LB("L_chk2b")
    A("v_max_f32 %s, v%d, v%d" % (vM, P + 2, P + 6))
    for i in range(2):
        A("v_cmp_ne_u32 %s, %s, v%d" % (MS[i], sTAG, P + 4 * i + 3))
    A("v_max_f32_dpp %s, %s, %s row_ror:4 %s" % (vM, vM, vM, DPP))
    A("s_or_b64 vcc, %s, %s" % (MS[0], MS[1]))
    A("s_cbranch_scc1 L_poll2")
    stamp(7)
    U = T + 8
    def unp(i, k):
        if k & 1: A("v_and_b32 v%d, %s, v%d" % (U + 4 * i + k, t1, P + 4 * i + (k >> 1)))
        else: A("v_lshlrev_b32 v%d, 16, v%d" % (U + 4 * i + k, P + 4 * i + (k >> 1)))
    vt2 = "v126"
    A("v_max_f32_dpp %s, %s, %s row_ror:8 %s" % (vM, vM, vM, DPP))
    A("v_mov_b32 %s, %s" % (vt2, vM))
    unp(0, 0); unp(0, 1)
    A("v_permlane16_swap_b32 %s, %s" % (vt2, vM))
    A("v_max_f32 %s, %s, %s" % (vM, vM, vt2))
    A("v_mov_b32 %s, %s" % (vt2, vM))
    unp(0, 2); unp(0, 3)
    A("v_permlane32_swap_b32 %s, %s" % (vt2, vM))
    A("v_max_f32 %s, %s, %s" % (vM, vM, vt2))
    w0, w1 = "v120", "v122"
    A("v_sub_f32 %s, v%d, %s" % (w0, P + 2, vM))
    A("v_sub_f32 %s, v%d, %s" % (w1, P + 6, vM))
    A("v_exp_f32 %s, %s" % (w0, w0))
    A("v_exp_f32 %s, %s" % (w1, w1))
    unp(1, 0)
    den, tA, tB = "v126", "v124", "v123"
    A("v_add_f32 %s, %s, %s" % (den, w0, w1))
    unp(1, 1); unp(1, 2)
    A("v_add_f32_dpp %s, %s, %s row_ror:4 %s" % (den, den, den, DPP))
    unp(1, 3)
    A("v_pk_mul_f32 %s, %s, v[120:121] op_sel_hi:[1,0]" % (P2(U), P2(U)))
    A("v_add_f32_dpp %s, %s, %s row_ror:8 %s" % (den, den, den, DPP))
    A("v_pk_mul_f32 %s, %s, v[120:121] op_sel_hi:[1,0]" % (P2(U + 2), P2(U + 2)))
    A("v_pk_fma_f32 %s, %s, v[122:123], %s op_sel_hi:[1,0,1]" % (P2(U), P2(U + 4), P2(U)))
    A("v_pk_fma_f32 %s, %s, v[122:123], %s op_sel_hi:[1,0,1]" % (P2(U + 2), P2(U + 6), P2(U + 2)))
    A("v_mov_b32 %s, %s" % (tA, den))
    A("s_cmp_eq_u32 %s, 0" % sFAST)
    A("v_permlane32_swap_b32 v%d, v%d" % (U, U + 2))
    A("v_permlane32_swap_b32 v%d, v%d" % (U + 1, U + 3))
    A("v_permlane32_swap_b32 %s, %s" % (tA, den))
    A("v_pk_add_f32 %s, %s, %s" % (P2(U), P2(U), P2(U + 2)))
    A("v_add_f32 %s, %s, %s" % (den, den, tA))
    A("s_mov_b32 %s, %d" % (sCNT, o["spinmax"]))
    A("v_permlane16_swap_b32 v%d, v%d" % (U, U + 1))
    A("v_mov_b32 %s, %s" % (tA, den))
    A("v_add_f32 v%d, v%d, v%d" % (U, U, U + 1))
    A("s_nop 0")
    A("v_permlane16_swap_b32 %s, %s" % (tA, den))
    A("v_add_f32_dpp v%d, v%d, v%d row_ror:4 %s" % (U, U, U, DPP))
    A("v_add_f32 %s, %s, %s" % (den, den, tA))
    A("v_rcp_f32 %s, %s" % (den, den))
    A("v_add_f32_dpp v%d, v%d, v%d row_ror:8 %s" % (U, U, U, DPP))
    a0 = "v125"
    A("v_mul_f32 %s, v%d, %s" % (a0, U, den))
    A("v_cvt_pk_bf16_f32 %s, %s, %s" % (a0, a0, a0))
    A("s_nop 1")
    WA = T
    for m in range(4):
        for r in range(4):
            A("v_and_b32_dpp v%d, %s, v%d row_newbcast:%d %s" % (WA + 4 * m + r, a0, MK + r, m, DPP))
        if m > 0:
            mfma(Y, WA + 4 * (m - 1), WOR + 4 * (m - 1), Y if (m > 1 or ndn_early) else None)
    if dnl:
        A("s_waitcnt vmcnt(0)")
        for a in range(ndn_early, 2):
            mfma(Y, HA + 4 * a, DNR + 4 * a, Y)
    else:
        A("s_nop 1")
    mfma(Y, WA + 12, WOR + 12, Y)
    A("s_mov_b32 exec_hi, 0")
    A("s_nop 6")
    for k in range(4):
        A("v_perm_b32 v%d, v%d, %s, s%d" % (Y + k, Y + k, vTAG, 56 + k))
    publish(vS25, Y, "h25")
    stamp(8)
    NP = o["np25"]
    PS = T + 16
    if o.get("ack25"): A("s_waitcnt vmcnt(0)")
    for _ in range(o.get("dly25", 0)): A("s_nop 7")
    for k in range(NP):
        A("global_load_dwordx4 v[%d:%d], %s, %s sc1" % (PS + 4 * k, PS + 4 * k + 3, vL25, sWS))
    LB("L_poll25")
    for k in range(NP):
        A("s_waitcnt vmcnt(%d)" % (NP - 1))
        for q in range(4):
            A("v_xor_b32 v%d, %s, v%d" % (P + q, TB[q], PS + 4 * k + q))
        A("v_or3_b32 %s, v%d, v%d, v%d" % (tA, P, P + 1, P + 2))
        A("v_or_b32_sdwa %s, %s, v%d dst_sel:DWORD dst_unused:UNUSED_PAD src0_sel:BYTE_0 src1_sel:BYTE_0" % (tA, tA, P + 3))
        A("v_cmp_ne_u32 vcc, 0, %s" % tA)
        if o["mask25"]:
            A("s_and_b64 exec, exec, vcc")
            A("s_cbranch_scc0 L_got25")
        else:
            A("s_cbranch_vccz L_got25")
        A("global_load_dwordx4 v[%d:%d], %s, %s sc1" % (PS + 4 * k, PS + 4 * k + 3, vL25, sWS))
    A("s_sub_u32 %s, %s, 1" % (sCNT, sCNT))
    A("s_cbranch_scc0 L_poll25")
    A("s_endpgm")
    LB("L_got25")
    A("s_mov_b64 exec, -1")
    stamp(9)
    x_, y_ = "v%d" % P, "v%d" % (P + 1)
    A("v_permlane16_swap_b32 v%d, v%d" % (P, P + 2))
    A("v_permlane16_swap_b32 v%d, v%d" % (P + 1, P + 3))
    A("v_add_f32 %s, %s, v%d" % (x_, x_, P + 2))
    A("v_add_f32 %s, %s, v%d" % (y_, y_, P + 3))
    fl = ["v_mov_b32 v%d, %s" % (P + 3, sTAG), "s_and_b32 %s, %s, 7" % (t0, sJ), "s_cmp_eq_u32 %s, %s" % (t0, sH), "s_nop 0"]
    for rot_ in (1, 2, 4, 8):
        A(fl.pop(0))
        A("v_add_f32_dpp %s, %s, %s row_ror:%d %s" % (x_, x_, x_, rot_, DPP))
        A("v_add_f32_dpp %s, %s, %s row_ror:%d %s" % (y_, y_, y_, rot_, DPP))
    A("s_cbranch_scc1 L_final")
    A("s_mov_b64 exec, 0x%x" % (0x30003 if o["rep3"] or o["vote"] else 0x10001))
    A("global_store_dwordx4 %s, v[%d:%d], %s sc1" % (vS3, P, P + 3, sWS))
    if o.get("wb"):
        A("s_or_b32 %s, %s, %s" % (t0, sW, sJ) if o["wb"] == 1 else "s_and_b32 %s, %s, 3" % (t0, sW))
        A("s_cmp_lg_u32 %s, %d" % (t0, 8 if o["wb"] == 1 else 0))
        A("s_cbranch_scc1 L_done")
        A("buffer_wbl2 sc1")
    A("s_branch L_done")
    LB("L_final")
    A("s_lshl_b32 %s, 0x10001, %s" % (t0, sH))
    A("s_andn2_b32 exec_lo, 0xff00ff, %s" % t0)
    A("s_mov_b32 exec_hi, 0")
    A("s_mov_b32 %s, %d" % (sCNT, o["spinmax"]))
    NP = o["np3"]
    PS = VR
    for k in range(NP):
        A("global_load_dwordx4 v[%d:%d], %s, %s sc1" % (PS + 4 * k, PS + 4 * k + 3, vL3, sWS))
    LB("L_poll3")
    for k in range(NP):
        A("s_waitcnt vmcnt(%d)" % (NP - 1))
        A("v_cmp_ne_u32 vcc, %s, v%d" % (sTAG, PS + 4 * k + 3))
        A("v_mov_b32 v%d, v%d" % (P, PS + 4 * k))
        A("v_mov_b32 v%d, v%d" % (P + 1, PS + 4 * k + 1))
        A("s_and_b64 exec, exec, vcc")
        A("s_cbranch_scc0 L_got3")
        A("global_load_dwordx4 v[%d:%d], %s, %s sc1" % (PS + 4 * k, PS + 4 * k + 3, vL3, sWS))
    A("s_sub_u32 %s, %s, 1" % (sCNT, sCNT))
    A("s_cbranch_scc0 L_poll3")
    A("s_endpgm")
    LB("L_got3")
    stamp(10)
    A("s_mov_b32 exec_lo, -1")
    A("v_lshlrev_b32 %s, 16, %s" % (tA, vXP))
    A("v_and_b32 %s, %s, %s" % (tB, t1, vXP))
    for pat in ("quad_perm:[1,0,3,2]", "quad_perm:[2,3,0,1]", "row_half_mirror"):
        A("v_add_f32_dpp %s, %s, %s %s %s" % (x_, x_, x_, pat, DPP))
        A("v_add_f32_dpp %s, %s, %s %s %s" % (y_, y_, y_, pat, DPP))
        if pat != "row_half_mirror": A("s_nop 0")
    A("v_add_f32 %s, %s, %s" % (x_, x_, tA))
    A("v_add_f32 %s, %s, %s" % (y_, y_, tB))
    if o.get("perturb"):
        import struct
        bits = struct.unpack("<I", struct.pack("<f", float(o["perturb"])))[0]
        if o.get("pall"):
            A("v_mul_f32 %s, 0x%x, %s" % (x_, bits, x_)); A("v_mul_f32 %s, 0x%x, %s" % (y_, bits, y_))
        else:
            A("s_or_b32 %s, s2, %s" % (t0, sW))
            A("s_cselect_b32 %s, 0, 0x%x" % (t0, bits))
            A("v_add_f32 %s, %s, %s" % (x_, t0, x_))
    A("v_cvt_pk_bf16_f32 %s, %s, %s" % (x_, x_, y_))
    A("s_mov_b64 exec, 0x10001")
    A("global_store_dword %s, %s, %s" % (vXF, x_, sOUT))
    A("s_or_b32 %s, s2, %s" % (t0, sW))
    A("s_cbranch_scc1 L_done")
    C("the next launch must not mistake this launch's hand-off words for its own")
    A("v_mov_b32 %s, 0" % tA)
    A("v_mov_b32 %s, %s" % (tB, sTAG))
    A("global_store_dword %s, %s, %s %s" % (tA, tB, sWS, o.get("efl", "")))
    LB("L_done")
    if o.get("lateh") is not None:
        A("s_or_b32 %s, s2, %s" % (t0, sW))
        A("s_cbranch_scc1 L_nolate")
        A("s_mov_b64 exec, -1")
        A("v_and_b32 v2, 7, v0")
        A("v_lshlrev_b32 v2, 2, v2")
        A("global_load_dword v3, v2, s[24:25] sc1")
        A("s_waitcnt vmcnt(0)")
        for g_ in range(8): A("v_readlane_b32 s%d, v3, %d" % (64 + g_, g_))
        A("s_nop 3")
        for g_ in range(8): A("s_sub_u32 s%d, s%d, s90" % (64 + g_, 64 + g_))
        A("s_mov_b32 s72, s64")
        for g_ in range(1, 8): A("s_min_i32 s72, s72, s%d" % (64 + g_))
        if o["lateh"] == 8:
            A("s_mov_b32 s88, s64")
            for g_ in range(1, 8): A("s_max_i32 s88, s88, s%d" % (64 + g_))
        else:
            A("s_mov_b32 s88, s%d" % (64 + o["lateh"]))
        A("s_sub_u32 s88, s88, s72")
        A("s_mul_i32 s88, s88, 20")
        A("s_min_u32 s88, s88, 20000")
        A("s_add_u32 s88, s88, 1500")
        A("s_add_u32 s88, s88, s72")
        LB("L_latespin")
        A("s_memrealtime s[92:93]")
        A("s_waitcnt lgkmcnt(0)")
        A("s_sub_u32 s92, s92, s90")
        A("s_cmp_lt_u32 s92, s88")
        A("s_cbranch_scc1 L_latespin")
        LB("L_nolate")
    if o.get("amp"):
        if o["amp"] == "end": A("s_memrealtime s[88:89]")
        A("s_waitcnt lgkmcnt(0)")
        A("s_sub_u32 s88, s88, %s" % ("s86" if o.get("amp0") else "s90"))
        A("s_mul_i32 s88, s88, %d" % o.get("ampk", 10))
        A("s_min_u32 s88, s88, 20000")
        A("s_add_u32 s88, s88, 1500")
        LB("L_ampspin")
        A("s_memrealtime s[92:93]")
        A("s_waitcnt lgkmcnt(0)")
        A("s_sub_u32 s92, s92, s90")
        A("s_cmp_lt_u32 s92, s88")
        A("s_cbranch_scc1 L_ampspin")
    if o.get("pad"):
        LB("L_padspin")
        A("s_memrealtime s[92:93]")
        A("s_waitcnt lgkmcnt(0)")
        A("s_sub_u32 s92, s92, s90")
        A("s_cmp_lt_u32 s92, %d" % o["pad"])
        A("s_cbranch_scc1 L_padspin")
    dump_stamps()
    A("s_endpgm")
    for name, addr, g in tails:
        LB("L_slow_%s" % name)
        A("global_store_dwordx4 %s, v[%d:%d], %s sc1" % (addr, g, g + 3, sWS))
        A("s_branch L_back_%s" % name)
    LB("L_end")
    A("s_endpgm")
    head = HEADER.format(lds=o.get("lds", LDS_BYTES), k=KNAME); foot = FOOTER.format(k=KNAME, vg=o.get("vg", 168), sg=96)
    if o["align"]: L = align_runs(L, head, foot, o.get("minrun", 3), o.get("nopmin", 6))
    return head + "\n".join(L) + foot


if __name__ == "__main__":
    kw = {}
    out = "parallel_sum__sliding_block_cached__swiglu_ffn__decode.s"
    for a in sys.argv[1:]:
        k, v = a.split("=", 1)
        if k == "out": out = v; continue
        try: v = int(v) if k != "nlv" else v
        except ValueError: pass
        kw[k] = v
    open(out, "w").write(gen(**kw))
```

```python
import sys

KNAME = "parallel_sum__sliding_block_cached__swiglu_ffn__decode_kernel"

HEADER = """; Kernarg layout for this problem (96 bytes, ptrs only, base s[0:1]):
;   offset  72: d_out     shape=(1, 1, 512) dtype=bfloat16
; @launch grid=(256,1,1) block=(320,1,1) lds={lds}
.amdgcn_target "amdgcn-amd-amdhsa--gfx950"
.text
.globl {k}
.p2align 8
.type {k},@function
{k}:
"""
FOOTER = """
.section .rodata,"a"
.p2align 6
.amdhsa_kernel {k}
  .amdhsa_next_free_vgpr {vg}
  .amdhsa_next_free_sgpr {sg}
  .amdhsa_accum_offset {vg}
  .amdhsa_group_segment_fixed_size 0
  .amdhsa_kernarg_size 96
  .amdhsa_user_sgpr_count 2
  .amdhsa_user_sgpr_kernarg_segment_ptr 1
  .amdhsa_system_sgpr_workgroup_id_x 1
.end_amdhsa_kernel
"""

MB1A = 0x40000
MB1B = 0x80000
MB2 = 0x100000
MB25 = 0x400000
MB3 = 0x200000
STAMPS = 0x10000000
L_WQ = 0
L_FF = 16384
L_XN = 32768
L_Q = 33792
L_H = 34816
L_FLAG = 34848
L_VOTE = 34864
L_ML = 34880
L_O = 35072
L_K = L_O + 8192
L_K = (L_K + 1023) // 1024 * 1024
LDS_BYTES = L_K + 32768
TAGC = 0x9E3779B9
LOG2E = 0x3FB8AA3B
SCALE = 0x3DB504F3
EPS = 0x3727C5AC
DPP = "row_mask:0xf bank_mask:0xf"

DEF = dict(stamps=False, spinmax=200000, WK=5, W=6, Wtail=8, b0pos=45, nt="nt", pretouch="k", atries=24,
           prefetch=True, b2=7, ntail0=0, tlag=0, mask2=False, pt1=True, rotm=4, rep3=False, tsp="", auxearly=True, hlate=False, vote=True, np25=1, np3=1, ack25=1, align=1, unr=2, mask25=True, lperm=0, nlv="43434343", reuse=1, rp=2176, bonly=0, bdefer=4, bskip=1)


def _sizes(text):
    import subprocess, tempfile, os, re
    d = tempfile.mkdtemp()
    open(d + "/a.s", "w").write(text)
    subprocess.run(["clang", "-x", "assembler", "-target", "amdgcn-amd-amdhsa", "-mcpu=gfx950", "-c", d + "/a.s", "-o", d + "/a.o"], check=True)
    out = subprocess.run(["llvm-objdump", "-d", "--mcpu=gfx950", d + "/a.o"], capture_output=True, text=True).stdout
    r = []
    for ln in out.split("\n"):
        m = re.search(r"^\s+(\S+).*// ([0-9A-F]{12}): ((?:[0-9A-F]{8} ?)+)", ln)
        if m: r.append((m.group(1), 4 * len(m.group(3).split())))
    return r


def align_runs(L, head, foot, minrun=3, nopmin=6):
    ins = [i for i, l in enumerate(L) if l.startswith("    ") and not l.strip().startswith(";")]
    sz = _sizes(head + "\n".join(L) + foot)
    assert len(sz) == len(ins), (len(sz), len(ins))
    size = {i: s_[1] for i, s_ in zip(ins, sz)}
    mn = {i: s_[0] for i, s_ in zip(ins, sz)}
    out = list(L); extra = {}
    off = 0; k = 0
    while k < len(ins):
        i = ins[k]
        if size[i] == 8 and off % 8 == 4:
            run = 0
            while k + run < len(ins) and size[ins[k + run]] == 8: run += 1
            if run >= minrun:
                b = k - 1; done = False
                while b >= 0 and size[ins[b]] == 4:
                    j = ins[b]
                    if mn[j] == "s_nop" and int(out[j].split()[1]) >= 1:
                        out[j] = "    s_nop 0\n    s_nop %d" % (int(out[j].split()[1]) - 1)
                        size[j] = 8; off += 4; done = True
                        break
                    if mn[j].endswith("_e32") and not mn[j].startswith(("v_readfirstlane", "v_permlane")):
                        op = out[j].split()[0]
                        out[j] = out[j].replace(op, op.replace("_e32", "") + "_e64", 1)
                        size[j] = 8; off += 4; done = True
                        break
                    b -= 1
                if not done and run >= nopmin and k > 0 and not mn[ins[k - 1]].startswith(("s_branch", "s_endpgm")):
                    extra[i] = True; off += 4; done = True
                if not done and k > 0 and mn[ins[k - 1]].startswith(("s_branch", "s_endpgm")):
                    extra[ins[k - 1] + 1] = True; off += 4
            for q in range(run): off += 8
            k += run
            continue
        off += size[i]; k += 1
    res = []
    for i, l in enumerate(out):
        if i in extra: res.append("    s_nop 0")
        res.append(l)
    return res


def gen(**kw):
    o = dict(DEF); o.update(kw)
    L = []
    def A(s): L.append("    " + s)
    def LB(s): L.append(s + ":")
    def C(s): L.append("    ; " + s)
    nt = o["nt"]
    NSTAMP = 12
    role = ["U"]
    def stamp(i):
        if o.get("amp") == "%s%d" % (role[0], i): A("s_memrealtime s[88:89]" if not o.get("cyc") else "s_memtime s[88:89]")
        if o.get("amp0") == "%s%d" % (role[0], i): A("s_memrealtime s[86:87]" if not o.get("cyc") else "s_memtime s[86:87]")
        if o["stamps"] and (i in (0, 11) or o.get("sel") is None or ("%s%d" % (role[0], i)) in o["sel"].split(",")):
            A("s_memrealtime s[%d:%d]" % (64 + 2 * i, 65 + 2 * i))
    def mfma(d, a, b, c):
        A("v_mfma_f32_16x16x32_bf16 v[%d:%d], v[%d:%d], v[%d:%d], %s" % (d, d + 3, a, a + 3, b, b + 3, "0" if c is None else "v[%d:%d]" % (c, c + 3)))
    def mfma16(d, a, b, c):
        A("v_mfma_f32_16x16x16_bf16 v[%d:%d], v[%d:%d], v[%d:%d], %s" % (d, d + 3, a, a + 1, b, b + 1, "0" if c is None else "v[%d:%d]" % (c, c + 3)))
    def allred(v, tmp, op, which):
        A("v_mov_b32 %s, %s" % (tmp, v))
        A("s_nop 1")
        A("v_permlane%d_swap_b32 %s, %s" % (which, tmp, v))
        A("%s %s, %s, %s" % (op, v, v, tmp))
    sX, sK, sV, sWQ, sWO, sG, sU, sDN, sOUT, sWS = "s[4:5]", "s[6:7]", "s[8:9]", "s[10:11]", "s[12:13]", "s[16:17]", "s[18:19]", "s[20:21]", "s[22:23]", "s[26:27]"
    sW, sH, sJ, sTAG, sXCC, sCNT, sFAST = "s30", "s31", "s32", "s33", "s34", "s35", "s36"
    t0, t1, t2, t3 = "s37", "s38", "s39", "s40"
    def dump_stamps():
        if not o["stamps"]: return
        if role[0] == "U" and o.get("sel") is not None and "U" not in o["sel"]: return
        A("s_mov_b64 exec, 1")
        stamp(11)
        A("s_waitcnt lgkmcnt(0)")
        A("s_mul_i32 %s, s2, 5" % t0)
        A("s_add_u32 %s, %s, %s" % (t0, t0, sW))
        A("s_lshl_b32 %s, %s, 7" % (t0, t0))
        A("s_add_u32 %s, %s, 0x%x" % (t0, t0, STAMPS))
        A("v_mov_b32 v2, %s" % t0)
        for i in range(NSTAMP):
            A("v_mov_b32 v3, s%d" % (64 + 2 * i))
            A("global_store_dword v2, v3, %s offset:%d" % (sWS, 4 * i))
        A("v_mov_b32 v3, %s" % ("s63" if role[0] == "U" and o["vote"] else sCNT))
        A("global_store_dword v2, v3, %s offset:%d" % (sWS, 4 * NSTAMP))
        if o.get("dbgfail"):
            for q_, r_ in enumerate(("s84", "s62", "s63")):
                A("v_mov_b32 v3, %s" % r_)
                A("global_store_dword v2, v3, %s offset:%d" % (sWS, 4 * NSTAMP + 8 + 4 * q_))
        A("s_getreg_b32 %s, hwreg(HW_REG_HW_ID)" % t1)
        A("v_mov_b32 v3, %s" % t1)
        A("global_store_dword v2, v3, %s offset:%d" % (sWS, 4 * NSTAMP + 4))

    nlv = [int(c) for c in str(o["nlv"])]
    assert len(nlv) == 8 and sum(nlv) == 28 and min(nlv) >= 0 and max(nlv) <= 4
    LUT_d = sum((4 - n) << (4 * i) for i, n in enumerate(nlv))
    LUT_D = sum((4 * i - sum(nlv[:i])) << (4 * i) for i in range(8))
    def ffn_share(l0, d):
        A("s_lshl_b32 %s, %s, 2" % (l0, sH))
        A("s_lshr_b32 %s, 0x%x, %s" % (d, LUT_D, l0))
        A("s_and_b32 %s, %s, 7" % (d, d))
        A("s_sub_u32 s3, %s, %s" % (l0, d))
        A("s_lshr_b32 %s, 0x%x, %s" % (d, LUT_d, l0))
        A("s_and_b32 %s, %s, 7" % (d, d))
    stamp(0)
    if o.get("pad") or o.get("bal") or o.get("amp") or o.get("lateh") is not None: A("s_memrealtime s[90:91]")
    A("s_cmp_ge_u32 s2, 256")
    A("s_cbranch_scc1 L_end")
    A("s_load_dwordx16 s[4:19], s[0:1], 0")
    A("s_load_dwordx8 s[20:27], s[0:1], 64")
    A("v_lshrrev_b32 v1, 6, v0")
    A("v_and_b32 v0, 63, v0")
    A("v_readfirstlane_b32 %s, v1" % sW)
    A("s_and_b32 %s, s2, 7" % sH)
    A("s_lshr_b32 %s, s2, 3" % sJ)
    if o.get("bal") or o.get("lateh") is not None:
        A("s_or_b32 %s, %s, %s" % (t0, sJ, sW))
        A("s_cbranch_scc1 L_noflag")
        A("s_lshl_b32 %s, %s, 2" % (t0, sH))
        A("v_mov_b32 v108, %s" % t0)
        A("s_waitcnt lgkmcnt(0)")
        A("s_or_b32 %s, s90, 1" % t0)
        A("v_mov_b32 v109, %s" % t0)
        A("global_store_dword v108, v109, s[24:25] sc1")
        LB("L_noflag")
    A("s_cmp_eq_u32 %s, 4" % sW)
    A("s_cbranch_scc0 %s" % ("L_race" if o["vote"] else "L_attn"))

    C("wave 4: layernorm, one [128 x 64] tile of wq and one of gate/up, exchange of q and of the FFN hidden values")
    A("s_setprio 3")
    if o["prefetch"]:
        A("s_getpc_b64 s[28:29]")
        LB("L_pc")
        A("v_lshlrev_b32 v2, 7, v0")
        A("v_min_u32 v2, L_end-L_pc, v2")
        A("global_load_dword v127, v2, s[28:29]")
    sQK, sNOFF = "s50", "s51"
    A("v_lshlrev_b32 v3, 4, v0")
    A("v_lshrrev_b32 v6, 3, v0")
    A("v_and_b32 v5, 2, v6")
    A("v_and_b32 v7, 7, v0")
    A("v_xor_b32 v5, v5, v7")
    A("v_lshlrev_b32 v7, 4, v5")
    A("s_and_b32 %s, %s, 3" % (sQK, sJ))
    A("s_lshl_b32 %s, %s, 10" % (t0, sH))
    if o["lperm"]:
        A("s_andn2_b32 %s, %s, 3" % (t1, sJ))
        A("s_lshr_b32 %s, 0x%x, %s" % (t1, o["lperm"], t1))
        A("s_and_b32 s55, %s, 7" % t1)
    else:
        A("s_lshr_b32 s55, %s, 2" % sJ)
    A("s_lshl_b32 %s, s55, 7" % t1)
    A("s_lshl_b32 %s, %s, 20" % (t2, sQK))
    A("s_add_u32 %s, %s, %s" % (t0, t0, t1))
    A("s_add_u32 %s, %s, %s" % (t0, t0, t2))
    A("v_lshl_add_u32 v4, v6, 13, v7")
    A("v_add_u32 v4, %s, v4" % t0)
    A("v_xor_b32 v5, 64, v4")
    A("v_add_u32 v5, 0x10000, v5")
    A("s_mov_b32 m0, %d" % L_WQ)
    A("s_mov_b32 %s, 0x20000" % t1)
    if o.get("ucontig"):
        A("s_lshl_b32 %s, s2, 10" % t0)
        A("v_add_u32 v4, %s, v3" % t0)
        A("v_add_u32 v5, 0x40000, v4")
        A("s_mov_b32 %s, 0x80000" % t1)
    A("s_movk_i32 s41, 1024")
    A("s_waitcnt lgkmcnt(0)")
    A("global_load_dwordx4 v[8:11], v3, %s" % sX)
    A("s_load_dword %s, %s, 0" % (sTAG, sWS))
    def dma_loop(name, base, step):
        A("s_mov_b32 %s, %d" % (t2, 16 // o["unr"]))
        LB(name)
        for i in range(o["unr"]):
            vv = ("v4", "v5")[i & 1]
            A("global_load_lds_dwordx4 %s, %s %s" % (vv, base, nt))
            A("s_add_u32 m0, m0, s41")
            A("v_add_u32 %s, %s, %s" % (vv, step, vv))
        A("s_sub_u32 %s, %s, 1" % (t2, t2))
        A("s_cmp_lg_u32 %s, 0" % t2)
        A("s_cbranch_scc1 %s" % name)
    dma_loop("L_wq_loop", sWQ, t1)
    if o["b0pos"] == 16: A("s_barrier")
    ffn_share(t0, t3)
    A("s_lshr_b32 %s, %s, 3" % (t1, sJ))
    A("s_add_u32 %s, s3, %s" % (t0, t1))
    A("s_add_u32 %s, %s, %s" % (sNOFF, t1, t3))
    A("s_mul_i32 %s, %s, 3584" % (t1, sQK))
    A("s_add_u32 %s, %s, %s" % (t0, t0, t1))
    A("s_lshl_b32 %s, %s, 7" % (t0, t0))
    A("v_mul_u32_u24 v4, 3584, v6")
    A("v_add3_u32 v4, v4, v7, %s" % t0)
    A("v_xor_b32 v5, 64, v4")
    A("v_add_u32 v5, %d, v5" % (8 * 3584))
    A("s_mov_b32 %s, %d" % (t1, 16 * 3584))
    if o.get("ucontig"):
        A("s_lshr_b32 %s, s2, 1" % t0)
        A("s_min_u32 %s, %s, 111" % (t0, t0))
        A("s_lshl_b32 %s, %s, 10" % (t0, t0))
        A("v_add_u32 v4, %s, v3" % t0)
        A("v_add_u32 v5, %d, v4" % (112 * 1024))
        A("s_mov_b32 %s, %d" % (t1, 224 * 1024))
    A("s_bitcmp0_b32 %s, %d" % (("s2", 0) if o.get("ucontig") else (sJ, 2)))
    A("s_cselect_b64 s[42:43], %s, %s" % (sG, sU))
    A("s_cmp_ge_u32 %s, 4" % sNOFF)
    A("s_cselect_b64 exec, 1, -1")
    dma_loop("L_ff_loop", "s[42:43]", t1)
    A("s_mov_b64 exec, -1")
    if o["vote"]:
        A("s_branch L_unit2")
        LB("L_race")
        C("which of the two copies of the last hand-off lives nearer to this die: race two cold scalar loads of this wave's own lines")
        A("s_lshl_b32 %s, s2, 2" % t0)
        A("s_add_u32 %s, %s, %s" % (t0, t0, sW))
        A("s_lshr_b32 %s, %s, 6" % (t1, t0))
        A("s_lshl_b32 %s, %s, 14" % (t1, t1))
        A("s_and_b32 %s, %s, 63" % (t0, t0))
        A("s_lshl_b32 %s, %s, 7" % (t0, t0))
        A("s_add_u32 %s, %s, %s" % (t0, t0, t1))
        A("s_bitset1_b32 %s, 21" % t0)
        A("s_lshl_b32 %s, %s, 13" % (t1, sW))
        A("s_and_b32 %s, %s, 0x2000" % (t1, t1))
        A("s_or_b32 s46, %s, %s" % (t0, t1))
        A("s_xor_b32 s47, s46, 0x2000")
        A("s_movk_i32 s28, 0x5bd1")
        A("s_movk_i32 s29, 0x5bd1")
        A("s_waitcnt lgkmcnt(0)")
        A("s_load_dword s28, %s, s46" % sWS)
        A("s_load_dword s29, %s, s47" % sWS)
        A("s_waitcnt lgkmcnt(1)")
        A("s_mov_b64 s[48:49], s[28:29]")
        LB("L_race_done")
        A("s_cmpk_lg_i32 s48, 0x5bd1")
        A("s_cselect_b32 %s, 1, 0" % t0)
        A("s_cmpk_lg_i32 s49, 0x5bd1")
        A("s_cselect_b32 %s, 1, 0" % t2)
        A("s_sub_i32 %s, %s, %s" % (t0, t0, t2))
        A("s_sub_i32 %s, 0, %s" % (t2, t0))
        A("s_cmp_eq_u32 %s, 0" % t1)
        A("s_cselect_b32 %s, %s, %s" % (t0, t0, t2))
        A("s_lshl_b32 %s, %s, 2" % (t2, sW))
        A("v_mov_b32 v158, %s" % t2)
        A("v_mov_b32 v159, %s" % t0)
        A("ds_write_b32 v158, v159 offset:%d" % L_VOTE)
        A("s_branch L_attn")
        LB("L_unit2")
    if o["pt1"]:
        C("pull this workgroup's own hand-off lines into L2 before anyone polls them")
        A("s_lshl_b32 %s, %s, 15" % (t0, sH))
        A("s_lshl_b32 %s, %s, 8" % (t1, sJ))
        A("s_add_u32 %s, %s, %s" % (t0, t0, t1))
        A("s_add_u32 %s, %s, 0x%x" % (t0, t0, MB1A))
        A("v_and_b32 v33, 1, v0")
        A("v_bfe_u32 v32, v0, 1, 1")
        A("v_lshlrev_b32 v33, 7, v33")
        A("v_lshl_add_u32 v33, v32, 13, v33")
        A("s_mul_i32 %s, %s, 240" % (t1, sJ))
        A("s_sub_u32 %s, 0x4000, %s" % (t1, t1))
        A("v_cmp_lt_u32 vcc, 3, v0")
        A("v_mov_b32 v32, %s" % t1)
        A("s_nop 0")
        A("v_cndmask_b32 v33, v33, v32, vcc")
        A("v_add_u32 v33, %s, v33" % t0)
        A("global_load_dword v119, v33, %s sc1" % sWS)
    def tlbwarm():
        C("first touch of the pages the later loads use (address translation early, off their queue)")
        A("s_lshl_b32 %s, %s, 24" % (t0, sH))
        A("s_add_u32 %s, %s, 0xF00000" % (t0, t0))
        A("v_mov_b32 v112, %s" % t0)
        A("s_lshl_b32 %s, %s, 19" % (t0, sH))
        A("v_mov_b32 v113, %s" % t0)
        A("s_mul_i32 %s, %s, 0x38000" % (t0, sH))
        A("v_mov_b32 v114, %s" % t0)
        A("v_mov_b32 v115, 0x%x" % MB3)
        A("s_mov_b64 exec, 1")
        A("global_load_dword v116, v112, %s" % sK)
        A("global_load_dword v117, v112, %s" % sV)
        A("global_load_dword v118, v113, %s" % sWO)
        A("global_load_dword v111, v114, %s" % sDN)
        A("global_load_dword v110, v115, %s" % sWS)
        A("s_mov_b64 exec, -1")
    NW = 1 if o["pt1"] else 0
    if o.get("tlbw") == 2:
        tlbwarm(); NW += 5
    if o["b0pos"] == 32:
        if o.get("b0wait") is not None: A("s_waitcnt vmcnt(%d)" % o["b0wait"])
        A("s_barrier")
    stamp(1)
    XF = 12
    A("s_mov_b32 %s, 0xffff0000" % t1)
    A("s_waitcnt vmcnt(%d)" % (32 + NW))
    stamp(2)
    C("layernorm with the reference's bf16 roundings")
    for i in range(4):
        A("v_lshlrev_b32 v%d, 16, v%d" % (XF + 2 * i, 8 + i))
        A("v_and_b32 v%d, %s, v%d" % (XF + 2 * i + 1, t1, 8 + i))
    fill = []
    def F(s): fill.append(s)
    def nop2():
        n = 0
        while fill and n < 2:
            A(fill.pop(0)); n += 1
        if n < 2: A("s_nop %d" % (1 - n))
    TRB = 120
    vAX, vS1, vL1, vL1x, vL1a, vF, vTN, vTB = "v34", "v35", "v36", "v37", "v38", "v39", "v124", "v125"
    sRP, sB1 = "s52", "s53"
    F("v_lshrrev_b32 v126, 4, v0")
    F("v_bfe_u32 v4, v0, 2, 2")
    F("v_lshl_add_u32 v5, v126, 3, v4")
    F("v_and_b32 v6, 3, v0")
    F("v_lshlrev_b32 v7, 3, v6")
    F("v_lshl_add_u32 v5, v5, 7, v7")
    F("v_bfe_u32 v4, v0, 3, 2")
    for ct in range(4):
        F("v_xor_b32 v7, %d, v4" % ct)
        F("v_lshl_add_u32 v%d, v7, 5, v5" % (TRB + ct))
    F("s_lshl_b32 %s, %s, 8" % (t0, sQK))
    F("v_lshl_add_u32 %s, v126, 4, %s" % (vAX, t0))
    F("s_lshl_b32 %s, %s, 15" % (sB1, sH))
    F("s_add_u32 %s, %s, 0x%x" % (sB1, sB1, MB1A))
    def wavesum(v, tmp):
        for rot in (1, 2, 4, 8):
            nop2()
            A("v_add_f32_dpp %s, %s, %s row_ror:%d %s" % (v, v, v, rot, DPP))
        for which in (16, 32):
            A("v_mov_b32 %s, %s" % (tmp, v))
            nop2()
            A("v_permlane%d_swap_b32 %s, %s" % (which, tmp, v))
            A("v_add_f32 %s, %s, %s" % (v, v, tmp))
    def P2(r): return "v[%d:%d]" % (r, r + 1)
    A("v_pk_add_f32 v[22:23], %s, %s" % (P2(XF), P2(XF + 2)))
    A("v_pk_add_f32 v[24:25], %s, %s" % (P2(XF + 4), P2(XF + 6)))
    A("v_pk_add_f32 v[22:23], v[22:23], v[24:25]")
    A("v_add_f32 v22, v22, v23")
    wavesum("v22", "v23")
    A("v_mul_f32 v22, 0x3b000000, v22")
    DV = 24
    for i in range(4):
        A("v_pk_add_f32 %s, %s, v[22:23] op_sel_hi:[1,0] neg_lo:[0,1] neg_hi:[0,1]" % (P2(DV + 2 * i), P2(XF + 2 * i)))
    A("v_cvt_pk_bf16_f32 v22, 0, v22")
    A("v_pk_mul_f32 v[32:33], %s, %s" % (P2(DV), P2(DV)))
    for i in range(1, 4):
        A("v_pk_fma_f32 v[32:33], %s, %s, v[32:33]" % (P2(DV + 2 * i), P2(DV + 2 * i)))
    A("v_add_f32 v32, v32, v33")
    pre = ["v_pk_add_f32 %s, %s, v[22:23] op_sel_hi:[1,0] neg_lo:[0,1] neg_hi:[0,1]" % (P2(XF + 2 * i), P2(XF + 2 * i)) for i in range(4)]
    pre += ["v_cvt_pk_bf16_f32 v%d, 0, v%d" % (XF + i, XF + i) for i in range(8)]
    rest = fill[:]; fill[:] = pre
    wavesum("v32", "v33")
    fill[:] = fill + rest
    A("v_mul_f32 v32, 0x3b000000, v32")
    A("v_cvt_pk_bf16_f32 v32, 0, v32")
    A("v_add_f32 v32, 0x%x, v32" % EPS)
    A("v_cvt_pk_bf16_f32 v32, 0, v32")
    A("v_sqrt_f32 v32, v32")
    A(fill.pop(0))
    A("v_cvt_pk_bf16_f32 v32, 0, v32")
    A("v_rcp_f32 v32, v32")
    A(fill.pop(0))
    for i in range(4):
        A("v_pk_mul_f32 %s, %s, v[32:33] op_sel_hi:[1,0]" % (P2(XF + 2 * i), P2(XF + 2 * i)))
    for i in range(4):
        A("v_cvt_pk_bf16_f32 v%d, v%d, v%d" % (8 + i, XF + 2 * i, XF + 2 * i + 1))
    A("ds_write_b128 v3, v[8:11] offset:%d" % L_XN)
    while fill: A(fill.pop(0))
    A("s_lshl_b32 %s, s55, 2" % t2)
    A("s_add_u32 s55, %s, %s" % (t2, sQK))
    A("s_lshl_b32 %s, s55, 8" % t2)
    A("s_add_u32 %s, %s, %s" % (t2, t2, sB1))
    A("v_lshrrev_b32 v4, 2, v0")
    A("v_lshl_add_u32 %s, v4, 4, %s" % (vS1, t2))
    A("s_waitcnt lgkmcnt(0)")
    AF = 40
    for m in range(4):
        A("ds_read_b128 v[%d:%d], %s offset:%d" % (AF + 4 * m, AF + 4 * m + 3, vAX, L_XN + m * 64))
    A("s_add_u32 %s, %s, 0x%x" % (sTAG, sTAG, TAGC))
    A("v_lshlrev_b32 v4, 2, v6")
    A("v_lshrrev_b32 %s, v4, %s" % (vTN, sTAG))
    A("v_and_b32 %s, 15, %s" % (vTN, vTN))
    A("v_lshlrev_b32 v4, 3, v6")
    A("v_lshrrev_b32 %s, v4, %s" % (vTB, sTAG))
    A("v_and_b32 %s, 0xff, %s" % (vTB, vTB))
    A("s_mov_b32 s44, 0")
    A("s_mov_b32 s45, -1")
    if o["b0pos"] == 40: A("s_barrier")
    stamp(3)
    BF = 56
    D0 = 88
    GR = 24
    def gemv(lbase, vm0):
        def rd(m, ct):
            b = BF + 16 * (m & 1)
            for hh in range(2):
                A("ds_read_b64_tr_b16 v[%d:%d], v%d offset:%d" % (b + 4 * ct + 2 * hh, b + 4 * ct + 2 * hh + 1, TRB + ct, lbase + m * 4096 + hh * 512))
        A("s_waitcnt vmcnt(%d)" % (vm0 + 12))
        for ct in range(4): rd(0, ct)
        for m in range(4):
            b = BF + 16 * (m & 1)
            if m < 3: A("s_waitcnt vmcnt(%d)" % (vm0 + 8 - 4 * m))
            if lbase == L_WQ and o["b0pos"] == 41 + m: A("s_barrier")
            for ct in range(4):
                A("s_waitcnt lgkmcnt(%d)" % (6 if m < 3 else 6 - 2 * ct))
                mfma(D0 + 4 * ct, AF + 4 * m, b + 4 * ct, None if m == 0 else D0 + 4 * ct)
                if m < 3: rd(m + 1, ct)
    def pack(maskc, vt, GR, vS1):
        A("s_mov_b32 vcc_lo, 0xffff0000")
        A("s_mov_b32 vcc_hi, 0xffff0000")
        A("s_movk_i32 %s, 0x%x" % (t0, maskc))
        A("s_nop 2")
        A("v_cndmask_b32 v%d, v%d, v%d, vcc" % (GR, D0, D0 + 4))
        A("s_nop 0")
        A("v_cndmask_b32 v%d, v%d, v%d, vcc" % (GR + 1, D0 + 8, D0 + 12))
        A("v_cndmask_b32 v%d, v%d, v%d, s[44:45]" % (GR, GR, GR + 1))
        A("v_and_or_b32 v%d, v%d, %s, %s" % (GR, GR, t0, vt))
        if o["bdefer"]:
            A("s_nop 1")
        else:
            A("v_add_u32 v22, 0x%x, %s" % (MB1B - MB1A, vS1))
            A("s_nop 0")
        for k in range(1, 4):
            A("v_mov_b32_dpp v%d, v%d quad_perm:[%d,%d,%d,%d] %s" % (GR + k, GR, k, k, k, k, DPP))
        A("s_mov_b32 exec_lo, 0x11111111")
        A("s_mov_b32 exec_hi, 0x11111111")
        if o["bonly"]:
            A("global_store_dwordx4 %s, v[%d:%d], %s sc1" % (vS1, GR, GR + 3, sWS))
        else:
            A("global_store_dwordx4 %s, v[%d:%d], %s" % (vS1, GR, GR + 3, sWS))
            if not o["bdefer"]: A("global_store_dwordx4 v22, v[%d:%d], %s sc1" % (GR, GR + 3, sWS))
        A("s_mov_b64 exec, -1")
    gemv(L_WQ, 16 + NW)
    if o["b0pos"] == 45: A("s_barrier")
    pack(0xfff0, vTN, GR, vS1)
    if o["b0pos"] == 47: A("s_barrier")
    stamp(4)
    XG = 28
    if o["vote"]:
        assert o["b0pos"] <= 47 and not o["hlate"]
        A("v_mov_b32 v4, 0")
        A("ds_read_b128 v[112:115], v4 offset:%d" % L_VOTE)
    A("s_getreg_b32 %s, hwreg(HW_REG_XCC_ID, 0, 4)" % sXCC)
    A("s_and_b32 %s, %s, 0xff" % (t0, sTAG))
    A("s_lshl_b32 %s, %s, 8" % (t2, sXCC))
    A("s_or_b32 s54, %s, %s" % (t0, t2))
    A("v_mov_b32 v%d, s54" % XG)
    for k in range(1, 4):
        A("s_bfe_u32 %s, %s, 0x%x" % (t0, sTAG, 0x80000 | (8 * k)))
        A("v_mov_b32 v%d, %s" % (XG + k, t0))
    if o["vote"]:
        A("s_waitcnt lgkmcnt(0)")
        A("v_add3_u32 v112, v112, v113, v114")
        A("v_add_u32 v112, v112, v115")
        A("v_lshl_add_u32 v%d, v112, 8, v%d" % (XG + 1, XG + 1))
    A("s_lshl_b32 %s, %s, 4" % (t2, sJ))
    A("s_add_u32 %s, %s, %s" % (t2, t2, sB1))
    A("s_add_u32 %s, %s, 0x4000" % (t2, t2))
    A("v_mov_b32 v22, %s" % t2)
    A("v_add_u32 v109, 0x%x, v22" % (MB1B - MB1A))
    A("s_mov_b64 exec, 1")
    if o["bonly"]:
        A("global_store_dwordx4 v22, v[%d:%d], %s sc1" % (XG, XG + 3, sWS))
    else:
        A("global_store_dwordx4 v22, v[%d:%d], %s" % (XG, XG + 3, sWS))
        if not o["bdefer"]: A("global_store_dwordx4 v109, v[%d:%d], %s sc1" % (XG, XG + 3, sWS))
    A("s_mov_b64 exec, -1")
    if o["b0pos"] == 50: A("s_barrier")
    A("s_sub_i32 %s, %s, s55" % (t2, sJ))
    A("s_lshl_b32 %s, %s, 8" % (t2, t2))
    A("s_add_u32 %s, %s, 0x2000" % (t2, t2))
    A("v_add_u32 v108, %s, %s" % (t2, vS1))
    A("s_cmp_ge_u32 %s, 4" % sNOFF)
    A("s_cbranch_scc1 L_noff2")
    gemv(L_FF, (2 if o['bonly'] or o['bdefer'] else 4) + NW)
    pack(0xff00, vTB, 104, "v108")
    LB("L_noff2")
    stamp(7)
    if o.get("nosync"):
        A("s_barrier")
        A("s_mov_b32 %s, 0" % sCNT)
        dump_stamps()
        A("s_endpgm")
    A("v_and_b32 v4, 15, v0")
    A("v_lshlrev_b32 v4, 4, v4")
    A("v_lshl_add_u32 v4, v126, 10, v4")
    A("s_add_u32 %s, %s, 2432" % (t0, sB1))
    A("v_add_u32 %s, %s, v4" % (vL1, t0))
    A("v_and_b32 v4, 31, v0")
    A("s_add_u32 %s, %s, 0x4000" % (t0, sB1))
    A("v_lshl_add_u32 %s, v4, 4, %s" % (vL1x, t0))
    A("s_lshl_b32 %s, %s, 1" % (t2, t3))
    A("s_sub_u32 %s, 8, %s" % (sRP, t2))
    A("s_mul_i32 %s, %s, %s" % (t2, sRP, sJ))
    A("s_sub_u32 %s, %s, 1" % (t0, sRP))
    A("v_and_b32 v4, 7, v0")
    A("v_min_u32 v4, %s, v4" % t0)
    A("v_add_u32 %s, %s, v4" % (vF, t2))
    A("v_lshrrev_b32 v4, 6, %s" % vF)
    A("v_bfe_u32 v5, v0, 3, 1")
    A("v_lshl_add_u32 v4, v4, 1, v5")
    A("v_lshl_add_u32 v4, v4, 2, v126")
    A("v_bfe_u32 v5, %s, 2, 4" % vF)
    A("v_lshlrev_b32 v5, 4, v5")
    A("v_lshl_add_u32 v4, v4, 8, v5")
    A("s_add_u32 %s, %s, 0x2000" % (t0, sB1))
    A("v_add_u32 %s, %s, v4" % (vL1a, t0))
    if min(nlv) == 0:
        A("s_cmp_lg_u32 %s, 0" % sRP)
        A("s_cbranch_scc1 L_has_ffn")
        A("v_mov_b32 %s, %s" % (vL1a, vL1x))
        LB("L_has_ffn")
    for k in range(4):
        A("s_bfe_u32 s%d, %s, 0x%x" % (56 + k, sTAG, 0x40000 | (4 * k)))
    A("s_movk_i32 s62, 255")
    A("s_mov_b32 s60, 0x0c0c0400")
    A("s_mov_b32 s61, 0x04000c0c")
    P = 40
    PX, PA_ = 72, 76
    A("s_mov_b32 %s, 0" % sCNT)
    def switch_copy(regs):
        A("s_add_u32 %s, %s, 1" % (sCNT, sCNT))
        if not o["bonly"]:
            if o.get("bskip"):
                A("s_cmp_ge_u32 %s, %d" % (sCNT, o["atries"]))
                A("s_cselect_b32 %s, 0x%x, 0" % (t0, MB1B ^ MB1A))
                for r in regs: A("v_xor_b32 %s, %s, %s" % (r, t0, r))
            else:
                A("s_cmp_eq_u32 %s, %d" % (sCNT, o["atries"]))
                A("s_cselect_b32 %s, 0x%x, 0" % (t0, MB1B - MB1A))
                for r in regs: A("v_add_u32 %s, %s, %s" % (r, t0, r))
        A("s_cmp_gt_u32 %s, %d" % (sCNT, o["spinmax"]))
        A("s_cbranch_scc1 L_end")
    def bytecheck(p, dst):
        A("v_perm_b32 v22, v%d, v%d, s60" % (p + 1, p))
        A("v_perm_b32 v23, v%d, v%d, s61" % (p + 3, p + 2))
        A("v_or_b32 v22, v22, v23")
        A("v_cmp_ne_u32 %s, %s, v22" % (dst, sTAG))
    stamp(9)
    LB("L_poll1")
    stamp(8)
    for i in range(2):
        for q in range(4):
            r = P + 16 * i + 4 * q
            A("global_load_dwordx4 v[%d:%d], %s, %s offset:%d sc1" % (r, r + 3, vL1, sWS, i * 4096 + q * 256 - 2432))
    A("global_load_dwordx4 v[%d:%d], %s, %s sc1" % (PX, PX + 3, vL1x, sWS))
    A("global_load_dwordx4 v[%d:%d], %s, %s sc1" % (PA_, PA_ + 3, vL1a, sWS))
    switch_copy([vL1, vL1x, vL1a])
    for g_ in range(8):
        A("s_waitcnt vmcnt(%d)" % (9 - g_))
        for k in range(4):
            A("v_xor_b32 v%d, s%d, v%d" % (P + 4 * g_ + k, 56 + k, P + 4 * g_ + k))
        if g_ == 0:
            A("v_or3_b32 v21, v%d, v%d, v%d" % (P, P + 1, P + 2))
            A("v_or_b32 v21, v21, v%d" % (P + 3))
        else:
            A("v_or3_b32 v21, v21, v%d, v%d" % (P + 4 * g_, P + 4 * g_ + 1))
            A("v_or3_b32 v21, v21, v%d, v%d" % (P + 4 * g_ + 2, P + 4 * g_ + 3))
    A("v_and_b32 v21, 15, v21")
    A("s_waitcnt vmcnt(1)")
    bytecheck(PX, "vcc")
    A("v_cmp_ne_u32 s[46:47], 0, v21")
    if o.get("dbgfail"):
        A("s_cmp_eq_u32 %s, 1" % sCNT)
        A("s_cselect_b32 s84, vcc_lo, s84")
        A("s_cselect_b32 s62, s46, s62")
        A("s_cselect_b32 s63, s47, s63")
    A("s_or_b64 vcc, vcc, s[46:47]")
    def publish_b(tag):
        C("write-through copies for peers that sit on another die")
        A("v_add_u32 v22, 0x%x, %s" % (MB1B - MB1A, vS1))
        A("v_add_u32 v23, 0x%x, v108" % (MB1B - MB1A))
        A("s_mov_b64 exec, 1")
        A("global_store_dwordx4 v109, v[%d:%d], %s sc1" % (XG, XG + 3, sWS))
        A("s_mov_b32 exec_lo, 0x11111111")
        A("s_mov_b32 exec_hi, 0x11111111")
        A("global_store_dwordx4 v22, v[%d:%d], %s sc1" % (GR, GR + 3, sWS))
        A("s_cmp_ge_u32 %s, 4" % sNOFF)
        A("s_cbranch_scc1 L_pb_%s" % tag)
        A("global_store_dwordx4 v23, v[104:107], %s sc1" % sWS)
        LB("L_pb_%s" % tag)
        A("s_mov_b64 exec, -1")
    if o["bdefer"]:
        A("s_cbranch_vccz L_got1")
        A("s_cmp_lg_u32 %s, %d" % (sCNT, o["bdefer"]))
        A("s_cbranch_scc1 L_poll1")
        publish_b("a")
        A("s_branch L_poll1")
        LB("L_got1")
    else:
        A("s_cbranch_vccnz L_poll1")
    stamp(5)
    for i in range(2):
        b = P + 16 * i
        for k in range(4):
            A("v_add_f32 v%d, v%d, v%d" % (b + k, b + k, b + 4 + k))
            A("v_add_f32 v%d, v%d, v%d" % (b + 8 + k, b + 8 + k, b + 12 + k))
        for k in range(4):
            A("v_add_f32 v%d, v%d, v%d" % (b + k, b + k, b + 8 + k))
        A("v_cvt_pk_bf16_f32 v%d, v%d, v%d" % (b, b, b + 1))
        A("v_cvt_pk_bf16_f32 v%d, v%d, v%d" % (b + 1, b + 2, b + 3))
    A("v_lshlrev_b32 v22, 3, v0")
    A("ds_write_b64 v22, v[%d:%d] offset:%d" % (P, P + 1, L_Q))
    A("ds_write_b64 v22, v[%d:%d] offset:%d" % (P + 16, P + 17, L_Q + 512))
    A("v_cmp_ne_u32 vcc, s54, v%d" % PX)
    A("s_cmp_eq_u64 vcc, 0")
    A("s_cselect_b32 %s, 1, 0" % sFAST)
    if o.get("forceslow"): A("s_mov_b32 %s, 0" % sFAST)
    A("v_mov_b32 v26, %s" % sFAST)
    A("v_mov_b32 v27, %s" % sTAG)
    A("v_mov_b32 v22, %d" % L_FLAG)
    A("ds_write_b64 v22, v[26:27]")
    if o["auxearly"]:
        A("s_waitcnt vmcnt(0)")
        bytecheck(PA_, "vcc")
        A("s_cbranch_vccz L_aux_b1")
        A("global_load_dwordx4 v[%d:%d], %s, %s sc1" % (PA_, PA_ + 3, vL1a, sWS))
        LB("L_aux_b1")
    A("s_waitcnt lgkmcnt(0)")
    A("s_barrier")
    if o["bdefer"]:
        A("s_cmp_gt_u32 %s, %d" % (sCNT, o["bdefer"]))
        A("s_cbranch_scc1 L_b_done")
        A("s_cmp_lg_u32 %s, 0" % sFAST if o.get("bskip") else "s_nop 0")
        if o.get("bskip"): A("s_cbranch_scc1 L_b_done")
        publish_b("b")
        LB("L_b_done")
    if o["vote"]:
        A("v_cmp_gt_i32 vcc, 0, v%d" % (PX + 1))
        A("v_cmp_lt_i32 s[46:47], %s, v%d" % ("s62", PX + 1))
        A("s_bcnt1_i32_b32 %s, vcc_lo" % t0)
        A("s_bcnt1_i32_b32 %s, s46" % t2)
        A("s_cmp_gt_u32 %s, %s" % (t0, t2))
        A("s_cselect_b32 s55, 0x2000, 0")
        if o.get("voteinv"): A("s_xor_b32 s55, s55, 0x2000")
        if o["stamps"]:
            A("s_bcnt1_i32_b32 s63, vcc_lo")
            A("s_lshl_b32 %s, %s, 8" % (t2, t2))
            A("s_or_b32 s63, s63, %s" % t2)
    if o["hlate"]:
        A("s_setprio %d" % o.get("hprio", 0))
        A("s_barrier")
        A("s_barrier")
    A("s_branch L_chk_aux")
    LB("L_poll_aux")
    A("global_load_dwordx4 v[%d:%d], %s, %s sc1" % (PA_, PA_ + 3, vL1a, sWS))
    switch_copy([vL1a])
    LB("L_chk_aux")
    A("s_waitcnt vmcnt(0)")
    bytecheck(PA_, "vcc")
    A("s_cbranch_vccnz L_poll_aux")
    A("s_movk_i32 %s, 0xff00" % t0)
    A("v_and_b32 v23, 1, %s" % vF)
    A("v_cmp_eq_u32 vcc, 0, v23")
    A("v_and_b32 v23, 2, %s" % vF)
    A("v_cmp_eq_u32 s[46:47], 0, v23")
    A("v_cndmask_b32 v24, v%d, v%d, vcc" % (PA_ + 1, PA_))
    A("v_cndmask_b32 v25, v%d, v%d, vcc" % (PA_ + 3, PA_ + 2))
    A("v_cndmask_b32 v24, v25, v24, s[46:47]")
    A("v_and_b32 v24, %s, v24" % t0)
    allred("v24", "v23", "v_add_f32", 16)
    allred("v24", "v23", "v_add_f32", 32)
    A("v_cvt_pk_bf16_f32 v24, v24, v24")
    A("v_and_b32 v24, %s, v24" % t1)
    A("v_mul_f32 v25, 0x%x, v24" % (LOG2E | 0x80000000))
    A("v_exp_f32 v25, v25")
    A("v_mov_b32_dpp v26, v24 row_ror:8 %s" % DPP)
    A("v_add_f32 v25, 1.0, v25")
    A("v_rcp_f32 v25, v25")
    A("v_cmp_le_u32 vcc, %s, v0" % sRP)
    A("v_mul_f32 v25, v24, v25")
    A("v_cvt_pk_bf16_f32 v25, v25, v25")
    A("v_and_b32 v25, %s, v25" % t1)
    A("v_mul_f32 v25, v25, v26")
    A("v_cvt_pk_bf16_f32 v25, v25, v25")
    A("v_cndmask_b32 v25, v25, 0, vcc")
    A("v_lshlrev_b32 v22, 2, v0")
    if o["vote"]:
        A("v_mov_b32 v26, s55")
        A("v_mov_b32 v27, 0")
        A("ds_write_b32 v27, v26 offset:%d" % (L_FLAG + 8))
    A("s_mov_b64 exec, 0xff")
    A("ds_write_b32 v22, v25 offset:%d" % L_H)
    A("s_waitcnt lgkmcnt(0)")
    stamp(6)
    dump_stamps()
    A("s_endpgm")

    role[0] = "A"
    if o.get("alignA"): L.append(".p2align %d" % o["alignA"])
    for _ in range(o.get("shiftA", 0)): A("s_nop 0")
    LB("L_attn")
    vK0, vK1, vV0, vV1 = "v2", "v3", "v4", "v5"
    vWO0, vWO1, vDN0, vDN1, vXF, vXP = "v6", "v7", "v8", "v9", "v10", "v1"
    vS2, vL2, vS25, vL25, vL3, vS3 = "v11", "v12", "v13", "v14", "v15", "v150"
    KR, VR, WOR, DNR, QR, SR, PA, MK = 16, 48, 80, 96, 104, 120, 128, 146
    vM0, vM1, vQA, vOW, vOR, vMLW, vHA = "v151", "v152", "v153", "v154", "v155", "v156", "v157"
    vN, vG, vN16, vP = "v120", "v121", "v122", "v123"
    u0, u1 = "v124", "v125"
    s4JW = "s41"
    C("K and V: load i = 1 KB block (4 keys) number 128 i + 4j + w of the head's window; K goes through LDS")
    A("s_lshl_b32 %s, %s, 24" % (t0, sH))
    A("s_lshl_b32 %s, %s, 2" % (s4JW, sJ))
    A("s_add_u32 %s, %s, %s" % (s4JW, s4JW, sW))
    A("s_lshl_b32 %s, %s, 10" % (t2, s4JW))
    A("s_add_u32 %s, %s, %s" % (t0, t0, t2))
    A("s_add_u32 %s, %s, 0xF00000" % (t0, t0))
    A("v_and_b32 %s, 15, v0" % vN)
    A("v_lshrrev_b32 %s, 4, v0" % vG)
    A("v_lshlrev_b32 %s, 4, %s" % (vN16, vN))
    A("v_lshl_add_u32 %s, v0, 4, %s" % (vV0, t0))
    A("v_lshlrev_b32 %s, 6, %s" % (u0, vG))
    A("v_xor_b32 %s, %s, %s" % (vK0, u0, vV0))
    A("s_lshl_b32 %s, %s, 13" % (t1, sW))
    A("s_add_u32 m0, %s, %d" % (t1, L_K))
    A("s_mov_b32 s42, 0x20000")
    A("s_movk_i32 s43, 1024")
    if not o["vote"]: A("s_waitcnt lgkmcnt(0)")
    if o.get("tlbw") == 1:
        A("s_cmp_lg_u32 %s, 0" % sW)
        A("s_cbranch_scc1 L_notlb")
        tlbwarm()
        A("s_waitcnt vmcnt(0)")
        LB("L_notlb")
    if o["vote"]: A("s_waitcnt lgkmcnt(1)")
    if o["b0pos"]: A("s_barrier")
    stamp(1)
    issued = [0]
    def load(w, txt):
        if issued[0] >= w:
            A("s_waitcnt vmcnt(%d)" % (w - 1))
        A(txt); issued[0] += 1
    def rot(i): return (i * o["rotm"]) & 127
    def kload(i):
        load(o["WK"], "global_load_lds_dwordx4 %s, %s %s" % (vK0, sK, nt))
        if i < 7:
            A("s_add_u32 m0, m0, s43")
            A("v_xor_b32 %s, %d, %s" % (vK0, (((i & 3) ^ ((i + 1) & 3)) << 4) | ((rot(i) ^ rot(i + 1)) << 10), vK0))
            A("v_add_u32 %s, s42, %s" % (vK0, vK0))
    nk_first = min(o["WK"], 8)
    if o.get("bal"):
        A("v_and_b32 v158, 7, v0")
        A("v_lshlrev_b32 v158, 2, v158")
        A("global_load_dword v159, v158, s[24:25] sc1")
    for i in range(nk_first): kload(i)
    C("address and mask setup in the shadow of the K loads")
    A("s_lshl_b32 %s, %s, 19" % (t0, sH))
    A("s_lshl_b32 %s, %s, 14" % (t2, sJ))
    A("s_add_u32 %s, %s, %s" % (t0, t0, t2))
    A("s_lshl_b32 %s, %s, 8" % (t3, sW))
    A("s_add_u32 %s, %s, %s" % (t0, t0, t3))
    A("s_add_u32 %s, %s, 0x1000" % (t0, t0))
    A("v_lshl_add_u32 %s, %s, 10, %s" % (vDN0, vG, vN16))
    A("v_add_u32 %s, %s, %s" % (vWO0, t0, vDN0))
    A("v_add_u32 %s, 0x2000, %s" % (vWO1, vWO0))
    ffn_share(t0, t2)
    A("s_lshl_b32 %s, s3, 6" % t0)
    A("s_lshl_b32 %s, %s, 1" % (t2, t2))
    A("s_sub_u32 %s, 8, %s" % (t1, t2))
    A("s_mul_i32 %s, %s, %s" % (t2, t1, sJ))
    A("s_add_u32 %s, %s, %s" % (t0, t0, t2))
    A("s_lshl_b32 %s, %s, 10" % (t0, t0))
    A("s_add_u32 %s, %s, %s" % (t0, t0, t3))
    A("s_sub_u32 %s, %s, 1" % (t1, t1))
    A("v_add_u32 %s, %s, %s" % (u1, t0, vN16))
    A("v_min_u32 %s, %s, %s" % (vDN0, t1, vG))
    A("v_lshl_add_u32 %s, %s, 10, %s" % (vDN0, vDN0, u1))
    A("v_add_u32 %s, 4, %s" % (vDN1, vG))
    A("v_min_u32 %s, %s, %s" % (vDN1, t1, vDN1))
    A("v_lshl_add_u32 %s, %s, 10, %s" % (vDN1, vDN1, u1))
    A("v_and_b32 %s, 1, v0" % vP)
    A("v_and_b32 %s, 1, %s" % (u0, vG))
    A("s_lshl_b32 %s, %s, 3" % (t2, s4JW))
    A("v_lshl_add_u32 %s, %s, 2, %s" % (vXF, u0, t2))
    RP = o["rp"]
    M25 = 0 if o["reuse"] else MB25 - MB2
    lay = 3 if o["reuse"] else o.get("lay25", 0)
    A("s_mul_i32 %s, %s, %d" % (t0, sH, 32 * RP))
    A("s_add_u32 %s, %s, 0x%x" % (t0, t0, MB2))
    A("s_mul_i32 %s, %s, %d" % (t1, sJ, RP))
    A("s_add_u32 %s, %s, %s" % (t1, t1, t0))
    A("s_mul_i32 %s, %s, %d" % (t2, sW, 8 * RP))
    A("s_lshl_b32 %s, %s, 6" % (t3, sJ))
    A("s_add_u32 %s, %s, %s" % (t0, t0, t3))
    A("s_add_u32 %s, %s, %s" % (t2, t2, t0))
    A("v_lshrrev_b32 %s, 3, v0" % vS2)
    A("v_mul_u32_u24 %s, %d, %s" % (vS2, RP, vS2))
    A("v_bfe_u32 %s, v0, 1, 2" % u1)
    A("v_lshlrev_b32 %s, 4, %s" % (u1, u1))
    A("v_add3_u32 %s, %s, %s, %s" % (vS2, vS2, u1, t2))
    A("v_lshl_add_u32 %s, v0, 4, %s" % (vL2, t1))
    A("s_lshl_b32 %s, %s, 4" % (t3, sW))
    A("v_and_b32 %s, 31, v0" % u1)
    if lay == 0:
        A("s_add_u32 %s, %s, %s" % (t1, t1, t3))
        A("s_add_u32 %s, %s, 0x%x" % (t1, t1, M25))
        A("v_lshl_add_u32 %s, %s, 6, %s" % (vL25, u1, t1))
        A("v_lshrrev_b32 %s, 1, %s" % (vS25, vN))
        A("v_mul_u32_u24 %s, %d, %s" % (vS25, RP, vS25))
        A("v_lshl_add_u32 %s, %s, 5, %s" % (vS25, vP, vS25))
        A("v_lshl_add_u32 %s, %s, 4, %s" % (vS25, u0, vS25))
        A("s_add_u32 %s, %s, 0x%x" % (t2, t2, M25))
        A("v_add_u32 %s, %s, %s" % (vS25, t2, vS25))
    else:
        A("s_add_u32 %s, %s, %s" % (t0, t0, t3))
        if M25: A("s_add_u32 %s, %s, 0x%x" % (t0, t0, M25))
        A("v_mul_u32_u24 %s, %d, %s" % (vL25, RP, u1))
        A("v_add_u32 %s, %s, %s" % (vL25, t0, vL25))
        A("s_lshl_b32 %s, %s, 9" % (t3, sW))
        A("s_add_u32 %s, %s, %s" % (t1, t1, t3))
        if M25: A("s_add_u32 %s, %s, 0x%x" % (t1, t1, M25))
        A("v_lshl_add_u32 %s, %s, 5, %s" % (vS25, vN, t1))
        A("v_lshl_add_u32 %s, %s, 4, %s" % (vS25, u0, vS25))
    A("s_lshr_b32 %s, %s, 1" % (t0, sJ))
    A("s_lshl_b32 %s, %s, 14" % (t0, t0))
    A("s_and_b32 %s, %s, 1" % (t3, sJ))
    A("s_lshl_b32 %s, %s, 12" % (t3, t3))
    A("s_add_u32 %s, %s, %s" % (t0, t0, t3))
    A("s_lshl_b32 %s, %s, 7" % (t3, sW))
    A("s_add_u32 %s, %s, %s" % (t0, t0, t3))
    A("s_add_u32 %s, %s, 0x%x" % (t0, t0, MB3))
    A("v_lshl_add_u32 %s, %s, 4, %s" % (u0, u0, t0))
    A("v_and_b32 %s, 7, v0" % u1)
    A("v_lshl_add_u32 %s, %s, 9, %s" % (vL3, u1, u0))
    A("s_lshl_b32 %s, %s, 9" % (t3, sH))
    A("v_lshl_add_u32 %s, %s, 13, %s" % (u0, vP, u0))
    A("v_add_u32 %s, %s, %s" % (vS3, t3, u0))
    A("v_lshlrev_b32 %s, 4, %s" % (u1, vP))
    def pretouch2():
        C("pull this workgroup's incoming hand-off lines into L2 (waves 0,1: hop 2; waves 2,3: hop 2.5)")
        if o["reuse"]:
            A("s_lshl_b32 %s, %s, 9" % (t0, sW))
            A("v_lshlrev_b32 v158, 3, v0")
            A("v_sub_u32 v158, %s, v158" % vL2)
            A("v_add_u32 v158, %s, v158" % t0)
        else:
            A("s_and_b32 %s, %s, 1" % (t0, sW))
            A("s_lshl_b32 %s, %s, 10" % (t0, t0))
            A("s_lshr_b32 %s, %s, 1" % (t3, sW))
            A("s_mul_i32 %s, %s, 0x%x" % (t3, t3, MB25 - MB2))
            A("s_add_u32 %s, %s, %s" % (t0, t0, t3))
            A("v_add_u32 v158, %s, %s" % (t0, vL2))
        if o["pretouch"] in ("r", "k"):
            A("global_load_dword v159, v158, %s sc1" % sWS); issued[0] += 1
    if o["pretouch"] == "r" or isinstance(o["pretouch"], int): pretouch2()
    A("v_mov_b32 %s, 0xffff" % u0)
    A("v_lshlrev_b32 %s, %s, %s" % (u0, u1, u0))
    A("v_and_b32 %s, 2, v0" % u1)
    A("v_cmp_eq_u32 vcc, 0, %s" % u1)
    A("v_lshrrev_b32 %s, 1, %s" % (u1, vN))
    A("v_lshlrev_b32 %s, 2, %s" % (vHA, vG))
    SEL = 160
    A("v_mov_b32 v%d, 0x0c0c0c0c" % (SEL + 2))
    A("v_mov_b32 v%d, 0x01000100" % (SEL + 3))
    A("v_bfi_b32 v%d, %s, v%d, v%d" % (SEL + 3, u0, SEL + 3, SEL + 2))
    A("v_cndmask_b32 v%d, v%d, v%d, vcc" % (SEL, SEL + 2, SEL + 3))
    A("v_cndmask_b32 v%d, v%d, v%d, vcc" % (SEL + 1, SEL + 3, SEL + 2))
    A("v_and_b32 v%d, 0x02020202, %s" % (SEL + 3, u0))
    A("v_cndmask_b32 v%d, 0, v%d, vcc" % (SEL + 2, SEL + 3))
    A("v_cndmask_b32 v%d, v%d, 0, vcc" % (SEL + 3, SEL + 3))
    A("v_add_u32 v%d, v%d, v%d" % (SEL + 2, SEL + 2, SEL))
    A("v_add_u32 v%d, v%d, v%d" % (SEL + 3, SEL + 3, SEL + 1))
    for r in range(4):
        A("v_cmp_eq_u32 s[%d:%d], %d, %s" % (44 + 2 * r, 45 + 2 * r, r, u1))
    A("v_lshrrev_b32 %s, 2, %s" % (vMLW, vN))
    A("v_lshlrev_b32 %s, 4, %s" % (u1, vG))
    A("v_lshl_add_u32 %s, %s, 8, %s" % (vQA, vMLW, u1))
    for r in range(4):
        A("v_cndmask_b32 v%d, 0, %s, s[%d:%d]" % (MK + r, u0, 44 + 2 * r, 45 + 2 * r))
    A("s_lshl_b32 %s, %s, 11" % (t0, sW))
    A("v_lshl_add_u32 %s, %s, 9, %s" % (vOW, vG, vN16))
    A("v_add_u32 %s, %s, %s" % (vOW, t0, vOW))
    A("s_lshl_b32 %s, %s, 3" % (t0, sW))
    A("v_lshl_add_u32 %s, %s, 5, %s" % (vMLW, vMLW, t0))
    A("v_bfe_u32 %s, v0, 1, 1" % u0)
    A("v_lshrrev_b32 %s, 2, v0" % u1)
    A("v_lshlrev_b32 %s, 4, %s" % (u1, u1))
    A("v_lshl_add_u32 %s, %s, 8, %s" % (u1, u0, u1))
    A("v_lshl_add_u32 %s, %s, 3, %s" % (u1, vP, u1))
    A("s_lshl_b32 %s, %s, 9" % (t0, sW))
    A("v_add_u32 %s, %s, %s" % (vOR, t0, u1))
    KA = 140
    A("v_and_b32 %s, 3, v0" % u0)
    A("v_lshrrev_b32 %s, 2, %s" % (u1, vN))
    A("v_lshlrev_b32 %s, 8, %s" % (u1, u1))
    A("v_lshl_add_u32 %s, %s, 10, %s" % (u0, u0, u1))
    A("v_xor_b32 %s, %s, %s" % (u1, vG, vN))
    A("v_lshl_add_u32 %s, %s, 4, %s" % (u0, u1, u0))
    A("s_lshl_b32 %s, %s, 13" % (t1, sW))
    A("v_add_u32 v%d, %s, %s" % (KA, t1, u0))
    for s_ in range(1, 4):
        A("v_xor_b32 v%d, %d, v%d" % (KA + s_, s_ << 6, KA))
    for _ in range(o.get("delayA", 0)): A("s_nop 3")
    def issue_rest(WK_, W_):
        o_wk = o["WK"]; o["WK"] = WK_
        for i in range(nk_first, 8): kload(i)
        o["WK"] = o_wk
        if o["pretouch"] == "k": pretouch2()
        if o.get("xearly"):
            A("global_load_dword %s, %s, %s" % (vXP, vXF, sX)); issued[0] += 1
        for i in range(8):
            r = VR + i * 4
            load(W_, "global_load_dwordx4 v[%d:%d], %s, %s %s" % (r, r + 3, vV0, sV, nt))
            if i < 7:
                if rot(i) ^ rot(i + 1): A("v_xor_b32 %s, %d, %s" % (vV0, (rot(i) ^ rot(i + 1)) << 10, vV0))
                A("v_add_u32 %s, s42, %s" % (vV0, vV0))
    if o.get("bal"):
        C("a group that started well after others asks memory with a wider window")
        A("s_waitcnt vmcnt(%d)" % issued[0])
        A("v_sub_u32 v158, s90, v159")
        A("v_cmp_ne_u32 vcc, 0, v159")
        A("v_cmp_lt_i32 s[44:45], %d, v158" % o.get("theta", 40))
        A("s_and_b32 s62, vcc_lo, s44")
        A("s_and_b32 s62, s62, 0xff")
        A("s_bcnt1_i32_b32 s62, s62")
        A("s_cmp_ge_u32 s62, %d" % o.get("lateth", 2))
        A("s_cbranch_scc1 L_wide")
        keep = issued[0]
        issue_rest(o["WK"], o["W"])
        A("s_branch L_issued")
        LB("L_wide")
        issued[0] = keep
        issue_rest(o["WK"] + o["bal"], o["W"] + o["bal"])
        LB("L_issued")
    elif o.get("c3"):
        A("s_lshr_b32 %s, %s, 2" % (t0, sJ))
        A("s_cmp_eq_u32 %s, 3" % t0)
        A("s_cbranch_scc1 L_wide")
        keep = issued[0]
        issue_rest(o["WK"], o["W"])
        A("s_branch L_issued")
        LB("L_wide")
        issued[0] = keep
        issue_rest(o["WK"] + o["c3"], o["W"] + o.get("c3v", o["c3"]))
        LB("L_issued")
    else:
        issue_rest(o["WK"], o["W"])
    tail = []
    tail.append("global_load_dword %s, %s, %s" % (vXP, vXF, sX))
    for a in range(2):
        r = DNR + a * 4
        tail.append("global_load_dwordx4 v[%d:%d], %s, %s %s" % (r, r + 3, (vDN0, vDN1)[a], sDN, nt))
    for m in range(4):
        r = WOR + m * 4
        tail.append("global_load_dwordx4 v[%d:%d], %s, %s offset:%d %s" % (r, r + 3, (vWO0, vWO1)[m >> 1], sWO, (0, -4096)[(m & 1) == 0], nt))
    dnl = []
    if o.get("dnlate"):
        dnl = tail[1:1 + 2]
        if o["dnlate"] == 2: dnl = dnl[1:]
        for t_ in dnl: tail.remove(t_)
        tail.append(tail.pop(0))
    if isinstance(o["pretouch"], int):
        tail.insert(o["pretouch"], "global_load_dword v159, v158, %s sc1" % sWS)
    if o.get("xearly"):
        xl = [t_ for t_ in tail if vXP + "," in t_][0]; tail.remove(xl)
    nav = [0]
    def tail_issue(n):
        for _ in range(n):
            if tail:
                A(tail.pop(0)); nav[0] += 1
    A("s_waitcnt vmcnt(8)")
    for t in range(2):
        for s in range(4):
            r = KR + (t * 4 + s) * 4
            A("ds_read_b128 v[%d:%d], v%d offset:%d" % (r, r + 3, KA + s, L_K + t * 4096))
    tail_issue(o["ntail0"])
    stamp(2)
    A("s_waitcnt lgkmcnt(0)")
    A("s_barrier")
    stamp(3)
    for s in range(4):
        A("ds_read_b128 v[%d:%d], %s offset:%d" % (QR + 4 * s, QR + 4 * s + 3, vQA, L_Q + s * 64))
    if "a" in o["tsp"]: tail_issue(1)
    A("s_mov_b32 s46, 0x%x" % SCALE)
    A("s_mov_b32 %s, 0xffff0000" % t1)
    A("s_mov_b32 s48, 0x%x" % LOG2E)
    for s in range(4):
        A("s_waitcnt lgkmcnt(%d)" % (3 - s))
        for t in range(2):
            mfma(SR + 4 * t, KR + (t * 4 + s) * 4, QR + 4 * s, None if s == 0 else SR + 4 * t)
    T = KR
    vH0, vH1, vFL, vTG = "v%d" % (T + 28), "v%d" % (T + 29), "v%d" % (T + 26), "v%d" % (T + 27)
    A("v_mov_b32 %s, %d" % (vFL, L_FLAG))
    A("s_lshl_b32 %s, %s, 5" % (t3, sW))
    A("v_mov_b32 v%d, %s" % (T + 31, t3))
    A("ds_read_b64 v[%d:%d], %s" % (T + 26, T + 27, vFL))
    if "b" in o["tsp"]:
        tail_issue(1); A("s_nop 1")
    else: A("s_nop 2")
    C("scores: bf16(qk) -> * scale -> bf16   (the reference's two roundings)")
    for i in range(8):
        A("v_cvt_pk_bf16_f32 v%d, 0, v%d" % (SR + i, SR + i))
    for i in range(4):
        A("v_pk_mul_f32 %s, %s, s[46:47] op_sel_hi:[1,0]" % (P2(SR + 2 * i), P2(SR + 2 * i)))
    for i in range(8):
        A("v_cvt_pk_bf16_f32 v%d, 0, v%d" % (SR + i, SR + i))
    vm, vt, vl = "v%d" % (T + 4), "v%d" % (T + 6), "v%d" % (T + 5)
    A("v_max3_f32 %s, v%d, v%d, v%d" % (vm, SR, SR + 1, SR + 2))
    A("v_max3_f32 %s, v%d, v%d, v%d" % (vt, SR + 3, SR + 4, SR + 5))
    A("v_max3_f32 %s, %s, v%d, v%d" % (vm, vm, SR + 6, SR + 7))
    A("v_max_f32 %s, %s, %s" % (vm, vm, vt))
    allred(vm, vt, "v_max_f32", 16)
    if "c" in o["tsp"]: tail_issue(1)
    allred(vm, vt, "v_max_f32", 32)
    A("v_mul_f32 %s, s48, %s" % (vm, vm))
    for i in range(4):
        A("v_pk_fma_f32 %s, %s, s[48:49], %s op_sel_hi:[1,0,0] neg_lo:[0,0,1] neg_hi:[0,0,1]" % (P2(SR + 2 * i), P2(SR + 2 * i), P2(T + 4)))
    for i in range(8):
        A("v_exp_f32 v%d, v%d" % (SR + i, SR + i))
    if "d" in o["tsp"]: tail_issue(1)
    for i in range(4):
        A("v_cvt_pk_bf16_f32 v%d, v%d, v%d" % (T + 8 + i, SR + 2 * i, SR + 2 * i + 1))
    for i in range(8):
        for r in range(2):
            A("v_perm_b32 v%d, v%d, v%d, v%d" % (PA + 2 * i + r, T + 8 + (i >> 1), T + 8 + (i >> 1), SEL + 2 * (i & 1) + r))
    stamp(4)
    O0, O1, Y = QR, QR + 4, QR + 8
    def pv(i):
        A("s_waitcnt vmcnt(%d)" % (7 - i + nav[0]))
        if i >= o["tlag"]: tail_issue((2 if i < o.get("tdbl", 0) else 1) if i < o.get("tlast", 7) else 9)
        vr = VR + 4 * i
        mfma16(O0, PA + 2 * i, vr, None if i == 0 else O0)
        mfma16(O1, PA + 2 * i, vr + 2, None if i == 0 else O1)
    A("v_pk_add_f32 %s, %s, %s" % (P2(SR), P2(SR), P2(SR + 2)))
    A("v_pk_add_f32 %s, %s, %s" % (P2(SR + 4), P2(SR + 4), P2(SR + 6)))
    A("v_pk_add_f32 %s, %s, %s" % (P2(SR), P2(SR), P2(SR + 4)))
    A("v_add_f32 %s, v%d, v%d" % (vl, SR, SR + 1))
    allred(vl, vt, "v_add_f32", 16)
    allred(vl, vt, "v_add_f32", 32)
    A("ds_write_b64 %s, v[%d:%d] offset:%d" % (vMLW, T + 4, T + 5, L_ML))
    A("s_waitcnt lgkmcnt(0)")
    A("v_readfirstlane_b32 %s, %s" % (sFAST, vFL))
    A("v_readfirstlane_b32 %s, %s" % (sTAG, vTG))
    HA = T + 16
    ML = T
    OB = T + 8
    G2 = SR
    vM, vLs = "v124", "v125"
    for i in range(o["b2"]): pv(i)
    if o.get("dbgb2"): A("s_memrealtime s[70:71]")
    A("s_barrier")
    if o.get("dbgb2"): A("s_memrealtime s[72:73]")
    A("ds_read_b128 v[%d:%d], v%d offset:%d" % (ML, ML + 3, T + 31, L_ML))
    A("ds_read_b128 v[%d:%d], v%d offset:%d" % (ML + 4, ML + 7, T + 31, L_ML + 16))
    if not o["hlate"]:
        A("ds_read_b32 %s, %s offset:%d" % (vH0, vHA, L_H))
        A("ds_read_b32 %s, %s offset:%d" % (vH1, vHA, L_H + 16))
    if o["vote"]:
        A("v_mov_b32 v%d, 0" % (T + 30))
        A("ds_read_b32 v%d, v%d offset:%d" % (T + 30, T + 30, L_FLAG + 8))
    A("s_mov_b32 s54, 0x55555555")
    A("s_mov_b32 s55, 0x55555555")
    A("v_mov_b32 v%d, %s" % (G2 + 3, sTAG))
    A("s_waitcnt lgkmcnt(%d)" % ((0 if o["hlate"] else 2) + (1 if o["vote"] else 0)))
    A("v_max3_f32 %s, v%d, v%d, v%d" % (vM, ML, ML + 2, ML + 4))
    A("v_max_f32 %s, %s, v%d" % (vM, vM, ML + 6))
    for w_ in range(4):
        A("v_sub_f32 v%d, v%d, %s" % (ML + 2 * w_, ML + 2 * w_, vM))
    for w_ in range(4):
        A("v_exp_f32 v%d, v%d" % (ML + 2 * w_, ML + 2 * w_))
    A("s_waitcnt lgkmcnt(0)")
    A("v_mul_f32 %s, v%d, v%d" % (vLs, ML, ML + 1))
    for w_ in range(1, 4):
        A("v_fmac_f32 %s, v%d, v%d" % (vLs, ML + 2 * w_, ML + 2 * w_ + 1))
    def h_operands():
        for a in range(2):
            for r in range(4):
                A("v_and_b32 v%d, %s, v%d" % (HA + 4 * a + r, (vH0, vH1)[a], MK + r))
    A("v_log_f32 v%d, %s" % (G2 + 2, vLs))
    A("v_rcp_f32 %s, %s" % (vLs, vLs))
    if not o["hlate"]: h_operands()
    else: A("s_nop 0")
    if o["vote"]: A("v_add_u32 %s, v%d, %s" % (vL3, T + 30, vL3))
    A("v_add_f32 v%d, v%d, %s" % (G2 + 2, G2 + 2, vM))
    for w_ in range(4):
        A("v_mul_f32 v%d, v%d, %s" % (ML + 2 * w_, ML + 2 * w_, vLs))
    for i in range(o["b2"], 8): pv(i)
    stamp(5)
    if o.get("nosync"):
        A("s_waitcnt vmcnt(0)")
        stamp(6)
        A("s_branch L_done")
    A("s_nop 6")
    A("ds_write_b128 %s, v[%d:%d] offset:%d" % (vOW, O0, O0 + 3, L_O))
    A("ds_write_b128 %s, v[%d:%d] offset:%d" % (vOW, O1, O1 + 3, L_O + 256))
    A("s_waitcnt lgkmcnt(0)")
    A("s_barrier")
    for w_ in range(4):
        A("ds_read_b64 v[%d:%d], %s offset:%d" % (OB + 2 * w_, OB + 2 * w_ + 1, vOR, L_O + w_ * 2048))
    A("s_cmp_eq_u32 %s, 0" % sFAST)
    for w_ in range(4):
        A("s_waitcnt lgkmcnt(%d)" % (3 - w_))
        op = "v_mul_f32" if w_ == 0 else "v_fmac_f32"
        A("%s v%d, v%d, v%d" % (op, G2, ML + 2 * w_, OB + 2 * w_))
        A("%s v%d, v%d, v%d" % (op, G2 + 1, ML + 2 * w_, OB + 2 * w_ + 1))
    tails = []
    def publish(addr, g, name):
        A("s_cbranch_scc1 L_slow_%s" % name)
        A("global_store_dwordx4 %s, v[%d:%d], %s %s" % (addr, g, g + 3, sWS, o.get("stfl", "")))
        LB("L_back_%s" % name)
        tails.append((name, addr, g))
    A("v_cvt_pk_bf16_f32 v%d, v%d, v%d" % (G2, G2, G2 + 1))
    A("s_nop 1")
    A("v_mov_b32_dpp v%d, v%d quad_perm:[1,1,3,3] %s" % (G2 + 1, G2, DPP))
    A("s_mov_b64 exec, s[54:55]")
    publish(vS2, G2, "h2")
    A("s_mov_b64 exec, -1")
    stamp(6)
    P = T
    for i in range(2):
        A("global_load_dwordx4 v[%d:%d], %s, %s offset:%d sc1" % (P + 4 * i, P + 4 * i + 3, vL2, sWS, i * 1024))
    for t_ in dnl: A(t_)
    if o["hlate"]:
        A("s_barrier")
        A("ds_read_b32 %s, %s offset:%d" % (vH0, vHA, L_H))
        A("ds_read_b32 %s, %s offset:%d" % (vH1, vHA, L_H + 16))
    A("s_mov_b32 %s, %d" % (sCNT, o["spinmax"]))
    vTAG = "v127"
    sT2 = sTAG
    if o["reuse"]:
        sT2 = "s62"
        A("s_not_b32 %s, %s" % (t0, sTAG))
        A("s_lshl_b32 %s, %s, 24" % (t0, t0))
        A("s_and_b32 s62, %s, 0xffffff" % sTAG)
        A("s_or_b32 s62, s62, %s" % t0)
    A("v_mov_b32 %s, %s" % (vTAG, sT2))
    for k in range(4):
        A("s_mov_b32 s%d, 0x%x" % (56 + k, 0x07060500 | k))
        A("s_bfe_u32 s%d, %s, 0x%x" % (60 + k if k < 2 else 50 + k, sT2, 0x80000 | (8 * k)))
    TB = ["s60", "s61", "s52", "s53"]
    if o["hlate"]:
        A("s_waitcnt lgkmcnt(0)")
        h_operands()
    ndn_early = 2 - len(dnl)
    A("s_waitcnt vmcnt(%d)" % (3 + len(dnl)))
    for a in range(ndn_early):
        mfma(Y, HA + 4 * a, DNR + 4 * a, None if a == 0 else Y)
    if dnl:
        A("s_waitcnt vmcnt(%d)" % len(dnl))
        A("s_branch L_chk2b")
    else:
        A("s_branch L_chk2")
    LB("L_poll2")
    MS = ["s[44:45]", "s[46:47]"]
    for i in range(2):
        if o["mask2"]: A("s_mov_b64 exec, %s" % MS[i])
        A("global_load_dwordx4 v[%d:%d], %s, %s offset:%d sc1" % (P + 4 * i, P + 4 * i + 3, vL2, sWS, i * 1024))
    if o["mask2"]: A("s_mov_b64 exec, -1")
    A("s_sub_u32 %s, %s, 1" % (sCNT, sCNT))
    A("s_cbranch_scc1 L_end")
    LB("L_chk2")
    A("s_waitcnt vmcnt(0)")
    LB("L_chk2b")
    A("v_max_f32 %s, v%d, v%d" % (vM, P + 2, P + 6))
    for i in range(2):
        A("v_cmp_ne_u32 %s, %s, v%d" % (MS[i], sTAG, P + 4 * i + 3))
    A("v_max_f32_dpp %s, %s, %s row_ror:4 %s" % (vM, vM, vM, DPP))
    A("s_or_b64 vcc, %s, %s" % (MS[0], MS[1]))
    A("s_cbranch_scc1 L_poll2")
    stamp(7)
    U = T + 8
    def unp(i, k):
        if k & 1: A("v_and_b32 v%d, %s, v%d" % (U + 4 * i + k, t1, P + 4 * i + (k >> 1)))
        else: A("v_lshlrev_b32 v%d, 16, v%d" % (U + 4 * i + k, P + 4 * i + (k >> 1)))
    vt2 = "v126"
    A("v_max_f32_dpp %s, %s, %s row_ror:8 %s" % (vM, vM, vM, DPP))
    A("v_mov_b32 %s, %s" % (vt2, vM))
    unp(0, 0); unp(0, 1)
    A("v_permlane16_swap_b32 %s, %s" % (vt2, vM))
    A("v_max_f32 %s, %s, %s" % (vM, vM, vt2))
    A("v_mov_b32 %s, %s" % (vt2, vM))
    unp(0, 2); unp(0, 3)
    A("v_permlane32_swap_b32 %s, %s" % (vt2, vM))
    A("v_max_f32 %s, %s, %s" % (vM, vM, vt2))
    w0, w1 = "v120", "v122"
    A("v_sub_f32 %s, v%d, %s" % (w0, P + 2, vM))
    A("v_sub_f32 %s, v%d, %s" % (w1, P + 6, vM))
    A("v_exp_f32 %s, %s" % (w0, w0))
    A("v_exp_f32 %s, %s" % (w1, w1))
    unp(1, 0)
    den, tA, tB = "v126", "v124", "v123"
    A("v_add_f32 %s, %s, %s" % (den, w0, w1))
    unp(1, 1); unp(1, 2)
    A("v_add_f32_dpp %s, %s, %s row_ror:4 %s" % (den, den, den, DPP))
    unp(1, 3)
    A("v_pk_mul_f32 %s, %s, v[120:121] op_sel_hi:[1,0]" % (P2(U), P2(U)))
    A("v_add_f32_dpp %s, %s, %s row_ror:8 %s" % (den, den, den, DPP))
    A("v_pk_mul_f32 %s, %s, v[120:121] op_sel_hi:[1,0]" % (P2(U + 2), P2(U + 2)))
    A("v_pk_fma_f32 %s, %s, v[122:123], %s op_sel_hi:[1,0,1]" % (P2(U), P2(U + 4), P2(U)))
    A("v_pk_fma_f32 %s, %s, v[122:123], %s op_sel_hi:[1,0,1]" % (P2(U + 2), P2(U + 6), P2(U + 2)))
    A("v_mov_b32 %s, %s" % (tA, den))
    A("s_cmp_eq_u32 %s, 0" % sFAST)
    A("v_permlane32_swap_b32 v%d, v%d" % (U, U + 2))
    A("v_permlane32_swap_b32 v%d, v%d" % (U + 1, U + 3))
    A("v_permlane32_swap_b32 %s, %s" % (tA, den))
    A("v_pk_add_f32 %s, %s, %s" % (P2(U), P2(U), P2(U + 2)))
    A("v_add_f32 %s, %s, %s" % (den, den, tA))
    A("s_mov_b32 %s, %d" % (sCNT, o["spinmax"]))
    A("v_permlane16_swap_b32 v%d, v%d" % (U, U + 1))
    A("v_mov_b32 %s, %s" % (tA, den))
    A("v_add_f32 v%d, v%d, v%d" % (U, U, U + 1))
    A("s_nop 0")
    A("v_permlane16_swap_b32 %s, %s" % (tA, den))
    A("v_add_f32_dpp v%d, v%d, v%d row_ror:4 %s" % (U, U, U, DPP))
    A("v_add_f32 %s, %s, %s" % (den, den, tA))
    A("v_rcp_f32 %s, %s" % (den, den))
    A("v_add_f32_dpp v%d, v%d, v%d row_ror:8 %s" % (U, U, U, DPP))
    a0 = "v125"
    A("v_mul_f32 %s, v%d, %s" % (a0, U, den))
    A("v_cvt_pk_bf16_f32 %s, %s, %s" % (a0, a0, a0))
    A("s_nop 1")
    WA = T
    for m in range(4):
        for r in range(4):
            A("v_and_b32_dpp v%d, %s, v%d row_newbcast:%d %s" % (WA + 4 * m + r, a0, MK + r, m, DPP))
        if m > 0:
            mfma(Y, WA + 4 * (m - 1), WOR + 4 * (m - 1), Y if (m > 1 or ndn_early) else None)
    if dnl:
        A("s_waitcnt vmcnt(0)")
        for a in range(ndn_early, 2):
            mfma(Y, HA + 4 * a, DNR + 4 * a, Y)
    else:
        A("s_nop 1")
    mfma(Y, WA + 12, WOR + 12, Y)
    A("s_mov_b32 exec_hi, 0")
    if o["reuse"]:
        A("s_barrier")
        A("s_nop 5")
    else:
        A("s_nop 6")
    for k in range(4):
        A("v_perm_b32 v%d, v%d, %s, s%d" % (Y + k, Y + k, vTAG, 56 + k))
    publish(vS25, Y, "h25")
    stamp(8)
    NP = o["np25"]
    PS = T + 16
    if o.get("ack25"): A("s_waitcnt vmcnt(0)")
    for _ in range(o.get("dly25", 0)): A("s_nop 7")
    for k in range(NP):
        A("global_load_dwordx4 v[%d:%d], %s, %s sc1" % (PS + 4 * k, PS + 4 * k + 3, vL25, sWS))
    LB("L_poll25")
    for k in range(NP):
        A("s_waitcnt vmcnt(%d)" % (NP - 1))
        for q in range(4):
            A("v_xor_b32 v%d, %s, v%d" % (P + q, TB[q], PS + 4 * k + q))
        A("v_or3_b32 %s, v%d, v%d, v%d" % (tA, P, P + 1, P + 2))
        A("v_or_b32_sdwa %s, %s, v%d dst_sel:DWORD dst_unused:UNUSED_PAD src0_sel:BYTE_0 src1_sel:BYTE_0" % (tA, tA, P + 3))
        A("v_cmp_ne_u32 vcc, 0, %s" % tA)
        if o["mask25"]:
            A("s_and_b64 exec, exec, vcc")
            A("s_cbranch_scc0 L_got25")
        else:
            A("s_cbranch_vccz L_got25")
        A("global_load_dwordx4 v[%d:%d], %s, %s sc1" % (PS + 4 * k, PS + 4 * k + 3, vL25, sWS))
    A("s_sub_u32 %s, %s, 1" % (sCNT, sCNT))
    A("s_cbranch_scc0 L_poll25")
    A("s_endpgm")
    LB("L_got25")
    A("s_mov_b64 exec, -1")
    stamp(9)
    x_, y_ = "v%d" % P, "v%d" % (P + 1)
    A("v_permlane16_swap_b32 v%d, v%d" % (P, P + 2))
    A("v_permlane16_swap_b32 v%d, v%d" % (P + 1, P + 3))
    A("v_add_f32 %s, %s, v%d" % (x_, x_, P + 2))
    A("v_add_f32 %s, %s, v%d" % (y_, y_, P + 3))
    fl = ["v_mov_b32 v%d, %s" % (P + 3, sTAG), "s_and_b32 %s, %s, 7" % (t0, sJ), "s_cmp_eq_u32 %s, %s" % (t0, sH), "s_nop 0"]
    for rot_ in (1, 2, 4, 8):
        A(fl.pop(0))
        A("v_add_f32_dpp %s, %s, %s row_ror:%d %s" % (x_, x_, x_, rot_, DPP))
        A("v_add_f32_dpp %s, %s, %s row_ror:%d %s" % (y_, y_, y_, rot_, DPP))
    A("s_cbranch_scc1 L_final")
    A("s_mov_b64 exec, 0x%x" % (0x30003 if o["rep3"] or o["vote"] else 0x10001))
    A("global_store_dwordx4 %s, v[%d:%d], %s sc1" % (vS3, P, P + 3, sWS))
    if o.get("wb"):
        A("s_or_b32 %s, %s, %s" % (t0, sW, sJ) if o["wb"] == 1 else "s_and_b32 %s, %s, 3" % (t0, sW))
        A("s_cmp_lg_u32 %s, %d" % (t0, 8 if o["wb"] == 1 else 0))
        A("s_cbranch_scc1 L_done")
        A("buffer_wbl2 sc1")
    A("s_branch L_done")
    LB("L_final")
    if o.get("ewg"): A("s_xor_b32 s63, s2, %d" % o["ewg"])
    if o.get("otouch"):
        A("global_load_dword v158, %s, %s" % (vXF, sOUT))
    A("s_lshl_b32 %s, 0x10001, %s" % (t0, sH))
    A("s_andn2_b32 exec_lo, 0xff00ff, %s" % t0)
    A("s_mov_b32 exec_hi, 0")
    A("s_mov_b32 %s, %d" % (sCNT, o["spinmax"]))
    NP = o["np3"]
    PS = VR
    for k in range(NP):
        A("global_load_dwordx4 v[%d:%d], %s, %s sc1" % (PS + 4 * k, PS + 4 * k + 3, vL3, sWS))
    LB("L_poll3")
    for k in range(NP):
        A("s_waitcnt vmcnt(%d)" % (NP - 1))
        A("v_cmp_ne_u32 vcc, %s, v%d" % (sTAG, PS + 4 * k + 3))
        A("v_mov_b32 v%d, v%d" % (P, PS + 4 * k))
        A("v_mov_b32 v%d, v%d" % (P + 1, PS + 4 * k + 1))
        A("s_and_b64 exec, exec, vcc")
        A("s_cbranch_scc0 L_got3")
        A("global_load_dwordx4 v[%d:%d], %s, %s sc1" % (PS + 4 * k, PS + 4 * k + 3, vL3, sWS))
    A("s_sub_u32 %s, %s, 1" % (sCNT, sCNT))
    A("s_cbranch_scc0 L_poll3")
    A("s_endpgm")
    LB("L_got3")
    stamp(10)
    A("s_mov_b32 exec_lo, -1")
    A("v_lshlrev_b32 %s, 16, %s" % (tA, vXP))
    A("v_and_b32 %s, %s, %s" % (tB, t1, vXP))
    for pat in ("quad_perm:[1,0,3,2]", "quad_perm:[2,3,0,1]", "row_half_mirror"):
        A("v_add_f32_dpp %s, %s, %s %s %s" % (x_, x_, x_, pat, DPP))
        A("v_add_f32_dpp %s, %s, %s %s %s" % (y_, y_, y_, pat, DPP))
        if pat != "row_half_mirror": A("s_nop 0")
    A("v_add_f32 %s, %s, %s" % (x_, x_, tA))
    A("v_add_f32 %s, %s, %s" % (y_, y_, tB))
    if o.get("perturb"):
        import struct
        bits = struct.unpack("<I", struct.pack("<f", float(o["perturb"])))[0]
        if o.get("pall"):
            A("v_mul_f32 %s, 0x%x, %s" % (x_, bits, x_)); A("v_mul_f32 %s, 0x%x, %s" % (y_, bits, y_))
        else:
            A("s_or_b32 %s, s2, %s" % (t0, sW))
            A("s_cselect_b32 %s, 0, 0x%x" % (t0, bits))
            A("v_add_f32 %s, %s, %s" % (x_, t0, x_))
    A("v_cvt_pk_bf16_f32 %s, %s, %s" % (x_, x_, y_))
    A("s_mov_b64 exec, 0x10001")
    A("global_store_dword %s, %s, %s %s" % (vXF, x_, sOUT, o.get("ofl", "")))
    A("s_or_b32 %s, %s, %s" % (t0, "s2" if not o.get("ewg") else "s63", sW))
    A("s_cbranch_scc1 L_done")
    C("the next launch must not mistake this launch's hand-off words for its own")
    A("v_mov_b32 %s, 0" % tA)
    A("v_mov_b32 %s, %s" % (tB, sTAG))
    A("global_store_dword %s, %s, %s %s" % (tA, tB, sWS, o.get("efl", "")))
    LB("L_done")
    if o.get("lateh") is not None:
        A("s_or_b32 %s, s2, %s" % (t0, sW))
        A("s_cbranch_scc1 L_nolate")
        A("s_mov_b64 exec, -1")
        A("v_and_b32 v2, 7, v0")
        A("v_lshlrev_b32 v2, 2, v2")
        A("global_load_dword v3, v2, s[24:25] sc1")
        A("s_waitcnt vmcnt(0)")
        for g_ in range(8): A("v_readlane_b32 s%d, v3, %d" % (64 + g_, g_))
        A("s_nop 3")
        for g_ in range(8): A("s_sub_u32 s%d, s%d, s90" % (64 + g_, 64 + g_))
        A("s_mov_b32 s72, s64")
        for g_ in range(1, 8): A("s_min_i32 s72, s72, s%d" % (64 + g_))
        if o["lateh"] == 8:
            A("s_mov_b32 s88, s64")
            for g_ in range(1, 8): A("s_max_i32 s88, s88, s%d" % (64 + g_))
        else:
            A("s_mov_b32 s88, s%d" % (64 + o["lateh"]))
        A("s_sub_u32 s88, s88, s72")
        A("s_mul_i32 s88, s88, 20")
        A("s_min_u32 s88, s88, 20000")
        A("s_add_u32 s88, s88, 1500")
        A("s_add_u32 s88, s88, s72")
        LB("L_latespin")
        A("s_memrealtime s[92:93]")
        A("s_waitcnt lgkmcnt(0)")
        A("s_sub_u32 s92, s92, s90")
        A("s_cmp_lt_u32 s92, s88")
        A("s_cbranch_scc1 L_latespin")
        LB("L_nolate")
    if o.get("amp"):
        if o["amp"] == "end": A("s_memrealtime s[88:89]")
        A("s_waitcnt lgkmcnt(0)")
        A("s_sub_u32 s88, s88, %s" % ("s86" if o.get("amp0") else "s90"))
        A("s_mul_i32 s88, s88, %d" % o.get("ampk", 10))
        A("s_min_u32 s88, s88, 20000")
        A("s_add_u32 s88, s88, 1500")
        LB("L_ampspin")
        A("s_memrealtime s[92:93]")
        A("s_waitcnt lgkmcnt(0)")
        A("s_sub_u32 s92, s92, s90")
        A("s_cmp_lt_u32 s92, s88")
        A("s_cbranch_scc1 L_ampspin")
    if o.get("pad"):
        LB("L_padspin")
        A("s_memrealtime s[92:93]")
        A("s_waitcnt lgkmcnt(0)")
        A("s_sub_u32 s92, s92, s90")
        A("s_cmp_lt_u32 s92, %d" % o["pad"])
        A("s_cbranch_scc1 L_padspin")
    dump_stamps()
    A("s_endpgm")
    for name, addr, g in tails:
        LB("L_slow_%s" % name)
        A("global_store_dwordx4 %s, v[%d:%d], %s sc1" % (addr, g, g + 3, sWS))
        A("s_branch L_back_%s" % name)
    LB("L_end")
    A("s_endpgm")
    head = HEADER.format(lds=o.get("lds", LDS_BYTES), k=KNAME); foot = FOOTER.format(k=KNAME, vg=o.get("vg", 168), sg=96)
    if o["align"]: L = align_runs(L, head, foot, o.get("minrun", 3), o.get("nopmin", 6))
    return head + "\n".join(L) + foot


if __name__ == "__main__":
    kw = {}
    out = "parallel_sum__sliding_block_cached__swiglu_ffn__decode.s"
    for a in sys.argv[1:]:
        k, v = a.split("=", 1)
        if k == "out": out = v; continue
        try: v = int(v) if k != "nlv" else v
        except ValueError: pass
        kw[k] = v
    open(out, "w").write(gen(**kw))
```

```python
import sys

KNAME = "parallel_sum__sliding_block_cached__swiglu_ffn__decode_kernel"

HEADER = """; Kernarg layout for this problem (96 bytes, ptrs only, base s[0:1]):
;   offset  72: d_out     shape=(1, 1, 512) dtype=bfloat16
; @launch grid=(256,1,1) block=(320,1,1) lds={lds}
.amdgcn_target "amdgcn-amd-amdhsa--gfx950"
.text
.globl {k}
.p2align 8
.type {k},@function
{k}:
"""
FOOTER = """
.section .rodata,"a"
.p2align 6
.amdhsa_kernel {k}
  .amdhsa_next_free_vgpr {vg}
  .amdhsa_next_free_sgpr {sg}
  .amdhsa_accum_offset {vg}
  .amdhsa_group_segment_fixed_size 0
  .amdhsa_kernarg_size 96
  .amdhsa_user_sgpr_count 2
  .amdhsa_user_sgpr_kernarg_segment_ptr 1
  .amdhsa_system_sgpr_workgroup_id_x 1
.end_amdhsa_kernel
"""

MB1A = 0x40000
MB1B = 0x80000
MB2 = 0x100000
MB25 = 0x400000
MB3 = 0x200000
STAMPS = 0x10000000
L_WQ = 0
L_FF = 16384
L_XN = 32768
L_Q = 33792
L_H = 34816
L_FLAG = 34848
L_VOTE = 34864
L_ML = 34880
L_TKT = 35008
L_FIN = L_XN
L_O = 35072
L_K = L_O + 8192
L_K = (L_K + 1023) // 1024 * 1024
LDS_BYTES = L_K + 32768
TAGC = 0x9E3779B9
LOG2E = 0x3FB8AA3B
SCALE = 0x3DB504F3
EPS = 0x3727C5AC
DPP = "row_mask:0xf bank_mask:0xf"

DEF = dict(stamps=False, spinmax=200000, WK=5, W=6, Wtail=8, b0pos=45, nt="nt", pretouch="k", atries=24,
           prefetch=True, b2=7, ntail0=0, tlag=0, mask2=False, pt1=True, rotm=4, rep3=False, tsp="", auxearly=True, hlate=False, vote=True, np25=1, np3=1, ack25=1, align=1, unr=2, mask25=True, lperm=0, nlv="43434343", reuse=1, rp=2176, bonly=0, bdefer=4, bskip=1, lastfin=0, npu=1, stag=0)


def _sizes(text):
    import subprocess, tempfile, os, re
    d = tempfile.mkdtemp()
    open(d + "/a.s", "w").write(text)
    subprocess.run(["clang", "-x", "assembler", "-target", "amdgcn-amd-amdhsa", "-mcpu=gfx950", "-c", d + "/a.s", "-o", d + "/a.o"], check=True)
    out = subprocess.run(["llvm-objdump", "-d", "--mcpu=gfx950", d + "/a.o"], capture_output=True, text=True).stdout
    r = []
    for ln in out.split("\n"):
        m = re.search(r"^\s+(\S+).*// ([0-9A-F]{12}): ((?:[0-9A-F]{8} ?)+)", ln)
        if m: r.append((m.group(1), 4 * len(m.group(3).split())))
    return r


def align_runs(L, head, foot, minrun=3, nopmin=6):
    ins = [i for i, l in enumerate(L) if l.startswith("    ") and not l.strip().startswith(";")]
    sz = _sizes(head + "\n".join(L) + foot)
    assert len(sz) == len(ins), (len(sz), len(ins))
    size = {i: s_[1] for i, s_ in zip(ins, sz)}
    mn = {i: s_[0] for i, s_ in zip(ins, sz)}
    out = list(L); extra = {}
    off = 0; k = 0
    while k < len(ins):
        i = ins[k]
        if size[i] == 8 and off % 8 == 4:
            run = 0
            while k + run < len(ins) and size[ins[k + run]] == 8: run += 1
            if run >= minrun:
                b = k - 1; done = False
                while b >= 0 and size[ins[b]] == 4:
                    j = ins[b]
                    if mn[j] == "s_nop" and int(out[j].split()[1]) >= 1:
                        out[j] = "    s_nop 0\n    s_nop %d" % (int(out[j].split()[1]) - 1)
                        size[j] = 8; off += 4; done = True
                        break
                    if mn[j].endswith("_e32") and not mn[j].startswith(("v_readfirstlane", "v_permlane")):
                        op = out[j].split()[0]
                        out[j] = out[j].replace(op, op.replace("_e32", "") + "_e64", 1)
                        size[j] = 8; off += 4; done = True
                        break
                    b -= 1
                if not done and run >= nopmin and k > 0 and not mn[ins[k - 1]].startswith(("s_branch", "s_endpgm")):
                    extra[i] = True; off += 4; done = True
                if not done and k > 0 and mn[ins[k - 1]].startswith(("s_branch", "s_endpgm")):
                    extra[ins[k - 1] + 1] = True; off += 4
            for q in range(run): off += 8
            k += run
            continue
        off += size[i]; k += 1
    res = []
    for i, l in enumerate(out):
        if i in extra: res.append("    s_nop 0")
        res.append(l)
    return res


def gen(**kw):
    o = dict(DEF); o.update(kw)
    L = []
    def A(s): L.append("    " + s)
    def LB(s): L.append(s + ":")
    def C(s): L.append("    ; " + s)
    nt = o["nt"]
    NSTAMP = 12
    role = ["U"]
    def stamp(i):
        if o.get("amp") == "%s%d" % (role[0], i): A("s_memrealtime s[88:89]" if not o.get("cyc") else "s_memtime s[88:89]")
        if o.get("amp0") == "%s%d" % (role[0], i): A("s_memrealtime s[86:87]" if not o.get("cyc") else "s_memtime s[86:87]")
        if o["stamps"] and (i in (0, 11) or o.get("sel") is None or ("%s%d" % (role[0], i)) in o["sel"].split(",")):
            A("s_memrealtime s[%d:%d]" % (64 + 2 * i, 65 + 2 * i))
    def mfma(d, a, b, c):
        A("v_mfma_f32_16x16x32_bf16 v[%d:%d], v[%d:%d], v[%d:%d], %s" % (d, d + 3, a, a + 3, b, b + 3, "0" if c is None else "v[%d:%d]" % (c, c + 3)))
    def mfma16(d, a, b, c):
        A("v_mfma_f32_16x16x16_bf16 v[%d:%d], v[%d:%d], v[%d:%d], %s" % (d, d + 3, a, a + 1, b, b + 1, "0" if c is None else "v[%d:%d]" % (c, c + 3)))
    def allred(v, tmp, op, which):
        A("v_mov_b32 %s, %s" % (tmp, v))
        A("s_nop 1")
        A("v_permlane%d_swap_b32 %s, %s" % (which, tmp, v))
        A("%s %s, %s, %s" % (op, v, v, tmp))
    sX, sK, sV, sWQ, sWO, sG, sU, sDN, sOUT, sWS = "s[4:5]", "s[6:7]", "s[8:9]", "s[10:11]", "s[12:13]", "s[16:17]", "s[18:19]", "s[20:21]", "s[22:23]", "s[26:27]"
    sW, sH, sJ, sTAG, sXCC, sCNT, sFAST = "s30", "s31", "s32", "s33", "s34", "s35", "s36"
    t0, t1, t2, t3 = "s37", "s38", "s39", "s40"
    def dump_stamps():
        if not o["stamps"]: return
        if role[0] == "U" and o.get("sel") is not None and "U" not in o["sel"]: return
        A("s_mov_b64 exec, 1")
        stamp(11)
        A("s_waitcnt lgkmcnt(0)")
        A("s_mul_i32 %s, s2, 5" % t0)
        A("s_add_u32 %s, %s, %s" % (t0, t0, sW))
        A("s_lshl_b32 %s, %s, 7" % (t0, t0))
        A("s_add_u32 %s, %s, 0x%x" % (t0, t0, STAMPS))
        A("v_mov_b32 v2, %s" % t0)
        for i in range(NSTAMP):
            A("v_mov_b32 v3, s%d" % (64 + 2 * i))
            A("global_store_dword v2, v3, %s offset:%d" % (sWS, 4 * i))
        A("v_mov_b32 v3, %s" % ("s63" if role[0] == "U" and o["vote"] else sCNT))
        A("global_store_dword v2, v3, %s offset:%d" % (sWS, 4 * NSTAMP))
        if o.get("dbgfail"):
            for q_, r_ in enumerate(("s84", "s62", "s63")):
                A("v_mov_b32 v3, %s" % r_)
                A("global_store_dword v2, v3, %s offset:%d" % (sWS, 4 * NSTAMP + 8 + 4 * q_))
        A("s_getreg_b32 %s, hwreg(HW_REG_HW_ID)" % t1)
        A("v_mov_b32 v3, %s" % t1)
        A("global_store_dword v2, v3, %s offset:%d" % (sWS, 4 * NSTAMP + 4))

    def amp_end(sfx):
        if o.get("ampg"):
            A("s_waitcnt vmcnt(0) lgkmcnt(0)")
            A("s_memrealtime s[88:89]")
            A("s_mov_b64 exec, -1")
            A("v_and_b32 v2, 7, v0")
            A("v_lshlrev_b32 v2, 2, v2")
            A("global_load_dword v3, v2, s[24:25] offset:128 sc1")
            A("s_waitcnt vmcnt(0) lgkmcnt(0)")
            for g_ in range(8): A("v_readlane_b32 s%d, v3, %d" % (64 + g_, g_))
            A("s_nop 3")
            for g_ in range(8): A("s_sub_u32 s%d, s88, s%d" % (64 + g_, 64 + g_))
            for g_ in range(1, 8): A("s_max_i32 s64, s64, s%d" % (64 + g_))
            A("s_mul_i32 s64, s64, 9")
            A("s_min_u32 s64, s64, 20000")
            A("s_add_u32 s64, s64, 1500")
            LB("L_ampgspin" + sfx)
            A("s_memrealtime s[92:93]")
            A("s_waitcnt lgkmcnt(0)")
            A("s_sub_u32 s92, s92, s88")
            A("s_cmp_lt_u32 s92, s64")
            A("s_cbranch_scc1 L_ampgspin" + sfx)
        if o.get("amp"):
            if o["amp"] == "end": A("s_memrealtime s[88:89]")
            A("s_waitcnt lgkmcnt(0)")
            A("s_sub_u32 s88, s88, %s" % ("s86" if o.get("amp0") else "s90"))
            A("s_mul_i32 s88, s88, %d" % o.get("ampk", 10))
            A("s_min_u32 s88, s88, 20000")
            A("s_add_u32 s88, s88, 1500")
            LB("L_ampspin" + sfx)
            A("s_memrealtime s[92:93]")
            A("s_waitcnt lgkmcnt(0)")
            A("s_sub_u32 s92, s92, s90")
            A("s_cmp_lt_u32 s92, s88")
            A("s_cbranch_scc1 L_ampspin" + sfx)
    nlv = [int(c) for c in str(o["nlv"])]
    assert len(nlv) == 8 and sum(nlv) == 28 and min(nlv) >= 0 and max(nlv) <= 4
    LUT_d = sum((4 - n) << (4 * i) for i, n in enumerate(nlv))
    LUT_D = sum((4 * i - sum(nlv[:i])) << (4 * i) for i in range(8))
    def ffn_share(l0, d):
        A("s_lshl_b32 %s, %s, 2" % (l0, sH))
        A("s_lshr_b32 %s, 0x%x, %s" % (d, LUT_D, l0))
        A("s_and_b32 %s, %s, 7" % (d, d))
        A("s_sub_u32 s3, %s, %s" % (l0, d))
        A("s_lshr_b32 %s, 0x%x, %s" % (d, LUT_d, l0))
        A("s_and_b32 %s, %s, 7" % (d, d))
    stamp(0)
    if o.get("pad") or o.get("bal") or o.get("amp") or o.get("ampg") or o.get("lateh") is not None: A("s_memrealtime s[90:91]")
    A("s_cmp_ge_u32 s2, 256")
    A("s_cbranch_scc1 L_end")
    A("s_load_dwordx16 s[4:19], s[0:1], 0")
    A("s_load_dwordx8 s[20:27], s[0:1], 64")
    A("v_lshrrev_b32 v1, 6, v0")
    A("v_and_b32 v0, 63, v0")
    A("v_readfirstlane_b32 %s, v1" % sW)
    A("s_and_b32 %s, s2, 7" % sH)
    A("s_lshr_b32 %s, s2, 3" % sJ)
    if o.get("bal") or o.get("lateh") is not None or o.get("ampg"):
        A("s_or_b32 %s, %s, %s" % (t0, sJ, sW))
        A("s_cbranch_scc1 L_noflag")
        A("s_lshl_b32 %s, %s, 2" % (t0, sH))
        A("v_mov_b32 v108, %s" % t0)
        A("s_waitcnt lgkmcnt(0)")
        A("s_or_b32 %s, s90, 1" % t0)
        A("v_mov_b32 v109, %s" % t0)
        A("global_store_dword v108, v109, s[24:25] offset:%d sc1" % (128 if o.get("ampg") else 0))
        LB("L_noflag")
    A("s_cmp_eq_u32 %s, 4" % sW)
    A("s_cbranch_scc0 %s" % ("L_race" if o["vote"] else "L_attn"))

    C("wave 4: layernorm, one [128 x 64] tile of wq and one of gate/up, exchange of q and of the FFN hidden values")
    A("s_setprio 3")
    if o["prefetch"]:
        A("s_getpc_b64 s[28:29]")
        LB("L_pc")
        A("v_lshlrev_b32 v2, 7, v0")
        A("v_min_u32 v2, L_end-L_pc, v2")
        A("global_load_dword v127, v2, s[28:29]")
    sQK, sNOFF = "s50", "s51"
    A("v_lshlrev_b32 v3, 4, v0")
    A("v_lshrrev_b32 v6, 3, v0")
    A("v_and_b32 v5, 2, v6")
    A("v_and_b32 v7, 7, v0")
    A("v_xor_b32 v5, v5, v7")
    A("v_lshlrev_b32 v7, 4, v5")
    A("s_and_b32 %s, %s, 3" % (sQK, sJ))
    A("s_lshl_b32 %s, %s, 10" % (t0, sH))
    if o["lperm"]:
        A("s_andn2_b32 %s, %s, 3" % (t1, sJ))
        A("s_lshr_b32 %s, 0x%x, %s" % (t1, o["lperm"], t1))
        A("s_and_b32 s55, %s, 7" % t1)
    else:
        A("s_lshr_b32 s55, %s, 2" % sJ)
    A("s_lshl_b32 %s, s55, 7" % t1)
    A("s_lshl_b32 %s, %s, 20" % (t2, sQK))
    A("s_add_u32 %s, %s, %s" % (t0, t0, t1))
    A("s_add_u32 %s, %s, %s" % (t0, t0, t2))
    A("v_lshl_add_u32 v4, v6, 13, v7")
    A("v_add_u32 v4, %s, v4" % t0)
    A("v_xor_b32 v5, 64, v4")
    A("v_add_u32 v5, 0x10000, v5")
    A("s_mov_b32 m0, %d" % L_WQ)
    A("s_mov_b32 %s, 0x20000" % t1)
    if o.get("ucontig"):
        A("s_lshl_b32 %s, s2, 10" % t0)
        A("v_add_u32 v4, %s, v3" % t0)
        A("v_add_u32 v5, 0x40000, v4")
        A("s_mov_b32 %s, 0x80000" % t1)
    A("s_movk_i32 s41, 1024")
    A("s_waitcnt lgkmcnt(0)")
    A("global_load_dwordx4 v[8:11], v3, %s" % sX)
    A("s_load_dword %s, %s, 0" % (sTAG, sWS))
    def dma_loop(name, base, step):
        A("s_mov_b32 %s, %d" % (t2, 16 // o["unr"]))
        LB(name)
        for i in range(o["unr"]):
            vv = ("v4", "v5")[i & 1]
            A("global_load_lds_dwordx4 %s, %s %s" % (vv, base, nt))
            A("s_add_u32 m0, m0, s41")
            A("v_add_u32 %s, %s, %s" % (vv, step, vv))
        A("s_sub_u32 %s, %s, 1" % (t2, t2))
        A("s_cmp_lg_u32 %s, 0" % t2)
        A("s_cbranch_scc1 %s" % name)
    dma_loop("L_wq_loop", sWQ, t1)
    if o["b0pos"] == 16: A("s_barrier")
    ffn_share(t0, t3)
    A("s_lshr_b32 %s, %s, 3" % (t1, sJ))
    A("s_add_u32 %s, s3, %s" % (t0, t1))
    A("s_add_u32 %s, %s, %s" % (sNOFF, t1, t3))
    A("s_mul_i32 %s, %s, 3584" % (t1, sQK))
    A("s_add_u32 %s, %s, %s" % (t0, t0, t1))
    A("s_lshl_b32 %s, %s, 7" % (t0, t0))
    A("v_mul_u32_u24 v4, 3584, v6")
    A("v_add3_u32 v4, v4, v7, %s" % t0)
    A("v_xor_b32 v5, 64, v4")
    A("v_add_u32 v5, %d, v5" % (8 * 3584))
    A("s_mov_b32 %s, %d" % (t1, 16 * 3584))
    if o.get("ucontig"):
        A("s_lshr_b32 %s, s2, 1" % t0)
        A("s_min_u32 %s, %s, 111" % (t0, t0))
        A("s_lshl_b32 %s, %s, 10" % (t0, t0))
        A("v_add_u32 v4, %s, v3" % t0)
        A("v_add_u32 v5, %d, v4" % (112 * 1024))
        A("s_mov_b32 %s, %d" % (t1, 224 * 1024))
    A("s_bitcmp0_b32 %s, %d" % (("s2", 0) if o.get("ucontig") else (sJ, 2)))
    A("s_cselect_b64 s[42:43], %s, %s" % (sG, sU))
    A("s_cmp_ge_u32 %s, 4" % sNOFF)
    A("s_cselect_b64 exec, 1, -1")
    dma_loop("L_ff_loop", "s[42:43]", t1)
    A("s_mov_b64 exec, -1")
    if o["vote"]:
        A("s_branch L_unit2")
        LB("L_race")
        C("which of the two copies of the last hand-off lives nearer to this die: race two cold scalar loads of this wave's own lines")
        A("s_lshl_b32 %s, s2, 2" % t0)
        A("s_add_u32 %s, %s, %s" % (t0, t0, sW))
        A("s_lshr_b32 %s, %s, 6" % (t1, t0))
        A("s_lshl_b32 %s, %s, 14" % (t1, t1))
        A("s_and_b32 %s, %s, 63" % (t0, t0))
        A("s_lshl_b32 %s, %s, 7" % (t0, t0))
        A("s_add_u32 %s, %s, %s" % (t0, t0, t1))
        A("s_bitset1_b32 %s, 21" % t0)
        A("s_lshl_b32 %s, %s, 13" % (t1, sW))
        A("s_and_b32 %s, %s, 0x2000" % (t1, t1))
        A("s_or_b32 s46, %s, %s" % (t0, t1))
        A("s_xor_b32 s47, s46, 0x2000")
        A("s_movk_i32 s28, 0x5bd1")
        A("s_movk_i32 s29, 0x5bd1")
        A("s_waitcnt lgkmcnt(0)")
        A("s_load_dword s28, %s, s46" % sWS)
        A("s_load_dword s29, %s, s47" % sWS)
        A("s_waitcnt lgkmcnt(1)")
        A("s_mov_b64 s[48:49], s[28:29]")
        LB("L_race_done")
        A("s_cmpk_lg_i32 s48, 0x5bd1")
        A("s_cselect_b32 %s, 1, 0" % t0)
        A("s_cmpk_lg_i32 s49, 0x5bd1")
        A("s_cselect_b32 %s, 1, 0" % t2)
        A("s_sub_i32 %s, %s, %s" % (t0, t0, t2))
        A("s_sub_i32 %s, 0, %s" % (t2, t0))
        A("s_cmp_eq_u32 %s, 0" % t1)
        A("s_cselect_b32 %s, %s, %s" % (t0, t0, t2))
        A("s_lshl_b32 %s, %s, 2" % (t2, sW))
        A("v_mov_b32 v158, %s" % t2)
        A("v_mov_b32 v159, %s" % t0)
        A("ds_write_b32 v158, v159 offset:%d" % L_VOTE)
        A("s_branch L_attn")
        LB("L_unit2")
    if o["pt1"]:
        C("pull this workgroup's own hand-off lines into L2 before anyone polls them")
        A("s_lshl_b32 %s, %s, 15" % (t0, sH))
        A("s_lshl_b32 %s, %s, 8" % (t1, sJ))
        A("s_add_u32 %s, %s, %s" % (t0, t0, t1))
        A("s_add_u32 %s, %s, 0x%x" % (t0, t0, MB1A))
        A("v_and_b32 v33, 1, v0")
        A("v_bfe_u32 v32, v0, 1, 1")
        A("v_lshlrev_b32 v33, 7, v33")
        A("v_lshl_add_u32 v33, v32, 13, v33")
        A("s_mul_i32 %s, %s, 240" % (t1, sJ))
        A("s_sub_u32 %s, 0x4000, %s" % (t1, t1))
        A("v_cmp_lt_u32 vcc, 3, v0")
        A("v_mov_b32 v32, %s" % t1)
        A("s_nop 0")
        A("v_cndmask_b32 v33, v33, v32, vcc")
        A("v_add_u32 v33, %s, v33" % t0)
        A("global_load_dword v119, v33, %s sc1" % sWS)
    def tlbwarm():
        C("first touch of the pages the later loads use (address translation early, off their queue)")
        A("s_lshl_b32 %s, %s, 24" % (t0, sH))
        A("s_add_u32 %s, %s, 0xF00000" % (t0, t0))
        A("v_mov_b32 v112, %s" % t0)
        A("s_lshl_b32 %s, %s, 19" % (t0, sH))
        A("v_mov_b32 v113, %s" % t0)
        A("s_mul_i32 %s, %s, 0x38000" % (t0, sH))
        A("v_mov_b32 v114, %s" % t0)
        A("v_mov_b32 v115, 0x%x" % MB3)
        A("s_mov_b64 exec, 1")
        A("global_load_dword v116, v112, %s" % sK)
        A("global_load_dword v117, v112, %s" % sV)
        A("global_load_dword v118, v113, %s" % sWO)
        A("global_load_dword v111, v114, %s" % sDN)
        A("global_load_dword v110, v115, %s" % sWS)
        A("s_mov_b64 exec, -1")
    NW = 1 if o["pt1"] else 0
    if o.get("tlbw") == 2:
        tlbwarm(); NW += 5
    if o["b0pos"] == 32:
        if o.get("b0wait") is not None: A("s_waitcnt vmcnt(%d)" % o["b0wait"])
        A("s_barrier")
    stamp(1)
    XF = 12
    A("s_mov_b32 %s, 0xffff0000" % t1)
    A("s_waitcnt vmcnt(%d)" % (32 + NW))
    stamp(2)
    C("layernorm with the reference's bf16 roundings")
    for i in range(4):
        A("v_lshlrev_b32 v%d, 16, v%d" % (XF + 2 * i, 8 + i))
        A("v_and_b32 v%d, %s, v%d" % (XF + 2 * i + 1, t1, 8 + i))
    fill = []
    def F(s): fill.append(s)
    def nop2():
        n = 0
        while fill and n < 2:
            A(fill.pop(0)); n += 1
        if n < 2: A("s_nop %d" % (1 - n))
    TRB = 120
    vAX, vS1, vL1, vL1x, vL1a, vF, vTN, vTB = "v34", "v35", "v36", "v37", "v38", "v39", "v124", "v125"
    sRP, sB1 = "s52", "s53"
    F("v_lshrrev_b32 v126, 4, v0")
    F("v_bfe_u32 v4, v0, 2, 2")
    F("v_lshl_add_u32 v5, v126, 3, v4")
    F("v_and_b32 v6, 3, v0")
    F("v_lshlrev_b32 v7, 3, v6")
    F("v_lshl_add_u32 v5, v5, 7, v7")
    F("v_bfe_u32 v4, v0, 3, 2")
    for ct in range(4):
        F("v_xor_b32 v7, %d, v4" % ct)
        F("v_lshl_add_u32 v%d, v7, 5, v5" % (TRB + ct))
    F("s_lshl_b32 %s, %s, 8" % (t0, sQK))
    F("v_lshl_add_u32 %s, v126, 4, %s" % (vAX, t0))
    F("s_lshl_b32 %s, %s, 15" % (sB1, sH))
    F("s_add_u32 %s, %s, 0x%x" % (sB1, sB1, MB1A))
    def wavesum(v, tmp):
        for rot in (1, 2, 4, 8):
            nop2()
            A("v_add_f32_dpp %s, %s, %s row_ror:%d %s" % (v, v, v, rot, DPP))
        for which in (16, 32):
            A("v_mov_b32 %s, %s" % (tmp, v))
            nop2()
            A("v_permlane%d_swap_b32 %s, %s" % (which, tmp, v))
            A("v_add_f32 %s, %s, %s" % (v, v, tmp))
    def P2(r): return "v[%d:%d]" % (r, r + 1)
    A("v_pk_add_f32 v[22:23], %s, %s" % (P2(XF), P2(XF + 2)))
    A("v_pk_add_f32 v[24:25], %s, %s" % (P2(XF + 4), P2(XF + 6)))
    A("v_pk_add_f32 v[22:23], v[22:23], v[24:25]")
    A("v_add_f32 v22, v22, v23")
    wavesum("v22", "v23")
    A("v_mul_f32 v22, 0x3b000000, v22")
    DV = 24
    for i in range(4):
        A("v_pk_add_f32 %s, %s, v[22:23] op_sel_hi:[1,0] neg_lo:[0,1] neg_hi:[0,1]" % (P2(DV + 2 * i), P2(XF + 2 * i)))
    A("v_cvt_pk_bf16_f32 v22, 0, v22")
    A("v_pk_mul_f32 v[32:33], %s, %s" % (P2(DV), P2(DV)))
    for i in range(1, 4):
        A("v_pk_fma_f32 v[32:33], %s, %s, v[32:33]" % (P2(DV + 2 * i), P2(DV + 2 * i)))
    A("v_add_f32 v32, v32, v33")
    pre = ["v_pk_add_f32 %s, %s, v[22:23] op_sel_hi:[1,0] neg_lo:[0,1] neg_hi:[0,1]" % (P2(XF + 2 * i), P2(XF + 2 * i)) for i in range(4)]
    pre += ["v_cvt_pk_bf16_f32 v%d, 0, v%d" % (XF + i, XF + i) for i in range(8)]
    rest = fill[:]; fill[:] = pre
    wavesum("v32", "v33")
    fill[:] = fill + rest
    A("v_mul_f32 v32, 0x3b000000, v32")
    A("v_cvt_pk_bf16_f32 v32, 0, v32")
    A("v_add_f32 v32, 0x%x, v32" % EPS)
    A("v_cvt_pk_bf16_f32 v32, 0, v32")
    A("v_sqrt_f32 v32, v32")
    A(fill.pop(0))
    A("v_cvt_pk_bf16_f32 v32, 0, v32")
    A("v_rcp_f32 v32, v32")
    A(fill.pop(0))
    for i in range(4):
        A("v_pk_mul_f32 %s, %s, v[32:33] op_sel_hi:[1,0]" % (P2(XF + 2 * i), P2(XF + 2 * i)))
    for i in range(4):
        A("v_cvt_pk_bf16_f32 v%d, v%d, v%d" % (8 + i, XF + 2 * i, XF + 2 * i + 1))
    A("ds_write_b128 v3, v[8:11] offset:%d" % L_XN)
    while fill: A(fill.pop(0))
    A("s_lshl_b32 %s, s55, 2" % t2)
    A("s_add_u32 s55, %s, %s" % (t2, sQK))
    A("s_lshl_b32 %s, s55, 8" % t2)
    A("s_add_u32 %s, %s, %s" % (t2, t2, sB1))
    A("v_lshrrev_b32 v4, 2, v0")
    A("v_lshl_add_u32 %s, v4, 4, %s" % (vS1, t2))
    A("s_waitcnt lgkmcnt(0)")
    AF = 40
    for m in range(4):
        A("ds_read_b128 v[%d:%d], %s offset:%d" % (AF + 4 * m, AF + 4 * m + 3, vAX, L_XN + m * 64))
    A("s_add_u32 %s, %s, 0x%x" % (sTAG, sTAG, TAGC))
    A("v_lshlrev_b32 v4, 2, v6")
    A("v_lshrrev_b32 %s, v4, %s" % (vTN, sTAG))
    A("v_and_b32 %s, 15, %s" % (vTN, vTN))
    A("v_lshlrev_b32 v4, 3, v6")
    A("v_lshrrev_b32 %s, v4, %s" % (vTB, sTAG))
    A("v_and_b32 %s, 0xff, %s" % (vTB, vTB))
    A("s_mov_b32 s44, 0")
    A("s_mov_b32 s45, -1")
    if o["b0pos"] == 40: A("s_barrier")
    stamp(3)
    BF = 56
    D0 = 88
    GR = 24
    def gemv(lbase, vm0):
        def rd(m, ct):
            b = BF + 16 * (m & 1)
            for hh in range(2):
                A("ds_read_b64_tr_b16 v[%d:%d], v%d offset:%d" % (b + 4 * ct + 2 * hh, b + 4 * ct + 2 * hh + 1, TRB + ct, lbase + m * 4096 + hh * 512))
        A("s_waitcnt vmcnt(%d)" % (vm0 + 12))
        for ct in range(4): rd(0, ct)
        for m in range(4):
            b = BF + 16 * (m & 1)
            if m < 3: A("s_waitcnt vmcnt(%d)" % (vm0 + 8 - 4 * m))
            if lbase == L_WQ and o["b0pos"] == 41 + m: A("s_barrier")
            for ct in range(4):
                A("s_waitcnt lgkmcnt(%d)" % (6 if m < 3 else 6 - 2 * ct))
                mfma(D0 + 4 * ct, AF + 4 * m, b + 4 * ct, None if m == 0 else D0 + 4 * ct)
                if m < 3: rd(m + 1, ct)
    def pack(maskc, vt, GR, vS1):
        A("s_mov_b32 vcc_lo, 0xffff0000")
        A("s_mov_b32 vcc_hi, 0xffff0000")
        A("s_movk_i32 %s, 0x%x" % (t0, maskc))
        A("s_nop 2")
        A("v_cndmask_b32 v%d, v%d, v%d, vcc" % (GR, D0, D0 + 4))
        A("s_nop 0")
        A("v_cndmask_b32 v%d, v%d, v%d, vcc" % (GR + 1, D0 + 8, D0 + 12))
        A("v_cndmask_b32 v%d, v%d, v%d, s[44:45]" % (GR, GR, GR + 1))
        A("v_and_or_b32 v%d, v%d, %s, %s" % (GR, GR, t0, vt))
        if o["bdefer"]:
            A("s_nop 1")
        else:
            A("v_add_u32 v22, 0x%x, %s" % (MB1B - MB1A, vS1))
            A("s_nop 0")
        for k in range(1, 4):
            A("v_mov_b32_dpp v%d, v%d quad_perm:[%d,%d,%d,%d] %s" % (GR + k, GR, k, k, k, k, DPP))
        A("s_mov_b32 exec_lo, 0x11111111")
        A("s_mov_b32 exec_hi, 0x11111111")
        if o["bonly"]:
            A("global_store_dwordx4 %s, v[%d:%d], %s sc1" % (vS1, GR, GR + 3, sWS))
        else:
            A("global_store_dwordx4 %s, v[%d:%d], %s" % (vS1, GR, GR + 3, sWS))
            if not o["bdefer"]: A("global_store_dwordx4 v22, v[%d:%d], %s sc1" % (GR, GR + 3, sWS))
        A("s_mov_b64 exec, -1")
    gemv(L_WQ, 16 + NW)
    if o["b0pos"] == 45: A("s_barrier")
    pack(0xfff0, vTN, GR, vS1)
    if o["b0pos"] == 47: A("s_barrier")
    stamp(4)
    XG = 28
    if o["vote"]:
        assert o["b0pos"] <= 47 and not o["hlate"]
        A("v_mov_b32 v4, 0")
        A("ds_read_b128 v[112:115], v4 offset:%d" % L_VOTE)
    if o["lastfin"]:
        assert o["vote"]
        A("ds_read_b32 v116, v4 offset:%d" % L_TKT)
    A("s_getreg_b32 %s, hwreg(HW_REG_XCC_ID, 0, 4)" % sXCC)
    A("s_and_b32 %s, %s, 0xff" % (t0, sTAG))
    A("s_lshl_b32 %s, %s, 8" % (t2, sXCC))
    A("s_or_b32 s54, %s, %s" % (t0, t2))
    A("v_mov_b32 v%d, s54" % XG)
    for k in range(1, 4):
        A("s_bfe_u32 %s, %s, 0x%x" % (t0, sTAG, 0x80000 | (8 * k)))
        A("v_mov_b32 v%d, %s" % (XG + k, t0))
    if o["vote"]:
        A("s_waitcnt lgkmcnt(0)")
        A("v_add3_u32 v112, v112, v113, v114")
        A("v_add_u32 v112, v112, v115")
        A("v_lshl_add_u32 v%d, v112, 8, v%d" % (XG + 1, XG + 1))
    if o["lastfin"]:
        A("v_lshl_add_u32 v%d, v116, 8, v%d" % (XG + 2, XG + 2))
    A("s_lshl_b32 %s, %s, 4" % (t2, sJ))
    A("s_add_u32 %s, %s, %s" % (t2, t2, sB1))
    A("s_add_u32 %s, %s, 0x4000" % (t2, t2))
    A("v_mov_b32 v22, %s" % t2)
    A("v_add_u32 v109, 0x%x, v22" % (MB1B - MB1A))
    A("s_mov_b64 exec, 1")
    if o["bonly"]:
        A("global_store_dwordx4 v22, v[%d:%d], %s sc1" % (XG, XG + 3, sWS))
    else:
        A("global_store_dwordx4 v22, v[%d:%d], %s" % (XG, XG + 3, sWS))
        if not o["bdefer"]: A("global_store_dwordx4 v109, v[%d:%d], %s sc1" % (XG, XG + 3, sWS))
    A("s_mov_b64 exec, -1")
    if o["b0pos"] == 50: A("s_barrier")
    A("s_sub_i32 %s, %s, s55" % (t2, sJ))
    A("s_lshl_b32 %s, %s, 8" % (t2, t2))
    A("s_add_u32 %s, %s, 0x2000" % (t2, t2))
    A("v_add_u32 v108, %s, %s" % (t2, vS1))
    A("s_cmp_ge_u32 %s, 4" % sNOFF)
    A("s_cbranch_scc1 L_noff2")
    gemv(L_FF, (2 if o['bonly'] or o['bdefer'] else 4) + NW)
    pack(0xff00, vTB, 104, "v108")
    LB("L_noff2")
    stamp(7)
    if o.get("nosync"):
        A("s_barrier")
        A("s_mov_b32 %s, 0" % sCNT)
        dump_stamps()
        A("s_endpgm")
    A("v_and_b32 v4, 15, v0")
    A("v_lshlrev_b32 v4, 4, v4")
    A("v_lshl_add_u32 v4, v126, 10, v4")
    A("s_add_u32 %s, %s, 2432" % (t0, sB1))
    A("v_add_u32 %s, %s, v4" % (vL1, t0))
    A("v_and_b32 v4, 31, v0")
    A("s_add_u32 %s, %s, 0x4000" % (t0, sB1))
    A("v_lshl_add_u32 %s, v4, 4, %s" % (vL1x, t0))
    A("s_lshl_b32 %s, %s, 1" % (t2, t3))
    A("s_sub_u32 %s, 8, %s" % (sRP, t2))
    A("s_mul_i32 %s, %s, %s" % (t2, sRP, sJ))
    A("s_sub_u32 %s, %s, 1" % (t0, sRP))
    A("v_and_b32 v4, 7, v0")
    A("v_min_u32 v4, %s, v4" % t0)
    A("v_add_u32 %s, %s, v4" % (vF, t2))
    A("v_lshrrev_b32 v4, 6, %s" % vF)
    A("v_bfe_u32 v5, v0, 3, 1")
    A("v_lshl_add_u32 v4, v4, 1, v5")
    A("v_lshl_add_u32 v4, v4, 2, v126")
    A("v_bfe_u32 v5, %s, 2, 4" % vF)
    A("v_lshlrev_b32 v5, 4, v5")
    A("v_lshl_add_u32 v4, v4, 8, v5")
    A("s_add_u32 %s, %s, 0x2000" % (t0, sB1))
    A("v_add_u32 %s, %s, v4" % (vL1a, t0))
    if min(nlv) == 0:
        A("s_cmp_lg_u32 %s, 0" % sRP)
        A("s_cbranch_scc1 L_has_ffn")
        A("v_mov_b32 %s, %s" % (vL1a, vL1x))
        LB("L_has_ffn")
    for k in range(4):
        A("s_bfe_u32 s%d, %s, 0x%x" % (56 + k, sTAG, 0x40000 | (4 * k)))
    A("s_movk_i32 s62, 255")
    A("s_mov_b32 s60, 0x0c0c0400")
    A("s_mov_b32 s61, 0x04000c0c")
    P = 40
    PX, PA_ = 72, 76
    A("s_mov_b32 %s, 0" % sCNT)
    def switch_copy(regs):
        A("s_add_u32 %s, %s, 1" % (sCNT, sCNT))
        if not o["bonly"]:
            if o.get("bskip"):
                A("s_cmp_ge_u32 %s, %d" % (sCNT, o["atries"]))
                A("s_cselect_b32 %s, 0x%x, 0" % (t0, MB1B ^ MB1A))
                for r in regs: A("v_xor_b32 %s, %s, %s" % (r, t0, r))
            else:
                A("s_cmp_eq_u32 %s, %d" % (sCNT, o["atries"]))
                A("s_cselect_b32 %s, 0x%x, 0" % (t0, MB1B - MB1A))
                for r in regs: A("v_add_u32 %s, %s, %s" % (r, t0, r))
        A("s_cmp_gt_u32 %s, %d" % (sCNT, o["spinmax"]))
        A("s_cbranch_scc1 L_end")
    def bytecheck(p, dst):
        A("v_perm_b32 v22, v%d, v%d, s60" % (p + 1, p))
        A("v_perm_b32 v23, v%d, v%d, s61" % (p + 3, p + 2))
        A("v_or_b32 v22, v22, v23")
        A("v_cmp_ne_u32 %s, %s, v22" % (dst, sTAG))
    stamp(9)
    LB("L_poll1")
    stamp(8)
    for i in range(2):
        for q in range(4):
            r = P + 16 * i + 4 * q
            A("global_load_dwordx4 v[%d:%d], %s, %s offset:%d sc1" % (r, r + 3, vL1, sWS, i * 4096 + q * 256 - 2432))
    A("global_load_dwordx4 v[%d:%d], %s, %s sc1" % (PX, PX + 3, vL1x, sWS))
    A("global_load_dwordx4 v[%d:%d], %s, %s sc1" % (PA_, PA_ + 3, vL1a, sWS))
    switch_copy([vL1, vL1x, vL1a])
    for g_ in range(8):
        A("s_waitcnt vmcnt(%d)" % (9 - g_))
        for k in range(4):
            A("v_xor_b32 v%d, s%d, v%d" % (P + 4 * g_ + k, 56 + k, P + 4 * g_ + k))
        if g_ == 0:
            A("v_or3_b32 v21, v%d, v%d, v%d" % (P, P + 1, P + 2))
            A("v_or_b32 v21, v21, v%d" % (P + 3))
        else:
            A("v_or3_b32 v21, v21, v%d, v%d" % (P + 4 * g_, P + 4 * g_ + 1))
            A("v_or3_b32 v21, v21, v%d, v%d" % (P + 4 * g_ + 2, P + 4 * g_ + 3))
    A("v_and_b32 v21, 15, v21")
    A("s_waitcnt vmcnt(1)")
    bytecheck(PX, "vcc")
    A("v_cmp_ne_u32 s[46:47], 0, v21")
    if o.get("dbgfail"):
        A("s_cmp_eq_u32 %s, 1" % sCNT)
        A("s_cselect_b32 s84, vcc_lo, s84")
        A("s_cselect_b32 s62, s46, s62")
        A("s_cselect_b32 s63, s47, s63")
    A("s_or_b64 vcc, vcc, s[46:47]")
    def majority():
        A("v_cmp_gt_i32 vcc, 0, v%d" % (PX + 1))
        A("v_cmp_lt_i32 s[46:47], %s, v%d" % ("s62", PX + 1))
        A("s_bcnt1_i32_b32 %s, vcc_lo" % t0)
        A("s_bcnt1_i32_b32 %s, s46" % t2)
        A("s_cmp_gt_u32 %s, %s" % (t0, t2))
        A("s_cselect_b32 s55, 0x2000, 0")
        if o.get("voteinv"): A("s_xor_b32 s55, s55, 0x2000")
        if o["stamps"]:
            A("s_bcnt1_i32_b32 s63, vcc_lo")
            A("s_lshl_b32 %s, %s, 8" % (t2, t2))
            A("s_or_b32 s63, s63, %s" % t2)
    def publish_b(tag):
        C("write-through copies for peers that sit on another die")
        A("v_add_u32 v22, 0x%x, %s" % (MB1B - MB1A, vS1))
        A("v_add_u32 v23, 0x%x, v108" % (MB1B - MB1A))
        A("s_mov_b64 exec, 1")
        A("global_store_dwordx4 v109, v[%d:%d], %s sc1" % (XG, XG + 3, sWS))
        A("s_mov_b32 exec_lo, 0x11111111")
        A("s_mov_b32 exec_hi, 0x11111111")
        A("global_store_dwordx4 v22, v[%d:%d], %s sc1" % (GR, GR + 3, sWS))
        A("s_cmp_ge_u32 %s, 4" % sNOFF)
        A("s_cbranch_scc1 L_pb_%s" % tag)
        A("global_store_dwordx4 v23, v[104:107], %s sc1" % sWS)
        LB("L_pb_%s" % tag)
        A("s_mov_b64 exec, -1")
    if o["bdefer"]:
        A("s_cbranch_vccz L_got1")
        A("s_cmp_lg_u32 %s, %d" % (sCNT, o["bdefer"]))
        A("s_cbranch_scc1 L_poll1")
        publish_b("a")
        A("s_branch L_poll1")
        LB("L_got1")
    else:
        A("s_cbranch_vccnz L_poll1")
    stamp(5)
    for i in range(2):
        b = P + 16 * i
        for k in range(4):
            A("v_add_f32 v%d, v%d, v%d" % (b + k, b + k, b + 4 + k))
            A("v_add_f32 v%d, v%d, v%d" % (b + 8 + k, b + 8 + k, b + 12 + k))
        for k in range(4):
            A("v_add_f32 v%d, v%d, v%d" % (b + k, b + k, b + 8 + k))
        A("v_cvt_pk_bf16_f32 v%d, v%d, v%d" % (b, b, b + 1))
        A("v_cvt_pk_bf16_f32 v%d, v%d, v%d" % (b + 1, b + 2, b + 3))
    A("v_lshlrev_b32 v22, 3, v0")
    A("ds_write_b64 v22, v[%d:%d] offset:%d" % (P, P + 1, L_Q))
    A("ds_write_b64 v22, v[%d:%d] offset:%d" % (P + 16, P + 17, L_Q + 512))
    A("v_cmp_ne_u32 vcc, s54, v%d" % PX)
    A("s_cmp_eq_u64 vcc, 0")
    A("s_cselect_b32 %s, 1, 0" % sFAST)
    if o.get("forceslow"): A("s_mov_b32 %s, 0" % sFAST)
    if o["lastfin"]:
        A("v_readfirstlane_b32 %s, v%d" % (t0, PX + 2))
        if o["lastfin"] == 1:
            A("s_not_b32 %s, %s" % (t2, sTAG))
            A("v_mov_b32 v23, %s" % t2)
            A("v_lshlrev_b32 v22, 2, v0")
        A("s_lshr_b32 %s, %s, 8" % (t0, t0))
        A("s_cmp_eq_u32 %s, 7" % t0)
        A("s_cselect_b32 %s, 2, 0" % t0)
        if o.get("fixfin") is not None:
            A("s_cmp_eq_u32 %s, %d" % (sH, o["fixfin"]))
            A("s_cselect_b32 %s, 2, 0" % t0)
        A("s_or_b32 %s, %s, %s" % (sFAST, sFAST, t0))
        if o["lastfin"] == 1: A("ds_write_b32 v22, v23 offset:%d" % L_FIN)
        else:
            majority()
            A("s_or_b32 %s, %s, s55" % (sFAST, sFAST))
    A("v_mov_b32 v26, %s" % sFAST)
    A("v_mov_b32 v27, %s" % sTAG)
    A("v_mov_b32 v22, %d" % L_FLAG)
    A("ds_write_b64 v22, v[26:27]")
    if o["auxearly"]:
        A("s_waitcnt vmcnt(0)")
        bytecheck(PA_, "vcc")
        A("s_cbranch_vccz L_aux_b1")
        A("global_load_dwordx4 v[%d:%d], %s, %s sc1" % (PA_, PA_ + 3, vL1a, sWS))
        LB("L_aux_b1")
    A("s_waitcnt lgkmcnt(0)")
    A("s_barrier")
    if o["bdefer"]:
        A("s_cmp_gt_u32 %s, %d" % (sCNT, o["bdefer"]))
        A("s_cbranch_scc1 L_b_done")
        A("s_bitcmp1_b32 %s, 0" % sFAST if o.get("bskip") else "s_nop 0")
        if o.get("bskip"): A("s_cbranch_scc1 L_b_done")
        publish_b("b")
        LB("L_b_done")
    if o["vote"] and o["lastfin"] < 2: majority()
    if o["hlate"]:
        A("s_setprio %d" % o.get("hprio", 0))
        A("s_barrier")
        A("s_barrier")
    A("s_branch L_chk_aux")
    LB("L_poll_aux")
    A("global_load_dwordx4 v[%d:%d], %s, %s sc1" % (PA_, PA_ + 3, vL1a, sWS))
    switch_copy([vL1a])
    LB("L_chk_aux")
    A("s_waitcnt vmcnt(0)")
    bytecheck(PA_, "vcc")
    A("s_cbranch_vccnz L_poll_aux")
    A("s_movk_i32 %s, 0xff00" % t0)
    A("v_and_b32 v23, 1, %s" % vF)
    A("v_cmp_eq_u32 vcc, 0, v23")
    A("v_and_b32 v23, 2, %s" % vF)
    A("v_cmp_eq_u32 s[46:47], 0, v23")
    A("v_cndmask_b32 v24, v%d, v%d, vcc" % (PA_ + 1, PA_))
    A("v_cndmask_b32 v25, v%d, v%d, vcc" % (PA_ + 3, PA_ + 2))
    A("v_cndmask_b32 v24, v25, v24, s[46:47]")
    A("v_and_b32 v24, %s, v24" % t0)
    allred("v24", "v23", "v_add_f32", 16)
    allred("v24", "v23", "v_add_f32", 32)
    A("v_cvt_pk_bf16_f32 v24, v24, v24")
    A("v_and_b32 v24, %s, v24" % t1)
    A("v_mul_f32 v25, 0x%x, v24" % (LOG2E | 0x80000000))
    A("v_exp_f32 v25, v25")
    A("v_mov_b32_dpp v26, v24 row_ror:8 %s" % DPP)
    A("v_add_f32 v25, 1.0, v25")
    A("v_rcp_f32 v25, v25")
    A("v_cmp_le_u32 vcc, %s, v0" % sRP)
    A("v_mul_f32 v25, v24, v25")
    A("v_cvt_pk_bf16_f32 v25, v25, v25")
    A("v_and_b32 v25, %s, v25" % t1)
    A("v_mul_f32 v25, v25, v26")
    A("v_cvt_pk_bf16_f32 v25, v25, v25")
    A("v_cndmask_b32 v25, v25, 0, vcc")
    A("v_lshlrev_b32 v22, 2, v0")
    if o["vote"] and not o["lastfin"]:
        A("v_mov_b32 v26, s55")
        A("v_mov_b32 v27, 0")
        A("ds_write_b32 v27, v26 offset:%d" % (L_FLAG + 8))
    A("s_mov_b64 exec, 0xff")
    A("ds_write_b32 v22, v25 offset:%d" % L_H)
    A("s_waitcnt lgkmcnt(0)")
    stamp(6)
    if o["lastfin"] == 1:
        A("s_bitcmp1_b32 %s, 1" % sFAST)
        A("s_cbranch_scc1 L_ufin")
    if not o.get("nodumpU"): dump_stamps()
    A("s_endpgm")
    def unit_final():
        LB("L_ufin")
        C("last group: lane = (wave l>>4, pair (l>>3)&1, group l&7) gathers the eight groups' sums of this workgroup's 16 columns")
        A("s_mov_b64 exec, -1")
        A("s_setprio %d" % o.get("uprio", 0))
        vA3, vLF, vXO, vXV = "v4", "v5", "v6", "v7"
        FP, FS = 8, 40
        A("v_lshrrev_b32 %s, 3, v0" % vLF)
        A("s_lshl_b32 %s, %s, 5" % (t0, sJ))
        A("v_lshl_add_u32 %s, %s, 2, %s" % (vXO, vLF, t0))
        A("global_load_dword %s, %s, %s" % (vXV, vXO, sX))
        A("v_lshlrev_b32 %s, 4, %s" % (vLF, vLF))
        A("s_lshr_b32 %s, %s, 1" % (t0, sJ))
        A("s_lshl_b32 %s, %s, 14" % (t0, t0))
        A("s_and_b32 %s, %s, 1" % (t2, sJ))
        A("s_lshl_b32 %s, %s, 12" % (t2, t2))
        A("s_add_u32 %s, %s, %s" % (t0, t0, t2))
        A("s_add_u32 %s, %s, s55" % (t0, t0))
        A("s_add_u32 %s, %s, 0x%x" % (t0, t0, MB3))
        A("v_and_b32 v22, 7, v0")
        A("v_lshl_add_u32 %s, v22, 9, %s" % (vA3, t0))
        A("v_lshlrev_b32 v22, 7, v126")
        A("v_and_b32 v23, 16, %s" % vLF)
        A("v_add3_u32 %s, %s, v22, v23" % (vA3, vA3))
        A("s_lshl_b32 s44, 0x01010101, %s" % sH)
        A("s_mov_b32 s45, s44")
        A("s_not_b64 s[46:47], s[44:45]")
        A("s_mov_b32 %s, %d" % (sCNT, o["spinmax"]))
        A("s_barrier")
        A("s_barrier")
        A("s_waitcnt vmcnt(0)")
        A("v_lshlrev_b32 v22, 16, %s" % vXV)
        A("v_and_b32 v23, %s, %s" % (t1, vXV))
        def spf():
            C("pull the other groups' lines into this die's L2 over the scalar path (the vector path returns in order and is busy with the group's own hand-off)")
            for k in range(1, 8):
                for w_ in range(4):
                    A("s_load_dword s%d, %s, s%d offset:%d glc" % (6 + (4 * k + w_) % 16, sWS, 48 + k, 128 * w_))
        if o.get("spf"):
            for k in range(1, 8):
                A("s_xor_b32 s%d, %s, %d" % (48 + k, sH, k))
                A("s_lshl_b32 s%d, s%d, 9" % (48 + k, 48 + k))
                A("s_add_u32 s%d, s%d, %s" % (48 + k, 48 + k, t0))
        if o.get("spf", 0) & 2: spf()
        if o["reuse"]: A("s_barrier")
        if o.get("spf", 0) & 1: spf()
        NP = o["npu"]
        def own_read():
            A("s_mov_b64 exec, s[44:45]")
            A("ds_read_b128 v[%d:%d], %s offset:%d" % (FP, FP + 3, vLF, L_FIN))
        if o.get("uwait"):
            A("s_mov_b64 exec, s[44:45]")
            LB("L_uw")
            A("ds_read_b128 v[%d:%d], %s offset:%d" % (FP, FP + 3, vLF, L_FIN))
            A("s_sub_u32 %s, %s, 1" % (sCNT, sCNT))
            A("s_cbranch_scc1 L_end")
            A("s_waitcnt lgkmcnt(0)")
            A("v_cmp_ne_u32 vcc, %s, v%d" % (sTAG, FP + 3))
            if o["uwait"] == 1:
                A("s_cbranch_vccnz L_uw")
            else:
                A("s_cmp_eq_u64 vcc, s[44:45]")
                A("s_cbranch_scc1 L_uw")
        for k in range(NP):
            if k:
                for _ in range(o["stag"]):
                    own_read(); A("s_waitcnt lgkmcnt(0)")
            A("s_mov_b64 exec, s[46:47]")
            A("global_load_dwordx4 v[%d:%d], %s, %s sc1" % (FS + 4 * k, FS + 4 * k + 3, vA3, sWS))
        LB("L_upoll")
        for k in range(NP):
            own_read()
            A("s_mov_b64 exec, s[46:47]")
            A("s_waitcnt vmcnt(%d) lgkmcnt(0)" % (NP - 1))
            A("v_cmp_ne_u32 vcc, %s, v%d" % (sTAG, FS + 4 * k + 3))
            A("v_mov_b32 v%d, v%d" % (FP, FS + 4 * k))
            A("v_mov_b32 v%d, v%d" % (FP + 1, FS + 4 * k + 1))
            A("s_and_b64 s[46:47], exec, vcc")
            A("s_cbranch_scc0 L_ugot")
            A("s_mov_b64 exec, s[46:47]")
            A("global_load_dwordx4 v[%d:%d], %s, %s sc1" % (FS + 4 * k, FS + 4 * k + 3, vA3, sWS))
        A("s_sub_u32 %s, %s, 1" % (sCNT, sCNT))
        A("s_cbranch_scc0 L_upoll")
        A("s_endpgm")
        LB("L_uown")
        A("ds_read_b128 v[%d:%d], %s offset:%d" % (FP, FP + 3, vLF, L_FIN))
        A("s_sub_u32 %s, %s, 1" % (sCNT, sCNT))
        A("s_cbranch_scc1 L_end")
        A("s_waitcnt lgkmcnt(0)")
        LB("L_ugot")
        A("s_mov_b64 exec, s[44:45]")
        A("v_cmp_ne_u32 vcc, %s, v%d" % (sTAG, FP + 3))
        A("s_cbranch_vccnz L_uown")
        stamp(10)
        A("s_mov_b64 exec, -1")
        x_, y_ = "v%d" % FP, "v%d" % (FP + 1)
        for pat in ("quad_perm:[1,0,3,2]", "quad_perm:[2,3,0,1]", "row_half_mirror"):
            A("v_add_f32_dpp %s, %s, %s %s %s" % (x_, x_, x_, pat, DPP))
            A("v_add_f32_dpp %s, %s, %s %s %s" % (y_, y_, y_, pat, DPP))
            if pat != "row_half_mirror": A("s_nop 0")
        A("s_mov_b32 s44, 0x01010101")
        A("v_add_f32 %s, %s, v22" % (x_, x_))
        A("v_add_f32 %s, %s, v23" % (y_, y_))
        A("s_mov_b32 s45, s44")
        A("v_cvt_pk_bf16_f32 %s, %s, %s" % (x_, x_, y_))
        A("s_mov_b64 exec, s[44:45]")
        A("global_store_dword %s, %s, %s" % (vXO, x_, sOUT))
        A("s_cmp_lg_u32 %s, 0" % sJ)
        A("s_cbranch_scc1 L_udone")
        C("the next launch must not mistake this launch's hand-off words for its own")
        A("s_mov_b64 exec, 1")
        A("v_mov_b32 v22, 0")
        A("v_mov_b32 v23, %s" % sTAG)
        A("global_store_dword v22, v23, %s" % sWS)
        LB("L_udone")
        role[0] = "U"
        amp_end("u")
        dump_stamps()
        A("s_endpgm")

    role[0] = "A"
    if o.get("alignA"): L.append(".p2align %d" % o["alignA"])
    for _ in range(o.get("shiftA", 0)): A("s_nop 0")
    LB("L_attn")
    vK0, vK1, vV0, vV1 = "v2", "v3", "v4", "v5"
    vWO0, vWO1, vDN0, vDN1, vXF, vXP = "v6", "v7", "v8", "v9", "v10", "v1"
    vS2, vL2, vS25, vL25, vL3, vS3 = "v11", "v12", "v13", "v14", "v15", "v150"
    KR, VR, WOR, DNR, QR, SR, PA, MK = 16, 48, 80, 96, 104, 120, 128, 146
    vM0, vM1, vQA, vOW, vOR, vMLW, vHA = "v151", "v152", "v153", "v154", "v155", "v156", "v157"
    vN, vG, vN16, vP = "v120", "v121", "v122", "v123"
    u0, u1 = "v124", "v125"
    s4JW = "s41"
    C("K and V: load i = 1 KB block (4 keys) number 128 i + 4j + w of the head's window; K goes through LDS")
    A("s_lshl_b32 %s, %s, 24" % (t0, sH))
    A("s_lshl_b32 %s, %s, 2" % (s4JW, sJ))
    A("s_add_u32 %s, %s, %s" % (s4JW, s4JW, sW))
    if o["lastfin"]:
        C("arrival order of the eight groups (one counter in the zeroed debug words)")
        A("s_cmp_lg_u32 %s, 0" % s4JW)
        A("s_cbranch_scc1 L_notkt0")
        A("v_mov_b32 v158, 0")
        A("v_mov_b32 v159, 1")
        A("s_mov_b64 exec, 1")
        A("global_atomic_add v159, v158, v159, s[24:25] sc0 sc1")
        A("s_mov_b64 exec, -1")
        LB("L_notkt0")
    A("s_lshl_b32 %s, %s, 10" % (t2, s4JW))
    A("s_add_u32 %s, %s, %s" % (t0, t0, t2))
    A("s_add_u32 %s, %s, 0xF00000" % (t0, t0))
    A("v_and_b32 %s, 15, v0" % vN)
    A("v_lshrrev_b32 %s, 4, v0" % vG)
    A("v_lshlrev_b32 %s, 4, %s" % (vN16, vN))
    A("v_lshl_add_u32 %s, v0, 4, %s" % (vV0, t0))
    A("v_lshlrev_b32 %s, 6, %s" % (u0, vG))
    A("v_xor_b32 %s, %s, %s" % (vK0, u0, vV0))
    A("s_lshl_b32 %s, %s, 13" % (t1, sW))
    A("s_add_u32 m0, %s, %d" % (t1, L_K))
    A("s_mov_b32 s42, 0x20000")
    A("s_movk_i32 s43, 1024")
    if not o["vote"]: A("s_waitcnt lgkmcnt(0)")
    if o.get("tlbw") == 1:
        A("s_cmp_lg_u32 %s, 0" % sW)
        A("s_cbranch_scc1 L_notlb")
        tlbwarm()
        A("s_waitcnt vmcnt(0)")
        LB("L_notlb")
    if o["vote"]: A("s_waitcnt lgkmcnt(1)")
    if o["lastfin"]:
        A("s_cmp_lg_u32 %s, 0" % s4JW)
        A("s_cbranch_scc1 L_notkt")
        A("s_mov_b64 exec, 1")
        A("s_waitcnt vmcnt(0)")
        A("ds_write_b32 v158, v159 offset:%d" % L_TKT)
        A("s_mov_b64 exec, -1")
        A("s_waitcnt lgkmcnt(0)")
        LB("L_notkt")
    if o["b0pos"]: A("s_barrier")
    stamp(1)
    issued = [0]
    def load(w, txt):
        if issued[0] >= w:
            A("s_waitcnt vmcnt(%d)" % (w - 1))
        A(txt); issued[0] += 1
    def rot(i): return (i * o["rotm"]) & 127
    def kload(i):
        load(o["WK"], "global_load_lds_dwordx4 %s, %s %s" % (vK0, sK, nt))
        if i < 7:
            A("s_add_u32 m0, m0, s43")
            A("v_xor_b32 %s, %d, %s" % (vK0, (((i & 3) ^ ((i + 1) & 3)) << 4) | ((rot(i) ^ rot(i + 1)) << 10), vK0))
            A("v_add_u32 %s, s42, %s" % (vK0, vK0))
    nk_first = min(o["WK"], 8)
    if o.get("bal"):
        A("v_and_b32 v158, 7, v0")
        A("v_lshlrev_b32 v158, 2, v158")
        A("global_load_dword v159, v158, s[24:25] sc1")
    for i in range(nk_first): kload(i)
    C("address and mask setup in the shadow of the K loads")
    A("s_lshl_b32 %s, %s, 19" % (t0, sH))
    A("s_lshl_b32 %s, %s, 14" % (t2, sJ))
    A("s_add_u32 %s, %s, %s" % (t0, t0, t2))
    A("s_lshl_b32 %s, %s, 8" % (t3, sW))
    A("s_add_u32 %s, %s, %s" % (t0, t0, t3))
    A("s_add_u32 %s, %s, 0x1000" % (t0, t0))
    A("v_lshl_add_u32 %s, %s, 10, %s" % (vDN0, vG, vN16))
    A("v_add_u32 %s, %s, %s" % (vWO0, t0, vDN0))
    A("v_add_u32 %s, 0x2000, %s" % (vWO1, vWO0))
    ffn_share(t0, t2)
    A("s_lshl_b32 %s, s3, 6" % t0)
    A("s_lshl_b32 %s, %s, 1" % (t2, t2))
    A("s_sub_u32 %s, 8, %s" % (t1, t2))
    A("s_mul_i32 %s, %s, %s" % (t2, t1, sJ))
    A("s_add_u32 %s, %s, %s" % (t0, t0, t2))
    A("s_lshl_b32 %s, %s, 10" % (t0, t0))
    A("s_add_u32 %s, %s, %s" % (t0, t0, t3))
    A("s_sub_u32 %s, %s, 1" % (t1, t1))
    A("v_add_u32 %s, %s, %s" % (u1, t0, vN16))
    A("v_min_u32 %s, %s, %s" % (vDN0, t1, vG))
    A("v_lshl_add_u32 %s, %s, 10, %s" % (vDN0, vDN0, u1))
    A("v_add_u32 %s, 4, %s" % (vDN1, vG))
    A("v_min_u32 %s, %s, %s" % (vDN1, t1, vDN1))
    A("v_lshl_add_u32 %s, %s, 10, %s" % (vDN1, vDN1, u1))
    A("v_and_b32 %s, 1, v0" % vP)
    A("v_and_b32 %s, 1, %s" % (u0, vG))
    A("s_lshl_b32 %s, %s, 3" % (t2, s4JW))
    A("v_lshl_add_u32 %s, %s, 2, %s" % (vXF, u0, t2))
    RP = o["rp"]
    M25 = 0 if o["reuse"] else MB25 - MB2
    lay = 3 if o["reuse"] else o.get("lay25", 0)
    A("s_mul_i32 %s, %s, %d" % (t0, sH, 32 * RP))
    A("s_add_u32 %s, %s, 0x%x" % (t0, t0, MB2))
    A("s_mul_i32 %s, %s, %d" % (t1, sJ, RP))
    A("s_add_u32 %s, %s, %s" % (t1, t1, t0))
    A("s_mul_i32 %s, %s, %d" % (t2, sW, 8 * RP))
    A("s_lshl_b32 %s, %s, 6" % (t3, sJ))
    A("s_add_u32 %s, %s, %s" % (t0, t0, t3))
    A("s_add_u32 %s, %s, %s" % (t2, t2, t0))
    A("v_lshrrev_b32 %s, 3, v0" % vS2)
    A("v_mul_u32_u24 %s, %d, %s" % (vS2, RP, vS2))
    A("v_bfe_u32 %s, v0, 1, 2" % u1)
    A("v_lshlrev_b32 %s, 4, %s" % (u1, u1))
    A("v_add3_u32 %s, %s, %s, %s" % (vS2, vS2, u1, t2))
    A("v_lshl_add_u32 %s, v0, 4, %s" % (vL2, t1))
    A("s_lshl_b32 %s, %s, 4" % (t3, sW))
    A("v_and_b32 %s, 31, v0" % u1)
    if lay == 0:
        A("s_add_u32 %s, %s, %s" % (t1, t1, t3))
        A("s_add_u32 %s, %s, 0x%x" % (t1, t1, M25))
        A("v_lshl_add_u32 %s, %s, 6, %s" % (vL25, u1, t1))
        A("v_lshrrev_b32 %s, 1, %s" % (vS25, vN))
        A("v_mul_u32_u24 %s, %d, %s" % (vS25, RP, vS25))
        A("v_lshl_add_u32 %s, %s, 5, %s" % (vS25, vP, vS25))
        A("v_lshl_add_u32 %s, %s, 4, %s" % (vS25, u0, vS25))
        A("s_add_u32 %s, %s, 0x%x" % (t2, t2, M25))
        A("v_add_u32 %s, %s, %s" % (vS25, t2, vS25))
    else:
        A("s_add_u32 %s, %s, %s" % (t0, t0, t3))
        if M25: A("s_add_u32 %s, %s, 0x%x" % (t0, t0, M25))
        A("v_mul_u32_u24 %s, %d, %s" % (vL25, RP, u1))
        A("v_add_u32 %s, %s, %s" % (vL25, t0, vL25))
        A("s_lshl_b32 %s, %s, 9" % (t3, sW))
        A("s_add_u32 %s, %s, %s" % (t1, t1, t3))
        if M25: A("s_add_u32 %s, %s, 0x%x" % (t1, t1, M25))
        A("v_lshl_add_u32 %s, %s, 5, %s" % (vS25, vN, t1))
        A("v_lshl_add_u32 %s, %s, 4, %s" % (vS25, u0, vS25))
    A("s_lshr_b32 %s, %s, 1" % (t0, sJ))
    A("s_lshl_b32 %s, %s, 14" % (t0, t0))
    A("s_and_b32 %s, %s, 1" % (t3, sJ))
    A("s_lshl_b32 %s, %s, 12" % (t3, t3))
    A("s_add_u32 %s, %s, %s" % (t0, t0, t3))
    A("s_lshl_b32 %s, %s, 7" % (t3, sW))
    A("s_add_u32 %s, %s, %s" % (t0, t0, t3))
    A("s_add_u32 %s, %s, 0x%x" % (t0, t0, MB3))
    if o["lastfin"] == 1:
        A("s_lshl_b32 %s, %s, 5" % (t3, sW))
        A("v_lshl_add_u32 %s, %s, 4, %s" % (vL3, u0, t3))
    if o["lastfin"] >= 2:
        A("s_lshl_b32 s3, %s, 9" % sH)
        A("s_add_u32 s3, s3, %s" % t0)
    A("v_lshl_add_u32 %s, %s, 4, %s" % (u0, u0, t0))
    if o["lastfin"] != 1:
        A("v_and_b32 %s, 7, v0" % u1)
        A("v_lshl_add_u32 %s, %s, 9, %s" % (vL3, u1, u0))
    A("s_lshl_b32 %s, %s, 9" % (t3, sH))
    A("v_lshl_add_u32 %s, %s, 13, %s" % (u0, vP, u0))
    A("v_add_u32 %s, %s, %s" % (vS3, t3, u0))
    A("v_lshlrev_b32 %s, 4, %s" % (u1, vP))
    def pretouch2():
        C("pull this workgroup's incoming hand-off lines into L2 (waves 0,1: hop 2; waves 2,3: hop 2.5)")
        if o["reuse"]:
            A("s_lshl_b32 %s, %s, 9" % (t0, sW))
            A("v_lshlrev_b32 v158, 3, v0")
            A("v_sub_u32 v158, %s, v158" % vL2)
            A("v_add_u32 v158, %s, v158" % t0)
        else:
            A("s_and_b32 %s, %s, 1" % (t0, sW))
            A("s_lshl_b32 %s, %s, 10" % (t0, t0))
            A("s_lshr_b32 %s, %s, 1" % (t3, sW))
            A("s_mul_i32 %s, %s, 0x%x" % (t3, t3, MB25 - MB2))
            A("s_add_u32 %s, %s, %s" % (t0, t0, t3))
            A("v_add_u32 v158, %s, %s" % (t0, vL2))
        if o["pretouch"] in ("r", "k"):
            A("global_load_dword v159, v158, %s sc1" % sWS); issued[0] += 1
    if o["pretouch"] == "r" or isinstance(o["pretouch"], int): pretouch2()
    A("v_mov_b32 %s, 0xffff" % u0)
    A("v_lshlrev_b32 %s, %s, %s" % (u0, u1, u0))
    A("v_and_b32 %s, 2, v0" % u1)
    A("v_cmp_eq_u32 vcc, 0, %s" % u1)
    A("v_lshrrev_b32 %s, 1, %s" % (u1, vN))
    A("v_lshlrev_b32 %s, 2, %s" % (vHA, vG))
    SEL = 160
    A("v_mov_b32 v%d, 0x0c0c0c0c" % (SEL + 2))
    A("v_mov_b32 v%d, 0x01000100" % (SEL + 3))
    A("v_bfi_b32 v%d, %s, v%d, v%d" % (SEL + 3, u0, SEL + 3, SEL + 2))
    A("v_cndmask_b32 v%d, v%d, v%d, vcc" % (SEL, SEL + 2, SEL + 3))
    A("v_cndmask_b32 v%d, v%d, v%d, vcc" % (SEL + 1, SEL + 3, SEL + 2))
    A("v_and_b32 v%d, 0x02020202, %s" % (SEL + 3, u0))
    A("v_cndmask_b32 v%d, 0, v%d, vcc" % (SEL + 2, SEL + 3))
    A("v_cndmask_b32 v%d, v%d, 0, vcc" % (SEL + 3, SEL + 3))
    A("v_add_u32 v%d, v%d, v%d" % (SEL + 2, SEL + 2, SEL))
    A("v_add_u32 v%d, v%d, v%d" % (SEL + 3, SEL + 3, SEL + 1))
    for r in range(4):
        A("v_cmp_eq_u32 s[%d:%d], %d, %s" % (44 + 2 * r, 45 + 2 * r, r, u1))
    A("v_lshrrev_b32 %s, 2, %s" % (vMLW, vN))
    A("v_lshlrev_b32 %s, 4, %s" % (u1, vG))
    A("v_lshl_add_u32 %s, %s, 8, %s" % (vQA, vMLW, u1))
    for r in range(4):
        A("v_cndmask_b32 v%d, 0, %s, s[%d:%d]" % (MK + r, u0, 44 + 2 * r, 45 + 2 * r))
    A("s_lshl_b32 %s, %s, 11" % (t0, sW))
    A("v_lshl_add_u32 %s, %s, 9, %s" % (vOW, vG, vN16))
    A("v_add_u32 %s, %s, %s" % (vOW, t0, vOW))
    A("s_lshl_b32 %s, %s, 3" % (t0, sW))
    A("v_lshl_add_u32 %s, %s, 5, %s" % (vMLW, vMLW, t0))
    A("v_bfe_u32 %s, v0, 1, 1" % u0)
    A("v_lshrrev_b32 %s, 2, v0" % u1)
    A("v_lshlrev_b32 %s, 4, %s" % (u1, u1))
    A("v_lshl_add_u32 %s, %s, 8, %s" % (u1, u0, u1))
    A("v_lshl_add_u32 %s, %s, 3, %s" % (u1, vP, u1))
    A("s_lshl_b32 %s, %s, 9" % (t0, sW))
    A("v_add_u32 %s, %s, %s" % (vOR, t0, u1))
    KA = 140
    A("v_and_b32 %s, 3, v0" % u0)
    A("v_lshrrev_b32 %s, 2, %s" % (u1, vN))
    A("v_lshlrev_b32 %s, 8, %s" % (u1, u1))
    A("v_lshl_add_u32 %s, %s, 10, %s" % (u0, u0, u1))
    A("v_xor_b32 %s, %s, %s" % (u1, vG, vN))
    A("v_lshl_add_u32 %s, %s, 4, %s" % (u0, u1, u0))
    A("s_lshl_b32 %s, %s, 13" % (t1, sW))
    A("v_add_u32 v%d, %s, %s" % (KA, t1, u0))
    for s_ in range(1, 4):
        A("v_xor_b32 v%d, %d, v%d" % (KA + s_, s_ << 6, KA))
    for _ in range(o.get("delayA", 0)): A("s_nop 3")
    def issue_rest(WK_, W_):
        o_wk = o["WK"]; o["WK"] = WK_
        for i in range(nk_first, 8): kload(i)
        o["WK"] = o_wk
        if o["pretouch"] == "k": pretouch2()
        if o.get("xearly"):
            A("global_load_dword %s, %s, %s" % (vXP, vXF, sX)); issued[0] += 1
        for i in range(8):
            r = VR + i * 4
            load(W_, "global_load_dwordx4 v[%d:%d], %s, %s %s" % (r, r + 3, vV0, sV, nt))
            if i < 7:
                if rot(i) ^ rot(i + 1): A("v_xor_b32 %s, %d, %s" % (vV0, (rot(i) ^ rot(i + 1)) << 10, vV0))
                A("v_add_u32 %s, s42, %s" % (vV0, vV0))
    if o.get("bal"):
        C("a group that started well after others asks memory with a wider window")
        A("s_waitcnt vmcnt(%d)" % issued[0])
        A("v_sub_u32 v158, s90, v159")
        A("v_cmp_ne_u32 vcc, 0, v159")
        A("v_cmp_lt_i32 s[44:45], %d, v158" % o.get("theta", 40))
        A("s_and_b32 s62, vcc_lo, s44")
        A("s_and_b32 s62, s62, 0xff")
        A("s_bcnt1_i32_b32 s62, s62")
        A("s_cmp_ge_u32 s62, %d" % o.get("lateth", 2))
        A("s_cbranch_scc1 L_wide")
        keep = issued[0]
        issue_rest(o["WK"], o["W"])
        A("s_branch L_issued")
        LB("L_wide")
        issued[0] = keep
        issue_rest(o["WK"] + o["bal"], o["W"] + o["bal"])
        LB("L_issued")
    elif o.get("c3"):
        A("s_lshr_b32 %s, %s, 2" % (t0, sJ))
        A("s_cmp_eq_u32 %s, 3" % t0)
        A("s_cbranch_scc1 L_wide")
        keep = issued[0]
        issue_rest(o["WK"], o["W"])
        A("s_branch L_issued")
        LB("L_wide")
        issued[0] = keep
        issue_rest(o["WK"] + o["c3"], o["W"] + o.get("c3v", o["c3"]))
        LB("L_issued")
    else:
        issue_rest(o["WK"], o["W"])
    tail = []
    if o["lastfin"] != 1: tail.append("global_load_dword %s, %s, %s" % (vXP, vXF, sX))
    for a in range(2):
        r = DNR + a * 4
        tail.append("global_load_dwordx4 v[%d:%d], %s, %s %s" % (r, r + 3, (vDN0, vDN1)[a], sDN, nt))
    for m in range(4):
        r = WOR + m * 4
        tail.append("global_load_dwordx4 v[%d:%d], %s, %s offset:%d %s" % (r, r + 3, (vWO0, vWO1)[m >> 1], sWO, (0, -4096)[(m & 1) == 0], nt))
    dnl = []
    if o.get("dnlate"):
        dnl = tail[1:1 + 2]
        if o["dnlate"] == 2: dnl = dnl[1:]
        for t_ in dnl: tail.remove(t_)
        tail.append(tail.pop(0))
    if isinstance(o["pretouch"], int):
        tail.insert(o["pretouch"], "global_load_dword v159, v158, %s sc1" % sWS)
    if o.get("xearly"):
        xl = [t_ for t_ in tail if vXP + "," in t_][0]; tail.remove(xl)
    nav = [0]
    def tail_issue(n):
        for _ in range(n):
            if tail:
                A(tail.pop(0)); nav[0] += 1
    A("s_waitcnt vmcnt(8)")
    for t in range(2):
        for s in range(4):
            r = KR + (t * 4 + s) * 4
            A("ds_read_b128 v[%d:%d], v%d offset:%d" % (r, r + 3, KA + s, L_K + t * 4096))
    tail_issue(o["ntail0"])
    stamp(2)
    A("s_waitcnt lgkmcnt(0)")
    A("s_barrier")
    stamp(3)
    for s in range(4):
        A("ds_read_b128 v[%d:%d], %s offset:%d" % (QR + 4 * s, QR + 4 * s + 3, vQA, L_Q + s * 64))
    if "a" in o["tsp"]: tail_issue(1)
    A("s_mov_b32 s46, 0x%x" % SCALE)
    A("s_mov_b32 %s, 0xffff0000" % t1)
    A("s_mov_b32 s48, 0x%x" % LOG2E)
    for s in range(4):
        A("s_waitcnt lgkmcnt(%d)" % (3 - s))
        for t in range(2):
            mfma(SR + 4 * t, KR + (t * 4 + s) * 4, QR + 4 * s, None if s == 0 else SR + 4 * t)
    T = KR
    vH0, vH1, vFL, vTG = "v%d" % (T + 28), "v%d" % (T + 29), "v%d" % (T + 26), "v%d" % (T + 27)
    A("v_mov_b32 %s, %d" % (vFL, L_FLAG))
    A("s_lshl_b32 %s, %s, 5" % (t3, sW))
    A("v_mov_b32 v%d, %s" % (T + 31, t3))
    A("ds_read_b64 v[%d:%d], %s" % (T + 26, T + 27, vFL))
    if "b" in o["tsp"]:
        tail_issue(1); A("s_nop 1")
    else: A("s_nop 2")
    C("scores: bf16(qk) -> * scale -> bf16   (the reference's two roundings)")
    for i in range(8):
        A("v_cvt_pk_bf16_f32 v%d, 0, v%d" % (SR + i, SR + i))
    for i in range(4):
        A("v_pk_mul_f32 %s, %s, s[46:47] op_sel_hi:[1,0]" % (P2(SR + 2 * i), P2(SR + 2 * i)))
    for i in range(8):
        A("v_cvt_pk_bf16_f32 v%d, 0, v%d" % (SR + i, SR + i))
    vm, vt, vl = "v%d" % (T + 4), "v%d" % (T + 6), "v%d" % (T + 5)
    A("v_max3_f32 %s, v%d, v%d, v%d" % (vm, SR, SR + 1, SR + 2))
    A("v_max3_f32 %s, v%d, v%d, v%d" % (vt, SR + 3, SR + 4, SR + 5))
    A("v_max3_f32 %s, %s, v%d, v%d" % (vm, vm, SR + 6, SR + 7))
    A("v_max_f32 %s, %s, %s" % (vm, vm, vt))
    allred(vm, vt, "v_max_f32", 16)
    if "c" in o["tsp"]: tail_issue(1)
    allred(vm, vt, "v_max_f32", 32)
    A("v_mul_f32 %s, s48, %s" % (vm, vm))
    for i in range(4):
        A("v_pk_fma_f32 %s, %s, s[48:49], %s op_sel_hi:[1,0,0] neg_lo:[0,0,1] neg_hi:[0,0,1]" % (P2(SR + 2 * i), P2(SR + 2 * i), P2(T + 4)))
    for i in range(8):
        A("v_exp_f32 v%d, v%d" % (SR + i, SR + i))
    if "d" in o["tsp"]: tail_issue(1)
    for i in range(4):
        A("v_cvt_pk_bf16_f32 v%d, v%d, v%d" % (T + 8 + i, SR + 2 * i, SR + 2 * i + 1))
    for i in range(8):
        for r in range(2):
            A("v_perm_b32 v%d, v%d, v%d, v%d" % (PA + 2 * i + r, T + 8 + (i >> 1), T + 8 + (i >> 1), SEL + 2 * (i & 1) + r))
    stamp(4)
    O0, O1, Y = QR, QR + 4, QR + 8
    def pv(i):
        A("s_waitcnt vmcnt(%d)" % (7 - i + nav[0]))
        if i >= o["tlag"]: tail_issue((2 if i < o.get("tdbl", 0) else 1) if i < o.get("tlast", 7) else 9)
        vr = VR + 4 * i
        mfma16(O0, PA + 2 * i, vr, None if i == 0 else O0)
        mfma16(O1, PA + 2 * i, vr + 2, None if i == 0 else O1)
    A("v_pk_add_f32 %s, %s, %s" % (P2(SR), P2(SR), P2(SR + 2)))
    A("v_pk_add_f32 %s, %s, %s" % (P2(SR + 4), P2(SR + 4), P2(SR + 6)))
    A("v_pk_add_f32 %s, %s, %s" % (P2(SR), P2(SR), P2(SR + 4)))
    A("v_add_f32 %s, v%d, v%d" % (vl, SR, SR + 1))
    allred(vl, vt, "v_add_f32", 16)
    allred(vl, vt, "v_add_f32", 32)
    A("ds_write_b64 %s, v[%d:%d] offset:%d" % (vMLW, T + 4, T + 5, L_ML))
    A("s_waitcnt lgkmcnt(0)")
    A("v_readfirstlane_b32 %s, %s" % (sFAST, vFL))
    A("v_readfirstlane_b32 %s, %s" % (sTAG, vTG))
    SO = 4
    def soffs():
        A("s_and_b32 %s, %s, 0x2000" % (t0, sFAST))
        A("v_add_u32 %s, %s, %s" % (vL3, t0, vL3))
        A("s_or_b32 s3, s3, %s" % t0)
        for k in range(1, 8): A("s_xor_b32 s%d, s3, 0x%x" % (SO + k - 1, k << 9))
    nshot = [0]
    SD = [12, 20, 44, 64, 72, 80, 88] if not o["stamps"] else None
    def sshot(bit):
        if o["lastfin"] < 2 or not (o.get("sshot", 2) & bit): return
        nshot[0] += 1
        A("s_bitcmp0_b32 %s, 1" % sFAST)
        A("s_cbranch_scc1 L_noshot%d" % nshot[0])
        for k in range(1, 8):
            if o["lastfin"] == 2: A("s_load_dword s%d, %s, s%d offset:12 %s" % (12 + k, sWS, SO + k - 1, o.get("sfl", "glc")))
            else: A("s_load_dwordx8 s[%d:%d], %s, s%d glc" % (SD[k - 1], SD[k - 1] + 7, sWS, SO + k - 1))
        LB("L_noshot%d" % nshot[0])
    HA = T + 16
    ML = T
    OB = T + 8
    G2 = SR
    vM, vLs = "v124", "v125"
    for i in range(o["b2"]): pv(i)
    if o.get("dbgb2"): A("s_memrealtime s[70:71]")
    A("s_barrier")
    if o.get("dbgb2"): A("s_memrealtime s[72:73]")
    A("ds_read_b128 v[%d:%d], v%d offset:%d" % (ML, ML + 3, T + 31, L_ML))
    A("ds_read_b128 v[%d:%d], v%d offset:%d" % (ML + 4, ML + 7, T + 31, L_ML + 16))
    if not o["hlate"]:
        A("ds_read_b32 %s, %s offset:%d" % (vH0, vHA, L_H))
        A("ds_read_b32 %s, %s offset:%d" % (vH1, vHA, L_H + 16))
    avote = o["vote"] and not o["lastfin"]
    if avote:
        A("v_mov_b32 v%d, 0" % (T + 30))
        A("ds_read_b32 v%d, v%d offset:%d" % (T + 30, T + 30, L_FLAG + 8))
    A("s_mov_b32 s54, 0x55555555")
    A("s_mov_b32 s55, 0x55555555")
    A("v_mov_b32 v%d, %s" % (G2 + 3, sTAG))
    A("s_waitcnt lgkmcnt(%d)" % ((0 if o["hlate"] else 2) + (1 if avote else 0)))
    A("v_max3_f32 %s, v%d, v%d, v%d" % (vM, ML, ML + 2, ML + 4))
    A("v_max_f32 %s, %s, v%d" % (vM, vM, ML + 6))
    for w_ in range(4):
        A("v_sub_f32 v%d, v%d, %s" % (ML + 2 * w_, ML + 2 * w_, vM))
    for w_ in range(4):
        A("v_exp_f32 v%d, v%d" % (ML + 2 * w_, ML + 2 * w_))
    A("s_waitcnt lgkmcnt(0)")
    A("v_mul_f32 %s, v%d, v%d" % (vLs, ML, ML + 1))
    for w_ in range(1, 4):
        A("v_fmac_f32 %s, v%d, v%d" % (vLs, ML + 2 * w_, ML + 2 * w_ + 1))
    def h_operands():
        for a in range(2):
            for r in range(4):
                A("v_and_b32 v%d, %s, v%d" % (HA + 4 * a + r, (vH0, vH1)[a], MK + r))
    A("v_log_f32 v%d, %s" % (G2 + 2, vLs))
    A("v_rcp_f32 %s, %s" % (vLs, vLs))
    if not o["hlate"]: h_operands()
    else: A("s_nop 0")
    if avote: A("v_add_u32 %s, v%d, %s" % (vL3, T + 30, vL3))
    A("v_add_f32 v%d, v%d, %s" % (G2 + 2, G2 + 2, vM))
    for w_ in range(4):
        A("v_mul_f32 v%d, v%d, %s" % (ML + 2 * w_, ML + 2 * w_, vLs))
    for i in range(o["b2"], 8): pv(i)
    stamp(5)
    if o.get("nosync"):
        A("s_waitcnt vmcnt(0)")
        stamp(6)
        A("s_branch L_done")
    A("s_nop 6")
    A("ds_write_b128 %s, v[%d:%d] offset:%d" % (vOW, O0, O0 + 3, L_O))
    A("ds_write_b128 %s, v[%d:%d] offset:%d" % (vOW, O1, O1 + 3, L_O + 256))
    A("s_waitcnt lgkmcnt(0)")
    A("s_barrier")
    for w_ in range(4):
        A("ds_read_b64 v[%d:%d], %s offset:%d" % (OB + 2 * w_, OB + 2 * w_ + 1, vOR, L_O + w_ * 2048))
    A("s_bitcmp0_b32 %s, 0" % sFAST)
    for w_ in range(4):
        A("s_waitcnt lgkmcnt(%d)" % (3 - w_))
        op = "v_mul_f32" if w_ == 0 else "v_fmac_f32"
        A("%s v%d, v%d, v%d" % (op, G2, ML + 2 * w_, OB + 2 * w_))
        A("%s v%d, v%d, v%d" % (op, G2 + 1, ML + 2 * w_, OB + 2 * w_ + 1))
    tails = []
    def publish(addr, g, name):
        A("s_cbranch_scc1 L_slow_%s" % name)
        A("global_store_dwordx4 %s, v[%d:%d], %s %s" % (addr, g, g + 3, sWS, o.get("stfl", "")))
        LB("L_back_%s" % name)
        tails.append((name, addr, g))
    A("v_cvt_pk_bf16_f32 v%d, v%d, v%d" % (G2, G2, G2 + 1))
    A("s_nop 1")
    A("v_mov_b32_dpp v%d, v%d quad_perm:[1,1,3,3] %s" % (G2 + 1, G2, DPP))
    A("s_mov_b64 exec, s[54:55]")
    publish(vS2, G2, "h2")
    A("s_mov_b64 exec, -1")
    stamp(6)
    P = T
    for i in range(2):
        A("global_load_dwordx4 v[%d:%d], %s, %s offset:%d sc1" % (P + 4 * i, P + 4 * i + 3, vL2, sWS, i * 1024))
    for t_ in dnl: A(t_)
    if o["hlate"]:
        A("s_barrier")
        A("ds_read_b32 %s, %s offset:%d" % (vH0, vHA, L_H))
        A("ds_read_b32 %s, %s offset:%d" % (vH1, vHA, L_H + 16))
    A("s_mov_b32 %s, %d" % (sCNT, o["spinmax"]))
    vTAG = "v127"
    sT2 = sTAG
    if o["reuse"]:
        sT2 = "s62"
        A("s_not_b32 %s, %s" % (t0, sTAG))
        A("s_lshl_b32 %s, %s, 24" % (t0, t0))
        A("s_and_b32 s62, %s, 0xffffff" % sTAG)
        A("s_or_b32 s62, s62, %s" % t0)
    A("v_mov_b32 %s, %s" % (vTAG, sT2))
    for k in range(4):
        A("s_mov_b32 s%d, 0x%x" % (56 + k, 0x07060500 | k))
        A("s_bfe_u32 s%d, %s, 0x%x" % (60 + k if k < 2 else 50 + k, sT2, 0x80000 | (8 * k)))
    TB = ["s60", "s61", "s52", "s53"]
    if o["hlate"]:
        A("s_waitcnt lgkmcnt(0)")
        h_operands()
    ndn_early = 2 - len(dnl)
    if o["lastfin"] >= 2: soffs()
    A("s_waitcnt vmcnt(%d)" % (3 + len(dnl)))
    for a in range(ndn_early):
        mfma(Y, HA + 4 * a, DNR + 4 * a, None if a == 0 else Y)
    if dnl:
        A("s_waitcnt vmcnt(%d)" % len(dnl))
        A("s_branch L_chk2b")
    else:
        A("s_branch L_chk2")
    LB("L_poll2")
    MS = ["s[44:45]", "s[46:47]"]
    for i in range(2):
        if o["mask2"]: A("s_mov_b64 exec, %s" % MS[i])
        A("global_load_dwordx4 v[%d:%d], %s, %s offset:%d sc1" % (P + 4 * i, P + 4 * i + 3, vL2, sWS, i * 1024))
    if o["mask2"]: A("s_mov_b64 exec, -1")
    A("s_sub_u32 %s, %s, 1" % (sCNT, sCNT))
    A("s_cbranch_scc1 L_end")
    LB("L_chk2")
    A("s_waitcnt vmcnt(0)")
    LB("L_chk2b")
    A("v_max_f32 %s, v%d, v%d" % (vM, P + 2, P + 6))
    for i in range(2):
        A("v_cmp_ne_u32 %s, %s, v%d" % (MS[i], sTAG, P + 4 * i + 3))
    A("v_max_f32_dpp %s, %s, %s row_ror:4 %s" % (vM, vM, vM, DPP))
    A("s_or_b64 vcc, %s, %s" % (MS[0], MS[1]))
    A("s_cbranch_scc1 L_poll2")
    stamp(7)
    sshot(1)
    U = T + 8
    def unp(i, k):
        if k & 1: A("v_and_b32 v%d, %s, v%d" % (U + 4 * i + k, t1, P + 4 * i + (k >> 1)))
        else: A("v_lshlrev_b32 v%d, 16, v%d" % (U + 4 * i + k, P + 4 * i + (k >> 1)))
    vt2 = "v126"
    A("v_max_f32_dpp %s, %s, %s row_ror:8 %s" % (vM, vM, vM, DPP))
    A("v_mov_b32 %s, %s" % (vt2, vM))
    unp(0, 0); unp(0, 1)
    A("v_permlane16_swap_b32 %s, %s" % (vt2, vM))
    A("v_max_f32 %s, %s, %s" % (vM, vM, vt2))
    A("v_mov_b32 %s, %s" % (vt2, vM))
    unp(0, 2); unp(0, 3)
    A("v_permlane32_swap_b32 %s, %s" % (vt2, vM))
    A("v_max_f32 %s, %s, %s" % (vM, vM, vt2))
    w0, w1 = "v120", "v122"
    A("v_sub_f32 %s, v%d, %s" % (w0, P + 2, vM))
    A("v_sub_f32 %s, v%d, %s" % (w1, P + 6, vM))
    A("v_exp_f32 %s, %s" % (w0, w0))
    A("v_exp_f32 %s, %s" % (w1, w1))
    unp(1, 0)
    den, tA, tB = "v126", "v124", "v123"
    A("v_add_f32 %s, %s, %s" % (den, w0, w1))
    unp(1, 1); unp(1, 2)
    A("v_add_f32_dpp %s, %s, %s row_ror:4 %s" % (den, den, den, DPP))
    unp(1, 3)
    A("v_pk_mul_f32 %s, %s, v[120:121] op_sel_hi:[1,0]" % (P2(U), P2(U)))
    A("v_add_f32_dpp %s, %s, %s row_ror:8 %s" % (den, den, den, DPP))
    A("v_pk_mul_f32 %s, %s, v[120:121] op_sel_hi:[1,0]" % (P2(U + 2), P2(U + 2)))
    A("v_pk_fma_f32 %s, %s, v[122:123], %s op_sel_hi:[1,0,1]" % (P2(U), P2(U + 4), P2(U)))
    A("v_pk_fma_f32 %s, %s, v[122:123], %s op_sel_hi:[1,0,1]" % (P2(U + 2), P2(U + 6), P2(U + 2)))
    A("v_mov_b32 %s, %s" % (tA, den))
    A("s_bitcmp0_b32 %s, 0" % sFAST)
    A("v_permlane32_swap_b32 v%d, v%d" % (U, U + 2))
    A("v_permlane32_swap_b32 v%d, v%d" % (U + 1, U + 3))
    A("v_permlane32_swap_b32 %s, %s" % (tA, den))
    A("v_pk_add_f32 %s, %s, %s" % (P2(U), P2(U), P2(U + 2)))
    A("v_add_f32 %s, %s, %s" % (den, den, tA))
    A("s_mov_b32 %s, %d" % (sCNT, o["spinmax"]))
    A("v_permlane16_swap_b32 v%d, v%d" % (U, U + 1))
    A("v_mov_b32 %s, %s" % (tA, den))
    A("v_add_f32 v%d, v%d, v%d" % (U, U, U + 1))
    A("s_nop 0")
    A("v_permlane16_swap_b32 %s, %s" % (tA, den))
    A("v_add_f32_dpp v%d, v%d, v%d row_ror:4 %s" % (U, U, U, DPP))
    A("v_add_f32 %s, %s, %s" % (den, den, tA))
    A("v_rcp_f32 %s, %s" % (den, den))
    A("v_add_f32_dpp v%d, v%d, v%d row_ror:8 %s" % (U, U, U, DPP))
    a0 = "v125"
    A("v_mul_f32 %s, v%d, %s" % (a0, U, den))
    A("v_cvt_pk_bf16_f32 %s, %s, %s" % (a0, a0, a0))
    A("s_nop 1")
    WA = T
    for m in range(4):
        for r in range(4):
            A("v_and_b32_dpp v%d, %s, v%d row_newbcast:%d %s" % (WA + 4 * m + r, a0, MK + r, m, DPP))
        if m > 0:
            mfma(Y, WA + 4 * (m - 1), WOR + 4 * (m - 1), Y if (m > 1 or ndn_early) else None)
    if dnl:
        A("s_waitcnt vmcnt(0)")
        for a in range(ndn_early, 2):
            mfma(Y, HA + 4 * a, DNR + 4 * a, Y)
    else:
        A("s_nop 1")
    mfma(Y, WA + 12, WOR + 12, Y)
    A("s_mov_b32 exec_hi, 0")
    if o["reuse"]:
        A("s_barrier")
        A("s_nop 5")
    else:
        A("s_nop 6")
    for k in range(4):
        A("v_perm_b32 v%d, v%d, %s, s%d" % (Y + k, Y + k, vTAG, 56 + k))
    publish(vS25, Y, "h25")
    stamp(8)
    sshot(2)
    NP = o["np25"]
    PS = T + 16
    if o.get("ack25"): A("s_waitcnt vmcnt(0)")
    sshot(8)
    for _ in range(o.get("dly25", 0)): A("s_nop 7")
    for k in range(NP):
        A("global_load_dwordx4 v[%d:%d], %s, %s sc1" % (PS + 4 * k, PS + 4 * k + 3, vL25, sWS))
    sshot(4)
    LB("L_poll25")
    for k in range(NP):
        A("s_waitcnt vmcnt(%d)" % (NP - 1))
        for q in range(4):
            A("v_xor_b32 v%d, %s, v%d" % (P + q, TB[q], PS + 4 * k + q))
        A("v_or3_b32 %s, v%d, v%d, v%d" % (tA, P, P + 1, P + 2))
        A("v_or_b32_sdwa %s, %s, v%d dst_sel:DWORD dst_unused:UNUSED_PAD src0_sel:BYTE_0 src1_sel:BYTE_0" % (tA, tA, P + 3))
        A("v_cmp_ne_u32 vcc, 0, %s" % tA)
        if o["mask25"]:
            A("s_and_b64 exec, exec, vcc")
            A("s_cbranch_scc0 L_got25")
        else:
            A("s_cbranch_vccz L_got25")
        A("global_load_dwordx4 v[%d:%d], %s, %s sc1" % (PS + 4 * k, PS + 4 * k + 3, vL25, sWS))
    A("s_sub_u32 %s, %s, 1" % (sCNT, sCNT))
    A("s_cbranch_scc0 L_poll25")
    A("s_endpgm")
    LB("L_got25")
    A("s_mov_b64 exec, -1")
    stamp(9)
    x_, y_ = "v%d" % P, "v%d" % (P + 1)
    A("v_permlane16_swap_b32 v%d, v%d" % (P, P + 2))
    A("v_permlane16_swap_b32 v%d, v%d" % (P + 1, P + 3))
    A("v_add_f32 %s, %s, v%d" % (x_, x_, P + 2))
    A("v_add_f32 %s, %s, v%d" % (y_, y_, P + 3))
    fl = ["v_mov_b32 v%d, %s" % (P + 3, sTAG), "s_and_b32 %s, %s, 7" % (t0, sJ), "s_cmp_eq_u32 %s, %s" % (t0, sH), "s_nop 0"]
    if o["lastfin"]: fl = ["v_mov_b32 v%d, %s" % (P + 3, sTAG), "s_bitcmp1_b32 %s, 1" % sFAST, "s_nop 0", "s_nop 0"]
    for rot_ in (1, 2, 4, 8):
        A(fl.pop(0))
        A("v_add_f32_dpp %s, %s, %s row_ror:%d %s" % (x_, x_, x_, rot_, DPP))
        A("v_add_f32_dpp %s, %s, %s row_ror:%d %s" % (y_, y_, y_, rot_, DPP))
    def old_final():
        if o.get("ewg"): A("s_xor_b32 s63, s2, %d" % o["ewg"])
        if o.get("otouch"):
            A("global_load_dword v158, %s, %s" % (vXF, sOUT))
        A("s_lshl_b32 %s, 0x10001, %s" % (t0, sH))
        A("s_andn2_b32 exec_lo, 0xff00ff, %s" % t0)
        A("s_mov_b32 exec_hi, 0")
        A("s_mov_b32 %s, %d" % (sCNT, o["spinmax"]))
        NP = o["np3"]
        PS = VR
        if o["lastfin"] == 2 and o.get("sshot", 2):
            A("s_waitcnt lgkmcnt(0)")
            for k in range(1, 8): A("s_xor_b32 s%d, s%d, %s" % (12 + k, 12 + k, sTAG))
            A("s_or_b32 s13, s13, s14")
            A("s_or_b64 s[16:17], s[16:17], s[18:19]")
            A("s_or_b32 s13, s13, s15")
            A("s_or_b32 s16, s16, s17")
            if o["stamps"]: A("s_memrealtime s[68:69]")
            A("s_or_b32 s13, s13, s16")
            if o["stamps"]: A("s_cselect_b32 s66, 1, 2")
            A("s_cbranch_scc1 L_ask3")
            A("global_load_dwordx4 v[%d:%d], %s, %s %s" % (PS, PS + 3, vL3, sWS, o.get("hfl", "")))
            A("s_branch L_poll3")
            LB("L_ask3")
        for k in range(NP):
            A("global_load_dwordx4 v[%d:%d], %s, %s sc1" % (PS + 4 * k, PS + 4 * k + 3, vL3, sWS))
        LB("L_poll3")
        for k in range(NP):
            A("s_waitcnt vmcnt(%d)" % (NP - 1))
            A("v_cmp_ne_u32 vcc, %s, v%d" % (sTAG, PS + 4 * k + 3))
            A("v_mov_b32 v%d, v%d" % (P, PS + 4 * k))
            A("v_mov_b32 v%d, v%d" % (P + 1, PS + 4 * k + 1))
            A("s_and_b64 exec, exec, vcc")
            A("s_cbranch_scc0 L_got3")
            A("global_load_dwordx4 v[%d:%d], %s, %s sc1" % (PS + 4 * k, PS + 4 * k + 3, vL3, sWS))
        A("s_sub_u32 %s, %s, 1" % (sCNT, sCNT))
        A("s_cbranch_scc0 L_poll3")
        A("s_endpgm")
        LB("L_got3")
        stamp(10)
        A("s_mov_b32 exec_lo, -1")
        A("v_lshlrev_b32 %s, 16, %s" % (tA, vXP))
        A("v_and_b32 %s, %s, %s" % (tB, t1, vXP))
        for pat in ("quad_perm:[1,0,3,2]", "quad_perm:[2,3,0,1]", "row_half_mirror"):
            A("v_add_f32_dpp %s, %s, %s %s %s" % (x_, x_, x_, pat, DPP))
            A("v_add_f32_dpp %s, %s, %s %s %s" % (y_, y_, y_, pat, DPP))
            if pat != "row_half_mirror": A("s_nop 0")
        A("v_add_f32 %s, %s, %s" % (x_, x_, tA))
        A("v_add_f32 %s, %s, %s" % (y_, y_, tB))
        if o.get("perturb"):
            import struct
            bits = struct.unpack("<I", struct.pack("<f", float(o["perturb"])))[0]
            if o.get("pall"):
                A("v_mul_f32 %s, 0x%x, %s" % (x_, bits, x_)); A("v_mul_f32 %s, 0x%x, %s" % (y_, bits, y_))
            else:
                A("s_or_b32 %s, s2, %s" % (t0, sW))
                A("s_cselect_b32 %s, 0, 0x%x" % (t0, bits))
                A("v_add_f32 %s, %s, %s" % (x_, t0, x_))
        A("v_cvt_pk_bf16_f32 %s, %s, %s" % (x_, x_, y_))
        A("s_mov_b64 exec, 0x10001")
        A("global_store_dword %s, %s, %s %s" % (vXF, x_, sOUT, o.get("ofl", "")))
        A("s_or_b32 %s, %s, %s" % (t0, sJ if o["lastfin"] else "s2" if not o.get("ewg") else "s63", sW))
        A("s_cbranch_scc1 L_done")
        C("the next launch must not mistake this launch's hand-off words for its own")
        A("v_mov_b32 %s, 0" % tA)
        A("v_mov_b32 %s, %s" % (tB, sTAG))
        A("global_store_dword %s, %s, %s %s" % (tA, tB, sWS, o.get("efl", "")))
    def diag_end():
        if o.get("lateh") is not None:
            A("s_or_b32 %s, s2, %s" % (t0, sW))
            A("s_cbranch_scc1 L_nolate")
            A("s_mov_b64 exec, -1")
            A("v_and_b32 v2, 7, v0")
            A("v_lshlrev_b32 v2, 2, v2")
            A("global_load_dword v3, v2, s[24:25] sc1")
            A("s_waitcnt vmcnt(0)")
            for g_ in range(8): A("v_readlane_b32 s%d, v3, %d" % (64 + g_, g_))
            A("s_nop 3")
            for g_ in range(8): A("s_sub_u32 s%d, s%d, s90" % (64 + g_, 64 + g_))
            A("s_mov_b32 s72, s64")
            for g_ in range(1, 8): A("s_min_i32 s72, s72, s%d" % (64 + g_))
            if o["lateh"] == 8:
                A("s_mov_b32 s88, s64")
                for g_ in range(1, 8): A("s_max_i32 s88, s88, s%d" % (64 + g_))
            else:
                A("s_mov_b32 s88, s%d" % (64 + o["lateh"]))
            A("s_sub_u32 s88, s88, s72")
            A("s_mul_i32 s88, s88, 20")
            A("s_min_u32 s88, s88, 20000")
            A("s_add_u32 s88, s88, 1500")
            A("s_add_u32 s88, s88, s72")
            LB("L_latespin")
            A("s_memrealtime s[92:93]")
            A("s_waitcnt lgkmcnt(0)")
            A("s_sub_u32 s92, s92, s90")
            A("s_cmp_lt_u32 s92, s88")
            A("s_cbranch_scc1 L_latespin")
            LB("L_nolate")
        amp_end("")
        if o.get("pad"):
            LB("L_padspin")
            A("s_memrealtime s[92:93]")
            A("s_waitcnt lgkmcnt(0)")
            A("s_sub_u32 s92, s92, s90")
            A("s_cmp_lt_u32 s92, %d" % o["pad"])
            A("s_cbranch_scc1 L_padspin")
    A("s_cbranch_scc1 L_final")
    A("s_mov_b64 exec, 0x%x" % (0x30003 if o["rep3"] or o["vote"] else 0x10001))
    A("global_store_dwordx4 %s, v[%d:%d], %s sc1" % (vS3, P, P + 3, sWS))
    if o.get("wb"):
        A("s_or_b32 %s, %s, %s" % (t0, sW, sJ) if o["wb"] == 1 else "s_and_b32 %s, %s, 3" % (t0, sW))
        A("s_cmp_lg_u32 %s, %d" % (t0, 8 if o["wb"] == 1 else 0))
        A("s_cbranch_scc1 L_done")
        A("buffer_wbl2 sc1")
    A("s_branch L_done")
    LB("L_final")
    if o["lastfin"] == 1:
        A("s_mov_b64 exec, 0x10001")
        A("ds_write_b128 %s, v[%d:%d] offset:%d" % (vL3, P, P + 3, L_FIN))
        A("s_waitcnt lgkmcnt(0)")
    else:
        old_final()
    LB("L_done")
    diag_end()
    dump_stamps()
    A("s_endpgm")
    for name, addr, g in tails:
        LB("L_slow_%s" % name)
        A("global_store_dwordx4 %s, v[%d:%d], %s sc1" % (addr, g, g + 3, sWS))
        A("s_branch L_back_%s" % name)
    if o["lastfin"] == 1: unit_final()
    LB("L_end")
    A("s_endpgm")
    head = HEADER.format(lds=o.get("lds", LDS_BYTES), k=KNAME); foot = FOOTER.format(k=KNAME, vg=o.get("vg", 168), sg=96)
    if o["align"]: L = align_runs(L, head, foot, o.get("minrun", 3), o.get("nopmin", 6))
    return head + "\n".join(L) + foot


if __name__ == "__main__":
    kw = {}
    out = "parallel_sum__sliding_block_cached__swiglu_ffn__decode.s"
    for a in sys.argv[1:]:
        k, v = a.split("=", 1)
        if k == "out": out = v; continue
        try: v = int(v) if k != "nlv" else v
        except ValueError: pass
        kw[k] = v
    open(out, "w").write(gen(**kw))
```

```python
import sys

KNAME = "parallel_sum__sliding_block_cached__swiglu_ffn__decode_kernel"

HEADER = """; Kernarg layout for this problem (96 bytes, ptrs only, base s[0:1]):
;   offset  72: d_out     shape=(1, 1, 512) dtype=bfloat16
; @launch grid=(256,1,1) block=(320,1,1) lds={lds}
.amdgcn_target "amdgcn-amd-amdhsa--gfx950"
.text
.globl {k}
.p2align 8
.type {k},@function
{k}:
"""
FOOTER = """
.section .rodata,"a"
.p2align 6
.amdhsa_kernel {k}
  .amdhsa_next_free_vgpr {vg}
  .amdhsa_next_free_sgpr {sg}
  .amdhsa_accum_offset {vg}
  .amdhsa_group_segment_fixed_size 0
  .amdhsa_kernarg_size 96
  .amdhsa_user_sgpr_count 2
  .amdhsa_user_sgpr_kernarg_segment_ptr 1
  .amdhsa_system_sgpr_workgroup_id_x 1
.end_amdhsa_kernel
"""

MB1A = 0x40000
MB1B = 0x80000
MB2 = 0x100000
MB25 = 0x400000
MB3 = 0x200000
STAMPS = 0x10000000
L_WQ = 0
L_FF = 16384
L_XN = 32768
L_Q = 33792
L_H = 34816
L_FLAG = 34848
L_VOTE = 34864
L_ML = 34880
L_TKT = 35008
L_FIN = L_XN
L_O = 35072
L_K = L_O + 8192
L_K = (L_K + 1023) // 1024 * 1024
LDS_BYTES = L_K + 32768
TAGC = 0x9E3779B9
LOG2E = 0x3FB8AA3B
SCALE = 0x3DB504F3
EPS = 0x3727C5AC
DPP = "row_mask:0xf bank_mask:0xf"

DEF = dict(stamps=False, spinmax=200000, WK=5, W=6, Wtail=8, b0pos=45, nt="nt", pretouch="k", atries=24,
           prefetch=True, b2=7, ntail0=0, tlag=0, mask2=False, pt1=True, rotm=4, rep3=False, tsp="", auxearly=True, hlate=False, vote=True, np25=1, np3=1, ack25=1, align=1, unr=2, mask25=True, lperm=0, nlv="43434343", reuse=1, rp=2176, bonly=0, bdefer=4, bskip=1, lastfin=0, npu=1, stag=0)


def _sizes(text):
    import subprocess, tempfile, os, re
    d = tempfile.mkdtemp()
    open(d + "/a.s", "w").write(text)
    subprocess.run(["clang", "-x", "assembler", "-target", "amdgcn-amd-amdhsa", "-mcpu=gfx950", "-c", d + "/a.s", "-o", d + "/a.o"], check=True)
    out = subprocess.run(["llvm-objdump", "-d", "--mcpu=gfx950", d + "/a.o"], capture_output=True, text=True).stdout
    r = []
    for ln in out.split("\n"):
        m = re.search(r"^\s+(\S+).*// ([0-9A-F]{12}): ((?:[0-9A-F]{8} ?)+)", ln)
        if m: r.append((m.group(1), 4 * len(m.group(3).split())))
    return r


def align_runs(L, head, foot, minrun=3, nopmin=6):
    ins = [i for i, l in enumerate(L) if l.startswith("    ") and not l.strip().startswith(";")]
    sz = _sizes(head + "\n".join(L) + foot)
    assert len(sz) == len(ins), (len(sz), len(ins))
    size = {i: s_[1] for i, s_ in zip(ins, sz)}
    mn = {i: s_[0] for i, s_ in zip(ins, sz)}
    out = list(L); extra = {}
    off = 0; k = 0
    while k < len(ins):
        i = ins[k]
        if size[i] == 8 and off % 8 == 4:
            run = 0
            while k + run < len(ins) and size[ins[k + run]] == 8: run += 1
            if run >= minrun:
                b = k - 1; done = False
                while b >= 0 and size[ins[b]] == 4:
                    j = ins[b]
                    if mn[j] == "s_nop" and int(out[j].split()[1]) >= 1:
                        out[j] = "    s_nop 0\n    s_nop %d" % (int(out[j].split()[1]) - 1)
                        size[j] = 8; off += 4; done = True
                        break
                    if mn[j].endswith("_e32") and not mn[j].startswith(("v_readfirstlane", "v_permlane")):
                        op = out[j].split()[0]
                        out[j] = out[j].replace(op, op.replace("_e32", "") + "_e64", 1)
                        size[j] = 8; off += 4; done = True
                        break
                    b -= 1
                if not done and run >= nopmin and k > 0 and not mn[ins[k - 1]].startswith(("s_branch", "s_endpgm")):
                    extra[i] = True; off += 4; done = True
                if not done and k > 0 and mn[ins[k - 1]].startswith(("s_branch", "s_endpgm")):
                    extra[ins[k - 1] + 1] = True; off += 4
            for q in range(run): off += 8
            k += run
            continue
        off += size[i]; k += 1
    res = []
    for i, l in enumerate(out):
        if i in extra: res.append("    s_nop 0")
        res.append(l)
    return res


def gen(**kw):
    o = dict(DEF); o.update(kw)
    L = []
    def A(s): L.append("    " + s)
    def LB(s): L.append(s + ":")
    def C(s): L.append("    ; " + s)
    nt = o["nt"]
    NSTAMP = 12
    role = ["U"]
    def stamp(i):
        if o.get("amp") == "%s%d" % (role[0], i): A("s_memrealtime s[88:89]" if not o.get("cyc") else "s_memtime s[88:89]")
        if o.get("amp0") == "%s%d" % (role[0], i): A("s_memrealtime s[86:87]" if not o.get("cyc") else "s_memtime s[86:87]")
        if o["stamps"] and (i in (0, 11) or o.get("sel") is None or ("%s%d" % (role[0], i)) in o["sel"].split(",")):
            A("s_memrealtime s[%d:%d]" % (64 + 2 * i, 65 + 2 * i))
    def mfma(d, a, b, c):
        A("v_mfma_f32_16x16x32_bf16 v[%d:%d], v[%d:%d], v[%d:%d], %s" % (d, d + 3, a, a + 3, b, b + 3, "0" if c is None else "v[%d:%d]" % (c, c + 3)))
    def mfma16(d, a, b, c):
        A("v_mfma_f32_16x16x16_bf16 v[%d:%d], v[%d:%d], v[%d:%d], %s" % (d, d + 3, a, a + 1, b, b + 1, "0" if c is None else "v[%d:%d]" % (c, c + 3)))
    def allred(v, tmp, op, which):
        A("v_mov_b32 %s, %s" % (tmp, v))
        A("s_nop 1")
        A("v_permlane%d_swap_b32 %s, %s" % (which, tmp, v))
        A("%s %s, %s, %s" % (op, v, v, tmp))
    sX, sK, sV, sWQ, sWO, sG, sU, sDN, sOUT, sWS = "s[4:5]", "s[6:7]", "s[8:9]", "s[10:11]", "s[12:13]", "s[16:17]", "s[18:19]", "s[20:21]", "s[22:23]", "s[26:27]"
    sW, sH, sJ, sTAG, sXCC, sCNT, sFAST = "s30", "s31", "s32", "s33", "s34", "s35", "s36"
    t0, t1, t2, t3 = "s37", "s38", "s39", "s40"
    def dump_stamps():
        if not o["stamps"]: return
        if role[0] == "U" and o.get("sel") is not None and "U" not in o["sel"]: return
        A("s_mov_b64 exec, 1")
        stamp(11)
        A("s_waitcnt lgkmcnt(0)")
        A("s_mul_i32 %s, s2, 5" % t0)
        A("s_add_u32 %s, %s, %s" % (t0, t0, sW))
        A("s_lshl_b32 %s, %s, 7" % (t0, t0))
        A("s_add_u32 %s, %s, 0x%x" % (t0, t0, STAMPS))
        A("v_mov_b32 v2, %s" % t0)
        for i in range(NSTAMP):
            A("v_mov_b32 v3, s%d" % (64 + 2 * i))
            A("global_store_dword v2, v3, %s offset:%d" % (sWS, 4 * i))
        A("v_mov_b32 v3, %s" % ("s63" if role[0] == "U" and o["vote"] else sCNT))
        A("global_store_dword v2, v3, %s offset:%d" % (sWS, 4 * NSTAMP))
        if o.get("dbgfail"):
            for q_, r_ in enumerate(("s84", "s62", "s63")):
                A("v_mov_b32 v3, %s" % r_)
                A("global_store_dword v2, v3, %s offset:%d" % (sWS, 4 * NSTAMP + 8 + 4 * q_))
        A("s_getreg_b32 %s, hwreg(HW_REG_HW_ID)" % t1)
        A("v_mov_b32 v3, %s" % t1)
        A("global_store_dword v2, v3, %s offset:%d" % (sWS, 4 * NSTAMP + 4))

    def amp_end(sfx):
        if o.get("ampg"):
            A("s_waitcnt vmcnt(0) lgkmcnt(0)")
            A("s_memrealtime s[88:89]")
            A("s_mov_b64 exec, -1")
            A("v_and_b32 v2, 7, v0")
            A("v_lshlrev_b32 v2, 2, v2")
            A("global_load_dword v3, v2, s[24:25] offset:128 sc1")
            A("s_waitcnt vmcnt(0) lgkmcnt(0)")
            for g_ in range(8): A("v_readlane_b32 s%d, v3, %d" % (64 + g_, g_))
            A("s_nop 3")
            for g_ in range(8): A("s_sub_u32 s%d, s88, s%d" % (64 + g_, 64 + g_))
            for g_ in range(1, 8): A("s_max_i32 s64, s64, s%d" % (64 + g_))
            A("s_mul_i32 s64, s64, 9")
            A("s_min_u32 s64, s64, 20000")
            A("s_add_u32 s64, s64, 1500")
            LB("L_ampgspin" + sfx)
            A("s_memrealtime s[92:93]")
            A("s_waitcnt lgkmcnt(0)")
            A("s_sub_u32 s92, s92, s88")
            A("s_cmp_lt_u32 s92, s64")
            A("s_cbranch_scc1 L_ampgspin" + sfx)
        if o.get("amp"):
            if o["amp"] == "end": A("s_memrealtime s[88:89]")
            A("s_waitcnt lgkmcnt(0)")
            A("s_sub_u32 s88, s88, %s" % ("s86" if o.get("amp0") else "s90"))
            A("s_mul_i32 s88, s88, %d" % o.get("ampk", 10))
            A("s_min_u32 s88, s88, 20000")
            A("s_add_u32 s88, s88, 1500")
            LB("L_ampspin" + sfx)
            A("s_memrealtime s[92:93]")
            A("s_waitcnt lgkmcnt(0)")
            A("s_sub_u32 s92, s92, s90")
            A("s_cmp_lt_u32 s92, s88")
            A("s_cbranch_scc1 L_ampspin" + sfx)
    nlv = [int(c) for c in str(o["nlv"])]
    assert len(nlv) == 8 and sum(nlv) == 28 and min(nlv) >= 0 and max(nlv) <= 4
    LUT_d = sum((4 - n) << (4 * i) for i, n in enumerate(nlv))
    LUT_D = sum((4 * i - sum(nlv[:i])) << (4 * i) for i in range(8))
    def ffn_share(l0, d):
        A("s_lshl_b32 %s, %s, 2" % (l0, sH))
        A("s_lshr_b32 %s, 0x%x, %s" % (d, LUT_D, l0))
        A("s_and_b32 %s, %s, 7" % (d, d))
        A("s_sub_u32 s3, %s, %s" % (l0, d))
        A("s_lshr_b32 %s, 0x%x, %s" % (d, LUT_d, l0))
        A("s_and_b32 %s, %s, 7" % (d, d))
    stamp(0)
    if o.get("pad") or o.get("bal") or o.get("amp") or o.get("ampg") or o.get("ampm") or o.get("lateh") is not None: A("s_memrealtime s[90:91]")
    A("s_cmp_ge_u32 s2, 256")
    A("s_cbranch_scc1 L_end")
    A("s_load_dwordx16 s[4:19], s[0:1], 0")
    A("s_load_dwordx8 s[20:27], s[0:1], 64")
    A("v_lshrrev_b32 v1, 6, v0")
    A("v_and_b32 v0, 63, v0")
    A("v_readfirstlane_b32 %s, v1" % sW)
    A("s_and_b32 %s, s2, 7" % sH)
    A("s_lshr_b32 %s, s2, 3" % sJ)
    if o.get("bal") or o.get("lateh") is not None or o.get("ampg") or o.get("ampm"):
        A("s_or_b32 %s, %s, %s" % (t0, sJ, sW))
        A("s_cbranch_scc1 L_noflag")
        A("s_lshl_b32 %s, %s, 2" % (t0, sH))
        A("v_mov_b32 v108, %s" % t0)
        A("s_waitcnt lgkmcnt(0)")
        A("s_or_b32 %s, s90, 1" % t0)
        A("v_mov_b32 v109, %s" % t0)
        A("global_store_dword v108, v109, s[24:25] offset:%d sc1" % (128 if o.get("ampg") or o.get("ampm") else 0))
        LB("L_noflag")
    A("s_cmp_eq_u32 %s, 4" % sW)
    A("s_cbranch_scc0 %s" % ("L_race" if o["vote"] else "L_attn"))

    C("wave 4: layernorm, one [128 x 64] tile of wq and one of gate/up, exchange of q and of the FFN hidden values")
    A("s_setprio 3")
    if o["prefetch"]:
        A("s_getpc_b64 s[28:29]")
        LB("L_pc")
        A("v_lshlrev_b32 v2, 7, v0")
        A("v_min_u32 v2, L_end-L_pc, v2")
        A("global_load_dword v127, v2, s[28:29]")
    sQK, sNOFF = "s50", "s51"
    A("v_lshlrev_b32 v3, 4, v0")
    A("v_lshrrev_b32 v6, 3, v0")
    A("v_and_b32 v5, 2, v6")
    A("v_and_b32 v7, 7, v0")
    A("v_xor_b32 v5, v5, v7")
    A("v_lshlrev_b32 v7, 4, v5")
    A("s_and_b32 %s, %s, 3" % (sQK, sJ))
    A("s_lshl_b32 %s, %s, 10" % (t0, sH))
    if o["lperm"]:
        A("s_andn2_b32 %s, %s, 3" % (t1, sJ))
        A("s_lshr_b32 %s, 0x%x, %s" % (t1, o["lperm"], t1))
        A("s_and_b32 s55, %s, 7" % t1)
    else:
        A("s_lshr_b32 s55, %s, 2" % sJ)
    A("s_lshl_b32 %s, s55, 7" % t1)
    A("s_lshl_b32 %s, %s, 20" % (t2, sQK))
    A("s_add_u32 %s, %s, %s" % (t0, t0, t1))
    A("s_add_u32 %s, %s, %s" % (t0, t0, t2))
    A("v_lshl_add_u32 v4, v6, 13, v7")
    A("v_add_u32 v4, %s, v4" % t0)
    A("v_xor_b32 v5, 64, v4")
    A("v_add_u32 v5, 0x10000, v5")
    A("s_mov_b32 m0, %d" % L_WQ)
    A("s_mov_b32 %s, 0x20000" % t1)
    if o.get("ucontig"):
        A("s_lshl_b32 %s, s2, 10" % t0)
        A("v_add_u32 v4, %s, v3" % t0)
        A("v_add_u32 v5, 0x40000, v4")
        A("s_mov_b32 %s, 0x80000" % t1)
    A("s_movk_i32 s41, 1024")
    A("s_waitcnt lgkmcnt(0)")
    A("global_load_dwordx4 v[8:11], v3, %s" % sX)
    A("s_load_dword %s, %s, 0" % (sTAG, sWS))
    def dma_loop(name, base, step):
        A("s_mov_b32 %s, %d" % (t2, 16 // o["unr"]))
        LB(name)
        for i in range(o["unr"]):
            vv = ("v4", "v5")[i & 1]
            A("global_load_lds_dwordx4 %s, %s %s" % (vv, base, nt))
            A("s_add_u32 m0, m0, s41")
            A("v_add_u32 %s, %s, %s" % (vv, step, vv))
        A("s_sub_u32 %s, %s, 1" % (t2, t2))
        A("s_cmp_lg_u32 %s, 0" % t2)
        A("s_cbranch_scc1 %s" % name)
    dma_loop("L_wq_loop", sWQ, t1)
    if o["b0pos"] == 16: A("s_barrier")
    ffn_share(t0, t3)
    A("s_lshr_b32 %s, %s, 3" % (t1, sJ))
    A("s_add_u32 %s, s3, %s" % (t0, t1))
    A("s_add_u32 %s, %s, %s" % (sNOFF, t1, t3))
    A("s_mul_i32 %s, %s, 3584" % (t1, sQK))
    A("s_add_u32 %s, %s, %s" % (t0, t0, t1))
    A("s_lshl_b32 %s, %s, 7" % (t0, t0))
    A("v_mul_u32_u24 v4, 3584, v6")
    A("v_add3_u32 v4, v4, v7, %s" % t0)
    A("v_xor_b32 v5, 64, v4")
    A("v_add_u32 v5, %d, v5" % (8 * 3584))
    A("s_mov_b32 %s, %d" % (t1, 16 * 3584))
    if o.get("ucontig"):
        A("s_lshr_b32 %s, s2, 1" % t0)
        A("s_min_u32 %s, %s, 111" % (t0, t0))
        A("s_lshl_b32 %s, %s, 10" % (t0, t0))
        A("v_add_u32 v4, %s, v3" % t0)
        A("v_add_u32 v5, %d, v4" % (112 * 1024))
        A("s_mov_b32 %s, %d" % (t1, 224 * 1024))
    A("s_bitcmp0_b32 %s, %d" % (("s2", 0) if o.get("ucontig") else (sJ, 2)))
    A("s_cselect_b64 s[42:43], %s, %s" % (sG, sU))
    A("s_cmp_ge_u32 %s, 4" % sNOFF)
    A("s_cselect_b64 exec, 1, -1")
    dma_loop("L_ff_loop", "s[42:43]", t1)
    A("s_mov_b64 exec, -1")
    if o["vote"]:
        A("s_branch L_unit2")
        LB("L_race")
        C("which of the two copies of the last hand-off lives nearer to this die: race two cold scalar loads of this wave's own lines")
        A("s_lshl_b32 %s, s2, 2" % t0)
        A("s_add_u32 %s, %s, %s" % (t0, t0, sW))
        A("s_lshr_b32 %s, %s, 6" % (t1, t0))
        A("s_lshl_b32 %s, %s, 14" % (t1, t1))
        A("s_and_b32 %s, %s, 63" % (t0, t0))
        A("s_lshl_b32 %s, %s, 7" % (t0, t0))
        A("s_add_u32 %s, %s, %s" % (t0, t0, t1))
        A("s_bitset1_b32 %s, 21" % t0)
        A("s_lshl_b32 %s, %s, 13" % (t1, sW))
        A("s_and_b32 %s, %s, 0x2000" % (t1, t1))
        A("s_or_b32 s46, %s, %s" % (t0, t1))
        A("s_xor_b32 s47, s46, 0x2000")
        A("s_movk_i32 s28, 0x5bd1")
        A("s_movk_i32 s29, 0x5bd1")
        A("s_waitcnt lgkmcnt(0)")
        A("s_load_dword s28, %s, s46" % sWS)
        A("s_load_dword s29, %s, s47" % sWS)
        A("s_waitcnt lgkmcnt(1)")
        A("s_mov_b64 s[48:49], s[28:29]")
        LB("L_race_done")
        A("s_cmpk_lg_i32 s48, 0x5bd1")
        A("s_cselect_b32 %s, 1, 0" % t0)
        A("s_cmpk_lg_i32 s49, 0x5bd1")
        A("s_cselect_b32 %s, 1, 0" % t2)
        A("s_sub_i32 %s, %s, %s" % (t0, t0, t2))
        A("s_sub_i32 %s, 0, %s" % (t2, t0))
        A("s_cmp_eq_u32 %s, 0" % t1)
        A("s_cselect_b32 %s, %s, %s" % (t0, t0, t2))
        A("s_lshl_b32 %s, %s, 2" % (t2, sW))
        A("v_mov_b32 v158, %s" % t2)
        A("v_mov_b32 v159, %s" % t0)
        A("ds_write_b32 v158, v159 offset:%d" % L_VOTE)
        A("s_branch L_attn")
        LB("L_unit2")
    if o["pt1"]:
        C("pull this workgroup's own hand-off lines into L2 before anyone polls them")
        A("s_lshl_b32 %s, %s, 15" % (t0, sH))
        A("s_lshl_b32 %s, %s, 8" % (t1, sJ))
        A("s_add_u32 %s, %s, %s" % (t0, t0, t1))
        A("s_add_u32 %s, %s, 0x%x" % (t0, t0, MB1A))
        A("v_and_b32 v33, 1, v0")
        A("v_bfe_u32 v32, v0, 1, 1")
        A("v_lshlrev_b32 v33, 7, v33")
        A("v_lshl_add_u32 v33, v32, 13, v33")
        A("s_mul_i32 %s, %s, 240" % (t1, sJ))
        A("s_sub_u32 %s, 0x4000, %s" % (t1, t1))
        A("v_cmp_lt_u32 vcc, 3, v0")
        A("v_mov_b32 v32, %s" % t1)
        A("s_nop 0")
        A("v_cndmask_b32 v33, v33, v32, vcc")
        A("v_add_u32 v33, %s, v33" % t0)
        A("global_load_dword v119, v33, %s sc1" % sWS)
    def tlbwarm():
        C("first touch of the pages the later loads use (address translation early, off their queue)")
        A("s_lshl_b32 %s, %s, 24" % (t0, sH))
        A("s_add_u32 %s, %s, 0xF00000" % (t0, t0))
        A("v_mov_b32 v112, %s" % t0)
        A("s_lshl_b32 %s, %s, 19" % (t0, sH))
        A("v_mov_b32 v113, %s" % t0)
        A("s_mul_i32 %s, %s, 0x38000" % (t0, sH))
        A("v_mov_b32 v114, %s" % t0)
        A("v_mov_b32 v115, 0x%x" % MB3)
        A("s_mov_b64 exec, 1")
        A("global_load_dword v116, v112, %s" % sK)
        A("global_load_dword v117, v112, %s" % sV)
        A("global_load_dword v118, v113, %s" % sWO)
        A("global_load_dword v111, v114, %s" % sDN)
        A("global_load_dword v110, v115, %s" % sWS)
        A("s_mov_b64 exec, -1")
    NW = 1 if o["pt1"] else 0
    if o.get("tlbw") == 2:
        tlbwarm(); NW += 5
    if o["b0pos"] == 32:
        if o.get("b0wait") is not None: A("s_waitcnt vmcnt(%d)" % o["b0wait"])
        A("s_barrier")
    stamp(1)
    XF = 12
    A("s_mov_b32 %s, 0xffff0000" % t1)
    A("s_waitcnt vmcnt(%d)" % (32 + NW))
    stamp(2)
    C("layernorm with the reference's bf16 roundings")
    for i in range(4):
        A("v_lshlrev_b32 v%d, 16, v%d" % (XF + 2 * i, 8 + i))
        A("v_and_b32 v%d, %s, v%d" % (XF + 2 * i + 1, t1, 8 + i))
    fill = []
    def F(s): fill.append(s)
    def nop2():
        n = 0
        while fill and n < 2:
            A(fill.pop(0)); n += 1
        if n < 2: A("s_nop %d" % (1 - n))
    TRB = 120
    vAX, vS1, vL1, vL1x, vL1a, vF, vTN, vTB = "v34", "v35", "v36", "v37", "v38", "v39", "v124", "v125"
    sRP, sB1 = "s52", "s53"
    F("v_lshrrev_b32 v126, 4, v0")
    F("v_bfe_u32 v4, v0, 2, 2")
    F("v_lshl_add_u32 v5, v126, 3, v4")
    F("v_and_b32 v6, 3, v0")
    F("v_lshlrev_b32 v7, 3, v6")
    F("v_lshl_add_u32 v5, v5, 7, v7")
    F("v_bfe_u32 v4, v0, 3, 2")
    for ct in range(4):
        F("v_xor_b32 v7, %d, v4" % ct)
        F("v_lshl_add_u32 v%d, v7, 5, v5" % (TRB + ct))
    F("s_lshl_b32 %s, %s, 8" % (t0, sQK))
    F("v_lshl_add_u32 %s, v126, 4, %s" % (vAX, t0))
    F("s_lshl_b32 %s, %s, 15" % (sB1, sH))
    F("s_add_u32 %s, %s, 0x%x" % (sB1, sB1, MB1A))
    def wavesum(v, tmp):
        for rot in (1, 2, 4, 8):
            nop2()
            A("v_add_f32_dpp %s, %s, %s row_ror:%d %s" % (v, v, v, rot, DPP))
        for which in (16, 32):
            A("v_mov_b32 %s, %s" % (tmp, v))
            nop2()
            A("v_permlane%d_swap_b32 %s, %s" % (which, tmp, v))
            A("v_add_f32 %s, %s, %s" % (v, v, tmp))
    def P2(r): return "v[%d:%d]" % (r, r + 1)
    A("v_pk_add_f32 v[22:23], %s, %s" % (P2(XF), P2(XF + 2)))
    A("v_pk_add_f32 v[24:25], %s, %s" % (P2(XF + 4), P2(XF + 6)))
    A("v_pk_add_f32 v[22:23], v[22:23], v[24:25]")
    A("v_add_f32 v22, v22, v23")
    wavesum("v22", "v23")
    A("v_mul_f32 v22, 0x3b000000, v22")
    DV = 24
    for i in range(4):
        A("v_pk_add_f32 %s, %s, v[22:23] op_sel_hi:[1,0] neg_lo:[0,1] neg_hi:[0,1]" % (P2(DV + 2 * i), P2(XF + 2 * i)))
    A("v_cvt_pk_bf16_f32 v22, 0, v22")
    A("v_pk_mul_f32 v[32:33], %s, %s" % (P2(DV), P2(DV)))
    for i in range(1, 4):
        A("v_pk_fma_f32 v[32:33], %s, %s, v[32:33]" % (P2(DV + 2 * i), P2(DV + 2 * i)))
    A("v_add_f32 v32, v32, v33")
    pre = ["v_pk_add_f32 %s, %s, v[22:23] op_sel_hi:[1,0] neg_lo:[0,1] neg_hi:[0,1]" % (P2(XF + 2 * i), P2(XF + 2 * i)) for i in range(4)]
    pre += ["v_cvt_pk_bf16_f32 v%d, 0, v%d" % (XF + i, XF + i) for i in range(8)]
    rest = fill[:]; fill[:] = pre
    wavesum("v32", "v33")
    fill[:] = fill + rest
    A("v_mul_f32 v32, 0x3b000000, v32")
    A("v_cvt_pk_bf16_f32 v32, 0, v32")
    A("v_add_f32 v32, 0x%x, v32" % EPS)
    A("v_cvt_pk_bf16_f32 v32, 0, v32")
    A("v_sqrt_f32 v32, v32")
    A(fill.pop(0))
    A("v_cvt_pk_bf16_f32 v32, 0, v32")
    A("v_rcp_f32 v32, v32")
    A(fill.pop(0))
    for i in range(4):
        A("v_pk_mul_f32 %s, %s, v[32:33] op_sel_hi:[1,0]" % (P2(XF + 2 * i), P2(XF + 2 * i)))
    for i in range(4):
        A("v_cvt_pk_bf16_f32 v%d, v%d, v%d" % (8 + i, XF + 2 * i, XF + 2 * i + 1))
    A("ds_write_b128 v3, v[8:11] offset:%d" % L_XN)
    while fill: A(fill.pop(0))
    A("s_lshl_b32 %s, s55, 2" % t2)
    A("s_add_u32 s55, %s, %s" % (t2, sQK))
    A("s_lshl_b32 %s, s55, 8" % t2)
    A("s_add_u32 %s, %s, %s" % (t2, t2, sB1))
    A("v_lshrrev_b32 v4, 2, v0")
    A("v_lshl_add_u32 %s, v4, 4, %s" % (vS1, t2))
    A("s_waitcnt lgkmcnt(0)")
    AF = 40
    for m in range(4):
        A("ds_read_b128 v[%d:%d], %s offset:%d" % (AF + 4 * m, AF + 4 * m + 3, vAX, L_XN + m * 64))
    A("s_add_u32 %s, %s, 0x%x" % (sTAG, sTAG, TAGC))
    A("v_lshlrev_b32 v4, 2, v6")
    A("v_lshrrev_b32 %s, v4, %s" % (vTN, sTAG))
    A("v_and_b32 %s, 15, %s" % (vTN, vTN))
    A("v_lshlrev_b32 v4, 3, v6")
    A("v_lshrrev_b32 %s, v4, %s" % (vTB, sTAG))
    A("v_and_b32 %s, 0xff, %s" % (vTB, vTB))
    A("s_mov_b32 s44, 0")
    A("s_mov_b32 s45, -1")
    if o["b0pos"] == 40: A("s_barrier")
    stamp(3)
    BF = 56
    D0 = 88
    GR = 24
    def gemv(lbase, vm0):
        def rd(m, ct):
            b = BF + 16 * (m & 1)
            for hh in range(2):
                A("ds_read_b64_tr_b16 v[%d:%d], v%d offset:%d" % (b + 4 * ct + 2 * hh, b + 4 * ct + 2 * hh + 1, TRB + ct, lbase + m * 4096 + hh * 512))
        A("s_waitcnt vmcnt(%d)" % (vm0 + 12))
        for ct in range(4): rd(0, ct)
        for m in range(4):
            b = BF + 16 * (m & 1)
            if m < 3: A("s_waitcnt vmcnt(%d)" % (vm0 + 8 - 4 * m))
            if lbase == L_WQ and o["b0pos"] == 41 + m: A("s_barrier")
            for ct in range(4):
                A("s_waitcnt lgkmcnt(%d)" % (6 if m < 3 else 6 - 2 * ct))
                mfma(D0 + 4 * ct, AF + 4 * m, b + 4 * ct, None if m == 0 else D0 + 4 * ct)
                if m < 3: rd(m + 1, ct)
    def pack(maskc, vt, GR, vS1):
        A("s_mov_b32 vcc_lo, 0xffff0000")
        A("s_mov_b32 vcc_hi, 0xffff0000")
        A("s_movk_i32 %s, 0x%x" % (t0, maskc))
        A("s_nop 2")
        A("v_cndmask_b32 v%d, v%d, v%d, vcc" % (GR, D0, D0 + 4))
        A("s_nop 0")
        A("v_cndmask_b32 v%d, v%d, v%d, vcc" % (GR + 1, D0 + 8, D0 + 12))
        A("v_cndmask_b32 v%d, v%d, v%d, s[44:45]" % (GR, GR, GR + 1))
        A("v_and_or_b32 v%d, v%d, %s, %s" % (GR, GR, t0, vt))
        if o["bdefer"]:
            A("s_nop 1")
        else:
            A("v_add_u32 v22, 0x%x, %s" % (MB1B - MB1A, vS1))
            A("s_nop 0")
        for k in range(1, 4):
            A("v_mov_b32_dpp v%d, v%d quad_perm:[%d,%d,%d,%d] %s" % (GR + k, GR, k, k, k, k, DPP))
        A("s_mov_b32 exec_lo, 0x11111111")
        A("s_mov_b32 exec_hi, 0x11111111")
        if o["bonly"]:
            A("global_store_dwordx4 %s, v[%d:%d], %s sc1" % (vS1, GR, GR + 3, sWS))
        else:
            A("global_store_dwordx4 %s, v[%d:%d], %s" % (vS1, GR, GR + 3, sWS))
            if not o["bdefer"]: A("global_store_dwordx4 v22, v[%d:%d], %s sc1" % (GR, GR + 3, sWS))
        A("s_mov_b64 exec, -1")
    gemv(L_WQ, 16 + NW)
    if o["b0pos"] == 45: A("s_barrier")
    pack(0xfff0, vTN, GR, vS1)
    if o["b0pos"] == 47: A("s_barrier")
    stamp(4)
    XG = 28
    if o["vote"]:
        assert o["b0pos"] <= 47 and not o["hlate"]
        A("v_mov_b32 v4, 0")
        A("ds_read_b128 v[112:115], v4 offset:%d" % L_VOTE)
    if o["lastfin"]:
        assert o["vote"]
        A("ds_read_b32 v116, v4 offset:%d" % L_TKT)
    A("s_getreg_b32 %s, hwreg(HW_REG_XCC_ID, 0, 4)" % sXCC)
    A("s_and_b32 %s, %s, 0xff" % (t0, sTAG))
    A("s_lshl_b32 %s, %s, 8" % (t2, sXCC))
    A("s_or_b32 s54, %s, %s" % (t0, t2))
    A("v_mov_b32 v%d, s54" % XG)
    for k in range(1, 4):
        A("s_bfe_u32 %s, %s, 0x%x" % (t0, sTAG, 0x80000 | (8 * k)))
        A("v_mov_b32 v%d, %s" % (XG + k, t0))
    if o["vote"]:
        A("s_waitcnt lgkmcnt(0)")
        A("v_add3_u32 v112, v112, v113, v114")
        A("v_add_u32 v112, v112, v115")
        A("v_lshl_add_u32 v%d, v112, 8, v%d" % (XG + 1, XG + 1))
    if o["lastfin"]:
        A("v_lshl_add_u32 v%d, v116, 8, v%d" % (XG + 2, XG + 2))
    A("s_lshl_b32 %s, %s, 4" % (t2, sJ))
    A("s_add_u32 %s, %s, %s" % (t2, t2, sB1))
    A("s_add_u32 %s, %s, 0x4000" % (t2, t2))
    A("v_mov_b32 v22, %s" % t2)
    A("v_add_u32 v109, 0x%x, v22" % (MB1B - MB1A))
    A("s_mov_b64 exec, 1")
    if o["bonly"]:
        A("global_store_dwordx4 v22, v[%d:%d], %s sc1" % (XG, XG + 3, sWS))
    else:
        A("global_store_dwordx4 v22, v[%d:%d], %s" % (XG, XG + 3, sWS))
        if not o["bdefer"]: A("global_store_dwordx4 v109, v[%d:%d], %s sc1" % (XG, XG + 3, sWS))
    A("s_mov_b64 exec, -1")
    if o["b0pos"] == 50: A("s_barrier")
    A("s_sub_i32 %s, %s, s55" % (t2, sJ))
    A("s_lshl_b32 %s, %s, 8" % (t2, t2))
    A("s_add_u32 %s, %s, 0x2000" % (t2, t2))
    A("v_add_u32 v108, %s, %s" % (t2, vS1))
    A("s_cmp_ge_u32 %s, 4" % sNOFF)
    A("s_cbranch_scc1 L_noff2")
    gemv(L_FF, (2 if o['bonly'] or o['bdefer'] else 4) + NW)
    pack(0xff00, vTB, 104, "v108")
    LB("L_noff2")
    stamp(7)
    if o.get("nosync"):
        A("s_barrier")
        A("s_mov_b32 %s, 0" % sCNT)
        dump_stamps()
        A("s_endpgm")
    A("v_and_b32 v4, 15, v0")
    A("v_lshlrev_b32 v4, 4, v4")
    A("v_lshl_add_u32 v4, v126, 10, v4")
    A("s_add_u32 %s, %s, 2432" % (t0, sB1))
    A("v_add_u32 %s, %s, v4" % (vL1, t0))
    A("v_and_b32 v4, 31, v0")
    A("s_add_u32 %s, %s, 0x4000" % (t0, sB1))
    A("v_lshl_add_u32 %s, v4, 4, %s" % (vL1x, t0))
    A("s_lshl_b32 %s, %s, 1" % (t2, t3))
    A("s_sub_u32 %s, 8, %s" % (sRP, t2))
    A("s_mul_i32 %s, %s, %s" % (t2, sRP, sJ))
    A("s_sub_u32 %s, %s, 1" % (t0, sRP))
    A("v_and_b32 v4, 7, v0")
    A("v_min_u32 v4, %s, v4" % t0)
    A("v_add_u32 %s, %s, v4" % (vF, t2))
    A("v_lshrrev_b32 v4, 6, %s" % vF)
    A("v_bfe_u32 v5, v0, 3, 1")
    A("v_lshl_add_u32 v4, v4, 1, v5")
    A("v_lshl_add_u32 v4, v4, 2, v126")
    A("v_bfe_u32 v5, %s, 2, 4" % vF)
    A("v_lshlrev_b32 v5, 4, v5")
    A("v_lshl_add_u32 v4, v4, 8, v5")
    A("s_add_u32 %s, %s, 0x2000" % (t0, sB1))
    A("v_add_u32 %s, %s, v4" % (vL1a, t0))
    if min(nlv) == 0:
        A("s_cmp_lg_u32 %s, 0" % sRP)
        A("s_cbranch_scc1 L_has_ffn")
        A("v_mov_b32 %s, %s" % (vL1a, vL1x))
        LB("L_has_ffn")
    for k in range(4):
        A("s_bfe_u32 s%d, %s, 0x%x" % (56 + k, sTAG, 0x40000 | (4 * k)))
    A("s_movk_i32 s62, 255")
    A("s_mov_b32 s60, 0x0c0c0400")
    A("s_mov_b32 s61, 0x04000c0c")
    P = 40
    PX, PA_ = 72, 76
    A("s_mov_b32 %s, 0" % sCNT)
    def switch_copy(regs):
        A("s_add_u32 %s, %s, 1" % (sCNT, sCNT))
        if not o["bonly"]:
            if o.get("bskip"):
                A("s_cmp_ge_u32 %s, %d" % (sCNT, o["atries"]))
                A("s_cselect_b32 %s, 0x%x, 0" % (t0, MB1B ^ MB1A))
                for r in regs: A("v_xor_b32 %s, %s, %s" % (r, t0, r))
            else:
                A("s_cmp_eq_u32 %s, %d" % (sCNT, o["atries"]))
                A("s_cselect_b32 %s, 0x%x, 0" % (t0, MB1B - MB1A))
                for r in regs: A("v_add_u32 %s, %s, %s" % (r, t0, r))
        A("s_cmp_gt_u32 %s, %d" % (sCNT, o["spinmax"]))
        A("s_cbranch_scc1 L_end")
    def bytecheck(p, dst):
        A("v_perm_b32 v22, v%d, v%d, s60" % (p + 1, p))
        A("v_perm_b32 v23, v%d, v%d, s61" % (p + 3, p + 2))
        A("v_or_b32 v22, v22, v23")
        A("v_cmp_ne_u32 %s, %s, v22" % (dst, sTAG))
    stamp(9)
    LB("L_poll1")
    stamp(8)
    for i in range(2):
        for q in range(4):
            r = P + 16 * i + 4 * q
            A("global_load_dwordx4 v[%d:%d], %s, %s offset:%d sc1" % (r, r + 3, vL1, sWS, i * 4096 + q * 256 - 2432))
    A("global_load_dwordx4 v[%d:%d], %s, %s sc1" % (PX, PX + 3, vL1x, sWS))
    A("global_load_dwordx4 v[%d:%d], %s, %s sc1" % (PA_, PA_ + 3, vL1a, sWS))
    switch_copy([vL1, vL1x, vL1a])
    for g_ in range(8):
        A("s_waitcnt vmcnt(%d)" % (9 - g_))
        for k in range(4):
            A("v_xor_b32 v%d, s%d, v%d" % (P + 4 * g_ + k, 56 + k, P + 4 * g_ + k))
        if g_ == 0:
            A("v_or3_b32 v21, v%d, v%d, v%d" % (P, P + 1, P + 2))
            A("v_or_b32 v21, v21, v%d" % (P + 3))
        else:
            A("v_or3_b32 v21, v21, v%d, v%d" % (P + 4 * g_, P + 4 * g_ + 1))
            A("v_or3_b32 v21, v21, v%d, v%d" % (P + 4 * g_ + 2, P + 4 * g_ + 3))
    A("v_and_b32 v21, 15, v21")
    A("s_waitcnt vmcnt(1)")
    bytecheck(PX, "vcc")
    A("v_cmp_ne_u32 s[46:47], 0, v21")
    if o.get("dbgfail"):
        A("s_cmp_eq_u32 %s, 1" % sCNT)
        A("s_cselect_b32 s84, vcc_lo, s84")
        A("s_cselect_b32 s62, s46, s62")
        A("s_cselect_b32 s63, s47, s63")
    A("s_or_b64 vcc, vcc, s[46:47]")
    def majority():
        A("v_cmp_gt_i32 vcc, 0, v%d" % (PX + 1))
        A("v_cmp_lt_i32 s[46:47], %s, v%d" % ("s62", PX + 1))
        A("s_bcnt1_i32_b32 %s, vcc_lo" % t0)
        A("s_bcnt1_i32_b32 %s, s46" % t2)
        A("s_cmp_gt_u32 %s, %s" % (t0, t2))
        A("s_cselect_b32 s55, 0x2000, 0")
        if o.get("voteinv"): A("s_xor_b32 s55, s55, 0x2000")
        if o["stamps"]:
            A("s_bcnt1_i32_b32 s63, vcc_lo")
            A("s_lshl_b32 %s, %s, 8" % (t2, t2))
            A("s_or_b32 s63, s63, %s" % t2)
    def publish_b(tag):
        C("write-through copies for peers that sit on another die")
        A("v_add_u32 v22, 0x%x, %s" % (MB1B - MB1A, vS1))
        A("v_add_u32 v23, 0x%x, v108" % (MB1B - MB1A))
        A("s_mov_b64 exec, 1")
        A("global_store_dwordx4 v109, v[%d:%d], %s sc1" % (XG, XG + 3, sWS))
        A("s_mov_b32 exec_lo, 0x11111111")
        A("s_mov_b32 exec_hi, 0x11111111")
        A("global_store_dwordx4 v22, v[%d:%d], %s sc1" % (GR, GR + 3, sWS))
        A("s_cmp_ge_u32 %s, 4" % sNOFF)
        A("s_cbranch_scc1 L_pb_%s" % tag)
        A("global_store_dwordx4 v23, v[104:107], %s sc1" % sWS)
        LB("L_pb_%s" % tag)
        A("s_mov_b64 exec, -1")
    if o["bdefer"]:
        A("s_cbranch_vccz L_got1")
        A("s_cmp_lg_u32 %s, %d" % (sCNT, o["bdefer"]))
        A("s_cbranch_scc1 L_poll1")
        publish_b("a")
        A("s_branch L_poll1")
        LB("L_got1")
    else:
        A("s_cbranch_vccnz L_poll1")
    stamp(5)
    for i in range(2):
        b = P + 16 * i
        for k in range(4):
            A("v_add_f32 v%d, v%d, v%d" % (b + k, b + k, b + 4 + k))
            A("v_add_f32 v%d, v%d, v%d" % (b + 8 + k, b + 8 + k, b + 12 + k))
        for k in range(4):
            A("v_add_f32 v%d, v%d, v%d" % (b + k, b + k, b + 8 + k))
        A("v_cvt_pk_bf16_f32 v%d, v%d, v%d" % (b, b, b + 1))
        A("v_cvt_pk_bf16_f32 v%d, v%d, v%d" % (b + 1, b + 2, b + 3))
    A("v_lshlrev_b32 v22, 3, v0")
    A("ds_write_b64 v22, v[%d:%d] offset:%d" % (P, P + 1, L_Q))
    A("ds_write_b64 v22, v[%d:%d] offset:%d" % (P + 16, P + 17, L_Q + 512))
    A("v_cmp_ne_u32 vcc, s54, v%d" % PX)
    A("s_cmp_eq_u64 vcc, 0")
    A("s_cselect_b32 %s, 1, 0" % sFAST)
    if o.get("forceslow"): A("s_mov_b32 %s, 0" % sFAST)
    if o["lastfin"]:
        A("v_readfirstlane_b32 %s, v%d" % (t0, PX + 2))
        if o["lastfin"] == 1:
            A("s_not_b32 %s, %s" % (t2, sTAG))
            A("v_mov_b32 v23, %s" % t2)
            A("v_lshlrev_b32 v22, 2, v0")
        A("s_lshr_b32 %s, %s, 8" % (t0, t0))
        A("s_cmp_eq_u32 %s, 7" % t0)
        A("s_cselect_b32 %s, 2, 0" % t0)
        if o.get("fixfin") is not None:
            A("s_cmp_eq_u32 %s, %d" % (sH, o["fixfin"]))
            A("s_cselect_b32 %s, 2, 0" % t0)
        A("s_or_b32 %s, %s, %s" % (sFAST, sFAST, t0))
        if o["lastfin"] == 1: A("ds_write_b32 v22, v23 offset:%d" % L_FIN)
        else:
            majority()
            A("s_or_b32 %s, %s, s55" % (sFAST, sFAST))
    A("v_mov_b32 v26, %s" % sFAST)
    A("v_mov_b32 v27, %s" % sTAG)
    A("v_mov_b32 v22, %d" % L_FLAG)
    A("ds_write_b64 v22, v[26:27]")
    if o["auxearly"]:
        A("s_waitcnt vmcnt(0)")
        bytecheck(PA_, "vcc")
        A("s_cbranch_vccz L_aux_b1")
        A("global_load_dwordx4 v[%d:%d], %s, %s sc1" % (PA_, PA_ + 3, vL1a, sWS))
        LB("L_aux_b1")
    A("s_waitcnt lgkmcnt(0)")
    A("s_barrier")
    if o["bdefer"]:
        A("s_cmp_gt_u32 %s, %d" % (sCNT, o["bdefer"]))
        A("s_cbranch_scc1 L_b_done")
        A("s_bitcmp1_b32 %s, 0" % sFAST if o.get("bskip") else "s_nop 0")
        if o.get("bskip"): A("s_cbranch_scc1 L_b_done")
        publish_b("b")
        LB("L_b_done")
    if o["vote"] and o["lastfin"] < 2: majority()
    if o["hlate"]:
        A("s_setprio %d" % o.get("hprio", 0))
        A("s_barrier")
        A("s_barrier")
    A("s_branch L_chk_aux")
    LB("L_poll_aux")
    A("global_load_dwordx4 v[%d:%d], %s, %s sc1" % (PA_, PA_ + 3, vL1a, sWS))
    switch_copy([vL1a])
    LB("L_chk_aux")
    A("s_waitcnt vmcnt(0)")
    bytecheck(PA_, "vcc")
    A("s_cbranch_vccnz L_poll_aux")
    A("s_movk_i32 %s, 0xff00" % t0)
    A("v_and_b32 v23, 1, %s" % vF)
    A("v_cmp_eq_u32 vcc, 0, v23")
    A("v_and_b32 v23, 2, %s" % vF)
    A("v_cmp_eq_u32 s[46:47], 0, v23")
    A("v_cndmask_b32 v24, v%d, v%d, vcc" % (PA_ + 1, PA_))
    A("v_cndmask_b32 v25, v%d, v%d, vcc" % (PA_ + 3, PA_ + 2))
    A("v_cndmask_b32 v24, v25, v24, s[46:47]")
    A("v_and_b32 v24, %s, v24" % t0)
    allred("v24", "v23", "v_add_f32", 16)
    allred("v24", "v23", "v_add_f32", 32)
    A("v_cvt_pk_bf16_f32 v24, v24, v24")
    A("v_and_b32 v24, %s, v24" % t1)
    A("v_mul_f32 v25, 0x%x, v24" % (LOG2E | 0x80000000))
    A("v_exp_f32 v25, v25")
    A("v_mov_b32_dpp v26, v24 row_ror:8 %s" % DPP)
    A("v_add_f32 v25, 1.0, v25")
    A("v_rcp_f32 v25, v25")
    A("v_cmp_le_u32 vcc, %s, v0" % sRP)
    A("v_mul_f32 v25, v24, v25")
    A("v_cvt_pk_bf16_f32 v25, v25, v25")
    A("v_and_b32 v25, %s, v25" % t1)
    A("v_mul_f32 v25, v25, v26")
    A("v_cvt_pk_bf16_f32 v25, v25, v25")
    A("v_cndmask_b32 v25, v25, 0, vcc")
    A("v_lshlrev_b32 v22, 2, v0")
    if o["vote"] and not o["lastfin"]:
        A("v_mov_b32 v26, s55")
        A("v_mov_b32 v27, 0")
        A("ds_write_b32 v27, v26 offset:%d" % (L_FLAG + 8))
    A("s_mov_b64 exec, 0xff")
    A("ds_write_b32 v22, v25 offset:%d" % L_H)
    A("s_waitcnt lgkmcnt(0)")
    stamp(6)
    if o["lastfin"] == 1:
        A("s_bitcmp1_b32 %s, 1" % sFAST)
        A("s_cbranch_scc1 L_ufin")
    if not o.get("nodumpU"): dump_stamps()
    A("s_endpgm")
    def unit_final():
        LB("L_ufin")
        C("last group: lane = (wave l>>4, pair (l>>3)&1, group l&7) gathers the eight groups' sums of this workgroup's 16 columns")
        A("s_mov_b64 exec, -1")
        A("s_setprio %d" % o.get("uprio", 0))
        vA3, vLF, vXO, vXV = "v4", "v5", "v6", "v7"
        FP, FS = 8, 40
        A("v_lshrrev_b32 %s, 3, v0" % vLF)
        A("s_lshl_b32 %s, %s, 5" % (t0, sJ))
        A("v_lshl_add_u32 %s, %s, 2, %s" % (vXO, vLF, t0))
        A("global_load_dword %s, %s, %s" % (vXV, vXO, sX))
        A("v_lshlrev_b32 %s, 4, %s" % (vLF, vLF))
        A("s_lshr_b32 %s, %s, 1" % (t0, sJ))
        A("s_lshl_b32 %s, %s, 14" % (t0, t0))
        A("s_and_b32 %s, %s, 1" % (t2, sJ))
        A("s_lshl_b32 %s, %s, 12" % (t2, t2))
        A("s_add_u32 %s, %s, %s" % (t0, t0, t2))
        A("s_add_u32 %s, %s, s55" % (t0, t0))
        A("s_add_u32 %s, %s, 0x%x" % (t0, t0, MB3))
        A("v_and_b32 v22, 7, v0")
        A("v_lshl_add_u32 %s, v22, 9, %s" % (vA3, t0))
        A("v_lshlrev_b32 v22, 7, v126")
        A("v_and_b32 v23, 16, %s" % vLF)
        A("v_add3_u32 %s, %s, v22, v23" % (vA3, vA3))
        A("s_lshl_b32 s44, 0x01010101, %s" % sH)
        A("s_mov_b32 s45, s44")
        A("s_not_b64 s[46:47], s[44:45]")
        A("s_mov_b32 %s, %d" % (sCNT, o["spinmax"]))
        A("s_barrier")
        A("s_barrier")
        A("s_waitcnt vmcnt(0)")
        A("v_lshlrev_b32 v22, 16, %s" % vXV)
        A("v_and_b32 v23, %s, %s" % (t1, vXV))
        def spf():
            C("pull the other groups' lines into this die's L2 over the scalar path (the vector path returns in order and is busy with the group's own hand-off)")
            for k in range(1, 8):
                for w_ in range(4):
                    A("s_load_dword s%d, %s, s%d offset:%d glc" % (6 + (4 * k + w_) % 16, sWS, 48 + k, 128 * w_))
        if o.get("spf"):
            for k in range(1, 8):
                A("s_xor_b32 s%d, %s, %d" % (48 + k, sH, k))
                A("s_lshl_b32 s%d, s%d, 9" % (48 + k, 48 + k))
                A("s_add_u32 s%d, s%d, %s" % (48 + k, 48 + k, t0))
        if o.get("spf", 0) & 2: spf()
        if o["reuse"]: A("s_barrier")
        if o.get("spf", 0) & 1: spf()
        NP = o["npu"]
        def own_read():
            A("s_mov_b64 exec, s[44:45]")
            A("ds_read_b128 v[%d:%d], %s offset:%d" % (FP, FP + 3, vLF, L_FIN))
        if o.get("uwait"):
            A("s_mov_b64 exec, s[44:45]")
            LB("L_uw")
            A("ds_read_b128 v[%d:%d], %s offset:%d" % (FP, FP + 3, vLF, L_FIN))
            A("s_sub_u32 %s, %s, 1" % (sCNT, sCNT))
            A("s_cbranch_scc1 L_end")
            A("s_waitcnt lgkmcnt(0)")
            A("v_cmp_ne_u32 vcc, %s, v%d" % (sTAG, FP + 3))
            if o["uwait"] == 1:
                A("s_cbranch_vccnz L_uw")
            else:
                A("s_cmp_eq_u64 vcc, s[44:45]")
                A("s_cbranch_scc1 L_uw")
        for k in range(NP):
            if k:
                for _ in range(o["stag"]):
                    own_read(); A("s_waitcnt lgkmcnt(0)")
            A("s_mov_b64 exec, s[46:47]")
            A("global_load_dwordx4 v[%d:%d], %s, %s sc1" % (FS + 4 * k, FS + 4 * k + 3, vA3, sWS))
        LB("L_upoll")
        for k in range(NP):
            own_read()
            A("s_mov_b64 exec, s[46:47]")
            A("s_waitcnt vmcnt(%d) lgkmcnt(0)" % (NP - 1))
            A("v_cmp_ne_u32 vcc, %s, v%d" % (sTAG, FS + 4 * k + 3))
            A("v_mov_b32 v%d, v%d" % (FP, FS + 4 * k))
            A("v_mov_b32 v%d, v%d" % (FP + 1, FS + 4 * k + 1))
            A("s_and_b64 s[46:47], exec, vcc")
            A("s_cbranch_scc0 L_ugot")
            A("s_mov_b64 exec, s[46:47]")
            A("global_load_dwordx4 v[%d:%d], %s, %s sc1" % (FS + 4 * k, FS + 4 * k + 3, vA3, sWS))
        A("s_sub_u32 %s, %s, 1" % (sCNT, sCNT))
        A("s_cbranch_scc0 L_upoll")
        A("s_endpgm")
        LB("L_uown")
        A("ds_read_b128 v[%d:%d], %s offset:%d" % (FP, FP + 3, vLF, L_FIN))
        A("s_sub_u32 %s, %s, 1" % (sCNT, sCNT))
        A("s_cbranch_scc1 L_end")
        A("s_waitcnt lgkmcnt(0)")
        LB("L_ugot")
        A("s_mov_b64 exec, s[44:45]")
        A("v_cmp_ne_u32 vcc, %s, v%d" % (sTAG, FP + 3))
        A("s_cbranch_vccnz L_uown")
        stamp(10)
        A("s_mov_b64 exec, -1")
        x_, y_ = "v%d" % FP, "v%d" % (FP + 1)
        for pat in ("quad_perm:[1,0,3,2]", "quad_perm:[2,3,0,1]", "row_half_mirror"):
            A("v_add_f32_dpp %s, %s, %s %s %s" % (x_, x_, x_, pat, DPP))
            A("v_add_f32_dpp %s, %s, %s %s %s" % (y_, y_, y_, pat, DPP))
            if pat != "row_half_mirror": A("s_nop 0")
        A("s_mov_b32 s44, 0x01010101")
        A("v_add_f32 %s, %s, v22" % (x_, x_))
        A("v_add_f32 %s, %s, v23" % (y_, y_))
        A("s_mov_b32 s45, s44")
        A("v_cvt_pk_bf16_f32 %s, %s, %s" % (x_, x_, y_))
        A("s_mov_b64 exec, s[44:45]")
        A("global_store_dword %s, %s, %s" % (vXO, x_, sOUT))
        A("s_cmp_lg_u32 %s, 0" % sJ)
        A("s_cbranch_scc1 L_udone")
        C("the next launch must not mistake this launch's hand-off words for its own")
        A("s_mov_b64 exec, 1")
        A("v_mov_b32 v22, 0")
        A("v_mov_b32 v23, %s" % sTAG)
        A("global_store_dword v22, v23, %s" % sWS)
        LB("L_udone")
        role[0] = "U"
        amp_end("u")
        dump_stamps()
        A("s_endpgm")

    role[0] = "A"
    if o.get("alignA"): L.append(".p2align %d" % o["alignA"])
    for _ in range(o.get("shiftA", 0)): A("s_nop 0")
    LB("L_attn")
    vK0, vK1, vV0, vV1 = "v2", "v3", "v4", "v5"
    vWO0, vWO1, vDN0, vDN1, vXF, vXP = "v6", "v7", "v8", "v9", "v10", "v1"
    vS2, vL2, vS25, vL25, vL3, vS3 = "v11", "v12", "v13", "v14", "v15", "v150"
    KR, VR, WOR, DNR, QR, SR, PA, MK = 16, 48, 80, 96, 104, 120, 128, 146
    vM0, vM1, vQA, vOW, vOR, vMLW, vHA = "v151", "v152", "v153", "v154", "v155", "v156", "v157"
    vN, vG, vN16, vP = "v120", "v121", "v122", "v123"
    u0, u1 = "v124", "v125"
    s4JW = "s41"
    C("K and V: load i = 1 KB block (4 keys) number 128 i + 4j + w of the head's window; K goes through LDS")
    A("s_lshl_b32 %s, %s, 24" % (t0, sH))
    A("s_lshl_b32 %s, %s, 2" % (s4JW, sJ))
    A("s_add_u32 %s, %s, %s" % (s4JW, s4JW, sW))
    if o["lastfin"]:
        C("arrival order of the eight groups (one counter in the zeroed debug words)")
        A("s_cmp_lg_u32 %s, 0" % s4JW)
        A("s_cbranch_scc1 L_notkt0")
        A("v_mov_b32 v158, 0")
        A("v_mov_b32 v159, 1")
        A("s_mov_b64 exec, 1")
        A("global_atomic_add v159, v158, v159, s[24:25] sc0 sc1")
        A("s_mov_b64 exec, -1")
        LB("L_notkt0")
    A("s_lshl_b32 %s, %s, 10" % (t2, s4JW))
    A("s_add_u32 %s, %s, %s" % (t0, t0, t2))
    A("s_add_u32 %s, %s, 0xF00000" % (t0, t0))
    A("v_and_b32 %s, 15, v0" % vN)
    A("v_lshrrev_b32 %s, 4, v0" % vG)
    A("v_lshlrev_b32 %s, 4, %s" % (vN16, vN))
    A("v_lshl_add_u32 %s, v0, 4, %s" % (vV0, t0))
    A("v_lshlrev_b32 %s, 6, %s" % (u0, vG))
    A("v_xor_b32 %s, %s, %s" % (vK0, u0, vV0))
    A("s_lshl_b32 %s, %s, 13" % (t1, sW))
    A("s_add_u32 m0, %s, %d" % (t1, L_K))
    A("s_mov_b32 s42, 0x20000")
    A("s_movk_i32 s43, 1024")
    if not o["vote"]: A("s_waitcnt lgkmcnt(0)")
    if o.get("tlbw") == 1:
        A("s_cmp_lg_u32 %s, 0" % sW)
        A("s_cbranch_scc1 L_notlb")
        tlbwarm()
        A("s_waitcnt vmcnt(0)")
        LB("L_notlb")
    if o["vote"]: A("s_waitcnt lgkmcnt(1)")
    if o["lastfin"]:
        A("s_cmp_lg_u32 %s, 0" % s4JW)
        A("s_cbranch_scc1 L_notkt")
        A("s_mov_b64 exec, 1")
        A("s_waitcnt vmcnt(0)")
        A("ds_write_b32 v158, v159 offset:%d" % L_TKT)
        A("s_mov_b64 exec, -1")
        A("s_waitcnt lgkmcnt(0)")
        LB("L_notkt")
    if o["b0pos"]: A("s_barrier")
    stamp(1)
    issued = [0]
    def load(w, txt):
        if issued[0] >= w:
            A("s_waitcnt vmcnt(%d)" % (w - 1))
        A(txt); issued[0] += 1
    def rot(i): return (i * o["rotm"]) & 127
    def kload(i):
        load(o["WK"], "global_load_lds_dwordx4 %s, %s %s" % (vK0, sK, nt))
        if i < 7:
            A("s_add_u32 m0, m0, s43")
            A("v_xor_b32 %s, %d, %s" % (vK0, (((i & 3) ^ ((i + 1) & 3)) << 4) | ((rot(i) ^ rot(i + 1)) << 10), vK0))
            A("v_add_u32 %s, s42, %s" % (vK0, vK0))
    nk_first = min(o["WK"], 8)
    if o.get("bal"):
        A("v_and_b32 v158, 7, v0")
        A("v_lshlrev_b32 v158, 2, v158")
        A("global_load_dword v159, v158, s[24:25] sc1")
    for i in range(nk_first): kload(i)
    C("address and mask setup in the shadow of the K loads")
    A("s_lshl_b32 %s, %s, 19" % (t0, sH))
    A("s_lshl_b32 %s, %s, 14" % (t2, sJ))
    A("s_add_u32 %s, %s, %s" % (t0, t0, t2))
    A("s_lshl_b32 %s, %s, 8" % (t3, sW))
    A("s_add_u32 %s, %s, %s" % (t0, t0, t3))
    A("s_add_u32 %s, %s, 0x1000" % (t0, t0))
    A("v_lshl_add_u32 %s, %s, 10, %s" % (vDN0, vG, vN16))
    A("v_add_u32 %s, %s, %s" % (vWO0, t0, vDN0))
    A("v_add_u32 %s, 0x2000, %s" % (vWO1, vWO0))
    ffn_share(t0, t2)
    A("s_lshl_b32 %s, s3, 6" % t0)
    A("s_lshl_b32 %s, %s, 1" % (t2, t2))
    A("s_sub_u32 %s, 8, %s" % (t1, t2))
    A("s_mul_i32 %s, %s, %s" % (t2, t1, sJ))
    A("s_add_u32 %s, %s, %s" % (t0, t0, t2))
    A("s_lshl_b32 %s, %s, 10" % (t0, t0))
    A("s_add_u32 %s, %s, %s" % (t0, t0, t3))
    A("s_sub_u32 %s, %s, 1" % (t1, t1))
    A("v_add_u32 %s, %s, %s" % (u1, t0, vN16))
    A("v_min_u32 %s, %s, %s" % (vDN0, t1, vG))
    A("v_lshl_add_u32 %s, %s, 10, %s" % (vDN0, vDN0, u1))
    A("v_add_u32 %s, 4, %s" % (vDN1, vG))
    A("v_min_u32 %s, %s, %s" % (vDN1, t1, vDN1))
    A("v_lshl_add_u32 %s, %s, 10, %s" % (vDN1, vDN1, u1))
    A("v_and_b32 %s, 1, v0" % vP)
    A("v_and_b32 %s, 1, %s" % (u0, vG))
    A("s_lshl_b32 %s, %s, 3" % (t2, s4JW))
    A("v_lshl_add_u32 %s, %s, 2, %s" % (vXF, u0, t2))
    RP = o["rp"]
    M25 = 0 if o["reuse"] else MB25 - MB2
    lay = 3 if o["reuse"] else o.get("lay25", 0)
    A("s_mul_i32 %s, %s, %d" % (t0, sH, 32 * RP))
    A("s_add_u32 %s, %s, 0x%x" % (t0, t0, MB2))
    A("s_mul_i32 %s, %s, %d" % (t1, sJ, RP))
    A("s_add_u32 %s, %s, %s" % (t1, t1, t0))
    A("s_mul_i32 %s, %s, %d" % (t2, sW, 8 * RP))
    A("s_lshl_b32 %s, %s, 6" % (t3, sJ))
    A("s_add_u32 %s, %s, %s" % (t0, t0, t3))
    A("s_add_u32 %s, %s, %s" % (t2, t2, t0))
    A("v_lshrrev_b32 %s, 3, v0" % vS2)
    A("v_mul_u32_u24 %s, %d, %s" % (vS2, RP, vS2))
    A("v_bfe_u32 %s, v0, 1, 2" % u1)
    A("v_lshlrev_b32 %s, 4, %s" % (u1, u1))
    A("v_add3_u32 %s, %s, %s, %s" % (vS2, vS2, u1, t2))
    A("v_lshl_add_u32 %s, v0, 4, %s" % (vL2, t1))
    A("s_lshl_b32 %s, %s, 4" % (t3, sW))
    A("v_and_b32 %s, 31, v0" % u1)
    if lay == 0:
        A("s_add_u32 %s, %s, %s" % (t1, t1, t3))
        A("s_add_u32 %s, %s, 0x%x" % (t1, t1, M25))
        A("v_lshl_add_u32 %s, %s, 6, %s" % (vL25, u1, t1))
        A("v_lshrrev_b32 %s, 1, %s" % (vS25, vN))
        A("v_mul_u32_u24 %s, %d, %s" % (vS25, RP, vS25))
        A("v_lshl_add_u32 %s, %s, 5, %s" % (vS25, vP, vS25))
        A("v_lshl_add_u32 %s, %s, 4, %s" % (vS25, u0, vS25))
        A("s_add_u32 %s, %s, 0x%x" % (t2, t2, M25))
        A("v_add_u32 %s, %s, %s" % (vS25, t2, vS25))
    else:
        A("s_add_u32 %s, %s, %s" % (t0, t0, t3))
        if M25: A("s_add_u32 %s, %s, 0x%x" % (t0, t0, M25))
        A("v_mul_u32_u24 %s, %d, %s" % (vL25, RP, u1))
        A("v_add_u32 %s, %s, %s" % (vL25, t0, vL25))
        A("s_lshl_b32 %s, %s, 9" % (t3, sW))
        A("s_add_u32 %s, %s, %s" % (t1, t1, t3))
        if M25: A("s_add_u32 %s, %s, 0x%x" % (t1, t1, M25))
        A("v_lshl_add_u32 %s, %s, 5, %s" % (vS25, vN, t1))
        A("v_lshl_add_u32 %s, %s, 4, %s" % (vS25, u0, vS25))
    A("s_lshr_b32 %s, %s, 1" % (t0, sJ))
    A("s_lshl_b32 %s, %s, 14" % (t0, t0))
    A("s_and_b32 %s, %s, 1" % (t3, sJ))
    A("s_lshl_b32 %s, %s, 12" % (t3, t3))
    A("s_add_u32 %s, %s, %s" % (t0, t0, t3))
    A("s_lshl_b32 %s, %s, 7" % (t3, sW))
    A("s_add_u32 %s, %s, %s" % (t0, t0, t3))
    A("s_add_u32 %s, %s, 0x%x" % (t0, t0, MB3))
    if o["lastfin"] == 1:
        A("s_lshl_b32 %s, %s, 5" % (t3, sW))
        A("v_lshl_add_u32 %s, %s, 4, %s" % (vL3, u0, t3))
    if o["lastfin"] >= 2:
        A("s_lshl_b32 s3, %s, 9" % sH)
        A("s_add_u32 s3, s3, %s" % t0)
    A("v_lshl_add_u32 %s, %s, 4, %s" % (u0, u0, t0))
    if o["lastfin"] != 1:
        A("v_and_b32 %s, 7, v0" % u1)
        A("v_lshl_add_u32 %s, %s, 9, %s" % (vL3, u1, u0))
    A("s_lshl_b32 %s, %s, 9" % (t3, sH))
    A("v_lshl_add_u32 %s, %s, 13, %s" % (u0, vP, u0))
    A("v_add_u32 %s, %s, %s" % (vS3, t3, u0))
    A("v_lshlrev_b32 %s, 4, %s" % (u1, vP))
    def pretouch2():
        C("pull this workgroup's incoming hand-off lines into L2 (waves 0,1: hop 2; waves 2,3: hop 2.5)")
        if o["reuse"]:
            A("s_lshl_b32 %s, %s, 9" % (t0, sW))
            A("v_lshlrev_b32 v158, 3, v0")
            A("v_sub_u32 v158, %s, v158" % vL2)
            A("v_add_u32 v158, %s, v158" % t0)
        else:
            A("s_and_b32 %s, %s, 1" % (t0, sW))
            A("s_lshl_b32 %s, %s, 10" % (t0, t0))
            A("s_lshr_b32 %s, %s, 1" % (t3, sW))
            A("s_mul_i32 %s, %s, 0x%x" % (t3, t3, MB25 - MB2))
            A("s_add_u32 %s, %s, %s" % (t0, t0, t3))
            A("v_add_u32 v158, %s, %s" % (t0, vL2))
        if o["pretouch"] in ("r", "k"):
            A("global_load_dword v159, v158, %s sc1" % sWS); issued[0] += 1
    if o["pretouch"] == "r" or isinstance(o["pretouch"], int): pretouch2()
    A("v_mov_b32 %s, 0xffff" % u0)
    A("v_lshlrev_b32 %s, %s, %s" % (u0, u1, u0))
    A("v_and_b32 %s, 2, v0" % u1)
    A("v_cmp_eq_u32 vcc, 0, %s" % u1)
    A("v_lshrrev_b32 %s, 1, %s" % (u1, vN))
    A("v_lshlrev_b32 %s, 2, %s" % (vHA, vG))
    SEL = 160
    A("v_mov_b32 v%d, 0x0c0c0c0c" % (SEL + 2))
    A("v_mov_b32 v%d, 0x01000100" % (SEL + 3))
    A("v_bfi_b32 v%d, %s, v%d, v%d" % (SEL + 3, u0, SEL + 3, SEL + 2))
    A("v_cndmask_b32 v%d, v%d, v%d, vcc" % (SEL, SEL + 2, SEL + 3))
    A("v_cndmask_b32 v%d, v%d, v%d, vcc" % (SEL + 1, SEL + 3, SEL + 2))
    A("v_and_b32 v%d, 0x02020202, %s" % (SEL + 3, u0))
    A("v_cndmask_b32 v%d, 0, v%d, vcc" % (SEL + 2, SEL + 3))
    A("v_cndmask_b32 v%d, v%d, 0, vcc" % (SEL + 3, SEL + 3))
    A("v_add_u32 v%d, v%d, v%d" % (SEL + 2, SEL + 2, SEL))
    A("v_add_u32 v%d, v%d, v%d" % (SEL + 3, SEL + 3, SEL + 1))
    for r in range(4):
        A("v_cmp_eq_u32 s[%d:%d], %d, %s" % (44 + 2 * r, 45 + 2 * r, r, u1))
    A("v_lshrrev_b32 %s, 2, %s" % (vMLW, vN))
    A("v_lshlrev_b32 %s, 4, %s" % (u1, vG))
    A("v_lshl_add_u32 %s, %s, 8, %s" % (vQA, vMLW, u1))
    for r in range(4):
        A("v_cndmask_b32 v%d, 0, %s, s[%d:%d]" % (MK + r, u0, 44 + 2 * r, 45 + 2 * r))
    A("s_lshl_b32 %s, %s, 11" % (t0, sW))
    A("v_lshl_add_u32 %s, %s, 9, %s" % (vOW, vG, vN16))
    A("v_add_u32 %s, %s, %s" % (vOW, t0, vOW))
    A("s_lshl_b32 %s, %s, 3" % (t0, sW))
    A("v_lshl_add_u32 %s, %s, 5, %s" % (vMLW, vMLW, t0))
    A("v_bfe_u32 %s, v0, 1, 1" % u0)
    A("v_lshrrev_b32 %s, 2, v0" % u1)
    A("v_lshlrev_b32 %s, 4, %s" % (u1, u1))
    A("v_lshl_add_u32 %s, %s, 8, %s" % (u1, u0, u1))
    A("v_lshl_add_u32 %s, %s, 3, %s" % (u1, vP, u1))
    A("s_lshl_b32 %s, %s, 9" % (t0, sW))
    A("v_add_u32 %s, %s, %s" % (vOR, t0, u1))
    KA = 140
    A("v_and_b32 %s, 3, v0" % u0)
    A("v_lshrrev_b32 %s, 2, %s" % (u1, vN))
    A("v_lshlrev_b32 %s, 8, %s" % (u1, u1))
    A("v_lshl_add_u32 %s, %s, 10, %s" % (u0, u0, u1))
    A("v_xor_b32 %s, %s, %s" % (u1, vG, vN))
    A("v_lshl_add_u32 %s, %s, 4, %s" % (u0, u1, u0))
    A("s_lshl_b32 %s, %s, 13" % (t1, sW))
    A("v_add_u32 v%d, %s, %s" % (KA, t1, u0))
    for s_ in range(1, 4):
        A("v_xor_b32 v%d, %d, v%d" % (KA + s_, s_ << 6, KA))
    for _ in range(o.get("delayA", 0)): A("s_nop 3")
    def issue_rest(WK_, W_):
        o_wk = o["WK"]; o["WK"] = WK_
        for i in range(nk_first, 8): kload(i)
        o["WK"] = o_wk
        if o["pretouch"] == "k": pretouch2()
        if o.get("xearly"):
            A("global_load_dword %s, %s, %s" % (vXP, vXF, sX)); issued[0] += 1
        for i in range(8):
            r = VR + i * 4
            load(W_, "global_load_dwordx4 v[%d:%d], %s, %s %s" % (r, r + 3, vV0, sV, nt))
            if i < 7:
                if rot(i) ^ rot(i + 1): A("v_xor_b32 %s, %d, %s" % (vV0, (rot(i) ^ rot(i + 1)) << 10, vV0))
                A("v_add_u32 %s, s42, %s" % (vV0, vV0))
    if o.get("bal"):
        C("a group that started well after others asks memory with a wider window")
        A("s_waitcnt vmcnt(%d)" % issued[0])
        A("v_sub_u32 v158, s90, v159")
        A("v_cmp_ne_u32 vcc, 0, v159")
        A("v_cmp_lt_i32 s[44:45], %d, v158" % o.get("theta", 40))
        A("s_and_b32 s62, vcc_lo, s44")
        A("s_and_b32 s62, s62, 0xff")
        A("s_bcnt1_i32_b32 s62, s62")
        A("s_cmp_ge_u32 s62, %d" % o.get("lateth", 2))
        A("s_cbranch_scc1 L_wide")
        keep = issued[0]
        issue_rest(o["WK"], o["W"])
        A("s_branch L_issued")
        LB("L_wide")
        issued[0] = keep
        issue_rest(o["WK"] + o["bal"], o["W"] + o["bal"])
        LB("L_issued")
    elif o.get("c3"):
        A("s_lshr_b32 %s, %s, 2" % (t0, sJ))
        A("s_cmp_eq_u32 %s, 3" % t0)
        A("s_cbranch_scc1 L_wide")
        keep = issued[0]
        issue_rest(o["WK"], o["W"])
        A("s_branch L_issued")
        LB("L_wide")
        issued[0] = keep
        issue_rest(o["WK"] + o["c3"], o["W"] + o.get("c3v", o["c3"]))
        LB("L_issued")
    else:
        issue_rest(o["WK"], o["W"])
    tail = []
    if o["lastfin"] != 1: tail.append("global_load_dword %s, %s, %s" % (vXP, vXF, sX))
    for a in range(2):
        r = DNR + a * 4
        tail.append("global_load_dwordx4 v[%d:%d], %s, %s %s" % (r, r + 3, (vDN0, vDN1)[a], sDN, nt))
    for m in range(4):
        r = WOR + m * 4
        tail.append("global_load_dwordx4 v[%d:%d], %s, %s offset:%d %s" % (r, r + 3, (vWO0, vWO1)[m >> 1], sWO, (0, -4096)[(m & 1) == 0], nt))
    dnl = []
    if o.get("dnlate"):
        dnl = tail[1:1 + 2]
        if o["dnlate"] == 2: dnl = dnl[1:]
        for t_ in dnl: tail.remove(t_)
        tail.append(tail.pop(0))
    if isinstance(o["pretouch"], int):
        tail.insert(o["pretouch"], "global_load_dword v159, v158, %s sc1" % sWS)
    if o.get("xearly"):
        xl = [t_ for t_ in tail if vXP + "," in t_][0]; tail.remove(xl)
    nav = [0]
    def tail_issue(n):
        for _ in range(n):
            if tail:
                A(tail.pop(0)); nav[0] += 1
    A("s_waitcnt vmcnt(8)")
    for t in range(2):
        for s in range(4):
            r = KR + (t * 4 + s) * 4
            A("ds_read_b128 v[%d:%d], v%d offset:%d" % (r, r + 3, KA + s, L_K + t * 4096))
    tail_issue(o["ntail0"])
    stamp(2)
    A("s_waitcnt lgkmcnt(0)")
    A("s_barrier")
    stamp(3)
    for s in range(4):
        A("ds_read_b128 v[%d:%d], %s offset:%d" % (QR + 4 * s, QR + 4 * s + 3, vQA, L_Q + s * 64))
    if "a" in o["tsp"]: tail_issue(1)
    A("s_mov_b32 s46, 0x%x" % SCALE)
    A("s_mov_b32 %s, 0xffff0000" % t1)
    A("s_mov_b32 s48, 0x%x" % LOG2E)
    for s in range(4):
        A("s_waitcnt lgkmcnt(%d)" % (3 - s))
        for t in range(2):
            mfma(SR + 4 * t, KR + (t * 4 + s) * 4, QR + 4 * s, None if s == 0 else SR + 4 * t)
    T = KR
    vH0, vH1, vFL, vTG = "v%d" % (T + 28), "v%d" % (T + 29), "v%d" % (T + 26), "v%d" % (T + 27)
    A("v_mov_b32 %s, %d" % (vFL, L_FLAG))
    A("s_lshl_b32 %s, %s, 5" % (t3, sW))
    A("v_mov_b32 v%d, %s" % (T + 31, t3))
    A("ds_read_b64 v[%d:%d], %s" % (T + 26, T + 27, vFL))
    if "b" in o["tsp"]:
        tail_issue(1); A("s_nop 1")
    else: A("s_nop 2")
    C("scores: bf16(qk) -> * scale -> bf16   (the reference's two roundings)")
    for i in range(8):
        A("v_cvt_pk_bf16_f32 v%d, 0, v%d" % (SR + i, SR + i))
    for i in range(4):
        A("v_pk_mul_f32 %s, %s, s[46:47] op_sel_hi:[1,0]" % (P2(SR + 2 * i), P2(SR + 2 * i)))
    for i in range(8):
        A("v_cvt_pk_bf16_f32 v%d, 0, v%d" % (SR + i, SR + i))
    vm, vt, vl = "v%d" % (T + 4), "v%d" % (T + 6), "v%d" % (T + 5)
    A("v_max3_f32 %s, v%d, v%d, v%d" % (vm, SR, SR + 1, SR + 2))
    A("v_max3_f32 %s, v%d, v%d, v%d" % (vt, SR + 3, SR + 4, SR + 5))
    A("v_max3_f32 %s, %s, v%d, v%d" % (vm, vm, SR + 6, SR + 7))
    A("v_max_f32 %s, %s, %s" % (vm, vm, vt))
    allred(vm, vt, "v_max_f32", 16)
    if "c" in o["tsp"]: tail_issue(1)
    allred(vm, vt, "v_max_f32", 32)
    A("v_mul_f32 %s, s48, %s" % (vm, vm))
    for i in range(4):
        A("v_pk_fma_f32 %s, %s, s[48:49], %s op_sel_hi:[1,0,0] neg_lo:[0,0,1] neg_hi:[0,0,1]" % (P2(SR + 2 * i), P2(SR + 2 * i), P2(T + 4)))
    for i in range(8):
        A("v_exp_f32 v%d, v%d" % (SR + i, SR + i))
    if "d" in o["tsp"]: tail_issue(1)
    for i in range(4):
        A("v_cvt_pk_bf16_f32 v%d, v%d, v%d" % (T + 8 + i, SR + 2 * i, SR + 2 * i + 1))
    for i in range(8):
        for r in range(2):
            A("v_perm_b32 v%d, v%d, v%d, v%d" % (PA + 2 * i + r, T + 8 + (i >> 1), T + 8 + (i >> 1), SEL + 2 * (i & 1) + r))
    stamp(4)
    O0, O1, Y = QR, QR + 4, QR + 8
    def pv(i):
        A("s_waitcnt vmcnt(%d)" % (7 - i + nav[0]))
        if i >= o["tlag"]: tail_issue((2 if i < o.get("tdbl", 0) else 1) if i < o.get("tlast", 7) else 9)
        vr = VR + 4 * i
        mfma16(O0, PA + 2 * i, vr, None if i == 0 else O0)
        mfma16(O1, PA + 2 * i, vr + 2, None if i == 0 else O1)
    A("v_pk_add_f32 %s, %s, %s" % (P2(SR), P2(SR), P2(SR + 2)))
    A("v_pk_add_f32 %s, %s, %s" % (P2(SR + 4), P2(SR + 4), P2(SR + 6)))
    A("v_pk_add_f32 %s, %s, %s" % (P2(SR), P2(SR), P2(SR + 4)))
    A("v_add_f32 %s, v%d, v%d" % (vl, SR, SR + 1))
    allred(vl, vt, "v_add_f32", 16)
    allred(vl, vt, "v_add_f32", 32)
    A("ds_write_b64 %s, v[%d:%d] offset:%d" % (vMLW, T + 4, T + 5, L_ML))
    A("s_waitcnt lgkmcnt(0)")
    A("v_readfirstlane_b32 %s, %s" % (sFAST, vFL))
    A("v_readfirstlane_b32 %s, %s" % (sTAG, vTG))
    SO = 4
    def soffs():
        A("s_and_b32 %s, %s, 0x2000" % (t0, sFAST))
        A("v_add_u32 %s, %s, %s" % (vL3, t0, vL3))
        A("s_or_b32 s3, s3, %s" % t0)
        for k in range(1, 8): A("s_xor_b32 s%d, s3, 0x%x" % (SO + k - 1, k << 9))
    nshot = [0]
    SD = [12, 20, 44, 64, 72, 80, 88] if not o["stamps"] else None
    def sshot(bit):
        if o["lastfin"] < 2 or not (o.get("sshot", 2) & bit): return
        nshot[0] += 1
        A("s_bitcmp0_b32 %s, 1" % sFAST)
        A("s_cbranch_scc1 L_noshot%d" % nshot[0])
        for k in range(1, 8):
            if o["lastfin"] == 2: A("s_load_dword s%d, %s, s%d offset:12 %s" % (12 + k, sWS, SO + k - 1, o.get("sfl", "glc")))
            else: A("s_load_dwordx8 s[%d:%d], %s, s%d glc" % (SD[k - 1], SD[k - 1] + 7, sWS, SO + k - 1))
        LB("L_noshot%d" % nshot[0])
    HA = T + 16
    ML = T
    OB = T + 8
    G2 = SR
    vM, vLs = "v124", "v125"
    for i in range(o["b2"]): pv(i)
    if o.get("dbgb2"): A("s_memrealtime s[70:71]")
    A("s_barrier")
    if o.get("dbgb2"): A("s_memrealtime s[72:73]")
    A("ds_read_b128 v[%d:%d], v%d offset:%d" % (ML, ML + 3, T + 31, L_ML))
    A("ds_read_b128 v[%d:%d], v%d offset:%d" % (ML + 4, ML + 7, T + 31, L_ML + 16))
    if not o["hlate"]:
        A("ds_read_b32 %s, %s offset:%d" % (vH0, vHA, L_H))
        A("ds_read_b32 %s, %s offset:%d" % (vH1, vHA, L_H + 16))
    avote = o["vote"] and not o["lastfin"]
    if avote:
        A("v_mov_b32 v%d, 0" % (T + 30))
        A("ds_read_b32 v%d, v%d offset:%d" % (T + 30, T + 30, L_FLAG + 8))
    A("s_mov_b32 s54, 0x55555555")
    A("s_mov_b32 s55, 0x55555555")
    A("v_mov_b32 v%d, %s" % (G2 + 3, sTAG))
    A("s_waitcnt lgkmcnt(%d)" % ((0 if o["hlate"] else 2) + (1 if avote else 0)))
    A("v_max3_f32 %s, v%d, v%d, v%d" % (vM, ML, ML + 2, ML + 4))
    A("v_max_f32 %s, %s, v%d" % (vM, vM, ML + 6))
    for w_ in range(4):
        A("v_sub_f32 v%d, v%d, %s" % (ML + 2 * w_, ML + 2 * w_, vM))
    for w_ in range(4):
        A("v_exp_f32 v%d, v%d" % (ML + 2 * w_, ML + 2 * w_))
    A("s_waitcnt lgkmcnt(0)")
    A("v_mul_f32 %s, v%d, v%d" % (vLs, ML, ML + 1))
    for w_ in range(1, 4):
        A("v_fmac_f32 %s, v%d, v%d" % (vLs, ML + 2 * w_, ML + 2 * w_ + 1))
    def h_operands():
        for a in range(2):
            for r in range(4):
                A("v_and_b32 v%d, %s, v%d" % (HA + 4 * a + r, (vH0, vH1)[a], MK + r))
    A("v_log_f32 v%d, %s" % (G2 + 2, vLs))
    A("v_rcp_f32 %s, %s" % (vLs, vLs))
    if not o["hlate"]: h_operands()
    else: A("s_nop 0")
    if avote: A("v_add_u32 %s, v%d, %s" % (vL3, T + 30, vL3))
    A("v_add_f32 v%d, v%d, %s" % (G2 + 2, G2 + 2, vM))
    for w_ in range(4):
        A("v_mul_f32 v%d, v%d, %s" % (ML + 2 * w_, ML + 2 * w_, vLs))
    for i in range(o["b2"], 8): pv(i)
    stamp(5)
    if o.get("nosync"):
        A("s_waitcnt vmcnt(0)")
        stamp(6)
        A("s_branch L_done")
    A("s_nop 6")
    A("ds_write_b128 %s, v[%d:%d] offset:%d" % (vOW, O0, O0 + 3, L_O))
    A("ds_write_b128 %s, v[%d:%d] offset:%d" % (vOW, O1, O1 + 3, L_O + 256))
    A("s_waitcnt lgkmcnt(0)")
    A("s_barrier")
    for w_ in range(4):
        A("ds_read_b64 v[%d:%d], %s offset:%d" % (OB + 2 * w_, OB + 2 * w_ + 1, vOR, L_O + w_ * 2048))
    A("s_bitcmp0_b32 %s, 0" % sFAST)
    for w_ in range(4):
        A("s_waitcnt lgkmcnt(%d)" % (3 - w_))
        op = "v_mul_f32" if w_ == 0 else "v_fmac_f32"
        A("%s v%d, v%d, v%d" % (op, G2, ML + 2 * w_, OB + 2 * w_))
        A("%s v%d, v%d, v%d" % (op, G2 + 1, ML + 2 * w_, OB + 2 * w_ + 1))
    tails = []
    def publish(addr, g, name):
        A("s_cbranch_scc1 L_slow_%s" % name)
        A("global_store_dwordx4 %s, v[%d:%d], %s %s" % (addr, g, g + 3, sWS, o.get("stfl", "")))
        LB("L_back_%s" % name)
        tails.append((name, addr, g))
    A("v_cvt_pk_bf16_f32 v%d, v%d, v%d" % (G2, G2, G2 + 1))
    A("s_nop 1")
    A("v_mov_b32_dpp v%d, v%d quad_perm:[1,1,3,3] %s" % (G2 + 1, G2, DPP))
    A("s_mov_b64 exec, s[54:55]")
    publish(vS2, G2, "h2")
    A("s_mov_b64 exec, -1")
    stamp(6)
    P = T
    for i in range(2):
        A("global_load_dwordx4 v[%d:%d], %s, %s offset:%d sc1" % (P + 4 * i, P + 4 * i + 3, vL2, sWS, i * 1024))
    for t_ in dnl: A(t_)
    if o["hlate"]:
        A("s_barrier")
        A("ds_read_b32 %s, %s offset:%d" % (vH0, vHA, L_H))
        A("ds_read_b32 %s, %s offset:%d" % (vH1, vHA, L_H + 16))
    A("s_mov_b32 %s, %d" % (sCNT, o["spinmax"]))
    vTAG = "v127"
    sT2 = sTAG
    if o["reuse"]:
        sT2 = "s62"
        A("s_not_b32 %s, %s" % (t0, sTAG))
        A("s_lshl_b32 %s, %s, 24" % (t0, t0))
        A("s_and_b32 s62, %s, 0xffffff" % sTAG)
        A("s_or_b32 s62, s62, %s" % t0)
    A("v_mov_b32 %s, %s" % (vTAG, sT2))
    for k in range(4):
        A("s_mov_b32 s%d, 0x%x" % (56 + k, 0x07060500 | k))
        A("s_bfe_u32 s%d, %s, 0x%x" % (60 + k if k < 2 else 50 + k, sT2, 0x80000 | (8 * k)))
    TB = ["s60", "s61", "s52", "s53"]
    if o["hlate"]:
        A("s_waitcnt lgkmcnt(0)")
        h_operands()
    ndn_early = 2 - len(dnl)
    if o["lastfin"] >= 2: soffs()
    A("s_waitcnt vmcnt(%d)" % (3 + len(dnl)))
    for a in range(ndn_early):
        mfma(Y, HA + 4 * a, DNR + 4 * a, None if a == 0 else Y)
    if dnl:
        A("s_waitcnt vmcnt(%d)" % len(dnl))
        A("s_branch L_chk2b")
    else:
        A("s_branch L_chk2")
    LB("L_poll2")
    MS = ["s[44:45]", "s[46:47]"]
    for i in range(2):
        if o["mask2"]: A("s_mov_b64 exec, %s" % MS[i])
        A("global_load_dwordx4 v[%d:%d], %s, %s offset:%d sc1" % (P + 4 * i, P + 4 * i + 3, vL2, sWS, i * 1024))
    if o["mask2"]: A("s_mov_b64 exec, -1")
    A("s_sub_u32 %s, %s, 1" % (sCNT, sCNT))
    A("s_cbranch_scc1 L_end")
    LB("L_chk2")
    A("s_waitcnt vmcnt(0)")
    LB("L_chk2b")
    A("v_max_f32 %s, v%d, v%d" % (vM, P + 2, P + 6))
    for i in range(2):
        A("v_cmp_ne_u32 %s, %s, v%d" % (MS[i], sTAG, P + 4 * i + 3))
    A("v_max_f32_dpp %s, %s, %s row_ror:4 %s" % (vM, vM, vM, DPP))
    A("s_or_b64 vcc, %s, %s" % (MS[0], MS[1]))
    A("s_cbranch_scc1 L_poll2")
    stamp(7)
    sshot(1)
    U = T + 8
    def unp(i, k):
        if k & 1: A("v_and_b32 v%d, %s, v%d" % (U + 4 * i + k, t1, P + 4 * i + (k >> 1)))
        else: A("v_lshlrev_b32 v%d, 16, v%d" % (U + 4 * i + k, P + 4 * i + (k >> 1)))
    vt2 = "v126"
    A("v_max_f32_dpp %s, %s, %s row_ror:8 %s" % (vM, vM, vM, DPP))
    A("v_mov_b32 %s, %s" % (vt2, vM))
    unp(0, 0); unp(0, 1)
    A("v_permlane16_swap_b32 %s, %s" % (vt2, vM))
    A("v_max_f32 %s, %s, %s" % (vM, vM, vt2))
    A("v_mov_b32 %s, %s" % (vt2, vM))
    unp(0, 2); unp(0, 3)
    A("v_permlane32_swap_b32 %s, %s" % (vt2, vM))
    A("v_max_f32 %s, %s, %s" % (vM, vM, vt2))
    w0, w1 = "v120", "v122"
    A("v_sub_f32 %s, v%d, %s" % (w0, P + 2, vM))
    A("v_sub_f32 %s, v%d, %s" % (w1, P + 6, vM))
    A("v_exp_f32 %s, %s" % (w0, w0))
    A("v_exp_f32 %s, %s" % (w1, w1))
    unp(1, 0)
    den, tA, tB = "v126", "v124", "v123"
    A("v_add_f32 %s, %s, %s" % (den, w0, w1))
    unp(1, 1); unp(1, 2)
    A("v_add_f32_dpp %s, %s, %s row_ror:4 %s" % (den, den, den, DPP))
    unp(1, 3)
    A("v_pk_mul_f32 %s, %s, v[120:121] op_sel_hi:[1,0]" % (P2(U), P2(U)))
    A("v_add_f32_dpp %s, %s, %s row_ror:8 %s" % (den, den, den, DPP))
    A("v_pk_mul_f32 %s, %s, v[120:121] op_sel_hi:[1,0]" % (P2(U + 2), P2(U + 2)))
    A("v_pk_fma_f32 %s, %s, v[122:123], %s op_sel_hi:[1,0,1]" % (P2(U), P2(U + 4), P2(U)))
    A("v_pk_fma_f32 %s, %s, v[122:123], %s op_sel_hi:[1,0,1]" % (P2(U + 2), P2(U + 6), P2(U + 2)))
    A("v_mov_b32 %s, %s" % (tA, den))
    A("s_bitcmp0_b32 %s, 0" % sFAST)
    A("v_permlane32_swap_b32 v%d, v%d" % (U, U + 2))
    A("v_permlane32_swap_b32 v%d, v%d" % (U + 1, U + 3))
    A("v_permlane32_swap_b32 %s, %s" % (tA, den))
    A("v_pk_add_f32 %s, %s, %s" % (P2(U), P2(U), P2(U + 2)))
    A("v_add_f32 %s, %s, %s" % (den, den, tA))
    A("s_mov_b32 %s, %d" % (sCNT, o["spinmax"]))
    A("v_permlane16_swap_b32 v%d, v%d" % (U, U + 1))
    A("v_mov_b32 %s, %s" % (tA, den))
    A("v_add_f32 v%d, v%d, v%d" % (U, U, U + 1))
    A("s_nop 0")
    A("v_permlane16_swap_b32 %s, %s" % (tA, den))
    A("v_add_f32_dpp v%d, v%d, v%d row_ror:4 %s" % (U, U, U, DPP))
    A("v_add_f32 %s, %s, %s" % (den, den, tA))
    A("v_rcp_f32 %s, %s" % (den, den))
    A("v_add_f32_dpp v%d, v%d, v%d row_ror:8 %s" % (U, U, U, DPP))
    a0 = "v125"
    A("v_mul_f32 %s, v%d, %s" % (a0, U, den))
    A("v_cvt_pk_bf16_f32 %s, %s, %s" % (a0, a0, a0))
    A("s_nop 1")
    WA = T
    for m in range(4):
        for r in range(4):
            A("v_and_b32_dpp v%d, %s, v%d row_newbcast:%d %s" % (WA + 4 * m + r, a0, MK + r, m, DPP))
        if m > 0:
            mfma(Y, WA + 4 * (m - 1), WOR + 4 * (m - 1), Y if (m > 1 or ndn_early) else None)
    if dnl:
        A("s_waitcnt vmcnt(0)")
        for a in range(ndn_early, 2):
            mfma(Y, HA + 4 * a, DNR + 4 * a, Y)
    else:
        A("s_nop 1")
    mfma(Y, WA + 12, WOR + 12, Y)
    A("s_mov_b32 exec_hi, 0")
    if o["reuse"]:
        A("s_barrier")
        A("s_nop 5")
    else:
        A("s_nop 6")
    for k in range(4):
        A("v_perm_b32 v%d, v%d, %s, s%d" % (Y + k, Y + k, vTAG, 56 + k))
    publish(vS25, Y, "h25")
    stamp(8)
    sshot(2)
    NP = o["np25"]
    PS = T + 16
    if o.get("ack25"): A("s_waitcnt vmcnt(0)")
    sshot(8)
    for _ in range(o.get("dly25", 0)): A("s_nop 7")
    for k in range(NP):
        A("global_load_dwordx4 v[%d:%d], %s, %s sc1" % (PS + 4 * k, PS + 4 * k + 3, vL25, sWS))
    sshot(4)
    LB("L_poll25")
    for k in range(NP):
        A("s_waitcnt vmcnt(%d)" % (NP - 1))
        for q in range(4):
            A("v_xor_b32 v%d, %s, v%d" % (P + q, TB[q], PS + 4 * k + q))
        A("v_or3_b32 %s, v%d, v%d, v%d" % (tA, P, P + 1, P + 2))
        A("v_or_b32_sdwa %s, %s, v%d dst_sel:DWORD dst_unused:UNUSED_PAD src0_sel:BYTE_0 src1_sel:BYTE_0" % (tA, tA, P + 3))
        A("v_cmp_ne_u32 vcc, 0, %s" % tA)
        if o["mask25"]:
            A("s_and_b64 exec, exec, vcc")
            A("s_cbranch_scc0 L_got25")
        else:
            A("s_cbranch_vccz L_got25")
        A("global_load_dwordx4 v[%d:%d], %s, %s sc1" % (PS + 4 * k, PS + 4 * k + 3, vL25, sWS))
    A("s_sub_u32 %s, %s, 1" % (sCNT, sCNT))
    A("s_cbranch_scc0 L_poll25")
    A("s_endpgm")
    LB("L_got25")
    A("s_mov_b64 exec, -1")
    stamp(9)
    if o.get("ampm"): A("s_memrealtime s[86:87]")
    x_, y_ = "v%d" % P, "v%d" % (P + 1)
    A("v_permlane16_swap_b32 v%d, v%d" % (P, P + 2))
    A("v_permlane16_swap_b32 v%d, v%d" % (P + 1, P + 3))
    A("v_add_f32 %s, %s, v%d" % (x_, x_, P + 2))
    A("v_add_f32 %s, %s, v%d" % (y_, y_, P + 3))
    fl = ["v_mov_b32 v%d, %s" % (P + 3, sTAG), "s_and_b32 %s, %s, 7" % (t0, sJ), "s_cmp_eq_u32 %s, %s" % (t0, sH), "s_nop 0"]
    if o["lastfin"]: fl = ["v_mov_b32 v%d, %s" % (P + 3, sTAG), "s_bitcmp1_b32 %s, 1" % sFAST, "s_nop 0", "s_nop 0"]
    for rot_ in (1, 2, 4, 8):
        A(fl.pop(0))
        A("v_add_f32_dpp %s, %s, %s row_ror:%d %s" % (x_, x_, x_, rot_, DPP))
        A("v_add_f32_dpp %s, %s, %s row_ror:%d %s" % (y_, y_, y_, rot_, DPP))
    def old_final():
        if o.get("ewg"): A("s_xor_b32 s63, s2, %d" % o["ewg"])
        if o.get("otouch"):
            A("global_load_dword v158, %s, %s" % (vXF, sOUT))
        A("s_lshl_b32 %s, 0x10001, %s" % (t0, sH))
        A("s_andn2_b32 exec_lo, 0xff00ff, %s" % t0)
        A("s_mov_b32 exec_hi, 0")
        A("s_mov_b32 %s, %d" % (sCNT, o["spinmax"]))
        NP = o["np3"]
        PS = VR
        if o["lastfin"] == 2 and o.get("sshot", 2):
            A("s_waitcnt lgkmcnt(0)")
            for k in range(1, 8): A("s_xor_b32 s%d, s%d, %s" % (12 + k, 12 + k, sTAG))
            A("s_or_b32 s13, s13, s14")
            A("s_or_b64 s[16:17], s[16:17], s[18:19]")
            A("s_or_b32 s13, s13, s15")
            A("s_or_b32 s16, s16, s17")
            if o["stamps"]: A("s_memrealtime s[68:69]")
            A("s_or_b32 s13, s13, s16")
            if o["stamps"]: A("s_cselect_b32 s66, 1, 2")
            A("s_cbranch_scc1 L_ask3")
            A("global_load_dwordx4 v[%d:%d], %s, %s %s" % (PS, PS + 3, vL3, sWS, o.get("hfl", "")))
            A("s_branch L_poll3")
            LB("L_ask3")
        for k in range(NP):
            A("global_load_dwordx4 v[%d:%d], %s, %s sc1" % (PS + 4 * k, PS + 4 * k + 3, vL3, sWS))
        LB("L_poll3")
        for k in range(NP):
            A("s_waitcnt vmcnt(%d)" % (NP - 1))
            A("v_cmp_ne_u32 vcc, %s, v%d" % (sTAG, PS + 4 * k + 3))
            A("v_mov_b32 v%d, v%d" % (P, PS + 4 * k))
            A("v_mov_b32 v%d, v%d" % (P + 1, PS + 4 * k + 1))
            A("s_and_b64 exec, exec, vcc")
            A("s_cbranch_scc0 L_got3")
            A("global_load_dwordx4 v[%d:%d], %s, %s sc1" % (PS + 4 * k, PS + 4 * k + 3, vL3, sWS))
        A("s_sub_u32 %s, %s, 1" % (sCNT, sCNT))
        A("s_cbranch_scc0 L_poll3")
        A("s_endpgm")
        LB("L_got3")
        stamp(10)
        A("s_mov_b32 exec_lo, -1")
        A("v_lshlrev_b32 %s, 16, %s" % (tA, vXP))
        A("v_and_b32 %s, %s, %s" % (tB, t1, vXP))
        for pat in ("quad_perm:[1,0,3,2]", "quad_perm:[2,3,0,1]", "row_half_mirror"):
            A("v_add_f32_dpp %s, %s, %s %s %s" % (x_, x_, x_, pat, DPP))
            A("v_add_f32_dpp %s, %s, %s %s %s" % (y_, y_, y_, pat, DPP))
            if pat != "row_half_mirror": A("s_nop 0")
        A("v_add_f32 %s, %s, %s" % (x_, x_, tA))
        A("v_add_f32 %s, %s, %s" % (y_, y_, tB))
        if o.get("perturb"):
            import struct
            bits = struct.unpack("<I", struct.pack("<f", float(o["perturb"])))[0]
            if o.get("pall"):
                A("v_mul_f32 %s, 0x%x, %s" % (x_, bits, x_)); A("v_mul_f32 %s, 0x%x, %s" % (y_, bits, y_))
            else:
                A("s_or_b32 %s, s2, %s" % (t0, sW))
                A("s_cselect_b32 %s, 0, 0x%x" % (t0, bits))
                A("v_add_f32 %s, %s, %s" % (x_, t0, x_))
        A("v_cvt_pk_bf16_f32 %s, %s, %s" % (x_, x_, y_))
        A("s_mov_b64 exec, 0x10001")
        A("global_store_dword %s, %s, %s %s" % (vXF, x_, sOUT, o.get("ofl", "")))
        A("s_or_b32 %s, %s, %s" % (t0, sJ if o["lastfin"] else "s2" if not o.get("ewg") else "s63", sW))
        A("s_cbranch_scc1 L_done")
        C("the next launch must not mistake this launch's hand-off words for its own")
        A("v_mov_b32 %s, 0" % tA)
        A("v_mov_b32 %s, %s" % (tB, sTAG))
        A("global_store_dword %s, %s, %s %s" % (tA, tB, sWS, o.get("efl", "")))
    def diag_end():
        if o.get("ampm"):
            A("s_or_b32 %s, %s, %s" % (t0, sJ, sW))
            A("s_cbranch_scc1 L_nom")
            A("s_mov_b64 exec, -1")
            A("s_waitcnt lgkmcnt(0)")
            A("s_lshl_b32 %s, %s, 2" % (t0, sH))
            A("v_mov_b32 v2, %s" % t0)
            A("s_or_b32 s86, s86, 1")
            A("v_mov_b32 v3, s86")
            A("global_store_dword v2, v3, s[24:25] offset:192 sc1")
            A("s_cmp_lg_u32 s2, 0")
            A("s_cbranch_scc1 L_nom")
            A("v_and_b32 v2, 7, v0")
            A("v_lshlrev_b32 v2, 2, v2")
            A("s_movk_i32 s85, 1000")
            LB("L_mpoll")
            A("global_load_dword v3, v2, s[24:25] offset:192 sc1")
            A("global_load_dword v4, v2, s[24:25] offset:128 sc1")
            A("s_sub_u32 s85, s85, 1")
            A("s_cbranch_scc1 L_nom")
            A("s_waitcnt vmcnt(0)")
            A("v_cmp_eq_u32 vcc, 0, v3")
            A("s_cbranch_vccnz L_mpoll")
            for g_ in range(8): A("v_readlane_b32 s%d, v3, %d" % (64 + g_, g_))
            for g_ in range(8): A("v_readlane_b32 s%d, v4, %d" % (72 + g_, g_))
            A("s_nop 3")
            for g_ in range(16): A("s_sub_u32 s%d, s%d, s90" % (64 + g_, 64 + g_))
            md = o["ampm"]
            if md >= 10:
                for g_ in range(8): A("s_mov_b32 s%d, s%d" % (64 + g_, 72 + g_))
                md -= 10
            key = {1: 64, 2: 72}.get(md)
            A("s_mov_b32 s80, s64")
            A("s_mov_b32 s81, s%d" % (key or 64))
            A("s_mov_b32 s82, 0x80000000")
            for g_ in range(1, 8):
                if key:
                    A("s_cmp_gt_i32 s%d, s81" % (key + g_))
                    A("s_cselect_b32 s83, s80, s%d" % (64 + g_))
                    A("s_cselect_b32 s80, s%d, s80" % (64 + g_))
                    A("s_cselect_b32 s81, s%d, s81" % (key + g_))
                    A("s_max_i32 s82, s82, s83")
                else:
                    A("s_max_i32 s82, s82, s%d" % (64 + g_))
            A("s_sub_i32 s88, s80, s82")
            A("s_add_i32 s88, s88, 100")
            A("s_max_i32 s88, s88, 0")
            A("s_mul_i32 s88, s88, 20")
            A("s_min_u32 s88, s88, 20000")
            A("s_add_u32 s88, s88, 1500")
            LB("L_mspin")
            A("s_memrealtime s[92:93]")
            A("s_waitcnt lgkmcnt(0)")
            A("s_sub_u32 s92, s92, s90")
            A("s_cmp_lt_u32 s92, s88")
            A("s_cbranch_scc1 L_mspin")
            LB("L_nom")
        if o.get("lateh") is not None:
            A("s_or_b32 %s, s2, %s" % (t0, sW))
            A("s_cbranch_scc1 L_nolate")
            A("s_mov_b64 exec, -1")
            A("v_and_b32 v2, 7, v0")
            A("v_lshlrev_b32 v2, 2, v2")
            A("global_load_dword v3, v2, s[24:25] sc1")
            A("s_waitcnt vmcnt(0)")
            for g_ in range(8): A("v_readlane_b32 s%d, v3, %d" % (64 + g_, g_))
            A("s_nop 3")
            for g_ in range(8): A("s_sub_u32 s%d, s%d, s90" % (64 + g_, 64 + g_))
            A("s_mov_b32 s72, s64")
            for g_ in range(1, 8): A("s_min_i32 s72, s72, s%d" % (64 + g_))
            if o["lateh"] == 8:
                A("s_mov_b32 s88, s64")
                for g_ in range(1, 8): A("s_max_i32 s88, s88, s%d" % (64 + g_))
            else:
                A("s_mov_b32 s88, s%d" % (64 + o["lateh"]))
            A("s_sub_u32 s88, s88, s72")
            A("s_mul_i32 s88, s88, 20")
            A("s_min_u32 s88, s88, 20000")
            A("s_add_u32 s88, s88, 1500")
            A("s_add_u32 s88, s88, s72")
            LB("L_latespin")
            A("s_memrealtime s[92:93]")
            A("s_waitcnt lgkmcnt(0)")
            A("s_sub_u32 s92, s92, s90")
            A("s_cmp_lt_u32 s92, s88")
            A("s_cbranch_scc1 L_latespin")
            LB("L_nolate")
        amp_end("")
        if o.get("pad"):
            LB("L_padspin")
            A("s_memrealtime s[92:93]")
            A("s_waitcnt lgkmcnt(0)")
            A("s_sub_u32 s92, s92, s90")
            A("s_cmp_lt_u32 s92, %d" % o["pad"])
            A("s_cbranch_scc1 L_padspin")
    A("s_cbranch_scc1 L_final")
    A("s_mov_b64 exec, 0x%x" % (0x30003 if o["rep3"] or o["vote"] else 0x10001))
    A("global_store_dwordx4 %s, v[%d:%d], %s sc1" % (vS3, P, P + 3, sWS))
    if o.get("wb"):
        A("s_or_b32 %s, %s, %s" % (t0, sW, sJ) if o["wb"] == 1 else "s_and_b32 %s, %s, 3" % (t0, sW))
        A("s_cmp_lg_u32 %s, %d" % (t0, 8 if o["wb"] == 1 else 0))
        A("s_cbranch_scc1 L_done")
        A("buffer_wbl2 sc1")
    A("s_branch L_done")
    LB("L_final")
    if o["lastfin"] == 1:
        A("s_mov_b64 exec, 0x10001")
        A("ds_write_b128 %s, v[%d:%d] offset:%d" % (vL3, P, P + 3, L_FIN))
        A("s_waitcnt lgkmcnt(0)")
    else:
        old_final()
    LB("L_done")
    diag_end()
    dump_stamps()
    A("s_endpgm")
    for name, addr, g in tails:
        LB("L_slow_%s" % name)
        A("global_store_dwordx4 %s, v[%d:%d], %s sc1" % (addr, g, g + 3, sWS))
        A("s_branch L_back_%s" % name)
    if o["lastfin"] == 1: unit_final()
    LB("L_end")
    A("s_endpgm")
    head = HEADER.format(lds=o.get("lds", LDS_BYTES), k=KNAME); foot = FOOTER.format(k=KNAME, vg=o.get("vg", 168), sg=96)
    if o["align"]: L = align_runs(L, head, foot, o.get("minrun", 3), o.get("nopmin", 6))
    return head + "\n".join(L) + foot


if __name__ == "__main__":
    kw = {}
    out = "parallel_sum__sliding_block_cached__swiglu_ffn__decode.s"
    for a in sys.argv[1:]:
        k, v = a.split("=", 1)
        if k == "out": out = v; continue
        try: v = int(v) if k != "nlv" else v
        except ValueError: pass
        kw[k] = v
    open(out, "w").write(gen(**kw))
```

```python
import sys

KNAME = "parallel_sum__sliding_block_cached__swiglu_ffn__decode_kernel"

HEADER = """; Kernarg layout for this problem (96 bytes, ptrs only, base s[0:1]):
;   offset  72: d_out     shape=(1, 1, 512) dtype=bfloat16
; @launch grid=(256,1,1) block=(320,1,1) lds={lds}
.amdgcn_target "amdgcn-amd-amdhsa--gfx950"
.text
.globl {k}
.p2align 8
.type {k},@function
{k}:
"""
FOOTER = """
.section .rodata,"a"
.p2align 6
.amdhsa_kernel {k}
  .amdhsa_next_free_vgpr {vg}
  .amdhsa_next_free_sgpr {sg}
  .amdhsa_accum_offset {vg}
  .amdhsa_group_segment_fixed_size 0
  .amdhsa_kernarg_size 96
  .amdhsa_user_sgpr_count 2
  .amdhsa_user_sgpr_kernarg_segment_ptr 1
  .amdhsa_system_sgpr_workgroup_id_x 1
.end_amdhsa_kernel
"""

MB1A = 0x40000
MB1B = 0x80000
MB2 = 0x100000
MB25 = 0x400000
MB3 = 0x1C0000
STAMPS = 0x10000000
L_WQ = 0
L_FF = 16384
L_XN = 32768
L_Q = 33792
L_H = 34816
L_FLAG = 34848
L_VOTE = 34864
L_ML = 34880
L_TKT = 35008
L_FIN = L_XN
L_O = 35072
L_K = L_O + 8192
L_K = (L_K + 1023) // 1024 * 1024
LDS_BYTES = L_K + 32768
TAGC = 0x9E3779B9
LOG2E = 0x3FB8AA3B
SCALE = 0x3DB504F3
EPS = 0x3727C5AC
DPP = "row_mask:0xf bank_mask:0xf"

DEF = dict(stamps=False, spinmax=200000, WK=5, W=6, Wtail=8, b0pos=45, nt="nt", pretouch="k", atries=24,
           prefetch=True, b2=7, ntail0=0, tlag=0, mask2=False, pt1=True, rotm=4, rep3=False, tsp="", auxearly=True, hlate=False, vote=True, np25=2, np3=2, ack25=2, align=1, unr=2, mask25=True, lperm=0, nlv="43434343", reuse=1, rp=2176, bonly=0, bdefer=4, bskip=1, lastfin=0, npu=1, stag=0, g25=1, gw=0, pt3=1, finhi=1, efull=0, stouch=0)


def _sizes(text):
    import subprocess, tempfile, os, re
    d = tempfile.mkdtemp()
    open(d + "/a.s", "w").write(text)
    subprocess.run(["clang", "-x", "assembler", "-target", "amdgcn-amd-amdhsa", "-mcpu=gfx950", "-c", d + "/a.s", "-o", d + "/a.o"], check=True)
    out = subprocess.run(["llvm-objdump", "-d", "--mcpu=gfx950", d + "/a.o"], capture_output=True, text=True).stdout
    r = []
    for ln in out.split("\n"):
        m = re.search(r"^\s+(\S+).*// ([0-9A-F]{12}): ((?:[0-9A-F]{8} ?)+)", ln)
        if m: r.append((m.group(1), 4 * len(m.group(3).split())))
    return r


def align_runs(L, head, foot, minrun=3, nopmin=6):
    ins = [i for i, l in enumerate(L) if l.startswith("    ") and not l.strip().startswith(";")]
    sz = _sizes(head + "\n".join(L) + foot)
    assert len(sz) == len(ins), (len(sz), len(ins))
    size = {i: s_[1] for i, s_ in zip(ins, sz)}
    mn = {i: s_[0] for i, s_ in zip(ins, sz)}
    out = list(L); extra = {}
    off = 0; k = 0
    while k < len(ins):
        i = ins[k]
        if size[i] == 8 and off % 8 == 4:
            run = 0
            while k + run < len(ins) and size[ins[k + run]] == 8: run += 1
            if run >= minrun:
                b = k - 1; done = False
                while b >= 0 and size[ins[b]] == 4:
                    j = ins[b]
                    if mn[j] == "s_nop" and int(out[j].split()[1]) >= 1:
                        out[j] = "    s_nop 0\n    s_nop %d" % (int(out[j].split()[1]) - 1)
                        size[j] = 8; off += 4; done = True
                        break
                    if mn[j].endswith("_e32") and not mn[j].startswith(("v_readfirstlane", "v_permlane")):
                        op = out[j].split()[0]
                        out[j] = out[j].replace(op, op.replace("_e32", "") + "_e64", 1)
                        size[j] = 8; off += 4; done = True
                        break
                    b -= 1
                if not done and run >= nopmin and k > 0 and not mn[ins[k - 1]].startswith(("s_branch", "s_endpgm")):
                    extra[i] = True; off += 4; done = True
                if not done and k > 0 and mn[ins[k - 1]].startswith(("s_branch", "s_endpgm")):
                    extra[ins[k - 1] + 1] = True; off += 4
            for q in range(run): off += 8
            k += run
            continue
        off += size[i]; k += 1
    res = []
    for i, l in enumerate(out):
        if i in extra: res.append("    s_nop 0")
        res.append(l)
    return res


def gen(**kw):
    o = dict(DEF); o.update(kw)
    MB3 = o.get("mb3", globals()["MB3"])
    L = []
    def A(s): L.append("    " + s)
    def LB(s): L.append(s + ":")
    def C(s): L.append("    ; " + s)
    nt = o["nt"]
    NSTAMP = 12
    role = ["U"]
    def stamp(i):
        if o.get("amp") == "%s%d" % (role[0], i): A("s_memrealtime s[88:89]" if not o.get("cyc") else "s_memtime s[88:89]")
        if o.get("amp0") == "%s%d" % (role[0], i): A("s_memrealtime s[86:87]" if not o.get("cyc") else "s_memtime s[86:87]")
        if o["stamps"] and (i in (0, 11) or o.get("sel") is None or ("%s%d" % (role[0], i)) in o["sel"].split(",")):
            A("s_memrealtime s[%d:%d]" % (64 + 2 * i, 65 + 2 * i))
    def mfma(d, a, b, c):
        A("v_mfma_f32_16x16x32_bf16 v[%d:%d], v[%d:%d], v[%d:%d], %s" % (d, d + 3, a, a + 3, b, b + 3, "0" if c is None else "v[%d:%d]" % (c, c + 3)))
    def mfma16(d, a, b, c):
        A("v_mfma_f32_16x16x16_bf16 v[%d:%d], v[%d:%d], v[%d:%d], %s" % (d, d + 3, a, a + 1, b, b + 1, "0" if c is None else "v[%d:%d]" % (c, c + 3)))
    def allred(v, tmp, op, which):
        A("v_mov_b32 %s, %s" % (tmp, v))
        A("s_nop 1")
        A("v_permlane%d_swap_b32 %s, %s" % (which, tmp, v))
        A("%s %s, %s, %s" % (op, v, v, tmp))
    sX, sK, sV, sWQ, sWO, sG, sU, sDN, sOUT, sWS = "s[4:5]", "s[6:7]", "s[8:9]", "s[10:11]", "s[12:13]", "s[16:17]", "s[18:19]", "s[20:21]", "s[22:23]", "s[26:27]"
    sW, sH, sJ, sTAG, sXCC, sCNT, sFAST = "s30", "s31", "s32", "s33", "s34", "s35", "s36"
    t0, t1, t2, t3 = "s37", "s38", "s39", "s40"
    def dump_stamps():
        if not o["stamps"]: return
        if role[0] == "U" and o.get("sel") is not None and "U" not in o["sel"]: return
        A("s_mov_b64 exec, 1")
        if o.get("endwait"): A("s_waitcnt vmcnt(0)")
        stamp(11)
        A("s_waitcnt lgkmcnt(0)")
        A("s_mul_i32 %s, s2, 5" % t0)
        A("s_add_u32 %s, %s, %s" % (t0, t0, sW))
        A("s_lshl_b32 %s, %s, 7" % (t0, t0))
        A("s_add_u32 %s, %s, 0x%x" % (t0, t0, STAMPS))
        A("v_mov_b32 v2, %s" % t0)
        for i in range(NSTAMP):
            A("v_mov_b32 v3, s%d" % (64 + 2 * i))
            A("global_store_dword v2, v3, %s offset:%d" % (sWS, 4 * i))
        A("v_mov_b32 v3, %s" % ("s63" if role[0] == "U" and o["vote"] else sCNT))
        A("global_store_dword v2, v3, %s offset:%d" % (sWS, 4 * NSTAMP))
        if o.get("dbgfail"):
            for q_, r_ in enumerate(("s84", "s62", "s63")):
                A("v_mov_b32 v3, %s" % r_)
                A("global_store_dword v2, v3, %s offset:%d" % (sWS, 4 * NSTAMP + 8 + 4 * q_))
        A("s_getreg_b32 %s, hwreg(HW_REG_HW_ID)" % t1)
        A("v_mov_b32 v3, %s" % t1)
        A("global_store_dword v2, v3, %s offset:%d" % (sWS, 4 * NSTAMP + 4))

    def amp_end(sfx):
        if o.get("ampg"):
            A("s_waitcnt vmcnt(0) lgkmcnt(0)")
            A("s_memrealtime s[88:89]")
            A("s_mov_b64 exec, -1")
            A("v_and_b32 v2, 7, v0")
            A("v_lshlrev_b32 v2, 2, v2")
            A("global_load_dword v3, v2, s[24:25] offset:128 sc1")
            A("s_waitcnt vmcnt(0) lgkmcnt(0)")
            for g_ in range(8): A("v_readlane_b32 s%d, v3, %d" % (64 + g_, g_))
            A("s_nop 3")
            for g_ in range(8): A("s_sub_u32 s%d, s88, s%d" % (64 + g_, 64 + g_))
            for g_ in range(1, 8): A("s_max_i32 s64, s64, s%d" % (64 + g_))
            A("s_mul_i32 s64, s64, 9")
            A("s_min_u32 s64, s64, 20000")
            A("s_add_u32 s64, s64, 1500")
            LB("L_ampgspin" + sfx)
            A("s_memrealtime s[92:93]")
            A("s_waitcnt lgkmcnt(0)")
            A("s_sub_u32 s92, s92, s88")
            A("s_cmp_lt_u32 s92, s64")
            A("s_cbranch_scc1 L_ampgspin" + sfx)
        if o.get("amp"):
            if o["amp"] == "end": A("s_memrealtime s[88:89]")
            A("s_waitcnt lgkmcnt(0)")
            A("s_sub_u32 s88, s88, %s" % ("s86" if o.get("amp0") else "s90"))
            A("s_mul_i32 s88, s88, %d" % o.get("ampk", 10))
            A("s_min_u32 s88, s88, 20000")
            A("s_add_u32 s88, s88, 1500")
            LB("L_ampspin" + sfx)
            A("s_memrealtime s[92:93]")
            A("s_waitcnt lgkmcnt(0)")
            A("s_sub_u32 s92, s92, s90")
            A("s_cmp_lt_u32 s92, s88")
            A("s_cbranch_scc1 L_ampspin" + sfx)
    nlv = [int(c) for c in str(o["nlv"])]
    assert len(nlv) == 8 and sum(nlv) == 28 and min(nlv) >= 0 and max(nlv) <= 4
    LUT_d = sum((4 - n) << (4 * i) for i, n in enumerate(nlv))
    LUT_D = sum((4 * i - sum(nlv[:i])) << (4 * i) for i in range(8))
    def ffn_share(l0, d):
        A("s_lshl_b32 %s, %s, 2" % (l0, sH))
        A("s_lshr_b32 %s, 0x%x, %s" % (d, LUT_D, l0))
        A("s_and_b32 %s, %s, 7" % (d, d))
        A("s_sub_u32 s3, %s, %s" % (l0, d))
        A("s_lshr_b32 %s, 0x%x, %s" % (d, LUT_d, l0))
        A("s_and_b32 %s, %s, 7" % (d, d))
    stamp(0)
    if o.get("pad") or o.get("bal") or o.get("amp") or o.get("ampg") or o.get("ampm") or o.get("lateh") is not None: A("s_memrealtime s[90:91]")
    A("s_cmp_ge_u32 s2, 256")
    A("s_cbranch_scc1 L_end")
    A("s_load_dwordx16 s[4:19], s[0:1], 0")
    A("s_load_dwordx8 s[20:27], s[0:1], 64")
    A("v_lshrrev_b32 v1, 6, v0")
    A("v_and_b32 v0, 63, v0")
    A("v_readfirstlane_b32 %s, v1" % sW)
    A("s_and_b32 %s, s2, 7" % sH)
    A("s_lshr_b32 %s, s2, 3" % sJ)
    if o.get("bal") or o.get("lateh") is not None or o.get("ampg") or o.get("ampm"):
        A("s_or_b32 %s, %s, %s" % (t0, sJ, sW))
        A("s_cbranch_scc1 L_noflag")
        A("s_lshl_b32 %s, %s, 2" % (t0, sH))
        A("v_mov_b32 v108, %s" % t0)
        A("s_waitcnt lgkmcnt(0)")
        A("s_or_b32 %s, s90, 1" % t0)
        A("v_mov_b32 v109, %s" % t0)
        A("global_store_dword v108, v109, s[24:25] offset:%d sc1" % (128 if o.get("ampg") or o.get("ampm") else 0))
        LB("L_noflag")
    A("s_cmp_eq_u32 %s, 4" % sW)
    A("s_cbranch_scc0 %s" % ("L_race" if o["vote"] else "L_attn"))

    C("wave 4: layernorm, one [128 x 64] tile of wq and one of gate/up, exchange of q and of the FFN hidden values")
    A("s_setprio 3")
    if o["prefetch"]:
        A("s_getpc_b64 s[28:29]")
        LB("L_pc")
        A("v_lshlrev_b32 v2, 7, v0")
        A("v_min_u32 v2, L_end-L_pc, v2")
        A("global_load_dword v127, v2, s[28:29]")
    sQK, sNOFF = "s50", "s51"
    A("v_lshlrev_b32 v3, 4, v0")
    A("v_lshrrev_b32 v6, 3, v0")
    A("v_and_b32 v5, 2, v6")
    A("v_and_b32 v7, 7, v0")
    A("v_xor_b32 v5, v5, v7")
    A("v_lshlrev_b32 v7, 4, v5")
    A("s_and_b32 %s, %s, 3" % (sQK, sJ))
    A("s_lshl_b32 %s, %s, 10" % (t0, sH))
    if o["lperm"]:
        A("s_andn2_b32 %s, %s, 3" % (t1, sJ))
        A("s_lshr_b32 %s, 0x%x, %s" % (t1, o["lperm"], t1))
        A("s_and_b32 s55, %s, 7" % t1)
    else:
        A("s_lshr_b32 s55, %s, 2" % sJ)
    A("s_lshl_b32 %s, s55, 7" % t1)
    A("s_lshl_b32 %s, %s, 20" % (t2, sQK))
    A("s_add_u32 %s, %s, %s" % (t0, t0, t1))
    A("s_add_u32 %s, %s, %s" % (t0, t0, t2))
    A("v_lshl_add_u32 v4, v6, 13, v7")
    A("v_add_u32 v4, %s, v4" % t0)
    A("v_xor_b32 v5, 64, v4")
    A("v_add_u32 v5, 0x10000, v5")
    A("s_mov_b32 m0, %d" % L_WQ)
    A("s_mov_b32 %s, 0x20000" % t1)
    if o.get("ucontig"):
        A("s_lshl_b32 %s, s2, 10" % t0)
        A("v_add_u32 v4, %s, v3" % t0)
        A("v_add_u32 v5, 0x40000, v4")
        A("s_mov_b32 %s, 0x80000" % t1)
    A("s_movk_i32 s41, 1024")
    A("s_waitcnt lgkmcnt(0)")
    A("global_load_dwordx4 v[8:11], v3, %s" % sX)
    A("s_load_dword %s, %s, 0" % (sTAG, sWS))
    def dma_loop(name, base, step):
        A("s_mov_b32 %s, %d" % (t2, 16 // o["unr"]))
        LB(name)
        for i in range(o["unr"]):
            vv = ("v4", "v5")[i & 1]
            A("global_load_lds_dwordx4 %s, %s %s" % (vv, base, nt))
            A("s_add_u32 m0, m0, s41")
            A("v_add_u32 %s, %s, %s" % (vv, step, vv))
        A("s_sub_u32 %s, %s, 1" % (t2, t2))
        A("s_cmp_lg_u32 %s, 0" % t2)
        A("s_cbranch_scc1 %s" % name)
    dma_loop("L_wq_loop", sWQ, t1)
    if o["b0pos"] == 16: A("s_barrier")
    ffn_share(t0, t3)
    A("s_lshr_b32 %s, %s, 3" % (t1, sJ))
    A("s_add_u32 %s, s3, %s" % (t0, t1))
    A("s_add_u32 %s, %s, %s" % (sNOFF, t1, t3))
    A("s_mul_i32 %s, %s, 3584" % (t1, sQK))
    A("s_add_u32 %s, %s, %s" % (t0, t0, t1))
    A("s_lshl_b32 %s, %s, 7" % (t0, t0))
    A("v_mul_u32_u24 v4, 3584, v6")
    A("v_add3_u32 v4, v4, v7, %s" % t0)
    A("v_xor_b32 v5, 64, v4")
    A("v_add_u32 v5, %d, v5" % (8 * 3584))
    A("s_mov_b32 %s, %d" % (t1, 16 * 3584))
    if o.get("ucontig"):
        A("s_lshr_b32 %s, s2, 1" % t0)
        A("s_min_u32 %s, %s, 111" % (t0, t0))
        A("s_lshl_b32 %s, %s, 10" % (t0, t0))
        A("v_add_u32 v4, %s, v3" % t0)
        A("v_add_u32 v5, %d, v4" % (112 * 1024))
        A("s_mov_b32 %s, %d" % (t1, 224 * 1024))
    A("s_bitcmp0_b32 %s, %d" % (("s2", 0) if o.get("ucontig") else (sJ, 2)))
    A("s_cselect_b64 s[42:43], %s, %s" % (sG, sU))
    A("s_cmp_ge_u32 %s, 4" % sNOFF)
    A("s_cselect_b64 exec, 1, -1")
    dma_loop("L_ff_loop", "s[42:43]", t1)
    A("s_mov_b64 exec, -1")
    if o["vote"]:
        A("s_branch L_unit2")
        LB("L_race")
        C("which of the two copies of the last hand-off lives nearer to this die: race two cold scalar loads of this wave's own lines")
        A("s_lshl_b32 %s, s2, 2" % t0)
        A("s_add_u32 %s, %s, %s" % (t0, t0, sW))
        A("s_lshr_b32 %s, %s, 6" % (t1, t0))
        A("s_lshl_b32 %s, %s, 14" % (t1, t1))
        A("s_and_b32 %s, %s, 63" % (t0, t0))
        A("s_lshl_b32 %s, %s, 7" % (t0, t0))
        A("s_add_u32 %s, %s, %s" % (t0, t0, t1))
        if MB3 == 0x200000: A("s_bitset1_b32 %s, 21" % t0)
        else: A("s_or_b32 %s, %s, 0x%x" % (t0, t0, MB3))
        A("s_lshl_b32 %s, %s, 13" % (t1, sW))
        A("s_and_b32 %s, %s, 0x2000" % (t1, t1))
        A("s_or_b32 s46, %s, %s" % (t0, t1))
        A("s_xor_b32 s47, s46, 0x2000")
        A("s_movk_i32 s28, 0x5bd1")
        A("s_movk_i32 s29, 0x5bd1")
        A("s_waitcnt lgkmcnt(0)")
        A("s_load_dword s28, %s, s46" % sWS)
        A("s_load_dword s29, %s, s47" % sWS)
        A("s_waitcnt lgkmcnt(1)")
        A("s_mov_b64 s[48:49], s[28:29]")
        LB("L_race_done")
        A("s_cmpk_lg_i32 s48, 0x5bd1")
        A("s_cselect_b32 %s, 1, 0" % t0)
        A("s_cmpk_lg_i32 s49, 0x5bd1")
        A("s_cselect_b32 %s, 1, 0" % t2)
        A("s_sub_i32 %s, %s, %s" % (t0, t0, t2))
        A("s_sub_i32 %s, 0, %s" % (t2, t0))
        A("s_cmp_eq_u32 %s, 0" % t1)
        A("s_cselect_b32 %s, %s, %s" % (t0, t0, t2))
        A("s_lshl_b32 %s, %s, 2" % (t2, sW))
        A("v_mov_b32 v158, %s" % t2)
        A("v_mov_b32 v159, %s" % t0)
        A("ds_write_b32 v158, v159 offset:%d" % L_VOTE)
        A("s_branch L_attn")
        LB("L_unit2")
    if o["pt1"]:
        C("pull this workgroup's own hand-off lines into L2 before anyone polls them")
        A("s_lshl_b32 %s, %s, 15" % (t0, sH))
        A("s_lshl_b32 %s, %s, 8" % (t1, sJ))
        A("s_add_u32 %s, %s, %s" % (t0, t0, t1))
        A("s_add_u32 %s, %s, 0x%x" % (t0, t0, MB1A))
        A("v_and_b32 v33, 1, v0")
        A("v_bfe_u32 v32, v0, 1, 1")
        A("v_lshlrev_b32 v33, 7, v33")
        A("v_lshl_add_u32 v33, v32, 13, v33")
        A("s_mul_i32 %s, %s, 240" % (t1, sJ))
        A("s_sub_u32 %s, 0x4000, %s" % (t1, t1))
        A("v_cmp_lt_u32 vcc, 3, v0")
        A("v_mov_b32 v32, %s" % t1)
        A("s_nop 0")
        A("v_cndmask_b32 v33, v33, v32, vcc")
        A("v_add_u32 v33, %s, v33" % t0)
        A("global_load_dword v119, v33, %s sc1" % sWS)
    def tlbwarm():
        C("first touch of the pages the later loads use (address translation early, off their queue)")
        A("s_lshl_b32 %s, %s, 24" % (t0, sH))
        A("s_add_u32 %s, %s, 0xF00000" % (t0, t0))
        A("v_mov_b32 v112, %s" % t0)
        A("s_lshl_b32 %s, %s, 19" % (t0, sH))
        A("v_mov_b32 v113, %s" % t0)
        A("s_mul_i32 %s, %s, 0x38000" % (t0, sH))
        A("v_mov_b32 v114, %s" % t0)
        A("v_mov_b32 v115, 0x%x" % MB3)
        A("s_mov_b64 exec, 1")
        A("global_load_dword v116, v112, %s" % sK)
        A("global_load_dword v117, v112, %s" % sV)
        A("global_load_dword v118, v113, %s" % sWO)
        A("global_load_dword v111, v114, %s" % sDN)
        A("global_load_dword v110, v115, %s" % sWS)
        A("s_mov_b64 exec, -1")
    NW = 1 if o["pt1"] else 0
    if o.get("tlbw") == 2:
        tlbwarm(); NW += 5
    if o["b0pos"] == 32:
        if o.get("b0wait") is not None: A("s_waitcnt vmcnt(%d)" % o["b0wait"])
        A("s_barrier")
    stamp(1)
    XF = 12
    A("s_mov_b32 %s, 0xffff0000" % t1)
    A("s_waitcnt vmcnt(%d)" % (32 + NW))
    stamp(2)
    C("layernorm with the reference's bf16 roundings")
    for i in range(4):
        A("v_lshlrev_b32 v%d, 16, v%d" % (XF + 2 * i, 8 + i))
        A("v_and_b32 v%d, %s, v%d" % (XF + 2 * i + 1, t1, 8 + i))
    fill = []
    def F(s): fill.append(s)
    def nop2():
        n = 0
        while fill and n < 2:
            A(fill.pop(0)); n += 1
        if n < 2: A("s_nop %d" % (1 - n))
    TRB = 120
    vAX, vS1, vL1, vL1x, vL1a, vF, vTN, vTB = "v34", "v35", "v36", "v37", "v38", "v39", "v124", "v125"
    sRP, sB1 = "s52", "s53"
    F("v_lshrrev_b32 v126, 4, v0")
    F("v_bfe_u32 v4, v0, 2, 2")
    F("v_lshl_add_u32 v5, v126, 3, v4")
    F("v_and_b32 v6, 3, v0")
    F("v_lshlrev_b32 v7, 3, v6")
    F("v_lshl_add_u32 v5, v5, 7, v7")
    F("v_bfe_u32 v4, v0, 3, 2")
    for ct in range(4):
        F("v_xor_b32 v7, %d, v4" % ct)
        F("v_lshl_add_u32 v%d, v7, 5, v5" % (TRB + ct))
    F("s_lshl_b32 %s, %s, 8" % (t0, sQK))
    F("v_lshl_add_u32 %s, v126, 4, %s" % (vAX, t0))
    F("s_lshl_b32 %s, %s, 15" % (sB1, sH))
    F("s_add_u32 %s, %s, 0x%x" % (sB1, sB1, MB1A))
    def wavesum(v, tmp):
        for rot in (1, 2, 4, 8):
            nop2()
            A("v_add_f32_dpp %s, %s, %s row_ror:%d %s" % (v, v, v, rot, DPP))
        for which in (16, 32):
            A("v_mov_b32 %s, %s" % (tmp, v))
            nop2()
            A("v_permlane%d_swap_b32 %s, %s" % (which, tmp, v))
            A("v_add_f32 %s, %s, %s" % (v, v, tmp))
    def P2(r): return "v[%d:%d]" % (r, r + 1)
    A("v_pk_add_f32 v[22:23], %s, %s" % (P2(XF), P2(XF + 2)))
    A("v_pk_add_f32 v[24:25], %s, %s" % (P2(XF + 4), P2(XF + 6)))
    A("v_pk_add_f32 v[22:23], v[22:23], v[24:25]")
    A("v_add_f32 v22, v22, v23")
    wavesum("v22", "v23")
    A("v_mul_f32 v22, 0x3b000000, v22")
    DV = 24
    for i in range(4):
        A("v_pk_add_f32 %s, %s, v[22:23] op_sel_hi:[1,0] neg_lo:[0,1] neg_hi:[0,1]" % (P2(DV + 2 * i), P2(XF + 2 * i)))
    A("v_cvt_pk_bf16_f32 v22, 0, v22")
    A("v_pk_mul_f32 v[32:33], %s, %s" % (P2(DV), P2(DV)))
    for i in range(1, 4):
        A("v_pk_fma_f32 v[32:33], %s, %s, v[32:33]" % (P2(DV + 2 * i), P2(DV + 2 * i)))
    A("v_add_f32 v32, v32, v33")
    pre = ["v_pk_add_f32 %s, %s, v[22:23] op_sel_hi:[1,0] neg_lo:[0,1] neg_hi:[0,1]" % (P2(XF + 2 * i), P2(XF + 2 * i)) for i in range(4)]
    pre += ["v_cvt_pk_bf16_f32 v%d, 0, v%d" % (XF + i, XF + i) for i in range(8)]
    rest = fill[:]; fill[:] = pre
    wavesum("v32", "v33")
    fill[:] = fill + rest
    A("v_mul_f32 v32, 0x3b000000, v32")
    A("v_cvt_pk_bf16_f32 v32, 0, v32")
    A("v_add_f32 v32, 0x%x, v32" % EPS)
    A("v_cvt_pk_bf16_f32 v32, 0, v32")
    A("v_sqrt_f32 v32, v32")
    A(fill.pop(0))
    A("v_cvt_pk_bf16_f32 v32, 0, v32")
    A("v_rcp_f32 v32, v32")
    A(fill.pop(0))
    for i in range(4):
        A("v_pk_mul_f32 %s, %s, v[32:33] op_sel_hi:[1,0]" % (P2(XF + 2 * i), P2(XF + 2 * i)))
    for i in range(4):
        A("v_cvt_pk_bf16_f32 v%d, v%d, v%d" % (8 + i, XF + 2 * i, XF + 2 * i + 1))
    A("ds_write_b128 v3, v[8:11] offset:%d" % L_XN)
    while fill: A(fill.pop(0))
    A("s_lshl_b32 %s, s55, 2" % t2)
    A("s_add_u32 s55, %s, %s" % (t2, sQK))
    A("s_lshl_b32 %s, s55, 8" % t2)
    A("s_add_u32 %s, %s, %s" % (t2, t2, sB1))
    A("v_lshrrev_b32 v4, 2, v0")
    A("v_lshl_add_u32 %s, v4, 4, %s" % (vS1, t2))
    A("s_waitcnt lgkmcnt(0)")
    AF = 40
    for m in range(4):
        A("ds_read_b128 v[%d:%d], %s offset:%d" % (AF + 4 * m, AF + 4 * m + 3, vAX, L_XN + m * 64))
    A("s_add_u32 %s, %s, 0x%x" % (sTAG, sTAG, TAGC))
    A("v_lshlrev_b32 v4, 2, v6")
    A("v_lshrrev_b32 %s, v4, %s" % (vTN, sTAG))
    A("v_and_b32 %s, 15, %s" % (vTN, vTN))
    A("v_lshlrev_b32 v4, 3, v6")
    A("v_lshrrev_b32 %s, v4, %s" % (vTB, sTAG))
    A("v_and_b32 %s, 0xff, %s" % (vTB, vTB))
    A("s_mov_b32 s44, 0")
    A("s_mov_b32 s45, -1")
    if o["b0pos"] == 40: A("s_barrier")
    stamp(3)
    BF = 56
    D0 = 88
    GR = 24
    def gemv(lbase, vm0):
        def rd(m, ct):
            b = BF + 16 * (m & 1)
            for hh in range(2):
                A("ds_read_b64_tr_b16 v[%d:%d], v%d offset:%d" % (b + 4 * ct + 2 * hh, b + 4 * ct + 2 * hh + 1, TRB + ct, lbase + m * 4096 + hh * 512))
        A("s_waitcnt vmcnt(%d)" % (vm0 + 12))
        for ct in range(4): rd(0, ct)
        for m in range(4):
            b = BF + 16 * (m & 1)
            if m < 3: A("s_waitcnt vmcnt(%d)" % (vm0 + 8 - 4 * m))
            if lbase == L_WQ and o["b0pos"] == 41 + m: A("s_barrier")
            for ct in range(4):
                A("s_waitcnt lgkmcnt(%d)" % (6 if m < 3 else 6 - 2 * ct))
                mfma(D0 + 4 * ct, AF + 4 * m, b + 4 * ct, None if m == 0 else D0 + 4 * ct)
                if m < 3: rd(m + 1, ct)
    def pack(maskc, vt, GR, vS1):
        A("s_mov_b32 vcc_lo, 0xffff0000")
        A("s_mov_b32 vcc_hi, 0xffff0000")
        A("s_movk_i32 %s, 0x%x" % (t0, maskc))
        A("s_nop 2")
        A("v_cndmask_b32 v%d, v%d, v%d, vcc" % (GR, D0, D0 + 4))
        A("s_nop 0")
        A("v_cndmask_b32 v%d, v%d, v%d, vcc" % (GR + 1, D0 + 8, D0 + 12))
        A("v_cndmask_b32 v%d, v%d, v%d, s[44:45]" % (GR, GR, GR + 1))
        A("v_and_or_b32 v%d, v%d, %s, %s" % (GR, GR, t0, vt))
        if o["bdefer"]:
            A("s_nop 1")
        else:
            A("v_add_u32 v22, 0x%x, %s" % (MB1B - MB1A, vS1))
            A("s_nop 0")
        for k in range(1, 4):
            A("v_mov_b32_dpp v%d, v%d quad_perm:[%d,%d,%d,%d] %s" % (GR + k, GR, k, k, k, k, DPP))
        A("s_mov_b32 exec_lo, 0x11111111")
        A("s_mov_b32 exec_hi, 0x11111111")
        if o["bonly"]:
            A("global_store_dwordx4 %s, v[%d:%d], %s sc1" % (vS1, GR, GR + 3, sWS))
        else:
            A("global_store_dwordx4 %s, v[%d:%d], %s" % (vS1, GR, GR + 3, sWS))
            if not o["bdefer"]: A("global_store_dwordx4 v22, v[%d:%d], %s sc1" % (GR, GR + 3, sWS))
        A("s_mov_b64 exec, -1")
    gemv(L_WQ, 16 + NW)
    if o["b0pos"] == 45: A("s_barrier")
    pack(0xfff0, vTN, GR, vS1)
    if o["b0pos"] == 47: A("s_barrier")
    stamp(4)
    XG = 28
    if o["vote"]:
        assert o["b0pos"] <= 47 and not o["hlate"]
        A("v_mov_b32 v4, 0")
        A("ds_read_b128 v[112:115], v4 offset:%d" % L_VOTE)
    if o["lastfin"]:
        assert o["vote"]
        A("ds_read_b32 v116, v4 offset:%d" % L_TKT)
    A("s_getreg_b32 %s, hwreg(HW_REG_XCC_ID, 0, 4)" % sXCC)
    A("s_and_b32 %s, %s, 0xff" % (t0, sTAG))
    A("s_lshl_b32 %s, %s, 8" % (t2, sXCC))
    A("s_or_b32 s54, %s, %s" % (t0, t2))
    A("v_mov_b32 v%d, s54" % XG)
    for k in range(1, 4):
        A("s_bfe_u32 %s, %s, 0x%x" % (t0, sTAG, 0x80000 | (8 * k)))
        A("v_mov_b32 v%d, %s" % (XG + k, t0))
    if o["vote"]:
        A("s_waitcnt lgkmcnt(0)")
        A("v_add3_u32 v112, v112, v113, v114")
        A("v_add_u32 v112, v112, v115")
        A("v_lshl_add_u32 v%d, v112, 8, v%d" % (XG + 1, XG + 1))
    if o["lastfin"]:
        A("v_lshl_add_u32 v%d, v116, 8, v%d" % (XG + 2, XG + 2))
    A("s_lshl_b32 %s, %s, 4" % (t2, sJ))
    A("s_add_u32 %s, %s, %s" % (t2, t2, sB1))
    A("s_add_u32 %s, %s, 0x4000" % (t2, t2))
    A("v_mov_b32 v22, %s" % t2)
    A("v_add_u32 v109, 0x%x, v22" % (MB1B - MB1A))
    A("s_mov_b64 exec, 1")
    if o["bonly"]:
        A("global_store_dwordx4 v22, v[%d:%d], %s sc1" % (XG, XG + 3, sWS))
    else:
        A("global_store_dwordx4 v22, v[%d:%d], %s" % (XG, XG + 3, sWS))
        if not o["bdefer"]: A("global_store_dwordx4 v109, v[%d:%d], %s sc1" % (XG, XG + 3, sWS))
    A("s_mov_b64 exec, -1")
    if o["b0pos"] == 50: A("s_barrier")
    A("s_sub_i32 %s, %s, s55" % (t2, sJ))
    A("s_lshl_b32 %s, %s, 8" % (t2, t2))
    A("s_add_u32 %s, %s, 0x2000" % (t2, t2))
    A("v_add_u32 v108, %s, %s" % (t2, vS1))
    A("s_cmp_ge_u32 %s, 4" % sNOFF)
    A("s_cbranch_scc1 L_noff2")
    gemv(L_FF, (2 if o['bonly'] or o['bdefer'] else 4) + NW)
    pack(0xff00, vTB, 104, "v108")
    LB("L_noff2")
    stamp(7)
    if o.get("nosync"):
        A("s_barrier")
        A("s_mov_b32 %s, 0" % sCNT)
        dump_stamps()
        A("s_endpgm")
    A("v_and_b32 v4, 15, v0")
    A("v_lshlrev_b32 v4, 4, v4")
    A("v_lshl_add_u32 v4, v126, 10, v4")
    A("s_add_u32 %s, %s, 2432" % (t0, sB1))
    A("v_add_u32 %s, %s, v4" % (vL1, t0))
    A("v_and_b32 v4, 31, v0")
    A("s_add_u32 %s, %s, 0x4000" % (t0, sB1))
    A("v_lshl_add_u32 %s, v4, 4, %s" % (vL1x, t0))
    A("s_lshl_b32 %s, %s, 1" % (t2, t3))
    A("s_sub_u32 %s, 8, %s" % (sRP, t2))
    A("s_mul_i32 %s, %s, %s" % (t2, sRP, sJ))
    A("s_sub_u32 %s, %s, 1" % (t0, sRP))
    A("v_and_b32 v4, 7, v0")
    A("v_min_u32 v4, %s, v4" % t0)
    A("v_add_u32 %s, %s, v4" % (vF, t2))
    A("v_lshrrev_b32 v4, 6, %s" % vF)
    A("v_bfe_u32 v5, v0, 3, 1")
    A("v_lshl_add_u32 v4, v4, 1, v5")
    A("v_lshl_add_u32 v4, v4, 2, v126")
    A("v_bfe_u32 v5, %s, 2, 4" % vF)
    A("v_lshlrev_b32 v5, 4, v5")
    A("v_lshl_add_u32 v4, v4, 8, v5")
    A("s_add_u32 %s, %s, 0x2000" % (t0, sB1))
    A("v_add_u32 %s, %s, v4" % (vL1a, t0))
    if min(nlv) == 0:
        A("s_cmp_lg_u32 %s, 0" % sRP)
        A("s_cbranch_scc1 L_has_ffn")
        A("v_mov_b32 %s, %s" % (vL1a, vL1x))
        LB("L_has_ffn")
    for k in range(4):
        A("s_bfe_u32 s%d, %s, 0x%x" % (56 + k, sTAG, 0x40000 | (4 * k)))
    A("s_movk_i32 s62, 255")
    A("s_mov_b32 s60, 0x0c0c0400")
    A("s_mov_b32 s61, 0x04000c0c")
    P = 40
    PX, PA_ = 72, 76
    A("s_mov_b32 %s, 0" % sCNT)
    def switch_copy(regs):
        A("s_add_u32 %s, %s, 1" % (sCNT, sCNT))
        if not o["bonly"]:
            if o.get("bskip"):
                A("s_cmp_ge_u32 %s, %d" % (sCNT, o["atries"]))
                A("s_cselect_b32 %s, 0x%x, 0" % (t0, MB1B ^ MB1A))
                for r in regs: A("v_xor_b32 %s, %s, %s" % (r, t0, r))
            else:
                A("s_cmp_eq_u32 %s, %d" % (sCNT, o["atries"]))
                A("s_cselect_b32 %s, 0x%x, 0" % (t0, MB1B - MB1A))
                for r in regs: A("v_add_u32 %s, %s, %s" % (r, t0, r))
        A("s_cmp_gt_u32 %s, %d" % (sCNT, o["spinmax"]))
        A("s_cbranch_scc1 L_end")
    def bytecheck(p, dst):
        A("v_perm_b32 v22, v%d, v%d, s60" % (p + 1, p))
        A("v_perm_b32 v23, v%d, v%d, s61" % (p + 3, p + 2))
        A("v_or_b32 v22, v22, v23")
        A("v_cmp_ne_u32 %s, %s, v22" % (dst, sTAG))
    for _ in range(o.get("dly1", 0)): A("s_nop 15")
    stamp(9)
    if o.get("freeq"): A("s_branch L_got1")
    LB("L_poll1")
    stamp(8)
    for i in range(2):
        for q in range(4):
            r = P + 16 * i + 4 * q
            A("global_load_dwordx4 v[%d:%d], %s, %s offset:%d sc1" % (r, r + 3, vL1, sWS, i * 4096 + q * 256 - 2432))
    A("global_load_dwordx4 v[%d:%d], %s, %s sc1" % (PX, PX + 3, vL1x, sWS))
    A("global_load_dwordx4 v[%d:%d], %s, %s sc1" % (PA_, PA_ + 3, vL1a, sWS))
    switch_copy([vL1, vL1x, vL1a])
    for g_ in range(8):
        A("s_waitcnt vmcnt(%d)" % (9 - g_))
        for k in range(4):
            A("v_xor_b32 v%d, s%d, v%d" % (P + 4 * g_ + k, 56 + k, P + 4 * g_ + k))
        if g_ == 0:
            A("v_or3_b32 v21, v%d, v%d, v%d" % (P, P + 1, P + 2))
            A("v_or_b32 v21, v21, v%d" % (P + 3))
        else:
            A("v_or3_b32 v21, v21, v%d, v%d" % (P + 4 * g_, P + 4 * g_ + 1))
            A("v_or3_b32 v21, v21, v%d, v%d" % (P + 4 * g_ + 2, P + 4 * g_ + 3))
    A("v_and_b32 v21, 15, v21")
    A("s_waitcnt vmcnt(1)")
    bytecheck(PX, "vcc")
    A("v_cmp_ne_u32 s[46:47], 0, v21")
    if o.get("dbgfail"):
        A("s_cmp_eq_u32 %s, 1" % sCNT)
        A("s_cselect_b32 s84, vcc_lo, s84")
        A("s_cselect_b32 s62, s46, s62")
        A("s_cselect_b32 s63, s47, s63")
    A("s_or_b64 vcc, vcc, s[46:47]")
    def majority():
        A("v_cmp_gt_i32 vcc, 0, v%d" % (PX + 1))
        A("v_cmp_lt_i32 s[46:47], %s, v%d" % ("s62", PX + 1))
        A("s_bcnt1_i32_b32 %s, vcc_lo" % t0)
        A("s_bcnt1_i32_b32 %s, s46" % t2)
        A("s_cmp_gt_u32 %s, %s" % (t0, t2))
        A("s_cselect_b32 s55, 0x2000, 0")
        if o.get("voteinv"): A("s_xor_b32 s55, s55, 0x2000")
        if o["stamps"]:
            A("s_bcnt1_i32_b32 s63, vcc_lo")
            A("s_lshl_b32 %s, %s, 8" % (t2, t2))
            A("s_or_b32 s63, s63, %s" % t2)
    def publish_b(tag):
        C("write-through copies for peers that sit on another die")
        A("v_add_u32 v22, 0x%x, %s" % (MB1B - MB1A, vS1))
        A("v_add_u32 v23, 0x%x, v108" % (MB1B - MB1A))
        A("s_mov_b64 exec, 1")
        A("global_store_dwordx4 v109, v[%d:%d], %s sc1" % (XG, XG + 3, sWS))
        A("s_mov_b32 exec_lo, 0x11111111")
        A("s_mov_b32 exec_hi, 0x11111111")
        A("global_store_dwordx4 v22, v[%d:%d], %s sc1" % (GR, GR + 3, sWS))
        A("s_cmp_ge_u32 %s, 4" % sNOFF)
        A("s_cbranch_scc1 L_pb_%s" % tag)
        A("global_store_dwordx4 v23, v[104:107], %s sc1" % sWS)
        LB("L_pb_%s" % tag)
        A("s_mov_b64 exec, -1")
    if o["bdefer"]:
        A("s_cbranch_vccz L_got1")
        A("s_cmp_lg_u32 %s, %d" % (sCNT, o["bdefer"]))
        A("s_cbranch_scc1 L_poll1")
        publish_b("a")
        A("s_branch L_poll1")
        LB("L_got1")
    else:
        A("s_cbranch_vccnz L_poll1")
    stamp(5)
    for i in range(2):
        b = P + 16 * i
        for k in range(4):
            A("v_add_f32 v%d, v%d, v%d" % (b + k, b + k, b + 4 + k))
            A("v_add_f32 v%d, v%d, v%d" % (b + 8 + k, b + 8 + k, b + 12 + k))
        for k in range(4):
            A("v_add_f32 v%d, v%d, v%d" % (b + k, b + k, b + 8 + k))
        A("v_cvt_pk_bf16_f32 v%d, v%d, v%d" % (b, b, b + 1))
        A("v_cvt_pk_bf16_f32 v%d, v%d, v%d" % (b + 1, b + 2, b + 3))
    A("v_lshlrev_b32 v22, 3, v0")
    A("ds_write_b64 v22, v[%d:%d] offset:%d" % (P, P + 1, L_Q))
    A("ds_write_b64 v22, v[%d:%d] offset:%d" % (P + 16, P + 17, L_Q + 512))
    A("v_cmp_ne_u32 vcc, s54, v%d" % PX)
    A("s_cmp_eq_u64 vcc, 0")
    A("s_cselect_b32 %s, 1, 0" % sFAST)
    if o.get("forceslow"): A("s_mov_b32 %s, 0" % sFAST)
    if o.get("freeq"): A("s_mov_b32 %s, 1" % sFAST)
    if o["lastfin"]:
        A("v_readfirstlane_b32 %s, v%d" % (t0, PX + 2))
        if o["lastfin"] == 1:
            A("s_not_b32 %s, %s" % (t2, sTAG))
            A("v_mov_b32 v23, %s" % t2)
            A("v_lshlrev_b32 v22, 2, v0")
        A("s_lshr_b32 %s, %s, 8" % (t0, t0))
        A("s_cmp_eq_u32 %s, 7" % t0)
        A("s_cselect_b32 %s, 2, 0" % t0)
        if o.get("fixfin") is not None:
            A("s_cmp_eq_u32 %s, %d" % (sH, o["fixfin"]))
            A("s_cselect_b32 %s, 2, 0" % t0)
        A("s_or_b32 %s, %s, %s" % (sFAST, sFAST, t0))
        if o["lastfin"] == 1: A("ds_write_b32 v22, v23 offset:%d" % L_FIN)
        else:
            majority()
            A("s_or_b32 %s, %s, s55" % (sFAST, sFAST))
    A("v_mov_b32 v26, %s" % sFAST)
    A("v_mov_b32 v27, %s" % sTAG)
    A("v_mov_b32 v22, %d" % L_FLAG)
    A("ds_write_b64 v22, v[26:27]")
    if o["auxearly"] and not o.get("freeq"):
        A("s_waitcnt vmcnt(0)")
        bytecheck(PA_, "vcc")
        A("s_cbranch_vccz L_aux_b1")
        A("global_load_dwordx4 v[%d:%d], %s, %s sc1" % (PA_, PA_ + 3, vL1a, sWS))
        LB("L_aux_b1")
    A("s_waitcnt lgkmcnt(0)")
    A("s_barrier")
    if o["bdefer"]:
        A("s_cmp_gt_u32 %s, %d" % (sCNT, o["bdefer"]))
        A("s_cbranch_scc1 L_b_done")
        A("s_bitcmp1_b32 %s, 0" % sFAST if o.get("bskip") else "s_nop 0")
        if o.get("bskip"): A("s_cbranch_scc1 L_b_done")
        publish_b("b")
        LB("L_b_done")
    if o["vote"] and o["lastfin"] < 2: majority()
    if o["hlate"]:
        A("s_setprio %d" % o.get("hprio", 0))
        A("s_barrier")
        A("s_barrier")
    A("s_branch %s" % ("L_chk_aux" if not o.get("freeq") else "L_poll_aux" if o["freeq"] == 2 else "L_auxdone"))
    LB("L_poll_aux")
    A("global_load_dwordx4 v[%d:%d], %s, %s sc1" % (PA_, PA_ + 3, vL1a, sWS))
    switch_copy([vL1a])
    LB("L_chk_aux")
    A("s_waitcnt vmcnt(0)")
    bytecheck(PA_, "vcc")
    A("s_cbranch_vccnz L_poll_aux")
    if o.get("freeq"): LB("L_auxdone")
    A("s_movk_i32 %s, 0xff00" % t0)
    A("v_and_b32 v23, 1, %s" % vF)
    A("v_cmp_eq_u32 vcc, 0, v23")
    A("v_and_b32 v23, 2, %s" % vF)
    A("v_cmp_eq_u32 s[46:47], 0, v23")
    A("v_cndmask_b32 v24, v%d, v%d, vcc" % (PA_ + 1, PA_))
    A("v_cndmask_b32 v25, v%d, v%d, vcc" % (PA_ + 3, PA_ + 2))
    A("v_cndmask_b32 v24, v25, v24, s[46:47]")
    A("v_and_b32 v24, %s, v24" % t0)
    allred("v24", "v23", "v_add_f32", 16)
    allred("v24", "v23", "v_add_f32", 32)
    A("v_cvt_pk_bf16_f32 v24, v24, v24")
    A("v_and_b32 v24, %s, v24" % t1)
    A("v_mul_f32 v25, 0x%x, v24" % (LOG2E | 0x80000000))
    A("v_exp_f32 v25, v25")
    A("v_mov_b32_dpp v26, v24 row_ror:8 %s" % DPP)
    A("v_add_f32 v25, 1.0, v25")
    A("v_rcp_f32 v25, v25")
    A("v_cmp_le_u32 vcc, %s, v0" % sRP)
    A("v_mul_f32 v25, v24, v25")
    A("v_cvt_pk_bf16_f32 v25, v25, v25")
    A("v_and_b32 v25, %s, v25" % t1)
    A("v_mul_f32 v25, v25, v26")
    A("v_cvt_pk_bf16_f32 v25, v25, v25")
    A("v_cndmask_b32 v25, v25, 0, vcc")
    A("v_lshlrev_b32 v22, 2, v0")
    if o["vote"] and not o["lastfin"]:
        A("v_mov_b32 v26, s55")
        A("v_mov_b32 v27, 0")
        A("ds_write_b32 v27, v26 offset:%d" % (L_FLAG + 8))
    A("s_mov_b64 exec, 0xff")
    A("ds_write_b32 v22, v25 offset:%d" % L_H)
    A("s_waitcnt lgkmcnt(0)")
    stamp(6)
    if o["lastfin"] == 1:
        A("s_bitcmp1_b32 %s, 1" % sFAST)
        A("s_cbranch_scc1 L_ufin")
    if not o.get("nodumpU"): dump_stamps()
    A("s_endpgm")
    def unit_final():
        LB("L_ufin")
        C("last group: lane = (wave l>>4, pair (l>>3)&1, group l&7) gathers the eight groups' sums of this workgroup's 16 columns")
        A("s_mov_b64 exec, -1")
        A("s_setprio %d" % o.get("uprio", 0))
        vA3, vLF, vXO, vXV = "v4", "v5", "v6", "v7"
        FP, FS = 8, 40
        A("v_lshrrev_b32 %s, 3, v0" % vLF)
        A("s_lshl_b32 %s, %s, 5" % (t0, sJ))
        A("v_lshl_add_u32 %s, %s, 2, %s" % (vXO, vLF, t0))
        A("global_load_dword %s, %s, %s" % (vXV, vXO, sX))
        A("v_lshlrev_b32 %s, 4, %s" % (vLF, vLF))
        A("s_lshr_b32 %s, %s, 1" % (t0, sJ))
        A("s_lshl_b32 %s, %s, 14" % (t0, t0))
        A("s_and_b32 %s, %s, 1" % (t2, sJ))
        A("s_lshl_b32 %s, %s, 12" % (t2, t2))
        A("s_add_u32 %s, %s, %s" % (t0, t0, t2))
        A("s_add_u32 %s, %s, s55" % (t0, t0))
        A("s_add_u32 %s, %s, 0x%x" % (t0, t0, MB3))
        A("v_and_b32 v22, 7, v0")
        A("v_lshl_add_u32 %s, v22, 9, %s" % (vA3, t0))
        A("v_lshlrev_b32 v22, 7, v126")
        A("v_and_b32 v23, 16, %s" % vLF)
        A("v_add3_u32 %s, %s, v22, v23" % (vA3, vA3))
        A("s_lshl_b32 s44, 0x01010101, %s" % sH)
        A("s_mov_b32 s45, s44")
        A("s_not_b64 s[46:47], s[44:45]")
        A("s_mov_b32 %s, %d" % (sCNT, o["spinmax"]))
        A("s_barrier")
        A("s_barrier")
        A("s_waitcnt vmcnt(0)")
        A("v_lshlrev_b32 v22, 16, %s" % vXV)
        A("v_and_b32 v23, %s, %s" % (t1, vXV))
        def spf():
            C("pull the other groups' lines into this die's L2 over the scalar path (the vector path returns in order and is busy with the group's own hand-off)")
            for k in range(1, 8):
                for w_ in range(4):
                    A("s_load_dword s%d, %s, s%d offset:%d glc" % (6 + (4 * k + w_) % 16, sWS, 48 + k, 128 * w_))
        if o.get("spf"):
            for k in range(1, 8):
                A("s_xor_b32 s%d, %s, %d" % (48 + k, sH, k))
                A("s_lshl_b32 s%d, s%d, 9" % (48 + k, 48 + k))
                A("s_add_u32 s%d, s%d, %s" % (48 + k, 48 + k, t0))
        if o.get("spf", 0) & 2: spf()
        if o["reuse"]: A("s_barrier")
        if o.get("spf", 0) & 1: spf()
        NP = o["npu"]
        def own_read():
            A("s_mov_b64 exec, s[44:45]")
            A("ds_read_b128 v[%d:%d], %s offset:%d" % (FP, FP + 3, vLF, L_FIN))
        if o.get("uwait"):
            A("s_mov_b64 exec, s[44:45]")
            LB("L_uw")
            A("ds_read_b128 v[%d:%d], %s offset:%d" % (FP, FP + 3, vLF, L_FIN))
            A("s_sub_u32 %s, %s, 1" % (sCNT, sCNT))
            A("s_cbranch_scc1 L_end")
            A("s_waitcnt lgkmcnt(0)")
            A("v_cmp_ne_u32 vcc, %s, v%d" % (sTAG, FP + 3))
            if o["uwait"] == 1:
                A("s_cbranch_vccnz L_uw")
            else:
                A("s_cmp_eq_u64 vcc, s[44:45]")
                A("s_cbranch_scc1 L_uw")
        for k in range(NP):
            if k:
                for _ in range(o["stag"]):
                    own_read(); A("s_waitcnt lgkmcnt(0)")
            A("s_mov_b64 exec, s[46:47]")
            A("global_load_dwordx4 v[%d:%d], %s, %s sc1" % (FS + 4 * k, FS + 4 * k + 3, vA3, sWS))
        LB("L_upoll")
        for k in range(NP):
            own_read()
            A("s_mov_b64 exec, s[46:47]")
            A("s_waitcnt vmcnt(%d) lgkmcnt(0)" % (NP - 1))
            A("v_cmp_ne_u32 vcc, %s, v%d" % (sTAG, FS + 4 * k + 3))
            A("v_mov_b32 v%d, v%d" % (FP, FS + 4 * k))
            A("v_mov_b32 v%d, v%d" % (FP + 1, FS + 4 * k + 1))
            A("s_and_b64 s[46:47], exec, vcc")
            A("s_cbranch_scc0 L_ugot")
            A("s_mov_b64 exec, s[46:47]")
            A("global_load_dwordx4 v[%d:%d], %s, %s sc1" % (FS + 4 * k, FS + 4 * k + 3, vA3, sWS))
        A("s_sub_u32 %s, %s, 1" % (sCNT, sCNT))
        A("s_cbranch_scc0 L_upoll")
        A("s_endpgm")
        LB("L_uown")
        A("ds_read_b128 v[%d:%d], %s offset:%d" % (FP, FP + 3, vLF, L_FIN))
        A("s_sub_u32 %s, %s, 1" % (sCNT, sCNT))
        A("s_cbranch_scc1 L_end")
        A("s_waitcnt lgkmcnt(0)")
        LB("L_ugot")
        A("s_mov_b64 exec, s[44:45]")
        A("v_cmp_ne_u32 vcc, %s, v%d" % (sTAG, FP + 3))
        A("s_cbranch_vccnz L_uown")
        stamp(10)
        A("s_mov_b64 exec, -1")
        x_, y_ = "v%d" % FP, "v%d" % (FP + 1)
        for pat in ("quad_perm:[1,0,3,2]", "quad_perm:[2,3,0,1]", "row_half_mirror"):
            A("v_add_f32_dpp %s, %s, %s %s %s" % (x_, x_, x_, pat, DPP))
            A("v_add_f32_dpp %s, %s, %s %s %s" % (y_, y_, y_, pat, DPP))
            if pat != "row_half_mirror": A("s_nop 0")
        A("s_mov_b32 s44, 0x01010101")
        A("v_add_f32 %s, %s, v22" % (x_, x_))
        A("v_add_f32 %s, %s, v23" % (y_, y_))
        A("s_mov_b32 s45, s44")
        A("v_cvt_pk_bf16_f32 %s, %s, %s" % (x_, x_, y_))
        A("s_mov_b64 exec, s[44:45]")
        A("global_store_dword %s, %s, %s" % (vXO, x_, sOUT))
        A("s_cmp_lg_u32 %s, 0" % sJ)
        A("s_cbranch_scc1 L_udone")
        C("the next launch must not mistake this launch's hand-off words for its own")
        A("s_mov_b64 exec, 1")
        A("v_mov_b32 v22, 0")
        A("v_mov_b32 v23, %s" % sTAG)
        A("global_store_dword v22, v23, %s" % sWS)
        LB("L_udone")
        role[0] = "U"
        amp_end("u")
        dump_stamps()
        A("s_endpgm")

    role[0] = "A"
    if o.get("alignA"): L.append(".p2align %d" % o["alignA"])
    for _ in range(o.get("shiftA", 0)): A("s_nop 0")
    LB("L_attn")
    vK0, vK1, vV0, vV1 = "v2", "v3", "v4", "v5"
    vWO0, vWO1, vDN0, vDN1, vXF, vXP = "v6", "v7", "v8", "v9", "v10", "v1"
    vS2, vL2, vS25, vL25, vL3, vS3 = "v11", "v12", "v13", "v14", "v15", "v150"
    KR, VR, WOR, DNR, QR, SR, PA, MK = 16, 48, 80, 96, 104, 120, 128, 146
    vM0, vM1, vQA, vOW, vOR, vMLW, vHA = "v151", "v152", "v153", "v154", "v155", "v156", "v157"
    vN, vG, vN16, vP = "v120", "v121", "v122", "v123"
    u0, u1 = "v124", "v125"
    s4JW = "s41"
    C("K and V: load i = 1 KB block (4 keys) number 128 i + 4j + w of the head's window; K goes through LDS")
    A("s_lshl_b32 %s, %s, 24" % (t0, sH))
    A("s_lshl_b32 %s, %s, 2" % (s4JW, sJ))
    A("s_add_u32 %s, %s, %s" % (s4JW, s4JW, sW))
    if o["lastfin"]:
        C("arrival order of the eight groups (one counter in the zeroed debug words)")
        A("s_cmp_lg_u32 %s, 0" % s4JW)
        A("s_cbranch_scc1 L_notkt0")
        A("v_mov_b32 v158, 0")
        A("v_mov_b32 v159, 1")
        A("s_mov_b64 exec, 1")
        A("global_atomic_add v159, v158, v159, s[24:25] sc0 sc1")
        A("s_mov_b64 exec, -1")
        LB("L_notkt0")
    A("s_lshl_b32 %s, %s, 10" % (t2, s4JW))
    A("s_add_u32 %s, %s, %s" % (t0, t0, t2))
    A("s_add_u32 %s, %s, 0xF00000" % (t0, t0))
    A("v_and_b32 %s, 15, v0" % vN)
    A("v_lshrrev_b32 %s, 4, v0" % vG)
    A("v_lshlrev_b32 %s, 4, %s" % (vN16, vN))
    A("v_lshl_add_u32 %s, v0, 4, %s" % (vV0, t0))
    A("v_lshlrev_b32 %s, 6, %s" % (u0, vG))
    A("v_xor_b32 %s, %s, %s" % (vK0, u0, vV0))
    A("s_lshl_b32 %s, %s, 13" % (t1, sW))
    A("s_add_u32 m0, %s, %d" % (t1, L_K))
    A("s_mov_b32 s42, 0x20000")
    A("s_movk_i32 s43, 1024")
    if not o["vote"]: A("s_waitcnt lgkmcnt(0)")
    if o.get("tlbw") == 1:
        A("s_cmp_lg_u32 %s, 0" % sW)
        A("s_cbranch_scc1 L_notlb")
        tlbwarm()
        A("s_waitcnt vmcnt(0)")
        LB("L_notlb")
    if o["vote"]: A("s_waitcnt lgkmcnt(1)")
    if o["lastfin"]:
        A("s_cmp_lg_u32 %s, 0" % s4JW)
        A("s_cbranch_scc1 L_notkt")
        A("s_mov_b64 exec, 1")
        A("s_waitcnt vmcnt(0)")
        A("ds_write_b32 v158, v159 offset:%d" % L_TKT)
        A("s_mov_b64 exec, -1")
        A("s_waitcnt lgkmcnt(0)")
        LB("L_notkt")
    if o["b0pos"]: A("s_barrier")
    stamp(1)
    issued = [0]
    def load(w, txt):
        if issued[0] >= w:
            A("s_waitcnt vmcnt(%d)" % (w - 1))
        A(txt); issued[0] += 1
    def rot(i): return (i * o["rotm"]) & 127
    def kload(i):
        load(o["WK"], "global_load_lds_dwordx4 %s, %s %s" % (vK0, sK, nt))
        if i < 7:
            A("s_add_u32 m0, m0, s43")
            A("v_xor_b32 %s, %d, %s" % (vK0, (((i & 3) ^ ((i + 1) & 3)) << 4) | ((rot(i) ^ rot(i + 1)) << 10), vK0))
            A("v_add_u32 %s, s42, %s" % (vK0, vK0))
    nk_first = min(o["WK"], 8)
    if o.get("bal"):
        A("v_and_b32 v158, 7, v0")
        A("v_lshlrev_b32 v158, 2, v158")
        A("global_load_dword v159, v158, s[24:25] sc1")
    for i in range(nk_first): kload(i)
    C("address and mask setup in the shadow of the K loads")
    if o["stouch"]: A("s_load_dword s63, %s, 0" % sOUT)
    A("s_lshl_b32 %s, %s, 19" % (t0, sH))
    A("s_lshl_b32 %s, %s, 14" % (t2, sJ))
    A("s_add_u32 %s, %s, %s" % (t0, t0, t2))
    A("s_lshl_b32 %s, %s, 8" % (t3, sW))
    A("s_add_u32 %s, %s, %s" % (t0, t0, t3))
    A("s_add_u32 %s, %s, 0x1000" % (t0, t0))
    A("v_lshl_add_u32 %s, %s, 10, %s" % (vDN0, vG, vN16))
    A("v_add_u32 %s, %s, %s" % (vWO0, t0, vDN0))
    A("v_add_u32 %s, 0x2000, %s" % (vWO1, vWO0))
    ffn_share(t0, t2)
    A("s_lshl_b32 %s, s3, 6" % t0)
    A("s_lshl_b32 %s, %s, 1" % (t2, t2))
    A("s_sub_u32 %s, 8, %s" % (t1, t2))
    A("s_mul_i32 %s, %s, %s" % (t2, t1, sJ))
    A("s_add_u32 %s, %s, %s" % (t0, t0, t2))
    A("s_lshl_b32 %s, %s, 10" % (t0, t0))
    A("s_add_u32 %s, %s, %s" % (t0, t0, t3))
    A("s_sub_u32 %s, %s, 1" % (t1, t1))
    A("v_add_u32 %s, %s, %s" % (u1, t0, vN16))
    A("v_min_u32 %s, %s, %s" % (vDN0, t1, vG))
    A("v_lshl_add_u32 %s, %s, 10, %s" % (vDN0, vDN0, u1))
    A("v_add_u32 %s, 4, %s" % (vDN1, vG))
    A("v_min_u32 %s, %s, %s" % (vDN1, t1, vDN1))
    A("v_lshl_add_u32 %s, %s, 10, %s" % (vDN1, vDN1, u1))
    A("v_and_b32 %s, 1, v0" % vP)
    A("v_and_b32 %s, 1, %s" % (u0, vG))
    if o["g25"]:
        A("s_lshl_b32 %s, %s, 5" % (t2, sJ))
        A("v_bfe_u32 %s, v0, 3, 2" % u1)
        A("v_lshl_add_u32 %s, %s, 3, %s" % (vXF, u1, t2))
        A("v_lshrrev_b32 %s, 5, v0" % u1)
        A("v_lshl_add_u32 %s, %s, 2, %s" % (vXF, u1, vXF))
    else:
        A("s_lshl_b32 %s, %s, 3" % (t2, s4JW))
        A("v_lshl_add_u32 %s, %s, 2, %s" % (vXF, u0, t2))
    RP = o["rp"]
    M25 = 0 if o["reuse"] else MB25 - MB2
    lay = 3 if o["reuse"] else o.get("lay25", 0)
    A("s_mul_i32 %s, %s, %d" % (t0, sH, 32 * RP))
    A("s_add_u32 %s, %s, 0x%x" % (t0, t0, MB2))
    A("s_mul_i32 %s, %s, %d" % (t1, sJ, RP))
    A("s_add_u32 %s, %s, %s" % (t1, t1, t0))
    A("s_mul_i32 %s, %s, %d" % (t2, sW, 8 * RP))
    A("s_lshl_b32 %s, %s, 6" % (t3, sJ))
    A("s_add_u32 %s, %s, %s" % (t0, t0, t3))
    A("s_add_u32 %s, %s, %s" % (t2, t2, t0))
    A("v_lshrrev_b32 %s, 3, v0" % vS2)
    A("v_mul_u32_u24 %s, %d, %s" % (vS2, RP, vS2))
    A("v_bfe_u32 %s, v0, 1, 2" % u1)
    A("v_lshlrev_b32 %s, 4, %s" % (u1, u1))
    A("v_add3_u32 %s, %s, %s, %s" % (vS2, vS2, u1, t2))
    A("v_lshl_add_u32 %s, v0, 4, %s" % (vL2, t1))
    A("s_lshl_b32 %s, %s, 4" % (t3, sW))
    A("v_and_b32 %s, 31, v0" % u1)
    if lay == 0:
        A("s_add_u32 %s, %s, %s" % (t1, t1, t3))
        A("s_add_u32 %s, %s, 0x%x" % (t1, t1, M25))
        A("v_lshl_add_u32 %s, %s, 6, %s" % (vL25, u1, t1))
        A("v_lshrrev_b32 %s, 1, %s" % (vS25, vN))
        A("v_mul_u32_u24 %s, %d, %s" % (vS25, RP, vS25))
        A("v_lshl_add_u32 %s, %s, 5, %s" % (vS25, vP, vS25))
        A("v_lshl_add_u32 %s, %s, 4, %s" % (vS25, u0, vS25))
        A("s_add_u32 %s, %s, 0x%x" % (t2, t2, M25))
        A("v_add_u32 %s, %s, %s" % (vS25, t2, vS25))
    else:
        if not o["g25"]: A("s_add_u32 %s, %s, %s" % (t0, t0, t3))
        if M25: A("s_add_u32 %s, %s, 0x%x" % (t0, t0, M25))
        if o["g25"]:
            A("v_lshrrev_b32 %s, 2, v0" % vL25)
            A("v_mul_u32_u24 %s, %d, %s" % (vL25, RP, vL25))
            A("v_and_b32 %s, 3, v0" % u1)
            A("v_lshlrev_b32 %s, 4, %s" % (u1, u1))
            A("v_add3_u32 %s, %s, %s, %s" % (vL25, vL25, u1, t0))
            A("v_add_u32 v164, %d, %s" % (16 * RP, vL25))
        else:
            A("v_mul_u32_u24 %s, %d, %s" % (vL25, RP, u1))
            A("v_add_u32 %s, %s, %s" % (vL25, t0, vL25))
        A("s_lshl_b32 %s, %s, 9" % (t3, sW))
        A("s_add_u32 %s, %s, %s" % (t1, t1, t3))
        if M25: A("s_add_u32 %s, %s, 0x%x" % (t1, t1, M25))
        A("v_lshl_add_u32 %s, %s, 5, %s" % (vS25, vN, t1))
        A("v_lshl_add_u32 %s, %s, 4, %s" % (vS25, u0, vS25))
    A("s_lshr_b32 %s, %s, 1" % (t0, sJ))
    A("s_lshl_b32 %s, %s, 14" % (t0, t0))
    A("s_and_b32 %s, %s, 1" % (t3, sJ))
    A("s_lshl_b32 %s, %s, 12" % (t3, t3))
    A("s_add_u32 %s, %s, %s" % (t0, t0, t3))
    if o["g25"]:
        A("s_add_u32 %s, %s, 0x%x" % (t0, t0, MB3))
        A("v_lshrrev_b32 %s, 3, v0" % u0)
        A("v_lshl_add_u32 %s, %s, 4, %s" % (u0, u0, t0))
        A("v_and_b32 %s, 7, v0" % vL3)
        A("v_lshl_add_u32 %s, %s, 9, %s" % (vL3, vL3, u0))
        A("s_lshl_b32 %s, %s, 9" % (t3, sH))
        A("s_add_u32 %s, %s, %s" % (t0, t0, t3))
        A("v_lshrrev_b32 %s, 5, v0" % u0)
        A("v_lshl_add_u32 %s, %s, 6, %s" % (u0, u0, u1))
        A("v_bfe_u32 %s, v0, 2, 1" % u1)
        A("v_lshlrev_b32 %s, 13, %s" % (u1, u1))
        A("v_add3_u32 %s, %s, %s, %s" % (vS3, u0, u1, t0))
        if o["pt3"]:
            A("s_and_b32 %s, %s, 1" % (t3, sW))
            A("s_lshl_b32 %s, %s, 6" % (t3, t3))
            A("s_add_u32 s3, %s, %s" % (t0, t3))
            A("s_lshr_b32 %s, %s, 1" % (t3, sW))
            A("s_lshl_b32 %s, %s, 13" % (t3, t3))
            A("s_add_u32 s3, s3, %s" % t3)
    else:
        A("s_lshl_b32 %s, %s, 7" % (t3, sW))
        A("s_add_u32 %s, %s, %s" % (t0, t0, t3))
        A("s_add_u32 %s, %s, 0x%x" % (t0, t0, MB3))
        if o["lastfin"] == 1:
            A("s_lshl_b32 %s, %s, 5" % (t3, sW))
            A("v_lshl_add_u32 %s, %s, 4, %s" % (vL3, u0, t3))
        if o["lastfin"] >= 2:
            A("s_lshl_b32 s3, %s, 9" % sH)
            A("s_add_u32 s3, s3, %s" % t0)
        A("v_lshl_add_u32 %s, %s, 4, %s" % (u0, u0, t0))
        if o["lastfin"] != 1:
            A("v_and_b32 %s, 7, v0" % u1)
            A("v_lshl_add_u32 %s, %s, 9, %s" % (vL3, u1, u0))
        A("s_lshl_b32 %s, %s, 9" % (t3, sH))
        A("v_lshl_add_u32 %s, %s, 13, %s" % (u0, vP, u0))
        A("v_add_u32 %s, %s, %s" % (vS3, t3, u0))
    if o.get("mockx"):
        A("s_lshr_b32 %s, %s, 1" % (t0, sJ))
        A("s_lshl_b32 %s, %s, 14" % (t0, t0))
        A("s_and_b32 %s, %s, 1" % (t3, sJ))
        A("s_lshl_b32 %s, %s, 12" % (t3, t3))
        A("s_add_u32 %s, %s, %s" % (t0, t0, t3))
        A("s_lshl_b32 %s, %s, 9" % (t3, sH))
        A("s_add_u32 %s, %s, %s" % (t0, t0, t3))
        A("s_and_b32 %s, %s, 1" % (t3, sW))
        A("s_lshl_b32 %s, %s, 13" % (t3, t3))
        A("s_add_u32 %s, %s, %s" % (t0, t0, t3))
        A("s_add_u32 %s, %s, 0x%x" % (t0, t0, MB3))
        A("v_and_b32 %s, 3, v0" % u0)
        A("v_lshl_add_u32 %s, %s, 4, %s" % (vS3, u0, t0))
        A("s_and_b32 %s, %s, 3" % (t0, sJ))
        A("s_lshl_b32 %s, %s, 2" % (t0, t0))
        A("s_add_u32 %s, %s, %s" % (t0, t0, sW))
        A("s_lshl_b32 %s, %s, 14" % (t0, t0))
        A("s_lshr_b32 %s, %s, 2" % (t3, sJ))
        A("s_lshl_b32 %s, %s, 9" % (t3, t3))
        A("s_add_u32 %s, %s, %s" % (t0, t0, t3))
        A("s_add_u32 %s, %s, 0x%x" % (t0, t0, MB3))
        A("v_lshl_add_u32 %s, %s, 4, %s" % (vL3, u0, t0))
        A("v_bfe_u32 %s, v0, 2, 1" % u0)
        A("v_lshl_add_u32 %s, %s, 12, %s" % (vL3, u0, vL3))
    A("v_lshlrev_b32 %s, 4, %s" % (u1, vP))
    def pretouch2():
        C("pull this workgroup's incoming hand-off lines into L2 (waves 0,1: hop 2; waves 2,3: hop 2.5)")
        if o["reuse"]:
            A("s_lshl_b32 %s, %s, 9" % (t0, sW))
            A("v_lshlrev_b32 v158, 3, v0")
            A("v_sub_u32 v158, %s, v158" % vL2)
            A("v_add_u32 v158, %s, v158" % t0)
            if o["pt3"]: A("v_writelane_b32 v158, s3, 63")
        else:
            A("s_and_b32 %s, %s, 1" % (t0, sW))
            A("s_lshl_b32 %s, %s, 10" % (t0, t0))
            A("s_lshr_b32 %s, %s, 1" % (t3, sW))
            A("s_mul_i32 %s, %s, 0x%x" % (t3, t3, MB25 - MB2))
            A("s_add_u32 %s, %s, %s" % (t0, t0, t3))
            A("v_add_u32 v158, %s, %s" % (t0, vL2))
        if o["pretouch"] in ("r", "k"):
            A("global_load_dword v159, v158, %s sc1" % sWS); issued[0] += 1
        if o.get("otouch2", 0) & 1:
            A("global_load_dword v166, %s, %s" % (vXF, sOUT)); issued[0] += 1
        if o.get("otouch2", 0) & 2:
            A("global_load_dword v165, %s, %s sc1" % (vS3, sWS)); issued[0] += 1
    if o["pretouch"] == "r" or isinstance(o["pretouch"], int): pretouch2()
    A("v_mov_b32 %s, 0xffff" % u0)
    A("v_lshlrev_b32 %s, %s, %s" % (u0, u1, u0))
    A("v_and_b32 %s, 2, v0" % u1)
    A("v_cmp_eq_u32 vcc, 0, %s" % u1)
    A("v_lshrrev_b32 %s, 1, %s" % (u1, vN))
    A("v_lshlrev_b32 %s, 2, %s" % (vHA, vG))
    SEL = 160
    A("v_mov_b32 v%d, 0x0c0c0c0c" % (SEL + 2))
    A("v_mov_b32 v%d, 0x01000100" % (SEL + 3))
    A("v_bfi_b32 v%d, %s, v%d, v%d" % (SEL + 3, u0, SEL + 3, SEL + 2))
    A("v_cndmask_b32 v%d, v%d, v%d, vcc" % (SEL, SEL + 2, SEL + 3))
    A("v_cndmask_b32 v%d, v%d, v%d, vcc" % (SEL + 1, SEL + 3, SEL + 2))
    A("v_and_b32 v%d, 0x02020202, %s" % (SEL + 3, u0))
    A("v_cndmask_b32 v%d, 0, v%d, vcc" % (SEL + 2, SEL + 3))
    A("v_cndmask_b32 v%d, v%d, 0, vcc" % (SEL + 3, SEL + 3))
    A("v_add_u32 v%d, v%d, v%d" % (SEL + 2, SEL + 2, SEL))
    A("v_add_u32 v%d, v%d, v%d" % (SEL + 3, SEL + 3, SEL + 1))
    for r in range(4):
        A("v_cmp_eq_u32 s[%d:%d], %d, %s" % (44 + 2 * r, 45 + 2 * r, r, u1))
    A("v_lshrrev_b32 %s, 2, %s" % (vMLW, vN))
    A("v_lshlrev_b32 %s, 4, %s" % (u1, vG))
    A("v_lshl_add_u32 %s, %s, 8, %s" % (vQA, vMLW, u1))
    for r in range(4):
        A("v_cndmask_b32 v%d, 0, %s, s[%d:%d]" % (MK + r, u0, 44 + 2 * r, 45 + 2 * r))
    A("s_lshl_b32 %s, %s, 11" % (t0, sW))
    A("v_lshl_add_u32 %s, %s, 9, %s" % (vOW, vG, vN16))
    A("v_add_u32 %s, %s, %s" % (vOW, t0, vOW))
    A("s_lshl_b32 %s, %s, 3" % (t0, sW))
    A("v_lshl_add_u32 %s, %s, 5, %s" % (vMLW, vMLW, t0))
    A("v_bfe_u32 %s, v0, 1, 1" % u0)
    A("v_lshrrev_b32 %s, 2, v0" % u1)
    A("v_lshlrev_b32 %s, 4, %s" % (u1, u1))
    A("v_lshl_add_u32 %s, %s, 8, %s" % (u1, u0, u1))
    A("v_lshl_add_u32 %s, %s, 3, %s" % (u1, vP, u1))
    A("s_lshl_b32 %s, %s, 9" % (t0, sW))
    A("v_add_u32 %s, %s, %s" % (vOR, t0, u1))
    KA = 140
    A("v_and_b32 %s, 3, v0" % u0)
    A("v_lshrrev_b32 %s, 2, %s" % (u1, vN))
    A("v_lshlrev_b32 %s, 8, %s" % (u1, u1))
    A("v_lshl_add_u32 %s, %s, 10, %s" % (u0, u0, u1))
    A("v_xor_b32 %s, %s, %s" % (u1, vG, vN))
    A("v_lshl_add_u32 %s, %s, 4, %s" % (u0, u1, u0))
    A("s_lshl_b32 %s, %s, 13" % (t1, sW))
    A("v_add_u32 v%d, %s, %s" % (KA, t1, u0))
    for s_ in range(1, 4):
        A("v_xor_b32 v%d, %d, v%d" % (KA + s_, s_ << 6, KA))
    if o.get("cheap", 0) & 1:
        A("v_and_b32 %s, 0x3fff, %s" % (vWO0, vWO0)); A("v_or_b32 %s, 0x1000, %s" % (vWO0, vWO0)); A("v_mov_b32 %s, %s" % (vWO1, vWO0))
    if o.get("cheap", 0) & 2:
        A("v_and_b32 %s, 0x3fff, %s" % (vDN0, vDN0)); A("v_mov_b32 %s, %s" % (vDN1, vDN0))
    if o.get("cheap", 0) & 4:
        A("v_and_b32 %s, 0x3fff, %s" % (vV0, vV0)); A("s_mov_b32 s63, 0")
    for _ in range(o.get("delayA", 0)): A("s_nop 3")
    def issue_rest(WK_, W_):
        o_wk = o["WK"]; o["WK"] = WK_
        for i in range(nk_first, 8): kload(i)
        o["WK"] = o_wk
        if o["pretouch"] == "k": pretouch2()
        if o.get("xearly"):
            A("global_load_dword %s, %s, %s" % (vXP, vXF, sX)); issued[0] += 1
        for i in range(8):
            r = VR + i * 4
            load(W_, "global_load_dwordx4 v[%d:%d], %s, %s %s" % (r, r + 3, vV0, sV, nt))
            if i < 7:
                if rot(i) ^ rot(i + 1): A("v_xor_b32 %s, %d, %s" % (vV0, (rot(i) ^ rot(i + 1)) << 10, vV0))
                A("v_add_u32 %s, %s, %s" % (vV0, "s63" if o.get("cheap", 0) & 4 and i % o.get("cheapm", 1) == 0 else "s42", vV0))
    if o.get("bal"):
        C("a group that started well after others asks memory with a wider window")
        A("s_waitcnt vmcnt(%d)" % issued[0])
        A("v_sub_u32 v158, s90, v159")
        A("v_cmp_ne_u32 vcc, 0, v159")
        A("v_cmp_lt_i32 s[44:45], %d, v158" % o.get("theta", 40))
        A("s_and_b32 s62, vcc_lo, s44")
        A("s_and_b32 s62, s62, 0xff")
        A("s_bcnt1_i32_b32 s62, s62")
        A("s_cmp_ge_u32 s62, %d" % o.get("lateth", 2))
        A("s_cbranch_scc1 L_wide")
        keep = issued[0]
        issue_rest(o["WK"], o["W"])
        A("s_branch L_issued")
        LB("L_wide")
        issued[0] = keep
        issue_rest(o["WK"] + o["bal"], o["W"] + o["bal"])
        LB("L_issued")
    elif o.get("c3"):
        A("s_lshr_b32 %s, %s, 2" % (t0, sJ))
        A("s_cmp_eq_u32 %s, 3" % t0)
        A("s_cbranch_scc1 L_wide")
        keep = issued[0]
        issue_rest(o["WK"], o["W"])
        A("s_branch L_issued")
        LB("L_wide")
        issued[0] = keep
        issue_rest(o["WK"] + o["c3"], o["W"] + o.get("c3v", o["c3"]))
        LB("L_issued")
    else:
        issue_rest(o["WK"], o["W"])
    tail = []
    if o["lastfin"] != 1 and not o.get("xstag"): tail.append("global_load_dword %s, %s, %s" % (vXP, vXF, sX))
    for a in range(2):
        r = DNR + a * 4
        tail.append("global_load_dwordx4 v[%d:%d], %s, %s %s" % (r, r + 3, (vDN0, vDN1)[a], sDN, nt))
    for m in range(4):
        r = WOR + m * 4
        tail.append("global_load_dwordx4 v[%d:%d], %s, %s offset:%d %s" % (r, r + 3, (vWO0, vWO1)[m >> 1], sWO, (0, -4096)[(m & 1) == 0], nt))
    dnl = []
    if o.get("dnlate"):
        dnl = tail[1:1 + 2]
        if o["dnlate"] == 2: dnl = dnl[1:]
        for t_ in dnl: tail.remove(t_)
        tail.append(tail.pop(0))
    if isinstance(o["pretouch"], int):
        tail.insert(o["pretouch"], "global_load_dword v159, v158, %s sc1" % sWS)
    if o.get("xearly"):
        xl = [t_ for t_ in tail if vXP + "," in t_][0]; tail.remove(xl)
    taft = []
    for _ in range(o.get("tafter", 0)): taft.insert(0, tail.pop())
    nav = [0]
    def tail_issue(n):
        for _ in range(n):
            if tail:
                A(tail.pop(0)); nav[0] += 1
    A("s_waitcnt vmcnt(8)")
    for t in range(2):
        for s in range(4):
            r = KR + (t * 4 + s) * 4
            A("ds_read_b128 v[%d:%d], v%d offset:%d" % (r, r + 3, KA + s, L_K + t * 4096))
    tail_issue(o["ntail0"])
    stamp(2)
    A("s_waitcnt lgkmcnt(0)")
    A("s_barrier")
    stamp(3)
    for s in range(4):
        A("ds_read_b128 v[%d:%d], %s offset:%d" % (QR + 4 * s, QR + 4 * s + 3, vQA, L_Q + s * 64))
    if "a" in o["tsp"]: tail_issue(1)
    A("s_mov_b32 s46, 0x%x" % SCALE)
    A("s_mov_b32 %s, 0xffff0000" % t1)
    A("s_mov_b32 s48, 0x%x" % LOG2E)
    for s in range(4):
        A("s_waitcnt lgkmcnt(%d)" % (3 - s))
        for t in range(2):
            mfma(SR + 4 * t, KR + (t * 4 + s) * 4, QR + 4 * s, None if s == 0 else SR + 4 * t)
    T = KR
    vH0, vH1, vFL, vTG = "v%d" % (T + 28), "v%d" % (T + 29), "v%d" % (T + 26), "v%d" % (T + 27)
    A("v_mov_b32 %s, %d" % (vFL, L_FLAG))
    A("s_lshl_b32 %s, %s, 5" % (t3, sW))
    A("v_mov_b32 v%d, %s" % (T + 31, t3))
    A("ds_read_b64 v[%d:%d], %s" % (T + 26, T + 27, vFL))
    if "b" in o["tsp"]:
        tail_issue(1); A("s_nop 1")
    else: A("s_nop 2")
    C("scores: bf16(qk) -> * scale -> bf16   (the reference's two roundings)")
    for i in range(8):
        A("v_cvt_pk_bf16_f32 v%d, 0, v%d" % (SR + i, SR + i))
    for i in range(4):
        A("v_pk_mul_f32 %s, %s, s[46:47] op_sel_hi:[1,0]" % (P2(SR + 2 * i), P2(SR + 2 * i)))
    for i in range(8):
        A("v_cvt_pk_bf16_f32 v%d, 0, v%d" % (SR + i, SR + i))
    vm, vt, vl = "v%d" % (T + 4), "v%d" % (T + 6), "v%d" % (T + 5)
    A("v_max3_f32 %s, v%d, v%d, v%d" % (vm, SR, SR + 1, SR + 2))
    A("v_max3_f32 %s, v%d, v%d, v%d" % (vt, SR + 3, SR + 4, SR + 5))
    A("v_max3_f32 %s, %s, v%d, v%d" % (vm, vm, SR + 6, SR + 7))
    A("v_max_f32 %s, %s, %s" % (vm, vm, vt))
    allred(vm, vt, "v_max_f32", 16)
    if "c" in o["tsp"]: tail_issue(1)
    allred(vm, vt, "v_max_f32", 32)
    A("v_mul_f32 %s, s48, %s" % (vm, vm))
    for i in range(4):
        A("v_pk_fma_f32 %s, %s, s[48:49], %s op_sel_hi:[1,0,0] neg_lo:[0,0,1] neg_hi:[0,0,1]" % (P2(SR + 2 * i), P2(SR + 2 * i), P2(T + 4)))
    for i in range(8):
        A("v_exp_f32 v%d, v%d" % (SR + i, SR + i))
    if "d" in o["tsp"]: tail_issue(1)
    for i in range(4):
        A("v_cvt_pk_bf16_f32 v%d, v%d, v%d" % (T + 8 + i, SR + 2 * i, SR + 2 * i + 1))
    for i in range(8):
        for r in range(2):
            A("v_perm_b32 v%d, v%d, v%d, v%d" % (PA + 2 * i + r, T + 8 + (i >> 1), T + 8 + (i >> 1), SEL + 2 * (i & 1) + r))
    stamp(4)
    O0, O1, Y = QR, QR + 4, QR + 8
    def pv(i):
        A("s_waitcnt vmcnt(%d)" % (7 - i + nav[0]))
        if i >= o["tlag"]: tail_issue((2 if i < o.get("tdbl", 0) else 1) if i < o.get("tlast", 7) else 9)
        vr = VR + 4 * i
        mfma16(O0, PA + 2 * i, vr, None if i == 0 else O0)
        mfma16(O1, PA + 2 * i, vr + 2, None if i == 0 else O1)
    A("v_pk_add_f32 %s, %s, %s" % (P2(SR), P2(SR), P2(SR + 2)))
    A("v_pk_add_f32 %s, %s, %s" % (P2(SR + 4), P2(SR + 4), P2(SR + 6)))
    A("v_pk_add_f32 %s, %s, %s" % (P2(SR), P2(SR), P2(SR + 4)))
    A("v_add_f32 %s, v%d, v%d" % (vl, SR, SR + 1))
    allred(vl, vt, "v_add_f32", 16)
    allred(vl, vt, "v_add_f32", 32)
    A("ds_write_b64 %s, v[%d:%d] offset:%d" % (vMLW, T + 4, T + 5, L_ML))
    A("s_waitcnt lgkmcnt(0)")
    A("v_readfirstlane_b32 %s, %s" % (sFAST, vFL))
    A("v_readfirstlane_b32 %s, %s" % (sTAG, vTG))
    SO = 4
    def soffs():
        A("s_and_b32 %s, %s, 0x2000" % (t0, sFAST))
        A("v_add_u32 %s, %s, %s" % (vL3, t0, vL3))
        A("s_or_b32 s3, s3, %s" % t0)
        for k in range(1, 8): A("s_xor_b32 s%d, s3, 0x%x" % (SO + k - 1, k << 9))
    nshot = [0]
    SD = [12, 20, 44, 64, 72, 80, 88] if not o["stamps"] else None
    def sshot(bit):
        if o["lastfin"] < 2 or not (o.get("sshot", 2) & bit): return
        nshot[0] += 1
        A("s_bitcmp0_b32 %s, 1" % sFAST)
        A("s_cbranch_scc1 L_noshot%d" % nshot[0])
        for k in range(1, 8):
            if o["lastfin"] == 2: A("s_load_dword s%d, %s, s%d offset:12 %s" % (12 + k, sWS, SO + k - 1, o.get("sfl", "glc")))
            else: A("s_load_dwordx8 s[%d:%d], %s, s%d glc" % (SD[k - 1], SD[k - 1] + 7, sWS, SO + k - 1))
        LB("L_noshot%d" % nshot[0])
    HA = T + 16
    ML = T
    OB = T + 8
    G2 = SR
    vM, vLs = "v124", "v125"
    for i in range(o["b2"]): pv(i)
    if o.get("dbgb2"): A("s_memrealtime s[70:71]")
    A("s_barrier")
    if o.get("dbgb2"): A("s_memrealtime s[72:73]")
    A("ds_read_b128 v[%d:%d], v%d offset:%d" % (ML, ML + 3, T + 31, L_ML))
    A("ds_read_b128 v[%d:%d], v%d offset:%d" % (ML + 4, ML + 7, T + 31, L_ML + 16))
    if not o["hlate"]:
        A("ds_read_b32 %s, %s offset:%d" % (vH0, vHA, L_H))
        A("ds_read_b32 %s, %s offset:%d" % (vH1, vHA, L_H + 16))
    avote = o["vote"] and not o["lastfin"]
    if avote:
        A("v_mov_b32 v%d, 0" % (T + 30))
        A("ds_read_b32 v%d, v%d offset:%d" % (T + 30, T + 30, L_FLAG + 8))
    A("s_mov_b32 s54, 0x55555555")
    A("s_mov_b32 s55, 0x55555555")
    A("v_mov_b32 v%d, %s" % (G2 + 3, sTAG))
    A("s_waitcnt lgkmcnt(%d)" % ((0 if o["hlate"] else 2) + (1 if avote else 0)))
    A("v_max3_f32 %s, v%d, v%d, v%d" % (vM, ML, ML + 2, ML + 4))
    A("v_max_f32 %s, %s, v%d" % (vM, vM, ML + 6))
    for w_ in range(4):
        A("v_sub_f32 v%d, v%d, %s" % (ML + 2 * w_, ML + 2 * w_, vM))
    for w_ in range(4):
        A("v_exp_f32 v%d, v%d" % (ML + 2 * w_, ML + 2 * w_))
    A("s_waitcnt lgkmcnt(0)")
    A("v_mul_f32 %s, v%d, v%d" % (vLs, ML, ML + 1))
    for w_ in range(1, 4):
        A("v_fmac_f32 %s, v%d, v%d" % (vLs, ML + 2 * w_, ML + 2 * w_ + 1))
    def h_operands():
        for a in range(2):
            for r in range(4):
                A("v_and_b32 v%d, %s, v%d" % (HA + 4 * a + r, (vH0, vH1)[a], MK + r))
    A("v_log_f32 v%d, %s" % (G2 + 2, vLs))
    A("v_rcp_f32 %s, %s" % (vLs, vLs))
    if not o["hlate"]: h_operands()
    else: A("s_nop 0")
    if avote: A("v_add_u32 %s, v%d, %s" % (vL3, T + 30, vL3))
    A("v_add_f32 v%d, v%d, %s" % (G2 + 2, G2 + 2, vM))
    for w_ in range(4):
        A("v_mul_f32 v%d, v%d, %s" % (ML + 2 * w_, ML + 2 * w_, vLs))
    for i in range(o["b2"], 8): pv(i)
    stamp(5)
    if o.get("nosync"):
        A("s_waitcnt vmcnt(0)")
        stamp(6)
        A("s_branch L_done")
    A("s_nop 6")
    A("ds_write_b128 %s, v[%d:%d] offset:%d" % (vOW, O0, O0 + 3, L_O))
    A("ds_write_b128 %s, v[%d:%d] offset:%d" % (vOW, O1, O1 + 3, L_O + 256))
    A("s_waitcnt lgkmcnt(0)")
    A("s_barrier")
    for w_ in range(4):
        A("ds_read_b64 v[%d:%d], %s offset:%d" % (OB + 2 * w_, OB + 2 * w_ + 1, vOR, L_O + w_ * 2048))
    A("s_bitcmp0_b32 %s, 0" % sFAST)
    for w_ in range(4):
        A("s_waitcnt lgkmcnt(%d)" % (3 - w_))
        op = "v_mul_f32" if w_ == 0 else "v_fmac_f32"
        A("%s v%d, v%d, v%d" % (op, G2, ML + 2 * w_, OB + 2 * w_))
        A("%s v%d, v%d, v%d" % (op, G2 + 1, ML + 2 * w_, OB + 2 * w_ + 1))
    tails = []
    def publish(addr, g, name):
        A("s_cbranch_scc1 L_slow_%s" % name)
        A("global_store_dwordx4 %s, v[%d:%d], %s %s" % (addr, g, g + 3, sWS, o.get("stfl", "")))
        LB("L_back_%s" % name)
        tails.append((name, addr, g))
    A("v_cvt_pk_bf16_f32 v%d, v%d, v%d" % (G2, G2, G2 + 1))
    A("s_nop 1")
    A("v_mov_b32_dpp v%d, v%d quad_perm:[1,1,3,3] %s" % (G2 + 1, G2, DPP))
    A("s_mov_b64 exec, s[54:55]")
    publish(vS2, G2, "h2")
    A("s_mov_b64 exec, -1")
    stamp(6)
    P = T
    for i in range(2):
        A("global_load_dwordx4 v[%d:%d], %s, %s offset:%d %s" % (P + 4 * i, P + 4 * i + 3, vL2, sWS, i * 1024, o.get("p2fl", "sc1")))
    for t_ in dnl: A(t_)
    if o["hlate"]:
        A("s_barrier")
        A("ds_read_b32 %s, %s offset:%d" % (vH0, vHA, L_H))
        A("ds_read_b32 %s, %s offset:%d" % (vH1, vHA, L_H + 16))
    A("s_mov_b32 %s, %d" % (sCNT, o["spinmax"]))
    vTAG = "v127"
    sT2 = sTAG
    if o["reuse"]:
        sT2 = "s62"
        A("s_not_b32 %s, %s" % (t0, sTAG))
        A("s_lshl_b32 %s, %s, 24" % (t0, t0))
        A("s_and_b32 s62, %s, 0xffffff" % sTAG)
        A("s_or_b32 s62, s62, %s" % t0)
    A("v_mov_b32 %s, %s" % (vTAG, sT2))
    for k in range(4):
        A("s_mov_b32 s%d, 0x%x" % (56 + k, 0x07060500 | k))
        A("s_bfe_u32 s%d, %s, 0x%x" % (60 + k if k < 2 else 50 + k, sT2, 0x80000 | (8 * k)))
    TB = ["s60", "s61", "s52", "s53"]
    if o["hlate"]:
        A("s_waitcnt lgkmcnt(0)")
        h_operands()
    ndn_early = 2 - len(dnl)
    if o["lastfin"] >= 2: soffs()
    if o.get("mockx"): ndn_early = 0
    else: A("s_waitcnt vmcnt(%d)" % (3 + len(dnl)))
    for a in range(ndn_early):
        mfma(Y, HA + 4 * a, DNR + 4 * a, None if a == 0 else Y)
    if dnl:
        A("s_waitcnt vmcnt(%d)" % len(dnl))
        A("s_branch L_chk2b")
    else:
        A("s_branch L_chk2")
    LB("L_poll2")
    MS = ["s[44:45]", "s[46:47]"]
    for i in range(2):
        if o["mask2"]: A("s_mov_b64 exec, %s" % MS[i])
        A("global_load_dwordx4 v[%d:%d], %s, %s offset:%d sc1" % (P + 4 * i, P + 4 * i + 3, vL2, sWS, i * 1024))
    if o["mask2"]: A("s_mov_b64 exec, -1")
    A("s_sub_u32 %s, %s, 1" % (sCNT, sCNT))
    A("s_cbranch_scc1 L_end")
    LB("L_chk2")
    A("s_waitcnt vmcnt(0)")
    LB("L_chk2b")
    A("v_max_f32 %s, v%d, v%d" % (vM, P + 2, P + 6))
    for i in range(2):
        A("v_cmp_ne_u32 %s, %s, v%d" % (MS[i], sTAG, P + 4 * i + 3))
    A("v_max_f32_dpp %s, %s, %s row_ror:4 %s" % (vM, vM, vM, DPP))
    A("s_or_b64 vcc, %s, %s" % (MS[0], MS[1]))
    A("s_cbranch_scc1 L_poll2")
    stamp(7)
    if o.get("tpos", "g") == "g":
        for t_ in taft: A(t_)
    sshot(1)
    U = T + 8
    def unp(i, k):
        if k & 1: A("v_and_b32 v%d, %s, v%d" % (U + 4 * i + k, t1, P + 4 * i + (k >> 1)))
        else: A("v_lshlrev_b32 v%d, 16, v%d" % (U + 4 * i + k, P + 4 * i + (k >> 1)))
    vt2 = "v126"
    A("v_max_f32_dpp %s, %s, %s row_ror:8 %s" % (vM, vM, vM, DPP))
    A("v_mov_b32 %s, %s" % (vt2, vM))
    unp(0, 0); unp(0, 1)
    A("v_permlane16_swap_b32 %s, %s" % (vt2, vM))
    A("v_max_f32 %s, %s, %s" % (vM, vM, vt2))
    A("v_mov_b32 %s, %s" % (vt2, vM))
    unp(0, 2); unp(0, 3)
    A("v_permlane32_swap_b32 %s, %s" % (vt2, vM))
    A("v_max_f32 %s, %s, %s" % (vM, vM, vt2))
    w0, w1 = "v120", "v122"
    A("v_sub_f32 %s, v%d, %s" % (w0, P + 2, vM))
    A("v_sub_f32 %s, v%d, %s" % (w1, P + 6, vM))
    A("v_exp_f32 %s, %s" % (w0, w0))
    A("v_exp_f32 %s, %s" % (w1, w1))
    unp(1, 0)
    den, tA, tB = "v126", "v124", "v123"
    A("v_add_f32 %s, %s, %s" % (den, w0, w1))
    unp(1, 1); unp(1, 2)
    A("v_add_f32_dpp %s, %s, %s row_ror:4 %s" % (den, den, den, DPP))
    unp(1, 3)
    A("v_pk_mul_f32 %s, %s, v[120:121] op_sel_hi:[1,0]" % (P2(U), P2(U)))
    A("v_add_f32_dpp %s, %s, %s row_ror:8 %s" % (den, den, den, DPP))
    A("v_pk_mul_f32 %s, %s, v[120:121] op_sel_hi:[1,0]" % (P2(U + 2), P2(U + 2)))
    A("v_pk_fma_f32 %s, %s, v[122:123], %s op_sel_hi:[1,0,1]" % (P2(U), P2(U + 4), P2(U)))
    A("v_pk_fma_f32 %s, %s, v[122:123], %s op_sel_hi:[1,0,1]" % (P2(U + 2), P2(U + 6), P2(U + 2)))
    A("v_mov_b32 %s, %s" % (tA, den))
    A("s_bitcmp0_b32 %s, 0" % sFAST)
    A("v_permlane32_swap_b32 v%d, v%d" % (U, U + 2))
    A("v_permlane32_swap_b32 v%d, v%d" % (U + 1, U + 3))
    A("v_permlane32_swap_b32 %s, %s" % (tA, den))
    A("v_pk_add_f32 %s, %s, %s" % (P2(U), P2(U), P2(U + 2)))
    A("v_add_f32 %s, %s, %s" % (den, den, tA))
    A("s_mov_b32 %s, %d" % (sCNT, o["spinmax"]))
    A("v_permlane16_swap_b32 v%d, v%d" % (U, U + 1))
    A("v_mov_b32 %s, %s" % (tA, den))
    A("v_add_f32 v%d, v%d, v%d" % (U, U, U + 1))
    A("s_nop 0")
    A("v_permlane16_swap_b32 %s, %s" % (tA, den))
    A("v_add_f32_dpp v%d, v%d, v%d row_ror:4 %s" % (U, U, U, DPP))
    A("v_add_f32 %s, %s, %s" % (den, den, tA))
    A("v_rcp_f32 %s, %s" % (den, den))
    A("v_add_f32_dpp v%d, v%d, v%d row_ror:8 %s" % (U, U, U, DPP))
    a0 = "v125"
    A("v_mul_f32 %s, v%d, %s" % (a0, U, den))
    A("v_cvt_pk_bf16_f32 %s, %s, %s" % (a0, a0, a0))
    if o.get("mockx"):
        GX, PXS = 120, VR
        A("v_mov_b32 v%d, %s" % (GX + 3, sTAG))
        A("s_cmp_gt_u32 %s, 1" % sW)
        A("v_mov_b32_dpp v%d, %s quad_perm:[0,0,2,2] %s" % (GX, a0, DPP))
        A("v_mov_b32_dpp v%d, %s quad_perm:[1,1,3,3] %s" % (GX + 1, a0, DPP))
        A("s_cselect_b64 exec, 0, 15")
        A("global_store_dwordx4 %s, v[%d:%d], %s sc1" % (vS3, GX, GX + 3, sWS))
        A("s_mov_b64 exec, -1")
        stamp(1)
        if o.get("tpos") == "x":
            for t_ in taft: A(t_)
        A("s_mov_b64 exec, 0xff")
        LB("L_pollx")
        A("global_load_dwordx4 v[%d:%d], %s, %s sc1" % (PXS, PXS + 3, vL3, sWS))
        A("s_sub_u32 %s, %s, 1" % (sCNT, sCNT))
        A("s_cbranch_scc1 L_end")
        A("s_waitcnt vmcnt(0)")
        A("v_cmp_ne_u32 vcc, %s, v%d" % (sTAG, PXS + 3))
        A("v_mov_b32 %s, v%d" % (a0, PXS))
        A("s_and_b64 exec, exec, vcc")
        A("s_cbranch_scc1 L_pollx")
        A("s_mov_b64 exec, -1")
        stamp(10)
        A("s_bitcmp0_b32 %s, 0" % sFAST)
        for a in range(2):
            mfma(Y, HA + 4 * a, DNR + 4 * a, None if a == 0 else Y)
        ndn_early = 2
    A("s_nop 1")
    WA = T
    for m in range(4):
        for r in range(4):
            A("v_and_b32_dpp v%d, %s, v%d row_newbcast:%d %s" % (WA + 4 * m + r, a0, MK + r, m, DPP))
        if m > 0:
            mfma(Y, WA + 4 * (m - 1), WOR + 4 * (m - 1), Y if (m > 1 or ndn_early) else None)
    if dnl:
        A("s_waitcnt vmcnt(0)")
        for a in range(ndn_early, 2):
            mfma(Y, HA + 4 * a, DNR + 4 * a, Y)
    else:
        A("s_nop 1")
    mfma(Y, WA + 12, WOR + 12, Y)
    A("s_mov_b32 exec_hi, 0")
    if o["reuse"]:
        A("s_barrier")
        A("s_nop 5")
    else:
        A("s_nop 6")
    for k in range(4):
        A("v_perm_b32 v%d, v%d, %s, s%d" % (Y + k, Y + k, vTAG, 56 + k))
    publish(vS25, Y, "h25")
    stamp(8)
    sshot(2)
    def tail_g25():
        PS = T + 16
        A("s_cmp_lg_u32 %s, %d" % (sW, o["gw"]))
        A("s_cbranch_scc1 L_done")
        A("s_mov_b64 exec, -1")
        if o.get("ack25") == 1: A("s_waitcnt vmcnt(0)")
        NP = o["np25"]
        def ask(k):
            A("global_load_dwordx4 v[%d:%d], %s, %s sc1" % (PS + 8 * k, PS + 8 * k + 3, vL25, sWS))
            A("global_load_dwordx4 v[%d:%d], v164, %s sc1" % (PS + 8 * k + 4, PS + 8 * k + 7, sWS))
        def look(k):
            A("s_waitcnt vmcnt(%d)" % (2 * NP - 1))
            for q in range(4): A("v_xor_b32 v%d, %s, v%d" % (P + q, TB[q], PS + 8 * k + q))
            A("v_or3_b32 %s, v%d, v%d, v%d" % (tA, P, P + 1, P + 2))
            A("s_waitcnt vmcnt(%d)" % (2 * NP - 2))
            for q in range(4): A("v_xor_b32 v%d, %s, v%d" % (P + 4 + q, TB[q], PS + 8 * k + 4 + q))
            A("v_or3_b32 %s, %s, v%d, v%d" % (tA, tA, P + 3, P + 4))
            A("v_or3_b32 %s, %s, v%d, v%d" % (tA, tA, P + 5, P + 6))
            A("v_or_b32_sdwa %s, %s, v%d dst_sel:DWORD dst_unused:UNUSED_PAD src0_sel:BYTE_0 src1_sel:BYTE_0" % (tA, tA, P + 7))
            A("v_cmp_ne_u32 vcc, 0, %s" % tA)
            A("s_and_b64 exec, exec, vcc")
        def masks():
            A("s_lshl_b32 s46, 0x01010101, %s" % sH)
            A("s_not_b32 s46, s46")
            A("s_mov_b32 s47, s46")
        if NP == 1:
            masks()
            LB("L_poll25")
            ask(0)
            A("s_sub_u32 %s, %s, 1" % (sCNT, sCNT))
            A("s_cbranch_scc1 L_end")
            look(0)
            A("s_cbranch_scc1 L_poll25")
        else:
            ask(0)
            if o.get("ack25") == 2: A("s_waitcnt vmcnt(2)")
            for _ in range(o.get("stag25", 0)): A("s_nop 7")
            ask(1)
            masks()
            LB("L_poll25")
            for k in range(2):
                look(k)
                A("s_cbranch_scc0 L_got25")
                ask(k)
            A("s_sub_u32 %s, %s, 1" % (sCNT, sCNT))
            A("s_cbranch_scc0 L_poll25")
            A("s_endpgm")
            LB("L_got25")
        A("s_mov_b64 exec, -1")
        stamp(9)
        if o.get("ampm"): A("s_memrealtime s[86:87]")
        x_, y_ = "v%d" % P, "v%d" % (P + 1)
        A("v_pk_add_f32 %s, %s, %s" % (P2(P), P2(P), P2(P + 4)))
        A("v_pk_add_f32 %s, %s, %s" % (P2(P + 2), P2(P + 2), P2(P + 6)))
        A("s_lshr_b32 %s, %s, 2" % (t0, sJ) if o["finhi"] else "s_and_b32 %s, %s, 7" % (t0, sJ))
        A("s_cmp_eq_u32 %s, %s" % (t0, sH))
        A("v_permlane32_swap_b32 v%d, v%d" % (P, P + 2))
        A("v_permlane32_swap_b32 v%d, v%d" % (P + 1, P + 3))
        A("v_pk_add_f32 %s, %s, %s" % (P2(P), P2(P), P2(P + 2)))
        A("v_mov_b32 v%d, %s" % (P + 3, sTAG))
        A("s_mov_b32 s44, 0xff")
        for rot_ in (4, 8):
            A("v_add_f32_dpp %s, %s, %s row_ror:%d %s" % (x_, x_, x_, rot_, DPP))
            A("v_add_f32_dpp %s, %s, %s row_ror:%d %s" % (y_, y_, y_, rot_, DPP))
            if rot_ == 4: A("s_mov_b32 s45, s44")
        A("v_mov_b32 v%d, %s" % (P + 4, x_))
        A("v_mov_b32 v%d, %s" % (P + 5, y_))
        A("s_nop 0")
        A("v_permlane16_swap_b32 v%d, %s" % (P + 4, x_))
        A("v_permlane16_swap_b32 v%d, %s" % (P + 5, y_))
        A("v_pk_add_f32 %s, %s, %s" % (P2(P), P2(P), P2(P + 4)))
        A("s_cbranch_scc1 L_final")
        A("s_mov_b64 exec, s[44:45]")
        A("global_store_dwordx4 %s, v[%d:%d], %s sc1" % (vS3, P, P + 3, sWS))
        A("s_branch L_done")
        LB("L_final")
        stamp(1)
        if o.get("xstag"): A("global_load_dword %s, %s, %s nt" % (vXP, vXF, sX))
        A("s_mov_b64 exec, s[46:47]")
        NP = o["np3"]
        PS = VR
        X = P + 4
        A("global_load_dwordx4 v[%d:%d], %s, %s sc1" % (PS, PS + 3, vL3, sWS))
        A("s_mov_b64 exec, -1")
        A("s_mov_b32 %s, %d" % (sCNT, o["spinmax"]))
        for q in range(4):
            for r in range(2):
                A("v_mov_b32_dpp v%d, v%d row_newbcast:%d row_mask:0x%x bank_mask:0x%x" % (X + r, P + r, q, (5, 10)[q >> 1], (3, 12)[q & 1]))
        if not o.get("xstag"):
            A("v_lshlrev_b32 v%d, 16, %s" % (P, vXP))
            A("v_and_b32 v%d, %s, %s" % (P + 1, t1, vXP))
            A("v_pk_add_f32 %s, %s, %s" % (P2(X), P2(X), P2(P)))
        A("s_mov_b32 s44, 0x01010101")
        A("s_mov_b32 s45, s44")
        A("s_mov_b64 exec, s[46:47]")
        for k in range(1, NP):
            if o.get("xstag") and k == 1: A("s_waitcnt vmcnt(1)")
            A("global_load_dwordx4 v[%d:%d], %s, %s sc1" % (PS + 4 * k, PS + 4 * k + 3, vL3, sWS))
        LB("L_poll3")
        for k in range(NP):
            A("s_waitcnt vmcnt(%d)" % (NP - 1))
            A("v_cmp_ne_u32 vcc, %s, v%d" % (sTAG, PS + 4 * k + 3))
            A("v_mov_b32 v%d, v%d" % (X, PS + 4 * k))
            A("v_mov_b32 v%d, v%d" % (X + 1, PS + 4 * k + 1))
            A("s_and_b64 exec, exec, vcc")
            A("s_cbranch_scc0 L_got3")
            A("global_load_dwordx4 v[%d:%d], %s, %s sc1" % (PS + 4 * k, PS + 4 * k + 3, vL3, sWS))
        A("s_sub_u32 %s, %s, 1" % (sCNT, sCNT))
        A("s_cbranch_scc0 L_poll3")
        A("s_endpgm")
        LB("L_got3")
        stamp(10)
        A("s_mov_b64 exec, -1")
        x_, y_ = "v%d" % X, "v%d" % (X + 1)
        fl = ["s_cmp_lg_u32 s2, 0", "s_nop 0"]
        if o.get("xstag"): fl = ["v_lshlrev_b32 %s, 16, %s" % (tA, vXP), "v_and_b32 %s, %s, %s" % (tB, t1, vXP)]
        for pat in ("quad_perm:[1,0,3,2]", "quad_perm:[2,3,0,1]", "row_half_mirror"):
            A("v_add_f32_dpp %s, %s, %s %s %s" % (x_, x_, x_, pat, DPP))
            A("v_add_f32_dpp %s, %s, %s %s %s" % (y_, y_, y_, pat, DPP))
            if fl: A(fl.pop(0))
        if o.get("xstag"):
            A("v_add_f32 %s, %s, %s" % (x_, x_, tA))
            A("v_add_f32 %s, %s, %s" % (y_, y_, tB))
            A("s_cmp_lg_u32 s2, 0")
        A("v_cvt_pk_bf16_f32 %s, %s, %s" % (x_, x_, y_))
        A("s_mov_b64 exec, s[44:45]")
        A("global_store_dword %s, %s, %s %s" % (vXF, x_, sOUT, o.get("ofl", "")))
        A("s_cbranch_scc1 L_done")
        C("the next launch must not mistake this launch's hand-off words for its own")
        if o["efull"]:
            A("s_mov_b64 exec, 0xff")
            A("v_lshlrev_b32 %s, 4, v0" % tA)
            for q in range(4): A("v_mov_b32 v%d, %s" % (P + q, sTAG))
            A("global_store_dwordx4 %s, v[%d:%d], %s %s" % (tA, P, P + 3, sWS, o.get("efl", "")))
        else:
            A("s_mov_b64 exec, 1")
            A("v_mov_b32 %s, 0" % tA)
            A("v_mov_b32 %s, %s" % (tB, sTAG))
            A("global_store_dword %s, %s, %s %s" % (tA, tB, sWS, o.get("efl", "")))
    nkeep = len(L)
    NP = o["np25"]
    PS = T + 16
    if o.get("ack25") == 1: A("s_waitcnt vmcnt(0)")
    sshot(8)
    for _ in range(o.get("dly25", 0)): A("s_nop 7")
    for k in range(NP):
        if k == 1 and o.get("ack25") == 2: A("s_waitcnt vmcnt(1)")
        if k == 1:
            for _ in range(o.get("stag25", 0)): A("s_nop 7")
        A("global_load_dwordx4 v[%d:%d], %s, %s sc1" % (PS + 4 * k, PS + 4 * k + 3, vL25, sWS))
    sshot(4)
    LB("L_poll25")
    for k in range(NP):
        A("s_waitcnt vmcnt(%d)" % (NP - 1))
        for q in range(4):
            A("v_xor_b32 v%d, %s, v%d" % (P + q, TB[q], PS + 4 * k + q))
        A("v_or3_b32 %s, v%d, v%d, v%d" % (tA, P, P + 1, P + 2))
        A("v_or_b32_sdwa %s, %s, v%d dst_sel:DWORD dst_unused:UNUSED_PAD src0_sel:BYTE_0 src1_sel:BYTE_0" % (tA, tA, P + 3))
        A("v_cmp_ne_u32 vcc, 0, %s" % tA)
        if o["mask25"]:
            A("s_and_b64 exec, exec, vcc")
            A("s_cbranch_scc0 L_got25")
        else:
            A("s_cbranch_vccz L_got25")
        A("global_load_dwordx4 v[%d:%d], %s, %s sc1" % (PS + 4 * k, PS + 4 * k + 3, vL25, sWS))
    A("s_sub_u32 %s, %s, 1" % (sCNT, sCNT))
    A("s_cbranch_scc0 L_poll25")
    A("s_endpgm")
    LB("L_got25")
    A("s_mov_b64 exec, -1")
    stamp(9)
    if o.get("ampm"): A("s_memrealtime s[86:87]")
    x_, y_ = "v%d" % P, "v%d" % (P + 1)
    A("v_permlane16_swap_b32 v%d, v%d" % (P, P + 2))
    A("v_permlane16_swap_b32 v%d, v%d" % (P + 1, P + 3))
    A("v_add_f32 %s, %s, v%d" % (x_, x_, P + 2))
    A("v_add_f32 %s, %s, v%d" % (y_, y_, P + 3))
    fl = ["v_mov_b32 v%d, %s" % (P + 3, sTAG), "s_and_b32 %s, %s, 7" % (t0, sJ), "s_cmp_eq_u32 %s, %s" % (t0, sH), "s_nop 0"]
    if o["lastfin"]: fl = ["v_mov_b32 v%d, %s" % (P + 3, sTAG), "s_bitcmp1_b32 %s, 1" % sFAST, "s_nop 0", "s_nop 0"]
    for rot_ in (1, 2, 4, 8):
        A(fl.pop(0))
        A("v_add_f32_dpp %s, %s, %s row_ror:%d %s" % (x_, x_, x_, rot_, DPP))
        A("v_add_f32_dpp %s, %s, %s row_ror:%d %s" % (y_, y_, y_, rot_, DPP))
    def old_final():
        if o.get("ewg"): A("s_xor_b32 s63, s2, %d" % o["ewg"])
        if o.get("otouch"):
            A("global_load_dword v158, %s, %s" % (vXF, sOUT))
        if o.get("xstag"): A("global_load_dword %s, %s, %s %s" % (vXP, vXF, sX, o["xstag"] if isinstance(o["xstag"], str) else "nt"))
        A("s_lshl_b32 %s, 0x10001, %s" % (t0, sH))
        A("s_andn2_b32 exec_lo, 0xff00ff, %s" % t0)
        A("s_mov_b32 exec_hi, 0")
        A("s_mov_b32 %s, %d" % (sCNT, o["spinmax"]))
        NP = o["np3"]
        PS = VR
        if o["lastfin"] == 2 and o.get("sshot", 2):
            A("s_waitcnt lgkmcnt(0)")
            for k in range(1, 8): A("s_xor_b32 s%d, s%d, %s" % (12 + k, 12 + k, sTAG))
            A("s_or_b32 s13, s13, s14")
            A("s_or_b64 s[16:17], s[16:17], s[18:19]")
            A("s_or_b32 s13, s13, s15")
            A("s_or_b32 s16, s16, s17")
            if o["stamps"]: A("s_memrealtime s[68:69]")
            A("s_or_b32 s13, s13, s16")
            if o["stamps"]: A("s_cselect_b32 s66, 1, 2")
            A("s_cbranch_scc1 L_ask3")
            A("global_load_dwordx4 v[%d:%d], %s, %s %s" % (PS, PS + 3, vL3, sWS, o.get("hfl", "")))
            A("s_branch L_poll3")
            LB("L_ask3")
        for k in range(NP):
            if o.get("xstag") and k == 1: A("s_waitcnt vmcnt(1)")
            A("global_load_dwordx4 v[%d:%d], %s, %s sc1" % (PS + 4 * k, PS + 4 * k + 3, vL3, sWS))
        LB("L_poll3")
        for k in range(NP):
            A("s_waitcnt vmcnt(%d)" % (NP - 1))
            A("v_cmp_ne_u32 vcc, %s, v%d" % (sTAG, PS + 4 * k + 3))
            A("v_mov_b32 v%d, v%d" % (P, PS + 4 * k))
            A("v_mov_b32 v%d, v%d" % (P + 1, PS + 4 * k + 1))
            A("s_and_b64 exec, exec, vcc")
            A("s_cbranch_scc0 L_got3")
            A("global_load_dwordx4 v[%d:%d], %s, %s sc1" % (PS + 4 * k, PS + 4 * k + 3, vL3, sWS))
        A("s_sub_u32 %s, %s, 1" % (sCNT, sCNT))
        A("s_cbranch_scc0 L_poll3")
        A("s_endpgm")
        LB("L_got3")
        stamp(10)
        A("s_mov_b32 exec_lo, -1")
        A("v_lshlrev_b32 %s, 16, %s" % (tA, vXP))
        A("v_and_b32 %s, %s, %s" % (tB, t1, vXP))
        for pat in ("quad_perm:[1,0,3,2]", "quad_perm:[2,3,0,1]", "row_half_mirror"):
            A("v_add_f32_dpp %s, %s, %s %s %s" % (x_, x_, x_, pat, DPP))
            A("v_add_f32_dpp %s, %s, %s %s %s" % (y_, y_, y_, pat, DPP))
            if pat != "row_half_mirror": A("s_nop 0")
        A("v_add_f32 %s, %s, %s" % (x_, x_, tA))
        A("v_add_f32 %s, %s, %s" % (y_, y_, tB))
        if o.get("perturb"):
            import struct
            bits = struct.unpack("<I", struct.pack("<f", float(o["perturb"])))[0]
            if o.get("pall"):
                A("v_mul_f32 %s, 0x%x, %s" % (x_, bits, x_)); A("v_mul_f32 %s, 0x%x, %s" % (y_, bits, y_))
            else:
                A("s_or_b32 %s, s2, %s" % (t0, sW))
                A("s_cselect_b32 %s, 0, 0x%x" % (t0, bits))
                A("v_add_f32 %s, %s, %s" % (x_, t0, x_))
        A("v_cvt_pk_bf16_f32 %s, %s, %s" % (x_, x_, y_))
        A("s_mov_b64 exec, 0x10001")
        A("global_store_dword %s, %s, %s %s" % (vXF, x_, sOUT, o.get("ofl", "")))
        A("s_or_b32 %s, %s, %s" % (t0, sJ if o["lastfin"] else "s2" if not o.get("ewg") else "s63", sW))
        A("s_cbranch_scc1 L_done")
        C("the next launch must not mistake this launch's hand-off words for its own")
        A("v_mov_b32 %s, 0" % tA)
        A("v_mov_b32 %s, %s" % (tB, sTAG))
        A("global_store_dword %s, %s, %s %s" % (tA, tB, sWS, o.get("efl", "")))
    def diag_end():
        if o.get("ampm"):
            A("s_or_b32 %s, %s, %s" % (t0, sJ, sW))
            A("s_cbranch_scc1 L_nom")
            A("s_mov_b64 exec, -1")
            A("s_waitcnt lgkmcnt(0)")
            A("s_lshl_b32 %s, %s, 2" % (t0, sH))
            A("v_mov_b32 v2, %s" % t0)
            A("s_or_b32 s86, s86, 1")
            A("v_mov_b32 v3, s86")
            A("global_store_dword v2, v3, s[24:25] offset:192 sc1")
            A("s_cmp_lg_u32 s2, 0")
            A("s_cbranch_scc1 L_nom")
            A("v_and_b32 v2, 7, v0")
            A("v_lshlrev_b32 v2, 2, v2")
            A("s_movk_i32 s85, 1000")
            LB("L_mpoll")
            A("global_load_dword v3, v2, s[24:25] offset:192 sc1")
            A("global_load_dword v4, v2, s[24:25] offset:128 sc1")
            A("s_sub_u32 s85, s85, 1")
            A("s_cbranch_scc1 L_nom")
            A("s_waitcnt vmcnt(0)")
            A("v_cmp_eq_u32 vcc, 0, v3")
            A("s_cbranch_vccnz L_mpoll")
            for g_ in range(8): A("v_readlane_b32 s%d, v3, %d" % (64 + g_, g_))
            for g_ in range(8): A("v_readlane_b32 s%d, v4, %d" % (72 + g_, g_))
            A("s_nop 3")
            for g_ in range(16): A("s_sub_u32 s%d, s%d, s90" % (64 + g_, 64 + g_))
            md = o["ampm"]
            if md >= 10:
                for g_ in range(8): A("s_mov_b32 s%d, s%d" % (64 + g_, 72 + g_))
                md -= 10
            key = {1: 64, 2: 72}.get(md)
            A("s_mov_b32 s80, s64")
            A("s_mov_b32 s81, s%d" % (key or 64))
            A("s_mov_b32 s82, 0x80000000")
            for g_ in range(1, 8):
                if key:
                    A("s_cmp_gt_i32 s%d, s81" % (key + g_))
                    A("s_cselect_b32 s83, s80, s%d" % (64 + g_))
                    A("s_cselect_b32 s80, s%d, s80" % (64 + g_))
                    A("s_cselect_b32 s81, s%d, s81" % (key + g_))
                    A("s_max_i32 s82, s82, s83")
                else:
                    A("s_max_i32 s82, s82, s%d" % (64 + g_))
            A("s_sub_i32 s88, s80, s82")
            A("s_add_i32 s88, s88, 100")
            A("s_max_i32 s88, s88, 0")
            A("s_mul_i32 s88, s88, 20")
            A("s_min_u32 s88, s88, 20000")
            A("s_add_u32 s88, s88, 1500")
            LB("L_mspin")
            A("s_memrealtime s[92:93]")
            A("s_waitcnt lgkmcnt(0)")
            A("s_sub_u32 s92, s92, s90")
            A("s_cmp_lt_u32 s92, s88")
            A("s_cbranch_scc1 L_mspin")
            LB("L_nom")
        if o.get("lateh") is not None:
            A("s_or_b32 %s, s2, %s" % (t0, sW))
            A("s_cbranch_scc1 L_nolate")
            A("s_mov_b64 exec, -1")
            A("v_and_b32 v2, 7, v0")
            A("v_lshlrev_b32 v2, 2, v2")
            A("global_load_dword v3, v2, s[24:25] sc1")
            A("s_waitcnt vmcnt(0)")
            for g_ in range(8): A("v_readlane_b32 s%d, v3, %d" % (64 + g_, g_))
            A("s_nop 3")
            for g_ in range(8): A("s_sub_u32 s%d, s%d, s90" % (64 + g_, 64 + g_))
            A("s_mov_b32 s72, s64")
            for g_ in range(1, 8): A("s_min_i32 s72, s72, s%d" % (64 + g_))
            if o["lateh"] == 8:
                A("s_mov_b32 s88, s64")
                for g_ in range(1, 8): A("s_max_i32 s88, s88, s%d" % (64 + g_))
            else:
                A("s_mov_b32 s88, s%d" % (64 + o["lateh"]))
            A("s_sub_u32 s88, s88, s72")
            A("s_mul_i32 s88, s88, 20")
            A("s_min_u32 s88, s88, 20000")
            A("s_add_u32 s88, s88, 1500")
            A("s_add_u32 s88, s88, s72")
            LB("L_latespin")
            A("s_memrealtime s[92:93]")
            A("s_waitcnt lgkmcnt(0)")
            A("s_sub_u32 s92, s92, s90")
            A("s_cmp_lt_u32 s92, s88")
            A("s_cbranch_scc1 L_latespin")
            LB("L_nolate")
        amp_end("")
        if o.get("pad"):
            LB("L_padspin")
            A("s_memrealtime s[92:93]")
            A("s_waitcnt lgkmcnt(0)")
            A("s_sub_u32 s92, s92, s90")
            A("s_cmp_lt_u32 s92, %d" % o["pad"])
            A("s_cbranch_scc1 L_padspin")
    if o.get("mockx"):
        A("v_lshlrev_b32 %s, 16, %s" % (tA, vXP))
        A("v_and_b32 %s, %s, %s" % (tB, t1, vXP))
        A("v_add_f32 %s, %s, %s" % (x_, x_, tA))
        A("v_add_f32 %s, %s, %s" % (y_, y_, tB))
        A("v_cvt_pk_bf16_f32 %s, %s, %s" % (x_, x_, y_))
        A("s_mov_b64 exec, 0x10001")
        A("s_cbranch_scc0 L_done")
        A("global_store_dword %s, %s, %s" % (vXF, x_, sOUT))
        A("s_or_b32 %s, s2, %s" % (t0, sW))
        A("s_cbranch_scc1 L_done")
        A("v_mov_b32 %s, 0" % tA)
        A("v_mov_b32 %s, %s" % (tB, sTAG))
        A("global_store_dword %s, %s, %s" % (tA, tB, sWS))
        A("s_branch L_done")
    A("s_cbranch_scc1 L_final")
    A("s_mov_b64 exec, 0x%x" % (0x30003 if o["rep3"] or o["vote"] else 0x10001))
    A("global_store_dwordx4 %s, v[%d:%d], %s sc1" % (vS3, P, P + 3, sWS))
    if o.get("wb"):
        A("s_or_b32 %s, %s, %s" % (t0, sW, sJ) if o["wb"] == 1 else "s_and_b32 %s, %s, 3" % (t0, sW))
        A("s_cmp_lg_u32 %s, %d" % (t0, 8 if o["wb"] == 1 else 0))
        A("s_cbranch_scc1 L_done")
        A("buffer_wbl2 sc1")
    A("s_branch L_done")
    LB("L_final")
    if o["lastfin"] == 1:
        A("s_mov_b64 exec, 0x10001")
        A("ds_write_b128 %s, v[%d:%d] offset:%d" % (vL3, P, P + 3, L_FIN))
        A("s_waitcnt lgkmcnt(0)")
    else:
        old_final()
    if o["g25"]:
        del L[nkeep:]
        tail_g25()
    LB("L_done")
    diag_end()
    dump_stamps()
    A("s_endpgm")
    for name, addr, g in tails:
        LB("L_slow_%s" % name)
        A("global_store_dwordx4 %s, v[%d:%d], %s sc1" % (addr, g, g + 3, sWS))
        A("s_branch L_back_%s" % name)
    if o["lastfin"] == 1: unit_final()
    LB("L_end")
    A("s_endpgm")
    head = HEADER.format(lds=o.get("lds", LDS_BYTES), k=KNAME); foot = FOOTER.format(k=KNAME, vg=o.get("vg", 168), sg=96)
    if o["align"]: L = align_runs(L, head, foot, o.get("minrun", 3), o.get("nopmin", 6))
    return head + "\n".join(L) + foot


if __name__ == "__main__":
    kw = {}
    out = "parallel_sum__sliding_block_cached__swiglu_ffn__decode.s"
    for a in sys.argv[1:]:
        k, v = a.split("=", 1)
        if k == "out": out = v; continue
        try: v = int(v) if k != "nlv" else v
        except ValueError: pass
        kw[k] = v
    open(out, "w").write(gen(**kw))
```

```python
import sys

KNAME = "parallel_sum__sliding_block_cached__swiglu_ffn__decode_kernel"

HEADER = """; Kernarg layout for this problem (96 bytes, ptrs only, base s[0:1]):
;   offset  72: d_out     shape=(1, 1, 512) dtype=bfloat16
; @launch grid=(256,1,1) block=(320,1,1) lds={lds}
.amdgcn_target "amdgcn-amd-amdhsa--gfx950"
.text
.globl {k}
.p2align 8
.type {k},@function
{k}:
"""
FOOTER = """
.section .rodata,"a"
.p2align 6
.amdhsa_kernel {k}
  .amdhsa_next_free_vgpr {vg}
  .amdhsa_next_free_sgpr {sg}
  .amdhsa_accum_offset {vg}
  .amdhsa_group_segment_fixed_size 0
  .amdhsa_kernarg_size 96
  .amdhsa_user_sgpr_count 2
  .amdhsa_user_sgpr_kernarg_segment_ptr 1
  .amdhsa_system_sgpr_workgroup_id_x 1
.end_amdhsa_kernel
"""

MB1A = 0x40000
MB1B = 0x80000
MB2 = 0x100000
MB25 = 0x400000
MB3 = 0x1C0000
STAMPS = 0x10000000
L_WQ = 0
L_FF = 16384
L_XN = 32768
L_Q = 33792
L_H = 34816
L_FLAG = 34848
L_VOTE = 34864
L_ML = 34880
L_TKT = 35008
L_FIN = L_XN
L_O = 35072
L_K = L_O + 8192
L_K = (L_K + 1023) // 1024 * 1024
LDS_BYTES = L_K + 32768
TAGC = 0x9E3779B9
LOG2E = 0x3FB8AA3B
SCALE = 0x3DB504F3
EPS = 0x3727C5AC
DPP = "row_mask:0xf bank_mask:0xf"

DEF = dict(stamps=False, spinmax=200000, WK=5, W=6, Wtail=8, b0pos=45, nt="nt", pretouch="k", atries=24,
           prefetch=True, b2=7, ntail0=0, tlag=0, mask2=False, pt1=True, rotm=4, rep3=False, tsp="a", auxearly=True, hlate=False, vote=True, np25=2, np3=6, ack25=2, align=1, unr=2, mask25=True, lperm=0, nlv="43434343", reuse=1, rp=2176, bonly=0, bdefer=4, bskip=1, lastfin=0, npu=1, stag=0, g25=1, gw=0, pt3=1, finhi=1, efull=0, stouch=0, cq2=0, cq25=0, vlate=1, idearly=0, adap="", Wa=6)


def _sizes(text):
    import subprocess, tempfile, os, re
    d = tempfile.mkdtemp()
    open(d + "/a.s", "w").write(text)
    subprocess.run(["clang", "-x", "assembler", "-target", "amdgcn-amd-amdhsa", "-mcpu=gfx950", "-c", d + "/a.s", "-o", d + "/a.o"], check=True)
    out = subprocess.run(["llvm-objdump", "-d", "--mcpu=gfx950", d + "/a.o"], capture_output=True, text=True).stdout
    r = []
    for ln in out.split("\n"):
        m = re.search(r"^\s+(\S+).*// ([0-9A-F]{12}): ((?:[0-9A-F]{8} ?)+)", ln)
        if m: r.append((m.group(1), 4 * len(m.group(3).split())))
    return r


def align_runs(L, head, foot, minrun=3, nopmin=6):
    ins = [i for i, l in enumerate(L) if l.startswith("    ") and not l.strip().startswith(";")]
    sz = _sizes(head + "\n".join(L) + foot)
    assert len(sz) == len(ins), (len(sz), len(ins))
    size = {i: s_[1] for i, s_ in zip(ins, sz)}
    mn = {i: s_[0] for i, s_ in zip(ins, sz)}
    out = list(L); extra = {}
    off = 0; k = 0
    while k < len(ins):
        i = ins[k]
        if size[i] == 8 and off % 8 == 4:
            run = 0
            while k + run < len(ins) and size[ins[k + run]] == 8: run += 1
            if run >= minrun:
                b = k - 1; done = False
                while b >= 0 and size[ins[b]] == 4:
                    j = ins[b]
                    if mn[j] == "s_nop" and int(out[j].split()[1]) >= 1:
                        out[j] = "    s_nop 0\n    s_nop %d" % (int(out[j].split()[1]) - 1)
                        size[j] = 8; off += 4; done = True
                        break
                    if mn[j].endswith("_e32") and not mn[j].startswith(("v_readfirstlane", "v_permlane")):
                        op = out[j].split()[0]
                        out[j] = out[j].replace(op, op.replace("_e32", "") + "_e64", 1)
                        size[j] = 8; off += 4; done = True
                        break
                    b -= 1
                if not done and run >= nopmin and k > 0 and not mn[ins[k - 1]].startswith(("s_branch", "s_endpgm")):
                    extra[i] = True; off += 4; done = True
                if not done and k > 0 and mn[ins[k - 1]].startswith(("s_branch", "s_endpgm")):
                    extra[ins[k - 1] + 1] = True; off += 4
            for q in range(run): off += 8
            k += run
            continue
        off += size[i]; k += 1
    res = []
    for i, l in enumerate(out):
        if i in extra: res.append("    s_nop 0")
        res.append(l)
    return res


def gen(**kw):
    o = dict(DEF); o.update(kw)
    MB3 = o.get("mb3", globals()["MB3"])
    L = []
    def A(s): L.append("    " + s)
    def LB(s): L.append(s + ":")
    def C(s): L.append("    ; " + s)
    nt = o["nt"]
    NSTAMP = 12
    role = ["U"]
    def stamp(i):
        if o.get("amp") == "%s%d" % (role[0], i): A("s_memrealtime s[88:89]" if not o.get("cyc") else "s_memtime s[88:89]")
        if o.get("amp0") == "%s%d" % (role[0], i): A("s_memrealtime s[86:87]" if not o.get("cyc") else "s_memtime s[86:87]")
        if o["stamps"] and (i in (0, 11) or o.get("sel") is None or ("%s%d" % (role[0], i)) in o["sel"].split(",")):
            A("s_memrealtime s[%d:%d]" % (64 + 2 * i, 65 + 2 * i))
    def mfma(d, a, b, c):
        A("v_mfma_f32_16x16x32_bf16 v[%d:%d], v[%d:%d], v[%d:%d], %s" % (d, d + 3, a, a + 3, b, b + 3, "0" if c is None else "v[%d:%d]" % (c, c + 3)))
    def mfma16(d, a, b, c):
        A("v_mfma_f32_16x16x16_bf16 v[%d:%d], v[%d:%d], v[%d:%d], %s" % (d, d + 3, a, a + 1, b, b + 1, "0" if c is None else "v[%d:%d]" % (c, c + 3)))
    def allred(v, tmp, op, which):
        A("v_mov_b32 %s, %s" % (tmp, v))
        A("s_nop 1")
        A("v_permlane%d_swap_b32 %s, %s" % (which, tmp, v))
        A("%s %s, %s, %s" % (op, v, v, tmp))
    sX, sK, sV, sWQ, sWO, sG, sU, sDN, sOUT, sWS = "s[4:5]", "s[6:7]", "s[8:9]", "s[10:11]", "s[12:13]", "s[16:17]", "s[18:19]", "s[20:21]", "s[22:23]", "s[26:27]"
    sW, sH, sJ, sTAG, sXCC, sCNT, sFAST = "s30", "s31", "s32", "s33", "s34", "s35", "s36"
    t0, t1, t2, t3 = "s37", "s38", "s39", "s40"
    def dump_stamps():
        if not o["stamps"]: return
        if role[0] == "U" and o.get("sel") is not None and "U" not in o["sel"]: return
        A("s_mov_b64 exec, 1")
        if o.get("endwait"): A("s_waitcnt vmcnt(0)")
        stamp(11)
        A("s_waitcnt lgkmcnt(0)")
        A("s_mul_i32 %s, s2, 5" % t0)
        A("s_add_u32 %s, %s, %s" % (t0, t0, sW))
        A("s_lshl_b32 %s, %s, 7" % (t0, t0))
        A("s_add_u32 %s, %s, 0x%x" % (t0, t0, STAMPS))
        A("v_mov_b32 v2, %s" % t0)
        for i in range(NSTAMP):
            A("v_mov_b32 v3, s%d" % (64 + 2 * i))
            A("global_store_dword v2, v3, %s offset:%d" % (sWS, 4 * i))
        A("v_mov_b32 v3, %s" % ("s63" if role[0] == "U" and o["vote"] else sCNT))
        A("global_store_dword v2, v3, %s offset:%d" % (sWS, 4 * NSTAMP))
        if o.get("dbgfail"):
            for q_, r_ in enumerate(("s84", "s62", "s63")):
                A("v_mov_b32 v3, %s" % r_)
                A("global_store_dword v2, v3, %s offset:%d" % (sWS, 4 * NSTAMP + 8 + 4 * q_))
        A("s_getreg_b32 %s, hwreg(HW_REG_HW_ID)" % t1)
        A("v_mov_b32 v3, %s" % t1)
        A("global_store_dword v2, v3, %s offset:%d" % (sWS, 4 * NSTAMP + 4))

    def amp_end(sfx):
        if o.get("ampg"):
            A("s_waitcnt vmcnt(0) lgkmcnt(0)")
            A("s_memrealtime s[88:89]")
            A("s_mov_b64 exec, -1")
            A("v_and_b32 v2, 7, v0")
            A("v_lshlrev_b32 v2, 2, v2")
            A("global_load_dword v3, v2, s[24:25] offset:128 sc1")
            A("s_waitcnt vmcnt(0) lgkmcnt(0)")
            for g_ in range(8): A("v_readlane_b32 s%d, v3, %d" % (64 + g_, g_))
            A("s_nop 3")
            for g_ in range(8): A("s_sub_u32 s%d, s88, s%d" % (64 + g_, 64 + g_))
            for g_ in range(1, 8): A("s_max_i32 s64, s64, s%d" % (64 + g_))
            A("s_mul_i32 s64, s64, 9")
            A("s_min_u32 s64, s64, 20000")
            A("s_add_u32 s64, s64, 1500")
            LB("L_ampgspin" + sfx)
            A("s_memrealtime s[92:93]")
            A("s_waitcnt lgkmcnt(0)")
            A("s_sub_u32 s92, s92, s88")
            A("s_cmp_lt_u32 s92, s64")
            A("s_cbranch_scc1 L_ampgspin" + sfx)
        if o.get("amp"):
            if o["amp"] == "end": A("s_memrealtime s[88:89]")
            A("s_waitcnt lgkmcnt(0)")
            A("s_sub_u32 s88, s88, %s" % ("s86" if o.get("amp0") else "s90"))
            A("s_mul_i32 s88, s88, %d" % o.get("ampk", 10))
            A("s_min_u32 s88, s88, 20000")
            A("s_add_u32 s88, s88, 1500")
            LB("L_ampspin" + sfx)
            A("s_memrealtime s[92:93]")
            A("s_waitcnt lgkmcnt(0)")
            A("s_sub_u32 s92, s92, s90")
            A("s_cmp_lt_u32 s92, s88")
            A("s_cbranch_scc1 L_ampspin" + sfx)
    nlv = [int(c) for c in str(o["nlv"])]
    assert len(nlv) == 8 and sum(nlv) == 28 and min(nlv) >= 0 and max(nlv) <= 4
    LUT_d = sum((4 - n) << (4 * i) for i, n in enumerate(nlv))
    LUT_D = sum((4 * i - sum(nlv[:i])) << (4 * i) for i in range(8))
    def ffn_share(l0, d):
        A("s_lshl_b32 %s, %s, 2" % (l0, sH))
        A("s_lshr_b32 %s, 0x%x, %s" % (d, LUT_D, l0))
        A("s_and_b32 %s, %s, 7" % (d, d))
        A("s_sub_u32 s3, %s, %s" % (l0, d))
        A("s_lshr_b32 %s, 0x%x, %s" % (d, LUT_d, l0))
        A("s_and_b32 %s, %s, 7" % (d, d))
    stamp(0)
    if o.get("pad") or o.get("bal") or o.get("amp") or o.get("ampg") or o.get("ampm") or o.get("lateh") is not None: A("s_memrealtime s[90:91]")
    A("s_cmp_ge_u32 s2, 256")
    A("s_cbranch_scc1 L_end")
    A("s_load_dwordx16 s[4:19], s[0:1], 0")
    A("s_load_dwordx8 s[20:27], s[0:1], 64")
    A("v_lshrrev_b32 v1, 6, v0")
    A("v_and_b32 v0, 63, v0")
    A("v_readfirstlane_b32 %s, v1" % sW)
    A("s_and_b32 %s, s2, 7" % sH)
    A("s_lshr_b32 %s, s2, 3" % sJ)
    if o.get("bal") or o.get("lateh") is not None or o.get("ampg") or o.get("ampm"):
        A("s_or_b32 %s, %s, %s" % (t0, sJ, sW))
        A("s_cbranch_scc1 L_noflag")
        A("s_lshl_b32 %s, %s, 2" % (t0, sH))
        A("v_mov_b32 v108, %s" % t0)
        A("s_waitcnt lgkmcnt(0)")
        A("s_or_b32 %s, s90, 1" % t0)
        A("v_mov_b32 v109, %s" % t0)
        A("global_store_dword v108, v109, s[24:25] offset:%d sc1" % (128 if o.get("ampg") or o.get("ampm") else 0))
        LB("L_noflag")
    A("s_cmp_eq_u32 %s, 4" % sW)
    A("s_cbranch_scc0 %s" % ("L_race" if o["vote"] else "L_attn"))

    C("wave 4: layernorm, one [128 x 64] tile of wq and one of gate/up, exchange of q and of the FFN hidden values")
    A("s_setprio 3")
    if o["idearly"] == 1:
        A("v_mov_b32 v2, 0")
        A("v_and_b32 v3, 12, v0")
        A("ds_write_b32 v3, v2 offset:%d" % L_VOTE)
    if o["prefetch"]:
        A("s_getpc_b64 s[28:29]")
        LB("L_pc")
        A("v_lshlrev_b32 v2, 7, v0")
        A("v_min_u32 v2, L_end-L_pc, v2")
        A("global_load_dword v127, v2, s[28:29]")
    sQK, sNOFF = "s50", "s51"
    A("v_lshlrev_b32 v3, 4, v0")
    A("v_lshrrev_b32 v6, 3, v0")
    A("v_and_b32 v5, 2, v6")
    A("v_and_b32 v7, 7, v0")
    A("v_xor_b32 v5, v5, v7")
    A("v_lshlrev_b32 v7, 4, v5")
    A("s_and_b32 %s, %s, 3" % (sQK, sJ))
    A("s_lshl_b32 %s, %s, 10" % (t0, sH))
    if o["lperm"]:
        A("s_andn2_b32 %s, %s, 3" % (t1, sJ))
        A("s_lshr_b32 %s, 0x%x, %s" % (t1, o["lperm"], t1))
        A("s_and_b32 s55, %s, 7" % t1)
    else:
        A("s_lshr_b32 s55, %s, 2" % sJ)
    A("s_lshl_b32 %s, s55, 7" % t1)
    A("s_lshl_b32 %s, %s, 20" % (t2, sQK))
    A("s_add_u32 %s, %s, %s" % (t0, t0, t1))
    A("s_add_u32 %s, %s, %s" % (t0, t0, t2))
    A("v_lshl_add_u32 v4, v6, 13, v7")
    A("v_add_u32 v4, %s, v4" % t0)
    A("v_xor_b32 v5, 64, v4")
    A("v_add_u32 v5, 0x10000, v5")
    A("s_mov_b32 m0, %d" % L_WQ)
    A("s_mov_b32 %s, 0x20000" % t1)
    if o.get("ucontig"):
        A("s_lshl_b32 %s, s2, 10" % t0)
        A("v_add_u32 v4, %s, v3" % t0)
        A("v_add_u32 v5, 0x40000, v4")
        A("s_mov_b32 %s, 0x80000" % t1)
    A("s_movk_i32 s41, 1024")
    A("s_waitcnt lgkmcnt(0)")
    A("global_load_dwordx4 v[8:11], v3, %s" % sX)
    A("s_load_dword %s, %s, 0" % (sTAG, sWS))
    def dma_loop(name, base, step):
        A("s_mov_b32 %s, %d" % (t2, 16 // o["unr"]))
        LB(name)
        for i in range(o["unr"]):
            vv = ("v4", "v5")[i & 1]
            A("global_load_lds_dwordx4 %s, %s %s" % (vv, base, nt))
            A("s_add_u32 m0, m0, s41")
            A("v_add_u32 %s, %s, %s" % (vv, step, vv))
        A("s_sub_u32 %s, %s, 1" % (t2, t2))
        A("s_cmp_lg_u32 %s, 0" % t2)
        A("s_cbranch_scc1 %s" % name)
    dma_loop("L_wq_loop", sWQ, t1)
    if o["b0pos"] == 16: A("s_barrier")
    ffn_share(t0, t3)
    A("s_lshr_b32 %s, %s, 3" % (t1, sJ))
    A("s_add_u32 %s, s3, %s" % (t0, t1))
    A("s_add_u32 %s, %s, %s" % (sNOFF, t1, t3))
    A("s_mul_i32 %s, %s, 3584" % (t1, sQK))
    A("s_add_u32 %s, %s, %s" % (t0, t0, t1))
    A("s_lshl_b32 %s, %s, 7" % (t0, t0))
    A("v_mul_u32_u24 v4, 3584, v6")
    A("v_add3_u32 v4, v4, v7, %s" % t0)
    A("v_xor_b32 v5, 64, v4")
    A("v_add_u32 v5, %d, v5" % (8 * 3584))
    A("s_mov_b32 %s, %d" % (t1, 16 * 3584))
    if o.get("ucontig"):
        A("s_lshr_b32 %s, s2, 1" % t0)
        A("s_min_u32 %s, %s, 111" % (t0, t0))
        A("s_lshl_b32 %s, %s, 10" % (t0, t0))
        A("v_add_u32 v4, %s, v3" % t0)
        A("v_add_u32 v5, %d, v4" % (112 * 1024))
        A("s_mov_b32 %s, %d" % (t1, 224 * 1024))
    A("s_bitcmp0_b32 %s, %d" % (("s2", 0) if o.get("ucontig") else (sJ, 2)))
    A("s_cselect_b64 s[42:43], %s, %s" % (sG, sU))
    A("s_cmp_ge_u32 %s, 4" % sNOFF)
    A("s_cselect_b64 exec, 1, -1")
    dma_loop("L_ff_loop", "s[42:43]", t1)
    A("s_mov_b64 exec, -1")
    if o["vote"]:
        A("s_branch L_unit2")
        LB("L_race")
        C("which of the two copies of the last hand-off lives nearer to this die: race two cold scalar loads of this wave's own lines")
        A("s_lshl_b32 %s, s2, 2" % t0)
        A("s_add_u32 %s, %s, %s" % (t0, t0, sW))
        A("s_lshr_b32 %s, %s, 6" % (t1, t0))
        A("s_lshl_b32 %s, %s, 14" % (t1, t1))
        A("s_and_b32 %s, %s, 63" % (t0, t0))
        A("s_lshl_b32 %s, %s, 7" % (t0, t0))
        A("s_add_u32 %s, %s, %s" % (t0, t0, t1))
        if MB3 == 0x200000: A("s_bitset1_b32 %s, 21" % t0)
        else: A("s_or_b32 %s, %s, 0x%x" % (t0, t0, MB3))
        A("s_lshl_b32 %s, %s, 13" % (t1, sW))
        A("s_and_b32 %s, %s, 0x2000" % (t1, t1))
        A("s_or_b32 s46, %s, %s" % (t0, t1))
        A("s_xor_b32 s47, s46, 0x2000")
        A("s_movk_i32 s28, 0x5bd1")
        A("s_movk_i32 s29, 0x5bd1")
        A("s_waitcnt lgkmcnt(0)")
        A("s_load_dword s28, %s, s46" % sWS)
        A("s_load_dword s29, %s, s47" % sWS)
        A("s_waitcnt lgkmcnt(1)")
        A("s_mov_b64 s[48:49], s[28:29]")
        LB("L_race_done")
        A("s_cmpk_lg_i32 s48, 0x5bd1")
        A("s_cselect_b32 %s, 1, 0" % t0)
        A("s_cmpk_lg_i32 s49, 0x5bd1")
        A("s_cselect_b32 %s, 1, 0" % t2)
        A("s_sub_i32 %s, %s, %s" % (t0, t0, t2))
        A("s_sub_i32 %s, 0, %s" % (t2, t0))
        A("s_cmp_eq_u32 %s, 0" % t1)
        A("s_cselect_b32 %s, %s, %s" % (t0, t0, t2))
        A("s_lshl_b32 %s, %s, 2" % (t2, sW))
        A("v_mov_b32 v158, %s" % t2)
        A("v_mov_b32 v159, %s" % t0)
        A("ds_write_b32 v158, v159 offset:%d" % L_VOTE)
        A("s_branch L_attn")
        LB("L_unit2")
    if o["pt1"]:
        C("pull this workgroup's own hand-off lines into L2 before anyone polls them")
        A("s_lshl_b32 %s, %s, 15" % (t0, sH))
        A("s_lshl_b32 %s, %s, 8" % (t1, sJ))
        A("s_add_u32 %s, %s, %s" % (t0, t0, t1))
        A("s_add_u32 %s, %s, 0x%x" % (t0, t0, MB1A))
        A("v_and_b32 v33, 1, v0")
        A("v_bfe_u32 v32, v0, 1, 1")
        A("v_lshlrev_b32 v33, 7, v33")
        A("v_lshl_add_u32 v33, v32, 13, v33")
        A("s_mul_i32 %s, %s, 240" % (t1, sJ))
        A("s_sub_u32 %s, 0x4000, %s" % (t1, t1))
        A("v_cmp_lt_u32 vcc, 3, v0")
        A("v_mov_b32 v32, %s" % t1)
        A("s_nop 0")
        A("v_cndmask_b32 v33, v33, v32, vcc")
        A("v_add_u32 v33, %s, v33" % t0)
        A("global_load_dword v119, v33, %s sc1" % sWS)
    def tlbwarm():
        C("first touch of the pages the later loads use (address translation early, off their queue)")
        A("s_lshl_b32 %s, %s, 24" % (t0, sH))
        A("s_add_u32 %s, %s, 0xF00000" % (t0, t0))
        A("v_mov_b32 v112, %s" % t0)
        A("s_lshl_b32 %s, %s, 19" % (t0, sH))
        A("v_mov_b32 v113, %s" % t0)
        A("s_mul_i32 %s, %s, 0x38000" % (t0, sH))
        A("v_mov_b32 v114, %s" % t0)
        A("v_mov_b32 v115, 0x%x" % MB3)
        A("s_mov_b64 exec, 1")
        A("global_load_dword v116, v112, %s" % sK)
        A("global_load_dword v117, v112, %s" % sV)
        A("global_load_dword v118, v113, %s" % sWO)
        A("global_load_dword v111, v114, %s" % sDN)
        A("global_load_dword v110, v115, %s" % sWS)
        A("s_mov_b64 exec, -1")
    NW = 1 if o["pt1"] else 0
    if o.get("tlbw") == 2:
        tlbwarm(); NW += 5
    if o["b0pos"] == 32:
        if o.get("b0wait") is not None: A("s_waitcnt vmcnt(%d)" % o["b0wait"])
        A("s_barrier")
    stamp(1)
    XF = 12
    A("s_mov_b32 %s, 0xffff0000" % t1)
    A("s_waitcnt vmcnt(%d)" % (32 + NW))
    stamp(2)
    C("layernorm with the reference's bf16 roundings")
    for i in range(4):
        A("v_lshlrev_b32 v%d, 16, v%d" % (XF + 2 * i, 8 + i))
        A("v_and_b32 v%d, %s, v%d" % (XF + 2 * i + 1, t1, 8 + i))
    fill = []
    def F(s): fill.append(s)
    def nop2():
        n = 0
        while fill and n < 2:
            A(fill.pop(0)); n += 1
        if n < 2: A("s_nop %d" % (1 - n))
    TRB = 120
    vAX, vS1, vL1, vL1x, vL1a, vF, vTN, vTB = "v34", "v35", "v36", "v37", "v38", "v39", "v124", "v125"
    sRP, sB1 = "s52", "s53"
    F("v_lshrrev_b32 v126, 4, v0")
    F("v_bfe_u32 v4, v0, 2, 2")
    F("v_lshl_add_u32 v5, v126, 3, v4")
    F("v_and_b32 v6, 3, v0")
    F("v_lshlrev_b32 v7, 3, v6")
    F("v_lshl_add_u32 v5, v5, 7, v7")
    F("v_bfe_u32 v4, v0, 3, 2")
    for ct in range(4):
        F("v_xor_b32 v7, %d, v4" % ct)
        F("v_lshl_add_u32 v%d, v7, 5, v5" % (TRB + ct))
    F("s_lshl_b32 %s, %s, 8" % (t0, sQK))
    F("v_lshl_add_u32 %s, v126, 4, %s" % (vAX, t0))
    F("s_lshl_b32 %s, %s, 15" % (sB1, sH))
    F("s_add_u32 %s, %s, 0x%x" % (sB1, sB1, MB1A))
    def wavesum(v, tmp):
        for rot in (1, 2, 4, 8):
            nop2()
            A("v_add_f32_dpp %s, %s, %s row_ror:%d %s" % (v, v, v, rot, DPP))
        for which in (16, 32):
            A("v_mov_b32 %s, %s" % (tmp, v))
            nop2()
            A("v_permlane%d_swap_b32 %s, %s" % (which, tmp, v))
            A("v_add_f32 %s, %s, %s" % (v, v, tmp))
    def P2(r): return "v[%d:%d]" % (r, r + 1)
    A("v_pk_add_f32 v[22:23], %s, %s" % (P2(XF), P2(XF + 2)))
    A("v_pk_add_f32 v[24:25], %s, %s" % (P2(XF + 4), P2(XF + 6)))
    A("v_pk_add_f32 v[22:23], v[22:23], v[24:25]")
    A("v_add_f32 v22, v22, v23")
    wavesum("v22", "v23")
    A("v_mul_f32 v22, 0x3b000000, v22")
    DV = 24
    for i in range(4):
        A("v_pk_add_f32 %s, %s, v[22:23] op_sel_hi:[1,0] neg_lo:[0,1] neg_hi:[0,1]" % (P2(DV + 2 * i), P2(XF + 2 * i)))
    A("v_cvt_pk_bf16_f32 v22, 0, v22")
    A("v_pk_mul_f32 v[32:33], %s, %s" % (P2(DV), P2(DV)))
    for i in range(1, 4):
        A("v_pk_fma_f32 v[32:33], %s, %s, v[32:33]" % (P2(DV + 2 * i), P2(DV + 2 * i)))
    A("v_add_f32 v32, v32, v33")
    pre = ["v_pk_add_f32 %s, %s, v[22:23] op_sel_hi:[1,0] neg_lo:[0,1] neg_hi:[0,1]" % (P2(XF + 2 * i), P2(XF + 2 * i)) for i in range(4)]
    pre += ["v_cvt_pk_bf16_f32 v%d, 0, v%d" % (XF + i, XF + i) for i in range(8)]
    rest = fill[:]; fill[:] = pre
    wavesum("v32", "v33")
    fill[:] = fill + rest
    A("v_mul_f32 v32, 0x3b000000, v32")
    A("v_cvt_pk_bf16_f32 v32, 0, v32")
    A("v_add_f32 v32, 0x%x, v32" % EPS)
    A("v_cvt_pk_bf16_f32 v32, 0, v32")
    A("v_sqrt_f32 v32, v32")
    A(fill.pop(0))
    A("v_cvt_pk_bf16_f32 v32, 0, v32")
    A("v_rcp_f32 v32, v32")
    A(fill.pop(0))
    for i in range(4):
        A("v_pk_mul_f32 %s, %s, v[32:33] op_sel_hi:[1,0]" % (P2(XF + 2 * i), P2(XF + 2 * i)))
    for i in range(4):
        A("v_cvt_pk_bf16_f32 v%d, v%d, v%d" % (8 + i, XF + 2 * i, XF + 2 * i + 1))
    A("ds_write_b128 v3, v[8:11] offset:%d" % L_XN)
    while fill: A(fill.pop(0))
    A("s_lshl_b32 %s, s55, 2" % t2)
    A("s_add_u32 s55, %s, %s" % (t2, sQK))
    A("s_lshl_b32 %s, s55, 8" % t2)
    A("s_add_u32 %s, %s, %s" % (t2, t2, sB1))
    A("v_lshrrev_b32 v4, 2, v0")
    A("v_lshl_add_u32 %s, v4, 4, %s" % (vS1, t2))
    A("s_waitcnt lgkmcnt(0)")
    AF = 40
    for m in range(4):
        A("ds_read_b128 v[%d:%d], %s offset:%d" % (AF + 4 * m, AF + 4 * m + 3, vAX, L_XN + m * 64))
    A("s_add_u32 %s, %s, 0x%x" % (sTAG, sTAG, TAGC))
    A("v_lshlrev_b32 v4, 2, v6")
    A("v_lshrrev_b32 %s, v4, %s" % (vTN, sTAG))
    A("v_and_b32 %s, 15, %s" % (vTN, vTN))
    A("v_lshlrev_b32 v4, 3, v6")
    A("v_lshrrev_b32 %s, v4, %s" % (vTB, sTAG))
    A("v_and_b32 %s, 0xff, %s" % (vTB, vTB))
    A("s_mov_b32 s44, 0")
    A("s_mov_b32 s45, -1")
    XG = 28
    def die_id():
        if o["vote"]:
            assert o["b0pos"] <= 47 and not o["hlate"]
            A("v_mov_b32 v4, 0")
            A("ds_read_b128 v[112:115], v4 offset:%d" % L_VOTE)
        if o["lastfin"]:
            assert o["vote"]
            A("ds_read_b32 v116, v4 offset:%d" % L_TKT)
        A("s_getreg_b32 %s, hwreg(HW_REG_XCC_ID, 0, 4)" % sXCC)
        A("s_and_b32 %s, %s, 0xff" % (t0, sTAG))
        A("s_lshl_b32 %s, %s, 8" % (t2, sXCC))
        A("s_or_b32 s54, %s, %s" % (t0, t2))
        A("v_mov_b32 v%d, s54" % XG)
        for k in range(1, 4):
            A("s_bfe_u32 %s, %s, 0x%x" % (t0, sTAG, 0x80000 | (8 * k)))
            A("v_mov_b32 v%d, %s" % (XG + k, t0))
        if o["vote"]:
            A("s_waitcnt lgkmcnt(0)")
            A("v_add3_u32 v112, v112, v113, v114")
            A("v_add_u32 v112, v112, v115")
            A("v_lshl_add_u32 v%d, v112, 8, v%d" % (XG + 1, XG + 1))
        if o["lastfin"]:
            A("v_lshl_add_u32 v%d, v116, 8, v%d" % (XG + 2, XG + 2))
        A("s_lshl_b32 %s, %s, 4" % (t2, sJ))
        A("s_add_u32 %s, %s, %s" % (t2, t2, sB1))
        A("s_add_u32 %s, %s, 0x4000" % (t2, t2))
        A("v_mov_b32 v22, %s" % t2)
        A("v_add_u32 v109, 0x%x, v22" % (MB1B - MB1A))
        A("s_mov_b64 exec, 1")
        if o["bonly"]:
            A("global_store_dwordx4 v22, v[%d:%d], %s sc1" % (XG, XG + 3, sWS))
        else:
            A("global_store_dwordx4 v22, v[%d:%d], %s" % (XG, XG + 3, sWS))
            if not o["bdefer"]: A("global_store_dwordx4 v109, v[%d:%d], %s sc1" % (XG, XG + 3, sWS))
        A("s_mov_b64 exec, -1")
    if o["idearly"]: die_id()
    if o["b0pos"] == 40: A("s_barrier")
    stamp(3)
    BF = 56
    D0 = 88
    GR = 24
    def gemv(lbase, vm0):
        def rd(m, ct):
            b = BF + 16 * (m & 1)
            for hh in range(2):
                A("ds_read_b64_tr_b16 v[%d:%d], v%d offset:%d" % (b + 4 * ct + 2 * hh, b + 4 * ct + 2 * hh + 1, TRB + ct, lbase + m * 4096 + hh * 512))
        A("s_waitcnt vmcnt(%d)" % (vm0 + 12))
        for ct in range(4): rd(0, ct)
        for m in range(4):
            b = BF + 16 * (m & 1)
            if m < 3: A("s_waitcnt vmcnt(%d)" % (vm0 + 8 - 4 * m))
            if lbase == L_WQ and o["b0pos"] == 41 + m: A("s_barrier")
            for ct in range(4):
                A("s_waitcnt lgkmcnt(%d)" % (6 if m < 3 else 6 - 2 * ct))
                mfma(D0 + 4 * ct, AF + 4 * m, b + 4 * ct, None if m == 0 else D0 + 4 * ct)
                if m < 3: rd(m + 1, ct)
    def pack(maskc, vt, GR, vS1):
        A("s_mov_b32 vcc_lo, 0xffff0000")
        A("s_mov_b32 vcc_hi, 0xffff0000")
        A("s_movk_i32 %s, 0x%x" % (t0, maskc))
        A("s_nop 2")
        A("v_cndmask_b32 v%d, v%d, v%d, vcc" % (GR, D0, D0 + 4))
        A("s_nop 0")
        A("v_cndmask_b32 v%d, v%d, v%d, vcc" % (GR + 1, D0 + 8, D0 + 12))
        A("v_cndmask_b32 v%d, v%d, v%d, s[44:45]" % (GR, GR, GR + 1))
        A("v_and_or_b32 v%d, v%d, %s, %s" % (GR, GR, t0, vt))
        if o["bdefer"]:
            A("s_nop 1")
        else:
            A("v_add_u32 v22, 0x%x, %s" % (MB1B - MB1A, vS1))
            A("s_nop 0")
        for k in range(1, 4):
            A("v_mov_b32_dpp v%d, v%d quad_perm:[%d,%d,%d,%d] %s" % (GR + k, GR, k, k, k, k, DPP))
        A("s_mov_b32 exec_lo, 0x11111111")
        A("s_mov_b32 exec_hi, 0x11111111")
        if o["bonly"]:
            A("global_store_dwordx4 %s, v[%d:%d], %s sc1" % (vS1, GR, GR + 3, sWS))
        else:
            A("global_store_dwordx4 %s, v[%d:%d], %s" % (vS1, GR, GR + 3, sWS))
            if not o["bdefer"]: A("global_store_dwordx4 v22, v[%d:%d], %s sc1" % (GR, GR + 3, sWS))
        A("s_mov_b64 exec, -1")
    gemv(L_WQ, 16 + NW + (1 if o["idearly"] else 0))
    if o["b0pos"] == 45: A("s_barrier")
    pack(0xfff0, vTN, GR, vS1)
    if o["b0pos"] == 47: A("s_barrier")
    stamp(4)
    if not o["idearly"]: die_id()
    if o["b0pos"] == 50: A("s_barrier")
    A("s_sub_i32 %s, %s, s55" % (t2, sJ))
    A("s_lshl_b32 %s, %s, 8" % (t2, t2))
    A("s_add_u32 %s, %s, 0x2000" % (t2, t2))
    A("v_add_u32 v108, %s, %s" % (t2, vS1))
    A("s_cmp_ge_u32 %s, 4" % sNOFF)
    A("s_cbranch_scc1 L_noff2")
    gemv(L_FF, (2 if o['bonly'] or o['bdefer'] else 4) + NW)
    pack(0xff00, vTB, 104, "v108")
    LB("L_noff2")
    stamp(7)
    if o.get("nosync"):
        A("s_barrier")
        A("s_mov_b32 %s, 0" % sCNT)
        dump_stamps()
        A("s_endpgm")
    A("v_and_b32 v4, 15, v0")
    A("v_lshlrev_b32 v4, 4, v4")
    A("v_lshl_add_u32 v4, v126, 10, v4")
    A("s_add_u32 %s, %s, 2432" % (t0, sB1))
    A("v_add_u32 %s, %s, v4" % (vL1, t0))
    A("v_and_b32 v4, 31, v0")
    A("s_add_u32 %s, %s, 0x4000" % (t0, sB1))
    A("v_lshl_add_u32 %s, v4, 4, %s" % (vL1x, t0))
    A("s_lshl_b32 %s, %s, 1" % (t2, t3))
    A("s_sub_u32 %s, 8, %s" % (sRP, t2))
    A("s_mul_i32 %s, %s, %s" % (t2, sRP, sJ))
    A("s_sub_u32 %s, %s, 1" % (t0, sRP))
    A("v_and_b32 v4, 7, v0")
    A("v_min_u32 v4, %s, v4" % t0)
    A("v_add_u32 %s, %s, v4" % (vF, t2))
    A("v_lshrrev_b32 v4, 6, %s" % vF)
    A("v_bfe_u32 v5, v0, 3, 1")
    A("v_lshl_add_u32 v4, v4, 1, v5")
    A("v_lshl_add_u32 v4, v4, 2, v126")
    A("v_bfe_u32 v5, %s, 2, 4" % vF)
    A("v_lshlrev_b32 v5, 4, v5")
    A("v_lshl_add_u32 v4, v4, 8, v5")
    A("s_add_u32 %s, %s, 0x2000" % (t0, sB1))
    A("v_add_u32 %s, %s, v4" % (vL1a, t0))
    if min(nlv) == 0:
        A("s_cmp_lg_u32 %s, 0" % sRP)
        A("s_cbranch_scc1 L_has_ffn")
        A("v_mov_b32 %s, %s" % (vL1a, vL1x))
        LB("L_has_ffn")
    for k in range(4):
        A("s_bfe_u32 s%d, %s, 0x%x" % (56 + k, sTAG, 0x40000 | (4 * k)))
    A("s_movk_i32 s62, 255")
    A("s_mov_b32 s60, 0x0c0c0400")
    A("s_mov_b32 s61, 0x04000c0c")
    P = 40
    PX, PA_ = 72, 76
    A("s_mov_b32 %s, 0" % sCNT)
    def switch_copy(regs):
        A("s_add_u32 %s, %s, 1" % (sCNT, sCNT))
        if not o["bonly"]:
            if o.get("bskip"):
                A("s_cmp_ge_u32 %s, %d" % (sCNT, o["atries"]))
                A("s_cselect_b32 %s, 0x%x, 0" % (t0, MB1B ^ MB1A))
                for r in regs: A("v_xor_b32 %s, %s, %s" % (r, t0, r))
            else:
                A("s_cmp_eq_u32 %s, %d" % (sCNT, o["atries"]))
                A("s_cselect_b32 %s, 0x%x, 0" % (t0, MB1B - MB1A))
                for r in regs: A("v_add_u32 %s, %s, %s" % (r, t0, r))
        A("s_cmp_gt_u32 %s, %d" % (sCNT, o["spinmax"]))
        A("s_cbranch_scc1 L_end")
    def bytecheck(p, dst):
        A("v_perm_b32 v22, v%d, v%d, s60" % (p + 1, p))
        A("v_perm_b32 v23, v%d, v%d, s61" % (p + 3, p + 2))
        A("v_or_b32 v22, v22, v23")
        A("v_cmp_ne_u32 %s, %s, v22" % (dst, sTAG))
    for _ in range(o.get("dly1", 0)): A("s_nop 15")
    stamp(9)
    if o.get("freeq"): A("s_branch L_got1")
    LB("L_poll1")
    stamp(8)
    for i in range(2):
        for q in range(4):
            r = P + 16 * i + 4 * q
            A("global_load_dwordx4 v[%d:%d], %s, %s offset:%d sc1" % (r, r + 3, vL1, sWS, i * 4096 + q * 256 - 2432))
    A("global_load_dwordx4 v[%d:%d], %s, %s sc1" % (PX, PX + 3, vL1x, sWS))
    A("global_load_dwordx4 v[%d:%d], %s, %s sc1" % (PA_, PA_ + 3, vL1a, sWS))
    switch_copy([vL1, vL1x, vL1a])
    for g_ in range(8):
        A("s_waitcnt vmcnt(%d)" % (9 - g_))
        for k in range(4):
            A("v_xor_b32 v%d, s%d, v%d" % (P + 4 * g_ + k, 56 + k, P + 4 * g_ + k))
        if g_ == 0:
            A("v_or3_b32 v21, v%d, v%d, v%d" % (P, P + 1, P + 2))
            A("v_or_b32 v21, v21, v%d" % (P + 3))
        else:
            A("v_or3_b32 v21, v21, v%d, v%d" % (P + 4 * g_, P + 4 * g_ + 1))
            A("v_or3_b32 v21, v21, v%d, v%d" % (P + 4 * g_ + 2, P + 4 * g_ + 3))
    A("v_and_b32 v21, 15, v21")
    A("s_waitcnt vmcnt(1)")
    bytecheck(PX, "vcc")
    A("v_cmp_ne_u32 s[46:47], 0, v21")
    if o.get("dbgfail"):
        A("s_cmp_eq_u32 %s, 1" % sCNT)
        A("s_cselect_b32 s84, vcc_lo, s84")
        A("s_cselect_b32 s62, s46, s62")
        A("s_cselect_b32 s63, s47, s63")
    A("s_or_b64 vcc, vcc, s[46:47]")
    def majority():
        A("v_cmp_gt_i32 vcc, 0, v%d" % (PX + 1))
        A("v_cmp_lt_i32 s[46:47], %s, v%d" % ("s62", PX + 1))
        A("s_bcnt1_i32_b32 %s, vcc_lo" % t0)
        A("s_bcnt1_i32_b32 %s, s46" % t2)
        A("s_cmp_gt_u32 %s, %s" % (t0, t2))
        A("s_cselect_b32 s55, 0x2000, 0")
        if o.get("voteinv"): A("s_xor_b32 s55, s55, 0x2000")
        if o["stamps"]:
            A("s_bcnt1_i32_b32 s63, vcc_lo")
            A("s_lshl_b32 %s, %s, 8" % (t2, t2))
            A("s_or_b32 s63, s63, %s" % t2)
    def publish_b(tag):
        C("write-through copies for peers that sit on another die")
        A("v_add_u32 v22, 0x%x, %s" % (MB1B - MB1A, vS1))
        A("v_add_u32 v23, 0x%x, v108" % (MB1B - MB1A))
        A("s_mov_b64 exec, 1")
        A("global_store_dwordx4 v109, v[%d:%d], %s sc1" % (XG, XG + 3, sWS))
        A("s_mov_b32 exec_lo, 0x11111111")
        A("s_mov_b32 exec_hi, 0x11111111")
        A("global_store_dwordx4 v22, v[%d:%d], %s sc1" % (GR, GR + 3, sWS))
        A("s_cmp_ge_u32 %s, 4" % sNOFF)
        A("s_cbranch_scc1 L_pb_%s" % tag)
        A("global_store_dwordx4 v23, v[104:107], %s sc1" % sWS)
        LB("L_pb_%s" % tag)
        A("s_mov_b64 exec, -1")
    if o["bdefer"]:
        A("s_cbranch_vccz L_got1")
        A("s_cmp_lg_u32 %s, %d" % (sCNT, o["bdefer"]))
        A("s_cbranch_scc1 L_poll1")
        publish_b("a")
        A("s_branch L_poll1")
        LB("L_got1")
    else:
        A("s_cbranch_vccnz L_poll1")
    stamp(5)
    for i in range(2):
        b = P + 16 * i
        for k in range(4):
            A("v_add_f32 v%d, v%d, v%d" % (b + k, b + k, b + 4 + k))
            A("v_add_f32 v%d, v%d, v%d" % (b + 8 + k, b + 8 + k, b + 12 + k))
        for k in range(4):
            A("v_add_f32 v%d, v%d, v%d" % (b + k, b + k, b + 8 + k))
        A("v_cvt_pk_bf16_f32 v%d, v%d, v%d" % (b, b, b + 1))
        A("v_cvt_pk_bf16_f32 v%d, v%d, v%d" % (b + 1, b + 2, b + 3))
    A("v_lshlrev_b32 v22, 3, v0")
    A("ds_write_b64 v22, v[%d:%d] offset:%d" % (P, P + 1, L_Q))
    A("ds_write_b64 v22, v[%d:%d] offset:%d" % (P + 16, P + 17, L_Q + 512))
    A("v_cmp_ne_u32 vcc, s54, v%d" % PX)
    A("s_cmp_eq_u64 vcc, 0")
    A("s_cselect_b32 %s, 1, 0" % sFAST)
    if o.get("forceslow"): A("s_mov_b32 %s, 0" % sFAST)
    if o.get("freeq"): A("s_mov_b32 %s, 1" % sFAST)
    if o["lastfin"]:
        A("v_readfirstlane_b32 %s, v%d" % (t0, PX + 2))
        if o["lastfin"] == 1:
            A("s_not_b32 %s, %s" % (t2, sTAG))
            A("v_mov_b32 v23, %s" % t2)
            A("v_lshlrev_b32 v22, 2, v0")
        A("s_lshr_b32 %s, %s, 8" % (t0, t0))
        A("s_cmp_eq_u32 %s, 7" % t0)
        A("s_cselect_b32 %s, 2, 0" % t0)
        if o.get("fixfin") is not None:
            A("s_cmp_eq_u32 %s, %d" % (sH, o["fixfin"]))
            A("s_cselect_b32 %s, 2, 0" % t0)
        A("s_or_b32 %s, %s, %s" % (sFAST, sFAST, t0))
        if o["lastfin"] == 1: A("ds_write_b32 v22, v23 offset:%d" % L_FIN)
        else:
            majority()
            A("s_or_b32 %s, %s, s55" % (sFAST, sFAST))
    A("v_mov_b32 v26, %s" % sFAST)
    A("v_mov_b32 v27, %s" % sTAG)
    A("v_mov_b32 v22, %d" % L_FLAG)
    A("ds_write_b64 v22, v[26:27]")
    if o["auxearly"] and not o.get("freeq"):
        A("s_waitcnt vmcnt(0)")
        bytecheck(PA_, "vcc")
        A("s_cbranch_vccz L_aux_b1")
        A("global_load_dwordx4 v[%d:%d], %s, %s sc1" % (PA_, PA_ + 3, vL1a, sWS))
        LB("L_aux_b1")
    A("s_waitcnt lgkmcnt(0)")
    A("s_barrier")
    if o["bdefer"]:
        A("s_cmp_gt_u32 %s, %d" % (sCNT, o["bdefer"]))
        A("s_cbranch_scc1 L_b_done")
        A("s_bitcmp1_b32 %s, 0" % sFAST if o.get("bskip") else "s_nop 0")
        if o.get("bskip"): A("s_cbranch_scc1 L_b_done")
        publish_b("b")
        LB("L_b_done")
    if o["vote"] and o["lastfin"] < 2: majority()
    if o["hlate"]:
        A("s_setprio %d" % o.get("hprio", 0))
        A("s_barrier")
        A("s_barrier")
    A("s_branch %s" % ("L_chk_aux" if not o.get("freeq") else "L_poll_aux" if o["freeq"] == 2 else "L_auxdone"))
    LB("L_poll_aux")
    A("global_load_dwordx4 v[%d:%d], %s, %s sc1" % (PA_, PA_ + 3, vL1a, sWS))
    switch_copy([vL1a])
    LB("L_chk_aux")
    A("s_waitcnt vmcnt(0)")
    bytecheck(PA_, "vcc")
    A("s_cbranch_vccnz L_poll_aux")
    if o.get("freeq"): LB("L_auxdone")
    A("s_movk_i32 %s, 0xff00" % t0)
    A("v_and_b32 v23, 1, %s" % vF)
    A("v_cmp_eq_u32 vcc, 0, v23")
    A("v_and_b32 v23, 2, %s" % vF)
    A("v_cmp_eq_u32 s[46:47], 0, v23")
    A("v_cndmask_b32 v24, v%d, v%d, vcc" % (PA_ + 1, PA_))
    A("v_cndmask_b32 v25, v%d, v%d, vcc" % (PA_ + 3, PA_ + 2))
    A("v_cndmask_b32 v24, v25, v24, s[46:47]")
    A("v_and_b32 v24, %s, v24" % t0)
    allred("v24", "v23", "v_add_f32", 16)
    allred("v24", "v23", "v_add_f32", 32)
    A("v_cvt_pk_bf16_f32 v24, v24, v24")
    A("v_and_b32 v24, %s, v24" % t1)
    A("v_mul_f32 v25, 0x%x, v24" % (LOG2E | 0x80000000))
    A("v_exp_f32 v25, v25")
    A("v_mov_b32_dpp v26, v24 row_ror:8 %s" % DPP)
    A("v_add_f32 v25, 1.0, v25")
    A("v_rcp_f32 v25, v25")
    A("v_cmp_le_u32 vcc, %s, v0" % sRP)
    A("v_mul_f32 v25, v24, v25")
    A("v_cvt_pk_bf16_f32 v25, v25, v25")
    A("v_and_b32 v25, %s, v25" % t1)
    A("v_mul_f32 v25, v25, v26")
    A("v_cvt_pk_bf16_f32 v25, v25, v25")
    A("v_cndmask_b32 v25, v25, 0, vcc")
    A("v_lshlrev_b32 v22, 2, v0")
    if o["vote"] and not o["lastfin"]:
        A("v_mov_b32 v26, s55")
        A("v_mov_b32 v27, 0")
        A("ds_write_b32 v27, v26 offset:%d" % (L_FLAG + 8))
    A("s_mov_b64 exec, 0xff")
    A("ds_write_b32 v22, v25 offset:%d" % L_H)
    A("s_waitcnt lgkmcnt(0)")
    stamp(6)
    if o["lastfin"] == 1:
        A("s_bitcmp1_b32 %s, 1" % sFAST)
        A("s_cbranch_scc1 L_ufin")
    if not o.get("nodumpU"): dump_stamps()
    A("s_endpgm")
    def unit_final():
        LB("L_ufin")
        C("last group: lane = (wave l>>4, pair (l>>3)&1, group l&7) gathers the eight groups' sums of this workgroup's 16 columns")
        A("s_mov_b64 exec, -1")
        A("s_setprio %d" % o.get("uprio", 0))
        vA3, vLF, vXO, vXV = "v4", "v5", "v6", "v7"
        FP, FS = 8, 40
        A("v_lshrrev_b32 %s, 3, v0" % vLF)
        A("s_lshl_b32 %s, %s, 5" % (t0, sJ))
        A("v_lshl_add_u32 %s, %s, 2, %s" % (vXO, vLF, t0))
        A("global_load_dword %s, %s, %s" % (vXV, vXO, sX))
        A("v_lshlrev_b32 %s, 4, %s" % (vLF, vLF))
        A("s_lshr_b32 %s, %s, 1" % (t0, sJ))
        A("s_lshl_b32 %s, %s, 14" % (t0, t0))
        A("s_and_b32 %s, %s, 1" % (t2, sJ))
        A("s_lshl_b32 %s, %s, 12" % (t2, t2))
        A("s_add_u32 %s, %s, %s" % (t0, t0, t2))
        A("s_add_u32 %s, %s, s55" % (t0, t0))
        A("s_add_u32 %s, %s, 0x%x" % (t0, t0, MB3))
        A("v_and_b32 v22, 7, v0")
        A("v_lshl_add_u32 %s, v22, 9, %s" % (vA3, t0))
        A("v_lshlrev_b32 v22, 7, v126")
        A("v_and_b32 v23, 16, %s" % vLF)
        A("v_add3_u32 %s, %s, v22, v23" % (vA3, vA3))
        A("s_lshl_b32 s44, 0x01010101, %s" % sH)
        A("s_mov_b32 s45, s44")
        A("s_not_b64 s[46:47], s[44:45]")
        A("s_mov_b32 %s, %d" % (sCNT, o["spinmax"]))
        A("s_barrier")
        A("s_barrier")
        A("s_waitcnt vmcnt(0)")
        A("v_lshlrev_b32 v22, 16, %s" % vXV)
        A("v_and_b32 v23, %s, %s" % (t1, vXV))
        def spf():
            C("pull the other groups' lines into this die's L2 over the scalar path (the vector path returns in order and is busy with the group's own hand-off)")
            for k in range(1, 8):
                for w_ in range(4):
                    A("s_load_dword s%d, %s, s%d offset:%d glc" % (6 + (4 * k + w_) % 16, sWS, 48 + k, 128 * w_))
        if o.get("spf"):
            for k in range(1, 8):
                A("s_xor_b32 s%d, %s, %d" % (48 + k, sH, k))
                A("s_lshl_b32 s%d, s%d, 9" % (48 + k, 48 + k))
                A("s_add_u32 s%d, s%d, %s" % (48 + k, 48 + k, t0))
        if o.get("spf", 0) & 2: spf()
        if o["reuse"]: A("s_barrier")
        if o.get("spf", 0) & 1: spf()
        NP = o["npu"]
        def own_read():
            A("s_mov_b64 exec, s[44:45]")
            A("ds_read_b128 v[%d:%d], %s offset:%d" % (FP, FP + 3, vLF, L_FIN))
        if o.get("uwait"):
            A("s_mov_b64 exec, s[44:45]")
            LB("L_uw")
            A("ds_read_b128 v[%d:%d], %s offset:%d" % (FP, FP + 3, vLF, L_FIN))
            A("s_sub_u32 %s, %s, 1" % (sCNT, sCNT))
            A("s_cbranch_scc1 L_end")
            A("s_waitcnt lgkmcnt(0)")
            A("v_cmp_ne_u32 vcc, %s, v%d" % (sTAG, FP + 3))
            if o["uwait"] == 1:
                A("s_cbranch_vccnz L_uw")
            else:
                A("s_cmp_eq_u64 vcc, s[44:45]")
                A("s_cbranch_scc1 L_uw")
        for k in range(NP):
            if k:
                for _ in range(o["stag"]):
                    own_read(); A("s_waitcnt lgkmcnt(0)")
            A("s_mov_b64 exec, s[46:47]")
            A("global_load_dwordx4 v[%d:%d], %s, %s sc1" % (FS + 4 * k, FS + 4 * k + 3, vA3, sWS))
        LB("L_upoll")
        for k in range(NP):
            own_read()
            A("s_mov_b64 exec, s[46:47]")
            A("s_waitcnt vmcnt(%d) lgkmcnt(0)" % (NP - 1))
            A("v_cmp_ne_u32 vcc, %s, v%d" % (sTAG, FS + 4 * k + 3))
            A("v_mov_b32 v%d, v%d" % (FP, FS + 4 * k))
            A("v_mov_b32 v%d, v%d" % (FP + 1, FS + 4 * k + 1))
            A("s_and_b64 s[46:47], exec, vcc")
            A("s_cbranch_scc0 L_ugot")
            A("s_mov_b64 exec, s[46:47]")
            A("global_load_dwordx4 v[%d:%d], %s, %s sc1" % (FS + 4 * k, FS + 4 * k + 3, vA3, sWS))
        A("s_sub_u32 %s, %s, 1" % (sCNT, sCNT))
        A("s_cbranch_scc0 L_upoll")
        A("s_endpgm")
        LB("L_uown")
        A("ds_read_b128 v[%d:%d], %s offset:%d" % (FP, FP + 3, vLF, L_FIN))
        A("s_sub_u32 %s, %s, 1" % (sCNT, sCNT))
        A("s_cbranch_scc1 L_end")
        A("s_waitcnt lgkmcnt(0)")
        LB("L_ugot")
        A("s_mov_b64 exec, s[44:45]")
        A("v_cmp_ne_u32 vcc, %s, v%d" % (sTAG, FP + 3))
        A("s_cbranch_vccnz L_uown")
        stamp(10)
        A("s_mov_b64 exec, -1")
        x_, y_ = "v%d" % FP, "v%d" % (FP + 1)
        for pat in ("quad_perm:[1,0,3,2]", "quad_perm:[2,3,0,1]", "row_half_mirror"):
            A("v_add_f32_dpp %s, %s, %s %s %s" % (x_, x_, x_, pat, DPP))
            A("v_add_f32_dpp %s, %s, %s %s %s" % (y_, y_, y_, pat, DPP))
            if pat != "row_half_mirror": A("s_nop 0")
        A("s_mov_b32 s44, 0x01010101")
        A("v_add_f32 %s, %s, v22" % (x_, x_))
        A("v_add_f32 %s, %s, v23" % (y_, y_))
        A("s_mov_b32 s45, s44")
        A("v_cvt_pk_bf16_f32 %s, %s, %s" % (x_, x_, y_))
        A("s_mov_b64 exec, s[44:45]")
        A("global_store_dword %s, %s, %s" % (vXO, x_, sOUT))
        A("s_cmp_lg_u32 %s, 0" % sJ)
        A("s_cbranch_scc1 L_udone")
        C("the next launch must not mistake this launch's hand-off words for its own")
        A("s_mov_b64 exec, 1")
        A("v_mov_b32 v22, 0")
        A("v_mov_b32 v23, %s" % sTAG)
        A("global_store_dword v22, v23, %s" % sWS)
        LB("L_udone")
        role[0] = "U"
        amp_end("u")
        dump_stamps()
        A("s_endpgm")

    role[0] = "A"
    if o.get("alignA"): L.append(".p2align %d" % o["alignA"])
    for _ in range(o.get("shiftA", 0)): A("s_nop 0")
    LB("L_attn")
    vK0, vK1, vV0, vV1 = "v2", "v3", "v4", "v5"
    vWO0, vWO1, vDN0, vDN1, vXF, vXP = "v6", "v7", "v8", "v9", "v10", "v1"
    vS2, vL2, vS25, vL25, vL3, vS3 = "v11", "v12", "v13", "v14", "v15", "v150"
    KR, VR, WOR, DNR, QR, SR, PA, MK = 16, 48, 80, 96, 104, 120, 128, 146
    vM0, vM1, vQA, vOW, vOR, vMLW, vHA = "v151", "v152", "v153", "v154", "v155", "v156", "v157"
    vN, vG, vN16, vP = "v120", "v121", "v122", "v123"
    u0, u1 = "v124", "v125"
    s4JW = "s41"
    C("K and V: load i = 1 KB block (4 keys) number 128 i + 4j + w of the head's window; K goes through LDS")
    A("s_lshl_b32 %s, %s, 24" % (t0, sH))
    A("s_lshl_b32 %s, %s, 2" % (s4JW, sJ))
    A("s_add_u32 %s, %s, %s" % (s4JW, s4JW, sW))
    if o["lastfin"]:
        C("arrival order of the eight groups (one counter in the zeroed debug words)")
        A("s_cmp_lg_u32 %s, 0" % s4JW)
        A("s_cbranch_scc1 L_notkt0")
        A("v_mov_b32 v158, 0")
        A("v_mov_b32 v159, 1")
        A("s_mov_b64 exec, 1")
        A("global_atomic_add v159, v158, v159, s[24:25] sc0 sc1")
        A("s_mov_b64 exec, -1")
        LB("L_notkt0")
    A("s_lshl_b32 %s, %s, 10" % (t2, s4JW))
    A("s_add_u32 %s, %s, %s" % (t0, t0, t2))
    A("s_add_u32 %s, %s, 0xF00000" % (t0, t0))
    A("v_and_b32 %s, 15, v0" % vN)
    A("v_lshrrev_b32 %s, 4, v0" % vG)
    A("v_lshlrev_b32 %s, 4, %s" % (vN16, vN))
    A("v_lshl_add_u32 %s, v0, 4, %s" % (vV0, t0))
    A("v_lshlrev_b32 %s, 6, %s" % (u0, vG))
    A("v_xor_b32 %s, %s, %s" % (vK0, u0, vV0))
    A("s_lshl_b32 %s, %s, 13" % (t1, sW))
    A("s_add_u32 m0, %s, %d" % (t1, L_K))
    A("s_mov_b32 s42, 0x20000")
    A("s_movk_i32 s43, 1024")
    if not o["vote"]: A("s_waitcnt lgkmcnt(0)")
    if o.get("tlbw") == 1:
        A("s_cmp_lg_u32 %s, 0" % sW)
        A("s_cbranch_scc1 L_notlb")
        tlbwarm()
        A("s_waitcnt vmcnt(0)")
        LB("L_notlb")
    if o["vote"]: A("s_waitcnt lgkmcnt(1)")
    if o["lastfin"]:
        A("s_cmp_lg_u32 %s, 0" % s4JW)
        A("s_cbranch_scc1 L_notkt")
        A("s_mov_b64 exec, 1")
        A("s_waitcnt vmcnt(0)")
        A("ds_write_b32 v158, v159 offset:%d" % L_TKT)
        A("s_mov_b64 exec, -1")
        A("s_waitcnt lgkmcnt(0)")
        LB("L_notkt")
    if o["b0pos"]: A("s_barrier")
    stamp(1)
    issued = [0]
    def load(w, txt):
        if issued[0] >= w:
            A("s_waitcnt vmcnt(%d)" % (w - 1))
        A(txt); issued[0] += 1
    def rot(i): return (i * o["rotm"]) & 127
    def kload(i):
        load(o["WK"], "global_load_lds_dwordx4 %s, %s %s" % (vK0, sK, nt))
        if i < 7:
            A("s_add_u32 m0, m0, s43")
            A("v_xor_b32 %s, %d, %s" % (vK0, (((i & 3) ^ ((i + 1) & 3)) << 4) | ((rot(i) ^ rot(i + 1)) << 10), vK0))
            A("v_add_u32 %s, s42, %s" % (vK0, vK0))
    nk_first = min(o["WK"], 8)
    if o.get("bal"):
        A("v_and_b32 v158, 7, v0")
        A("v_lshlrev_b32 v158, 2, v158")
        A("global_load_dword v159, v158, s[24:25] sc1")
    for i in range(nk_first): kload(i)
    C("address and mask setup in the shadow of the K loads")
    if o["stouch"]: A("s_load_dword s63, %s, 0" % sOUT)
    A("s_lshl_b32 %s, %s, 19" % (t0, sH))
    A("s_lshl_b32 %s, %s, 14" % (t2, sJ))
    A("s_add_u32 %s, %s, %s" % (t0, t0, t2))
    A("s_lshl_b32 %s, %s, 8" % (t3, sW))
    A("s_add_u32 %s, %s, %s" % (t0, t0, t3))
    A("s_add_u32 %s, %s, 0x1000" % (t0, t0))
    A("v_lshl_add_u32 %s, %s, 10, %s" % (vDN0, vG, vN16))
    A("v_add_u32 %s, %s, %s" % (vWO0, t0, vDN0))
    A("v_add_u32 %s, 0x2000, %s" % (vWO1, vWO0))
    ffn_share(t0, t2)
    A("s_lshl_b32 %s, s3, 6" % t0)
    A("s_lshl_b32 %s, %s, 1" % (t2, t2))
    A("s_sub_u32 %s, 8, %s" % (t1, t2))
    A("s_mul_i32 %s, %s, %s" % (t2, t1, sJ))
    A("s_add_u32 %s, %s, %s" % (t0, t0, t2))
    A("s_lshl_b32 %s, %s, 10" % (t0, t0))
    A("s_add_u32 %s, %s, %s" % (t0, t0, t3))
    A("s_sub_u32 %s, %s, 1" % (t1, t1))
    A("v_add_u32 %s, %s, %s" % (u1, t0, vN16))
    A("v_min_u32 %s, %s, %s" % (vDN0, t1, vG))
    A("v_lshl_add_u32 %s, %s, 10, %s" % (vDN0, vDN0, u1))
    A("v_add_u32 %s, 4, %s" % (vDN1, vG))
    A("v_min_u32 %s, %s, %s" % (vDN1, t1, vDN1))
    A("v_lshl_add_u32 %s, %s, 10, %s" % (vDN1, vDN1, u1))
    A("v_and_b32 %s, 1, v0" % vP)
    A("v_and_b32 %s, 1, %s" % (u0, vG))
    if o["g25"]:
        if o["cq25"]:
            A("s_lshr_b32 %s, %s, 3" % (t2, sJ))
            A("s_lshl_b32 %s, %s, 8" % (t2, t2))
            A("s_and_b32 %s, %s, 3" % (t0, sJ))
            A("s_lshl_b32 %s, %s, 6" % (t0, t0))
            A("s_add_u32 %s, %s, %s" % (t2, t2, t0))
            A("s_and_b32 %s, %s, 4" % (t0, sJ))
            A("s_lshl_b32 %s, %s, 1" % (t0, t0))
            A("s_add_u32 %s, %s, %s" % (t2, t2, t0))
        else:
            A("s_lshl_b32 %s, %s, 5" % (t2, sJ))
        A("v_bfe_u32 %s, v0, 3, 2" % u1)
        A("v_lshl_add_u32 %s, %s, %d, %s" % (vXF, u1, 4 if o["cq25"] else 3, t2))
        A("v_lshrrev_b32 %s, 5, v0" % u1)
        A("v_lshl_add_u32 %s, %s, 2, %s" % (vXF, u1, vXF))
    else:
        A("s_lshl_b32 %s, %s, 3" % (t2, s4JW))
        A("v_lshl_add_u32 %s, %s, 2, %s" % (vXF, u0, t2))
    RP = o["rp"]
    M25 = 0 if o["reuse"] else MB25 - MB2
    lay = 3 if o["reuse"] else o.get("lay25", 0)
    A("s_mul_i32 %s, %s, %d" % (t0, sH, 32 * RP))
    A("s_add_u32 %s, %s, 0x%x" % (t0, t0, MB2))
    A("s_mul_i32 %s, %s, %d" % (t1, sJ, RP))
    A("s_add_u32 %s, %s, %s" % (t1, t1, t0))
    A("s_mul_i32 %s, %s, %d" % (t2, sW, 8 * RP))
    A("s_lshl_b32 %s, %s, 6" % (t3, sJ))
    A("s_add_u32 %s, %s, %s" % (t0, t0, t3))
    A("s_add_u32 %s, %s, %s" % (t2, t2, t0))
    A("v_bfe_u32 %s, v0, 2, 3" % vS2 if o["cq2"] else "v_lshrrev_b32 %s, 3, v0" % vS2)
    A("v_mul_u32_u24 %s, %d, %s" % (vS2, RP, vS2))
    A("v_and_b32 %s, 3, v0" % u1 if o["cq2"] else "v_bfe_u32 %s, v0, 1, 2" % u1)
    A("v_lshlrev_b32 %s, 4, %s" % (u1, u1))
    A("v_add3_u32 %s, %s, %s, %s" % (vS2, vS2, u1, t2))
    A("v_lshl_add_u32 %s, v0, 4, %s" % (vL2, t1))
    A("s_lshl_b32 %s, %s, 4" % (t3, sW))
    A("v_and_b32 %s, 31, v0" % u1)
    if lay == 0:
        A("s_add_u32 %s, %s, %s" % (t1, t1, t3))
        A("s_add_u32 %s, %s, 0x%x" % (t1, t1, M25))
        A("v_lshl_add_u32 %s, %s, 6, %s" % (vL25, u1, t1))
        A("v_lshrrev_b32 %s, 1, %s" % (vS25, vN))
        A("v_mul_u32_u24 %s, %d, %s" % (vS25, RP, vS25))
        A("v_lshl_add_u32 %s, %s, 5, %s" % (vS25, vP, vS25))
        A("v_lshl_add_u32 %s, %s, 4, %s" % (vS25, u0, vS25))
        A("s_add_u32 %s, %s, 0x%x" % (t2, t2, M25))
        A("v_add_u32 %s, %s, %s" % (vS25, t2, vS25))
    else:
        if not o["g25"]: A("s_add_u32 %s, %s, %s" % (t0, t0, t3))
        if M25: A("s_add_u32 %s, %s, 0x%x" % (t0, t0, M25))
        if o["g25"]:
            A("v_lshrrev_b32 %s, 2, v0" % vL25)
            A("v_mul_u32_u24 %s, %d, %s" % (vL25, RP, vL25))
            A("v_and_b32 %s, 3, v0" % u1)
            A("v_lshlrev_b32 %s, 4, %s" % (u1, u1))
            A("v_add3_u32 %s, %s, %s, %s" % (vL25, vL25, u1, t0))
            A("v_add_u32 v164, %d, %s" % (16 * RP, vL25))
        else:
            A("v_mul_u32_u24 %s, %d, %s" % (vL25, RP, u1))
            A("v_add_u32 %s, %s, %s" % (vL25, t0, vL25))
        A("s_lshl_b32 %s, %s, 9" % (t3, sW))
        A("s_add_u32 %s, %s, %s" % (t1, t1, t3))
        if M25: A("s_add_u32 %s, %s, 0x%x" % (t1, t1, M25))
        if o["cq25"]:
            A("v_and_b32 %s, 31, v0" % vS25)
            A("v_lshl_add_u32 %s, %s, 4, %s" % (vS25, vS25, t1))
        else:
            A("v_lshl_add_u32 %s, %s, 5, %s" % (vS25, vN, t1))
            A("v_lshl_add_u32 %s, %s, 4, %s" % (vS25, u0, vS25))
    A("s_lshr_b32 %s, %s, 1" % (t0, sJ))
    A("s_lshl_b32 %s, %s, 14" % (t0, t0))
    A("s_and_b32 %s, %s, 1" % (t3, sJ))
    A("s_lshl_b32 %s, %s, 12" % (t3, t3))
    A("s_add_u32 %s, %s, %s" % (t0, t0, t3))
    if o["g25"]:
        A("s_add_u32 %s, %s, 0x%x" % (t0, t0, MB3))
        A("v_lshrrev_b32 %s, 3, v0" % u0)
        A("v_lshl_add_u32 %s, %s, 4, %s" % (u0, u0, t0))
        A("v_and_b32 %s, 7, v0" % vL3)
        A("v_lshl_add_u32 %s, %s, 9, %s" % (vL3, vL3, u0))
        A("s_lshl_b32 %s, %s, 9" % (t3, sH))
        A("s_add_u32 %s, %s, %s" % (t0, t0, t3))
        A("v_lshrrev_b32 %s, 5, v0" % u0)
        A("v_lshl_add_u32 %s, %s, 6, %s" % (u0, u0, u1))
        A("v_bfe_u32 %s, v0, 2, 1" % u1)
        A("v_lshlrev_b32 %s, 13, %s" % (u1, u1))
        A("v_add3_u32 %s, %s, %s, %s" % (vS3, u0, u1, t0))
        if o["pt3"]:
            A("s_and_b32 %s, %s, 1" % (t3, sW))
            A("s_lshl_b32 %s, %s, 6" % (t3, t3))
            A("s_add_u32 s3, %s, %s" % (t0, t3))
            A("s_lshr_b32 %s, %s, 1" % (t3, sW))
            A("s_lshl_b32 %s, %s, 13" % (t3, t3))
            A("s_add_u32 s3, s3, %s" % t3)
    else:
        A("s_lshl_b32 %s, %s, 7" % (t3, sW))
        A("s_add_u32 %s, %s, %s" % (t0, t0, t3))
        A("s_add_u32 %s, %s, 0x%x" % (t0, t0, MB3))
        if o["lastfin"] == 1:
            A("s_lshl_b32 %s, %s, 5" % (t3, sW))
            A("v_lshl_add_u32 %s, %s, 4, %s" % (vL3, u0, t3))
        if o["lastfin"] >= 2:
            A("s_lshl_b32 s3, %s, 9" % sH)
            A("s_add_u32 s3, s3, %s" % t0)
        A("v_lshl_add_u32 %s, %s, 4, %s" % (u0, u0, t0))
        if o["lastfin"] != 1:
            A("v_and_b32 %s, 7, v0" % u1)
            A("v_lshl_add_u32 %s, %s, 9, %s" % (vL3, u1, u0))
        A("s_lshl_b32 %s, %s, 9" % (t3, sH))
        A("v_lshl_add_u32 %s, %s, 13, %s" % (u0, vP, u0))
        A("v_add_u32 %s, %s, %s" % (vS3, t3, u0))
    if o.get("mockx"):
        A("s_lshr_b32 %s, %s, 1" % (t0, sJ))
        A("s_lshl_b32 %s, %s, 14" % (t0, t0))
        A("s_and_b32 %s, %s, 1" % (t3, sJ))
        A("s_lshl_b32 %s, %s, 12" % (t3, t3))
        A("s_add_u32 %s, %s, %s" % (t0, t0, t3))
        A("s_lshl_b32 %s, %s, 9" % (t3, sH))
        A("s_add_u32 %s, %s, %s" % (t0, t0, t3))
        A("s_and_b32 %s, %s, 1" % (t3, sW))
        A("s_lshl_b32 %s, %s, 13" % (t3, t3))
        A("s_add_u32 %s, %s, %s" % (t0, t0, t3))
        A("s_add_u32 %s, %s, 0x%x" % (t0, t0, MB3))
        A("v_and_b32 %s, 3, v0" % u0)
        A("v_lshl_add_u32 %s, %s, 4, %s" % (vS3, u0, t0))
        A("s_and_b32 %s, %s, 3" % (t0, sJ))
        A("s_lshl_b32 %s, %s, 2" % (t0, t0))
        A("s_add_u32 %s, %s, %s" % (t0, t0, sW))
        A("s_lshl_b32 %s, %s, 14" % (t0, t0))
        A("s_lshr_b32 %s, %s, 2" % (t3, sJ))
        A("s_lshl_b32 %s, %s, 9" % (t3, t3))
        A("s_add_u32 %s, %s, %s" % (t0, t0, t3))
        A("s_add_u32 %s, %s, 0x%x" % (t0, t0, MB3))
        A("v_lshl_add_u32 %s, %s, 4, %s" % (vL3, u0, t0))
        A("v_bfe_u32 %s, v0, 2, 1" % u0)
        A("v_lshl_add_u32 %s, %s, 12, %s" % (vL3, u0, vL3))
    A("v_lshlrev_b32 %s, 4, %s" % (u1, vP))
    def pretouch2():
        C("pull this workgroup's incoming hand-off lines into L2 (waves 0,1: hop 2; waves 2,3: hop 2.5)")
        if o["reuse"]:
            A("s_lshl_b32 %s, %s, 9" % (t0, sW))
            A("v_lshlrev_b32 v158, 3, v0")
            A("v_sub_u32 v158, %s, v158" % vL2)
            A("v_add_u32 v158, %s, v158" % t0)
            if o["pt3"]: A("v_writelane_b32 v158, s3, 63")
        else:
            A("s_and_b32 %s, %s, 1" % (t0, sW))
            A("s_lshl_b32 %s, %s, 10" % (t0, t0))
            A("s_lshr_b32 %s, %s, 1" % (t3, sW))
            A("s_mul_i32 %s, %s, 0x%x" % (t3, t3, MB25 - MB2))
            A("s_add_u32 %s, %s, %s" % (t0, t0, t3))
            A("v_add_u32 v158, %s, %s" % (t0, vL2))
        if o["pretouch"] in ("r", "k"):
            A("global_load_dword v159, v158, %s sc1" % sWS); issued[0] += 1
        if o.get("otouch2", 0) & 1:
            A("global_load_dword v166, %s, %s" % (vXF, sOUT)); issued[0] += 1
        if o.get("otouch2", 0) & 2:
            A("global_load_dword v165, %s, %s sc1" % (vS3, sWS)); issued[0] += 1
    if o["pretouch"] == "r" or isinstance(o["pretouch"], int): pretouch2()
    A("v_mov_b32 %s, 0xffff" % u0)
    A("v_lshlrev_b32 %s, %s, %s" % (u0, u1, u0))
    A("v_and_b32 %s, 2, v0" % u1)
    A("v_cmp_eq_u32 vcc, 0, %s" % u1)
    A("v_lshrrev_b32 %s, 1, %s" % (u1, vN))
    A("v_lshlrev_b32 %s, 2, %s" % (vHA, vG))
    SEL = 160
    A("v_mov_b32 v%d, 0x0c0c0c0c" % (SEL + 2))
    A("v_mov_b32 v%d, 0x01000100" % (SEL + 3))
    A("v_bfi_b32 v%d, %s, v%d, v%d" % (SEL + 3, u0, SEL + 3, SEL + 2))
    A("v_cndmask_b32 v%d, v%d, v%d, vcc" % (SEL, SEL + 2, SEL + 3))
    A("v_cndmask_b32 v%d, v%d, v%d, vcc" % (SEL + 1, SEL + 3, SEL + 2))
    A("v_and_b32 v%d, 0x02020202, %s" % (SEL + 3, u0))
    A("v_cndmask_b32 v%d, 0, v%d, vcc" % (SEL + 2, SEL + 3))
    A("v_cndmask_b32 v%d, v%d, 0, vcc" % (SEL + 3, SEL + 3))
    A("v_add_u32 v%d, v%d, v%d" % (SEL + 2, SEL + 2, SEL))
    A("v_add_u32 v%d, v%d, v%d" % (SEL + 3, SEL + 3, SEL + 1))
    for r in range(4):
        A("v_cmp_eq_u32 s[%d:%d], %d, %s" % (44 + 2 * r, 45 + 2 * r, r, u1))
    A("v_lshrrev_b32 %s, 2, %s" % (vMLW, vN))
    A("v_lshlrev_b32 %s, 4, %s" % (u1, vG))
    A("v_lshl_add_u32 %s, %s, 8, %s" % (vQA, vMLW, u1))
    for r in range(4):
        A("v_cndmask_b32 v%d, 0, %s, s[%d:%d]" % (MK + r, u0, 44 + 2 * r, 45 + 2 * r))
    OH, OG, OWV = (384, 768, 3072) if o["cq2"] else (256, 512, 2048)
    if o["cq2"]:
        A("s_mul_i32 %s, %s, %d" % (t0, sW, OWV))
        A("v_mul_u32_u24 %s, %d, %s" % (vOW, OG, vG))
        A("v_add3_u32 %s, %s, %s, %s" % (vOW, vOW, vN16, t0))
    else:
        A("s_lshl_b32 %s, %s, 11" % (t0, sW))
        A("v_lshl_add_u32 %s, %s, 9, %s" % (vOW, vG, vN16))
        A("v_add_u32 %s, %s, %s" % (vOW, t0, vOW))
    A("s_lshl_b32 %s, %s, 3" % (t0, sW))
    A("v_lshl_add_u32 %s, %s, 5, %s" % (vMLW, vMLW, t0))
    if o["cq2"]:
        A("v_bfe_u32 %s, v0, 1, 4" % u1)
        A("v_lshlrev_b32 %s, 4, %s" % (u1, u1))
        A("v_mul_u32_u24 %s, %d, %s" % (u0, OH, vP))
        A("s_mul_i32 %s, %s, %d" % (t0, sW, OG))
        A("v_add3_u32 %s, %s, %s, %s" % (vOR, u0, u1, t0))
    else:
        A("v_bfe_u32 %s, v0, 1, 1" % u0)
        A("v_lshrrev_b32 %s, 2, v0" % u1)
        A("v_lshlrev_b32 %s, 4, %s" % (u1, u1))
        A("v_lshl_add_u32 %s, %s, 8, %s" % (u1, u0, u1))
        A("v_lshl_add_u32 %s, %s, 3, %s" % (u1, vP, u1))
        A("s_lshl_b32 %s, %s, 9" % (t0, sW))
        A("v_add_u32 %s, %s, %s" % (vOR, t0, u1))
    KA = 140
    A("v_and_b32 %s, 3, v0" % u0)
    A("v_lshrrev_b32 %s, 2, %s" % (u1, vN))
    A("v_lshlrev_b32 %s, 8, %s" % (u1, u1))
    A("v_lshl_add_u32 %s, %s, 10, %s" % (u0, u0, u1))
    A("v_xor_b32 %s, %s, %s" % (u1, vG, vN))
    A("v_lshl_add_u32 %s, %s, 4, %s" % (u0, u1, u0))
    A("s_lshl_b32 %s, %s, 13" % (t1, sW))
    A("v_add_u32 v%d, %s, %s" % (KA, t1, u0))
    for s_ in range(1, 4):
        A("v_xor_b32 v%d, %d, v%d" % (KA + s_, s_ << 6, KA))
    if o.get("cheap", 0) & 1:
        A("v_and_b32 %s, 0x3fff, %s" % (vWO0, vWO0)); A("v_or_b32 %s, 0x1000, %s" % (vWO0, vWO0)); A("v_mov_b32 %s, %s" % (vWO1, vWO0))
    if o.get("cheap", 0) & 2:
        A("v_and_b32 %s, 0x3fff, %s" % (vDN0, vDN0)); A("v_mov_b32 %s, %s" % (vDN1, vDN0))
    if o.get("cheap", 0) & 4:
        A("v_and_b32 %s, 0x3fff, %s" % (vV0, vV0)); A("s_mov_b32 s63, 0")
    for _ in range(o.get("delayA", 0)): A("s_nop 3")
    def issue_rest(WK_, W_):
        o_wk = o["WK"]; o["WK"] = WK_
        for i in range(nk_first, 8): kload(i)
        o["WK"] = o_wk
        if o["pretouch"] == "k": pretouch2()
        if o.get("xearly"):
            A("global_load_dword %s, %s, %s" % (vXP, vXF, sX)); issued[0] += 1
        for i in range(8 - o["vlate"]):
            ld, *step = vload(i)
            load(W_, ld)
            for t_ in step: A(t_)
    def vload(i):
        r = VR + i * 4
        seq = ["global_load_dwordx4 v[%d:%d], %s, %s %s" % (r, r + 3, vV0, sV, nt)]
        if i < 7:
            if rot(i) ^ rot(i + 1): seq.append("v_xor_b32 %s, %d, %s" % (vV0, (rot(i) ^ rot(i + 1)) << 10, vV0))
            seq.append("v_add_u32 %s, %s, %s" % (vV0, "s63" if o.get("cheap", 0) & 4 and i % o.get("cheapm", 1) == 0 else "s42", vV0))
        return seq
    if o.get("bal"):
        C("a group that started well after others asks memory with a wider window")
        A("s_waitcnt vmcnt(%d)" % issued[0])
        A("v_sub_u32 v158, s90, v159")
        A("v_cmp_ne_u32 vcc, 0, v159")
        A("v_cmp_lt_i32 s[44:45], %d, v158" % o.get("theta", 40))
        A("s_and_b32 s62, vcc_lo, s44")
        A("s_and_b32 s62, s62, 0xff")
        A("s_bcnt1_i32_b32 s62, s62")
        A("s_cmp_ge_u32 s62, %d" % o.get("lateth", 2))
        A("s_cbranch_scc1 L_wide")
        keep = issued[0]
        issue_rest(o["WK"], o["W"])
        A("s_branch L_issued")
        LB("L_wide")
        issued[0] = keep
        issue_rest(o["WK"] + o["bal"], o["W"] + o["bal"])
        LB("L_issued")
    elif o.get("c3"):
        A("s_lshr_b32 %s, %s, 2" % (t0, sJ))
        A("s_cmp_eq_u32 %s, 3" % t0)
        A("s_cbranch_scc1 L_wide")
        keep = issued[0]
        issue_rest(o["WK"], o["W"])
        A("s_branch L_issued")
        LB("L_wide")
        issued[0] = keep
        issue_rest(o["WK"] + o["c3"], o["W"] + o.get("c3v", o["c3"]))
        LB("L_issued")
    else:
        issue_rest(o["WK"], o["W"])
    tail = []
    if o["lastfin"] != 1 and not o.get("xstag"): tail.append("global_load_dword %s, %s, %s" % (vXP, vXF, sX))
    for a in range(2):
        r = DNR + a * 4
        tail.append("global_load_dwordx4 v[%d:%d], %s, %s %s" % (r, r + 3, (vDN0, vDN1)[a], sDN, nt))
    for m in range(4):
        r = WOR + m * 4
        tail.append("global_load_dwordx4 v[%d:%d], %s, %s offset:%d %s" % (r, r + 3, (vWO0, vWO1)[m >> 1], sWO, (0, -4096)[(m & 1) == 0], nt))
    dnl = []
    if o.get("dnlate"):
        dnl = tail[1:1 + 2]
        if o["dnlate"] == 2: dnl = dnl[1:]
        for t_ in dnl: tail.remove(t_)
        tail.append(tail.pop(0))
    if isinstance(o["pretouch"], int):
        tail.insert(o["pretouch"], "global_load_dword v159, v158, %s sc1" % sWS)
    if o.get("xearly"):
        xl = [t_ for t_ in tail if vXP + "," in t_][0]; tail.remove(xl)
    taft = []
    for _ in range(o.get("tafter", 0)): taft.insert(0, tail.pop())
    tail[:0] = [vload(i) for i in range(8 - o["vlate"], 8)]
    nav = [-o["vlate"]]
    def tail_issue(n):
        for _ in range(n):
            if tail:
                t_ = tail.pop(0)
                for q_ in ([t_] if isinstance(t_, str) else t_): A(q_)
                nav[0] += 1
    sNE = "s63"
    def adaptive():
        C("a wave whose V loads have landed while it waited for q tops its window up with the weight loads")
        assert not o["vlate"] and not o["ntail0"] and not o["tsp"] and not o["tlag"] and len(tail) == 7
        A("s_getreg_b32 %s, hwreg(HW_REG_IB_STS, 0, 4)" % t0)
        A("s_sub_i32 %s, %d, %s" % (sNE, o["Wa"], t0))
        for k in range(min(7, o["Wa"])):
            A("s_cmp_le_i32 %s, %d" % (sNE, k))
            A("s_cbranch_scc1 L_topped")
            A(tail[k])
        LB("L_topped")
    A("s_waitcnt vmcnt(%d)" % (8 - o["vlate"]))
    for t in range(2):
        for s in range(4):
            r = KR + (t * 4 + s) * 4
            A("ds_read_b128 v[%d:%d], v%d offset:%d" % (r, r + 3, KA + s, L_K + t * 4096))
    tail_issue(o["ntail0"])
    stamp(2)
    A("s_waitcnt lgkmcnt(0)")
    A("s_barrier")
    stamp(3)
    for s in range(4):
        A("ds_read_b128 v[%d:%d], %s offset:%d" % (QR + 4 * s, QR + 4 * s + 3, vQA, L_Q + s * 64))
    if "a" in o["tsp"]: tail_issue(1)
    if o["adap"] == "a": adaptive()
    A("s_mov_b32 s46, 0x%x" % SCALE)
    A("s_mov_b32 %s, 0xffff0000" % t1)
    A("s_mov_b32 s48, 0x%x" % LOG2E)
    for s in range(4):
        A("s_waitcnt lgkmcnt(%d)" % (3 - s))
        for t in range(2):
            mfma(SR + 4 * t, KR + (t * 4 + s) * 4, QR + 4 * s, None if s == 0 else SR + 4 * t)
    T = KR
    vH0, vH1, vFL, vTG = "v%d" % (T + 28), "v%d" % (T + 29), "v%d" % (T + 26), "v%d" % (T + 27)
    A("v_mov_b32 %s, %d" % (vFL, L_FLAG))
    A("s_lshl_b32 %s, %s, 5" % (t3, sW))
    A("v_mov_b32 v%d, %s" % (T + 31, t3))
    A("ds_read_b64 v[%d:%d], %s" % (T + 26, T + 27, vFL))
    if "b" in o["tsp"]:
        tail_issue(1); A("s_nop 1")
    elif o["adap"] == "b": adaptive()
    else: A("s_nop 2")
    C("scores: bf16(qk) -> * scale -> bf16   (the reference's two roundings)")
    for i in range(8):
        A("v_cvt_pk_bf16_f32 v%d, 0, v%d" % (SR + i, SR + i))
    for i in range(4):
        A("v_pk_mul_f32 %s, %s, s[46:47] op_sel_hi:[1,0]" % (P2(SR + 2 * i), P2(SR + 2 * i)))
    for i in range(8):
        A("v_cvt_pk_bf16_f32 v%d, 0, v%d" % (SR + i, SR + i))
    vm, vt, vl = "v%d" % (T + 4), "v%d" % (T + 6), "v%d" % (T + 5)
    A("v_max3_f32 %s, v%d, v%d, v%d" % (vm, SR, SR + 1, SR + 2))
    A("v_max3_f32 %s, v%d, v%d, v%d" % (vt, SR + 3, SR + 4, SR + 5))
    A("v_max3_f32 %s, %s, v%d, v%d" % (vm, vm, SR + 6, SR + 7))
    A("v_max_f32 %s, %s, %s" % (vm, vm, vt))
    allred(vm, vt, "v_max_f32", 16)
    if "c" in o["tsp"]: tail_issue(1)
    if o["adap"] == "c": adaptive()
    allred(vm, vt, "v_max_f32", 32)
    A("v_mul_f32 %s, s48, %s" % (vm, vm))
    for i in range(4):
        A("v_pk_fma_f32 %s, %s, s[48:49], %s op_sel_hi:[1,0,0] neg_lo:[0,0,1] neg_hi:[0,0,1]" % (P2(SR + 2 * i), P2(SR + 2 * i), P2(T + 4)))
    for i in range(8):
        A("v_exp_f32 v%d, v%d" % (SR + i, SR + i))
    if "d" in o["tsp"]: tail_issue(1)
    for i in range(4):
        A("v_cvt_pk_bf16_f32 v%d, v%d, v%d" % (T + 8 + i, SR + 2 * i, SR + 2 * i + 1))
    for i in range(8):
        for r in range(2):
            A("v_perm_b32 v%d, v%d, v%d, v%d" % (PA + 2 * i + r, T + 8 + (i >> 1), T + 8 + (i >> 1), SEL + 2 * (i & 1) + r))
    stamp(4)
    O0, O1, Y = QR, QR + 4, QR + 8
    def pv(i):
        assert 7 - i + nav[0] >= 0
        A("s_waitcnt vmcnt(%d)" % (7 - i + nav[0]))
        if o["adap"] and i < min(7, o["Wa"]):
            A("s_cmp_gt_i32 %s, %d" % (sNE, i))
            A("s_cbranch_scc1 L_had%d" % i)
            tail_issue(1)
            LB("L_had%d" % i)
        elif i >= o["tlag"]: tail_issue((2 if i < o.get("tdbl", 0) else 1) if i < o.get("tlast", 7) else 9)
        vr = VR + 4 * i
        mfma16(O0, PA + 2 * i, vr, None if i == 0 else O0)
        mfma16(O1, PA + 2 * i, vr + 2, None if i == 0 else O1)
    A("v_pk_add_f32 %s, %s, %s" % (P2(SR), P2(SR), P2(SR + 2)))
    A("v_pk_add_f32 %s, %s, %s" % (P2(SR + 4), P2(SR + 4), P2(SR + 6)))
    A("v_pk_add_f32 %s, %s, %s" % (P2(SR), P2(SR), P2(SR + 4)))
    A("v_add_f32 %s, v%d, v%d" % (vl, SR, SR + 1))
    allred(vl, vt, "v_add_f32", 16)
    allred(vl, vt, "v_add_f32", 32)
    A("ds_write_b64 %s, v[%d:%d] offset:%d" % (vMLW, T + 4, T + 5, L_ML))
    A("s_waitcnt lgkmcnt(0)")
    A("v_readfirstlane_b32 %s, %s" % (sFAST, vFL))
    A("v_readfirstlane_b32 %s, %s" % (sTAG, vTG))
    SO = 4
    def soffs():
        A("s_and_b32 %s, %s, 0x2000" % (t0, sFAST))
        A("v_add_u32 %s, %s, %s" % (vL3, t0, vL3))
        A("s_or_b32 s3, s3, %s" % t0)
        for k in range(1, 8): A("s_xor_b32 s%d, s3, 0x%x" % (SO + k - 1, k << 9))
    nshot = [0]
    SD = [12, 20, 44, 64, 72, 80, 88] if not o["stamps"] else None
    def sshot(bit):
        if o["lastfin"] < 2 or not (o.get("sshot", 2) & bit): return
        nshot[0] += 1
        A("s_bitcmp0_b32 %s, 1" % sFAST)
        A("s_cbranch_scc1 L_noshot%d" % nshot[0])
        for k in range(1, 8):
            if o["lastfin"] == 2: A("s_load_dword s%d, %s, s%d offset:12 %s" % (12 + k, sWS, SO + k - 1, o.get("sfl", "glc")))
            else: A("s_load_dwordx8 s[%d:%d], %s, s%d glc" % (SD[k - 1], SD[k - 1] + 7, sWS, SO + k - 1))
        LB("L_noshot%d" % nshot[0])
    HA = T + 16
    ML = T
    OB = T + 8
    G2 = SR
    vM, vLs = "v124", "v125"
    for i in range(o["b2"]): pv(i)
    if o.get("dbgb2"): A("s_memrealtime s[70:71]")
    A("s_barrier")
    if o.get("dbgb2"): A("s_memrealtime s[72:73]")
    A("ds_read_b128 v[%d:%d], v%d offset:%d" % (ML, ML + 3, T + 31, L_ML))
    A("ds_read_b128 v[%d:%d], v%d offset:%d" % (ML + 4, ML + 7, T + 31, L_ML + 16))
    if not o["hlate"]:
        A("ds_read_b32 %s, %s offset:%d" % (vH0, vHA, L_H))
        A("ds_read_b32 %s, %s offset:%d" % (vH1, vHA, L_H + 16))
    avote = o["vote"] and not o["lastfin"]
    if avote:
        A("v_mov_b32 v%d, 0" % (T + 30))
        A("ds_read_b32 v%d, v%d offset:%d" % (T + 30, T + 30, L_FLAG + 8))
    if not o["cq2"]:
        A("s_mov_b32 s54, 0x55555555")
        A("s_mov_b32 s55, 0x55555555")
    A("v_mov_b32 v%d, %s" % (G2 + 3, sTAG))
    A("s_waitcnt lgkmcnt(%d)" % ((0 if o["hlate"] else 2) + (1 if avote else 0)))
    A("v_max3_f32 %s, v%d, v%d, v%d" % (vM, ML, ML + 2, ML + 4))
    A("v_max_f32 %s, %s, v%d" % (vM, vM, ML + 6))
    for w_ in range(4):
        A("v_sub_f32 v%d, v%d, %s" % (ML + 2 * w_, ML + 2 * w_, vM))
    for w_ in range(4):
        A("v_exp_f32 v%d, v%d" % (ML + 2 * w_, ML + 2 * w_))
    A("s_waitcnt lgkmcnt(0)")
    A("v_mul_f32 %s, v%d, v%d" % (vLs, ML, ML + 1))
    for w_ in range(1, 4):
        A("v_fmac_f32 %s, v%d, v%d" % (vLs, ML + 2 * w_, ML + 2 * w_ + 1))
    def h_operands():
        for a in range(2):
            for r in range(4):
                A("v_and_b32 v%d, %s, v%d" % (HA + 4 * a + r, (vH0, vH1)[a], MK + r))
    A("v_log_f32 v%d, %s" % (G2 + 2, vLs))
    A("v_rcp_f32 %s, %s" % (vLs, vLs))
    if not o["hlate"]: h_operands()
    else: A("s_nop 0")
    if avote: A("v_add_u32 %s, v%d, %s" % (vL3, T + 30, vL3))
    A("v_add_f32 v%d, v%d, %s" % (G2 + 2, G2 + 2, vM))
    for w_ in range(4):
        A("v_mul_f32 v%d, v%d, %s" % (ML + 2 * w_, ML + 2 * w_, vLs))
    for i in range(o["b2"], 8): pv(i)
    stamp(5)
    if o.get("nosync"):
        A("s_waitcnt vmcnt(0)")
        stamp(6)
        A("s_branch L_done")
    A("s_nop 6")
    A("ds_write_b128 %s, v[%d:%d] offset:%d" % (vOW, O0, O0 + 3, L_O))
    A("ds_write_b128 %s, v[%d:%d] offset:%d" % (vOW, O1, O1 + 3, L_O + OH))
    A("s_waitcnt lgkmcnt(0)")
    A("s_barrier")
    if o["cq2"]:
        OB4, AC = VR, VR + 16
        A("s_mov_b32 exec_hi, 0")
        for w_ in range(4):
            A("ds_read_b128 v[%d:%d], %s offset:%d" % (OB4 + 4 * w_, OB4 + 4 * w_ + 3, vOR, L_O + w_ * OWV))
        A("s_bitcmp0_b32 %s, 0" % sFAST)
        for w_ in range(4):
            A("s_waitcnt lgkmcnt(%d)" % (3 - w_))
            for hf in range(2):
                if w_ == 0: A("v_pk_mul_f32 %s, %s, %s op_sel_hi:[1,0]" % (P2(AC + 2 * hf), P2(OB4 + 2 * hf), P2(ML)))
                else: A("v_pk_fma_f32 %s, %s, %s, %s op_sel_hi:[1,0,1]" % (P2(AC + 2 * hf), P2(OB4 + 4 * w_ + 2 * hf), P2(ML + 2 * w_), P2(AC + 2 * hf)))
    else:
        for w_ in range(4):
            A("ds_read_b64 v[%d:%d], %s offset:%d" % (OB + 2 * w_, OB + 2 * w_ + 1, vOR, L_O + w_ * 2048))
        A("s_bitcmp0_b32 %s, 0" % sFAST)
        for w_ in range(4):
            A("s_waitcnt lgkmcnt(%d)" % (3 - w_))
            op = "v_mul_f32" if w_ == 0 else "v_fmac_f32"
            A("%s v%d, v%d, v%d" % (op, G2, ML + 2 * w_, OB + 2 * w_))
            A("%s v%d, v%d, v%d" % (op, G2 + 1, ML + 2 * w_, OB + 2 * w_ + 1))
    tails = []
    def publish(addr, g, name):
        A("s_cbranch_scc1 L_slow_%s" % name)
        A("global_store_dwordx4 %s, v[%d:%d], %s %s" % (addr, g, g + 3, sWS, o.get("stfl", "")))
        LB("L_back_%s" % name)
        tails.append((name, addr, g))
    if o["cq2"]:
        A("v_cvt_pk_bf16_f32 v%d, v%d, v%d" % (G2, AC, AC + 1))
        A("v_cvt_pk_bf16_f32 v%d, v%d, v%d" % (G2 + 1, AC + 2, AC + 3))
    else:
        A("v_cvt_pk_bf16_f32 v%d, v%d, v%d" % (G2, G2, G2 + 1))
        A("s_nop 1")
        A("v_mov_b32_dpp v%d, v%d quad_perm:[1,1,3,3] %s" % (G2 + 1, G2, DPP))
        A("s_mov_b64 exec, s[54:55]")
    publish(vS2, G2, "h2")
    A("s_mov_b64 exec, -1")
    stamp(6)
    P = T
    for i in range(2):
        A("global_load_dwordx4 v[%d:%d], %s, %s offset:%d %s" % (P + 4 * i, P + 4 * i + 3, vL2, sWS, i * 1024, o.get("p2fl", "sc1")))
    for t_ in dnl: A(t_)
    if o["hlate"]:
        A("s_barrier")
        A("ds_read_b32 %s, %s offset:%d" % (vH0, vHA, L_H))
        A("ds_read_b32 %s, %s offset:%d" % (vH1, vHA, L_H + 16))
    A("s_mov_b32 %s, %d" % (sCNT, o["spinmax"]))
    vTAG = "v127"
    sT2 = sTAG
    if o["reuse"]:
        sT2 = "s62"
        A("s_not_b32 %s, %s" % (t0, sTAG))
        A("s_lshl_b32 %s, %s, 24" % (t0, t0))
        A("s_and_b32 s62, %s, 0xffffff" % sTAG)
        A("s_or_b32 s62, s62, %s" % t0)
    A("v_mov_b32 %s, %s" % (vTAG, sT2))
    for k in range(4):
        A("s_mov_b32 s%d, 0x%x" % (56 + k, 0x07060500 | k))
        A("s_bfe_u32 s%d, %s, 0x%x" % (60 + k if k < 2 else 50 + k, sT2, 0x80000 | (8 * k)))
    TB = ["s60", "s61", "s52", "s53"]
    if o["hlate"]:
        A("s_waitcnt lgkmcnt(0)")
        h_operands()
    ndn_early = 2 - len(dnl)
    if o["lastfin"] >= 2: soffs()
    if o.get("mockx"): ndn_early = 0
    else: A("s_waitcnt vmcnt(%d)" % (3 + len(dnl)))
    if o.get("dbgwo"): A("s_memrealtime s[68:69]")
    for a in range(ndn_early):
        mfma(Y, HA + 4 * a, DNR + 4 * a, None if a == 0 else Y)
    if dnl:
        A("s_waitcnt vmcnt(%d)" % len(dnl))
        A("s_branch L_chk2b")
    else:
        A("s_branch L_chk2")
    LB("L_poll2")
    MS = ["s[44:45]", "s[46:47]"]
    for i in range(2):
        if o["mask2"]: A("s_mov_b64 exec, %s" % MS[i])
        A("global_load_dwordx4 v[%d:%d], %s, %s offset:%d sc1" % (P + 4 * i, P + 4 * i + 3, vL2, sWS, i * 1024))
    if o["mask2"]: A("s_mov_b64 exec, -1")
    A("s_sub_u32 %s, %s, 1" % (sCNT, sCNT))
    A("s_cbranch_scc1 L_end")
    LB("L_chk2")
    A("s_waitcnt vmcnt(0)")
    LB("L_chk2b")
    A("v_max_f32 %s, v%d, v%d" % (vM, P + 2, P + 6))
    for i in range(2):
        A("v_cmp_ne_u32 %s, %s, v%d" % (MS[i], sTAG, P + 4 * i + 3))
    A("v_max_f32_dpp %s, %s, %s row_ror:4 %s" % (vM, vM, vM, DPP))
    A("s_or_b64 vcc, %s, %s" % (MS[0], MS[1]))
    A("s_cbranch_scc1 L_poll2")
    stamp(7)
    if o.get("tpos", "g") == "g":
        for t_ in taft: A(t_)
    sshot(1)
    U = T + 8
    def unp(i, k):
        if k & 1: A("v_and_b32 v%d, %s, v%d" % (U + 4 * i + k, t1, P + 4 * i + (k >> 1)))
        else: A("v_lshlrev_b32 v%d, 16, v%d" % (U + 4 * i + k, P + 4 * i + (k >> 1)))
    vt2 = "v126"
    A("v_max_f32_dpp %s, %s, %s row_ror:8 %s" % (vM, vM, vM, DPP))
    A("v_mov_b32 %s, %s" % (vt2, vM))
    unp(0, 0); unp(0, 1)
    A("v_permlane16_swap_b32 %s, %s" % (vt2, vM))
    A("v_max_f32 %s, %s, %s" % (vM, vM, vt2))
    A("v_mov_b32 %s, %s" % (vt2, vM))
    unp(0, 2); unp(0, 3)
    A("v_permlane32_swap_b32 %s, %s" % (vt2, vM))
    A("v_max_f32 %s, %s, %s" % (vM, vM, vt2))
    w0, w1 = "v120", "v122"
    A("v_sub_f32 %s, v%d, %s" % (w0, P + 2, vM))
    A("v_sub_f32 %s, v%d, %s" % (w1, P + 6, vM))
    A("v_exp_f32 %s, %s" % (w0, w0))
    A("v_exp_f32 %s, %s" % (w1, w1))
    unp(1, 0)
    den, tA, tB = "v126", "v124", "v123"
    A("v_add_f32 %s, %s, %s" % (den, w0, w1))
    unp(1, 1); unp(1, 2)
    A("v_add_f32_dpp %s, %s, %s row_ror:4 %s" % (den, den, den, DPP))
    unp(1, 3)
    A("v_pk_mul_f32 %s, %s, v[120:121] op_sel_hi:[1,0]" % (P2(U), P2(U)))
    A("v_add_f32_dpp %s, %s, %s row_ror:8 %s" % (den, den, den, DPP))
    A("v_pk_mul_f32 %s, %s, v[120:121] op_sel_hi:[1,0]" % (P2(U + 2), P2(U + 2)))
    A("v_pk_fma_f32 %s, %s, v[122:123], %s op_sel_hi:[1,0,1]" % (P2(U), P2(U + 4), P2(U)))
    A("v_pk_fma_f32 %s, %s, v[122:123], %s op_sel_hi:[1,0,1]" % (P2(U + 2), P2(U + 6), P2(U + 2)))
    A("v_mov_b32 %s, %s" % (tA, den))
    A("s_bitcmp0_b32 %s, 0" % sFAST)
    A("v_permlane32_swap_b32 v%d, v%d" % (U, U + 2))
    A("v_permlane32_swap_b32 v%d, v%d" % (U + 1, U + 3))
    A("v_permlane32_swap_b32 %s, %s" % (tA, den))
    A("v_pk_add_f32 %s, %s, %s" % (P2(U), P2(U), P2(U + 2)))
    A("v_add_f32 %s, %s, %s" % (den, den, tA))
    A("s_mov_b32 %s, %d" % (sCNT, o["spinmax"]))
    A("v_permlane16_swap_b32 v%d, v%d" % (U, U + 1))
    A("v_mov_b32 %s, %s" % (tA, den))
    A("v_add_f32 v%d, v%d, v%d" % (U, U, U + 1))
    A("s_nop 0")
    A("v_permlane16_swap_b32 %s, %s" % (tA, den))
    A("v_add_f32_dpp v%d, v%d, v%d row_ror:4 %s" % (U, U, U, DPP))
    A("v_add_f32 %s, %s, %s" % (den, den, tA))
    A("v_rcp_f32 %s, %s" % (den, den))
    A("v_add_f32_dpp v%d, v%d, v%d row_ror:8 %s" % (U, U, U, DPP))
    a0 = "v125"
    A("v_mul_f32 %s, v%d, %s" % (a0, U, den))
    A("v_cvt_pk_bf16_f32 %s, %s, %s" % (a0, a0, a0))
    if o.get("mockx"):
        GX, PXS = 120, VR
        A("v_mov_b32 v%d, %s" % (GX + 3, sTAG))
        A("s_cmp_gt_u32 %s, 1" % sW)
        A("v_mov_b32_dpp v%d, %s quad_perm:[0,0,2,2] %s" % (GX, a0, DPP))
        A("v_mov_b32_dpp v%d, %s quad_perm:[1,1,3,3] %s" % (GX + 1, a0, DPP))
        A("s_cselect_b64 exec, 0, 15")
        A("global_store_dwordx4 %s, v[%d:%d], %s sc1" % (vS3, GX, GX + 3, sWS))
        A("s_mov_b64 exec, -1")
        stamp(1)
        if o.get("tpos") == "x":
            for t_ in taft: A(t_)
        A("s_mov_b64 exec, 0xff")
        LB("L_pollx")
        A("global_load_dwordx4 v[%d:%d], %s, %s sc1" % (PXS, PXS + 3, vL3, sWS))
        A("s_sub_u32 %s, %s, 1" % (sCNT, sCNT))
        A("s_cbranch_scc1 L_end")
        A("s_waitcnt vmcnt(0)")
        A("v_cmp_ne_u32 vcc, %s, v%d" % (sTAG, PXS + 3))
        A("v_mov_b32 %s, v%d" % (a0, PXS))
        A("s_and_b64 exec, exec, vcc")
        A("s_cbranch_scc1 L_pollx")
        A("s_mov_b64 exec, -1")
        stamp(10)
        A("s_bitcmp0_b32 %s, 0" % sFAST)
        for a in range(2):
            mfma(Y, HA + 4 * a, DNR + 4 * a, None if a == 0 else Y)
        ndn_early = 2
    A("s_nop 1")
    WA = T
    for m in range(4):
        for r in range(4):
            A("v_and_b32_dpp v%d, %s, v%d row_newbcast:%d %s" % (WA + 4 * m + r, a0, MK + r, m, DPP))
        if m > 0:
            mfma(Y, WA + 4 * (m - 1), WOR + 4 * (m - 1), Y if (m > 1 or ndn_early) else None)
    if dnl:
        A("s_waitcnt vmcnt(0)")
        for a in range(ndn_early, 2):
            mfma(Y, HA + 4 * a, DNR + 4 * a, Y)
    else:
        A("s_nop 1")
    mfma(Y, WA + 12, WOR + 12, Y)
    A("s_mov_b32 exec_hi, 0")
    if o["reuse"]:
        A("s_barrier")
        A("s_nop 5")
    else:
        A("s_nop 6")
    for k in range(4):
        A("v_perm_b32 v%d, v%d, %s, s%d" % (Y + k, Y + k, vTAG, 56 + k))
    publish(vS25, Y, "h25")
    stamp(8)
    sshot(2)
    def tail_g25():
        PS = T + 16
        A("s_cmp_lg_u32 %s, %d" % (sW, o["gw"]))
        A("s_cbranch_scc1 L_done")
        A("s_mov_b64 exec, -1")
        if o.get("ack25") == 1: A("s_waitcnt vmcnt(0)")
        NP = o["np25"]
        PK = [PS, PS + 8, WOR, WOR + 8, DNR]
        def ask(k):
            A("global_load_dwordx4 v[%d:%d], %s, %s sc1" % (PK[k], PK[k] + 3, vL25, sWS))
            A("global_load_dwordx4 v[%d:%d], v164, %s sc1" % (PK[k] + 4, PK[k] + 7, sWS))
        def look(k):
            A("s_waitcnt vmcnt(%d)" % (2 * NP - 1))
            for q in range(4): A("v_xor_b32 v%d, %s, v%d" % (P + q, TB[q], PK[k] + q))
            A("v_or3_b32 %s, v%d, v%d, v%d" % (tA, P, P + 1, P + 2))
            A("s_waitcnt vmcnt(%d)" % (2 * NP - 2))
            for q in range(4): A("v_xor_b32 v%d, %s, v%d" % (P + 4 + q, TB[q], PK[k] + 4 + q))
            A("v_or3_b32 %s, %s, v%d, v%d" % (tA, tA, P + 3, P + 4))
            A("v_or3_b32 %s, %s, v%d, v%d" % (tA, tA, P + 5, P + 6))
            A("v_or_b32_sdwa %s, %s, v%d dst_sel:DWORD dst_unused:UNUSED_PAD src0_sel:BYTE_0 src1_sel:BYTE_0" % (tA, tA, P + 7))
            A("v_cmp_ne_u32 vcc, 0, %s" % tA)
            A("s_and_b64 exec, exec, vcc")
        def masks():
            A("s_lshl_b32 s46, 0x01010101, %s" % sH)
            A("s_not_b32 s46, s46")
            A("s_mov_b32 s47, s46")
            if o["cq25"]:
                A("s_lshr_b32 s41, %s, 2" % sJ)
                A("s_and_b32 s41, s41, 6")
                A("s_bfe_u32 %s, %s, 0x10001" % (t0, sJ))
                A("s_or_b32 s41, s41, %s" % t0)
        if NP == 1:
            masks()
            LB("L_poll25")
            ask(0)
            A("s_sub_u32 %s, %s, 1" % (sCNT, sCNT))
            A("s_cbranch_scc1 L_end")
            look(0)
            A("s_cbranch_scc1 L_poll25")
        else:
            pre = o.get("pre25", 1)
            for k in range(NP):
                if k == pre:
                    if o.get("ack25") == 2: A("s_waitcnt vmcnt(%d)" % (2 * pre))
                    for _ in range(o.get("stag25", 0)): A("s_nop 7")
                ask(k)
            masks()
            LB("L_poll25")
            for k in range(NP):
                look(k)
                A("s_cbranch_scc0 L_got25")
                ask(k)
            A("s_sub_u32 %s, %s, 1" % (sCNT, sCNT))
            A("s_cbranch_scc0 L_poll25")
            A("s_endpgm")
            LB("L_got25")
        A("s_mov_b64 exec, -1")
        stamp(9)
        if o.get("ampm"): A("s_memrealtime s[86:87]")
        x_, y_ = "v%d" % P, "v%d" % (P + 1)
        A("v_pk_add_f32 %s, %s, %s" % (P2(P), P2(P), P2(P + 4)))
        A("v_pk_add_f32 %s, %s, %s" % (P2(P + 2), P2(P + 2), P2(P + 6)))
        if o["cq25"]:
            A("s_cmp_eq_u32 s41, %s" % sH)
            A("s_nop 0")
        else:
            A("s_lshr_b32 %s, %s, 2" % (t0, sJ) if o["finhi"] else "s_and_b32 %s, %s, 7" % (t0, sJ))
            A("s_cmp_eq_u32 %s, %s" % (t0, sH))
        A("v_permlane32_swap_b32 v%d, v%d" % (P, P + 2))
        A("v_permlane32_swap_b32 v%d, v%d" % (P + 1, P + 3))
        A("v_pk_add_f32 %s, %s, %s" % (P2(P), P2(P), P2(P + 2)))
        A("v_mov_b32 v%d, %s" % (P + 3, sTAG))
        A("s_mov_b32 s44, 0xff")
        for rot_ in (4, 8):
            A("v_add_f32_dpp %s, %s, %s row_ror:%d %s" % (x_, x_, x_, rot_, DPP))
            A("v_add_f32_dpp %s, %s, %s row_ror:%d %s" % (y_, y_, y_, rot_, DPP))
            if rot_ == 4: A("s_mov_b32 s45, s44")
        A("v_mov_b32 v%d, %s" % (P + 4, x_))
        A("v_mov_b32 v%d, %s" % (P + 5, y_))
        A("s_nop 0")
        A("v_permlane16_swap_b32 v%d, %s" % (P + 4, x_))
        A("v_permlane16_swap_b32 v%d, %s" % (P + 5, y_))
        A("v_pk_add_f32 %s, %s, %s" % (P2(P), P2(P), P2(P + 4)))
        A("s_cbranch_scc1 L_final")
        A("s_mov_b64 exec, s[44:45]")
        A("global_store_dwordx4 %s, v[%d:%d], %s sc1" % (vS3, P, P + 3, sWS))
        A("s_branch L_done")
        LB("L_final")
        stamp(1)
        if o.get("xstag"): A("global_load_dword %s, %s, %s nt" % (vXP, vXF, sX))
        A("s_mov_b64 exec, s[46:47]")
        NP = o["np3"]
        PS = VR
        X = P + 4
        A("global_load_dwordx4 v[%d:%d], %s, %s sc1" % (PS, PS + 3, vL3, sWS))
        A("s_mov_b64 exec, -1")
        A("s_mov_b32 %s, %d" % (sCNT, o["spinmax"]))
        for q in range(4):
            for r in range(2):
                A("v_mov_b32_dpp v%d, v%d row_newbcast:%d row_mask:0x%x bank_mask:0x%x" % (X + r, P + r, q, (5, 10)[q >> 1], (3, 12)[q & 1]))
        if not o.get("xstag"):
            A("v_lshlrev_b32 v%d, 16, %s" % (P, vXP))
            A("v_and_b32 v%d, %s, %s" % (P + 1, t1, vXP))
            A("v_pk_add_f32 %s, %s, %s" % (P2(X), P2(X), P2(P)))
        A("s_mov_b32 s44, 0x01010101")
        A("s_mov_b32 s45, s44")
        A("s_mov_b64 exec, s[46:47]")
        for k in range(1, NP):
            if o.get("xstag") and k == 1: A("s_waitcnt vmcnt(1)")
            for _ in range(o.get("stag3", 0) + (2 if k > 1 and o.get("stag3") else 0)): A("s_nop 7")
            A("global_load_dwordx4 v[%d:%d], %s, %s sc1" % (PS + 4 * k, PS + 4 * k + 3, vL3, sWS))
        LB("L_poll3")
        for k in range(NP):
            A("s_waitcnt vmcnt(%d)" % (NP - 1))
            A("v_cmp_ne_u32 vcc, %s, v%d" % (sTAG, PS + 4 * k + 3))
            A("v_mov_b32 v%d, v%d" % (X, PS + 4 * k))
            A("v_mov_b32 v%d, v%d" % (X + 1, PS + 4 * k + 1))
            A("s_and_b64 exec, exec, vcc")
            A("s_cbranch_scc0 L_got3")
            A("global_load_dwordx4 v[%d:%d], %s, %s sc1" % (PS + 4 * k, PS + 4 * k + 3, vL3, sWS))
        A("s_sub_u32 %s, %s, 1" % (sCNT, sCNT))
        A("s_cbranch_scc0 L_poll3")
        A("s_endpgm")
        LB("L_got3")
        stamp(10)
        A("s_mov_b64 exec, -1")
        x_, y_ = "v%d" % X, "v%d" % (X + 1)
        fl = ["s_cmp_lg_u32 s2, 0", "s_nop 0"]
        if o.get("xstag"): fl = ["v_lshlrev_b32 %s, 16, %s" % (tA, vXP), "v_and_b32 %s, %s, %s" % (tB, t1, vXP)]
        for pat in ("quad_perm:[1,0,3,2]", "quad_perm:[2,3,0,1]", "row_half_mirror"):
            A("v_add_f32_dpp %s, %s, %s %s %s" % (x_, x_, x_, pat, DPP))
            A("v_add_f32_dpp %s, %s, %s %s %s" % (y_, y_, y_, pat, DPP))
            if fl: A(fl.pop(0))
        if o.get("xstag"):
            A("v_add_f32 %s, %s, %s" % (x_, x_, tA))
            A("v_add_f32 %s, %s, %s" % (y_, y_, tB))
            A("s_cmp_lg_u32 s2, 0")
        A("v_cvt_pk_bf16_f32 %s, %s, %s" % (x_, x_, y_))
        A("s_mov_b64 exec, s[44:45]")
        A("global_store_dword %s, %s, %s %s" % (vXF, x_, sOUT, o.get("ofl", "")))
        A("s_cbranch_scc1 L_done")
        C("the next launch must not mistake this launch's hand-off words for its own")
        if o["efull"]:
            A("s_mov_b64 exec, 0xff")
            A("v_lshlrev_b32 %s, 4, v0" % tA)
            for q in range(4): A("v_mov_b32 v%d, %s" % (P + q, sTAG))
            A("global_store_dwordx4 %s, v[%d:%d], %s %s" % (tA, P, P + 3, sWS, o.get("efl", "")))
        else:
            A("s_mov_b64 exec, 1")
            A("v_mov_b32 %s, 0" % tA)
            A("v_mov_b32 %s, %s" % (tB, sTAG))
            A("global_store_dword %s, %s, %s %s" % (tA, tB, sWS, o.get("efl", "")))
    nkeep = len(L)
    NP = o["np25"]
    PS = T + 16
    if o.get("ack25") == 1: A("s_waitcnt vmcnt(0)")
    sshot(8)
    for _ in range(o.get("dly25", 0)): A("s_nop 7")
    for k in range(NP):
        if k == 1 and o.get("ack25") == 2: A("s_waitcnt vmcnt(1)")
        if k == 1:
            for _ in range(o.get("stag25", 0)): A("s_nop 7")
        A("global_load_dwordx4 v[%d:%d], %s, %s sc1" % (PS + 4 * k, PS + 4 * k + 3, vL25, sWS))
    sshot(4)
    LB("L_poll25")
    for k in range(NP):
        A("s_waitcnt vmcnt(%d)" % (NP - 1))
        for q in range(4):
            A("v_xor_b32 v%d, %s, v%d" % (P + q, TB[q], PS + 4 * k + q))
        A("v_or3_b32 %s, v%d, v%d, v%d" % (tA, P, P + 1, P + 2))
        A("v_or_b32_sdwa %s, %s, v%d dst_sel:DWORD dst_unused:UNUSED_PAD src0_sel:BYTE_0 src1_sel:BYTE_0" % (tA, tA, P + 3))
        A("v_cmp_ne_u32 vcc, 0, %s" % tA)
        if o["mask25"]:
            A("s_and_b64 exec, exec, vcc")
            A("s_cbranch_scc0 L_got25")
        else:
            A("s_cbranch_vccz L_got25")
        A("global_load_dwordx4 v[%d:%d], %s, %s sc1" % (PS + 4 * k, PS + 4 * k + 3, vL25, sWS))
    A("s_sub_u32 %s, %s, 1" % (sCNT, sCNT))
    A("s_cbranch_scc0 L_poll25")
    A("s_endpgm")
    LB("L_got25")
    A("s_mov_b64 exec, -1")
    stamp(9)
    if o.get("ampm"): A("s_memrealtime s[86:87]")
    x_, y_ = "v%d" % P, "v%d" % (P + 1)
    A("v_permlane16_swap_b32 v%d, v%d" % (P, P + 2))
    A("v_permlane16_swap_b32 v%d, v%d" % (P + 1, P + 3))
    A("v_add_f32 %s, %s, v%d" % (x_, x_, P + 2))
    A("v_add_f32 %s, %s, v%d" % (y_, y_, P + 3))
    fl = ["v_mov_b32 v%d, %s" % (P + 3, sTAG), "s_and_b32 %s, %s, 7" % (t0, sJ), "s_cmp_eq_u32 %s, %s" % (t0, sH), "s_nop 0"]
    if o["lastfin"]: fl = ["v_mov_b32 v%d, %s" % (P + 3, sTAG), "s_bitcmp1_b32 %s, 1" % sFAST, "s_nop 0", "s_nop 0"]
    for rot_ in (1, 2, 4, 8):
        A(fl.pop(0))
        A("v_add_f32_dpp %s, %s, %s row_ror:%d %s" % (x_, x_, x_, rot_, DPP))
        A("v_add_f32_dpp %s, %s, %s row_ror:%d %s" % (y_, y_, y_, rot_, DPP))
    def old_final():
        if o.get("ewg"): A("s_xor_b32 s63, s2, %d" % o["ewg"])
        if o.get("otouch"):
            A("global_load_dword v158, %s, %s" % (vXF, sOUT))
        if o.get("xstag"): A("global_load_dword %s, %s, %s %s" % (vXP, vXF, sX, o["xstag"] if isinstance(o["xstag"], str) else "nt"))
        A("s_lshl_b32 %s, 0x10001, %s" % (t0, sH))
        A("s_andn2_b32 exec_lo, 0xff00ff, %s" % t0)
        A("s_mov_b32 exec_hi, 0")
        A("s_mov_b32 %s, %d" % (sCNT, o["spinmax"]))
        NP = o["np3"]
        PS = VR
        if o["lastfin"] == 2 and o.get("sshot", 2):
            A("s_waitcnt lgkmcnt(0)")
            for k in range(1, 8): A("s_xor_b32 s%d, s%d, %s" % (12 + k, 12 + k, sTAG))
            A("s_or_b32 s13, s13, s14")
            A("s_or_b64 s[16:17], s[16:17], s[18:19]")
            A("s_or_b32 s13, s13, s15")
            A("s_or_b32 s16, s16, s17")
            if o["stamps"]: A("s_memrealtime s[68:69]")
            A("s_or_b32 s13, s13, s16")
            if o["stamps"]: A("s_cselect_b32 s66, 1, 2")
            A("s_cbranch_scc1 L_ask3")
            A("global_load_dwordx4 v[%d:%d], %s, %s %s" % (PS, PS + 3, vL3, sWS, o.get("hfl", "")))
            A("s_branch L_poll3")
            LB("L_ask3")
        for k in range(NP):
            if o.get("xstag") and k == 1: A("s_waitcnt vmcnt(1)")
            A("global_load_dwordx4 v[%d:%d], %s, %s sc1" % (PS + 4 * k, PS + 4 * k + 3, vL3, sWS))
        LB("L_poll3")
        for k in range(NP):
            A("s_waitcnt vmcnt(%d)" % (NP - 1))
            A("v_cmp_ne_u32 vcc, %s, v%d" % (sTAG, PS + 4 * k + 3))
            A("v_mov_b32 v%d, v%d" % (P, PS + 4 * k))
            A("v_mov_b32 v%d, v%d" % (P + 1, PS + 4 * k + 1))
            A("s_and_b64 exec, exec, vcc")
            A("s_cbranch_scc0 L_got3")
            A("global_load_dwordx4 v[%d:%d], %s, %s sc1" % (PS + 4 * k, PS + 4 * k + 3, vL3, sWS))
        A("s_sub_u32 %s, %s, 1" % (sCNT, sCNT))
        A("s_cbranch_scc0 L_poll3")
        A("s_endpgm")
        LB("L_got3")
        stamp(10)
        A("s_mov_b32 exec_lo, -1")
        A("v_lshlrev_b32 %s, 16, %s" % (tA, vXP))
        A("v_and_b32 %s, %s, %s" % (tB, t1, vXP))
        for pat in ("quad_perm:[1,0,3,2]", "quad_perm:[2,3,0,1]", "row_half_mirror"):
            A("v_add_f32_dpp %s, %s, %s %s %s" % (x_, x_, x_, pat, DPP))
            A("v_add_f32_dpp %s, %s, %s %s %s" % (y_, y_, y_, pat, DPP))
            if pat != "row_half_mirror": A("s_nop 0")
        A("v_add_f32 %s, %s, %s" % (x_, x_, tA))
        A("v_add_f32 %s, %s, %s" % (y_, y_, tB))
        if o.get("perturb"):
            import struct
            bits = struct.unpack("<I", struct.pack("<f", float(o["perturb"])))[0]
            if o.get("pall"):
                A("v_mul_f32 %s, 0x%x, %s" % (x_, bits, x_)); A("v_mul_f32 %s, 0x%x, %s" % (y_, bits, y_))
            else:
                A("s_or_b32 %s, s2, %s" % (t0, sW))
                A("s_cselect_b32 %s, 0, 0x%x" % (t0, bits))
                A("v_add_f32 %s, %s, %s" % (x_, t0, x_))
        A("v_cvt_pk_bf16_f32 %s, %s, %s" % (x_, x_, y_))
        A("s_mov_b64 exec, 0x10001")
        A("global_store_dword %s, %s, %s %s" % (vXF, x_, sOUT, o.get("ofl", "")))
        A("s_or_b32 %s, %s, %s" % (t0, sJ if o["lastfin"] else "s2" if not o.get("ewg") else "s63", sW))
        A("s_cbranch_scc1 L_done")
        C("the next launch must not mistake this launch's hand-off words for its own")
        A("v_mov_b32 %s, 0" % tA)
        A("v_mov_b32 %s, %s" % (tB, sTAG))
        A("global_store_dword %s, %s, %s %s" % (tA, tB, sWS, o.get("efl", "")))
    def diag_end():
        if o.get("ampm"):
            A("s_or_b32 %s, %s, %s" % (t0, sJ, sW))
            A("s_cbranch_scc1 L_nom")
            A("s_mov_b64 exec, -1")
            A("s_waitcnt lgkmcnt(0)")
            A("s_lshl_b32 %s, %s, 2" % (t0, sH))
            A("v_mov_b32 v2, %s" % t0)
            A("s_or_b32 s86, s86, 1")
            A("v_mov_b32 v3, s86")
            A("global_store_dword v2, v3, s[24:25] offset:192 sc1")
            A("s_cmp_lg_u32 s2, 0")
            A("s_cbranch_scc1 L_nom")
            A("v_and_b32 v2, 7, v0")
            A("v_lshlrev_b32 v2, 2, v2")
            A("s_movk_i32 s85, 1000")
            LB("L_mpoll")
            A("global_load_dword v3, v2, s[24:25] offset:192 sc1")
            A("global_load_dword v4, v2, s[24:25] offset:128 sc1")
            A("s_sub_u32 s85, s85, 1")
            A("s_cbranch_scc1 L_nom")
            A("s_waitcnt vmcnt(0)")
            A("v_cmp_eq_u32 vcc, 0, v3")
            A("s_cbranch_vccnz L_mpoll")
            for g_ in range(8): A("v_readlane_b32 s%d, v3, %d" % (64 + g_, g_))
            for g_ in range(8): A("v_readlane_b32 s%d, v4, %d" % (72 + g_, g_))
            A("s_nop 3")
            for g_ in range(16): A("s_sub_u32 s%d, s%d, s90" % (64 + g_, 64 + g_))
            md = o["ampm"]
            if md >= 10:
                for g_ in range(8): A("s_mov_b32 s%d, s%d" % (64 + g_, 72 + g_))
                md -= 10
            key = {1: 64, 2: 72}.get(md)
            A("s_mov_b32 s80, s64")
            A("s_mov_b32 s81, s%d" % (key or 64))
            A("s_mov_b32 s82, 0x80000000")
            for g_ in range(1, 8):
                if key:
                    A("s_cmp_gt_i32 s%d, s81" % (key + g_))
                    A("s_cselect_b32 s83, s80, s%d" % (64 + g_))
                    A("s_cselect_b32 s80, s%d, s80" % (64 + g_))
                    A("s_cselect_b32 s81, s%d, s81" % (key + g_))
                    A("s_max_i32 s82, s82, s83")
                else:
                    A("s_max_i32 s82, s82, s%d" % (64 + g_))
            A("s_sub_i32 s88, s80, s82")
            A("s_add_i32 s88, s88, 100")
            A("s_max_i32 s88, s88, 0")
            A("s_mul_i32 s88, s88, 20")
            A("s_min_u32 s88, s88, 20000")
            A("s_add_u32 s88, s88, 1500")
            LB("L_mspin")
            A("s_memrealtime s[92:93]")
            A("s_waitcnt lgkmcnt(0)")
            A("s_sub_u32 s92, s92, s90")
            A("s_cmp_lt_u32 s92, s88")
            A("s_cbranch_scc1 L_mspin")
            LB("L_nom")
        if o.get("lateh") is not None:
            A("s_or_b32 %s, s2, %s" % (t0, sW))
            A("s_cbranch_scc1 L_nolate")
            A("s_mov_b64 exec, -1")
            A("v_and_b32 v2, 7, v0")
            A("v_lshlrev_b32 v2, 2, v2")
            A("global_load_dword v3, v2, s[24:25] sc1")
            A("s_waitcnt vmcnt(0)")
            for g_ in range(8): A("v_readlane_b32 s%d, v3, %d" % (64 + g_, g_))
            A("s_nop 3")
            for g_ in range(8): A("s_sub_u32 s%d, s%d, s90" % (64 + g_, 64 + g_))
            A("s_mov_b32 s72, s64")
            for g_ in range(1, 8): A("s_min_i32 s72, s72, s%d" % (64 + g_))
            if o["lateh"] == 8:
                A("s_mov_b32 s88, s64")
                for g_ in range(1, 8): A("s_max_i32 s88, s88, s%d" % (64 + g_))
            else:
                A("s_mov_b32 s88, s%d" % (64 + o["lateh"]))
            A("s_sub_u32 s88, s88, s72")
            A("s_mul_i32 s88, s88, 20")
            A("s_min_u32 s88, s88, 20000")
            A("s_add_u32 s88, s88, 1500")
            A("s_add_u32 s88, s88, s72")
            LB("L_latespin")
            A("s_memrealtime s[92:93]")
            A("s_waitcnt lgkmcnt(0)")
            A("s_sub_u32 s92, s92, s90")
            A("s_cmp_lt_u32 s92, s88")
            A("s_cbranch_scc1 L_latespin")
            LB("L_nolate")
        amp_end("")
        if o.get("pad"):
            LB("L_padspin")
            A("s_memrealtime s[92:93]")
            A("s_waitcnt lgkmcnt(0)")
            A("s_sub_u32 s92, s92, s90")
            A("s_cmp_lt_u32 s92, %d" % o["pad"])
            A("s_cbranch_scc1 L_padspin")
    if o.get("mockx"):
        A("v_lshlrev_b32 %s, 16, %s" % (tA, vXP))
        A("v_and_b32 %s, %s, %s" % (tB, t1, vXP))
        A("v_add_f32 %s, %s, %s" % (x_, x_, tA))
        A("v_add_f32 %s, %s, %s" % (y_, y_, tB))
        A("v_cvt_pk_bf16_f32 %s, %s, %s" % (x_, x_, y_))
        A("s_mov_b64 exec, 0x10001")
        A("s_cbranch_scc0 L_done")
        A("global_store_dword %s, %s, %s" % (vXF, x_, sOUT))
        A("s_or_b32 %s, s2, %s" % (t0, sW))
        A("s_cbranch_scc1 L_done")
        A("v_mov_b32 %s, 0" % tA)
        A("v_mov_b32 %s, %s" % (tB, sTAG))
        A("global_store_dword %s, %s, %s" % (tA, tB, sWS))
        A("s_branch L_done")
    A("s_cbranch_scc1 L_final")
    A("s_mov_b64 exec, 0x%x" % (0x30003 if o["rep3"] or o["vote"] else 0x10001))
    A("global_store_dwordx4 %s, v[%d:%d], %s sc1" % (vS3, P, P + 3, sWS))
    if o.get("wb"):
        A("s_or_b32 %s, %s, %s" % (t0, sW, sJ) if o["wb"] == 1 else "s_and_b32 %s, %s, 3" % (t0, sW))
        A("s_cmp_lg_u32 %s, %d" % (t0, 8 if o["wb"] == 1 else 0))
        A("s_cbranch_scc1 L_done")
        A("buffer_wbl2 sc1")
    A("s_branch L_done")
    LB("L_final")
    if o["lastfin"] == 1:
        A("s_mov_b64 exec, 0x10001")
        A("ds_write_b128 %s, v[%d:%d] offset:%d" % (vL3, P, P + 3, L_FIN))
        A("s_waitcnt lgkmcnt(0)")
    else:
        old_final()
    if o["g25"]:
        del L[nkeep:]
        tail_g25()
    LB("L_done")
    diag_end()
    dump_stamps()
    A("s_endpgm")
    for name, addr, g in tails:
        LB("L_slow_%s" % name)
        A("global_store_dwordx4 %s, v[%d:%d], %s sc1" % (addr, g, g + 3, sWS))
        A("s_branch L_back_%s" % name)
    if o["lastfin"] == 1: unit_final()
    LB("L_end")
    A("s_endpgm")
    head = HEADER.format(lds=o.get("lds", LDS_BYTES), k=KNAME); foot = FOOTER.format(k=KNAME, vg=o.get("vg", 168), sg=96)
    if o["align"]: L = align_runs(L, head, foot, o.get("minrun", 3), o.get("nopmin", 6))
    return head + "\n".join(L) + foot


if __name__ == "__main__":
    kw = {}
    out = "parallel_sum__sliding_block_cached__swiglu_ffn__decode.s"
    for a in sys.argv[1:]:
        k, v = a.split("=", 1)
        if k == "out": out = v; continue
        try: v = int(v) if k != "nlv" else v
        except ValueError: pass
        kw[k] = v
    open(out, "w").write(gen(**kw))
```

```python
import sys

KNAME = "parallel_sum__sliding_block_cached__swiglu_ffn__decode_kernel"

HEADER = """; Kernarg layout for this problem (96 bytes, ptrs only, base s[0:1]):
;   offset  72: d_out     shape=(1, 1, 512) dtype=bfloat16
; @launch grid=(256,1,1) block=(320,1,1) lds={lds}
.amdgcn_target "amdgcn-amd-amdhsa--gfx950"
.text
.globl {k}
.p2align 8
.type {k},@function
{k}:
"""
FOOTER = """
.section .rodata,"a"
.p2align 6
.amdhsa_kernel {k}
  .amdhsa_next_free_vgpr {vg}
  .amdhsa_next_free_sgpr {sg}
  .amdhsa_accum_offset {vg}
  .amdhsa_group_segment_fixed_size 0
  .amdhsa_kernarg_size 96
  .amdhsa_user_sgpr_count 2
  .amdhsa_user_sgpr_kernarg_segment_ptr 1
  .amdhsa_system_sgpr_workgroup_id_x 1
.end_amdhsa_kernel
"""

MB1A = 0x40000
MB1B = 0x80000
MB2 = 0x100000
MB25 = 0x400000
MB3 = 0x1C0000
STAMPS = 0x10000000
L_WQ = 0
L_FF = 16384
L_XN = 32768
L_Q = 33792
L_H = 34816
L_FLAG = 34848
L_VOTE = 34864
L_ML = 34880
L_TKT = 35008
L_FIN = L_XN
L_O = 35072
L_K = L_O + 8192
L_K = (L_K + 1023) // 1024 * 1024
LDS_BYTES = L_K + 32768
TAGC = 0x9E3779B9
LOG2E = 0x3FB8AA3B
SCALE = 0x3DB504F3
EPS = 0x3727C5AC
DPP = "row_mask:0xf bank_mask:0xf"

DEF = dict(stamps=False, spinmax=200000, WK=5, W=6, Wtail=8, b0pos=45, nt="nt", pretouch="k", atries=24,
           prefetch=True, b2=7, ntail0=0, tlag=0, mask2=False, pt1=True, rotm=4, rep3=False, tsp="a", auxearly=True, hlate=False, vote=True, np25=2, np3=6, ack25=2, align=1, unr=2, mask25=True, lperm=0, nlv="43434343", reuse=1, rp=2176, bonly=0, bdefer=4, bskip=1, lastfin=0, npu=1, stag=0, g25=1, gw=0, pt3=1, finhi=1, efull=0, stouch=0, cq2=0, cq25=0, vlate=1, idearly=0, adap="", Wa=6, stl=0)


def _sizes(text):
    import subprocess, tempfile, os, re
    d = tempfile.mkdtemp()
    open(d + "/a.s", "w").write(text)
    subprocess.run(["clang", "-x", "assembler", "-target", "amdgcn-amd-amdhsa", "-mcpu=gfx950", "-c", d + "/a.s", "-o", d + "/a.o"], check=True)
    out = subprocess.run(["llvm-objdump", "-d", "--mcpu=gfx950", d + "/a.o"], capture_output=True, text=True).stdout
    r = []
    for ln in out.split("\n"):
        m = re.search(r"^\s+(\S+).*// ([0-9A-F]{12}): ((?:[0-9A-F]{8} ?)+)", ln)
        if m: r.append((m.group(1), 4 * len(m.group(3).split())))
    return r


def align_runs(L, head, foot, minrun=3, nopmin=6):
    ins = [i for i, l in enumerate(L) if l.startswith("    ") and not l.strip().startswith(";")]
    sz = _sizes(head + "\n".join(L) + foot)
    assert len(sz) == len(ins), (len(sz), len(ins))
    size = {i: s_[1] for i, s_ in zip(ins, sz)}
    mn = {i: s_[0] for i, s_ in zip(ins, sz)}
    out = list(L); extra = {}
    off = 0; k = 0
    while k < len(ins):
        i = ins[k]
        if size[i] == 8 and off % 8 == 4:
            run = 0
            while k + run < len(ins) and size[ins[k + run]] == 8: run += 1
            if run >= minrun:
                b = k - 1; done = False
                while b >= 0 and size[ins[b]] == 4:
                    j = ins[b]
                    if mn[j] == "s_nop" and int(out[j].split()[1]) >= 1:
                        out[j] = "    s_nop 0\n    s_nop %d" % (int(out[j].split()[1]) - 1)
                        size[j] = 8; off += 4; done = True
                        break
                    if mn[j].endswith("_e32") and not mn[j].startswith(("v_readfirstlane", "v_permlane")):
                        op = out[j].split()[0]
                        out[j] = out[j].replace(op, op.replace("_e32", "") + "_e64", 1)
                        size[j] = 8; off += 4; done = True
                        break
                    b -= 1
                if not done and run >= nopmin and k > 0 and not mn[ins[k - 1]].startswith(("s_branch", "s_endpgm")):
                    extra[i] = True; off += 4; done = True
                if not done and k > 0 and mn[ins[k - 1]].startswith(("s_branch", "s_endpgm")):
                    extra[ins[k - 1] + 1] = True; off += 4
            for q in range(run): off += 8
            k += run
            continue
        off += size[i]; k += 1
    res = []
    for i, l in enumerate(out):
        if i in extra: res.append("    s_nop 0")
        res.append(l)
    return res


def gen(**kw):
    o = dict(DEF); o.update(kw)
    MB3 = o.get("mb3", globals()["MB3"])
    L = []
    def A(s): L.append("    " + s)
    def LB(s): L.append(s + ":")
    def C(s): L.append("    ; " + s)
    nt = o["nt"]
    NSTAMP = 12
    role = ["U"]
    def stamp(i):
        if o.get("amp") == "%s%d" % (role[0], i): A("s_memrealtime s[88:89]" if not o.get("cyc") else "s_memtime s[88:89]")
        if o.get("ampg") == "%s%d" % (role[0], i): A("s_memrealtime s[86:87]")
        if o.get("amp0") == "%s%d" % (role[0], i): A("s_memrealtime s[86:87]" if not o.get("cyc") else "s_memtime s[86:87]")
        if o["stamps"] and (i in (0, 11) or o.get("sel") is None or ("%s%d" % (role[0], i)) in o["sel"].split(",")):
            A("s_memrealtime s[%d:%d]" % (64 + 2 * i, 65 + 2 * i))
    def mfma(d, a, b, c):
        A("v_mfma_f32_16x16x32_bf16 v[%d:%d], v[%d:%d], v[%d:%d], %s" % (d, d + 3, a, a + 3, b, b + 3, "0" if c is None else "v[%d:%d]" % (c, c + 3)))
    def mfma16(d, a, b, c):
        A("v_mfma_f32_16x16x16_bf16 v[%d:%d], v[%d:%d], v[%d:%d], %s" % (d, d + 3, a, a + 1, b, b + 1, "0" if c is None else "v[%d:%d]" % (c, c + 3)))
    def allred(v, tmp, op, which):
        A("v_mov_b32 %s, %s" % (tmp, v))
        A("s_nop 1")
        A("v_permlane%d_swap_b32 %s, %s" % (which, tmp, v))
        A("%s %s, %s, %s" % (op, v, v, tmp))
    sX, sK, sV, sWQ, sWO, sG, sU, sDN, sOUT, sWS = "s[4:5]", "s[6:7]", "s[8:9]", "s[10:11]", "s[12:13]", "s[16:17]", "s[18:19]", "s[20:21]", "s[22:23]", "s[26:27]"
    sW, sH, sJ, sTAG, sXCC, sCNT, sFAST = "s30", "s31", "s32", "s33", "s34", "s35", "s36"
    t0, t1, t2, t3 = "s37", "s38", "s39", "s40"
    def dump_stamps():
        if not o["stamps"]: return
        if role[0] == "U" and o.get("sel") is not None and "U" not in o["sel"]: return
        A("s_mov_b64 exec, 1")
        if o.get("endwait"): A("s_waitcnt vmcnt(0)")
        stamp(11)
        A("s_waitcnt lgkmcnt(0)")
        A("s_mul_i32 %s, s2, 5" % t0)
        A("s_add_u32 %s, %s, %s" % (t0, t0, sW))
        A("s_lshl_b32 %s, %s, 7" % (t0, t0))
        A("s_add_u32 %s, %s, 0x%x" % (t0, t0, STAMPS))
        A("v_mov_b32 v2, %s" % t0)
        for i in range(NSTAMP):
            A("v_mov_b32 v3, s%d" % (64 + 2 * i))
            A("global_store_dword v2, v3, %s offset:%d" % (sWS, 4 * i))
        A("v_mov_b32 v3, %s" % ("s63" if role[0] == "U" and o["vote"] else sCNT))
        A("global_store_dword v2, v3, %s offset:%d" % (sWS, 4 * NSTAMP))
        if o.get("dbgfail"):
            for q_, r_ in enumerate(("s84", "s62", "s63")):
                A("v_mov_b32 v3, %s" % r_)
                A("global_store_dword v2, v3, %s offset:%d" % (sWS, 4 * NSTAMP + 8 + 4 * q_))
        A("s_getreg_b32 %s, hwreg(HW_REG_HW_ID)" % t1)
        A("v_mov_b32 v3, %s" % t1)
        A("global_store_dword v2, v3, %s offset:%d" % (sWS, 4 * NSTAMP + 4))

    def amp_end(sfx):
        if o.get("ampg"):
            A("s_waitcnt vmcnt(0) lgkmcnt(0)")
            A("s_memrealtime s[88:89]")
            A("s_mov_b64 exec, -1")
            A("v_and_b32 v2, 7, v0")
            A("v_lshlrev_b32 v2, 2, v2")
            A("global_load_dword v3, v2, s[24:25] offset:128 sc1")
            A("s_waitcnt vmcnt(0) lgkmcnt(0)")
            for g_ in range(8): A("v_readlane_b32 s%d, v3, %d" % (64 + g_, g_))
            A("s_nop 3")
            if o["ampg"] != 1:
                for g_ in range(8): A("s_sub_u32 s%d, s86, s%d" % (64 + g_, 64 + g_))
                for g_ in range(1, 8): A("s_max_i32 s64, s64, s%d" % (64 + g_))
                A("s_sub_u32 s88, s86, s64")
                A("s_mul_i32 s64, s64, 10")
            else:
                for g_ in range(8): A("s_sub_u32 s%d, s88, s%d" % (64 + g_, 64 + g_))
                for g_ in range(1, 8): A("s_max_i32 s64, s64, s%d" % (64 + g_))
                A("s_mul_i32 s64, s64, 9")
            A("s_min_u32 s64, s64, 20000")
            A("s_add_u32 s64, s64, 1500")
            LB("L_ampgspin" + sfx)
            A("s_memrealtime s[92:93]")
            A("s_waitcnt lgkmcnt(0)")
            A("s_sub_u32 s92, s92, s88")
            A("s_cmp_lt_u32 s92, s64")
            A("s_cbranch_scc1 L_ampgspin" + sfx)
        if o.get("amp"):
            if o["amp"] == "end": A("s_memrealtime s[88:89]")
            A("s_waitcnt lgkmcnt(0)")
            A("s_sub_u32 s88, s88, %s" % ("s86" if o.get("amp0") else "s90"))
            A("s_mul_i32 s88, s88, %d" % o.get("ampk", 10))
            A("s_min_u32 s88, s88, 20000")
            A("s_add_u32 s88, s88, 1500")
            LB("L_ampspin" + sfx)
            A("s_memrealtime s[92:93]")
            A("s_waitcnt lgkmcnt(0)")
            A("s_sub_u32 s92, s92, s90")
            A("s_cmp_lt_u32 s92, s88")
            A("s_cbranch_scc1 L_ampspin" + sfx)
    nlv = [int(c) for c in str(o["nlv"])]
    assert len(nlv) == 8 and sum(nlv) == 28 and min(nlv) >= 0 and max(nlv) <= 4
    LUT_d = sum((4 - n) << (4 * i) for i, n in enumerate(nlv))
    LUT_D = sum((4 * i - sum(nlv[:i])) << (4 * i) for i in range(8))
    def ffn_share(l0, d):
        A("s_lshl_b32 %s, %s, 2" % (l0, sH))
        A("s_lshr_b32 %s, 0x%x, %s" % (d, LUT_D, l0))
        A("s_and_b32 %s, %s, 7" % (d, d))
        A("s_sub_u32 s3, %s, %s" % (l0, d))
        A("s_lshr_b32 %s, 0x%x, %s" % (d, LUT_d, l0))
        A("s_and_b32 %s, %s, 7" % (d, d))
    stamp(0)
    if o.get("pad") or o.get("bal") or o.get("amp") or o.get("ampg") or o.get("ampm") or o.get("lateh") is not None: A("s_memrealtime s[90:91]")
    A("s_cmp_ge_u32 s2, 256")
    A("s_cbranch_scc1 L_end")
    A("s_load_dwordx16 s[4:19], s[0:1], 0")
    A("s_load_dwordx8 s[20:27], s[0:1], 64")
    A("v_lshrrev_b32 v1, 6, v0")
    A("v_and_b32 v0, 63, v0")
    A("v_readfirstlane_b32 %s, v1" % sW)
    A("s_and_b32 %s, s2, 7" % sH)
    A("s_lshr_b32 %s, s2, 3" % sJ)
    if o.get("bal") or o.get("lateh") is not None or o.get("ampg") or o.get("ampm"):
        A("s_or_b32 %s, %s, %s" % (t0, sJ, sW))
        A("s_cbranch_scc1 L_noflag")
        A("s_lshl_b32 %s, %s, 2" % (t0, sH))
        A("v_mov_b32 v108, %s" % t0)
        A("s_waitcnt lgkmcnt(0)")
        A("s_or_b32 %s, s90, 1" % t0)
        A("v_mov_b32 v109, %s" % t0)
        A("global_store_dword v108, v109, s[24:25] offset:%d sc1" % (128 if o.get("ampg") or o.get("ampm") else 0))
        LB("L_noflag")
    A("s_cmp_eq_u32 %s, 4" % sW)
    A("s_cbranch_scc0 %s" % ("L_race" if o["vote"] else "L_attn"))

    C("wave 4: layernorm, one [128 x 64] tile of wq and one of gate/up, exchange of q and of the FFN hidden values")
    A("s_setprio 3")
    if o["idearly"] == 1:
        A("v_mov_b32 v2, 0")
        A("v_and_b32 v3, 12, v0")
        A("ds_write_b32 v3, v2 offset:%d" % L_VOTE)
    if o["prefetch"]:
        A("s_getpc_b64 s[28:29]")
        LB("L_pc")
        A("v_lshlrev_b32 v2, 7, v0")
        A("v_min_u32 v2, L_end-L_pc, v2")
        A("global_load_dword v127, v2, s[28:29]")
    sQK, sNOFF = "s50", "s51"
    A("v_lshlrev_b32 v3, 4, v0")
    A("v_lshrrev_b32 v6, 3, v0")
    A("v_and_b32 v5, 2, v6")
    A("v_and_b32 v7, 7, v0")
    A("v_xor_b32 v5, v5, v7")
    A("v_lshlrev_b32 v7, 4, v5")
    A("s_and_b32 %s, %s, 3" % (sQK, sJ))
    A("s_lshl_b32 %s, %s, 10" % (t0, sH))
    if o["lperm"]:
        A("s_andn2_b32 %s, %s, 3" % (t1, sJ))
        A("s_lshr_b32 %s, 0x%x, %s" % (t1, o["lperm"], t1))
        A("s_and_b32 s55, %s, 7" % t1)
    else:
        A("s_lshr_b32 s55, %s, 2" % sJ)
    A("s_lshl_b32 %s, s55, 7" % t1)
    A("s_lshl_b32 %s, %s, 20" % (t2, sQK))
    A("s_add_u32 %s, %s, %s" % (t0, t0, t1))
    A("s_add_u32 %s, %s, %s" % (t0, t0, t2))
    A("v_lshl_add_u32 v4, v6, 13, v7")
    A("v_add_u32 v4, %s, v4" % t0)
    A("v_xor_b32 v5, 64, v4")
    A("v_add_u32 v5, 0x10000, v5")
    A("s_mov_b32 m0, %d" % L_WQ)
    A("s_mov_b32 %s, 0x20000" % t1)
    if o.get("ucontig"):
        A("s_lshl_b32 %s, s2, 10" % t0)
        A("v_add_u32 v4, %s, v3" % t0)
        A("v_add_u32 v5, 0x40000, v4")
        A("s_mov_b32 %s, 0x80000" % t1)
    A("s_movk_i32 s41, 1024")
    A("s_waitcnt lgkmcnt(0)")
    A("global_load_dwordx4 v[8:11], v3, %s" % sX)
    A("s_load_dword %s, %s, 0" % (sTAG, sWS))
    def dma_loop(name, base, step):
        A("s_mov_b32 %s, %d" % (t2, 16 // o["unr"]))
        LB(name)
        for i in range(o["unr"]):
            vv = ("v4", "v5")[i & 1]
            A("global_load_lds_dwordx4 %s, %s %s" % (vv, base, nt))
            A("s_add_u32 m0, m0, s41")
            A("v_add_u32 %s, %s, %s" % (vv, step, vv))
        A("s_sub_u32 %s, %s, 1" % (t2, t2))
        A("s_cmp_lg_u32 %s, 0" % t2)
        A("s_cbranch_scc1 %s" % name)
    dma_loop("L_wq_loop", sWQ, t1)
    if o["b0pos"] == 16: A("s_barrier")
    ffn_share(t0, t3)
    A("s_lshr_b32 %s, %s, 3" % (t1, sJ))
    A("s_add_u32 %s, s3, %s" % (t0, t1))
    A("s_add_u32 %s, %s, %s" % (sNOFF, t1, t3))
    A("s_mul_i32 %s, %s, 3584" % (t1, sQK))
    A("s_add_u32 %s, %s, %s" % (t0, t0, t1))
    A("s_lshl_b32 %s, %s, 7" % (t0, t0))
    A("v_mul_u32_u24 v4, 3584, v6")
    A("v_add3_u32 v4, v4, v7, %s" % t0)
    A("v_xor_b32 v5, 64, v4")
    A("v_add_u32 v5, %d, v5" % (8 * 3584))
    A("s_mov_b32 %s, %d" % (t1, 16 * 3584))
    if o.get("ucontig"):
        A("s_lshr_b32 %s, s2, 1" % t0)
        A("s_min_u32 %s, %s, 111" % (t0, t0))
        A("s_lshl_b32 %s, %s, 10" % (t0, t0))
        A("v_add_u32 v4, %s, v3" % t0)
        A("v_add_u32 v5, %d, v4" % (112 * 1024))
        A("s_mov_b32 %s, %d" % (t1, 224 * 1024))
    A("s_bitcmp0_b32 %s, %d" % (("s2", 0) if o.get("ucontig") else (sJ, 2)))
    A("s_cselect_b64 s[42:43], %s, %s" % (sG, sU))
    A("s_cmp_ge_u32 %s, 4" % sNOFF)
    A("s_cselect_b64 exec, 1, -1")
    dma_loop("L_ff_loop", "s[42:43]", t1)
    A("s_mov_b64 exec, -1")
    if o["vote"]:
        A("s_branch L_unit2")
        LB("L_race")
        C("which of the two copies of the last hand-off lives nearer to this die: race two cold scalar loads of this wave's own lines")
        A("s_lshl_b32 %s, s2, 2" % t0)
        A("s_add_u32 %s, %s, %s" % (t0, t0, sW))
        A("s_lshr_b32 %s, %s, 6" % (t1, t0))
        A("s_lshl_b32 %s, %s, 14" % (t1, t1))
        A("s_and_b32 %s, %s, 63" % (t0, t0))
        A("s_lshl_b32 %s, %s, 7" % (t0, t0))
        A("s_add_u32 %s, %s, %s" % (t0, t0, t1))
        if MB3 == 0x200000: A("s_bitset1_b32 %s, 21" % t0)
        else: A("s_or_b32 %s, %s, 0x%x" % (t0, t0, MB3))
        A("s_lshl_b32 %s, %s, 13" % (t1, sW))
        A("s_and_b32 %s, %s, 0x2000" % (t1, t1))
        A("s_or_b32 s46, %s, %s" % (t0, t1))
        A("s_xor_b32 s47, s46, 0x2000")
        A("s_movk_i32 s28, 0x5bd1")
        A("s_movk_i32 s29, 0x5bd1")
        A("s_waitcnt lgkmcnt(0)")
        A("s_load_dword s28, %s, s46" % sWS)
        A("s_load_dword s29, %s, s47" % sWS)
        A("s_waitcnt lgkmcnt(1)")
        A("s_mov_b64 s[48:49], s[28:29]")
        LB("L_race_done")
        A("s_cmpk_lg_i32 s48, 0x5bd1")
        A("s_cselect_b32 %s, 1, 0" % t0)
        A("s_cmpk_lg_i32 s49, 0x5bd1")
        A("s_cselect_b32 %s, 1, 0" % t2)
        A("s_sub_i32 %s, %s, %s" % (t0, t0, t2))
        A("s_sub_i32 %s, 0, %s" % (t2, t0))
        A("s_cmp_eq_u32 %s, 0" % t1)
        A("s_cselect_b32 %s, %s, %s" % (t0, t0, t2))
        A("s_lshl_b32 %s, %s, 2" % (t2, sW))
        A("v_mov_b32 v158, %s" % t2)
        A("v_mov_b32 v159, %s" % t0)
        A("ds_write_b32 v158, v159 offset:%d" % L_VOTE)
        A("s_branch L_attn")
        LB("L_unit2")
    if o["pt1"]:
        C("pull this workgroup's own hand-off lines into L2 before anyone polls them")
        A("s_lshl_b32 %s, %s, 15" % (t0, sH))
        A("s_lshl_b32 %s, %s, 8" % (t1, sJ))
        A("s_add_u32 %s, %s, %s" % (t0, t0, t1))
        A("s_add_u32 %s, %s, 0x%x" % (t0, t0, MB1A))
        A("v_and_b32 v33, 1, v0")
        A("v_bfe_u32 v32, v0, 1, 1")
        A("v_lshlrev_b32 v33, 7, v33")
        A("v_lshl_add_u32 v33, v32, 13, v33")
        A("s_mul_i32 %s, %s, 240" % (t1, sJ))
        A("s_sub_u32 %s, 0x4000, %s" % (t1, t1))
        A("v_cmp_lt_u32 vcc, 3, v0")
        A("v_mov_b32 v32, %s" % t1)
        A("s_nop 0")
        A("v_cndmask_b32 v33, v33, v32, vcc")
        A("v_add_u32 v33, %s, v33" % t0)
        A("global_load_dword v119, v33, %s sc1" % sWS)
    def tlbwarm():
        C("first touch of the pages the later loads use (address translation early, off their queue)")
        A("s_lshl_b32 %s, %s, 24" % (t0, sH))
        A("s_add_u32 %s, %s, 0xF00000" % (t0, t0))
        A("v_mov_b32 v112, %s" % t0)
        A("s_lshl_b32 %s, %s, 19" % (t0, sH))
        A("v_mov_b32 v113, %s" % t0)
        A("s_mul_i32 %s, %s, 0x38000" % (t0, sH))
        A("v_mov_b32 v114, %s" % t0)
        A("v_mov_b32 v115, 0x%x" % MB3)
        A("s_mov_b64 exec, 1")
        A("global_load_dword v116, v112, %s" % sK)
        A("global_load_dword v117, v112, %s" % sV)
        A("global_load_dword v118, v113, %s" % sWO)
        A("global_load_dword v111, v114, %s" % sDN)
        A("global_load_dword v110, v115, %s" % sWS)
        A("s_mov_b64 exec, -1")
    NW = 1 if o["pt1"] else 0
    if o.get("tlbw") == 2:
        tlbwarm(); NW += 5
    if o["b0pos"] == 32:
        if o.get("b0wait") is not None: A("s_waitcnt vmcnt(%d)" % o["b0wait"])
        A("s_barrier")
    stamp(1)
    XF = 12
    A("s_mov_b32 %s, 0xffff0000" % t1)
    A("s_waitcnt vmcnt(%d)" % (32 + NW))
    stamp(2)
    C("layernorm with the reference's bf16 roundings")
    for i in range(4):
        A("v_lshlrev_b32 v%d, 16, v%d" % (XF + 2 * i, 8 + i))
        A("v_and_b32 v%d, %s, v%d" % (XF + 2 * i + 1, t1, 8 + i))
    fill = []
    def F(s): fill.append(s)
    def nop2():
        n = 0
        while fill and n < 2:
            A(fill.pop(0)); n += 1
        if n < 2: A("s_nop %d" % (1 - n))
    TRB = 120
    vAX, vS1, vL1, vL1x, vL1a, vF, vTN, vTB = "v34", "v35", "v36", "v37", "v38", "v39", "v124", "v125"
    sRP, sB1 = "s52", "s53"
    F("v_lshrrev_b32 v126, 4, v0")
    F("v_bfe_u32 v4, v0, 2, 2")
    F("v_lshl_add_u32 v5, v126, 3, v4")
    F("v_and_b32 v6, 3, v0")
    F("v_lshlrev_b32 v7, 3, v6")
    F("v_lshl_add_u32 v5, v5, 7, v7")
    F("v_bfe_u32 v4, v0, 3, 2")
    for ct in range(4):
        F("v_xor_b32 v7, %d, v4" % ct)
        F("v_lshl_add_u32 v%d, v7, 5, v5" % (TRB + ct))
    F("s_lshl_b32 %s, %s, 8" % (t0, sQK))
    F("v_lshl_add_u32 %s, v126, 4, %s" % (vAX, t0))
    F("s_lshl_b32 %s, %s, 15" % (sB1, sH))
    F("s_add_u32 %s, %s, 0x%x" % (sB1, sB1, MB1A))
    def wavesum(v, tmp):
        for rot in (1, 2, 4, 8):
            nop2()
            A("v_add_f32_dpp %s, %s, %s row_ror:%d %s" % (v, v, v, rot, DPP))
        for which in (16, 32):
            A("v_mov_b32 %s, %s" % (tmp, v))
            nop2()
            A("v_permlane%d_swap_b32 %s, %s" % (which, tmp, v))
            A("v_add_f32 %s, %s, %s" % (v, v, tmp))
    def P2(r): return "v[%d:%d]" % (r, r + 1)
    A("v_pk_add_f32 v[22:23], %s, %s" % (P2(XF), P2(XF + 2)))
    A("v_pk_add_f32 v[24:25], %s, %s" % (P2(XF + 4), P2(XF + 6)))
    A("v_pk_add_f32 v[22:23], v[22:23], v[24:25]")
    A("v_add_f32 v22, v22, v23")
    wavesum("v22", "v23")
    A("v_mul_f32 v22, 0x3b000000, v22")
    DV = 24
    for i in range(4):
        A("v_pk_add_f32 %s, %s, v[22:23] op_sel_hi:[1,0] neg_lo:[0,1] neg_hi:[0,1]" % (P2(DV + 2 * i), P2(XF + 2 * i)))
    A("v_cvt_pk_bf16_f32 v22, 0, v22")
    A("v_pk_mul_f32 v[32:33], %s, %s" % (P2(DV), P2(DV)))
    for i in range(1, 4):
        A("v_pk_fma_f32 v[32:33], %s, %s, v[32:33]" % (P2(DV + 2 * i), P2(DV + 2 * i)))
    A("v_add_f32 v32, v32, v33")
    pre = ["v_pk_add_f32 %s, %s, v[22:23] op_sel_hi:[1,0] neg_lo:[0,1] neg_hi:[0,1]" % (P2(XF + 2 * i), P2(XF + 2 * i)) for i in range(4)]
    pre += ["v_cvt_pk_bf16_f32 v%d, 0, v%d" % (XF + i, XF + i) for i in range(8)]
    rest = fill[:]; fill[:] = pre
    wavesum("v32", "v33")
    fill[:] = fill + rest
    A("v_mul_f32 v32, 0x3b000000, v32")
    A("v_cvt_pk_bf16_f32 v32, 0, v32")
    A("v_add_f32 v32, 0x%x, v32" % EPS)
    A("v_cvt_pk_bf16_f32 v32, 0, v32")
    A("v_sqrt_f32 v32, v32")
    A(fill.pop(0))
    A("v_cvt_pk_bf16_f32 v32, 0, v32")
    A("v_rcp_f32 v32, v32")
    A(fill.pop(0))
    for i in range(4):
        A("v_pk_mul_f32 %s, %s, v[32:33] op_sel_hi:[1,0]" % (P2(XF + 2 * i), P2(XF + 2 * i)))
    for i in range(4):
        A("v_cvt_pk_bf16_f32 v%d, v%d, v%d" % (8 + i, XF + 2 * i, XF + 2 * i + 1))
    A("ds_write_b128 v3, v[8:11] offset:%d" % L_XN)
    while fill: A(fill.pop(0))
    A("s_lshl_b32 %s, s55, 2" % t2)
    A("s_add_u32 s55, %s, %s" % (t2, sQK))
    A("s_lshl_b32 %s, s55, 8" % t2)
    A("s_add_u32 %s, %s, %s" % (t2, t2, sB1))
    A("v_lshrrev_b32 v4, 2, v0")
    A("v_lshl_add_u32 %s, v4, 4, %s" % (vS1, t2))
    A("s_waitcnt lgkmcnt(0)")
    AF = 40
    for m in range(4):
        A("ds_read_b128 v[%d:%d], %s offset:%d" % (AF + 4 * m, AF + 4 * m + 3, vAX, L_XN + m * 64))
    A("s_add_u32 %s, %s, 0x%x" % (sTAG, sTAG, TAGC))
    A("v_lshlrev_b32 v4, 2, v6")
    A("v_lshrrev_b32 %s, v4, %s" % (vTN, sTAG))
    A("v_and_b32 %s, 15, %s" % (vTN, vTN))
    A("v_lshlrev_b32 v4, 3, v6")
    A("v_lshrrev_b32 %s, v4, %s" % (vTB, sTAG))
    A("v_and_b32 %s, 0xff, %s" % (vTB, vTB))
    A("s_mov_b32 s44, 0")
    A("s_mov_b32 s45, -1")
    XG = 28
    def die_id():
        if o["vote"]:
            assert o["b0pos"] <= 47 and not o["hlate"]
            A("v_mov_b32 v4, 0")
            A("ds_read_b128 v[112:115], v4 offset:%d" % L_VOTE)
        if o["lastfin"]:
            assert o["vote"]
            A("ds_read_b32 v116, v4 offset:%d" % L_TKT)
        A("s_getreg_b32 %s, hwreg(HW_REG_XCC_ID, 0, 4)" % sXCC)
        A("s_and_b32 %s, %s, 0xff" % (t0, sTAG))
        A("s_lshl_b32 %s, %s, 8" % (t2, sXCC))
        A("s_or_b32 s54, %s, %s" % (t0, t2))
        A("v_mov_b32 v%d, s54" % XG)
        for k in range(1, 4):
            A("s_bfe_u32 %s, %s, 0x%x" % (t0, sTAG, 0x80000 | (8 * k)))
            A("v_mov_b32 v%d, %s" % (XG + k, t0))
        if o["vote"]:
            A("s_waitcnt lgkmcnt(0)")
            A("v_add3_u32 v112, v112, v113, v114")
            A("v_add_u32 v112, v112, v115")
            A("v_lshl_add_u32 v%d, v112, 8, v%d" % (XG + 1, XG + 1))
        if o["lastfin"]:
            A("v_lshl_add_u32 v%d, v116, 8, v%d" % (XG + 2, XG + 2))
        A("s_lshl_b32 %s, %s, 4" % (t2, sJ))
        A("s_add_u32 %s, %s, %s" % (t2, t2, sB1))
        A("s_add_u32 %s, %s, 0x4000" % (t2, t2))
        A("v_mov_b32 v22, %s" % t2)
        A("v_add_u32 v109, 0x%x, v22" % (MB1B - MB1A))
        A("s_mov_b64 exec, 1")
        if o["bonly"]:
            A("global_store_dwordx4 v22, v[%d:%d], %s sc1" % (XG, XG + 3, sWS))
        else:
            A("global_store_dwordx4 v22, v[%d:%d], %s" % (XG, XG + 3, sWS))
            if not o["bdefer"]: A("global_store_dwordx4 v109, v[%d:%d], %s sc1" % (XG, XG + 3, sWS))
        A("s_mov_b64 exec, -1")
    if o["idearly"]: die_id()
    if o["b0pos"] == 40: A("s_barrier")
    stamp(3)
    BF = 56
    D0 = 88
    GR = 24
    def gemv(lbase, vm0):
        def rd(m, ct):
            b = BF + 16 * (m & 1)
            for hh in range(2):
                A("ds_read_b64_tr_b16 v[%d:%d], v%d offset:%d" % (b + 4 * ct + 2 * hh, b + 4 * ct + 2 * hh + 1, TRB + ct, lbase + m * 4096 + hh * 512))
        A("s_waitcnt vmcnt(%d)" % (vm0 + 12))
        for ct in range(4): rd(0, ct)
        for m in range(4):
            b = BF + 16 * (m & 1)
            if m < 3: A("s_waitcnt vmcnt(%d)" % (vm0 + 8 - 4 * m))
            if lbase == L_WQ and o["b0pos"] == 41 + m: A("s_barrier")
            for ct in range(4):
                A("s_waitcnt lgkmcnt(%d)" % (6 if m < 3 else 6 - 2 * ct))
                mfma(D0 + 4 * ct, AF + 4 * m, b + 4 * ct, None if m == 0 else D0 + 4 * ct)
                if m < 3: rd(m + 1, ct)
    def pack(maskc, vt, GR, vS1):
        A("s_mov_b32 vcc_lo, 0xffff0000")
        A("s_mov_b32 vcc_hi, 0xffff0000")
        A("s_movk_i32 %s, 0x%x" % (t0, maskc))
        A("s_nop 2")
        A("v_cndmask_b32 v%d, v%d, v%d, vcc" % (GR, D0, D0 + 4))
        A("s_nop 0")
        A("v_cndmask_b32 v%d, v%d, v%d, vcc" % (GR + 1, D0 + 8, D0 + 12))
        A("v_cndmask_b32 v%d, v%d, v%d, s[44:45]" % (GR, GR, GR + 1))
        A("v_and_or_b32 v%d, v%d, %s, %s" % (GR, GR, t0, vt))
        if o["bdefer"]:
            A("s_nop 1")
        else:
            A("v_add_u32 v22, 0x%x, %s" % (MB1B - MB1A, vS1))
            A("s_nop 0")
        for k in range(1, 4):
            A("v_mov_b32_dpp v%d, v%d quad_perm:[%d,%d,%d,%d] %s" % (GR + k, GR, k, k, k, k, DPP))
        A("s_mov_b32 exec_lo, 0x11111111")
        A("s_mov_b32 exec_hi, 0x11111111")
        if o["bonly"]:
            A("global_store_dwordx4 %s, v[%d:%d], %s sc1" % (vS1, GR, GR + 3, sWS))
        else:
            A("global_store_dwordx4 %s, v[%d:%d], %s" % (vS1, GR, GR + 3, sWS))
            if not o["bdefer"]: A("global_store_dwordx4 v22, v[%d:%d], %s sc1" % (GR, GR + 3, sWS))
        A("s_mov_b64 exec, -1")
    gemv(L_WQ, 16 + NW + (1 if o["idearly"] else 0))
    if o["b0pos"] == 45: A("s_barrier")
    pack(0xfff0, vTN, GR, vS1)
    if o["b0pos"] == 47: A("s_barrier")
    stamp(4)
    if not o["idearly"]: die_id()
    if o["b0pos"] == 50: A("s_barrier")
    A("s_sub_i32 %s, %s, s55" % (t2, sJ))
    A("s_lshl_b32 %s, %s, 8" % (t2, t2))
    A("s_add_u32 %s, %s, 0x2000" % (t2, t2))
    A("v_add_u32 v108, %s, %s" % (t2, vS1))
    A("s_cmp_ge_u32 %s, 4" % sNOFF)
    A("s_cbranch_scc1 L_noff2")
    gemv(L_FF, (2 if o['bonly'] or o['bdefer'] else 4) + NW)
    pack(0xff00, vTB, 104, "v108")
    LB("L_noff2")
    stamp(7)
    if o.get("nosync"):
        A("s_barrier")
        A("s_mov_b32 %s, 0" % sCNT)
        dump_stamps()
        A("s_endpgm")
    A("v_and_b32 v4, 15, v0")
    A("v_lshlrev_b32 v4, 4, v4")
    A("v_lshl_add_u32 v4, v126, 10, v4")
    A("s_add_u32 %s, %s, 2432" % (t0, sB1))
    A("v_add_u32 %s, %s, v4" % (vL1, t0))
    A("v_and_b32 v4, 31, v0")
    A("s_add_u32 %s, %s, 0x4000" % (t0, sB1))
    A("v_lshl_add_u32 %s, v4, 4, %s" % (vL1x, t0))
    A("s_lshl_b32 %s, %s, 1" % (t2, t3))
    A("s_sub_u32 %s, 8, %s" % (sRP, t2))
    A("s_mul_i32 %s, %s, %s" % (t2, sRP, sJ))
    A("s_sub_u32 %s, %s, 1" % (t0, sRP))
    A("v_and_b32 v4, 7, v0")
    A("v_min_u32 v4, %s, v4" % t0)
    A("v_add_u32 %s, %s, v4" % (vF, t2))
    A("v_lshrrev_b32 v4, 6, %s" % vF)
    A("v_bfe_u32 v5, v0, 3, 1")
    A("v_lshl_add_u32 v4, v4, 1, v5")
    A("v_lshl_add_u32 v4, v4, 2, v126")
    A("v_bfe_u32 v5, %s, 2, 4" % vF)
    A("v_lshlrev_b32 v5, 4, v5")
    A("v_lshl_add_u32 v4, v4, 8, v5")
    A("s_add_u32 %s, %s, 0x2000" % (t0, sB1))
    A("v_add_u32 %s, %s, v4" % (vL1a, t0))
    if min(nlv) == 0:
        A("s_cmp_lg_u32 %s, 0" % sRP)
        A("s_cbranch_scc1 L_has_ffn")
        A("v_mov_b32 %s, %s" % (vL1a, vL1x))
        LB("L_has_ffn")
    for k in range(4):
        A("s_bfe_u32 s%d, %s, 0x%x" % (56 + k, sTAG, 0x40000 | (4 * k)))
    A("s_movk_i32 s62, 255")
    A("s_mov_b32 s60, 0x0c0c0400")
    A("s_mov_b32 s61, 0x04000c0c")
    P = 40
    PX, PA_ = 72, 76
    A("s_mov_b32 %s, 0" % sCNT)
    def switch_copy(regs):
        A("s_add_u32 %s, %s, 1" % (sCNT, sCNT))
        if not o["bonly"]:
            if o.get("bskip"):
                A("s_cmp_ge_u32 %s, %d" % (sCNT, o["atries"]))
                A("s_cselect_b32 %s, 0x%x, 0" % (t0, MB1B ^ MB1A))
                for r in regs: A("v_xor_b32 %s, %s, %s" % (r, t0, r))
            else:
                A("s_cmp_eq_u32 %s, %d" % (sCNT, o["atries"]))
                A("s_cselect_b32 %s, 0x%x, 0" % (t0, MB1B - MB1A))
                for r in regs: A("v_add_u32 %s, %s, %s" % (r, t0, r))
        A("s_cmp_gt_u32 %s, %d" % (sCNT, o["spinmax"]))
        A("s_cbranch_scc1 L_end")
    def bytecheck(p, dst):
        A("v_perm_b32 v22, v%d, v%d, s60" % (p + 1, p))
        A("v_perm_b32 v23, v%d, v%d, s61" % (p + 3, p + 2))
        A("v_or_b32 v22, v22, v23")
        A("v_cmp_ne_u32 %s, %s, v22" % (dst, sTAG))
    for _ in range(o.get("dly1", 0)): A("s_nop 15")
    stamp(9)
    if o.get("freeq"): A("s_branch L_got1")
    LB("L_poll1")
    stamp(8)
    for i in range(2):
        for q in range(4):
            r = P + 16 * i + 4 * q
            A("global_load_dwordx4 v[%d:%d], %s, %s offset:%d sc1" % (r, r + 3, vL1, sWS, i * 4096 + q * 256 - 2432))
    A("global_load_dwordx4 v[%d:%d], %s, %s sc1" % (PX, PX + 3, vL1x, sWS))
    A("global_load_dwordx4 v[%d:%d], %s, %s sc1" % (PA_, PA_ + 3, vL1a, sWS))
    switch_copy([vL1, vL1x, vL1a])
    for g_ in range(8):
        A("s_waitcnt vmcnt(%d)" % (9 - g_))
        for k in range(4):
            A("v_xor_b32 v%d, s%d, v%d" % (P + 4 * g_ + k, 56 + k, P + 4 * g_ + k))
        if g_ == 0:
            A("v_or3_b32 v21, v%d, v%d, v%d" % (P, P + 1, P + 2))
            A("v_or_b32 v21, v21, v%d" % (P + 3))
        else:
            A("v_or3_b32 v21, v21, v%d, v%d" % (P + 4 * g_, P + 4 * g_ + 1))
            A("v_or3_b32 v21, v21, v%d, v%d" % (P + 4 * g_ + 2, P + 4 * g_ + 3))
    A("v_and_b32 v21, 15, v21")
    A("s_waitcnt vmcnt(1)")
    bytecheck(PX, "vcc")
    A("v_cmp_ne_u32 s[46:47], 0, v21")
    if o.get("dbgfail"):
        A("s_cmp_eq_u32 %s, 1" % sCNT)
        A("s_cselect_b32 s84, vcc_lo, s84")
        A("s_cselect_b32 s62, s46, s62")
        A("s_cselect_b32 s63, s47, s63")
    A("s_or_b64 vcc, vcc, s[46:47]")
    def majority():
        A("v_cmp_gt_i32 vcc, 0, v%d" % (PX + 1))
        A("v_cmp_lt_i32 s[46:47], %s, v%d" % ("s62", PX + 1))
        A("s_bcnt1_i32_b32 %s, vcc_lo" % t0)
        A("s_bcnt1_i32_b32 %s, s46" % t2)
        A("s_cmp_gt_u32 %s, %s" % (t0, t2))
        A("s_cselect_b32 s55, 0x2000, 0")
        if o.get("voteinv"): A("s_xor_b32 s55, s55, 0x2000")
        if o["stamps"]:
            A("s_bcnt1_i32_b32 s63, vcc_lo")
            A("s_lshl_b32 %s, %s, 8" % (t2, t2))
            A("s_or_b32 s63, s63, %s" % t2)
    def publish_b(tag):
        C("write-through copies for peers that sit on another die")
        A("v_add_u32 v22, 0x%x, %s" % (MB1B - MB1A, vS1))
        A("v_add_u32 v23, 0x%x, v108" % (MB1B - MB1A))
        A("s_mov_b64 exec, 1")
        A("global_store_dwordx4 v109, v[%d:%d], %s sc1" % (XG, XG + 3, sWS))
        A("s_mov_b32 exec_lo, 0x11111111")
        A("s_mov_b32 exec_hi, 0x11111111")
        A("global_store_dwordx4 v22, v[%d:%d], %s sc1" % (GR, GR + 3, sWS))
        A("s_cmp_ge_u32 %s, 4" % sNOFF)
        A("s_cbranch_scc1 L_pb_%s" % tag)
        A("global_store_dwordx4 v23, v[104:107], %s sc1" % sWS)
        LB("L_pb_%s" % tag)
        A("s_mov_b64 exec, -1")
    if o["bdefer"]:
        A("s_cbranch_vccz L_got1")
        A("s_cmp_lg_u32 %s, %d" % (sCNT, o["bdefer"]))
        A("s_cbranch_scc1 L_poll1")
        publish_b("a")
        A("s_branch L_poll1")
        LB("L_got1")
    else:
        A("s_cbranch_vccnz L_poll1")
    stamp(5)
    for i in range(2):
        b = P + 16 * i
        for k in range(4):
            A("v_add_f32 v%d, v%d, v%d" % (b + k, b + k, b + 4 + k))
            A("v_add_f32 v%d, v%d, v%d" % (b + 8 + k, b + 8 + k, b + 12 + k))
        for k in range(4):
            A("v_add_f32 v%d, v%d, v%d" % (b + k, b + k, b + 8 + k))
        A("v_cvt_pk_bf16_f32 v%d, v%d, v%d" % (b, b, b + 1))
        A("v_cvt_pk_bf16_f32 v%d, v%d, v%d" % (b + 1, b + 2, b + 3))
    A("v_lshlrev_b32 v22, 3, v0")
    A("ds_write_b64 v22, v[%d:%d] offset:%d" % (P, P + 1, L_Q))
    A("ds_write_b64 v22, v[%d:%d] offset:%d" % (P + 16, P + 17, L_Q + 512))
    A("v_cmp_ne_u32 vcc, s54, v%d" % PX)
    A("s_cmp_eq_u64 vcc, 0")
    A("s_cselect_b32 %s, 1, 0" % sFAST)
    if o.get("forceslow"): A("s_mov_b32 %s, 0" % sFAST)
    if o.get("freeq"): A("s_mov_b32 %s, 1" % sFAST)
    if o["lastfin"]:
        A("v_readfirstlane_b32 %s, v%d" % (t0, PX + 2))
        if o["lastfin"] == 1:
            A("s_not_b32 %s, %s" % (t2, sTAG))
            A("v_mov_b32 v23, %s" % t2)
            A("v_lshlrev_b32 v22, 2, v0")
        A("s_lshr_b32 %s, %s, 8" % (t0, t0))
        A("s_cmp_eq_u32 %s, 7" % t0)
        A("s_cselect_b32 %s, 2, 0" % t0)
        if o.get("fixfin") is not None:
            A("s_cmp_eq_u32 %s, %d" % (sH, o["fixfin"]))
            A("s_cselect_b32 %s, 2, 0" % t0)
        A("s_or_b32 %s, %s, %s" % (sFAST, sFAST, t0))
        if o["lastfin"] == 1: A("ds_write_b32 v22, v23 offset:%d" % L_FIN)
        else:
            majority()
            A("s_or_b32 %s, %s, s55" % (sFAST, sFAST))
    A("v_mov_b32 v26, %s" % sFAST)
    A("v_mov_b32 v27, %s" % sTAG)
    A("v_mov_b32 v22, %d" % L_FLAG)
    A("ds_write_b64 v22, v[26:27]")
    if o["auxearly"] and not o.get("freeq"):
        A("s_waitcnt vmcnt(0)")
        bytecheck(PA_, "vcc")
        A("s_cbranch_vccz L_aux_b1")
        A("global_load_dwordx4 v[%d:%d], %s, %s sc1" % (PA_, PA_ + 3, vL1a, sWS))
        LB("L_aux_b1")
    A("s_waitcnt lgkmcnt(0)")
    A("s_barrier")
    if o["bdefer"]:
        A("s_cmp_gt_u32 %s, %d" % (sCNT, o["bdefer"]))
        A("s_cbranch_scc1 L_b_done")
        A("s_bitcmp1_b32 %s, 0" % sFAST if o.get("bskip") else "s_nop 0")
        if o.get("bskip"): A("s_cbranch_scc1 L_b_done")
        publish_b("b")
        LB("L_b_done")
    if o["vote"] and o["lastfin"] < 2: majority()
    if o["hlate"]:
        A("s_setprio %d" % o.get("hprio", 0))
        A("s_barrier")
        A("s_barrier")
    A("s_branch %s" % ("L_chk_aux" if not o.get("freeq") else "L_poll_aux" if o["freeq"] == 2 else "L_auxdone"))
    LB("L_poll_aux")
    A("global_load_dwordx4 v[%d:%d], %s, %s sc1" % (PA_, PA_ + 3, vL1a, sWS))
    switch_copy([vL1a])
    LB("L_chk_aux")
    A("s_waitcnt vmcnt(0)")
    bytecheck(PA_, "vcc")
    A("s_cbranch_vccnz L_poll_aux")
    if o.get("freeq"): LB("L_auxdone")
    A("s_movk_i32 %s, 0xff00" % t0)
    A("v_and_b32 v23, 1, %s" % vF)
    A("v_cmp_eq_u32 vcc, 0, v23")
    A("v_and_b32 v23, 2, %s" % vF)
    A("v_cmp_eq_u32 s[46:47], 0, v23")
    A("v_cndmask_b32 v24, v%d, v%d, vcc" % (PA_ + 1, PA_))
    A("v_cndmask_b32 v25, v%d, v%d, vcc" % (PA_ + 3, PA_ + 2))
    A("v_cndmask_b32 v24, v25, v24, s[46:47]")
    A("v_and_b32 v24, %s, v24" % t0)
    allred("v24", "v23", "v_add_f32", 16)
    allred("v24", "v23", "v_add_f32", 32)
    A("v_cvt_pk_bf16_f32 v24, v24, v24")
    A("v_and_b32 v24, %s, v24" % t1)
    A("v_mul_f32 v25, 0x%x, v24" % (LOG2E | 0x80000000))
    A("v_exp_f32 v25, v25")
    A("v_mov_b32_dpp v26, v24 row_ror:8 %s" % DPP)
    A("v_add_f32 v25, 1.0, v25")
    A("v_rcp_f32 v25, v25")
    A("v_cmp_le_u32 vcc, %s, v0" % sRP)
    A("v_mul_f32 v25, v24, v25")
    A("v_cvt_pk_bf16_f32 v25, v25, v25")
    A("v_and_b32 v25, %s, v25" % t1)
    A("v_mul_f32 v25, v25, v26")
    A("v_cvt_pk_bf16_f32 v25, v25, v25")
    A("v_cndmask_b32 v25, v25, 0, vcc")
    A("v_lshlrev_b32 v22, 2, v0")
    if o["vote"] and not o["lastfin"]:
        A("v_mov_b32 v26, s55")
        A("v_mov_b32 v27, 0")
        A("ds_write_b32 v27, v26 offset:%d" % (L_FLAG + 8))
    A("s_mov_b64 exec, 0xff")
    A("ds_write_b32 v22, v25 offset:%d" % L_H)
    A("s_waitcnt lgkmcnt(0)")
    stamp(6)
    if o["lastfin"] == 1:
        A("s_bitcmp1_b32 %s, 1" % sFAST)
        A("s_cbranch_scc1 L_ufin")
    if not o.get("nodumpU"): dump_stamps()
    A("s_endpgm")
    def unit_final():
        LB("L_ufin")
        C("last group: lane = (wave l>>4, pair (l>>3)&1, group l&7) gathers the eight groups' sums of this workgroup's 16 columns")
        A("s_mov_b64 exec, -1")
        A("s_setprio %d" % o.get("uprio", 0))
        vA3, vLF, vXO, vXV = "v4", "v5", "v6", "v7"
        FP, FS = 8, 40
        A("v_lshrrev_b32 %s, 3, v0" % vLF)
        A("s_lshl_b32 %s, %s, 5" % (t0, sJ))
        A("v_lshl_add_u32 %s, %s, 2, %s" % (vXO, vLF, t0))
        A("global_load_dword %s, %s, %s" % (vXV, vXO, sX))
        A("v_lshlrev_b32 %s, 4, %s" % (vLF, vLF))
        A("s_lshr_b32 %s, %s, 1" % (t0, sJ))
        A("s_lshl_b32 %s, %s, 14" % (t0, t0))
        A("s_and_b32 %s, %s, 1" % (t2, sJ))
        A("s_lshl_b32 %s, %s, 12" % (t2, t2))
        A("s_add_u32 %s, %s, %s" % (t0, t0, t2))
        A("s_add_u32 %s, %s, s55" % (t0, t0))
        A("s_add_u32 %s, %s, 0x%x" % (t0, t0, MB3))
        A("v_and_b32 v22, 7, v0")
        A("v_lshl_add_u32 %s, v22, 9, %s" % (vA3, t0))
        A("v_lshlrev_b32 v22, 7, v126")
        A("v_and_b32 v23, 16, %s" % vLF)
        A("v_add3_u32 %s, %s, v22, v23" % (vA3, vA3))
        A("s_lshl_b32 s44, 0x01010101, %s" % sH)
        A("s_mov_b32 s45, s44")
        A("s_not_b64 s[46:47], s[44:45]")
        A("s_mov_b32 %s, %d" % (sCNT, o["spinmax"]))
        A("s_barrier")
        A("s_barrier")
        A("s_waitcnt vmcnt(0)")
        A("v_lshlrev_b32 v22, 16, %s" % vXV)
        A("v_and_b32 v23, %s, %s" % (t1, vXV))
        def spf():
            C("pull the other groups' lines into this die's L2 over the scalar path (the vector path returns in order and is busy with the group's own hand-off)")
            for k in range(1, 8):
                for w_ in range(4):
                    A("s_load_dword s%d, %s, s%d offset:%d glc" % (6 + (4 * k + w_) % 16, sWS, 48 + k, 128 * w_))
        if o.get("spf"):
            for k in range(1, 8):
                A("s_xor_b32 s%d, %s, %d" % (48 + k, sH, k))
                A("s_lshl_b32 s%d, s%d, 9" % (48 + k, 48 + k))
                A("s_add_u32 s%d, s%d, %s" % (48 + k, 48 + k, t0))
        if o.get("spf", 0) & 2: spf()
        if o["reuse"]: A("s_barrier")
        if o.get("spf", 0) & 1: spf()
        NP = o["npu"]
        def own_read():
            A("s_mov_b64 exec, s[44:45]")
            A("ds_read_b128 v[%d:%d], %s offset:%d" % (FP, FP + 3, vLF, L_FIN))
        if o.get("uwait"):
            A("s_mov_b64 exec, s[44:45]")
            LB("L_uw")
            A("ds_read_b128 v[%d:%d], %s offset:%d" % (FP, FP + 3, vLF, L_FIN))
            A("s_sub_u32 %s, %s, 1" % (sCNT, sCNT))
            A("s_cbranch_scc1 L_end")
            A("s_waitcnt lgkmcnt(0)")
            A("v_cmp_ne_u32 vcc, %s, v%d" % (sTAG, FP + 3))
            if o["uwait"] == 1:
                A("s_cbranch_vccnz L_uw")
            else:
                A("s_cmp_eq_u64 vcc, s[44:45]")
                A("s_cbranch_scc1 L_uw")
        for k in range(NP):
            if k:
                for _ in range(o["stag"]):
                    own_read(); A("s_waitcnt lgkmcnt(0)")
            A("s_mov_b64 exec, s[46:47]")
            A("global_load_dwordx4 v[%d:%d], %s, %s sc1" % (FS + 4 * k, FS + 4 * k + 3, vA3, sWS))
        LB("L_upoll")
        for k in range(NP):
            own_read()
            A("s_mov_b64 exec, s[46:47]")
            A("s_waitcnt vmcnt(%d) lgkmcnt(0)" % (NP - 1))
            A("v_cmp_ne_u32 vcc, %s, v%d" % (sTAG, FS + 4 * k + 3))
            A("v_mov_b32 v%d, v%d" % (FP, FS + 4 * k))
            A("v_mov_b32 v%d, v%d" % (FP + 1, FS + 4 * k + 1))
            A("s_and_b64 s[46:47], exec, vcc")
            A("s_cbranch_scc0 L_ugot")
            A("s_mov_b64 exec, s[46:47]")
            A("global_load_dwordx4 v[%d:%d], %s, %s sc1" % (FS + 4 * k, FS + 4 * k + 3, vA3, sWS))
        A("s_sub_u32 %s, %s, 1" % (sCNT, sCNT))
        A("s_cbranch_scc0 L_upoll")
        A("s_endpgm")
        LB("L_uown")
        A("ds_read_b128 v[%d:%d], %s offset:%d" % (FP, FP + 3, vLF, L_FIN))
        A("s_sub_u32 %s, %s, 1" % (sCNT, sCNT))
        A("s_cbranch_scc1 L_end")
        A("s_waitcnt lgkmcnt(0)")
        LB("L_ugot")
        A("s_mov_b64 exec, s[44:45]")
        A("v_cmp_ne_u32 vcc, %s, v%d" % (sTAG, FP + 3))
        A("s_cbranch_vccnz L_uown")
        stamp(10)
        A("s_mov_b64 exec, -1")
        x_, y_ = "v%d" % FP, "v%d" % (FP + 1)
        for pat in ("quad_perm:[1,0,3,2]", "quad_perm:[2,3,0,1]", "row_half_mirror"):
            A("v_add_f32_dpp %s, %s, %s %s %s" % (x_, x_, x_, pat, DPP))
            A("v_add_f32_dpp %s, %s, %s %s %s" % (y_, y_, y_, pat, DPP))
            if pat != "row_half_mirror": A("s_nop 0")
        A("s_mov_b32 s44, 0x01010101")
        A("v_add_f32 %s, %s, v22" % (x_, x_))
        A("v_add_f32 %s, %s, v23" % (y_, y_))
        A("s_mov_b32 s45, s44")
        A("v_cvt_pk_bf16_f32 %s, %s, %s" % (x_, x_, y_))
        A("s_mov_b64 exec, s[44:45]")
        A("global_store_dword %s, %s, %s" % (vXO, x_, sOUT))
        A("s_cmp_lg_u32 %s, 0" % sJ)
        A("s_cbranch_scc1 L_udone")
        C("the next launch must not mistake this launch's hand-off words for its own")
        A("s_mov_b64 exec, 1")
        A("v_mov_b32 v22, 0")
        A("v_mov_b32 v23, %s" % sTAG)
        A("global_store_dword v22, v23, %s" % sWS)
        LB("L_udone")
        role[0] = "U"
        amp_end("u")
        dump_stamps()
        A("s_endpgm")

    role[0] = "A"
    if o.get("alignA"): L.append(".p2align %d" % o["alignA"])
    for _ in range(o.get("shiftA", 0)): A("s_nop 0")
    LB("L_attn")
    vK0, vK1, vV0, vV1 = "v2", "v3", "v4", "v5"
    vWO0, vWO1, vDN0, vDN1, vXF, vXP = "v6", "v7", "v8", "v9", "v10", "v1"
    vS2, vL2, vS25, vL25, vL3, vS3 = "v11", "v12", "v13", "v14", "v15", "v150"
    KR, VR, WOR, DNR, QR, SR, PA, MK = 16, 48, 80, 96, 104, 120, 128, 146
    vM0, vM1, vQA, vOW, vOR, vMLW, vHA = "v151", "v152", "v153", "v154", "v155", "v156", "v157"
    vN, vG, vN16, vP = "v120", "v121", "v122", "v123"
    u0, u1 = "v124", "v125"
    s4JW = "s41"
    C("K and V: load i = 1 KB block (4 keys) number 128 i + 4j + w of the head's window; K goes through LDS")
    A("s_lshl_b32 %s, %s, 24" % (t0, sH))
    A("s_lshl_b32 %s, %s, 2" % (s4JW, sJ))
    A("s_add_u32 %s, %s, %s" % (s4JW, s4JW, sW))
    if o["lastfin"]:
        C("arrival order of the eight groups (one counter in the zeroed debug words)")
        A("s_cmp_lg_u32 %s, 0" % s4JW)
        A("s_cbranch_scc1 L_notkt0")
        A("v_mov_b32 v158, 0")
        A("v_mov_b32 v159, 1")
        A("s_mov_b64 exec, 1")
        A("global_atomic_add v159, v158, v159, s[24:25] sc0 sc1")
        A("s_mov_b64 exec, -1")
        LB("L_notkt0")
    A("s_lshl_b32 %s, %s, 10" % (t2, s4JW))
    A("s_add_u32 %s, %s, %s" % (t0, t0, t2))
    A("s_add_u32 %s, %s, 0xF00000" % (t0, t0))
    A("v_and_b32 %s, 15, v0" % vN)
    A("v_lshrrev_b32 %s, 4, v0" % vG)
    A("v_lshlrev_b32 %s, 4, %s" % (vN16, vN))
    A("v_lshl_add_u32 %s, v0, 4, %s" % (vV0, t0))
    A("v_lshlrev_b32 %s, 6, %s" % (u0, vG))
    A("v_xor_b32 %s, %s, %s" % (vK0, u0, vV0))
    A("s_lshl_b32 %s, %s, 13" % (t1, sW))
    A("s_add_u32 m0, %s, %d" % (t1, L_K))
    A("s_mov_b32 s42, 0x20000")
    A("s_movk_i32 s43, 1024")
    if not o["vote"]: A("s_waitcnt lgkmcnt(0)")
    if o.get("tlbw") == 1:
        A("s_cmp_lg_u32 %s, 0" % sW)
        A("s_cbranch_scc1 L_notlb")
        tlbwarm()
        A("s_waitcnt vmcnt(0)")
        LB("L_notlb")
    if o["vote"]: A("s_waitcnt lgkmcnt(1)")
    if o["lastfin"]:
        A("s_cmp_lg_u32 %s, 0" % s4JW)
        A("s_cbranch_scc1 L_notkt")
        A("s_mov_b64 exec, 1")
        A("s_waitcnt vmcnt(0)")
        A("ds_write_b32 v158, v159 offset:%d" % L_TKT)
        A("s_mov_b64 exec, -1")
        A("s_waitcnt lgkmcnt(0)")
        LB("L_notkt")
    if o["stl"]:
        C("first touch of the pages the later loads use, over the scalar path (values unused)")
        if o["stl"] & 1: A("s_load_dword s60, %s, %s" % (sK, t0))
        if o["stl"] & 2: A("s_load_dword s61, %s, %s" % (sV, t0))
        if o["stl"] & 4:
            A("s_lshl_b32 %s, %s, 19" % (t2, sH))
            A("s_lshl_b32 %s, %s, 14" % (t3, sJ))
            A("s_add_u32 %s, %s, %s" % (t2, t2, t3))
            A("s_load_dword s62, %s, %s" % (sWO, t2))
            A("s_mul_i32 %s, s2, 7168" % t2)
            A("s_load_dword s63, %s, %s" % (sDN, t2))
        if o["stl"] & 8: A("s_load_dword s59, %s, 0" % sOUT)
        if o["stl"] & 16:
            A("s_lshl_b32 %s, %s, 7" % (t2, sH))
            A("s_load_dword s59, %s, %s" % (sOUT, t2))
    if o["b0pos"]: A("s_barrier")
    stamp(1)
    issued = [0]
    def load(w, txt):
        if issued[0] >= w:
            A("s_waitcnt vmcnt(%d)" % (w - 1))
        A(txt); issued[0] += 1
    def rot(i): return (i * o["rotm"]) & 127
    def kload(i):
        load(o["WK"], "global_load_lds_dwordx4 %s, %s %s" % (vK0, sK, nt))
        if i < 7:
            A("s_add_u32 m0, m0, s43")
            A("v_xor_b32 %s, %d, %s" % (vK0, (((i & 3) ^ ((i + 1) & 3)) << 4) | ((rot(i) ^ rot(i + 1)) << 10), vK0))
            A("v_add_u32 %s, s42, %s" % (vK0, vK0))
    nk_first = min(o["WK"], 8)
    if o.get("bal"):
        A("v_and_b32 v158, 7, v0")
        A("v_lshlrev_b32 v158, 2, v158")
        A("global_load_dword v159, v158, s[24:25] sc1")
    for i in range(nk_first): kload(i)
    C("address and mask setup in the shadow of the K loads")
    if o["stouch"]: A("s_load_dword s63, %s, 0" % sOUT)
    A("s_lshl_b32 %s, %s, 19" % (t0, sH))
    A("s_lshl_b32 %s, %s, 14" % (t2, sJ))
    A("s_add_u32 %s, %s, %s" % (t0, t0, t2))
    A("s_lshl_b32 %s, %s, 8" % (t3, sW))
    A("s_add_u32 %s, %s, %s" % (t0, t0, t3))
    A("s_add_u32 %s, %s, 0x1000" % (t0, t0))
    A("v_lshl_add_u32 %s, %s, 10, %s" % (vDN0, vG, vN16))
    A("v_add_u32 %s, %s, %s" % (vWO0, t0, vDN0))
    A("v_add_u32 %s, 0x2000, %s" % (vWO1, vWO0))
    ffn_share(t0, t2)
    A("s_lshl_b32 %s, s3, 6" % t0)
    A("s_lshl_b32 %s, %s, 1" % (t2, t2))
    A("s_sub_u32 %s, 8, %s" % (t1, t2))
    A("s_mul_i32 %s, %s, %s" % (t2, t1, sJ))
    A("s_add_u32 %s, %s, %s" % (t0, t0, t2))
    A("s_lshl_b32 %s, %s, 10" % (t0, t0))
    A("s_add_u32 %s, %s, %s" % (t0, t0, t3))
    A("s_sub_u32 %s, %s, 1" % (t1, t1))
    A("v_add_u32 %s, %s, %s" % (u1, t0, vN16))
    A("v_min_u32 %s, %s, %s" % (vDN0, t1, vG))
    A("v_lshl_add_u32 %s, %s, 10, %s" % (vDN0, vDN0, u1))
    A("v_add_u32 %s, 4, %s" % (vDN1, vG))
    A("v_min_u32 %s, %s, %s" % (vDN1, t1, vDN1))
    A("v_lshl_add_u32 %s, %s, 10, %s" % (vDN1, vDN1, u1))
    A("v_and_b32 %s, 1, v0" % vP)
    A("v_and_b32 %s, 1, %s" % (u0, vG))
    if o["g25"]:
        if o["cq25"]:
            A("s_lshr_b32 %s, %s, 3" % (t2, sJ))
            A("s_lshl_b32 %s, %s, 8" % (t2, t2))
            A("s_and_b32 %s, %s, 3" % (t0, sJ))
            A("s_lshl_b32 %s, %s, 6" % (t0, t0))
            A("s_add_u32 %s, %s, %s" % (t2, t2, t0))
            A("s_and_b32 %s, %s, 4" % (t0, sJ))
            A("s_lshl_b32 %s, %s, 1" % (t0, t0))
            A("s_add_u32 %s, %s, %s" % (t2, t2, t0))
        else:
            A("s_lshl_b32 %s, %s, 5" % (t2, sJ))
        A("v_bfe_u32 %s, v0, 3, 2" % u1)
        A("v_lshl_add_u32 %s, %s, %d, %s" % (vXF, u1, 4 if o["cq25"] else 3, t2))
        A("v_lshrrev_b32 %s, 5, v0" % u1)
        A("v_lshl_add_u32 %s, %s, 2, %s" % (vXF, u1, vXF))
    else:
        A("s_lshl_b32 %s, %s, 3" % (t2, s4JW))
        A("v_lshl_add_u32 %s, %s, 2, %s" % (vXF, u0, t2))
    RP = o["rp"]
    M25 = 0 if o["reuse"] else MB25 - MB2
    lay = 3 if o["reuse"] else o.get("lay25", 0)
    A("s_mul_i32 %s, %s, %d" % (t0, sH, 32 * RP))
    A("s_add_u32 %s, %s, 0x%x" % (t0, t0, MB2))
    A("s_mul_i32 %s, %s, %d" % (t1, sJ, RP))
    A("s_add_u32 %s, %s, %s" % (t1, t1, t0))
    A("s_mul_i32 %s, %s, %d" % (t2, sW, 8 * RP))
    A("s_lshl_b32 %s, %s, 6" % (t3, sJ))
    A("s_add_u32 %s, %s, %s" % (t0, t0, t3))
    A("s_add_u32 %s, %s, %s" % (t2, t2, t0))
    A("v_bfe_u32 %s, v0, 2, 3" % vS2 if o["cq2"] else "v_lshrrev_b32 %s, 3, v0" % vS2)
    A("v_mul_u32_u24 %s, %d, %s" % (vS2, RP, vS2))
    A("v_and_b32 %s, 3, v0" % u1 if o["cq2"] else "v_bfe_u32 %s, v0, 1, 2" % u1)
    A("v_lshlrev_b32 %s, 4, %s" % (u1, u1))
    A("v_add3_u32 %s, %s, %s, %s" % (vS2, vS2, u1, t2))
    A("v_lshl_add_u32 %s, v0, 4, %s" % (vL2, t1))
    A("s_lshl_b32 %s, %s, 4" % (t3, sW))
    A("v_and_b32 %s, 31, v0" % u1)
    if lay == 0:
        A("s_add_u32 %s, %s, %s" % (t1, t1, t3))
        A("s_add_u32 %s, %s, 0x%x" % (t1, t1, M25))
        A("v_lshl_add_u32 %s, %s, 6, %s" % (vL25, u1, t1))
        A("v_lshrrev_b32 %s, 1, %s" % (vS25, vN))
        A("v_mul_u32_u24 %s, %d, %s" % (vS25, RP, vS25))
        A("v_lshl_add_u32 %s, %s, 5, %s" % (vS25, vP, vS25))
        A("v_lshl_add_u32 %s, %s, 4, %s" % (vS25, u0, vS25))
        A("s_add_u32 %s, %s, 0x%x" % (t2, t2, M25))
        A("v_add_u32 %s, %s, %s" % (vS25, t2, vS25))
    else:
        if not o["g25"]: A("s_add_u32 %s, %s, %s" % (t0, t0, t3))
        if M25: A("s_add_u32 %s, %s, 0x%x" % (t0, t0, M25))
        if o["g25"]:
            A("v_lshrrev_b32 %s, 2, v0" % vL25)
            A("v_mul_u32_u24 %s, %d, %s" % (vL25, RP, vL25))
            A("v_and_b32 %s, 3, v0" % u1)
            A("v_lshlrev_b32 %s, 4, %s" % (u1, u1))
            A("v_add3_u32 %s, %s, %s, %s" % (vL25, vL25, u1, t0))
            A("v_add_u32 v164, %d, %s" % (16 * RP, vL25))
        else:
            A("v_mul_u32_u24 %s, %d, %s" % (vL25, RP, u1))
            A("v_add_u32 %s, %s, %s" % (vL25, t0, vL25))
        A("s_lshl_b32 %s, %s, 9" % (t3, sW))
        A("s_add_u32 %s, %s, %s" % (t1, t1, t3))
        if M25: A("s_add_u32 %s, %s, 0x%x" % (t1, t1, M25))
        if o["cq25"]:
            A("v_and_b32 %s, 31, v0" % vS25)
            A("v_lshl_add_u32 %s, %s, 4, %s" % (vS25, vS25, t1))
        else:
            A("v_lshl_add_u32 %s, %s, 5, %s" % (vS25, vN, t1))
            A("v_lshl_add_u32 %s, %s, 4, %s" % (vS25, u0, vS25))
    A("s_lshr_b32 %s, %s, 1" % (t0, sJ))
    A("s_lshl_b32 %s, %s, 14" % (t0, t0))
    A("s_and_b32 %s, %s, 1" % (t3, sJ))
    A("s_lshl_b32 %s, %s, 12" % (t3, t3))
    A("s_add_u32 %s, %s, %s" % (t0, t0, t3))
    if o["g25"]:
        A("s_add_u32 %s, %s, 0x%x" % (t0, t0, MB3))
        A("v_lshrrev_b32 %s, 3, v0" % u0)
        A("v_lshl_add_u32 %s, %s, 4, %s" % (u0, u0, t0))
        A("v_and_b32 %s, 7, v0" % vL3)
        A("v_lshl_add_u32 %s, %s, 9, %s" % (vL3, vL3, u0))
        A("s_lshl_b32 %s, %s, 9" % (t3, sH))
        A("s_add_u32 %s, %s, %s" % (t0, t0, t3))
        A("v_lshrrev_b32 %s, 5, v0" % u0)
        A("v_lshl_add_u32 %s, %s, 6, %s" % (u0, u0, u1))
        A("v_bfe_u32 %s, v0, 2, 1" % u1)
        A("v_lshlrev_b32 %s, 13, %s" % (u1, u1))
        A("v_add3_u32 %s, %s, %s, %s" % (vS3, u0, u1, t0))
        if o["pt3"]:
            A("s_and_b32 %s, %s, 1" % (t3, sW))
            A("s_lshl_b32 %s, %s, 6" % (t3, t3))
            A("s_add_u32 s3, %s, %s" % (t0, t3))
            A("s_lshr_b32 %s, %s, 1" % (t3, sW))
            A("s_lshl_b32 %s, %s, 13" % (t3, t3))
            A("s_add_u32 s3, s3, %s" % t3)
    else:
        A("s_lshl_b32 %s, %s, 7" % (t3, sW))
        A("s_add_u32 %s, %s, %s" % (t0, t0, t3))
        A("s_add_u32 %s, %s, 0x%x" % (t0, t0, MB3))
        if o["lastfin"] == 1:
            A("s_lshl_b32 %s, %s, 5" % (t3, sW))
            A("v_lshl_add_u32 %s, %s, 4, %s" % (vL3, u0, t3))
        if o["lastfin"] >= 2:
            A("s_lshl_b32 s3, %s, 9" % sH)
            A("s_add_u32 s3, s3, %s" % t0)
        A("v_lshl_add_u32 %s, %s, 4, %s" % (u0, u0, t0))
        if o["lastfin"] != 1:
            A("v_and_b32 %s, 7, v0" % u1)
            A("v_lshl_add_u32 %s, %s, 9, %s" % (vL3, u1, u0))
        A("s_lshl_b32 %s, %s, 9" % (t3, sH))
        A("v_lshl_add_u32 %s, %s, 13, %s" % (u0, vP, u0))
        A("v_add_u32 %s, %s, %s" % (vS3, t3, u0))
    if o.get("mockx"):
        A("s_lshr_b32 %s, %s, 1" % (t0, sJ))
        A("s_lshl_b32 %s, %s, 14" % (t0, t0))
        A("s_and_b32 %s, %s, 1" % (t3, sJ))
        A("s_lshl_b32 %s, %s, 12" % (t3, t3))
        A("s_add_u32 %s, %s, %s" % (t0, t0, t3))
        A("s_lshl_b32 %s, %s, 9" % (t3, sH))
        A("s_add_u32 %s, %s, %s" % (t0, t0, t3))
        A("s_and_b32 %s, %s, 1" % (t3, sW))
        A("s_lshl_b32 %s, %s, 13" % (t3, t3))
        A("s_add_u32 %s, %s, %s" % (t0, t0, t3))
        A("s_add_u32 %s, %s, 0x%x" % (t0, t0, MB3))
        A("v_and_b32 %s, 3, v0" % u0)
        A("v_lshl_add_u32 %s, %s, 4, %s" % (vS3, u0, t0))
        A("s_and_b32 %s, %s, 3" % (t0, sJ))
        A("s_lshl_b32 %s, %s, 2" % (t0, t0))
        A("s_add_u32 %s, %s, %s" % (t0, t0, sW))
        A("s_lshl_b32 %s, %s, 14" % (t0, t0))
        A("s_lshr_b32 %s, %s, 2" % (t3, sJ))
        A("s_lshl_b32 %s, %s, 9" % (t3, t3))
        A("s_add_u32 %s, %s, %s" % (t0, t0, t3))
        A("s_add_u32 %s, %s, 0x%x" % (t0, t0, MB3))
        A("v_lshl_add_u32 %s, %s, 4, %s" % (vL3, u0, t0))
        A("v_bfe_u32 %s, v0, 2, 1" % u0)
        A("v_lshl_add_u32 %s, %s, 12, %s" % (vL3, u0, vL3))
    A("v_lshlrev_b32 %s, 4, %s" % (u1, vP))
    def pretouch2():
        C("pull this workgroup's incoming hand-off lines into L2 (waves 0,1: hop 2; waves 2,3: hop 2.5)")
        if o["reuse"]:
            A("s_lshl_b32 %s, %s, 9" % (t0, sW))
            A("v_lshlrev_b32 v158, 3, v0")
            A("v_sub_u32 v158, %s, v158" % vL2)
            A("v_add_u32 v158, %s, v158" % t0)
            if o["pt3"]: A("v_writelane_b32 v158, s3, 63")
        else:
            A("s_and_b32 %s, %s, 1" % (t0, sW))
            A("s_lshl_b32 %s, %s, 10" % (t0, t0))
            A("s_lshr_b32 %s, %s, 1" % (t3, sW))
            A("s_mul_i32 %s, %s, 0x%x" % (t3, t3, MB25 - MB2))
            A("s_add_u32 %s, %s, %s" % (t0, t0, t3))
            A("v_add_u32 v158, %s, %s" % (t0, vL2))
        if o["pretouch"] in ("r", "k"):
            A("global_load_dword v159, v158, %s sc1" % sWS); issued[0] += 1
        if o.get("otouch2", 0) & 1:
            A("global_load_dword v166, %s, %s" % (vXF, sOUT)); issued[0] += 1
        if o.get("otouch2", 0) & 2:
            A("global_load_dword v165, %s, %s sc1" % (vS3, sWS)); issued[0] += 1
    if o["pretouch"] == "r" or isinstance(o["pretouch"], int): pretouch2()
    A("v_mov_b32 %s, 0xffff" % u0)
    A("v_lshlrev_b32 %s, %s, %s" % (u0, u1, u0))
    A("v_and_b32 %s, 2, v0" % u1)
    A("v_cmp_eq_u32 vcc, 0, %s" % u1)
    A("v_lshrrev_b32 %s, 1, %s" % (u1, vN))
    A("v_lshlrev_b32 %s, 2, %s" % (vHA, vG))
    SEL = 160
    A("v_mov_b32 v%d, 0x0c0c0c0c" % (SEL + 2))
    A("v_mov_b32 v%d, 0x01000100" % (SEL + 3))
    A("v_bfi_b32 v%d, %s, v%d, v%d" % (SEL + 3, u0, SEL + 3, SEL + 2))
    A("v_cndmask_b32 v%d, v%d, v%d, vcc" % (SEL, SEL + 2, SEL + 3))
    A("v_cndmask_b32 v%d, v%d, v%d, vcc" % (SEL + 1, SEL + 3, SEL + 2))
    A("v_and_b32 v%d, 0x02020202, %s" % (SEL + 3, u0))
    A("v_cndmask_b32 v%d, 0, v%d, vcc" % (SEL + 2, SEL + 3))
    A("v_cndmask_b32 v%d, v%d, 0, vcc" % (SEL + 3, SEL + 3))
    A("v_add_u32 v%d, v%d, v%d" % (SEL + 2, SEL + 2, SEL))
    A("v_add_u32 v%d, v%d, v%d" % (SEL + 3, SEL + 3, SEL + 1))
    for r in range(4):
        A("v_cmp_eq_u32 s[%d:%d], %d, %s" % (44 + 2 * r, 45 + 2 * r, r, u1))
    A("v_lshrrev_b32 %s, 2, %s" % (vMLW, vN))
    A("v_lshlrev_b32 %s, 4, %s" % (u1, vG))
    A("v_lshl_add_u32 %s, %s, 8, %s" % (vQA, vMLW, u1))
    for r in range(4):
        A("v_cndmask_b32 v%d, 0, %s, s[%d:%d]" % (MK + r, u0, 44 + 2 * r, 45 + 2 * r))
    OH, OG, OWV = (384, 768, 3072) if o["cq2"] else (256, 512, 2048)
    if o["cq2"]:
        A("s_mul_i32 %s, %s, %d" % (t0, sW, OWV))
        A("v_mul_u32_u24 %s, %d, %s" % (vOW, OG, vG))
        A("v_add3_u32 %s, %s, %s, %s" % (vOW, vOW, vN16, t0))
    else:
        A("s_lshl_b32 %s, %s, 11" % (t0, sW))
        A("v_lshl_add_u32 %s, %s, 9, %s" % (vOW, vG, vN16))
        A("v_add_u32 %s, %s, %s" % (vOW, t0, vOW))
    A("s_lshl_b32 %s, %s, 3" % (t0, sW))
    A("v_lshl_add_u32 %s, %s, 5, %s" % (vMLW, vMLW, t0))
    if o["cq2"]:
        A("v_bfe_u32 %s, v0, 1, 4" % u1)
        A("v_lshlrev_b32 %s, 4, %s" % (u1, u1))
        A("v_mul_u32_u24 %s, %d, %s" % (u0, OH, vP))
        A("s_mul_i32 %s, %s, %d" % (t0, sW, OG))
        A("v_add3_u32 %s, %s, %s, %s" % (vOR, u0, u1, t0))
    else:
        A("v_bfe_u32 %s, v0, 1, 1" % u0)
        A("v_lshrrev_b32 %s, 2, v0" % u1)
        A("v_lshlrev_b32 %s, 4, %s" % (u1, u1))
        A("v_lshl_add_u32 %s, %s, 8, %s" % (u1, u0, u1))
        A("v_lshl_add_u32 %s, %s, 3, %s" % (u1, vP, u1))
        A("s_lshl_b32 %s, %s, 9" % (t0, sW))
        A("v_add_u32 %s, %s, %s" % (vOR, t0, u1))
    KA = 140
    A("v_and_b32 %s, 3, v0" % u0)
    A("v_lshrrev_b32 %s, 2, %s" % (u1, vN))
    A("v_lshlrev_b32 %s, 8, %s" % (u1, u1))
    A("v_lshl_add_u32 %s, %s, 10, %s" % (u0, u0, u1))
    A("v_xor_b32 %s, %s, %s" % (u1, vG, vN))
    A("v_lshl_add_u32 %s, %s, 4, %s" % (u0, u1, u0))
    A("s_lshl_b32 %s, %s, 13" % (t1, sW))
    A("v_add_u32 v%d, %s, %s" % (KA, t1, u0))
    for s_ in range(1, 4):
        A("v_xor_b32 v%d, %d, v%d" % (KA + s_, s_ << 6, KA))
    if o.get("cheap", 0) & 1:
        A("v_and_b32 %s, 0x3fff, %s" % (vWO0, vWO0)); A("v_or_b32 %s, 0x1000, %s" % (vWO0, vWO0)); A("v_mov_b32 %s, %s" % (vWO1, vWO0))
    if o.get("cheap", 0) & 2:
        A("v_and_b32 %s, 0x3fff, %s" % (vDN0, vDN0)); A("v_mov_b32 %s, %s" % (vDN1, vDN0))
    if o.get("cheap", 0) & 4:
        A("v_and_b32 %s, 0x3fff, %s" % (vV0, vV0)); A("s_mov_b32 s63, 0")
    for _ in range(o.get("delayA", 0)): A("s_nop 3")
    def issue_rest(WK_, W_):
        o_wk = o["WK"]; o["WK"] = WK_
        for i in range(nk_first, 8): kload(i)
        o["WK"] = o_wk
        if o["pretouch"] == "k": pretouch2()
        if o.get("xearly"):
            A("global_load_dword %s, %s, %s" % (vXP, vXF, sX)); issued[0] += 1
        for i in range(8 - o["vlate"]):
            ld, *step = vload(i)
            load(W_, ld)
            for t_ in step: A(t_)
    def vload(i):
        r = VR + i * 4
        seq = ["global_load_dwordx4 v[%d:%d], %s, %s %s" % (r, r + 3, vV0, sV, nt)]
        if i < 7:
            if rot(i) ^ rot(i + 1): seq.append("v_xor_b32 %s, %d, %s" % (vV0, (rot(i) ^ rot(i + 1)) << 10, vV0))
            seq.append("v_add_u32 %s, %s, %s" % (vV0, "s63" if o.get("cheap", 0) & 4 and i % o.get("cheapm", 1) == 0 else "s42", vV0))
        return seq
    if o.get("bal"):
        C("a group that started well after others asks memory with a wider window")
        A("s_waitcnt vmcnt(%d)" % issued[0])
        A("v_sub_u32 v158, s90, v159")
        A("v_cmp_ne_u32 vcc, 0, v159")
        A("v_cmp_lt_i32 s[44:45], %d, v158" % o.get("theta", 40))
        A("s_and_b32 s62, vcc_lo, s44")
        A("s_and_b32 s62, s62, 0xff")
        A("s_bcnt1_i32_b32 s62, s62")
        A("s_cmp_ge_u32 s62, %d" % o.get("lateth", 2))
        A("s_cbranch_scc1 L_wide")
        keep = issued[0]
        issue_rest(o["WK"], o["W"])
        A("s_branch L_issued")
        LB("L_wide")
        issued[0] = keep
        issue_rest(o["WK"] + o["bal"], o["W"] + o["bal"])
        LB("L_issued")
    elif o.get("c3"):
        A("s_lshr_b32 %s, %s, 2" % (t0, sJ))
        A("s_cmp_eq_u32 %s, 3" % t0)
        A("s_cbranch_scc1 L_wide")
        keep = issued[0]
        issue_rest(o["WK"], o["W"])
        A("s_branch L_issued")
        LB("L_wide")
        issued[0] = keep
        issue_rest(o["WK"] + o["c3"], o["W"] + o.get("c3v", o["c3"]))
        LB("L_issued")
    else:
        issue_rest(o["WK"], o["W"])
    tail = []
    if o["lastfin"] != 1 and not o.get("xstag"): tail.append("global_load_dword %s, %s, %s" % (vXP, vXF, sX))
    for a in range(2):
        r = DNR + a * 4
        tail.append("global_load_dwordx4 v[%d:%d], %s, %s %s" % (r, r + 3, (vDN0, vDN1)[a], sDN, nt))
    for m in range(4):
        r = WOR + m * 4
        tail.append("global_load_dwordx4 v[%d:%d], %s, %s offset:%d %s" % (r, r + 3, (vWO0, vWO1)[m >> 1], sWO, (0, -4096)[(m & 1) == 0], nt))
    dnl = []
    if o.get("dnlate"):
        dnl = tail[1:1 + 2]
        if o["dnlate"] == 2: dnl = dnl[1:]
        for t_ in dnl: tail.remove(t_)
        tail.append(tail.pop(0))
    if isinstance(o["pretouch"], int):
        tail.insert(o["pretouch"], "global_load_dword v159, v158, %s sc1" % sWS)
    if o.get("xearly"):
        xl = [t_ for t_ in tail if vXP + "," in t_][0]; tail.remove(xl)
    taft = []
    for _ in range(o.get("tafter", 0)): taft.insert(0, tail.pop())
    tail[:0] = [vload(i) for i in range(8 - o["vlate"], 8)]
    nav = [-o["vlate"]]
    def tail_issue(n):
        for _ in range(n):
            if tail:
                t_ = tail.pop(0)
                for q_ in ([t_] if isinstance(t_, str) else t_): A(q_)
                nav[0] += 1
    sNE = "s63"
    def adaptive():
        C("a wave whose V loads have landed while it waited for q tops its window up with the weight loads")
        assert not o["vlate"] and not o["ntail0"] and not o["tsp"] and not o["tlag"] and len(tail) == 7
        A("s_getreg_b32 %s, hwreg(HW_REG_IB_STS, 0, 4)" % t0)
        A("s_sub_i32 %s, %d, %s" % (sNE, o["Wa"], t0))
        for k in range(min(7, o["Wa"])):
            A("s_cmp_le_i32 %s, %d" % (sNE, k))
            A("s_cbranch_scc1 L_topped")
            A(tail[k])
        LB("L_topped")
    A("s_waitcnt vmcnt(%d)" % (8 - o["vlate"]))
    for t in range(2):
        for s in range(4):
            r = KR + (t * 4 + s) * 4
            A("ds_read_b128 v[%d:%d], v%d offset:%d" % (r, r + 3, KA + s, L_K + t * 4096))
    tail_issue(o["ntail0"])
    stamp(2)
    A("s_waitcnt lgkmcnt(0)")
    A("s_barrier")
    stamp(3)
    for s in range(4):
        A("ds_read_b128 v[%d:%d], %s offset:%d" % (QR + 4 * s, QR + 4 * s + 3, vQA, L_Q + s * 64))
    if "a" in o["tsp"]: tail_issue(1)
    if o["adap"] == "a": adaptive()
    A("s_mov_b32 s46, 0x%x" % SCALE)
    A("s_mov_b32 %s, 0xffff0000" % t1)
    A("s_mov_b32 s48, 0x%x" % LOG2E)
    for s in range(4):
        A("s_waitcnt lgkmcnt(%d)" % (3 - s))
        for t in range(2):
            mfma(SR + 4 * t, KR + (t * 4 + s) * 4, QR + 4 * s, None if s == 0 else SR + 4 * t)
    T = KR
    vH0, vH1, vFL, vTG = "v%d" % (T + 28), "v%d" % (T + 29), "v%d" % (T + 26), "v%d" % (T + 27)
    A("v_mov_b32 %s, %d" % (vFL, L_FLAG))
    A("s_lshl_b32 %s, %s, 5" % (t3, sW))
    A("v_mov_b32 v%d, %s" % (T + 31, t3))
    A("ds_read_b64 v[%d:%d], %s" % (T + 26, T + 27, vFL))
    if "b" in o["tsp"]:
        tail_issue(1); A("s_nop 1")
    elif o["adap"] == "b": adaptive()
    else: A("s_nop 2")
    C("scores: bf16(qk) -> * scale -> bf16   (the reference's two roundings)")
    for i in range(8):
        A("v_cvt_pk_bf16_f32 v%d, 0, v%d" % (SR + i, SR + i))
    for i in range(4):
        A("v_pk_mul_f32 %s, %s, s[46:47] op_sel_hi:[1,0]" % (P2(SR + 2 * i), P2(SR + 2 * i)))
    for i in range(8):
        A("v_cvt_pk_bf16_f32 v%d, 0, v%d" % (SR + i, SR + i))
    vm, vt, vl = "v%d" % (T + 4), "v%d" % (T + 6), "v%d" % (T + 5)
    A("v_max3_f32 %s, v%d, v%d, v%d" % (vm, SR, SR + 1, SR + 2))
    A("v_max3_f32 %s, v%d, v%d, v%d" % (vt, SR + 3, SR + 4, SR + 5))
    A("v_max3_f32 %s, %s, v%d, v%d" % (vm, vm, SR + 6, SR + 7))
    A("v_max_f32 %s, %s, %s" % (vm, vm, vt))
    allred(vm, vt, "v_max_f32", 16)
    if "c" in o["tsp"]: tail_issue(1)
    if o["adap"] == "c": adaptive()
    allred(vm, vt, "v_max_f32", 32)
    A("v_mul_f32 %s, s48, %s" % (vm, vm))
    for i in range(4):
        A("v_pk_fma_f32 %s, %s, s[48:49], %s op_sel_hi:[1,0,0] neg_lo:[0,0,1] neg_hi:[0,0,1]" % (P2(SR + 2 * i), P2(SR + 2 * i), P2(T + 4)))
    for i in range(8):
        A("v_exp_f32 v%d, v%d" % (SR + i, SR + i))
    if "d" in o["tsp"]: tail_issue(1)
    for i in range(4):
        A("v_cvt_pk_bf16_f32 v%d, v%d, v%d" % (T + 8 + i, SR + 2 * i, SR + 2 * i + 1))
    for i in range(8):
        for r in range(2):
            A("v_perm_b32 v%d, v%d, v%d, v%d" % (PA + 2 * i + r, T + 8 + (i >> 1), T + 8 + (i >> 1), SEL + 2 * (i & 1) + r))
    stamp(4)
    O0, O1, Y = QR, QR + 4, QR + 8
    def pv(i):
        assert 7 - i + nav[0] >= 0
        A("s_waitcnt vmcnt(%d)" % (7 - i + nav[0]))
        if o["adap"] and i < min(7, o["Wa"]):
            A("s_cmp_gt_i32 %s, %d" % (sNE, i))
            A("s_cbranch_scc1 L_had%d" % i)
            tail_issue(1)
            LB("L_had%d" % i)
        elif i >= o["tlag"]: tail_issue((2 if i < o.get("tdbl", 0) else 1) if i < o.get("tlast", 7) else 9)
        vr = VR + 4 * i
        mfma16(O0, PA + 2 * i, vr, None if i == 0 else O0)
        mfma16(O1, PA + 2 * i, vr + 2, None if i == 0 else O1)
    A("v_pk_add_f32 %s, %s, %s" % (P2(SR), P2(SR), P2(SR + 2)))
    A("v_pk_add_f32 %s, %s, %s" % (P2(SR + 4), P2(SR + 4), P2(SR + 6)))
    A("v_pk_add_f32 %s, %s, %s" % (P2(SR), P2(SR), P2(SR + 4)))
    A("v_add_f32 %s, v%d, v%d" % (vl, SR, SR + 1))
    allred(vl, vt, "v_add_f32", 16)
    allred(vl, vt, "v_add_f32", 32)
    A("ds_write_b64 %s, v[%d:%d] offset:%d" % (vMLW, T + 4, T + 5, L_ML))
    A("s_waitcnt lgkmcnt(0)")
    A("v_readfirstlane_b32 %s, %s" % (sFAST, vFL))
    A("v_readfirstlane_b32 %s, %s" % (sTAG, vTG))
    SO = 4
    def soffs():
        A("s_and_b32 %s, %s, 0x2000" % (t0, sFAST))
        A("v_add_u32 %s, %s, %s" % (vL3, t0, vL3))
        A("s_or_b32 s3, s3, %s" % t0)
        for k in range(1, 8): A("s_xor_b32 s%d, s3, 0x%x" % (SO + k - 1, k << 9))
    nshot = [0]
    SD = [12, 20, 44, 64, 72, 80, 88] if not o["stamps"] else None
    def sshot(bit):
        if o["lastfin"] < 2 or not (o.get("sshot", 2) & bit): return
        nshot[0] += 1
        A("s_bitcmp0_b32 %s, 1" % sFAST)
        A("s_cbranch_scc1 L_noshot%d" % nshot[0])
        for k in range(1, 8):
            if o["lastfin"] == 2: A("s_load_dword s%d, %s, s%d offset:12 %s" % (12 + k, sWS, SO + k - 1, o.get("sfl", "glc")))
            else: A("s_load_dwordx8 s[%d:%d], %s, s%d glc" % (SD[k - 1], SD[k - 1] + 7, sWS, SO + k - 1))
        LB("L_noshot%d" % nshot[0])
    HA = T + 16
    ML = T
    OB = T + 8
    G2 = SR
    vM, vLs = "v124", "v125"
    for i in range(o["b2"]): pv(i)
    if o.get("dbgb2"): A("s_memrealtime s[70:71]")
    A("s_barrier")
    if o.get("dbgb2"): A("s_memrealtime s[72:73]")
    A("ds_read_b128 v[%d:%d], v%d offset:%d" % (ML, ML + 3, T + 31, L_ML))
    A("ds_read_b128 v[%d:%d], v%d offset:%d" % (ML + 4, ML + 7, T + 31, L_ML + 16))
    if not o["hlate"]:
        A("ds_read_b32 %s, %s offset:%d" % (vH0, vHA, L_H))
        A("ds_read_b32 %s, %s offset:%d" % (vH1, vHA, L_H + 16))
    avote = o["vote"] and not o["lastfin"]
    if avote:
        A("v_mov_b32 v%d, 0" % (T + 30))
        A("ds_read_b32 v%d, v%d offset:%d" % (T + 30, T + 30, L_FLAG + 8))
    if not o["cq2"]:
        A("s_mov_b32 s54, 0x55555555")
        A("s_mov_b32 s55, 0x55555555")
    A("v_mov_b32 v%d, %s" % (G2 + 3, sTAG))
    A("s_waitcnt lgkmcnt(%d)" % ((0 if o["hlate"] else 2) + (1 if avote else 0)))
    A("v_max3_f32 %s, v%d, v%d, v%d" % (vM, ML, ML + 2, ML + 4))
    A("v_max_f32 %s, %s, v%d" % (vM, vM, ML + 6))
    for w_ in range(4):
        A("v_sub_f32 v%d, v%d, %s" % (ML + 2 * w_, ML + 2 * w_, vM))
    for w_ in range(4):
        A("v_exp_f32 v%d, v%d" % (ML + 2 * w_, ML + 2 * w_))
    A("s_waitcnt lgkmcnt(0)")
    A("v_mul_f32 %s, v%d, v%d" % (vLs, ML, ML + 1))
    for w_ in range(1, 4):
        A("v_fmac_f32 %s, v%d, v%d" % (vLs, ML + 2 * w_, ML + 2 * w_ + 1))
    def h_operands():
        for a in range(2):
            for r in range(4):
                A("v_and_b32 v%d, %s, v%d" % (HA + 4 * a + r, (vH0, vH1)[a], MK + r))
    A("v_log_f32 v%d, %s" % (G2 + 2, vLs))
    A("v_rcp_f32 %s, %s" % (vLs, vLs))
    if not o["hlate"]: h_operands()
    else: A("s_nop 0")
    if avote: A("v_add_u32 %s, v%d, %s" % (vL3, T + 30, vL3))
    A("v_add_f32 v%d, v%d, %s" % (G2 + 2, G2 + 2, vM))
    for w_ in range(4):
        A("v_mul_f32 v%d, v%d, %s" % (ML + 2 * w_, ML + 2 * w_, vLs))
    for i in range(o["b2"], 8): pv(i)
    stamp(5)
    if o.get("nosync"):
        A("s_waitcnt vmcnt(0)")
        stamp(6)
        A("s_branch L_done")
    A("s_nop 6")
    A("ds_write_b128 %s, v[%d:%d] offset:%d" % (vOW, O0, O0 + 3, L_O))
    A("ds_write_b128 %s, v[%d:%d] offset:%d" % (vOW, O1, O1 + 3, L_O + OH))
    A("s_waitcnt lgkmcnt(0)")
    A("s_barrier")
    if o["cq2"]:
        OB4, AC = VR, VR + 16
        A("s_mov_b32 exec_hi, 0")
        for w_ in range(4):
            A("ds_read_b128 v[%d:%d], %s offset:%d" % (OB4 + 4 * w_, OB4 + 4 * w_ + 3, vOR, L_O + w_ * OWV))
        A("s_bitcmp0_b32 %s, 0" % sFAST)
        for w_ in range(4):
            A("s_waitcnt lgkmcnt(%d)" % (3 - w_))
            for hf in range(2):
                if w_ == 0: A("v_pk_mul_f32 %s, %s, %s op_sel_hi:[1,0]" % (P2(AC + 2 * hf), P2(OB4 + 2 * hf), P2(ML)))
                else: A("v_pk_fma_f32 %s, %s, %s, %s op_sel_hi:[1,0,1]" % (P2(AC + 2 * hf), P2(OB4 + 4 * w_ + 2 * hf), P2(ML + 2 * w_), P2(AC + 2 * hf)))
    else:
        for w_ in range(4):
            A("ds_read_b64 v[%d:%d], %s offset:%d" % (OB + 2 * w_, OB + 2 * w_ + 1, vOR, L_O + w_ * 2048))
        A("s_bitcmp0_b32 %s, 0" % sFAST)
        for w_ in range(4):
            A("s_waitcnt lgkmcnt(%d)" % (3 - w_))
            op = "v_mul_f32" if w_ == 0 else "v_fmac_f32"
            A("%s v%d, v%d, v%d" % (op, G2, ML + 2 * w_, OB + 2 * w_))
            A("%s v%d, v%d, v%d" % (op, G2 + 1, ML + 2 * w_, OB + 2 * w_ + 1))
    tails = []
    def publish(addr, g, name):
        A("s_cbranch_scc1 L_slow_%s" % name)
        A("global_store_dwordx4 %s, v[%d:%d], %s %s" % (addr, g, g + 3, sWS, o.get("stfl", "")))
        LB("L_back_%s" % name)
        tails.append((name, addr, g))
    if o["cq2"]:
        A("v_cvt_pk_bf16_f32 v%d, v%d, v%d" % (G2, AC, AC + 1))
        A("v_cvt_pk_bf16_f32 v%d, v%d, v%d" % (G2 + 1, AC + 2, AC + 3))
    else:
        A("v_cvt_pk_bf16_f32 v%d, v%d, v%d" % (G2, G2, G2 + 1))
        A("s_nop 1")
        A("v_mov_b32_dpp v%d, v%d quad_perm:[1,1,3,3] %s" % (G2 + 1, G2, DPP))
        A("s_mov_b64 exec, s[54:55]")
    publish(vS2, G2, "h2")
    A("s_mov_b64 exec, -1")
    stamp(6)
    P = T
    for i in range(2):
        A("global_load_dwordx4 v[%d:%d], %s, %s offset:%d %s" % (P + 4 * i, P + 4 * i + 3, vL2, sWS, i * 1024, o.get("p2fl", "sc1")))
    for t_ in dnl: A(t_)
    if o["hlate"]:
        A("s_barrier")
        A("ds_read_b32 %s, %s offset:%d" % (vH0, vHA, L_H))
        A("ds_read_b32 %s, %s offset:%d" % (vH1, vHA, L_H + 16))
    A("s_mov_b32 %s, %d" % (sCNT, o["spinmax"]))
    vTAG = "v127"
    sT2 = sTAG
    if o["reuse"]:
        sT2 = "s62"
        A("s_not_b32 %s, %s" % (t0, sTAG))
        A("s_lshl_b32 %s, %s, 24" % (t0, t0))
        A("s_and_b32 s62, %s, 0xffffff" % sTAG)
        A("s_or_b32 s62, s62, %s" % t0)
    A("v_mov_b32 %s, %s" % (vTAG, sT2))
    for k in range(4):
        A("s_mov_b32 s%d, 0x%x" % (56 + k, 0x07060500 | k))
        A("s_bfe_u32 s%d, %s, 0x%x" % (60 + k if k < 2 else 50 + k, sT2, 0x80000 | (8 * k)))
    TB = ["s60", "s61", "s52", "s53"]
    if o["hlate"]:
        A("s_waitcnt lgkmcnt(0)")
        h_operands()
    ndn_early = 2 - len(dnl)
    if o["lastfin"] >= 2: soffs()
    if o.get("mockx"): ndn_early = 0
    else: A("s_waitcnt vmcnt(%d)" % (3 + len(dnl)))
    if o.get("dbgwo"): A("s_memrealtime s[68:69]")
    for a in range(ndn_early):
        mfma(Y, HA + 4 * a, DNR + 4 * a, None if a == 0 else Y)
    if dnl:
        A("s_waitcnt vmcnt(%d)" % len(dnl))
        A("s_branch L_chk2b")
    else:
        A("s_branch L_chk2")
    LB("L_poll2")
    MS = ["s[44:45]", "s[46:47]"]
    for i in range(2):
        if o["mask2"]: A("s_mov_b64 exec, %s" % MS[i])
        A("global_load_dwordx4 v[%d:%d], %s, %s offset:%d sc1" % (P + 4 * i, P + 4 * i + 3, vL2, sWS, i * 1024))
    if o["mask2"]: A("s_mov_b64 exec, -1")
    A("s_sub_u32 %s, %s, 1" % (sCNT, sCNT))
    A("s_cbranch_scc1 L_end")
    LB("L_chk2")
    A("s_waitcnt vmcnt(0)")
    LB("L_chk2b")
    A("v_max_f32 %s, v%d, v%d" % (vM, P + 2, P + 6))
    for i in range(2):
        A("v_cmp_ne_u32 %s, %s, v%d" % (MS[i], sTAG, P + 4 * i + 3))
    A("v_max_f32_dpp %s, %s, %s row_ror:4 %s" % (vM, vM, vM, DPP))
    A("s_or_b64 vcc, %s, %s" % (MS[0], MS[1]))
    A("s_cbranch_scc1 L_poll2")
    stamp(7)
    if o.get("tpos", "g") == "g":
        for t_ in taft: A(t_)
    sshot(1)
    U = T + 8
    def unp(i, k):
        if k & 1: A("v_and_b32 v%d, %s, v%d" % (U + 4 * i + k, t1, P + 4 * i + (k >> 1)))
        else: A("v_lshlrev_b32 v%d, 16, v%d" % (U + 4 * i + k, P + 4 * i + (k >> 1)))
    vt2 = "v126"
    A("v_max_f32_dpp %s, %s, %s row_ror:8 %s" % (vM, vM, vM, DPP))
    A("v_mov_b32 %s, %s" % (vt2, vM))
    unp(0, 0); unp(0, 1)
    A("v_permlane16_swap_b32 %s, %s" % (vt2, vM))
    A("v_max_f32 %s, %s, %s" % (vM, vM, vt2))
    A("v_mov_b32 %s, %s" % (vt2, vM))
    unp(0, 2); unp(0, 3)
    A("v_permlane32_swap_b32 %s, %s" % (vt2, vM))
    A("v_max_f32 %s, %s, %s" % (vM, vM, vt2))
    w0, w1 = "v120", "v122"
    A("v_sub_f32 %s, v%d, %s" % (w0, P + 2, vM))
    A("v_sub_f32 %s, v%d, %s" % (w1, P + 6, vM))
    A("v_exp_f32 %s, %s" % (w0, w0))
    A("v_exp_f32 %s, %s" % (w1, w1))
    unp(1, 0)
    den, tA, tB = "v126", "v124", "v123"
    A("v_add_f32 %s, %s, %s" % (den, w0, w1))
    unp(1, 1); unp(1, 2)
    A("v_add_f32_dpp %s, %s, %s row_ror:4 %s" % (den, den, den, DPP))
    unp(1, 3)
    A("v_pk_mul_f32 %s, %s, v[120:121] op_sel_hi:[1,0]" % (P2(U), P2(U)))
    A("v_add_f32_dpp %s, %s, %s row_ror:8 %s" % (den, den, den, DPP))
    A("v_pk_mul_f32 %s, %s, v[120:121] op_sel_hi:[1,0]" % (P2(U + 2), P2(U + 2)))
    A("v_pk_fma_f32 %s, %s, v[122:123], %s op_sel_hi:[1,0,1]" % (P2(U), P2(U + 4), P2(U)))
    A("v_pk_fma_f32 %s, %s, v[122:123], %s op_sel_hi:[1,0,1]" % (P2(U + 2), P2(U + 6), P2(U + 2)))
    A("v_mov_b32 %s, %s" % (tA, den))
    A("s_bitcmp0_b32 %s, 0" % sFAST)
    A("v_permlane32_swap_b32 v%d, v%d" % (U, U + 2))
    A("v_permlane32_swap_b32 v%d, v%d" % (U + 1, U + 3))
    A("v_permlane32_swap_b32 %s, %s" % (tA, den))
    A("v_pk_add_f32 %s, %s, %s" % (P2(U), P2(U), P2(U + 2)))
    A("v_add_f32 %s, %s, %s" % (den, den, tA))
    A("s_mov_b32 %s, %d" % (sCNT, o["spinmax"]))
    A("v_permlane16_swap_b32 v%d, v%d" % (U, U + 1))
    A("v_mov_b32 %s, %s" % (tA, den))
    A("v_add_f32 v%d, v%d, v%d" % (U, U, U + 1))
    A("s_nop 0")
    A("v_permlane16_swap_b32 %s, %s" % (tA, den))
    A("v_add_f32_dpp v%d, v%d, v%d row_ror:4 %s" % (U, U, U, DPP))
    A("v_add_f32 %s, %s, %s" % (den, den, tA))
    A("v_rcp_f32 %s, %s" % (den, den))
    A("v_add_f32_dpp v%d, v%d, v%d row_ror:8 %s" % (U, U, U, DPP))
    a0 = "v125"
    A("v_mul_f32 %s, v%d, %s" % (a0, U, den))
    A("v_cvt_pk_bf16_f32 %s, %s, %s" % (a0, a0, a0))
    if o.get("mockx"):
        GX, PXS = 120, VR
        A("v_mov_b32 v%d, %s" % (GX + 3, sTAG))
        A("s_cmp_gt_u32 %s, 1" % sW)
        A("v_mov_b32_dpp v%d, %s quad_perm:[0,0,2,2] %s" % (GX, a0, DPP))
        A("v_mov_b32_dpp v%d, %s quad_perm:[1,1,3,3] %s" % (GX + 1, a0, DPP))
        A("s_cselect_b64 exec, 0, 15")
        A("global_store_dwordx4 %s, v[%d:%d], %s sc1" % (vS3, GX, GX + 3, sWS))
        A("s_mov_b64 exec, -1")
        stamp(1)
        if o.get("tpos") == "x":
            for t_ in taft: A(t_)
        A("s_mov_b64 exec, 0xff")
        LB("L_pollx")
        A("global_load_dwordx4 v[%d:%d], %s, %s sc1" % (PXS, PXS + 3, vL3, sWS))
        A("s_sub_u32 %s, %s, 1" % (sCNT, sCNT))
        A("s_cbranch_scc1 L_end")
        A("s_waitcnt vmcnt(0)")
        A("v_cmp_ne_u32 vcc, %s, v%d" % (sTAG, PXS + 3))
        A("v_mov_b32 %s, v%d" % (a0, PXS))
        A("s_and_b64 exec, exec, vcc")
        A("s_cbranch_scc1 L_pollx")
        A("s_mov_b64 exec, -1")
        stamp(10)
        A("s_bitcmp0_b32 %s, 0" % sFAST)
        for a in range(2):
            mfma(Y, HA + 4 * a, DNR + 4 * a, None if a == 0 else Y)
        ndn_early = 2
    A("s_nop 1")
    WA = T
    for m in range(4):
        for r in range(4):
            A("v_and_b32_dpp v%d, %s, v%d row_newbcast:%d %s" % (WA + 4 * m + r, a0, MK + r, m, DPP))
        if m > 0:
            mfma(Y, WA + 4 * (m - 1), WOR + 4 * (m - 1), Y if (m > 1 or ndn_early) else None)
    if dnl:
        A("s_waitcnt vmcnt(0)")
        for a in range(ndn_early, 2):
            mfma(Y, HA + 4 * a, DNR + 4 * a, Y)
    else:
        A("s_nop 1")
    mfma(Y, WA + 12, WOR + 12, Y)
    A("s_mov_b32 exec_hi, 0")
    if o["reuse"]:
        A("s_barrier")
        A("s_nop 5")
    else:
        A("s_nop 6")
    for k in range(4):
        A("v_perm_b32 v%d, v%d, %s, s%d" % (Y + k, Y + k, vTAG, 56 + k))
    publish(vS25, Y, "h25")
    stamp(8)
    sshot(2)
    def tail_g25():
        PS = T + 16
        A("s_cmp_lg_u32 %s, %d" % (sW, o["gw"]))
        A("s_cbranch_scc1 L_done")
        A("s_mov_b64 exec, -1")
        if o.get("ack25") == 1: A("s_waitcnt vmcnt(0)")
        NP = o["np25"]
        PK = [PS, PS + 8, WOR, WOR + 8, DNR]
        def ask(k):
            A("global_load_dwordx4 v[%d:%d], %s, %s sc1" % (PK[k], PK[k] + 3, vL25, sWS))
            A("global_load_dwordx4 v[%d:%d], v164, %s sc1" % (PK[k] + 4, PK[k] + 7, sWS))
        def look(k):
            A("s_waitcnt vmcnt(%d)" % (2 * NP - 1))
            for q in range(4): A("v_xor_b32 v%d, %s, v%d" % (P + q, TB[q], PK[k] + q))
            A("v_or3_b32 %s, v%d, v%d, v%d" % (tA, P, P + 1, P + 2))
            A("s_waitcnt vmcnt(%d)" % (2 * NP - 2))
            for q in range(4): A("v_xor_b32 v%d, %s, v%d" % (P + 4 + q, TB[q], PK[k] + 4 + q))
            A("v_or3_b32 %s, %s, v%d, v%d" % (tA, tA, P + 3, P + 4))
            A("v_or3_b32 %s, %s, v%d, v%d" % (tA, tA, P + 5, P + 6))
            A("v_or_b32_sdwa %s, %s, v%d dst_sel:DWORD dst_unused:UNUSED_PAD src0_sel:BYTE_0 src1_sel:BYTE_0" % (tA, tA, P + 7))
            A("v_cmp_ne_u32 vcc, 0, %s" % tA)
            A("s_and_b64 exec, exec, vcc")
        def masks():
            A("s_lshl_b32 s46, 0x01010101, %s" % sH)
            A("s_not_b32 s46, s46")
            A("s_mov_b32 s47, s46")
            if o["cq25"]:
                A("s_lshr_b32 s41, %s, 2" % sJ)
                A("s_and_b32 s41, s41, 6")
                A("s_bfe_u32 %s, %s, 0x10001" % (t0, sJ))
                A("s_or_b32 s41, s41, %s" % t0)
        if NP == 1:
            masks()
            LB("L_poll25")
            ask(0)
            A("s_sub_u32 %s, %s, 1" % (sCNT, sCNT))
            A("s_cbranch_scc1 L_end")
            look(0)
            A("s_cbranch_scc1 L_poll25")
        else:
            pre = o.get("pre25", 1)
            for k in range(NP):
                if k == pre:
                    if o.get("ack25") == 2: A("s_waitcnt vmcnt(%d)" % (2 * pre))
                    for _ in range(o.get("stag25", 0)): A("s_nop 7")
                ask(k)
            masks()
            LB("L_poll25")
            for k in range(NP):
                look(k)
                A("s_cbranch_scc0 L_got25")
                ask(k)
            A("s_sub_u32 %s, %s, 1" % (sCNT, sCNT))
            A("s_cbranch_scc0 L_poll25")
            A("s_endpgm")
            LB("L_got25")
        A("s_mov_b64 exec, -1")
        stamp(9)
        if o.get("ampm"): A("s_memrealtime s[86:87]")
        x_, y_ = "v%d" % P, "v%d" % (P + 1)
        A("v_pk_add_f32 %s, %s, %s" % (P2(P), P2(P), P2(P + 4)))
        A("v_pk_add_f32 %s, %s, %s" % (P2(P + 2), P2(P + 2), P2(P + 6)))
        if o["cq25"]:
            A("s_cmp_eq_u32 s41, %s" % sH)
            A("s_nop 0")
        else:
            A("s_lshr_b32 %s, %s, 2" % (t0, sJ) if o["finhi"] else "s_and_b32 %s, %s, 7" % (t0, sJ))
            A("s_cmp_eq_u32 %s, %s" % (t0, sH))
        A("v_permlane32_swap_b32 v%d, v%d" % (P, P + 2))
        A("v_permlane32_swap_b32 v%d, v%d" % (P + 1, P + 3))
        A("v_pk_add_f32 %s, %s, %s" % (P2(P), P2(P), P2(P + 2)))
        A("v_mov_b32 v%d, %s" % (P + 3, sTAG))
        A("s_mov_b32 s44, 0xff")
        for rot_ in (4, 8):
            A("v_add_f32_dpp %s, %s, %s row_ror:%d %s" % (x_, x_, x_, rot_, DPP))
            A("v_add_f32_dpp %s, %s, %s row_ror:%d %s" % (y_, y_, y_, rot_, DPP))
            if rot_ == 4: A("s_mov_b32 s45, s44")
        A("v_mov_b32 v%d, %s" % (P + 4, x_))
        A("v_mov_b32 v%d, %s" % (P + 5, y_))
        A("s_nop 0")
        A("v_permlane16_swap_b32 v%d, %s" % (P + 4, x_))
        A("v_permlane16_swap_b32 v%d, %s" % (P + 5, y_))
        A("v_pk_add_f32 %s, %s, %s" % (P2(P), P2(P), P2(P + 4)))
        A("s_cbranch_scc1 L_final")
        A("s_mov_b64 exec, s[44:45]")
        A("global_store_dwordx4 %s, v[%d:%d], %s sc1" % (vS3, P, P + 3, sWS))
        A("s_branch L_done")
        LB("L_final")
        if o.get("stfin"): stamp(1)
        if o.get("xstag"): A("global_load_dword %s, %s, %s nt" % (vXP, vXF, sX))
        A("s_mov_b64 exec, s[46:47]")
        NP = o["np3"]
        PS = VR
        X = P + 4
        A("global_load_dwordx4 v[%d:%d], %s, %s sc1" % (PS, PS + 3, vL3, sWS))
        A("s_mov_b64 exec, -1")
        A("s_mov_b32 %s, %d" % (sCNT, o["spinmax"]))
        for q in range(4):
            for r in range(2):
                A("v_mov_b32_dpp v%d, v%d row_newbcast:%d row_mask:0x%x bank_mask:0x%x" % (X + r, P + r, q, (5, 10)[q >> 1], (3, 12)[q & 1]))
        if not o.get("xstag"):
            A("v_lshlrev_b32 v%d, 16, %s" % (P, vXP))
            A("v_and_b32 v%d, %s, %s" % (P + 1, t1, vXP))
            A("v_pk_add_f32 %s, %s, %s" % (P2(X), P2(X), P2(P)))
        A("s_mov_b32 s44, 0x01010101")
        A("s_mov_b32 s45, s44")
        A("s_mov_b64 exec, s[46:47]")
        for k in range(1, NP):
            if o.get("xstag") and k == 1: A("s_waitcnt vmcnt(1)")
            for _ in range(o.get("stag3", 0) + (2 if k > 1 and o.get("stag3") else 0)): A("s_nop 7")
            A("global_load_dwordx4 v[%d:%d], %s, %s sc1" % (PS + 4 * k, PS + 4 * k + 3, vL3, sWS))
        LB("L_poll3")
        for k in range(NP):
            A("s_waitcnt vmcnt(%d)" % (NP - 1))
            A("v_cmp_ne_u32 vcc, %s, v%d" % (sTAG, PS + 4 * k + 3))
            A("v_mov_b32 v%d, v%d" % (X, PS + 4 * k))
            A("v_mov_b32 v%d, v%d" % (X + 1, PS + 4 * k + 1))
            A("s_and_b64 exec, exec, vcc")
            A("s_cbranch_scc0 L_got3")
            A("global_load_dwordx4 v[%d:%d], %s, %s sc1" % (PS + 4 * k, PS + 4 * k + 3, vL3, sWS))
        A("s_sub_u32 %s, %s, 1" % (sCNT, sCNT))
        A("s_cbranch_scc0 L_poll3")
        A("s_endpgm")
        LB("L_got3")
        stamp(10)
        A("s_mov_b64 exec, -1")
        x_, y_ = "v%d" % X, "v%d" % (X + 1)
        fl = ["s_cmp_lg_u32 s2, 0", "s_nop 0"]
        if o.get("xstag"): fl = ["v_lshlrev_b32 %s, 16, %s" % (tA, vXP), "v_and_b32 %s, %s, %s" % (tB, t1, vXP)]
        for pat in ("quad_perm:[1,0,3,2]", "quad_perm:[2,3,0,1]", "row_half_mirror"):
            A("v_add_f32_dpp %s, %s, %s %s %s" % (x_, x_, x_, pat, DPP))
            A("v_add_f32_dpp %s, %s, %s %s %s" % (y_, y_, y_, pat, DPP))
            if fl: A(fl.pop(0))
        if o.get("xstag"):
            A("v_add_f32 %s, %s, %s" % (x_, x_, tA))
            A("v_add_f32 %s, %s, %s" % (y_, y_, tB))
            A("s_cmp_lg_u32 s2, 0")
        A("v_cvt_pk_bf16_f32 %s, %s, %s" % (x_, x_, y_))
        A("s_mov_b64 exec, s[44:45]")
        A("global_store_dword %s, %s, %s %s" % (vXF, x_, sOUT, o.get("ofl", "")))
        A("s_cbranch_scc1 L_done")
        C("the next launch must not mistake this launch's hand-off words for its own")
        if o["efull"]:
            A("s_mov_b64 exec, 0xff")
            A("v_lshlrev_b32 %s, 4, v0" % tA)
            for q in range(4): A("v_mov_b32 v%d, %s" % (P + q, sTAG))
            A("global_store_dwordx4 %s, v[%d:%d], %s %s" % (tA, P, P + 3, sWS, o.get("efl", "")))
        else:
            A("s_mov_b64 exec, 1")
            A("v_mov_b32 %s, 0" % tA)
            A("v_mov_b32 %s, %s" % (tB, sTAG))
            A("global_store_dword %s, %s, %s %s" % (tA, tB, sWS, o.get("efl", "")))
    nkeep = len(L)
    NP = o["np25"]
    PS = T + 16
    if o.get("ack25") == 1: A("s_waitcnt vmcnt(0)")
    sshot(8)
    for _ in range(o.get("dly25", 0)): A("s_nop 7")
    for k in range(NP):
        if k == 1 and o.get("ack25") == 2: A("s_waitcnt vmcnt(1)")
        if k == 1:
            for _ in range(o.get("stag25", 0)): A("s_nop 7")
        A("global_load_dwordx4 v[%d:%d], %s, %s sc1" % (PS + 4 * k, PS + 4 * k + 3, vL25, sWS))
    sshot(4)
    LB("L_poll25")
    for k in range(NP):
        A("s_waitcnt vmcnt(%d)" % (NP - 1))
        for q in range(4):
            A("v_xor_b32 v%d, %s, v%d" % (P + q, TB[q], PS + 4 * k + q))
        A("v_or3_b32 %s, v%d, v%d, v%d" % (tA, P, P + 1, P + 2))
        A("v_or_b32_sdwa %s, %s, v%d dst_sel:DWORD dst_unused:UNUSED_PAD src0_sel:BYTE_0 src1_sel:BYTE_0" % (tA, tA, P + 3))
        A("v_cmp_ne_u32 vcc, 0, %s" % tA)
        if o["mask25"]:
            A("s_and_b64 exec, exec, vcc")
            A("s_cbranch_scc0 L_got25")
        else:
            A("s_cbranch_vccz L_got25")
        A("global_load_dwordx4 v[%d:%d], %s, %s sc1" % (PS + 4 * k, PS + 4 * k + 3, vL25, sWS))
    A("s_sub_u32 %s, %s, 1" % (sCNT, sCNT))
    A("s_cbranch_scc0 L_poll25")
    A("s_endpgm")
    LB("L_got25")
    A("s_mov_b64 exec, -1")
    stamp(9)
    if o.get("ampm"): A("s_memrealtime s[86:87]")
    x_, y_ = "v%d" % P, "v%d" % (P + 1)
    A("v_permlane16_swap_b32 v%d, v%d" % (P, P + 2))
    A("v_permlane16_swap_b32 v%d, v%d" % (P + 1, P + 3))
    A("v_add_f32 %s, %s, v%d" % (x_, x_, P + 2))
    A("v_add_f32 %s, %s, v%d" % (y_, y_, P + 3))
    fl = ["v_mov_b32 v%d, %s" % (P + 3, sTAG), "s_and_b32 %s, %s, 7" % (t0, sJ), "s_cmp_eq_u32 %s, %s" % (t0, sH), "s_nop 0"]
    if o["lastfin"]: fl = ["v_mov_b32 v%d, %s" % (P + 3, sTAG), "s_bitcmp1_b32 %s, 1" % sFAST, "s_nop 0", "s_nop 0"]
    for rot_ in (1, 2, 4, 8):
        A(fl.pop(0))
        A("v_add_f32_dpp %s, %s, %s row_ror:%d %s" % (x_, x_, x_, rot_, DPP))
        A("v_add_f32_dpp %s, %s, %s row_ror:%d %s" % (y_, y_, y_, rot_, DPP))
    def old_final():
        if o.get("ewg"): A("s_xor_b32 s63, s2, %d" % o["ewg"])
        if o.get("otouch"):
            A("global_load_dword v158, %s, %s" % (vXF, sOUT))
        if o.get("xstag"): A("global_load_dword %s, %s, %s %s" % (vXP, vXF, sX, o["xstag"] if isinstance(o["xstag"], str) else "nt"))
        A("s_lshl_b32 %s, 0x10001, %s" % (t0, sH))
        A("s_andn2_b32 exec_lo, 0xff00ff, %s" % t0)
        A("s_mov_b32 exec_hi, 0")
        A("s_mov_b32 %s, %d" % (sCNT, o["spinmax"]))
        NP = o["np3"]
        PS = VR
        if o["lastfin"] == 2 and o.get("sshot", 2):
            A("s_waitcnt lgkmcnt(0)")
            for k in range(1, 8): A("s_xor_b32 s%d, s%d, %s" % (12 + k, 12 + k, sTAG))
            A("s_or_b32 s13, s13, s14")
            A("s_or_b64 s[16:17], s[16:17], s[18:19]")
            A("s_or_b32 s13, s13, s15")
            A("s_or_b32 s16, s16, s17")
            if o["stamps"]: A("s_memrealtime s[68:69]")
            A("s_or_b32 s13, s13, s16")
            if o["stamps"]: A("s_cselect_b32 s66, 1, 2")
            A("s_cbranch_scc1 L_ask3")
            A("global_load_dwordx4 v[%d:%d], %s, %s %s" % (PS, PS + 3, vL3, sWS, o.get("hfl", "")))
            A("s_branch L_poll3")
            LB("L_ask3")
        for k in range(NP):
            if o.get("xstag") and k == 1: A("s_waitcnt vmcnt(1)")
            A("global_load_dwordx4 v[%d:%d], %s, %s sc1" % (PS + 4 * k, PS + 4 * k + 3, vL3, sWS))
        LB("L_poll3")
        for k in range(NP):
            A("s_waitcnt vmcnt(%d)" % (NP - 1))
            A("v_cmp_ne_u32 vcc, %s, v%d" % (sTAG, PS + 4 * k + 3))
            A("v_mov_b32 v%d, v%d" % (P, PS + 4 * k))
            A("v_mov_b32 v%d, v%d" % (P + 1, PS + 4 * k + 1))
            A("s_and_b64 exec, exec, vcc")
            A("s_cbranch_scc0 L_got3")
            A("global_load_dwordx4 v[%d:%d], %s, %s sc1" % (PS + 4 * k, PS + 4 * k + 3, vL3, sWS))
        A("s_sub_u32 %s, %s, 1" % (sCNT, sCNT))
        A("s_cbranch_scc0 L_poll3")
        A("s_endpgm")
        LB("L_got3")
        stamp(10)
        A("s_mov_b32 exec_lo, -1")
        A("v_lshlrev_b32 %s, 16, %s" % (tA, vXP))
        A("v_and_b32 %s, %s, %s" % (tB, t1, vXP))
        for pat in ("quad_perm:[1,0,3,2]", "quad_perm:[2,3,0,1]", "row_half_mirror"):
            A("v_add_f32_dpp %s, %s, %s %s %s" % (x_, x_, x_, pat, DPP))
            A("v_add_f32_dpp %s, %s, %s %s %s" % (y_, y_, y_, pat, DPP))
            if pat != "row_half_mirror": A("s_nop 0")
        A("v_add_f32 %s, %s, %s" % (x_, x_, tA))
        A("v_add_f32 %s, %s, %s" % (y_, y_, tB))
        if o.get("perturb"):
            import struct
            bits = struct.unpack("<I", struct.pack("<f", float(o["perturb"])))[0]
            if o.get("pall"):
                A("v_mul_f32 %s, 0x%x, %s" % (x_, bits, x_)); A("v_mul_f32 %s, 0x%x, %s" % (y_, bits, y_))
            else:
                A("s_or_b32 %s, s2, %s" % (t0, sW))
                A("s_cselect_b32 %s, 0, 0x%x" % (t0, bits))
                A("v_add_f32 %s, %s, %s" % (x_, t0, x_))
        A("v_cvt_pk_bf16_f32 %s, %s, %s" % (x_, x_, y_))
        A("s_mov_b64 exec, 0x10001")
        A("global_store_dword %s, %s, %s %s" % (vXF, x_, sOUT, o.get("ofl", "")))
        A("s_or_b32 %s, %s, %s" % (t0, sJ if o["lastfin"] else "s2" if not o.get("ewg") else "s63", sW))
        A("s_cbranch_scc1 L_done")
        C("the next launch must not mistake this launch's hand-off words for its own")
        A("v_mov_b32 %s, 0" % tA)
        A("v_mov_b32 %s, %s" % (tB, sTAG))
        A("global_store_dword %s, %s, %s %s" % (tA, tB, sWS, o.get("efl", "")))
    def diag_end():
        if o.get("ampm"):
            A("s_or_b32 %s, %s, %s" % (t0, sJ, sW))
            A("s_cbranch_scc1 L_nom")
            A("s_mov_b64 exec, -1")
            A("s_waitcnt lgkmcnt(0)")
            A("s_lshl_b32 %s, %s, 2" % (t0, sH))
            A("v_mov_b32 v2, %s" % t0)
            A("s_or_b32 s86, s86, 1")
            A("v_mov_b32 v3, s86")
            A("global_store_dword v2, v3, s[24:25] offset:192 sc1")
            A("s_cmp_lg_u32 s2, 0")
            A("s_cbranch_scc1 L_nom")
            A("v_and_b32 v2, 7, v0")
            A("v_lshlrev_b32 v2, 2, v2")
            A("s_movk_i32 s85, 1000")
            LB("L_mpoll")
            A("global_load_dword v3, v2, s[24:25] offset:192 sc1")
            A("global_load_dword v4, v2, s[24:25] offset:128 sc1")
            A("s_sub_u32 s85, s85, 1")
            A("s_cbranch_scc1 L_nom")
            A("s_waitcnt vmcnt(0)")
            A("v_cmp_eq_u32 vcc, 0, v3")
            A("s_cbranch_vccnz L_mpoll")
            for g_ in range(8): A("v_readlane_b32 s%d, v3, %d" % (64 + g_, g_))
            for g_ in range(8): A("v_readlane_b32 s%d, v4, %d" % (72 + g_, g_))
            A("s_nop 3")
            for g_ in range(16): A("s_sub_u32 s%d, s%d, s90" % (64 + g_, 64 + g_))
            md = o["ampm"]
            if md >= 10:
                for g_ in range(8): A("s_mov_b32 s%d, s%d" % (64 + g_, 72 + g_))
                md -= 10
            key = {1: 64, 2: 72}.get(md)
            A("s_mov_b32 s80, s64")
            A("s_mov_b32 s81, s%d" % (key or 64))
            A("s_mov_b32 s82, 0x80000000")
            for g_ in range(1, 8):
                if key:
                    A("s_cmp_gt_i32 s%d, s81" % (key + g_))
                    A("s_cselect_b32 s83, s80, s%d" % (64 + g_))
                    A("s_cselect_b32 s80, s%d, s80" % (64 + g_))
                    A("s_cselect_b32 s81, s%d, s81" % (key + g_))
                    A("s_max_i32 s82, s82, s83")
                else:
                    A("s_max_i32 s82, s82, s%d" % (64 + g_))
            A("s_sub_i32 s88, s80, s82")
            A("s_add_i32 s88, s88, 100")
            A("s_max_i32 s88, s88, 0")
            A("s_mul_i32 s88, s88, 20")
            A("s_min_u32 s88, s88, 20000")
            A("s_add_u32 s88, s88, 1500")
            LB("L_mspin")
            A("s_memrealtime s[92:93]")
            A("s_waitcnt lgkmcnt(0)")
            A("s_sub_u32 s92, s92, s90")
            A("s_cmp_lt_u32 s92, s88")
            A("s_cbranch_scc1 L_mspin")
            LB("L_nom")
        if o.get("lateh") is not None:
            A("s_or_b32 %s, s2, %s" % (t0, sW))
            A("s_cbranch_scc1 L_nolate")
            A("s_mov_b64 exec, -1")
            A("v_and_b32 v2, 7, v0")
            A("v_lshlrev_b32 v2, 2, v2")
            A("global_load_dword v3, v2, s[24:25] sc1")
            A("s_waitcnt vmcnt(0)")
            for g_ in range(8): A("v_readlane_b32 s%d, v3, %d" % (64 + g_, g_))
            A("s_nop 3")
            for g_ in range(8): A("s_sub_u32 s%d, s%d, s90" % (64 + g_, 64 + g_))
            A("s_mov_b32 s72, s64")
            for g_ in range(1, 8): A("s_min_i32 s72, s72, s%d" % (64 + g_))
            if o["lateh"] == 8:
                A("s_mov_b32 s88, s64")
                for g_ in range(1, 8): A("s_max_i32 s88, s88, s%d" % (64 + g_))
            else:
                A("s_mov_b32 s88, s%d" % (64 + o["lateh"]))
            A("s_sub_u32 s88, s88, s72")
            A("s_mul_i32 s88, s88, 20")
            A("s_min_u32 s88, s88, 20000")
            A("s_add_u32 s88, s88, 1500")
            A("s_add_u32 s88, s88, s72")
            LB("L_latespin")
            A("s_memrealtime s[92:93]")
            A("s_waitcnt lgkmcnt(0)")
            A("s_sub_u32 s92, s92, s90")
            A("s_cmp_lt_u32 s92, s88")
            A("s_cbranch_scc1 L_latespin")
            LB("L_nolate")
        amp_end("")
        if o.get("pad"):
            LB("L_padspin")
            A("s_memrealtime s[92:93]")
            A("s_waitcnt lgkmcnt(0)")
            A("s_sub_u32 s92, s92, s90")
            A("s_cmp_lt_u32 s92, %d" % o["pad"])
            A("s_cbranch_scc1 L_padspin")
    if o.get("mockx"):
        A("v_lshlrev_b32 %s, 16, %s" % (tA, vXP))
        A("v_and_b32 %s, %s, %s" % (tB, t1, vXP))
        A("v_add_f32 %s, %s, %s" % (x_, x_, tA))
        A("v_add_f32 %s, %s, %s" % (y_, y_, tB))
        A("v_cvt_pk_bf16_f32 %s, %s, %s" % (x_, x_, y_))
        A("s_mov_b64 exec, 0x10001")
        A("s_cbranch_scc0 L_done")
        A("global_store_dword %s, %s, %s" % (vXF, x_, sOUT))
        A("s_or_b32 %s, s2, %s" % (t0, sW))
        A("s_cbranch_scc1 L_done")
        A("v_mov_b32 %s, 0" % tA)
        A("v_mov_b32 %s, %s" % (tB, sTAG))
        A("global_store_dword %s, %s, %s" % (tA, tB, sWS))
        A("s_branch L_done")
    A("s_cbranch_scc1 L_final")
    A("s_mov_b64 exec, 0x%x" % (0x30003 if o["rep3"] or o["vote"] else 0x10001))
    A("global_store_dwordx4 %s, v[%d:%d], %s sc1" % (vS3, P, P + 3, sWS))
    if o.get("wb"):
        A("s_or_b32 %s, %s, %s" % (t0, sW, sJ) if o["wb"] == 1 else "s_and_b32 %s, %s, 3" % (t0, sW))
        A("s_cmp_lg_u32 %s, %d" % (t0, 8 if o["wb"] == 1 else 0))
        A("s_cbranch_scc1 L_done")
        A("buffer_wbl2 sc1")
    A("s_branch L_done")
    LB("L_final")
    if o["lastfin"] == 1:
        A("s_mov_b64 exec, 0x10001")
        A("ds_write_b128 %s, v[%d:%d] offset:%d" % (vL3, P, P + 3, L_FIN))
        A("s_waitcnt lgkmcnt(0)")
    else:
        old_final()
    if o["g25"]:
        del L[nkeep:]
        tail_g25()
    LB("L_done")
    diag_end()
    dump_stamps()
    A("s_endpgm")
    for name, addr, g in tails:
        LB("L_slow_%s" % name)
        A("global_store_dwordx4 %s, v[%d:%d], %s sc1" % (addr, g, g + 3, sWS))
        A("s_branch L_back_%s" % name)
    if o["lastfin"] == 1: unit_final()
    LB("L_end")
    A("s_endpgm")
    head = HEADER.format(lds=o.get("lds", LDS_BYTES), k=KNAME); foot = FOOTER.format(k=KNAME, vg=o.get("vg", 168), sg=96)
    if o["align"]: L = align_runs(L, head, foot, o.get("minrun", 3), o.get("nopmin", 6))
    return head + "\n".join(L) + foot


if __name__ == "__main__":
    kw = {}
    out = "parallel_sum__sliding_block_cached__swiglu_ffn__decode.s"
    for a in sys.argv[1:]:
        k, v = a.split("=", 1)
        if k == "out": out = v; continue
        try: v = int(v) if k != "nlv" else v
        except ValueError: pass
        kw[k] = v
    open(out, "w").write(gen(**kw))
```

```python
import sys

KNAME = "parallel_sum__sliding_block_cached__swiglu_ffn__decode_kernel"

HEADER = """; Kernarg layout for this problem (96 bytes, ptrs only, base s[0:1]):
;   offset  72: d_out     shape=(1, 1, 512) dtype=bfloat16
; @launch grid=(256,1,1) block=(320,1,1) lds={lds}
.amdgcn_target "amdgcn-amd-amdhsa--gfx950"
.text
.globl {k}
.p2align 8
.type {k},@function
{k}:
"""
FOOTER = """
.section .rodata,"a"
.p2align 6
.amdhsa_kernel {k}
  .amdhsa_next_free_vgpr {vg}
  .amdhsa_next_free_sgpr {sg}
  .amdhsa_accum_offset {vg}
  .amdhsa_group_segment_fixed_size 0
  .amdhsa_kernarg_size 96
  .amdhsa_user_sgpr_count 2
  .amdhsa_user_sgpr_kernarg_segment_ptr 1
  .amdhsa_system_sgpr_workgroup_id_x 1
.end_amdhsa_kernel
"""

MB1A = 0x40000
MB1B = 0x80000
MB2 = 0x100000
MB25 = 0x400000
MB3 = 0x1C0000
STAMPS = 0x10000000
L_WQ = 0
L_FF = 16384
L_XN = 32768
L_Q = 33792
L_H = 34816
L_FLAG = 34848
L_VOTE = 34864
L_ML = 34880
L_TKT = 35008
L_FIN = L_XN
L_O = 35072
L_K = L_O + 8192
L_K = (L_K + 1023) // 1024 * 1024
LDS_BYTES = L_K + 32768
TAGC = 0x9E3779B9
LOG2E = 0x3FB8AA3B
SCALE = 0x3DB504F3
EPS = 0x3727C5AC
DPP = "row_mask:0xf bank_mask:0xf"

DEF = dict(stamps=False, spinmax=200000, WK=5, W=6, Wtail=8, b0pos=45, nt="nt", pretouch="k", atries=24,
           prefetch=True, b2=7, ntail0=0, tlag=0, mask2=False, pt1=True, rotm=4, rep3=False, tsp="a", auxearly=True, hlate=False, vote=True, np25=2, np3=6, ack25=2, align=1, unr=2, mask25=True, lperm=0, nlv="43434343", reuse=1, rp=2176, bonly=0, bdefer=4, bskip=1, lastfin=0, npu=1, stag=0, g25=1, gw=0, pt3=1, finhi=1, efull=0, stouch=0, cq2=0, cq25=0, vlate=1, idearly=0, adap="", Wa=6, stl=0)


def _sizes(text):
    import subprocess, tempfile, os, re
    d = tempfile.mkdtemp()
    open(d + "/a.s", "w").write(text)
    subprocess.run(["clang", "-x", "assembler", "-target", "amdgcn-amd-amdhsa", "-mcpu=gfx950", "-c", d + "/a.s", "-o", d + "/a.o"], check=True)
    out = subprocess.run(["llvm-objdump", "-d", "--mcpu=gfx950", d + "/a.o"], capture_output=True, text=True).stdout
    r = []
    for ln in out.split("\n"):
        m = re.search(r"^\s+(\S+).*// ([0-9A-F]{12}): ((?:[0-9A-F]{8} ?)+)", ln)
        if m: r.append((m.group(1), 4 * len(m.group(3).split())))
    return r


def align_runs(L, head, foot, minrun=3, nopmin=6):
    ins = [i for i, l in enumerate(L) if l.startswith("    ") and not l.strip().startswith(";")]
    sz = _sizes(head + "\n".join(L) + foot)
    assert len(sz) == len(ins), (len(sz), len(ins))
    size = {i: s_[1] for i, s_ in zip(ins, sz)}
    mn = {i: s_[0] for i, s_ in zip(ins, sz)}
    out = list(L); extra = {}
    off = 0; k = 0
    while k < len(ins):
        i = ins[k]
        if size[i] == 8 and off % 8 == 4:
            run = 0
            while k + run < len(ins) and size[ins[k + run]] == 8: run += 1
            if run >= minrun:
                b = k - 1; done = False
                while b >= 0 and size[ins[b]] == 4:
                    j = ins[b]
                    if mn[j] == "s_nop" and int(out[j].split()[1]) >= 1:
                        out[j] = "    s_nop 0\n    s_nop %d" % (int(out[j].split()[1]) - 1)
                        size[j] = 8; off += 4; done = True
                        break
                    if mn[j].endswith("_e32") and not mn[j].startswith(("v_readfirstlane", "v_permlane")):
                        op = out[j].split()[0]
                        out[j] = out[j].replace(op, op.replace("_e32", "") + "_e64", 1)
                        size[j] = 8; off += 4; done = True
                        break
                    b -= 1
                if not done and run >= nopmin and k > 0 and not mn[ins[k - 1]].startswith(("s_branch", "s_endpgm")):
                    extra[i] = True; off += 4; done = True
                if not done and k > 0 and mn[ins[k - 1]].startswith(("s_branch", "s_endpgm")):
                    extra[ins[k - 1] + 1] = True; off += 4
            for q in range(run): off += 8
            k += run
            continue
        off += size[i]; k += 1
    res = []
    for i, l in enumerate(out):
        if i in extra: res.append("    s_nop 0")
        res.append(l)
    return res


def gen(**kw):
    o = dict(DEF); o.update(kw)
    MB3 = o.get("mb3", globals()["MB3"])
    L = []
    def A(s): L.append("    " + s)
    def LB(s): L.append(s + ":")
    def C(s): L.append("    ; " + s)
    nt = o["nt"]
    NSTAMP = 12
    role = ["U"]
    def stamp(i):
        if o.get("amp") == "%s%d" % (role[0], i): A("s_memrealtime s[88:89]" if not o.get("cyc") else "s_memtime s[88:89]")
        if o.get("ampg") == "%s%d" % (role[0], i): A("s_memrealtime s[86:87]")
        if o.get("amp0") == "%s%d" % (role[0], i): A("s_memrealtime s[86:87]" if not o.get("cyc") else "s_memtime s[86:87]")
        if o["stamps"] and (i in (0, 11) or o.get("sel") is None or ("%s%d" % (role[0], i)) in o["sel"].split(",")):
            A("s_memrealtime s[%d:%d]" % (64 + 2 * i, 65 + 2 * i))
    def mfma(d, a, b, c):
        A("v_mfma_f32_16x16x32_bf16 v[%d:%d], v[%d:%d], v[%d:%d], %s" % (d, d + 3, a, a + 3, b, b + 3, "0" if c is None else "v[%d:%d]" % (c, c + 3)))
    def mfma16(d, a, b, c):
        A("v_mfma_f32_16x16x16_bf16 v[%d:%d], v[%d:%d], v[%d:%d], %s" % (d, d + 3, a, a + 1, b, b + 1, "0" if c is None else "v[%d:%d]" % (c, c + 3)))
    def allred(v, tmp, op, which):
        A("v_mov_b32 %s, %s" % (tmp, v))
        A("s_nop 1")
        A("v_permlane%d_swap_b32 %s, %s" % (which, tmp, v))
        A("%s %s, %s, %s" % (op, v, v, tmp))
    sX, sK, sV, sWQ, sWO, sG, sU, sDN, sOUT, sWS = "s[4:5]", "s[6:7]", "s[8:9]", "s[10:11]", "s[12:13]", "s[16:17]", "s[18:19]", "s[20:21]", "s[22:23]", "s[26:27]"
    sW, sH, sJ, sTAG, sXCC, sCNT, sFAST = "s30", "s31", "s32", "s33", "s34", "s35", "s36"
    t0, t1, t2, t3 = "s37", "s38", "s39", "s40"
    def dump_stamps():
        if not o["stamps"]: return
        if role[0] == "U" and o.get("sel") is not None and "U" not in o["sel"]: return
        A("s_mov_b64 exec, 1")
        if o.get("endwait"): A("s_waitcnt vmcnt(0)")
        stamp(11)
        A("s_waitcnt lgkmcnt(0)")
        A("s_mul_i32 %s, s2, 5" % t0)
        A("s_add_u32 %s, %s, %s" % (t0, t0, sW))
        A("s_lshl_b32 %s, %s, 7" % (t0, t0))
        A("s_add_u32 %s, %s, 0x%x" % (t0, t0, STAMPS))
        A("v_mov_b32 v2, %s" % t0)
        for i in range(NSTAMP):
            A("v_mov_b32 v3, s%d" % (64 + 2 * i))
            A("global_store_dword v2, v3, %s offset:%d" % (sWS, 4 * i))
        A("v_mov_b32 v3, %s" % ("s63" if role[0] == "U" and o["vote"] else sCNT))
        A("global_store_dword v2, v3, %s offset:%d" % (sWS, 4 * NSTAMP))
        if o.get("dbgfail"):
            for q_, r_ in enumerate(("s84", "s62", "s63")):
                A("v_mov_b32 v3, %s" % r_)
                A("global_store_dword v2, v3, %s offset:%d" % (sWS, 4 * NSTAMP + 8 + 4 * q_))
        A("s_getreg_b32 %s, hwreg(HW_REG_HW_ID)" % t1)
        A("v_mov_b32 v3, %s" % t1)
        A("global_store_dword v2, v3, %s offset:%d" % (sWS, 4 * NSTAMP + 4))

    def amp_end(sfx):
        if o.get("ampg"):
            A("s_waitcnt vmcnt(0) lgkmcnt(0)")
            A("s_memrealtime s[88:89]")
            A("s_mov_b64 exec, -1")
            A("v_and_b32 v2, 7, v0")
            A("v_lshlrev_b32 v2, 2, v2")
            A("global_load_dword v3, v2, s[24:25] offset:128 sc1")
            A("s_waitcnt vmcnt(0) lgkmcnt(0)")
            for g_ in range(8): A("v_readlane_b32 s%d, v3, %d" % (64 + g_, g_))
            A("s_nop 3")
            if o["ampg"] != 1:
                for g_ in range(8): A("s_sub_u32 s%d, s86, s%d" % (64 + g_, 64 + g_))
                for g_ in range(1, 8): A("s_max_i32 s64, s64, s%d" % (64 + g_))
                A("s_sub_u32 s88, s86, s64")
                A("s_mul_i32 s64, s64, 10")
            else:
                for g_ in range(8): A("s_sub_u32 s%d, s88, s%d" % (64 + g_, 64 + g_))
                for g_ in range(1, 8): A("s_max_i32 s64, s64, s%d" % (64 + g_))
                A("s_mul_i32 s64, s64, 9")
            A("s_min_u32 s64, s64, 20000")
            A("s_add_u32 s64, s64, 1500")
            LB("L_ampgspin" + sfx)
            A("s_memrealtime s[92:93]")
            A("s_waitcnt lgkmcnt(0)")
            A("s_sub_u32 s92, s92, s88")
            A("s_cmp_lt_u32 s92, s64")
            A("s_cbranch_scc1 L_ampgspin" + sfx)
        if o.get("amp"):
            if o["amp"] == "end": A("s_memrealtime s[88:89]")
            A("s_waitcnt lgkmcnt(0)")
            A("s_sub_u32 s88, s88, %s" % ("s86" if o.get("amp0") else "s90"))
            A("s_mul_i32 s88, s88, %d" % o.get("ampk", 10))
            A("s_min_u32 s88, s88, 20000")
            A("s_add_u32 s88, s88, 1500")
            LB("L_ampspin" + sfx)
            A("s_memrealtime s[92:93]")
            A("s_waitcnt lgkmcnt(0)")
            A("s_sub_u32 s92, s92, s90")
            A("s_cmp_lt_u32 s92, s88")
            A("s_cbranch_scc1 L_ampspin" + sfx)
    nlv = [int(c) for c in str(o["nlv"])]
    assert len(nlv) == 8 and sum(nlv) == 28 and min(nlv) >= 0 and max(nlv) <= 4
    LUT_d = sum((4 - n) << (4 * i) for i, n in enumerate(nlv))
    LUT_D = sum((4 * i - sum(nlv[:i])) << (4 * i) for i in range(8))
    def ffn_share(l0, d):
        A("s_lshl_b32 %s, %s, 2" % (l0, sH))
        A("s_lshr_b32 %s, 0x%x, %s" % (d, LUT_D, l0))
        A("s_and_b32 %s, %s, 7" % (d, d))
        A("s_sub_u32 s3, %s, %s" % (l0, d))
        A("s_lshr_b32 %s, 0x%x, %s" % (d, LUT_d, l0))
        A("s_and_b32 %s, %s, 7" % (d, d))
    stamp(0)
    if o.get("pad") or o.get("bal") or o.get("amp") or o.get("ampg") or o.get("ampm") or o.get("ampf") or o.get("lateh") is not None: A("s_memrealtime s[90:91]")
    A("s_cmp_ge_u32 s2, 256")
    A("s_cbranch_scc1 L_end")
    A("s_load_dwordx16 s[4:19], s[0:1], 0")
    A("s_load_dwordx8 s[20:27], s[0:1], 64")
    A("v_lshrrev_b32 v1, 6, v0")
    A("v_and_b32 v0, 63, v0")
    A("v_readfirstlane_b32 %s, v1" % sW)
    A("s_and_b32 %s, s2, 7" % sH)
    A("s_lshr_b32 %s, s2, 3" % sJ)
    if o.get("bal") or o.get("lateh") is not None or o.get("ampg") or o.get("ampm"):
        A("s_or_b32 %s, %s, %s" % (t0, sJ, sW))
        A("s_cbranch_scc1 L_noflag")
        A("s_lshl_b32 %s, %s, 2" % (t0, sH))
        A("v_mov_b32 v108, %s" % t0)
        A("s_waitcnt lgkmcnt(0)")
        A("s_or_b32 %s, s90, 1" % t0)
        A("v_mov_b32 v109, %s" % t0)
        A("global_store_dword v108, v109, s[24:25] offset:%d sc1" % (128 if o.get("ampg") or o.get("ampm") else 0))
        LB("L_noflag")
    A("s_cmp_eq_u32 %s, 4" % sW)
    A("s_cbranch_scc0 %s" % ("L_race" if o["vote"] else "L_attn"))

    C("wave 4: layernorm, one [128 x 64] tile of wq and one of gate/up, exchange of q and of the FFN hidden values")
    A("s_setprio 3")
    if o["idearly"] == 1:
        A("v_mov_b32 v2, 0")
        A("v_and_b32 v3, 12, v0")
        A("ds_write_b32 v3, v2 offset:%d" % L_VOTE)
    if o["prefetch"]:
        A("s_getpc_b64 s[28:29]")
        LB("L_pc")
        A("v_lshlrev_b32 v2, 7, v0")
        A("v_min_u32 v2, L_end-L_pc, v2")
        A("global_load_dword v127, v2, s[28:29]")
    sQK, sNOFF = "s50", "s51"
    A("v_lshlrev_b32 v3, 4, v0")
    A("v_lshrrev_b32 v6, 3, v0")
    A("v_and_b32 v5, 2, v6")
    A("v_and_b32 v7, 7, v0")
    A("v_xor_b32 v5, v5, v7")
    A("v_lshlrev_b32 v7, 4, v5")
    A("s_and_b32 %s, %s, 3" % (sQK, sJ))
    A("s_lshl_b32 %s, %s, 10" % (t0, sH))
    if o["lperm"]:
        A("s_andn2_b32 %s, %s, 3" % (t1, sJ))
        A("s_lshr_b32 %s, 0x%x, %s" % (t1, o["lperm"], t1))
        A("s_and_b32 s55, %s, 7" % t1)
    else:
        A("s_lshr_b32 s55, %s, 2" % sJ)
    A("s_lshl_b32 %s, s55, 7" % t1)
    A("s_lshl_b32 %s, %s, 20" % (t2, sQK))
    A("s_add_u32 %s, %s, %s" % (t0, t0, t1))
    A("s_add_u32 %s, %s, %s" % (t0, t0, t2))
    A("v_lshl_add_u32 v4, v6, 13, v7")
    A("v_add_u32 v4, %s, v4" % t0)
    A("v_xor_b32 v5, 64, v4")
    A("v_add_u32 v5, 0x10000, v5")
    A("s_mov_b32 m0, %d" % L_WQ)
    A("s_mov_b32 %s, 0x20000" % t1)
    if o.get("ucontig"):
        A("s_lshl_b32 %s, s2, 10" % t0)
        A("v_add_u32 v4, %s, v3" % t0)
        A("v_add_u32 v5, 0x40000, v4")
        A("s_mov_b32 %s, 0x80000" % t1)
    A("s_movk_i32 s41, 1024")
    A("s_waitcnt lgkmcnt(0)")
    A("global_load_dwordx4 v[8:11], v3, %s" % sX)
    A("s_load_dword %s, %s, 0" % (sTAG, sWS))
    def dma_loop(name, base, step):
        A("s_mov_b32 %s, %d" % (t2, 16 // o["unr"]))
        LB(name)
        for i in range(o["unr"]):
            vv = ("v4", "v5")[i & 1]
            A("global_load_lds_dwordx4 %s, %s %s" % (vv, base, nt))
            A("s_add_u32 m0, m0, s41")
            A("v_add_u32 %s, %s, %s" % (vv, step, vv))
        A("s_sub_u32 %s, %s, 1" % (t2, t2))
        A("s_cmp_lg_u32 %s, 0" % t2)
        A("s_cbranch_scc1 %s" % name)
    dma_loop("L_wq_loop", sWQ, t1)
    if o["b0pos"] == 16: A("s_barrier")
    ffn_share(t0, t3)
    A("s_lshr_b32 %s, %s, 3" % (t1, sJ))
    A("s_add_u32 %s, s3, %s" % (t0, t1))
    A("s_add_u32 %s, %s, %s" % (sNOFF, t1, t3))
    A("s_mul_i32 %s, %s, 3584" % (t1, sQK))
    A("s_add_u32 %s, %s, %s" % (t0, t0, t1))
    A("s_lshl_b32 %s, %s, 7" % (t0, t0))
    A("v_mul_u32_u24 v4, 3584, v6")
    A("v_add3_u32 v4, v4, v7, %s" % t0)
    A("v_xor_b32 v5, 64, v4")
    A("v_add_u32 v5, %d, v5" % (8 * 3584))
    A("s_mov_b32 %s, %d" % (t1, 16 * 3584))
    if o.get("ucontig"):
        A("s_lshr_b32 %s, s2, 1" % t0)
        A("s_min_u32 %s, %s, 111" % (t0, t0))
        A("s_lshl_b32 %s, %s, 10" % (t0, t0))
        A("v_add_u32 v4, %s, v3" % t0)
        A("v_add_u32 v5, %d, v4" % (112 * 1024))
        A("s_mov_b32 %s, %d" % (t1, 224 * 1024))
    A("s_bitcmp0_b32 %s, %d" % (("s2", 0) if o.get("ucontig") else (sJ, 2)))
    A("s_cselect_b64 s[42:43], %s, %s" % (sG, sU))
    A("s_cmp_ge_u32 %s, 4" % sNOFF)
    A("s_cselect_b64 exec, 1, -1")
    dma_loop("L_ff_loop", "s[42:43]", t1)
    A("s_mov_b64 exec, -1")
    if o["vote"]:
        A("s_branch L_unit2")
        LB("L_race")
        C("which of the two copies of the last hand-off lives nearer to this die: race two cold scalar loads of this wave's own lines")
        A("s_lshl_b32 %s, s2, 2" % t0)
        A("s_add_u32 %s, %s, %s" % (t0, t0, sW))
        A("s_lshr_b32 %s, %s, 6" % (t1, t0))
        A("s_lshl_b32 %s, %s, 14" % (t1, t1))
        A("s_and_b32 %s, %s, 63" % (t0, t0))
        A("s_lshl_b32 %s, %s, 7" % (t0, t0))
        A("s_add_u32 %s, %s, %s" % (t0, t0, t1))
        if MB3 == 0x200000: A("s_bitset1_b32 %s, 21" % t0)
        else: A("s_or_b32 %s, %s, 0x%x" % (t0, t0, MB3))
        A("s_lshl_b32 %s, %s, 13" % (t1, sW))
        A("s_and_b32 %s, %s, 0x2000" % (t1, t1))
        A("s_or_b32 s46, %s, %s" % (t0, t1))
        A("s_xor_b32 s47, s46, 0x2000")
        A("s_movk_i32 s28, 0x5bd1")
        A("s_movk_i32 s29, 0x5bd1")
        A("s_waitcnt lgkmcnt(0)")
        A("s_load_dword s28, %s, s46" % sWS)
        A("s_load_dword s29, %s, s47" % sWS)
        A("s_waitcnt lgkmcnt(1)")
        A("s_mov_b64 s[48:49], s[28:29]")
        LB("L_race_done")
        A("s_cmpk_lg_i32 s48, 0x5bd1")
        A("s_cselect_b32 %s, 1, 0" % t0)
        A("s_cmpk_lg_i32 s49, 0x5bd1")
        A("s_cselect_b32 %s, 1, 0" % t2)
        A("s_sub_i32 %s, %s, %s" % (t0, t0, t2))
        A("s_sub_i32 %s, 0, %s" % (t2, t0))
        A("s_cmp_eq_u32 %s, 0" % t1)
        A("s_cselect_b32 %s, %s, %s" % (t0, t0, t2))
        A("s_lshl_b32 %s, %s, 2" % (t2, sW))
        A("v_mov_b32 v158, %s" % t2)
        A("v_mov_b32 v159, %s" % t0)
        A("ds_write_b32 v158, v159 offset:%d" % L_VOTE)
        A("s_branch L_attn")
        LB("L_unit2")
    if o["pt1"]:
        C("pull this workgroup's own hand-off lines into L2 before anyone polls them")
        A("s_lshl_b32 %s, %s, 15" % (t0, sH))
        A("s_lshl_b32 %s, %s, 8" % (t1, sJ))
        A("s_add_u32 %s, %s, %s" % (t0, t0, t1))
        A("s_add_u32 %s, %s, 0x%x" % (t0, t0, MB1A))
        A("v_and_b32 v33, 1, v0")
        A("v_bfe_u32 v32, v0, 1, 1")
        A("v_lshlrev_b32 v33, 7, v33")
        A("v_lshl_add_u32 v33, v32, 13, v33")
        A("s_mul_i32 %s, %s, 240" % (t1, sJ))
        A("s_sub_u32 %s, 0x4000, %s" % (t1, t1))
        A("v_cmp_lt_u32 vcc, 3, v0")
        A("v_mov_b32 v32, %s" % t1)
        A("s_nop 0")
        A("v_cndmask_b32 v33, v33, v32, vcc")
        A("v_add_u32 v33, %s, v33" % t0)
        A("global_load_dword v119, v33, %s sc1" % sWS)
    def tlbwarm():
        C("first touch of the pages the later loads use (address translation early, off their queue)")
        A("s_lshl_b32 %s, %s, 24" % (t0, sH))
        A("s_add_u32 %s, %s, 0xF00000" % (t0, t0))
        A("v_mov_b32 v112, %s" % t0)
        A("s_lshl_b32 %s, %s, 19" % (t0, sH))
        A("v_mov_b32 v113, %s" % t0)
        A("s_mul_i32 %s, %s, 0x38000" % (t0, sH))
        A("v_mov_b32 v114, %s" % t0)
        A("v_mov_b32 v115, 0x%x" % MB3)
        A("s_mov_b64 exec, 1")
        A("global_load_dword v116, v112, %s" % sK)
        A("global_load_dword v117, v112, %s" % sV)
        A("global_load_dword v118, v113, %s" % sWO)
        A("global_load_dword v111, v114, %s" % sDN)
        A("global_load_dword v110, v115, %s" % sWS)
        A("s_mov_b64 exec, -1")
    NW = 1 if o["pt1"] else 0
    if o.get("tlbw") == 2:
        tlbwarm(); NW += 5
    if o["b0pos"] == 32:
        if o.get("b0wait") is not None: A("s_waitcnt vmcnt(%d)" % o["b0wait"])
        A("s_barrier")
    stamp(1)
    XF = 12
    A("s_mov_b32 %s, 0xffff0000" % t1)
    A("s_waitcnt vmcnt(%d)" % (32 + NW))
    stamp(2)
    C("layernorm with the reference's bf16 roundings")
    for i in range(4):
        A("v_lshlrev_b32 v%d, 16, v%d" % (XF + 2 * i, 8 + i))
        A("v_and_b32 v%d, %s, v%d" % (XF + 2 * i + 1, t1, 8 + i))
    fill = []
    def F(s): fill.append(s)
    def nop2():
        n = 0
        while fill and n < 2:
            A(fill.pop(0)); n += 1
        if n < 2: A("s_nop %d" % (1 - n))
    TRB = 120
    vAX, vS1, vL1, vL1x, vL1a, vF, vTN, vTB = "v34", "v35", "v36", "v37", "v38", "v39", "v124", "v125"
    sRP, sB1 = "s52", "s53"
    F("v_lshrrev_b32 v126, 4, v0")
    F("v_bfe_u32 v4, v0, 2, 2")
    F("v_lshl_add_u32 v5, v126, 3, v4")
    F("v_and_b32 v6, 3, v0")
    F("v_lshlrev_b32 v7, 3, v6")
    F("v_lshl_add_u32 v5, v5, 7, v7")
    F("v_bfe_u32 v4, v0, 3, 2")
    for ct in range(4):
        F("v_xor_b32 v7, %d, v4" % ct)
        F("v_lshl_add_u32 v%d, v7, 5, v5" % (TRB + ct))
    F("s_lshl_b32 %s, %s, 8" % (t0, sQK))
    F("v_lshl_add_u32 %s, v126, 4, %s" % (vAX, t0))
    F("s_lshl_b32 %s, %s, 15" % (sB1, sH))
    F("s_add_u32 %s, %s, 0x%x" % (sB1, sB1, MB1A))
    def wavesum(v, tmp):
        for rot in (1, 2, 4, 8):
            nop2()
            A("v_add_f32_dpp %s, %s, %s row_ror:%d %s" % (v, v, v, rot, DPP))
        for which in (16, 32):
            A("v_mov_b32 %s, %s" % (tmp, v))
            nop2()
            A("v_permlane%d_swap_b32 %s, %s" % (which, tmp, v))
            A("v_add_f32 %s, %s, %s" % (v, v, tmp))
    def P2(r): return "v[%d:%d]" % (r, r + 1)
    A("v_pk_add_f32 v[22:23], %s, %s" % (P2(XF), P2(XF + 2)))
    A("v_pk_add_f32 v[24:25], %s, %s" % (P2(XF + 4), P2(XF + 6)))
    A("v_pk_add_f32 v[22:23], v[22:23], v[24:25]")
    A("v_add_f32 v22, v22, v23")
    wavesum("v22", "v23")
    A("v_mul_f32 v22, 0x3b000000, v22")
    DV = 24
    for i in range(4):
        A("v_pk_add_f32 %s, %s, v[22:23] op_sel_hi:[1,0] neg_lo:[0,1] neg_hi:[0,1]" % (P2(DV + 2 * i), P2(XF + 2 * i)))
    A("v_cvt_pk_bf16_f32 v22, 0, v22")
    A("v_pk_mul_f32 v[32:33], %s, %s" % (P2(DV), P2(DV)))
    for i in range(1, 4):
        A("v_pk_fma_f32 v[32:33], %s, %s, v[32:33]" % (P2(DV + 2 * i), P2(DV + 2 * i)))
    A("v_add_f32 v32, v32, v33")
    pre = ["v_pk_add_f32 %s, %s, v[22:23] op_sel_hi:[1,0] neg_lo:[0,1] neg_hi:[0,1]" % (P2(XF + 2 * i), P2(XF + 2 * i)) for i in range(4)]
    pre += ["v_cvt_pk_bf16_f32 v%d, 0, v%d" % (XF + i, XF + i) for i in range(8)]
    rest = fill[:]; fill[:] = pre
    wavesum("v32", "v33")
    fill[:] = fill + rest
    A("v_mul_f32 v32, 0x3b000000, v32")
    A("v_cvt_pk_bf16_f32 v32, 0, v32")
    A("v_add_f32 v32, 0x%x, v32" % EPS)
    A("v_cvt_pk_bf16_f32 v32, 0, v32")
    A("v_sqrt_f32 v32, v32")
    A(fill.pop(0))
    A("v_cvt_pk_bf16_f32 v32, 0, v32")
    A("v_rcp_f32 v32, v32")
    A(fill.pop(0))
    for i in range(4):
        A("v_pk_mul_f32 %s, %s, v[32:33] op_sel_hi:[1,0]" % (P2(XF + 2 * i), P2(XF + 2 * i)))
    for i in range(4):
        A("v_cvt_pk_bf16_f32 v%d, v%d, v%d" % (8 + i, XF + 2 * i, XF + 2 * i + 1))
    A("ds_write_b128 v3, v[8:11] offset:%d" % L_XN)
    while fill: A(fill.pop(0))
    A("s_lshl_b32 %s, s55, 2" % t2)
    A("s_add_u32 s55, %s, %s" % (t2, sQK))
    A("s_lshl_b32 %s, s55, 8" % t2)
    A("s_add_u32 %s, %s, %s" % (t2, t2, sB1))
    A("v_lshrrev_b32 v4, 2, v0")
    A("v_lshl_add_u32 %s, v4, 4, %s" % (vS1, t2))
    A("s_waitcnt lgkmcnt(0)")
    AF = 40
    for m in range(4):
        A("ds_read_b128 v[%d:%d], %s offset:%d" % (AF + 4 * m, AF + 4 * m + 3, vAX, L_XN + m * 64))
    A("s_add_u32 %s, %s, 0x%x" % (sTAG, sTAG, TAGC))
    A("v_lshlrev_b32 v4, 2, v6")
    A("v_lshrrev_b32 %s, v4, %s" % (vTN, sTAG))
    A("v_and_b32 %s, 15, %s" % (vTN, vTN))
    A("v_lshlrev_b32 v4, 3, v6")
    A("v_lshrrev_b32 %s, v4, %s" % (vTB, sTAG))
    A("v_and_b32 %s, 0xff, %s" % (vTB, vTB))
    A("s_mov_b32 s44, 0")
    A("s_mov_b32 s45, -1")
    XG = 28
    def die_id():
        if o["vote"]:
            assert o["b0pos"] <= 47 and not o["hlate"]
            A("v_mov_b32 v4, 0")
            A("ds_read_b128 v[112:115], v4 offset:%d" % L_VOTE)
        if o["lastfin"]:
            assert o["vote"]
            A("ds_read_b32 v116, v4 offset:%d" % L_TKT)
        A("s_getreg_b32 %s, hwreg(HW_REG_XCC_ID, 0, 4)" % sXCC)
        A("s_and_b32 %s, %s, 0xff" % (t0, sTAG))
        A("s_lshl_b32 %s, %s, 8" % (t2, sXCC))
        A("s_or_b32 s54, %s, %s" % (t0, t2))
        A("v_mov_b32 v%d, s54" % XG)
        for k in range(1, 4):
            A("s_bfe_u32 %s, %s, 0x%x" % (t0, sTAG, 0x80000 | (8 * k)))
            A("v_mov_b32 v%d, %s" % (XG + k, t0))
        if o["vote"]:
            A("s_waitcnt lgkmcnt(0)")
            A("v_add3_u32 v112, v112, v113, v114")
            A("v_add_u32 v112, v112, v115")
            A("v_lshl_add_u32 v%d, v112, 8, v%d" % (XG + 1, XG + 1))
        if o["lastfin"]:
            A("v_lshl_add_u32 v%d, v116, 8, v%d" % (XG + 2, XG + 2))
        A("s_lshl_b32 %s, %s, 4" % (t2, sJ))
        A("s_add_u32 %s, %s, %s" % (t2, t2, sB1))
        A("s_add_u32 %s, %s, 0x4000" % (t2, t2))
        A("v_mov_b32 v22, %s" % t2)
        A("v_add_u32 v109, 0x%x, v22" % (MB1B - MB1A))
        A("s_mov_b64 exec, 1")
        if o["bonly"]:
            A("global_store_dwordx4 v22, v[%d:%d], %s sc1" % (XG, XG + 3, sWS))
        else:
            A("global_store_dwordx4 v22, v[%d:%d], %s" % (XG, XG + 3, sWS))
            if not o["bdefer"]: A("global_store_dwordx4 v109, v[%d:%d], %s sc1" % (XG, XG + 3, sWS))
        A("s_mov_b64 exec, -1")
    if o["idearly"]: die_id()
    if o["b0pos"] == 40: A("s_barrier")
    stamp(3)
    BF = 56
    D0 = 88
    GR = 24
    def gemv(lbase, vm0):
        def rd(m, ct):
            b = BF + 16 * (m & 1)
            for hh in range(2):
                A("ds_read_b64_tr_b16 v[%d:%d], v%d offset:%d" % (b + 4 * ct + 2 * hh, b + 4 * ct + 2 * hh + 1, TRB + ct, lbase + m * 4096 + hh * 512))
        A("s_waitcnt vmcnt(%d)" % (vm0 + 12))
        for ct in range(4): rd(0, ct)
        for m in range(4):
            b = BF + 16 * (m & 1)
            if m < 3: A("s_waitcnt vmcnt(%d)" % (vm0 + 8 - 4 * m))
            if lbase == L_WQ and o["b0pos"] == 41 + m: A("s_barrier")
            for ct in range(4):
                A("s_waitcnt lgkmcnt(%d)" % (6 if m < 3 else 6 - 2 * ct))
                mfma(D0 + 4 * ct, AF + 4 * m, b + 4 * ct, None if m == 0 else D0 + 4 * ct)
                if m < 3: rd(m + 1, ct)
    def pack(maskc, vt, GR, vS1):
        A("s_mov_b32 vcc_lo, 0xffff0000")
        A("s_mov_b32 vcc_hi, 0xffff0000")
        A("s_movk_i32 %s, 0x%x" % (t0, maskc))
        A("s_nop 2")
        A("v_cndmask_b32 v%d, v%d, v%d, vcc" % (GR, D0, D0 + 4))
        A("s_nop 0")
        A("v_cndmask_b32 v%d, v%d, v%d, vcc" % (GR + 1, D0 + 8, D0 + 12))
        A("v_cndmask_b32 v%d, v%d, v%d, s[44:45]" % (GR, GR, GR + 1))
        A("v_and_or_b32 v%d, v%d, %s, %s" % (GR, GR, t0, vt))
        if o["bdefer"]:
            A("s_nop 1")
        else:
            A("v_add_u32 v22, 0x%x, %s" % (MB1B - MB1A, vS1))
            A("s_nop 0")
        for k in range(1, 4):
            A("v_mov_b32_dpp v%d, v%d quad_perm:[%d,%d,%d,%d] %s" % (GR + k, GR, k, k, k, k, DPP))
        A("s_mov_b32 exec_lo, 0x11111111")
        A("s_mov_b32 exec_hi, 0x11111111")
        if o["bonly"]:
            A("global_store_dwordx4 %s, v[%d:%d], %s sc1" % (vS1, GR, GR + 3, sWS))
        else:
            A("global_store_dwordx4 %s, v[%d:%d], %s" % (vS1, GR, GR + 3, sWS))
            if not o["bdefer"]: A("global_store_dwordx4 v22, v[%d:%d], %s sc1" % (GR, GR + 3, sWS))
        A("s_mov_b64 exec, -1")
    gemv(L_WQ, 16 + NW + (1 if o["idearly"] else 0))
    if o["b0pos"] == 45: A("s_barrier")
    pack(0xfff0, vTN, GR, vS1)
    if o["b0pos"] == 47: A("s_barrier")
    stamp(4)
    if not o["idearly"]: die_id()
    if o["b0pos"] == 50: A("s_barrier")
    A("s_sub_i32 %s, %s, s55" % (t2, sJ))
    A("s_lshl_b32 %s, %s, 8" % (t2, t2))
    A("s_add_u32 %s, %s, 0x2000" % (t2, t2))
    A("v_add_u32 v108, %s, %s" % (t2, vS1))
    A("s_cmp_ge_u32 %s, 4" % sNOFF)
    A("s_cbranch_scc1 L_noff2")
    gemv(L_FF, (2 if o['bonly'] or o['bdefer'] else 4) + NW)
    pack(0xff00, vTB, 104, "v108")
    LB("L_noff2")
    stamp(7)
    if o.get("nosync"):
        A("s_barrier")
        A("s_mov_b32 %s, 0" % sCNT)
        dump_stamps()
        A("s_endpgm")
    A("v_and_b32 v4, 15, v0")
    A("v_lshlrev_b32 v4, 4, v4")
    A("v_lshl_add_u32 v4, v126, 10, v4")
    A("s_add_u32 %s, %s, 2432" % (t0, sB1))
    A("v_add_u32 %s, %s, v4" % (vL1, t0))
    A("v_and_b32 v4, 31, v0")
    A("s_add_u32 %s, %s, 0x4000" % (t0, sB1))
    A("v_lshl_add_u32 %s, v4, 4, %s" % (vL1x, t0))
    A("s_lshl_b32 %s, %s, 1" % (t2, t3))
    A("s_sub_u32 %s, 8, %s" % (sRP, t2))
    A("s_mul_i32 %s, %s, %s" % (t2, sRP, sJ))
    A("s_sub_u32 %s, %s, 1" % (t0, sRP))
    A("v_and_b32 v4, 7, v0")
    A("v_min_u32 v4, %s, v4" % t0)
    A("v_add_u32 %s, %s, v4" % (vF, t2))
    A("v_lshrrev_b32 v4, 6, %s" % vF)
    A("v_bfe_u32 v5, v0, 3, 1")
    A("v_lshl_add_u32 v4, v4, 1, v5")
    A("v_lshl_add_u32 v4, v4, 2, v126")
    A("v_bfe_u32 v5, %s, 2, 4" % vF)
    A("v_lshlrev_b32 v5, 4, v5")
    A("v_lshl_add_u32 v4, v4, 8, v5")
    A("s_add_u32 %s, %s, 0x2000" % (t0, sB1))
    A("v_add_u32 %s, %s, v4" % (vL1a, t0))
    if min(nlv) == 0:
        A("s_cmp_lg_u32 %s, 0" % sRP)
        A("s_cbranch_scc1 L_has_ffn")
        A("v_mov_b32 %s, %s" % (vL1a, vL1x))
        LB("L_has_ffn")
    for k in range(4):
        A("s_bfe_u32 s%d, %s, 0x%x" % (56 + k, sTAG, 0x40000 | (4 * k)))
    A("s_movk_i32 s62, 255")
    A("s_mov_b32 s60, 0x0c0c0400")
    A("s_mov_b32 s61, 0x04000c0c")
    P = 40
    PX, PA_ = 72, 76
    A("s_mov_b32 %s, 0" % sCNT)
    def switch_copy(regs):
        A("s_add_u32 %s, %s, 1" % (sCNT, sCNT))
        if not o["bonly"]:
            if o.get("bskip"):
                A("s_cmp_ge_u32 %s, %d" % (sCNT, o["atries"]))
                A("s_cselect_b32 %s, 0x%x, 0" % (t0, MB1B ^ MB1A))
                for r in regs: A("v_xor_b32 %s, %s, %s" % (r, t0, r))
            else:
                A("s_cmp_eq_u32 %s, %d" % (sCNT, o["atries"]))
                A("s_cselect_b32 %s, 0x%x, 0" % (t0, MB1B - MB1A))
                for r in regs: A("v_add_u32 %s, %s, %s" % (r, t0, r))
        A("s_cmp_gt_u32 %s, %d" % (sCNT, o["spinmax"]))
        A("s_cbranch_scc1 L_end")
    def bytecheck(p, dst):
        A("v_perm_b32 v22, v%d, v%d, s60" % (p + 1, p))
        A("v_perm_b32 v23, v%d, v%d, s61" % (p + 3, p + 2))
        A("v_or_b32 v22, v22, v23")
        A("v_cmp_ne_u32 %s, %s, v22" % (dst, sTAG))
    for _ in range(o.get("dly1", 0)): A("s_nop 15")
    stamp(9)
    if o.get("freeq"): A("s_branch L_got1")
    LB("L_poll1")
    stamp(8)
    for i in range(2):
        for q in range(4):
            r = P + 16 * i + 4 * q
            A("global_load_dwordx4 v[%d:%d], %s, %s offset:%d sc1" % (r, r + 3, vL1, sWS, i * 4096 + q * 256 - 2432))
    A("global_load_dwordx4 v[%d:%d], %s, %s sc1" % (PX, PX + 3, vL1x, sWS))
    A("global_load_dwordx4 v[%d:%d], %s, %s sc1" % (PA_, PA_ + 3, vL1a, sWS))
    switch_copy([vL1, vL1x, vL1a])
    for g_ in range(8):
        A("s_waitcnt vmcnt(%d)" % (9 - g_))
        for k in range(4):
            A("v_xor_b32 v%d, s%d, v%d" % (P + 4 * g_ + k, 56 + k, P + 4 * g_ + k))
        if g_ == 0:
            A("v_or3_b32 v21, v%d, v%d, v%d" % (P, P + 1, P + 2))
            A("v_or_b32 v21, v21, v%d" % (P + 3))
        else:
            A("v_or3_b32 v21, v21, v%d, v%d" % (P + 4 * g_, P + 4 * g_ + 1))
            A("v_or3_b32 v21, v21, v%d, v%d" % (P + 4 * g_ + 2, P + 4 * g_ + 3))
    A("v_and_b32 v21, 15, v21")
    A("s_waitcnt vmcnt(1)")
    bytecheck(PX, "vcc")
    A("v_cmp_ne_u32 s[46:47], 0, v21")
    if o.get("dbgfail"):
        A("s_cmp_eq_u32 %s, 1" % sCNT)
        A("s_cselect_b32 s84, vcc_lo, s84")
        A("s_cselect_b32 s62, s46, s62")
        A("s_cselect_b32 s63, s47, s63")
    A("s_or_b64 vcc, vcc, s[46:47]")
    def majority():
        A("v_cmp_gt_i32 vcc, 0, v%d" % (PX + 1))
        A("v_cmp_lt_i32 s[46:47], %s, v%d" % ("s62", PX + 1))
        A("s_bcnt1_i32_b32 %s, vcc_lo" % t0)
        A("s_bcnt1_i32_b32 %s, s46" % t2)
        A("s_cmp_gt_u32 %s, %s" % (t0, t2))
        A("s_cselect_b32 s55, 0x2000, 0")
        if o.get("voteinv"): A("s_xor_b32 s55, s55, 0x2000")
        if o["stamps"]:
            A("s_bcnt1_i32_b32 s63, vcc_lo")
            A("s_lshl_b32 %s, %s, 8" % (t2, t2))
            A("s_or_b32 s63, s63, %s" % t2)
    def publish_b(tag):
        C("write-through copies for peers that sit on another die")
        A("v_add_u32 v22, 0x%x, %s" % (MB1B - MB1A, vS1))
        A("v_add_u32 v23, 0x%x, v108" % (MB1B - MB1A))
        A("s_mov_b64 exec, 1")
        A("global_store_dwordx4 v109, v[%d:%d], %s sc1" % (XG, XG + 3, sWS))
        A("s_mov_b32 exec_lo, 0x11111111")
        A("s_mov_b32 exec_hi, 0x11111111")
        A("global_store_dwordx4 v22, v[%d:%d], %s sc1" % (GR, GR + 3, sWS))
        A("s_cmp_ge_u32 %s, 4" % sNOFF)
        A("s_cbranch_scc1 L_pb_%s" % tag)
        A("global_store_dwordx4 v23, v[104:107], %s sc1" % sWS)
        LB("L_pb_%s" % tag)
        A("s_mov_b64 exec, -1")
    if o["bdefer"]:
        A("s_cbranch_vccz L_got1")
        A("s_cmp_lg_u32 %s, %d" % (sCNT, o["bdefer"]))
        A("s_cbranch_scc1 L_poll1")
        publish_b("a")
        A("s_branch L_poll1")
        LB("L_got1")
    else:
        A("s_cbranch_vccnz L_poll1")
    stamp(5)
    for i in range(2):
        b = P + 16 * i
        for k in range(4):
            A("v_add_f32 v%d, v%d, v%d" % (b + k, b + k, b + 4 + k))
            A("v_add_f32 v%d, v%d, v%d" % (b + 8 + k, b + 8 + k, b + 12 + k))
        for k in range(4):
            A("v_add_f32 v%d, v%d, v%d" % (b + k, b + k, b + 8 + k))
        A("v_cvt_pk_bf16_f32 v%d, v%d, v%d" % (b, b, b + 1))
        A("v_cvt_pk_bf16_f32 v%d, v%d, v%d" % (b + 1, b + 2, b + 3))
    A("v_lshlrev_b32 v22, 3, v0")
    A("ds_write_b64 v22, v[%d:%d] offset:%d" % (P, P + 1, L_Q))
    A("ds_write_b64 v22, v[%d:%d] offset:%d" % (P + 16, P + 17, L_Q + 512))
    A("v_cmp_ne_u32 vcc, s54, v%d" % PX)
    A("s_cmp_eq_u64 vcc, 0")
    A("s_cselect_b32 %s, 1, 0" % sFAST)
    if o.get("forceslow"): A("s_mov_b32 %s, 0" % sFAST)
    if o.get("freeq"): A("s_mov_b32 %s, 1" % sFAST)
    if o["lastfin"]:
        A("v_readfirstlane_b32 %s, v%d" % (t0, PX + 2))
        if o["lastfin"] == 1:
            A("s_not_b32 %s, %s" % (t2, sTAG))
            A("v_mov_b32 v23, %s" % t2)
            A("v_lshlrev_b32 v22, 2, v0")
        A("s_lshr_b32 %s, %s, 8" % (t0, t0))
        A("s_cmp_eq_u32 %s, 7" % t0)
        A("s_cselect_b32 %s, 2, 0" % t0)
        if o.get("fixfin") is not None:
            A("s_cmp_eq_u32 %s, %d" % (sH, o["fixfin"]))
            A("s_cselect_b32 %s, 2, 0" % t0)
        A("s_or_b32 %s, %s, %s" % (sFAST, sFAST, t0))
        if o["lastfin"] == 1: A("ds_write_b32 v22, v23 offset:%d" % L_FIN)
        else:
            majority()
            A("s_or_b32 %s, %s, s55" % (sFAST, sFAST))
    A("v_mov_b32 v26, %s" % sFAST)
    A("v_mov_b32 v27, %s" % sTAG)
    A("v_mov_b32 v22, %d" % L_FLAG)
    A("ds_write_b64 v22, v[26:27]")
    if o["auxearly"] and not o.get("freeq"):
        A("s_waitcnt vmcnt(0)")
        bytecheck(PA_, "vcc")
        A("s_cbranch_vccz L_aux_b1")
        A("global_load_dwordx4 v[%d:%d], %s, %s sc1" % (PA_, PA_ + 3, vL1a, sWS))
        LB("L_aux_b1")
    A("s_waitcnt lgkmcnt(0)")
    A("s_barrier")
    if o["bdefer"]:
        A("s_cmp_gt_u32 %s, %d" % (sCNT, o["bdefer"]))
        A("s_cbranch_scc1 L_b_done")
        A("s_bitcmp1_b32 %s, 0" % sFAST if o.get("bskip") else "s_nop 0")
        if o.get("bskip"): A("s_cbranch_scc1 L_b_done")
        publish_b("b")
        LB("L_b_done")
    if o["vote"] and o["lastfin"] < 2: majority()
    if o["hlate"]:
        A("s_setprio %d" % o.get("hprio", 0))
        A("s_barrier")
        A("s_barrier")
    A("s_branch %s" % ("L_chk_aux" if not o.get("freeq") else "L_poll_aux" if o["freeq"] == 2 else "L_auxdone"))
    LB("L_poll_aux")
    A("global_load_dwordx4 v[%d:%d], %s, %s sc1" % (PA_, PA_ + 3, vL1a, sWS))
    switch_copy([vL1a])
    LB("L_chk_aux")
    A("s_waitcnt vmcnt(0)")
    bytecheck(PA_, "vcc")
    A("s_cbranch_vccnz L_poll_aux")
    if o.get("freeq"): LB("L_auxdone")
    A("s_movk_i32 %s, 0xff00" % t0)
    A("v_and_b32 v23, 1, %s" % vF)
    A("v_cmp_eq_u32 vcc, 0, v23")
    A("v_and_b32 v23, 2, %s" % vF)
    A("v_cmp_eq_u32 s[46:47], 0, v23")
    A("v_cndmask_b32 v24, v%d, v%d, vcc" % (PA_ + 1, PA_))
    A("v_cndmask_b32 v25, v%d, v%d, vcc" % (PA_ + 3, PA_ + 2))
    A("v_cndmask_b32 v24, v25, v24, s[46:47]")
    A("v_and_b32 v24, %s, v24" % t0)
    allred("v24", "v23", "v_add_f32", 16)
    allred("v24", "v23", "v_add_f32", 32)
    A("v_cvt_pk_bf16_f32 v24, v24, v24")
    A("v_and_b32 v24, %s, v24" % t1)
    A("v_mul_f32 v25, 0x%x, v24" % (LOG2E | 0x80000000))
    A("v_exp_f32 v25, v25")
    A("v_mov_b32_dpp v26, v24 row_ror:8 %s" % DPP)
    A("v_add_f32 v25, 1.0, v25")
    A("v_rcp_f32 v25, v25")
    A("v_cmp_le_u32 vcc, %s, v0" % sRP)
    A("v_mul_f32 v25, v24, v25")
    A("v_cvt_pk_bf16_f32 v25, v25, v25")
    A("v_and_b32 v25, %s, v25" % t1)
    A("v_mul_f32 v25, v25, v26")
    A("v_cvt_pk_bf16_f32 v25, v25, v25")
    A("v_cndmask_b32 v25, v25, 0, vcc")
    A("v_lshlrev_b32 v22, 2, v0")
    if o["vote"] and not o["lastfin"]:
        A("v_mov_b32 v26, s55")
        A("v_mov_b32 v27, 0")
        A("ds_write_b32 v27, v26 offset:%d" % (L_FLAG + 8))
    A("s_mov_b64 exec, 0xff")
    A("ds_write_b32 v22, v25 offset:%d" % L_H)
    A("s_waitcnt lgkmcnt(0)")
    stamp(6)
    if o["lastfin"] == 1:
        A("s_bitcmp1_b32 %s, 1" % sFAST)
        A("s_cbranch_scc1 L_ufin")
    if not o.get("nodumpU"): dump_stamps()
    A("s_endpgm")
    def unit_final():
        LB("L_ufin")
        C("last group: lane = (wave l>>4, pair (l>>3)&1, group l&7) gathers the eight groups' sums of this workgroup's 16 columns")
        A("s_mov_b64 exec, -1")
        A("s_setprio %d" % o.get("uprio", 0))
        vA3, vLF, vXO, vXV = "v4", "v5", "v6", "v7"
        FP, FS = 8, 40
        A("v_lshrrev_b32 %s, 3, v0" % vLF)
        A("s_lshl_b32 %s, %s, 5" % (t0, sJ))
        A("v_lshl_add_u32 %s, %s, 2, %s" % (vXO, vLF, t0))
        A("global_load_dword %s, %s, %s" % (vXV, vXO, sX))
        A("v_lshlrev_b32 %s, 4, %s" % (vLF, vLF))
        A("s_lshr_b32 %s, %s, 1" % (t0, sJ))
        A("s_lshl_b32 %s, %s, 14" % (t0, t0))
        A("s_and_b32 %s, %s, 1" % (t2, sJ))
        A("s_lshl_b32 %s, %s, 12" % (t2, t2))
        A("s_add_u32 %s, %s, %s" % (t0, t0, t2))
        A("s_add_u32 %s, %s, s55" % (t0, t0))
        A("s_add_u32 %s, %s, 0x%x" % (t0, t0, MB3))
        A("v_and_b32 v22, 7, v0")
        A("v_lshl_add_u32 %s, v22, 9, %s" % (vA3, t0))
        A("v_lshlrev_b32 v22, 7, v126")
        A("v_and_b32 v23, 16, %s" % vLF)
        A("v_add3_u32 %s, %s, v22, v23" % (vA3, vA3))
        A("s_lshl_b32 s44, 0x01010101, %s" % sH)
        A("s_mov_b32 s45, s44")
        A("s_not_b64 s[46:47], s[44:45]")
        A("s_mov_b32 %s, %d" % (sCNT, o["spinmax"]))
        A("s_barrier")
        A("s_barrier")
        A("s_waitcnt vmcnt(0)")
        A("v_lshlrev_b32 v22, 16, %s" % vXV)
        A("v_and_b32 v23, %s, %s" % (t1, vXV))
        def spf():
            C("pull the other groups' lines into this die's L2 over the scalar path (the vector path returns in order and is busy with the group's own hand-off)")
            for k in range(1, 8):
                for w_ in range(4):
                    A("s_load_dword s%d, %s, s%d offset:%d glc" % (6 + (4 * k + w_) % 16, sWS, 48 + k, 128 * w_))
        if o.get("spf"):
            for k in range(1, 8):
                A("s_xor_b32 s%d, %s, %d" % (48 + k, sH, k))
                A("s_lshl_b32 s%d, s%d, 9" % (48 + k, 48 + k))
                A("s_add_u32 s%d, s%d, %s" % (48 + k, 48 + k, t0))
        if o.get("spf", 0) & 2: spf()
        if o["reuse"]: A("s_barrier")
        if o.get("spf", 0) & 1: spf()
        NP = o["npu"]
        def own_read():
            A("s_mov_b64 exec, s[44:45]")
            A("ds_read_b128 v[%d:%d], %s offset:%d" % (FP, FP + 3, vLF, L_FIN))
        if o.get("uwait"):
            A("s_mov_b64 exec, s[44:45]")
            LB("L_uw")
            A("ds_read_b128 v[%d:%d], %s offset:%d" % (FP, FP + 3, vLF, L_FIN))
            A("s_sub_u32 %s, %s, 1" % (sCNT, sCNT))
            A("s_cbranch_scc1 L_end")
            A("s_waitcnt lgkmcnt(0)")
            A("v_cmp_ne_u32 vcc, %s, v%d" % (sTAG, FP + 3))
            if o["uwait"] == 1:
                A("s_cbranch_vccnz L_uw")
            else:
                A("s_cmp_eq_u64 vcc, s[44:45]")
                A("s_cbranch_scc1 L_uw")
        for k in range(NP):
            if k:
                for _ in range(o["stag"]):
                    own_read(); A("s_waitcnt lgkmcnt(0)")
            A("s_mov_b64 exec, s[46:47]")
            A("global_load_dwordx4 v[%d:%d], %s, %s sc1" % (FS + 4 * k, FS + 4 * k + 3, vA3, sWS))
        LB("L_upoll")
        for k in range(NP):
            own_read()
            A("s_mov_b64 exec, s[46:47]")
            A("s_waitcnt vmcnt(%d) lgkmcnt(0)" % (NP - 1))
            A("v_cmp_ne_u32 vcc, %s, v%d" % (sTAG, FS + 4 * k + 3))
            A("v_mov_b32 v%d, v%d" % (FP, FS + 4 * k))
            A("v_mov_b32 v%d, v%d" % (FP + 1, FS + 4 * k + 1))
            A("s_and_b64 s[46:47], exec, vcc")
            A("s_cbranch_scc0 L_ugot")
            A("s_mov_b64 exec, s[46:47]")
            A("global_load_dwordx4 v[%d:%d], %s, %s sc1" % (FS + 4 * k, FS + 4 * k + 3, vA3, sWS))
        A("s_sub_u32 %s, %s, 1" % (sCNT, sCNT))
        A("s_cbranch_scc0 L_upoll")
        A("s_endpgm")
        LB("L_uown")
        A("ds_read_b128 v[%d:%d], %s offset:%d" % (FP, FP + 3, vLF, L_FIN))
        A("s_sub_u32 %s, %s, 1" % (sCNT, sCNT))
        A("s_cbranch_scc1 L_end")
        A("s_waitcnt lgkmcnt(0)")
        LB("L_ugot")
        A("s_mov_b64 exec, s[44:45]")
        A("v_cmp_ne_u32 vcc, %s, v%d" % (sTAG, FP + 3))
        A("s_cbranch_vccnz L_uown")
        stamp(10)
        A("s_mov_b64 exec, -1")
        x_, y_ = "v%d" % FP, "v%d" % (FP + 1)
        for pat in ("quad_perm:[1,0,3,2]", "quad_perm:[2,3,0,1]", "row_half_mirror"):
            A("v_add_f32_dpp %s, %s, %s %s %s" % (x_, x_, x_, pat, DPP))
            A("v_add_f32_dpp %s, %s, %s %s %s" % (y_, y_, y_, pat, DPP))
            if pat != "row_half_mirror": A("s_nop 0")
        A("s_mov_b32 s44, 0x01010101")
        A("v_add_f32 %s, %s, v22" % (x_, x_))
        A("v_add_f32 %s, %s, v23" % (y_, y_))
        A("s_mov_b32 s45, s44")
        A("v_cvt_pk_bf16_f32 %s, %s, %s" % (x_, x_, y_))
        A("s_mov_b64 exec, s[44:45]")
        A("global_store_dword %s, %s, %s" % (vXO, x_, sOUT))
        A("s_cmp_lg_u32 %s, 0" % sJ)
        A("s_cbranch_scc1 L_udone")
        C("the next launch must not mistake this launch's hand-off words for its own")
        A("s_mov_b64 exec, 1")
        A("v_mov_b32 v22, 0")
        A("v_mov_b32 v23, %s" % sTAG)
        A("global_store_dword v22, v23, %s" % sWS)
        LB("L_udone")
        role[0] = "U"
        amp_end("u")
        dump_stamps()
        A("s_endpgm")

    role[0] = "A"
    if o.get("alignA"): L.append(".p2align %d" % o["alignA"])
    for _ in range(o.get("shiftA", 0)): A("s_nop 0")
    LB("L_attn")
    vK0, vK1, vV0, vV1 = "v2", "v3", "v4", "v5"
    vWO0, vWO1, vDN0, vDN1, vXF, vXP = "v6", "v7", "v8", "v9", "v10", "v1"
    vS2, vL2, vS25, vL25, vL3, vS3 = "v11", "v12", "v13", "v14", "v15", "v150"
    KR, VR, WOR, DNR, QR, SR, PA, MK = 16, 48, 80, 96, 104, 120, 128, 146
    vM0, vM1, vQA, vOW, vOR, vMLW, vHA = "v151", "v152", "v153", "v154", "v155", "v156", "v157"
    vN, vG, vN16, vP = "v120", "v121", "v122", "v123"
    u0, u1 = "v124", "v125"
    s4JW = "s41"
    C("K and V: load i = 1 KB block (4 keys) number 128 i + 4j + w of the head's window; K goes through LDS")
    A("s_lshl_b32 %s, %s, 24" % (t0, sH))
    A("s_lshl_b32 %s, %s, 2" % (s4JW, sJ))
    A("s_add_u32 %s, %s, %s" % (s4JW, s4JW, sW))
    if o["lastfin"]:
        C("arrival order of the eight groups (one counter in the zeroed debug words)")
        A("s_cmp_lg_u32 %s, 0" % s4JW)
        A("s_cbranch_scc1 L_notkt0")
        A("v_mov_b32 v158, 0")
        A("v_mov_b32 v159, 1")
        A("s_mov_b64 exec, 1")
        A("global_atomic_add v159, v158, v159, s[24:25] sc0 sc1")
        A("s_mov_b64 exec, -1")
        LB("L_notkt0")
    A("s_lshl_b32 %s, %s, 10" % (t2, s4JW))
    A("s_add_u32 %s, %s, %s" % (t0, t0, t2))
    A("s_add_u32 %s, %s, 0xF00000" % (t0, t0))
    A("v_and_b32 %s, 15, v0" % vN)
    A("v_lshrrev_b32 %s, 4, v0" % vG)
    A("v_lshlrev_b32 %s, 4, %s" % (vN16, vN))
    A("v_lshl_add_u32 %s, v0, 4, %s" % (vV0, t0))
    A("v_lshlrev_b32 %s, 6, %s" % (u0, vG))
    A("v_xor_b32 %s, %s, %s" % (vK0, u0, vV0))
    A("s_lshl_b32 %s, %s, 13" % (t1, sW))
    A("s_add_u32 m0, %s, %d" % (t1, L_K))
    A("s_mov_b32 s42, 0x20000")
    A("s_movk_i32 s43, 1024")
    if not o["vote"]: A("s_waitcnt lgkmcnt(0)")
    if o.get("tlbw") == 1:
        A("s_cmp_lg_u32 %s, 0" % sW)
        A("s_cbranch_scc1 L_notlb")
        tlbwarm()
        A("s_waitcnt vmcnt(0)")
        LB("L_notlb")
    if o["vote"]: A("s_waitcnt lgkmcnt(1)")
    if o["lastfin"]:
        A("s_cmp_lg_u32 %s, 0" % s4JW)
        A("s_cbranch_scc1 L_notkt")
        A("s_mov_b64 exec, 1")
        A("s_waitcnt vmcnt(0)")
        A("ds_write_b32 v158, v159 offset:%d" % L_TKT)
        A("s_mov_b64 exec, -1")
        A("s_waitcnt lgkmcnt(0)")
        LB("L_notkt")
    if o["stl"]:
        C("first touch of the pages the later loads use, over the scalar path (values unused)")
        if o["stl"] & 1: A("s_load_dword s60, %s, %s" % (sK, t0))
        if o["stl"] & 2: A("s_load_dword s61, %s, %s" % (sV, t0))
        if o["stl"] & 4:
            A("s_lshl_b32 %s, %s, 19" % (t2, sH))
            A("s_lshl_b32 %s, %s, 14" % (t3, sJ))
            A("s_add_u32 %s, %s, %s" % (t2, t2, t3))
            A("s_load_dword s62, %s, %s" % (sWO, t2))
            A("s_mul_i32 %s, s2, 7168" % t2)
            A("s_load_dword s63, %s, %s" % (sDN, t2))
        if o["stl"] & 8: A("s_load_dword s59, %s, 0" % sOUT)
        if o["stl"] & 16:
            A("s_lshl_b32 %s, %s, 7" % (t2, sH))
            A("s_load_dword s59, %s, %s" % (sOUT, t2))
    if o["b0pos"]: A("s_barrier")
    stamp(1)
    issued = [0]
    def load(w, txt):
        if issued[0] >= w:
            A("s_waitcnt vmcnt(%d)" % (w - 1))
        A(txt); issued[0] += 1
    def rot(i): return (i * o["rotm"]) & 127
    def kload(i):
        load(o["WK"], "global_load_lds_dwordx4 %s, %s %s" % (vK0, sK, nt))
        if i < 7:
            A("s_add_u32 m0, m0, s43")
            A("v_xor_b32 %s, %d, %s" % (vK0, (((i & 3) ^ ((i + 1) & 3)) << 4) | ((rot(i) ^ rot(i + 1)) << 10), vK0))
            A("v_add_u32 %s, s42, %s" % (vK0, vK0))
    nk_first = min(o["WK"], 8)
    if o.get("bal"):
        A("v_and_b32 v158, 7, v0")
        A("v_lshlrev_b32 v158, 2, v158")
        A("global_load_dword v159, v158, s[24:25] sc1")
    for i in range(nk_first): kload(i)
    C("address and mask setup in the shadow of the K loads")
    if o["stouch"]: A("s_load_dword s63, %s, 0" % sOUT)
    A("s_lshl_b32 %s, %s, 19" % (t0, sH))
    A("s_lshl_b32 %s, %s, 14" % (t2, sJ))
    A("s_add_u32 %s, %s, %s" % (t0, t0, t2))
    A("s_lshl_b32 %s, %s, 8" % (t3, sW))
    A("s_add_u32 %s, %s, %s" % (t0, t0, t3))
    A("s_add_u32 %s, %s, 0x1000" % (t0, t0))
    A("v_lshl_add_u32 %s, %s, 10, %s" % (vDN0, vG, vN16))
    A("v_add_u32 %s, %s, %s" % (vWO0, t0, vDN0))
    A("v_add_u32 %s, 0x2000, %s" % (vWO1, vWO0))
    ffn_share(t0, t2)
    A("s_lshl_b32 %s, s3, 6" % t0)
    A("s_lshl_b32 %s, %s, 1" % (t2, t2))
    A("s_sub_u32 %s, 8, %s" % (t1, t2))
    A("s_mul_i32 %s, %s, %s" % (t2, t1, sJ))
    A("s_add_u32 %s, %s, %s" % (t0, t0, t2))
    A("s_lshl_b32 %s, %s, 10" % (t0, t0))
    A("s_add_u32 %s, %s, %s" % (t0, t0, t3))
    A("s_sub_u32 %s, %s, 1" % (t1, t1))
    A("v_add_u32 %s, %s, %s" % (u1, t0, vN16))
    A("v_min_u32 %s, %s, %s" % (vDN0, t1, vG))
    A("v_lshl_add_u32 %s, %s, 10, %s" % (vDN0, vDN0, u1))
    A("v_add_u32 %s, 4, %s" % (vDN1, vG))
    A("v_min_u32 %s, %s, %s" % (vDN1, t1, vDN1))
    A("v_lshl_add_u32 %s, %s, 10, %s" % (vDN1, vDN1, u1))
    A("v_and_b32 %s, 1, v0" % vP)
    A("v_and_b32 %s, 1, %s" % (u0, vG))
    if o["g25"]:
        if o["cq25"]:
            A("s_lshr_b32 %s, %s, 3" % (t2, sJ))
            A("s_lshl_b32 %s, %s, 8" % (t2, t2))
            A("s_and_b32 %s, %s, 3" % (t0, sJ))
            A("s_lshl_b32 %s, %s, 6" % (t0, t0))
            A("s_add_u32 %s, %s, %s" % (t2, t2, t0))
            A("s_and_b32 %s, %s, 4" % (t0, sJ))
            A("s_lshl_b32 %s, %s, 1" % (t0, t0))
            A("s_add_u32 %s, %s, %s" % (t2, t2, t0))
        else:
            A("s_lshl_b32 %s, %s, 5" % (t2, sJ))
        A("v_bfe_u32 %s, v0, 3, 2" % u1)
        A("v_lshl_add_u32 %s, %s, %d, %s" % (vXF, u1, 4 if o["cq25"] else 3, t2))
        A("v_lshrrev_b32 %s, 5, v0" % u1)
        A("v_lshl_add_u32 %s, %s, 2, %s" % (vXF, u1, vXF))
    else:
        A("s_lshl_b32 %s, %s, 3" % (t2, s4JW))
        A("v_lshl_add_u32 %s, %s, 2, %s" % (vXF, u0, t2))
    RP = o["rp"]
    M25 = 0 if o["reuse"] else MB25 - MB2
    lay = 3 if o["reuse"] else o.get("lay25", 0)
    A("s_mul_i32 %s, %s, %d" % (t0, sH, 32 * RP))
    A("s_add_u32 %s, %s, 0x%x" % (t0, t0, MB2))
    A("s_mul_i32 %s, %s, %d" % (t1, sJ, RP))
    A("s_add_u32 %s, %s, %s" % (t1, t1, t0))
    A("s_mul_i32 %s, %s, %d" % (t2, sW, 8 * RP))
    A("s_lshl_b32 %s, %s, 6" % (t3, sJ))
    A("s_add_u32 %s, %s, %s" % (t0, t0, t3))
    A("s_add_u32 %s, %s, %s" % (t2, t2, t0))
    A("v_bfe_u32 %s, v0, 2, 3" % vS2 if o["cq2"] else "v_lshrrev_b32 %s, 3, v0" % vS2)
    A("v_mul_u32_u24 %s, %d, %s" % (vS2, RP, vS2))
    A("v_and_b32 %s, 3, v0" % u1 if o["cq2"] else "v_bfe_u32 %s, v0, 1, 2" % u1)
    A("v_lshlrev_b32 %s, 4, %s" % (u1, u1))
    A("v_add3_u32 %s, %s, %s, %s" % (vS2, vS2, u1, t2))
    A("v_lshl_add_u32 %s, v0, 4, %s" % (vL2, t1))
    A("s_lshl_b32 %s, %s, 4" % (t3, sW))
    A("v_and_b32 %s, 31, v0" % u1)
    if lay == 0:
        A("s_add_u32 %s, %s, %s" % (t1, t1, t3))
        A("s_add_u32 %s, %s, 0x%x" % (t1, t1, M25))
        A("v_lshl_add_u32 %s, %s, 6, %s" % (vL25, u1, t1))
        A("v_lshrrev_b32 %s, 1, %s" % (vS25, vN))
        A("v_mul_u32_u24 %s, %d, %s" % (vS25, RP, vS25))
        A("v_lshl_add_u32 %s, %s, 5, %s" % (vS25, vP, vS25))
        A("v_lshl_add_u32 %s, %s, 4, %s" % (vS25, u0, vS25))
        A("s_add_u32 %s, %s, 0x%x" % (t2, t2, M25))
        A("v_add_u32 %s, %s, %s" % (vS25, t2, vS25))
    else:
        if not o["g25"]: A("s_add_u32 %s, %s, %s" % (t0, t0, t3))
        if M25: A("s_add_u32 %s, %s, 0x%x" % (t0, t0, M25))
        if o["g25"]:
            A("v_lshrrev_b32 %s, 2, v0" % vL25)
            A("v_mul_u32_u24 %s, %d, %s" % (vL25, RP, vL25))
            A("v_and_b32 %s, 3, v0" % u1)
            A("v_lshlrev_b32 %s, 4, %s" % (u1, u1))
            A("v_add3_u32 %s, %s, %s, %s" % (vL25, vL25, u1, t0))
            A("v_add_u32 v164, %d, %s" % (16 * RP, vL25))
        else:
            A("v_mul_u32_u24 %s, %d, %s" % (vL25, RP, u1))
            A("v_add_u32 %s, %s, %s" % (vL25, t0, vL25))
        A("s_lshl_b32 %s, %s, 9" % (t3, sW))
        A("s_add_u32 %s, %s, %s" % (t1, t1, t3))
        if M25: A("s_add_u32 %s, %s, 0x%x" % (t1, t1, M25))
        if o["cq25"]:
            A("v_and_b32 %s, 31, v0" % vS25)
            A("v_lshl_add_u32 %s, %s, 4, %s" % (vS25, vS25, t1))
        else:
            A("v_lshl_add_u32 %s, %s, 5, %s" % (vS25, vN, t1))
            A("v_lshl_add_u32 %s, %s, 4, %s" % (vS25, u0, vS25))
    A("s_lshr_b32 %s, %s, 1" % (t0, sJ))
    A("s_lshl_b32 %s, %s, 14" % (t0, t0))
    A("s_and_b32 %s, %s, 1" % (t3, sJ))
    A("s_lshl_b32 %s, %s, 12" % (t3, t3))
    A("s_add_u32 %s, %s, %s" % (t0, t0, t3))
    if o["g25"]:
        A("s_add_u32 %s, %s, 0x%x" % (t0, t0, MB3))
        A("v_lshrrev_b32 %s, 3, v0" % u0)
        A("v_lshl_add_u32 %s, %s, 4, %s" % (u0, u0, t0))
        A("v_and_b32 %s, 7, v0" % vL3)
        A("v_lshl_add_u32 %s, %s, 9, %s" % (vL3, vL3, u0))
        A("s_lshl_b32 %s, %s, 9" % (t3, sH))
        A("s_add_u32 %s, %s, %s" % (t0, t0, t3))
        A("v_lshrrev_b32 %s, 5, v0" % u0)
        A("v_lshl_add_u32 %s, %s, 6, %s" % (u0, u0, u1))
        A("v_bfe_u32 %s, v0, 2, 1" % u1)
        A("v_lshlrev_b32 %s, 13, %s" % (u1, u1))
        A("v_add3_u32 %s, %s, %s, %s" % (vS3, u0, u1, t0))
        if o["pt3"]:
            A("s_and_b32 %s, %s, 1" % (t3, sW))
            A("s_lshl_b32 %s, %s, 6" % (t3, t3))
            A("s_add_u32 s3, %s, %s" % (t0, t3))
            A("s_lshr_b32 %s, %s, 1" % (t3, sW))
            A("s_lshl_b32 %s, %s, 13" % (t3, t3))
            A("s_add_u32 s3, s3, %s" % t3)
    else:
        A("s_lshl_b32 %s, %s, 7" % (t3, sW))
        A("s_add_u32 %s, %s, %s" % (t0, t0, t3))
        A("s_add_u32 %s, %s, 0x%x" % (t0, t0, MB3))
        if o["lastfin"] == 1:
            A("s_lshl_b32 %s, %s, 5" % (t3, sW))
            A("v_lshl_add_u32 %s, %s, 4, %s" % (vL3, u0, t3))
        if o["lastfin"] >= 2:
            A("s_lshl_b32 s3, %s, 9" % sH)
            A("s_add_u32 s3, s3, %s" % t0)
        A("v_lshl_add_u32 %s, %s, 4, %s" % (u0, u0, t0))
        if o["lastfin"] != 1:
            A("v_and_b32 %s, 7, v0" % u1)
            A("v_lshl_add_u32 %s, %s, 9, %s" % (vL3, u1, u0))
        A("s_lshl_b32 %s, %s, 9" % (t3, sH))
        A("v_lshl_add_u32 %s, %s, 13, %s" % (u0, vP, u0))
        A("v_add_u32 %s, %s, %s" % (vS3, t3, u0))
    if o.get("mockx"):
        A("s_lshr_b32 %s, %s, 1" % (t0, sJ))
        A("s_lshl_b32 %s, %s, 14" % (t0, t0))
        A("s_and_b32 %s, %s, 1" % (t3, sJ))
        A("s_lshl_b32 %s, %s, 12" % (t3, t3))
        A("s_add_u32 %s, %s, %s" % (t0, t0, t3))
        A("s_lshl_b32 %s, %s, 9" % (t3, sH))
        A("s_add_u32 %s, %s, %s" % (t0, t0, t3))
        A("s_and_b32 %s, %s, 1" % (t3, sW))
        A("s_lshl_b32 %s, %s, 13" % (t3, t3))
        A("s_add_u32 %s, %s, %s" % (t0, t0, t3))
        A("s_add_u32 %s, %s, 0x%x" % (t0, t0, MB3))
        A("v_and_b32 %s, 3, v0" % u0)
        A("v_lshl_add_u32 %s, %s, 4, %s" % (vS3, u0, t0))
        A("s_and_b32 %s, %s, 3" % (t0, sJ))
        A("s_lshl_b32 %s, %s, 2" % (t0, t0))
        A("s_add_u32 %s, %s, %s" % (t0, t0, sW))
        A("s_lshl_b32 %s, %s, 14" % (t0, t0))
        A("s_lshr_b32 %s, %s, 2" % (t3, sJ))
        A("s_lshl_b32 %s, %s, 9" % (t3, t3))
        A("s_add_u32 %s, %s, %s" % (t0, t0, t3))
        A("s_add_u32 %s, %s, 0x%x" % (t0, t0, MB3))
        A("v_lshl_add_u32 %s, %s, 4, %s" % (vL3, u0, t0))
        A("v_bfe_u32 %s, v0, 2, 1" % u0)
        A("v_lshl_add_u32 %s, %s, 12, %s" % (vL3, u0, vL3))
    A("v_lshlrev_b32 %s, 4, %s" % (u1, vP))
    def pretouch2():
        C("pull this workgroup's incoming hand-off lines into L2 (waves 0,1: hop 2; waves 2,3: hop 2.5)")
        if o["reuse"]:
            A("s_lshl_b32 %s, %s, 9" % (t0, sW))
            A("v_lshlrev_b32 v158, 3, v0")
            A("v_sub_u32 v158, %s, v158" % vL2)
            A("v_add_u32 v158, %s, v158" % t0)
            if o["pt3"]: A("v_writelane_b32 v158, s3, 63")
        else:
            A("s_and_b32 %s, %s, 1" % (t0, sW))
            A("s_lshl_b32 %s, %s, 10" % (t0, t0))
            A("s_lshr_b32 %s, %s, 1" % (t3, sW))
            A("s_mul_i32 %s, %s, 0x%x" % (t3, t3, MB25 - MB2))
            A("s_add_u32 %s, %s, %s" % (t0, t0, t3))
            A("v_add_u32 v158, %s, %s" % (t0, vL2))
        if o["pretouch"] in ("r", "k"):
            A("global_load_dword v159, v158, %s sc1" % sWS); issued[0] += 1
        if o.get("otouch2", 0) & 1:
            A("global_load_dword v166, %s, %s" % (vXF, sOUT)); issued[0] += 1
        if o.get("otouch2", 0) & 2:
            A("global_load_dword v165, %s, %s sc1" % (vS3, sWS)); issued[0] += 1
    if o["pretouch"] == "r" or isinstance(o["pretouch"], int): pretouch2()
    A("v_mov_b32 %s, 0xffff" % u0)
    A("v_lshlrev_b32 %s, %s, %s" % (u0, u1, u0))
    A("v_and_b32 %s, 2, v0" % u1)
    A("v_cmp_eq_u32 vcc, 0, %s" % u1)
    A("v_lshrrev_b32 %s, 1, %s" % (u1, vN))
    A("v_lshlrev_b32 %s, 2, %s" % (vHA, vG))
    SEL = 160
    A("v_mov_b32 v%d, 0x0c0c0c0c" % (SEL + 2))
    A("v_mov_b32 v%d, 0x01000100" % (SEL + 3))
    A("v_bfi_b32 v%d, %s, v%d, v%d" % (SEL + 3, u0, SEL + 3, SEL + 2))
    A("v_cndmask_b32 v%d, v%d, v%d, vcc" % (SEL, SEL + 2, SEL + 3))
    A("v_cndmask_b32 v%d, v%d, v%d, vcc" % (SEL + 1, SEL + 3, SEL + 2))
    A("v_and_b32 v%d, 0x02020202, %s" % (SEL + 3, u0))
    A("v_cndmask_b32 v%d, 0, v%d, vcc" % (SEL + 2, SEL + 3))
    A("v_cndmask_b32 v%d, v%d, 0, vcc" % (SEL + 3, SEL + 3))
    A("v_add_u32 v%d, v%d, v%d" % (SEL + 2, SEL + 2, SEL))
    A("v_add_u32 v%d, v%d, v%d" % (SEL + 3, SEL + 3, SEL + 1))
    for r in range(4):
        A("v_cmp_eq_u32 s[%d:%d], %d, %s" % (44 + 2 * r, 45 + 2 * r, r, u1))
    A("v_lshrrev_b32 %s, 2, %s" % (vMLW, vN))
    A("v_lshlrev_b32 %s, 4, %s" % (u1, vG))
    A("v_lshl_add_u32 %s, %s, 8, %s" % (vQA, vMLW, u1))
    for r in range(4):
        A("v_cndmask_b32 v%d, 0, %s, s[%d:%d]" % (MK + r, u0, 44 + 2 * r, 45 + 2 * r))
    OH, OG, OWV = (384, 768, 3072) if o["cq2"] else (256, 512, 2048)
    if o["cq2"]:
        A("s_mul_i32 %s, %s, %d" % (t0, sW, OWV))
        A("v_mul_u32_u24 %s, %d, %s" % (vOW, OG, vG))
        A("v_add3_u32 %s, %s, %s, %s" % (vOW, vOW, vN16, t0))
    else:
        A("s_lshl_b32 %s, %s, 11" % (t0, sW))
        A("v_lshl_add_u32 %s, %s, 9, %s" % (vOW, vG, vN16))
        A("v_add_u32 %s, %s, %s" % (vOW, t0, vOW))
    A("s_lshl_b32 %s, %s, 3" % (t0, sW))
    A("v_lshl_add_u32 %s, %s, 5, %s" % (vMLW, vMLW, t0))
    if o["cq2"]:
        A("v_bfe_u32 %s, v0, 1, 4" % u1)
        A("v_lshlrev_b32 %s, 4, %s" % (u1, u1))
        A("v_mul_u32_u24 %s, %d, %s" % (u0, OH, vP))
        A("s_mul_i32 %s, %s, %d" % (t0, sW, OG))
        A("v_add3_u32 %s, %s, %s, %s" % (vOR, u0, u1, t0))
    else:
        A("v_bfe_u32 %s, v0, 1, 1" % u0)
        A("v_lshrrev_b32 %s, 2, v0" % u1)
        A("v_lshlrev_b32 %s, 4, %s" % (u1, u1))
        A("v_lshl_add_u32 %s, %s, 8, %s" % (u1, u0, u1))
        A("v_lshl_add_u32 %s, %s, 3, %s" % (u1, vP, u1))
        A("s_lshl_b32 %s, %s, 9" % (t0, sW))
        A("v_add_u32 %s, %s, %s" % (vOR, t0, u1))
    KA = 140
    A("v_and_b32 %s, 3, v0" % u0)
    A("v_lshrrev_b32 %s, 2, %s" % (u1, vN))
    A("v_lshlrev_b32 %s, 8, %s" % (u1, u1))
    A("v_lshl_add_u32 %s, %s, 10, %s" % (u0, u0, u1))
    A("v_xor_b32 %s, %s, %s" % (u1, vG, vN))
    A("v_lshl_add_u32 %s, %s, 4, %s" % (u0, u1, u0))
    A("s_lshl_b32 %s, %s, 13" % (t1, sW))
    A("v_add_u32 v%d, %s, %s" % (KA, t1, u0))
    for s_ in range(1, 4):
        A("v_xor_b32 v%d, %d, v%d" % (KA + s_, s_ << 6, KA))
    if o.get("cheap", 0) & 1:
        A("v_and_b32 %s, 0x3fff, %s" % (vWO0, vWO0)); A("v_or_b32 %s, 0x1000, %s" % (vWO0, vWO0)); A("v_mov_b32 %s, %s" % (vWO1, vWO0))
    if o.get("cheap", 0) & 2:
        A("v_and_b32 %s, 0x3fff, %s" % (vDN0, vDN0)); A("v_mov_b32 %s, %s" % (vDN1, vDN0))
    if o.get("cheap", 0) & 4:
        A("v_and_b32 %s, 0x3fff, %s" % (vV0, vV0)); A("s_mov_b32 s63, 0")
    for _ in range(o.get("delayA", 0)): A("s_nop 3")
    def issue_rest(WK_, W_):
        o_wk = o["WK"]; o["WK"] = WK_
        for i in range(nk_first, 8): kload(i)
        o["WK"] = o_wk
        if o["pretouch"] == "k": pretouch2()
        if o.get("xearly"):
            A("global_load_dword %s, %s, %s" % (vXP, vXF, sX)); issued[0] += 1
        for i in range(8 - o["vlate"]):
            ld, *step = vload(i)
            load(W_, ld)
            for t_ in step: A(t_)
    def vload(i):
        r = VR + i * 4
        seq = ["global_load_dwordx4 v[%d:%d], %s, %s %s" % (r, r + 3, vV0, sV, nt)]
        if i < 7:
            if rot(i) ^ rot(i + 1): seq.append("v_xor_b32 %s, %d, %s" % (vV0, (rot(i) ^ rot(i + 1)) << 10, vV0))
            seq.append("v_add_u32 %s, %s, %s" % (vV0, "s63" if o.get("cheap", 0) & 4 and i % o.get("cheapm", 1) == 0 else "s42", vV0))
        return seq
    if o.get("bal"):
        C("a group that started well after others asks memory with a wider window")
        A("s_waitcnt vmcnt(%d)" % issued[0])
        A("v_sub_u32 v158, s90, v159")
        A("v_cmp_ne_u32 vcc, 0, v159")
        A("v_cmp_lt_i32 s[44:45], %d, v158" % o.get("theta", 40))
        A("s_and_b32 s62, vcc_lo, s44")
        A("s_and_b32 s62, s62, 0xff")
        A("s_bcnt1_i32_b32 s62, s62")
        A("s_cmp_ge_u32 s62, %d" % o.get("lateth", 2))
        A("s_cbranch_scc1 L_wide")
        keep = issued[0]
        issue_rest(o["WK"], o["W"])
        A("s_branch L_issued")
        LB("L_wide")
        issued[0] = keep
        issue_rest(o["WK"] + o["bal"], o["W"] + o["bal"])
        LB("L_issued")
    elif o.get("c3"):
        A("s_lshr_b32 %s, %s, 2" % (t0, sJ))
        A("s_cmp_eq_u32 %s, 3" % t0)
        A("s_cbranch_scc1 L_wide")
        keep = issued[0]
        issue_rest(o["WK"], o["W"])
        A("s_branch L_issued")
        LB("L_wide")
        issued[0] = keep
        issue_rest(o["WK"] + o["c3"], o["W"] + o.get("c3v", o["c3"]))
        LB("L_issued")
    else:
        issue_rest(o["WK"], o["W"])
    tail = []
    if o["lastfin"] != 1 and not o.get("xstag"): tail.append("global_load_dword %s, %s, %s" % (vXP, vXF, sX))
    for a in range(2):
        r = DNR + a * 4
        tail.append("global_load_dwordx4 v[%d:%d], %s, %s %s" % (r, r + 3, (vDN0, vDN1)[a], sDN, nt))
    for m in range(4):
        r = WOR + m * 4
        tail.append("global_load_dwordx4 v[%d:%d], %s, %s offset:%d %s" % (r, r + 3, (vWO0, vWO1)[m >> 1], sWO, (0, -4096)[(m & 1) == 0], nt))
    dnl = []
    if o.get("dnlate"):
        dnl = tail[1:1 + 2]
        if o["dnlate"] == 2: dnl = dnl[1:]
        for t_ in dnl: tail.remove(t_)
        tail.append(tail.pop(0))
    if isinstance(o["pretouch"], int):
        tail.insert(o["pretouch"], "global_load_dword v159, v158, %s sc1" % sWS)
    if o.get("xearly"):
        xl = [t_ for t_ in tail if vXP + "," in t_][0]; tail.remove(xl)
    taft = []
    for _ in range(o.get("tafter", 0)): taft.insert(0, tail.pop())
    tail[:0] = [vload(i) for i in range(8 - o["vlate"], 8)]
    nav = [-o["vlate"]]
    def tail_issue(n):
        for _ in range(n):
            if tail:
                t_ = tail.pop(0)
                for q_ in ([t_] if isinstance(t_, str) else t_): A(q_)
                nav[0] += 1
    sNE = "s63"
    def adaptive():
        C("a wave whose V loads have landed while it waited for q tops its window up with the weight loads")
        assert not o["vlate"] and not o["ntail0"] and not o["tsp"] and not o["tlag"] and len(tail) == 7
        A("s_getreg_b32 %s, hwreg(HW_REG_IB_STS, 0, 4)" % t0)
        A("s_sub_i32 %s, %d, %s" % (sNE, o["Wa"], t0))
        for k in range(min(7, o["Wa"])):
            A("s_cmp_le_i32 %s, %d" % (sNE, k))
            A("s_cbranch_scc1 L_topped")
            A(tail[k])
        LB("L_topped")
    A("s_waitcnt vmcnt(%d)" % (8 - o["vlate"]))
    for t in range(2):
        for s in range(4):
            r = KR + (t * 4 + s) * 4
            A("ds_read_b128 v[%d:%d], v%d offset:%d" % (r, r + 3, KA + s, L_K + t * 4096))
    tail_issue(o["ntail0"])
    stamp(2)
    A("s_waitcnt lgkmcnt(0)")
    A("s_barrier")
    stamp(3)
    for s in range(4):
        A("ds_read_b128 v[%d:%d], %s offset:%d" % (QR + 4 * s, QR + 4 * s + 3, vQA, L_Q + s * 64))
    if "a" in o["tsp"]: tail_issue(1)
    if o["adap"] == "a": adaptive()
    A("s_mov_b32 s46, 0x%x" % SCALE)
    A("s_mov_b32 %s, 0xffff0000" % t1)
    A("s_mov_b32 s48, 0x%x" % LOG2E)
    for s in range(4):
        A("s_waitcnt lgkmcnt(%d)" % (3 - s))
        for t in range(2):
            mfma(SR + 4 * t, KR + (t * 4 + s) * 4, QR + 4 * s, None if s == 0 else SR + 4 * t)
    T = KR
    vH0, vH1, vFL, vTG = "v%d" % (T + 28), "v%d" % (T + 29), "v%d" % (T + 26), "v%d" % (T + 27)
    A("v_mov_b32 %s, %d" % (vFL, L_FLAG))
    A("s_lshl_b32 %s, %s, 5" % (t3, sW))
    A("v_mov_b32 v%d, %s" % (T + 31, t3))
    A("ds_read_b64 v[%d:%d], %s" % (T + 26, T + 27, vFL))
    if "b" in o["tsp"]:
        tail_issue(1); A("s_nop 1")
    elif o["adap"] == "b": adaptive()
    else: A("s_nop 2")
    C("scores: bf16(qk) -> * scale -> bf16   (the reference's two roundings)")
    for i in range(8):
        A("v_cvt_pk_bf16_f32 v%d, 0, v%d" % (SR + i, SR + i))
    for i in range(4):
        A("v_pk_mul_f32 %s, %s, s[46:47] op_sel_hi:[1,0]" % (P2(SR + 2 * i), P2(SR + 2 * i)))
    for i in range(8):
        A("v_cvt_pk_bf16_f32 v%d, 0, v%d" % (SR + i, SR + i))
    vm, vt, vl = "v%d" % (T + 4), "v%d" % (T + 6), "v%d" % (T + 5)
    A("v_max3_f32 %s, v%d, v%d, v%d" % (vm, SR, SR + 1, SR + 2))
    A("v_max3_f32 %s, v%d, v%d, v%d" % (vt, SR + 3, SR + 4, SR + 5))
    A("v_max3_f32 %s, %s, v%d, v%d" % (vm, vm, SR + 6, SR + 7))
    A("v_max_f32 %s, %s, %s" % (vm, vm, vt))
    allred(vm, vt, "v_max_f32", 16)
    if "c" in o["tsp"]: tail_issue(1)
    if o["adap"] == "c": adaptive()
    allred(vm, vt, "v_max_f32", 32)
    A("v_mul_f32 %s, s48, %s" % (vm, vm))
    for i in range(4):
        A("v_pk_fma_f32 %s, %s, s[48:49], %s op_sel_hi:[1,0,0] neg_lo:[0,0,1] neg_hi:[0,0,1]" % (P2(SR + 2 * i), P2(SR + 2 * i), P2(T + 4)))
    for i in range(8):
        A("v_exp_f32 v%d, v%d" % (SR + i, SR + i))
    if "d" in o["tsp"]: tail_issue(1)
    for i in range(4):
        A("v_cvt_pk_bf16_f32 v%d, v%d, v%d" % (T + 8 + i, SR + 2 * i, SR + 2 * i + 1))
    for i in range(8):
        for r in range(2):
            A("v_perm_b32 v%d, v%d, v%d, v%d" % (PA + 2 * i + r, T + 8 + (i >> 1), T + 8 + (i >> 1), SEL + 2 * (i & 1) + r))
    stamp(4)
    O0, O1, Y = QR, QR + 4, QR + 8
    def pv(i):
        assert 7 - i + nav[0] >= 0
        A("s_waitcnt vmcnt(%d)" % (7 - i + nav[0]))
        if o["adap"] and i < min(7, o["Wa"]):
            A("s_cmp_gt_i32 %s, %d" % (sNE, i))
            A("s_cbranch_scc1 L_had%d" % i)
            tail_issue(1)
            LB("L_had%d" % i)
        elif i >= o["tlag"]: tail_issue((2 if i < o.get("tdbl", 0) else 1) if i < o.get("tlast", 7) else 9)
        vr = VR + 4 * i
        mfma16(O0, PA + 2 * i, vr, None if i == 0 else O0)
        mfma16(O1, PA + 2 * i, vr + 2, None if i == 0 else O1)
    A("v_pk_add_f32 %s, %s, %s" % (P2(SR), P2(SR), P2(SR + 2)))
    A("v_pk_add_f32 %s, %s, %s" % (P2(SR + 4), P2(SR + 4), P2(SR + 6)))
    A("v_pk_add_f32 %s, %s, %s" % (P2(SR), P2(SR), P2(SR + 4)))
    A("v_add_f32 %s, v%d, v%d" % (vl, SR, SR + 1))
    allred(vl, vt, "v_add_f32", 16)
    allred(vl, vt, "v_add_f32", 32)
    A("ds_write_b64 %s, v[%d:%d] offset:%d" % (vMLW, T + 4, T + 5, L_ML))
    A("s_waitcnt lgkmcnt(0)")
    A("v_readfirstlane_b32 %s, %s" % (sFAST, vFL))
    A("v_readfirstlane_b32 %s, %s" % (sTAG, vTG))
    SO = 4
    def soffs():
        A("s_and_b32 %s, %s, 0x2000" % (t0, sFAST))
        A("v_add_u32 %s, %s, %s" % (vL3, t0, vL3))
        A("s_or_b32 s3, s3, %s" % t0)
        for k in range(1, 8): A("s_xor_b32 s%d, s3, 0x%x" % (SO + k - 1, k << 9))
    nshot = [0]
    SD = [12, 20, 44, 64, 72, 80, 88] if not o["stamps"] else None
    def sshot(bit):
        if o["lastfin"] < 2 or not (o.get("sshot", 2) & bit): return
        nshot[0] += 1
        A("s_bitcmp0_b32 %s, 1" % sFAST)
        A("s_cbranch_scc1 L_noshot%d" % nshot[0])
        for k in range(1, 8):
            if o["lastfin"] == 2: A("s_load_dword s%d, %s, s%d offset:12 %s" % (12 + k, sWS, SO + k - 1, o.get("sfl", "glc")))
            else: A("s_load_dwordx8 s[%d:%d], %s, s%d glc" % (SD[k - 1], SD[k - 1] + 7, sWS, SO + k - 1))
        LB("L_noshot%d" % nshot[0])
    HA = T + 16
    ML = T
    OB = T + 8
    G2 = SR
    vM, vLs = "v124", "v125"
    for i in range(o["b2"]): pv(i)
    if o.get("dbgb2"): A("s_memrealtime s[70:71]")
    A("s_barrier")
    if o.get("dbgb2"): A("s_memrealtime s[72:73]")
    A("ds_read_b128 v[%d:%d], v%d offset:%d" % (ML, ML + 3, T + 31, L_ML))
    A("ds_read_b128 v[%d:%d], v%d offset:%d" % (ML + 4, ML + 7, T + 31, L_ML + 16))
    if not o["hlate"]:
        A("ds_read_b32 %s, %s offset:%d" % (vH0, vHA, L_H))
        A("ds_read_b32 %s, %s offset:%d" % (vH1, vHA, L_H + 16))
    avote = o["vote"] and not o["lastfin"]
    if avote:
        A("v_mov_b32 v%d, 0" % (T + 30))
        A("ds_read_b32 v%d, v%d offset:%d" % (T + 30, T + 30, L_FLAG + 8))
    if not o["cq2"]:
        A("s_mov_b32 s54, 0x55555555")
        A("s_mov_b32 s55, 0x55555555")
    A("v_mov_b32 v%d, %s" % (G2 + 3, sTAG))
    A("s_waitcnt lgkmcnt(%d)" % ((0 if o["hlate"] else 2) + (1 if avote else 0)))
    A("v_max3_f32 %s, v%d, v%d, v%d" % (vM, ML, ML + 2, ML + 4))
    A("v_max_f32 %s, %s, v%d" % (vM, vM, ML + 6))
    for w_ in range(4):
        A("v_sub_f32 v%d, v%d, %s" % (ML + 2 * w_, ML + 2 * w_, vM))
    for w_ in range(4):
        A("v_exp_f32 v%d, v%d" % (ML + 2 * w_, ML + 2 * w_))
    A("s_waitcnt lgkmcnt(0)")
    A("v_mul_f32 %s, v%d, v%d" % (vLs, ML, ML + 1))
    for w_ in range(1, 4):
        A("v_fmac_f32 %s, v%d, v%d" % (vLs, ML + 2 * w_, ML + 2 * w_ + 1))
    def h_operands():
        for a in range(2):
            for r in range(4):
                A("v_and_b32 v%d, %s, v%d" % (HA + 4 * a + r, (vH0, vH1)[a], MK + r))
    A("v_log_f32 v%d, %s" % (G2 + 2, vLs))
    A("v_rcp_f32 %s, %s" % (vLs, vLs))
    if not o["hlate"]: h_operands()
    else: A("s_nop 0")
    if avote: A("v_add_u32 %s, v%d, %s" % (vL3, T + 30, vL3))
    A("v_add_f32 v%d, v%d, %s" % (G2 + 2, G2 + 2, vM))
    for w_ in range(4):
        A("v_mul_f32 v%d, v%d, %s" % (ML + 2 * w_, ML + 2 * w_, vLs))
    for i in range(o["b2"], 8): pv(i)
    stamp(5)
    if o.get("nosync"):
        A("s_waitcnt vmcnt(0)")
        stamp(6)
        A("s_branch L_done")
    A("s_nop 6")
    A("ds_write_b128 %s, v[%d:%d] offset:%d" % (vOW, O0, O0 + 3, L_O))
    A("ds_write_b128 %s, v[%d:%d] offset:%d" % (vOW, O1, O1 + 3, L_O + OH))
    A("s_waitcnt lgkmcnt(0)")
    A("s_barrier")
    if o["cq2"]:
        OB4, AC = VR, VR + 16
        A("s_mov_b32 exec_hi, 0")
        for w_ in range(4):
            A("ds_read_b128 v[%d:%d], %s offset:%d" % (OB4 + 4 * w_, OB4 + 4 * w_ + 3, vOR, L_O + w_ * OWV))
        A("s_bitcmp0_b32 %s, 0" % sFAST)
        for w_ in range(4):
            A("s_waitcnt lgkmcnt(%d)" % (3 - w_))
            for hf in range(2):
                if w_ == 0: A("v_pk_mul_f32 %s, %s, %s op_sel_hi:[1,0]" % (P2(AC + 2 * hf), P2(OB4 + 2 * hf), P2(ML)))
                else: A("v_pk_fma_f32 %s, %s, %s, %s op_sel_hi:[1,0,1]" % (P2(AC + 2 * hf), P2(OB4 + 4 * w_ + 2 * hf), P2(ML + 2 * w_), P2(AC + 2 * hf)))
    else:
        for w_ in range(4):
            A("ds_read_b64 v[%d:%d], %s offset:%d" % (OB + 2 * w_, OB + 2 * w_ + 1, vOR, L_O + w_ * 2048))
        A("s_bitcmp0_b32 %s, 0" % sFAST)
        for w_ in range(4):
            A("s_waitcnt lgkmcnt(%d)" % (3 - w_))
            op = "v_mul_f32" if w_ == 0 else "v_fmac_f32"
            A("%s v%d, v%d, v%d" % (op, G2, ML + 2 * w_, OB + 2 * w_))
            A("%s v%d, v%d, v%d" % (op, G2 + 1, ML + 2 * w_, OB + 2 * w_ + 1))
    tails = []
    def publish(addr, g, name):
        A("s_cbranch_scc1 L_slow_%s" % name)
        A("global_store_dwordx4 %s, v[%d:%d], %s %s" % (addr, g, g + 3, sWS, o.get("stfl", "")))
        LB("L_back_%s" % name)
        tails.append((name, addr, g))
    if o["cq2"]:
        A("v_cvt_pk_bf16_f32 v%d, v%d, v%d" % (G2, AC, AC + 1))
        A("v_cvt_pk_bf16_f32 v%d, v%d, v%d" % (G2 + 1, AC + 2, AC + 3))
    else:
        A("v_cvt_pk_bf16_f32 v%d, v%d, v%d" % (G2, G2, G2 + 1))
        A("s_nop 1")
        A("v_mov_b32_dpp v%d, v%d quad_perm:[1,1,3,3] %s" % (G2 + 1, G2, DPP))
        A("s_mov_b64 exec, s[54:55]")
    publish(vS2, G2, "h2")
    A("s_mov_b64 exec, -1")
    stamp(6)
    P = T
    for i in range(2):
        A("global_load_dwordx4 v[%d:%d], %s, %s offset:%d %s" % (P + 4 * i, P + 4 * i + 3, vL2, sWS, i * 1024, o.get("p2fl", "sc1")))
    for t_ in dnl: A(t_)
    if o["hlate"]:
        A("s_barrier")
        A("ds_read_b32 %s, %s offset:%d" % (vH0, vHA, L_H))
        A("ds_read_b32 %s, %s offset:%d" % (vH1, vHA, L_H + 16))
    A("s_mov_b32 %s, %d" % (sCNT, o["spinmax"]))
    vTAG = "v127"
    sT2 = sTAG
    if o["reuse"]:
        sT2 = "s62"
        A("s_not_b32 %s, %s" % (t0, sTAG))
        A("s_lshl_b32 %s, %s, 24" % (t0, t0))
        A("s_and_b32 s62, %s, 0xffffff" % sTAG)
        A("s_or_b32 s62, s62, %s" % t0)
    A("v_mov_b32 %s, %s" % (vTAG, sT2))
    for k in range(4):
        A("s_mov_b32 s%d, 0x%x" % (56 + k, 0x07060500 | k))
        A("s_bfe_u32 s%d, %s, 0x%x" % (60 + k if k < 2 else 50 + k, sT2, 0x80000 | (8 * k)))
    TB = ["s60", "s61", "s52", "s53"]
    if o["hlate"]:
        A("s_waitcnt lgkmcnt(0)")
        h_operands()
    ndn_early = 2 - len(dnl)
    if o["lastfin"] >= 2: soffs()
    if o.get("mockx"): ndn_early = 0
    else: A("s_waitcnt vmcnt(%d)" % (3 + len(dnl)))
    if o.get("dbgwo"): A("s_memrealtime s[68:69]")
    for a in range(ndn_early):
        mfma(Y, HA + 4 * a, DNR + 4 * a, None if a == 0 else Y)
    if dnl:
        A("s_waitcnt vmcnt(%d)" % len(dnl))
        A("s_branch L_chk2b")
    else:
        A("s_branch L_chk2")
    LB("L_poll2")
    MS = ["s[44:45]", "s[46:47]"]
    for i in range(2):
        if o["mask2"]: A("s_mov_b64 exec, %s" % MS[i])
        A("global_load_dwordx4 v[%d:%d], %s, %s offset:%d sc1" % (P + 4 * i, P + 4 * i + 3, vL2, sWS, i * 1024))
    if o["mask2"]: A("s_mov_b64 exec, -1")
    A("s_sub_u32 %s, %s, 1" % (sCNT, sCNT))
    A("s_cbranch_scc1 L_end")
    LB("L_chk2")
    A("s_waitcnt vmcnt(0)")
    LB("L_chk2b")
    A("v_max_f32 %s, v%d, v%d" % (vM, P + 2, P + 6))
    for i in range(2):
        A("v_cmp_ne_u32 %s, %s, v%d" % (MS[i], sTAG, P + 4 * i + 3))
    A("v_max_f32_dpp %s, %s, %s row_ror:4 %s" % (vM, vM, vM, DPP))
    A("s_or_b64 vcc, %s, %s" % (MS[0], MS[1]))
    A("s_cbranch_scc1 L_poll2")
    stamp(7)
    if o.get("tpos", "g") == "g":
        for t_ in taft: A(t_)
    sshot(1)
    U = T + 8
    def unp(i, k):
        if k & 1: A("v_and_b32 v%d, %s, v%d" % (U + 4 * i + k, t1, P + 4 * i + (k >> 1)))
        else: A("v_lshlrev_b32 v%d, 16, v%d" % (U + 4 * i + k, P + 4 * i + (k >> 1)))
    vt2 = "v126"
    A("v_max_f32_dpp %s, %s, %s row_ror:8 %s" % (vM, vM, vM, DPP))
    A("v_mov_b32 %s, %s" % (vt2, vM))
    unp(0, 0); unp(0, 1)
    A("v_permlane16_swap_b32 %s, %s" % (vt2, vM))
    A("v_max_f32 %s, %s, %s" % (vM, vM, vt2))
    A("v_mov_b32 %s, %s" % (vt2, vM))
    unp(0, 2); unp(0, 3)
    A("v_permlane32_swap_b32 %s, %s" % (vt2, vM))
    A("v_max_f32 %s, %s, %s" % (vM, vM, vt2))
    w0, w1 = "v120", "v122"
    A("v_sub_f32 %s, v%d, %s" % (w0, P + 2, vM))
    A("v_sub_f32 %s, v%d, %s" % (w1, P + 6, vM))
    A("v_exp_f32 %s, %s" % (w0, w0))
    A("v_exp_f32 %s, %s" % (w1, w1))
    unp(1, 0)
    den, tA, tB = "v126", "v124", "v123"
    A("v_add_f32 %s, %s, %s" % (den, w0, w1))
    unp(1, 1); unp(1, 2)
    A("v_add_f32_dpp %s, %s, %s row_ror:4 %s" % (den, den, den, DPP))
    unp(1, 3)
    A("v_pk_mul_f32 %s, %s, v[120:121] op_sel_hi:[1,0]" % (P2(U), P2(U)))
    A("v_add_f32_dpp %s, %s, %s row_ror:8 %s" % (den, den, den, DPP))
    A("v_pk_mul_f32 %s, %s, v[120:121] op_sel_hi:[1,0]" % (P2(U + 2), P2(U + 2)))
    A("v_pk_fma_f32 %s, %s, v[122:123], %s op_sel_hi:[1,0,1]" % (P2(U), P2(U + 4), P2(U)))
    A("v_pk_fma_f32 %s, %s, v[122:123], %s op_sel_hi:[1,0,1]" % (P2(U + 2), P2(U + 6), P2(U + 2)))
    A("v_mov_b32 %s, %s" % (tA, den))
    A("s_bitcmp0_b32 %s, 0" % sFAST)
    A("v_permlane32_swap_b32 v%d, v%d" % (U, U + 2))
    A("v_permlane32_swap_b32 v%d, v%d" % (U + 1, U + 3))
    A("v_permlane32_swap_b32 %s, %s" % (tA, den))
    A("v_pk_add_f32 %s, %s, %s" % (P2(U), P2(U), P2(U + 2)))
    A("v_add_f32 %s, %s, %s" % (den, den, tA))
    A("s_mov_b32 %s, %d" % (sCNT, o["spinmax"]))
    A("v_permlane16_swap_b32 v%d, v%d" % (U, U + 1))
    A("v_mov_b32 %s, %s" % (tA, den))
    A("v_add_f32 v%d, v%d, v%d" % (U, U, U + 1))
    A("s_nop 0")
    A("v_permlane16_swap_b32 %s, %s" % (tA, den))
    A("v_add_f32_dpp v%d, v%d, v%d row_ror:4 %s" % (U, U, U, DPP))
    A("v_add_f32 %s, %s, %s" % (den, den, tA))
    A("v_rcp_f32 %s, %s" % (den, den))
    A("v_add_f32_dpp v%d, v%d, v%d row_ror:8 %s" % (U, U, U, DPP))
    a0 = "v125"
    A("v_mul_f32 %s, v%d, %s" % (a0, U, den))
    A("v_cvt_pk_bf16_f32 %s, %s, %s" % (a0, a0, a0))
    if o.get("mockx"):
        GX, PXS = 120, VR
        A("v_mov_b32 v%d, %s" % (GX + 3, sTAG))
        A("s_cmp_gt_u32 %s, 1" % sW)
        A("v_mov_b32_dpp v%d, %s quad_perm:[0,0,2,2] %s" % (GX, a0, DPP))
        A("v_mov_b32_dpp v%d, %s quad_perm:[1,1,3,3] %s" % (GX + 1, a0, DPP))
        A("s_cselect_b64 exec, 0, 15")
        A("global_store_dwordx4 %s, v[%d:%d], %s sc1" % (vS3, GX, GX + 3, sWS))
        A("s_mov_b64 exec, -1")
        stamp(1)
        if o.get("tpos") == "x":
            for t_ in taft: A(t_)
        A("s_mov_b64 exec, 0xff")
        LB("L_pollx")
        A("global_load_dwordx4 v[%d:%d], %s, %s sc1" % (PXS, PXS + 3, vL3, sWS))
        A("s_sub_u32 %s, %s, 1" % (sCNT, sCNT))
        A("s_cbranch_scc1 L_end")
        A("s_waitcnt vmcnt(0)")
        A("v_cmp_ne_u32 vcc, %s, v%d" % (sTAG, PXS + 3))
        A("v_mov_b32 %s, v%d" % (a0, PXS))
        A("s_and_b64 exec, exec, vcc")
        A("s_cbranch_scc1 L_pollx")
        A("s_mov_b64 exec, -1")
        stamp(10)
        A("s_bitcmp0_b32 %s, 0" % sFAST)
        for a in range(2):
            mfma(Y, HA + 4 * a, DNR + 4 * a, None if a == 0 else Y)
        ndn_early = 2
    A("s_nop 1")
    WA = T
    for m in range(4):
        for r in range(4):
            A("v_and_b32_dpp v%d, %s, v%d row_newbcast:%d %s" % (WA + 4 * m + r, a0, MK + r, m, DPP))
        if m > 0:
            mfma(Y, WA + 4 * (m - 1), WOR + 4 * (m - 1), Y if (m > 1 or ndn_early) else None)
    if dnl:
        A("s_waitcnt vmcnt(0)")
        for a in range(ndn_early, 2):
            mfma(Y, HA + 4 * a, DNR + 4 * a, Y)
    else:
        A("s_nop 1")
    mfma(Y, WA + 12, WOR + 12, Y)
    A("s_mov_b32 exec_hi, 0")
    if o["reuse"]:
        A("s_barrier")
        A("s_nop 5")
    else:
        A("s_nop 6")
    for k in range(4):
        A("v_perm_b32 v%d, v%d, %s, s%d" % (Y + k, Y + k, vTAG, 56 + k))
    publish(vS25, Y, "h25")
    stamp(8)
    sshot(2)
    def tail_g25():
        PS = T + 16
        A("s_cmp_lg_u32 %s, %d" % (sW, o["gw"]))
        A("s_cbranch_scc1 L_done")
        A("s_mov_b64 exec, -1")
        if o.get("ack25") == 1: A("s_waitcnt vmcnt(0)")
        NP = o["np25"]
        PK = [PS, PS + 8, WOR, WOR + 8, DNR]
        def ask(k):
            A("global_load_dwordx4 v[%d:%d], %s, %s sc1" % (PK[k], PK[k] + 3, vL25, sWS))
            A("global_load_dwordx4 v[%d:%d], v164, %s sc1" % (PK[k] + 4, PK[k] + 7, sWS))
        def look(k):
            A("s_waitcnt vmcnt(%d)" % (2 * NP - 1))
            for q in range(4): A("v_xor_b32 v%d, %s, v%d" % (P + q, TB[q], PK[k] + q))
            A("v_or3_b32 %s, v%d, v%d, v%d" % (tA, P, P + 1, P + 2))
            A("s_waitcnt vmcnt(%d)" % (2 * NP - 2))
            for q in range(4): A("v_xor_b32 v%d, %s, v%d" % (P + 4 + q, TB[q], PK[k] + 4 + q))
            A("v_or3_b32 %s, %s, v%d, v%d" % (tA, tA, P + 3, P + 4))
            A("v_or3_b32 %s, %s, v%d, v%d" % (tA, tA, P + 5, P + 6))
            A("v_or_b32_sdwa %s, %s, v%d dst_sel:DWORD dst_unused:UNUSED_PAD src0_sel:BYTE_0 src1_sel:BYTE_0" % (tA, tA, P + 7))
            A("v_cmp_ne_u32 vcc, 0, %s" % tA)
            A("s_and_b64 exec, exec, vcc")
        def masks():
            A("s_lshl_b32 s46, 0x01010101, %s" % sH)
            A("s_not_b32 s46, s46")
            A("s_mov_b32 s47, s46")
            if o["cq25"]:
                A("s_lshr_b32 s41, %s, 2" % sJ)
                A("s_and_b32 s41, s41, 6")
                A("s_bfe_u32 %s, %s, 0x10001" % (t0, sJ))
                A("s_or_b32 s41, s41, %s" % t0)
        if NP == 1:
            masks()
            LB("L_poll25")
            ask(0)
            A("s_sub_u32 %s, %s, 1" % (sCNT, sCNT))
            A("s_cbranch_scc1 L_end")
            look(0)
            A("s_cbranch_scc1 L_poll25")
        else:
            pre = o.get("pre25", 1)
            for k in range(NP):
                if k == pre:
                    if o.get("ack25") == 2: A("s_waitcnt vmcnt(%d)" % (2 * pre))
                    for _ in range(o.get("stag25", 0)): A("s_nop 7")
                ask(k)
            masks()
            LB("L_poll25")
            for k in range(NP):
                look(k)
                A("s_cbranch_scc0 L_got25")
                ask(k)
            A("s_sub_u32 %s, %s, 1" % (sCNT, sCNT))
            A("s_cbranch_scc0 L_poll25")
            A("s_endpgm")
            LB("L_got25")
        A("s_mov_b64 exec, -1")
        stamp(9)
        if o.get("ampm"): A("s_memrealtime s[86:87]")
        x_, y_ = "v%d" % P, "v%d" % (P + 1)
        A("v_pk_add_f32 %s, %s, %s" % (P2(P), P2(P), P2(P + 4)))
        A("v_pk_add_f32 %s, %s, %s" % (P2(P + 2), P2(P + 2), P2(P + 6)))
        if o["cq25"]:
            A("s_cmp_eq_u32 s41, %s" % sH)
            A("s_nop 0")
        else:
            A("s_lshr_b32 %s, %s, 2" % (t0, sJ) if o["finhi"] else "s_and_b32 %s, %s, 7" % (t0, sJ))
            A("s_cmp_eq_u32 %s, %s" % (t0, sH))
        A("v_permlane32_swap_b32 v%d, v%d" % (P, P + 2))
        A("v_permlane32_swap_b32 v%d, v%d" % (P + 1, P + 3))
        A("v_pk_add_f32 %s, %s, %s" % (P2(P), P2(P), P2(P + 2)))
        A("v_mov_b32 v%d, %s" % (P + 3, sTAG))
        A("s_mov_b32 s44, 0xff")
        for rot_ in (4, 8):
            A("v_add_f32_dpp %s, %s, %s row_ror:%d %s" % (x_, x_, x_, rot_, DPP))
            A("v_add_f32_dpp %s, %s, %s row_ror:%d %s" % (y_, y_, y_, rot_, DPP))
            if rot_ == 4: A("s_mov_b32 s45, s44")
        A("v_mov_b32 v%d, %s" % (P + 4, x_))
        A("v_mov_b32 v%d, %s" % (P + 5, y_))
        A("s_nop 0")
        A("v_permlane16_swap_b32 v%d, %s" % (P + 4, x_))
        A("v_permlane16_swap_b32 v%d, %s" % (P + 5, y_))
        A("v_pk_add_f32 %s, %s, %s" % (P2(P), P2(P), P2(P + 4)))
        A("s_cbranch_scc1 L_final")
        A("s_mov_b64 exec, s[44:45]")
        A("global_store_dwordx4 %s, v[%d:%d], %s sc1" % (vS3, P, P + 3, sWS))
        A("s_branch L_done")
        LB("L_final")
        if o.get("stfin"): stamp(1)
        if o.get("xstag"): A("global_load_dword %s, %s, %s nt" % (vXP, vXF, sX))
        A("s_mov_b64 exec, s[46:47]")
        NP = o["np3"]
        PS = VR
        X = P + 4
        A("global_load_dwordx4 v[%d:%d], %s, %s sc1" % (PS, PS + 3, vL3, sWS))
        A("s_mov_b64 exec, -1")
        A("s_mov_b32 %s, %d" % (sCNT, o["spinmax"]))
        for q in range(4):
            for r in range(2):
                A("v_mov_b32_dpp v%d, v%d row_newbcast:%d row_mask:0x%x bank_mask:0x%x" % (X + r, P + r, q, (5, 10)[q >> 1], (3, 12)[q & 1]))
        if not o.get("xstag"):
            A("v_lshlrev_b32 v%d, 16, %s" % (P, vXP))
            A("v_and_b32 v%d, %s, %s" % (P + 1, t1, vXP))
            A("v_pk_add_f32 %s, %s, %s" % (P2(X), P2(X), P2(P)))
        A("s_mov_b32 s44, 0x01010101")
        A("s_mov_b32 s45, s44")
        A("s_mov_b64 exec, s[46:47]")
        for k in range(1, NP):
            if o.get("xstag") and k == 1: A("s_waitcnt vmcnt(1)")
            for _ in range(o.get("stag3", 0) + (2 if k > 1 and o.get("stag3") else 0)): A("s_nop 7")
            A("global_load_dwordx4 v[%d:%d], %s, %s sc1" % (PS + 4 * k, PS + 4 * k + 3, vL3, sWS))
        LB("L_poll3")
        for k in range(NP):
            A("s_waitcnt vmcnt(%d)" % (NP - 1))
            A("v_cmp_ne_u32 vcc, %s, v%d" % (sTAG, PS + 4 * k + 3))
            A("v_mov_b32 v%d, v%d" % (X, PS + 4 * k))
            A("v_mov_b32 v%d, v%d" % (X + 1, PS + 4 * k + 1))
            A("s_and_b64 exec, exec, vcc")
            A("s_cbranch_scc0 L_got3")
            A("global_load_dwordx4 v[%d:%d], %s, %s sc1" % (PS + 4 * k, PS + 4 * k + 3, vL3, sWS))
        A("s_sub_u32 %s, %s, 1" % (sCNT, sCNT))
        A("s_cbranch_scc0 L_poll3")
        A("s_endpgm")
        LB("L_got3")
        stamp(10)
        if o.get("ampf"):
            A("s_waitcnt vmcnt(0)")
            A("s_memrealtime s[86:87]")
        A("s_mov_b64 exec, -1")
        x_, y_ = "v%d" % X, "v%d" % (X + 1)
        fl = ["s_cmp_lg_u32 s2, 0", "s_nop 0"]
        if o.get("xstag"): fl = ["v_lshlrev_b32 %s, 16, %s" % (tA, vXP), "v_and_b32 %s, %s, %s" % (tB, t1, vXP)]
        for pat in ("quad_perm:[1,0,3,2]", "quad_perm:[2,3,0,1]", "row_half_mirror"):
            A("v_add_f32_dpp %s, %s, %s %s %s" % (x_, x_, x_, pat, DPP))
            A("v_add_f32_dpp %s, %s, %s %s %s" % (y_, y_, y_, pat, DPP))
            if fl: A(fl.pop(0))
        if o.get("xstag"):
            A("v_add_f32 %s, %s, %s" % (x_, x_, tA))
            A("v_add_f32 %s, %s, %s" % (y_, y_, tB))
            A("s_cmp_lg_u32 s2, 0")
        A("v_cvt_pk_bf16_f32 %s, %s, %s" % (x_, x_, y_))
        A("s_mov_b64 exec, s[44:45]")
        A("global_store_dword %s, %s, %s %s" % (vXF, x_, sOUT, o.get("ofl", "")))
        if o.get("ampf"):
            A("s_waitcnt vmcnt(0)")
            A("s_memrealtime s[88:89]")
            A("s_waitcnt lgkmcnt(0)")
            A("s_sub_u32 s88, s88, s86")
            A("s_mul_i32 s88, s88, 40")
            A("s_min_u32 s88, s88, 20000")
            A("s_add_u32 s88, s88, 1500")
            LB("L_fspin")
            A("s_memrealtime s[92:93]")
            A("s_waitcnt lgkmcnt(0)")
            A("s_sub_u32 s92, s92, s90")
            A("s_cmp_lt_u32 s92, s88")
            A("s_cbranch_scc1 L_fspin")
            A("s_cmp_lg_u32 s2, 0")
        A("s_cbranch_scc1 L_done")
        C("the next launch must not mistake this launch's hand-off words for its own")
        if o["efull"]:
            A("s_mov_b64 exec, 0xff")
            A("v_lshlrev_b32 %s, 4, v0" % tA)
            for q in range(4): A("v_mov_b32 v%d, %s" % (P + q, sTAG))
            A("global_store_dwordx4 %s, v[%d:%d], %s %s" % (tA, P, P + 3, sWS, o.get("efl", "")))
        else:
            A("s_mov_b64 exec, 1")
            A("v_mov_b32 %s, 0" % tA)
            A("v_mov_b32 %s, %s" % (tB, sTAG))
            A("global_store_dword %s, %s, %s %s" % (tA, tB, sWS, o.get("efl", "")))
    nkeep = len(L)
    NP = o["np25"]
    PS = T + 16
    if o.get("ack25") == 1: A("s_waitcnt vmcnt(0)")
    sshot(8)
    for _ in range(o.get("dly25", 0)): A("s_nop 7")
    for k in range(NP):
        if k == 1 and o.get("ack25") == 2: A("s_waitcnt vmcnt(1)")
        if k == 1:
            for _ in range(o.get("stag25", 0)): A("s_nop 7")
        A("global_load_dwordx4 v[%d:%d], %s, %s sc1" % (PS + 4 * k, PS + 4 * k + 3, vL25, sWS))
    sshot(4)
    LB("L_poll25")
    for k in range(NP):
        A("s_waitcnt vmcnt(%d)" % (NP - 1))
        for q in range(4):
            A("v_xor_b32 v%d, %s, v%d" % (P + q, TB[q], PS + 4 * k + q))
        A("v_or3_b32 %s, v%d, v%d, v%d" % (tA, P, P + 1, P + 2))
        A("v_or_b32_sdwa %s, %s, v%d dst_sel:DWORD dst_unused:UNUSED_PAD src0_sel:BYTE_0 src1_sel:BYTE_0" % (tA, tA, P + 3))
        A("v_cmp_ne_u32 vcc, 0, %s" % tA)
        if o["mask25"]:
            A("s_and_b64 exec, exec, vcc")
            A("s_cbranch_scc0 L_got25")
        else:
            A("s_cbranch_vccz L_got25")
        A("global_load_dwordx4 v[%d:%d], %s, %s sc1" % (PS + 4 * k, PS + 4 * k + 3, vL25, sWS))
    A("s_sub_u32 %s, %s, 1" % (sCNT, sCNT))
    A("s_cbranch_scc0 L_poll25")
    A("s_endpgm")
    LB("L_got25")
    A("s_mov_b64 exec, -1")
    stamp(9)
    if o.get("ampm"): A("s_memrealtime s[86:87]")
    x_, y_ = "v%d" % P, "v%d" % (P + 1)
    A("v_permlane16_swap_b32 v%d, v%d" % (P, P + 2))
    A("v_permlane16_swap_b32 v%d, v%d" % (P + 1, P + 3))
    A("v_add_f32 %s, %s, v%d" % (x_, x_, P + 2))
    A("v_add_f32 %s, %s, v%d" % (y_, y_, P + 3))
    fl = ["v_mov_b32 v%d, %s" % (P + 3, sTAG), "s_and_b32 %s, %s, 7" % (t0, sJ), "s_cmp_eq_u32 %s, %s" % (t0, sH), "s_nop 0"]
    if o["lastfin"]: fl = ["v_mov_b32 v%d, %s" % (P + 3, sTAG), "s_bitcmp1_b32 %s, 1" % sFAST, "s_nop 0", "s_nop 0"]
    for rot_ in (1, 2, 4, 8):
        A(fl.pop(0))
        A("v_add_f32_dpp %s, %s, %s row_ror:%d %s" % (x_, x_, x_, rot_, DPP))
        A("v_add_f32_dpp %s, %s, %s row_ror:%d %s" % (y_, y_, y_, rot_, DPP))
    def old_final():
        if o.get("ewg"): A("s_xor_b32 s63, s2, %d" % o["ewg"])
        if o.get("otouch"):
            A("global_load_dword v158, %s, %s" % (vXF, sOUT))
        if o.get("xstag"): A("global_load_dword %s, %s, %s %s" % (vXP, vXF, sX, o["xstag"] if isinstance(o["xstag"], str) else "nt"))
        A("s_lshl_b32 %s, 0x10001, %s" % (t0, sH))
        A("s_andn2_b32 exec_lo, 0xff00ff, %s" % t0)
        A("s_mov_b32 exec_hi, 0")
        A("s_mov_b32 %s, %d" % (sCNT, o["spinmax"]))
        NP = o["np3"]
        PS = VR
        if o["lastfin"] == 2 and o.get("sshot", 2):
            A("s_waitcnt lgkmcnt(0)")
            for k in range(1, 8): A("s_xor_b32 s%d, s%d, %s" % (12 + k, 12 + k, sTAG))
            A("s_or_b32 s13, s13, s14")
            A("s_or_b64 s[16:17], s[16:17], s[18:19]")
            A("s_or_b32 s13, s13, s15")
            A("s_or_b32 s16, s16, s17")
            if o["stamps"]: A("s_memrealtime s[68:69]")
            A("s_or_b32 s13, s13, s16")
            if o["stamps"]: A("s_cselect_b32 s66, 1, 2")
            A("s_cbranch_scc1 L_ask3")
            A("global_load_dwordx4 v[%d:%d], %s, %s %s" % (PS, PS + 3, vL3, sWS, o.get("hfl", "")))
            A("s_branch L_poll3")
            LB("L_ask3")
        for k in range(NP):
            if o.get("xstag") and k == 1: A("s_waitcnt vmcnt(1)")
            A("global_load_dwordx4 v[%d:%d], %s, %s sc1" % (PS + 4 * k, PS + 4 * k + 3, vL3, sWS))
        LB("L_poll3")
        for k in range(NP):
            A("s_waitcnt vmcnt(%d)" % (NP - 1))
            A("v_cmp_ne_u32 vcc, %s, v%d" % (sTAG, PS + 4 * k + 3))
            A("v_mov_b32 v%d, v%d" % (P, PS + 4 * k))
            A("v_mov_b32 v%d, v%d" % (P + 1, PS + 4 * k + 1))
            A("s_and_b64 exec, exec, vcc")
            A("s_cbranch_scc0 L_got3")
            A("global_load_dwordx4 v[%d:%d], %s, %s sc1" % (PS + 4 * k, PS + 4 * k + 3, vL3, sWS))
        A("s_sub_u32 %s, %s, 1" % (sCNT, sCNT))
        A("s_cbranch_scc0 L_poll3")
        A("s_endpgm")
        LB("L_got3")
        stamp(10)
        A("s_mov_b32 exec_lo, -1")
        A("v_lshlrev_b32 %s, 16, %s" % (tA, vXP))
        A("v_and_b32 %s, %s, %s" % (tB, t1, vXP))
        for pat in ("quad_perm:[1,0,3,2]", "quad_perm:[2,3,0,1]", "row_half_mirror"):
            A("v_add_f32_dpp %s, %s, %s %s %s" % (x_, x_, x_, pat, DPP))
            A("v_add_f32_dpp %s, %s, %s %s %s" % (y_, y_, y_, pat, DPP))
            if pat != "row_half_mirror": A("s_nop 0")
        A("v_add_f32 %s, %s, %s" % (x_, x_, tA))
        A("v_add_f32 %s, %s, %s" % (y_, y_, tB))
        if o.get("perturb"):
            import struct
            bits = struct.unpack("<I", struct.pack("<f", float(o["perturb"])))[0]
            if o.get("pall"):
                A("v_mul_f32 %s, 0x%x, %s" % (x_, bits, x_)); A("v_mul_f32 %s, 0x%x, %s" % (y_, bits, y_))
            else:
                A("s_or_b32 %s, s2, %s" % (t0, sW))
                A("s_cselect_b32 %s, 0, 0x%x" % (t0, bits))
                A("v_add_f32 %s, %s, %s" % (x_, t0, x_))
        A("v_cvt_pk_bf16_f32 %s, %s, %s" % (x_, x_, y_))
        A("s_mov_b64 exec, 0x10001")
        A("global_store_dword %s, %s, %s %s" % (vXF, x_, sOUT, o.get("ofl", "")))
        A("s_or_b32 %s, %s, %s" % (t0, sJ if o["lastfin"] else "s2" if not o.get("ewg") else "s63", sW))
        A("s_cbranch_scc1 L_done")
        C("the next launch must not mistake this launch's hand-off words for its own")
        A("v_mov_b32 %s, 0" % tA)
        A("v_mov_b32 %s, %s" % (tB, sTAG))
        A("global_store_dword %s, %s, %s %s" % (tA, tB, sWS, o.get("efl", "")))
    def diag_end():
        if o.get("ampm"):
            A("s_or_b32 %s, %s, %s" % (t0, sJ, sW))
            A("s_cbranch_scc1 L_nom")
            A("s_mov_b64 exec, -1")
            A("s_waitcnt lgkmcnt(0)")
            A("s_lshl_b32 %s, %s, 2" % (t0, sH))
            A("v_mov_b32 v2, %s" % t0)
            A("s_or_b32 s86, s86, 1")
            A("v_mov_b32 v3, s86")
            A("global_store_dword v2, v3, s[24:25] offset:192 sc1")
            A("s_cmp_lg_u32 s2, 0")
            A("s_cbranch_scc1 L_nom")
            A("v_and_b32 v2, 7, v0")
            A("v_lshlrev_b32 v2, 2, v2")
            A("s_movk_i32 s85, 1000")
            LB("L_mpoll")
            A("global_load_dword v3, v2, s[24:25] offset:192 sc1")
            A("global_load_dword v4, v2, s[24:25] offset:128 sc1")
            A("s_sub_u32 s85, s85, 1")
            A("s_cbranch_scc1 L_nom")
            A("s_waitcnt vmcnt(0)")
            A("v_cmp_eq_u32 vcc, 0, v3")
            A("s_cbranch_vccnz L_mpoll")
            for g_ in range(8): A("v_readlane_b32 s%d, v3, %d" % (64 + g_, g_))
            for g_ in range(8): A("v_readlane_b32 s%d, v4, %d" % (72 + g_, g_))
            A("s_nop 3")
            for g_ in range(16): A("s_sub_u32 s%d, s%d, s90" % (64 + g_, 64 + g_))
            md = o["ampm"]
            if md >= 10:
                for g_ in range(8): A("s_mov_b32 s%d, s%d" % (64 + g_, 72 + g_))
                md -= 10
            key = {1: 64, 2: 72}.get(md)
            A("s_mov_b32 s80, s64")
            A("s_mov_b32 s81, s%d" % (key or 64))
            A("s_mov_b32 s82, 0x80000000")
            for g_ in range(1, 8):
                if key:
                    A("s_cmp_gt_i32 s%d, s81" % (key + g_))
                    A("s_cselect_b32 s83, s80, s%d" % (64 + g_))
                    A("s_cselect_b32 s80, s%d, s80" % (64 + g_))
                    A("s_cselect_b32 s81, s%d, s81" % (key + g_))
                    A("s_max_i32 s82, s82, s83")
                else:
                    A("s_max_i32 s82, s82, s%d" % (64 + g_))
            A("s_sub_i32 s88, s80, s82")
            A("s_add_i32 s88, s88, 100")
            A("s_max_i32 s88, s88, 0")
            A("s_mul_i32 s88, s88, 20")
            A("s_min_u32 s88, s88, 20000")
            A("s_add_u32 s88, s88, 1500")
            LB("L_mspin")
            A("s_memrealtime s[92:93]")
            A("s_waitcnt lgkmcnt(0)")
            A("s_sub_u32 s92, s92, s90")
            A("s_cmp_lt_u32 s92, s88")
            A("s_cbranch_scc1 L_mspin")
            LB("L_nom")
        if o.get("lateh") is not None:
            A("s_or_b32 %s, s2, %s" % (t0, sW))
            A("s_cbranch_scc1 L_nolate")
            A("s_mov_b64 exec, -1")
            A("v_and_b32 v2, 7, v0")
            A("v_lshlrev_b32 v2, 2, v2")
            A("global_load_dword v3, v2, s[24:25] sc1")
            A("s_waitcnt vmcnt(0)")
            for g_ in range(8): A("v_readlane_b32 s%d, v3, %d" % (64 + g_, g_))
            A("s_nop 3")
            for g_ in range(8): A("s_sub_u32 s%d, s%d, s90" % (64 + g_, 64 + g_))
            A("s_mov_b32 s72, s64")
            for g_ in range(1, 8): A("s_min_i32 s72, s72, s%d" % (64 + g_))
            if o["lateh"] == 8:
                A("s_mov_b32 s88, s64")
                for g_ in range(1, 8): A("s_max_i32 s88, s88, s%d" % (64 + g_))
            else:
                A("s_mov_b32 s88, s%d" % (64 + o["lateh"]))
            A("s_sub_u32 s88, s88, s72")
            A("s_mul_i32 s88, s88, 20")
            A("s_min_u32 s88, s88, 20000")
            A("s_add_u32 s88, s88, 1500")
            A("s_add_u32 s88, s88, s72")
            LB("L_latespin")
            A("s_memrealtime s[92:93]")
            A("s_waitcnt lgkmcnt(0)")
            A("s_sub_u32 s92, s92, s90")
            A("s_cmp_lt_u32 s92, s88")
            A("s_cbranch_scc1 L_latespin")
            LB("L_nolate")
        amp_end("")
        if o.get("pad"):
            LB("L_padspin")
            A("s_memrealtime s[92:93]")
            A("s_waitcnt lgkmcnt(0)")
            A("s_sub_u32 s92, s92, s90")
            A("s_cmp_lt_u32 s92, %d" % o["pad"])
            A("s_cbranch_scc1 L_padspin")
    if o.get("mockx"):
        A("v_lshlrev_b32 %s, 16, %s" % (tA, vXP))
        A("v_and_b32 %s, %s, %s" % (tB, t1, vXP))
        A("v_add_f32 %s, %s, %s" % (x_, x_, tA))
        A("v_add_f32 %s, %s, %s" % (y_, y_, tB))
        A("v_cvt_pk_bf16_f32 %s, %s, %s" % (x_, x_, y_))
        A("s_mov_b64 exec, 0x10001")
        A("s_cbranch_scc0 L_done")
        A("global_store_dword %s, %s, %s" % (vXF, x_, sOUT))
        A("s_or_b32 %s, s2, %s" % (t0, sW))
        A("s_cbranch_scc1 L_done")
        A("v_mov_b32 %s, 0" % tA)
        A("v_mov_b32 %s, %s" % (tB, sTAG))
        A("global_store_dword %s, %s, %s" % (tA, tB, sWS))
        A("s_branch L_done")
    A("s_cbranch_scc1 L_final")
    A("s_mov_b64 exec, 0x%x" % (0x30003 if o["rep3"] or o["vote"] else 0x10001))
    A("global_store_dwordx4 %s, v[%d:%d], %s sc1" % (vS3, P, P + 3, sWS))
    if o.get("wb"):
        A("s_or_b32 %s, %s, %s" % (t0, sW, sJ) if o["wb"] == 1 else "s_and_b32 %s, %s, 3" % (t0, sW))
        A("s_cmp_lg_u32 %s, %d" % (t0, 8 if o["wb"] == 1 else 0))
        A("s_cbranch_scc1 L_done")
        A("buffer_wbl2 sc1")
    A("s_branch L_done")
    LB("L_final")
    if o["lastfin"] == 1:
        A("s_mov_b64 exec, 0x10001")
        A("ds_write_b128 %s, v[%d:%d] offset:%d" % (vL3, P, P + 3, L_FIN))
        A("s_waitcnt lgkmcnt(0)")
    else:
        old_final()
    if o["g25"]:
        del L[nkeep:]
        tail_g25()
    LB("L_done")
    diag_end()
    dump_stamps()
    A("s_endpgm")
    for name, addr, g in tails:
        LB("L_slow_%s" % name)
        A("global_store_dwordx4 %s, v[%d:%d], %s sc1" % (addr, g, g + 3, sWS))
        A("s_branch L_back_%s" % name)
    if o["lastfin"] == 1: unit_final()
    LB("L_end")
    A("s_endpgm")
    head = HEADER.format(lds=o.get("lds", LDS_BYTES), k=KNAME); foot = FOOTER.format(k=KNAME, vg=o.get("vg", 168), sg=96)
    if o["align"]: L = align_runs(L, head, foot, o.get("minrun", 3), o.get("nopmin", 6))
    return head + "\n".join(L) + foot


if __name__ == "__main__":
    kw = {}
    out = "parallel_sum__sliding_block_cached__swiglu_ffn__decode.s"
    for a in sys.argv[1:]:
        k, v = a.split("=", 1)
        if k == "out": out = v; continue
        try: v = int(v) if k != "nlv" else v
        except ValueError: pass
        kw[k] = v
    open(out, "w").write(gen(**kw))
```

```python
import sys

KNAME = "parallel_sum__sliding_block_cached__swiglu_ffn__decode_kernel"

HEADER = """; Kernarg layout for this problem (96 bytes, ptrs only, base s[0:1]):
;   offset  72: d_out     shape=(1, 1, 512) dtype=bfloat16
; @launch grid=(256,1,1) block=(320,1,1) lds={lds}
.amdgcn_target "amdgcn-amd-amdhsa--gfx950"
.text
.globl {k}
.p2align 8
.type {k},@function
{k}:
"""
FOOTER = """
.section .rodata,"a"
.p2align 6
.amdhsa_kernel {k}
  .amdhsa_next_free_vgpr {vg}
  .amdhsa_next_free_sgpr {sg}
  .amdhsa_accum_offset {vg}
  .amdhsa_group_segment_fixed_size 0
  .amdhsa_kernarg_size 96
  .amdhsa_user_sgpr_count 2
  .amdhsa_user_sgpr_kernarg_segment_ptr 1
  .amdhsa_system_sgpr_workgroup_id_x 1
.end_amdhsa_kernel
"""

MB1A = 0x40000
MB1B = 0x80000
MB2 = 0x100000
MB25 = 0x400000
MB3 = 0x1C0000
STAMPS = 0x10000000
L_WQ = 0
L_FF = 16384
L_XN = 32768
L_Q = 33792
L_H = 34816
L_FLAG = 34848
L_VOTE = 34864
L_ML = 34880
L_TKT = 35008
L_FIN = L_XN
L_O = 35072
L_K = L_O + 8192
L_K = (L_K + 1023) // 1024 * 1024
LDS_BYTES = L_K + 32768
TAGC = 0x9E3779B9
LOG2E = 0x3FB8AA3B
SCALE = 0x3DB504F3
EPS = 0x3727C5AC
DPP = "row_mask:0xf bank_mask:0xf"

DEF = dict(stamps=False, spinmax=200000, WK=5, W=6, Wtail=8, b0pos=45, nt="nt", pretouch="k", atries=24,
           prefetch=True, b2=7, ntail0=0, tlag=0, mask2=False, pt1=True, rotm=4, rep3=False, tsp="a", auxearly=True, hlate=False, vote=True, np25=2, np3=6, ack25=2, align=1, unr=2, mask25=True, lperm=0, nlv="43434343", reuse=1, rp=2176, bonly=0, bdefer=4, bskip=1, lastfin=0, npu=1, stag=0, g25=1, gw=0, pt3=1, finhi=1, efull=0, stouch=0, cq2=0, cq25=0, vlate=1, idearly=0, adap="", Wa=6, stl=0, tw=0)


def _sizes(text):
    import subprocess, tempfile, os, re
    d = tempfile.mkdtemp()
    open(d + "/a.s", "w").write(text)
    subprocess.run(["clang", "-x", "assembler", "-target", "amdgcn-amd-amdhsa", "-mcpu=gfx950", "-c", d + "/a.s", "-o", d + "/a.o"], check=True)
    out = subprocess.run(["llvm-objdump", "-d", "--mcpu=gfx950", d + "/a.o"], capture_output=True, text=True).stdout
    r = []
    for ln in out.split("\n"):
        m = re.search(r"^\s+(\S+).*// ([0-9A-F]{12}): ((?:[0-9A-F]{8} ?)+)", ln)
        if m: r.append((m.group(1), 4 * len(m.group(3).split())))
    return r


def align_runs(L, head, foot, minrun=3, nopmin=6):
    ins = [i for i, l in enumerate(L) if l.startswith("    ") and not l.strip().startswith(";")]
    sz = _sizes(head + "\n".join(L) + foot)
    assert len(sz) == len(ins), (len(sz), len(ins))
    size = {i: s_[1] for i, s_ in zip(ins, sz)}
    mn = {i: s_[0] for i, s_ in zip(ins, sz)}
    out = list(L); extra = {}
    off = 0; k = 0
    while k < len(ins):
        i = ins[k]
        if size[i] == 8 and off % 8 == 4:
            run = 0
            while k + run < len(ins) and size[ins[k + run]] == 8: run += 1
            if run >= minrun:
                b = k - 1; done = False
                while b >= 0 and size[ins[b]] == 4:
                    j = ins[b]
                    if mn[j] == "s_nop" and int(out[j].split()[1]) >= 1:
                        out[j] = "    s_nop 0\n    s_nop %d" % (int(out[j].split()[1]) - 1)
                        size[j] = 8; off += 4; done = True
                        break
                    if mn[j].endswith("_e32") and not mn[j].startswith(("v_readfirstlane", "v_permlane")):
                        op = out[j].split()[0]
                        out[j] = out[j].replace(op, op.replace("_e32", "") + "_e64", 1)
                        size[j] = 8; off += 4; done = True
                        break
                    b -= 1
                if not done and run >= nopmin and k > 0 and not mn[ins[k - 1]].startswith(("s_branch", "s_endpgm")):
                    extra[i] = True; off += 4; done = True
                if not done and k > 0 and mn[ins[k - 1]].startswith(("s_branch", "s_endpgm")):
                    extra[ins[k - 1] + 1] = True; off += 4
            for q in range(run): off += 8
            k += run
            continue
        off += size[i]; k += 1
    res = []
    for i, l in enumerate(out):
        if i in extra: res.append("    s_nop 0")
        res.append(l)
    return res


def gen(**kw):
    o = dict(DEF); o.update(kw)
    MB3 = o.get("mb3", globals()["MB3"])
    L = []
    def A(s): L.append("    " + s)
    def LB(s): L.append(s + ":")
    def C(s): L.append("    ; " + s)
    nt = o["nt"]
    NSTAMP = 12
    role = ["U"]
    def stamp(i):
        if o.get("amp") == "%s%d" % (role[0], i): A("s_memrealtime s[88:89]" if not o.get("cyc") else "s_memtime s[88:89]")
        if o.get("ampg") == "%s%d" % (role[0], i): A("s_memrealtime s[86:87]")
        if o.get("amp0") == "%s%d" % (role[0], i): A("s_memrealtime s[86:87]" if not o.get("cyc") else "s_memtime s[86:87]")
        if o["stamps"] and (i in (0, 11) or o.get("sel") is None or ("%s%d" % (role[0], i)) in o["sel"].split(",")):
            A("s_memrealtime s[%d:%d]" % (64 + 2 * i, 65 + 2 * i))
    def mfma(d, a, b, c):
        A("v_mfma_f32_16x16x32_bf16 v[%d:%d], v[%d:%d], v[%d:%d], %s" % (d, d + 3, a, a + 3, b, b + 3, "0" if c is None else "v[%d:%d]" % (c, c + 3)))
    def mfma16(d, a, b, c):
        A("v_mfma_f32_16x16x16_bf16 v[%d:%d], v[%d:%d], v[%d:%d], %s" % (d, d + 3, a, a + 1, b, b + 1, "0" if c is None else "v[%d:%d]" % (c, c + 3)))
    def allred(v, tmp, op, which):
        A("v_mov_b32 %s, %s" % (tmp, v))
        A("s_nop 1")
        A("v_permlane%d_swap_b32 %s, %s" % (which, tmp, v))
        A("%s %s, %s, %s" % (op, v, v, tmp))
    sX, sK, sV, sWQ, sWO, sG, sU, sDN, sOUT, sWS = "s[4:5]", "s[6:7]", "s[8:9]", "s[10:11]", "s[12:13]", "s[16:17]", "s[18:19]", "s[20:21]", "s[22:23]", "s[26:27]"
    sW, sH, sJ, sTAG, sXCC, sCNT, sFAST = "s30", "s31", "s32", "s33", "s34", "s35", "s36"
    t0, t1, t2, t3 = "s37", "s38", "s39", "s40"
    def dump_stamps():
        if not o["stamps"]: return
        if role[0] == "U" and o.get("sel") is not None and "U" not in o["sel"]: return
        A("s_mov_b64 exec, 1")
        if o.get("endwait"): A("s_waitcnt vmcnt(0)")
        stamp(11)
        A("s_waitcnt lgkmcnt(0)")
        A("s_mul_i32 %s, s2, 5" % t0)
        A("s_add_u32 %s, %s, %s" % (t0, t0, sW))
        A("s_lshl_b32 %s, %s, 7" % (t0, t0))
        A("s_add_u32 %s, %s, 0x%x" % (t0, t0, STAMPS))
        A("v_mov_b32 v2, %s" % t0)
        for i in range(NSTAMP):
            A("v_mov_b32 v3, s%d" % (64 + 2 * i))
            A("global_store_dword v2, v3, %s offset:%d" % (sWS, 4 * i))
        A("v_mov_b32 v3, %s" % ("s63" if role[0] == "U" and o["vote"] else sCNT))
        A("global_store_dword v2, v3, %s offset:%d" % (sWS, 4 * NSTAMP))
        if o.get("dbgfail"):
            for q_, r_ in enumerate(("s84", "s62", "s63")):
                A("v_mov_b32 v3, %s" % r_)
                A("global_store_dword v2, v3, %s offset:%d" % (sWS, 4 * NSTAMP + 8 + 4 * q_))
        A("s_getreg_b32 %s, hwreg(HW_REG_HW_ID)" % t1)
        A("v_mov_b32 v3, %s" % t1)
        A("global_store_dword v2, v3, %s offset:%d" % (sWS, 4 * NSTAMP + 4))

    def amp_end(sfx):
        if o.get("ampg"):
            A("s_waitcnt vmcnt(0) lgkmcnt(0)")
            A("s_memrealtime s[88:89]")
            A("s_mov_b64 exec, -1")
            A("v_and_b32 v2, 7, v0")
            A("v_lshlrev_b32 v2, 2, v2")
            A("global_load_dword v3, v2, s[24:25] offset:128 sc1")
            A("s_waitcnt vmcnt(0) lgkmcnt(0)")
            for g_ in range(8): A("v_readlane_b32 s%d, v3, %d" % (64 + g_, g_))
            A("s_nop 3")
            if o["ampg"] != 1:
                for g_ in range(8): A("s_sub_u32 s%d, s86, s%d" % (64 + g_, 64 + g_))
                for g_ in range(1, 8): A("s_max_i32 s64, s64, s%d" % (64 + g_))
                A("s_sub_u32 s88, s86, s64")
                A("s_mul_i32 s64, s64, 10")
            else:
                for g_ in range(8): A("s_sub_u32 s%d, s88, s%d" % (64 + g_, 64 + g_))
                for g_ in range(1, 8): A("s_max_i32 s64, s64, s%d" % (64 + g_))
                A("s_mul_i32 s64, s64, 9")
            A("s_min_u32 s64, s64, 20000")
            A("s_add_u32 s64, s64, 1500")
            LB("L_ampgspin" + sfx)
            A("s_memrealtime s[92:93]")
            A("s_waitcnt lgkmcnt(0)")
            A("s_sub_u32 s92, s92, s88")
            A("s_cmp_lt_u32 s92, s64")
            A("s_cbranch_scc1 L_ampgspin" + sfx)
        if o.get("amp"):
            if o["amp"] == "end": A("s_memrealtime s[88:89]")
            A("s_waitcnt lgkmcnt(0)")
            A("s_sub_u32 s88, s88, %s" % ("s86" if o.get("amp0") else "s90"))
            A("s_mul_i32 s88, s88, %d" % o.get("ampk", 10))
            A("s_min_u32 s88, s88, 20000")
            A("s_add_u32 s88, s88, 1500")
            LB("L_ampspin" + sfx)
            A("s_memrealtime s[92:93]")
            A("s_waitcnt lgkmcnt(0)")
            A("s_sub_u32 s92, s92, s90")
            A("s_cmp_lt_u32 s92, s88")
            A("s_cbranch_scc1 L_ampspin" + sfx)
    nlv = [int(c) for c in str(o["nlv"])]
    assert len(nlv) == 8 and sum(nlv) == 28 and min(nlv) >= 0 and max(nlv) <= 4
    LUT_d = sum((4 - n) << (4 * i) for i, n in enumerate(nlv))
    LUT_D = sum((4 * i - sum(nlv[:i])) << (4 * i) for i in range(8))
    def ffn_share(l0, d):
        A("s_lshl_b32 %s, %s, 2" % (l0, sH))
        A("s_lshr_b32 %s, 0x%x, %s" % (d, LUT_D, l0))
        A("s_and_b32 %s, %s, 7" % (d, d))
        A("s_sub_u32 s3, %s, %s" % (l0, d))
        A("s_lshr_b32 %s, 0x%x, %s" % (d, LUT_d, l0))
        A("s_and_b32 %s, %s, 7" % (d, d))
    stamp(0)
    if o.get("pad") or o.get("bal") or o.get("amp") or o.get("ampg") or o.get("ampm") or o.get("ampf") or o.get("lateh") is not None: A("s_memrealtime s[90:91]")
    A("s_cmp_ge_u32 s2, 256")
    A("s_cbranch_scc1 L_end")
    A("s_load_dwordx16 s[4:19], s[0:1], 0")
    A("s_load_dwordx8 s[20:27], s[0:1], 64")
    A("v_lshrrev_b32 v1, 6, v0")
    A("v_and_b32 v0, 63, v0")
    A("v_readfirstlane_b32 %s, v1" % sW)
    A("s_and_b32 %s, s2, 7" % sH)
    A("s_lshr_b32 %s, s2, 3" % sJ)
    if o.get("bal") or o.get("lateh") is not None or o.get("ampg") or o.get("ampm"):
        A("s_or_b32 %s, %s, %s" % (t0, sJ, sW))
        A("s_cbranch_scc1 L_noflag")
        A("s_lshl_b32 %s, %s, 2" % (t0, sH))
        A("v_mov_b32 v108, %s" % t0)
        A("s_waitcnt lgkmcnt(0)")
        A("s_or_b32 %s, s90, 1" % t0)
        A("v_mov_b32 v109, %s" % t0)
        A("global_store_dword v108, v109, s[24:25] offset:%d sc1" % (128 if o.get("ampg") or o.get("ampm") else 0))
        LB("L_noflag")
    A("s_cmp_eq_u32 %s, 4" % sW)
    A("s_cbranch_scc0 %s" % ("L_race" if o["vote"] else "L_attn"))

    C("wave 4: layernorm, one [128 x 64] tile of wq and one of gate/up, exchange of q and of the FFN hidden values")
    A("s_setprio 3")
    if o["idearly"] == 1:
        A("v_mov_b32 v2, 0")
        A("v_and_b32 v3, 12, v0")
        A("ds_write_b32 v3, v2 offset:%d" % L_VOTE)
    if o["prefetch"]:
        A("s_getpc_b64 s[28:29]")
        LB("L_pc")
        A("v_lshlrev_b32 v2, 7, v0")
        A("v_min_u32 v2, L_end-L_pc, v2")
        A("global_load_dword v127, v2, s[28:29]")
    sQK, sNOFF = "s50", "s51"
    A("v_lshlrev_b32 v3, 4, v0")
    A("v_lshrrev_b32 v6, 3, v0")
    A("v_and_b32 v5, 2, v6")
    A("v_and_b32 v7, 7, v0")
    A("v_xor_b32 v5, v5, v7")
    A("v_lshlrev_b32 v7, 4, v5")
    A("s_and_b32 %s, %s, 3" % (sQK, sJ))
    A("s_lshl_b32 %s, %s, 10" % (t0, sH))
    if o["lperm"]:
        A("s_andn2_b32 %s, %s, 3" % (t1, sJ))
        A("s_lshr_b32 %s, 0x%x, %s" % (t1, o["lperm"], t1))
        A("s_and_b32 s55, %s, 7" % t1)
    else:
        A("s_lshr_b32 s55, %s, 2" % sJ)
    A("s_lshl_b32 %s, s55, 7" % t1)
    A("s_lshl_b32 %s, %s, 20" % (t2, sQK))
    A("s_add_u32 %s, %s, %s" % (t0, t0, t1))
    A("s_add_u32 %s, %s, %s" % (t0, t0, t2))
    A("v_lshl_add_u32 v4, v6, 13, v7")
    A("v_add_u32 v4, %s, v4" % t0)
    A("v_xor_b32 v5, 64, v4")
    A("v_add_u32 v5, 0x10000, v5")
    A("s_mov_b32 m0, %d" % L_WQ)
    A("s_mov_b32 %s, 0x20000" % t1)
    if o.get("ucontig"):
        A("s_lshl_b32 %s, s2, 10" % t0)
        A("v_add_u32 v4, %s, v3" % t0)
        A("v_add_u32 v5, 0x40000, v4")
        A("s_mov_b32 %s, 0x80000" % t1)
    A("s_movk_i32 s41, 1024")
    A("s_waitcnt lgkmcnt(0)")
    A("global_load_dwordx4 v[8:11], v3, %s" % sX)
    A("s_load_dword %s, %s, 0" % (sTAG, sWS))
    def dma_loop(name, base, step):
        A("s_mov_b32 %s, %d" % (t2, 16 // o["unr"]))
        LB(name)
        for i in range(o["unr"]):
            vv = ("v4", "v5")[i & 1]
            A("global_load_lds_dwordx4 %s, %s %s" % (vv, base, nt))
            A("s_add_u32 m0, m0, s41")
            A("v_add_u32 %s, %s, %s" % (vv, step, vv))
        A("s_sub_u32 %s, %s, 1" % (t2, t2))
        A("s_cmp_lg_u32 %s, 0" % t2)
        A("s_cbranch_scc1 %s" % name)
    dma_loop("L_wq_loop", sWQ, t1)
    if o["b0pos"] == 16: A("s_barrier")
    ffn_share(t0, t3)
    A("s_lshr_b32 %s, %s, 3" % (t1, sJ))
    A("s_add_u32 %s, s3, %s" % (t0, t1))
    A("s_add_u32 %s, %s, %s" % (sNOFF, t1, t3))
    A("s_mul_i32 %s, %s, 3584" % (t1, sQK))
    A("s_add_u32 %s, %s, %s" % (t0, t0, t1))
    A("s_lshl_b32 %s, %s, 7" % (t0, t0))
    A("v_mul_u32_u24 v4, 3584, v6")
    A("v_add3_u32 v4, v4, v7, %s" % t0)
    A("v_xor_b32 v5, 64, v4")
    A("v_add_u32 v5, %d, v5" % (8 * 3584))
    A("s_mov_b32 %s, %d" % (t1, 16 * 3584))
    if o.get("ucontig"):
        A("s_lshr_b32 %s, s2, 1" % t0)
        A("s_min_u32 %s, %s, 111" % (t0, t0))
        A("s_lshl_b32 %s, %s, 10" % (t0, t0))
        A("v_add_u32 v4, %s, v3" % t0)
        A("v_add_u32 v5, %d, v4" % (112 * 1024))
        A("s_mov_b32 %s, %d" % (t1, 224 * 1024))
    A("s_bitcmp0_b32 %s, %d" % (("s2", 0) if o.get("ucontig") else (sJ, 2)))
    A("s_cselect_b64 s[42:43], %s, %s" % (sG, sU))
    A("s_cmp_ge_u32 %s, 4" % sNOFF)
    A("s_cselect_b64 exec, 1, -1")
    dma_loop("L_ff_loop", "s[42:43]", t1)
    A("s_mov_b64 exec, -1")
    if o["vote"]:
        A("s_branch L_unit2")
        LB("L_race")
        if o["tw"]:
            A("s_cmp_eq_u32 %s, 3" % sW)
            A("s_cbranch_scc1 L_norace")
        C("which of the two copies of the last hand-off lives nearer to this die: race two cold scalar loads of this wave's own lines")
        A("s_lshl_b32 %s, s2, 2" % t0)
        A("s_add_u32 %s, %s, %s" % (t0, t0, sW))
        A("s_lshr_b32 %s, %s, 6" % (t1, t0))
        A("s_lshl_b32 %s, %s, 14" % (t1, t1))
        A("s_and_b32 %s, %s, 63" % (t0, t0))
        A("s_lshl_b32 %s, %s, 7" % (t0, t0))
        A("s_add_u32 %s, %s, %s" % (t0, t0, t1))
        if MB3 == 0x200000: A("s_bitset1_b32 %s, 21" % t0)
        else: A("s_or_b32 %s, %s, 0x%x" % (t0, t0, MB3))
        A("s_lshl_b32 %s, %s, 13" % (t1, sW))
        A("s_and_b32 %s, %s, 0x2000" % (t1, t1))
        A("s_or_b32 s46, %s, %s" % (t0, t1))
        A("s_xor_b32 s47, s46, 0x2000")
        A("s_movk_i32 s28, 0x5bd1")
        A("s_movk_i32 s29, 0x5bd1")
        A("s_waitcnt lgkmcnt(0)")
        A("s_load_dword s28, %s, s46" % sWS)
        A("s_load_dword s29, %s, s47" % sWS)
        A("s_waitcnt lgkmcnt(1)")
        A("s_mov_b64 s[48:49], s[28:29]")
        LB("L_race_done")
        A("s_cmpk_lg_i32 s48, 0x5bd1")
        A("s_cselect_b32 %s, 1, 0" % t0)
        A("s_cmpk_lg_i32 s49, 0x5bd1")
        A("s_cselect_b32 %s, 1, 0" % t2)
        A("s_sub_i32 %s, %s, %s" % (t0, t0, t2))
        A("s_sub_i32 %s, 0, %s" % (t2, t0))
        A("s_cmp_eq_u32 %s, 0" % t1)
        A("s_cselect_b32 %s, %s, %s" % (t0, t0, t2))
        A("s_lshl_b32 %s, %s, 2" % (t2, sW))
        A("v_mov_b32 v158, %s" % t2)
        A("v_mov_b32 v159, %s" % t0)
        A("ds_write_b32 v158, v159 offset:%d" % L_VOTE)
        A("s_branch L_attn")
        LB("L_unit2")
    if o["pt1"]:
        C("pull this workgroup's own hand-off lines into L2 before anyone polls them")
        A("s_lshl_b32 %s, %s, 15" % (t0, sH))
        A("s_lshl_b32 %s, %s, 8" % (t1, sJ))
        A("s_add_u32 %s, %s, %s" % (t0, t0, t1))
        A("s_add_u32 %s, %s, 0x%x" % (t0, t0, MB1A))
        A("v_and_b32 v33, 1, v0")
        A("v_bfe_u32 v32, v0, 1, 1")
        A("v_lshlrev_b32 v33, 7, v33")
        A("v_lshl_add_u32 v33, v32, 13, v33")
        A("s_mul_i32 %s, %s, 240" % (t1, sJ))
        A("s_sub_u32 %s, 0x4000, %s" % (t1, t1))
        A("v_cmp_lt_u32 vcc, 3, v0")
        A("v_mov_b32 v32, %s" % t1)
        A("s_nop 0")
        A("v_cndmask_b32 v33, v33, v32, vcc")
        A("v_add_u32 v33, %s, v33" % t0)
        A("global_load_dword v119, v33, %s sc1" % sWS)
    def tlbwarm():
        C("first touch of the pages the later loads use (address translation early, off their queue)")
        A("s_lshl_b32 %s, %s, 24" % (t0, sH))
        A("s_add_u32 %s, %s, 0xF00000" % (t0, t0))
        A("v_mov_b32 v112, %s" % t0)
        A("s_lshl_b32 %s, %s, 19" % (t0, sH))
        A("v_mov_b32 v113, %s" % t0)
        A("s_mul_i32 %s, %s, 0x38000" % (t0, sH))
        A("v_mov_b32 v114, %s" % t0)
        A("v_mov_b32 v115, 0x%x" % MB3)
        A("s_mov_b64 exec, 1")
        A("global_load_dword v116, v112, %s" % sK)
        A("global_load_dword v117, v112, %s" % sV)
        A("global_load_dword v118, v113, %s" % sWO)
        A("global_load_dword v111, v114, %s" % sDN)
        A("global_load_dword v110, v115, %s" % sWS)
        A("s_mov_b64 exec, -1")
    NW = 1 if o["pt1"] else 0
    if o.get("tlbw") == 2:
        tlbwarm(); NW += 5
    if o["b0pos"] == 32:
        if o.get("b0wait") is not None: A("s_waitcnt vmcnt(%d)" % o["b0wait"])
        A("s_barrier")
    stamp(1)
    XF = 12
    A("s_mov_b32 %s, 0xffff0000" % t1)
    A("s_waitcnt vmcnt(%d)" % (32 + NW))
    stamp(2)
    C("layernorm with the reference's bf16 roundings")
    for i in range(4):
        A("v_lshlrev_b32 v%d, 16, v%d" % (XF + 2 * i, 8 + i))
        A("v_and_b32 v%d, %s, v%d" % (XF + 2 * i + 1, t1, 8 + i))
    fill = []
    def F(s): fill.append(s)
    def nop2():
        n = 0
        while fill and n < 2:
            A(fill.pop(0)); n += 1
        if n < 2: A("s_nop %d" % (1 - n))
    TRB = 120
    vAX, vS1, vL1, vL1x, vL1a, vF, vTN, vTB = "v34", "v35", "v36", "v37", "v38", "v39", "v124", "v125"
    sRP, sB1 = "s52", "s53"
    F("v_lshrrev_b32 v126, 4, v0")
    F("v_bfe_u32 v4, v0, 2, 2")
    F("v_lshl_add_u32 v5, v126, 3, v4")
    F("v_and_b32 v6, 3, v0")
    F("v_lshlrev_b32 v7, 3, v6")
    F("v_lshl_add_u32 v5, v5, 7, v7")
    F("v_bfe_u32 v4, v0, 3, 2")
    for ct in range(4):
        F("v_xor_b32 v7, %d, v4" % ct)
        F("v_lshl_add_u32 v%d, v7, 5, v5" % (TRB + ct))
    F("s_lshl_b32 %s, %s, 8" % (t0, sQK))
    F("v_lshl_add_u32 %s, v126, 4, %s" % (vAX, t0))
    F("s_lshl_b32 %s, %s, 15" % (sB1, sH))
    F("s_add_u32 %s, %s, 0x%x" % (sB1, sB1, MB1A))
    def wavesum(v, tmp):
        for rot in (1, 2, 4, 8):
            nop2()
            A("v_add_f32_dpp %s, %s, %s row_ror:%d %s" % (v, v, v, rot, DPP))
        for which in (16, 32):
            A("v_mov_b32 %s, %s" % (tmp, v))
            nop2()
            A("v_permlane%d_swap_b32 %s, %s" % (which, tmp, v))
            A("v_add_f32 %s, %s, %s" % (v, v, tmp))
    def P2(r): return "v[%d:%d]" % (r, r + 1)
    A("v_pk_add_f32 v[22:23], %s, %s" % (P2(XF), P2(XF + 2)))
    A("v_pk_add_f32 v[24:25], %s, %s" % (P2(XF + 4), P2(XF + 6)))
    A("v_pk_add_f32 v[22:23], v[22:23], v[24:25]")
    A("v_add_f32 v22, v22, v23")
    wavesum("v22", "v23")
    A("v_mul_f32 v22, 0x3b000000, v22")
    DV = 24
    for i in range(4):
        A("v_pk_add_f32 %s, %s, v[22:23] op_sel_hi:[1,0] neg_lo:[0,1] neg_hi:[0,1]" % (P2(DV + 2 * i), P2(XF + 2 * i)))
    A("v_cvt_pk_bf16_f32 v22, 0, v22")
    A("v_pk_mul_f32 v[32:33], %s, %s" % (P2(DV), P2(DV)))
    for i in range(1, 4):
        A("v_pk_fma_f32 v[32:33], %s, %s, v[32:33]" % (P2(DV + 2 * i), P2(DV + 2 * i)))
    A("v_add_f32 v32, v32, v33")
    pre = ["v_pk_add_f32 %s, %s, v[22:23] op_sel_hi:[1,0] neg_lo:[0,1] neg_hi:[0,1]" % (P2(XF + 2 * i), P2(XF + 2 * i)) for i in range(4)]
    pre += ["v_cvt_pk_bf16_f32 v%d, 0, v%d" % (XF + i, XF + i) for i in range(8)]
    rest = fill[:]; fill[:] = pre
    wavesum("v32", "v33")
    fill[:] = fill + rest
    A("v_mul_f32 v32, 0x3b000000, v32")
    A("v_cvt_pk_bf16_f32 v32, 0, v32")
    A("v_add_f32 v32, 0x%x, v32" % EPS)
    A("v_cvt_pk_bf16_f32 v32, 0, v32")
    A("v_sqrt_f32 v32, v32")
    A(fill.pop(0))
    A("v_cvt_pk_bf16_f32 v32, 0, v32")
    A("v_rcp_f32 v32, v32")
    A(fill.pop(0))
    for i in range(4):
        A("v_pk_mul_f32 %s, %s, v[32:33] op_sel_hi:[1,0]" % (P2(XF + 2 * i), P2(XF + 2 * i)))
    for i in range(4):
        A("v_cvt_pk_bf16_f32 v%d, v%d, v%d" % (8 + i, XF + 2 * i, XF + 2 * i + 1))
    A("ds_write_b128 v3, v[8:11] offset:%d" % L_XN)
    while fill: A(fill.pop(0))
    A("s_lshl_b32 %s, s55, 2" % t2)
    A("s_add_u32 s55, %s, %s" % (t2, sQK))
    A("s_lshl_b32 %s, s55, 8" % t2)
    A("s_add_u32 %s, %s, %s" % (t2, t2, sB1))
    A("v_lshrrev_b32 v4, 2, v0")
    A("v_lshl_add_u32 %s, v4, 4, %s" % (vS1, t2))
    A("s_waitcnt lgkmcnt(0)")
    AF = 40
    for m in range(4):
        A("ds_read_b128 v[%d:%d], %s offset:%d" % (AF + 4 * m, AF + 4 * m + 3, vAX, L_XN + m * 64))
    A("s_add_u32 %s, %s, 0x%x" % (sTAG, sTAG, TAGC))
    A("v_lshlrev_b32 v4, 2, v6")
    A("v_lshrrev_b32 %s, v4, %s" % (vTN, sTAG))
    A("v_and_b32 %s, 15, %s" % (vTN, vTN))
    A("v_lshlrev_b32 v4, 3, v6")
    A("v_lshrrev_b32 %s, v4, %s" % (vTB, sTAG))
    A("v_and_b32 %s, 0xff, %s" % (vTB, vTB))
    A("s_mov_b32 s44, 0")
    A("s_mov_b32 s45, -1")
    XG = 28
    def die_id():
        if o["vote"]:
            assert o["b0pos"] <= 47 and not o["hlate"]
            A("v_mov_b32 v4, 0")
            A("ds_read_b128 v[112:115], v4 offset:%d" % L_VOTE)
        if o["lastfin"]:
            assert o["vote"]
            A("ds_read_b32 v116, v4 offset:%d" % L_TKT)
        A("s_getreg_b32 %s, hwreg(HW_REG_XCC_ID, 0, 4)" % sXCC)
        A("s_and_b32 %s, %s, 0xff" % (t0, sTAG))
        A("s_lshl_b32 %s, %s, 8" % (t2, sXCC))
        A("s_or_b32 s54, %s, %s" % (t0, t2))
        A("v_mov_b32 v%d, s54" % XG)
        for k in range(1, 4):
            A("s_bfe_u32 %s, %s, 0x%x" % (t0, sTAG, 0x80000 | (8 * k)))
            A("v_mov_b32 v%d, %s" % (XG + k, t0))
        if o["vote"]:
            A("s_waitcnt lgkmcnt(0)")
            A("v_add3_u32 v112, v112, v113, v114")
            A("v_add_u32 v112, v112, v115")
            A("v_lshl_add_u32 v%d, v112, 8, v%d" % (XG + 1, XG + 1))
        if o["lastfin"]:
            A("v_lshl_add_u32 v%d, v116, 8, v%d" % (XG + 2, XG + 2))
        A("s_lshl_b32 %s, %s, 4" % (t2, sJ))
        A("s_add_u32 %s, %s, %s" % (t2, t2, sB1))
        A("s_add_u32 %s, %s, 0x4000" % (t2, t2))
        A("v_mov_b32 v22, %s" % t2)
        A("v_add_u32 v109, 0x%x, v22" % (MB1B - MB1A))
        A("s_mov_b64 exec, 1")
        if o["bonly"]:
            A("global_store_dwordx4 v22, v[%d:%d], %s sc1" % (XG, XG + 3, sWS))
        else:
            A("global_store_dwordx4 v22, v[%d:%d], %s" % (XG, XG + 3, sWS))
            if not o["bdefer"]: A("global_store_dwordx4 v109, v[%d:%d], %s sc1" % (XG, XG + 3, sWS))
        A("s_mov_b64 exec, -1")
    if o["idearly"]: die_id()
    if o["b0pos"] == 40: A("s_barrier")
    stamp(3)
    BF = 56
    D0 = 88
    GR = 24
    def gemv(lbase, vm0):
        def rd(m, ct):
            b = BF + 16 * (m & 1)
            for hh in range(2):
                A("ds_read_b64_tr_b16 v[%d:%d], v%d offset:%d" % (b + 4 * ct + 2 * hh, b + 4 * ct + 2 * hh + 1, TRB + ct, lbase + m * 4096 + hh * 512))
        A("s_waitcnt vmcnt(%d)" % (vm0 + 12))
        for ct in range(4): rd(0, ct)
        for m in range(4):
            b = BF + 16 * (m & 1)
            if m < 3: A("s_waitcnt vmcnt(%d)" % (vm0 + 8 - 4 * m))
            if lbase == L_WQ and o["b0pos"] == 41 + m: A("s_barrier")
            for ct in range(4):
                A("s_waitcnt lgkmcnt(%d)" % (6 if m < 3 else 6 - 2 * ct))
                mfma(D0 + 4 * ct, AF + 4 * m, b + 4 * ct, None if m == 0 else D0 + 4 * ct)
                if m < 3: rd(m + 1, ct)
    def pack(maskc, vt, GR, vS1):
        A("s_mov_b32 vcc_lo, 0xffff0000")
        A("s_mov_b32 vcc_hi, 0xffff0000")
        A("s_movk_i32 %s, 0x%x" % (t0, maskc))
        A("s_nop 2")
        A("v_cndmask_b32 v%d, v%d, v%d, vcc" % (GR, D0, D0 + 4))
        A("s_nop 0")
        A("v_cndmask_b32 v%d, v%d, v%d, vcc" % (GR + 1, D0 + 8, D0 + 12))
        A("v_cndmask_b32 v%d, v%d, v%d, s[44:45]" % (GR, GR, GR + 1))
        A("v_and_or_b32 v%d, v%d, %s, %s" % (GR, GR, t0, vt))
        if o["bdefer"]:
            A("s_nop 1")
        else:
            A("v_add_u32 v22, 0x%x, %s" % (MB1B - MB1A, vS1))
            A("s_nop 0")
        for k in range(1, 4):
            A("v_mov_b32_dpp v%d, v%d quad_perm:[%d,%d,%d,%d] %s" % (GR + k, GR, k, k, k, k, DPP))
        A("s_mov_b32 exec_lo, 0x11111111")
        A("s_mov_b32 exec_hi, 0x11111111")
        if o["bonly"]:
            A("global_store_dwordx4 %s, v[%d:%d], %s sc1" % (vS1, GR, GR + 3, sWS))
        else:
            A("global_store_dwordx4 %s, v[%d:%d], %s" % (vS1, GR, GR + 3, sWS))
            if not o["bdefer"]: A("global_store_dwordx4 v22, v[%d:%d], %s sc1" % (GR, GR + 3, sWS))
        A("s_mov_b64 exec, -1")
    gemv(L_WQ, 16 + NW + (1 if o["idearly"] else 0))
    if o["b0pos"] == 45: A("s_barrier")
    pack(0xfff0, vTN, GR, vS1)
    if o["b0pos"] == 47: A("s_barrier")
    stamp(4)
    if not o["idearly"]: die_id()
    if o["b0pos"] == 50: A("s_barrier")
    A("s_sub_i32 %s, %s, s55" % (t2, sJ))
    A("s_lshl_b32 %s, %s, 8" % (t2, t2))
    A("s_add_u32 %s, %s, 0x2000" % (t2, t2))
    A("v_add_u32 v108, %s, %s" % (t2, vS1))
    A("s_cmp_ge_u32 %s, 4" % sNOFF)
    A("s_cbranch_scc1 L_noff2")
    gemv(L_FF, (2 if o['bonly'] or o['bdefer'] else 4) + NW)
    pack(0xff00, vTB, 104, "v108")
    LB("L_noff2")
    stamp(7)
    if o.get("nosync"):
        A("s_barrier")
        A("s_mov_b32 %s, 0" % sCNT)
        dump_stamps()
        A("s_endpgm")
    A("v_and_b32 v4, 15, v0")
    A("v_lshlrev_b32 v4, 4, v4")
    A("v_lshl_add_u32 v4, v126, 10, v4")
    A("s_add_u32 %s, %s, 2432" % (t0, sB1))
    A("v_add_u32 %s, %s, v4" % (vL1, t0))
    A("v_and_b32 v4, 31, v0")
    A("s_add_u32 %s, %s, 0x4000" % (t0, sB1))
    A("v_lshl_add_u32 %s, v4, 4, %s" % (vL1x, t0))
    A("s_lshl_b32 %s, %s, 1" % (t2, t3))
    A("s_sub_u32 %s, 8, %s" % (sRP, t2))
    A("s_mul_i32 %s, %s, %s" % (t2, sRP, sJ))
    A("s_sub_u32 %s, %s, 1" % (t0, sRP))
    A("v_and_b32 v4, 7, v0")
    A("v_min_u32 v4, %s, v4" % t0)
    A("v_add_u32 %s, %s, v4" % (vF, t2))
    A("v_lshrrev_b32 v4, 6, %s" % vF)
    A("v_bfe_u32 v5, v0, 3, 1")
    A("v_lshl_add_u32 v4, v4, 1, v5")
    A("v_lshl_add_u32 v4, v4, 2, v126")
    A("v_bfe_u32 v5, %s, 2, 4" % vF)
    A("v_lshlrev_b32 v5, 4, v5")
    A("v_lshl_add_u32 v4, v4, 8, v5")
    A("s_add_u32 %s, %s, 0x2000" % (t0, sB1))
    A("v_add_u32 %s, %s, v4" % (vL1a, t0))
    if min(nlv) == 0:
        A("s_cmp_lg_u32 %s, 0" % sRP)
        A("s_cbranch_scc1 L_has_ffn")
        A("v_mov_b32 %s, %s" % (vL1a, vL1x))
        LB("L_has_ffn")
    for k in range(4):
        A("s_bfe_u32 s%d, %s, 0x%x" % (56 + k, sTAG, 0x40000 | (4 * k)))
    A("s_movk_i32 s62, 255")
    A("s_mov_b32 s60, 0x0c0c0400")
    A("s_mov_b32 s61, 0x04000c0c")
    P = 40
    PX, PA_ = 72, 76
    A("s_mov_b32 %s, 0" % sCNT)
    def switch_copy(regs):
        A("s_add_u32 %s, %s, 1" % (sCNT, sCNT))
        if not o["bonly"]:
            if o.get("bskip"):
                A("s_cmp_ge_u32 %s, %d" % (sCNT, o["atries"]))
                A("s_cselect_b32 %s, 0x%x, 0" % (t0, MB1B ^ MB1A))
                for r in regs: A("v_xor_b32 %s, %s, %s" % (r, t0, r))
            else:
                A("s_cmp_eq_u32 %s, %d" % (sCNT, o["atries"]))
                A("s_cselect_b32 %s, 0x%x, 0" % (t0, MB1B - MB1A))
                for r in regs: A("v_add_u32 %s, %s, %s" % (r, t0, r))
        A("s_cmp_gt_u32 %s, %d" % (sCNT, o["spinmax"]))
        A("s_cbranch_scc1 L_end")
    def bytecheck(p, dst):
        A("v_perm_b32 v22, v%d, v%d, s60" % (p + 1, p))
        A("v_perm_b32 v23, v%d, v%d, s61" % (p + 3, p + 2))
        A("v_or_b32 v22, v22, v23")
        A("v_cmp_ne_u32 %s, %s, v22" % (dst, sTAG))
    for _ in range(o.get("dly1", 0)): A("s_nop 15")
    stamp(9)
    if o.get("freeq"): A("s_branch L_got1")
    LB("L_poll1")
    stamp(8)
    for i in range(2):
        for q in range(4):
            r = P + 16 * i + 4 * q
            A("global_load_dwordx4 v[%d:%d], %s, %s offset:%d sc1" % (r, r + 3, vL1, sWS, i * 4096 + q * 256 - 2432))
    A("global_load_dwordx4 v[%d:%d], %s, %s sc1" % (PX, PX + 3, vL1x, sWS))
    A("global_load_dwordx4 v[%d:%d], %s, %s sc1" % (PA_, PA_ + 3, vL1a, sWS))
    switch_copy([vL1, vL1x, vL1a])
    for g_ in range(8):
        A("s_waitcnt vmcnt(%d)" % (9 - g_))
        for k in range(4):
            A("v_xor_b32 v%d, s%d, v%d" % (P + 4 * g_ + k, 56 + k, P + 4 * g_ + k))
        if g_ == 0:
            A("v_or3_b32 v21, v%d, v%d, v%d" % (P, P + 1, P + 2))
            A("v_or_b32 v21, v21, v%d" % (P + 3))
        else:
            A("v_or3_b32 v21, v21, v%d, v%d" % (P + 4 * g_, P + 4 * g_ + 1))
            A("v_or3_b32 v21, v21, v%d, v%d" % (P + 4 * g_ + 2, P + 4 * g_ + 3))
    A("v_and_b32 v21, 15, v21")
    A("s_waitcnt vmcnt(1)")
    bytecheck(PX, "vcc")
    A("v_cmp_ne_u32 s[46:47], 0, v21")
    if o.get("dbgfail"):
        A("s_cmp_eq_u32 %s, 1" % sCNT)
        A("s_cselect_b32 s84, vcc_lo, s84")
        A("s_cselect_b32 s62, s46, s62")
        A("s_cselect_b32 s63, s47, s63")
    A("s_or_b64 vcc, vcc, s[46:47]")
    def majority():
        A("v_cmp_gt_i32 vcc, 0, v%d" % (PX + 1))
        A("v_cmp_lt_i32 s[46:47], %s, v%d" % ("s62", PX + 1))
        A("s_bcnt1_i32_b32 %s, vcc_lo" % t0)
        A("s_bcnt1_i32_b32 %s, s46" % t2)
        A("s_cmp_gt_u32 %s, %s" % (t0, t2))
        A("s_cselect_b32 s55, 0x2000, 0")
        if o.get("voteinv"): A("s_xor_b32 s55, s55, 0x2000")
        if o["stamps"]:
            A("s_bcnt1_i32_b32 s63, vcc_lo")
            A("s_lshl_b32 %s, %s, 8" % (t2, t2))
            A("s_or_b32 s63, s63, %s" % t2)
    def publish_b(tag):
        C("write-through copies for peers that sit on another die")
        A("v_add_u32 v22, 0x%x, %s" % (MB1B - MB1A, vS1))
        A("v_add_u32 v23, 0x%x, v108" % (MB1B - MB1A))
        A("s_mov_b64 exec, 1")
        A("global_store_dwordx4 v109, v[%d:%d], %s sc1" % (XG, XG + 3, sWS))
        A("s_mov_b32 exec_lo, 0x11111111")
        A("s_mov_b32 exec_hi, 0x11111111")
        A("global_store_dwordx4 v22, v[%d:%d], %s sc1" % (GR, GR + 3, sWS))
        A("s_cmp_ge_u32 %s, 4" % sNOFF)
        A("s_cbranch_scc1 L_pb_%s" % tag)
        A("global_store_dwordx4 v23, v[104:107], %s sc1" % sWS)
        LB("L_pb_%s" % tag)
        A("s_mov_b64 exec, -1")
    if o["bdefer"]:
        A("s_cbranch_vccz L_got1")
        A("s_cmp_lg_u32 %s, %d" % (sCNT, o["bdefer"]))
        A("s_cbranch_scc1 L_poll1")
        publish_b("a")
        A("s_branch L_poll1")
        LB("L_got1")
    else:
        A("s_cbranch_vccnz L_poll1")
    stamp(5)
    for i in range(2):
        b = P + 16 * i
        for k in range(4):
            A("v_add_f32 v%d, v%d, v%d" % (b + k, b + k, b + 4 + k))
            A("v_add_f32 v%d, v%d, v%d" % (b + 8 + k, b + 8 + k, b + 12 + k))
        for k in range(4):
            A("v_add_f32 v%d, v%d, v%d" % (b + k, b + k, b + 8 + k))
        A("v_cvt_pk_bf16_f32 v%d, v%d, v%d" % (b, b, b + 1))
        A("v_cvt_pk_bf16_f32 v%d, v%d, v%d" % (b + 1, b + 2, b + 3))
    A("v_lshlrev_b32 v22, 3, v0")
    A("ds_write_b64 v22, v[%d:%d] offset:%d" % (P, P + 1, L_Q))
    A("ds_write_b64 v22, v[%d:%d] offset:%d" % (P + 16, P + 17, L_Q + 512))
    A("v_cmp_ne_u32 vcc, s54, v%d" % PX)
    A("s_cmp_eq_u64 vcc, 0")
    A("s_cselect_b32 %s, 1, 0" % sFAST)
    if o.get("forceslow"): A("s_mov_b32 %s, 0" % sFAST)
    if o.get("freeq"): A("s_mov_b32 %s, 1" % sFAST)
    if o["lastfin"]:
        A("v_readfirstlane_b32 %s, v%d" % (t0, PX + 2))
        if o["lastfin"] == 1:
            A("s_not_b32 %s, %s" % (t2, sTAG))
            A("v_mov_b32 v23, %s" % t2)
            A("v_lshlrev_b32 v22, 2, v0")
        A("s_lshr_b32 %s, %s, 8" % (t0, t0))
        A("s_cmp_eq_u32 %s, 7" % t0)
        A("s_cselect_b32 %s, 2, 0" % t0)
        if o.get("fixfin") is not None:
            A("s_cmp_eq_u32 %s, %d" % (sH, o["fixfin"]))
            A("s_cselect_b32 %s, 2, 0" % t0)
        A("s_or_b32 %s, %s, %s" % (sFAST, sFAST, t0))
        if o["lastfin"] == 1: A("ds_write_b32 v22, v23 offset:%d" % L_FIN)
        else:
            majority()
            A("s_or_b32 %s, %s, s55" % (sFAST, sFAST))
    A("v_mov_b32 v26, %s" % sFAST)
    A("v_mov_b32 v27, %s" % sTAG)
    A("v_mov_b32 v22, %d" % L_FLAG)
    A("ds_write_b64 v22, v[26:27]")
    if o["auxearly"] and not o.get("freeq"):
        A("s_waitcnt vmcnt(0)")
        bytecheck(PA_, "vcc")
        A("s_cbranch_vccz L_aux_b1")
        A("global_load_dwordx4 v[%d:%d], %s, %s sc1" % (PA_, PA_ + 3, vL1a, sWS))
        LB("L_aux_b1")
    A("s_waitcnt lgkmcnt(0)")
    A("s_barrier")
    if o["bdefer"]:
        A("s_cmp_gt_u32 %s, %d" % (sCNT, o["bdefer"]))
        A("s_cbranch_scc1 L_b_done")
        A("s_bitcmp1_b32 %s, 0" % sFAST if o.get("bskip") else "s_nop 0")
        if o.get("bskip"): A("s_cbranch_scc1 L_b_done")
        publish_b("b")
        LB("L_b_done")
    if o["vote"] and o["lastfin"] < 2: majority()
    if o["hlate"]:
        A("s_setprio %d" % o.get("hprio", 0))
        A("s_barrier")
        A("s_barrier")
    A("s_branch %s" % ("L_chk_aux" if not o.get("freeq") else "L_poll_aux" if o["freeq"] == 2 else "L_auxdone"))
    LB("L_poll_aux")
    A("global_load_dwordx4 v[%d:%d], %s, %s sc1" % (PA_, PA_ + 3, vL1a, sWS))
    switch_copy([vL1a])
    LB("L_chk_aux")
    A("s_waitcnt vmcnt(0)")
    bytecheck(PA_, "vcc")
    A("s_cbranch_vccnz L_poll_aux")
    if o.get("freeq"): LB("L_auxdone")
    A("s_movk_i32 %s, 0xff00" % t0)
    A("v_and_b32 v23, 1, %s" % vF)
    A("v_cmp_eq_u32 vcc, 0, v23")
    A("v_and_b32 v23, 2, %s" % vF)
    A("v_cmp_eq_u32 s[46:47], 0, v23")
    A("v_cndmask_b32 v24, v%d, v%d, vcc" % (PA_ + 1, PA_))
    A("v_cndmask_b32 v25, v%d, v%d, vcc" % (PA_ + 3, PA_ + 2))
    A("v_cndmask_b32 v24, v25, v24, s[46:47]")
    A("v_and_b32 v24, %s, v24" % t0)
    allred("v24", "v23", "v_add_f32", 16)
    allred("v24", "v23", "v_add_f32", 32)
    A("v_cvt_pk_bf16_f32 v24, v24, v24")
    A("v_and_b32 v24, %s, v24" % t1)
    A("v_mul_f32 v25, 0x%x, v24" % (LOG2E | 0x80000000))
    A("v_exp_f32 v25, v25")
    A("v_mov_b32_dpp v26, v24 row_ror:8 %s" % DPP)
    A("v_add_f32 v25, 1.0, v25")
    A("v_rcp_f32 v25, v25")
    A("v_cmp_le_u32 vcc, %s, v0" % sRP)
    A("v_mul_f32 v25, v24, v25")
    A("v_cvt_pk_bf16_f32 v25, v25, v25")
    A("v_and_b32 v25, %s, v25" % t1)
    A("v_mul_f32 v25, v25, v26")
    A("v_cvt_pk_bf16_f32 v25, v25, v25")
    A("v_cndmask_b32 v25, v25, 0, vcc")
    A("v_lshlrev_b32 v22, 2, v0")
    if o["vote"] and not o["lastfin"]:
        A("v_mov_b32 v26, s55")
        A("v_mov_b32 v27, 0")
        A("ds_write_b32 v27, v26 offset:%d" % (L_FLAG + 8))
    A("s_mov_b64 exec, 0xff")
    A("ds_write_b32 v22, v25 offset:%d" % L_H)
    A("s_waitcnt lgkmcnt(0)")
    stamp(6)
    if o["lastfin"] == 1:
        A("s_bitcmp1_b32 %s, 1" % sFAST)
        A("s_cbranch_scc1 L_ufin")
    if not o.get("nodumpU"): dump_stamps()
    A("s_endpgm")
    def unit_final():
        LB("L_ufin")
        C("last group: lane = (wave l>>4, pair (l>>3)&1, group l&7) gathers the eight groups' sums of this workgroup's 16 columns")
        A("s_mov_b64 exec, -1")
        A("s_setprio %d" % o.get("uprio", 0))
        vA3, vLF, vXO, vXV = "v4", "v5", "v6", "v7"
        FP, FS = 8, 40
        A("v_lshrrev_b32 %s, 3, v0" % vLF)
        A("s_lshl_b32 %s, %s, 5" % (t0, sJ))
        A("v_lshl_add_u32 %s, %s, 2, %s" % (vXO, vLF, t0))
        A("global_load_dword %s, %s, %s" % (vXV, vXO, sX))
        A("v_lshlrev_b32 %s, 4, %s" % (vLF, vLF))
        A("s_lshr_b32 %s, %s, 1" % (t0, sJ))
        A("s_lshl_b32 %s, %s, 14" % (t0, t0))
        A("s_and_b32 %s, %s, 1" % (t2, sJ))
        A("s_lshl_b32 %s, %s, 12" % (t2, t2))
        A("s_add_u32 %s, %s, %s" % (t0, t0, t2))
        A("s_add_u32 %s, %s, s55" % (t0, t0))
        A("s_add_u32 %s, %s, 0x%x" % (t0, t0, MB3))
        A("v_and_b32 v22, 7, v0")
        A("v_lshl_add_u32 %s, v22, 9, %s" % (vA3, t0))
        A("v_lshlrev_b32 v22, 7, v126")
        A("v_and_b32 v23, 16, %s" % vLF)
        A("v_add3_u32 %s, %s, v22, v23" % (vA3, vA3))
        A("s_lshl_b32 s44, 0x01010101, %s" % sH)
        A("s_mov_b32 s45, s44")
        A("s_not_b64 s[46:47], s[44:45]")
        A("s_mov_b32 %s, %d" % (sCNT, o["spinmax"]))
        A("s_barrier")
        A("s_barrier")
        A("s_waitcnt vmcnt(0)")
        A("v_lshlrev_b32 v22, 16, %s" % vXV)
        A("v_and_b32 v23, %s, %s" % (t1, vXV))
        def spf():
            C("pull the other groups' lines into this die's L2 over the scalar path (the vector path returns in order and is busy with the group's own hand-off)")
            for k in range(1, 8):
                for w_ in range(4):
                    A("s_load_dword s%d, %s, s%d offset:%d glc" % (6 + (4 * k + w_) % 16, sWS, 48 + k, 128 * w_))
        if o.get("spf"):
            for k in range(1, 8):
                A("s_xor_b32 s%d, %s, %d" % (48 + k, sH, k))
                A("s_lshl_b32 s%d, s%d, 9" % (48 + k, 48 + k))
                A("s_add_u32 s%d, s%d, %s" % (48 + k, 48 + k, t0))
        if o.get("spf", 0) & 2: spf()
        if o["reuse"]: A("s_barrier")
        if o.get("spf", 0) & 1: spf()
        NP = o["npu"]
        def own_read():
            A("s_mov_b64 exec, s[44:45]")
            A("ds_read_b128 v[%d:%d], %s offset:%d" % (FP, FP + 3, vLF, L_FIN))
        if o.get("uwait"):
            A("s_mov_b64 exec, s[44:45]")
            LB("L_uw")
            A("ds_read_b128 v[%d:%d], %s offset:%d" % (FP, FP + 3, vLF, L_FIN))
            A("s_sub_u32 %s, %s, 1" % (sCNT, sCNT))
            A("s_cbranch_scc1 L_end")
            A("s_waitcnt lgkmcnt(0)")
            A("v_cmp_ne_u32 vcc, %s, v%d" % (sTAG, FP + 3))
            if o["uwait"] == 1:
                A("s_cbranch_vccnz L_uw")
            else:
                A("s_cmp_eq_u64 vcc, s[44:45]")
                A("s_cbranch_scc1 L_uw")
        for k in range(NP):
            if k:
                for _ in range(o["stag"]):
                    own_read(); A("s_waitcnt lgkmcnt(0)")
            A("s_mov_b64 exec, s[46:47]")
            A("global_load_dwordx4 v[%d:%d], %s, %s sc1" % (FS + 4 * k, FS + 4 * k + 3, vA3, sWS))
        LB("L_upoll")
        for k in range(NP):
            own_read()
            A("s_mov_b64 exec, s[46:47]")
            A("s_waitcnt vmcnt(%d) lgkmcnt(0)" % (NP - 1))
            A("v_cmp_ne_u32 vcc, %s, v%d" % (sTAG, FS + 4 * k + 3))
            A("v_mov_b32 v%d, v%d" % (FP, FS + 4 * k))
            A("v_mov_b32 v%d, v%d" % (FP + 1, FS + 4 * k + 1))
            A("s_and_b64 s[46:47], exec, vcc")
            A("s_cbranch_scc0 L_ugot")
            A("s_mov_b64 exec, s[46:47]")
            A("global_load_dwordx4 v[%d:%d], %s, %s sc1" % (FS + 4 * k, FS + 4 * k + 3, vA3, sWS))
        A("s_sub_u32 %s, %s, 1" % (sCNT, sCNT))
        A("s_cbranch_scc0 L_upoll")
        A("s_endpgm")
        LB("L_uown")
        A("ds_read_b128 v[%d:%d], %s offset:%d" % (FP, FP + 3, vLF, L_FIN))
        A("s_sub_u32 %s, %s, 1" % (sCNT, sCNT))
        A("s_cbranch_scc1 L_end")
        A("s_waitcnt lgkmcnt(0)")
        LB("L_ugot")
        A("s_mov_b64 exec, s[44:45]")
        A("v_cmp_ne_u32 vcc, %s, v%d" % (sTAG, FP + 3))
        A("s_cbranch_vccnz L_uown")
        stamp(10)
        A("s_mov_b64 exec, -1")
        x_, y_ = "v%d" % FP, "v%d" % (FP + 1)
        for pat in ("quad_perm:[1,0,3,2]", "quad_perm:[2,3,0,1]", "row_half_mirror"):
            A("v_add_f32_dpp %s, %s, %s %s %s" % (x_, x_, x_, pat, DPP))
            A("v_add_f32_dpp %s, %s, %s %s %s" % (y_, y_, y_, pat, DPP))
            if pat != "row_half_mirror": A("s_nop 0")
        A("s_mov_b32 s44, 0x01010101")
        A("v_add_f32 %s, %s, v22" % (x_, x_))
        A("v_add_f32 %s, %s, v23" % (y_, y_))
        A("s_mov_b32 s45, s44")
        A("v_cvt_pk_bf16_f32 %s, %s, %s" % (x_, x_, y_))
        A("s_mov_b64 exec, s[44:45]")
        A("global_store_dword %s, %s, %s" % (vXO, x_, sOUT))
        A("s_cmp_lg_u32 %s, 0" % sJ)
        A("s_cbranch_scc1 L_udone")
        C("the next launch must not mistake this launch's hand-off words for its own")
        A("s_mov_b64 exec, 1")
        A("v_mov_b32 v22, 0")
        A("v_mov_b32 v23, %s" % sTAG)
        A("global_store_dword v22, v23, %s" % sWS)
        LB("L_udone")
        role[0] = "U"
        amp_end("u")
        dump_stamps()
        A("s_endpgm")

    role[0] = "A"
    if o.get("alignA"): L.append(".p2align %d" % o["alignA"])
    for _ in range(o.get("shiftA", 0)): A("s_nop 0")
    if o["tw"]:
        LB("L_norace")
        A("v_mov_b32 v158, 12")
        A("v_mov_b32 v159, 0")
        A("ds_write_b32 v158, v159 offset:%d" % L_VOTE)
        A("s_waitcnt lgkmcnt(0)")
    LB("L_attn")
    vK0, vK1, vV0, vV1 = "v2", "v3", "v4", "v5"
    vWO0, vWO1, vDN0, vDN1, vXF, vXP = "v6", "v7", "v8", "v9", "v10", "v1"
    vS2, vL2, vS25, vL25, vL3, vS3 = "v11", "v12", "v13", "v14", "v15", "v150"
    KR, VR, WOR, DNR, QR, SR, PA, MK = 16, 48, 80, 96, 104, 120, 128, 146
    vM0, vM1, vQA, vOW, vOR, vMLW, vHA = "v151", "v152", "v153", "v154", "v155", "v156", "v157"
    vN, vG, vN16, vP = "v120", "v121", "v122", "v123"
    u0, u1 = "v124", "v125"
    s4JW = "s41"
    C("K and V: load i = 1 KB block (4 keys) number 128 i + 4j + w of the head's window; K goes through LDS")
    A("s_lshl_b32 %s, %s, 24" % (t0, sH))
    A("s_lshl_b32 %s, %s, 2" % (s4JW, sJ))
    A("s_add_u32 %s, %s, %s" % (s4JW, s4JW, sW))
    if o["lastfin"]:
        C("arrival order of the eight groups (one counter in the zeroed debug words)")
        A("s_cmp_lg_u32 %s, 0" % s4JW)
        A("s_cbranch_scc1 L_notkt0")
        A("v_mov_b32 v158, 0")
        A("v_mov_b32 v159, 1")
        A("s_mov_b64 exec, 1")
        A("global_atomic_add v159, v158, v159, s[24:25] sc0 sc1")
        A("s_mov_b64 exec, -1")
        LB("L_notkt0")
    A("s_lshl_b32 %s, %s, 10" % (t2, s4JW))
    A("s_add_u32 %s, %s, %s" % (t0, t0, t2))
    A("s_add_u32 %s, %s, 0xF00000" % (t0, t0))
    A("v_and_b32 %s, 15, v0" % vN)
    A("v_lshrrev_b32 %s, 4, v0" % vG)
    A("v_lshlrev_b32 %s, 4, %s" % (vN16, vN))
    A("v_lshl_add_u32 %s, v0, 4, %s" % (vV0, t0))
    A("v_lshlrev_b32 %s, 6, %s" % (u0, vG))
    A("v_xor_b32 %s, %s, %s" % (vK0, u0, vV0))
    A("s_lshl_b32 %s, %s, 13" % (t1, sW))
    A("s_add_u32 m0, %s, %d" % (t1, L_K))
    A("s_mov_b32 s42, 0x20000")
    A("s_movk_i32 s43, 1024")
    if not o["vote"]: A("s_waitcnt lgkmcnt(0)")
    if o.get("tlbw") == 1:
        A("s_cmp_lg_u32 %s, 0" % sW)
        A("s_cbranch_scc1 L_notlb")
        tlbwarm()
        A("s_waitcnt vmcnt(0)")
        LB("L_notlb")
    if o["vote"]: A("s_waitcnt lgkmcnt(1)")
    if o["lastfin"]:
        A("s_cmp_lg_u32 %s, 0" % s4JW)
        A("s_cbranch_scc1 L_notkt")
        A("s_mov_b64 exec, 1")
        A("s_waitcnt vmcnt(0)")
        A("ds_write_b32 v158, v159 offset:%d" % L_TKT)
        A("s_mov_b64 exec, -1")
        A("s_waitcnt lgkmcnt(0)")
        LB("L_notkt")
    if o["stl"]:
        C("first touch of the pages the later loads use, over the scalar path (values unused)")
        if o["tw"] == 1:
            A("s_cmp_eq_u32 %s, 3" % sW)
            A("s_cbranch_scc0 L_touched")
        if o["stl"] & 1: A("s_load_dword s60, %s, %s" % (sK, t0))
        if o["stl"] & 2: A("s_load_dword s61, %s, %s" % (sV, t0))
        if o["stl"] & 4:
            A("s_lshl_b32 %s, %s, 19" % (t2, sH))
            A("s_lshl_b32 %s, %s, 14" % (t3, sJ))
            A("s_add_u32 %s, %s, %s" % (t2, t2, t3))
            A("s_load_dword s62, %s, %s" % (sWO, t2))
            A("s_mul_i32 %s, s2, 7168" % t2)
            A("s_load_dword s63, %s, %s" % (sDN, t2))
        if o["stl"] & 8: A("s_load_dword s59, %s, 0" % sOUT)
        if o["stl"] & 16:
            A("s_lshl_b32 %s, %s, 7" % (t2, sH))
            A("s_load_dword s59, %s, %s" % (sOUT, t2))
        if o["tw"] == 1: LB("L_touched")
    if o["b0pos"]: A("s_barrier")
    stamp(1)
    issued = [0]
    def load(w, txt):
        if issued[0] >= w:
            A("s_waitcnt vmcnt(%d)" % (w - 1))
        A(txt); issued[0] += 1
    def rot(i): return (i * o["rotm"]) & 127
    def kload(i):
        load(o["WK"], "global_load_lds_dwordx4 %s, %s %s" % (vK0, sK, nt))
        if i < 7:
            A("s_add_u32 m0, m0, s43")
            A("v_xor_b32 %s, %d, %s" % (vK0, (((i & 3) ^ ((i + 1) & 3)) << 4) | ((rot(i) ^ rot(i + 1)) << 10), vK0))
            A("v_add_u32 %s, s42, %s" % (vK0, vK0))
    nk_first = min(o["WK"], 8)
    if o.get("bal"):
        A("v_and_b32 v158, 7, v0")
        A("v_lshlrev_b32 v158, 2, v158")
        A("global_load_dword v159, v158, s[24:25] sc1")
    for i in range(nk_first): kload(i)
    C("address and mask setup in the shadow of the K loads")
    if o["stouch"]: A("s_load_dword s63, %s, 0" % sOUT)
    A("s_lshl_b32 %s, %s, 19" % (t0, sH))
    A("s_lshl_b32 %s, %s, 14" % (t2, sJ))
    A("s_add_u32 %s, %s, %s" % (t0, t0, t2))
    A("s_lshl_b32 %s, %s, 8" % (t3, sW))
    A("s_add_u32 %s, %s, %s" % (t0, t0, t3))
    A("s_add_u32 %s, %s, 0x1000" % (t0, t0))
    A("v_lshl_add_u32 %s, %s, 10, %s" % (vDN0, vG, vN16))
    A("v_add_u32 %s, %s, %s" % (vWO0, t0, vDN0))
    A("v_add_u32 %s, 0x2000, %s" % (vWO1, vWO0))
    ffn_share(t0, t2)
    A("s_lshl_b32 %s, s3, 6" % t0)
    A("s_lshl_b32 %s, %s, 1" % (t2, t2))
    A("s_sub_u32 %s, 8, %s" % (t1, t2))
    A("s_mul_i32 %s, %s, %s" % (t2, t1, sJ))
    A("s_add_u32 %s, %s, %s" % (t0, t0, t2))
    A("s_lshl_b32 %s, %s, 10" % (t0, t0))
    A("s_add_u32 %s, %s, %s" % (t0, t0, t3))
    A("s_sub_u32 %s, %s, 1" % (t1, t1))
    A("v_add_u32 %s, %s, %s" % (u1, t0, vN16))
    A("v_min_u32 %s, %s, %s" % (vDN0, t1, vG))
    A("v_lshl_add_u32 %s, %s, 10, %s" % (vDN0, vDN0, u1))
    A("v_add_u32 %s, 4, %s" % (vDN1, vG))
    A("v_min_u32 %s, %s, %s" % (vDN1, t1, vDN1))
    A("v_lshl_add_u32 %s, %s, 10, %s" % (vDN1, vDN1, u1))
    A("v_and_b32 %s, 1, v0" % vP)
    A("v_and_b32 %s, 1, %s" % (u0, vG))
    if o["g25"]:
        if o["cq25"]:
            A("s_lshr_b32 %s, %s, 3" % (t2, sJ))
            A("s_lshl_b32 %s, %s, 8" % (t2, t2))
            A("s_and_b32 %s, %s, 3" % (t0, sJ))
            A("s_lshl_b32 %s, %s, 6" % (t0, t0))
            A("s_add_u32 %s, %s, %s" % (t2, t2, t0))
            A("s_and_b32 %s, %s, 4" % (t0, sJ))
            A("s_lshl_b32 %s, %s, 1" % (t0, t0))
            A("s_add_u32 %s, %s, %s" % (t2, t2, t0))
        else:
            A("s_lshl_b32 %s, %s, 5" % (t2, sJ))
        A("v_bfe_u32 %s, v0, 3, 2" % u1)
        A("v_lshl_add_u32 %s, %s, %d, %s" % (vXF, u1, 4 if o["cq25"] else 3, t2))
        A("v_lshrrev_b32 %s, 5, v0" % u1)
        A("v_lshl_add_u32 %s, %s, 2, %s" % (vXF, u1, vXF))
    else:
        A("s_lshl_b32 %s, %s, 3" % (t2, s4JW))
        A("v_lshl_add_u32 %s, %s, 2, %s" % (vXF, u0, t2))
    RP = o["rp"]
    M25 = 0 if o["reuse"] else MB25 - MB2
    lay = 3 if o["reuse"] else o.get("lay25", 0)
    A("s_mul_i32 %s, %s, %d" % (t0, sH, 32 * RP))
    A("s_add_u32 %s, %s, 0x%x" % (t0, t0, MB2))
    A("s_mul_i32 %s, %s, %d" % (t1, sJ, RP))
    A("s_add_u32 %s, %s, %s" % (t1, t1, t0))
    A("s_mul_i32 %s, %s, %d" % (t2, sW, 8 * RP))
    A("s_lshl_b32 %s, %s, 6" % (t3, sJ))
    A("s_add_u32 %s, %s, %s" % (t0, t0, t3))
    A("s_add_u32 %s, %s, %s" % (t2, t2, t0))
    A("v_bfe_u32 %s, v0, 2, 3" % vS2 if o["cq2"] else "v_lshrrev_b32 %s, 3, v0" % vS2)
    A("v_mul_u32_u24 %s, %d, %s" % (vS2, RP, vS2))
    A("v_and_b32 %s, 3, v0" % u1 if o["cq2"] else "v_bfe_u32 %s, v0, 1, 2" % u1)
    A("v_lshlrev_b32 %s, 4, %s" % (u1, u1))
    A("v_add3_u32 %s, %s, %s, %s" % (vS2, vS2, u1, t2))
    A("v_lshl_add_u32 %s, v0, 4, %s" % (vL2, t1))
    A("s_lshl_b32 %s, %s, 4" % (t3, sW))
    A("v_and_b32 %s, 31, v0" % u1)
    if lay == 0:
        A("s_add_u32 %s, %s, %s" % (t1, t1, t3))
        A("s_add_u32 %s, %s, 0x%x" % (t1, t1, M25))
        A("v_lshl_add_u32 %s, %s, 6, %s" % (vL25, u1, t1))
        A("v_lshrrev_b32 %s, 1, %s" % (vS25, vN))
        A("v_mul_u32_u24 %s, %d, %s" % (vS25, RP, vS25))
        A("v_lshl_add_u32 %s, %s, 5, %s" % (vS25, vP, vS25))
        A("v_lshl_add_u32 %s, %s, 4, %s" % (vS25, u0, vS25))
        A("s_add_u32 %s, %s, 0x%x" % (t2, t2, M25))
        A("v_add_u32 %s, %s, %s" % (vS25, t2, vS25))
    else:
        if not o["g25"]: A("s_add_u32 %s, %s, %s" % (t0, t0, t3))
        if M25: A("s_add_u32 %s, %s, 0x%x" % (t0, t0, M25))
        if o["g25"]:
            A("v_lshrrev_b32 %s, 2, v0" % vL25)
            A("v_mul_u32_u24 %s, %d, %s" % (vL25, RP, vL25))
            A("v_and_b32 %s, 3, v0" % u1)
            A("v_lshlrev_b32 %s, 4, %s" % (u1, u1))
            A("v_add3_u32 %s, %s, %s, %s" % (vL25, vL25, u1, t0))
            A("v_add_u32 v164, %d, %s" % (16 * RP, vL25))
        else:
            A("v_mul_u32_u24 %s, %d, %s" % (vL25, RP, u1))
            A("v_add_u32 %s, %s, %s" % (vL25, t0, vL25))
        A("s_lshl_b32 %s, %s, 9" % (t3, sW))
        A("s_add_u32 %s, %s, %s" % (t1, t1, t3))
        if M25: A("s_add_u32 %s, %s, 0x%x" % (t1, t1, M25))
        if o["cq25"]:
            A("v_and_b32 %s, 31, v0" % vS25)
            A("v_lshl_add_u32 %s, %s, 4, %s" % (vS25, vS25, t1))
        else:
            A("v_lshl_add_u32 %s, %s, 5, %s" % (vS25, vN, t1))
            A("v_lshl_add_u32 %s, %s, 4, %s" % (vS25, u0, vS25))
    A("s_lshr_b32 %s, %s, 1" % (t0, sJ))
    A("s_lshl_b32 %s, %s, 14" % (t0, t0))
    A("s_and_b32 %s, %s, 1" % (t3, sJ))
    A("s_lshl_b32 %s, %s, 12" % (t3, t3))
    A("s_add_u32 %s, %s, %s" % (t0, t0, t3))
    if o["g25"]:
        A("s_add_u32 %s, %s, 0x%x" % (t0, t0, MB3))
        A("v_lshrrev_b32 %s, 3, v0" % u0)
        A("v_lshl_add_u32 %s, %s, 4, %s" % (u0, u0, t0))
        A("v_and_b32 %s, 7, v0" % vL3)
        A("v_lshl_add_u32 %s, %s, 9, %s" % (vL3, vL3, u0))
        A("s_lshl_b32 %s, %s, 9" % (t3, sH))
        A("s_add_u32 %s, %s, %s" % (t0, t0, t3))
        A("v_lshrrev_b32 %s, 5, v0" % u0)
        A("v_lshl_add_u32 %s, %s, 6, %s" % (u0, u0, u1))
        A("v_bfe_u32 %s, v0, 2, 1" % u1)
        A("v_lshlrev_b32 %s, 13, %s" % (u1, u1))
        A("v_add3_u32 %s, %s, %s, %s" % (vS3, u0, u1, t0))
        if o["pt3"]:
            A("s_and_b32 %s, %s, 1" % (t3, sW))
            A("s_lshl_b32 %s, %s, 6" % (t3, t3))
            A("s_add_u32 s3, %s, %s" % (t0, t3))
            A("s_lshr_b32 %s, %s, 1" % (t3, sW))
            A("s_lshl_b32 %s, %s, 13" % (t3, t3))
            A("s_add_u32 s3, s3, %s" % t3)
    else:
        A("s_lshl_b32 %s, %s, 7" % (t3, sW))
        A("s_add_u32 %s, %s, %s" % (t0, t0, t3))
        A("s_add_u32 %s, %s, 0x%x" % (t0, t0, MB3))
        if o["lastfin"] == 1:
            A("s_lshl_b32 %s, %s, 5" % (t3, sW))
            A("v_lshl_add_u32 %s, %s, 4, %s" % (vL3, u0, t3))
        if o["lastfin"] >= 2:
            A("s_lshl_b32 s3, %s, 9" % sH)
            A("s_add_u32 s3, s3, %s" % t0)
        A("v_lshl_add_u32 %s, %s, 4, %s" % (u0, u0, t0))
        if o["lastfin"] != 1:
            A("v_and_b32 %s, 7, v0" % u1)
            A("v_lshl_add_u32 %s, %s, 9, %s" % (vL3, u1, u0))
        A("s_lshl_b32 %s, %s, 9" % (t3, sH))
        A("v_lshl_add_u32 %s, %s, 13, %s" % (u0, vP, u0))
        A("v_add_u32 %s, %s, %s" % (vS3, t3, u0))
    if o.get("mockx"):
        A("s_lshr_b32 %s, %s, 1" % (t0, sJ))
        A("s_lshl_b32 %s, %s, 14" % (t0, t0))
        A("s_and_b32 %s, %s, 1" % (t3, sJ))
        A("s_lshl_b32 %s, %s, 12" % (t3, t3))
        A("s_add_u32 %s, %s, %s" % (t0, t0, t3))
        A("s_lshl_b32 %s, %s, 9" % (t3, sH))
        A("s_add_u32 %s, %s, %s" % (t0, t0, t3))
        A("s_and_b32 %s, %s, 1" % (t3, sW))
        A("s_lshl_b32 %s, %s, 13" % (t3, t3))
        A("s_add_u32 %s, %s, %s" % (t0, t0, t3))
        A("s_add_u32 %s, %s, 0x%x" % (t0, t0, MB3))
        A("v_and_b32 %s, 3, v0" % u0)
        A("v_lshl_add_u32 %s, %s, 4, %s" % (vS3, u0, t0))
        A("s_and_b32 %s, %s, 3" % (t0, sJ))
        A("s_lshl_b32 %s, %s, 2" % (t0, t0))
        A("s_add_u32 %s, %s, %s" % (t0, t0, sW))
        A("s_lshl_b32 %s, %s, 14" % (t0, t0))
        A("s_lshr_b32 %s, %s, 2" % (t3, sJ))
        A("s_lshl_b32 %s, %s, 9" % (t3, t3))
        A("s_add_u32 %s, %s, %s" % (t0, t0, t3))
        A("s_add_u32 %s, %s, 0x%x" % (t0, t0, MB3))
        A("v_lshl_add_u32 %s, %s, 4, %s" % (vL3, u0, t0))
        A("v_bfe_u32 %s, v0, 2, 1" % u0)
        A("v_lshl_add_u32 %s, %s, 12, %s" % (vL3, u0, vL3))
    A("v_lshlrev_b32 %s, 4, %s" % (u1, vP))
    def pretouch2():
        C("pull this workgroup's incoming hand-off lines into L2 (waves 0,1: hop 2; waves 2,3: hop 2.5)")
        if o["reuse"]:
            A("s_lshl_b32 %s, %s, 9" % (t0, sW))
            A("v_lshlrev_b32 v158, 3, v0")
            A("v_sub_u32 v158, %s, v158" % vL2)
            A("v_add_u32 v158, %s, v158" % t0)
            if o["pt3"]: A("v_writelane_b32 v158, s3, 63")
        else:
            A("s_and_b32 %s, %s, 1" % (t0, sW))
            A("s_lshl_b32 %s, %s, 10" % (t0, t0))
            A("s_lshr_b32 %s, %s, 1" % (t3, sW))
            A("s_mul_i32 %s, %s, 0x%x" % (t3, t3, MB25 - MB2))
            A("s_add_u32 %s, %s, %s" % (t0, t0, t3))
            A("v_add_u32 v158, %s, %s" % (t0, vL2))
        if o["pretouch"] in ("r", "k"):
            A("global_load_dword v159, v158, %s sc1" % sWS); issued[0] += 1
        if o.get("otouch2", 0) & 1:
            A("global_load_dword v166, %s, %s" % (vXF, sOUT)); issued[0] += 1
        if o.get("otouch2", 0) & 2:
            A("global_load_dword v165, %s, %s sc1" % (vS3, sWS)); issued[0] += 1
    if o["pretouch"] == "r" or isinstance(o["pretouch"], int): pretouch2()
    A("v_mov_b32 %s, 0xffff" % u0)
    A("v_lshlrev_b32 %s, %s, %s" % (u0, u1, u0))
    A("v_and_b32 %s, 2, v0" % u1)
    A("v_cmp_eq_u32 vcc, 0, %s" % u1)
    A("v_lshrrev_b32 %s, 1, %s" % (u1, vN))
    A("v_lshlrev_b32 %s, 2, %s" % (vHA, vG))
    SEL = 160
    A("v_mov_b32 v%d, 0x0c0c0c0c" % (SEL + 2))
    A("v_mov_b32 v%d, 0x01000100" % (SEL + 3))
    A("v_bfi_b32 v%d, %s, v%d, v%d" % (SEL + 3, u0, SEL + 3, SEL + 2))
    A("v_cndmask_b32 v%d, v%d, v%d, vcc" % (SEL, SEL + 2, SEL + 3))
    A("v_cndmask_b32 v%d, v%d, v%d, vcc" % (SEL + 1, SEL + 3, SEL + 2))
    A("v_and_b32 v%d, 0x02020202, %s" % (SEL + 3, u0))
    A("v_cndmask_b32 v%d, 0, v%d, vcc" % (SEL + 2, SEL + 3))
    A("v_cndmask_b32 v%d, v%d, 0, vcc" % (SEL + 3, SEL + 3))
    A("v_add_u32 v%d, v%d, v%d" % (SEL + 2, SEL + 2, SEL))
    A("v_add_u32 v%d, v%d, v%d" % (SEL + 3, SEL + 3, SEL + 1))
    for r in range(4):
        A("v_cmp_eq_u32 s[%d:%d], %d, %s" % (44 + 2 * r, 45 + 2 * r, r, u1))
    A("v_lshrrev_b32 %s, 2, %s" % (vMLW, vN))
    A("v_lshlrev_b32 %s, 4, %s" % (u1, vG))
    A("v_lshl_add_u32 %s, %s, 8, %s" % (vQA, vMLW, u1))
    for r in range(4):
        A("v_cndmask_b32 v%d, 0, %s, s[%d:%d]" % (MK + r, u0, 44 + 2 * r, 45 + 2 * r))
    OH, OG, OWV = (384, 768, 3072) if o["cq2"] else (256, 512, 2048)
    if o["cq2"]:
        A("s_mul_i32 %s, %s, %d" % (t0, sW, OWV))
        A("v_mul_u32_u24 %s, %d, %s" % (vOW, OG, vG))
        A("v_add3_u32 %s, %s, %s, %s" % (vOW, vOW, vN16, t0))
    else:
        A("s_lshl_b32 %s, %s, 11" % (t0, sW))
        A("v_lshl_add_u32 %s, %s, 9, %s" % (vOW, vG, vN16))
        A("v_add_u32 %s, %s, %s" % (vOW, t0, vOW))
    A("s_lshl_b32 %s, %s, 3" % (t0, sW))
    A("v_lshl_add_u32 %s, %s, 5, %s" % (vMLW, vMLW, t0))
    if o["cq2"]:
        A("v_bfe_u32 %s, v0, 1, 4" % u1)
        A("v_lshlrev_b32 %s, 4, %s" % (u1, u1))
        A("v_mul_u32_u24 %s, %d, %s" % (u0, OH, vP))
        A("s_mul_i32 %s, %s, %d" % (t0, sW, OG))
        A("v_add3_u32 %s, %s, %s, %s" % (vOR, u0, u1, t0))
    else:
        A("v_bfe_u32 %s, v0, 1, 1" % u0)
        A("v_lshrrev_b32 %s, 2, v0" % u1)
        A("v_lshlrev_b32 %s, 4, %s" % (u1, u1))
        A("v_lshl_add_u32 %s, %s, 8, %s" % (u1, u0, u1))
        A("v_lshl_add_u32 %s, %s, 3, %s" % (u1, vP, u1))
        A("s_lshl_b32 %s, %s, 9" % (t0, sW))
        A("v_add_u32 %s, %s, %s" % (vOR, t0, u1))
    KA = 140
    A("v_and_b32 %s, 3, v0" % u0)
    A("v_lshrrev_b32 %s, 2, %s" % (u1, vN))
    A("v_lshlrev_b32 %s, 8, %s" % (u1, u1))
    A("v_lshl_add_u32 %s, %s, 10, %s" % (u0, u0, u1))
    A("v_xor_b32 %s, %s, %s" % (u1, vG, vN))
    A("v_lshl_add_u32 %s, %s, 4, %s" % (u0, u1, u0))
    A("s_lshl_b32 %s, %s, 13" % (t1, sW))
    A("v_add_u32 v%d, %s, %s" % (KA, t1, u0))
    for s_ in range(1, 4):
        A("v_xor_b32 v%d, %d, v%d" % (KA + s_, s_ << 6, KA))
    if o.get("cheap", 0) & 1:
        A("v_and_b32 %s, 0x3fff, %s" % (vWO0, vWO0)); A("v_or_b32 %s, 0x1000, %s" % (vWO0, vWO0)); A("v_mov_b32 %s, %s" % (vWO1, vWO0))
    if o.get("cheap", 0) & 2:
        A("v_and_b32 %s, 0x3fff, %s" % (vDN0, vDN0)); A("v_mov_b32 %s, %s" % (vDN1, vDN0))
    if o.get("cheap", 0) & 4:
        A("v_and_b32 %s, 0x3fff, %s" % (vV0, vV0)); A("s_mov_b32 s63, 0")
    for _ in range(o.get("delayA", 0)): A("s_nop 3")
    def issue_rest(WK_, W_):
        o_wk = o["WK"]; o["WK"] = WK_
        for i in range(nk_first, 8): kload(i)
        o["WK"] = o_wk
        if o["pretouch"] == "k": pretouch2()
        if o.get("xearly"):
            A("global_load_dword %s, %s, %s" % (vXP, vXF, sX)); issued[0] += 1
        for i in range(8 - o["vlate"]):
            ld, *step = vload(i)
            load(W_, ld)
            for t_ in step: A(t_)
    def vload(i):
        r = VR + i * 4
        seq = ["global_load_dwordx4 v[%d:%d], %s, %s %s" % (r, r + 3, vV0, sV, nt)]
        if i < 7:
            if rot(i) ^ rot(i + 1): seq.append("v_xor_b32 %s, %d, %s" % (vV0, (rot(i) ^ rot(i + 1)) << 10, vV0))
            seq.append("v_add_u32 %s, %s, %s" % (vV0, "s63" if o.get("cheap", 0) & 4 and i % o.get("cheapm", 1) == 0 else "s42", vV0))
        return seq
    if o.get("bal"):
        C("a group that started well after others asks memory with a wider window")
        A("s_waitcnt vmcnt(%d)" % issued[0])
        A("v_sub_u32 v158, s90, v159")
        A("v_cmp_ne_u32 vcc, 0, v159")
        A("v_cmp_lt_i32 s[44:45], %d, v158" % o.get("theta", 40))
        A("s_and_b32 s62, vcc_lo, s44")
        A("s_and_b32 s62, s62, 0xff")
        A("s_bcnt1_i32_b32 s62, s62")
        A("s_cmp_ge_u32 s62, %d" % o.get("lateth", 2))
        A("s_cbranch_scc1 L_wide")
        keep = issued[0]
        issue_rest(o["WK"], o["W"])
        A("s_branch L_issued")
        LB("L_wide")
        issued[0] = keep
        issue_rest(o["WK"] + o["bal"], o["W"] + o["bal"])
        LB("L_issued")
    elif o.get("c3"):
        A("s_lshr_b32 %s, %s, 2" % (t0, sJ))
        A("s_cmp_eq_u32 %s, 3" % t0)
        A("s_cbranch_scc1 L_wide")
        keep = issued[0]
        issue_rest(o["WK"], o["W"])
        A("s_branch L_issued")
        LB("L_wide")
        issued[0] = keep
        issue_rest(o["WK"] + o["c3"], o["W"] + o.get("c3v", o["c3"]))
        LB("L_issued")
    else:
        issue_rest(o["WK"], o["W"])
    tail = []
    if o["lastfin"] != 1 and not o.get("xstag"): tail.append("global_load_dword %s, %s, %s" % (vXP, vXF, sX))
    for a in range(2):
        r = DNR + a * 4
        tail.append("global_load_dwordx4 v[%d:%d], %s, %s %s" % (r, r + 3, (vDN0, vDN1)[a], sDN, nt))
    for m in range(4):
        r = WOR + m * 4
        tail.append("global_load_dwordx4 v[%d:%d], %s, %s offset:%d %s" % (r, r + 3, (vWO0, vWO1)[m >> 1], sWO, (0, -4096)[(m & 1) == 0], nt))
    dnl = []
    if o.get("dnlate"):
        dnl = tail[1:1 + 2]
        if o["dnlate"] == 2: dnl = dnl[1:]
        for t_ in dnl: tail.remove(t_)
        tail.append(tail.pop(0))
    if isinstance(o["pretouch"], int):
        tail.insert(o["pretouch"], "global_load_dword v159, v158, %s sc1" % sWS)
    if o.get("xearly"):
        xl = [t_ for t_ in tail if vXP + "," in t_][0]; tail.remove(xl)
    taft = []
    for _ in range(o.get("tafter", 0)): taft.insert(0, tail.pop())
    tail[:0] = [vload(i) for i in range(8 - o["vlate"], 8)]
    nav = [-o["vlate"]]
    def tail_issue(n):
        for _ in range(n):
            if tail:
                t_ = tail.pop(0)
                for q_ in ([t_] if isinstance(t_, str) else t_): A(q_)
                nav[0] += 1
    sNE = "s63"
    def adaptive():
        C("a wave whose V loads have landed while it waited for q tops its window up with the weight loads")
        assert not o["vlate"] and not o["ntail0"] and not o["tsp"] and not o["tlag"] and len(tail) == 7
        A("s_getreg_b32 %s, hwreg(HW_REG_IB_STS, 0, 4)" % t0)
        A("s_sub_i32 %s, %d, %s" % (sNE, o["Wa"], t0))
        for k in range(min(7, o["Wa"])):
            A("s_cmp_le_i32 %s, %d" % (sNE, k))
            A("s_cbranch_scc1 L_topped")
            A(tail[k])
        LB("L_topped")
    A("s_waitcnt vmcnt(%d)" % (8 - o["vlate"]))
    for t in range(2):
        for s in range(4):
            r = KR + (t * 4 + s) * 4
            A("ds_read_b128 v[%d:%d], v%d offset:%d" % (r, r + 3, KA + s, L_K + t * 4096))
    tail_issue(o["ntail0"])
    stamp(2)
    A("s_waitcnt lgkmcnt(0)")
    A("s_barrier")
    stamp(3)
    for s in range(4):
        A("ds_read_b128 v[%d:%d], %s offset:%d" % (QR + 4 * s, QR + 4 * s + 3, vQA, L_Q + s * 64))
    if "a" in o["tsp"]: tail_issue(1)
    if o["adap"] == "a": adaptive()
    A("s_mov_b32 s46, 0x%x" % SCALE)
    A("s_mov_b32 %s, 0xffff0000" % t1)
    A("s_mov_b32 s48, 0x%x" % LOG2E)
    for s in range(4):
        A("s_waitcnt lgkmcnt(%d)" % (3 - s))
        for t in range(2):
            mfma(SR + 4 * t, KR + (t * 4 + s) * 4, QR + 4 * s, None if s == 0 else SR + 4 * t)
    T = KR
    vH0, vH1, vFL, vTG = "v%d" % (T + 28), "v%d" % (T + 29), "v%d" % (T + 26), "v%d" % (T + 27)
    A("v_mov_b32 %s, %d" % (vFL, L_FLAG))
    A("s_lshl_b32 %s, %s, 5" % (t3, sW))
    A("v_mov_b32 v%d, %s" % (T + 31, t3))
    A("ds_read_b64 v[%d:%d], %s" % (T + 26, T + 27, vFL))
    if "b" in o["tsp"]:
        tail_issue(1); A("s_nop 1")
    elif o["adap"] == "b": adaptive()
    else: A("s_nop 2")
    C("scores: bf16(qk) -> * scale -> bf16   (the reference's two roundings)")
    for i in range(8):
        A("v_cvt_pk_bf16_f32 v%d, 0, v%d" % (SR + i, SR + i))
    for i in range(4):
        A("v_pk_mul_f32 %s, %s, s[46:47] op_sel_hi:[1,0]" % (P2(SR + 2 * i), P2(SR + 2 * i)))
    for i in range(8):
        A("v_cvt_pk_bf16_f32 v%d, 0, v%d" % (SR + i, SR + i))
    vm, vt, vl = "v%d" % (T + 4), "v%d" % (T + 6), "v%d" % (T + 5)
    A("v_max3_f32 %s, v%d, v%d, v%d" % (vm, SR, SR + 1, SR + 2))
    A("v_max3_f32 %s, v%d, v%d, v%d" % (vt, SR + 3, SR + 4, SR + 5))
    A("v_max3_f32 %s, %s, v%d, v%d" % (vm, vm, SR + 6, SR + 7))
    A("v_max_f32 %s, %s, %s" % (vm, vm, vt))
    allred(vm, vt, "v_max_f32", 16)
    if "c" in o["tsp"]: tail_issue(1)
    if o["adap"] == "c": adaptive()
    allred(vm, vt, "v_max_f32", 32)
    A("v_mul_f32 %s, s48, %s" % (vm, vm))
    for i in range(4):
        A("v_pk_fma_f32 %s, %s, s[48:49], %s op_sel_hi:[1,0,0] neg_lo:[0,0,1] neg_hi:[0,0,1]" % (P2(SR + 2 * i), P2(SR + 2 * i), P2(T + 4)))
    for i in range(8):
        A("v_exp_f32 v%d, v%d" % (SR + i, SR + i))
    if "d" in o["tsp"]: tail_issue(1)
    for i in range(4):
        A("v_cvt_pk_bf16_f32 v%d, v%d, v%d" % (T + 8 + i, SR + 2 * i, SR + 2 * i + 1))
    for i in range(8):
        for r in range(2):
            A("v_perm_b32 v%d, v%d, v%d, v%d" % (PA + 2 * i + r, T + 8 + (i >> 1), T + 8 + (i >> 1), SEL + 2 * (i & 1) + r))
    stamp(4)
    O0, O1, Y = QR, QR + 4, QR + 8
    def pv(i):
        assert 7 - i + nav[0] >= 0
        A("s_waitcnt vmcnt(%d)" % (7 - i + nav[0]))
        if o["adap"] and i < min(7, o["Wa"]):
            A("s_cmp_gt_i32 %s, %d" % (sNE, i))
            A("s_cbranch_scc1 L_had%d" % i)
            tail_issue(1)
            LB("L_had%d" % i)
        elif i >= o["tlag"]: tail_issue((2 if i < o.get("tdbl", 0) else 1) if i < o.get("tlast", 7) else 9)
        vr = VR + 4 * i
        mfma16(O0, PA + 2 * i, vr, None if i == 0 else O0)
        mfma16(O1, PA + 2 * i, vr + 2, None if i == 0 else O1)
    A("v_pk_add_f32 %s, %s, %s" % (P2(SR), P2(SR), P2(SR + 2)))
    A("v_pk_add_f32 %s, %s, %s" % (P2(SR + 4), P2(SR + 4), P2(SR + 6)))
    A("v_pk_add_f32 %s, %s, %s" % (P2(SR), P2(SR), P2(SR + 4)))
    A("v_add_f32 %s, v%d, v%d" % (vl, SR, SR + 1))
    allred(vl, vt, "v_add_f32", 16)
    allred(vl, vt, "v_add_f32", 32)
    A("ds_write_b64 %s, v[%d:%d] offset:%d" % (vMLW, T + 4, T + 5, L_ML))
    A("s_waitcnt lgkmcnt(0)")
    A("v_readfirstlane_b32 %s, %s" % (sFAST, vFL))
    A("v_readfirstlane_b32 %s, %s" % (sTAG, vTG))
    SO = 4
    def soffs():
        A("s_and_b32 %s, %s, 0x2000" % (t0, sFAST))
        A("v_add_u32 %s, %s, %s" % (vL3, t0, vL3))
        A("s_or_b32 s3, s3, %s" % t0)
        for k in range(1, 8): A("s_xor_b32 s%d, s3, 0x%x" % (SO + k - 1, k << 9))
    nshot = [0]
    SD = [12, 20, 44, 64, 72, 80, 88] if not o["stamps"] else None
    def sshot(bit):
        if o["lastfin"] < 2 or not (o.get("sshot", 2) & bit): return
        nshot[0] += 1
        A("s_bitcmp0_b32 %s, 1" % sFAST)
        A("s_cbranch_scc1 L_noshot%d" % nshot[0])
        for k in range(1, 8):
            if o["lastfin"] == 2: A("s_load_dword s%d, %s, s%d offset:12 %s" % (12 + k, sWS, SO + k - 1, o.get("sfl", "glc")))
            else: A("s_load_dwordx8 s[%d:%d], %s, s%d glc" % (SD[k - 1], SD[k - 1] + 7, sWS, SO + k - 1))
        LB("L_noshot%d" % nshot[0])
    HA = T + 16
    ML = T
    OB = T + 8
    G2 = SR
    vM, vLs = "v124", "v125"
    for i in range(o["b2"]): pv(i)
    if o.get("dbgb2"): A("s_memrealtime s[70:71]")
    A("s_barrier")
    if o.get("dbgb2"): A("s_memrealtime s[72:73]")
    A("ds_read_b128 v[%d:%d], v%d offset:%d" % (ML, ML + 3, T + 31, L_ML))
    A("ds_read_b128 v[%d:%d], v%d offset:%d" % (ML + 4, ML + 7, T + 31, L_ML + 16))
    if not o["hlate"]:
        A("ds_read_b32 %s, %s offset:%d" % (vH0, vHA, L_H))
        A("ds_read_b32 %s, %s offset:%d" % (vH1, vHA, L_H + 16))
    avote = o["vote"] and not o["lastfin"]
    if avote:
        A("v_mov_b32 v%d, 0" % (T + 30))
        A("ds_read_b32 v%d, v%d offset:%d" % (T + 30, T + 30, L_FLAG + 8))
    if not o["cq2"]:
        A("s_mov_b32 s54, 0x55555555")
        A("s_mov_b32 s55, 0x55555555")
    A("v_mov_b32 v%d, %s" % (G2 + 3, sTAG))
    A("s_waitcnt lgkmcnt(%d)" % ((0 if o["hlate"] else 2) + (1 if avote else 0)))
    A("v_max3_f32 %s, v%d, v%d, v%d" % (vM, ML, ML + 2, ML + 4))
    A("v_max_f32 %s, %s, v%d" % (vM, vM, ML + 6))
    for w_ in range(4):
        A("v_sub_f32 v%d, v%d, %s" % (ML + 2 * w_, ML + 2 * w_, vM))
    for w_ in range(4):
        A("v_exp_f32 v%d, v%d" % (ML + 2 * w_, ML + 2 * w_))
    A("s_waitcnt lgkmcnt(0)")
    A("v_mul_f32 %s, v%d, v%d" % (vLs, ML, ML + 1))
    for w_ in range(1, 4):
        A("v_fmac_f32 %s, v%d, v%d" % (vLs, ML + 2 * w_, ML + 2 * w_ + 1))
    def h_operands():
        for a in range(2):
            for r in range(4):
                A("v_and_b32 v%d, %s, v%d" % (HA + 4 * a + r, (vH0, vH1)[a], MK + r))
    A("v_log_f32 v%d, %s" % (G2 + 2, vLs))
    A("v_rcp_f32 %s, %s" % (vLs, vLs))
    if not o["hlate"]: h_operands()
    else: A("s_nop 0")
    if avote: A("v_add_u32 %s, v%d, %s" % (vL3, T + 30, vL3))
    A("v_add_f32 v%d, v%d, %s" % (G2 + 2, G2 + 2, vM))
    for w_ in range(4):
        A("v_mul_f32 v%d, v%d, %s" % (ML + 2 * w_, ML + 2 * w_, vLs))
    for i in range(o["b2"], 8): pv(i)
    stamp(5)
    if o.get("nosync"):
        A("s_waitcnt vmcnt(0)")
        stamp(6)
        A("s_branch L_done")
    A("s_nop 6")
    A("ds_write_b128 %s, v[%d:%d] offset:%d" % (vOW, O0, O0 + 3, L_O))
    A("ds_write_b128 %s, v[%d:%d] offset:%d" % (vOW, O1, O1 + 3, L_O + OH))
    A("s_waitcnt lgkmcnt(0)")
    A("s_barrier")
    if o["cq2"]:
        OB4, AC = VR, VR + 16
        A("s_mov_b32 exec_hi, 0")
        for w_ in range(4):
            A("ds_read_b128 v[%d:%d], %s offset:%d" % (OB4 + 4 * w_, OB4 + 4 * w_ + 3, vOR, L_O + w_ * OWV))
        A("s_bitcmp0_b32 %s, 0" % sFAST)
        for w_ in range(4):
            A("s_waitcnt lgkmcnt(%d)" % (3 - w_))
            for hf in range(2):
                if w_ == 0: A("v_pk_mul_f32 %s, %s, %s op_sel_hi:[1,0]" % (P2(AC + 2 * hf), P2(OB4 + 2 * hf), P2(ML)))
                else: A("v_pk_fma_f32 %s, %s, %s, %s op_sel_hi:[1,0,1]" % (P2(AC + 2 * hf), P2(OB4 + 4 * w_ + 2 * hf), P2(ML + 2 * w_), P2(AC + 2 * hf)))
    else:
        for w_ in range(4):
            A("ds_read_b64 v[%d:%d], %s offset:%d" % (OB + 2 * w_, OB + 2 * w_ + 1, vOR, L_O + w_ * 2048))
        A("s_bitcmp0_b32 %s, 0" % sFAST)
        for w_ in range(4):
            A("s_waitcnt lgkmcnt(%d)" % (3 - w_))
            op = "v_mul_f32" if w_ == 0 else "v_fmac_f32"
            A("%s v%d, v%d, v%d" % (op, G2, ML + 2 * w_, OB + 2 * w_))
            A("%s v%d, v%d, v%d" % (op, G2 + 1, ML + 2 * w_, OB + 2 * w_ + 1))
    tails = []
    def publish(addr, g, name):
        A("s_cbranch_scc1 L_slow_%s" % name)
        A("global_store_dwordx4 %s, v[%d:%d], %s %s" % (addr, g, g + 3, sWS, o.get("stfl", "")))
        LB("L_back_%s" % name)
        tails.append((name, addr, g))
    if o["cq2"]:
        A("v_cvt_pk_bf16_f32 v%d, v%d, v%d" % (G2, AC, AC + 1))
        A("v_cvt_pk_bf16_f32 v%d, v%d, v%d" % (G2 + 1, AC + 2, AC + 3))
    else:
        A("v_cvt_pk_bf16_f32 v%d, v%d, v%d" % (G2, G2, G2 + 1))
        A("s_nop 1")
        A("v_mov_b32_dpp v%d, v%d quad_perm:[1,1,3,3] %s" % (G2 + 1, G2, DPP))
        A("s_mov_b64 exec, s[54:55]")
    publish(vS2, G2, "h2")
    A("s_mov_b64 exec, -1")
    stamp(6)
    P = T
    for i in range(2):
        A("global_load_dwordx4 v[%d:%d], %s, %s offset:%d %s" % (P + 4 * i, P + 4 * i + 3, vL2, sWS, i * 1024, o.get("p2fl", "sc1")))
    for t_ in dnl: A(t_)
    if o["hlate"]:
        A("s_barrier")
        A("ds_read_b32 %s, %s offset:%d" % (vH0, vHA, L_H))
        A("ds_read_b32 %s, %s offset:%d" % (vH1, vHA, L_H + 16))
    A("s_mov_b32 %s, %d" % (sCNT, o["spinmax"]))
    vTAG = "v127"
    sT2 = sTAG
    if o["reuse"]:
        sT2 = "s62"
        A("s_not_b32 %s, %s" % (t0, sTAG))
        A("s_lshl_b32 %s, %s, 24" % (t0, t0))
        A("s_and_b32 s62, %s, 0xffffff" % sTAG)
        A("s_or_b32 s62, s62, %s" % t0)
    A("v_mov_b32 %s, %s" % (vTAG, sT2))
    for k in range(4):
        A("s_mov_b32 s%d, 0x%x" % (56 + k, 0x07060500 | k))
        A("s_bfe_u32 s%d, %s, 0x%x" % (60 + k if k < 2 else 50 + k, sT2, 0x80000 | (8 * k)))
    TB = ["s60", "s61", "s52", "s53"]
    if o["hlate"]:
        A("s_waitcnt lgkmcnt(0)")
        h_operands()
    ndn_early = 2 - len(dnl)
    if o["lastfin"] >= 2: soffs()
    if o.get("mockx"): ndn_early = 0
    else: A("s_waitcnt vmcnt(%d)" % (3 + len(dnl)))
    if o.get("dbgwo"): A("s_memrealtime s[68:69]")
    for a in range(ndn_early):
        mfma(Y, HA + 4 * a, DNR + 4 * a, None if a == 0 else Y)
    if dnl:
        A("s_waitcnt vmcnt(%d)" % len(dnl))
        A("s_branch L_chk2b")
    else:
        A("s_branch L_chk2")
    LB("L_poll2")
    MS = ["s[44:45]", "s[46:47]"]
    for i in range(2):
        if o["mask2"]: A("s_mov_b64 exec, %s" % MS[i])
        A("global_load_dwordx4 v[%d:%d], %s, %s offset:%d sc1" % (P + 4 * i, P + 4 * i + 3, vL2, sWS, i * 1024))
    if o["mask2"]: A("s_mov_b64 exec, -1")
    A("s_sub_u32 %s, %s, 1" % (sCNT, sCNT))
    A("s_cbranch_scc1 L_end")
    LB("L_chk2")
    A("s_waitcnt vmcnt(0)")
    LB("L_chk2b")
    A("v_max_f32 %s, v%d, v%d" % (vM, P + 2, P + 6))
    for i in range(2):
        A("v_cmp_ne_u32 %s, %s, v%d" % (MS[i], sTAG, P + 4 * i + 3))
    A("v_max_f32_dpp %s, %s, %s row_ror:4 %s" % (vM, vM, vM, DPP))
    A("s_or_b64 vcc, %s, %s" % (MS[0], MS[1]))
    A("s_cbranch_scc1 L_poll2")
    stamp(7)
    if o.get("tpos", "g") == "g":
        for t_ in taft: A(t_)
    sshot(1)
    U = T + 8
    def unp(i, k):
        if k & 1: A("v_and_b32 v%d, %s, v%d" % (U + 4 * i + k, t1, P + 4 * i + (k >> 1)))
        else: A("v_lshlrev_b32 v%d, 16, v%d" % (U + 4 * i + k, P + 4 * i + (k >> 1)))
    vt2 = "v126"
    A("v_max_f32_dpp %s, %s, %s row_ror:8 %s" % (vM, vM, vM, DPP))
    A("v_mov_b32 %s, %s" % (vt2, vM))
    unp(0, 0); unp(0, 1)
    A("v_permlane16_swap_b32 %s, %s" % (vt2, vM))
    A("v_max_f32 %s, %s, %s" % (vM, vM, vt2))
    A("v_mov_b32 %s, %s" % (vt2, vM))
    unp(0, 2); unp(0, 3)
    A("v_permlane32_swap_b32 %s, %s" % (vt2, vM))
    A("v_max_f32 %s, %s, %s" % (vM, vM, vt2))
    w0, w1 = "v120", "v122"
    A("v_sub_f32 %s, v%d, %s" % (w0, P + 2, vM))
    A("v_sub_f32 %s, v%d, %s" % (w1, P + 6, vM))
    A("v_exp_f32 %s, %s" % (w0, w0))
    A("v_exp_f32 %s, %s" % (w1, w1))
    unp(1, 0)
    den, tA, tB = "v126", "v124", "v123"
    A("v_add_f32 %s, %s, %s" % (den, w0, w1))
    unp(1, 1); unp(1, 2)
    A("v_add_f32_dpp %s, %s, %s row_ror:4 %s" % (den, den, den, DPP))
    unp(1, 3)
    A("v_pk_mul_f32 %s, %s, v[120:121] op_sel_hi:[1,0]" % (P2(U), P2(U)))
    A("v_add_f32_dpp %s, %s, %s row_ror:8 %s" % (den, den, den, DPP))
    A("v_pk_mul_f32 %s, %s, v[120:121] op_sel_hi:[1,0]" % (P2(U + 2), P2(U + 2)))
    A("v_pk_fma_f32 %s, %s, v[122:123], %s op_sel_hi:[1,0,1]" % (P2(U), P2(U + 4), P2(U)))
    A("v_pk_fma_f32 %s, %s, v[122:123], %s op_sel_hi:[1,0,1]" % (P2(U + 2), P2(U + 6), P2(U + 2)))
    A("v_mov_b32 %s, %s" % (tA, den))
    A("s_bitcmp0_b32 %s, 0" % sFAST)
    A("v_permlane32_swap_b32 v%d, v%d" % (U, U + 2))
    A("v_permlane32_swap_b32 v%d, v%d" % (U + 1, U + 3))
    A("v_permlane32_swap_b32 %s, %s" % (tA, den))
    A("v_pk_add_f32 %s, %s, %s" % (P2(U), P2(U), P2(U + 2)))
    A("v_add_f32 %s, %s, %s" % (den, den, tA))
    A("s_mov_b32 %s, %d" % (sCNT, o["spinmax"]))
    A("v_permlane16_swap_b32 v%d, v%d" % (U, U + 1))
    A("v_mov_b32 %s, %s" % (tA, den))
    A("v_add_f32 v%d, v%d, v%d" % (U, U, U + 1))
    A("s_nop 0")
    A("v_permlane16_swap_b32 %s, %s" % (tA, den))
    A("v_add_f32_dpp v%d, v%d, v%d row_ror:4 %s" % (U, U, U, DPP))
    A("v_add_f32 %s, %s, %s" % (den, den, tA))
    A("v_rcp_f32 %s, %s" % (den, den))
    A("v_add_f32_dpp v%d, v%d, v%d row_ror:8 %s" % (U, U, U, DPP))
    a0 = "v125"
    A("v_mul_f32 %s, v%d, %s" % (a0, U, den))
    A("v_cvt_pk_bf16_f32 %s, %s, %s" % (a0, a0, a0))
    if o.get("mockx"):
        GX, PXS = 120, VR
        A("v_mov_b32 v%d, %s" % (GX + 3, sTAG))
        A("s_cmp_gt_u32 %s, 1" % sW)
        A("v_mov_b32_dpp v%d, %s quad_perm:[0,0,2,2] %s" % (GX, a0, DPP))
        A("v_mov_b32_dpp v%d, %s quad_perm:[1,1,3,3] %s" % (GX + 1, a0, DPP))
        A("s_cselect_b64 exec, 0, 15")
        A("global_store_dwordx4 %s, v[%d:%d], %s sc1" % (vS3, GX, GX + 3, sWS))
        A("s_mov_b64 exec, -1")
        stamp(1)
        if o.get("tpos") == "x":
            for t_ in taft: A(t_)
        A("s_mov_b64 exec, 0xff")
        LB("L_pollx")
        A("global_load_dwordx4 v[%d:%d], %s, %s sc1" % (PXS, PXS + 3, vL3, sWS))
        A("s_sub_u32 %s, %s, 1" % (sCNT, sCNT))
        A("s_cbranch_scc1 L_end")
        A("s_waitcnt vmcnt(0)")
        A("v_cmp_ne_u32 vcc, %s, v%d" % (sTAG, PXS + 3))
        A("v_mov_b32 %s, v%d" % (a0, PXS))
        A("s_and_b64 exec, exec, vcc")
        A("s_cbranch_scc1 L_pollx")
        A("s_mov_b64 exec, -1")
        stamp(10)
        A("s_bitcmp0_b32 %s, 0" % sFAST)
        for a in range(2):
            mfma(Y, HA + 4 * a, DNR + 4 * a, None if a == 0 else Y)
        ndn_early = 2
    A("s_nop 1")
    WA = T
    for m in range(4):
        for r in range(4):
            A("v_and_b32_dpp v%d, %s, v%d row_newbcast:%d %s" % (WA + 4 * m + r, a0, MK + r, m, DPP))
        if m > 0:
            mfma(Y, WA + 4 * (m - 1), WOR + 4 * (m - 1), Y if (m > 1 or ndn_early) else None)
    if dnl:
        A("s_waitcnt vmcnt(0)")
        for a in range(ndn_early, 2):
            mfma(Y, HA + 4 * a, DNR + 4 * a, Y)
    else:
        A("s_nop 1")
    mfma(Y, WA + 12, WOR + 12, Y)
    A("s_mov_b32 exec_hi, 0")
    if o["reuse"]:
        A("s_barrier")
        A("s_nop 5")
    else:
        A("s_nop 6")
    for k in range(4):
        A("v_perm_b32 v%d, v%d, %s, s%d" % (Y + k, Y + k, vTAG, 56 + k))
    publish(vS25, Y, "h25")
    stamp(8)
    sshot(2)
    def tail_g25():
        PS = T + 16
        A("s_cmp_lg_u32 %s, %d" % (sW, o["gw"]))
        A("s_cbranch_scc1 L_done")
        A("s_mov_b64 exec, -1")
        if o.get("ack25") == 1: A("s_waitcnt vmcnt(0)")
        NP = o["np25"]
        PK = [PS, PS + 8, WOR, WOR + 8, DNR]
        def ask(k):
            A("global_load_dwordx4 v[%d:%d], %s, %s sc1" % (PK[k], PK[k] + 3, vL25, sWS))
            A("global_load_dwordx4 v[%d:%d], v164, %s sc1" % (PK[k] + 4, PK[k] + 7, sWS))
        def look(k):
            A("s_waitcnt vmcnt(%d)" % (2 * NP - 1))
            for q in range(4): A("v_xor_b32 v%d, %s, v%d" % (P + q, TB[q], PK[k] + q))
            A("v_or3_b32 %s, v%d, v%d, v%d" % (tA, P, P + 1, P + 2))
            A("s_waitcnt vmcnt(%d)" % (2 * NP - 2))
            for q in range(4): A("v_xor_b32 v%d, %s, v%d" % (P + 4 + q, TB[q], PK[k] + 4 + q))
            A("v_or3_b32 %s, %s, v%d, v%d" % (tA, tA, P + 3, P + 4))
            A("v_or3_b32 %s, %s, v%d, v%d" % (tA, tA, P + 5, P + 6))
            A("v_or_b32_sdwa %s, %s, v%d dst_sel:DWORD dst_unused:UNUSED_PAD src0_sel:BYTE_0 src1_sel:BYTE_0" % (tA, tA, P + 7))
            A("v_cmp_ne_u32 vcc, 0, %s" % tA)
            A("s_and_b64 exec, exec, vcc")
        def masks():
            A("s_lshl_b32 s46, 0x01010101, %s" % sH)
            A("s_not_b32 s46, s46")
            A("s_mov_b32 s47, s46")
            if o["cq25"]:
                A("s_lshr_b32 s41, %s, 2" % sJ)
                A("s_and_b32 s41, s41, 6")
                A("s_bfe_u32 %s, %s, 0x10001" % (t0, sJ))
                A("s_or_b32 s41, s41, %s" % t0)
        if NP == 1:
            masks()
            LB("L_poll25")
            ask(0)
            A("s_sub_u32 %s, %s, 1" % (sCNT, sCNT))
            A("s_cbranch_scc1 L_end")
            look(0)
            A("s_cbranch_scc1 L_poll25")
        else:
            pre = o.get("pre25", 1)
            for k in range(NP):
                if k == pre:
                    if o.get("ack25") == 2: A("s_waitcnt vmcnt(%d)" % (2 * pre))
                    for _ in range(o.get("stag25", 0)): A("s_nop 7")
                ask(k)
            masks()
            LB("L_poll25")
            for k in range(NP):
                look(k)
                A("s_cbranch_scc0 L_got25")
                ask(k)
            A("s_sub_u32 %s, %s, 1" % (sCNT, sCNT))
            A("s_cbranch_scc0 L_poll25")
            A("s_endpgm")
            LB("L_got25")
        A("s_mov_b64 exec, -1")
        stamp(9)
        if o.get("ampm"): A("s_memrealtime s[86:87]")
        x_, y_ = "v%d" % P, "v%d" % (P + 1)
        A("v_pk_add_f32 %s, %s, %s" % (P2(P), P2(P), P2(P + 4)))
        A("v_pk_add_f32 %s, %s, %s" % (P2(P + 2), P2(P + 2), P2(P + 6)))
        if o["cq25"]:
            A("s_cmp_eq_u32 s41, %s" % sH)
            A("s_nop 0")
        else:
            A("s_lshr_b32 %s, %s, 2" % (t0, sJ) if o["finhi"] else "s_and_b32 %s, %s, 7" % (t0, sJ))
            A("s_cmp_eq_u32 %s, %s" % (t0, sH))
        A("v_permlane32_swap_b32 v%d, v%d" % (P, P + 2))
        A("v_permlane32_swap_b32 v%d, v%d" % (P + 1, P + 3))
        A("v_pk_add_f32 %s, %s, %s" % (P2(P), P2(P), P2(P + 2)))
        A("v_mov_b32 v%d, %s" % (P + 3, sTAG))
        A("s_mov_b32 s44, 0xff")
        for rot_ in (4, 8):
            A("v_add_f32_dpp %s, %s, %s row_ror:%d %s" % (x_, x_, x_, rot_, DPP))
            A("v_add_f32_dpp %s, %s, %s row_ror:%d %s" % (y_, y_, y_, rot_, DPP))
            if rot_ == 4: A("s_mov_b32 s45, s44")
        A("v_mov_b32 v%d, %s" % (P + 4, x_))
        A("v_mov_b32 v%d, %s" % (P + 5, y_))
        A("s_nop 0")
        A("v_permlane16_swap_b32 v%d, %s" % (P + 4, x_))
        A("v_permlane16_swap_b32 v%d, %s" % (P + 5, y_))
        A("v_pk_add_f32 %s, %s, %s" % (P2(P), P2(P), P2(P + 4)))
        A("s_cbranch_scc1 L_final")
        A("s_mov_b64 exec, s[44:45]")
        A("global_store_dwordx4 %s, v[%d:%d], %s sc1" % (vS3, P, P + 3, sWS))
        A("s_branch L_done")
        LB("L_final")
        if o.get("stfin"): stamp(1)
        if o.get("xstag"): A("global_load_dword %s, %s, %s nt" % (vXP, vXF, sX))
        A("s_mov_b64 exec, s[46:47]")
        NP = o["np3"]
        PS = VR
        X = P + 4
        A("global_load_dwordx4 v[%d:%d], %s, %s sc1" % (PS, PS + 3, vL3, sWS))
        A("s_mov_b64 exec, -1")
        A("s_mov_b32 %s, %d" % (sCNT, o["spinmax"]))
        for q in range(4):
            for r in range(2):
                A("v_mov_b32_dpp v%d, v%d row_newbcast:%d row_mask:0x%x bank_mask:0x%x" % (X + r, P + r, q, (5, 10)[q >> 1], (3, 12)[q & 1]))
        if not o.get("xstag"):
            A("v_lshlrev_b32 v%d, 16, %s" % (P, vXP))
            A("v_and_b32 v%d, %s, %s" % (P + 1, t1, vXP))
            A("v_pk_add_f32 %s, %s, %s" % (P2(X), P2(X), P2(P)))
        A("s_mov_b32 s44, 0x01010101")
        A("s_mov_b32 s45, s44")
        A("s_mov_b64 exec, s[46:47]")
        for k in range(1, NP):
            if o.get("xstag") and k == 1: A("s_waitcnt vmcnt(1)")
            for _ in range(o.get("stag3", 0) + (2 if k > 1 and o.get("stag3") else 0)): A("s_nop 7")
            A("global_load_dwordx4 v[%d:%d], %s, %s sc1" % (PS + 4 * k, PS + 4 * k + 3, vL3, sWS))
        LB("L_poll3")
        for k in range(NP):
            A("s_waitcnt vmcnt(%d)" % (NP - 1))
            A("v_cmp_ne_u32 vcc, %s, v%d" % (sTAG, PS + 4 * k + 3))
            A("v_mov_b32 v%d, v%d" % (X, PS + 4 * k))
            A("v_mov_b32 v%d, v%d" % (X + 1, PS + 4 * k + 1))
            A("s_and_b64 exec, exec, vcc")
            A("s_cbranch_scc0 L_got3")
            A("global_load_dwordx4 v[%d:%d], %s, %s sc1" % (PS + 4 * k, PS + 4 * k + 3, vL3, sWS))
        A("s_sub_u32 %s, %s, 1" % (sCNT, sCNT))
        A("s_cbranch_scc0 L_poll3")
        A("s_endpgm")
        LB("L_got3")
        stamp(10)
        if o.get("ampf"):
            A("s_waitcnt vmcnt(0)")
            A("s_memrealtime s[86:87]")
        A("s_mov_b64 exec, -1")
        x_, y_ = "v%d" % X, "v%d" % (X + 1)
        fl = ["s_cmp_lg_u32 s2, 0", "s_nop 0"]
        if o.get("xstag"): fl = ["v_lshlrev_b32 %s, 16, %s" % (tA, vXP), "v_and_b32 %s, %s, %s" % (tB, t1, vXP)]
        for pat in ("quad_perm:[1,0,3,2]", "quad_perm:[2,3,0,1]", "row_half_mirror"):
            A("v_add_f32_dpp %s, %s, %s %s %s" % (x_, x_, x_, pat, DPP))
            A("v_add_f32_dpp %s, %s, %s %s %s" % (y_, y_, y_, pat, DPP))
            if fl: A(fl.pop(0))
        if o.get("xstag"):
            A("v_add_f32 %s, %s, %s" % (x_, x_, tA))
            A("v_add_f32 %s, %s, %s" % (y_, y_, tB))
            A("s_cmp_lg_u32 s2, 0")
        A("v_cvt_pk_bf16_f32 %s, %s, %s" % (x_, x_, y_))
        A("s_mov_b64 exec, s[44:45]")
        A("global_store_dword %s, %s, %s %s" % (vXF, x_, sOUT, o.get("ofl", "")))
        if o.get("ampf"):
            A("s_waitcnt vmcnt(0)")
            A("s_memrealtime s[88:89]")
            A("s_waitcnt lgkmcnt(0)")
            A("s_sub_u32 s88, s88, s86")
            A("s_mul_i32 s88, s88, 40")
            A("s_min_u32 s88, s88, 20000")
            A("s_add_u32 s88, s88, 1500")
            LB("L_fspin")
            A("s_memrealtime s[92:93]")
            A("s_waitcnt lgkmcnt(0)")
            A("s_sub_u32 s92, s92, s90")
            A("s_cmp_lt_u32 s92, s88")
            A("s_cbranch_scc1 L_fspin")
            A("s_cmp_lg_u32 s2, 0")
        A("s_cbranch_scc1 L_done")
        C("the next launch must not mistake this launch's hand-off words for its own")
        if o["efull"]:
            A("s_mov_b64 exec, 0xff")
            A("v_lshlrev_b32 %s, 4, v0" % tA)
            for q in range(4): A("v_mov_b32 v%d, %s" % (P + q, sTAG))
            A("global_store_dwordx4 %s, v[%d:%d], %s %s" % (tA, P, P + 3, sWS, o.get("efl", "")))
        else:
            A("s_mov_b64 exec, 1")
            A("v_mov_b32 %s, 0" % tA)
            A("v_mov_b32 %s, %s" % (tB, sTAG))
            A("global_store_dword %s, %s, %s %s" % (tA, tB, sWS, o.get("efl", "")))
    nkeep = len(L)
    NP = o["np25"]
    PS = T + 16
    if o.get("ack25") == 1: A("s_waitcnt vmcnt(0)")
    sshot(8)
    for _ in range(o.get("dly25", 0)): A("s_nop 7")
    for k in range(NP):
        if k == 1 and o.get("ack25") == 2: A("s_waitcnt vmcnt(1)")
        if k == 1:
            for _ in range(o.get("stag25", 0)): A("s_nop 7")
        A("global_load_dwordx4 v[%d:%d], %s, %s sc1" % (PS + 4 * k, PS + 4 * k + 3, vL25, sWS))
    sshot(4)
    LB("L_poll25")
    for k in range(NP):
        A("s_waitcnt vmcnt(%d)" % (NP - 1))
        for q in range(4):
            A("v_xor_b32 v%d, %s, v%d" % (P + q, TB[q], PS + 4 * k + q))
        A("v_or3_b32 %s, v%d, v%d, v%d" % (tA, P, P + 1, P + 2))
        A("v_or_b32_sdwa %s, %s, v%d dst_sel:DWORD dst_unused:UNUSED_PAD src0_sel:BYTE_0 src1_sel:BYTE_0" % (tA, tA, P + 3))
        A("v_cmp_ne_u32 vcc, 0, %s" % tA)
        if o["mask25"]:
            A("s_and_b64 exec, exec, vcc")
            A("s_cbranch_scc0 L_got25")
        else:
            A("s_cbranch_vccz L_got25")
        A("global_load_dwordx4 v[%d:%d], %s, %s sc1" % (PS + 4 * k, PS + 4 * k + 3, vL25, sWS))
    A("s_sub_u32 %s, %s, 1" % (sCNT, sCNT))
    A("s_cbranch_scc0 L_poll25")
    A("s_endpgm")
    LB("L_got25")
    A("s_mov_b64 exec, -1")
    stamp(9)
    if o.get("ampm"): A("s_memrealtime s[86:87]")
    x_, y_ = "v%d" % P, "v%d" % (P + 1)
    A("v_permlane16_swap_b32 v%d, v%d" % (P, P + 2))
    A("v_permlane16_swap_b32 v%d, v%d" % (P + 1, P + 3))
    A("v_add_f32 %s, %s, v%d" % (x_, x_, P + 2))
    A("v_add_f32 %s, %s, v%d" % (y_, y_, P + 3))
    fl = ["v_mov_b32 v%d, %s" % (P + 3, sTAG), "s_and_b32 %s, %s, 7" % (t0, sJ), "s_cmp_eq_u32 %s, %s" % (t0, sH), "s_nop 0"]
    if o["lastfin"]: fl = ["v_mov_b32 v%d, %s" % (P + 3, sTAG), "s_bitcmp1_b32 %s, 1" % sFAST, "s_nop 0", "s_nop 0"]
    for rot_ in (1, 2, 4, 8):
        A(fl.pop(0))
        A("v_add_f32_dpp %s, %s, %s row_ror:%d %s" % (x_, x_, x_, rot_, DPP))
        A("v_add_f32_dpp %s, %s, %s row_ror:%d %s" % (y_, y_, y_, rot_, DPP))
    def old_final():
        if o.get("ewg"): A("s_xor_b32 s63, s2, %d" % o["ewg"])
        if o.get("otouch"):
            A("global_load_dword v158, %s, %s" % (vXF, sOUT))
        if o.get("xstag"): A("global_load_dword %s, %s, %s %s" % (vXP, vXF, sX, o["xstag"] if isinstance(o["xstag"], str) else "nt"))
        A("s_lshl_b32 %s, 0x10001, %s" % (t0, sH))
        A("s_andn2_b32 exec_lo, 0xff00ff, %s" % t0)
        A("s_mov_b32 exec_hi, 0")
        A("s_mov_b32 %s, %d" % (sCNT, o["spinmax"]))
        NP = o["np3"]
        PS = VR
        if o["lastfin"] == 2 and o.get("sshot", 2):
            A("s_waitcnt lgkmcnt(0)")
            for k in range(1, 8): A("s_xor_b32 s%d, s%d, %s" % (12 + k, 12 + k, sTAG))
            A("s_or_b32 s13, s13, s14")
            A("s_or_b64 s[16:17], s[16:17], s[18:19]")
            A("s_or_b32 s13, s13, s15")
            A("s_or_b32 s16, s16, s17")
            if o["stamps"]: A("s_memrealtime s[68:69]")
            A("s_or_b32 s13, s13, s16")
            if o["stamps"]: A("s_cselect_b32 s66, 1, 2")
            A("s_cbranch_scc1 L_ask3")
            A("global_load_dwordx4 v[%d:%d], %s, %s %s" % (PS, PS + 3, vL3, sWS, o.get("hfl", "")))
            A("s_branch L_poll3")
            LB("L_ask3")
        for k in range(NP):
            if o.get("xstag") and k == 1: A("s_waitcnt vmcnt(1)")
            A("global_load_dwordx4 v[%d:%d], %s, %s sc1" % (PS + 4 * k, PS + 4 * k + 3, vL3, sWS))
        LB("L_poll3")
        for k in range(NP):
            A("s_waitcnt vmcnt(%d)" % (NP - 1))
            A("v_cmp_ne_u32 vcc, %s, v%d" % (sTAG, PS + 4 * k + 3))
            A("v_mov_b32 v%d, v%d" % (P, PS + 4 * k))
            A("v_mov_b32 v%d, v%d" % (P + 1, PS + 4 * k + 1))
            A("s_and_b64 exec, exec, vcc")
            A("s_cbranch_scc0 L_got3")
            A("global_load_dwordx4 v[%d:%d], %s, %s sc1" % (PS + 4 * k, PS + 4 * k + 3, vL3, sWS))
        A("s_sub_u32 %s, %s, 1" % (sCNT, sCNT))
        A("s_cbranch_scc0 L_poll3")
        A("s_endpgm")
        LB("L_got3")
        stamp(10)
        A("s_mov_b32 exec_lo, -1")
        A("v_lshlrev_b32 %s, 16, %s" % (tA, vXP))
        A("v_and_b32 %s, %s, %s" % (tB, t1, vXP))
        for pat in ("quad_perm:[1,0,3,2]", "quad_perm:[2,3,0,1]", "row_half_mirror"):
            A("v_add_f32_dpp %s, %s, %s %s %s" % (x_, x_, x_, pat, DPP))
            A("v_add_f32_dpp %s, %s, %s %s %s" % (y_, y_, y_, pat, DPP))
            if pat != "row_half_mirror": A("s_nop 0")
        A("v_add_f32 %s, %s, %s" % (x_, x_, tA))
        A("v_add_f32 %s, %s, %s" % (y_, y_, tB))
        if o.get("perturb"):
            import struct
            bits = struct.unpack("<I", struct.pack("<f", float(o["perturb"])))[0]
            if o.get("pall"):
                A("v_mul_f32 %s, 0x%x, %s" % (x_, bits, x_)); A("v_mul_f32 %s, 0x%x, %s" % (y_, bits, y_))
            else:
                A("s_or_b32 %s, s2, %s" % (t0, sW))
                A("s_cselect_b32 %s, 0, 0x%x" % (t0, bits))
                A("v_add_f32 %s, %s, %s" % (x_, t0, x_))
        A("v_cvt_pk_bf16_f32 %s, %s, %s" % (x_, x_, y_))
        A("s_mov_b64 exec, 0x10001")
        A("global_store_dword %s, %s, %s %s" % (vXF, x_, sOUT, o.get("ofl", "")))
        A("s_or_b32 %s, %s, %s" % (t0, sJ if o["lastfin"] else "s2" if not o.get("ewg") else "s63", sW))
        A("s_cbranch_scc1 L_done")
        C("the next launch must not mistake this launch's hand-off words for its own")
        A("v_mov_b32 %s, 0" % tA)
        A("v_mov_b32 %s, %s" % (tB, sTAG))
        A("global_store_dword %s, %s, %s %s" % (tA, tB, sWS, o.get("efl", "")))
    def diag_end():
        if o.get("ampm"):
            A("s_or_b32 %s, %s, %s" % (t0, sJ, sW))
            A("s_cbranch_scc1 L_nom")
            A("s_mov_b64 exec, -1")
            A("s_waitcnt lgkmcnt(0)")
            A("s_lshl_b32 %s, %s, 2" % (t0, sH))
            A("v_mov_b32 v2, %s" % t0)
            A("s_or_b32 s86, s86, 1")
            A("v_mov_b32 v3, s86")
            A("global_store_dword v2, v3, s[24:25] offset:192 sc1")
            A("s_cmp_lg_u32 s2, 0")
            A("s_cbranch_scc1 L_nom")
            A("v_and_b32 v2, 7, v0")
            A("v_lshlrev_b32 v2, 2, v2")
            A("s_movk_i32 s85, 1000")
            LB("L_mpoll")
            A("global_load_dword v3, v2, s[24:25] offset:192 sc1")
            A("global_load_dword v4, v2, s[24:25] offset:128 sc1")
            A("s_sub_u32 s85, s85, 1")
            A("s_cbranch_scc1 L_nom")
            A("s_waitcnt vmcnt(0)")
            A("v_cmp_eq_u32 vcc, 0, v3")
            A("s_cbranch_vccnz L_mpoll")
            for g_ in range(8): A("v_readlane_b32 s%d, v3, %d" % (64 + g_, g_))
            for g_ in range(8): A("v_readlane_b32 s%d, v4, %d" % (72 + g_, g_))
            A("s_nop 3")
            for g_ in range(16): A("s_sub_u32 s%d, s%d, s90" % (64 + g_, 64 + g_))
            md = o["ampm"]
            if md >= 10:
                for g_ in range(8): A("s_mov_b32 s%d, s%d" % (64 + g_, 72 + g_))
                md -= 10
            key = {1: 64, 2: 72}.get(md)
            A("s_mov_b32 s80, s64")
            A("s_mov_b32 s81, s%d" % (key or 64))
            A("s_mov_b32 s82, 0x80000000")
            for g_ in range(1, 8):
                if key:
                    A("s_cmp_gt_i32 s%d, s81" % (key + g_))
                    A("s_cselect_b32 s83, s80, s%d" % (64 + g_))
                    A("s_cselect_b32 s80, s%d, s80" % (64 + g_))
                    A("s_cselect_b32 s81, s%d, s81" % (key + g_))
                    A("s_max_i32 s82, s82, s83")
                else:
                    A("s_max_i32 s82, s82, s%d" % (64 + g_))
            A("s_sub_i32 s88, s80, s82")
            A("s_add_i32 s88, s88, 100")
            A("s_max_i32 s88, s88, 0")
            A("s_mul_i32 s88, s88, 20")
            A("s_min_u32 s88, s88, 20000")
            A("s_add_u32 s88, s88, 1500")
            LB("L_mspin")
            A("s_memrealtime s[92:93]")
            A("s_waitcnt lgkmcnt(0)")
            A("s_sub_u32 s92, s92, s90")
            A("s_cmp_lt_u32 s92, s88")
            A("s_cbranch_scc1 L_mspin")
            LB("L_nom")
        if o.get("lateh") is not None:
            A("s_or_b32 %s, s2, %s" % (t0, sW))
            A("s_cbranch_scc1 L_nolate")
            A("s_mov_b64 exec, -1")
            A("v_and_b32 v2, 7, v0")
            A("v_lshlrev_b32 v2, 2, v2")
            A("global_load_dword v3, v2, s[24:25] sc1")
            A("s_waitcnt vmcnt(0)")
            for g_ in range(8): A("v_readlane_b32 s%d, v3, %d" % (64 + g_, g_))
            A("s_nop 3")
            for g_ in range(8): A("s_sub_u32 s%d, s%d, s90" % (64 + g_, 64 + g_))
            A("s_mov_b32 s72, s64")
            for g_ in range(1, 8): A("s_min_i32 s72, s72, s%d" % (64 + g_))
            if o["lateh"] == 8:
                A("s_mov_b32 s88, s64")
                for g_ in range(1, 8): A("s_max_i32 s88, s88, s%d" % (64 + g_))
            else:
                A("s_mov_b32 s88, s%d" % (64 + o["lateh"]))
            A("s_sub_u32 s88, s88, s72")
            A("s_mul_i32 s88, s88, 20")
            A("s_min_u32 s88, s88, 20000")
            A("s_add_u32 s88, s88, 1500")
            A("s_add_u32 s88, s88, s72")
            LB("L_latespin")
            A("s_memrealtime s[92:93]")
            A("s_waitcnt lgkmcnt(0)")
            A("s_sub_u32 s92, s92, s90")
            A("s_cmp_lt_u32 s92, s88")
            A("s_cbranch_scc1 L_latespin")
            LB("L_nolate")
        amp_end("")
        if o.get("pad"):
            LB("L_padspin")
            A("s_memrealtime s[92:93]")
            A("s_waitcnt lgkmcnt(0)")
            A("s_sub_u32 s92, s92, s90")
            A("s_cmp_lt_u32 s92, %d" % o["pad"])
            A("s_cbranch_scc1 L_padspin")
    if o.get("mockx"):
        A("v_lshlrev_b32 %s, 16, %s" % (tA, vXP))
        A("v_and_b32 %s, %s, %s" % (tB, t1, vXP))
        A("v_add_f32 %s, %s, %s" % (x_, x_, tA))
        A("v_add_f32 %s, %s, %s" % (y_, y_, tB))
        A("v_cvt_pk_bf16_f32 %s, %s, %s" % (x_, x_, y_))
        A("s_mov_b64 exec, 0x10001")
        A("s_cbranch_scc0 L_done")
        A("global_store_dword %s, %s, %s" % (vXF, x_, sOUT))
        A("s_or_b32 %s, s2, %s" % (t0, sW))
        A("s_cbranch_scc1 L_done")
        A("v_mov_b32 %s, 0" % tA)
        A("v_mov_b32 %s, %s" % (tB, sTAG))
        A("global_store_dword %s, %s, %s" % (tA, tB, sWS))
        A("s_branch L_done")
    A("s_cbranch_scc1 L_final")
    A("s_mov_b64 exec, 0x%x" % (0x30003 if o["rep3"] or o["vote"] else 0x10001))
    A("global_store_dwordx4 %s, v[%d:%d], %s sc1" % (vS3, P, P + 3, sWS))
    if o.get("wb"):
        A("s_or_b32 %s, %s, %s" % (t0, sW, sJ) if o["wb"] == 1 else "s_and_b32 %s, %s, 3" % (t0, sW))
        A("s_cmp_lg_u32 %s, %d" % (t0, 8 if o["wb"] == 1 else 0))
        A("s_cbranch_scc1 L_done")
        A("buffer_wbl2 sc1")
    A("s_branch L_done")
    LB("L_final")
    if o["lastfin"] == 1:
        A("s_mov_b64 exec, 0x10001")
        A("ds_write_b128 %s, v[%d:%d] offset:%d" % (vL3, P, P + 3, L_FIN))
        A("s_waitcnt lgkmcnt(0)")
    else:
        old_final()
    if o["g25"]:
        del L[nkeep:]
        tail_g25()
    LB("L_done")
    diag_end()
    dump_stamps()
    A("s_endpgm")
    for name, addr, g in tails:
        LB("L_slow_%s" % name)
        A("global_store_dwordx4 %s, v[%d:%d], %s sc1" % (addr, g, g + 3, sWS))
        A("s_branch L_back_%s" % name)
    if o["lastfin"] == 1: unit_final()
    LB("L_end")
    A("s_endpgm")
    head = HEADER.format(lds=o.get("lds", LDS_BYTES), k=KNAME); foot = FOOTER.format(k=KNAME, vg=o.get("vg", 168), sg=96)
    if o["align"]: L = align_runs(L, head, foot, o.get("minrun", 3), o.get("nopmin", 6))
    return head + "\n".join(L) + foot


if __name__ == "__main__":
    kw = {}
    out = "parallel_sum__sliding_block_cached__swiglu_ffn__decode.s"
    for a in sys.argv[1:]:
        k, v = a.split("=", 1)
        if k == "out": out = v; continue
        try: v = int(v) if k != "nlv" else v
        except ValueError: pass
        kw[k] = v
    open(out, "w").write(gen(**kw))
```

```python
import sys

KNAME = "parallel_sum__sliding_block_cached__swiglu_ffn__decode_kernel"

HEADER = """; Kernarg layout for this problem (96 bytes, ptrs only, base s[0:1]):
;   offset  72: d_out     shape=(1, 1, 512) dtype=bfloat16
; @launch grid=(256,1,1) block=(320,1,1) lds={lds}
.amdgcn_target "amdgcn-amd-amdhsa--gfx950"
.text
.globl {k}
.p2align 8
.type {k},@function
{k}:
"""
FOOTER = """
.section .rodata,"a"
.p2align 6
.amdhsa_kernel {k}
  .amdhsa_next_free_vgpr {vg}
  .amdhsa_next_free_sgpr {sg}
  .amdhsa_accum_offset {vg}
  .amdhsa_group_segment_fixed_size 0
  .amdhsa_kernarg_size 96
  .amdhsa_user_sgpr_count 2
  .amdhsa_user_sgpr_kernarg_segment_ptr 1
  .amdhsa_system_sgpr_workgroup_id_x 1
.end_amdhsa_kernel
"""

MB1A = 0x40000
MB1B = 0x80000
MB2 = 0x100000
MB25 = 0x400000
MB3 = 0x1C0000
STAMPS = 0x10000000
L_WQ = 0
L_FF = 16384
L_XN = 32768
L_Q = 33792
L_H = 34816
L_FLAG = 34848
L_VOTE = 34864
L_ML = 34880
L_TKT = 35008
L_FIN = L_XN
L_O = 35072
L_K = L_O + 8192
L_K = (L_K + 1023) // 1024 * 1024
LDS_BYTES = L_K + 32768
TAGC = 0x9E3779B9
LOG2E = 0x3FB8AA3B
SCALE = 0x3DB504F3
EPS = 0x3727C5AC
DPP = "row_mask:0xf bank_mask:0xf"

DEF = dict(stamps=False, spinmax=200000, WK=5, W=6, Wtail=8, b0pos=45, nt="nt", pretouch="k", atries=24,
           prefetch=True, b2=7, ntail0=0, tlag=0, mask2=False, pt1=True, rotm=4, rep3=False, tsp="a", auxearly=True, hlate=False, vote=True, np25=2, np3=6, ack25=2, align=1, unr=2, mask25=True, lperm=0, nlv="43434343", reuse=1, rp=2176, bonly=0, bdefer=4, bskip=1, lastfin=0, npu=1, stag=0, g25=1, gw=0, pt3=1, finhi=1, efull=0, stouch=0, cq2=0, cq25=0, vlate=1, idearly=0, adap="", Wa=6, stl=15, tw=0, stl2=0, stw=15, est=0)


def _sizes(text):
    import subprocess, tempfile, os, re
    d = tempfile.mkdtemp()
    open(d + "/a.s", "w").write(text)
    subprocess.run(["clang", "-x", "assembler", "-target", "amdgcn-amd-amdhsa", "-mcpu=gfx950", "-c", d + "/a.s", "-o", d + "/a.o"], check=True)
    out = subprocess.run(["llvm-objdump", "-d", "--mcpu=gfx950", d + "/a.o"], capture_output=True, text=True).stdout
    r = []
    for ln in out.split("\n"):
        m = re.search(r"^\s+(\S+).*// ([0-9A-F]{12}): ((?:[0-9A-F]{8} ?)+)", ln)
        if m: r.append((m.group(1), 4 * len(m.group(3).split())))
    return r


def align_runs(L, head, foot, minrun=3, nopmin=6):
    ins = [i for i, l in enumerate(L) if l.startswith("    ") and not l.strip().startswith(";")]
    sz = _sizes(head + "\n".join(L) + foot)
    assert len(sz) == len(ins), (len(sz), len(ins))
    size = {i: s_[1] for i, s_ in zip(ins, sz)}
    mn = {i: s_[0] for i, s_ in zip(ins, sz)}
    out = list(L); extra = {}
    off = 0; k = 0
    while k < len(ins):
        i = ins[k]
        if size[i] == 8 and off % 8 == 4:
            run = 0
            while k + run < len(ins) and size[ins[k + run]] == 8: run += 1
            if run >= minrun:
                b = k - 1; done = False
                while b >= 0 and size[ins[b]] == 4:
                    j = ins[b]
                    if mn[j] == "s_nop" and int(out[j].split()[1]) >= 1:
                        out[j] = "    s_nop 0\n    s_nop %d" % (int(out[j].split()[1]) - 1)
                        size[j] = 8; off += 4; done = True
                        break
                    if mn[j].endswith("_e32") and not mn[j].startswith(("v_readfirstlane", "v_permlane")):
                        op = out[j].split()[0]
                        out[j] = out[j].replace(op, op.replace("_e32", "") + "_e64", 1)
                        size[j] = 8; off += 4; done = True
                        break
                    b -= 1
                if not done and run >= nopmin and k > 0 and not mn[ins[k - 1]].startswith(("s_branch", "s_endpgm")):
                    extra[i] = True; off += 4; done = True
                if not done and k > 0 and mn[ins[k - 1]].startswith(("s_branch", "s_endpgm")):
                    extra[ins[k - 1] + 1] = True; off += 4
            for q in range(run): off += 8
            k += run
            continue
        off += size[i]; k += 1
    res = []
    for i, l in enumerate(out):
        if i in extra: res.append("    s_nop 0")
        res.append(l)
    return res


def gen(**kw):
    o = dict(DEF); o.update(kw)
    MB3 = o.get("mb3", globals()["MB3"])
    L = []
    def A(s): L.append("    " + s)
    def LB(s): L.append(s + ":")
    def C(s): L.append("    ; " + s)
    nt = o["nt"]
    NSTAMP = 12
    role = ["U"]
    def stamp(i):
        if o.get("amp") == "%s%d" % (role[0], i): A("s_memrealtime s[88:89]" if not o.get("cyc") else "s_memtime s[88:89]")
        if o.get("ampg") == "%s%d" % (role[0], i): A("s_memrealtime s[86:87]")
        if o.get("amp0") == "%s%d" % (role[0], i): A("s_memrealtime s[86:87]" if not o.get("cyc") else "s_memtime s[86:87]")
        if o["stamps"] and (i in (0, 11) or o.get("sel") is None or ("%s%d" % (role[0], i)) in o["sel"].split(",")):
            A("s_memrealtime s[%d:%d]" % (64 + 2 * i, 65 + 2 * i))
    def mfma(d, a, b, c):
        A("v_mfma_f32_16x16x32_bf16 v[%d:%d], v[%d:%d], v[%d:%d], %s" % (d, d + 3, a, a + 3, b, b + 3, "0" if c is None else "v[%d:%d]" % (c, c + 3)))
    def mfma16(d, a, b, c):
        A("v_mfma_f32_16x16x16_bf16 v[%d:%d], v[%d:%d], v[%d:%d], %s" % (d, d + 3, a, a + 1, b, b + 1, "0" if c is None else "v[%d:%d]" % (c, c + 3)))
    def allred(v, tmp, op, which):
        A("v_mov_b32 %s, %s" % (tmp, v))
        A("s_nop 1")
        A("v_permlane%d_swap_b32 %s, %s" % (which, tmp, v))
        A("%s %s, %s, %s" % (op, v, v, tmp))
    sX, sK, sV, sWQ, sWO, sG, sU, sDN, sOUT, sWS = "s[4:5]", "s[6:7]", "s[8:9]", "s[10:11]", "s[12:13]", "s[16:17]", "s[18:19]", "s[20:21]", "s[22:23]", "s[26:27]"
    sW, sH, sJ, sTAG, sXCC, sCNT, sFAST = "s30", "s31", "s32", "s33", "s34", "s35", "s36"
    t0, t1, t2, t3 = "s37", "s38", "s39", "s40"
    def dump_stamps():
        if not o["stamps"]: return
        if role[0] == "U" and o.get("sel") is not None and "U" not in o["sel"]: return
        A("s_mov_b64 exec, 1")
        if o.get("endwait"): A("s_waitcnt vmcnt(0)")
        stamp(11)
        A("s_waitcnt lgkmcnt(0)")
        A("s_mul_i32 %s, s2, 5" % t0)
        A("s_add_u32 %s, %s, %s" % (t0, t0, sW))
        A("s_lshl_b32 %s, %s, 7" % (t0, t0))
        A("s_add_u32 %s, %s, 0x%x" % (t0, t0, STAMPS))
        A("v_mov_b32 v2, %s" % t0)
        for i in range(NSTAMP):
            A("v_mov_b32 v3, s%d" % (64 + 2 * i))
            A("global_store_dword v2, v3, %s offset:%d" % (sWS, 4 * i))
        A("v_mov_b32 v3, %s" % ("s63" if role[0] == "U" and o["vote"] else sCNT))
        A("global_store_dword v2, v3, %s offset:%d" % (sWS, 4 * NSTAMP))
        if o.get("dbgfail"):
            for q_, r_ in enumerate(("s84", "s62", "s63")):
                A("v_mov_b32 v3, %s" % r_)
                A("global_store_dword v2, v3, %s offset:%d" % (sWS, 4 * NSTAMP + 8 + 4 * q_))
        A("s_getreg_b32 %s, hwreg(HW_REG_HW_ID)" % t1)
        A("v_mov_b32 v3, %s" % t1)
        A("global_store_dword v2, v3, %s offset:%d" % (sWS, 4 * NSTAMP + 4))

    def amp_end(sfx):
        if o.get("ampg"):
            A("s_waitcnt vmcnt(0) lgkmcnt(0)")
            A("s_memrealtime s[88:89]")
            A("s_mov_b64 exec, -1")
            A("v_and_b32 v2, 7, v0")
            A("v_lshlrev_b32 v2, 2, v2")
            A("global_load_dword v3, v2, s[24:25] offset:128 sc1")
            A("s_waitcnt vmcnt(0) lgkmcnt(0)")
            for g_ in range(8): A("v_readlane_b32 s%d, v3, %d" % (64 + g_, g_))
            A("s_nop 3")
            if o["ampg"] != 1:
                for g_ in range(8): A("s_sub_u32 s%d, s86, s%d" % (64 + g_, 64 + g_))
                for g_ in range(1, 8): A("s_max_i32 s64, s64, s%d" % (64 + g_))
                A("s_sub_u32 s88, s86, s64")
                A("s_mul_i32 s64, s64, 10")
            else:
                for g_ in range(8): A("s_sub_u32 s%d, s88, s%d" % (64 + g_, 64 + g_))
                for g_ in range(1, 8): A("s_max_i32 s64, s64, s%d" % (64 + g_))
                A("s_mul_i32 s64, s64, 9")
            A("s_min_u32 s64, s64, 20000")
            A("s_add_u32 s64, s64, 1500")
            LB("L_ampgspin" + sfx)
            A("s_memrealtime s[92:93]")
            A("s_waitcnt lgkmcnt(0)")
            A("s_sub_u32 s92, s92, s88")
            A("s_cmp_lt_u32 s92, s64")
            A("s_cbranch_scc1 L_ampgspin" + sfx)
        if o.get("amp"):
            if o["amp"] == "end": A("s_memrealtime s[88:89]")
            A("s_waitcnt lgkmcnt(0)")
            A("s_sub_u32 s88, s88, %s" % ("s86" if o.get("amp0") else "s90"))
            A("s_mul_i32 s88, s88, %d" % o.get("ampk", 10))
            A("s_min_u32 s88, s88, 20000")
            A("s_add_u32 s88, s88, 1500")
            LB("L_ampspin" + sfx)
            A("s_memrealtime s[92:93]")
            A("s_waitcnt lgkmcnt(0)")
            A("s_sub_u32 s92, s92, s90")
            A("s_cmp_lt_u32 s92, s88")
            A("s_cbranch_scc1 L_ampspin" + sfx)
    nlv = [int(c) for c in str(o["nlv"])]
    assert len(nlv) == 8 and sum(nlv) == 28 and min(nlv) >= 0 and max(nlv) <= 4
    LUT_d = sum((4 - n) << (4 * i) for i, n in enumerate(nlv))
    LUT_D = sum((4 * i - sum(nlv[:i])) << (4 * i) for i in range(8))
    def ffn_share(l0, d):
        A("s_lshl_b32 %s, %s, 2" % (l0, sH))
        A("s_lshr_b32 %s, 0x%x, %s" % (d, LUT_D, l0))
        A("s_and_b32 %s, %s, 7" % (d, d))
        A("s_sub_u32 s3, %s, %s" % (l0, d))
        A("s_lshr_b32 %s, 0x%x, %s" % (d, LUT_d, l0))
        A("s_and_b32 %s, %s, 7" % (d, d))
    stamp(0)
    if o.get("pad") or o.get("bal") or o.get("amp") or o.get("ampg") or o.get("ampm") or o.get("ampf") or o.get("lateh") is not None: A("s_memrealtime s[90:91]")
    A("s_cmp_ge_u32 s2, 256")
    A("s_cbranch_scc1 L_end")
    A("s_load_dwordx16 s[4:19], s[0:1], 0")
    A("s_load_dwordx8 s[20:27], s[0:1], 64")
    A("v_lshrrev_b32 v1, 6, v0")
    A("v_and_b32 v0, 63, v0")
    A("v_readfirstlane_b32 %s, v1" % sW)
    A("s_and_b32 %s, s2, 7" % sH)
    A("s_lshr_b32 %s, s2, 3" % sJ)
    if o.get("bal") or o.get("lateh") is not None or o.get("ampg") or o.get("ampm"):
        A("s_or_b32 %s, %s, %s" % (t0, sJ, sW))
        A("s_cbranch_scc1 L_noflag")
        A("s_lshl_b32 %s, %s, 2" % (t0, sH))
        A("v_mov_b32 v108, %s" % t0)
        A("s_waitcnt lgkmcnt(0)")
        A("s_or_b32 %s, s90, 1" % t0)
        A("v_mov_b32 v109, %s" % t0)
        A("global_store_dword v108, v109, s[24:25] offset:%d sc1" % (128 if o.get("ampg") or o.get("ampm") else 0))
        LB("L_noflag")
    A("s_cmp_eq_u32 %s, 4" % sW)
    A("s_cbranch_scc0 %s" % ("L_race" if o["vote"] else "L_attn"))

    C("wave 4: layernorm, one [128 x 64] tile of wq and one of gate/up, exchange of q and of the FFN hidden values")
    A("s_setprio 3")
    if o["idearly"] == 1:
        A("v_mov_b32 v2, 0")
        A("v_and_b32 v3, 12, v0")
        A("ds_write_b32 v3, v2 offset:%d" % L_VOTE)
    if o["prefetch"]:
        A("s_getpc_b64 s[28:29]")
        LB("L_pc")
        A("v_lshlrev_b32 v2, 7, v0")
        A("v_min_u32 v2, L_end-L_pc-%d, v2" % o.get("pfo", 192))
        A("global_load_dword v127, v2, s[28:29] offset:%d" % o.get("pfo", 192))
        if o.get("pf2", o["stamps"] or o.get("ampg")):
            A("v_mov_b32 v2, L_end-L_pc")
            A("v_lshlrev_b32 v3, 7, v0")
            A("v_min_u32 v3, 1024, v3")
            A("v_sub_u32 v2, v2, v3")
            A("global_load_dword v126, v2, s[28:29]")
    sQK, sNOFF = "s50", "s51"
    A("v_lshlrev_b32 v3, 4, v0")
    A("v_lshrrev_b32 v6, 3, v0")
    A("v_and_b32 v5, 2, v6")
    A("v_and_b32 v7, 7, v0")
    A("v_xor_b32 v5, v5, v7")
    A("v_lshlrev_b32 v7, 4, v5")
    A("s_and_b32 %s, %s, 3" % (sQK, sJ))
    A("s_lshl_b32 %s, %s, 10" % (t0, sH))
    if o["lperm"]:
        A("s_andn2_b32 %s, %s, 3" % (t1, sJ))
        A("s_lshr_b32 %s, 0x%x, %s" % (t1, o["lperm"], t1))
        A("s_and_b32 s55, %s, 7" % t1)
    else:
        A("s_lshr_b32 s55, %s, 2" % sJ)
    A("s_lshl_b32 %s, s55, 7" % t1)
    A("s_lshl_b32 %s, %s, 20" % (t2, sQK))
    A("s_add_u32 %s, %s, %s" % (t0, t0, t1))
    A("s_add_u32 %s, %s, %s" % (t0, t0, t2))
    A("v_lshl_add_u32 v4, v6, 13, v7")
    A("v_add_u32 v4, %s, v4" % t0)
    A("v_xor_b32 v5, 64, v4")
    A("v_add_u32 v5, 0x10000, v5")
    A("s_mov_b32 m0, %d" % L_WQ)
    A("s_mov_b32 %s, 0x20000" % t1)
    if o.get("ucontig"):
        A("s_lshl_b32 %s, s2, 10" % t0)
        A("v_add_u32 v4, %s, v3" % t0)
        A("v_add_u32 v5, 0x40000, v4")
        A("s_mov_b32 %s, 0x80000" % t1)
    A("s_movk_i32 s41, 1024")
    A("s_waitcnt lgkmcnt(0)")
    if o["est"] & 1: A("s_load_dword s60, %s, %s" % (sWQ, t2))
    if o["est"] & 2:
        A("s_load_dword s61, %s, 0" % sG)
        A("s_load_dword s62, %s, 0" % sU)
    if o["est"] & 4: A("s_load_dword s63, %s, 0" % sX)
    A("global_load_dwordx4 v[8:11], v3, %s" % sX)
    A("s_load_dword %s, %s, 0" % (sTAG, sWS))
    def dma_loop(name, base, step):
        A("s_mov_b32 %s, %d" % (t2, 16 // o["unr"]))
        LB(name)
        for i in range(o["unr"]):
            vv = ("v4", "v5")[i & 1]
            A("global_load_lds_dwordx4 %s, %s %s" % (vv, base, nt))
            A("s_add_u32 m0, m0, s41")
            A("v_add_u32 %s, %s, %s" % (vv, step, vv))
        A("s_sub_u32 %s, %s, 1" % (t2, t2))
        A("s_cmp_lg_u32 %s, 0" % t2)
        A("s_cbranch_scc1 %s" % name)
    dma_loop("L_wq_loop", sWQ, t1)
    if o["b0pos"] == 16: A("s_barrier")
    ffn_share(t0, t3)
    A("s_lshr_b32 %s, %s, 3" % (t1, sJ))
    A("s_add_u32 %s, s3, %s" % (t0, t1))
    A("s_add_u32 %s, %s, %s" % (sNOFF, t1, t3))
    A("s_mul_i32 %s, %s, 3584" % (t1, sQK))
    A("s_add_u32 %s, %s, %s" % (t0, t0, t1))
    A("s_lshl_b32 %s, %s, 7" % (t0, t0))
    A("v_mul_u32_u24 v4, 3584, v6")
    A("v_add3_u32 v4, v4, v7, %s" % t0)
    A("v_xor_b32 v5, 64, v4")
    A("v_add_u32 v5, %d, v5" % (8 * 3584))
    A("s_mov_b32 %s, %d" % (t1, 16 * 3584))
    if o.get("ucontig"):
        A("s_lshr_b32 %s, s2, 1" % t0)
        A("s_min_u32 %s, %s, 111" % (t0, t0))
        A("s_lshl_b32 %s, %s, 10" % (t0, t0))
        A("v_add_u32 v4, %s, v3" % t0)
        A("v_add_u32 v5, %d, v4" % (112 * 1024))
        A("s_mov_b32 %s, %d" % (t1, 224 * 1024))
    A("s_bitcmp0_b32 %s, %d" % (("s2", 0) if o.get("ucontig") else (sJ, 2)))
    A("s_cselect_b64 s[42:43], %s, %s" % (sG, sU))
    A("s_cmp_ge_u32 %s, 4" % sNOFF)
    A("s_cselect_b64 exec, 1, -1")
    dma_loop("L_ff_loop", "s[42:43]", t1)
    A("s_mov_b64 exec, -1")
    if o["vote"]:
        A("s_branch L_unit2")
        LB("L_race")
        if o["tw"]:
            A("s_bitcmp1_b32 %s, 1" % sW)
            A("s_cbranch_scc1 L_norace")
        C("which of the two copies of the last hand-off lives nearer to this die: race two cold scalar loads of this wave's own lines")
        A("s_lshl_b32 %s, s2, 2" % t0)
        A("s_add_u32 %s, %s, %s" % (t0, t0, sW))
        A("s_lshr_b32 %s, %s, 6" % (t1, t0))
        A("s_lshl_b32 %s, %s, 14" % (t1, t1))
        A("s_and_b32 %s, %s, 63" % (t0, t0))
        A("s_lshl_b32 %s, %s, 7" % (t0, t0))
        A("s_add_u32 %s, %s, %s" % (t0, t0, t1))
        if MB3 == 0x200000: A("s_bitset1_b32 %s, 21" % t0)
        else: A("s_or_b32 %s, %s, 0x%x" % (t0, t0, MB3))
        A("s_lshl_b32 %s, %s, 13" % (t1, sW))
        A("s_and_b32 %s, %s, 0x2000" % (t1, t1))
        A("s_or_b32 s46, %s, %s" % (t0, t1))
        A("s_xor_b32 s47, s46, 0x2000")
        A("s_movk_i32 s28, 0x5bd1")
        A("s_movk_i32 s29, 0x5bd1")
        A("s_waitcnt lgkmcnt(0)")
        A("s_load_dword s28, %s, s46" % sWS)
        A("s_load_dword s29, %s, s47" % sWS)
        A("s_waitcnt lgkmcnt(1)")
        A("s_mov_b64 s[48:49], s[28:29]")
        LB("L_race_done")
        A("s_cmpk_lg_i32 s48, 0x5bd1")
        A("s_cselect_b32 %s, 1, 0" % t0)
        A("s_cmpk_lg_i32 s49, 0x5bd1")
        A("s_cselect_b32 %s, 1, 0" % t2)
        A("s_sub_i32 %s, %s, %s" % (t0, t0, t2))
        A("s_sub_i32 %s, 0, %s" % (t2, t0))
        A("s_cmp_eq_u32 %s, 0" % t1)
        A("s_cselect_b32 %s, %s, %s" % (t0, t0, t2))
        A("s_lshl_b32 %s, %s, 2" % (t2, sW))
        A("v_mov_b32 v158, %s" % t2)
        A("v_mov_b32 v159, %s" % t0)
        A("ds_write_b32 v158, v159 offset:%d" % L_VOTE)
        if o["tw"]: A("s_waitcnt lgkmcnt(1)")
        A("s_branch L_attn")
        LB("L_unit2")
    if o["pt1"]:
        C("pull this workgroup's own hand-off lines into L2 before anyone polls them")
        A("s_lshl_b32 %s, %s, 15" % (t0, sH))
        A("s_lshl_b32 %s, %s, 8" % (t1, sJ))
        A("s_add_u32 %s, %s, %s" % (t0, t0, t1))
        A("s_add_u32 %s, %s, 0x%x" % (t0, t0, MB1A))
        A("v_and_b32 v33, 1, v0")
        A("v_bfe_u32 v32, v0, 1, 1")
        A("v_lshlrev_b32 v33, 7, v33")
        A("v_lshl_add_u32 v33, v32, 13, v33")
        A("s_mul_i32 %s, %s, 240" % (t1, sJ))
        A("s_sub_u32 %s, 0x4000, %s" % (t1, t1))
        A("v_cmp_lt_u32 vcc, 3, v0")
        A("v_mov_b32 v32, %s" % t1)
        A("s_nop 0")
        A("v_cndmask_b32 v33, v33, v32, vcc")
        A("v_add_u32 v33, %s, v33" % t0)
        A("global_load_dword v119, v33, %s sc1" % sWS)
    def tlbwarm():
        C("first touch of the pages the later loads use (address translation early, off their queue)")
        A("s_lshl_b32 %s, %s, 24" % (t0, sH))
        A("s_add_u32 %s, %s, 0xF00000" % (t0, t0))
        A("v_mov_b32 v112, %s" % t0)
        A("s_lshl_b32 %s, %s, 19" % (t0, sH))
        A("v_mov_b32 v113, %s" % t0)
        A("s_mul_i32 %s, %s, 0x38000" % (t0, sH))
        A("v_mov_b32 v114, %s" % t0)
        A("v_mov_b32 v115, 0x%x" % MB3)
        A("s_mov_b64 exec, 1")
        A("global_load_dword v116, v112, %s" % sK)
        A("global_load_dword v117, v112, %s" % sV)
        A("global_load_dword v118, v113, %s" % sWO)
        A("global_load_dword v111, v114, %s" % sDN)
        A("global_load_dword v110, v115, %s" % sWS)
        A("s_mov_b64 exec, -1")
    NW = 1 if o["pt1"] else 0
    if o.get("tlbw") == 2:
        tlbwarm(); NW += 5
    if o["b0pos"] == 32:
        if o.get("b0wait") is not None: A("s_waitcnt vmcnt(%d)" % o["b0wait"])
        A("s_barrier")
    stamp(1)
    XF = 12
    A("s_mov_b32 %s, 0xffff0000" % t1)
    A("s_waitcnt vmcnt(%d)" % (32 + NW))
    stamp(2)
    C("layernorm with the reference's bf16 roundings")
    for i in range(4):
        A("v_lshlrev_b32 v%d, 16, v%d" % (XF + 2 * i, 8 + i))
        A("v_and_b32 v%d, %s, v%d" % (XF + 2 * i + 1, t1, 8 + i))
    fill = []
    def F(s): fill.append(s)
    def nop2():
        n = 0
        while fill and n < 2:
            A(fill.pop(0)); n += 1
        if n < 2: A("s_nop %d" % (1 - n))
    TRB = 120
    vAX, vS1, vL1, vL1x, vL1a, vF, vTN, vTB = "v34", "v35", "v36", "v37", "v38", "v39", "v124", "v125"
    sRP, sB1 = "s52", "s53"
    F("v_lshrrev_b32 v126, 4, v0")
    F("v_bfe_u32 v4, v0, 2, 2")
    F("v_lshl_add_u32 v5, v126, 3, v4")
    F("v_and_b32 v6, 3, v0")
    F("v_lshlrev_b32 v7, 3, v6")
    F("v_lshl_add_u32 v5, v5, 7, v7")
    F("v_bfe_u32 v4, v0, 3, 2")
    for ct in range(4):
        F("v_xor_b32 v7, %d, v4" % ct)
        F("v_lshl_add_u32 v%d, v7, 5, v5" % (TRB + ct))
    F("s_lshl_b32 %s, %s, 8" % (t0, sQK))
    F("v_lshl_add_u32 %s, v126, 4, %s" % (vAX, t0))
    F("s_lshl_b32 %s, %s, 15" % (sB1, sH))
    F("s_add_u32 %s, %s, 0x%x" % (sB1, sB1, MB1A))
    def wavesum(v, tmp):
        for rot in (1, 2, 4, 8):
            nop2()
            A("v_add_f32_dpp %s, %s, %s row_ror:%d %s" % (v, v, v, rot, DPP))
        for which in (16, 32):
            A("v_mov_b32 %s, %s" % (tmp, v))
            nop2()
            A("v_permlane%d_swap_b32 %s, %s" % (which, tmp, v))
            A("v_add_f32 %s, %s, %s" % (v, v, tmp))
    def P2(r): return "v[%d:%d]" % (r, r + 1)
    A("v_pk_add_f32 v[22:23], %s, %s" % (P2(XF), P2(XF + 2)))
    A("v_pk_add_f32 v[24:25], %s, %s" % (P2(XF + 4), P2(XF + 6)))
    A("v_pk_add_f32 v[22:23], v[22:23], v[24:25]")
    A("v_add_f32 v22, v22, v23")
    wavesum("v22", "v23")
    A("v_mul_f32 v22, 0x3b000000, v22")
    DV = 24
    for i in range(4):
        A("v_pk_add_f32 %s, %s, v[22:23] op_sel_hi:[1,0] neg_lo:[0,1] neg_hi:[0,1]" % (P2(DV + 2 * i), P2(XF + 2 * i)))
    A("v_cvt_pk_bf16_f32 v22, 0, v22")
    A("v_pk_mul_f32 v[32:33], %s, %s" % (P2(DV), P2(DV)))
    for i in range(1, 4):
        A("v_pk_fma_f32 v[32:33], %s, %s, v[32:33]" % (P2(DV + 2 * i), P2(DV + 2 * i)))
    A("v_add_f32 v32, v32, v33")
    pre = ["v_pk_add_f32 %s, %s, v[22:23] op_sel_hi:[1,0] neg_lo:[0,1] neg_hi:[0,1]" % (P2(XF + 2 * i), P2(XF + 2 * i)) for i in range(4)]
    pre += ["v_cvt_pk_bf16_f32 v%d, 0, v%d" % (XF + i, XF + i) for i in range(8)]
    rest = fill[:]; fill[:] = pre
    wavesum("v32", "v33")
    fill[:] = fill + rest
    A("v_mul_f32 v32, 0x3b000000, v32")
    A("v_cvt_pk_bf16_f32 v32, 0, v32")
    A("v_add_f32 v32, 0x%x, v32" % EPS)
    A("v_cvt_pk_bf16_f32 v32, 0, v32")
    A("v_sqrt_f32 v32, v32")
    A(fill.pop(0))
    A("v_cvt_pk_bf16_f32 v32, 0, v32")
    A("v_rcp_f32 v32, v32")
    A(fill.pop(0))
    for i in range(4):
        A("v_pk_mul_f32 %s, %s, v[32:33] op_sel_hi:[1,0]" % (P2(XF + 2 * i), P2(XF + 2 * i)))
    for i in range(4):
        A("v_cvt_pk_bf16_f32 v%d, v%d, v%d" % (8 + i, XF + 2 * i, XF + 2 * i + 1))
    A("ds_write_b128 v3, v[8:11] offset:%d" % L_XN)
    while fill: A(fill.pop(0))
    A("s_lshl_b32 %s, s55, 2" % t2)
    A("s_add_u32 s55, %s, %s" % (t2, sQK))
    A("s_lshl_b32 %s, s55, 8" % t2)
    A("s_add_u32 %s, %s, %s" % (t2, t2, sB1))
    A("v_lshrrev_b32 v4, 2, v0")
    A("v_lshl_add_u32 %s, v4, 4, %s" % (vS1, t2))
    A("s_waitcnt lgkmcnt(0)")
    AF = 40
    for m in range(4):
        A("ds_read_b128 v[%d:%d], %s offset:%d" % (AF + 4 * m, AF + 4 * m + 3, vAX, L_XN + m * 64))
    A("s_add_u32 %s, %s, 0x%x" % (sTAG, sTAG, TAGC))
    A("v_lshlrev_b32 v4, 2, v6")
    A("v_lshrrev_b32 %s, v4, %s" % (vTN, sTAG))
    A("v_and_b32 %s, 15, %s" % (vTN, vTN))
    A("v_lshlrev_b32 v4, 3, v6")
    A("v_lshrrev_b32 %s, v4, %s" % (vTB, sTAG))
    A("v_and_b32 %s, 0xff, %s" % (vTB, vTB))
    A("s_mov_b32 s44, 0")
    A("s_mov_b32 s45, -1")
    XG = 28
    def die_id():
        if o["vote"]:
            assert o["b0pos"] <= 47 and not o["hlate"]
            A("v_mov_b32 v4, 0")
            A("ds_read_b128 v[112:115], v4 offset:%d" % L_VOTE)
        if o["lastfin"]:
            assert o["vote"]
            A("ds_read_b32 v116, v4 offset:%d" % L_TKT)
        A("s_getreg_b32 %s, hwreg(HW_REG_XCC_ID, 0, 4)" % sXCC)
        A("s_and_b32 %s, %s, 0xff" % (t0, sTAG))
        A("s_lshl_b32 %s, %s, 8" % (t2, sXCC))
        A("s_or_b32 s54, %s, %s" % (t0, t2))
        A("v_mov_b32 v%d, s54" % XG)
        for k in range(1, 4):
            A("s_bfe_u32 %s, %s, 0x%x" % (t0, sTAG, 0x80000 | (8 * k)))
            A("v_mov_b32 v%d, %s" % (XG + k, t0))
        if o["vote"]:
            A("s_waitcnt lgkmcnt(0)")
            A("v_add3_u32 v112, v112, v113, v114")
            A("v_add_u32 v112, v112, v115")
            A("v_lshl_add_u32 v%d, v112, 8, v%d" % (XG + 1, XG + 1))
        if o["lastfin"]:
            A("v_lshl_add_u32 v%d, v116, 8, v%d" % (XG + 2, XG + 2))
        A("s_lshl_b32 %s, %s, 4" % (t2, sJ))
        A("s_add_u32 %s, %s, %s" % (t2, t2, sB1))
        A("s_add_u32 %s, %s, 0x4000" % (t2, t2))
        A("v_mov_b32 v22, %s" % t2)
        A("v_add_u32 v109, 0x%x, v22" % (MB1B - MB1A))
        A("s_mov_b64 exec, 1")
        if o["bonly"]:
            A("global_store_dwordx4 v22, v[%d:%d], %s sc1" % (XG, XG + 3, sWS))
        else:
            A("global_store_dwordx4 v22, v[%d:%d], %s" % (XG, XG + 3, sWS))
            if not o["bdefer"]: A("global_store_dwordx4 v109, v[%d:%d], %s sc1" % (XG, XG + 3, sWS))
        A("s_mov_b64 exec, -1")
    if o["idearly"]: die_id()
    if o["b0pos"] == 40: A("s_barrier")
    stamp(3)
    BF = 56
    D0 = 88
    GR = 24
    def gemv(lbase, vm0):
        def rd(m, ct):
            b = BF + 16 * (m & 1)
            for hh in range(2):
                A("ds_read_b64_tr_b16 v[%d:%d], v%d offset:%d" % (b + 4 * ct + 2 * hh, b + 4 * ct + 2 * hh + 1, TRB + ct, lbase + m * 4096 + hh * 512))
        A("s_waitcnt vmcnt(%d)" % (vm0 + 12))
        for ct in range(4): rd(0, ct)
        for m in range(4):
            b = BF + 16 * (m & 1)
            if m < 3: A("s_waitcnt vmcnt(%d)" % (vm0 + 8 - 4 * m))
            if lbase == L_WQ and o["b0pos"] == 41 + m: A("s_barrier")
            for ct in range(4):
                A("s_waitcnt lgkmcnt(%d)" % (6 if m < 3 else 6 - 2 * ct))
                mfma(D0 + 4 * ct, AF + 4 * m, b + 4 * ct, None if m == 0 else D0 + 4 * ct)
                if m < 3: rd(m + 1, ct)
    def pack(maskc, vt, GR, vS1):
        A("s_mov_b32 vcc_lo, 0xffff0000")
        A("s_mov_b32 vcc_hi, 0xffff0000")
        A("s_movk_i32 %s, 0x%x" % (t0, maskc))
        A("s_nop 2")
        A("v_cndmask_b32 v%d, v%d, v%d, vcc" % (GR, D0, D0 + 4))
        A("s_nop 0")
        A("v_cndmask_b32 v%d, v%d, v%d, vcc" % (GR + 1, D0 + 8, D0 + 12))
        A("v_cndmask_b32 v%d, v%d, v%d, s[44:45]" % (GR, GR, GR + 1))
        A("v_and_or_b32 v%d, v%d, %s, %s" % (GR, GR, t0, vt))
        if o["bdefer"]:
            A("s_nop 1")
        else:
            A("v_add_u32 v22, 0x%x, %s" % (MB1B - MB1A, vS1))
            A("s_nop 0")
        for k in range(1, 4):
            A("v_mov_b32_dpp v%d, v%d quad_perm:[%d,%d,%d,%d] %s" % (GR + k, GR, k, k, k, k, DPP))
        A("s_mov_b32 exec_lo, 0x11111111")
        A("s_mov_b32 exec_hi, 0x11111111")
        if o["bonly"]:
            A("global_store_dwordx4 %s, v[%d:%d], %s sc1" % (vS1, GR, GR + 3, sWS))
        else:
            A("global_store_dwordx4 %s, v[%d:%d], %s" % (vS1, GR, GR + 3, sWS))
            if not o["bdefer"]: A("global_store_dwordx4 v22, v[%d:%d], %s sc1" % (GR, GR + 3, sWS))
        A("s_mov_b64 exec, -1")
    gemv(L_WQ, 16 + NW + (1 if o["idearly"] else 0))
    if o["b0pos"] == 45: A("s_barrier")
    pack(0xfff0, vTN, GR, vS1)
    if o["b0pos"] == 47: A("s_barrier")
    stamp(4)
    if not o["idearly"]: die_id()
    if o["b0pos"] == 50: A("s_barrier")
    A("s_sub_i32 %s, %s, s55" % (t2, sJ))
    A("s_lshl_b32 %s, %s, 8" % (t2, t2))
    A("s_add_u32 %s, %s, 0x2000" % (t2, t2))
    A("v_add_u32 v108, %s, %s" % (t2, vS1))
    A("s_cmp_ge_u32 %s, 4" % sNOFF)
    A("s_cbranch_scc1 L_noff2")
    gemv(L_FF, (2 if o['bonly'] or o['bdefer'] else 4) + NW)
    pack(0xff00, vTB, 104, "v108")
    LB("L_noff2")
    stamp(7)
    if o.get("nosync"):
        A("s_barrier")
        A("s_mov_b32 %s, 0" % sCNT)
        dump_stamps()
        A("s_endpgm")
    A("v_and_b32 v4, 15, v0")
    A("v_lshlrev_b32 v4, 4, v4")
    A("v_lshl_add_u32 v4, v126, 10, v4")
    A("s_add_u32 %s, %s, 2432" % (t0, sB1))
    A("v_add_u32 %s, %s, v4" % (vL1, t0))
    A("v_and_b32 v4, 31, v0")
    A("s_add_u32 %s, %s, 0x4000" % (t0, sB1))
    A("v_lshl_add_u32 %s, v4, 4, %s" % (vL1x, t0))
    A("s_lshl_b32 %s, %s, 1" % (t2, t3))
    A("s_sub_u32 %s, 8, %s" % (sRP, t2))
    A("s_mul_i32 %s, %s, %s" % (t2, sRP, sJ))
    A("s_sub_u32 %s, %s, 1" % (t0, sRP))
    A("v_and_b32 v4, 7, v0")
    A("v_min_u32 v4, %s, v4" % t0)
    A("v_add_u32 %s, %s, v4" % (vF, t2))
    A("v_lshrrev_b32 v4, 6, %s" % vF)
    A("v_bfe_u32 v5, v0, 3, 1")
    A("v_lshl_add_u32 v4, v4, 1, v5")
    A("v_lshl_add_u32 v4, v4, 2, v126")
    A("v_bfe_u32 v5, %s, 2, 4" % vF)
    A("v_lshlrev_b32 v5, 4, v5")
    A("v_lshl_add_u32 v4, v4, 8, v5")
    A("s_add_u32 %s, %s, 0x2000" % (t0, sB1))
    A("v_add_u32 %s, %s, v4" % (vL1a, t0))
    if min(nlv) == 0:
        A("s_cmp_lg_u32 %s, 0" % sRP)
        A("s_cbranch_scc1 L_has_ffn")
        A("v_mov_b32 %s, %s" % (vL1a, vL1x))
        LB("L_has_ffn")
    for k in range(4):
        A("s_bfe_u32 s%d, %s, 0x%x" % (56 + k, sTAG, 0x40000 | (4 * k)))
    A("s_movk_i32 s62, 255")
    A("s_mov_b32 s60, 0x0c0c0400")
    A("s_mov_b32 s61, 0x04000c0c")
    P = 40
    PX, PA_ = 72, 76
    A("s_mov_b32 %s, 0" % sCNT)
    def switch_copy(regs):
        A("s_add_u32 %s, %s, 1" % (sCNT, sCNT))
        if not o["bonly"]:
            if o.get("bskip"):
                A("s_cmp_ge_u32 %s, %d" % (sCNT, o["atries"]))
                A("s_cselect_b32 %s, 0x%x, 0" % (t0, MB1B ^ MB1A))
                for r in regs: A("v_xor_b32 %s, %s, %s" % (r, t0, r))
            else:
                A("s_cmp_eq_u32 %s, %d" % (sCNT, o["atries"]))
                A("s_cselect_b32 %s, 0x%x, 0" % (t0, MB1B - MB1A))
                for r in regs: A("v_add_u32 %s, %s, %s" % (r, t0, r))
        A("s_cmp_gt_u32 %s, %d" % (sCNT, o["spinmax"]))
        A("s_cbranch_scc1 L_end")
    def bytecheck(p, dst):
        A("v_perm_b32 v22, v%d, v%d, s60" % (p + 1, p))
        A("v_perm_b32 v23, v%d, v%d, s61" % (p + 3, p + 2))
        A("v_or_b32 v22, v22, v23")
        A("v_cmp_ne_u32 %s, %s, v22" % (dst, sTAG))
    for _ in range(o.get("dly1", 0)): A("s_nop 15")
    stamp(9)
    if o.get("freeq"): A("s_branch L_got1")
    LB("L_poll1")
    stamp(8)
    for i in range(2):
        for q in range(4):
            r = P + 16 * i + 4 * q
            A("global_load_dwordx4 v[%d:%d], %s, %s offset:%d sc1" % (r, r + 3, vL1, sWS, i * 4096 + q * 256 - 2432))
    A("global_load_dwordx4 v[%d:%d], %s, %s sc1" % (PX, PX + 3, vL1x, sWS))
    A("global_load_dwordx4 v[%d:%d], %s, %s sc1" % (PA_, PA_ + 3, vL1a, sWS))
    switch_copy([vL1, vL1x, vL1a])
    for g_ in range(8):
        A("s_waitcnt vmcnt(%d)" % (9 - g_))
        for k in range(4):
            A("v_xor_b32 v%d, s%d, v%d" % (P + 4 * g_ + k, 56 + k, P + 4 * g_ + k))
        if g_ == 0:
            A("v_or3_b32 v21, v%d, v%d, v%d" % (P, P + 1, P + 2))
            A("v_or_b32 v21, v21, v%d" % (P + 3))
        else:
            A("v_or3_b32 v21, v21, v%d, v%d" % (P + 4 * g_, P + 4 * g_ + 1))
            A("v_or3_b32 v21, v21, v%d, v%d" % (P + 4 * g_ + 2, P + 4 * g_ + 3))
    A("v_and_b32 v21, 15, v21")
    A("s_waitcnt vmcnt(1)")
    bytecheck(PX, "vcc")
    A("v_cmp_ne_u32 s[46:47], 0, v21")
    if o.get("dbgfail"):
        A("s_cmp_eq_u32 %s, 1" % sCNT)
        A("s_cselect_b32 s84, vcc_lo, s84")
        A("s_cselect_b32 s62, s46, s62")
        A("s_cselect_b32 s63, s47, s63")
    A("s_or_b64 vcc, vcc, s[46:47]")
    def majority():
        A("v_cmp_gt_i32 vcc, 0, v%d" % (PX + 1))
        A("v_cmp_lt_i32 s[46:47], %s, v%d" % ("s62", PX + 1))
        A("s_bcnt1_i32_b32 %s, vcc_lo" % t0)
        A("s_bcnt1_i32_b32 %s, s46" % t2)
        A("s_cmp_gt_u32 %s, %s" % (t0, t2))
        A("s_cselect_b32 s55, 0x2000, 0")
        if o.get("voteinv"): A("s_xor_b32 s55, s55, 0x2000")
        if o["stamps"]:
            A("s_bcnt1_i32_b32 s63, vcc_lo")
            A("s_lshl_b32 %s, %s, 8" % (t2, t2))
            A("s_or_b32 s63, s63, %s" % t2)
    def publish_b(tag):
        C("write-through copies for peers that sit on another die")
        A("v_add_u32 v22, 0x%x, %s" % (MB1B - MB1A, vS1))
        A("v_add_u32 v23, 0x%x, v108" % (MB1B - MB1A))
        A("s_mov_b64 exec, 1")
        A("global_store_dwordx4 v109, v[%d:%d], %s sc1" % (XG, XG + 3, sWS))
        A("s_mov_b32 exec_lo, 0x11111111")
        A("s_mov_b32 exec_hi, 0x11111111")
        A("global_store_dwordx4 v22, v[%d:%d], %s sc1" % (GR, GR + 3, sWS))
        A("s_cmp_ge_u32 %s, 4" % sNOFF)
        A("s_cbranch_scc1 L_pb_%s" % tag)
        A("global_store_dwordx4 v23, v[104:107], %s sc1" % sWS)
        LB("L_pb_%s" % tag)
        A("s_mov_b64 exec, -1")
    if o["bdefer"]:
        A("s_cbranch_vccz L_got1")
        A("s_cmp_lg_u32 %s, %d" % (sCNT, o["bdefer"]))
        A("s_cbranch_scc1 L_poll1")
        publish_b("a")
        A("s_branch L_poll1")
        LB("L_got1")
    else:
        A("s_cbranch_vccnz L_poll1")
    stamp(5)
    for i in range(2):
        b = P + 16 * i
        for k in range(4):
            A("v_add_f32 v%d, v%d, v%d" % (b + k, b + k, b + 4 + k))
            A("v_add_f32 v%d, v%d, v%d" % (b + 8 + k, b + 8 + k, b + 12 + k))
        for k in range(4):
            A("v_add_f32 v%d, v%d, v%d" % (b + k, b + k, b + 8 + k))
        A("v_cvt_pk_bf16_f32 v%d, v%d, v%d" % (b, b, b + 1))
        A("v_cvt_pk_bf16_f32 v%d, v%d, v%d" % (b + 1, b + 2, b + 3))
    A("v_lshlrev_b32 v22, 3, v0")
    A("ds_write_b64 v22, v[%d:%d] offset:%d" % (P, P + 1, L_Q))
    A("ds_write_b64 v22, v[%d:%d] offset:%d" % (P + 16, P + 17, L_Q + 512))
    A("v_cmp_ne_u32 vcc, s54, v%d" % PX)
    A("s_cmp_eq_u64 vcc, 0")
    A("s_cselect_b32 %s, 1, 0" % sFAST)
    if o.get("forceslow"): A("s_mov_b32 %s, 0" % sFAST)
    if o.get("freeq"): A("s_mov_b32 %s, 1" % sFAST)
    if o["lastfin"]:
        A("v_readfirstlane_b32 %s, v%d" % (t0, PX + 2))
        if o["lastfin"] == 1:
            A("s_not_b32 %s, %s" % (t2, sTAG))
            A("v_mov_b32 v23, %s" % t2)
            A("v_lshlrev_b32 v22, 2, v0")
        A("s_lshr_b32 %s, %s, 8" % (t0, t0))
        A("s_cmp_eq_u32 %s, 7" % t0)
        A("s_cselect_b32 %s, 2, 0" % t0)
        if o.get("fixfin") is not None:
            A("s_cmp_eq_u32 %s, %d" % (sH, o["fixfin"]))
            A("s_cselect_b32 %s, 2, 0" % t0)
        A("s_or_b32 %s, %s, %s" % (sFAST, sFAST, t0))
        if o["lastfin"] == 1: A("ds_write_b32 v22, v23 offset:%d" % L_FIN)
        else:
            majority()
            A("s_or_b32 %s, %s, s55" % (sFAST, sFAST))
    A("v_mov_b32 v26, %s" % sFAST)
    A("v_mov_b32 v27, %s" % sTAG)
    A("v_mov_b32 v22, %d" % L_FLAG)
    A("ds_write_b64 v22, v[26:27]")
    if o["auxearly"] and not o.get("freeq"):
        A("s_waitcnt vmcnt(0)")
        bytecheck(PA_, "vcc")
        A("s_cbranch_vccz L_aux_b1")
        A("global_load_dwordx4 v[%d:%d], %s, %s sc1" % (PA_, PA_ + 3, vL1a, sWS))
        LB("L_aux_b1")
    A("s_waitcnt lgkmcnt(0)")
    A("s_barrier")
    if o["bdefer"]:
        A("s_cmp_gt_u32 %s, %d" % (sCNT, o["bdefer"]))
        A("s_cbranch_scc1 L_b_done")
        A("s_bitcmp1_b32 %s, 0" % sFAST if o.get("bskip") else "s_nop 0")
        if o.get("bskip"): A("s_cbranch_scc1 L_b_done")
        publish_b("b")
        LB("L_b_done")
    if o["vote"] and o["lastfin"] < 2: majority()
    if o["hlate"]:
        A("s_setprio %d" % o.get("hprio", 0))
        A("s_barrier")
        A("s_barrier")
    A("s_branch %s" % ("L_chk_aux" if not o.get("freeq") else "L_poll_aux" if o["freeq"] == 2 else "L_auxdone"))
    LB("L_poll_aux")
    A("global_load_dwordx4 v[%d:%d], %s, %s sc1" % (PA_, PA_ + 3, vL1a, sWS))
    switch_copy([vL1a])
    LB("L_chk_aux")
    A("s_waitcnt vmcnt(0)")
    bytecheck(PA_, "vcc")
    A("s_cbranch_vccnz L_poll_aux")
    if o.get("freeq"): LB("L_auxdone")
    A("s_movk_i32 %s, 0xff00" % t0)
    A("v_and_b32 v23, 1, %s" % vF)
    A("v_cmp_eq_u32 vcc, 0, v23")
    A("v_and_b32 v23, 2, %s" % vF)
    A("v_cmp_eq_u32 s[46:47], 0, v23")
    A("v_cndmask_b32 v24, v%d, v%d, vcc" % (PA_ + 1, PA_))
    A("v_cndmask_b32 v25, v%d, v%d, vcc" % (PA_ + 3, PA_ + 2))
    A("v_cndmask_b32 v24, v25, v24, s[46:47]")
    A("v_and_b32 v24, %s, v24" % t0)
    allred("v24", "v23", "v_add_f32", 16)
    allred("v24", "v23", "v_add_f32", 32)
    A("v_cvt_pk_bf16_f32 v24, v24, v24")
    A("v_and_b32 v24, %s, v24" % t1)
    A("v_mul_f32 v25, 0x%x, v24" % (LOG2E | 0x80000000))
    A("v_exp_f32 v25, v25")
    A("v_mov_b32_dpp v26, v24 row_ror:8 %s" % DPP)
    A("v_add_f32 v25, 1.0, v25")
    A("v_rcp_f32 v25, v25")
    A("v_cmp_le_u32 vcc, %s, v0" % sRP)
    A("v_mul_f32 v25, v24, v25")
    A("v_cvt_pk_bf16_f32 v25, v25, v25")
    A("v_and_b32 v25, %s, v25" % t1)
    A("v_mul_f32 v25, v25, v26")
    A("v_cvt_pk_bf16_f32 v25, v25, v25")
    A("v_cndmask_b32 v25, v25, 0, vcc")
    A("v_lshlrev_b32 v22, 2, v0")
    if o["vote"] and not o["lastfin"]:
        A("v_mov_b32 v26, s55")
        A("v_mov_b32 v27, 0")
        A("ds_write_b32 v27, v26 offset:%d" % (L_FLAG + 8))
    A("s_mov_b64 exec, 0xff")
    A("ds_write_b32 v22, v25 offset:%d" % L_H)
    A("s_waitcnt lgkmcnt(0)")
    stamp(6)
    if o["lastfin"] == 1:
        A("s_bitcmp1_b32 %s, 1" % sFAST)
        A("s_cbranch_scc1 L_ufin")
    if not o.get("nodumpU"): dump_stamps()
    A("s_endpgm")
    def unit_final():
        LB("L_ufin")
        C("last group: lane = (wave l>>4, pair (l>>3)&1, group l&7) gathers the eight groups' sums of this workgroup's 16 columns")
        A("s_mov_b64 exec, -1")
        A("s_setprio %d" % o.get("uprio", 0))
        vA3, vLF, vXO, vXV = "v4", "v5", "v6", "v7"
        FP, FS = 8, 40
        A("v_lshrrev_b32 %s, 3, v0" % vLF)
        A("s_lshl_b32 %s, %s, 5" % (t0, sJ))
        A("v_lshl_add_u32 %s, %s, 2, %s" % (vXO, vLF, t0))
        A("global_load_dword %s, %s, %s" % (vXV, vXO, sX))
        A("v_lshlrev_b32 %s, 4, %s" % (vLF, vLF))
        A("s_lshr_b32 %s, %s, 1" % (t0, sJ))
        A("s_lshl_b32 %s, %s, 14" % (t0, t0))
        A("s_and_b32 %s, %s, 1" % (t2, sJ))
        A("s_lshl_b32 %s, %s, 12" % (t2, t2))
        A("s_add_u32 %s, %s, %s" % (t0, t0, t2))
        A("s_add_u32 %s, %s, s55" % (t0, t0))
        A("s_add_u32 %s, %s, 0x%x" % (t0, t0, MB3))
        A("v_and_b32 v22, 7, v0")
        A("v_lshl_add_u32 %s, v22, 9, %s" % (vA3, t0))
        A("v_lshlrev_b32 v22, 7, v126")
        A("v_and_b32 v23, 16, %s" % vLF)
        A("v_add3_u32 %s, %s, v22, v23" % (vA3, vA3))
        A("s_lshl_b32 s44, 0x01010101, %s" % sH)
        A("s_mov_b32 s45, s44")
        A("s_not_b64 s[46:47], s[44:45]")
        A("s_mov_b32 %s, %d" % (sCNT, o["spinmax"]))
        A("s_barrier")
        A("s_barrier")
        A("s_waitcnt vmcnt(0)")
        A("v_lshlrev_b32 v22, 16, %s" % vXV)
        A("v_and_b32 v23, %s, %s" % (t1, vXV))
        def spf():
            C("pull the other groups' lines into this die's L2 over the scalar path (the vector path returns in order and is busy with the group's own hand-off)")
            for k in range(1, 8):
                for w_ in range(4):
                    A("s_load_dword s%d, %s, s%d offset:%d glc" % (6 + (4 * k + w_) % 16, sWS, 48 + k, 128 * w_))
        if o.get("spf"):
            for k in range(1, 8):
                A("s_xor_b32 s%d, %s, %d" % (48 + k, sH, k))
                A("s_lshl_b32 s%d, s%d, 9" % (48 + k, 48 + k))
                A("s_add_u32 s%d, s%d, %s" % (48 + k, 48 + k, t0))
        if o.get("spf", 0) & 2: spf()
        if o["reuse"]: A("s_barrier")
        if o.get("spf", 0) & 1: spf()
        NP = o["npu"]
        def own_read():
            A("s_mov_b64 exec, s[44:45]")
            A("ds_read_b128 v[%d:%d], %s offset:%d" % (FP, FP + 3, vLF, L_FIN))
        if o.get("uwait"):
            A("s_mov_b64 exec, s[44:45]")
            LB("L_uw")
            A("ds_read_b128 v[%d:%d], %s offset:%d" % (FP, FP + 3, vLF, L_FIN))
            A("s_sub_u32 %s, %s, 1" % (sCNT, sCNT))
            A("s_cbranch_scc1 L_end")
            A("s_waitcnt lgkmcnt(0)")
            A("v_cmp_ne_u32 vcc, %s, v%d" % (sTAG, FP + 3))
            if o["uwait"] == 1:
                A("s_cbranch_vccnz L_uw")
            else:
                A("s_cmp_eq_u64 vcc, s[44:45]")
                A("s_cbranch_scc1 L_uw")
        for k in range(NP):
            if k:
                for _ in range(o["stag"]):
                    own_read(); A("s_waitcnt lgkmcnt(0)")
            A("s_mov_b64 exec, s[46:47]")
            A("global_load_dwordx4 v[%d:%d], %s, %s sc1" % (FS + 4 * k, FS + 4 * k + 3, vA3, sWS))
        LB("L_upoll")
        for k in range(NP):
            own_read()
            A("s_mov_b64 exec, s[46:47]")
            A("s_waitcnt vmcnt(%d) lgkmcnt(0)" % (NP - 1))
            A("v_cmp_ne_u32 vcc, %s, v%d" % (sTAG, FS + 4 * k + 3))
            A("v_mov_b32 v%d, v%d" % (FP, FS + 4 * k))
            A("v_mov_b32 v%d, v%d" % (FP + 1, FS + 4 * k + 1))
            A("s_and_b64 s[46:47], exec, vcc")
            A("s_cbranch_scc0 L_ugot")
            A("s_mov_b64 exec, s[46:47]")
            A("global_load_dwordx4 v[%d:%d], %s, %s sc1" % (FS + 4 * k, FS + 4 * k + 3, vA3, sWS))
        A("s_sub_u32 %s, %s, 1" % (sCNT, sCNT))
        A("s_cbranch_scc0 L_upoll")
        A("s_endpgm")
        LB("L_uown")
        A("ds_read_b128 v[%d:%d], %s offset:%d" % (FP, FP + 3, vLF, L_FIN))
        A("s_sub_u32 %s, %s, 1" % (sCNT, sCNT))
        A("s_cbranch_scc1 L_end")
        A("s_waitcnt lgkmcnt(0)")
        LB("L_ugot")
        A("s_mov_b64 exec, s[44:45]")
        A("v_cmp_ne_u32 vcc, %s, v%d" % (sTAG, FP + 3))
        A("s_cbranch_vccnz L_uown")
        stamp(10)
        A("s_mov_b64 exec, -1")
        x_, y_ = "v%d" % FP, "v%d" % (FP + 1)
        for pat in ("quad_perm:[1,0,3,2]", "quad_perm:[2,3,0,1]", "row_half_mirror"):
            A("v_add_f32_dpp %s, %s, %s %s %s" % (x_, x_, x_, pat, DPP))
            A("v_add_f32_dpp %s, %s, %s %s %s" % (y_, y_, y_, pat, DPP))
            if pat != "row_half_mirror": A("s_nop 0")
        A("s_mov_b32 s44, 0x01010101")
        A("v_add_f32 %s, %s, v22" % (x_, x_))
        A("v_add_f32 %s, %s, v23" % (y_, y_))
        A("s_mov_b32 s45, s44")
        A("v_cvt_pk_bf16_f32 %s, %s, %s" % (x_, x_, y_))
        A("s_mov_b64 exec, s[44:45]")
        A("global_store_dword %s, %s, %s" % (vXO, x_, sOUT))
        A("s_cmp_lg_u32 %s, 0" % sJ)
        A("s_cbranch_scc1 L_udone")
        C("the next launch must not mistake this launch's hand-off words for its own")
        A("s_mov_b64 exec, 1")
        A("v_mov_b32 v22, 0")
        A("v_mov_b32 v23, %s" % sTAG)
        A("global_store_dword v22, v23, %s" % sWS)
        LB("L_udone")
        role[0] = "U"
        amp_end("u")
        dump_stamps()
        A("s_endpgm")

    role[0] = "A"
    if o.get("alignA"): L.append(".p2align %d" % o["alignA"])
    for _ in range(o.get("shiftA", 0)): A("s_nop 0")
    if o["tw"]:
        LB("L_norace")
        C("waves 2, 3: first touch of the pages that later loads use, over the scalar path (values unused), so that their address translation is not waited for")
        A("s_lshl_b32 %s, %s, 2" % (t2, sW))
        A("v_mov_b32 v158, %s" % t2)
        A("v_mov_b32 v159, 0")
        A("ds_write_b32 v158, v159 offset:%d" % L_VOTE)
        A("s_lshl_b32 %s, %s, 24" % (t0, sH))
        A("s_and_b32 %s, %s, 7" % (t2, sJ))
        A("s_lshl_b32 %s, %s, %d" % (t2, t2, 17 if o["stl"] & 64 else 10))
        A("s_add_u32 %s, %s, %s" % (t0, t0, t2))
        A("s_add_u32 %s, %s, 0xF00000" % (t0, t0))
        A("s_lshl_b32 %s, %s, 19" % (t2, sH))
        A("s_lshl_b32 %s, %s, 14" % (t3, sJ))
        A("s_add_u32 %s, %s, %s" % (t2, t2, t3))
        A("s_mul_i32 %s, s2, 7168" % t3)
        A("s_cmp_eq_u32 %s, 3" % sW)
        A("s_waitcnt lgkmcnt(0)")
        A("s_cbranch_scc1 L_touch3")
        if o["stl"] & 4:
            A("s_load_dword s62, %s, %s" % (sWO, t2))
            A("s_load_dword s63, %s, %s" % (sDN, t3))
        if o["stl"] & 8: A("s_load_dword s59, %s, 0" % sOUT)
        if o["stl"] & 128:
            A("s_lshl_b32 %s, s2, 12" % t2)
            A("s_add_u32 %s, %s, 0x%x" % (t2, t2, MB2))
            A("s_load_dword s58, %s, %s" % (sWS, t2))
        A("s_branch L_attn")
        LB("L_touch3")
        if o["stl"] & 1: A("s_load_dword s60, %s, %s" % (sK, t0))
        if o["stl"] & 2: A("s_load_dword s61, %s, %s" % (sV, t0))
    LB("L_attn")
    vK0, vK1, vV0, vV1 = "v2", "v3", "v4", "v5"
    vWO0, vWO1, vDN0, vDN1, vXF, vXP = "v6", "v7", "v8", "v9", "v10", "v1"
    vS2, vL2, vS25, vL25, vL3, vS3 = "v11", "v12", "v13", "v14", "v15", "v150"
    KR, VR, WOR, DNR, QR, SR, PA, MK = 16, 48, 80, 96, 104, 120, 128, 146
    vM0, vM1, vQA, vOW, vOR, vMLW, vHA = "v151", "v152", "v153", "v154", "v155", "v156", "v157"
    vN, vG, vN16, vP = "v120", "v121", "v122", "v123"
    u0, u1 = "v124", "v125"
    s4JW = "s41"
    C("K and V: load i = 1 KB block (4 keys) number 128 i + 4j + w of the head's window; K goes through LDS")
    A("s_lshl_b32 %s, %s, 24" % (t0, sH))
    A("s_lshl_b32 %s, %s, 2" % (s4JW, sJ))
    A("s_add_u32 %s, %s, %s" % (s4JW, s4JW, sW))
    if o["lastfin"]:
        C("arrival order of the eight groups (one counter in the zeroed debug words)")
        A("s_cmp_lg_u32 %s, 0" % s4JW)
        A("s_cbranch_scc1 L_notkt0")
        A("v_mov_b32 v158, 0")
        A("v_mov_b32 v159, 1")
        A("s_mov_b64 exec, 1")
        A("global_atomic_add v159, v158, v159, s[24:25] sc0 sc1")
        A("s_mov_b64 exec, -1")
        LB("L_notkt0")
    A("s_lshl_b32 %s, %s, 10" % (t2, s4JW))
    A("s_add_u32 %s, %s, %s" % (t0, t0, t2))
    A("s_add_u32 %s, %s, 0xF00000" % (t0, t0))
    A("v_and_b32 %s, 15, v0" % vN)
    A("v_lshrrev_b32 %s, 4, v0" % vG)
    A("v_lshlrev_b32 %s, 4, %s" % (vN16, vN))
    A("v_lshl_add_u32 %s, v0, 4, %s" % (vV0, t0))
    A("v_lshlrev_b32 %s, 6, %s" % (u0, vG))
    A("v_xor_b32 %s, %s, %s" % (vK0, u0, vV0))
    A("s_lshl_b32 %s, %s, 13" % (t1, sW))
    A("s_add_u32 m0, %s, %d" % (t1, L_K))
    A("s_mov_b32 s42, 0x20000")
    A("s_movk_i32 s43, 1024")
    if not o["vote"]: A("s_waitcnt lgkmcnt(0)")
    if o.get("tlbw") == 1:
        A("s_cmp_lg_u32 %s, 0" % sW)
        A("s_cbranch_scc1 L_notlb")
        tlbwarm()
        A("s_waitcnt vmcnt(0)")
        LB("L_notlb")
    if o["vote"] and not o["tw"]: A("s_waitcnt lgkmcnt(1)")
    if o["lastfin"]:
        A("s_cmp_lg_u32 %s, 0" % s4JW)
        A("s_cbranch_scc1 L_notkt")
        A("s_mov_b64 exec, 1")
        A("s_waitcnt vmcnt(0)")
        A("ds_write_b32 v158, v159 offset:%d" % L_TKT)
        A("s_mov_b64 exec, -1")
        A("s_waitcnt lgkmcnt(0)")
        LB("L_notkt")
    def touches(m, name):
        if not m or o["tw"]: return
        C("first touch of the pages the later loads use, over the scalar path (values unused)")
        if o["stw"]:
            A("s_and_b32 %s, %s, %d" % (t2, s4JW, o["stw"]))
            A("s_cbranch_scc1 %s" % name)
        if m & 1: A("s_load_dword s60, %s, %s" % (sK, t0))
        if m & 2: A("s_load_dword s61, %s, %s" % (sV, t0))
        if m & 4:
            A("s_lshl_b32 %s, %s, 19" % (t2, sH))
            A("s_lshl_b32 %s, %s, 14" % (t3, sJ))
            A("s_add_u32 %s, %s, %s" % (t2, t2, t3))
            A("s_load_dword s62, %s, %s" % (sWO, t2))
            A("s_mul_i32 %s, s2, 7168" % t2)
            A("s_load_dword s63, %s, %s" % (sDN, t2))
        if m & 8: A("s_load_dword s59, %s, 0" % sOUT)
        if m & 16:
            A("s_lshl_b32 %s, %s, 7" % (t2, sH))
            A("s_load_dword s59, %s, %s" % (sOUT, t2))
        if o["stw"]: LB(name)
    touches(o["stl"], "L_touched")
    if o["b0pos"]: A("s_barrier")
    stamp(1)
    issued = [0]
    def load(w, txt):
        if issued[0] >= w:
            A("s_waitcnt vmcnt(%d)" % (w - 1))
        A(txt); issued[0] += 1
    def rot(i): return (i * o["rotm"]) & 127
    def kload(i):
        load(o["WK"], "global_load_lds_dwordx4 %s, %s %s" % (vK0, sK, nt))
        if i < 7:
            A("s_add_u32 m0, m0, s43")
            A("v_xor_b32 %s, %d, %s" % (vK0, (((i & 3) ^ ((i + 1) & 3)) << 4) | ((rot(i) ^ rot(i + 1)) << 10), vK0))
            A("v_add_u32 %s, s42, %s" % (vK0, vK0))
    nk_first = min(o["WK"], 8)
    if o.get("bal"):
        A("v_and_b32 v158, 7, v0")
        A("v_lshlrev_b32 v158, 2, v158")
        A("global_load_dword v159, v158, s[24:25] sc1")
    for i in range(nk_first): kload(i)
    touches(o["stl2"], "L_touched2")
    C("address and mask setup in the shadow of the K loads")
    if o["stouch"]: A("s_load_dword s63, %s, 0" % sOUT)
    A("s_lshl_b32 %s, %s, 19" % (t0, sH))
    A("s_lshl_b32 %s, %s, 14" % (t2, sJ))
    A("s_add_u32 %s, %s, %s" % (t0, t0, t2))
    A("s_lshl_b32 %s, %s, 8" % (t3, sW))
    A("s_add_u32 %s, %s, %s" % (t0, t0, t3))
    A("s_add_u32 %s, %s, 0x1000" % (t0, t0))
    A("v_lshl_add_u32 %s, %s, 10, %s" % (vDN0, vG, vN16))
    A("v_add_u32 %s, %s, %s" % (vWO0, t0, vDN0))
    A("v_add_u32 %s, 0x2000, %s" % (vWO1, vWO0))
    ffn_share(t0, t2)
    A("s_lshl_b32 %s, s3, 6" % t0)
    A("s_lshl_b32 %s, %s, 1" % (t2, t2))
    A("s_sub_u32 %s, 8, %s" % (t1, t2))
    A("s_mul_i32 %s, %s, %s" % (t2, t1, sJ))
    A("s_add_u32 %s, %s, %s" % (t0, t0, t2))
    A("s_lshl_b32 %s, %s, 10" % (t0, t0))
    A("s_add_u32 %s, %s, %s" % (t0, t0, t3))
    A("s_sub_u32 %s, %s, 1" % (t1, t1))
    A("v_add_u32 %s, %s, %s" % (u1, t0, vN16))
    A("v_min_u32 %s, %s, %s" % (vDN0, t1, vG))
    A("v_lshl_add_u32 %s, %s, 10, %s" % (vDN0, vDN0, u1))
    A("v_add_u32 %s, 4, %s" % (vDN1, vG))
    A("v_min_u32 %s, %s, %s" % (vDN1, t1, vDN1))
    A("v_lshl_add_u32 %s, %s, 10, %s" % (vDN1, vDN1, u1))
    A("v_and_b32 %s, 1, v0" % vP)
    A("v_and_b32 %s, 1, %s" % (u0, vG))
    if o["g25"]:
        if o["cq25"]:
            A("s_lshr_b32 %s, %s, 3" % (t2, sJ))
            A("s_lshl_b32 %s, %s, 8" % (t2, t2))
            A("s_and_b32 %s, %s, 3" % (t0, sJ))
            A("s_lshl_b32 %s, %s, 6" % (t0, t0))
            A("s_add_u32 %s, %s, %s" % (t2, t2, t0))
            A("s_and_b32 %s, %s, 4" % (t0, sJ))
            A("s_lshl_b32 %s, %s, 1" % (t0, t0))
            A("s_add_u32 %s, %s, %s" % (t2, t2, t0))
        else:
            A("s_lshl_b32 %s, %s, 5" % (t2, sJ))
        A("v_bfe_u32 %s, v0, 3, 2" % u1)
        A("v_lshl_add_u32 %s, %s, %d, %s" % (vXF, u1, 4 if o["cq25"] else 3, t2))
        A("v_lshrrev_b32 %s, 5, v0" % u1)
        A("v_lshl_add_u32 %s, %s, 2, %s" % (vXF, u1, vXF))
    else:
        A("s_lshl_b32 %s, %s, 3" % (t2, s4JW))
        A("v_lshl_add_u32 %s, %s, 2, %s" % (vXF, u0, t2))
    RP = o["rp"]
    M25 = 0 if o["reuse"] else MB25 - MB2
    lay = 3 if o["reuse"] else o.get("lay25", 0)
    A("s_mul_i32 %s, %s, %d" % (t0, sH, 32 * RP))
    A("s_add_u32 %s, %s, 0x%x" % (t0, t0, MB2))
    A("s_mul_i32 %s, %s, %d" % (t1, sJ, RP))
    A("s_add_u32 %s, %s, %s" % (t1, t1, t0))
    A("s_mul_i32 %s, %s, %d" % (t2, sW, 8 * RP))
    A("s_lshl_b32 %s, %s, 6" % (t3, sJ))
    A("s_add_u32 %s, %s, %s" % (t0, t0, t3))
    A("s_add_u32 %s, %s, %s" % (t2, t2, t0))
    A("v_bfe_u32 %s, v0, 2, 3" % vS2 if o["cq2"] else "v_lshrrev_b32 %s, 3, v0" % vS2)
    A("v_mul_u32_u24 %s, %d, %s" % (vS2, RP, vS2))
    A("v_and_b32 %s, 3, v0" % u1 if o["cq2"] else "v_bfe_u32 %s, v0, 1, 2" % u1)
    A("v_lshlrev_b32 %s, 4, %s" % (u1, u1))
    A("v_add3_u32 %s, %s, %s, %s" % (vS2, vS2, u1, t2))
    A("v_lshl_add_u32 %s, v0, 4, %s" % (vL2, t1))
    A("s_lshl_b32 %s, %s, 4" % (t3, sW))
    A("v_and_b32 %s, 31, v0" % u1)
    if lay == 0:
        A("s_add_u32 %s, %s, %s" % (t1, t1, t3))
        A("s_add_u32 %s, %s, 0x%x" % (t1, t1, M25))
        A("v_lshl_add_u32 %s, %s, 6, %s" % (vL25, u1, t1))
        A("v_lshrrev_b32 %s, 1, %s" % (vS25, vN))
        A("v_mul_u32_u24 %s, %d, %s" % (vS25, RP, vS25))
        A("v_lshl_add_u32 %s, %s, 5, %s" % (vS25, vP, vS25))
        A("v_lshl_add_u32 %s, %s, 4, %s" % (vS25, u0, vS25))
        A("s_add_u32 %s, %s, 0x%x" % (t2, t2, M25))
        A("v_add_u32 %s, %s, %s" % (vS25, t2, vS25))
    else:
        if not o["g25"]: A("s_add_u32 %s, %s, %s" % (t0, t0, t3))
        if M25: A("s_add_u32 %s, %s, 0x%x" % (t0, t0, M25))
        if o["g25"]:
            A("v_lshrrev_b32 %s, 2, v0" % vL25)
            A("v_mul_u32_u24 %s, %d, %s" % (vL25, RP, vL25))
            A("v_and_b32 %s, 3, v0" % u1)
            A("v_lshlrev_b32 %s, 4, %s" % (u1, u1))
            A("v_add3_u32 %s, %s, %s, %s" % (vL25, vL25, u1, t0))
            A("v_add_u32 v164, %d, %s" % (16 * RP, vL25))
        else:
            A("v_mul_u32_u24 %s, %d, %s" % (vL25, RP, u1))
            A("v_add_u32 %s, %s, %s" % (vL25, t0, vL25))
        A("s_lshl_b32 %s, %s, 9" % (t3, sW))
        A("s_add_u32 %s, %s, %s" % (t1, t1, t3))
        if M25: A("s_add_u32 %s, %s, 0x%x" % (t1, t1, M25))
        if o["cq25"]:
            A("v_and_b32 %s, 31, v0" % vS25)
            A("v_lshl_add_u32 %s, %s, 4, %s" % (vS25, vS25, t1))
        else:
            A("v_lshl_add_u32 %s, %s, 5, %s" % (vS25, vN, t1))
            A("v_lshl_add_u32 %s, %s, 4, %s" % (vS25, u0, vS25))
    A("s_lshr_b32 %s, %s, 1" % (t0, sJ))
    A("s_lshl_b32 %s, %s, 14" % (t0, t0))
    A("s_and_b32 %s, %s, 1" % (t3, sJ))
    A("s_lshl_b32 %s, %s, 12" % (t3, t3))
    A("s_add_u32 %s, %s, %s" % (t0, t0, t3))
    if o["g25"]:
        A("s_add_u32 %s, %s, 0x%x" % (t0, t0, MB3))
        A("v_lshrrev_b32 %s, 3, v0" % u0)
        A("v_lshl_add_u32 %s, %s, 4, %s" % (u0, u0, t0))
        A("v_and_b32 %s, 7, v0" % vL3)
        A("v_lshl_add_u32 %s, %s, 9, %s" % (vL3, vL3, u0))
        A("s_lshl_b32 %s, %s, 9" % (t3, sH))
        A("s_add_u32 %s, %s, %s" % (t0, t0, t3))
        A("v_lshrrev_b32 %s, 5, v0" % u0)
        A("v_lshl_add_u32 %s, %s, 6, %s" % (u0, u0, u1))
        A("v_bfe_u32 %s, v0, 2, 1" % u1)
        A("v_lshlrev_b32 %s, 13, %s" % (u1, u1))
        A("v_add3_u32 %s, %s, %s, %s" % (vS3, u0, u1, t0))
        if o["pt3"]:
            A("s_and_b32 %s, %s, 1" % (t3, sW))
            A("s_lshl_b32 %s, %s, 6" % (t3, t3))
            A("s_add_u32 s3, %s, %s" % (t0, t3))
            A("s_lshr_b32 %s, %s, 1" % (t3, sW))
            A("s_lshl_b32 %s, %s, 13" % (t3, t3))
            A("s_add_u32 s3, s3, %s" % t3)
    else:
        A("s_lshl_b32 %s, %s, 7" % (t3, sW))
        A("s_add_u32 %s, %s, %s" % (t0, t0, t3))
        A("s_add_u32 %s, %s, 0x%x" % (t0, t0, MB3))
        if o["lastfin"] == 1:
            A("s_lshl_b32 %s, %s, 5" % (t3, sW))
            A("v_lshl_add_u32 %s, %s, 4, %s" % (vL3, u0, t3))
        if o["lastfin"] >= 2:
            A("s_lshl_b32 s3, %s, 9" % sH)
            A("s_add_u32 s3, s3, %s" % t0)
        A("v_lshl_add_u32 %s, %s, 4, %s" % (u0, u0, t0))
        if o["lastfin"] != 1:
            A("v_and_b32 %s, 7, v0" % u1)
            A("v_lshl_add_u32 %s, %s, 9, %s" % (vL3, u1, u0))
        A("s_lshl_b32 %s, %s, 9" % (t3, sH))
        A("v_lshl_add_u32 %s, %s, 13, %s" % (u0, vP, u0))
        A("v_add_u32 %s, %s, %s" % (vS3, t3, u0))
    if o.get("mockx"):
        A("s_lshr_b32 %s, %s, 1" % (t0, sJ))
        A("s_lshl_b32 %s, %s, 14" % (t0, t0))
        A("s_and_b32 %s, %s, 1" % (t3, sJ))
        A("s_lshl_b32 %s, %s, 12" % (t3, t3))
        A("s_add_u32 %s, %s, %s" % (t0, t0, t3))
        A("s_lshl_b32 %s, %s, 9" % (t3, sH))
        A("s_add_u32 %s, %s, %s" % (t0, t0, t3))
        A("s_and_b32 %s, %s, 1" % (t3, sW))
        A("s_lshl_b32 %s, %s, 13" % (t3, t3))
        A("s_add_u32 %s, %s, %s" % (t0, t0, t3))
        A("s_add_u32 %s, %s, 0x%x" % (t0, t0, MB3))
        A("v_and_b32 %s, 3, v0" % u0)
        A("v_lshl_add_u32 %s, %s, 4, %s" % (vS3, u0, t0))
        A("s_and_b32 %s, %s, 3" % (t0, sJ))
        A("s_lshl_b32 %s, %s, 2" % (t0, t0))
        A("s_add_u32 %s, %s, %s" % (t0, t0, sW))
        A("s_lshl_b32 %s, %s, 14" % (t0, t0))
        A("s_lshr_b32 %s, %s, 2" % (t3, sJ))
        A("s_lshl_b32 %s, %s, 9" % (t3, t3))
        A("s_add_u32 %s, %s, %s" % (t0, t0, t3))
        A("s_add_u32 %s, %s, 0x%x" % (t0, t0, MB3))
        A("v_lshl_add_u32 %s, %s, 4, %s" % (vL3, u0, t0))
        A("v_bfe_u32 %s, v0, 2, 1" % u0)
        A("v_lshl_add_u32 %s, %s, 12, %s" % (vL3, u0, vL3))
    A("v_lshlrev_b32 %s, 4, %s" % (u1, vP))
    def pretouch2():
        C("pull this workgroup's incoming hand-off lines into L2 (waves 0,1: hop 2; waves 2,3: hop 2.5)")
        if o["reuse"]:
            A("s_lshl_b32 %s, %s, 9" % (t0, sW))
            A("v_lshlrev_b32 v158, 3, v0")
            A("v_sub_u32 v158, %s, v158" % vL2)
            A("v_add_u32 v158, %s, v158" % t0)
            if o["pt3"]: A("v_writelane_b32 v158, s3, 63")
        else:
            A("s_and_b32 %s, %s, 1" % (t0, sW))
            A("s_lshl_b32 %s, %s, 10" % (t0, t0))
            A("s_lshr_b32 %s, %s, 1" % (t3, sW))
            A("s_mul_i32 %s, %s, 0x%x" % (t3, t3, MB25 - MB2))
            A("s_add_u32 %s, %s, %s" % (t0, t0, t3))
            A("v_add_u32 v158, %s, %s" % (t0, vL2))
        if o["pretouch"] in ("r", "k"):
            A("global_load_dword v159, v158, %s sc1" % sWS); issued[0] += 1
        if o.get("otouch2", 0) & 1:
            A("global_load_dword v166, %s, %s" % (vXF, sOUT)); issued[0] += 1
        if o.get("otouch2", 0) & 2:
            A("global_load_dword v165, %s, %s sc1" % (vS3, sWS)); issued[0] += 1
    if o["pretouch"] == "r" or isinstance(o["pretouch"], int): pretouch2()
    A("v_mov_b32 %s, 0xffff" % u0)
    A("v_lshlrev_b32 %s, %s, %s" % (u0, u1, u0))
    A("v_and_b32 %s, 2, v0" % u1)
    A("v_cmp_eq_u32 vcc, 0, %s" % u1)
    A("v_lshrrev_b32 %s, 1, %s" % (u1, vN))
    A("v_lshlrev_b32 %s, 2, %s" % (vHA, vG))
    SEL = 160
    A("v_mov_b32 v%d, 0x0c0c0c0c" % (SEL + 2))
    A("v_mov_b32 v%d, 0x01000100" % (SEL + 3))
    A("v_bfi_b32 v%d, %s, v%d, v%d" % (SEL + 3, u0, SEL + 3, SEL + 2))
    A("v_cndmask_b32 v%d, v%d, v%d, vcc" % (SEL, SEL + 2, SEL + 3))
    A("v_cndmask_b32 v%d, v%d, v%d, vcc" % (SEL + 1, SEL + 3, SEL + 2))
    A("v_and_b32 v%d, 0x02020202, %s" % (SEL + 3, u0))
    A("v_cndmask_b32 v%d, 0, v%d, vcc" % (SEL + 2, SEL + 3))
    A("v_cndmask_b32 v%d, v%d, 0, vcc" % (SEL + 3, SEL + 3))
    A("v_add_u32 v%d, v%d, v%d" % (SEL + 2, SEL + 2, SEL))
    A("v_add_u32 v%d, v%d, v%d" % (SEL + 3, SEL + 3, SEL + 1))
    for r in range(4):
        A("v_cmp_eq_u32 s[%d:%d], %d, %s" % (44 + 2 * r, 45 + 2 * r, r, u1))
    A("v_lshrrev_b32 %s, 2, %s" % (vMLW, vN))
    A("v_lshlrev_b32 %s, 4, %s" % (u1, vG))
    A("v_lshl_add_u32 %s, %s, 8, %s" % (vQA, vMLW, u1))
    for r in range(4):
        A("v_cndmask_b32 v%d, 0, %s, s[%d:%d]" % (MK + r, u0, 44 + 2 * r, 45 + 2 * r))
    OH, OG, OWV = (384, 768, 3072) if o["cq2"] else (256, 512, 2048)
    if o["cq2"]:
        A("s_mul_i32 %s, %s, %d" % (t0, sW, OWV))
        A("v_mul_u32_u24 %s, %d, %s" % (vOW, OG, vG))
        A("v_add3_u32 %s, %s, %s, %s" % (vOW, vOW, vN16, t0))
    else:
        A("s_lshl_b32 %s, %s, 11" % (t0, sW))
        A("v_lshl_add_u32 %s, %s, 9, %s" % (vOW, vG, vN16))
        A("v_add_u32 %s, %s, %s" % (vOW, t0, vOW))
    A("s_lshl_b32 %s, %s, 3" % (t0, sW))
    A("v_lshl_add_u32 %s, %s, 5, %s" % (vMLW, vMLW, t0))
    if o["cq2"]:
        A("v_bfe_u32 %s, v0, 1, 4" % u1)
        A("v_lshlrev_b32 %s, 4, %s" % (u1, u1))
        A("v_mul_u32_u24 %s, %d, %s" % (u0, OH, vP))
        A("s_mul_i32 %s, %s, %d" % (t0, sW, OG))
        A("v_add3_u32 %s, %s, %s, %s" % (vOR, u0, u1, t0))
    else:
        A("v_bfe_u32 %s, v0, 1, 1" % u0)
        A("v_lshrrev_b32 %s, 2, v0" % u1)
        A("v_lshlrev_b32 %s, 4, %s" % (u1, u1))
        A("v_lshl_add_u32 %s, %s, 8, %s" % (u1, u0, u1))
        A("v_lshl_add_u32 %s, %s, 3, %s" % (u1, vP, u1))
        A("s_lshl_b32 %s, %s, 9" % (t0, sW))
        A("v_add_u32 %s, %s, %s" % (vOR, t0, u1))
    KA = 140
    A("v_and_b32 %s, 3, v0" % u0)
    A("v_lshrrev_b32 %s, 2, %s" % (u1, vN))
    A("v_lshlrev_b32 %s, 8, %s" % (u1, u1))
    A("v_lshl_add_u32 %s, %s, 10, %s" % (u0, u0, u1))
    A("v_xor_b32 %s, %s, %s" % (u1, vG, vN))
    A("v_lshl_add_u32 %s, %s, 4, %s" % (u0, u1, u0))
    A("s_lshl_b32 %s, %s, 13" % (t1, sW))
    A("v_add_u32 v%d, %s, %s" % (KA, t1, u0))
    for s_ in range(1, 4):
        A("v_xor_b32 v%d, %d, v%d" % (KA + s_, s_ << 6, KA))
    if o.get("cheap", 0) & 1:
        A("v_and_b32 %s, 0x3fff, %s" % (vWO0, vWO0)); A("v_or_b32 %s, 0x1000, %s" % (vWO0, vWO0)); A("v_mov_b32 %s, %s" % (vWO1, vWO0))
    if o.get("cheap", 0) & 2:
        A("v_and_b32 %s, 0x3fff, %s" % (vDN0, vDN0)); A("v_mov_b32 %s, %s" % (vDN1, vDN0))
    if o.get("cheap", 0) & 4:
        A("v_and_b32 %s, 0x3fff, %s" % (vV0, vV0)); A("s_mov_b32 s63, 0")
    for _ in range(o.get("delayA", 0)): A("s_nop 3")
    def issue_rest(WK_, W_):
        o_wk = o["WK"]; o["WK"] = WK_
        for i in range(nk_first, 8): kload(i)
        o["WK"] = o_wk
        if o["pretouch"] == "k": pretouch2()
        if o.get("xearly"):
            A("global_load_dword %s, %s, %s" % (vXP, vXF, sX)); issued[0] += 1
        for i in range(8 - o["vlate"]):
            ld, *step = vload(i)
            load(W_, ld)
            for t_ in step: A(t_)
    def vload(i):
        r = VR + i * 4
        seq = ["global_load_dwordx4 v[%d:%d], %s, %s %s" % (r, r + 3, vV0, sV, nt)]
        if i < 7:
            if rot(i) ^ rot(i + 1): seq.append("v_xor_b32 %s, %d, %s" % (vV0, (rot(i) ^ rot(i + 1)) << 10, vV0))
            seq.append("v_add_u32 %s, %s, %s" % (vV0, "s63" if o.get("cheap", 0) & 4 and i % o.get("cheapm", 1) == 0 else "s42", vV0))
        return seq
    if o.get("bal"):
        C("a group that started well after others asks memory with a wider window")
        A("s_waitcnt vmcnt(%d)" % issued[0])
        A("v_sub_u32 v158, s90, v159")
        A("v_cmp_ne_u32 vcc, 0, v159")
        A("v_cmp_lt_i32 s[44:45], %d, v158" % o.get("theta", 40))
        A("s_and_b32 s62, vcc_lo, s44")
        A("s_and_b32 s62, s62, 0xff")
        A("s_bcnt1_i32_b32 s62, s62")
        A("s_cmp_ge_u32 s62, %d" % o.get("lateth", 2))
        A("s_cbranch_scc1 L_wide")
        keep = issued[0]
        issue_rest(o["WK"], o["W"])
        A("s_branch L_issued")
        LB("L_wide")
        issued[0] = keep
        issue_rest(o["WK"] + o["bal"], o["W"] + o["bal"])
        LB("L_issued")
    elif o.get("c3"):
        A("s_lshr_b32 %s, %s, 2" % (t0, sJ))
        A("s_cmp_eq_u32 %s, 3" % t0)
        A("s_cbranch_scc1 L_wide")
        keep = issued[0]
        issue_rest(o["WK"], o["W"])
        A("s_branch L_issued")
        LB("L_wide")
        issued[0] = keep
        issue_rest(o["WK"] + o["c3"], o["W"] + o.get("c3v", o["c3"]))
        LB("L_issued")
    else:
        issue_rest(o["WK"], o["W"])
    tail = []
    if o["lastfin"] != 1 and not o.get("xstag"): tail.append("global_load_dword %s, %s, %s" % (vXP, vXF, sX))
    for a in range(2):
        r = DNR + a * 4
        tail.append("global_load_dwordx4 v[%d:%d], %s, %s %s" % (r, r + 3, (vDN0, vDN1)[a], sDN, nt))
    for m in range(4):
        r = WOR + m * 4
        tail.append("global_load_dwordx4 v[%d:%d], %s, %s offset:%d %s" % (r, r + 3, (vWO0, vWO1)[m >> 1], sWO, (0, -4096)[(m & 1) == 0], nt))
    dnl = []
    if o.get("dnlate"):
        dnl = tail[1:1 + 2]
        if o["dnlate"] == 2: dnl = dnl[1:]
        for t_ in dnl: tail.remove(t_)
        tail.append(tail.pop(0))
    if isinstance(o["pretouch"], int):
        tail.insert(o["pretouch"], "global_load_dword v159, v158, %s sc1" % sWS)
    if o.get("xearly"):
        xl = [t_ for t_ in tail if vXP + "," in t_][0]; tail.remove(xl)
    taft = []
    for _ in range(o.get("tafter", 0)): taft.insert(0, tail.pop())
    tail[:0] = [vload(i) for i in range(8 - o["vlate"], 8)]
    nav = [-o["vlate"]]
    def tail_issue(n):
        for _ in range(n):
            if tail:
                t_ = tail.pop(0)
                for q_ in ([t_] if isinstance(t_, str) else t_): A(q_)
                nav[0] += 1
    sNE = "s63"
    def adaptive():
        C("a wave whose V loads have landed while it waited for q tops its window up with the weight loads")
        assert not o["vlate"] and not o["ntail0"] and not o["tsp"] and not o["tlag"] and len(tail) == 7
        A("s_getreg_b32 %s, hwreg(HW_REG_IB_STS, 0, 4)" % t0)
        A("s_sub_i32 %s, %d, %s" % (sNE, o["Wa"], t0))
        for k in range(min(7, o["Wa"])):
            A("s_cmp_le_i32 %s, %d" % (sNE, k))
            A("s_cbranch_scc1 L_topped")
            A(tail[k])
        LB("L_topped")
    A("s_waitcnt vmcnt(%d)" % (8 - o["vlate"]))
    for t in range(2):
        for s in range(4):
            r = KR + (t * 4 + s) * 4
            A("ds_read_b128 v[%d:%d], v%d offset:%d" % (r, r + 3, KA + s, L_K + t * 4096))
    tail_issue(o["ntail0"])
    stamp(2)
    A("s_waitcnt lgkmcnt(0)")
    A("s_barrier")
    stamp(3)
    for s in range(4):
        A("ds_read_b128 v[%d:%d], %s offset:%d" % (QR + 4 * s, QR + 4 * s + 3, vQA, L_Q + s * 64))
    if "a" in o["tsp"]: tail_issue(1)
    if o["adap"] == "a": adaptive()
    A("s_mov_b32 s46, 0x%x" % SCALE)
    A("s_mov_b32 %s, 0xffff0000" % t1)
    A("s_mov_b32 s48, 0x%x" % LOG2E)
    for s in range(4):
        A("s_waitcnt lgkmcnt(%d)" % (3 - s))
        for t in range(2):
            mfma(SR + 4 * t, KR + (t * 4 + s) * 4, QR + 4 * s, None if s == 0 else SR + 4 * t)
    T = KR
    vH0, vH1, vFL, vTG = "v%d" % (T + 28), "v%d" % (T + 29), "v%d" % (T + 26), "v%d" % (T + 27)
    A("v_mov_b32 %s, %d" % (vFL, L_FLAG))
    A("s_lshl_b32 %s, %s, 5" % (t3, sW))
    A("v_mov_b32 v%d, %s" % (T + 31, t3))
    A("ds_read_b64 v[%d:%d], %s" % (T + 26, T + 27, vFL))
    if "b" in o["tsp"]:
        tail_issue(1); A("s_nop 1")
    elif o["adap"] == "b": adaptive()
    else: A("s_nop 2")
    C("scores: bf16(qk) -> * scale -> bf16   (the reference's two roundings)")
    for i in range(8):
        A("v_cvt_pk_bf16_f32 v%d, 0, v%d" % (SR + i, SR + i))
    for i in range(4):
        A("v_pk_mul_f32 %s, %s, s[46:47] op_sel_hi:[1,0]" % (P2(SR + 2 * i), P2(SR + 2 * i)))
    for i in range(8):
        A("v_cvt_pk_bf16_f32 v%d, 0, v%d" % (SR + i, SR + i))
    vm, vt, vl = "v%d" % (T + 4), "v%d" % (T + 6), "v%d" % (T + 5)
    A("v_max3_f32 %s, v%d, v%d, v%d" % (vm, SR, SR + 1, SR + 2))
    A("v_max3_f32 %s, v%d, v%d, v%d" % (vt, SR + 3, SR + 4, SR + 5))
    A("v_max3_f32 %s, %s, v%d, v%d" % (vm, vm, SR + 6, SR + 7))
    A("v_max_f32 %s, %s, %s" % (vm, vm, vt))
    allred(vm, vt, "v_max_f32", 16)
    if "c" in o["tsp"]: tail_issue(1)
    if o["adap"] == "c": adaptive()
    allred(vm, vt, "v_max_f32", 32)
    A("v_mul_f32 %s, s48, %s" % (vm, vm))
    for i in range(4):
        A("v_pk_fma_f32 %s, %s, s[48:49], %s op_sel_hi:[1,0,0] neg_lo:[0,0,1] neg_hi:[0,0,1]" % (P2(SR + 2 * i), P2(SR + 2 * i), P2(T + 4)))
    for i in range(8):
        A("v_exp_f32 v%d, v%d" % (SR + i, SR + i))
    if "d" in o["tsp"]: tail_issue(1)
    for i in range(4):
        A("v_cvt_pk_bf16_f32 v%d, v%d, v%d" % (T + 8 + i, SR + 2 * i, SR + 2 * i + 1))
    for i in range(8):
        for r in range(2):
            A("v_perm_b32 v%d, v%d, v%d, v%d" % (PA + 2 * i + r, T + 8 + (i >> 1), T + 8 + (i >> 1), SEL + 2 * (i & 1) + r))
    stamp(4)
    O0, O1, Y = QR, QR + 4, QR + 8
    def pv(i):
        assert 7 - i + nav[0] >= 0
        A("s_waitcnt vmcnt(%d)" % (7 - i + nav[0]))
        if o["adap"] and i < min(7, o["Wa"]):
            A("s_cmp_gt_i32 %s, %d" % (sNE, i))
            A("s_cbranch_scc1 L_had%d" % i)
            tail_issue(1)
            LB("L_had%d" % i)
        elif i >= o["tlag"]: tail_issue((2 if i < o.get("tdbl", 0) else 1) if i < o.get("tlast", 7) else 9)
        vr = VR + 4 * i
        mfma16(O0, PA + 2 * i, vr, None if i == 0 else O0)
        mfma16(O1, PA + 2 * i, vr + 2, None if i == 0 else O1)
    A("v_pk_add_f32 %s, %s, %s" % (P2(SR), P2(SR), P2(SR + 2)))
    A("v_pk_add_f32 %s, %s, %s" % (P2(SR + 4), P2(SR + 4), P2(SR + 6)))
    A("v_pk_add_f32 %s, %s, %s" % (P2(SR), P2(SR), P2(SR + 4)))
    A("v_add_f32 %s, v%d, v%d" % (vl, SR, SR + 1))
    allred(vl, vt, "v_add_f32", 16)
    allred(vl, vt, "v_add_f32", 32)
    A("ds_write_b64 %s, v[%d:%d] offset:%d" % (vMLW, T + 4, T + 5, L_ML))
    A("s_waitcnt lgkmcnt(0)")
    A("v_readfirstlane_b32 %s, %s" % (sFAST, vFL))
    A("v_readfirstlane_b32 %s, %s" % (sTAG, vTG))
    SO = 4
    def soffs():
        A("s_and_b32 %s, %s, 0x2000" % (t0, sFAST))
        A("v_add_u32 %s, %s, %s" % (vL3, t0, vL3))
        A("s_or_b32 s3, s3, %s" % t0)
        for k in range(1, 8): A("s_xor_b32 s%d, s3, 0x%x" % (SO + k - 1, k << 9))
    nshot = [0]
    SD = [12, 20, 44, 64, 72, 80, 88] if not o["stamps"] else None
    def sshot(bit):
        if o["lastfin"] < 2 or not (o.get("sshot", 2) & bit): return
        nshot[0] += 1
        A("s_bitcmp0_b32 %s, 1" % sFAST)
        A("s_cbranch_scc1 L_noshot%d" % nshot[0])
        for k in range(1, 8):
            if o["lastfin"] == 2: A("s_load_dword s%d, %s, s%d offset:12 %s" % (12 + k, sWS, SO + k - 1, o.get("sfl", "glc")))
            else: A("s_load_dwordx8 s[%d:%d], %s, s%d glc" % (SD[k - 1], SD[k - 1] + 7, sWS, SO + k - 1))
        LB("L_noshot%d" % nshot[0])
    HA = T + 16
    ML = T
    OB = T + 8
    G2 = SR
    vM, vLs = "v124", "v125"
    for i in range(o["b2"]): pv(i)
    if o.get("dbgb2"): A("s_memrealtime s[70:71]")
    A("s_barrier")
    if o.get("dbgb2"): A("s_memrealtime s[72:73]")
    A("ds_read_b128 v[%d:%d], v%d offset:%d" % (ML, ML + 3, T + 31, L_ML))
    A("ds_read_b128 v[%d:%d], v%d offset:%d" % (ML + 4, ML + 7, T + 31, L_ML + 16))
    if not o["hlate"]:
        A("ds_read_b32 %s, %s offset:%d" % (vH0, vHA, L_H))
        A("ds_read_b32 %s, %s offset:%d" % (vH1, vHA, L_H + 16))
    avote = o["vote"] and not o["lastfin"]
    if avote:
        A("v_mov_b32 v%d, 0" % (T + 30))
        A("ds_read_b32 v%d, v%d offset:%d" % (T + 30, T + 30, L_FLAG + 8))
    if not o["cq2"]:
        A("s_mov_b32 s54, 0x55555555")
        A("s_mov_b32 s55, 0x55555555")
    A("v_mov_b32 v%d, %s" % (G2 + 3, sTAG))
    A("s_waitcnt lgkmcnt(%d)" % ((0 if o["hlate"] else 2) + (1 if avote else 0)))
    A("v_max3_f32 %s, v%d, v%d, v%d" % (vM, ML, ML + 2, ML + 4))
    A("v_max_f32 %s, %s, v%d" % (vM, vM, ML + 6))
    for w_ in range(4):
        A("v_sub_f32 v%d, v%d, %s" % (ML + 2 * w_, ML + 2 * w_, vM))
    for w_ in range(4):
        A("v_exp_f32 v%d, v%d" % (ML + 2 * w_, ML + 2 * w_))
    A("s_waitcnt lgkmcnt(0)")
    A("v_mul_f32 %s, v%d, v%d" % (vLs, ML, ML + 1))
    for w_ in range(1, 4):
        A("v_fmac_f32 %s, v%d, v%d" % (vLs, ML + 2 * w_, ML + 2 * w_ + 1))
    def h_operands():
        for a in range(2):
            for r in range(4):
                A("v_and_b32 v%d, %s, v%d" % (HA + 4 * a + r, (vH0, vH1)[a], MK + r))
    A("v_log_f32 v%d, %s" % (G2 + 2, vLs))
    A("v_rcp_f32 %s, %s" % (vLs, vLs))
    if not o["hlate"]: h_operands()
    else: A("s_nop 0")
    if avote: A("v_add_u32 %s, v%d, %s" % (vL3, T + 30, vL3))
    A("v_add_f32 v%d, v%d, %s" % (G2 + 2, G2 + 2, vM))
    for w_ in range(4):
        A("v_mul_f32 v%d, v%d, %s" % (ML + 2 * w_, ML + 2 * w_, vLs))
    for i in range(o["b2"], 8): pv(i)
    stamp(5)
    if o.get("nosync"):
        A("s_waitcnt vmcnt(0)")
        stamp(6)
        A("s_branch L_done")
    A("s_nop 6")
    A("ds_write_b128 %s, v[%d:%d] offset:%d" % (vOW, O0, O0 + 3, L_O))
    A("ds_write_b128 %s, v[%d:%d] offset:%d" % (vOW, O1, O1 + 3, L_O + OH))
    A("s_waitcnt lgkmcnt(0)")
    A("s_barrier")
    if o["cq2"]:
        OB4, AC = VR, VR + 16
        A("s_mov_b32 exec_hi, 0")
        for w_ in range(4):
            A("ds_read_b128 v[%d:%d], %s offset:%d" % (OB4 + 4 * w_, OB4 + 4 * w_ + 3, vOR, L_O + w_ * OWV))
        A("s_bitcmp0_b32 %s, 0" % sFAST)
        for w_ in range(4):
            A("s_waitcnt lgkmcnt(%d)" % (3 - w_))
            for hf in range(2):
                if w_ == 0: A("v_pk_mul_f32 %s, %s, %s op_sel_hi:[1,0]" % (P2(AC + 2 * hf), P2(OB4 + 2 * hf), P2(ML)))
                else: A("v_pk_fma_f32 %s, %s, %s, %s op_sel_hi:[1,0,1]" % (P2(AC + 2 * hf), P2(OB4 + 4 * w_ + 2 * hf), P2(ML + 2 * w_), P2(AC + 2 * hf)))
    else:
        for w_ in range(4):
            A("ds_read_b64 v[%d:%d], %s offset:%d" % (OB + 2 * w_, OB + 2 * w_ + 1, vOR, L_O + w_ * 2048))
        A("s_bitcmp0_b32 %s, 0" % sFAST)
        for w_ in range(4):
            A("s_waitcnt lgkmcnt(%d)" % (3 - w_))
            op = "v_mul_f32" if w_ == 0 else "v_fmac_f32"
            A("%s v%d, v%d, v%d" % (op, G2, ML + 2 * w_, OB + 2 * w_))
            A("%s v%d, v%d, v%d" % (op, G2 + 1, ML + 2 * w_, OB + 2 * w_ + 1))
    tails = []
    def publish(addr, g, name):
        A("s_cbranch_scc1 L_slow_%s" % name)
        A("global_store_dwordx4 %s, v[%d:%d], %s %s" % (addr, g, g + 3, sWS, o.get("stfl", "")))
        LB("L_back_%s" % name)
        tails.append((name, addr, g))
    if o["cq2"]:
        A("v_cvt_pk_bf16_f32 v%d, v%d, v%d" % (G2, AC, AC + 1))
        A("v_cvt_pk_bf16_f32 v%d, v%d, v%d" % (G2 + 1, AC + 2, AC + 3))
    else:
        A("v_cvt_pk_bf16_f32 v%d, v%d, v%d" % (G2, G2, G2 + 1))
        A("s_nop 1")
        A("v_mov_b32_dpp v%d, v%d quad_perm:[1,1,3,3] %s" % (G2 + 1, G2, DPP))
        A("s_mov_b64 exec, s[54:55]")
    publish(vS2, G2, "h2")
    A("s_mov_b64 exec, -1")
    stamp(6)
    P = T
    for i in range(2):
        A("global_load_dwordx4 v[%d:%d], %s, %s offset:%d %s" % (P + 4 * i, P + 4 * i + 3, vL2, sWS, i * 1024, o.get("p2fl", "sc1")))
    for t_ in dnl: A(t_)
    if o["hlate"]:
        A("s_barrier")
        A("ds_read_b32 %s, %s offset:%d" % (vH0, vHA, L_H))
        A("ds_read_b32 %s, %s offset:%d" % (vH1, vHA, L_H + 16))
    A("s_mov_b32 %s, %d" % (sCNT, o["spinmax"]))
    vTAG = "v127"
    sT2 = sTAG
    if o["reuse"]:
        sT2 = "s62"
        A("s_not_b32 %s, %s" % (t0, sTAG))
        A("s_lshl_b32 %s, %s, 24" % (t0, t0))
        A("s_and_b32 s62, %s, 0xffffff" % sTAG)
        A("s_or_b32 s62, s62, %s" % t0)
    A("v_mov_b32 %s, %s" % (vTAG, sT2))
    for k in range(4):
        A("s_mov_b32 s%d, 0x%x" % (56 + k, 0x07060500 | k))
        A("s_bfe_u32 s%d, %s, 0x%x" % (60 + k if k < 2 else 50 + k, sT2, 0x80000 | (8 * k)))
    TB = ["s60", "s61", "s52", "s53"]
    if o["hlate"]:
        A("s_waitcnt lgkmcnt(0)")
        h_operands()
    ndn_early = 2 - len(dnl)
    if o["lastfin"] >= 2: soffs()
    if o.get("mockx"): ndn_early = 0
    else: A("s_waitcnt vmcnt(%d)" % (3 + len(dnl)))
    if o.get("dbgwo"): A("s_memrealtime s[68:69]")
    for a in range(ndn_early):
        mfma(Y, HA + 4 * a, DNR + 4 * a, None if a == 0 else Y)
    if dnl:
        A("s_waitcnt vmcnt(%d)" % len(dnl))
        A("s_branch L_chk2b")
    else:
        A("s_branch L_chk2")
    LB("L_poll2")
    MS = ["s[44:45]", "s[46:47]"]
    for i in range(2):
        if o["mask2"]: A("s_mov_b64 exec, %s" % MS[i])
        A("global_load_dwordx4 v[%d:%d], %s, %s offset:%d sc1" % (P + 4 * i, P + 4 * i + 3, vL2, sWS, i * 1024))
    if o["mask2"]: A("s_mov_b64 exec, -1")
    A("s_sub_u32 %s, %s, 1" % (sCNT, sCNT))
    A("s_cbranch_scc1 L_end")
    LB("L_chk2")
    A("s_waitcnt vmcnt(0)")
    LB("L_chk2b")
    A("v_max_f32 %s, v%d, v%d" % (vM, P + 2, P + 6))
    for i in range(2):
        A("v_cmp_ne_u32 %s, %s, v%d" % (MS[i], sTAG, P + 4 * i + 3))
    A("v_max_f32_dpp %s, %s, %s row_ror:4 %s" % (vM, vM, vM, DPP))
    A("s_or_b64 vcc, %s, %s" % (MS[0], MS[1]))
    A("s_cbranch_scc1 L_poll2")
    stamp(7)
    if o.get("tpos", "g") == "g":
        for t_ in taft: A(t_)
    sshot(1)
    U = T + 8
    def unp(i, k):
        if k & 1: A("v_and_b32 v%d, %s, v%d" % (U + 4 * i + k, t1, P + 4 * i + (k >> 1)))
        else: A("v_lshlrev_b32 v%d, 16, v%d" % (U + 4 * i + k, P + 4 * i + (k >> 1)))
    vt2 = "v126"
    A("v_max_f32_dpp %s, %s, %s row_ror:8 %s" % (vM, vM, vM, DPP))
    A("v_mov_b32 %s, %s" % (vt2, vM))
    unp(0, 0); unp(0, 1)
    A("v_permlane16_swap_b32 %s, %s" % (vt2, vM))
    A("v_max_f32 %s, %s, %s" % (vM, vM, vt2))
    A("v_mov_b32 %s, %s" % (vt2, vM))
    unp(0, 2); unp(0, 3)
    A("v_permlane32_swap_b32 %s, %s" % (vt2, vM))
    A("v_max_f32 %s, %s, %s" % (vM, vM, vt2))
    w0, w1 = "v120", "v122"
    A("v_sub_f32 %s, v%d, %s" % (w0, P + 2, vM))
    A("v_sub_f32 %s, v%d, %s" % (w1, P + 6, vM))
    A("v_exp_f32 %s, %s" % (w0, w0))
    A("v_exp_f32 %s, %s" % (w1, w1))
    unp(1, 0)
    den, tA, tB = "v126", "v124", "v123"
    A("v_add_f32 %s, %s, %s" % (den, w0, w1))
    unp(1, 1); unp(1, 2)
    A("v_add_f32_dpp %s, %s, %s row_ror:4 %s" % (den, den, den, DPP))
    unp(1, 3)
    A("v_pk_mul_f32 %s, %s, v[120:121] op_sel_hi:[1,0]" % (P2(U), P2(U)))
    A("v_add_f32_dpp %s, %s, %s row_ror:8 %s" % (den, den, den, DPP))
    A("v_pk_mul_f32 %s, %s, v[120:121] op_sel_hi:[1,0]" % (P2(U + 2), P2(U + 2)))
    A("v_pk_fma_f32 %s, %s, v[122:123], %s op_sel_hi:[1,0,1]" % (P2(U), P2(U + 4), P2(U)))
    A("v_pk_fma_f32 %s, %s, v[122:123], %s op_sel_hi:[1,0,1]" % (P2(U + 2), P2(U + 6), P2(U + 2)))
    A("v_mov_b32 %s, %s" % (tA, den))
    A("s_bitcmp0_b32 %s, 0" % sFAST)
    A("v_permlane32_swap_b32 v%d, v%d" % (U, U + 2))
    A("v_permlane32_swap_b32 v%d, v%d" % (U + 1, U + 3))
    A("v_permlane32_swap_b32 %s, %s" % (tA, den))
    A("v_pk_add_f32 %s, %s, %s" % (P2(U), P2(U), P2(U + 2)))
    A("v_add_f32 %s, %s, %s" % (den, den, tA))
    A("s_mov_b32 %s, %d" % (sCNT, o["spinmax"]))
    A("v_permlane16_swap_b32 v%d, v%d" % (U, U + 1))
    A("v_mov_b32 %s, %s" % (tA, den))
    A("v_add_f32 v%d, v%d, v%d" % (U, U, U + 1))
    A("s_nop 0")
    A("v_permlane16_swap_b32 %s, %s" % (tA, den))
    A("v_add_f32_dpp v%d, v%d, v%d row_ror:4 %s" % (U, U, U, DPP))
    A("v_add_f32 %s, %s, %s" % (den, den, tA))
    A("v_rcp_f32 %s, %s" % (den, den))
    A("v_add_f32_dpp v%d, v%d, v%d row_ror:8 %s" % (U, U, U, DPP))
    a0 = "v125"
    A("v_mul_f32 %s, v%d, %s" % (a0, U, den))
    A("v_cvt_pk_bf16_f32 %s, %s, %s" % (a0, a0, a0))
    if o.get("mockx"):
        GX, PXS = 120, VR
        A("v_mov_b32 v%d, %s" % (GX + 3, sTAG))
        A("s_cmp_gt_u32 %s, 1" % sW)
        A("v_mov_b32_dpp v%d, %s quad_perm:[0,0,2,2] %s" % (GX, a0, DPP))
        A("v_mov_b32_dpp v%d, %s quad_perm:[1,1,3,3] %s" % (GX + 1, a0, DPP))
        A("s_cselect_b64 exec, 0, 15")
        A("global_store_dwordx4 %s, v[%d:%d], %s sc1" % (vS3, GX, GX + 3, sWS))
        A("s_mov_b64 exec, -1")
        stamp(1)
        if o.get("tpos") == "x":
            for t_ in taft: A(t_)
        A("s_mov_b64 exec, 0xff")
        LB("L_pollx")
        A("global_load_dwordx4 v[%d:%d], %s, %s sc1" % (PXS, PXS + 3, vL3, sWS))
        A("s_sub_u32 %s, %s, 1" % (sCNT, sCNT))
        A("s_cbranch_scc1 L_end")
        A("s_waitcnt vmcnt(0)")
        A("v_cmp_ne_u32 vcc, %s, v%d" % (sTAG, PXS + 3))
        A("v_mov_b32 %s, v%d" % (a0, PXS))
        A("s_and_b64 exec, exec, vcc")
        A("s_cbranch_scc1 L_pollx")
        A("s_mov_b64 exec, -1")
        stamp(10)
        A("s_bitcmp0_b32 %s, 0" % sFAST)
        for a in range(2):
            mfma(Y, HA + 4 * a, DNR + 4 * a, None if a == 0 else Y)
        ndn_early = 2
    A("s_nop 1")
    WA = T
    for m in range(4):
        for r in range(4):
            A("v_and_b32_dpp v%d, %s, v%d row_newbcast:%d %s" % (WA + 4 * m + r, a0, MK + r, m, DPP))
        if m > 0:
            mfma(Y, WA + 4 * (m - 1), WOR + 4 * (m - 1), Y if (m > 1 or ndn_early) else None)
    if dnl:
        A("s_waitcnt vmcnt(0)")
        for a in range(ndn_early, 2):
            mfma(Y, HA + 4 * a, DNR + 4 * a, Y)
    else:
        A("s_nop 1")
    mfma(Y, WA + 12, WOR + 12, Y)
    A("s_mov_b32 exec_hi, 0")
    if o["reuse"]:
        A("s_barrier")
        A("s_nop 5")
    else:
        A("s_nop 6")
    for k in range(4):
        A("v_perm_b32 v%d, v%d, %s, s%d" % (Y + k, Y + k, vTAG, 56 + k))
    publish(vS25, Y, "h25")
    stamp(8)
    sshot(2)
    def tail_g25():
        PS = T + 16
        A("s_cmp_lg_u32 %s, %d" % (sW, o["gw"]))
        A("s_cbranch_scc1 L_done")
        A("s_mov_b64 exec, -1")
        if o.get("ack25") == 1: A("s_waitcnt vmcnt(0)")
        NP = o["np25"]
        PK = [PS, PS + 8, WOR, WOR + 8, DNR]
        def ask(k):
            A("global_load_dwordx4 v[%d:%d], %s, %s sc1" % (PK[k], PK[k] + 3, vL25, sWS))
            A("global_load_dwordx4 v[%d:%d], v164, %s sc1" % (PK[k] + 4, PK[k] + 7, sWS))
        def look(k):
            A("s_waitcnt vmcnt(%d)" % (2 * NP - 1))
            for q in range(4): A("v_xor_b32 v%d, %s, v%d" % (P + q, TB[q], PK[k] + q))
            A("v_or3_b32 %s, v%d, v%d, v%d" % (tA, P, P + 1, P + 2))
            A("s_waitcnt vmcnt(%d)" % (2 * NP - 2))
            for q in range(4): A("v_xor_b32 v%d, %s, v%d" % (P + 4 + q, TB[q], PK[k] + 4 + q))
            A("v_or3_b32 %s, %s, v%d, v%d" % (tA, tA, P + 3, P + 4))
            A("v_or3_b32 %s, %s, v%d, v%d" % (tA, tA, P + 5, P + 6))
            A("v_or_b32_sdwa %s, %s, v%d dst_sel:DWORD dst_unused:UNUSED_PAD src0_sel:BYTE_0 src1_sel:BYTE_0" % (tA, tA, P + 7))
            A("v_cmp_ne_u32 vcc, 0, %s" % tA)
            A("s_and_b64 exec, exec, vcc")
        def masks():
            A("s_lshl_b32 s46, 0x01010101, %s" % sH)
            A("s_not_b32 s46, s46")
            A("s_mov_b32 s47, s46")
            if o["cq25"]:
                A("s_lshr_b32 s41, %s, 2" % sJ)
                A("s_and_b32 s41, s41, 6")
                A("s_bfe_u32 %s, %s, 0x10001" % (t0, sJ))
                A("s_or_b32 s41, s41, %s" % t0)
        if NP == 1:
            masks()
            LB("L_poll25")
            ask(0)
            A("s_sub_u32 %s, %s, 1" % (sCNT, sCNT))
            A("s_cbranch_scc1 L_end")
            look(0)
            A("s_cbranch_scc1 L_poll25")
        else:
            pre = o.get("pre25", 1)
            for k in range(NP):
                if k == pre:
                    if o.get("ack25") == 2: A("s_waitcnt vmcnt(%d)" % (2 * pre))
                    for _ in range(o.get("stag25", 0)): A("s_nop 7")
                ask(k)
            masks()
            LB("L_poll25")
            for k in range(NP):
                look(k)
                A("s_cbranch_scc0 L_got25")
                ask(k)
            A("s_sub_u32 %s, %s, 1" % (sCNT, sCNT))
            A("s_cbranch_scc0 L_poll25")
            A("s_endpgm")
            LB("L_got25")
        A("s_mov_b64 exec, -1")
        stamp(9)
        if o.get("ampm"): A("s_memrealtime s[86:87]")
        x_, y_ = "v%d" % P, "v%d" % (P + 1)
        A("v_pk_add_f32 %s, %s, %s" % (P2(P), P2(P), P2(P + 4)))
        A("v_pk_add_f32 %s, %s, %s" % (P2(P + 2), P2(P + 2), P2(P + 6)))
        if o["cq25"]:
            A("s_cmp_eq_u32 s41, %s" % sH)
            A("s_nop 0")
        else:
            A("s_lshr_b32 %s, %s, 2" % (t0, sJ) if o["finhi"] else "s_and_b32 %s, %s, 7" % (t0, sJ))
            A("s_cmp_eq_u32 %s, %s" % (t0, sH))
        A("v_permlane32_swap_b32 v%d, v%d" % (P, P + 2))
        A("v_permlane32_swap_b32 v%d, v%d" % (P + 1, P + 3))
        A("v_pk_add_f32 %s, %s, %s" % (P2(P), P2(P), P2(P + 2)))
        A("v_mov_b32 v%d, %s" % (P + 3, sTAG))
        A("s_mov_b32 s44, 0xff")
        for rot_ in (4, 8):
            A("v_add_f32_dpp %s, %s, %s row_ror:%d %s" % (x_, x_, x_, rot_, DPP))
            A("v_add_f32_dpp %s, %s, %s row_ror:%d %s" % (y_, y_, y_, rot_, DPP))
            if rot_ == 4: A("s_mov_b32 s45, s44")
        A("v_mov_b32 v%d, %s" % (P + 4, x_))
        A("v_mov_b32 v%d, %s" % (P + 5, y_))
        A("s_nop 0")
        A("v_permlane16_swap_b32 v%d, %s" % (P + 4, x_))
        A("v_permlane16_swap_b32 v%d, %s" % (P + 5, y_))
        A("v_pk_add_f32 %s, %s, %s" % (P2(P), P2(P), P2(P + 4)))
        A("s_cbranch_scc1 L_final")
        A("s_mov_b64 exec, s[44:45]")
        A("global_store_dwordx4 %s, v[%d:%d], %s sc1" % (vS3, P, P + 3, sWS))
        A("s_branch L_done")
        LB("L_final")
        if o.get("stfin"): stamp(1)
        if o.get("xstag"): A("global_load_dword %s, %s, %s nt" % (vXP, vXF, sX))
        A("s_mov_b64 exec, s[46:47]")
        NP = o["np3"]
        PS = VR
        X = P + 4
        A("global_load_dwordx4 v[%d:%d], %s, %s sc1" % (PS, PS + 3, vL3, sWS))
        A("s_mov_b64 exec, -1")
        A("s_mov_b32 %s, %d" % (sCNT, o["spinmax"]))
        for q in range(4):
            for r in range(2):
                A("v_mov_b32_dpp v%d, v%d row_newbcast:%d row_mask:0x%x bank_mask:0x%x" % (X + r, P + r, q, (5, 10)[q >> 1], (3, 12)[q & 1]))
        if not o.get("xstag"):
            A("v_lshlrev_b32 v%d, 16, %s" % (P, vXP))
            A("v_and_b32 v%d, %s, %s" % (P + 1, t1, vXP))
            A("v_pk_add_f32 %s, %s, %s" % (P2(X), P2(X), P2(P)))
        A("s_mov_b32 s44, 0x01010101")
        A("s_mov_b32 s45, s44")
        A("s_mov_b64 exec, s[46:47]")
        for k in range(1, NP):
            if o.get("xstag") and k == 1: A("s_waitcnt vmcnt(1)")
            for _ in range(o.get("stag3", 0) + (2 if k > 1 and o.get("stag3") else 0)): A("s_nop 7")
            A("global_load_dwordx4 v[%d:%d], %s, %s sc1" % (PS + 4 * k, PS + 4 * k + 3, vL3, sWS))
        LB("L_poll3")
        for k in range(NP):
            A("s_waitcnt vmcnt(%d)" % (NP - 1))
            A("v_cmp_ne_u32 vcc, %s, v%d" % (sTAG, PS + 4 * k + 3))
            A("v_mov_b32 v%d, v%d" % (X, PS + 4 * k))
            A("v_mov_b32 v%d, v%d" % (X + 1, PS + 4 * k + 1))
            A("s_and_b64 exec, exec, vcc")
            A("s_cbranch_scc0 L_got3")
            A("global_load_dwordx4 v[%d:%d], %s, %s sc1" % (PS + 4 * k, PS + 4 * k + 3, vL3, sWS))
        A("s_sub_u32 %s, %s, 1" % (sCNT, sCNT))
        A("s_cbranch_scc0 L_poll3")
        A("s_endpgm")
        LB("L_got3")
        stamp(10)
        if o.get("ampf"):
            A("s_waitcnt vmcnt(0)")
            A("s_memrealtime s[86:87]")
        A("s_mov_b64 exec, -1")
        x_, y_ = "v%d" % X, "v%d" % (X + 1)
        fl = ["s_cmp_lg_u32 s2, 0", "s_nop 0"]
        if o.get("xstag"): fl = ["v_lshlrev_b32 %s, 16, %s" % (tA, vXP), "v_and_b32 %s, %s, %s" % (tB, t1, vXP)]
        for pat in ("quad_perm:[1,0,3,2]", "quad_perm:[2,3,0,1]", "row_half_mirror"):
            A("v_add_f32_dpp %s, %s, %s %s %s" % (x_, x_, x_, pat, DPP))
            A("v_add_f32_dpp %s, %s, %s %s %s" % (y_, y_, y_, pat, DPP))
            if fl: A(fl.pop(0))
        if o.get("xstag"):
            A("v_add_f32 %s, %s, %s" % (x_, x_, tA))
            A("v_add_f32 %s, %s, %s" % (y_, y_, tB))
            A("s_cmp_lg_u32 s2, 0")
        A("v_cvt_pk_bf16_f32 %s, %s, %s" % (x_, x_, y_))
        A("s_mov_b64 exec, s[44:45]")
        A("global_store_dword %s, %s, %s %s" % (vXF, x_, sOUT, o.get("ofl", "")))
        if o.get("ampf"):
            A("s_waitcnt vmcnt(0)")
            A("s_memrealtime s[88:89]")
            A("s_waitcnt lgkmcnt(0)")
            A("s_sub_u32 s88, s88, s86")
            A("s_mul_i32 s88, s88, 40")
            A("s_min_u32 s88, s88, 20000")
            A("s_add_u32 s88, s88, 1500")
            LB("L_fspin")
            A("s_memrealtime s[92:93]")
            A("s_waitcnt lgkmcnt(0)")
            A("s_sub_u32 s92, s92, s90")
            A("s_cmp_lt_u32 s92, s88")
            A("s_cbranch_scc1 L_fspin")
            A("s_cmp_lg_u32 s2, 0")
        A("s_cbranch_scc1 L_done")
        C("the next launch must not mistake this launch's hand-off words for its own")
        if o["efull"]:
            A("s_mov_b64 exec, 0xff")
            A("v_lshlrev_b32 %s, 4, v0" % tA)
            for q in range(4): A("v_mov_b32 v%d, %s" % (P + q, sTAG))
            A("global_store_dwordx4 %s, v[%d:%d], %s %s" % (tA, P, P + 3, sWS, o.get("efl", "")))
        else:
            A("s_mov_b64 exec, 1")
            A("v_mov_b32 %s, 0" % tA)
            A("v_mov_b32 %s, %s" % (tB, sTAG))
            A("global_store_dword %s, %s, %s %s" % (tA, tB, sWS, o.get("efl", "")))
    nkeep = len(L)
    NP = o["np25"]
    PS = T + 16
    if o.get("ack25") == 1: A("s_waitcnt vmcnt(0)")
    sshot(8)
    for _ in range(o.get("dly25", 0)): A("s_nop 7")
    for k in range(NP):
        if k == 1 and o.get("ack25") == 2: A("s_waitcnt vmcnt(1)")
        if k == 1:
            for _ in range(o.get("stag25", 0)): A("s_nop 7")
        A("global_load_dwordx4 v[%d:%d], %s, %s sc1" % (PS + 4 * k, PS + 4 * k + 3, vL25, sWS))
    sshot(4)
    LB("L_poll25")
    for k in range(NP):
        A("s_waitcnt vmcnt(%d)" % (NP - 1))
        for q in range(4):
            A("v_xor_b32 v%d, %s, v%d" % (P + q, TB[q], PS + 4 * k + q))
        A("v_or3_b32 %s, v%d, v%d, v%d" % (tA, P, P + 1, P + 2))
        A("v_or_b32_sdwa %s, %s, v%d dst_sel:DWORD dst_unused:UNUSED_PAD src0_sel:BYTE_0 src1_sel:BYTE_0" % (tA, tA, P + 3))
        A("v_cmp_ne_u32 vcc, 0, %s" % tA)
        if o["mask25"]:
            A("s_and_b64 exec, exec, vcc")
            A("s_cbranch_scc0 L_got25")
        else:
            A("s_cbranch_vccz L_got25")
        A("global_load_dwordx4 v[%d:%d], %s, %s sc1" % (PS + 4 * k, PS + 4 * k + 3, vL25, sWS))
    A("s_sub_u32 %s, %s, 1" % (sCNT, sCNT))
    A("s_cbranch_scc0 L_poll25")
    A("s_endpgm")
    LB("L_got25")
    A("s_mov_b64 exec, -1")
    stamp(9)
    if o.get("ampm"): A("s_memrealtime s[86:87]")
    x_, y_ = "v%d" % P, "v%d" % (P + 1)
    A("v_permlane16_swap_b32 v%d, v%d" % (P, P + 2))
    A("v_permlane16_swap_b32 v%d, v%d" % (P + 1, P + 3))
    A("v_add_f32 %s, %s, v%d" % (x_, x_, P + 2))
    A("v_add_f32 %s, %s, v%d" % (y_, y_, P + 3))
    fl = ["v_mov_b32 v%d, %s" % (P + 3, sTAG), "s_and_b32 %s, %s, 7" % (t0, sJ), "s_cmp_eq_u32 %s, %s" % (t0, sH), "s_nop 0"]
    if o["lastfin"]: fl = ["v_mov_b32 v%d, %s" % (P + 3, sTAG), "s_bitcmp1_b32 %s, 1" % sFAST, "s_nop 0", "s_nop 0"]
    for rot_ in (1, 2, 4, 8):
        A(fl.pop(0))
        A("v_add_f32_dpp %s, %s, %s row_ror:%d %s" % (x_, x_, x_, rot_, DPP))
        A("v_add_f32_dpp %s, %s, %s row_ror:%d %s" % (y_, y_, y_, rot_, DPP))
    def old_final():
        if o.get("ewg"): A("s_xor_b32 s63, s2, %d" % o["ewg"])
        if o.get("otouch"):
            A("global_load_dword v158, %s, %s" % (vXF, sOUT))
        if o.get("xstag"): A("global_load_dword %s, %s, %s %s" % (vXP, vXF, sX, o["xstag"] if isinstance(o["xstag"], str) else "nt"))
        A("s_lshl_b32 %s, 0x10001, %s" % (t0, sH))
        A("s_andn2_b32 exec_lo, 0xff00ff, %s" % t0)
        A("s_mov_b32 exec_hi, 0")
        A("s_mov_b32 %s, %d" % (sCNT, o["spinmax"]))
        NP = o["np3"]
        PS = VR
        if o["lastfin"] == 2 and o.get("sshot", 2):
            A("s_waitcnt lgkmcnt(0)")
            for k in range(1, 8): A("s_xor_b32 s%d, s%d, %s" % (12 + k, 12 + k, sTAG))
            A("s_or_b32 s13, s13, s14")
            A("s_or_b64 s[16:17], s[16:17], s[18:19]")
            A("s_or_b32 s13, s13, s15")
            A("s_or_b32 s16, s16, s17")
            if o["stamps"]: A("s_memrealtime s[68:69]")
            A("s_or_b32 s13, s13, s16")
            if o["stamps"]: A("s_cselect_b32 s66, 1, 2")
            A("s_cbranch_scc1 L_ask3")
            A("global_load_dwordx4 v[%d:%d], %s, %s %s" % (PS, PS + 3, vL3, sWS, o.get("hfl", "")))
            A("s_branch L_poll3")
            LB("L_ask3")
        for k in range(NP):
            if o.get("xstag") and k == 1: A("s_waitcnt vmcnt(1)")
            A("global_load_dwordx4 v[%d:%d], %s, %s sc1" % (PS + 4 * k, PS + 4 * k + 3, vL3, sWS))
        LB("L_poll3")
        for k in range(NP):
            A("s_waitcnt vmcnt(%d)" % (NP - 1))
            A("v_cmp_ne_u32 vcc, %s, v%d" % (sTAG, PS + 4 * k + 3))
            A("v_mov_b32 v%d, v%d" % (P, PS + 4 * k))
            A("v_mov_b32 v%d, v%d" % (P + 1, PS + 4 * k + 1))
            A("s_and_b64 exec, exec, vcc")
            A("s_cbranch_scc0 L_got3")
            A("global_load_dwordx4 v[%d:%d], %s, %s sc1" % (PS + 4 * k, PS + 4 * k + 3, vL3, sWS))
        A("s_sub_u32 %s, %s, 1" % (sCNT, sCNT))
        A("s_cbranch_scc0 L_poll3")
        A("s_endpgm")
        LB("L_got3")
        stamp(10)
        A("s_mov_b32 exec_lo, -1")
        A("v_lshlrev_b32 %s, 16, %s" % (tA, vXP))
        A("v_and_b32 %s, %s, %s" % (tB, t1, vXP))
        for pat in ("quad_perm:[1,0,3,2]", "quad_perm:[2,3,0,1]", "row_half_mirror"):
            A("v_add_f32_dpp %s, %s, %s %s %s" % (x_, x_, x_, pat, DPP))
            A("v_add_f32_dpp %s, %s, %s %s %s" % (y_, y_, y_, pat, DPP))
            if pat != "row_half_mirror": A("s_nop 0")
        A("v_add_f32 %s, %s, %s" % (x_, x_, tA))
        A("v_add_f32 %s, %s, %s" % (y_, y_, tB))
        if o.get("perturb"):
            import struct
            bits = struct.unpack("<I", struct.pack("<f", float(o["perturb"])))[0]
            if o.get("pall"):
                A("v_mul_f32 %s, 0x%x, %s" % (x_, bits, x_)); A("v_mul_f32 %s, 0x%x, %s" % (y_, bits, y_))
            else:
                A("s_or_b32 %s, s2, %s" % (t0, sW))
                A("s_cselect_b32 %s, 0, 0x%x" % (t0, bits))
                A("v_add_f32 %s, %s, %s" % (x_, t0, x_))
        A("v_cvt_pk_bf16_f32 %s, %s, %s" % (x_, x_, y_))
        A("s_mov_b64 exec, 0x10001")
        A("global_store_dword %s, %s, %s %s" % (vXF, x_, sOUT, o.get("ofl", "")))
        A("s_or_b32 %s, %s, %s" % (t0, sJ if o["lastfin"] else "s2" if not o.get("ewg") else "s63", sW))
        A("s_cbranch_scc1 L_done")
        C("the next launch must not mistake this launch's hand-off words for its own")
        A("v_mov_b32 %s, 0" % tA)
        A("v_mov_b32 %s, %s" % (tB, sTAG))
        A("global_store_dword %s, %s, %s %s" % (tA, tB, sWS, o.get("efl", "")))
    def diag_end():
        if o.get("ampm"):
            A("s_or_b32 %s, %s, %s" % (t0, sJ, sW))
            A("s_cbranch_scc1 L_nom")
            A("s_mov_b64 exec, -1")
            A("s_waitcnt lgkmcnt(0)")
            A("s_lshl_b32 %s, %s, 2" % (t0, sH))
            A("v_mov_b32 v2, %s" % t0)
            A("s_or_b32 s86, s86, 1")
            A("v_mov_b32 v3, s86")
            A("global_store_dword v2, v3, s[24:25] offset:192 sc1")
            A("s_cmp_lg_u32 s2, 0")
            A("s_cbranch_scc1 L_nom")
            A("v_and_b32 v2, 7, v0")
            A("v_lshlrev_b32 v2, 2, v2")
            A("s_movk_i32 s85, 1000")
            LB("L_mpoll")
            A("global_load_dword v3, v2, s[24:25] offset:192 sc1")
            A("global_load_dword v4, v2, s[24:25] offset:128 sc1")
            A("s_sub_u32 s85, s85, 1")
            A("s_cbranch_scc1 L_nom")
            A("s_waitcnt vmcnt(0)")
            A("v_cmp_eq_u32 vcc, 0, v3")
            A("s_cbranch_vccnz L_mpoll")
            for g_ in range(8): A("v_readlane_b32 s%d, v3, %d" % (64 + g_, g_))
            for g_ in range(8): A("v_readlane_b32 s%d, v4, %d" % (72 + g_, g_))
            A("s_nop 3")
            for g_ in range(16): A("s_sub_u32 s%d, s%d, s90" % (64 + g_, 64 + g_))
            md = o["ampm"]
            if md >= 10:
                for g_ in range(8): A("s_mov_b32 s%d, s%d" % (64 + g_, 72 + g_))
                md -= 10
            key = {1: 64, 2: 72}.get(md)
            A("s_mov_b32 s80, s64")
            A("s_mov_b32 s81, s%d" % (key or 64))
            A("s_mov_b32 s82, 0x80000000")
            for g_ in range(1, 8):
                if key:
                    A("s_cmp_gt_i32 s%d, s81" % (key + g_))
                    A("s_cselect_b32 s83, s80, s%d" % (64 + g_))
                    A("s_cselect_b32 s80, s%d, s80" % (64 + g_))
                    A("s_cselect_b32 s81, s%d, s81" % (key + g_))
                    A("s_max_i32 s82, s82, s83")
                else:
                    A("s_max_i32 s82, s82, s%d" % (64 + g_))
            A("s_sub_i32 s88, s80, s82")
            A("s_add_i32 s88, s88, 100")
            A("s_max_i32 s88, s88, 0")
            A("s_mul_i32 s88, s88, 20")
            A("s_min_u32 s88, s88, 20000")
            A("s_add_u32 s88, s88, 1500")
            LB("L_mspin")
            A("s_memrealtime s[92:93]")
            A("s_waitcnt lgkmcnt(0)")
            A("s_sub_u32 s92, s92, s90")
            A("s_cmp_lt_u32 s92, s88")
            A("s_cbranch_scc1 L_mspin")
            LB("L_nom")
        if o.get("lateh") is not None:
            A("s_or_b32 %s, s2, %s" % (t0, sW))
            A("s_cbranch_scc1 L_nolate")
            A("s_mov_b64 exec, -1")
            A("v_and_b32 v2, 7, v0")
            A("v_lshlrev_b32 v2, 2, v2")
            A("global_load_dword v3, v2, s[24:25] sc1")
            A("s_waitcnt vmcnt(0)")
            for g_ in range(8): A("v_readlane_b32 s%d, v3, %d" % (64 + g_, g_))
            A("s_nop 3")
            for g_ in range(8): A("s_sub_u32 s%d, s%d, s90" % (64 + g_, 64 + g_))
            A("s_mov_b32 s72, s64")
            for g_ in range(1, 8): A("s_min_i32 s72, s72, s%d" % (64 + g_))
            if o["lateh"] == 8:
                A("s_mov_b32 s88, s64")
                for g_ in range(1, 8): A("s_max_i32 s88, s88, s%d" % (64 + g_))
            else:
                A("s_mov_b32 s88, s%d" % (64 + o["lateh"]))
            A("s_sub_u32 s88, s88, s72")
            A("s_mul_i32 s88, s88, 20")
            A("s_min_u32 s88, s88, 20000")
            A("s_add_u32 s88, s88, 1500")
            A("s_add_u32 s88, s88, s72")
            LB("L_latespin")
            A("s_memrealtime s[92:93]")
            A("s_waitcnt lgkmcnt(0)")
            A("s_sub_u32 s92, s92, s90")
            A("s_cmp_lt_u32 s92, s88")
            A("s_cbranch_scc1 L_latespin")
            LB("L_nolate")
        amp_end("")
        if o.get("pad"):
            LB("L_padspin")
            A("s_memrealtime s[92:93]")
            A("s_waitcnt lgkmcnt(0)")
            A("s_sub_u32 s92, s92, s90")
            A("s_cmp_lt_u32 s92, %d" % o["pad"])
            A("s_cbranch_scc1 L_padspin")
    if o.get("mockx"):
        A("v_lshlrev_b32 %s, 16, %s" % (tA, vXP))
        A("v_and_b32 %s, %s, %s" % (tB, t1, vXP))
        A("v_add_f32 %s, %s, %s" % (x_, x_, tA))
        A("v_add_f32 %s, %s, %s" % (y_, y_, tB))
        A("v_cvt_pk_bf16_f32 %s, %s, %s" % (x_, x_, y_))
        A("s_mov_b64 exec, 0x10001")
        A("s_cbranch_scc0 L_done")
        A("global_store_dword %s, %s, %s" % (vXF, x_, sOUT))
        A("s_or_b32 %s, s2, %s" % (t0, sW))
        A("s_cbranch_scc1 L_done")
        A("v_mov_b32 %s, 0" % tA)
        A("v_mov_b32 %s, %s" % (tB, sTAG))
        A("global_store_dword %s, %s, %s" % (tA, tB, sWS))
        A("s_branch L_done")
    A("s_cbranch_scc1 L_final")
    A("s_mov_b64 exec, 0x%x" % (0x30003 if o["rep3"] or o["vote"] else 0x10001))
    A("global_store_dwordx4 %s, v[%d:%d], %s sc1" % (vS3, P, P + 3, sWS))
    if o.get("wb"):
        A("s_or_b32 %s, %s, %s" % (t0, sW, sJ) if o["wb"] == 1 else "s_and_b32 %s, %s, 3" % (t0, sW))
        A("s_cmp_lg_u32 %s, %d" % (t0, 8 if o["wb"] == 1 else 0))
        A("s_cbranch_scc1 L_done")
        A("buffer_wbl2 sc1")
    A("s_branch L_done")
    LB("L_final")
    if o["lastfin"] == 1:
        A("s_mov_b64 exec, 0x10001")
        A("ds_write_b128 %s, v[%d:%d] offset:%d" % (vL3, P, P + 3, L_FIN))
        A("s_waitcnt lgkmcnt(0)")
    else:
        old_final()
    if o["g25"]:
        del L[nkeep:]
        tail_g25()
    LB("L_done")
    diag_end()
    dump_stamps()
    A("s_endpgm")
    for name, addr, g in tails:
        LB("L_slow_%s" % name)
        A("global_store_dwordx4 %s, v[%d:%d], %s sc1" % (addr, g, g + 3, sWS))
        A("s_branch L_back_%s" % name)
    if o["lastfin"] == 1: unit_final()
    LB("L_end")
    A("s_endpgm")
    head = HEADER.format(lds=o.get("lds", LDS_BYTES), k=KNAME); foot = FOOTER.format(k=KNAME, vg=o.get("vg", 168), sg=96)
    if o["align"]: L = align_runs(L, head, foot, o.get("minrun", 3), o.get("nopmin", 6))
    return head + "\n".join(L) + foot


if __name__ == "__main__":
    kw = {}
    out = "parallel_sum__sliding_block_cached__swiglu_ffn__decode.s"
    for a in sys.argv[1:]:
        k, v = a.split("=", 1)
        if k == "out": out = v; continue
        try: v = int(v) if k != "nlv" else v
        except ValueError: pass
        kw[k] = v
    open(out, "w").write(gen(**kw))
```

```python
import sys

KNAME = "parallel_sum__sliding_block_cached__swiglu_ffn__decode_kernel"

HEADER = """; Kernarg layout for this problem (96 bytes, ptrs only, base s[0:1]):
;   offset  72: d_out     shape=(1, 1, 512) dtype=bfloat16
; @launch grid=(256,1,1) block=(320,1,1) lds={lds}
.amdgcn_target "amdgcn-amd-amdhsa--gfx950"
.text
.globl {k}
.p2align 8
.type {k},@function
{k}:
"""
FOOTER = """
.section .rodata,"a"
.p2align 6
.amdhsa_kernel {k}
  .amdhsa_next_free_vgpr {vg}
  .amdhsa_next_free_sgpr {sg}
  .amdhsa_accum_offset {vg}
  .amdhsa_group_segment_fixed_size 0
  .amdhsa_kernarg_size 96
  .amdhsa_user_sgpr_count 2
  .amdhsa_user_sgpr_kernarg_segment_ptr 1
  .amdhsa_system_sgpr_workgroup_id_x 1
.end_amdhsa_kernel
"""

MB1A = 0x40000
MB1B = 0x80000
MB2 = 0x100000
MB25 = 0x400000
MB3 = 0x1C0000
STAMPS = 0x10000000
L_WQ = 0
L_FF = 16384
L_XN = 32768
L_Q = 33792
L_H = 34816
L_FLAG = 34848
L_VOTE = 34864
L_ML = 34880
L_TKT = 35008
L_A = 35008
L_FIN = L_XN
L_O = 35072
L_K = L_O + 8192
L_K = (L_K + 1023) // 1024 * 1024
LDS_BYTES = L_K + 32768
TAGC = 0x9E3779B9
LOG2E = 0x3FB8AA3B
SCALE = 0x3DB504F3
EPS = 0x3727C5AC
DPP = "row_mask:0xf bank_mask:0xf"

DEF = dict(stamps=False, spinmax=200000, WK=5, W=6, Wtail=8, b0pos=45, nt="nt", pretouch="k", atries=24,
           prefetch=True, b2=7, ntail0=0, tlag=0, mask2=False, pt1=True, rotm=4, rep3=False, tsp="a", auxearly=True, hlate=False, vote=True, np25=2, np3=5, ack25=2, align=1, unr=2, mask25=True, lperm=0, nlv="43434343", reuse=1, rp=2176, bonly=0, bdefer=4, bskip=1, lastfin=0, npu=1, stag=0, g25=1, gw=2, pt3=1, finhi=1, efull=1, stouch=0, cq2=0, cq25=0, vlate=1, idearly=0, adap="", Wa=6, stl=15, tw=0, stl2=0, stw=15, est=0, perm="", hrot=0, np2=0, g2=2, gw2=0)


def _sizes(text):
    import subprocess, tempfile, os, re
    d = tempfile.mkdtemp()
    open(d + "/a.s", "w").write(text)
    subprocess.run(["clang", "-x", "assembler", "-target", "amdgcn-amd-amdhsa", "-mcpu=gfx950", "-c", d + "/a.s", "-o", d + "/a.o"], check=True)
    out = subprocess.run(["llvm-objdump", "-d", "--mcpu=gfx950", d + "/a.o"], capture_output=True, text=True).stdout
    r = []
    for ln in out.split("\n"):
        m = re.search(r"^\s+(\S+).*// ([0-9A-F]{12}): ((?:[0-9A-F]{8} ?)+)", ln)
        if m: r.append((m.group(1), 4 * len(m.group(3).split())))
    return r


def align_runs(L, head, foot, minrun=3, nopmin=6):
    ins = [i for i, l in enumerate(L) if l.startswith("    ") and not l.strip().startswith(";")]
    sz = _sizes(head + "\n".join(L) + foot)
    assert len(sz) == len(ins), (len(sz), len(ins))
    size = {i: s_[1] for i, s_ in zip(ins, sz)}
    mn = {i: s_[0] for i, s_ in zip(ins, sz)}
    out = list(L); extra = {}
    off = 0; k = 0
    while k < len(ins):
        i = ins[k]
        if size[i] == 8 and off % 8 == 4:
            run = 0
            while k + run < len(ins) and size[ins[k + run]] == 8: run += 1
            if run >= minrun:
                b = k - 1; done = False
                while b >= 0 and size[ins[b]] == 4:
                    j = ins[b]
                    if mn[j] == "s_nop" and int(out[j].split()[1]) >= 1:
                        out[j] = "    s_nop 0\n    s_nop %d" % (int(out[j].split()[1]) - 1)
                        size[j] = 8; off += 4; done = True
                        break
                    if mn[j].endswith("_e32") and not mn[j].startswith(("v_readfirstlane", "v_permlane")):
                        op = out[j].split()[0]
                        out[j] = out[j].replace(op, op.replace("_e32", "") + "_e64", 1)
                        size[j] = 8; off += 4; done = True
                        break
                    b -= 1
                if not done and run >= nopmin and k > 0 and not mn[ins[k - 1]].startswith(("s_branch", "s_endpgm")):
                    extra[i] = True; off += 4; done = True
                if not done and k > 0 and mn[ins[k - 1]].startswith(("s_branch", "s_endpgm")):
                    extra[ins[k - 1] + 1] = True; off += 4
            for q in range(run): off += 8
            k += run
            continue
        off += size[i]; k += 1
    res = []
    for i, l in enumerate(out):
        if i in extra: res.append("    s_nop 0")
        res.append(l)
    return res


def gen(**kw):
    o = dict(DEF); o.update(kw)
    MB3 = o.get("mb3", globals()["MB3"])
    if not o["g25"]: o.update(pt3=0, np25=1, ack25=1, np3=1, g2=0)
    L = []
    def A(s): L.append("    " + s)
    def LB(s): L.append(s + ":")
    def C(s): L.append("    ; " + s)
    nt = o["nt"]
    NSTAMP = 12
    role = ["U"]
    def stamp(i):
        if o.get("amp") == "%s%d" % (role[0], i): A("s_memrealtime s[88:89]" if not o.get("cyc") else "s_memtime s[88:89]")
        if o.get("ampg") == "%s%d" % (role[0], i): A("s_memrealtime s[86:87]")
        if o.get("amp0") == "%s%d" % (role[0], i): A("s_memrealtime s[86:87]" if not o.get("cyc") else "s_memtime s[86:87]")
        if o["stamps"] and (i in (0, 11) or o.get("sel") is None or ("%s%d" % (role[0], i)) in o["sel"].split(",")):
            A("s_memrealtime s[%d:%d]" % (64 + 2 * i, 65 + 2 * i))
    def mfma(d, a, b, c):
        A("v_mfma_f32_16x16x32_bf16 v[%d:%d], v[%d:%d], v[%d:%d], %s" % (d, d + 3, a, a + 3, b, b + 3, "0" if c is None else "v[%d:%d]" % (c, c + 3)))
    def mfma16(d, a, b, c):
        A("v_mfma_f32_16x16x16_bf16 v[%d:%d], v[%d:%d], v[%d:%d], %s" % (d, d + 3, a, a + 1, b, b + 1, "0" if c is None else "v[%d:%d]" % (c, c + 3)))
    def allred(v, tmp, op, which):
        A("v_mov_b32 %s, %s" % (tmp, v))
        A("s_nop 1")
        A("v_permlane%d_swap_b32 %s, %s" % (which, tmp, v))
        A("%s %s, %s, %s" % (op, v, v, tmp))
    sX, sK, sV, sWQ, sWO, sG, sU, sDN, sOUT, sWS = "s[4:5]", "s[6:7]", "s[8:9]", "s[10:11]", "s[12:13]", "s[16:17]", "s[18:19]", "s[20:21]", "s[22:23]", "s[26:27]"
    sW, sH, sJ, sTAG, sXCC, sCNT, sFAST = "s30", "s31", "s32", "s33", "s34", "s35", "s36"
    t0, t1, t2, t3 = "s37", "s38", "s39", "s40"
    def dump_stamps():
        if not o["stamps"]: return
        if role[0] == "U" and o.get("sel") is not None and "U" not in o["sel"]: return
        A("s_mov_b64 exec, 1")
        if o.get("endwait"): A("s_waitcnt vmcnt(0)")
        stamp(11)
        A("s_waitcnt lgkmcnt(0)")
        A("s_mul_i32 %s, s2, 5" % t0)
        A("s_add_u32 %s, %s, %s" % (t0, t0, sW))
        A("s_lshl_b32 %s, %s, 7" % (t0, t0))
        A("s_add_u32 %s, %s, 0x%x" % (t0, t0, STAMPS))
        A("v_mov_b32 v2, %s" % t0)
        for i in range(NSTAMP):
            A("v_mov_b32 v3, s%d" % (64 + 2 * i))
            A("global_store_dword v2, v3, %s offset:%d" % (sWS, 4 * i))
        A("v_mov_b32 v3, %s" % ("s63" if role[0] == "U" and o["vote"] else sCNT))
        A("global_store_dword v2, v3, %s offset:%d" % (sWS, 4 * NSTAMP))
        if o.get("dbgfail"):
            for q_, r_ in enumerate(("s84", "s62", "s63")):
                A("v_mov_b32 v3, %s" % r_)
                A("global_store_dword v2, v3, %s offset:%d" % (sWS, 4 * NSTAMP + 8 + 4 * q_))
        A("s_getreg_b32 %s, hwreg(HW_REG_HW_ID)" % t1)
        A("v_mov_b32 v3, %s" % t1)
        A("global_store_dword v2, v3, %s offset:%d" % (sWS, 4 * NSTAMP + 4))

    def amp_end(sfx):
        if o.get("ampg"):
            A("s_waitcnt vmcnt(0) lgkmcnt(0)")
            A("s_memrealtime s[88:89]")
            A("s_mov_b64 exec, -1")
            A("v_and_b32 v2, 7, v0")
            A("v_lshlrev_b32 v2, 2, v2")
            A("global_load_dword v3, v2, s[24:25] offset:128 sc1")
            A("s_waitcnt vmcnt(0) lgkmcnt(0)")
            for g_ in range(8): A("v_readlane_b32 s%d, v3, %d" % (64 + g_, g_))
            A("s_nop 3")
            if o["ampg"] != 1:
                for g_ in range(8): A("s_sub_u32 s%d, s86, s%d" % (64 + g_, 64 + g_))
                for g_ in range(1, 8): A("s_max_i32 s64, s64, s%d" % (64 + g_))
                A("s_sub_u32 s88, s86, s64")
                A("s_mul_i32 s64, s64, 10")
            else:
                for g_ in range(8): A("s_sub_u32 s%d, s88, s%d" % (64 + g_, 64 + g_))
                for g_ in range(1, 8): A("s_max_i32 s64, s64, s%d" % (64 + g_))
                A("s_mul_i32 s64, s64, 9")
            A("s_min_u32 s64, s64, 20000")
            A("s_add_u32 s64, s64, 1500")
            LB("L_ampgspin" + sfx)
            A("s_memrealtime s[92:93]")
            A("s_waitcnt lgkmcnt(0)")
            A("s_sub_u32 s92, s92, s88")
            A("s_cmp_lt_u32 s92, s64")
            A("s_cbranch_scc1 L_ampgspin" + sfx)
        if o.get("amp"):
            if o["amp"] == "end": A("s_memrealtime s[88:89]")
            A("s_waitcnt lgkmcnt(0)")
            A("s_sub_u32 s88, s88, %s" % ("s86" if o.get("amp0") else "s90"))
            A("s_mul_i32 s88, s88, %d" % o.get("ampk", 10))
            A("s_min_u32 s88, s88, 20000")
            A("s_add_u32 s88, s88, 1500")
            LB("L_ampspin" + sfx)
            A("s_memrealtime s[92:93]")
            A("s_waitcnt lgkmcnt(0)")
            A("s_sub_u32 s92, s92, s90")
            A("s_cmp_lt_u32 s92, s88")
            A("s_cbranch_scc1 L_ampspin" + sfx)
    nlv = [int(c) for c in str(o["nlv"])]
    assert len(nlv) == 8 and sum(nlv) == 28 and min(nlv) >= 0 and max(nlv) <= 4
    LUT_d = sum((4 - n) << (4 * i) for i, n in enumerate(nlv))
    LUT_D = sum((4 * i - sum(nlv[:i])) << (4 * i) for i in range(8))
    def ffn_share(l0, d):
        A("s_lshl_b32 %s, %s, 2" % (l0, sH))
        A("s_lshr_b32 %s, 0x%x, %s" % (d, LUT_D, l0))
        A("s_and_b32 %s, %s, 7" % (d, d))
        A("s_sub_u32 s3, %s, %s" % (l0, d))
        A("s_lshr_b32 %s, 0x%x, %s" % (d, LUT_d, l0))
        A("s_and_b32 %s, %s, 7" % (d, d))
    stamp(0)
    if o.get("pad") or o.get("bal") or o.get("amp") or o.get("ampg") or o.get("ampm") or o.get("ampf") or o.get("lateh") is not None: A("s_memrealtime s[90:91]")
    A("s_cmp_ge_u32 s2, 256")
    A("s_cbranch_scc1 L_end")
    A("s_load_dwordx16 s[4:19], s[0:1], 0")
    A("s_load_dwordx8 s[20:27], s[0:1], 64")
    A("v_lshrrev_b32 v1, 6, v0")
    A("v_and_b32 v0, 63, v0")
    A("v_readfirstlane_b32 %s, v1" % sW)
    A("s_and_b32 %s, s2, 7" % sH)
    A("s_lshr_b32 %s, s2, 3" % sJ)
    if o.get("bal") or o.get("lateh") is not None or o.get("ampg") or o.get("ampm"):
        A("s_or_b32 %s, %s, %s" % (t0, sJ, sW))
        A("s_cbranch_scc1 L_noflag")
        A("s_lshl_b32 %s, %s, 2" % (t0, sH))
        A("v_mov_b32 v108, %s" % t0)
        A("s_waitcnt lgkmcnt(0)")
        A("s_or_b32 %s, s90, 1" % t0)
        A("v_mov_b32 v109, %s" % t0)
        A("global_store_dword v108, v109, s[24:25] offset:%d sc1" % (128 if o.get("ampg") or o.get("ampm") else 0))
        LB("L_noflag")
    A("s_cmp_eq_u32 %s, 4" % sW)
    A("s_cbranch_scc0 %s" % ("L_race" if o["vote"] else "L_attn"))

    C("wave 4: layernorm, one [128 x 64] tile of wq and one of gate/up, exchange of q and of the FFN hidden values")
    A("s_setprio 3")
    if o["idearly"] == 1:
        A("v_mov_b32 v2, 0")
        A("v_and_b32 v3, 12, v0")
        A("ds_write_b32 v3, v2 offset:%d" % L_VOTE)
    if o["prefetch"]:
        A("s_getpc_b64 s[28:29]")
        LB("L_pc")
        A("v_lshlrev_b32 v2, 7, v0")
        A("v_min_u32 v2, L_end-L_pc-%d, v2" % o.get("pfo", 448))
        A("global_load_dword v127, v2, s[28:29] offset:%d" % o.get("pfo", 448))
        if o.get("pf2", o["stamps"] or o.get("ampg")):
            A("v_mov_b32 v2, L_end-L_pc")
            A("v_lshlrev_b32 v3, 7, v0")
            A("v_min_u32 v3, 1024, v3")
            A("v_sub_u32 v2, v2, v3")
            A("global_load_dword v126, v2, s[28:29]")
    sQK, sNOFF = "s50", "s51"
    A("v_lshlrev_b32 v3, 4, v0")
    A("v_lshrrev_b32 v6, 3, v0")
    A("v_and_b32 v5, 2, v6")
    A("v_and_b32 v7, 7, v0")
    A("v_xor_b32 v5, v5, v7")
    A("v_lshlrev_b32 v7, 4, v5")
    A("s_and_b32 %s, %s, 3" % (sQK, sJ))
    A("s_lshl_b32 %s, %s, 10" % (t0, sH))
    if o["lperm"]:
        A("s_andn2_b32 %s, %s, 3" % (t1, sJ))
        A("s_lshr_b32 %s, 0x%x, %s" % (t1, o["lperm"], t1))
        A("s_and_b32 s55, %s, 7" % t1)
    else:
        A("s_lshr_b32 s55, %s, 2" % sJ)
    A("s_lshl_b32 %s, s55, 7" % t1)
    A("s_lshl_b32 %s, %s, 20" % (t2, sQK))
    A("s_add_u32 %s, %s, %s" % (t0, t0, t1))
    A("s_add_u32 %s, %s, %s" % (t0, t0, t2))
    A("v_lshl_add_u32 v4, v6, 13, v7")
    A("v_add_u32 v4, %s, v4" % t0)
    A("v_xor_b32 v5, 64, v4")
    A("v_add_u32 v5, 0x10000, v5")
    A("s_mov_b32 m0, %d" % L_WQ)
    A("s_mov_b32 %s, 0x20000" % t1)
    if o.get("ucontig"):
        A("s_lshl_b32 %s, s2, 10" % t0)
        A("v_add_u32 v4, %s, v3" % t0)
        A("v_add_u32 v5, 0x40000, v4")
        A("s_mov_b32 %s, 0x80000" % t1)
    A("s_movk_i32 s41, 1024")
    A("s_waitcnt lgkmcnt(0)")
    if o["est"] & 1: A("s_load_dword s60, %s, %s" % (sWQ, t2))
    if o["est"] & 2:
        A("s_load_dword s61, %s, 0" % sG)
        A("s_load_dword s62, %s, 0" % sU)
    if o["est"] & 4: A("s_load_dword s63, %s, 0" % sX)
    if not o.get("xlate"): A("global_load_dwordx4 v[8:11], v3, %s" % sX)
    if not o.get("elate"): A("s_load_dword %s, %s, 0" % (sTAG, sWS))
    def dma_loop(name, base, step):
        A("s_mov_b32 %s, %d" % (t2, 16 // o["unr"]))
        LB(name)
        for i in range(o["unr"]):
            vv = ("v4", "v5")[i & 1]
            A("global_load_lds_dwordx4 %s, %s %s" % (vv, base, nt))
            A("s_add_u32 m0, m0, s41")
            A("v_add_u32 %s, %s, %s" % (vv, step, vv))
        A("s_sub_u32 %s, %s, 1" % (t2, t2))
        A("s_cmp_lg_u32 %s, 0" % t2)
        A("s_cbranch_scc1 %s" % name)
    dma_loop("L_wq_loop", sWQ, t1)
    if o.get("elate") == 1: A("s_load_dword %s, %s, 0" % (sTAG, sWS))
    if o["b0pos"] == 16: A("s_barrier")
    ffn_share(t0, t3)
    A("s_lshr_b32 %s, %s, 3" % (t1, sJ))
    A("s_add_u32 %s, s3, %s" % (t0, t1))
    A("s_add_u32 %s, %s, %s" % (sNOFF, t1, t3))
    A("s_mul_i32 %s, %s, 3584" % (t1, sQK))
    A("s_add_u32 %s, %s, %s" % (t0, t0, t1))
    A("s_lshl_b32 %s, %s, 7" % (t0, t0))
    A("v_mul_u32_u24 v4, 3584, v6")
    A("v_add3_u32 v4, v4, v7, %s" % t0)
    A("v_xor_b32 v5, 64, v4")
    A("v_add_u32 v5, %d, v5" % (8 * 3584))
    A("s_mov_b32 %s, %d" % (t1, 16 * 3584))
    if o.get("ucontig"):
        A("s_lshr_b32 %s, s2, 1" % t0)
        A("s_min_u32 %s, %s, 111" % (t0, t0))
        A("s_lshl_b32 %s, %s, 10" % (t0, t0))
        A("v_add_u32 v4, %s, v3" % t0)
        A("v_add_u32 v5, %d, v4" % (112 * 1024))
        A("s_mov_b32 %s, %d" % (t1, 224 * 1024))
    A("s_bitcmp0_b32 %s, %d" % (("s2", 0) if o.get("ucontig") else (sJ, 2)))
    A("s_cselect_b64 s[42:43], %s, %s" % (sG, sU))
    A("s_cmp_ge_u32 %s, 4" % sNOFF)
    A("s_cselect_b64 exec, 1, -1")
    dma_loop("L_ff_loop", "s[42:43]", t1)
    if o.get("elate") == 2: A("s_load_dword %s, %s, 0" % (sTAG, sWS))
    A("s_mov_b64 exec, -1")
    if o["vote"]:
        A("s_branch L_unit2")
        LB("L_race")
        if o["tw"]:
            A("s_bitcmp1_b32 %s, 1" % sW)
            A("s_cbranch_scc1 L_norace")
        C("which of the two copies of the last hand-off lives nearer to this die: race two cold scalar loads of this wave's own lines")
        A("s_lshl_b32 %s, s2, 2" % t0)
        A("s_add_u32 %s, %s, %s" % (t0, t0, sW))
        A("s_lshr_b32 %s, %s, 6" % (t1, t0))
        A("s_lshl_b32 %s, %s, 14" % (t1, t1))
        A("s_and_b32 %s, %s, 63" % (t0, t0))
        A("s_lshl_b32 %s, %s, 7" % (t0, t0))
        A("s_add_u32 %s, %s, %s" % (t0, t0, t1))
        if MB3 == 0x200000: A("s_bitset1_b32 %s, 21" % t0)
        else: A("s_or_b32 %s, %s, 0x%x" % (t0, t0, MB3))
        A("s_lshl_b32 %s, %s, 13" % (t1, sW))
        A("s_and_b32 %s, %s, 0x2000" % (t1, t1))
        A("s_or_b32 s46, %s, %s" % (t0, t1))
        A("s_xor_b32 s47, s46, 0x2000")
        A("s_movk_i32 s28, 0x5bd1")
        A("s_movk_i32 s29, 0x5bd1")
        A("s_waitcnt lgkmcnt(0)")
        if o.get("dlyr"):
            A("s_mov_b32 s60, %d" % o["dlyr"])
            LB("L_dlyr")
            A("s_nop 15")
            A("s_sub_u32 s60, s60, 1")
            A("s_cbranch_scc0 L_dlyr")
        A("s_load_dword s28, %s, s46" % sWS)
        A("s_load_dword s29, %s, s47" % sWS)
        A("s_waitcnt lgkmcnt(1)")
        A("s_mov_b64 s[48:49], s[28:29]")
        LB("L_race_done")
        A("s_cmpk_lg_i32 s48, 0x5bd1")
        A("s_cselect_b32 %s, 1, 0" % t0)
        A("s_cmpk_lg_i32 s49, 0x5bd1")
        A("s_cselect_b32 %s, 1, 0" % t2)
        A("s_sub_i32 %s, %s, %s" % (t0, t0, t2))
        A("s_sub_i32 %s, 0, %s" % (t2, t0))
        A("s_cmp_eq_u32 %s, 0" % t1)
        A("s_cselect_b32 %s, %s, %s" % (t0, t0, t2))
        A("s_lshl_b32 %s, %s, 2" % (t2, sW))
        A("v_mov_b32 v158, %s" % t2)
        A("v_mov_b32 v159, %s" % t0)
        A("ds_write_b32 v158, v159 offset:%d" % L_VOTE)
        if o["tw"]: A("s_waitcnt lgkmcnt(1)")
        A("s_branch L_attn")
        LB("L_unit2")
    if o["pt1"]:
        C("pull this workgroup's own hand-off lines into L2 before anyone polls them")
        A("s_lshl_b32 %s, %s, 15" % (t0, sH))
        A("s_lshl_b32 %s, %s, 8" % (t1, sJ))
        A("s_add_u32 %s, %s, %s" % (t0, t0, t1))
        A("s_add_u32 %s, %s, 0x%x" % (t0, t0, MB1A))
        A("v_and_b32 v33, 1, v0")
        A("v_bfe_u32 v32, v0, 1, 1")
        A("v_lshlrev_b32 v33, 7, v33")
        A("v_lshl_add_u32 v33, v32, 13, v33")
        A("s_mul_i32 %s, %s, 240" % (t1, sJ))
        A("s_sub_u32 %s, 0x4000, %s" % (t1, t1))
        A("v_cmp_lt_u32 vcc, 3, v0")
        A("v_mov_b32 v32, %s" % t1)
        A("s_nop 0")
        A("v_cndmask_b32 v33, v33, v32, vcc")
        A("v_add_u32 v33, %s, v33" % t0)
        A("global_load_dword v119, v33, %s sc1" % sWS)
    def tlbwarm():
        C("first touch of the pages the later loads use (address translation early, off their queue)")
        A("s_lshl_b32 %s, %s, 24" % (t0, sH))
        A("s_add_u32 %s, %s, 0xF00000" % (t0, t0))
        A("v_mov_b32 v112, %s" % t0)
        A("s_lshl_b32 %s, %s, 19" % (t0, sH))
        A("v_mov_b32 v113, %s" % t0)
        A("s_mul_i32 %s, %s, 0x38000" % (t0, sH))
        A("v_mov_b32 v114, %s" % t0)
        A("v_mov_b32 v115, 0x%x" % MB3)
        A("s_mov_b64 exec, 1")
        A("global_load_dword v116, v112, %s" % sK)
        A("global_load_dword v117, v112, %s" % sV)
        A("global_load_dword v118, v113, %s" % sWO)
        A("global_load_dword v111, v114, %s" % sDN)
        A("global_load_dword v110, v115, %s" % sWS)
        A("s_mov_b64 exec, -1")
    NW = 1 if o["pt1"] else 0
    if o.get("tlbw") == 2:
        tlbwarm(); NW += 5
    if o["b0pos"] == 32:
        if o.get("b0wait") is not None: A("s_waitcnt vmcnt(%d)" % o["b0wait"])
        A("s_barrier")
    stamp(1)
    XF = 12
    A("s_mov_b32 %s, 0xffff0000" % t1)
    A("s_waitcnt vmcnt(%d)" % (32 + NW))
    stamp(2)
    C("layernorm with the reference's bf16 roundings")
    for i in range(4):
        A("v_lshlrev_b32 v%d, 16, v%d" % (XF + 2 * i, 8 + i))
        A("v_and_b32 v%d, %s, v%d" % (XF + 2 * i + 1, t1, 8 + i))
    fill = []
    def F(s): fill.append(s)
    def nop2():
        n = 0
        while fill and n < 2:
            A(fill.pop(0)); n += 1
        if n < 2: A("s_nop %d" % (1 - n))
    TRB = 120
    vAX, vS1, vL1, vL1x, vL1a, vF, vTN, vTB = "v34", "v35", "v36", "v37", "v38", "v39", "v124", "v125"
    sRP, sB1 = "s52", "s53"
    F("v_lshrrev_b32 v126, 4, v0")
    F("v_bfe_u32 v4, v0, 2, 2")
    F("v_lshl_add_u32 v5, v126, 3, v4")
    F("v_and_b32 v6, 3, v0")
    F("v_lshlrev_b32 v7, 3, v6")
    F("v_lshl_add_u32 v5, v5, 7, v7")
    F("v_bfe_u32 v4, v0, 3, 2")
    for ct in range(4):
        F("v_xor_b32 v7, %d, v4" % ct)
        F("v_lshl_add_u32 v%d, v7, 5, v5" % (TRB + ct))
    F("s_lshl_b32 %s, %s, 8" % (t0, sQK))
    F("v_lshl_add_u32 %s, v126, 4, %s" % (vAX, t0))
    F("s_lshl_b32 %s, %s, 15" % (sB1, sH))
    F("s_add_u32 %s, %s, 0x%x" % (sB1, sB1, MB1A))
    def wavesum(v, tmp):
        for rot in (1, 2, 4, 8):
            nop2()
            A("v_add_f32_dpp %s, %s, %s row_ror:%d %s" % (v, v, v, rot, DPP))
        for which in (16, 32):
            A("v_mov_b32 %s, %s" % (tmp, v))
            nop2()
            A("v_permlane%d_swap_b32 %s, %s" % (which, tmp, v))
            A("v_add_f32 %s, %s, %s" % (v, v, tmp))
    def P2(r): return "v[%d:%d]" % (r, r + 1)
    A("v_pk_add_f32 v[22:23], %s, %s" % (P2(XF), P2(XF + 2)))
    A("v_pk_add_f32 v[24:25], %s, %s" % (P2(XF + 4), P2(XF + 6)))
    A("v_pk_add_f32 v[22:23], v[22:23], v[24:25]")
    A("v_add_f32 v22, v22, v23")
    wavesum("v22", "v23")
    A("v_mul_f32 v22, 0x3b000000, v22")
    DV = 24
    for i in range(4):
        A("v_pk_add_f32 %s, %s, v[22:23] op_sel_hi:[1,0] neg_lo:[0,1] neg_hi:[0,1]" % (P2(DV + 2 * i), P2(XF + 2 * i)))
    A("v_cvt_pk_bf16_f32 v22, 0, v22")
    A("v_pk_mul_f32 v[32:33], %s, %s" % (P2(DV), P2(DV)))
    for i in range(1, 4):
        A("v_pk_fma_f32 v[32:33], %s, %s, v[32:33]" % (P2(DV + 2 * i), P2(DV + 2 * i)))
    A("v_add_f32 v32, v32, v33")
    pre = ["v_pk_add_f32 %s, %s, v[22:23] op_sel_hi:[1,0] neg_lo:[0,1] neg_hi:[0,1]" % (P2(XF + 2 * i), P2(XF + 2 * i)) for i in range(4)]
    pre += ["v_cvt_pk_bf16_f32 v%d, 0, v%d" % (XF + i, XF + i) for i in range(8)]
    rest = fill[:]; fill[:] = pre
    wavesum("v32", "v33")
    fill[:] = fill + rest
    A("v_mul_f32 v32, 0x3b000000, v32")
    A("v_cvt_pk_bf16_f32 v32, 0, v32")
    A("v_add_f32 v32, 0x%x, v32" % EPS)
    A("v_cvt_pk_bf16_f32 v32, 0, v32")
    A("v_sqrt_f32 v32, v32")
    A(fill.pop(0))
    A("v_cvt_pk_bf16_f32 v32, 0, v32")
    A("v_rcp_f32 v32, v32")
    A(fill.pop(0))
    for i in range(4):
        A("v_pk_mul_f32 %s, %s, v[32:33] op_sel_hi:[1,0]" % (P2(XF + 2 * i), P2(XF + 2 * i)))
    for i in range(4):
        A("v_cvt_pk_bf16_f32 v%d, v%d, v%d" % (8 + i, XF + 2 * i, XF + 2 * i + 1))
    A("ds_write_b128 v3, v[8:11] offset:%d" % L_XN)
    while fill: A(fill.pop(0))
    A("s_lshl_b32 %s, s55, 2" % t2)
    A("s_add_u32 s55, %s, %s" % (t2, sQK))
    A("s_lshl_b32 %s, s55, 8" % t2)
    A("s_add_u32 %s, %s, %s" % (t2, t2, sB1))
    A("v_lshrrev_b32 v4, 2, v0")
    A("v_lshl_add_u32 %s, v4, 4, %s" % (vS1, t2))
    A("s_waitcnt lgkmcnt(0)")
    AF = 40
    for m in range(4):
        A("ds_read_b128 v[%d:%d], %s offset:%d" % (AF + 4 * m, AF + 4 * m + 3, vAX, L_XN + m * 64))
    A("s_add_u32 %s, %s, 0x%x" % (sTAG, sTAG, TAGC))
    A("v_lshlrev_b32 v4, 2, v6")
    A("v_lshrrev_b32 %s, v4, %s" % (vTN, sTAG))
    A("v_and_b32 %s, 15, %s" % (vTN, vTN))
    A("v_lshlrev_b32 v4, 3, v6")
    A("v_lshrrev_b32 %s, v4, %s" % (vTB, sTAG))
    A("v_and_b32 %s, 0xff, %s" % (vTB, vTB))
    A("s_mov_b32 s44, 0")
    A("s_mov_b32 s45, -1")
    XG = 28
    def die_id():
        if o["vote"]:
            assert o["b0pos"] <= 47 and not o["hlate"]
            A("v_mov_b32 v4, 0")
            A("ds_read_b128 v[112:115], v4 offset:%d" % L_VOTE)
        if o["lastfin"]:
            assert o["vote"]
            A("ds_read_b32 v116, v4 offset:%d" % L_TKT)
        A("s_getreg_b32 %s, hwreg(HW_REG_XCC_ID, 0, 4)" % sXCC)
        A("s_and_b32 %s, %s, 0xff" % (t0, sTAG))
        A("s_lshl_b32 %s, %s, 8" % (t2, sXCC))
        A("s_or_b32 s54, %s, %s" % (t0, t2))
        A("v_mov_b32 v%d, s54" % XG)
        for k in range(1, 4):
            A("s_bfe_u32 %s, %s, 0x%x" % (t0, sTAG, 0x80000 | (8 * k)))
            A("v_mov_b32 v%d, %s" % (XG + k, t0))
        if o["vote"]:
            A("s_waitcnt lgkmcnt(0)")
            A("v_add3_u32 v112, v112, v113, v114")
            A("v_add_u32 v112, v112, v115")
            A("v_lshl_add_u32 v%d, v112, 8, v%d" % (XG + 1, XG + 1))
        if o["lastfin"]:
            A("v_lshl_add_u32 v%d, v116, 8, v%d" % (XG + 2, XG + 2))
        A("s_lshl_b32 %s, %s, 4" % (t2, sJ))
        A("s_add_u32 %s, %s, %s" % (t2, t2, sB1))
        A("s_add_u32 %s, %s, 0x4000" % (t2, t2))
        A("v_mov_b32 v22, %s" % t2)
        A("v_add_u32 v109, 0x%x, v22" % (MB1B - MB1A))
        A("s_mov_b64 exec, 1")
        if o["bonly"]:
            A("global_store_dwordx4 v22, v[%d:%d], %s sc1" % (XG, XG + 3, sWS))
        else:
            A("global_store_dwordx4 v22, v[%d:%d], %s" % (XG, XG + 3, sWS))
            if not o["bdefer"]: A("global_store_dwordx4 v109, v[%d:%d], %s sc1" % (XG, XG + 3, sWS))
        A("s_mov_b64 exec, -1")
    if o["idearly"]: die_id()
    if o["b0pos"] == 40: A("s_barrier")
    stamp(3)
    BF = 56
    D0 = 88
    GR = 24
    def gemv(lbase, vm0):
        def rd(m, ct):
            b = BF + 16 * (m & 1)
            for hh in range(2):
                A("ds_read_b64_tr_b16 v[%d:%d], v%d offset:%d" % (b + 4 * ct + 2 * hh, b + 4 * ct + 2 * hh + 1, TRB + ct, lbase + m * 4096 + hh * 512))
        A("s_waitcnt vmcnt(%d)" % (vm0 + 12))
        for ct in range(4): rd(0, ct)
        for m in range(4):
            b = BF + 16 * (m & 1)
            if m < 3: A("s_waitcnt vmcnt(%d)" % (vm0 + 8 - 4 * m))
            if lbase == L_WQ and o["b0pos"] == 41 + m: A("s_barrier")
            for ct in range(4):
                A("s_waitcnt lgkmcnt(%d)" % (6 if m < 3 else 6 - 2 * ct))
                mfma(D0 + 4 * ct, AF + 4 * m, b + 4 * ct, None if m == 0 else D0 + 4 * ct)
                if m < 3: rd(m + 1, ct)
    def pack(maskc, vt, GR, vS1):
        A("s_mov_b32 vcc_lo, 0xffff0000")
        A("s_mov_b32 vcc_hi, 0xffff0000")
        A("s_movk_i32 %s, 0x%x" % (t0, maskc))
        A("s_nop 2")
        A("v_cndmask_b32 v%d, v%d, v%d, vcc" % (GR, D0, D0 + 4))
        A("s_nop 0")
        A("v_cndmask_b32 v%d, v%d, v%d, vcc" % (GR + 1, D0 + 8, D0 + 12))
        A("v_cndmask_b32 v%d, v%d, v%d, s[44:45]" % (GR, GR, GR + 1))
        A("v_and_or_b32 v%d, v%d, %s, %s" % (GR, GR, t0, vt))
        if o["bdefer"]:
            A("s_nop 1")
        else:
            A("v_add_u32 v22, 0x%x, %s" % (MB1B - MB1A, vS1))
            A("s_nop 0")
        for k in range(1, 4):
            A("v_mov_b32_dpp v%d, v%d quad_perm:[%d,%d,%d,%d] %s" % (GR + k, GR, k, k, k, k, DPP))
        A("s_mov_b32 exec_lo, 0x11111111")
        A("s_mov_b32 exec_hi, 0x11111111")
        if o["bonly"]:
            A("global_store_dwordx4 %s, v[%d:%d], %s sc1" % (vS1, GR, GR + 3, sWS))
        else:
            A("global_store_dwordx4 %s, v[%d:%d], %s" % (vS1, GR, GR + 3, sWS))
            if not o["bdefer"]: A("global_store_dwordx4 v22, v[%d:%d], %s sc1" % (GR, GR + 3, sWS))
        A("s_mov_b64 exec, -1")
    gemv(L_WQ, 16 + NW + (1 if o["idearly"] else 0))
    if o["b0pos"] == 45: A("s_barrier")
    pack(0xfff0, vTN, GR, vS1)
    if o["b0pos"] == 47: A("s_barrier")
    stamp(4)
    if not o["idearly"]: die_id()
    if o["b0pos"] == 50: A("s_barrier")
    A("s_sub_i32 %s, %s, s55" % (t2, sJ))
    A("s_lshl_b32 %s, %s, 8" % (t2, t2))
    A("s_add_u32 %s, %s, 0x2000" % (t2, t2))
    A("v_add_u32 v108, %s, %s" % (t2, vS1))
    A("s_cmp_ge_u32 %s, 4" % sNOFF)
    A("s_cbranch_scc1 L_noff2")
    gemv(L_FF, (2 if o['bonly'] or o['bdefer'] else 4) + NW)
    pack(0xff00, vTB, 104, "v108")
    LB("L_noff2")
    stamp(7)
    if o.get("nosync"):
        A("s_barrier")
        A("s_mov_b32 %s, 0" % sCNT)
        dump_stamps()
        A("s_endpgm")
    A("v_and_b32 v4, 15, v0")
    A("v_lshlrev_b32 v4, 4, v4")
    A("v_lshl_add_u32 v4, v126, 10, v4")
    A("s_add_u32 %s, %s, 2432" % (t0, sB1))
    A("v_add_u32 %s, %s, v4" % (vL1, t0))
    A("v_and_b32 v4, 31, v0")
    A("s_add_u32 %s, %s, 0x4000" % (t0, sB1))
    A("v_lshl_add_u32 %s, v4, 4, %s" % (vL1x, t0))
    A("s_lshl_b32 %s, %s, 1" % (t2, t3))
    A("s_sub_u32 %s, 8, %s" % (sRP, t2))
    A("s_mul_i32 %s, %s, %s" % (t2, sRP, sJ))
    A("s_sub_u32 %s, %s, 1" % (t0, sRP))
    A("v_and_b32 v4, 7, v0")
    A("v_min_u32 v4, %s, v4" % t0)
    A("v_add_u32 %s, %s, v4" % (vF, t2))
    A("v_lshrrev_b32 v4, 6, %s" % vF)
    A("v_bfe_u32 v5, v0, 3, 1")
    A("v_lshl_add_u32 v4, v4, 1, v5")
    A("v_lshl_add_u32 v4, v4, 2, v126")
    A("v_bfe_u32 v5, %s, 2, 4" % vF)
    A("v_lshlrev_b32 v5, 4, v5")
    A("v_lshl_add_u32 v4, v4, 8, v5")
    A("s_add_u32 %s, %s, 0x2000" % (t0, sB1))
    A("v_add_u32 %s, %s, v4" % (vL1a, t0))
    if min(nlv) == 0:
        A("s_cmp_lg_u32 %s, 0" % sRP)
        A("s_cbranch_scc1 L_has_ffn")
        A("v_mov_b32 %s, %s" % (vL1a, vL1x))
        LB("L_has_ffn")
    for k in range(4):
        A("s_bfe_u32 s%d, %s, 0x%x" % (56 + k, sTAG, 0x40000 | (4 * k)))
    A("s_movk_i32 s62, 255")
    A("s_mov_b32 s60, 0x0c0c0400")
    A("s_mov_b32 s61, 0x04000c0c")
    P = 40
    PX, PA_ = 72, 76
    A("s_mov_b32 %s, 0" % sCNT)
    def switch_copy(regs):
        A("s_add_u32 %s, %s, 1" % (sCNT, sCNT))
        if not o["bonly"]:
            if o.get("bskip"):
                A("s_cmp_ge_u32 %s, %d" % (sCNT, o["atries"]))
                A("s_cselect_b32 %s, 0x%x, 0" % (t0, MB1B ^ MB1A))
                for r in regs: A("v_xor_b32 %s, %s, %s" % (r, t0, r))
            else:
                A("s_cmp_eq_u32 %s, %d" % (sCNT, o["atries"]))
                A("s_cselect_b32 %s, 0x%x, 0" % (t0, MB1B - MB1A))
                for r in regs: A("v_add_u32 %s, %s, %s" % (r, t0, r))
        A("s_cmp_gt_u32 %s, %d" % (sCNT, o["spinmax"]))
        A("s_cbranch_scc1 L_end")
    def bytecheck(p, dst):
        A("v_perm_b32 v22, v%d, v%d, s60" % (p + 1, p))
        A("v_perm_b32 v23, v%d, v%d, s61" % (p + 3, p + 2))
        A("v_or_b32 v22, v22, v23")
        A("v_cmp_ne_u32 %s, %s, v22" % (dst, sTAG))
    for _ in range(o.get("dly1", 0)): A("s_nop 15")
    stamp(9)
    if o.get("freeq"): A("s_branch L_got1")
    LB("L_poll1")
    stamp(8)
    for i in range(2):
        for q in range(4):
            r = P + 16 * i + 4 * q
            A("global_load_dwordx4 v[%d:%d], %s, %s offset:%d sc1" % (r, r + 3, vL1, sWS, i * 4096 + q * 256 - 2432))
    A("global_load_dwordx4 v[%d:%d], %s, %s sc1" % (PX, PX + 3, vL1x, sWS))
    A("global_load_dwordx4 v[%d:%d], %s, %s sc1" % (PA_, PA_ + 3, vL1a, sWS))
    switch_copy([vL1, vL1x, vL1a])
    for g_ in range(8):
        A("s_waitcnt vmcnt(%d)" % (9 - g_))
        for k in range(4):
            A("v_xor_b32 v%d, s%d, v%d" % (P + 4 * g_ + k, 56 + k, P + 4 * g_ + k))
        if g_ == 0:
            A("v_or3_b32 v21, v%d, v%d, v%d" % (P, P + 1, P + 2))
            A("v_or_b32 v21, v21, v%d" % (P + 3))
        else:
            A("v_or3_b32 v21, v21, v%d, v%d" % (P + 4 * g_, P + 4 * g_ + 1))
            A("v_or3_b32 v21, v21, v%d, v%d" % (P + 4 * g_ + 2, P + 4 * g_ + 3))
    A("v_and_b32 v21, 15, v21")
    A("s_waitcnt vmcnt(1)")
    bytecheck(PX, "vcc")
    A("v_cmp_ne_u32 s[46:47], 0, v21")
    if o.get("dbgfail"):
        A("s_cmp_eq_u32 %s, 1" % sCNT)
        A("s_cselect_b32 s84, vcc_lo, s84")
        A("s_cselect_b32 s62, s46, s62")
        A("s_cselect_b32 s63, s47, s63")
    A("s_or_b64 vcc, vcc, s[46:47]")
    def majority():
        A("v_cmp_gt_i32 vcc, 0, v%d" % (PX + 1))
        A("v_cmp_lt_i32 s[46:47], %s, v%d" % ("s62", PX + 1))
        A("s_bcnt1_i32_b32 %s, vcc_lo" % t0)
        A("s_bcnt1_i32_b32 %s, s46" % t2)
        A("s_cmp_gt_u32 %s, %s" % (t0, t2))
        A("s_cselect_b32 s55, 0x2000, 0")
        if o.get("voteinv"): A("s_xor_b32 s55, s55, 0x2000")
        if o["stamps"]:
            A("s_bcnt1_i32_b32 s63, vcc_lo")
            A("s_lshl_b32 %s, %s, 8" % (t2, t2))
            A("s_or_b32 s63, s63, %s" % t2)
    def publish_b(tag):
        C("write-through copies for peers that sit on another die")
        A("v_add_u32 v22, 0x%x, %s" % (MB1B - MB1A, vS1))
        A("v_add_u32 v23, 0x%x, v108" % (MB1B - MB1A))
        A("s_mov_b64 exec, 1")
        A("global_store_dwordx4 v109, v[%d:%d], %s sc1" % (XG, XG + 3, sWS))
        A("s_mov_b32 exec_lo, 0x11111111")
        A("s_mov_b32 exec_hi, 0x11111111")
        A("global_store_dwordx4 v22, v[%d:%d], %s sc1" % (GR, GR + 3, sWS))
        A("s_cmp_ge_u32 %s, 4" % sNOFF)
        A("s_cbranch_scc1 L_pb_%s" % tag)
        A("global_store_dwordx4 v23, v[104:107], %s sc1" % sWS)
        LB("L_pb_%s" % tag)
        A("s_mov_b64 exec, -1")
    if o["bdefer"]:
        A("s_cbranch_vccz L_got1")
        A("s_cmp_lg_u32 %s, %d" % (sCNT, o["bdefer"]))
        A("s_cbranch_scc1 L_poll1")
        publish_b("a")
        A("s_branch L_poll1")
        LB("L_got1")
    else:
        A("s_cbranch_vccnz L_poll1")
    stamp(5)
    for i in range(2):
        b = P + 16 * i
        for k in range(4):
            A("v_add_f32 v%d, v%d, v%d" % (b + k, b + k, b + 4 + k))
            A("v_add_f32 v%d, v%d, v%d" % (b + 8 + k, b + 8 + k, b + 12 + k))
        for k in range(4):
            A("v_add_f32 v%d, v%d, v%d" % (b + k, b + k, b + 8 + k))
        A("v_cvt_pk_bf16_f32 v%d, v%d, v%d" % (b, b, b + 1))
        A("v_cvt_pk_bf16_f32 v%d, v%d, v%d" % (b + 1, b + 2, b + 3))
    A("v_lshlrev_b32 v22, 3, v0")
    A("ds_write_b64 v22, v[%d:%d] offset:%d" % (P, P + 1, L_Q))
    A("ds_write_b64 v22, v[%d:%d] offset:%d" % (P + 16, P + 17, L_Q + 512))
    A("v_cmp_ne_u32 vcc, s54, v%d" % PX)
    A("s_cmp_eq_u64 vcc, 0")
    A("s_cselect_b32 %s, 1, 0" % sFAST)
    if o.get("forceslow"): A("s_mov_b32 %s, 0" % sFAST)
    if o.get("freeq"): A("s_mov_b32 %s, 1" % sFAST)
    if o["lastfin"]:
        A("v_readfirstlane_b32 %s, v%d" % (t0, PX + 2))
        if o["lastfin"] == 1:
            A("s_not_b32 %s, %s" % (t2, sTAG))
            A("v_mov_b32 v23, %s" % t2)
            A("v_lshlrev_b32 v22, 2, v0")
        A("s_lshr_b32 %s, %s, 8" % (t0, t0))
        A("s_cmp_eq_u32 %s, 7" % t0)
        A("s_cselect_b32 %s, 2, 0" % t0)
        if o.get("fixfin") is not None:
            A("s_cmp_eq_u32 %s, %d" % (sH, o["fixfin"]))
            A("s_cselect_b32 %s, 2, 0" % t0)
        A("s_or_b32 %s, %s, %s" % (sFAST, sFAST, t0))
        if o["lastfin"] == 1: A("ds_write_b32 v22, v23 offset:%d" % L_FIN)
        else:
            majority()
            A("s_or_b32 %s, %s, s55" % (sFAST, sFAST))
    A("v_mov_b32 v26, %s" % sFAST)
    A("v_mov_b32 v27, %s" % sTAG)
    A("v_mov_b32 v22, %d" % L_FLAG)
    A("ds_write_b64 v22, v[26:27]")
    if o["auxearly"] and not o.get("freeq"):
        A("s_waitcnt vmcnt(0)")
        bytecheck(PA_, "vcc")
        A("s_cbranch_vccz L_aux_b1")
        A("global_load_dwordx4 v[%d:%d], %s, %s sc1" % (PA_, PA_ + 3, vL1a, sWS))
        LB("L_aux_b1")
    A("s_waitcnt lgkmcnt(0)")
    A("s_barrier")
    if o["bdefer"]:
        A("s_cmp_gt_u32 %s, %d" % (sCNT, o["bdefer"]))
        A("s_cbranch_scc1 L_b_done")
        A("s_bitcmp1_b32 %s, 0" % sFAST if o.get("bskip") else "s_nop 0")
        if o.get("bskip"): A("s_cbranch_scc1 L_b_done")
        publish_b("b")
        LB("L_b_done")
    if o["vote"] and o["lastfin"] < 2: majority()
    if o["hlate"]:
        A("s_setprio %d" % o.get("hprio", 0))
        A("s_barrier")
        A("s_barrier")
    A("s_branch %s" % ("L_chk_aux" if not o.get("freeq") else "L_poll_aux" if o["freeq"] == 2 else "L_auxdone"))
    LB("L_poll_aux")
    A("global_load_dwordx4 v[%d:%d], %s, %s sc1" % (PA_, PA_ + 3, vL1a, sWS))
    switch_copy([vL1a])
    LB("L_chk_aux")
    A("s_waitcnt vmcnt(0)")
    bytecheck(PA_, "vcc")
    A("s_cbranch_vccnz L_poll_aux")
    if o.get("freeq"): LB("L_auxdone")
    A("s_movk_i32 %s, 0xff00" % t0)
    A("v_and_b32 v23, 1, %s" % vF)
    A("v_cmp_eq_u32 vcc, 0, v23")
    A("v_and_b32 v23, 2, %s" % vF)
    A("v_cmp_eq_u32 s[46:47], 0, v23")
    A("v_cndmask_b32 v24, v%d, v%d, vcc" % (PA_ + 1, PA_))
    A("v_cndmask_b32 v25, v%d, v%d, vcc" % (PA_ + 3, PA_ + 2))
    A("v_cndmask_b32 v24, v25, v24, s[46:47]")
    A("v_and_b32 v24, %s, v24" % t0)
    allred("v24", "v23", "v_add_f32", 16)
    allred("v24", "v23", "v_add_f32", 32)
    A("v_cvt_pk_bf16_f32 v24, v24, v24")
    A("v_and_b32 v24, %s, v24" % t1)
    A("v_mul_f32 v25, 0x%x, v24" % (LOG2E | 0x80000000))
    A("v_exp_f32 v25, v25")
    A("v_mov_b32_dpp v26, v24 row_ror:8 %s" % DPP)
    A("v_add_f32 v25, 1.0, v25")
    A("v_rcp_f32 v25, v25")
    A("v_cmp_le_u32 vcc, %s, v0" % sRP)
    A("v_mul_f32 v25, v24, v25")
    A("v_cvt_pk_bf16_f32 v25, v25, v25")
    A("v_and_b32 v25, %s, v25" % t1)
    A("v_mul_f32 v25, v25, v26")
    A("v_cvt_pk_bf16_f32 v25, v25, v25")
    A("v_cndmask_b32 v25, v25, 0, vcc")
    A("v_lshlrev_b32 v22, 2, v0")
    if o["vote"] and not o["lastfin"]:
        A("v_mov_b32 v26, s55")
        A("v_mov_b32 v27, 0")
        A("ds_write_b32 v27, v26 offset:%d" % (L_FLAG + 8))
    A("s_mov_b64 exec, 0xff")
    A("ds_write_b32 v22, v25 offset:%d" % L_H)
    A("s_waitcnt lgkmcnt(0)")
    stamp(6)
    if o["lastfin"] == 1:
        A("s_bitcmp1_b32 %s, 1" % sFAST)
        A("s_cbranch_scc1 L_ufin")
    if not o.get("nodumpU"): dump_stamps()
    A("s_endpgm")
    def unit_final():
        LB("L_ufin")
        C("last group: lane = (wave l>>4, pair (l>>3)&1, group l&7) gathers the eight groups' sums of this workgroup's 16 columns")
        A("s_mov_b64 exec, -1")
        A("s_setprio %d" % o.get("uprio", 0))
        vA3, vLF, vXO, vXV = "v4", "v5", "v6", "v7"
        FP, FS = 8, 40
        A("v_lshrrev_b32 %s, 3, v0" % vLF)
        A("s_lshl_b32 %s, %s, 5" % (t0, sJ))
        A("v_lshl_add_u32 %s, %s, 2, %s" % (vXO, vLF, t0))
        A("global_load_dword %s, %s, %s" % (vXV, vXO, sX))
        A("v_lshlrev_b32 %s, 4, %s" % (vLF, vLF))
        A("s_lshr_b32 %s, %s, 1" % (t0, sJ))
        A("s_lshl_b32 %s, %s, 14" % (t0, t0))
        A("s_and_b32 %s, %s, 1" % (t2, sJ))
        A("s_lshl_b32 %s, %s, 12" % (t2, t2))
        A("s_add_u32 %s, %s, %s" % (t0, t0, t2))
        A("s_add_u32 %s, %s, s55" % (t0, t0))
        A("s_add_u32 %s, %s, 0x%x" % (t0, t0, MB3))
        A("v_and_b32 v22, 7, v0")
        A("v_lshl_add_u32 %s, v22, 9, %s" % (vA3, t0))
        A("v_lshlrev_b32 v22, 7, v126")
        A("v_and_b32 v23, 16, %s" % vLF)
        A("v_add3_u32 %s, %s, v22, v23" % (vA3, vA3))
        A("s_lshl_b32 s44, 0x01010101, %s" % sH)
        A("s_mov_b32 s45, s44")
        A("s_not_b64 s[46:47], s[44:45]")
        A("s_mov_b32 %s, %d" % (sCNT, o["spinmax"]))
        A("s_barrier")
        A("s_barrier")
        A("s_waitcnt vmcnt(0)")
        A("v_lshlrev_b32 v22, 16, %s" % vXV)
        A("v_and_b32 v23, %s, %s" % (t1, vXV))
        def spf():
            C("pull the other groups' lines into this die's L2 over the scalar path (the vector path returns in order and is busy with the group's own hand-off)")
            for k in range(1, 8):
                for w_ in range(4):
                    A("s_load_dword s%d, %s, s%d offset:%d glc" % (6 + (4 * k + w_) % 16, sWS, 48 + k, 128 * w_))
        if o.get("spf"):
            for k in range(1, 8):
                A("s_xor_b32 s%d, %s, %d" % (48 + k, sH, k))
                A("s_lshl_b32 s%d, s%d, 9" % (48 + k, 48 + k))
                A("s_add_u32 s%d, s%d, %s" % (48 + k, 48 + k, t0))
        if o.get("spf", 0) & 2: spf()
        if o["reuse"]: A("s_barrier")
        if o.get("spf", 0) & 1: spf()
        NP = o["npu"]
        def own_read():
            A("s_mov_b64 exec, s[44:45]")
            A("ds_read_b128 v[%d:%d], %s offset:%d" % (FP, FP + 3, vLF, L_FIN))
        if o.get("uwait"):
            A("s_mov_b64 exec, s[44:45]")
            LB("L_uw")
            A("ds_read_b128 v[%d:%d], %s offset:%d" % (FP, FP + 3, vLF, L_FIN))
            A("s_sub_u32 %s, %s, 1" % (sCNT, sCNT))
            A("s_cbranch_scc1 L_end")
            A("s_waitcnt lgkmcnt(0)")
            A("v_cmp_ne_u32 vcc, %s, v%d" % (sTAG, FP + 3))
            if o["uwait"] == 1:
                A("s_cbranch_vccnz L_uw")
            else:
                A("s_cmp_eq_u64 vcc, s[44:45]")
                A("s_cbranch_scc1 L_uw")
        for k in range(NP):
            if k:
                for _ in range(o["stag"]):
                    own_read(); A("s_waitcnt lgkmcnt(0)")
            A("s_mov_b64 exec, s[46:47]")
            A("global_load_dwordx4 v[%d:%d], %s, %s sc1" % (FS + 4 * k, FS + 4 * k + 3, vA3, sWS))
        LB("L_upoll")
        for k in range(NP):
            own_read()
            A("s_mov_b64 exec, s[46:47]")
            A("s_waitcnt vmcnt(%d) lgkmcnt(0)" % (NP - 1))
            A("v_cmp_ne_u32 vcc, %s, v%d" % (sTAG, FS + 4 * k + 3))
            A("v_mov_b32 v%d, v%d" % (FP, FS + 4 * k))
            A("v_mov_b32 v%d, v%d" % (FP + 1, FS + 4 * k + 1))
            A("s_and_b64 s[46:47], exec, vcc")
            A("s_cbranch_scc0 L_ugot")
            A("s_mov_b64 exec, s[46:47]")
            A("global_load_dwordx4 v[%d:%d], %s, %s sc1" % (FS + 4 * k, FS + 4 * k + 3, vA3, sWS))
        A("s_sub_u32 %s, %s, 1" % (sCNT, sCNT))
        A("s_cbranch_scc0 L_upoll")
        A("s_endpgm")
        LB("L_uown")
        A("ds_read_b128 v[%d:%d], %s offset:%d" % (FP, FP + 3, vLF, L_FIN))
        A("s_sub_u32 %s, %s, 1" % (sCNT, sCNT))
        A("s_cbranch_scc1 L_end")
        A("s_waitcnt lgkmcnt(0)")
        LB("L_ugot")
        A("s_mov_b64 exec, s[44:45]")
        A("v_cmp_ne_u32 vcc, %s, v%d" % (sTAG, FP + 3))
        A("s_cbranch_vccnz L_uown")
        stamp(10)
        A("s_mov_b64 exec, -1")
        x_, y_ = "v%d" % FP, "v%d" % (FP + 1)
        for pat in ("quad_perm:[1,0,3,2]", "quad_perm:[2,3,0,1]", "row_half_mirror"):
            A("v_add_f32_dpp %s, %s, %s %s %s" % (x_, x_, x_, pat, DPP))
            A("v_add_f32_dpp %s, %s, %s %s %s" % (y_, y_, y_, pat, DPP))
            if pat != "row_half_mirror": A("s_nop 0")
        A("s_mov_b32 s44, 0x01010101")
        A("v_add_f32 %s, %s, v22" % (x_, x_))
        A("v_add_f32 %s, %s, v23" % (y_, y_))
        A("s_mov_b32 s45, s44")
        A("v_cvt_pk_bf16_f32 %s, %s, %s" % (x_, x_, y_))
        A("s_mov_b64 exec, s[44:45]")
        A("global_store_dword %s, %s, %s" % (vXO, x_, sOUT))
        A("s_cmp_lg_u32 %s, 0" % sJ)
        A("s_cbranch_scc1 L_udone")
        C("the next launch must not mistake this launch's hand-off words for its own")
        A("s_mov_b64 exec, 1")
        A("v_mov_b32 v22, 0")
        A("v_mov_b32 v23, %s" % sTAG)
        A("global_store_dword v22, v23, %s" % sWS)
        LB("L_udone")
        role[0] = "U"
        amp_end("u")
        dump_stamps()
        A("s_endpgm")

    role[0] = "A"
    if o.get("alignA"): L.append(".p2align %d" % o["alignA"])
    for _ in range(o.get("shiftA", 0)): A("s_nop 0")
    if o["tw"]:
        LB("L_norace")
        C("waves 2, 3: first touch of the pages that later loads use, over the scalar path (values unused), so that their address translation is not waited for")
        A("s_lshl_b32 %s, %s, 2" % (t2, sW))
        A("v_mov_b32 v158, %s" % t2)
        A("v_mov_b32 v159, 0")
        A("ds_write_b32 v158, v159 offset:%d" % L_VOTE)
        A("s_lshl_b32 %s, %s, 24" % (t0, sH))
        A("s_and_b32 %s, %s, 7" % (t2, sJ))
        A("s_lshl_b32 %s, %s, %d" % (t2, t2, 17 if o["stl"] & 64 else 10))
        A("s_add_u32 %s, %s, %s" % (t0, t0, t2))
        A("s_add_u32 %s, %s, 0xF00000" % (t0, t0))
        A("s_lshl_b32 %s, %s, 19" % (t2, sH))
        A("s_lshl_b32 %s, %s, 14" % (t3, sJ))
        A("s_add_u32 %s, %s, %s" % (t2, t2, t3))
        A("s_mul_i32 %s, s2, 7168" % t3)
        A("s_cmp_eq_u32 %s, 3" % sW)
        A("s_waitcnt lgkmcnt(0)")
        A("s_cbranch_scc1 L_touch3")
        if o["stl"] & 4:
            A("s_load_dword s62, %s, %s" % (sWO, t2))
            A("s_load_dword s63, %s, %s" % (sDN, t3))
        if o["stl"] & 8: A("s_load_dword s59, %s, 0" % sOUT)
        if o["stl"] & 128:
            A("s_lshl_b32 %s, s2, 12" % t2)
            A("s_add_u32 %s, %s, 0x%x" % (t2, t2, MB2))
            A("s_load_dword s58, %s, %s" % (sWS, t2))
        A("s_branch L_attn")
        LB("L_touch3")
        if o["stl"] & 1: A("s_load_dword s60, %s, %s" % (sK, t0))
        if o["stl"] & 2: A("s_load_dword s61, %s, %s" % (sV, t0))
    LB("L_attn")
    vK0, vK1, vV0, vV1 = "v2", "v3", "v4", "v5"
    vWO0, vWO1, vDN0, vDN1, vXF, vXP = "v6", "v7", "v8", "v9", "v10", "v1"
    vS2, vL2, vS25, vL25, vL3, vS3 = "v11", "v12", "v13", "v14", "v15", "v150"
    KR, VR, WOR, DNR, QR, SR, PA, MK = 16, 48, 80, 96, 104, 120, 128, 146
    vM0, vM1, vQA, vOW, vOR, vMLW, vHA = "v151", "v152", "v153", "v154", "v155", "v156", "v157"
    vN, vG, vN16, vP = "v120", "v121", "v122", "v123"
    u0, u1 = "v124", "v125"
    s4JW = "s41"
    C("K and V: load i = 1 KB block (4 keys) number 128 i + 4j + w of the head's window; K goes through LDS")
    A("s_lshl_b32 %s, %s, 24" % (t0, sH))
    A("s_lshl_b32 %s, %s, 2" % (s4JW, sJ))
    A("s_add_u32 %s, %s, %s" % (s4JW, s4JW, sW))
    if o["lastfin"]:
        C("arrival order of the eight groups (one counter in the zeroed debug words)")
        A("s_cmp_lg_u32 %s, 0" % s4JW)
        A("s_cbranch_scc1 L_notkt0")
        A("v_mov_b32 v158, 0")
        A("v_mov_b32 v159, 1")
        A("s_mov_b64 exec, 1")
        A("global_atomic_add v159, v158, v159, s[24:25] sc0 sc1")
        A("s_mov_b64 exec, -1")
        LB("L_notkt0")
    perm = o["perm"]
    if perm:
        assert sorted(perm) == sorted("wwjjjjjiii")
        src = []; cnt = {"w": 0, "j": 2}
        for p_, c_ in enumerate(perm):
            if c_ != "i": src.append((cnt[c_], p_)); cnt[c_] += 1
        src.sort(); runs = []
        for a_, p_ in src:
            if runs and runs[-1][0] + runs[-1][2] == a_ and runs[-1][1] + runs[-1][2] == p_: runs[-1][2] += 1
            else: runs.append([a_, p_, 1])
        for a_, p_, n_ in runs:
            A("s_bfe_u32 %s, %s, 0x%x" % (t2, s4JW, (n_ << 16) | a_))
            A("s_lshl_b32 %s, %s, %d" % (t2, t2, p_ + 10))
            A("s_add_u32 %s, %s, %s" % (t0, t0, t2))
        ipos = [p_ for p_, c_ in enumerate(perm) if c_ == "i"]
    else:
        A("s_lshl_b32 %s, %s, 10" % (t2, s4JW))
        A("s_add_u32 %s, %s, %s" % (t0, t0, t2))
    if o["hrot"]:
        A("s_mul_i32 %s, %s, %d" % (t2, sH, o["hrot"]))
        A("s_and_b32 %s, %s, %d" % (t2, t2, 1023 if perm else 127))
        A("s_lshl_b32 %s, %s, 10" % (t2, t2))
        A("s_xor_b32 %s, %s, %s" % (t0, t0, t2))
    A("s_add_u32 %s, %s, 0xF00000" % (t0, t0))
    A("v_and_b32 %s, 15, v0" % vN)
    A("v_lshrrev_b32 %s, 4, v0" % vG)
    A("v_lshlrev_b32 %s, 4, %s" % (vN16, vN))
    A("v_lshl_add_u32 %s, v0, 4, %s" % (vV0, t0))
    A("v_lshlrev_b32 %s, 6, %s" % (u0, vG))
    A("v_xor_b32 %s, %s, %s" % (vK0, u0, vV0))
    A("s_lshl_b32 %s, %s, 13" % (t1, sW))
    A("s_add_u32 m0, %s, %d" % (t1, L_K))
    A("s_mov_b32 s42, 0x20000")
    A("s_movk_i32 s43, 1024")
    if not o["vote"]: A("s_waitcnt lgkmcnt(0)")
    if o.get("tlbw") == 1:
        A("s_cmp_lg_u32 %s, 0" % sW)
        A("s_cbranch_scc1 L_notlb")
        tlbwarm()
        A("s_waitcnt vmcnt(0)")
        LB("L_notlb")
    if o["vote"] and not o["tw"]: A("s_waitcnt lgkmcnt(1)")
    if o["lastfin"]:
        A("s_cmp_lg_u32 %s, 0" % s4JW)
        A("s_cbranch_scc1 L_notkt")
        A("s_mov_b64 exec, 1")
        A("s_waitcnt vmcnt(0)")
        A("ds_write_b32 v158, v159 offset:%d" % L_TKT)
        A("s_mov_b64 exec, -1")
        A("s_waitcnt lgkmcnt(0)")
        LB("L_notkt")
    def touches(m, name):
        if not m or o["tw"]: return
        C("first touch of the pages the later loads use, over the scalar path (values unused)")
        if o["stw"]:
            A("s_and_b32 %s, %s, %d" % (t2, s4JW, o["stw"]))
            A("s_cbranch_scc1 %s" % name)
        if m & 1: A("s_load_dword s60, %s, %s" % (sK, t0))
        if m & 2: A("s_load_dword s61, %s, %s" % (sV, t0))
        if m & 4:
            A("s_lshl_b32 %s, %s, 19" % (t2, sH))
            A("s_lshl_b32 %s, %s, 14" % (t3, sJ))
            A("s_add_u32 %s, %s, %s" % (t2, t2, t3))
            A("s_load_dword s62, %s, %s" % (sWO, t2))
            A("s_mul_i32 %s, s2, 7168" % t2)
            A("s_load_dword s63, %s, %s" % (sDN, t2))
        if m & 8: A("s_load_dword s59, %s, 0" % sOUT)
        if m & 16:
            A("s_lshl_b32 %s, %s, 7" % (t2, sH))
            A("s_load_dword s59, %s, %s" % (sOUT, t2))
        if o["stw"]: LB(name)
    touches(o["stl"], "L_touched")
    if o["b0pos"]: A("s_barrier")
    stamp(1)
    issued = [0]
    def load(w, txt):
        if issued[0] >= w:
            A("s_waitcnt vmcnt(%d)" % (w - 1))
        A(txt); issued[0] += 1
    def rot(i):
        if not perm: return (i * o["rotm"]) & 127
        b_ = sum(((i >> q_) & 1) << ipos[q_] for q_ in range(3))
        r_ = (i * o["rotm"]) & 127
        opos = [p_ for p_ in range(10) if p_ not in ipos]
        return b_ ^ sum(((r_ >> q_) & 1) << opos[q_] for q_ in range(7))
    def kload(i):
        load(o["WK"], "global_load_lds_dwordx4 %s, %s %s" % (vK0, sK, nt))
        if i < 7:
            A("s_add_u32 m0, m0, s43")
            A("v_xor_b32 %s, %d, %s" % (vK0, (((i & 3) ^ ((i + 1) & 3)) << 4) | ((rot(i) ^ rot(i + 1)) << 10), vK0))
            if not perm: A("v_add_u32 %s, s42, %s" % (vK0, vK0))
    nk_first = min(o["WK"], 8)
    if o.get("bal"):
        A("v_and_b32 v158, 7, v0")
        A("v_lshlrev_b32 v158, 2, v158")
        A("global_load_dword v159, v158, s[24:25] sc1")
    for i in range(nk_first): kload(i)
    touches(o["stl2"], "L_touched2")
    C("address and mask setup in the shadow of the K loads")
    if o["stouch"]: A("s_load_dword s63, %s, 0" % sOUT)
    A("s_lshl_b32 %s, %s, 19" % (t0, sH))
    A("s_lshl_b32 %s, %s, 14" % (t2, sJ))
    A("s_add_u32 %s, %s, %s" % (t0, t0, t2))
    A("s_lshl_b32 %s, %s, 8" % (t3, sW))
    A("s_add_u32 %s, %s, %s" % (t0, t0, t3))
    A("s_add_u32 %s, %s, 0x1000" % (t0, t0))
    A("v_lshl_add_u32 %s, %s, 10, %s" % (vDN0, vG, vN16))
    A("v_add_u32 %s, %s, %s" % (vWO0, t0, vDN0))
    A("v_add_u32 %s, 0x2000, %s" % (vWO1, vWO0))
    ffn_share(t0, t2)
    A("s_lshl_b32 %s, s3, 6" % t0)
    A("s_lshl_b32 %s, %s, 1" % (t2, t2))
    A("s_sub_u32 %s, 8, %s" % (t1, t2))
    A("s_mul_i32 %s, %s, %s" % (t2, t1, sJ))
    A("s_add_u32 %s, %s, %s" % (t0, t0, t2))
    A("s_lshl_b32 %s, %s, 10" % (t0, t0))
    A("s_add_u32 %s, %s, %s" % (t0, t0, t3))
    A("s_sub_u32 %s, %s, 1" % (t1, t1))
    A("v_add_u32 %s, %s, %s" % (u1, t0, vN16))
    A("v_min_u32 %s, %s, %s" % (vDN0, t1, vG))
    A("v_lshl_add_u32 %s, %s, 10, %s" % (vDN0, vDN0, u1))
    A("v_add_u32 %s, 4, %s" % (vDN1, vG))
    A("v_min_u32 %s, %s, %s" % (vDN1, t1, vDN1))
    A("v_lshl_add_u32 %s, %s, 10, %s" % (vDN1, vDN1, u1))
    A("v_and_b32 %s, 1, v0" % vP)
    A("v_and_b32 %s, 1, %s" % (u0, vG))
    if o["g25"]:
        if o["cq25"]:
            A("s_lshr_b32 %s, %s, 3" % (t2, sJ))
            A("s_lshl_b32 %s, %s, 8" % (t2, t2))
            A("s_and_b32 %s, %s, 3" % (t0, sJ))
            A("s_lshl_b32 %s, %s, 6" % (t0, t0))
            A("s_add_u32 %s, %s, %s" % (t2, t2, t0))
            A("s_and_b32 %s, %s, 4" % (t0, sJ))
            A("s_lshl_b32 %s, %s, 1" % (t0, t0))
            A("s_add_u32 %s, %s, %s" % (t2, t2, t0))
        else:
            A("s_lshl_b32 %s, %s, 5" % (t2, sJ))
        A("v_bfe_u32 %s, v0, 3, 2" % u1)
        A("v_lshl_add_u32 %s, %s, %d, %s" % (vXF, u1, 4 if o["cq25"] else 3, t2))
        A("v_lshrrev_b32 %s, 5, v0" % u1)
        A("v_lshl_add_u32 %s, %s, 2, %s" % (vXF, u1, vXF))
    else:
        A("s_lshl_b32 %s, %s, 3" % (t2, s4JW))
        A("v_lshl_add_u32 %s, %s, 2, %s" % (vXF, u0, t2))
    RP = o["rp"]
    M25 = 0 if o["reuse"] else MB25 - MB2
    lay = 3 if o["reuse"] else o.get("lay25", 0)
    A("s_mul_i32 %s, %s, %d" % (t0, sH, 32 * RP))
    A("s_add_u32 %s, %s, 0x%x" % (t0, t0, MB2))
    A("s_mul_i32 %s, %s, %d" % (t1, sJ, RP))
    A("s_add_u32 %s, %s, %s" % (t1, t1, t0))
    A("s_mul_i32 %s, %s, %d" % (t2, sW, 8 * RP))
    A("s_lshl_b32 %s, %s, 6" % (t3, sJ))
    A("s_add_u32 %s, %s, %s" % (t0, t0, t3))
    A("s_add_u32 %s, %s, %s" % (t2, t2, t0))
    A("v_bfe_u32 %s, v0, 2, 3" % vS2 if o["cq2"] else "v_lshrrev_b32 %s, 3, v0" % vS2)
    A("v_mul_u32_u24 %s, %d, %s" % (vS2, RP, vS2))
    A("v_and_b32 %s, 3, v0" % u1 if o["cq2"] else "v_bfe_u32 %s, v0, 1, 2" % u1)
    A("v_lshlrev_b32 %s, 4, %s" % (u1, u1))
    A("v_add3_u32 %s, %s, %s, %s" % (vS2, vS2, u1, t2))
    A("v_lshl_add_u32 %s, v0, 4, %s" % (vL2, t1))
    A("s_lshl_b32 %s, %s, 4" % (t3, sW))
    A("v_and_b32 %s, 31, v0" % u1)
    if lay == 0:
        A("s_add_u32 %s, %s, %s" % (t1, t1, t3))
        A("s_add_u32 %s, %s, 0x%x" % (t1, t1, M25))
        A("v_lshl_add_u32 %s, %s, 6, %s" % (vL25, u1, t1))
        A("v_lshrrev_b32 %s, 1, %s" % (vS25, vN))
        A("v_mul_u32_u24 %s, %d, %s" % (vS25, RP, vS25))
        A("v_lshl_add_u32 %s, %s, 5, %s" % (vS25, vP, vS25))
        A("v_lshl_add_u32 %s, %s, 4, %s" % (vS25, u0, vS25))
        A("s_add_u32 %s, %s, 0x%x" % (t2, t2, M25))
        A("v_add_u32 %s, %s, %s" % (vS25, t2, vS25))
    else:
        if not o["g25"]: A("s_add_u32 %s, %s, %s" % (t0, t0, t3))
        if M25: A("s_add_u32 %s, %s, 0x%x" % (t0, t0, M25))
        if o["g25"]:
            A("v_lshrrev_b32 %s, 2, v0" % vL25)
            A("v_mul_u32_u24 %s, %d, %s" % (vL25, RP, vL25))
            A("v_and_b32 %s, 3, v0" % u1)
            A("v_lshlrev_b32 %s, 4, %s" % (u1, u1))
            A("v_add3_u32 %s, %s, %s, %s" % (vL25, vL25, u1, t0))
            A("v_add_u32 v164, %d, %s" % (16 * RP, vL25))
        else:
            A("v_mul_u32_u24 %s, %d, %s" % (vL25, RP, u1))
            A("v_add_u32 %s, %s, %s" % (vL25, t0, vL25))
        A("s_lshl_b32 %s, %s, 9" % (t3, sW))
        A("s_add_u32 %s, %s, %s" % (t1, t1, t3))
        if M25: A("s_add_u32 %s, %s, 0x%x" % (t1, t1, M25))
        if o["cq25"]:
            A("v_and_b32 %s, 31, v0" % vS25)
            A("v_lshl_add_u32 %s, %s, 4, %s" % (vS25, vS25, t1))
        else:
            A("v_lshl_add_u32 %s, %s, 5, %s" % (vS25, vN, t1))
            A("v_lshl_add_u32 %s, %s, 4, %s" % (vS25, u0, vS25))
    A("s_lshr_b32 %s, %s, 1" % (t0, sJ))
    A("s_lshl_b32 %s, %s, 14" % (t0, t0))
    A("s_and_b32 %s, %s, 1" % (t3, sJ))
    A("s_lshl_b32 %s, %s, 12" % (t3, t3))
    A("s_add_u32 %s, %s, %s" % (t0, t0, t3))
    if o["g25"]:
        A("s_add_u32 %s, %s, 0x%x" % (t0, t0, MB3))
        A("v_lshrrev_b32 %s, 3, v0" % u0)
        A("v_lshl_add_u32 %s, %s, 4, %s" % (u0, u0, t0))
        A("v_and_b32 %s, 7, v0" % vL3)
        A("v_lshl_add_u32 %s, %s, 9, %s" % (vL3, vL3, u0))
        A("s_lshl_b32 %s, %s, 9" % (t3, sH))
        A("s_add_u32 %s, %s, %s" % (t0, t0, t3))
        A("v_lshrrev_b32 %s, 5, v0" % u0)
        A("v_lshl_add_u32 %s, %s, 6, %s" % (u0, u0, u1))
        A("v_bfe_u32 %s, v0, 2, 1" % u1)
        A("v_lshlrev_b32 %s, 13, %s" % (u1, u1))
        A("v_add3_u32 %s, %s, %s, %s" % (vS3, u0, u1, t0))
        if o["pt3"]:
            A("s_and_b32 %s, %s, 1" % (t3, sW))
            A("s_lshl_b32 %s, %s, 6" % (t3, t3))
            A("s_add_u32 s3, %s, %s" % (t0, t3))
            A("s_lshr_b32 %s, %s, 1" % (t3, sW))
            A("s_lshl_b32 %s, %s, 13" % (t3, t3))
            A("s_add_u32 s3, s3, %s" % t3)
    else:
        A("s_lshl_b32 %s, %s, 7" % (t3, sW))
        A("s_add_u32 %s, %s, %s" % (t0, t0, t3))
        A("s_add_u32 %s, %s, 0x%x" % (t0, t0, MB3))
        if o["lastfin"] == 1:
            A("s_lshl_b32 %s, %s, 5" % (t3, sW))
            A("v_lshl_add_u32 %s, %s, 4, %s" % (vL3, u0, t3))
        if o["lastfin"] >= 2:
            A("s_lshl_b32 s3, %s, 9" % sH)
            A("s_add_u32 s3, s3, %s" % t0)
        A("v_lshl_add_u32 %s, %s, 4, %s" % (u0, u0, t0))
        if o["lastfin"] != 1:
            A("v_and_b32 %s, 7, v0" % u1)
            A("v_lshl_add_u32 %s, %s, 9, %s" % (vL3, u1, u0))
        A("s_lshl_b32 %s, %s, 9" % (t3, sH))
        A("v_lshl_add_u32 %s, %s, 13, %s" % (u0, vP, u0))
        A("v_add_u32 %s, %s, %s" % (vS3, t3, u0))
    if o.get("mockx"):
        A("s_lshr_b32 %s, %s, 1" % (t0, sJ))
        A("s_lshl_b32 %s, %s, 14" % (t0, t0))
        A("s_and_b32 %s, %s, 1" % (t3, sJ))
        A("s_lshl_b32 %s, %s, 12" % (t3, t3))
        A("s_add_u32 %s, %s, %s" % (t0, t0, t3))
        A("s_lshl_b32 %s, %s, 9" % (t3, sH))
        A("s_add_u32 %s, %s, %s" % (t0, t0, t3))
        A("s_and_b32 %s, %s, 1" % (t3, sW))
        A("s_lshl_b32 %s, %s, 13" % (t3, t3))
        A("s_add_u32 %s, %s, %s" % (t0, t0, t3))
        A("s_add_u32 %s, %s, 0x%x" % (t0, t0, MB3))
        A("v_and_b32 %s, 3, v0" % u0)
        A("v_lshl_add_u32 %s, %s, 4, %s" % (vS3, u0, t0))
        A("s_and_b32 %s, %s, 3" % (t0, sJ))
        A("s_lshl_b32 %s, %s, 2" % (t0, t0))
        A("s_add_u32 %s, %s, %s" % (t0, t0, sW))
        A("s_lshl_b32 %s, %s, 14" % (t0, t0))
        A("s_lshr_b32 %s, %s, 2" % (t3, sJ))
        A("s_lshl_b32 %s, %s, 9" % (t3, t3))
        A("s_add_u32 %s, %s, %s" % (t0, t0, t3))
        A("s_add_u32 %s, %s, 0x%x" % (t0, t0, MB3))
        A("v_lshl_add_u32 %s, %s, 4, %s" % (vL3, u0, t0))
        A("v_bfe_u32 %s, v0, 2, 1" % u0)
        A("v_lshl_add_u32 %s, %s, 12, %s" % (vL3, u0, vL3))
    A("v_lshlrev_b32 %s, 4, %s" % (u1, vP))
    def pretouch2():
        C("pull this workgroup's incoming hand-off lines into L2 (waves 0,1: hop 2; waves 2,3: hop 2.5)")
        if o["reuse"]:
            A("s_lshl_b32 %s, %s, 9" % (t0, sW))
            A("v_lshlrev_b32 v158, 3, v0")
            A("v_sub_u32 v158, %s, v158" % vL2)
            A("v_add_u32 v158, %s, v158" % t0)
            if o["pt3"]: A("v_writelane_b32 v158, s3, 63")
        else:
            A("s_and_b32 %s, %s, 1" % (t0, sW))
            A("s_lshl_b32 %s, %s, 10" % (t0, t0))
            A("s_lshr_b32 %s, %s, 1" % (t3, sW))
            A("s_mul_i32 %s, %s, 0x%x" % (t3, t3, MB25 - MB2))
            A("s_add_u32 %s, %s, %s" % (t0, t0, t3))
            A("v_add_u32 v158, %s, %s" % (t0, vL2))
        if o["pretouch"] in ("r", "k"):
            A("global_load_dword v159, v158, %s sc1" % sWS); issued[0] += 1
        if o.get("otouch2", 0) & 1:
            A("global_load_dword v166, %s, %s" % (vXF, sOUT)); issued[0] += 1
        if o.get("otouch2", 0) & 2:
            A("global_load_dword v165, %s, %s sc1" % (vS3, sWS)); issued[0] += 1
    if o["pretouch"] == "r" or isinstance(o["pretouch"], int): pretouch2()
    A("v_mov_b32 %s, 0xffff" % u0)
    A("v_lshlrev_b32 %s, %s, %s" % (u0, u1, u0))
    A("v_and_b32 %s, 2, v0" % u1)
    A("v_cmp_eq_u32 vcc, 0, %s" % u1)
    A("v_lshrrev_b32 %s, 1, %s" % (u1, vN))
    A("v_lshlrev_b32 %s, 2, %s" % (vHA, vG))
    SEL = 160
    A("v_mov_b32 v%d, 0x0c0c0c0c" % (SEL + 2))
    A("v_mov_b32 v%d, 0x01000100" % (SEL + 3))
    A("v_bfi_b32 v%d, %s, v%d, v%d" % (SEL + 3, u0, SEL + 3, SEL + 2))
    A("v_cndmask_b32 v%d, v%d, v%d, vcc" % (SEL, SEL + 2, SEL + 3))
    A("v_cndmask_b32 v%d, v%d, v%d, vcc" % (SEL + 1, SEL + 3, SEL + 2))
    A("v_and_b32 v%d, 0x02020202, %s" % (SEL + 3, u0))
    A("v_cndmask_b32 v%d, 0, v%d, vcc" % (SEL + 2, SEL + 3))
    A("v_cndmask_b32 v%d, v%d, 0, vcc" % (SEL + 3, SEL + 3))
    A("v_add_u32 v%d, v%d, v%d" % (SEL + 2, SEL + 2, SEL))
    A("v_add_u32 v%d, v%d, v%d" % (SEL + 3, SEL + 3, SEL + 1))
    for r in range(4):
        A("v_cmp_eq_u32 s[%d:%d], %d, %s" % (44 + 2 * r, 45 + 2 * r, r, u1))
    A("v_lshrrev_b32 %s, 2, %s" % (vMLW, vN))
    A("v_lshlrev_b32 %s, 4, %s" % (u1, vG))
    A("v_lshl_add_u32 %s, %s, 8, %s" % (vQA, vMLW, u1))
    for r in range(4):
        A("v_cndmask_b32 v%d, 0, %s, s[%d:%d]" % (MK + r, u0, 44 + 2 * r, 45 + 2 * r))
    OH, OG, OWV = (384, 768, 3072) if o["cq2"] else (256, 512, 2048)
    if o["cq2"]:
        A("s_mul_i32 %s, %s, %d" % (t0, sW, OWV))
        A("v_mul_u32_u24 %s, %d, %s" % (vOW, OG, vG))
        A("v_add3_u32 %s, %s, %s, %s" % (vOW, vOW, vN16, t0))
    else:
        A("s_lshl_b32 %s, %s, 11" % (t0, sW))
        A("v_lshl_add_u32 %s, %s, 9, %s" % (vOW, vG, vN16))
        A("v_add_u32 %s, %s, %s" % (vOW, t0, vOW))
    A("s_lshl_b32 %s, %s, 3" % (t0, sW))
    A("v_lshl_add_u32 %s, %s, 5, %s" % (vMLW, vMLW, t0))
    if o["cq2"]:
        A("v_bfe_u32 %s, v0, 1, 4" % u1)
        A("v_lshlrev_b32 %s, 4, %s" % (u1, u1))
        A("v_mul_u32_u24 %s, %d, %s" % (u0, OH, vP))
        A("s_mul_i32 %s, %s, %d" % (t0, sW, OG))
        A("v_add3_u32 %s, %s, %s, %s" % (vOR, u0, u1, t0))
    else:
        A("v_bfe_u32 %s, v0, 1, 1" % u0)
        A("v_lshrrev_b32 %s, 2, v0" % u1)
        A("v_lshlrev_b32 %s, 4, %s" % (u1, u1))
        A("v_lshl_add_u32 %s, %s, 8, %s" % (u1, u0, u1))
        A("v_lshl_add_u32 %s, %s, 3, %s" % (u1, vP, u1))
        A("s_lshl_b32 %s, %s, 9" % (t0, sW))
        A("v_add_u32 %s, %s, %s" % (vOR, t0, u1))
    KA = 140
    A("v_and_b32 %s, 3, v0" % u0)
    A("v_lshrrev_b32 %s, 2, %s" % (u1, vN))
    A("v_lshlrev_b32 %s, 8, %s" % (u1, u1))
    A("v_lshl_add_u32 %s, %s, 10, %s" % (u0, u0, u1))
    A("v_xor_b32 %s, %s, %s" % (u1, vG, vN))
    A("v_lshl_add_u32 %s, %s, 4, %s" % (u0, u1, u0))
    A("s_lshl_b32 %s, %s, 13" % (t1, sW))
    A("v_add_u32 v%d, %s, %s" % (KA, t1, u0))
    for s_ in range(1, 4):
        A("v_xor_b32 v%d, %d, v%d" % (KA + s_, s_ << 6, KA))
    if o.get("cheap", 0) & 1:
        A("v_and_b32 %s, 0x3fff, %s" % (vWO0, vWO0)); A("v_or_b32 %s, 0x1000, %s" % (vWO0, vWO0)); A("v_mov_b32 %s, %s" % (vWO1, vWO0))
    if o.get("cheap", 0) & 2:
        A("v_and_b32 %s, 0x3fff, %s" % (vDN0, vDN0)); A("v_mov_b32 %s, %s" % (vDN1, vDN0))
    if o.get("cheap", 0) & 4:
        A("v_and_b32 %s, 0x3fff, %s" % (vV0, vV0)); A("s_mov_b32 s57, 0")
    for _ in range(o.get("delayA", 0)): A("s_nop 3")
    def issue_rest(WK_, W_):
        o_wk = o["WK"]; o["WK"] = WK_
        for i in range(nk_first, 8): kload(i)
        o["WK"] = o_wk
        if o["pretouch"] == "k": pretouch2()
        if o.get("xearly"):
            A("global_load_dword %s, %s, %s" % (vXP, vXF, sX)); issued[0] += 1
        for i in range(8 - o["vlate"]):
            ld, *step = vload(i)
            load(W_, ld)
            for t_ in step: A(t_)
    def vload(i):
        r = VR + i * 4
        seq = ["global_load_dwordx4 v[%d:%d], %s, %s %s" % (r, r + 3, vV0, sV, nt)]
        if i < 7:
            if rot(i) ^ rot(i + 1): seq.append("v_xor_b32 %s, %d, %s" % (vV0, (rot(i) ^ rot(i + 1)) << 10, vV0))
            if not perm: seq.append("v_add_u32 %s, %s, %s" % (vV0, "s57" if o.get("cheap", 0) & 4 and i % o.get("cheapm", 1) == 0 else "s42", vV0))
        return seq
    if o.get("bal"):
        C("a group that started well after others asks memory with a wider window")
        A("s_waitcnt vmcnt(%d)" % issued[0])
        A("v_sub_u32 v158, s90, v159")
        A("v_cmp_ne_u32 vcc, 0, v159")
        A("v_cmp_lt_i32 s[44:45], %d, v158" % o.get("theta", 40))
        A("s_and_b32 s62, vcc_lo, s44")
        A("s_and_b32 s62, s62, 0xff")
        A("s_bcnt1_i32_b32 s62, s62")
        A("s_cmp_ge_u32 s62, %d" % o.get("lateth", 2))
        A("s_cbranch_scc1 L_wide")
        keep = issued[0]
        issue_rest(o["WK"], o["W"])
        A("s_branch L_issued")
        LB("L_wide")
        issued[0] = keep
        issue_rest(o["WK"] + o["bal"], o["W"] + o["bal"])
        LB("L_issued")
    elif o.get("c3"):
        A("s_lshr_b32 %s, %s, 2" % (t0, sJ))
        A("s_cmp_eq_u32 %s, 3" % t0)
        A("s_cbranch_scc1 L_wide")
        keep = issued[0]
        issue_rest(o["WK"], o["W"])
        A("s_branch L_issued")
        LB("L_wide")
        issued[0] = keep
        issue_rest(o["WK"] + o["c3"], o["W"] + o.get("c3v", o["c3"]))
        LB("L_issued")
    else:
        issue_rest(o["WK"], o["W"])
    tail = []
    if o["lastfin"] != 1 and not o.get("xstag"): tail.append("global_load_dword %s, %s, %s" % (vXP, vXF, sX))
    for a in range(2):
        r = DNR + a * 4
        tail.append("global_load_dwordx4 v[%d:%d], %s, %s %s" % (r, r + 3, (vDN0, vDN1)[a], sDN, nt))
    for m in range(4):
        r = WOR + m * 4
        tail.append("global_load_dwordx4 v[%d:%d], %s, %s offset:%d %s" % (r, r + 3, (vWO0, vWO1)[m >> 1], sWO, (0, -4096)[(m & 1) == 0], nt))
    dnl = []
    if o.get("dnlate"):
        dnl = tail[1:1 + 2]
        if o["dnlate"] == 2: dnl = dnl[1:]
        for t_ in dnl: tail.remove(t_)
        tail.append(tail.pop(0))
    if isinstance(o["pretouch"], int):
        tail.insert(o["pretouch"], "global_load_dword v159, v158, %s sc1" % sWS)
    if o.get("xearly"):
        xl = [t_ for t_ in tail if vXP + "," in t_][0]; tail.remove(xl)
    taft = []
    for _ in range(o.get("tafter", 0)): taft.insert(0, tail.pop())
    tail[:0] = [vload(i) for i in range(8 - o["vlate"], 8)]
    nav = [-o["vlate"]]
    def tail_issue(n):
        for _ in range(n):
            if tail:
                t_ = tail.pop(0)
                for q_ in ([t_] if isinstance(t_, str) else t_): A(q_)
                nav[0] += 1
    sNE = "s63"
    def adaptive():
        C("a wave whose V loads have landed while it waited for q tops its window up with the weight loads")
        assert not o["vlate"] and not o["ntail0"] and not o["tsp"] and not o["tlag"] and len(tail) == 7
        A("s_getreg_b32 %s, hwreg(HW_REG_IB_STS, 0, 4)" % t0)
        A("s_sub_i32 %s, %d, %s" % (sNE, o["Wa"], t0))
        for k in range(min(7, o["Wa"])):
            A("s_cmp_le_i32 %s, %d" % (sNE, k))
            A("s_cbranch_scc1 L_topped")
            A(tail[k])
        LB("L_topped")
    A("s_waitcnt vmcnt(%d)" % (8 - o["vlate"]))
    for t in range(2):
        for s in range(4):
            r = KR + (t * 4 + s) * 4
            A("ds_read_b128 v[%d:%d], v%d offset:%d" % (r, r + 3, KA + s, L_K + t * 4096))
    tail_issue(o["ntail0"])
    stamp(2)
    A("s_waitcnt lgkmcnt(0)")
    A("s_barrier")
    stamp(3)
    for s in range(4):
        A("ds_read_b128 v[%d:%d], %s offset:%d" % (QR + 4 * s, QR + 4 * s + 3, vQA, L_Q + s * 64))
    if "a" in o["tsp"]: tail_issue(1)
    if o["adap"] == "a": adaptive()
    A("s_mov_b32 s46, 0x%x" % SCALE)
    A("s_mov_b32 %s, 0xffff0000" % t1)
    A("s_mov_b32 s48, 0x%x" % LOG2E)
    for s in range(4):
        A("s_waitcnt lgkmcnt(%d)" % (3 - s))
        for t in range(2):
            mfma(SR + 4 * t, KR + (t * 4 + s) * 4, QR + 4 * s, None if s == 0 else SR + 4 * t)
    T = KR
    vH0, vH1, vFL, vTG = "v%d" % (T + 28), "v%d" % (T + 29), "v%d" % (T + 26), "v%d" % (T + 27)
    A("v_mov_b32 %s, %d" % (vFL, L_FLAG))
    A("s_lshl_b32 %s, %s, 5" % (t3, sW))
    A("v_mov_b32 v%d, %s" % (T + 31, t3))
    A("ds_read_b64 v[%d:%d], %s" % (T + 26, T + 27, vFL))
    if "b" in o["tsp"]:
        tail_issue(1); A("s_nop 1")
    elif o["adap"] == "b": adaptive()
    else: A("s_nop 2")
    C("scores: bf16(qk) -> * scale -> bf16   (the reference's two roundings)")
    for i in range(8):
        A("v_cvt_pk_bf16_f32 v%d, 0, v%d" % (SR + i, SR + i))
    for i in range(4):
        A("v_pk_mul_f32 %s, %s, s[46:47] op_sel_hi:[1,0]" % (P2(SR + 2 * i), P2(SR + 2 * i)))
    for i in range(8):
        A("v_cvt_pk_bf16_f32 v%d, 0, v%d" % (SR + i, SR + i))
    vm, vt, vl = "v%d" % (T + 4), "v%d" % (T + 6), "v%d" % (T + 5)
    A("v_max3_f32 %s, v%d, v%d, v%d" % (vm, SR, SR + 1, SR + 2))
    A("v_max3_f32 %s, v%d, v%d, v%d" % (vt, SR + 3, SR + 4, SR + 5))
    A("v_max3_f32 %s, %s, v%d, v%d" % (vm, vm, SR + 6, SR + 7))
    A("v_max_f32 %s, %s, %s" % (vm, vm, vt))
    allred(vm, vt, "v_max_f32", 16)
    if "c" in o["tsp"]: tail_issue(1)
    if o["adap"] == "c": adaptive()
    allred(vm, vt, "v_max_f32", 32)
    A("v_mul_f32 %s, s48, %s" % (vm, vm))
    for i in range(4):
        A("v_pk_fma_f32 %s, %s, s[48:49], %s op_sel_hi:[1,0,0] neg_lo:[0,0,1] neg_hi:[0,0,1]" % (P2(SR + 2 * i), P2(SR + 2 * i), P2(T + 4)))
    for i in range(8):
        A("v_exp_f32 v%d, v%d" % (SR + i, SR + i))
    if "d" in o["tsp"]: tail_issue(1)
    for i in range(4):
        A("v_cvt_pk_bf16_f32 v%d, v%d, v%d" % (T + 8 + i, SR + 2 * i, SR + 2 * i + 1))
    for i in range(8):
        for r in range(2):
            A("v_perm_b32 v%d, v%d, v%d, v%d" % (PA + 2 * i + r, T + 8 + (i >> 1), T + 8 + (i >> 1), SEL + 2 * (i & 1) + r))
    stamp(4)
    O0, O1, Y = QR, QR + 4, QR + 8
    def pv(i):
        assert 7 - i + nav[0] >= 0
        A("s_waitcnt vmcnt(%d)" % (7 - i + nav[0]))
        if o["adap"] and i < min(7, o["Wa"]):
            A("s_cmp_gt_i32 %s, %d" % (sNE, i))
            A("s_cbranch_scc1 L_had%d" % i)
            tail_issue(1)
            LB("L_had%d" % i)
        elif i >= o["tlag"]: tail_issue((2 if i < o.get("tdbl", 0) else 1) if i < o.get("tlast", 7) else 9)
        vr = VR + 4 * i
        mfma16(O0, PA + 2 * i, vr, None if i == 0 else O0)
        mfma16(O1, PA + 2 * i, vr + 2, None if i == 0 else O1)
    A("v_pk_add_f32 %s, %s, %s" % (P2(SR), P2(SR), P2(SR + 2)))
    A("v_pk_add_f32 %s, %s, %s" % (P2(SR + 4), P2(SR + 4), P2(SR + 6)))
    A("v_pk_add_f32 %s, %s, %s" % (P2(SR), P2(SR), P2(SR + 4)))
    A("v_add_f32 %s, v%d, v%d" % (vl, SR, SR + 1))
    allred(vl, vt, "v_add_f32", 16)
    allred(vl, vt, "v_add_f32", 32)
    A("ds_write_b64 %s, v[%d:%d] offset:%d" % (vMLW, T + 4, T + 5, L_ML))
    A("s_waitcnt lgkmcnt(0)")
    A("v_readfirstlane_b32 %s, %s" % (sFAST, vFL))
    A("v_readfirstlane_b32 %s, %s" % (sTAG, vTG))
    SO = 4
    def soffs():
        A("s_and_b32 %s, %s, 0x2000" % (t0, sFAST))
        A("v_add_u32 %s, %s, %s" % (vL3, t0, vL3))
        A("s_or_b32 s3, s3, %s" % t0)
        for k in range(1, 8): A("s_xor_b32 s%d, s3, 0x%x" % (SO + k - 1, k << 9))
    nshot = [0]
    SD = [12, 20, 44, 64, 72, 80, 88] if not o["stamps"] else None
    def sshot(bit):
        if o["lastfin"] < 2 or not (o.get("sshot", 2) & bit): return
        nshot[0] += 1
        A("s_bitcmp0_b32 %s, 1" % sFAST)
        A("s_cbranch_scc1 L_noshot%d" % nshot[0])
        for k in range(1, 8):
            if o["lastfin"] == 2: A("s_load_dword s%d, %s, s%d offset:12 %s" % (12 + k, sWS, SO + k - 1, o.get("sfl", "glc")))
            else: A("s_load_dwordx8 s[%d:%d], %s, s%d glc" % (SD[k - 1], SD[k - 1] + 7, sWS, SO + k - 1))
        LB("L_noshot%d" % nshot[0])
    HA = T + 16
    ML = T
    OB = T + 8
    G2 = SR
    vM, vLs = "v124", "v125"
    for i in range(o["b2"]): pv(i)
    if o.get("dbgb2"): A("s_memrealtime s[70:71]")
    A("s_barrier")
    if o.get("dbgb2"): A("s_memrealtime s[72:73]")
    A("ds_read_b128 v[%d:%d], v%d offset:%d" % (ML, ML + 3, T + 31, L_ML))
    A("ds_read_b128 v[%d:%d], v%d offset:%d" % (ML + 4, ML + 7, T + 31, L_ML + 16))
    if not o["hlate"]:
        A("ds_read_b32 %s, %s offset:%d" % (vH0, vHA, L_H))
        A("ds_read_b32 %s, %s offset:%d" % (vH1, vHA, L_H + 16))
    avote = o["vote"] and not o["lastfin"]
    if avote:
        A("v_mov_b32 v%d, 0" % (T + 30))
        A("ds_read_b32 v%d, v%d offset:%d" % (T + 30, T + 30, L_FLAG + 8))
    if not o["cq2"]:
        A("s_mov_b32 s54, 0x55555555")
        A("s_mov_b32 s55, 0x55555555")
    A("v_mov_b32 v%d, %s" % (G2 + 3, sTAG))
    A("s_waitcnt lgkmcnt(%d)" % ((0 if o["hlate"] else 2) + (1 if avote else 0)))
    A("v_max3_f32 %s, v%d, v%d, v%d" % (vM, ML, ML + 2, ML + 4))
    A("v_max_f32 %s, %s, v%d" % (vM, vM, ML + 6))
    for w_ in range(4):
        A("v_sub_f32 v%d, v%d, %s" % (ML + 2 * w_, ML + 2 * w_, vM))
    for w_ in range(4):
        A("v_exp_f32 v%d, v%d" % (ML + 2 * w_, ML + 2 * w_))
    A("s_waitcnt lgkmcnt(0)")
    A("v_mul_f32 %s, v%d, v%d" % (vLs, ML, ML + 1))
    for w_ in range(1, 4):
        A("v_fmac_f32 %s, v%d, v%d" % (vLs, ML + 2 * w_, ML + 2 * w_ + 1))
    def h_operands():
        for a in range(2):
            for r in range(4):
                A("v_and_b32 v%d, %s, v%d" % (HA + 4 * a + r, (vH0, vH1)[a], MK + r))
    A("v_log_f32 v%d, %s" % (G2 + 2, vLs))
    A("v_rcp_f32 %s, %s" % (vLs, vLs))
    if not o["hlate"]: h_operands()
    else: A("s_nop 0")
    if avote: A("v_add_u32 %s, v%d, %s" % (vL3, T + 30, vL3))
    A("v_add_f32 v%d, v%d, %s" % (G2 + 2, G2 + 2, vM))
    for w_ in range(4):
        A("v_mul_f32 v%d, v%d, %s" % (ML + 2 * w_, ML + 2 * w_, vLs))
    for i in range(o["b2"], 8): pv(i)
    stamp(5)
    if o.get("nosync"):
        A("s_waitcnt vmcnt(0)")
        stamp(6)
        A("s_branch L_done")
    A("s_nop 6")
    A("ds_write_b128 %s, v[%d:%d] offset:%d" % (vOW, O0, O0 + 3, L_O))
    A("ds_write_b128 %s, v[%d:%d] offset:%d" % (vOW, O1, O1 + 3, L_O + OH))
    A("s_waitcnt lgkmcnt(0)")
    A("s_barrier")
    if o["cq2"]:
        OB4, AC = VR, VR + 16
        A("s_mov_b32 exec_hi, 0")
        for w_ in range(4):
            A("ds_read_b128 v[%d:%d], %s offset:%d" % (OB4 + 4 * w_, OB4 + 4 * w_ + 3, vOR, L_O + w_ * OWV))
        A("s_bitcmp0_b32 %s, 0" % sFAST)
        for w_ in range(4):
            A("s_waitcnt lgkmcnt(%d)" % (3 - w_))
            for hf in range(2):
                if w_ == 0: A("v_pk_mul_f32 %s, %s, %s op_sel_hi:[1,0]" % (P2(AC + 2 * hf), P2(OB4 + 2 * hf), P2(ML)))
                else: A("v_pk_fma_f32 %s, %s, %s, %s op_sel_hi:[1,0,1]" % (P2(AC + 2 * hf), P2(OB4 + 4 * w_ + 2 * hf), P2(ML + 2 * w_), P2(AC + 2 * hf)))
    else:
        for w_ in range(4):
            A("ds_read_b64 v[%d:%d], %s offset:%d" % (OB + 2 * w_, OB + 2 * w_ + 1, vOR, L_O + w_ * 2048))
        A("s_bitcmp0_b32 %s, 0" % sFAST)
        for w_ in range(4):
            A("s_waitcnt lgkmcnt(%d)" % (3 - w_))
            op = "v_mul_f32" if w_ == 0 else "v_fmac_f32"
            A("%s v%d, v%d, v%d" % (op, G2, ML + 2 * w_, OB + 2 * w_))
            A("%s v%d, v%d, v%d" % (op, G2 + 1, ML + 2 * w_, OB + 2 * w_ + 1))
    tails = []
    def publish(addr, g, name):
        A("s_cbranch_scc1 L_slow_%s" % name)
        A("global_store_dwordx4 %s, v[%d:%d], %s %s" % (addr, g, g + 3, sWS, o.get("stfl", "")))
        LB("L_back_%s" % name)
        tails.append((name, addr, g))
    if o["cq2"]:
        A("v_cvt_pk_bf16_f32 v%d, v%d, v%d" % (G2, AC, AC + 1))
        A("v_cvt_pk_bf16_f32 v%d, v%d, v%d" % (G2 + 1, AC + 2, AC + 3))
    else:
        A("v_cvt_pk_bf16_f32 v%d, v%d, v%d" % (G2, G2, G2 + 1))
        A("s_nop 1")
        A("v_mov_b32_dpp v%d, v%d quad_perm:[1,1,3,3] %s" % (G2 + 1, G2, DPP))
        A("s_mov_b64 exec, s[54:55]")
    publish(vS2, G2, "h2")
    A("s_mov_b64 exec, -1")
    stamp(6)
    P = T
    def ask2(k):
        for i in range(2):
            A("global_load_dwordx4 v[%d:%d], %s, %s offset:%d sc1" % (VR + 8 * k + 4 * i, VR + 8 * k + 4 * i + 3, vL2, sWS, i * 1024))
    if o["g2"]:
        A("s_cmp_lg_u32 %s, %d" % (sW, o["gw2"]))
        A("s_cselect_b64 exec, 0, -1")
        ask2(0)
        A("s_mov_b64 exec, -1")
    else:
        for i in range(2):
            A("global_load_dwordx4 v[%d:%d], %s, %s offset:%d %s" % (P + 4 * i, P + 4 * i + 3, vL2, sWS, i * 1024, o.get("p2fl", "sc1")))
    for t_ in dnl: A(t_)
    if o["hlate"]:
        A("s_barrier")
        A("ds_read_b32 %s, %s offset:%d" % (vH0, vHA, L_H))
        A("ds_read_b32 %s, %s offset:%d" % (vH1, vHA, L_H + 16))
    A("s_mov_b32 %s, %d" % (sCNT, o["spinmax"]))
    vTAG = "v127"
    sT2 = sTAG
    if o["reuse"]:
        sT2 = "s62"
        A("s_not_b32 %s, %s" % (t0, sTAG))
        A("s_lshl_b32 %s, %s, 24" % (t0, t0))
        A("s_and_b32 s62, %s, 0xffffff" % sTAG)
        A("s_or_b32 s62, s62, %s" % t0)
    A("v_mov_b32 %s, %s" % (vTAG, sT2))
    for k in range(4):
        A("s_mov_b32 s%d, 0x%x" % (56 + k, 0x07060500 | k))
        A("s_bfe_u32 s%d, %s, 0x%x" % (60 + k if k < 2 else 50 + k, sT2, 0x80000 | (8 * k)))
    TB = ["s60", "s61", "s52", "s53"]
    if o["hlate"]:
        A("s_waitcnt lgkmcnt(0)")
        h_operands()
    ndn_early = 2 - len(dnl)
    if o["lastfin"] >= 2: soffs()
    if o["g2"]:
        NP2 = o["g2"]
        A("v_lshlrev_b32 v126, 2, %s" % vHA)
        A("v_and_b32 v125, 3, v0")
        A("v_lshl_add_u32 v165, v125, 2, v126")
        A("s_cmp_lg_u32 %s, %d" % (sW, o["gw2"]))
        A("s_cbranch_scc1 L_wait_a")
        A("s_waitcnt vmcnt(2)")
        for k in range(1, NP2): ask2(k)
        for a in range(2):
            mfma(Y, HA + 4 * a, DNR + 4 * a, None if a == 0 else Y)
        LB("L_poll2b")
        for k in range(NP2):
            for i in range(2):
                a_ = VR + 8 * k + 4 * i
                A("s_waitcnt vmcnt(%d)" % (2 * NP2 - 1 - i))
                A("v_cmp_ne_u32 %s, %s, v%d" % (("vcc", "s[44:45]")[i], sTAG, a_ + 3))
                A("v_pk_mov_b32 %s, %s, %s op_sel:[0,1]" % (P2(P + 4 * i), P2(a_), P2(a_)))
                A("v_mov_b32 v%d, v%d" % (P + 4 * i + 2, a_ + 2))
            A("v_max_f32 %s, v%d, v%d" % (vM, VR + 8 * k + 2, VR + 8 * k + 6))
            A("s_or_b64 vcc, vcc, s[44:45]")
            A("s_and_b64 exec, exec, vcc")
            A("s_cbranch_scc0 L_got2b")
            ask2(k)
        A("s_sub_u32 %s, %s, 1" % (sCNT, sCNT))
        A("s_cbranch_scc0 L_poll2b")
        A("s_endpgm")
        LB("L_wait_a")
        A("s_waitcnt vmcnt(0)")
        for a in range(2):
            mfma(Y, HA + 4 * a, DNR + 4 * a, None if a == 0 else Y)
        A("s_barrier")
        A("ds_read_b128 v[%d:%d], v126 offset:%d" % (T + 24, T + 27, L_A))
        A("s_bitcmp0_b32 %s, 0" % sFAST)
        A("s_waitcnt lgkmcnt(0)")
        for m in range(4):
            for r in range(4):
                A("v_and_b32 v%d, v%d, v%d" % (T + 4 * m + r, T + 24 + m, MK + r))
            if m > 0: mfma(Y, T + 4 * (m - 1), WOR + 4 * (m - 1), Y)
        A("s_branch L_last_mfma")
        LB("L_got2b")
        A("s_mov_b64 exec, -1")
        A("v_max_f32_dpp %s, %s, %s row_ror:4 %s" % (vM, vM, vM, DPP))
        n_g2 = len(L)
    else:
        if o.get("mockx"): ndn_early = 0
        else: A("s_waitcnt vmcnt(%d)" % (3 + len(dnl)))
        if o.get("dbgwo"): A("s_memrealtime s[68:69]")
        for a in range(ndn_early):
            mfma(Y, HA + 4 * a, DNR + 4 * a, None if a == 0 else Y)
        if dnl:
            A("s_waitcnt vmcnt(%d)" % len(dnl))
            A("s_branch L_chk2b")
        else:
            A("s_branch L_chk2")
    LB("L_poll2")
    MS = ["s[44:45]", "s[46:47]"]
    if o["np2"]:
        C("still waiting for some producers: several asks in flight, only for the lanes whose tags were missing")
        NP2 = o["np2"]
        A("s_mov_b64 exec, vcc")
        for k in range(NP2): ask2(k)
        LB("L_poll2b")
        for k in range(NP2):
            for i in range(2):
                a_ = VR + 8 * k + 4 * i
                A("s_waitcnt vmcnt(%d)" % (2 * NP2 - 1 - i))
                A("v_cmp_ne_u32 %s, %s, v%d" % (("vcc", MS[0])[i], sTAG, a_ + 3))
                A("v_pk_mov_b32 %s, %s, %s op_sel:[0,1]" % (P2(P + 4 * i), P2(a_), P2(a_)))
                A("v_mov_b32 v%d, v%d" % (P + 4 * i + 2, a_ + 2))
            A("s_or_b64 vcc, vcc, %s" % MS[0])
            A("s_and_b64 exec, exec, vcc")
            A("s_cbranch_scc0 L_got2b")
            ask2(k)
        A("s_sub_u32 %s, %s, 1" % (sCNT, sCNT))
        A("s_cbranch_scc0 L_poll2b")
        A("s_endpgm")
        LB("L_got2b")
        A("s_mov_b64 exec, -1")
        A("v_max_f32 %s, v%d, v%d" % (vM, P + 2, P + 6))
        A("s_nop 1")
        A("v_max_f32_dpp %s, %s, %s row_ror:4 %s" % (vM, vM, vM, DPP))
        A("s_nop 0")
        A("s_branch L_got2")
    else:
        for i in range(2):
            if o["mask2"]: A("s_mov_b64 exec, %s" % MS[i])
            A("global_load_dwordx4 v[%d:%d], %s, %s offset:%d sc1" % (P + 4 * i, P + 4 * i + 3, vL2, sWS, i * 1024))
        if o["mask2"]: A("s_mov_b64 exec, -1")
        A("s_sub_u32 %s, %s, 1" % (sCNT, sCNT))
        A("s_cbranch_scc1 L_end")
    LB("L_chk2")
    A("s_waitcnt vmcnt(0)")
    LB("L_chk2b")
    A("v_max_f32 %s, v%d, v%d" % (vM, P + 2, P + 6))
    for i in range(2):
        A("v_cmp_ne_u32 %s, %s, v%d" % (MS[i], sTAG, P + 4 * i + 3))
    A("v_max_f32_dpp %s, %s, %s row_ror:4 %s" % (vM, vM, vM, DPP))
    A("s_or_b64 vcc, %s, %s" % (MS[0], MS[1]))
    A("s_cbranch_scc1 L_poll2")
    if o["np2"]: LB("L_got2")
    if o["g2"]: del L[n_g2:]
    stamp(7)
    if o.get("tpos", "g") == "g":
        for t_ in taft: A(t_)
    sshot(1)
    U = T + 8
    def unp(i, k):
        if k & 1: A("v_and_b32 v%d, %s, v%d" % (U + 4 * i + k, t1, P + 4 * i + (k >> 1)))
        else: A("v_lshlrev_b32 v%d, 16, v%d" % (U + 4 * i + k, P + 4 * i + (k >> 1)))
    vt2 = "v126"
    w0, w1 = "v120", "v122"
    den, tA, tB = "v126", "v124", "v123"
    if o["g2"]:
        unp(0, 0); unp(0, 1)
        A("v_max_f32_dpp %s, %s, %s row_ror:8 %s" % (vM, vM, vM, DPP))
        A("v_mov_b32 %s, %s" % (vt2, vM))
        unp(0, 2); unp(0, 3)
        A("v_permlane16_swap_b32 %s, %s" % (vt2, vM))
        A("v_max_f32 %s, %s, %s" % (vM, vM, vt2))
        A("v_mov_b32 %s, %s" % (vt2, vM))
        unp(1, 0); unp(1, 1)
        A("v_permlane32_swap_b32 %s, %s" % (vt2, vM))
        A("v_max_f32 %s, %s, %s" % (vM, vM, vt2))
        A("v_sub_f32 %s, v%d, %s" % (w0, P + 2, vM))
        A("v_sub_f32 %s, v%d, %s" % (w1, P + 6, vM))
        A("v_exp_f32 %s, %s" % (w0, w0))
        A("v_exp_f32 %s, %s" % (w1, w1))
        unp(1, 2)
        A("v_add_f32 %s, %s, %s" % (den, w0, w1))
        unp(1, 3)
        A("v_pk_mul_f32 %s, %s, v[120:121] op_sel_hi:[1,0]" % (P2(U), P2(U)))
        A("v_add_f32_dpp %s, %s, %s row_ror:4 %s" % (den, den, den, DPP))
        A("v_pk_mul_f32 %s, %s, v[120:121] op_sel_hi:[1,0]" % (P2(U + 2), P2(U + 2)))
        A("v_pk_fma_f32 %s, %s, v[122:123], %s op_sel_hi:[1,0,1]" % (P2(U), P2(U + 4), P2(U)))
        A("v_add_f32_dpp %s, %s, %s row_ror:8 %s" % (den, den, den, DPP))
        A("v_pk_fma_f32 %s, %s, v[122:123], %s op_sel_hi:[1,0,1]" % (P2(U + 2), P2(U + 6), P2(U + 2)))
    else:
        A("v_max_f32_dpp %s, %s, %s row_ror:8 %s" % (vM, vM, vM, DPP))
        A("v_mov_b32 %s, %s" % (vt2, vM))
        unp(0, 0); unp(0, 1)
        A("v_permlane16_swap_b32 %s, %s" % (vt2, vM))
        A("v_max_f32 %s, %s, %s" % (vM, vM, vt2))
        A("v_mov_b32 %s, %s" % (vt2, vM))
        unp(0, 2); unp(0, 3)
        A("v_permlane32_swap_b32 %s, %s" % (vt2, vM))
        A("v_max_f32 %s, %s, %s" % (vM, vM, vt2))
        w0, w1 = "v120", "v122"
        A("v_sub_f32 %s, v%d, %s" % (w0, P + 2, vM))
        A("v_sub_f32 %s, v%d, %s" % (w1, P + 6, vM))
        A("v_exp_f32 %s, %s" % (w0, w0))
        A("v_exp_f32 %s, %s" % (w1, w1))
        unp(1, 0)
        den, tA, tB = "v126", "v124", "v123"
        A("v_add_f32 %s, %s, %s" % (den, w0, w1))
        unp(1, 1); unp(1, 2)
        A("v_add_f32_dpp %s, %s, %s row_ror:4 %s" % (den, den, den, DPP))
        unp(1, 3)
        A("v_pk_mul_f32 %s, %s, v[120:121] op_sel_hi:[1,0]" % (P2(U), P2(U)))
        A("v_add_f32_dpp %s, %s, %s row_ror:8 %s" % (den, den, den, DPP))
        A("v_pk_mul_f32 %s, %s, v[120:121] op_sel_hi:[1,0]" % (P2(U + 2), P2(U + 2)))
        A("v_pk_fma_f32 %s, %s, v[122:123], %s op_sel_hi:[1,0,1]" % (P2(U), P2(U + 4), P2(U)))
        A("v_pk_fma_f32 %s, %s, v[122:123], %s op_sel_hi:[1,0,1]" % (P2(U + 2), P2(U + 6), P2(U + 2)))
    A("v_mov_b32 %s, %s" % (tA, den))
    A("s_bitcmp0_b32 %s, 0" % sFAST)
    A("v_permlane32_swap_b32 v%d, v%d" % (U, U + 2))
    A("v_permlane32_swap_b32 v%d, v%d" % (U + 1, U + 3))
    A("v_permlane32_swap_b32 %s, %s" % (tA, den))
    A("v_pk_add_f32 %s, %s, %s" % (P2(U), P2(U), P2(U + 2)))
    A("v_add_f32 %s, %s, %s" % (den, den, tA))
    A("s_mov_b32 %s, %d" % (sCNT, o["spinmax"]))
    A("v_permlane16_swap_b32 v%d, v%d" % (U, U + 1))
    A("v_mov_b32 %s, %s" % (tA, den))
    A("v_add_f32 v%d, v%d, v%d" % (U, U, U + 1))
    A("s_nop 0")
    A("v_permlane16_swap_b32 %s, %s" % (tA, den))
    A("v_add_f32_dpp v%d, v%d, v%d row_ror:4 %s" % (U, U, U, DPP))
    A("v_add_f32 %s, %s, %s" % (den, den, tA))
    A("v_rcp_f32 %s, %s" % (den, den))
    A("v_add_f32_dpp v%d, v%d, v%d row_ror:8 %s" % (U, U, U, DPP))
    a0 = "v125"
    A("v_mul_f32 %s, v%d, %s" % (a0, U, den))
    A("v_cvt_pk_bf16_f32 %s, %s, %s" % (a0, a0, a0))
    if o.get("mockx"):
        GX, PXS = 120, VR
        A("v_mov_b32 v%d, %s" % (GX + 3, sTAG))
        A("s_cmp_gt_u32 %s, 1" % sW)
        A("v_mov_b32_dpp v%d, %s quad_perm:[0,0,2,2] %s" % (GX, a0, DPP))
        A("v_mov_b32_dpp v%d, %s quad_perm:[1,1,3,3] %s" % (GX + 1, a0, DPP))
        A("s_cselect_b64 exec, 0, 15")
        A("global_store_dwordx4 %s, v[%d:%d], %s sc1" % (vS3, GX, GX + 3, sWS))
        A("s_mov_b64 exec, -1")
        stamp(1)
        if o.get("tpos") == "x":
            for t_ in taft: A(t_)
        A("s_mov_b64 exec, 0xff")
        LB("L_pollx")
        A("global_load_dwordx4 v[%d:%d], %s, %s sc1" % (PXS, PXS + 3, vL3, sWS))
        A("s_sub_u32 %s, %s, 1" % (sCNT, sCNT))
        A("s_cbranch_scc1 L_end")
        A("s_waitcnt vmcnt(0)")
        A("v_cmp_ne_u32 vcc, %s, v%d" % (sTAG, PXS + 3))
        A("v_mov_b32 %s, v%d" % (a0, PXS))
        A("s_and_b64 exec, exec, vcc")
        A("s_cbranch_scc1 L_pollx")
        A("s_mov_b64 exec, -1")
        stamp(10)
        A("s_bitcmp0_b32 %s, 0" % sFAST)
        for a in range(2):
            mfma(Y, HA + 4 * a, DNR + 4 * a, None if a == 0 else Y)
        ndn_early = 2
    if o["g2"]:
        if o.get("g2x"):
            A("s_mov_b32 exec_lo, 0x000f000f")
            A("s_mov_b32 exec_hi, 0x000f000f")
        A("ds_write_b32 v165, %s offset:%d" % (a0, L_A))
        if o.get("g2x"): A("s_mov_b64 exec, -1")
        A("s_waitcnt lgkmcnt(0)")
        A("s_barrier")
    else:
        A("s_nop 1")
    WA = T
    for m in range(4):
        for r in range(4):
            A("v_and_b32_dpp v%d, %s, v%d row_newbcast:%d %s" % (WA + 4 * m + r, a0, MK + r, m, DPP))
        if m > 0:
            mfma(Y, WA + 4 * (m - 1), WOR + 4 * (m - 1), Y if (m > 1 or ndn_early) else None)
    if dnl:
        A("s_waitcnt vmcnt(0)")
        for a in range(ndn_early, 2):
            mfma(Y, HA + 4 * a, DNR + 4 * a, Y)
    else:
        if o["g2"]: LB("L_last_mfma")
        A("s_nop 1")
    mfma(Y, WA + 12, WOR + 12, Y)
    A("s_mov_b32 exec_hi, 0")
    if o["reuse"] and not o["g2"]:
        A("s_barrier")
        A("s_nop 5")
    else:
        A("s_nop 6")
    for k in range(4):
        A("v_perm_b32 v%d, v%d, %s, s%d" % (Y + k, Y + k, vTAG, 56 + k))
    publish(vS25, Y, "h25")
    stamp(8)
    sshot(2)
    def tail_g25():
        PS = T + 16
        A("s_cmp_lg_u32 %s, %d" % (sW, o["gw"]))
        A("s_cbranch_scc1 L_done")
        A("s_mov_b64 exec, -1")
        if o.get("ack25") == 1: A("s_waitcnt vmcnt(0)")
        NP = o["np25"]
        PK = [PS, PS + 8, WOR, WOR + 8, DNR]
        def ask(k):
            A("global_load_dwordx4 v[%d:%d], %s, %s sc1" % (PK[k], PK[k] + 3, vL25, sWS))
            A("global_load_dwordx4 v[%d:%d], v164, %s sc1" % (PK[k] + 4, PK[k] + 7, sWS))
        def look(k):
            A("s_waitcnt vmcnt(%d)" % (2 * NP - 1))
            for q in range(4): A("v_xor_b32 v%d, %s, v%d" % (P + q, TB[q], PK[k] + q))
            A("v_or3_b32 %s, v%d, v%d, v%d" % (tA, P, P + 1, P + 2))
            A("s_waitcnt vmcnt(%d)" % (2 * NP - 2))
            for q in range(4): A("v_xor_b32 v%d, %s, v%d" % (P + 4 + q, TB[q], PK[k] + 4 + q))
            A("v_or3_b32 %s, %s, v%d, v%d" % (tA, tA, P + 3, P + 4))
            A("v_or3_b32 %s, %s, v%d, v%d" % (tA, tA, P + 5, P + 6))
            A("v_or_b32_sdwa %s, %s, v%d dst_sel:DWORD dst_unused:UNUSED_PAD src0_sel:BYTE_0 src1_sel:BYTE_0" % (tA, tA, P + 7))
            A("v_cmp_ne_u32 vcc, 0, %s" % tA)
            A("s_and_b64 exec, exec, vcc")
        def masks():
            A("s_lshl_b32 s46, 0x01010101, %s" % sH)
            A("s_not_b32 s46, s46")
            A("s_mov_b32 s47, s46")
            if o["cq25"]:
                A("s_lshr_b32 s41, %s, 2" % sJ)
                A("s_and_b32 s41, s41, 6")
                A("s_bfe_u32 %s, %s, 0x10001" % (t0, sJ))
                A("s_or_b32 s41, s41, %s" % t0)
        if NP == 1:
            masks()
            LB("L_poll25")
            ask(0)
            A("s_sub_u32 %s, %s, 1" % (sCNT, sCNT))
            A("s_cbranch_scc1 L_end")
            look(0)
            A("s_cbranch_scc1 L_poll25")
        else:
            pre = o.get("pre25", 1)
            for k in range(NP):
                if k == pre:
                    if o.get("ack25") == 2: A("s_waitcnt vmcnt(%d)" % (2 * pre))
                    for _ in range(o.get("stag25", 0)): A("s_nop 7")
                ask(k)
            masks()
            LB("L_poll25")
            for k in range(NP):
                look(k)
                A("s_cbranch_scc0 L_got25")
                ask(k)
            A("s_sub_u32 %s, %s, 1" % (sCNT, sCNT))
            A("s_cbranch_scc0 L_poll25")
            A("s_endpgm")
            LB("L_got25")
        A("s_mov_b64 exec, -1")
        stamp(9)
        if o.get("ampm"): A("s_memrealtime s[86:87]")
        x_, y_ = "v%d" % P, "v%d" % (P + 1)
        A("v_pk_add_f32 %s, %s, %s" % (P2(P), P2(P), P2(P + 4)))
        A("v_pk_add_f32 %s, %s, %s" % (P2(P + 2), P2(P + 2), P2(P + 6)))
        if o["cq25"]:
            A("s_cmp_eq_u32 s41, %s" % sH)
            A("s_nop 0")
        else:
            A("s_lshr_b32 %s, %s, 2" % (t0, sJ) if o["finhi"] else "s_and_b32 %s, %s, 7" % (t0, sJ))
            A("s_cmp_eq_u32 %s, %s" % (t0, sH))
        A("v_permlane32_swap_b32 v%d, v%d" % (P, P + 2))
        A("v_permlane32_swap_b32 v%d, v%d" % (P + 1, P + 3))
        A("v_pk_add_f32 %s, %s, %s" % (P2(P), P2(P), P2(P + 2)))
        A("v_mov_b32 v%d, %s" % (P + 3, sTAG))
        A("s_mov_b32 s44, 0xff")
        for rot_ in (4, 8):
            A("v_add_f32_dpp %s, %s, %s row_ror:%d %s" % (x_, x_, x_, rot_, DPP))
            A("v_add_f32_dpp %s, %s, %s row_ror:%d %s" % (y_, y_, y_, rot_, DPP))
            if rot_ == 4: A("s_mov_b32 s45, s44")
        A("v_mov_b32 v%d, %s" % (P + 4, x_))
        A("v_mov_b32 v%d, %s" % (P + 5, y_))
        A("s_nop 0")
        A("v_permlane16_swap_b32 v%d, %s" % (P + 4, x_))
        A("v_permlane16_swap_b32 v%d, %s" % (P + 5, y_))
        A("v_pk_add_f32 %s, %s, %s" % (P2(P), P2(P), P2(P + 4)))
        A("s_cbranch_scc1 L_final")
        A("s_mov_b64 exec, s[44:45]")
        A("global_store_dwordx4 %s, v[%d:%d], %s sc1" % (vS3, P, P + 3, sWS))
        if o.get("clean"):
            C("the slots just read are dead: push them out of the cache now rather than at the end of the launch")
            A("s_mov_b64 exec, -1")
            for q in range(4): A("v_mov_b32 v%d, %s" % (P + 8 + q, sTAG))
            if o["clean"] & 2:
                A("s_bitcmp1_b32 %s, 0" % sJ)
                A("s_cbranch_scc1 L_done")
            if o["clean"] & 4:
                A("s_mov_b32 exec_lo, 0x11111111")
                A("s_mov_b32 exec_hi, 0x11111111")
            A("global_store_dwordx4 %s, v[%d:%d], %s sc1" % (vL25, P + 8, P + 11, sWS))
            A("global_store_dwordx4 v164, v[%d:%d], %s sc1" % (P + 8, P + 11, sWS))
        A("s_branch L_done")
        LB("L_final")
        if o.get("stfin"): stamp(1)
        if o.get("xstag"): A("global_load_dword %s, %s, %s nt" % (vXP, vXF, sX))
        A("s_mov_b64 exec, s[46:47]")
        NP = o["np3"]
        PS = VR
        X = P + 4
        A("global_load_dwordx4 v[%d:%d], %s, %s sc1" % (PS, PS + 3, vL3, sWS))
        A("s_mov_b64 exec, -1")
        A("s_mov_b32 %s, %d" % (sCNT, o["spinmax"]))
        for q in range(4):
            for r in range(2):
                A("v_mov_b32_dpp v%d, v%d row_newbcast:%d row_mask:0x%x bank_mask:0x%x" % (X + r, P + r, q, (5, 10)[q >> 1], (3, 12)[q & 1]))
        if not o.get("xstag"):
            A("v_lshlrev_b32 v%d, 16, %s" % (P, vXP))
            A("v_and_b32 v%d, %s, %s" % (P + 1, t1, vXP))
            A("v_pk_add_f32 %s, %s, %s" % (P2(X), P2(X), P2(P)))
        if o["efull"]:
            A("v_lshlrev_b32 %s, 4, v0" % tA)
            for q in range(4): A("v_mov_b32 v%d, %s" % (P + 8 + q, sTAG))
        A("s_mov_b32 s44, 0x01010101")
        A("s_mov_b32 s45, s44")
        A("s_mov_b64 exec, s[46:47]")
        for k in range(1, NP):
            if o.get("xstag") and k == 1: A("s_waitcnt vmcnt(1)")
            for _ in range(o.get("stag3", 0) + (2 if k > 1 and o.get("stag3") else 0)): A("s_nop 7")
            A("global_load_dwordx4 v[%d:%d], %s, %s sc1" % (PS + 4 * k, PS + 4 * k + 3, vL3, sWS))
        LB("L_poll3")
        for k in range(NP):
            A("s_waitcnt vmcnt(%d)" % (NP - 1))
            A("v_cmp_ne_u32 vcc, %s, v%d" % (sTAG, PS + 4 * k + 3))
            A("v_mov_b32 v%d, v%d" % (X, PS + 4 * k))
            A("v_mov_b32 v%d, v%d" % (X + 1, PS + 4 * k + 1))
            A("s_and_b64 exec, exec, vcc")
            A("s_cbranch_scc0 L_got3")
            A("global_load_dwordx4 v[%d:%d], %s, %s sc1" % (PS + 4 * k, PS + 4 * k + 3, vL3, sWS))
        A("s_sub_u32 %s, %s, 1" % (sCNT, sCNT))
        A("s_cbranch_scc0 L_poll3")
        A("s_endpgm")
        LB("L_got3")
        stamp(10)
        if o.get("ampf"):
            A("s_waitcnt vmcnt(0)")
            A("s_memrealtime s[86:87]")
        A("s_mov_b64 exec, -1")
        x_, y_ = "v%d" % X, "v%d" % (X + 1)
        fl = ["s_cmp_lg_u32 s2, 0", "s_nop 0"]
        if o.get("xstag"): fl = ["v_lshlrev_b32 %s, 16, %s" % (tA, vXP), "v_and_b32 %s, %s, %s" % (tB, t1, vXP)]
        for pat in ("quad_perm:[1,0,3,2]", "quad_perm:[2,3,0,1]", "row_half_mirror"):
            A("v_add_f32_dpp %s, %s, %s %s %s" % (x_, x_, x_, pat, DPP))
            A("v_add_f32_dpp %s, %s, %s %s %s" % (y_, y_, y_, pat, DPP))
            if fl: A(fl.pop(0))
        if o.get("xstag"):
            A("v_add_f32 %s, %s, %s" % (x_, x_, tA))
            A("v_add_f32 %s, %s, %s" % (y_, y_, tB))
            A("s_cmp_lg_u32 s2, 0")
        A("v_cvt_pk_bf16_f32 %s, %s, %s" % (x_, x_, y_))
        A("s_mov_b64 exec, s[44:45]")
        A("global_store_dword %s, %s, %s %s" % (vXF, x_, sOUT, o.get("ofl", "")))
        if o.get("ampf"):
            A("s_waitcnt vmcnt(0)")
            A("s_memrealtime s[88:89]")
            A("s_waitcnt lgkmcnt(0)")
            A("s_sub_u32 s88, s88, s86")
            A("s_mul_i32 s88, s88, 40")
            A("s_min_u32 s88, s88, 20000")
            A("s_add_u32 s88, s88, 1500")
            LB("L_fspin")
            A("s_memrealtime s[92:93]")
            A("s_waitcnt lgkmcnt(0)")
            A("s_sub_u32 s92, s92, s90")
            A("s_cmp_lt_u32 s92, s88")
            A("s_cbranch_scc1 L_fspin")
            A("s_cmp_lg_u32 s2, 0")
        A("s_cbranch_scc1 L_done")
        C("the next launch must not mistake this launch's hand-off words for its own")
        if o["efull"]:
            A("s_mov_b64 exec, 0xff")
            A("global_store_dwordx4 %s, v[%d:%d], %s %s" % (tA, P + 8, P + 11, sWS, o.get("efl", "")))
        else:
            A("s_mov_b64 exec, 1")
            A("v_mov_b32 %s, 0" % tA)
            A("v_mov_b32 %s, %s" % (tB, sTAG))
            A("global_store_dword %s, %s, %s %s" % (tA, tB, sWS, o.get("efl", "")))
    nkeep = len(L)
    NP = o["np25"]
    PS = T + 16
    if o.get("ack25") == 1: A("s_waitcnt vmcnt(0)")
    sshot(8)
    for _ in range(o.get("dly25", 0)): A("s_nop 7")
    for k in range(NP):
        if k == 1 and o.get("ack25") == 2: A("s_waitcnt vmcnt(1)")
        if k == 1:
            for _ in range(o.get("stag25", 0)): A("s_nop 7")
        A("global_load_dwordx4 v[%d:%d], %s, %s sc1" % (PS + 4 * k, PS + 4 * k + 3, vL25, sWS))
    sshot(4)
    LB("L_poll25")
    for k in range(NP):
        A("s_waitcnt vmcnt(%d)" % (NP - 1))
        for q in range(4):
            A("v_xor_b32 v%d, %s, v%d" % (P + q, TB[q], PS + 4 * k + q))
        A("v_or3_b32 %s, v%d, v%d, v%d" % (tA, P, P + 1, P + 2))
        A("v_or_b32_sdwa %s, %s, v%d dst_sel:DWORD dst_unused:UNUSED_PAD src0_sel:BYTE_0 src1_sel:BYTE_0" % (tA, tA, P + 3))
        A("v_cmp_ne_u32 vcc, 0, %s" % tA)
        if o["mask25"]:
            A("s_and_b64 exec, exec, vcc")
            A("s_cbranch_scc0 L_got25")
        else:
            A("s_cbranch_vccz L_got25")
        A("global_load_dwordx4 v[%d:%d], %s, %s sc1" % (PS + 4 * k, PS + 4 * k + 3, vL25, sWS))
    A("s_sub_u32 %s, %s, 1" % (sCNT, sCNT))
    A("s_cbranch_scc0 L_poll25")
    A("s_endpgm")
    LB("L_got25")
    A("s_mov_b64 exec, -1")
    stamp(9)
    if o.get("ampm"): A("s_memrealtime s[86:87]")
    x_, y_ = "v%d" % P, "v%d" % (P + 1)
    A("v_permlane16_swap_b32 v%d, v%d" % (P, P + 2))
    A("v_permlane16_swap_b32 v%d, v%d" % (P + 1, P + 3))
    A("v_add_f32 %s, %s, v%d" % (x_, x_, P + 2))
    A("v_add_f32 %s, %s, v%d" % (y_, y_, P + 3))
    fl = ["v_mov_b32 v%d, %s" % (P + 3, sTAG), "s_and_b32 %s, %s, 7" % (t0, sJ), "s_cmp_eq_u32 %s, %s" % (t0, sH), "s_nop 0"]
    if o["lastfin"]: fl = ["v_mov_b32 v%d, %s" % (P + 3, sTAG), "s_bitcmp1_b32 %s, 1" % sFAST, "s_nop 0", "s_nop 0"]
    for rot_ in (1, 2, 4, 8):
        A(fl.pop(0))
        A("v_add_f32_dpp %s, %s, %s row_ror:%d %s" % (x_, x_, x_, rot_, DPP))
        A("v_add_f32_dpp %s, %s, %s row_ror:%d %s" % (y_, y_, y_, rot_, DPP))
    def old_final():
        if o.get("ewg"): A("s_xor_b32 s63, s2, %d" % o["ewg"])
        if o.get("otouch"):
            A("global_load_dword v158, %s, %s" % (vXF, sOUT))
        if o.get("xstag"): A("global_load_dword %s, %s, %s %s" % (vXP, vXF, sX, o["xstag"] if isinstance(o["xstag"], str) else "nt"))
        A("s_lshl_b32 %s, 0x10001, %s" % (t0, sH))
        A("s_andn2_b32 exec_lo, 0xff00ff, %s" % t0)
        A("s_mov_b32 exec_hi, 0")
        A("s_mov_b32 %s, %d" % (sCNT, o["spinmax"]))
        NP = o["np3"]
        PS = VR
        if o["lastfin"] == 2 and o.get("sshot", 2):
            A("s_waitcnt lgkmcnt(0)")
            for k in range(1, 8): A("s_xor_b32 s%d, s%d, %s" % (12 + k, 12 + k, sTAG))
            A("s_or_b32 s13, s13, s14")
            A("s_or_b64 s[16:17], s[16:17], s[18:19]")
            A("s_or_b32 s13, s13, s15")
            A("s_or_b32 s16, s16, s17")
            if o["stamps"]: A("s_memrealtime s[68:69]")
            A("s_or_b32 s13, s13, s16")
            if o["stamps"]: A("s_cselect_b32 s66, 1, 2")
            A("s_cbranch_scc1 L_ask3")
            A("global_load_dwordx4 v[%d:%d], %s, %s %s" % (PS, PS + 3, vL3, sWS, o.get("hfl", "")))
            A("s_branch L_poll3")
            LB("L_ask3")
        for k in range(NP):
            if o.get("xstag") and k == 1: A("s_waitcnt vmcnt(1)")
            A("global_load_dwordx4 v[%d:%d], %s, %s sc1" % (PS + 4 * k, PS + 4 * k + 3, vL3, sWS))
        LB("L_poll3")
        for k in range(NP):
            A("s_waitcnt vmcnt(%d)" % (NP - 1))
            A("v_cmp_ne_u32 vcc, %s, v%d" % (sTAG, PS + 4 * k + 3))
            A("v_mov_b32 v%d, v%d" % (P, PS + 4 * k))
            A("v_mov_b32 v%d, v%d" % (P + 1, PS + 4 * k + 1))
            A("s_and_b64 exec, exec, vcc")
            A("s_cbranch_scc0 L_got3")
            A("global_load_dwordx4 v[%d:%d], %s, %s sc1" % (PS + 4 * k, PS + 4 * k + 3, vL3, sWS))
        A("s_sub_u32 %s, %s, 1" % (sCNT, sCNT))
        A("s_cbranch_scc0 L_poll3")
        A("s_endpgm")
        LB("L_got3")
        stamp(10)
        A("s_mov_b32 exec_lo, -1")
        A("v_lshlrev_b32 %s, 16, %s" % (tA, vXP))
        A("v_and_b32 %s, %s, %s" % (tB, t1, vXP))
        for pat in ("quad_perm:[1,0,3,2]", "quad_perm:[2,3,0,1]", "row_half_mirror"):
            A("v_add_f32_dpp %s, %s, %s %s %s" % (x_, x_, x_, pat, DPP))
            A("v_add_f32_dpp %s, %s, %s %s %s" % (y_, y_, y_, pat, DPP))
            if pat != "row_half_mirror": A("s_nop 0")
        A("v_add_f32 %s, %s, %s" % (x_, x_, tA))
        A("v_add_f32 %s, %s, %s" % (y_, y_, tB))
        if o.get("perturb"):
            import struct
            bits = struct.unpack("<I", struct.pack("<f", float(o["perturb"])))[0]
            if o.get("pall"):
                A("v_mul_f32 %s, 0x%x, %s" % (x_, bits, x_)); A("v_mul_f32 %s, 0x%x, %s" % (y_, bits, y_))
            else:
                A("s_or_b32 %s, s2, %s" % (t0, sW))
                A("s_cselect_b32 %s, 0, 0x%x" % (t0, bits))
                A("v_add_f32 %s, %s, %s" % (x_, t0, x_))
        A("v_cvt_pk_bf16_f32 %s, %s, %s" % (x_, x_, y_))
        A("s_mov_b64 exec, 0x10001")
        A("global_store_dword %s, %s, %s %s" % (vXF, x_, sOUT, o.get("ofl", "")))
        A("s_or_b32 %s, %s, %s" % (t0, sJ if o["lastfin"] else "s2" if not o.get("ewg") else "s63", sW))
        A("s_cbranch_scc1 L_done")
        C("the next launch must not mistake this launch's hand-off words for its own")
        A("v_mov_b32 %s, 0" % tA)
        A("v_mov_b32 %s, %s" % (tB, sTAG))
        A("global_store_dword %s, %s, %s %s" % (tA, tB, sWS, o.get("efl", "")))
    def diag_end():
        if o.get("ampm"):
            A("s_or_b32 %s, %s, %s" % (t0, sJ, sW))
            A("s_cbranch_scc1 L_nom")
            A("s_mov_b64 exec, -1")
            A("s_waitcnt lgkmcnt(0)")
            A("s_lshl_b32 %s, %s, 2" % (t0, sH))
            A("v_mov_b32 v2, %s" % t0)
            A("s_or_b32 s86, s86, 1")
            A("v_mov_b32 v3, s86")
            A("global_store_dword v2, v3, s[24:25] offset:192 sc1")
            A("s_cmp_lg_u32 s2, 0")
            A("s_cbranch_scc1 L_nom")
            A("v_and_b32 v2, 7, v0")
            A("v_lshlrev_b32 v2, 2, v2")
            A("s_movk_i32 s85, 1000")
            LB("L_mpoll")
            A("global_load_dword v3, v2, s[24:25] offset:192 sc1")
            A("global_load_dword v4, v2, s[24:25] offset:128 sc1")
            A("s_sub_u32 s85, s85, 1")
            A("s_cbranch_scc1 L_nom")
            A("s_waitcnt vmcnt(0)")
            A("v_cmp_eq_u32 vcc, 0, v3")
            A("s_cbranch_vccnz L_mpoll")
            for g_ in range(8): A("v_readlane_b32 s%d, v3, %d" % (64 + g_, g_))
            for g_ in range(8): A("v_readlane_b32 s%d, v4, %d" % (72 + g_, g_))
            A("s_nop 3")
            for g_ in range(16): A("s_sub_u32 s%d, s%d, s90" % (64 + g_, 64 + g_))
            md = o["ampm"]
            if md >= 10:
                for g_ in range(8): A("s_mov_b32 s%d, s%d" % (64 + g_, 72 + g_))
                md -= 10
            key = {1: 64, 2: 72}.get(md)
            A("s_mov_b32 s80, s64")
            A("s_mov_b32 s81, s%d" % (key or 64))
            A("s_mov_b32 s82, 0x80000000")
            for g_ in range(1, 8):
                if key:
                    A("s_cmp_gt_i32 s%d, s81" % (key + g_))
                    A("s_cselect_b32 s83, s80, s%d" % (64 + g_))
                    A("s_cselect_b32 s80, s%d, s80" % (64 + g_))
                    A("s_cselect_b32 s81, s%d, s81" % (key + g_))
                    A("s_max_i32 s82, s82, s83")
                else:
                    A("s_max_i32 s82, s82, s%d" % (64 + g_))
            A("s_sub_i32 s88, s80, s82")
            A("s_add_i32 s88, s88, 100")
            A("s_max_i32 s88, s88, 0")
            A("s_mul_i32 s88, s88, 20")
            A("s_min_u32 s88, s88, 20000")
            A("s_add_u32 s88, s88, 1500")
            LB("L_mspin")
            A("s_memrealtime s[92:93]")
            A("s_waitcnt lgkmcnt(0)")
            A("s_sub_u32 s92, s92, s90")
            A("s_cmp_lt_u32 s92, s88")
            A("s_cbranch_scc1 L_mspin")
            LB("L_nom")
        if o.get("lateh") is not None:
            A("s_or_b32 %s, s2, %s" % (t0, sW))
            A("s_cbranch_scc1 L_nolate")
            A("s_mov_b64 exec, -1")
            A("v_and_b32 v2, 7, v0")
            A("v_lshlrev_b32 v2, 2, v2")
            A("global_load_dword v3, v2, s[24:25] sc1")
            A("s_waitcnt vmcnt(0)")
            for g_ in range(8): A("v_readlane_b32 s%d, v3, %d" % (64 + g_, g_))
            A("s_nop 3")
            for g_ in range(8): A("s_sub_u32 s%d, s%d, s90" % (64 + g_, 64 + g_))
            A("s_mov_b32 s72, s64")
            for g_ in range(1, 8): A("s_min_i32 s72, s72, s%d" % (64 + g_))
            if o["lateh"] == 8:
                A("s_mov_b32 s88, s64")
                for g_ in range(1, 8): A("s_max_i32 s88, s88, s%d" % (64 + g_))
            else:
                A("s_mov_b32 s88, s%d" % (64 + o["lateh"]))
            A("s_sub_u32 s88, s88, s72")
            A("s_mul_i32 s88, s88, 20")
            A("s_min_u32 s88, s88, 20000")
            A("s_add_u32 s88, s88, 1500")
            A("s_add_u32 s88, s88, s72")
            LB("L_latespin")
            A("s_memrealtime s[92:93]")
            A("s_waitcnt lgkmcnt(0)")
            A("s_sub_u32 s92, s92, s90")
            A("s_cmp_lt_u32 s92, s88")
            A("s_cbranch_scc1 L_latespin")
            LB("L_nolate")
        amp_end("")
        if o.get("pad"):
            LB("L_padspin")
            A("s_memrealtime s[92:93]")
            A("s_waitcnt lgkmcnt(0)")
            A("s_sub_u32 s92, s92, s90")
            A("s_cmp_lt_u32 s92, %d" % o["pad"])
            A("s_cbranch_scc1 L_padspin")
    if o.get("mockx"):
        A("v_lshlrev_b32 %s, 16, %s" % (tA, vXP))
        A("v_and_b32 %s, %s, %s" % (tB, t1, vXP))
        A("v_add_f32 %s, %s, %s" % (x_, x_, tA))
        A("v_add_f32 %s, %s, %s" % (y_, y_, tB))
        A("v_cvt_pk_bf16_f32 %s, %s, %s" % (x_, x_, y_))
        A("s_mov_b64 exec, 0x10001")
        A("s_cbranch_scc0 L_done")
        A("global_store_dword %s, %s, %s" % (vXF, x_, sOUT))
        A("s_or_b32 %s, s2, %s" % (t0, sW))
        A("s_cbranch_scc1 L_done")
        A("v_mov_b32 %s, 0" % tA)
        A("v_mov_b32 %s, %s" % (tB, sTAG))
        A("global_store_dword %s, %s, %s" % (tA, tB, sWS))
        A("s_branch L_done")
    A("s_cbranch_scc1 L_final")
    A("s_mov_b64 exec, 0x%x" % (0x30003 if o["rep3"] or o["vote"] else 0x10001))
    A("global_store_dwordx4 %s, v[%d:%d], %s sc1" % (vS3, P, P + 3, sWS))
    if o.get("wb"):
        A("s_or_b32 %s, %s, %s" % (t0, sW, sJ) if o["wb"] == 1 else "s_and_b32 %s, %s, 3" % (t0, sW))
        A("s_cmp_lg_u32 %s, %d" % (t0, 8 if o["wb"] == 1 else 0))
        A("s_cbranch_scc1 L_done")
        A("buffer_wbl2 sc1")
    A("s_branch L_done")
    LB("L_final")
    if o["lastfin"] == 1:
        A("s_mov_b64 exec, 0x10001")
        A("ds_write_b128 %s, v[%d:%d] offset:%d" % (vL3, P, P + 3, L_FIN))
        A("s_waitcnt lgkmcnt(0)")
    else:
        old_final()
    if o["g25"]:
        del L[nkeep:]
        tail_g25()
    LB("L_done")
    diag_end()
    dump_stamps()
    A("s_endpgm")
    for name, addr, g in tails:
        LB("L_slow_%s" % name)
        A("global_store_dwordx4 %s, v[%d:%d], %s sc1" % (addr, g, g + 3, sWS))
        A("s_branch L_back_%s" % name)
    if o["lastfin"] == 1: unit_final()
    LB("L_end")
    A("s_endpgm")
    head = HEADER.format(lds=o.get("lds", LDS_BYTES), k=KNAME); foot = FOOTER.format(k=KNAME, vg=o.get("vg", 168), sg=96)
    if o["align"]: L = align_runs(L, head, foot, o.get("minrun", 3), o.get("nopmin", 6))
    return head + "\n".join(L) + foot


if __name__ == "__main__":
    kw = {}
    out = "parallel_sum__sliding_block_cached__swiglu_ffn__decode.s"
    for a in sys.argv[1:]:
        k, v = a.split("=", 1)
        if k == "out": out = v; continue
        try: v = int(v) if k != "nlv" else v
        except ValueError: pass
        kw[k] = v
    open(out, "w").write(gen(**kw))
```

```python
import sys

KNAME = "parallel_sum__sliding_block_cached__swiglu_ffn__decode_kernel"

HEADER = """; Kernarg layout for this problem (96 bytes, ptrs only, base s[0:1]):
;   offset  72: d_out     shape=(1, 1, 512) dtype=bfloat16
; @launch grid=(256,1,1) block=(320,1,1) lds={lds}
;
; out = x + attn(ln(x)) @ wo + swiglu(ln(x)) @ w_down in one launch, one workgroup per CU.
;               hand-off 2 regroups the 32 partial outputs per row (merged against the true maximum), wo / w_down rows,
.amdgcn_target "amdgcn-amd-amdhsa--gfx950"
.text
.globl {k}
.p2align 8
.type {k},@function
{k}:
"""
FOOTER = """
.section .rodata,"a"
.p2align 6
.amdhsa_kernel {k}
  .amdhsa_next_free_vgpr {vg}
  .amdhsa_next_free_sgpr {sg}
  .amdhsa_accum_offset {vg}
  .amdhsa_group_segment_fixed_size 0
  .amdhsa_kernarg_size 96
  .amdhsa_user_sgpr_count 2
  .amdhsa_user_sgpr_kernarg_segment_ptr 1
  .amdhsa_system_sgpr_workgroup_id_x 1
.end_amdhsa_kernel
"""

MB1A = 0x40000
MB1B = 0x80000
MB2 = 0x100000
MB25 = 0x400000
MB3 = 0x1C0000
STAMPS = 0x10000000
L_WQ = 0
L_FF = 16384
L_XN = 32768
L_Q = 33792
L_H = 34816
L_FLAG = 34848
L_VOTE = 34864
L_ML = 34880
L_TKT = 35008
L_A = 35008
L_FIN = L_XN
L_O = 35072
L_K = L_O + 8192
L_K = (L_K + 1023) // 1024 * 1024
LDS_BYTES = L_K + 32768
TAGC = 0x9E3779B9
LOG2E = 0x3FB8AA3B
SCALE = 0x3DB504F3
EPS = 0x3727C5AC
DPP = "row_mask:0xf bank_mask:0xf"

DEF = dict(stamps=False, spinmax=200000, WK=5, W=6, Wtail=8, b0pos=45, nt="nt", pretouch="k", atries=24,
           prefetch=True, b2=7, ntail0=0, tlag=0, mask2=False, pt1=True, rotm=4, rep3=False, tsp="a", auxearly=True, hlate=False, vote=True, np25=2, np3=5, ack25=2, align=1, unr=2, mask25=True, lperm=0, nlv="43434343", reuse=1, rp=2176, bonly=0, bdefer=4, bskip=1, lastfin=0, npu=1, stag=0, g25=1, gw=2, pt3=1, finhi=1, efull=1, stouch=0, cq2=0, cq25=0, vlate=1, idearly=0, adap="", Wa=6, stl=15, tw=0, stl2=0, stw=15, est=0, perm="", hrot=0, np2=0, g2=2, gw2=0)


def _sizes(text):
    import subprocess, tempfile, os, re
    d = tempfile.mkdtemp()
    open(d + "/a.s", "w").write(text)
    subprocess.run(["clang", "-x", "assembler", "-target", "amdgcn-amd-amdhsa", "-mcpu=gfx950", "-c", d + "/a.s", "-o", d + "/a.o"], check=True)
    out = subprocess.run(["llvm-objdump", "-d", "--mcpu=gfx950", d + "/a.o"], capture_output=True, text=True).stdout
    r = []
    for ln in out.split("\n"):
        m = re.search(r"^\s+(\S+).*// ([0-9A-F]{12}): ((?:[0-9A-F]{8} ?)+)", ln)
        if m: r.append((m.group(1), 4 * len(m.group(3).split())))
    return r


def align_runs(L, head, foot, minrun=3, nopmin=6):
    ins = [i for i, l in enumerate(L) if l.startswith("    ") and not l.strip().startswith(";")]
    sz = _sizes(head + "\n".join(L) + foot)
    assert len(sz) == len(ins), (len(sz), len(ins))
    size = {i: s_[1] for i, s_ in zip(ins, sz)}
    mn = {i: s_[0] for i, s_ in zip(ins, sz)}
    out = list(L); extra = {}
    off = 0; k = 0
    while k < len(ins):
        i = ins[k]
        if size[i] == 8 and off % 8 == 4:
            run = 0
            while k + run < len(ins) and size[ins[k + run]] == 8: run += 1
            if run >= minrun:
                b = k - 1; done = False
                while b >= 0 and size[ins[b]] == 4:
                    j = ins[b]
                    if mn[j] == "s_nop" and int(out[j].split()[1]) >= 1:
                        out[j] = "    s_nop 0\n    s_nop %d" % (int(out[j].split()[1]) - 1)
                        size[j] = 8; off += 4; done = True
                        break
                    if mn[j].endswith("_e32") and not mn[j].startswith(("v_readfirstlane", "v_permlane")):
                        op = out[j].split()[0]
                        out[j] = out[j].replace(op, op.replace("_e32", "") + "_e64", 1)
                        size[j] = 8; off += 4; done = True
                        break
                    b -= 1
                if not done and run >= nopmin and k > 0 and not mn[ins[k - 1]].startswith(("s_branch", "s_endpgm")):
                    extra[i] = True; off += 4; done = True
                if not done and k > 0 and mn[ins[k - 1]].startswith(("s_branch", "s_endpgm")):
                    extra[ins[k - 1] + 1] = True; off += 4
            for q in range(run): off += 8
            k += run
            continue
        off += size[i]; k += 1
    res = []
    for i, l in enumerate(out):
        if i in extra: res.append("    s_nop 0")
        res.append(l)
    return res


def gen(**kw):
    o = dict(DEF); o.update(kw)
    MB3 = o.get("mb3", globals()["MB3"])
    if not o["g25"]: o.update(pt3=0, np25=1, ack25=1, np3=1, g2=0)
    L = []
    def A(s): L.append("    " + s)
    def LB(s): L.append(s + ":")
    def C(s): L.append("    ; " + s)
    nt = o["nt"]
    NSTAMP = 12
    role = ["U"]
    def stamp(i):
        if o.get("amp") == "%s%d" % (role[0], i): A("s_memrealtime s[88:89]" if not o.get("cyc") else "s_memtime s[88:89]")
        if o.get("ampg") == "%s%d" % (role[0], i): A("s_memrealtime s[86:87]")
        if o.get("amp0") == "%s%d" % (role[0], i): A("s_memrealtime s[86:87]" if not o.get("cyc") else "s_memtime s[86:87]")
        if o["stamps"] and (i in (0, 11) or o.get("sel") is None or ("%s%d" % (role[0], i)) in o["sel"].split(",")):
            A("s_memrealtime s[%d:%d]" % (64 + 2 * i, 65 + 2 * i))
    def mfma(d, a, b, c):
        A("v_mfma_f32_16x16x32_bf16 v[%d:%d], v[%d:%d], v[%d:%d], %s" % (d, d + 3, a, a + 3, b, b + 3, "0" if c is None else "v[%d:%d]" % (c, c + 3)))
    def mfma16(d, a, b, c):
        A("v_mfma_f32_16x16x16_bf16 v[%d:%d], v[%d:%d], v[%d:%d], %s" % (d, d + 3, a, a + 1, b, b + 1, "0" if c is None else "v[%d:%d]" % (c, c + 3)))
    def allred(v, tmp, op, which):
        A("v_mov_b32 %s, %s" % (tmp, v))
        A("s_nop 1")
        A("v_permlane%d_swap_b32 %s, %s" % (which, tmp, v))
        A("%s %s, %s, %s" % (op, v, v, tmp))
    sX, sK, sV, sWQ, sWO, sG, sU, sDN, sOUT, sWS = "s[4:5]", "s[6:7]", "s[8:9]", "s[10:11]", "s[12:13]", "s[16:17]", "s[18:19]", "s[20:21]", "s[22:23]", "s[26:27]"
    sW, sH, sJ, sTAG, sXCC, sCNT, sFAST = "s30", "s31", "s32", "s33", "s34", "s35", "s36"
    t0, t1, t2, t3 = "s37", "s38", "s39", "s40"
    def dump_stamps():
        if not o["stamps"]: return
        if role[0] == "U" and o.get("sel") is not None and "U" not in o["sel"]: return
        A("s_mov_b64 exec, 1")
        if o.get("endwait"): A("s_waitcnt vmcnt(0)")
        stamp(11)
        A("s_waitcnt lgkmcnt(0)")
        A("s_mul_i32 %s, s2, 5" % t0)
        A("s_add_u32 %s, %s, %s" % (t0, t0, sW))
        A("s_lshl_b32 %s, %s, 7" % (t0, t0))
        A("s_add_u32 %s, %s, 0x%x" % (t0, t0, STAMPS))
        A("v_mov_b32 v2, %s" % t0)
        for i in range(NSTAMP):
            A("v_mov_b32 v3, s%d" % (64 + 2 * i))
            A("global_store_dword v2, v3, %s offset:%d" % (sWS, 4 * i))
        A("v_mov_b32 v3, %s" % ("s63" if role[0] == "U" and o["vote"] else sCNT))
        A("global_store_dword v2, v3, %s offset:%d" % (sWS, 4 * NSTAMP))
        if o.get("dbgfail"):
            for q_, r_ in enumerate(("s84", "s62", "s63")):
                A("v_mov_b32 v3, %s" % r_)
                A("global_store_dword v2, v3, %s offset:%d" % (sWS, 4 * NSTAMP + 8 + 4 * q_))
        A("s_getreg_b32 %s, hwreg(HW_REG_HW_ID)" % t1)
        A("v_mov_b32 v3, %s" % t1)
        A("global_store_dword v2, v3, %s offset:%d" % (sWS, 4 * NSTAMP + 4))

    def amp_end(sfx):
        if o.get("ampg"):
            A("s_waitcnt vmcnt(0) lgkmcnt(0)")
            A("s_memrealtime s[88:89]")
            A("s_mov_b64 exec, -1")
            A("v_and_b32 v2, 7, v0")
            A("v_lshlrev_b32 v2, 2, v2")
            A("global_load_dword v3, v2, s[24:25] offset:128 sc1")
            A("s_waitcnt vmcnt(0) lgkmcnt(0)")
            for g_ in range(8): A("v_readlane_b32 s%d, v3, %d" % (64 + g_, g_))
            A("s_nop 3")
            if o["ampg"] != 1:
                for g_ in range(8): A("s_sub_u32 s%d, s86, s%d" % (64 + g_, 64 + g_))
                for g_ in range(1, 8): A("s_max_i32 s64, s64, s%d" % (64 + g_))
                A("s_sub_u32 s88, s86, s64")
                A("s_mul_i32 s64, s64, 10")
            else:
                for g_ in range(8): A("s_sub_u32 s%d, s88, s%d" % (64 + g_, 64 + g_))
                for g_ in range(1, 8): A("s_max_i32 s64, s64, s%d" % (64 + g_))
                A("s_mul_i32 s64, s64, 9")
            A("s_min_u32 s64, s64, 20000")
            A("s_add_u32 s64, s64, 1500")
            LB("L_ampgspin" + sfx)
            A("s_memrealtime s[92:93]")
            A("s_waitcnt lgkmcnt(0)")
            A("s_sub_u32 s92, s92, s88")
            A("s_cmp_lt_u32 s92, s64")
            A("s_cbranch_scc1 L_ampgspin" + sfx)
        if o.get("amp"):
            if o["amp"] == "end": A("s_memrealtime s[88:89]")
            A("s_waitcnt lgkmcnt(0)")
            A("s_sub_u32 s88, s88, %s" % ("s86" if o.get("amp0") else "s90"))
            A("s_mul_i32 s88, s88, %d" % o.get("ampk", 10))
            A("s_min_u32 s88, s88, 20000")
            A("s_add_u32 s88, s88, 1500")
            LB("L_ampspin" + sfx)
            A("s_memrealtime s[92:93]")
            A("s_waitcnt lgkmcnt(0)")
            A("s_sub_u32 s92, s92, s90")
            A("s_cmp_lt_u32 s92, s88")
            A("s_cbranch_scc1 L_ampspin" + sfx)
    nlv = [int(c) for c in str(o["nlv"])]
    assert len(nlv) == 8 and sum(nlv) == 28 and min(nlv) >= 0 and max(nlv) <= 4
    LUT_d = sum((4 - n) << (4 * i) for i, n in enumerate(nlv))
    LUT_D = sum((4 * i - sum(nlv[:i])) << (4 * i) for i in range(8))
    def ffn_share(l0, d):
        A("s_lshl_b32 %s, %s, 2" % (l0, sH))
        A("s_lshr_b32 %s, 0x%x, %s" % (d, LUT_D, l0))
        A("s_and_b32 %s, %s, 7" % (d, d))
        A("s_sub_u32 s3, %s, %s" % (l0, d))
        A("s_lshr_b32 %s, 0x%x, %s" % (d, LUT_d, l0))
        A("s_and_b32 %s, %s, 7" % (d, d))
    stamp(0)
    if o.get("pad") or o.get("bal") or o.get("amp") or o.get("ampg") or o.get("ampm") or o.get("ampf") or o.get("lateh") is not None: A("s_memrealtime s[90:91]")
    A("s_cmp_ge_u32 s2, 256")
    A("s_cbranch_scc1 L_end")
    A("s_load_dwordx16 s[4:19], s[0:1], 0")
    A("s_load_dwordx8 s[20:27], s[0:1], 64")
    A("v_lshrrev_b32 v1, 6, v0")
    A("v_and_b32 v0, 63, v0")
    A("v_readfirstlane_b32 %s, v1" % sW)
    A("s_and_b32 %s, s2, 7" % sH)
    A("s_lshr_b32 %s, s2, 3" % sJ)
    if o.get("bal") or o.get("lateh") is not None or o.get("ampg") or o.get("ampm"):
        A("s_or_b32 %s, %s, %s" % (t0, sJ, sW))
        A("s_cbranch_scc1 L_noflag")
        A("s_lshl_b32 %s, %s, 2" % (t0, sH))
        A("v_mov_b32 v108, %s" % t0)
        A("s_waitcnt lgkmcnt(0)")
        A("s_or_b32 %s, s90, 1" % t0)
        A("v_mov_b32 v109, %s" % t0)
        A("global_store_dword v108, v109, s[24:25] offset:%d sc1" % (128 if o.get("ampg") or o.get("ampm") else 0))
        LB("L_noflag")
    A("s_cmp_eq_u32 %s, 4" % sW)
    A("s_cbranch_scc0 %s" % ("L_race" if o["vote"] else "L_attn"))

    C("wave 4: layernorm, one [128 x 64] tile of wq and one of gate/up, exchange of q and of the FFN hidden values")
    A("s_setprio 3")
    if o["idearly"] == 1:
        A("v_mov_b32 v2, 0")
        A("v_and_b32 v3, 12, v0")
        A("ds_write_b32 v3, v2 offset:%d" % L_VOTE)
    if o["prefetch"]:
        A("s_getpc_b64 s[28:29]")
        LB("L_pc")
        A("v_lshlrev_b32 v2, 7, v0")
        A("v_min_u32 v2, L_end-L_pc-%d, v2" % o.get("pfo", 448))
        A("global_load_dword v127, v2, s[28:29] offset:%d" % o.get("pfo", 448))
        if o.get("pf2", o["stamps"] or o.get("ampg")):
            A("v_mov_b32 v2, L_end-L_pc")
            A("v_lshlrev_b32 v3, 7, v0")
            A("v_min_u32 v3, 1024, v3")
            A("v_sub_u32 v2, v2, v3")
            A("global_load_dword v126, v2, s[28:29]")
    sQK, sNOFF = "s50", "s51"
    A("v_lshlrev_b32 v3, 4, v0")
    A("v_lshrrev_b32 v6, 3, v0")
    A("v_and_b32 v5, 2, v6")
    A("v_and_b32 v7, 7, v0")
    A("v_xor_b32 v5, v5, v7")
    A("v_lshlrev_b32 v7, 4, v5")
    A("s_and_b32 %s, %s, 3" % (sQK, sJ))
    A("s_lshl_b32 %s, %s, 10" % (t0, sH))
    if o["lperm"]:
        A("s_andn2_b32 %s, %s, 3" % (t1, sJ))
        A("s_lshr_b32 %s, 0x%x, %s" % (t1, o["lperm"], t1))
        A("s_and_b32 s55, %s, 7" % t1)
    else:
        A("s_lshr_b32 s55, %s, 2" % sJ)
    A("s_lshl_b32 %s, s55, 7" % t1)
    A("s_lshl_b32 %s, %s, 20" % (t2, sQK))
    A("s_add_u32 %s, %s, %s" % (t0, t0, t1))
    A("s_add_u32 %s, %s, %s" % (t0, t0, t2))
    A("v_lshl_add_u32 v4, v6, 13, v7")
    A("v_add_u32 v4, %s, v4" % t0)
    A("v_xor_b32 v5, 64, v4")
    A("v_add_u32 v5, 0x10000, v5")
    A("s_mov_b32 m0, %d" % L_WQ)
    A("s_mov_b32 %s, 0x20000" % t1)
    if o.get("ucontig"):
        A("s_lshl_b32 %s, s2, 10" % t0)
        A("v_add_u32 v4, %s, v3" % t0)
        A("v_add_u32 v5, 0x40000, v4")
        A("s_mov_b32 %s, 0x80000" % t1)
    A("s_movk_i32 s41, 1024")
    A("s_waitcnt lgkmcnt(0)")
    if o["est"] & 1: A("s_load_dword s60, %s, %s" % (sWQ, t2))
    if o["est"] & 2:
        A("s_load_dword s61, %s, 0" % sG)
        A("s_load_dword s62, %s, 0" % sU)
    if o["est"] & 4: A("s_load_dword s63, %s, 0" % sX)
    if not o.get("xlate"): A("global_load_dwordx4 v[8:11], v3, %s" % sX)
    if not o.get("elate"): A("s_load_dword %s, %s, 0" % (sTAG, sWS))
    def dma_loop(name, base, step):
        A("s_mov_b32 %s, %d" % (t2, 16 // o["unr"]))
        LB(name)
        for i in range(o["unr"]):
            vv = ("v4", "v5")[i & 1]
            A("global_load_lds_dwordx4 %s, %s %s" % (vv, base, nt))
            A("s_add_u32 m0, m0, s41")
            A("v_add_u32 %s, %s, %s" % (vv, step, vv))
        A("s_sub_u32 %s, %s, 1" % (t2, t2))
        A("s_cmp_lg_u32 %s, 0" % t2)
        A("s_cbranch_scc1 %s" % name)
    dma_loop("L_wq_loop", sWQ, t1)
    if o.get("elate") == 1: A("s_load_dword %s, %s, 0" % (sTAG, sWS))
    if o["b0pos"] == 16: A("s_barrier")
    ffn_share(t0, t3)
    A("s_lshr_b32 %s, %s, 3" % (t1, sJ))
    A("s_add_u32 %s, s3, %s" % (t0, t1))
    A("s_add_u32 %s, %s, %s" % (sNOFF, t1, t3))
    A("s_mul_i32 %s, %s, 3584" % (t1, sQK))
    A("s_add_u32 %s, %s, %s" % (t0, t0, t1))
    A("s_lshl_b32 %s, %s, 7" % (t0, t0))
    A("v_mul_u32_u24 v4, 3584, v6")
    A("v_add3_u32 v4, v4, v7, %s" % t0)
    A("v_xor_b32 v5, 64, v4")
    A("v_add_u32 v5, %d, v5" % (8 * 3584))
    A("s_mov_b32 %s, %d" % (t1, 16 * 3584))
    if o.get("ucontig"):
        A("s_lshr_b32 %s, s2, 1" % t0)
        A("s_min_u32 %s, %s, 111" % (t0, t0))
        A("s_lshl_b32 %s, %s, 10" % (t0, t0))
        A("v_add_u32 v4, %s, v3" % t0)
        A("v_add_u32 v5, %d, v4" % (112 * 1024))
        A("s_mov_b32 %s, %d" % (t1, 224 * 1024))
    A("s_bitcmp0_b32 %s, %d" % (("s2", 0) if o.get("ucontig") else (sJ, 2)))
    A("s_cselect_b64 s[42:43], %s, %s" % (sG, sU))
    A("s_cmp_ge_u32 %s, 4" % sNOFF)
    A("s_cselect_b64 exec, 1, -1")
    dma_loop("L_ff_loop", "s[42:43]", t1)
    if o.get("elate") == 2: A("s_load_dword %s, %s, 0" % (sTAG, sWS))
    A("s_mov_b64 exec, -1")
    if o["vote"]:
        A("s_branch L_unit2")
        LB("L_race")
        if o["tw"]:
            A("s_bitcmp1_b32 %s, 1" % sW)
            A("s_cbranch_scc1 L_norace")
        C("which of the two copies of the last hand-off lives nearer to this die: race two cold scalar loads of this wave's own lines")
        A("s_lshl_b32 %s, s2, 2" % t0)
        A("s_add_u32 %s, %s, %s" % (t0, t0, sW))
        A("s_lshr_b32 %s, %s, 6" % (t1, t0))
        A("s_lshl_b32 %s, %s, 14" % (t1, t1))
        A("s_and_b32 %s, %s, 63" % (t0, t0))
        A("s_lshl_b32 %s, %s, 7" % (t0, t0))
        A("s_add_u32 %s, %s, %s" % (t0, t0, t1))
        if MB3 == 0x200000: A("s_bitset1_b32 %s, 21" % t0)
        else: A("s_or_b32 %s, %s, 0x%x" % (t0, t0, MB3))
        A("s_lshl_b32 %s, %s, 13" % (t1, sW))
        A("s_and_b32 %s, %s, 0x2000" % (t1, t1))
        A("s_or_b32 s46, %s, %s" % (t0, t1))
        A("s_xor_b32 s47, s46, 0x2000")
        A("s_movk_i32 s28, 0x5bd1")
        A("s_movk_i32 s29, 0x5bd1")
        A("s_waitcnt lgkmcnt(0)")
        if o.get("dlyr"):
            A("s_mov_b32 s60, %d" % o["dlyr"])
            LB("L_dlyr")
            A("s_nop 15")
            A("s_sub_u32 s60, s60, 1")
            A("s_cbranch_scc0 L_dlyr")
        A("s_load_dword s28, %s, s46" % sWS)
        A("s_load_dword s29, %s, s47" % sWS)
        A("s_waitcnt lgkmcnt(1)")
        A("s_mov_b64 s[48:49], s[28:29]")
        LB("L_race_done")
        A("s_cmpk_lg_i32 s48, 0x5bd1")
        A("s_cselect_b32 %s, 1, 0" % t0)
        A("s_cmpk_lg_i32 s49, 0x5bd1")
        A("s_cselect_b32 %s, 1, 0" % t2)
        A("s_sub_i32 %s, %s, %s" % (t0, t0, t2))
        A("s_sub_i32 %s, 0, %s" % (t2, t0))
        A("s_cmp_eq_u32 %s, 0" % t1)
        A("s_cselect_b32 %s, %s, %s" % (t0, t0, t2))
        A("s_lshl_b32 %s, %s, 2" % (t2, sW))
        A("v_mov_b32 v158, %s" % t2)
        A("v_mov_b32 v159, %s" % t0)
        A("ds_write_b32 v158, v159 offset:%d" % L_VOTE)
        if o["tw"]: A("s_waitcnt lgkmcnt(1)")
        A("s_branch L_attn")
        LB("L_unit2")
    if o["pt1"]:
        C("pull this workgroup's own hand-off lines into L2 before anyone polls them")
        A("s_lshl_b32 %s, %s, 15" % (t0, sH))
        A("s_lshl_b32 %s, %s, 8" % (t1, sJ))
        A("s_add_u32 %s, %s, %s" % (t0, t0, t1))
        A("s_add_u32 %s, %s, 0x%x" % (t0, t0, MB1A))
        A("v_and_b32 v33, 1, v0")
        A("v_bfe_u32 v32, v0, 1, 1")
        A("v_lshlrev_b32 v33, 7, v33")
        A("v_lshl_add_u32 v33, v32, 13, v33")
        A("s_mul_i32 %s, %s, 240" % (t1, sJ))
        A("s_sub_u32 %s, 0x4000, %s" % (t1, t1))
        A("v_cmp_lt_u32 vcc, 3, v0")
        A("v_mov_b32 v32, %s" % t1)
        A("s_nop 0")
        A("v_cndmask_b32 v33, v33, v32, vcc")
        A("v_add_u32 v33, %s, v33" % t0)
        A("global_load_dword v119, v33, %s sc1" % sWS)
    def tlbwarm():
        C("first touch of the pages the later loads use (address translation early, off their queue)")
        A("s_lshl_b32 %s, %s, 24" % (t0, sH))
        A("s_add_u32 %s, %s, 0xF00000" % (t0, t0))
        A("v_mov_b32 v112, %s" % t0)
        A("s_lshl_b32 %s, %s, 19" % (t0, sH))
        A("v_mov_b32 v113, %s" % t0)
        A("s_mul_i32 %s, %s, 0x38000" % (t0, sH))
        A("v_mov_b32 v114, %s" % t0)
        A("v_mov_b32 v115, 0x%x" % MB3)
        A("s_mov_b64 exec, 1")
        A("global_load_dword v116, v112, %s" % sK)
        A("global_load_dword v117, v112, %s" % sV)
        A("global_load_dword v118, v113, %s" % sWO)
        A("global_load_dword v111, v114, %s" % sDN)
        A("global_load_dword v110, v115, %s" % sWS)
        A("s_mov_b64 exec, -1")
    NW = 1 if o["pt1"] else 0
    if o.get("tlbw") == 2:
        tlbwarm(); NW += 5
    if o["b0pos"] == 32:
        if o.get("b0wait") is not None: A("s_waitcnt vmcnt(%d)" % o["b0wait"])
        A("s_barrier")
    stamp(1)
    XF = 12
    A("s_mov_b32 %s, 0xffff0000" % t1)
    A("s_waitcnt vmcnt(%d)" % (32 + NW))
    stamp(2)
    C("layernorm with the reference's bf16 roundings")
    for i in range(4):
        A("v_lshlrev_b32 v%d, 16, v%d" % (XF + 2 * i, 8 + i))
        A("v_and_b32 v%d, %s, v%d" % (XF + 2 * i + 1, t1, 8 + i))
    fill = []
    def F(s): fill.append(s)
    def nop2():
        n = 0
        while fill and n < 2:
            A(fill.pop(0)); n += 1
        if n < 2: A("s_nop %d" % (1 - n))
    TRB = 120
    vAX, vS1, vL1, vL1x, vL1a, vF, vTN, vTB = "v34", "v35", "v36", "v37", "v38", "v39", "v124", "v125"
    sRP, sB1 = "s52", "s53"
    F("v_lshrrev_b32 v126, 4, v0")
    F("v_bfe_u32 v4, v0, 2, 2")
    F("v_lshl_add_u32 v5, v126, 3, v4")
    F("v_and_b32 v6, 3, v0")
    F("v_lshlrev_b32 v7, 3, v6")
    F("v_lshl_add_u32 v5, v5, 7, v7")
    F("v_bfe_u32 v4, v0, 3, 2")
    for ct in range(4):
        F("v_xor_b32 v7, %d, v4" % ct)
        F("v_lshl_add_u32 v%d, v7, 5, v5" % (TRB + ct))
    F("s_lshl_b32 %s, %s, 8" % (t0, sQK))
    F("v_lshl_add_u32 %s, v126, 4, %s" % (vAX, t0))
    F("s_lshl_b32 %s, %s, 15" % (sB1, sH))
    F("s_add_u32 %s, %s, 0x%x" % (sB1, sB1, MB1A))
    def wavesum(v, tmp):
        for rot in (1, 2, 4, 8):
            nop2()
            A("v_add_f32_dpp %s, %s, %s row_ror:%d %s" % (v, v, v, rot, DPP))
        for which in (16, 32):
            A("v_mov_b32 %s, %s" % (tmp, v))
            nop2()
            A("v_permlane%d_swap_b32 %s, %s" % (which, tmp, v))
            A("v_add_f32 %s, %s, %s" % (v, v, tmp))
    def P2(r): return "v[%d:%d]" % (r, r + 1)
    A("v_pk_add_f32 v[22:23], %s, %s" % (P2(XF), P2(XF + 2)))
    A("v_pk_add_f32 v[24:25], %s, %s" % (P2(XF + 4), P2(XF + 6)))
    A("v_pk_add_f32 v[22:23], v[22:23], v[24:25]")
    A("v_add_f32 v22, v22, v23")
    wavesum("v22", "v23")
    A("v_mul_f32 v22, 0x3b000000, v22")
    DV = 24
    for i in range(4):
        A("v_pk_add_f32 %s, %s, v[22:23] op_sel_hi:[1,0] neg_lo:[0,1] neg_hi:[0,1]" % (P2(DV + 2 * i), P2(XF + 2 * i)))
    A("v_cvt_pk_bf16_f32 v22, 0, v22")
    A("v_pk_mul_f32 v[32:33], %s, %s" % (P2(DV), P2(DV)))
    for i in range(1, 4):
        A("v_pk_fma_f32 v[32:33], %s, %s, v[32:33]" % (P2(DV + 2 * i), P2(DV + 2 * i)))
    A("v_add_f32 v32, v32, v33")
    pre = ["v_pk_add_f32 %s, %s, v[22:23] op_sel_hi:[1,0] neg_lo:[0,1] neg_hi:[0,1]" % (P2(XF + 2 * i), P2(XF + 2 * i)) for i in range(4)]
    pre += ["v_cvt_pk_bf16_f32 v%d, 0, v%d" % (XF + i, XF + i) for i in range(8)]
    rest = fill[:]; fill[:] = pre
    wavesum("v32", "v33")
    fill[:] = fill + rest
    A("v_mul_f32 v32, 0x3b000000, v32")
    A("v_cvt_pk_bf16_f32 v32, 0, v32")
    A("v_add_f32 v32, 0x%x, v32" % EPS)
    A("v_cvt_pk_bf16_f32 v32, 0, v32")
    A("v_sqrt_f32 v32, v32")
    A(fill.pop(0))
    A("v_cvt_pk_bf16_f32 v32, 0, v32")
    A("v_rcp_f32 v32, v32")
    A(fill.pop(0))
    for i in range(4):
        A("v_pk_mul_f32 %s, %s, v[32:33] op_sel_hi:[1,0]" % (P2(XF + 2 * i), P2(XF + 2 * i)))
    for i in range(4):
        A("v_cvt_pk_bf16_f32 v%d, v%d, v%d" % (8 + i, XF + 2 * i, XF + 2 * i + 1))
    A("ds_write_b128 v3, v[8:11] offset:%d" % L_XN)
    while fill: A(fill.pop(0))
    A("s_lshl_b32 %s, s55, 2" % t2)
    A("s_add_u32 s55, %s, %s" % (t2, sQK))
    A("s_lshl_b32 %s, s55, 8" % t2)
    A("s_add_u32 %s, %s, %s" % (t2, t2, sB1))
    A("v_lshrrev_b32 v4, 2, v0")
    A("v_lshl_add_u32 %s, v4, 4, %s" % (vS1, t2))
    A("s_waitcnt lgkmcnt(0)")
    AF = 40
    for m in range(4):
        A("ds_read_b128 v[%d:%d], %s offset:%d" % (AF + 4 * m, AF + 4 * m + 3, vAX, L_XN + m * 64))
    A("s_add_u32 %s, %s, 0x%x" % (sTAG, sTAG, TAGC))
    A("v_lshlrev_b32 v4, 2, v6")
    A("v_lshrrev_b32 %s, v4, %s" % (vTN, sTAG))
    A("v_and_b32 %s, 15, %s" % (vTN, vTN))
    A("v_lshlrev_b32 v4, 3, v6")
    A("v_lshrrev_b32 %s, v4, %s" % (vTB, sTAG))
    A("v_and_b32 %s, 0xff, %s" % (vTB, vTB))
    A("s_mov_b32 s44, 0")
    A("s_mov_b32 s45, -1")
    XG = 28
    def die_id():
        if o["vote"]:
            assert o["b0pos"] <= 47 and not o["hlate"]
            A("v_mov_b32 v4, 0")
            A("ds_read_b128 v[112:115], v4 offset:%d" % L_VOTE)
        if o["lastfin"]:
            assert o["vote"]
            A("ds_read_b32 v116, v4 offset:%d" % L_TKT)
        A("s_getreg_b32 %s, hwreg(HW_REG_XCC_ID, 0, 4)" % sXCC)
        A("s_and_b32 %s, %s, 0xff" % (t0, sTAG))
        A("s_lshl_b32 %s, %s, 8" % (t2, sXCC))
        A("s_or_b32 s54, %s, %s" % (t0, t2))
        A("v_mov_b32 v%d, s54" % XG)
        for k in range(1, 4):
            A("s_bfe_u32 %s, %s, 0x%x" % (t0, sTAG, 0x80000 | (8 * k)))
            A("v_mov_b32 v%d, %s" % (XG + k, t0))
        if o["vote"]:
            A("s_waitcnt lgkmcnt(0)")
            A("v_add3_u32 v112, v112, v113, v114")
            A("v_add_u32 v112, v112, v115")
            A("v_lshl_add_u32 v%d, v112, 8, v%d" % (XG + 1, XG + 1))
        if o["lastfin"]:
            A("v_lshl_add_u32 v%d, v116, 8, v%d" % (XG + 2, XG + 2))
        A("s_lshl_b32 %s, %s, 4" % (t2, sJ))
        A("s_add_u32 %s, %s, %s" % (t2, t2, sB1))
        A("s_add_u32 %s, %s, 0x4000" % (t2, t2))
        A("v_mov_b32 v22, %s" % t2)
        A("v_add_u32 v109, 0x%x, v22" % (MB1B - MB1A))
        A("s_mov_b64 exec, 1")
        if o["bonly"]:
            A("global_store_dwordx4 v22, v[%d:%d], %s sc1" % (XG, XG + 3, sWS))
        else:
            A("global_store_dwordx4 v22, v[%d:%d], %s" % (XG, XG + 3, sWS))
            if not o["bdefer"]: A("global_store_dwordx4 v109, v[%d:%d], %s sc1" % (XG, XG + 3, sWS))
        A("s_mov_b64 exec, -1")
    if o["idearly"]: die_id()
    if o["b0pos"] == 40: A("s_barrier")
    stamp(3)
    BF = 56
    D0 = 88
    GR = 24
    def gemv(lbase, vm0):
        def rd(m, ct):
            b = BF + 16 * (m & 1)
            for hh in range(2):
                A("ds_read_b64_tr_b16 v[%d:%d], v%d offset:%d" % (b + 4 * ct + 2 * hh, b + 4 * ct + 2 * hh + 1, TRB + ct, lbase + m * 4096 + hh * 512))
        A("s_waitcnt vmcnt(%d)" % (vm0 + 12))
        for ct in range(4): rd(0, ct)
        for m in range(4):
            b = BF + 16 * (m & 1)
            if m < 3: A("s_waitcnt vmcnt(%d)" % (vm0 + 8 - 4 * m))
            if lbase == L_WQ and o["b0pos"] == 41 + m: A("s_barrier")
            for ct in range(4):
                A("s_waitcnt lgkmcnt(%d)" % (6 if m < 3 else 6 - 2 * ct))
                mfma(D0 + 4 * ct, AF + 4 * m, b + 4 * ct, None if m == 0 else D0 + 4 * ct)
                if m < 3: rd(m + 1, ct)
    def pack(maskc, vt, GR, vS1):
        A("s_mov_b32 vcc_lo, 0xffff0000")
        A("s_mov_b32 vcc_hi, 0xffff0000")
        A("s_movk_i32 %s, 0x%x" % (t0, maskc))
        A("s_nop 2")
        A("v_cndmask_b32 v%d, v%d, v%d, vcc" % (GR, D0, D0 + 4))
        A("s_nop 0")
        A("v_cndmask_b32 v%d, v%d, v%d, vcc" % (GR + 1, D0 + 8, D0 + 12))
        A("v_cndmask_b32 v%d, v%d, v%d, s[44:45]" % (GR, GR, GR + 1))
        A("v_and_or_b32 v%d, v%d, %s, %s" % (GR, GR, t0, vt))
        if o["bdefer"]:
            A("s_nop 1")
        else:
            A("v_add_u32 v22, 0x%x, %s" % (MB1B - MB1A, vS1))
            A("s_nop 0")
        for k in range(1, 4):
            A("v_mov_b32_dpp v%d, v%d quad_perm:[%d,%d,%d,%d] %s" % (GR + k, GR, k, k, k, k, DPP))
        A("s_mov_b32 exec_lo, 0x11111111")
        A("s_mov_b32 exec_hi, 0x11111111")
        if o["bonly"]:
            A("global_store_dwordx4 %s, v[%d:%d], %s sc1" % (vS1, GR, GR + 3, sWS))
        else:
            A("global_store_dwordx4 %s, v[%d:%d], %s" % (vS1, GR, GR + 3, sWS))
            if not o["bdefer"]: A("global_store_dwordx4 v22, v[%d:%d], %s sc1" % (GR, GR + 3, sWS))
        A("s_mov_b64 exec, -1")
    C("q partial sums: [1 x 128] x [128 x 64]")
    gemv(L_WQ, 16 + NW + (1 if o["idearly"] else 0))
    if o["b0pos"] == 45: A("s_barrier")
    pack(0xfff0, vTN, GR, vS1)
    if o["b0pos"] == 47: A("s_barrier")
    stamp(4)
    if not o["idearly"]: die_id()
    if o["b0pos"] == 50: A("s_barrier")
    A("s_sub_i32 %s, %s, s55" % (t2, sJ))
    A("s_lshl_b32 %s, %s, 8" % (t2, t2))
    A("s_add_u32 %s, %s, 0x2000" % (t2, t2))
    A("v_add_u32 v108, %s, %s" % (t2, vS1))
    A("s_cmp_ge_u32 %s, 4" % sNOFF)
    A("s_cbranch_scc1 L_noff2")
    C("gate or up partial sums")
    gemv(L_FF, (2 if o['bonly'] or o['bdefer'] else 4) + NW)
    pack(0xff00, vTB, 104, "v108")
    LB("L_noff2")
    stamp(7)
    if o.get("nosync"):
        A("s_barrier")
        A("s_mov_b32 %s, 0" % sCNT)
        dump_stamps()
        A("s_endpgm")
    A("v_and_b32 v4, 15, v0")
    A("v_lshlrev_b32 v4, 4, v4")
    A("v_lshl_add_u32 v4, v126, 10, v4")
    A("s_add_u32 %s, %s, 2432" % (t0, sB1))
    A("v_add_u32 %s, %s, v4" % (vL1, t0))
    A("v_and_b32 v4, 31, v0")
    A("s_add_u32 %s, %s, 0x4000" % (t0, sB1))
    A("v_lshl_add_u32 %s, v4, 4, %s" % (vL1x, t0))
    A("s_lshl_b32 %s, %s, 1" % (t2, t3))
    A("s_sub_u32 %s, 8, %s" % (sRP, t2))
    A("s_mul_i32 %s, %s, %s" % (t2, sRP, sJ))
    A("s_sub_u32 %s, %s, 1" % (t0, sRP))
    A("v_and_b32 v4, 7, v0")
    A("v_min_u32 v4, %s, v4" % t0)
    A("v_add_u32 %s, %s, v4" % (vF, t2))
    A("v_lshrrev_b32 v4, 6, %s" % vF)
    A("v_bfe_u32 v5, v0, 3, 1")
    A("v_lshl_add_u32 v4, v4, 1, v5")
    A("v_lshl_add_u32 v4, v4, 2, v126")
    A("v_bfe_u32 v5, %s, 2, 4" % vF)
    A("v_lshlrev_b32 v5, 4, v5")
    A("v_lshl_add_u32 v4, v4, 8, v5")
    A("s_add_u32 %s, %s, 0x2000" % (t0, sB1))
    A("v_add_u32 %s, %s, v4" % (vL1a, t0))
    if min(nlv) == 0:
        A("s_cmp_lg_u32 %s, 0" % sRP)
        A("s_cbranch_scc1 L_has_ffn")
        A("v_mov_b32 %s, %s" % (vL1a, vL1x))
        LB("L_has_ffn")
    for k in range(4):
        A("s_bfe_u32 s%d, %s, 0x%x" % (56 + k, sTAG, 0x40000 | (4 * k)))
    A("s_movk_i32 s62, 255")
    A("s_mov_b32 s60, 0x0c0c0400")
    A("s_mov_b32 s61, 0x04000c0c")
    P = 40
    PX, PA_ = 72, 76
    A("s_mov_b32 %s, 0" % sCNT)
    def switch_copy(regs):
        A("s_add_u32 %s, %s, 1" % (sCNT, sCNT))
        if not o["bonly"]:
            if o.get("bskip"):
                A("s_cmp_ge_u32 %s, %d" % (sCNT, o["atries"]))
                A("s_cselect_b32 %s, 0x%x, 0" % (t0, MB1B ^ MB1A))
                for r in regs: A("v_xor_b32 %s, %s, %s" % (r, t0, r))
            else:
                A("s_cmp_eq_u32 %s, %d" % (sCNT, o["atries"]))
                A("s_cselect_b32 %s, 0x%x, 0" % (t0, MB1B - MB1A))
                for r in regs: A("v_add_u32 %s, %s, %s" % (r, t0, r))
        A("s_cmp_gt_u32 %s, %d" % (sCNT, o["spinmax"]))
        A("s_cbranch_scc1 L_end")
    def bytecheck(p, dst):
        A("v_perm_b32 v22, v%d, v%d, s60" % (p + 1, p))
        A("v_perm_b32 v23, v%d, v%d, s61" % (p + 3, p + 2))
        A("v_or_b32 v22, v22, v23")
        A("v_cmp_ne_u32 %s, %s, v22" % (dst, sTAG))
    for _ in range(o.get("dly1", 0)): A("s_nop 15")
    C("hand-off 1: the group's q partials, die ids and this workgroup's gate / up partials")
    stamp(9)
    if o.get("freeq"): A("s_branch L_got1")
    LB("L_poll1")
    stamp(8)
    for i in range(2):
        for q in range(4):
            r = P + 16 * i + 4 * q
            A("global_load_dwordx4 v[%d:%d], %s, %s offset:%d sc1" % (r, r + 3, vL1, sWS, i * 4096 + q * 256 - 2432))
    A("global_load_dwordx4 v[%d:%d], %s, %s sc1" % (PX, PX + 3, vL1x, sWS))
    A("global_load_dwordx4 v[%d:%d], %s, %s sc1" % (PA_, PA_ + 3, vL1a, sWS))
    switch_copy([vL1, vL1x, vL1a])
    for g_ in range(8):
        A("s_waitcnt vmcnt(%d)" % (9 - g_))
        for k in range(4):
            A("v_xor_b32 v%d, s%d, v%d" % (P + 4 * g_ + k, 56 + k, P + 4 * g_ + k))
        if g_ == 0:
            A("v_or3_b32 v21, v%d, v%d, v%d" % (P, P + 1, P + 2))
            A("v_or_b32 v21, v21, v%d" % (P + 3))
        else:
            A("v_or3_b32 v21, v21, v%d, v%d" % (P + 4 * g_, P + 4 * g_ + 1))
            A("v_or3_b32 v21, v21, v%d, v%d" % (P + 4 * g_ + 2, P + 4 * g_ + 3))
    A("v_and_b32 v21, 15, v21")
    A("s_waitcnt vmcnt(1)")
    bytecheck(PX, "vcc")
    A("v_cmp_ne_u32 s[46:47], 0, v21")
    if o.get("dbgfail"):
        A("s_cmp_eq_u32 %s, 1" % sCNT)
        A("s_cselect_b32 s84, vcc_lo, s84")
        A("s_cselect_b32 s62, s46, s62")
        A("s_cselect_b32 s63, s47, s63")
    A("s_or_b64 vcc, vcc, s[46:47]")
    def majority():
        A("v_cmp_gt_i32 vcc, 0, v%d" % (PX + 1))
        A("v_cmp_lt_i32 s[46:47], %s, v%d" % ("s62", PX + 1))
        A("s_bcnt1_i32_b32 %s, vcc_lo" % t0)
        A("s_bcnt1_i32_b32 %s, s46" % t2)
        A("s_cmp_gt_u32 %s, %s" % (t0, t2))
        A("s_cselect_b32 s55, 0x2000, 0")
        if o.get("voteinv"): A("s_xor_b32 s55, s55, 0x2000")
        if o["stamps"]:
            A("s_bcnt1_i32_b32 s63, vcc_lo")
            A("s_lshl_b32 %s, %s, 8" % (t2, t2))
            A("s_or_b32 s63, s63, %s" % t2)
    def publish_b(tag):
        C("write-through copies for peers that sit on another die")
        A("v_add_u32 v22, 0x%x, %s" % (MB1B - MB1A, vS1))
        A("v_add_u32 v23, 0x%x, v108" % (MB1B - MB1A))
        A("s_mov_b64 exec, 1")
        A("global_store_dwordx4 v109, v[%d:%d], %s sc1" % (XG, XG + 3, sWS))
        A("s_mov_b32 exec_lo, 0x11111111")
        A("s_mov_b32 exec_hi, 0x11111111")
        A("global_store_dwordx4 v22, v[%d:%d], %s sc1" % (GR, GR + 3, sWS))
        A("s_cmp_ge_u32 %s, 4" % sNOFF)
        A("s_cbranch_scc1 L_pb_%s" % tag)
        A("global_store_dwordx4 v23, v[104:107], %s sc1" % sWS)
        LB("L_pb_%s" % tag)
        A("s_mov_b64 exec, -1")
    if o["bdefer"]:
        A("s_cbranch_vccz L_got1")
        A("s_cmp_lg_u32 %s, %d" % (sCNT, o["bdefer"]))
        A("s_cbranch_scc1 L_poll1")
        publish_b("a")
        A("s_branch L_poll1")
        LB("L_got1")
    else:
        A("s_cbranch_vccnz L_poll1")
    stamp(5)
    for i in range(2):
        b = P + 16 * i
        for k in range(4):
            A("v_add_f32 v%d, v%d, v%d" % (b + k, b + k, b + 4 + k))
            A("v_add_f32 v%d, v%d, v%d" % (b + 8 + k, b + 8 + k, b + 12 + k))
        for k in range(4):
            A("v_add_f32 v%d, v%d, v%d" % (b + k, b + k, b + 8 + k))
        A("v_cvt_pk_bf16_f32 v%d, v%d, v%d" % (b, b, b + 1))
        A("v_cvt_pk_bf16_f32 v%d, v%d, v%d" % (b + 1, b + 2, b + 3))
    A("v_lshlrev_b32 v22, 3, v0")
    A("ds_write_b64 v22, v[%d:%d] offset:%d" % (P, P + 1, L_Q))
    A("ds_write_b64 v22, v[%d:%d] offset:%d" % (P + 16, P + 17, L_Q + 512))
    A("v_cmp_ne_u32 vcc, s54, v%d" % PX)
    A("s_cmp_eq_u64 vcc, 0")
    A("s_cselect_b32 %s, 1, 0" % sFAST)
    if o.get("forceslow"): A("s_mov_b32 %s, 0" % sFAST)
    if o.get("freeq"): A("s_mov_b32 %s, 1" % sFAST)
    if o["lastfin"]:
        A("v_readfirstlane_b32 %s, v%d" % (t0, PX + 2))
        if o["lastfin"] == 1:
            A("s_not_b32 %s, %s" % (t2, sTAG))
            A("v_mov_b32 v23, %s" % t2)
            A("v_lshlrev_b32 v22, 2, v0")
        A("s_lshr_b32 %s, %s, 8" % (t0, t0))
        A("s_cmp_eq_u32 %s, 7" % t0)
        A("s_cselect_b32 %s, 2, 0" % t0)
        if o.get("fixfin") is not None:
            A("s_cmp_eq_u32 %s, %d" % (sH, o["fixfin"]))
            A("s_cselect_b32 %s, 2, 0" % t0)
        A("s_or_b32 %s, %s, %s" % (sFAST, sFAST, t0))
        if o["lastfin"] == 1: A("ds_write_b32 v22, v23 offset:%d" % L_FIN)
        else:
            majority()
            A("s_or_b32 %s, %s, s55" % (sFAST, sFAST))
    A("v_mov_b32 v26, %s" % sFAST)
    A("v_mov_b32 v27, %s" % sTAG)
    A("v_mov_b32 v22, %d" % L_FLAG)
    A("ds_write_b64 v22, v[26:27]")
    if o["auxearly"] and not o.get("freeq"):
        A("s_waitcnt vmcnt(0)")
        bytecheck(PA_, "vcc")
        A("s_cbranch_vccz L_aux_b1")
        A("global_load_dwordx4 v[%d:%d], %s, %s sc1" % (PA_, PA_ + 3, vL1a, sWS))
        LB("L_aux_b1")
    A("s_waitcnt lgkmcnt(0)")
    A("s_barrier")
    if o["bdefer"]:
        A("s_cmp_gt_u32 %s, %d" % (sCNT, o["bdefer"]))
        A("s_cbranch_scc1 L_b_done")
        A("s_bitcmp1_b32 %s, 0" % sFAST if o.get("bskip") else "s_nop 0")
        if o.get("bskip"): A("s_cbranch_scc1 L_b_done")
        publish_b("b")
        LB("L_b_done")
    if o["vote"] and o["lastfin"] < 2: majority()
    if o["hlate"]:
        A("s_setprio %d" % o.get("hprio", 0))
        A("s_barrier")
        A("s_barrier")
    A("s_branch %s" % ("L_chk_aux" if not o.get("freeq") else "L_poll_aux" if o["freeq"] == 2 else "L_auxdone"))
    LB("L_poll_aux")
    A("global_load_dwordx4 v[%d:%d], %s, %s sc1" % (PA_, PA_ + 3, vL1a, sWS))
    switch_copy([vL1a])
    LB("L_chk_aux")
    A("s_waitcnt vmcnt(0)")
    bytecheck(PA_, "vcc")
    A("s_cbranch_vccnz L_poll_aux")
    if o.get("freeq"): LB("L_auxdone")
    C("h = bf16(bf16(silu(g)) * u)")
    A("s_movk_i32 %s, 0xff00" % t0)
    A("v_and_b32 v23, 1, %s" % vF)
    A("v_cmp_eq_u32 vcc, 0, v23")
    A("v_and_b32 v23, 2, %s" % vF)
    A("v_cmp_eq_u32 s[46:47], 0, v23")
    A("v_cndmask_b32 v24, v%d, v%d, vcc" % (PA_ + 1, PA_))
    A("v_cndmask_b32 v25, v%d, v%d, vcc" % (PA_ + 3, PA_ + 2))
    A("v_cndmask_b32 v24, v25, v24, s[46:47]")
    A("v_and_b32 v24, %s, v24" % t0)
    allred("v24", "v23", "v_add_f32", 16)
    allred("v24", "v23", "v_add_f32", 32)
    A("v_cvt_pk_bf16_f32 v24, v24, v24")
    A("v_and_b32 v24, %s, v24" % t1)
    A("v_mul_f32 v25, 0x%x, v24" % (LOG2E | 0x80000000))
    A("v_exp_f32 v25, v25")
    A("v_mov_b32_dpp v26, v24 row_ror:8 %s" % DPP)
    A("v_add_f32 v25, 1.0, v25")
    A("v_rcp_f32 v25, v25")
    A("v_cmp_le_u32 vcc, %s, v0" % sRP)
    A("v_mul_f32 v25, v24, v25")
    A("v_cvt_pk_bf16_f32 v25, v25, v25")
    A("v_and_b32 v25, %s, v25" % t1)
    A("v_mul_f32 v25, v25, v26")
    A("v_cvt_pk_bf16_f32 v25, v25, v25")
    A("v_cndmask_b32 v25, v25, 0, vcc")
    A("v_lshlrev_b32 v22, 2, v0")
    if o["vote"] and not o["lastfin"]:
        A("v_mov_b32 v26, s55")
        A("v_mov_b32 v27, 0")
        A("ds_write_b32 v27, v26 offset:%d" % (L_FLAG + 8))
    A("s_mov_b64 exec, 0xff")
    A("ds_write_b32 v22, v25 offset:%d" % L_H)
    A("s_waitcnt lgkmcnt(0)")
    stamp(6)
    if o["lastfin"] == 1:
        A("s_bitcmp1_b32 %s, 1" % sFAST)
        A("s_cbranch_scc1 L_ufin")
    if not o.get("nodumpU"): dump_stamps()
    A("s_endpgm")
    def unit_final():
        LB("L_ufin")
        C("last group: lane = (wave l>>4, pair (l>>3)&1, group l&7) gathers the eight groups' sums of this workgroup's 16 columns")
        A("s_mov_b64 exec, -1")
        A("s_setprio %d" % o.get("uprio", 0))
        vA3, vLF, vXO, vXV = "v4", "v5", "v6", "v7"
        FP, FS = 8, 40
        A("v_lshrrev_b32 %s, 3, v0" % vLF)
        A("s_lshl_b32 %s, %s, 5" % (t0, sJ))
        A("v_lshl_add_u32 %s, %s, 2, %s" % (vXO, vLF, t0))
        A("global_load_dword %s, %s, %s" % (vXV, vXO, sX))
        A("v_lshlrev_b32 %s, 4, %s" % (vLF, vLF))
        A("s_lshr_b32 %s, %s, 1" % (t0, sJ))
        A("s_lshl_b32 %s, %s, 14" % (t0, t0))
        A("s_and_b32 %s, %s, 1" % (t2, sJ))
        A("s_lshl_b32 %s, %s, 12" % (t2, t2))
        A("s_add_u32 %s, %s, %s" % (t0, t0, t2))
        A("s_add_u32 %s, %s, s55" % (t0, t0))
        A("s_add_u32 %s, %s, 0x%x" % (t0, t0, MB3))
        A("v_and_b32 v22, 7, v0")
        A("v_lshl_add_u32 %s, v22, 9, %s" % (vA3, t0))
        A("v_lshlrev_b32 v22, 7, v126")
        A("v_and_b32 v23, 16, %s" % vLF)
        A("v_add3_u32 %s, %s, v22, v23" % (vA3, vA3))
        A("s_lshl_b32 s44, 0x01010101, %s" % sH)
        A("s_mov_b32 s45, s44")
        A("s_not_b64 s[46:47], s[44:45]")
        A("s_mov_b32 %s, %d" % (sCNT, o["spinmax"]))
        A("s_barrier")
        A("s_barrier")
        A("s_waitcnt vmcnt(0)")
        A("v_lshlrev_b32 v22, 16, %s" % vXV)
        A("v_and_b32 v23, %s, %s" % (t1, vXV))
        def spf():
            C("pull the other groups' lines into this die's L2 over the scalar path (the vector path returns in order and is busy with the group's own hand-off)")
            for k in range(1, 8):
                for w_ in range(4):
                    A("s_load_dword s%d, %s, s%d offset:%d glc" % (6 + (4 * k + w_) % 16, sWS, 48 + k, 128 * w_))
        if o.get("spf"):
            for k in range(1, 8):
                A("s_xor_b32 s%d, %s, %d" % (48 + k, sH, k))
                A("s_lshl_b32 s%d, s%d, 9" % (48 + k, 48 + k))
                A("s_add_u32 s%d, s%d, %s" % (48 + k, 48 + k, t0))
        if o.get("spf", 0) & 2: spf()
        if o["reuse"]: A("s_barrier")
        if o.get("spf", 0) & 1: spf()
        NP = o["npu"]
        def own_read():
            A("s_mov_b64 exec, s[44:45]")
            A("ds_read_b128 v[%d:%d], %s offset:%d" % (FP, FP + 3, vLF, L_FIN))
        if o.get("uwait"):
            A("s_mov_b64 exec, s[44:45]")
            LB("L_uw")
            A("ds_read_b128 v[%d:%d], %s offset:%d" % (FP, FP + 3, vLF, L_FIN))
            A("s_sub_u32 %s, %s, 1" % (sCNT, sCNT))
            A("s_cbranch_scc1 L_end")
            A("s_waitcnt lgkmcnt(0)")
            A("v_cmp_ne_u32 vcc, %s, v%d" % (sTAG, FP + 3))
            if o["uwait"] == 1:
                A("s_cbranch_vccnz L_uw")
            else:
                A("s_cmp_eq_u64 vcc, s[44:45]")
                A("s_cbranch_scc1 L_uw")
        for k in range(NP):
            if k:
                for _ in range(o["stag"]):
                    own_read(); A("s_waitcnt lgkmcnt(0)")
            A("s_mov_b64 exec, s[46:47]")
            A("global_load_dwordx4 v[%d:%d], %s, %s sc1" % (FS + 4 * k, FS + 4 * k + 3, vA3, sWS))
        LB("L_upoll")
        for k in range(NP):
            own_read()
            A("s_mov_b64 exec, s[46:47]")
            A("s_waitcnt vmcnt(%d) lgkmcnt(0)" % (NP - 1))
            A("v_cmp_ne_u32 vcc, %s, v%d" % (sTAG, FS + 4 * k + 3))
            A("v_mov_b32 v%d, v%d" % (FP, FS + 4 * k))
            A("v_mov_b32 v%d, v%d" % (FP + 1, FS + 4 * k + 1))
            A("s_and_b64 s[46:47], exec, vcc")
            A("s_cbranch_scc0 L_ugot")
            A("s_mov_b64 exec, s[46:47]")
            A("global_load_dwordx4 v[%d:%d], %s, %s sc1" % (FS + 4 * k, FS + 4 * k + 3, vA3, sWS))
        A("s_sub_u32 %s, %s, 1" % (sCNT, sCNT))
        A("s_cbranch_scc0 L_upoll")
        A("s_endpgm")
        LB("L_uown")
        A("ds_read_b128 v[%d:%d], %s offset:%d" % (FP, FP + 3, vLF, L_FIN))
        A("s_sub_u32 %s, %s, 1" % (sCNT, sCNT))
        A("s_cbranch_scc1 L_end")
        A("s_waitcnt lgkmcnt(0)")
        LB("L_ugot")
        A("s_mov_b64 exec, s[44:45]")
        A("v_cmp_ne_u32 vcc, %s, v%d" % (sTAG, FP + 3))
        A("s_cbranch_vccnz L_uown")
        stamp(10)
        A("s_mov_b64 exec, -1")
        x_, y_ = "v%d" % FP, "v%d" % (FP + 1)
        for pat in ("quad_perm:[1,0,3,2]", "quad_perm:[2,3,0,1]", "row_half_mirror"):
            A("v_add_f32_dpp %s, %s, %s %s %s" % (x_, x_, x_, pat, DPP))
            A("v_add_f32_dpp %s, %s, %s %s %s" % (y_, y_, y_, pat, DPP))
            if pat != "row_half_mirror": A("s_nop 0")
        A("s_mov_b32 s44, 0x01010101")
        A("v_add_f32 %s, %s, v22" % (x_, x_))
        A("v_add_f32 %s, %s, v23" % (y_, y_))
        A("s_mov_b32 s45, s44")
        A("v_cvt_pk_bf16_f32 %s, %s, %s" % (x_, x_, y_))
        A("s_mov_b64 exec, s[44:45]")
        A("global_store_dword %s, %s, %s" % (vXO, x_, sOUT))
        A("s_cmp_lg_u32 %s, 0" % sJ)
        A("s_cbranch_scc1 L_udone")
        C("the next launch must not mistake this launch's hand-off words for its own")
        A("s_mov_b64 exec, 1")
        A("v_mov_b32 v22, 0")
        A("v_mov_b32 v23, %s" % sTAG)
        A("global_store_dword v22, v23, %s" % sWS)
        LB("L_udone")
        role[0] = "U"
        amp_end("u")
        dump_stamps()
        A("s_endpgm")

    role[0] = "A"
    if o.get("alignA"): L.append(".p2align %d" % o["alignA"])
    for _ in range(o.get("shiftA", 0)): A("s_nop 0")
    if o["tw"]:
        LB("L_norace")
        C("waves 2, 3: first touch of the pages that later loads use, over the scalar path (values unused), so that their address translation is not waited for")
        A("s_lshl_b32 %s, %s, 2" % (t2, sW))
        A("v_mov_b32 v158, %s" % t2)
        A("v_mov_b32 v159, 0")
        A("ds_write_b32 v158, v159 offset:%d" % L_VOTE)
        A("s_lshl_b32 %s, %s, 24" % (t0, sH))
        A("s_and_b32 %s, %s, 7" % (t2, sJ))
        A("s_lshl_b32 %s, %s, %d" % (t2, t2, 17 if o["stl"] & 64 else 10))
        A("s_add_u32 %s, %s, %s" % (t0, t0, t2))
        A("s_add_u32 %s, %s, 0xF00000" % (t0, t0))
        A("s_lshl_b32 %s, %s, 19" % (t2, sH))
        A("s_lshl_b32 %s, %s, 14" % (t3, sJ))
        A("s_add_u32 %s, %s, %s" % (t2, t2, t3))
        A("s_mul_i32 %s, s2, 7168" % t3)
        A("s_cmp_eq_u32 %s, 3" % sW)
        A("s_waitcnt lgkmcnt(0)")
        A("s_cbranch_scc1 L_touch3")
        if o["stl"] & 4:
            A("s_load_dword s62, %s, %s" % (sWO, t2))
            A("s_load_dword s63, %s, %s" % (sDN, t3))
        if o["stl"] & 8: A("s_load_dword s59, %s, 0" % sOUT)
        if o["stl"] & 128:
            A("s_lshl_b32 %s, s2, 12" % t2)
            A("s_add_u32 %s, %s, 0x%x" % (t2, t2, MB2))
            A("s_load_dword s58, %s, %s" % (sWS, t2))
        A("s_branch L_attn")
        LB("L_touch3")
        if o["stl"] & 1: A("s_load_dword s60, %s, %s" % (sK, t0))
        if o["stl"] & 2: A("s_load_dword s61, %s, %s" % (sV, t0))
    LB("L_attn")
    vK0, vK1, vV0, vV1 = "v2", "v3", "v4", "v5"
    vWO0, vWO1, vDN0, vDN1, vXF, vXP = "v6", "v7", "v8", "v9", "v10", "v1"
    vS2, vL2, vS25, vL25, vL3, vS3 = "v11", "v12", "v13", "v14", "v15", "v150"
    KR, VR, WOR, DNR, QR, SR, PA, MK = 16, 48, 80, 96, 104, 120, 128, 146
    vM0, vM1, vQA, vOW, vOR, vMLW, vHA = "v151", "v152", "v153", "v154", "v155", "v156", "v157"
    vN, vG, vN16, vP = "v120", "v121", "v122", "v123"
    u0, u1 = "v124", "v125"
    s4JW = "s41"
    C("K and V: load i = 1 KB block (4 keys) number 128 i + 4j + w of the head's window; K goes through LDS")
    A("s_lshl_b32 %s, %s, 24" % (t0, sH))
    A("s_lshl_b32 %s, %s, 2" % (s4JW, sJ))
    A("s_add_u32 %s, %s, %s" % (s4JW, s4JW, sW))
    if o["lastfin"]:
        C("arrival order of the eight groups (one counter in the zeroed debug words)")
        A("s_cmp_lg_u32 %s, 0" % s4JW)
        A("s_cbranch_scc1 L_notkt0")
        A("v_mov_b32 v158, 0")
        A("v_mov_b32 v159, 1")
        A("s_mov_b64 exec, 1")
        A("global_atomic_add v159, v158, v159, s[24:25] sc0 sc1")
        A("s_mov_b64 exec, -1")
        LB("L_notkt0")
    perm = o["perm"]
    if perm:
        assert sorted(perm) == sorted("wwjjjjjiii")
        src = []; cnt = {"w": 0, "j": 2}
        for p_, c_ in enumerate(perm):
            if c_ != "i": src.append((cnt[c_], p_)); cnt[c_] += 1
        src.sort(); runs = []
        for a_, p_ in src:
            if runs and runs[-1][0] + runs[-1][2] == a_ and runs[-1][1] + runs[-1][2] == p_: runs[-1][2] += 1
            else: runs.append([a_, p_, 1])
        for a_, p_, n_ in runs:
            A("s_bfe_u32 %s, %s, 0x%x" % (t2, s4JW, (n_ << 16) | a_))
            A("s_lshl_b32 %s, %s, %d" % (t2, t2, p_ + 10))
            A("s_add_u32 %s, %s, %s" % (t0, t0, t2))
        ipos = [p_ for p_, c_ in enumerate(perm) if c_ == "i"]
    else:
        A("s_lshl_b32 %s, %s, 10" % (t2, s4JW))
        A("s_add_u32 %s, %s, %s" % (t0, t0, t2))
    if o["hrot"]:
        A("s_mul_i32 %s, %s, %d" % (t2, sH, o["hrot"]))
        A("s_and_b32 %s, %s, %d" % (t2, t2, 1023 if perm else 127))
        A("s_lshl_b32 %s, %s, 10" % (t2, t2))
        A("s_xor_b32 %s, %s, %s" % (t0, t0, t2))
    A("s_add_u32 %s, %s, 0xF00000" % (t0, t0))
    A("v_and_b32 %s, 15, v0" % vN)
    A("v_lshrrev_b32 %s, 4, v0" % vG)
    A("v_lshlrev_b32 %s, 4, %s" % (vN16, vN))
    A("v_lshl_add_u32 %s, v0, 4, %s" % (vV0, t0))
    A("v_lshlrev_b32 %s, 6, %s" % (u0, vG))
    A("v_xor_b32 %s, %s, %s" % (vK0, u0, vV0))
    A("s_lshl_b32 %s, %s, 13" % (t1, sW))
    A("s_add_u32 m0, %s, %d" % (t1, L_K))
    A("s_mov_b32 s42, 0x20000")
    A("s_movk_i32 s43, 1024")
    if not o["vote"]: A("s_waitcnt lgkmcnt(0)")
    if o.get("tlbw") == 1:
        A("s_cmp_lg_u32 %s, 0" % sW)
        A("s_cbranch_scc1 L_notlb")
        tlbwarm()
        A("s_waitcnt vmcnt(0)")
        LB("L_notlb")
    if o["vote"] and not o["tw"]: A("s_waitcnt lgkmcnt(1)")
    if o["lastfin"]:
        A("s_cmp_lg_u32 %s, 0" % s4JW)
        A("s_cbranch_scc1 L_notkt")
        A("s_mov_b64 exec, 1")
        A("s_waitcnt vmcnt(0)")
        A("ds_write_b32 v158, v159 offset:%d" % L_TKT)
        A("s_mov_b64 exec, -1")
        A("s_waitcnt lgkmcnt(0)")
        LB("L_notkt")
    def touches(m, name):
        if not m or o["tw"]: return
        C("first touch of the pages the later loads use, over the scalar path (values unused)")
        if o["stw"]:
            A("s_and_b32 %s, %s, %d" % (t2, s4JW, o["stw"]))
            A("s_cbranch_scc1 %s" % name)
        if m & 1: A("s_load_dword s60, %s, %s" % (sK, t0))
        if m & 2: A("s_load_dword s61, %s, %s" % (sV, t0))
        if m & 4:
            A("s_lshl_b32 %s, %s, 19" % (t2, sH))
            A("s_lshl_b32 %s, %s, 14" % (t3, sJ))
            A("s_add_u32 %s, %s, %s" % (t2, t2, t3))
            A("s_load_dword s62, %s, %s" % (sWO, t2))
            A("s_mul_i32 %s, s2, 7168" % t2)
            A("s_load_dword s63, %s, %s" % (sDN, t2))
        if m & 8: A("s_load_dword s59, %s, 0" % sOUT)
        if m & 16:
            A("s_lshl_b32 %s, %s, 7" % (t2, sH))
            A("s_load_dword s59, %s, %s" % (sOUT, t2))
        if o["stw"]: LB(name)
    touches(o["stl"], "L_touched")
    if o["b0pos"]: A("s_barrier")
    stamp(1)
    issued = [0]
    def load(w, txt):
        if issued[0] >= w:
            A("s_waitcnt vmcnt(%d)" % (w - 1))
        A(txt); issued[0] += 1
    def rot(i):
        if not perm: return (i * o["rotm"]) & 127
        b_ = sum(((i >> q_) & 1) << ipos[q_] for q_ in range(3))
        r_ = (i * o["rotm"]) & 127
        opos = [p_ for p_ in range(10) if p_ not in ipos]
        return b_ ^ sum(((r_ >> q_) & 1) << opos[q_] for q_ in range(7))
    def kload(i):
        load(o["WK"], "global_load_lds_dwordx4 %s, %s %s" % (vK0, sK, nt))
        if i < 7:
            A("s_add_u32 m0, m0, s43")
            A("v_xor_b32 %s, %d, %s" % (vK0, (((i & 3) ^ ((i + 1) & 3)) << 4) | ((rot(i) ^ rot(i + 1)) << 10), vK0))
            if not perm: A("v_add_u32 %s, s42, %s" % (vK0, vK0))
    nk_first = min(o["WK"], 8)
    if o.get("bal"):
        A("v_and_b32 v158, 7, v0")
        A("v_lshlrev_b32 v158, 2, v158")
        A("global_load_dword v159, v158, s[24:25] sc1")
    for i in range(nk_first): kload(i)
    touches(o["stl2"], "L_touched2")
    C("address and mask setup in the shadow of the K loads")
    if o["stouch"]: A("s_load_dword s63, %s, 0" % sOUT)
    A("s_lshl_b32 %s, %s, 19" % (t0, sH))
    A("s_lshl_b32 %s, %s, 14" % (t2, sJ))
    A("s_add_u32 %s, %s, %s" % (t0, t0, t2))
    A("s_lshl_b32 %s, %s, 8" % (t3, sW))
    A("s_add_u32 %s, %s, %s" % (t0, t0, t3))
    A("s_add_u32 %s, %s, 0x1000" % (t0, t0))
    A("v_lshl_add_u32 %s, %s, 10, %s" % (vDN0, vG, vN16))
    A("v_add_u32 %s, %s, %s" % (vWO0, t0, vDN0))
    A("v_add_u32 %s, 0x2000, %s" % (vWO1, vWO0))
    ffn_share(t0, t2)
    A("s_lshl_b32 %s, s3, 6" % t0)
    A("s_lshl_b32 %s, %s, 1" % (t2, t2))
    A("s_sub_u32 %s, 8, %s" % (t1, t2))
    A("s_mul_i32 %s, %s, %s" % (t2, t1, sJ))
    A("s_add_u32 %s, %s, %s" % (t0, t0, t2))
    A("s_lshl_b32 %s, %s, 10" % (t0, t0))
    A("s_add_u32 %s, %s, %s" % (t0, t0, t3))
    A("s_sub_u32 %s, %s, 1" % (t1, t1))
    A("v_add_u32 %s, %s, %s" % (u1, t0, vN16))
    A("v_min_u32 %s, %s, %s" % (vDN0, t1, vG))
    A("v_lshl_add_u32 %s, %s, 10, %s" % (vDN0, vDN0, u1))
    A("v_add_u32 %s, 4, %s" % (vDN1, vG))
    A("v_min_u32 %s, %s, %s" % (vDN1, t1, vDN1))
    A("v_lshl_add_u32 %s, %s, 10, %s" % (vDN1, vDN1, u1))
    A("v_and_b32 %s, 1, v0" % vP)
    A("v_and_b32 %s, 1, %s" % (u0, vG))
    if o["g25"]:
        if o["cq25"]:
            A("s_lshr_b32 %s, %s, 3" % (t2, sJ))
            A("s_lshl_b32 %s, %s, 8" % (t2, t2))
            A("s_and_b32 %s, %s, 3" % (t0, sJ))
            A("s_lshl_b32 %s, %s, 6" % (t0, t0))
            A("s_add_u32 %s, %s, %s" % (t2, t2, t0))
            A("s_and_b32 %s, %s, 4" % (t0, sJ))
            A("s_lshl_b32 %s, %s, 1" % (t0, t0))
            A("s_add_u32 %s, %s, %s" % (t2, t2, t0))
        else:
            A("s_lshl_b32 %s, %s, 5" % (t2, sJ))
        A("v_bfe_u32 %s, v0, 3, 2" % u1)
        A("v_lshl_add_u32 %s, %s, %d, %s" % (vXF, u1, 4 if o["cq25"] else 3, t2))
        A("v_lshrrev_b32 %s, 5, v0" % u1)
        A("v_lshl_add_u32 %s, %s, 2, %s" % (vXF, u1, vXF))
    else:
        A("s_lshl_b32 %s, %s, 3" % (t2, s4JW))
        A("v_lshl_add_u32 %s, %s, 2, %s" % (vXF, u0, t2))
    RP = o["rp"]
    M25 = 0 if o["reuse"] else MB25 - MB2
    lay = 3 if o["reuse"] else o.get("lay25", 0)
    A("s_mul_i32 %s, %s, %d" % (t0, sH, 32 * RP))
    A("s_add_u32 %s, %s, 0x%x" % (t0, t0, MB2))
    A("s_mul_i32 %s, %s, %d" % (t1, sJ, RP))
    A("s_add_u32 %s, %s, %s" % (t1, t1, t0))
    A("s_mul_i32 %s, %s, %d" % (t2, sW, 8 * RP))
    A("s_lshl_b32 %s, %s, 6" % (t3, sJ))
    A("s_add_u32 %s, %s, %s" % (t0, t0, t3))
    A("s_add_u32 %s, %s, %s" % (t2, t2, t0))
    A("v_bfe_u32 %s, v0, 2, 3" % vS2 if o["cq2"] else "v_lshrrev_b32 %s, 3, v0" % vS2)
    A("v_mul_u32_u24 %s, %d, %s" % (vS2, RP, vS2))
    A("v_and_b32 %s, 3, v0" % u1 if o["cq2"] else "v_bfe_u32 %s, v0, 1, 2" % u1)
    A("v_lshlrev_b32 %s, 4, %s" % (u1, u1))
    A("v_add3_u32 %s, %s, %s, %s" % (vS2, vS2, u1, t2))
    A("v_lshl_add_u32 %s, v0, 4, %s" % (vL2, t1))
    A("s_lshl_b32 %s, %s, 4" % (t3, sW))
    A("v_and_b32 %s, 31, v0" % u1)
    if lay == 0:
        A("s_add_u32 %s, %s, %s" % (t1, t1, t3))
        A("s_add_u32 %s, %s, 0x%x" % (t1, t1, M25))
        A("v_lshl_add_u32 %s, %s, 6, %s" % (vL25, u1, t1))
        A("v_lshrrev_b32 %s, 1, %s" % (vS25, vN))
        A("v_mul_u32_u24 %s, %d, %s" % (vS25, RP, vS25))
        A("v_lshl_add_u32 %s, %s, 5, %s" % (vS25, vP, vS25))
        A("v_lshl_add_u32 %s, %s, 4, %s" % (vS25, u0, vS25))
        A("s_add_u32 %s, %s, 0x%x" % (t2, t2, M25))
        A("v_add_u32 %s, %s, %s" % (vS25, t2, vS25))
    else:
        if not o["g25"]: A("s_add_u32 %s, %s, %s" % (t0, t0, t3))
        if M25: A("s_add_u32 %s, %s, 0x%x" % (t0, t0, M25))
        if o["g25"]:
            A("v_lshrrev_b32 %s, 2, v0" % vL25)
            A("v_mul_u32_u24 %s, %d, %s" % (vL25, RP, vL25))
            A("v_and_b32 %s, 3, v0" % u1)
            A("v_lshlrev_b32 %s, 4, %s" % (u1, u1))
            A("v_add3_u32 %s, %s, %s, %s" % (vL25, vL25, u1, t0))
            A("v_add_u32 v164, %d, %s" % (16 * RP, vL25))
        else:
            A("v_mul_u32_u24 %s, %d, %s" % (vL25, RP, u1))
            A("v_add_u32 %s, %s, %s" % (vL25, t0, vL25))
        A("s_lshl_b32 %s, %s, 9" % (t3, sW))
        A("s_add_u32 %s, %s, %s" % (t1, t1, t3))
        if M25: A("s_add_u32 %s, %s, 0x%x" % (t1, t1, M25))
        if o["cq25"]:
            A("v_and_b32 %s, 31, v0" % vS25)
            A("v_lshl_add_u32 %s, %s, 4, %s" % (vS25, vS25, t1))
        else:
            A("v_lshl_add_u32 %s, %s, 5, %s" % (vS25, vN, t1))
            A("v_lshl_add_u32 %s, %s, 4, %s" % (vS25, u0, vS25))
    A("s_lshr_b32 %s, %s, 1" % (t0, sJ))
    A("s_lshl_b32 %s, %s, 14" % (t0, t0))
    A("s_and_b32 %s, %s, 1" % (t3, sJ))
    A("s_lshl_b32 %s, %s, 12" % (t3, t3))
    A("s_add_u32 %s, %s, %s" % (t0, t0, t3))
    if o["g25"]:
        A("s_add_u32 %s, %s, 0x%x" % (t0, t0, MB3))
        A("v_lshrrev_b32 %s, 3, v0" % u0)
        A("v_lshl_add_u32 %s, %s, 4, %s" % (u0, u0, t0))
        A("v_and_b32 %s, 7, v0" % vL3)
        A("v_lshl_add_u32 %s, %s, 9, %s" % (vL3, vL3, u0))
        A("s_lshl_b32 %s, %s, 9" % (t3, sH))
        A("s_add_u32 %s, %s, %s" % (t0, t0, t3))
        A("v_lshrrev_b32 %s, 5, v0" % u0)
        A("v_lshl_add_u32 %s, %s, 6, %s" % (u0, u0, u1))
        A("v_bfe_u32 %s, v0, 2, 1" % u1)
        A("v_lshlrev_b32 %s, 13, %s" % (u1, u1))
        A("v_add3_u32 %s, %s, %s, %s" % (vS3, u0, u1, t0))
        if o["pt3"]:
            A("s_and_b32 %s, %s, 1" % (t3, sW))
            A("s_lshl_b32 %s, %s, 6" % (t3, t3))
            A("s_add_u32 s3, %s, %s" % (t0, t3))
            A("s_lshr_b32 %s, %s, 1" % (t3, sW))
            A("s_lshl_b32 %s, %s, 13" % (t3, t3))
            A("s_add_u32 s3, s3, %s" % t3)
    else:
        A("s_lshl_b32 %s, %s, 7" % (t3, sW))
        A("s_add_u32 %s, %s, %s" % (t0, t0, t3))
        A("s_add_u32 %s, %s, 0x%x" % (t0, t0, MB3))
        if o["lastfin"] == 1:
            A("s_lshl_b32 %s, %s, 5" % (t3, sW))
            A("v_lshl_add_u32 %s, %s, 4, %s" % (vL3, u0, t3))
        if o["lastfin"] >= 2:
            A("s_lshl_b32 s3, %s, 9" % sH)
            A("s_add_u32 s3, s3, %s" % t0)
        A("v_lshl_add_u32 %s, %s, 4, %s" % (u0, u0, t0))
        if o["lastfin"] != 1:
            A("v_and_b32 %s, 7, v0" % u1)
            A("v_lshl_add_u32 %s, %s, 9, %s" % (vL3, u1, u0))
        A("s_lshl_b32 %s, %s, 9" % (t3, sH))
        A("v_lshl_add_u32 %s, %s, 13, %s" % (u0, vP, u0))
        A("v_add_u32 %s, %s, %s" % (vS3, t3, u0))
    if o.get("mockx"):
        A("s_lshr_b32 %s, %s, 1" % (t0, sJ))
        A("s_lshl_b32 %s, %s, 14" % (t0, t0))
        A("s_and_b32 %s, %s, 1" % (t3, sJ))
        A("s_lshl_b32 %s, %s, 12" % (t3, t3))
        A("s_add_u32 %s, %s, %s" % (t0, t0, t3))
        A("s_lshl_b32 %s, %s, 9" % (t3, sH))
        A("s_add_u32 %s, %s, %s" % (t0, t0, t3))
        A("s_and_b32 %s, %s, 1" % (t3, sW))
        A("s_lshl_b32 %s, %s, 13" % (t3, t3))
        A("s_add_u32 %s, %s, %s" % (t0, t0, t3))
        A("s_add_u32 %s, %s, 0x%x" % (t0, t0, MB3))
        A("v_and_b32 %s, 3, v0" % u0)
        A("v_lshl_add_u32 %s, %s, 4, %s" % (vS3, u0, t0))
        A("s_and_b32 %s, %s, 3" % (t0, sJ))
        A("s_lshl_b32 %s, %s, 2" % (t0, t0))
        A("s_add_u32 %s, %s, %s" % (t0, t0, sW))
        A("s_lshl_b32 %s, %s, 14" % (t0, t0))
        A("s_lshr_b32 %s, %s, 2" % (t3, sJ))
        A("s_lshl_b32 %s, %s, 9" % (t3, t3))
        A("s_add_u32 %s, %s, %s" % (t0, t0, t3))
        A("s_add_u32 %s, %s, 0x%x" % (t0, t0, MB3))
        A("v_lshl_add_u32 %s, %s, 4, %s" % (vL3, u0, t0))
        A("v_bfe_u32 %s, v0, 2, 1" % u0)
        A("v_lshl_add_u32 %s, %s, 12, %s" % (vL3, u0, vL3))
    A("v_lshlrev_b32 %s, 4, %s" % (u1, vP))
    def pretouch2():
        C("first touch of this workgroup's own hand-off lines (values unused), so that no wait on them starts with a miss to HBM")
        if o["reuse"]:
            A("s_lshl_b32 %s, %s, 9" % (t0, sW))
            A("v_lshlrev_b32 v158, 3, v0")
            A("v_sub_u32 v158, %s, v158" % vL2)
            A("v_add_u32 v158, %s, v158" % t0)
            if o["pt3"]: A("v_writelane_b32 v158, s3, 63")
        else:
            A("s_and_b32 %s, %s, 1" % (t0, sW))
            A("s_lshl_b32 %s, %s, 10" % (t0, t0))
            A("s_lshr_b32 %s, %s, 1" % (t3, sW))
            A("s_mul_i32 %s, %s, 0x%x" % (t3, t3, MB25 - MB2))
            A("s_add_u32 %s, %s, %s" % (t0, t0, t3))
            A("v_add_u32 v158, %s, %s" % (t0, vL2))
        if o["pretouch"] in ("r", "k"):
            if o.get("ptm") is not None:
                A("s_mov_b32 exec_lo, 0x%x" % (o["ptm"] & 0xffffffff))
                A("s_mov_b32 exec_hi, 0x%x" % (o["ptm"] >> 32))
            A("global_load_dword v159, v158, %s %s" % (sWS, o.get("ptfl", "sc1"))); issued[0] += 1
            if o.get("ptm") is not None: A("s_mov_b64 exec, -1")
        if o.get("otouch2", 0) & 1:
            A("global_load_dword v166, %s, %s" % (vXF, sOUT)); issued[0] += 1
        if o.get("otouch2", 0) & 2:
            A("global_load_dword v165, %s, %s sc1" % (vS3, sWS)); issued[0] += 1
    if o["pretouch"] == "r" or isinstance(o["pretouch"], int): pretouch2()
    A("v_mov_b32 %s, 0xffff" % u0)
    A("v_lshlrev_b32 %s, %s, %s" % (u0, u1, u0))
    A("v_and_b32 %s, 2, v0" % u1)
    A("v_cmp_eq_u32 vcc, 0, %s" % u1)
    A("v_lshrrev_b32 %s, 1, %s" % (u1, vN))
    A("v_lshlrev_b32 %s, 2, %s" % (vHA, vG))
    SEL = 160
    A("v_mov_b32 v%d, 0x0c0c0c0c" % (SEL + 2))
    A("v_mov_b32 v%d, 0x01000100" % (SEL + 3))
    A("v_bfi_b32 v%d, %s, v%d, v%d" % (SEL + 3, u0, SEL + 3, SEL + 2))
    A("v_cndmask_b32 v%d, v%d, v%d, vcc" % (SEL, SEL + 2, SEL + 3))
    A("v_cndmask_b32 v%d, v%d, v%d, vcc" % (SEL + 1, SEL + 3, SEL + 2))
    A("v_and_b32 v%d, 0x02020202, %s" % (SEL + 3, u0))
    A("v_cndmask_b32 v%d, 0, v%d, vcc" % (SEL + 2, SEL + 3))
    A("v_cndmask_b32 v%d, v%d, 0, vcc" % (SEL + 3, SEL + 3))
    A("v_add_u32 v%d, v%d, v%d" % (SEL + 2, SEL + 2, SEL))
    A("v_add_u32 v%d, v%d, v%d" % (SEL + 3, SEL + 3, SEL + 1))
    for r in range(4):
        A("v_cmp_eq_u32 s[%d:%d], %d, %s" % (44 + 2 * r, 45 + 2 * r, r, u1))
    A("v_lshrrev_b32 %s, 2, %s" % (vMLW, vN))
    A("v_lshlrev_b32 %s, 4, %s" % (u1, vG))
    A("v_lshl_add_u32 %s, %s, 8, %s" % (vQA, vMLW, u1))
    for r in range(4):
        A("v_cndmask_b32 v%d, 0, %s, s[%d:%d]" % (MK + r, u0, 44 + 2 * r, 45 + 2 * r))
    OH, OG, OWV = (384, 768, 3072) if o["cq2"] else (256, 512, 2048)
    if o["cq2"]:
        A("s_mul_i32 %s, %s, %d" % (t0, sW, OWV))
        A("v_mul_u32_u24 %s, %d, %s" % (vOW, OG, vG))
        A("v_add3_u32 %s, %s, %s, %s" % (vOW, vOW, vN16, t0))
    else:
        A("s_lshl_b32 %s, %s, 11" % (t0, sW))
        A("v_lshl_add_u32 %s, %s, 9, %s" % (vOW, vG, vN16))
        A("v_add_u32 %s, %s, %s" % (vOW, t0, vOW))
    A("s_lshl_b32 %s, %s, 3" % (t0, sW))
    A("v_lshl_add_u32 %s, %s, 5, %s" % (vMLW, vMLW, t0))
    if o["cq2"]:
        A("v_bfe_u32 %s, v0, 1, 4" % u1)
        A("v_lshlrev_b32 %s, 4, %s" % (u1, u1))
        A("v_mul_u32_u24 %s, %d, %s" % (u0, OH, vP))
        A("s_mul_i32 %s, %s, %d" % (t0, sW, OG))
        A("v_add3_u32 %s, %s, %s, %s" % (vOR, u0, u1, t0))
    else:
        A("v_bfe_u32 %s, v0, 1, 1" % u0)
        A("v_lshrrev_b32 %s, 2, v0" % u1)
        A("v_lshlrev_b32 %s, 4, %s" % (u1, u1))
        A("v_lshl_add_u32 %s, %s, 8, %s" % (u1, u0, u1))
        A("v_lshl_add_u32 %s, %s, 3, %s" % (u1, vP, u1))
        A("s_lshl_b32 %s, %s, 9" % (t0, sW))
        A("v_add_u32 %s, %s, %s" % (vOR, t0, u1))
    KA = 140
    A("v_and_b32 %s, 3, v0" % u0)
    A("v_lshrrev_b32 %s, 2, %s" % (u1, vN))
    A("v_lshlrev_b32 %s, 8, %s" % (u1, u1))
    A("v_lshl_add_u32 %s, %s, 10, %s" % (u0, u0, u1))
    A("v_xor_b32 %s, %s, %s" % (u1, vG, vN))
    A("v_lshl_add_u32 %s, %s, 4, %s" % (u0, u1, u0))
    A("s_lshl_b32 %s, %s, 13" % (t1, sW))
    A("v_add_u32 v%d, %s, %s" % (KA, t1, u0))
    for s_ in range(1, 4):
        A("v_xor_b32 v%d, %d, v%d" % (KA + s_, s_ << 6, KA))
    if o.get("cheap", 0) & 1:
        A("v_and_b32 %s, 0x3fff, %s" % (vWO0, vWO0)); A("v_or_b32 %s, 0x1000, %s" % (vWO0, vWO0)); A("v_mov_b32 %s, %s" % (vWO1, vWO0))
    if o.get("cheap", 0) & 2:
        A("v_and_b32 %s, 0x3fff, %s" % (vDN0, vDN0)); A("v_mov_b32 %s, %s" % (vDN1, vDN0))
    if o.get("cheap", 0) & 4:
        A("v_and_b32 %s, 0x3fff, %s" % (vV0, vV0)); A("s_mov_b32 s57, 0")
    for _ in range(o.get("delayA", 0)): A("s_nop 3")
    def issue_rest(WK_, W_):
        o_wk = o["WK"]; o["WK"] = WK_
        for i in range(nk_first, 8): kload(i)
        o["WK"] = o_wk
        if o["pretouch"] == "k": pretouch2()
        if o.get("xearly"):
            A("global_load_dword %s, %s, %s" % (vXP, vXF, sX)); issued[0] += 1
        for i in range(8 - o["vlate"]):
            ld, *step = vload(i)
            load(W_, ld)
            for t_ in step: A(t_)
    def vload(i):
        r = VR + i * 4
        seq = ["global_load_dwordx4 v[%d:%d], %s, %s %s" % (r, r + 3, vV0, sV, nt)]
        if i < 7:
            if rot(i) ^ rot(i + 1): seq.append("v_xor_b32 %s, %d, %s" % (vV0, (rot(i) ^ rot(i + 1)) << 10, vV0))
            if not perm: seq.append("v_add_u32 %s, %s, %s" % (vV0, "s57" if o.get("cheap", 0) & 4 and i % o.get("cheapm", 1) == 0 else "s42", vV0))
        return seq
    if o.get("bal"):
        C("a group that started well after others asks memory with a wider window")
        A("s_waitcnt vmcnt(%d)" % issued[0])
        A("v_sub_u32 v158, s90, v159")
        A("v_cmp_ne_u32 vcc, 0, v159")
        A("v_cmp_lt_i32 s[44:45], %d, v158" % o.get("theta", 40))
        A("s_and_b32 s62, vcc_lo, s44")
        A("s_and_b32 s62, s62, 0xff")
        A("s_bcnt1_i32_b32 s62, s62")
        A("s_cmp_ge_u32 s62, %d" % o.get("lateth", 2))
        A("s_cbranch_scc1 L_wide")
        keep = issued[0]
        issue_rest(o["WK"], o["W"])
        A("s_branch L_issued")
        LB("L_wide")
        issued[0] = keep
        issue_rest(o["WK"] + o["bal"], o["W"] + o["bal"])
        LB("L_issued")
    elif o.get("c3"):
        A("s_lshr_b32 %s, %s, 2" % (t0, sJ))
        A("s_cmp_eq_u32 %s, 3" % t0)
        A("s_cbranch_scc1 L_wide")
        keep = issued[0]
        issue_rest(o["WK"], o["W"])
        A("s_branch L_issued")
        LB("L_wide")
        issued[0] = keep
        issue_rest(o["WK"] + o["c3"], o["W"] + o.get("c3v", o["c3"]))
        LB("L_issued")
    else:
        issue_rest(o["WK"], o["W"])
    tail = []
    if o["lastfin"] != 1 and not o.get("xstag"): tail.append("global_load_dword %s, %s, %s" % (vXP, vXF, sX))
    for a in range(2):
        r = DNR + a * 4
        tail.append("global_load_dwordx4 v[%d:%d], %s, %s %s" % (r, r + 3, (vDN0, vDN1)[a], sDN, nt))
    for m in range(4):
        r = WOR + m * 4
        tail.append("global_load_dwordx4 v[%d:%d], %s, %s offset:%d %s" % (r, r + 3, (vWO0, vWO1)[m >> 1], sWO, (0, -4096)[(m & 1) == 0], nt))
    dnl = []
    if o.get("dnlate"):
        dnl = tail[1:1 + 2]
        if o["dnlate"] == 2: dnl = dnl[1:]
        for t_ in dnl: tail.remove(t_)
        tail.append(tail.pop(0))
    if isinstance(o["pretouch"], int):
        tail.insert(o["pretouch"], "global_load_dword v159, v158, %s sc1" % sWS)
    if o.get("xearly"):
        xl = [t_ for t_ in tail if vXP + "," in t_][0]; tail.remove(xl)
    taft = []
    for _ in range(o.get("tafter", 0)): taft.insert(0, tail.pop())
    tail[:0] = [vload(i) for i in range(8 - o["vlate"], 8)]
    nav = [-o["vlate"]]
    def tail_issue(n):
        for _ in range(n):
            if tail:
                t_ = tail.pop(0)
                for q_ in ([t_] if isinstance(t_, str) else t_): A(q_)
                nav[0] += 1
    sNE = "s63"
    def adaptive():
        C("a wave whose V loads have landed while it waited for q tops its window up with the weight loads")
        assert not o["vlate"] and not o["ntail0"] and not o["tsp"] and not o["tlag"] and len(tail) == 7
        A("s_getreg_b32 %s, hwreg(HW_REG_IB_STS, 0, 4)" % t0)
        A("s_sub_i32 %s, %d, %s" % (sNE, o["Wa"], t0))
        for k in range(min(7, o["Wa"])):
            A("s_cmp_le_i32 %s, %d" % (sNE, k))
            A("s_cbranch_scc1 L_topped")
            A(tail[k])
        LB("L_topped")
    A("s_waitcnt vmcnt(%d)" % (8 - o["vlate"]))
    for t in range(2):
        for s in range(4):
            r = KR + (t * 4 + s) * 4
            A("ds_read_b128 v[%d:%d], v%d offset:%d" % (r, r + 3, KA + s, L_K + t * 4096))
    tail_issue(o["ntail0"])
    stamp(2)
    A("s_waitcnt lgkmcnt(0)")
    A("s_barrier")
    stamp(3)
    for s in range(4):
        A("ds_read_b128 v[%d:%d], %s offset:%d" % (QR + 4 * s, QR + 4 * s + 3, vQA, L_Q + s * 64))
    if "a" in o["tsp"]: tail_issue(1)
    if o["adap"] == "a": adaptive()
    A("s_mov_b32 s46, 0x%x" % SCALE)
    A("s_mov_b32 %s, 0xffff0000" % t1)
    A("s_mov_b32 s48, 0x%x" % LOG2E)
    for s in range(4):
        A("s_waitcnt lgkmcnt(%d)" % (3 - s))
        for t in range(2):
            mfma(SR + 4 * t, KR + (t * 4 + s) * 4, QR + 4 * s, None if s == 0 else SR + 4 * t)
    T = KR
    vH0, vH1, vFL, vTG = "v%d" % (T + 28), "v%d" % (T + 29), "v%d" % (T + 26), "v%d" % (T + 27)
    A("v_mov_b32 %s, %d" % (vFL, L_FLAG))
    A("s_lshl_b32 %s, %s, 5" % (t3, sW))
    A("v_mov_b32 v%d, %s" % (T + 31, t3))
    A("ds_read_b64 v[%d:%d], %s" % (T + 26, T + 27, vFL))
    if "b" in o["tsp"]:
        tail_issue(1); A("s_nop 1")
    elif o["adap"] == "b": adaptive()
    else: A("s_nop 2")
    C("scores: bf16(qk) -> * scale -> bf16   (the reference's two roundings)")
    for i in range(8):
        A("v_cvt_pk_bf16_f32 v%d, 0, v%d" % (SR + i, SR + i))
    for i in range(4):
        A("v_pk_mul_f32 %s, %s, s[46:47] op_sel_hi:[1,0]" % (P2(SR + 2 * i), P2(SR + 2 * i)))
    for i in range(8):
        A("v_cvt_pk_bf16_f32 v%d, 0, v%d" % (SR + i, SR + i))
    vm, vt, vl = "v%d" % (T + 4), "v%d" % (T + 6), "v%d" % (T + 5)
    A("v_max3_f32 %s, v%d, v%d, v%d" % (vm, SR, SR + 1, SR + 2))
    A("v_max3_f32 %s, v%d, v%d, v%d" % (vt, SR + 3, SR + 4, SR + 5))
    A("v_max3_f32 %s, %s, v%d, v%d" % (vm, vm, SR + 6, SR + 7))
    A("v_max_f32 %s, %s, %s" % (vm, vm, vt))
    allred(vm, vt, "v_max_f32", 16)
    if "c" in o["tsp"]: tail_issue(1)
    if o["adap"] == "c": adaptive()
    allred(vm, vt, "v_max_f32", 32)
    A("v_mul_f32 %s, s48, %s" % (vm, vm))
    for i in range(4):
        A("v_pk_fma_f32 %s, %s, s[48:49], %s op_sel_hi:[1,0,0] neg_lo:[0,0,1] neg_hi:[0,0,1]" % (P2(SR + 2 * i), P2(SR + 2 * i), P2(T + 4)))
    for i in range(8):
        A("v_exp_f32 v%d, v%d" % (SR + i, SR + i))
    if "d" in o["tsp"]: tail_issue(1)
    for i in range(4):
        A("v_cvt_pk_bf16_f32 v%d, v%d, v%d" % (T + 8 + i, SR + 2 * i, SR + 2 * i + 1))
    for i in range(8):
        for r in range(2):
            A("v_perm_b32 v%d, v%d, v%d, v%d" % (PA + 2 * i + r, T + 8 + (i >> 1), T + 8 + (i >> 1), SEL + 2 * (i & 1) + r))
    stamp(4)
    O0, O1, Y = QR, QR + 4, QR + 8
    def pv(i):
        assert 7 - i + nav[0] >= 0
        A("s_waitcnt vmcnt(%d)" % (7 - i + nav[0]))
        if o["adap"] and i < min(7, o["Wa"]):
            A("s_cmp_gt_i32 %s, %d" % (sNE, i))
            A("s_cbranch_scc1 L_had%d" % i)
            tail_issue(1)
            LB("L_had%d" % i)
        elif i >= o["tlag"]: tail_issue((2 if i < o.get("tdbl", 0) else 1) if i < o.get("tlast", 7) else 9)
        vr = VR + 4 * i
        mfma16(O0, PA + 2 * i, vr, None if i == 0 else O0)
        mfma16(O1, PA + 2 * i, vr + 2, None if i == 0 else O1)
    A("v_pk_add_f32 %s, %s, %s" % (P2(SR), P2(SR), P2(SR + 2)))
    A("v_pk_add_f32 %s, %s, %s" % (P2(SR + 4), P2(SR + 4), P2(SR + 6)))
    A("v_pk_add_f32 %s, %s, %s" % (P2(SR), P2(SR), P2(SR + 4)))
    A("v_add_f32 %s, v%d, v%d" % (vl, SR, SR + 1))
    allred(vl, vt, "v_add_f32", 16)
    allred(vl, vt, "v_add_f32", 32)
    A("ds_write_b64 %s, v[%d:%d] offset:%d" % (vMLW, T + 4, T + 5, L_ML))
    A("s_waitcnt lgkmcnt(0)")
    A("v_readfirstlane_b32 %s, %s" % (sFAST, vFL))
    A("v_readfirstlane_b32 %s, %s" % (sTAG, vTG))
    SO = 4
    def soffs():
        A("s_and_b32 %s, %s, 0x2000" % (t0, sFAST))
        A("v_add_u32 %s, %s, %s" % (vL3, t0, vL3))
        A("s_or_b32 s3, s3, %s" % t0)
        for k in range(1, 8): A("s_xor_b32 s%d, s3, 0x%x" % (SO + k - 1, k << 9))
    nshot = [0]
    SD = [12, 20, 44, 64, 72, 80, 88] if not o["stamps"] else None
    def sshot(bit):
        if o["lastfin"] < 2 or not (o.get("sshot", 2) & bit): return
        nshot[0] += 1
        A("s_bitcmp0_b32 %s, 1" % sFAST)
        A("s_cbranch_scc1 L_noshot%d" % nshot[0])
        for k in range(1, 8):
            if o["lastfin"] == 2: A("s_load_dword s%d, %s, s%d offset:12 %s" % (12 + k, sWS, SO + k - 1, o.get("sfl", "glc")))
            else: A("s_load_dwordx8 s[%d:%d], %s, s%d glc" % (SD[k - 1], SD[k - 1] + 7, sWS, SO + k - 1))
        LB("L_noshot%d" % nshot[0])
    HA = T + 16
    ML = T
    OB = T + 8
    G2 = SR
    vM, vLs = "v124", "v125"
    C("P V; each step's wait also clocks one load of x / w_down / wo")
    for i in range(o["b2"]): pv(i)
    if o.get("dbgb2"): A("s_memrealtime s[70:71]")
    A("s_barrier")
    if o.get("dbgb2"): A("s_memrealtime s[72:73]")
    A("ds_read_b128 v[%d:%d], v%d offset:%d" % (ML, ML + 3, T + 31, L_ML))
    A("ds_read_b128 v[%d:%d], v%d offset:%d" % (ML + 4, ML + 7, T + 31, L_ML + 16))
    if not o["hlate"]:
        A("ds_read_b32 %s, %s offset:%d" % (vH0, vHA, L_H))
        A("ds_read_b32 %s, %s offset:%d" % (vH1, vHA, L_H + 16))
    avote = o["vote"] and not o["lastfin"]
    if avote:
        A("v_mov_b32 v%d, 0" % (T + 30))
        A("ds_read_b32 v%d, v%d offset:%d" % (T + 30, T + 30, L_FLAG + 8))
    if not o["cq2"]:
        A("s_mov_b32 s54, 0x55555555")
        A("s_mov_b32 s55, 0x55555555")
    A("v_mov_b32 v%d, %s" % (G2 + 3, sTAG))
    A("s_waitcnt lgkmcnt(%d)" % ((0 if o["hlate"] else 2) + (1 if avote else 0)))
    A("v_max3_f32 %s, v%d, v%d, v%d" % (vM, ML, ML + 2, ML + 4))
    A("v_max_f32 %s, %s, v%d" % (vM, vM, ML + 6))
    for w_ in range(4):
        A("v_sub_f32 v%d, v%d, %s" % (ML + 2 * w_, ML + 2 * w_, vM))
    for w_ in range(4):
        A("v_exp_f32 v%d, v%d" % (ML + 2 * w_, ML + 2 * w_))
    A("s_waitcnt lgkmcnt(0)")
    A("v_mul_f32 %s, v%d, v%d" % (vLs, ML, ML + 1))
    for w_ in range(1, 4):
        A("v_fmac_f32 %s, v%d, v%d" % (vLs, ML + 2 * w_, ML + 2 * w_ + 1))
    def h_operands():
        for a in range(2):
            for r in range(4):
                A("v_and_b32 v%d, %s, v%d" % (HA + 4 * a + r, (vH0, vH1)[a], MK + r))
    A("v_log_f32 v%d, %s" % (G2 + 2, vLs))
    A("v_rcp_f32 %s, %s" % (vLs, vLs))
    if not o["hlate"]: h_operands()
    else: A("s_nop 0")
    if avote: A("v_add_u32 %s, v%d, %s" % (vL3, T + 30, vL3))
    A("v_add_f32 v%d, v%d, %s" % (G2 + 2, G2 + 2, vM))
    for w_ in range(4):
        A("v_mul_f32 v%d, v%d, %s" % (ML + 2 * w_, ML + 2 * w_, vLs))
    for i in range(o["b2"], 8): pv(i)
    stamp(5)
    if o.get("nosync"):
        A("s_waitcnt vmcnt(0)")
        stamp(6)
        A("s_branch L_done")
    C("merge the four waves; wave w publishes head w: {o, o, log2 sum, tag}")
    A("s_nop 6")
    A("ds_write_b128 %s, v[%d:%d] offset:%d" % (vOW, O0, O0 + 3, L_O))
    A("ds_write_b128 %s, v[%d:%d] offset:%d" % (vOW, O1, O1 + 3, L_O + OH))
    A("s_waitcnt lgkmcnt(0)")
    A("s_barrier")
    if o["cq2"]:
        OB4, AC = VR, VR + 16
        A("s_mov_b32 exec_hi, 0")
        for w_ in range(4):
            A("ds_read_b128 v[%d:%d], %s offset:%d" % (OB4 + 4 * w_, OB4 + 4 * w_ + 3, vOR, L_O + w_ * OWV))
        A("s_bitcmp0_b32 %s, 0" % sFAST)
        for w_ in range(4):
            A("s_waitcnt lgkmcnt(%d)" % (3 - w_))
            for hf in range(2):
                if w_ == 0: A("v_pk_mul_f32 %s, %s, %s op_sel_hi:[1,0]" % (P2(AC + 2 * hf), P2(OB4 + 2 * hf), P2(ML)))
                else: A("v_pk_fma_f32 %s, %s, %s, %s op_sel_hi:[1,0,1]" % (P2(AC + 2 * hf), P2(OB4 + 4 * w_ + 2 * hf), P2(ML + 2 * w_), P2(AC + 2 * hf)))
    else:
        for w_ in range(4):
            A("ds_read_b64 v[%d:%d], %s offset:%d" % (OB + 2 * w_, OB + 2 * w_ + 1, vOR, L_O + w_ * 2048))
        A("s_bitcmp0_b32 %s, 0" % sFAST)
        for w_ in range(4):
            A("s_waitcnt lgkmcnt(%d)" % (3 - w_))
            op = "v_mul_f32" if w_ == 0 else "v_fmac_f32"
            A("%s v%d, v%d, v%d" % (op, G2, ML + 2 * w_, OB + 2 * w_))
            A("%s v%d, v%d, v%d" % (op, G2 + 1, ML + 2 * w_, OB + 2 * w_ + 1))
    tails = []
    def publish(addr, g, name):
        A("s_cbranch_scc1 L_slow_%s" % name)
        A("global_store_dwordx4 %s, v[%d:%d], %s %s" % (addr, g, g + 3, sWS, o.get("stfl", "")))
        LB("L_back_%s" % name)
        tails.append((name, addr, g))
    if o["cq2"]:
        A("v_cvt_pk_bf16_f32 v%d, v%d, v%d" % (G2, AC, AC + 1))
        A("v_cvt_pk_bf16_f32 v%d, v%d, v%d" % (G2 + 1, AC + 2, AC + 3))
    else:
        A("v_cvt_pk_bf16_f32 v%d, v%d, v%d" % (G2, G2, G2 + 1))
        A("s_nop 1")
        A("v_mov_b32_dpp v%d, v%d quad_perm:[1,1,3,3] %s" % (G2 + 1, G2, DPP))
        A("s_mov_b64 exec, s[54:55]")
    publish(vS2, G2, "h2")
    A("s_mov_b64 exec, -1")
    stamp(6)
    P = T
    def ask2(k):
        for i in range(2):
            A("global_load_dwordx4 v[%d:%d], %s, %s offset:%d sc1" % (VR + 8 * k + 4 * i, VR + 8 * k + 4 * i + 3, vL2, sWS, i * 1024))
    C("hand-off 2: 32 partial outputs for this workgroup's 16 rows of wo")
    if o["g2"]:
        A("s_cmp_lg_u32 %s, %d" % (sW, o["gw2"]))
        A("s_cselect_b64 exec, 0, -1")
        ask2(0)
        A("s_mov_b64 exec, -1")
    else:
        for i in range(2):
            A("global_load_dwordx4 v[%d:%d], %s, %s offset:%d %s" % (P + 4 * i, P + 4 * i + 3, vL2, sWS, i * 1024, o.get("p2fl", "sc1")))
    for t_ in dnl: A(t_)
    if o["hlate"]:
        A("s_barrier")
        A("ds_read_b32 %s, %s offset:%d" % (vH0, vHA, L_H))
        A("ds_read_b32 %s, %s offset:%d" % (vH1, vHA, L_H + 16))
    A("s_mov_b32 %s, %d" % (sCNT, o["spinmax"]))
    vTAG = "v127"
    sT2 = sTAG
    if o["reuse"]:
        sT2 = "s62"
        A("s_not_b32 %s, %s" % (t0, sTAG))
        A("s_lshl_b32 %s, %s, 24" % (t0, t0))
        A("s_and_b32 s62, %s, 0xffffff" % sTAG)
        A("s_or_b32 s62, s62, %s" % t0)
    A("v_mov_b32 %s, %s" % (vTAG, sT2))
    for k in range(4):
        A("s_mov_b32 s%d, 0x%x" % (56 + k, 0x07060500 | k))
        A("s_bfe_u32 s%d, %s, 0x%x" % (60 + k if k < 2 else 50 + k, sT2, 0x80000 | (8 * k)))
    TB = ["s60", "s61", "s52", "s53"]
    if o["hlate"]:
        A("s_waitcnt lgkmcnt(0)")
        h_operands()
    ndn_early = 2 - len(dnl)
    if o["lastfin"] >= 2: soffs()
    if o["g2"]:
        NP2 = o["g2"]
        A("v_lshlrev_b32 v126, 2, %s" % vHA)
        A("v_and_b32 v125, 3, v0")
        A("v_lshl_add_u32 v165, v125, 2, v126")
        A("s_cmp_lg_u32 %s, %d" % (sW, o["gw2"]))
        A("s_cbranch_scc1 L_wait_a")
        A("s_waitcnt vmcnt(2)")
        for k in range(1, NP2): ask2(k)
        for a in range(2):
            mfma(Y, HA + 4 * a, DNR + 4 * a, None if a == 0 else Y)
        LB("L_poll2b")
        for k in range(NP2):
            for i in range(2):
                a_ = VR + 8 * k + 4 * i
                A("s_waitcnt vmcnt(%d)" % (2 * NP2 - 1 - i))
                A("v_cmp_ne_u32 %s, %s, v%d" % (("vcc", "s[44:45]")[i], sTAG, a_ + 3))
                A("v_pk_mov_b32 %s, %s, %s op_sel:[0,1]" % (P2(P + 4 * i), P2(a_), P2(a_)))
                A("v_mov_b32 v%d, v%d" % (P + 4 * i + 2, a_ + 2))
            A("v_max_f32 %s, v%d, v%d" % (vM, VR + 8 * k + 2, VR + 8 * k + 6))
            A("s_or_b64 vcc, vcc, s[44:45]")
            A("s_and_b64 exec, exec, vcc")
            A("s_cbranch_scc0 L_got2b")
            ask2(k)
        A("s_sub_u32 %s, %s, 1" % (sCNT, sCNT))
        A("s_cbranch_scc0 L_poll2b")
        A("s_endpgm")
        LB("L_wait_a")
        A("s_waitcnt vmcnt(0)")
        for a in range(2):
            mfma(Y, HA + 4 * a, DNR + 4 * a, None if a == 0 else Y)
        A("s_barrier")
        A("ds_read_b128 v[%d:%d], v126 offset:%d" % (T + 24, T + 27, L_A))
        A("s_bitcmp0_b32 %s, 0" % sFAST)
        A("s_waitcnt lgkmcnt(0)")
        for m in range(4):
            for r in range(4):
                A("v_and_b32 v%d, v%d, v%d" % (T + 4 * m + r, T + 24 + m, MK + r))
            if m > 0: mfma(Y, T + 4 * (m - 1), WOR + 4 * (m - 1), Y)
        A("s_branch L_last_mfma")
        LB("L_got2b")
        A("s_mov_b64 exec, -1")
        A("v_max_f32_dpp %s, %s, %s row_ror:4 %s" % (vM, vM, vM, DPP))
        n_g2 = len(L)
    else:
        if o.get("mockx"): ndn_early = 0
        else: A("s_waitcnt vmcnt(%d)" % (3 + len(dnl)))
        if o.get("dbgwo"): A("s_memrealtime s[68:69]")
        for a in range(ndn_early):
            mfma(Y, HA + 4 * a, DNR + 4 * a, None if a == 0 else Y)
        if dnl:
            A("s_waitcnt vmcnt(%d)" % len(dnl))
            A("s_branch L_chk2b")
        else:
            A("s_branch L_chk2")
    LB("L_poll2")
    MS = ["s[44:45]", "s[46:47]"]
    if o["np2"]:
        C("still waiting for some producers: several asks in flight, only for the lanes whose tags were missing")
        NP2 = o["np2"]
        A("s_mov_b64 exec, vcc")
        for k in range(NP2): ask2(k)
        LB("L_poll2b")
        for k in range(NP2):
            for i in range(2):
                a_ = VR + 8 * k + 4 * i
                A("s_waitcnt vmcnt(%d)" % (2 * NP2 - 1 - i))
                A("v_cmp_ne_u32 %s, %s, v%d" % (("vcc", MS[0])[i], sTAG, a_ + 3))
                A("v_pk_mov_b32 %s, %s, %s op_sel:[0,1]" % (P2(P + 4 * i), P2(a_), P2(a_)))
                A("v_mov_b32 v%d, v%d" % (P + 4 * i + 2, a_ + 2))
            A("s_or_b64 vcc, vcc, %s" % MS[0])
            A("s_and_b64 exec, exec, vcc")
            A("s_cbranch_scc0 L_got2b")
            ask2(k)
        A("s_sub_u32 %s, %s, 1" % (sCNT, sCNT))
        A("s_cbranch_scc0 L_poll2b")
        A("s_endpgm")
        LB("L_got2b")
        A("s_mov_b64 exec, -1")
        A("v_max_f32 %s, v%d, v%d" % (vM, P + 2, P + 6))
        A("s_nop 1")
        A("v_max_f32_dpp %s, %s, %s row_ror:4 %s" % (vM, vM, vM, DPP))
        A("s_nop 0")
        A("s_branch L_got2")
    else:
        for i in range(2):
            if o["mask2"]: A("s_mov_b64 exec, %s" % MS[i])
            A("global_load_dwordx4 v[%d:%d], %s, %s offset:%d sc1" % (P + 4 * i, P + 4 * i + 3, vL2, sWS, i * 1024))
        if o["mask2"]: A("s_mov_b64 exec, -1")
        A("s_sub_u32 %s, %s, 1" % (sCNT, sCNT))
        A("s_cbranch_scc1 L_end")
    LB("L_chk2")
    A("s_waitcnt vmcnt(0)")
    LB("L_chk2b")
    A("v_max_f32 %s, v%d, v%d" % (vM, P + 2, P + 6))
    for i in range(2):
        A("v_cmp_ne_u32 %s, %s, v%d" % (MS[i], sTAG, P + 4 * i + 3))
    A("v_max_f32_dpp %s, %s, %s row_ror:4 %s" % (vM, vM, vM, DPP))
    A("s_or_b64 vcc, %s, %s" % (MS[0], MS[1]))
    A("s_cbranch_scc1 L_poll2")
    if o["np2"]: LB("L_got2")
    if o["g2"]: del L[n_g2:]
    stamp(7)
    if o.get("tpos", "g") == "g":
        for t_ in taft: A(t_)
    sshot(1)
    U = T + 8
    def unp(i, k):
        if k & 1: A("v_and_b32 v%d, %s, v%d" % (U + 4 * i + k, t1, P + 4 * i + (k >> 1)))
        else: A("v_lshlrev_b32 v%d, 16, v%d" % (U + 4 * i + k, P + 4 * i + (k >> 1)))
    vt2 = "v126"
    w0, w1 = "v120", "v122"
    den, tA, tB = "v126", "v124", "v123"
    if o["g2"]:
        unp(0, 0); unp(0, 1)
        A("v_max_f32_dpp %s, %s, %s row_ror:8 %s" % (vM, vM, vM, DPP))
        A("v_mov_b32 %s, %s" % (vt2, vM))
        unp(0, 2); unp(0, 3)
        A("v_permlane16_swap_b32 %s, %s" % (vt2, vM))
        A("v_max_f32 %s, %s, %s" % (vM, vM, vt2))
        A("v_mov_b32 %s, %s" % (vt2, vM))
        unp(1, 0); unp(1, 1)
        A("v_permlane32_swap_b32 %s, %s" % (vt2, vM))
        A("v_max_f32 %s, %s, %s" % (vM, vM, vt2))
        A("v_sub_f32 %s, v%d, %s" % (w0, P + 2, vM))
        A("v_sub_f32 %s, v%d, %s" % (w1, P + 6, vM))
        A("v_exp_f32 %s, %s" % (w0, w0))
        A("v_exp_f32 %s, %s" % (w1, w1))
        unp(1, 2)
        A("v_add_f32 %s, %s, %s" % (den, w0, w1))
        unp(1, 3)
        A("v_pk_mul_f32 %s, %s, v[120:121] op_sel_hi:[1,0]" % (P2(U), P2(U)))
        A("v_add_f32_dpp %s, %s, %s row_ror:4 %s" % (den, den, den, DPP))
        A("v_pk_mul_f32 %s, %s, v[120:121] op_sel_hi:[1,0]" % (P2(U + 2), P2(U + 2)))
        A("v_pk_fma_f32 %s, %s, v[122:123], %s op_sel_hi:[1,0,1]" % (P2(U), P2(U + 4), P2(U)))
        A("v_add_f32_dpp %s, %s, %s row_ror:8 %s" % (den, den, den, DPP))
        A("v_pk_fma_f32 %s, %s, v[122:123], %s op_sel_hi:[1,0,1]" % (P2(U + 2), P2(U + 6), P2(U + 2)))
    else:
        A("v_max_f32_dpp %s, %s, %s row_ror:8 %s" % (vM, vM, vM, DPP))
        A("v_mov_b32 %s, %s" % (vt2, vM))
        unp(0, 0); unp(0, 1)
        A("v_permlane16_swap_b32 %s, %s" % (vt2, vM))
        A("v_max_f32 %s, %s, %s" % (vM, vM, vt2))
        A("v_mov_b32 %s, %s" % (vt2, vM))
        unp(0, 2); unp(0, 3)
        A("v_permlane32_swap_b32 %s, %s" % (vt2, vM))
        A("v_max_f32 %s, %s, %s" % (vM, vM, vt2))
        w0, w1 = "v120", "v122"
        A("v_sub_f32 %s, v%d, %s" % (w0, P + 2, vM))
        A("v_sub_f32 %s, v%d, %s" % (w1, P + 6, vM))
        A("v_exp_f32 %s, %s" % (w0, w0))
        A("v_exp_f32 %s, %s" % (w1, w1))
        unp(1, 0)
        den, tA, tB = "v126", "v124", "v123"
        A("v_add_f32 %s, %s, %s" % (den, w0, w1))
        unp(1, 1); unp(1, 2)
        A("v_add_f32_dpp %s, %s, %s row_ror:4 %s" % (den, den, den, DPP))
        unp(1, 3)
        A("v_pk_mul_f32 %s, %s, v[120:121] op_sel_hi:[1,0]" % (P2(U), P2(U)))
        A("v_add_f32_dpp %s, %s, %s row_ror:8 %s" % (den, den, den, DPP))
        A("v_pk_mul_f32 %s, %s, v[120:121] op_sel_hi:[1,0]" % (P2(U + 2), P2(U + 2)))
        A("v_pk_fma_f32 %s, %s, v[122:123], %s op_sel_hi:[1,0,1]" % (P2(U), P2(U + 4), P2(U)))
        A("v_pk_fma_f32 %s, %s, v[122:123], %s op_sel_hi:[1,0,1]" % (P2(U + 2), P2(U + 6), P2(U + 2)))
    A("v_mov_b32 %s, %s" % (tA, den))
    A("s_bitcmp0_b32 %s, 0" % sFAST)
    A("v_permlane32_swap_b32 v%d, v%d" % (U, U + 2))
    A("v_permlane32_swap_b32 v%d, v%d" % (U + 1, U + 3))
    A("v_permlane32_swap_b32 %s, %s" % (tA, den))
    A("v_pk_add_f32 %s, %s, %s" % (P2(U), P2(U), P2(U + 2)))
    A("v_add_f32 %s, %s, %s" % (den, den, tA))
    A("s_mov_b32 %s, %d" % (sCNT, o["spinmax"]))
    A("v_permlane16_swap_b32 v%d, v%d" % (U, U + 1))
    A("v_mov_b32 %s, %s" % (tA, den))
    A("v_add_f32 v%d, v%d, v%d" % (U, U, U + 1))
    A("s_nop 0")
    A("v_permlane16_swap_b32 %s, %s" % (tA, den))
    A("v_add_f32_dpp v%d, v%d, v%d row_ror:4 %s" % (U, U, U, DPP))
    A("v_add_f32 %s, %s, %s" % (den, den, tA))
    A("v_rcp_f32 %s, %s" % (den, den))
    A("v_add_f32_dpp v%d, v%d, v%d row_ror:8 %s" % (U, U, U, DPP))
    a0 = "v125"
    A("v_mul_f32 %s, v%d, %s" % (a0, U, den))
    A("v_cvt_pk_bf16_f32 %s, %s, %s" % (a0, a0, a0))
    if o.get("mockx"):
        GX, PXS = 120, VR
        A("v_mov_b32 v%d, %s" % (GX + 3, sTAG))
        A("s_cmp_gt_u32 %s, 1" % sW)
        A("v_mov_b32_dpp v%d, %s quad_perm:[0,0,2,2] %s" % (GX, a0, DPP))
        A("v_mov_b32_dpp v%d, %s quad_perm:[1,1,3,3] %s" % (GX + 1, a0, DPP))
        A("s_cselect_b64 exec, 0, 15")
        A("global_store_dwordx4 %s, v[%d:%d], %s sc1" % (vS3, GX, GX + 3, sWS))
        A("s_mov_b64 exec, -1")
        stamp(1)
        if o.get("tpos") == "x":
            for t_ in taft: A(t_)
        A("s_mov_b64 exec, 0xff")
        LB("L_pollx")
        A("global_load_dwordx4 v[%d:%d], %s, %s sc1" % (PXS, PXS + 3, vL3, sWS))
        A("s_sub_u32 %s, %s, 1" % (sCNT, sCNT))
        A("s_cbranch_scc1 L_end")
        A("s_waitcnt vmcnt(0)")
        A("v_cmp_ne_u32 vcc, %s, v%d" % (sTAG, PXS + 3))
        A("v_mov_b32 %s, v%d" % (a0, PXS))
        A("s_and_b64 exec, exec, vcc")
        A("s_cbranch_scc1 L_pollx")
        A("s_mov_b64 exec, -1")
        stamp(10)
        A("s_bitcmp0_b32 %s, 0" % sFAST)
        for a in range(2):
            mfma(Y, HA + 4 * a, DNR + 4 * a, None if a == 0 else Y)
        ndn_early = 2
    if o["g2"]:
        if o.get("g2x"):
            A("s_mov_b32 exec_lo, 0x000f000f")
            A("s_mov_b32 exec_hi, 0x000f000f")
        A("ds_write_b32 v165, %s offset:%d" % (a0, L_A))
        if o.get("g2x"): A("s_mov_b64 exec, -1")
        A("s_waitcnt lgkmcnt(0)")
        A("s_barrier")
    else:
        A("s_nop 1")
    WA = T
    for m in range(4):
        for r in range(4):
            A("v_and_b32_dpp v%d, %s, v%d row_newbcast:%d %s" % (WA + 4 * m + r, a0, MK + r, m, DPP))
        if m > 0:
            mfma(Y, WA + 4 * (m - 1), WOR + 4 * (m - 1), Y if (m > 1 or ndn_early) else None)
    if dnl:
        A("s_waitcnt vmcnt(0)")
        for a in range(ndn_early, 2):
            mfma(Y, HA + 4 * a, DNR + 4 * a, Y)
    else:
        if o["g2"]: LB("L_last_mfma")
        A("s_nop 1")
    mfma(Y, WA + 12, WOR + 12, Y)
    A("s_mov_b32 exec_hi, 0")
    if o["reuse"] and not o["g2"]:
        A("s_barrier")
        A("s_nop 5")
    else:
        A("s_nop 6")
    for k in range(4):
        A("v_perm_b32 v%d, v%d, %s, s%d" % (Y + k, Y + k, vTAG, 56 + k))
    publish(vS25, Y, "h25")
    stamp(8)
    sshot(2)
    def tail_g25():
        PS = T + 16
        C("hand-off 3: one wave sums the group's 32 partial results for 16 columns")
        A("s_cmp_lg_u32 %s, %d" % (sW, o["gw"]))
        A("s_cbranch_scc1 L_done")
        A("s_mov_b64 exec, -1")
        if o.get("ack25") == 1: A("s_waitcnt vmcnt(0)")
        NP = o["np25"]
        PK = [PS, PS + 8, WOR, WOR + 8, DNR]
        def ask(k):
            A("global_load_dwordx4 v[%d:%d], %s, %s sc1" % (PK[k], PK[k] + 3, vL25, sWS))
            A("global_load_dwordx4 v[%d:%d], v164, %s sc1" % (PK[k] + 4, PK[k] + 7, sWS))
        def look(k):
            A("s_waitcnt vmcnt(%d)" % (2 * NP - 1))
            for q in range(4): A("v_xor_b32 v%d, %s, v%d" % (P + q, TB[q], PK[k] + q))
            A("v_or3_b32 %s, v%d, v%d, v%d" % (tA, P, P + 1, P + 2))
            A("s_waitcnt vmcnt(%d)" % (2 * NP - 2))
            for q in range(4): A("v_xor_b32 v%d, %s, v%d" % (P + 4 + q, TB[q], PK[k] + 4 + q))
            A("v_or3_b32 %s, %s, v%d, v%d" % (tA, tA, P + 3, P + 4))
            A("v_or3_b32 %s, %s, v%d, v%d" % (tA, tA, P + 5, P + 6))
            A("v_or_b32_sdwa %s, %s, v%d dst_sel:DWORD dst_unused:UNUSED_PAD src0_sel:BYTE_0 src1_sel:BYTE_0" % (tA, tA, P + 7))
            A("v_cmp_ne_u32 vcc, 0, %s" % tA)
            A("s_and_b64 exec, exec, vcc")
        def masks():
            A("s_lshl_b32 s46, 0x01010101, %s" % sH)
            A("s_not_b32 s46, s46")
            A("s_mov_b32 s47, s46")
            if o["cq25"]:
                A("s_lshr_b32 s41, %s, 2" % sJ)
                A("s_and_b32 s41, s41, 6")
                A("s_bfe_u32 %s, %s, 0x10001" % (t0, sJ))
                A("s_or_b32 s41, s41, %s" % t0)
        if NP == 1:
            masks()
            LB("L_poll25")
            ask(0)
            A("s_sub_u32 %s, %s, 1" % (sCNT, sCNT))
            A("s_cbranch_scc1 L_end")
            look(0)
            A("s_cbranch_scc1 L_poll25")
        else:
            pre = o.get("pre25", 1)
            for k in range(NP):
                if k == pre:
                    if o.get("ack25") == 2: A("s_waitcnt vmcnt(%d)" % (2 * pre))
                    for _ in range(o.get("stag25", 0)): A("s_nop 7")
                ask(k)
            masks()
            LB("L_poll25")
            for k in range(NP):
                look(k)
                A("s_cbranch_scc0 L_got25")
                ask(k)
            A("s_sub_u32 %s, %s, 1" % (sCNT, sCNT))
            A("s_cbranch_scc0 L_poll25")
            A("s_endpgm")
            LB("L_got25")
        A("s_mov_b64 exec, -1")
        stamp(9)
        if o.get("ampm"): A("s_memrealtime s[86:87]")
        x_, y_ = "v%d" % P, "v%d" % (P + 1)
        A("v_pk_add_f32 %s, %s, %s" % (P2(P), P2(P), P2(P + 4)))
        A("v_pk_add_f32 %s, %s, %s" % (P2(P + 2), P2(P + 2), P2(P + 6)))
        if o["cq25"]:
            A("s_cmp_eq_u32 s41, %s" % sH)
            A("s_nop 0")
        else:
            A("s_lshr_b32 %s, %s, 2" % (t0, sJ) if o["finhi"] else "s_and_b32 %s, %s, 7" % (t0, sJ))
            A("s_cmp_eq_u32 %s, %s" % (t0, sH))
        A("v_permlane32_swap_b32 v%d, v%d" % (P, P + 2))
        A("v_permlane32_swap_b32 v%d, v%d" % (P + 1, P + 3))
        A("v_pk_add_f32 %s, %s, %s" % (P2(P), P2(P), P2(P + 2)))
        A("v_mov_b32 v%d, %s" % (P + 3, sTAG))
        A("s_mov_b32 s44, 0xff")
        for rot_ in (4, 8):
            A("v_add_f32_dpp %s, %s, %s row_ror:%d %s" % (x_, x_, x_, rot_, DPP))
            A("v_add_f32_dpp %s, %s, %s row_ror:%d %s" % (y_, y_, y_, rot_, DPP))
            if rot_ == 4: A("s_mov_b32 s45, s44")
        A("v_mov_b32 v%d, %s" % (P + 4, x_))
        A("v_mov_b32 v%d, %s" % (P + 5, y_))
        A("s_nop 0")
        A("v_permlane16_swap_b32 v%d, %s" % (P + 4, x_))
        A("v_permlane16_swap_b32 v%d, %s" % (P + 5, y_))
        A("v_pk_add_f32 %s, %s, %s" % (P2(P), P2(P), P2(P + 4)))
        A("s_cbranch_scc1 L_final")
        A("s_mov_b64 exec, s[44:45]")
        A("global_store_dwordx4 %s, v[%d:%d], %s sc1" % (vS3, P, P + 3, sWS))
        if o.get("clean"):
            C("the slots just read are dead: push them out of the cache now rather than at the end of the launch")
            A("s_mov_b64 exec, -1")
            for q in range(4): A("v_mov_b32 v%d, %s" % (P + 8 + q, sTAG))
            if o["clean"] & 2:
                A("s_bitcmp1_b32 %s, 0" % sJ)
                A("s_cbranch_scc1 L_done")
            if o["clean"] & 4:
                A("s_mov_b32 exec_lo, 0x11111111")
                A("s_mov_b32 exec_hi, 0x11111111")
            A("global_store_dwordx4 %s, v[%d:%d], %s sc1" % (vL25, P + 8, P + 11, sWS))
            A("global_store_dwordx4 v164, v[%d:%d], %s sc1" % (P + 8, P + 11, sWS))
        A("s_branch L_done")
        LB("L_final")
        C("hand-off 4: lane = (pair, quad, group); the four workgroups that finish one output line sit in one group")
        if o.get("stfin"): stamp(1)
        if o.get("xstag"): A("global_load_dword %s, %s, %s nt" % (vXP, vXF, sX))
        A("s_mov_b64 exec, s[46:47]")
        NP = o["np3"]
        PS = VR
        X = P + 4
        A("global_load_dwordx4 v[%d:%d], %s, %s sc1" % (PS, PS + 3, vL3, sWS))
        A("s_mov_b64 exec, -1")
        A("s_mov_b32 %s, %d" % (sCNT, o["spinmax"]))
        for q in range(4):
            for r in range(2):
                A("v_mov_b32_dpp v%d, v%d row_newbcast:%d row_mask:0x%x bank_mask:0x%x" % (X + r, P + r, q, (5, 10)[q >> 1], (3, 12)[q & 1]))
        if not o.get("xstag"):
            A("v_lshlrev_b32 v%d, 16, %s" % (P, vXP))
            A("v_and_b32 v%d, %s, %s" % (P + 1, t1, vXP))
            A("v_pk_add_f32 %s, %s, %s" % (P2(X), P2(X), P2(P)))
        if o["efull"]:
            A("v_lshlrev_b32 %s, 4, v0" % tA)
            for q in range(4): A("v_mov_b32 v%d, %s" % (P + 8 + q, sTAG))
        A("s_mov_b32 s44, 0x01010101")
        A("s_mov_b32 s45, s44")
        A("s_mov_b64 exec, s[46:47]")
        for k in range(1, NP):
            if o.get("xstag") and k == 1: A("s_waitcnt vmcnt(1)")
            for _ in range(o.get("stag3", 0) + (2 if k > 1 and o.get("stag3") else 0)): A("s_nop 7")
            A("global_load_dwordx4 v[%d:%d], %s, %s sc1" % (PS + 4 * k, PS + 4 * k + 3, vL3, sWS))
        LB("L_poll3")
        for k in range(NP):
            A("s_waitcnt vmcnt(%d)" % (NP - 1))
            A("v_cmp_ne_u32 vcc, %s, v%d" % (sTAG, PS + 4 * k + 3))
            A("v_mov_b32 v%d, v%d" % (X, PS + 4 * k))
            A("v_mov_b32 v%d, v%d" % (X + 1, PS + 4 * k + 1))
            A("s_and_b64 exec, exec, vcc")
            A("s_cbranch_scc0 L_got3")
            A("global_load_dwordx4 v[%d:%d], %s, %s sc1" % (PS + 4 * k, PS + 4 * k + 3, vL3, sWS))
        A("s_sub_u32 %s, %s, 1" % (sCNT, sCNT))
        A("s_cbranch_scc0 L_poll3")
        A("s_endpgm")
        LB("L_got3")
        stamp(10)
        if o.get("ampf"):
            A("s_waitcnt vmcnt(0)")
            A("s_memrealtime s[86:87]")
        A("s_mov_b64 exec, -1")
        x_, y_ = "v%d" % X, "v%d" % (X + 1)
        fl = ["s_cmp_lg_u32 s2, 0", "s_nop 0"]
        if o.get("xstag"): fl = ["v_lshlrev_b32 %s, 16, %s" % (tA, vXP), "v_and_b32 %s, %s, %s" % (tB, t1, vXP)]
        for pat in ("quad_perm:[1,0,3,2]", "quad_perm:[2,3,0,1]", "row_half_mirror"):
            A("v_add_f32_dpp %s, %s, %s %s %s" % (x_, x_, x_, pat, DPP))
            A("v_add_f32_dpp %s, %s, %s %s %s" % (y_, y_, y_, pat, DPP))
            if fl: A(fl.pop(0))
        if o.get("xstag"):
            A("v_add_f32 %s, %s, %s" % (x_, x_, tA))
            A("v_add_f32 %s, %s, %s" % (y_, y_, tB))
            A("s_cmp_lg_u32 s2, 0")
        A("v_cvt_pk_bf16_f32 %s, %s, %s" % (x_, x_, y_))
        A("s_mov_b64 exec, s[44:45]")
        A("global_store_dword %s, %s, %s %s" % (vXF, x_, sOUT, o.get("ofl", "")))
        if o.get("ampf"):
            A("s_waitcnt vmcnt(0)")
            A("s_memrealtime s[88:89]")
            A("s_waitcnt lgkmcnt(0)")
            A("s_sub_u32 s88, s88, s86")
            A("s_mul_i32 s88, s88, 40")
            A("s_min_u32 s88, s88, 20000")
            A("s_add_u32 s88, s88, 1500")
            LB("L_fspin")
            A("s_memrealtime s[92:93]")
            A("s_waitcnt lgkmcnt(0)")
            A("s_sub_u32 s92, s92, s90")
            A("s_cmp_lt_u32 s92, s88")
            A("s_cbranch_scc1 L_fspin")
            A("s_cmp_lg_u32 s2, 0")
        A("s_cbranch_scc1 L_done")
        C("the next launch must not mistake this launch's hand-off words for its own")
        if o["efull"]:
            A("s_mov_b64 exec, 0xff")
            A("global_store_dwordx4 %s, v[%d:%d], %s %s" % (tA, P + 8, P + 11, sWS, o.get("efl", "")))
        else:
            A("s_mov_b64 exec, 1")
            A("v_mov_b32 %s, 0" % tA)
            A("v_mov_b32 %s, %s" % (tB, sTAG))
            A("global_store_dword %s, %s, %s %s" % (tA, tB, sWS, o.get("efl", "")))
    nkeep = len(L)
    NP = o["np25"]
    PS = T + 16
    if o.get("ack25") == 1: A("s_waitcnt vmcnt(0)")
    sshot(8)
    for _ in range(o.get("dly25", 0)): A("s_nop 7")
    for k in range(NP):
        if k == 1 and o.get("ack25") == 2: A("s_waitcnt vmcnt(1)")
        if k == 1:
            for _ in range(o.get("stag25", 0)): A("s_nop 7")
        A("global_load_dwordx4 v[%d:%d], %s, %s sc1" % (PS + 4 * k, PS + 4 * k + 3, vL25, sWS))
    sshot(4)
    LB("L_poll25")
    for k in range(NP):
        A("s_waitcnt vmcnt(%d)" % (NP - 1))
        for q in range(4):
            A("v_xor_b32 v%d, %s, v%d" % (P + q, TB[q], PS + 4 * k + q))
        A("v_or3_b32 %s, v%d, v%d, v%d" % (tA, P, P + 1, P + 2))
        A("v_or_b32_sdwa %s, %s, v%d dst_sel:DWORD dst_unused:UNUSED_PAD src0_sel:BYTE_0 src1_sel:BYTE_0" % (tA, tA, P + 3))
        A("v_cmp_ne_u32 vcc, 0, %s" % tA)
        if o["mask25"]:
            A("s_and_b64 exec, exec, vcc")
            A("s_cbranch_scc0 L_got25")
        else:
            A("s_cbranch_vccz L_got25")
        A("global_load_dwordx4 v[%d:%d], %s, %s sc1" % (PS + 4 * k, PS + 4 * k + 3, vL25, sWS))
    A("s_sub_u32 %s, %s, 1" % (sCNT, sCNT))
    A("s_cbranch_scc0 L_poll25")
    A("s_endpgm")
    LB("L_got25")
    A("s_mov_b64 exec, -1")
    stamp(9)
    if o.get("ampm"): A("s_memrealtime s[86:87]")
    x_, y_ = "v%d" % P, "v%d" % (P + 1)
    A("v_permlane16_swap_b32 v%d, v%d" % (P, P + 2))
    A("v_permlane16_swap_b32 v%d, v%d" % (P + 1, P + 3))
    A("v_add_f32 %s, %s, v%d" % (x_, x_, P + 2))
    A("v_add_f32 %s, %s, v%d" % (y_, y_, P + 3))
    fl = ["v_mov_b32 v%d, %s" % (P + 3, sTAG), "s_and_b32 %s, %s, 7" % (t0, sJ), "s_cmp_eq_u32 %s, %s" % (t0, sH), "s_nop 0"]
    if o["lastfin"]: fl = ["v_mov_b32 v%d, %s" % (P + 3, sTAG), "s_bitcmp1_b32 %s, 1" % sFAST, "s_nop 0", "s_nop 0"]
    for rot_ in (1, 2, 4, 8):
        A(fl.pop(0))
        A("v_add_f32_dpp %s, %s, %s row_ror:%d %s" % (x_, x_, x_, rot_, DPP))
        A("v_add_f32_dpp %s, %s, %s row_ror:%d %s" % (y_, y_, y_, rot_, DPP))
    def old_final():
        if o.get("ewg"): A("s_xor_b32 s63, s2, %d" % o["ewg"])
        if o.get("otouch"):
            A("global_load_dword v158, %s, %s" % (vXF, sOUT))
        if o.get("xstag"): A("global_load_dword %s, %s, %s %s" % (vXP, vXF, sX, o["xstag"] if isinstance(o["xstag"], str) else "nt"))
        A("s_lshl_b32 %s, 0x10001, %s" % (t0, sH))
        A("s_andn2_b32 exec_lo, 0xff00ff, %s" % t0)
        A("s_mov_b32 exec_hi, 0")
        A("s_mov_b32 %s, %d" % (sCNT, o["spinmax"]))
        NP = o["np3"]
        PS = VR
        if o["lastfin"] == 2 and o.get("sshot", 2):
            A("s_waitcnt lgkmcnt(0)")
            for k in range(1, 8): A("s_xor_b32 s%d, s%d, %s" % (12 + k, 12 + k, sTAG))
            A("s_or_b32 s13, s13, s14")
            A("s_or_b64 s[16:17], s[16:17], s[18:19]")
            A("s_or_b32 s13, s13, s15")
            A("s_or_b32 s16, s16, s17")
            if o["stamps"]: A("s_memrealtime s[68:69]")
            A("s_or_b32 s13, s13, s16")
            if o["stamps"]: A("s_cselect_b32 s66, 1, 2")
            A("s_cbranch_scc1 L_ask3")
            A("global_load_dwordx4 v[%d:%d], %s, %s %s" % (PS, PS + 3, vL3, sWS, o.get("hfl", "")))
            A("s_branch L_poll3")
            LB("L_ask3")
        for k in range(NP):
            if o.get("xstag") and k == 1: A("s_waitcnt vmcnt(1)")
            A("global_load_dwordx4 v[%d:%d], %s, %s sc1" % (PS + 4 * k, PS + 4 * k + 3, vL3, sWS))
        LB("L_poll3")
        for k in range(NP):
            A("s_waitcnt vmcnt(%d)" % (NP - 1))
            A("v_cmp_ne_u32 vcc, %s, v%d" % (sTAG, PS + 4 * k + 3))
            A("v_mov_b32 v%d, v%d" % (P, PS + 4 * k))
            A("v_mov_b32 v%d, v%d" % (P + 1, PS + 4 * k + 1))
            A("s_and_b64 exec, exec, vcc")
            A("s_cbranch_scc0 L_got3")
            A("global_load_dwordx4 v[%d:%d], %s, %s sc1" % (PS + 4 * k, PS + 4 * k + 3, vL3, sWS))
        A("s_sub_u32 %s, %s, 1" % (sCNT, sCNT))
        A("s_cbranch_scc0 L_poll3")
        A("s_endpgm")
        LB("L_got3")
        stamp(10)
        A("s_mov_b32 exec_lo, -1")
        A("v_lshlrev_b32 %s, 16, %s" % (tA, vXP))
        A("v_and_b32 %s, %s, %s" % (tB, t1, vXP))
        for pat in ("quad_perm:[1,0,3,2]", "quad_perm:[2,3,0,1]", "row_half_mirror"):
            A("v_add_f32_dpp %s, %s, %s %s %s" % (x_, x_, x_, pat, DPP))
            A("v_add_f32_dpp %s, %s, %s %s %s" % (y_, y_, y_, pat, DPP))
            if pat != "row_half_mirror": A("s_nop 0")
        A("v_add_f32 %s, %s, %s" % (x_, x_, tA))
        A("v_add_f32 %s, %s, %s" % (y_, y_, tB))
        if o.get("perturb"):
            import struct
            bits = struct.unpack("<I", struct.pack("<f", float(o["perturb"])))[0]
            if o.get("pall"):
                A("v_mul_f32 %s, 0x%x, %s" % (x_, bits, x_)); A("v_mul_f32 %s, 0x%x, %s" % (y_, bits, y_))
            else:
                A("s_or_b32 %s, s2, %s" % (t0, sW))
                A("s_cselect_b32 %s, 0, 0x%x" % (t0, bits))
                A("v_add_f32 %s, %s, %s" % (x_, t0, x_))
        A("v_cvt_pk_bf16_f32 %s, %s, %s" % (x_, x_, y_))
        A("s_mov_b64 exec, 0x10001")
        A("global_store_dword %s, %s, %s %s" % (vXF, x_, sOUT, o.get("ofl", "")))
        A("s_or_b32 %s, %s, %s" % (t0, sJ if o["lastfin"] else "s2" if not o.get("ewg") else "s63", sW))
        A("s_cbranch_scc1 L_done")
        C("the next launch must not mistake this launch's hand-off words for its own")
        A("v_mov_b32 %s, 0" % tA)
        A("v_mov_b32 %s, %s" % (tB, sTAG))
        A("global_store_dword %s, %s, %s %s" % (tA, tB, sWS, o.get("efl", "")))
    def diag_end():
        if o.get("ampm"):
            A("s_or_b32 %s, %s, %s" % (t0, sJ, sW))
            A("s_cbranch_scc1 L_nom")
            A("s_mov_b64 exec, -1")
            A("s_waitcnt lgkmcnt(0)")
            A("s_lshl_b32 %s, %s, 2" % (t0, sH))
            A("v_mov_b32 v2, %s" % t0)
            A("s_or_b32 s86, s86, 1")
            A("v_mov_b32 v3, s86")
            A("global_store_dword v2, v3, s[24:25] offset:192 sc1")
            A("s_cmp_lg_u32 s2, 0")
            A("s_cbranch_scc1 L_nom")
            A("v_and_b32 v2, 7, v0")
            A("v_lshlrev_b32 v2, 2, v2")
            A("s_movk_i32 s85, 1000")
            LB("L_mpoll")
            A("global_load_dword v3, v2, s[24:25] offset:192 sc1")
            A("global_load_dword v4, v2, s[24:25] offset:128 sc1")
            A("s_sub_u32 s85, s85, 1")
            A("s_cbranch_scc1 L_nom")
            A("s_waitcnt vmcnt(0)")
            A("v_cmp_eq_u32 vcc, 0, v3")
            A("s_cbranch_vccnz L_mpoll")
            for g_ in range(8): A("v_readlane_b32 s%d, v3, %d" % (64 + g_, g_))
            for g_ in range(8): A("v_readlane_b32 s%d, v4, %d" % (72 + g_, g_))
            A("s_nop 3")
            for g_ in range(16): A("s_sub_u32 s%d, s%d, s90" % (64 + g_, 64 + g_))
            md = o["ampm"]
            if md >= 10:
                for g_ in range(8): A("s_mov_b32 s%d, s%d" % (64 + g_, 72 + g_))
                md -= 10
            key = {1: 64, 2: 72}.get(md)
            A("s_mov_b32 s80, s64")
            A("s_mov_b32 s81, s%d" % (key or 64))
            A("s_mov_b32 s82, 0x80000000")
            for g_ in range(1, 8):
                if key:
                    A("s_cmp_gt_i32 s%d, s81" % (key + g_))
                    A("s_cselect_b32 s83, s80, s%d" % (64 + g_))
                    A("s_cselect_b32 s80, s%d, s80" % (64 + g_))
                    A("s_cselect_b32 s81, s%d, s81" % (key + g_))
                    A("s_max_i32 s82, s82, s83")
                else:
                    A("s_max_i32 s82, s82, s%d" % (64 + g_))
            A("s_sub_i32 s88, s80, s82")
            A("s_add_i32 s88, s88, 100")
            A("s_max_i32 s88, s88, 0")
            A("s_mul_i32 s88, s88, 20")
            A("s_min_u32 s88, s88, 20000")
            A("s_add_u32 s88, s88, 1500")
            LB("L_mspin")
            A("s_memrealtime s[92:93]")
            A("s_waitcnt lgkmcnt(0)")
            A("s_sub_u32 s92, s92, s90")
            A("s_cmp_lt_u32 s92, s88")
            A("s_cbranch_scc1 L_mspin")
            LB("L_nom")
        if o.get("lateh") is not None:
            A("s_or_b32 %s, s2, %s" % (t0, sW))
            A("s_cbranch_scc1 L_nolate")
            A("s_mov_b64 exec, -1")
            A("v_and_b32 v2, 7, v0")
            A("v_lshlrev_b32 v2, 2, v2")
            A("global_load_dword v3, v2, s[24:25] sc1")
            A("s_waitcnt vmcnt(0)")
            for g_ in range(8): A("v_readlane_b32 s%d, v3, %d" % (64 + g_, g_))
            A("s_nop 3")
            for g_ in range(8): A("s_sub_u32 s%d, s%d, s90" % (64 + g_, 64 + g_))
            A("s_mov_b32 s72, s64")
            for g_ in range(1, 8): A("s_min_i32 s72, s72, s%d" % (64 + g_))
            if o["lateh"] == 8:
                A("s_mov_b32 s88, s64")
                for g_ in range(1, 8): A("s_max_i32 s88, s88, s%d" % (64 + g_))
            else:
                A("s_mov_b32 s88, s%d" % (64 + o["lateh"]))
            A("s_sub_u32 s88, s88, s72")
            A("s_mul_i32 s88, s88, 20")
            A("s_min_u32 s88, s88, 20000")
            A("s_add_u32 s88, s88, 1500")
            A("s_add_u32 s88, s88, s72")
            LB("L_latespin")
            A("s_memrealtime s[92:93]")
            A("s_waitcnt lgkmcnt(0)")
            A("s_sub_u32 s92, s92, s90")
            A("s_cmp_lt_u32 s92, s88")
            A("s_cbranch_scc1 L_latespin")
            LB("L_nolate")
        amp_end("")
        if o.get("pad"):
            LB("L_padspin")
            A("s_memrealtime s[92:93]")
            A("s_waitcnt lgkmcnt(0)")
            A("s_sub_u32 s92, s92, s90")
            A("s_cmp_lt_u32 s92, %d" % o["pad"])
            A("s_cbranch_scc1 L_padspin")
    if o.get("mockx"):
        A("v_lshlrev_b32 %s, 16, %s" % (tA, vXP))
        A("v_and_b32 %s, %s, %s" % (tB, t1, vXP))
        A("v_add_f32 %s, %s, %s" % (x_, x_, tA))
        A("v_add_f32 %s, %s, %s" % (y_, y_, tB))
        A("v_cvt_pk_bf16_f32 %s, %s, %s" % (x_, x_, y_))
        A("s_mov_b64 exec, 0x10001")
        A("s_cbranch_scc0 L_done")
        A("global_store_dword %s, %s, %s" % (vXF, x_, sOUT))
        A("s_or_b32 %s, s2, %s" % (t0, sW))
        A("s_cbranch_scc1 L_done")
        A("v_mov_b32 %s, 0" % tA)
        A("v_mov_b32 %s, %s" % (tB, sTAG))
        A("global_store_dword %s, %s, %s" % (tA, tB, sWS))
        A("s_branch L_done")
    A("s_cbranch_scc1 L_final")
    A("s_mov_b64 exec, 0x%x" % (0x30003 if o["rep3"] or o["vote"] else 0x10001))
    A("global_store_dwordx4 %s, v[%d:%d], %s sc1" % (vS3, P, P + 3, sWS))
    if o.get("wb"):
        A("s_or_b32 %s, %s, %s" % (t0, sW, sJ) if o["wb"] == 1 else "s_and_b32 %s, %s, 3" % (t0, sW))
        A("s_cmp_lg_u32 %s, %d" % (t0, 8 if o["wb"] == 1 else 0))
        A("s_cbranch_scc1 L_done")
        A("buffer_wbl2 sc1")
    A("s_branch L_done")
    LB("L_final")
    if o["lastfin"] == 1:
        A("s_mov_b64 exec, 0x10001")
        A("ds_write_b128 %s, v[%d:%d] offset:%d" % (vL3, P, P + 3, L_FIN))
        A("s_waitcnt lgkmcnt(0)")
    else:
        old_final()
    if o["g25"]:
        del L[nkeep:]
        tail_g25()
    LB("L_done")
    diag_end()
    dump_stamps()
    A("s_endpgm")
    for name, addr, g in tails:
        LB("L_slow_%s" % name)
        A("global_store_dwordx4 %s, v[%d:%d], %s sc1" % (addr, g, g + 3, sWS))
        A("s_branch L_back_%s" % name)
    if o["lastfin"] == 1: unit_final()
    LB("L_end")
    A("s_endpgm")
    head = HEADER.format(lds=o.get("lds", LDS_BYTES), k=KNAME); foot = FOOTER.format(k=KNAME, vg=o.get("vg", 168), sg=96)
    if o["align"]: L = align_runs(L, head, foot, o.get("minrun", 3), o.get("nopmin", 6))
    return head + "\n".join(L) + foot


if __name__ == "__main__":
    kw = {}
    out = "parallel_sum__sliding_block_cached__swiglu_ffn__decode.s"
    for a in sys.argv[1:]:
        k, v = a.split("=", 1)
        if k == "out": out = v; continue
        try: v = int(v) if k != "nlv" else v
        except ValueError: pass
        kw[k] = v
    open(out, "w").write(gen(**kw))
```

```python
import sys

KNAME = "parallel_sum__sliding_block_cached__swiglu_ffn__decode_kernel"

HEADER = """; Kernarg layout for this problem (96 bytes, ptrs only, base s[0:1]):
;   offset  72: d_out     shape=(1, 1, 512) dtype=bfloat16
; @launch grid=(256,1,1) block=(320,1,1) lds={lds}
;
; out = x + attn(ln(x)) @ wo + swiglu(ln(x)) @ w_down in one launch, one workgroup per CU.
;               hand-off 2 regroups the 32 partial outputs per row (merged against the true maximum), wo / w_down rows,
.amdgcn_target "amdgcn-amd-amdhsa--gfx950"
.text
.globl {k}
.p2align 8
.type {k},@function
{k}:
"""
FOOTER = """
.section .rodata,"a"
.p2align 6
.amdhsa_kernel {k}
  .amdhsa_next_free_vgpr {vg}
  .amdhsa_next_free_sgpr {sg}
  .amdhsa_accum_offset {vg}
  .amdhsa_group_segment_fixed_size 0
  .amdhsa_kernarg_size 96
  .amdhsa_user_sgpr_count 2
  .amdhsa_user_sgpr_kernarg_segment_ptr 1
  .amdhsa_system_sgpr_workgroup_id_x 1
.end_amdhsa_kernel
"""

MB1A = 0x40000
MB1B = 0x80000
MB2 = 0x100000
MB25 = 0x400000
MB3 = 0x1C0000
STAMPS = 0x10000000
L_WQ = 0
L_FF = 16384
L_XN = 32768
L_Q = 33792
L_H = 34816
L_FLAG = 34848
L_VOTE = 34864
L_ML = 34880
L_TKT = 35008
L_A = 35008
L_FIN = L_XN
L_O = 35072
L_K = L_O + 8192
L_K = (L_K + 1023) // 1024 * 1024
LDS_BYTES = L_K + 32768
TAGC = 0x9E3779B9
LOG2E = 0x3FB8AA3B
SCALE = 0x3DB504F3
EPS = 0x3727C5AC
DPP = "row_mask:0xf bank_mask:0xf"

DEF = dict(stamps=False, spinmax=200000, WK=5, W=6, Wtail=8, b0pos=45, nt="nt", pretouch="k", atries=24,
           prefetch=True, b2=7, ntail0=0, tlag=0, mask2=False, pt1=True, rotm=4, rep3=False, tsp="a", auxearly=True, hlate=False, vote=True, np25=2, np3=6, ack25=2, align=1, unr=2, mask25=True, lperm=0, nlv="43434343", reuse=1, rp=2176, bonly=0, bdefer=4, bskip=1, lastfin=0, npu=1, stag=0, g25=1, gw=2, pt3=1, finhi=1, efull=1, stouch=0, cq2=0, cq25=0, vlate=1, idearly=0, adap="", Wa=6, stl=15, tw=0, stl2=0, stw=15, est=0, perm="", hrot=0, np2=0, g2=2, gw2=0, vdyn=0, t3=1, zw=0)


def _sizes(text):
    import subprocess, tempfile, os, re
    d = tempfile.mkdtemp()
    open(d + "/a.s", "w").write(text)
    subprocess.run(["clang", "-x", "assembler", "-target", "amdgcn-amd-amdhsa", "-mcpu=gfx950", "-c", d + "/a.s", "-o", d + "/a.o"], check=True)
    out = subprocess.run(["llvm-objdump", "-d", "--mcpu=gfx950", d + "/a.o"], capture_output=True, text=True).stdout
    r = []
    for ln in out.split("\n"):
        m = re.search(r"^\s+(\S+).*// ([0-9A-F]{12}): ((?:[0-9A-F]{8} ?)+)", ln)
        if m: r.append((m.group(1), 4 * len(m.group(3).split())))
    return r


def align_runs(L, head, foot, minrun=3, nopmin=6):
    ins = [i for i, l in enumerate(L) if l.startswith("    ") and not l.strip().startswith(";")]
    sz = _sizes(head + "\n".join(L) + foot)
    assert len(sz) == len(ins), (len(sz), len(ins))
    size = {i: s_[1] for i, s_ in zip(ins, sz)}
    mn = {i: s_[0] for i, s_ in zip(ins, sz)}
    out = list(L); extra = {}
    off = 0; k = 0
    while k < len(ins):
        i = ins[k]
        if size[i] == 8 and off % 8 == 4:
            run = 0
            while k + run < len(ins) and size[ins[k + run]] == 8: run += 1
            if run >= minrun:
                b = k - 1; done = False
                while b >= 0 and size[ins[b]] == 4:
                    j = ins[b]
                    if mn[j] == "s_nop" and int(out[j].split()[1]) >= 1:
                        out[j] = "    s_nop 0\n    s_nop %d" % (int(out[j].split()[1]) - 1)
                        size[j] = 8; off += 4; done = True
                        break
                    if mn[j].endswith("_e32") and not mn[j].startswith(("v_readfirstlane", "v_permlane")):
                        op = out[j].split()[0]
                        out[j] = out[j].replace(op, op.replace("_e32", "") + "_e64", 1)
                        size[j] = 8; off += 4; done = True
                        break
                    b -= 1
                if not done and run >= nopmin and k > 0 and not mn[ins[k - 1]].startswith(("s_branch", "s_endpgm")):
                    extra[i] = True; off += 4; done = True
                if not done and k > 0 and mn[ins[k - 1]].startswith(("s_branch", "s_endpgm")):
                    extra[ins[k - 1] + 1] = True; off += 4
            for q in range(run): off += 8
            k += run
            continue
        off += size[i]; k += 1
    res = []
    for i, l in enumerate(out):
        if i in extra: res.append("    s_nop 0")
        res.append(l)
    return res


def gen(**kw):
    o = dict(DEF); o.update(kw)
    MB3 = o.get("mb3", globals()["MB3"])
    if not o["g25"]: o.update(pt3=0, np25=1, ack25=1, np3=1, g2=0)
    L = []
    def A(s): L.append("    " + s)
    def LB(s): L.append(s + ":")
    def C(s): L.append("    ; " + s)
    nt = o["nt"]
    NSTAMP = 12
    role = ["U"]
    def stamp(i):
        if o.get("amp") == "%s%d" % (role[0], i): A("s_memrealtime s[88:89]" if not o.get("cyc") else "s_memtime s[88:89]")
        if o.get("ampg") == "%s%d" % (role[0], i): A("s_memrealtime s[86:87]")
        if o.get("amp0") == "%s%d" % (role[0], i): A("s_memrealtime s[86:87]" if not o.get("cyc") else "s_memtime s[86:87]")
        if o["stamps"] and (i in (0, 11) or o.get("sel") is None or ("%s%d" % (role[0], i)) in o["sel"].split(",")):
            A("s_memrealtime s[%d:%d]" % (64 + 2 * i, 65 + 2 * i))
    def mfma(d, a, b, c):
        A("v_mfma_f32_16x16x32_bf16 v[%d:%d], v[%d:%d], v[%d:%d], %s" % (d, d + 3, a, a + 3, b, b + 3, "0" if c is None else "v[%d:%d]" % (c, c + 3)))
    def mfma16(d, a, b, c):
        A("v_mfma_f32_16x16x16_bf16 v[%d:%d], v[%d:%d], v[%d:%d], %s" % (d, d + 3, a, a + 1, b, b + 1, "0" if c is None else "v[%d:%d]" % (c, c + 3)))
    def allred(v, tmp, op, which):
        A("v_mov_b32 %s, %s" % (tmp, v))
        A("s_nop 1")
        A("v_permlane%d_swap_b32 %s, %s" % (which, tmp, v))
        A("%s %s, %s, %s" % (op, v, v, tmp))
    sX, sK, sV, sWQ, sWO, sG, sU, sDN, sOUT, sWS = "s[4:5]", "s[6:7]", "s[8:9]", "s[10:11]", "s[12:13]", "s[16:17]", "s[18:19]", "s[20:21]", "s[22:23]", "s[26:27]"
    sW, sH, sJ, sTAG, sXCC, sCNT, sFAST = "s30", "s31", "s32", "s33", "s34", "s35", "s36"
    t0, t1, t2, t3 = "s37", "s38", "s39", "s40"
    def dump_stamps():
        if not o["stamps"]: return
        if role[0] == "U" and o.get("sel") is not None and "U" not in o["sel"]: return
        A("s_mov_b64 exec, 1")
        if o.get("endwait"): A("s_waitcnt vmcnt(0)")
        stamp(11)
        A("s_waitcnt lgkmcnt(0)")
        A("s_mul_i32 %s, s2, 5" % t0)
        A("s_add_u32 %s, %s, %s" % (t0, t0, sW))
        A("s_lshl_b32 %s, %s, 7" % (t0, t0))
        A("s_add_u32 %s, %s, 0x%x" % (t0, t0, STAMPS))
        A("v_mov_b32 v2, %s" % t0)
        for i in range(NSTAMP):
            A("v_mov_b32 v3, s%d" % (64 + 2 * i))
            A("global_store_dword v2, v3, %s offset:%d" % (sWS, 4 * i))
        A("v_mov_b32 v3, %s" % ("s63" if role[0] == "U" and o["vote"] else sCNT))
        A("global_store_dword v2, v3, %s offset:%d" % (sWS, 4 * NSTAMP))
        if o.get("dbgfail"):
            for q_, r_ in enumerate(("s84", "s62", "s63")):
                A("v_mov_b32 v3, %s" % r_)
                A("global_store_dword v2, v3, %s offset:%d" % (sWS, 4 * NSTAMP + 8 + 4 * q_))
        A("s_getreg_b32 %s, hwreg(HW_REG_HW_ID)" % t1)
        A("v_mov_b32 v3, %s" % t1)
        A("global_store_dword v2, v3, %s offset:%d" % (sWS, 4 * NSTAMP + 4))

    def amp_end(sfx):
        if o.get("ampg"):
            A("s_waitcnt vmcnt(0) lgkmcnt(0)")
            A("s_memrealtime s[88:89]")
            A("s_mov_b64 exec, -1")
            A("v_and_b32 v2, 7, v0")
            A("v_lshlrev_b32 v2, 2, v2")
            A("global_load_dword v3, v2, s[24:25] offset:128 sc1")
            A("s_waitcnt vmcnt(0) lgkmcnt(0)")
            for g_ in range(8): A("v_readlane_b32 s%d, v3, %d" % (64 + g_, g_))
            A("s_nop 3")
            if o["ampg"] != 1:
                for g_ in range(8): A("s_sub_u32 s%d, s86, s%d" % (64 + g_, 64 + g_))
                for g_ in range(1, 8): A("s_max_i32 s64, s64, s%d" % (64 + g_))
                A("s_sub_u32 s88, s86, s64")
                A("s_mul_i32 s64, s64, 10")
            else:
                for g_ in range(8): A("s_sub_u32 s%d, s88, s%d" % (64 + g_, 64 + g_))
                for g_ in range(1, 8): A("s_max_i32 s64, s64, s%d" % (64 + g_))
                A("s_mul_i32 s64, s64, 9")
            A("s_min_u32 s64, s64, 20000")
            A("s_add_u32 s64, s64, 1500")
            LB("L_ampgspin" + sfx)
            A("s_memrealtime s[92:93]")
            A("s_waitcnt lgkmcnt(0)")
            A("s_sub_u32 s92, s92, s88")
            A("s_cmp_lt_u32 s92, s64")
            A("s_cbranch_scc1 L_ampgspin" + sfx)
        if o.get("amp"):
            if o["amp"] == "end": A("s_memrealtime s[88:89]")
            A("s_waitcnt lgkmcnt(0)")
            A("s_sub_u32 s88, s88, %s" % ("s86" if o.get("amp0") else "s90"))
            A("s_mul_i32 s88, s88, %d" % o.get("ampk", 10))
            A("s_min_u32 s88, s88, 20000")
            A("s_add_u32 s88, s88, 1500")
            LB("L_ampspin" + sfx)
            A("s_memrealtime s[92:93]")
            A("s_waitcnt lgkmcnt(0)")
            A("s_sub_u32 s92, s92, s90")
            A("s_cmp_lt_u32 s92, s88")
            A("s_cbranch_scc1 L_ampspin" + sfx)
    nlv = [int(c) for c in str(o["nlv"])]
    assert len(nlv) == 8 and sum(nlv) == 28 and min(nlv) >= 0 and max(nlv) <= 4
    LUT_d = sum((4 - n) << (4 * i) for i, n in enumerate(nlv))
    LUT_D = sum((4 * i - sum(nlv[:i])) << (4 * i) for i in range(8))
    def ffn_share(l0, d):
        A("s_lshl_b32 %s, %s, 2" % (l0, sH))
        A("s_lshr_b32 %s, 0x%x, %s" % (d, LUT_D, l0))
        A("s_and_b32 %s, %s, 7" % (d, d))
        A("s_sub_u32 s3, %s, %s" % (l0, d))
        A("s_lshr_b32 %s, 0x%x, %s" % (d, LUT_d, l0))
        A("s_and_b32 %s, %s, 7" % (d, d))
    stamp(0)
    if o.get("pad") or o.get("bal") or o.get("amp") or o.get("ampg") or o.get("ampm") or o.get("ampf") or o.get("lateh") is not None: A("s_memrealtime s[90:91]")
    A("s_cmp_ge_u32 s2, 256")
    A("s_cbranch_scc1 L_end")
    A("s_load_dwordx16 s[4:19], s[0:1], 0")
    A("s_load_dwordx8 s[20:27], s[0:1], 64")
    A("v_lshrrev_b32 v1, 6, v0")
    A("v_and_b32 v0, 63, v0")
    A("v_readfirstlane_b32 %s, v1" % sW)
    A("s_and_b32 %s, s2, 7" % sH)
    A("s_lshr_b32 %s, s2, 3" % sJ)
    if o.get("bal") or o.get("lateh") is not None or o.get("ampg") or o.get("ampm"):
        A("s_or_b32 %s, %s, %s" % (t0, sJ, sW))
        A("s_cbranch_scc1 L_noflag")
        A("s_lshl_b32 %s, %s, 2" % (t0, sH))
        A("v_mov_b32 v108, %s" % t0)
        A("s_waitcnt lgkmcnt(0)")
        A("s_or_b32 %s, s90, 1" % t0)
        A("v_mov_b32 v109, %s" % t0)
        A("global_store_dword v108, v109, s[24:25] offset:%d sc1" % (128 if o.get("ampg") or o.get("ampm") else 0))
        LB("L_noflag")
    A("s_cmp_eq_u32 %s, 4" % sW)
    A("s_cbranch_scc0 %s" % ("L_race" if o["vote"] else "L_attn"))

    C("wave 4: layernorm, one [128 x 64] tile of wq and one of gate/up, exchange of q and of the FFN hidden values")
    A("s_setprio 3")
    if o["idearly"] == 1:
        A("v_mov_b32 v2, 0")
        A("v_and_b32 v3, 12, v0")
        A("ds_write_b32 v3, v2 offset:%d" % L_VOTE)
    if o["prefetch"]:
        A("s_getpc_b64 s[28:29]")
        LB("L_pc")
        A("v_lshlrev_b32 v2, 7, v0")
        A("v_min_u32 v2, L_end-L_pc-%d, v2" % o.get("pfo", 448))
        A("global_load_dword v127, v2, s[28:29] offset:%d" % o.get("pfo", 448))
        if o.get("pf2", o["stamps"] or o.get("ampg")):
            A("v_mov_b32 v2, L_end-L_pc")
            A("v_lshlrev_b32 v3, 7, v0")
            A("v_min_u32 v3, 1024, v3")
            A("v_sub_u32 v2, v2, v3")
            A("global_load_dword v126, v2, s[28:29]")
    sQK, sNOFF = "s50", "s51"
    A("v_lshlrev_b32 v3, 4, v0")
    A("v_lshrrev_b32 v6, 3, v0")
    A("v_and_b32 v5, 2, v6")
    A("v_and_b32 v7, 7, v0")
    A("v_xor_b32 v5, v5, v7")
    A("v_lshlrev_b32 v7, 4, v5")
    A("s_and_b32 %s, %s, 3" % (sQK, sJ))
    A("s_lshl_b32 %s, %s, 10" % (t0, sH))
    if o["lperm"]:
        A("s_andn2_b32 %s, %s, 3" % (t1, sJ))
        A("s_lshr_b32 %s, 0x%x, %s" % (t1, o["lperm"], t1))
        A("s_and_b32 s55, %s, 7" % t1)
    else:
        A("s_lshr_b32 s55, %s, 2" % sJ)
    A("s_lshl_b32 %s, s55, 7" % t1)
    A("s_lshl_b32 %s, %s, 20" % (t2, sQK))
    A("s_add_u32 %s, %s, %s" % (t0, t0, t1))
    A("s_add_u32 %s, %s, %s" % (t0, t0, t2))
    A("v_lshl_add_u32 v4, v6, 13, v7")
    A("v_add_u32 v4, %s, v4" % t0)
    A("v_xor_b32 v5, 64, v4")
    A("v_add_u32 v5, 0x10000, v5")
    A("s_mov_b32 m0, %d" % L_WQ)
    A("s_mov_b32 %s, 0x20000" % t1)
    if o.get("ucontig"):
        A("s_lshl_b32 %s, s2, 10" % t0)
        A("v_add_u32 v4, %s, v3" % t0)
        A("v_add_u32 v5, 0x40000, v4")
        A("s_mov_b32 %s, 0x80000" % t1)
    A("s_movk_i32 s41, 1024")
    A("s_waitcnt lgkmcnt(0)")
    if o["est"] & 1: A("s_load_dword s60, %s, %s" % (sWQ, t2))
    if o["est"] & 2:
        A("s_load_dword s61, %s, 0" % sG)
        A("s_load_dword s62, %s, 0" % sU)
    if o["est"] & 4: A("s_load_dword s63, %s, 0" % sX)
    if not o.get("xlate"): A("global_load_dwordx4 v[8:11], v3, %s" % sX)
    if not o.get("elate"): A("s_load_dword %s, %s, 0" % (sTAG, sWS))
    def dma_loop(name, base, step):
        A("s_mov_b32 %s, %d" % (t2, 16 // o["unr"]))
        LB(name)
        for i in range(o["unr"]):
            vv = ("v4", "v5")[i & 1]
            A("global_load_lds_dwordx4 %s, %s %s" % (vv, base, nt))
            A("s_add_u32 m0, m0, s41")
            A("v_add_u32 %s, %s, %s" % (vv, step, vv))
        A("s_sub_u32 %s, %s, 1" % (t2, t2))
        A("s_cmp_lg_u32 %s, 0" % t2)
        A("s_cbranch_scc1 %s" % name)
    dma_loop("L_wq_loop", sWQ, t1)
    if o.get("elate") == 1: A("s_load_dword %s, %s, 0" % (sTAG, sWS))
    if o["b0pos"] == 16: A("s_barrier")
    ffn_share(t0, t3)
    A("s_lshr_b32 %s, %s, 3" % (t1, sJ))
    A("s_add_u32 %s, s3, %s" % (t0, t1))
    A("s_add_u32 %s, %s, %s" % (sNOFF, t1, t3))
    A("s_mul_i32 %s, %s, 3584" % (t1, sQK))
    A("s_add_u32 %s, %s, %s" % (t0, t0, t1))
    A("s_lshl_b32 %s, %s, 7" % (t0, t0))
    A("v_mul_u32_u24 v4, 3584, v6")
    A("v_add3_u32 v4, v4, v7, %s" % t0)
    A("v_xor_b32 v5, 64, v4")
    A("v_add_u32 v5, %d, v5" % (8 * 3584))
    A("s_mov_b32 %s, %d" % (t1, 16 * 3584))
    if o.get("ucontig"):
        A("s_lshr_b32 %s, s2, 1" % t0)
        A("s_min_u32 %s, %s, 111" % (t0, t0))
        A("s_lshl_b32 %s, %s, 10" % (t0, t0))
        A("v_add_u32 v4, %s, v3" % t0)
        A("v_add_u32 v5, %d, v4" % (112 * 1024))
        A("s_mov_b32 %s, %d" % (t1, 224 * 1024))
    A("s_bitcmp0_b32 %s, %d" % (("s2", 0) if o.get("ucontig") else (sJ, 2)))
    A("s_cselect_b64 s[42:43], %s, %s" % (sG, sU))
    A("s_cmp_ge_u32 %s, 4" % sNOFF)
    A("s_cselect_b64 exec, 1, -1")
    dma_loop("L_ff_loop", "s[42:43]", t1)
    if o.get("elate") == 2: A("s_load_dword %s, %s, 0" % (sTAG, sWS))
    A("s_mov_b64 exec, -1")
    if o["vote"]:
        A("s_branch L_unit2")
        LB("L_race")
        if o["tw"]:
            A("s_bitcmp1_b32 %s, 1" % sW)
            A("s_cbranch_scc1 L_norace")
        C("which of the two copies of the last hand-off lives nearer to this die: race two cold scalar loads of this wave's own lines")
        A("s_lshl_b32 %s, s2, 2" % t0)
        A("s_add_u32 %s, %s, %s" % (t0, t0, sW))
        A("s_lshr_b32 %s, %s, 6" % (t1, t0))
        A("s_lshl_b32 %s, %s, 14" % (t1, t1))
        A("s_and_b32 %s, %s, 63" % (t0, t0))
        A("s_lshl_b32 %s, %s, 7" % (t0, t0))
        A("s_add_u32 %s, %s, %s" % (t0, t0, t1))
        if MB3 == 0x200000: A("s_bitset1_b32 %s, 21" % t0)
        else: A("s_or_b32 %s, %s, 0x%x" % (t0, t0, MB3))
        A("s_lshl_b32 %s, %s, 13" % (t1, sW))
        A("s_and_b32 %s, %s, 0x2000" % (t1, t1))
        A("s_or_b32 s46, %s, %s" % (t0, t1))
        A("s_xor_b32 s47, s46, 0x2000")
        A("s_movk_i32 s28, 0x5bd1")
        A("s_movk_i32 s29, 0x5bd1")
        A("s_waitcnt lgkmcnt(0)")
        if o.get("dlyr"):
            A("s_mov_b32 s60, %d" % o["dlyr"])
            LB("L_dlyr")
            A("s_nop 15")
            A("s_sub_u32 s60, s60, 1")
            A("s_cbranch_scc0 L_dlyr")
        A("s_load_dword s28, %s, s46" % sWS)
        A("s_load_dword s29, %s, s47" % sWS)
        A("s_waitcnt lgkmcnt(1)")
        A("s_mov_b64 s[48:49], s[28:29]")
        LB("L_race_done")
        A("s_cmpk_lg_i32 s48, 0x5bd1")
        A("s_cselect_b32 %s, 1, 0" % t0)
        A("s_cmpk_lg_i32 s49, 0x5bd1")
        A("s_cselect_b32 %s, 1, 0" % t2)
        A("s_sub_i32 %s, %s, %s" % (t0, t0, t2))
        A("s_sub_i32 %s, 0, %s" % (t2, t0))
        A("s_cmp_eq_u32 %s, 0" % t1)
        A("s_cselect_b32 %s, %s, %s" % (t0, t0, t2))
        A("s_lshl_b32 %s, %s, 2" % (t2, sW))
        A("v_mov_b32 v158, %s" % t2)
        A("v_mov_b32 v159, %s" % t0)
        A("ds_write_b32 v158, v159 offset:%d" % L_VOTE)
        if o["tw"]: A("s_waitcnt lgkmcnt(1)")
        A("s_branch L_attn")
        LB("L_unit2")
    if o["pt1"]:
        C("pull this workgroup's own hand-off lines into L2 before anyone polls them")
        A("s_lshl_b32 %s, %s, 15" % (t0, sH))
        A("s_lshl_b32 %s, %s, 8" % (t1, sJ))
        A("s_add_u32 %s, %s, %s" % (t0, t0, t1))
        A("s_add_u32 %s, %s, 0x%x" % (t0, t0, MB1A))
        A("v_and_b32 v33, 1, v0")
        A("v_bfe_u32 v32, v0, 1, 1")
        A("v_lshlrev_b32 v33, 7, v33")
        A("v_lshl_add_u32 v33, v32, 13, v33")
        A("s_mul_i32 %s, %s, 240" % (t1, sJ))
        A("s_sub_u32 %s, 0x4000, %s" % (t1, t1))
        A("v_cmp_lt_u32 vcc, 3, v0")
        A("v_mov_b32 v32, %s" % t1)
        A("s_nop 0")
        A("v_cndmask_b32 v33, v33, v32, vcc")
        A("v_add_u32 v33, %s, v33" % t0)
        A("global_load_dword v119, v33, %s sc1" % sWS)
    def tlbwarm():
        C("first touch of the pages the later loads use (address translation early, off their queue)")
        A("s_lshl_b32 %s, %s, 24" % (t0, sH))
        A("s_add_u32 %s, %s, 0xF00000" % (t0, t0))
        A("v_mov_b32 v112, %s" % t0)
        A("s_lshl_b32 %s, %s, 19" % (t0, sH))
        A("v_mov_b32 v113, %s" % t0)
        A("s_mul_i32 %s, %s, 0x38000" % (t0, sH))
        A("v_mov_b32 v114, %s" % t0)
        A("v_mov_b32 v115, 0x%x" % MB3)
        A("s_mov_b64 exec, 1")
        A("global_load_dword v116, v112, %s" % sK)
        A("global_load_dword v117, v112, %s" % sV)
        A("global_load_dword v118, v113, %s" % sWO)
        A("global_load_dword v111, v114, %s" % sDN)
        A("global_load_dword v110, v115, %s" % sWS)
        A("s_mov_b64 exec, -1")
    NW = 1 if o["pt1"] else 0
    if o.get("tlbw") == 2:
        tlbwarm(); NW += 5
    if o["b0pos"] == 32:
        if o.get("b0wait") is not None: A("s_waitcnt vmcnt(%d)" % o["b0wait"])
        A("s_barrier")
    stamp(1)
    XF = 12
    A("s_mov_b32 %s, 0xffff0000" % t1)
    A("s_waitcnt vmcnt(%d)" % (32 + NW))
    stamp(2)
    C("layernorm with the reference's bf16 roundings")
    for i in range(4):
        A("v_lshlrev_b32 v%d, 16, v%d" % (XF + 2 * i, 8 + i))
        A("v_and_b32 v%d, %s, v%d" % (XF + 2 * i + 1, t1, 8 + i))
    fill = []
    def F(s): fill.append(s)
    def nop2():
        n = 0
        while fill and n < 2:
            A(fill.pop(0)); n += 1
        if n < 2: A("s_nop %d" % (1 - n))
    TRB = 120
    vAX, vS1, vL1, vL1x, vL1a, vF, vTN, vTB = "v34", "v35", "v36", "v37", "v38", "v39", "v124", "v125"
    sRP, sB1 = "s52", "s53"
    F("v_lshrrev_b32 v126, 4, v0")
    F("v_bfe_u32 v4, v0, 2, 2")
    F("v_lshl_add_u32 v5, v126, 3, v4")
    F("v_and_b32 v6, 3, v0")
    F("v_lshlrev_b32 v7, 3, v6")
    F("v_lshl_add_u32 v5, v5, 7, v7")
    F("v_bfe_u32 v4, v0, 3, 2")
    for ct in range(4):
        F("v_xor_b32 v7, %d, v4" % ct)
        F("v_lshl_add_u32 v%d, v7, 5, v5" % (TRB + ct))
    F("s_lshl_b32 %s, %s, 8" % (t0, sQK))
    F("v_lshl_add_u32 %s, v126, 4, %s" % (vAX, t0))
    F("s_lshl_b32 %s, %s, 15" % (sB1, sH))
    F("s_add_u32 %s, %s, 0x%x" % (sB1, sB1, MB1A))
    def wavesum(v, tmp):
        for rot in (1, 2, 4, 8):
            nop2()
            A("v_add_f32_dpp %s, %s, %s row_ror:%d %s" % (v, v, v, rot, DPP))
        for which in (16, 32):
            A("v_mov_b32 %s, %s" % (tmp, v))
            nop2()
            A("v_permlane%d_swap_b32 %s, %s" % (which, tmp, v))
            A("v_add_f32 %s, %s, %s" % (v, v, tmp))
    def P2(r): return "v[%d:%d]" % (r, r + 1)
    A("v_pk_add_f32 v[22:23], %s, %s" % (P2(XF), P2(XF + 2)))
    A("v_pk_add_f32 v[24:25], %s, %s" % (P2(XF + 4), P2(XF + 6)))
    A("v_pk_add_f32 v[22:23], v[22:23], v[24:25]")
    A("v_add_f32 v22, v22, v23")
    wavesum("v22", "v23")
    A("v_mul_f32 v22, 0x3b000000, v22")
    DV = 24
    for i in range(4):
        A("v_pk_add_f32 %s, %s, v[22:23] op_sel_hi:[1,0] neg_lo:[0,1] neg_hi:[0,1]" % (P2(DV + 2 * i), P2(XF + 2 * i)))
    A("v_cvt_pk_bf16_f32 v22, 0, v22")
    A("v_pk_mul_f32 v[32:33], %s, %s" % (P2(DV), P2(DV)))
    for i in range(1, 4):
        A("v_pk_fma_f32 v[32:33], %s, %s, v[32:33]" % (P2(DV + 2 * i), P2(DV + 2 * i)))
    A("v_add_f32 v32, v32, v33")
    pre = ["v_pk_add_f32 %s, %s, v[22:23] op_sel_hi:[1,0] neg_lo:[0,1] neg_hi:[0,1]" % (P2(XF + 2 * i), P2(XF + 2 * i)) for i in range(4)]
    pre += ["v_cvt_pk_bf16_f32 v%d, 0, v%d" % (XF + i, XF + i) for i in range(8)]
    rest = fill[:]; fill[:] = pre
    wavesum("v32", "v33")
    fill[:] = fill + rest
    A("v_mul_f32 v32, 0x3b000000, v32")
    A("v_cvt_pk_bf16_f32 v32, 0, v32")
    A("v_add_f32 v32, 0x%x, v32" % EPS)
    A("v_cvt_pk_bf16_f32 v32, 0, v32")
    A("v_sqrt_f32 v32, v32")
    A(fill.pop(0))
    A("v_cvt_pk_bf16_f32 v32, 0, v32")
    A("v_rcp_f32 v32, v32")
    A(fill.pop(0))
    for i in range(4):
        A("v_pk_mul_f32 %s, %s, v[32:33] op_sel_hi:[1,0]" % (P2(XF + 2 * i), P2(XF + 2 * i)))
    for i in range(4):
        A("v_cvt_pk_bf16_f32 v%d, v%d, v%d" % (8 + i, XF + 2 * i, XF + 2 * i + 1))
    A("ds_write_b128 v3, v[8:11] offset:%d" % L_XN)
    if o["vdyn"]:
        A("v_mov_b32 v110, 0")
        A("v_mov_b32 v111, 1")
        A("ds_write_b32 v110, v110 offset:%d" % (L_FLAG + 12))
    while fill: A(fill.pop(0))
    A("s_lshl_b32 %s, s55, 2" % t2)
    A("s_add_u32 s55, %s, %s" % (t2, sQK))
    A("s_lshl_b32 %s, s55, 8" % t2)
    A("s_add_u32 %s, %s, %s" % (t2, t2, sB1))
    A("v_lshrrev_b32 v4, 2, v0")
    A("v_lshl_add_u32 %s, v4, 4, %s" % (vS1, t2))
    A("s_waitcnt lgkmcnt(0)")
    AF = 40
    for m in range(4):
        A("ds_read_b128 v[%d:%d], %s offset:%d" % (AF + 4 * m, AF + 4 * m + 3, vAX, L_XN + m * 64))
    A("s_add_u32 %s, %s, 0x%x" % (sTAG, sTAG, TAGC))
    A("v_lshlrev_b32 v4, 2, v6")
    A("v_lshrrev_b32 %s, v4, %s" % (vTN, sTAG))
    A("v_and_b32 %s, 15, %s" % (vTN, vTN))
    A("v_lshlrev_b32 v4, 3, v6")
    A("v_lshrrev_b32 %s, v4, %s" % (vTB, sTAG))
    A("v_and_b32 %s, 0xff, %s" % (vTB, vTB))
    A("s_mov_b32 s44, 0")
    A("s_mov_b32 s45, -1")
    XG = 28
    def die_id():
        if o["vote"]:
            assert o["b0pos"] <= 47 and not o["hlate"]
            A("v_mov_b32 v4, 0")
            A("ds_read_b128 v[112:115], v4 offset:%d" % L_VOTE)
        if o["lastfin"]:
            assert o["vote"]
            A("ds_read_b32 v116, v4 offset:%d" % L_TKT)
        A("s_getreg_b32 %s, hwreg(HW_REG_XCC_ID, 0, 4)" % sXCC)
        A("s_and_b32 %s, %s, 0xff" % (t0, sTAG))
        A("s_lshl_b32 %s, %s, 8" % (t2, sXCC))
        A("s_or_b32 s54, %s, %s" % (t0, t2))
        A("v_mov_b32 v%d, s54" % XG)
        for k in range(1, 4):
            A("s_bfe_u32 %s, %s, 0x%x" % (t0, sTAG, 0x80000 | (8 * k)))
            A("v_mov_b32 v%d, %s" % (XG + k, t0))
        if o["vote"]:
            A("s_waitcnt lgkmcnt(0)")
            A("v_add3_u32 v112, v112, v113, v114")
            A("v_add_u32 v112, v112, v115")
            A("v_lshl_add_u32 v%d, v112, 8, v%d" % (XG + 1, XG + 1))
        if o["lastfin"]:
            A("v_lshl_add_u32 v%d, v116, 8, v%d" % (XG + 2, XG + 2))
        A("s_lshl_b32 %s, %s, 4" % (t2, sJ))
        A("s_add_u32 %s, %s, %s" % (t2, t2, sB1))
        A("s_add_u32 %s, %s, 0x4000" % (t2, t2))
        A("v_mov_b32 v22, %s" % t2)
        A("v_add_u32 v109, 0x%x, v22" % (MB1B - MB1A))
        A("s_mov_b64 exec, 1")
        if o["bonly"]:
            A("global_store_dwordx4 v22, v[%d:%d], %s sc1" % (XG, XG + 3, sWS))
        else:
            A("global_store_dwordx4 v22, v[%d:%d], %s" % (XG, XG + 3, sWS))
            if not o["bdefer"]: A("global_store_dwordx4 v109, v[%d:%d], %s sc1" % (XG, XG + 3, sWS))
        A("s_mov_b64 exec, -1")
    if o["idearly"]: die_id()
    if o["b0pos"] == 40: A("s_barrier")
    stamp(3)
    BF = 56
    D0 = 88
    GR = 24
    def gemv(lbase, vm0):
        def rd(m, ct):
            b = BF + 16 * (m & 1)
            for hh in range(2):
                A("ds_read_b64_tr_b16 v[%d:%d], v%d offset:%d" % (b + 4 * ct + 2 * hh, b + 4 * ct + 2 * hh + 1, TRB + ct, lbase + m * 4096 + hh * 512))
        A("s_waitcnt vmcnt(%d)" % (vm0 + 12))
        for ct in range(4): rd(0, ct)
        for m in range(4):
            b = BF + 16 * (m & 1)
            if m < 3: A("s_waitcnt vmcnt(%d)" % (vm0 + 8 - 4 * m))
            if lbase == L_WQ and o["b0pos"] == 41 + m: A("s_barrier")
            for ct in range(4):
                A("s_waitcnt lgkmcnt(%d)" % (6 if m < 3 else 6 - 2 * ct))
                mfma(D0 + 4 * ct, AF + 4 * m, b + 4 * ct, None if m == 0 else D0 + 4 * ct)
                if m < 3: rd(m + 1, ct)
    def pack(maskc, vt, GR, vS1):
        A("s_mov_b32 vcc_lo, 0xffff0000")
        A("s_mov_b32 vcc_hi, 0xffff0000")
        A("s_movk_i32 %s, 0x%x" % (t0, maskc))
        A("s_nop 2")
        A("v_cndmask_b32 v%d, v%d, v%d, vcc" % (GR, D0, D0 + 4))
        A("s_nop 0")
        A("v_cndmask_b32 v%d, v%d, v%d, vcc" % (GR + 1, D0 + 8, D0 + 12))
        A("v_cndmask_b32 v%d, v%d, v%d, s[44:45]" % (GR, GR, GR + 1))
        A("v_and_or_b32 v%d, v%d, %s, %s" % (GR, GR, t0, vt))
        if o["bdefer"]:
            A("s_nop 1")
        else:
            A("v_add_u32 v22, 0x%x, %s" % (MB1B - MB1A, vS1))
            A("s_nop 0")
        for k in range(1, 4):
            A("v_mov_b32_dpp v%d, v%d quad_perm:[%d,%d,%d,%d] %s" % (GR + k, GR, k, k, k, k, DPP))
        A("s_mov_b32 exec_lo, 0x11111111")
        A("s_mov_b32 exec_hi, 0x11111111")
        if o["bonly"]:
            A("global_store_dwordx4 %s, v[%d:%d], %s sc1" % (vS1, GR, GR + 3, sWS))
        else:
            A("global_store_dwordx4 %s, v[%d:%d], %s" % (vS1, GR, GR + 3, sWS))
            if not o["bdefer"]: A("global_store_dwordx4 v22, v[%d:%d], %s sc1" % (GR, GR + 3, sWS))
        A("s_mov_b64 exec, -1")
    C("q partial sums: [1 x 128] x [128 x 64]")
    gemv(L_WQ, 16 + NW + (1 if o["idearly"] else 0))
    if o["b0pos"] == 45: A("s_barrier")
    pack(0xfff0, vTN, GR, vS1)
    if o["b0pos"] == 47: A("s_barrier")
    stamp(4)
    if not o["idearly"]: die_id()
    if o["b0pos"] == 50: A("s_barrier")
    A("s_sub_i32 %s, %s, s55" % (t2, sJ))
    A("s_lshl_b32 %s, %s, 8" % (t2, t2))
    A("s_add_u32 %s, %s, 0x2000" % (t2, t2))
    A("v_add_u32 v108, %s, %s" % (t2, vS1))
    A("s_cmp_ge_u32 %s, 4" % sNOFF)
    A("s_cbranch_scc1 L_noff2")
    C("gate or up partial sums")
    gemv(L_FF, (2 if o['bonly'] or o['bdefer'] else 4) + NW)
    pack(0xff00, vTB, 104, "v108")
    LB("L_noff2")
    stamp(7)
    if o.get("nosync"):
        A("s_barrier")
        A("s_mov_b32 %s, 0" % sCNT)
        dump_stamps()
        A("s_endpgm")
    A("v_and_b32 v4, 15, v0")
    A("v_lshlrev_b32 v4, 4, v4")
    A("v_lshl_add_u32 v4, v126, 10, v4")
    A("s_add_u32 %s, %s, 2432" % (t0, sB1))
    A("v_add_u32 %s, %s, v4" % (vL1, t0))
    A("v_and_b32 v4, 31, v0")
    A("s_add_u32 %s, %s, 0x4000" % (t0, sB1))
    A("v_lshl_add_u32 %s, v4, 4, %s" % (vL1x, t0))
    A("s_lshl_b32 %s, %s, 1" % (t2, t3))
    A("s_sub_u32 %s, 8, %s" % (sRP, t2))
    A("s_mul_i32 %s, %s, %s" % (t2, sRP, sJ))
    A("s_sub_u32 %s, %s, 1" % (t0, sRP))
    A("v_and_b32 v4, 7, v0")
    A("v_min_u32 v4, %s, v4" % t0)
    A("v_add_u32 %s, %s, v4" % (vF, t2))
    A("v_lshrrev_b32 v4, 6, %s" % vF)
    A("v_bfe_u32 v5, v0, 3, 1")
    A("v_lshl_add_u32 v4, v4, 1, v5")
    A("v_lshl_add_u32 v4, v4, 2, v126")
    A("v_bfe_u32 v5, %s, 2, 4" % vF)
    A("v_lshlrev_b32 v5, 4, v5")
    A("v_lshl_add_u32 v4, v4, 8, v5")
    A("s_add_u32 %s, %s, 0x2000" % (t0, sB1))
    A("v_add_u32 %s, %s, v4" % (vL1a, t0))
    if min(nlv) == 0:
        A("s_cmp_lg_u32 %s, 0" % sRP)
        A("s_cbranch_scc1 L_has_ffn")
        A("v_mov_b32 %s, %s" % (vL1a, vL1x))
        LB("L_has_ffn")
    for k in range(4):
        A("s_bfe_u32 s%d, %s, 0x%x" % (56 + k, sTAG, 0x40000 | (4 * k)))
    A("s_movk_i32 s62, 255")
    A("s_mov_b32 s60, 0x0c0c0400")
    A("s_mov_b32 s61, 0x04000c0c")
    P = 40
    PX, PA_ = 72, 76
    A("s_mov_b32 %s, 0" % sCNT)
    def switch_copy(regs):
        A("s_add_u32 %s, %s, 1" % (sCNT, sCNT))
        if not o["bonly"]:
            if o.get("bskip"):
                A("s_cmp_ge_u32 %s, %d" % (sCNT, o["atries"]))
                A("s_cselect_b32 %s, 0x%x, 0" % (t0, MB1B ^ MB1A))
                for r in regs: A("v_xor_b32 %s, %s, %s" % (r, t0, r))
            else:
                A("s_cmp_eq_u32 %s, %d" % (sCNT, o["atries"]))
                A("s_cselect_b32 %s, 0x%x, 0" % (t0, MB1B - MB1A))
                for r in regs: A("v_add_u32 %s, %s, %s" % (r, t0, r))
        A("s_cmp_gt_u32 %s, %d" % (sCNT, o["spinmax"]))
        A("s_cbranch_scc1 L_end")
    def bytecheck(p, dst):
        A("v_perm_b32 v22, v%d, v%d, s60" % (p + 1, p))
        A("v_perm_b32 v23, v%d, v%d, s61" % (p + 3, p + 2))
        A("v_or_b32 v22, v22, v23")
        A("v_cmp_ne_u32 %s, %s, v22" % (dst, sTAG))
    for _ in range(o.get("dly1", 0)): A("s_nop 15")
    C("hand-off 1: the group's q partials, die ids and this workgroup's gate / up partials")
    stamp(9)
    if o.get("freeq"): A("s_branch L_got1")
    LB("L_poll1")
    stamp(8)
    for i in range(2):
        for q in range(4):
            r = P + 16 * i + 4 * q
            A("global_load_dwordx4 v[%d:%d], %s, %s offset:%d sc1" % (r, r + 3, vL1, sWS, i * 4096 + q * 256 - 2432))
    A("global_load_dwordx4 v[%d:%d], %s, %s sc1" % (PX, PX + 3, vL1x, sWS))
    A("global_load_dwordx4 v[%d:%d], %s, %s sc1" % (PA_, PA_ + 3, vL1a, sWS))
    switch_copy([vL1, vL1x, vL1a])
    for g_ in range(8):
        A("s_waitcnt vmcnt(%d)" % (9 - g_))
        for k in range(4):
            A("v_xor_b32 v%d, s%d, v%d" % (P + 4 * g_ + k, 56 + k, P + 4 * g_ + k))
        if g_ == 0:
            A("v_or3_b32 v21, v%d, v%d, v%d" % (P, P + 1, P + 2))
            A("v_or_b32 v21, v21, v%d" % (P + 3))
        else:
            A("v_or3_b32 v21, v21, v%d, v%d" % (P + 4 * g_, P + 4 * g_ + 1))
            A("v_or3_b32 v21, v21, v%d, v%d" % (P + 4 * g_ + 2, P + 4 * g_ + 3))
    A("v_and_b32 v21, 15, v21")
    A("s_waitcnt vmcnt(1)")
    bytecheck(PX, "vcc")
    A("v_cmp_ne_u32 s[46:47], 0, v21")
    if o.get("dbgfail"):
        A("s_cmp_eq_u32 %s, 1" % sCNT)
        A("s_cselect_b32 s84, vcc_lo, s84")
        A("s_cselect_b32 s62, s46, s62")
        A("s_cselect_b32 s63, s47, s63")
    A("s_or_b64 vcc, vcc, s[46:47]")
    def majority():
        A("v_cmp_gt_i32 vcc, 0, v%d" % (PX + 1))
        A("v_cmp_lt_i32 s[46:47], %s, v%d" % ("s62", PX + 1))
        A("s_bcnt1_i32_b32 %s, vcc_lo" % t0)
        A("s_bcnt1_i32_b32 %s, s46" % t2)
        A("s_cmp_gt_u32 %s, %s" % (t0, t2))
        A("s_cselect_b32 s55, 0x2000, 0")
        if o.get("voteinv"): A("s_xor_b32 s55, s55, 0x2000")
        if o["stamps"]:
            A("s_bcnt1_i32_b32 s63, vcc_lo")
            A("s_lshl_b32 %s, %s, 8" % (t2, t2))
            A("s_or_b32 s63, s63, %s" % t2)
    def publish_b(tag):
        C("write-through copies for peers that sit on another die")
        A("v_add_u32 v22, 0x%x, %s" % (MB1B - MB1A, vS1))
        A("v_add_u32 v23, 0x%x, v108" % (MB1B - MB1A))
        A("s_mov_b64 exec, 1")
        A("global_store_dwordx4 v109, v[%d:%d], %s sc1" % (XG, XG + 3, sWS))
        A("s_mov_b32 exec_lo, 0x11111111")
        A("s_mov_b32 exec_hi, 0x11111111")
        A("global_store_dwordx4 v22, v[%d:%d], %s sc1" % (GR, GR + 3, sWS))
        A("s_cmp_ge_u32 %s, 4" % sNOFF)
        A("s_cbranch_scc1 L_pb_%s" % tag)
        A("global_store_dwordx4 v23, v[104:107], %s sc1" % sWS)
        LB("L_pb_%s" % tag)
        A("s_mov_b64 exec, -1")
    if o["bdefer"]:
        A("s_cbranch_vccz L_got1")
        A("s_cmp_lg_u32 %s, %d" % (sCNT, o["bdefer"]))
        A("s_cbranch_scc1 L_poll1")
        publish_b("a")
        A("s_branch L_poll1")
        LB("L_got1")
    else:
        A("s_cbranch_vccnz L_poll1")
    stamp(5)
    if o["vdyn"]: A("ds_write_b32 v110, v111 offset:%d" % (L_FLAG + 12))
    for i in range(2):
        b = P + 16 * i
        for k in range(4):
            A("v_add_f32 v%d, v%d, v%d" % (b + k, b + k, b + 4 + k))
            A("v_add_f32 v%d, v%d, v%d" % (b + 8 + k, b + 8 + k, b + 12 + k))
        for k in range(4):
            A("v_add_f32 v%d, v%d, v%d" % (b + k, b + k, b + 8 + k))
        A("v_cvt_pk_bf16_f32 v%d, v%d, v%d" % (b, b, b + 1))
        A("v_cvt_pk_bf16_f32 v%d, v%d, v%d" % (b + 1, b + 2, b + 3))
    A("v_lshlrev_b32 v22, 3, v0")
    A("ds_write_b64 v22, v[%d:%d] offset:%d" % (P, P + 1, L_Q))
    A("ds_write_b64 v22, v[%d:%d] offset:%d" % (P + 16, P + 17, L_Q + 512))
    A("v_cmp_ne_u32 vcc, s54, v%d" % PX)
    A("s_cmp_eq_u64 vcc, 0")
    A("s_cselect_b32 %s, 1, 0" % sFAST)
    if o.get("forceslow"): A("s_mov_b32 %s, 0" % sFAST)
    if o.get("freeq"): A("s_mov_b32 %s, 1" % sFAST)
    if o["lastfin"]:
        A("v_readfirstlane_b32 %s, v%d" % (t0, PX + 2))
        if o["lastfin"] == 1:
            A("s_not_b32 %s, %s" % (t2, sTAG))
            A("v_mov_b32 v23, %s" % t2)
            A("v_lshlrev_b32 v22, 2, v0")
        A("s_lshr_b32 %s, %s, 8" % (t0, t0))
        A("s_cmp_eq_u32 %s, 7" % t0)
        A("s_cselect_b32 %s, 2, 0" % t0)
        if o.get("fixfin") is not None:
            A("s_cmp_eq_u32 %s, %d" % (sH, o["fixfin"]))
            A("s_cselect_b32 %s, 2, 0" % t0)
        A("s_or_b32 %s, %s, %s" % (sFAST, sFAST, t0))
        if o["lastfin"] == 1: A("ds_write_b32 v22, v23 offset:%d" % L_FIN)
        else:
            majority()
            A("s_or_b32 %s, %s, s55" % (sFAST, sFAST))
    A("v_mov_b32 v26, %s" % sFAST)
    A("v_mov_b32 v27, %s" % sTAG)
    A("v_mov_b32 v22, %d" % L_FLAG)
    A("ds_write_b64 v22, v[26:27]")
    if o["auxearly"] and not o.get("freeq"):
        A("s_waitcnt vmcnt(0)")
        bytecheck(PA_, "vcc")
        A("s_cbranch_vccz L_aux_b1")
        A("global_load_dwordx4 v[%d:%d], %s, %s sc1" % (PA_, PA_ + 3, vL1a, sWS))
        LB("L_aux_b1")
    A("s_waitcnt lgkmcnt(0)")
    A("s_barrier")
    if o["bdefer"]:
        A("s_cmp_gt_u32 %s, %d" % (sCNT, o["bdefer"]))
        A("s_cbranch_scc1 L_b_done")
        A("s_bitcmp1_b32 %s, 0" % sFAST if o.get("bskip") else "s_nop 0")
        if o.get("bskip"): A("s_cbranch_scc1 L_b_done")
        publish_b("b")
        LB("L_b_done")
    if o["vote"] and o["lastfin"] < 2: majority()
    if o["hlate"]:
        A("s_setprio %d" % o.get("hprio", 0))
        A("s_barrier")
        A("s_barrier")
    A("s_branch %s" % ("L_chk_aux" if not o.get("freeq") else "L_poll_aux" if o["freeq"] == 2 else "L_auxdone"))
    LB("L_poll_aux")
    A("global_load_dwordx4 v[%d:%d], %s, %s sc1" % (PA_, PA_ + 3, vL1a, sWS))
    switch_copy([vL1a])
    LB("L_chk_aux")
    A("s_waitcnt vmcnt(0)")
    bytecheck(PA_, "vcc")
    A("s_cbranch_vccnz L_poll_aux")
    if o.get("freeq"): LB("L_auxdone")
    C("h = bf16(bf16(silu(g)) * u)")
    A("s_movk_i32 %s, 0xff00" % t0)
    A("v_and_b32 v23, 1, %s" % vF)
    A("v_cmp_eq_u32 vcc, 0, v23")
    A("v_and_b32 v23, 2, %s" % vF)
    A("v_cmp_eq_u32 s[46:47], 0, v23")
    A("v_cndmask_b32 v24, v%d, v%d, vcc" % (PA_ + 1, PA_))
    A("v_cndmask_b32 v25, v%d, v%d, vcc" % (PA_ + 3, PA_ + 2))
    A("v_cndmask_b32 v24, v25, v24, s[46:47]")
    A("v_and_b32 v24, %s, v24" % t0)
    allred("v24", "v23", "v_add_f32", 16)
    allred("v24", "v23", "v_add_f32", 32)
    A("v_cvt_pk_bf16_f32 v24, v24, v24")
    A("v_and_b32 v24, %s, v24" % t1)
    A("v_mul_f32 v25, 0x%x, v24" % (LOG2E | 0x80000000))
    A("v_exp_f32 v25, v25")
    A("v_mov_b32_dpp v26, v24 row_ror:8 %s" % DPP)
    A("v_add_f32 v25, 1.0, v25")
    A("v_rcp_f32 v25, v25")
    A("v_cmp_le_u32 vcc, %s, v0" % sRP)
    A("v_mul_f32 v25, v24, v25")
    A("v_cvt_pk_bf16_f32 v25, v25, v25")
    A("v_and_b32 v25, %s, v25" % t1)
    A("v_mul_f32 v25, v25, v26")
    A("v_cvt_pk_bf16_f32 v25, v25, v25")
    A("v_cndmask_b32 v25, v25, 0, vcc")
    A("v_lshlrev_b32 v22, 2, v0")
    if o["vote"] and not o["lastfin"]:
        A("v_mov_b32 v26, s55")
        A("v_mov_b32 v27, 0")
        A("ds_write_b32 v27, v26 offset:%d" % (L_FLAG + 8))
    A("s_mov_b64 exec, 0xff")
    A("ds_write_b32 v22, v25 offset:%d" % L_H)
    A("s_waitcnt lgkmcnt(0)")
    stamp(6)
    if o["lastfin"] == 1:
        A("s_bitcmp1_b32 %s, 1" % sFAST)
        A("s_cbranch_scc1 L_ufin")
    if not o.get("nodumpU"): dump_stamps()
    A("s_endpgm")
    def unit_final():
        LB("L_ufin")
        C("last group: lane = (wave l>>4, pair (l>>3)&1, group l&7) gathers the eight groups' sums of this workgroup's 16 columns")
        A("s_mov_b64 exec, -1")
        A("s_setprio %d" % o.get("uprio", 0))
        vA3, vLF, vXO, vXV = "v4", "v5", "v6", "v7"
        FP, FS = 8, 40
        A("v_lshrrev_b32 %s, 3, v0" % vLF)
        A("s_lshl_b32 %s, %s, 5" % (t0, sJ))
        A("v_lshl_add_u32 %s, %s, 2, %s" % (vXO, vLF, t0))
        A("global_load_dword %s, %s, %s" % (vXV, vXO, sX))
        A("v_lshlrev_b32 %s, 4, %s" % (vLF, vLF))
        A("s_lshr_b32 %s, %s, 1" % (t0, sJ))
        A("s_lshl_b32 %s, %s, 14" % (t0, t0))
        A("s_and_b32 %s, %s, 1" % (t2, sJ))
        A("s_lshl_b32 %s, %s, 12" % (t2, t2))
        A("s_add_u32 %s, %s, %s" % (t0, t0, t2))
        A("s_add_u32 %s, %s, s55" % (t0, t0))
        A("s_add_u32 %s, %s, 0x%x" % (t0, t0, MB3))
        A("v_and_b32 v22, 7, v0")
        A("v_lshl_add_u32 %s, v22, 9, %s" % (vA3, t0))
        A("v_lshlrev_b32 v22, 7, v126")
        A("v_and_b32 v23, 16, %s" % vLF)
        A("v_add3_u32 %s, %s, v22, v23" % (vA3, vA3))
        A("s_lshl_b32 s44, 0x01010101, %s" % sH)
        A("s_mov_b32 s45, s44")
        A("s_not_b64 s[46:47], s[44:45]")
        A("s_mov_b32 %s, %d" % (sCNT, o["spinmax"]))
        A("s_barrier")
        A("s_barrier")
        A("s_waitcnt vmcnt(0)")
        A("v_lshlrev_b32 v22, 16, %s" % vXV)
        A("v_and_b32 v23, %s, %s" % (t1, vXV))
        def spf():
            C("pull the other groups' lines into this die's L2 over the scalar path (the vector path returns in order and is busy with the group's own hand-off)")
            for k in range(1, 8):
                for w_ in range(4):
                    A("s_load_dword s%d, %s, s%d offset:%d glc" % (6 + (4 * k + w_) % 16, sWS, 48 + k, 128 * w_))
        if o.get("spf"):
            for k in range(1, 8):
                A("s_xor_b32 s%d, %s, %d" % (48 + k, sH, k))
                A("s_lshl_b32 s%d, s%d, 9" % (48 + k, 48 + k))
                A("s_add_u32 s%d, s%d, %s" % (48 + k, 48 + k, t0))
        if o.get("spf", 0) & 2: spf()
        if o["reuse"]: A("s_barrier")
        if o.get("spf", 0) & 1: spf()
        NP = o["npu"]
        def own_read():
            A("s_mov_b64 exec, s[44:45]")
            A("ds_read_b128 v[%d:%d], %s offset:%d" % (FP, FP + 3, vLF, L_FIN))
        if o.get("uwait"):
            A("s_mov_b64 exec, s[44:45]")
            LB("L_uw")
            A("ds_read_b128 v[%d:%d], %s offset:%d" % (FP, FP + 3, vLF, L_FIN))
            A("s_sub_u32 %s, %s, 1" % (sCNT, sCNT))
            A("s_cbranch_scc1 L_end")
            A("s_waitcnt lgkmcnt(0)")
            A("v_cmp_ne_u32 vcc, %s, v%d" % (sTAG, FP + 3))
            if o["uwait"] == 1:
                A("s_cbranch_vccnz L_uw")
            else:
                A("s_cmp_eq_u64 vcc, s[44:45]")
                A("s_cbranch_scc1 L_uw")
        for k in range(NP):
            if k:
                for _ in range(o["stag"]):
                    own_read(); A("s_waitcnt lgkmcnt(0)")
            A("s_mov_b64 exec, s[46:47]")
            A("global_load_dwordx4 v[%d:%d], %s, %s sc1" % (FS + 4 * k, FS + 4 * k + 3, vA3, sWS))
        LB("L_upoll")
        for k in range(NP):
            own_read()
            A("s_mov_b64 exec, s[46:47]")
            A("s_waitcnt vmcnt(%d) lgkmcnt(0)" % (NP - 1))
            A("v_cmp_ne_u32 vcc, %s, v%d" % (sTAG, FS + 4 * k + 3))
            A("v_mov_b32 v%d, v%d" % (FP, FS + 4 * k))
            A("v_mov_b32 v%d, v%d" % (FP + 1, FS + 4 * k + 1))
            A("s_and_b64 s[46:47], exec, vcc")
            A("s_cbranch_scc0 L_ugot")
            A("s_mov_b64 exec, s[46:47]")
            A("global_load_dwordx4 v[%d:%d], %s, %s sc1" % (FS + 4 * k, FS + 4 * k + 3, vA3, sWS))
        A("s_sub_u32 %s, %s, 1" % (sCNT, sCNT))
        A("s_cbranch_scc0 L_upoll")
        A("s_endpgm")
        LB("L_uown")
        A("ds_read_b128 v[%d:%d], %s offset:%d" % (FP, FP + 3, vLF, L_FIN))
        A("s_sub_u32 %s, %s, 1" % (sCNT, sCNT))
        A("s_cbranch_scc1 L_end")
        A("s_waitcnt lgkmcnt(0)")
        LB("L_ugot")
        A("s_mov_b64 exec, s[44:45]")
        A("v_cmp_ne_u32 vcc, %s, v%d" % (sTAG, FP + 3))
        A("s_cbranch_vccnz L_uown")
        stamp(10)
        A("s_mov_b64 exec, -1")
        x_, y_ = "v%d" % FP, "v%d" % (FP + 1)
        for pat in ("quad_perm:[1,0,3,2]", "quad_perm:[2,3,0,1]", "row_half_mirror"):
            A("v_add_f32_dpp %s, %s, %s %s %s" % (x_, x_, x_, pat, DPP))
            A("v_add_f32_dpp %s, %s, %s %s %s" % (y_, y_, y_, pat, DPP))
            if pat != "row_half_mirror": A("s_nop 0")
        A("s_mov_b32 s44, 0x01010101")
        A("v_add_f32 %s, %s, v22" % (x_, x_))
        A("v_add_f32 %s, %s, v23" % (y_, y_))
        A("s_mov_b32 s45, s44")
        A("v_cvt_pk_bf16_f32 %s, %s, %s" % (x_, x_, y_))
        A("s_mov_b64 exec, s[44:45]")
        A("global_store_dword %s, %s, %s" % (vXO, x_, sOUT))
        A("s_cmp_lg_u32 %s, 0" % sJ)
        A("s_cbranch_scc1 L_udone")
        C("the next launch must not mistake this launch's hand-off words for its own")
        A("s_mov_b64 exec, 1")
        A("v_mov_b32 v22, 0")
        A("v_mov_b32 v23, %s" % sTAG)
        A("global_store_dword v22, v23, %s" % sWS)
        LB("L_udone")
        role[0] = "U"
        amp_end("u")
        dump_stamps()
        A("s_endpgm")

    role[0] = "A"
    if o.get("alignA"): L.append(".p2align %d" % o["alignA"])
    for _ in range(o.get("shiftA", 0)): A("s_nop 0")
    if o["tw"]:
        LB("L_norace")
        C("waves 2, 3: first touch of the pages that later loads use, over the scalar path (values unused), so that their address translation is not waited for")
        A("s_lshl_b32 %s, %s, 2" % (t2, sW))
        A("v_mov_b32 v158, %s" % t2)
        A("v_mov_b32 v159, 0")
        A("ds_write_b32 v158, v159 offset:%d" % L_VOTE)
        A("s_lshl_b32 %s, %s, 24" % (t0, sH))
        A("s_and_b32 %s, %s, 7" % (t2, sJ))
        A("s_lshl_b32 %s, %s, %d" % (t2, t2, 17 if o["stl"] & 64 else 10))
        A("s_add_u32 %s, %s, %s" % (t0, t0, t2))
        A("s_add_u32 %s, %s, 0xF00000" % (t0, t0))
        A("s_lshl_b32 %s, %s, 19" % (t2, sH))
        A("s_lshl_b32 %s, %s, 14" % (t3, sJ))
        A("s_add_u32 %s, %s, %s" % (t2, t2, t3))
        A("s_mul_i32 %s, s2, 7168" % t3)
        A("s_cmp_eq_u32 %s, 3" % sW)
        A("s_waitcnt lgkmcnt(0)")
        A("s_cbranch_scc1 L_touch3")
        if o["stl"] & 4:
            A("s_load_dword s62, %s, %s" % (sWO, t2))
            A("s_load_dword s63, %s, %s" % (sDN, t3))
        if o["stl"] & 8: A("s_load_dword s59, %s, 0" % sOUT)
        if o["stl"] & 128:
            A("s_lshl_b32 %s, s2, 12" % t2)
            A("s_add_u32 %s, %s, 0x%x" % (t2, t2, MB2))
            A("s_load_dword s58, %s, %s" % (sWS, t2))
        A("s_branch L_attn")
        LB("L_touch3")
        if o["stl"] & 1: A("s_load_dword s60, %s, %s" % (sK, t0))
        if o["stl"] & 2: A("s_load_dword s61, %s, %s" % (sV, t0))
    LB("L_attn")
    vK0, vK1, vV0, vV1 = "v2", "v3", "v4", "v5"
    vWO0, vWO1, vDN0, vDN1, vXF, vXP = "v6", "v7", "v8", "v9", "v10", "v1"
    vS2, vL2, vS25, vL25, vL3, vS3 = "v11", "v12", "v13", "v14", "v15", "v150"
    KR, VR, WOR, DNR, QR, SR, PA, MK = 16, 48, 80, 96, 104, 120, 128, 146
    vM0, vM1, vQA, vOW, vOR, vMLW, vHA = "v151", "v152", "v153", "v154", "v155", "v156", "v157"
    vN, vG, vN16, vP = "v120", "v121", "v122", "v123"
    u0, u1 = "v124", "v125"
    s4JW = "s41"
    C("K and V: load i = 1 KB block (4 keys) number 128 i + 4j + w of the head's window; K goes through LDS")
    A("s_lshl_b32 %s, %s, 24" % (t0, sH))
    A("s_lshl_b32 %s, %s, 2" % (s4JW, sJ))
    A("s_add_u32 %s, %s, %s" % (s4JW, s4JW, sW))
    if o["lastfin"]:
        C("arrival order of the eight groups (one counter in the zeroed debug words)")
        A("s_cmp_lg_u32 %s, 0" % s4JW)
        A("s_cbranch_scc1 L_notkt0")
        A("v_mov_b32 v158, 0")
        A("v_mov_b32 v159, 1")
        A("s_mov_b64 exec, 1")
        A("global_atomic_add v159, v158, v159, s[24:25] sc0 sc1")
        A("s_mov_b64 exec, -1")
        LB("L_notkt0")
    perm = o["perm"]
    if perm:
        assert sorted(perm) == sorted("wwjjjjjiii")
        src = []; cnt = {"w": 0, "j": 2}
        for p_, c_ in enumerate(perm):
            if c_ != "i": src.append((cnt[c_], p_)); cnt[c_] += 1
        src.sort(); runs = []
        for a_, p_ in src:
            if runs and runs[-1][0] + runs[-1][2] == a_ and runs[-1][1] + runs[-1][2] == p_: runs[-1][2] += 1
            else: runs.append([a_, p_, 1])
        for a_, p_, n_ in runs:
            A("s_bfe_u32 %s, %s, 0x%x" % (t2, s4JW, (n_ << 16) | a_))
            A("s_lshl_b32 %s, %s, %d" % (t2, t2, p_ + 10))
            A("s_add_u32 %s, %s, %s" % (t0, t0, t2))
        ipos = [p_ for p_, c_ in enumerate(perm) if c_ == "i"]
    else:
        A("s_lshl_b32 %s, %s, 10" % (t2, s4JW))
        A("s_add_u32 %s, %s, %s" % (t0, t0, t2))
    if o["hrot"]:
        A("s_mul_i32 %s, %s, %d" % (t2, sH, o["hrot"]))
        A("s_and_b32 %s, %s, %d" % (t2, t2, 1023 if perm else 127))
        A("s_lshl_b32 %s, %s, 10" % (t2, t2))
        A("s_xor_b32 %s, %s, %s" % (t0, t0, t2))
    A("s_add_u32 %s, %s, 0xF00000" % (t0, t0))
    A("v_and_b32 %s, 15, v0" % vN)
    A("v_lshrrev_b32 %s, 4, v0" % vG)
    A("v_lshlrev_b32 %s, 4, %s" % (vN16, vN))
    A("v_lshl_add_u32 %s, v0, 4, %s" % (vV0, t0))
    A("v_lshlrev_b32 %s, 6, %s" % (u0, vG))
    A("v_xor_b32 %s, %s, %s" % (vK0, u0, vV0))
    A("s_lshl_b32 %s, %s, 13" % (t1, sW))
    A("s_add_u32 m0, %s, %d" % (t1, L_K))
    A("s_mov_b32 s42, 0x20000")
    A("s_movk_i32 s43, 1024")
    if not o["vote"]: A("s_waitcnt lgkmcnt(0)")
    if o.get("tlbw") == 1:
        A("s_cmp_lg_u32 %s, 0" % sW)
        A("s_cbranch_scc1 L_notlb")
        tlbwarm()
        A("s_waitcnt vmcnt(0)")
        LB("L_notlb")
    if o["vote"] and not o["tw"]: A("s_waitcnt lgkmcnt(1)")
    if o["lastfin"]:
        A("s_cmp_lg_u32 %s, 0" % s4JW)
        A("s_cbranch_scc1 L_notkt")
        A("s_mov_b64 exec, 1")
        A("s_waitcnt vmcnt(0)")
        A("ds_write_b32 v158, v159 offset:%d" % L_TKT)
        A("s_mov_b64 exec, -1")
        A("s_waitcnt lgkmcnt(0)")
        LB("L_notkt")
    def touches(m, name):
        if not m or o["tw"]: return
        C("first touch of the pages the later loads use, over the scalar path (values unused)")
        if o["stw"]:
            A("s_and_b32 %s, %s, %d" % (t2, s4JW, o["stw"]))
            A("s_cbranch_scc1 %s" % name)
        if m & 1: A("s_load_dword s60, %s, %s" % (sK, t0))
        if m & 2: A("s_load_dword s61, %s, %s" % (sV, t0))
        if m & 4:
            A("s_lshl_b32 %s, %s, 19" % (t2, sH))
            A("s_lshl_b32 %s, %s, 14" % (t3, sJ))
            A("s_add_u32 %s, %s, %s" % (t2, t2, t3))
            A("s_load_dword s62, %s, %s" % (sWO, t2))
            A("s_mul_i32 %s, s2, 7168" % t2)
            A("s_load_dword s63, %s, %s" % (sDN, t2))
        if m & 8: A("s_load_dword s59, %s, 0" % sOUT)
        if m & 16:
            A("s_lshl_b32 %s, %s, 7" % (t2, sH))
            A("s_load_dword s59, %s, %s" % (sOUT, t2))
        if o["stw"]: LB(name)
    touches(o["stl"], "L_touched")
    if o["b0pos"]: A("s_barrier")
    stamp(1)
    issued = [0]
    def load(w, txt):
        if issued[0] >= w:
            A("s_waitcnt vmcnt(%d)" % (w - 1))
        A(txt); issued[0] += 1
    def rot(i):
        if not perm: return (i * o["rotm"]) & 127
        b_ = sum(((i >> q_) & 1) << ipos[q_] for q_ in range(3))
        r_ = (i * o["rotm"]) & 127
        opos = [p_ for p_ in range(10) if p_ not in ipos]
        return b_ ^ sum(((r_ >> q_) & 1) << opos[q_] for q_ in range(7))
    def kload(i):
        load(o["WK"], "global_load_lds_dwordx4 %s, %s %s" % (vK0, sK, nt))
        if i < 7:
            A("s_add_u32 m0, m0, s43")
            A("v_xor_b32 %s, %d, %s" % (vK0, (((i & 3) ^ ((i + 1) & 3)) << 4) | ((rot(i) ^ rot(i + 1)) << 10), vK0))
            if not perm: A("v_add_u32 %s, s42, %s" % (vK0, vK0))
    nk_first = min(o["WK"], 8)
    if o.get("bal"):
        A("v_and_b32 v158, 7, v0")
        A("v_lshlrev_b32 v158, 2, v158")
        A("global_load_dword v159, v158, s[24:25] sc1")
    for i in range(nk_first): kload(i)
    touches(o["stl2"], "L_touched2")
    C("address and mask setup in the shadow of the K loads")
    if o["stouch"]: A("s_load_dword s63, %s, 0" % sOUT)
    A("s_lshl_b32 %s, %s, 19" % (t0, sH))
    A("s_lshl_b32 %s, %s, 14" % (t2, sJ))
    A("s_add_u32 %s, %s, %s" % (t0, t0, t2))
    A("s_lshl_b32 %s, %s, 8" % (t3, sW))
    A("s_add_u32 %s, %s, %s" % (t0, t0, t3))
    A("s_add_u32 %s, %s, 0x1000" % (t0, t0))
    A("v_lshl_add_u32 %s, %s, 10, %s" % (vDN0, vG, vN16))
    A("v_add_u32 %s, %s, %s" % (vWO0, t0, vDN0))
    A("v_add_u32 %s, 0x2000, %s" % (vWO1, vWO0))
    ffn_share(t0, t2)
    A("s_lshl_b32 %s, s3, 6" % t0)
    A("s_lshl_b32 %s, %s, 1" % (t2, t2))
    A("s_sub_u32 %s, 8, %s" % (t1, t2))
    A("s_mul_i32 %s, %s, %s" % (t2, t1, sJ))
    A("s_add_u32 %s, %s, %s" % (t0, t0, t2))
    A("s_lshl_b32 %s, %s, 10" % (t0, t0))
    A("s_add_u32 %s, %s, %s" % (t0, t0, t3))
    A("s_sub_u32 %s, %s, 1" % (t1, t1))
    A("v_add_u32 %s, %s, %s" % (u1, t0, vN16))
    A("v_min_u32 %s, %s, %s" % (vDN0, t1, vG))
    A("v_lshl_add_u32 %s, %s, 10, %s" % (vDN0, vDN0, u1))
    A("v_add_u32 %s, 4, %s" % (vDN1, vG))
    A("v_min_u32 %s, %s, %s" % (vDN1, t1, vDN1))
    A("v_lshl_add_u32 %s, %s, 10, %s" % (vDN1, vDN1, u1))
    A("v_and_b32 %s, 1, v0" % vP)
    A("v_and_b32 %s, 1, %s" % (u0, vG))
    if o["g25"]:
        if o["cq25"]:
            A("s_lshr_b32 %s, %s, 3" % (t2, sJ))
            A("s_lshl_b32 %s, %s, 8" % (t2, t2))
            A("s_and_b32 %s, %s, 3" % (t0, sJ))
            A("s_lshl_b32 %s, %s, 6" % (t0, t0))
            A("s_add_u32 %s, %s, %s" % (t2, t2, t0))
            A("s_and_b32 %s, %s, 4" % (t0, sJ))
            A("s_lshl_b32 %s, %s, 1" % (t0, t0))
            A("s_add_u32 %s, %s, %s" % (t2, t2, t0))
        else:
            A("s_lshl_b32 %s, %s, 5" % (t2, sJ))
        A("v_bfe_u32 %s, v0, 3, 2" % u1)
        A("v_lshl_add_u32 %s, %s, %d, %s" % (vXF, u1, 4 if o["cq25"] else 3, t2))
        A("v_lshrrev_b32 %s, 5, v0" % u1)
        A("v_lshl_add_u32 %s, %s, 2, %s" % (vXF, u1, vXF))
    else:
        A("s_lshl_b32 %s, %s, 3" % (t2, s4JW))
        A("v_lshl_add_u32 %s, %s, 2, %s" % (vXF, u0, t2))
    RP = o["rp"]
    M25 = 0 if o["reuse"] else MB25 - MB2
    lay = 3 if o["reuse"] else o.get("lay25", 0)
    A("s_mul_i32 %s, %s, %d" % (t0, sH, 32 * RP))
    A("s_add_u32 %s, %s, 0x%x" % (t0, t0, MB2))
    A("s_mul_i32 %s, %s, %d" % (t1, sJ, RP))
    A("s_add_u32 %s, %s, %s" % (t1, t1, t0))
    A("s_mul_i32 %s, %s, %d" % (t2, sW, 8 * RP))
    A("s_lshl_b32 %s, %s, 6" % (t3, sJ))
    A("s_add_u32 %s, %s, %s" % (t0, t0, t3))
    A("s_add_u32 %s, %s, %s" % (t2, t2, t0))
    A("v_bfe_u32 %s, v0, 2, 3" % vS2 if o["cq2"] else "v_lshrrev_b32 %s, 3, v0" % vS2)
    A("v_mul_u32_u24 %s, %d, %s" % (vS2, RP, vS2))
    A("v_and_b32 %s, 3, v0" % u1 if o["cq2"] else "v_bfe_u32 %s, v0, 1, 2" % u1)
    A("v_lshlrev_b32 %s, 4, %s" % (u1, u1))
    A("v_add3_u32 %s, %s, %s, %s" % (vS2, vS2, u1, t2))
    A("v_lshl_add_u32 %s, v0, 4, %s" % (vL2, t1))
    A("s_lshl_b32 %s, %s, 4" % (t3, sW))
    A("v_and_b32 %s, 31, v0" % u1)
    if lay == 0:
        A("s_add_u32 %s, %s, %s" % (t1, t1, t3))
        A("s_add_u32 %s, %s, 0x%x" % (t1, t1, M25))
        A("v_lshl_add_u32 %s, %s, 6, %s" % (vL25, u1, t1))
        A("v_lshrrev_b32 %s, 1, %s" % (vS25, vN))
        A("v_mul_u32_u24 %s, %d, %s" % (vS25, RP, vS25))
        A("v_lshl_add_u32 %s, %s, 5, %s" % (vS25, vP, vS25))
        A("v_lshl_add_u32 %s, %s, 4, %s" % (vS25, u0, vS25))
        A("s_add_u32 %s, %s, 0x%x" % (t2, t2, M25))
        A("v_add_u32 %s, %s, %s" % (vS25, t2, vS25))
    else:
        if not o["g25"]: A("s_add_u32 %s, %s, %s" % (t0, t0, t3))
        if M25: A("s_add_u32 %s, %s, 0x%x" % (t0, t0, M25))
        if o["g25"]:
            A("v_lshrrev_b32 %s, 2, v0" % vL25)
            A("v_mul_u32_u24 %s, %d, %s" % (vL25, RP, vL25))
            A("v_and_b32 %s, 3, v0" % u1)
            A("v_lshlrev_b32 %s, 4, %s" % (u1, u1))
            A("v_add3_u32 %s, %s, %s, %s" % (vL25, vL25, u1, t0))
            A("v_add_u32 v164, %d, %s" % (16 * RP, vL25))
        else:
            A("v_mul_u32_u24 %s, %d, %s" % (vL25, RP, u1))
            A("v_add_u32 %s, %s, %s" % (vL25, t0, vL25))
        A("s_lshl_b32 %s, %s, 9" % (t3, sW))
        A("s_add_u32 %s, %s, %s" % (t1, t1, t3))
        if M25: A("s_add_u32 %s, %s, 0x%x" % (t1, t1, M25))
        if o["cq25"]:
            A("v_and_b32 %s, 31, v0" % vS25)
            A("v_lshl_add_u32 %s, %s, 4, %s" % (vS25, vS25, t1))
        else:
            A("v_lshl_add_u32 %s, %s, 5, %s" % (vS25, vN, t1))
            A("v_lshl_add_u32 %s, %s, 4, %s" % (vS25, u0, vS25))
    A("s_lshr_b32 %s, %s, 1" % (t0, sJ))
    A("s_lshl_b32 %s, %s, 14" % (t0, t0))
    A("s_and_b32 %s, %s, 1" % (t3, sJ))
    A("s_lshl_b32 %s, %s, 12" % (t3, t3))
    A("s_add_u32 %s, %s, %s" % (t0, t0, t3))
    if o["g25"]:
        A("s_add_u32 %s, %s, 0x%x" % (t0, t0, MB3))
        A("v_lshrrev_b32 %s, 3, v0" % u0)
        A("v_lshl_add_u32 %s, %s, 4, %s" % (u0, u0, t0))
        A("v_and_b32 %s, 7, v0" % vL3)
        A("v_lshl_add_u32 %s, %s, 9, %s" % (vL3, vL3, u0))
        A("s_lshl_b32 %s, %s, 9" % (t3, sH))
        A("s_add_u32 %s, %s, %s" % (t0, t0, t3))
        A("v_lshrrev_b32 %s, 5, v0" % u0)
        A("v_lshl_add_u32 %s, %s, 6, %s" % (u0, u0, u1))
        A("v_bfe_u32 %s, v0, 2, 1" % u1)
        A("v_lshlrev_b32 %s, 13, %s" % (u1, u1))
        A("v_add3_u32 %s, %s, %s, %s" % (vS3, u0, u1, t0))
        if o["pt3"]:
            A("s_and_b32 %s, %s, 1" % (t3, sW))
            A("s_lshl_b32 %s, %s, 6" % (t3, t3))
            A("s_add_u32 s3, %s, %s" % (t0, t3))
            A("s_lshr_b32 %s, %s, 1" % (t3, sW))
            A("s_lshl_b32 %s, %s, 13" % (t3, t3))
            A("s_add_u32 s3, s3, %s" % t3)
    else:
        A("s_lshl_b32 %s, %s, 7" % (t3, sW))
        A("s_add_u32 %s, %s, %s" % (t0, t0, t3))
        A("s_add_u32 %s, %s, 0x%x" % (t0, t0, MB3))
        if o["lastfin"] == 1:
            A("s_lshl_b32 %s, %s, 5" % (t3, sW))
            A("v_lshl_add_u32 %s, %s, 4, %s" % (vL3, u0, t3))
        if o["lastfin"] >= 2:
            A("s_lshl_b32 s3, %s, 9" % sH)
            A("s_add_u32 s3, s3, %s" % t0)
        A("v_lshl_add_u32 %s, %s, 4, %s" % (u0, u0, t0))
        if o["lastfin"] != 1:
            A("v_and_b32 %s, 7, v0" % u1)
            A("v_lshl_add_u32 %s, %s, 9, %s" % (vL3, u1, u0))
        A("s_lshl_b32 %s, %s, 9" % (t3, sH))
        A("v_lshl_add_u32 %s, %s, 13, %s" % (u0, vP, u0))
        A("v_add_u32 %s, %s, %s" % (vS3, t3, u0))
    if o.get("mockx"):
        A("s_lshr_b32 %s, %s, 1" % (t0, sJ))
        A("s_lshl_b32 %s, %s, 14" % (t0, t0))
        A("s_and_b32 %s, %s, 1" % (t3, sJ))
        A("s_lshl_b32 %s, %s, 12" % (t3, t3))
        A("s_add_u32 %s, %s, %s" % (t0, t0, t3))
        A("s_lshl_b32 %s, %s, 9" % (t3, sH))
        A("s_add_u32 %s, %s, %s" % (t0, t0, t3))
        A("s_and_b32 %s, %s, 1" % (t3, sW))
        A("s_lshl_b32 %s, %s, 13" % (t3, t3))
        A("s_add_u32 %s, %s, %s" % (t0, t0, t3))
        A("s_add_u32 %s, %s, 0x%x" % (t0, t0, MB3))
        A("v_and_b32 %s, 3, v0" % u0)
        A("v_lshl_add_u32 %s, %s, 4, %s" % (vS3, u0, t0))
        A("s_and_b32 %s, %s, 3" % (t0, sJ))
        A("s_lshl_b32 %s, %s, 2" % (t0, t0))
        A("s_add_u32 %s, %s, %s" % (t0, t0, sW))
        A("s_lshl_b32 %s, %s, 14" % (t0, t0))
        A("s_lshr_b32 %s, %s, 2" % (t3, sJ))
        A("s_lshl_b32 %s, %s, 9" % (t3, t3))
        A("s_add_u32 %s, %s, %s" % (t0, t0, t3))
        A("s_add_u32 %s, %s, 0x%x" % (t0, t0, MB3))
        A("v_lshl_add_u32 %s, %s, 4, %s" % (vL3, u0, t0))
        A("v_bfe_u32 %s, v0, 2, 1" % u0)
        A("v_lshl_add_u32 %s, %s, 12, %s" % (vL3, u0, vL3))
    A("v_lshlrev_b32 %s, 4, %s" % (u1, vP))
    def pretouch2():
        C("first touch of this workgroup's own hand-off lines (values unused), so that no wait on them starts with a miss to HBM")
        if o["reuse"]:
            A("s_lshl_b32 %s, %s, 9" % (t0, sW))
            A("v_lshlrev_b32 v158, 3, v0")
            A("v_sub_u32 v158, %s, v158" % vL2)
            A("v_add_u32 v158, %s, v158" % t0)
            if o["pt3"]: A("v_writelane_b32 v158, s3, 63")
        else:
            A("s_and_b32 %s, %s, 1" % (t0, sW))
            A("s_lshl_b32 %s, %s, 10" % (t0, t0))
            A("s_lshr_b32 %s, %s, 1" % (t3, sW))
            A("s_mul_i32 %s, %s, 0x%x" % (t3, t3, MB25 - MB2))
            A("s_add_u32 %s, %s, %s" % (t0, t0, t3))
            A("v_add_u32 v158, %s, %s" % (t0, vL2))
        if o["pretouch"] in ("r", "k"):
            if o.get("ptm") is not None:
                A("s_mov_b32 exec_lo, 0x%x" % (o["ptm"] & 0xffffffff))
                A("s_mov_b32 exec_hi, 0x%x" % (o["ptm"] >> 32))
            A("global_load_dword v159, v158, %s %s" % (sWS, o.get("ptfl", "sc1"))); issued[0] += 1
            if o.get("ptm") is not None: A("s_mov_b64 exec, -1")
        if o.get("otouch2", 0) & 1:
            A("global_load_dword v166, %s, %s" % (vXF, sOUT)); issued[0] += 1
        if o.get("otouch2", 0) & 2:
            A("global_load_dword v165, %s, %s sc1" % (vS3, sWS)); issued[0] += 1
    if o["pretouch"] == "r" or isinstance(o["pretouch"], int): pretouch2()
    A("v_mov_b32 %s, 0xffff" % u0)
    A("v_lshlrev_b32 %s, %s, %s" % (u0, u1, u0))
    A("v_and_b32 %s, 2, v0" % u1)
    A("v_cmp_eq_u32 vcc, 0, %s" % u1)
    A("v_lshrrev_b32 %s, 1, %s" % (u1, vN))
    A("v_lshlrev_b32 %s, 2, %s" % (vHA, vG))
    SEL = 160
    A("v_mov_b32 v%d, 0x0c0c0c0c" % (SEL + 2))
    A("v_mov_b32 v%d, 0x01000100" % (SEL + 3))
    A("v_bfi_b32 v%d, %s, v%d, v%d" % (SEL + 3, u0, SEL + 3, SEL + 2))
    A("v_cndmask_b32 v%d, v%d, v%d, vcc" % (SEL, SEL + 2, SEL + 3))
    A("v_cndmask_b32 v%d, v%d, v%d, vcc" % (SEL + 1, SEL + 3, SEL + 2))
    A("v_and_b32 v%d, 0x02020202, %s" % (SEL + 3, u0))
    A("v_cndmask_b32 v%d, 0, v%d, vcc" % (SEL + 2, SEL + 3))
    A("v_cndmask_b32 v%d, v%d, 0, vcc" % (SEL + 3, SEL + 3))
    A("v_add_u32 v%d, v%d, v%d" % (SEL + 2, SEL + 2, SEL))
    A("v_add_u32 v%d, v%d, v%d" % (SEL + 3, SEL + 3, SEL + 1))
    for r in range(4):
        A("v_cmp_eq_u32 s[%d:%d], %d, %s" % (44 + 2 * r, 45 + 2 * r, r, u1))
    A("v_lshrrev_b32 %s, 2, %s" % (vMLW, vN))
    A("v_lshlrev_b32 %s, 4, %s" % (u1, vG))
    A("v_lshl_add_u32 %s, %s, 8, %s" % (vQA, vMLW, u1))
    for r in range(4):
        A("v_cndmask_b32 v%d, 0, %s, s[%d:%d]" % (MK + r, u0, 44 + 2 * r, 45 + 2 * r))
    OH, OG, OWV = (384, 768, 3072) if o["cq2"] else (256, 512, 2048)
    if o["cq2"]:
        A("s_mul_i32 %s, %s, %d" % (t0, sW, OWV))
        A("v_mul_u32_u24 %s, %d, %s" % (vOW, OG, vG))
        A("v_add3_u32 %s, %s, %s, %s" % (vOW, vOW, vN16, t0))
    else:
        A("s_lshl_b32 %s, %s, 11" % (t0, sW))
        A("v_lshl_add_u32 %s, %s, 9, %s" % (vOW, vG, vN16))
        A("v_add_u32 %s, %s, %s" % (vOW, t0, vOW))
    A("s_lshl_b32 %s, %s, 3" % (t0, sW))
    A("v_lshl_add_u32 %s, %s, 5, %s" % (vMLW, vMLW, t0))
    if o["cq2"]:
        A("v_bfe_u32 %s, v0, 1, 4" % u1)
        A("v_lshlrev_b32 %s, 4, %s" % (u1, u1))
        A("v_mul_u32_u24 %s, %d, %s" % (u0, OH, vP))
        A("s_mul_i32 %s, %s, %d" % (t0, sW, OG))
        A("v_add3_u32 %s, %s, %s, %s" % (vOR, u0, u1, t0))
    else:
        A("v_bfe_u32 %s, v0, 1, 1" % u0)
        A("v_lshrrev_b32 %s, 2, v0" % u1)
        A("v_lshlrev_b32 %s, 4, %s" % (u1, u1))
        A("v_lshl_add_u32 %s, %s, 8, %s" % (u1, u0, u1))
        A("v_lshl_add_u32 %s, %s, 3, %s" % (u1, vP, u1))
        A("s_lshl_b32 %s, %s, 9" % (t0, sW))
        A("v_add_u32 %s, %s, %s" % (vOR, t0, u1))
    KA = 140
    A("v_and_b32 %s, 3, v0" % u0)
    A("v_lshrrev_b32 %s, 2, %s" % (u1, vN))
    A("v_lshlrev_b32 %s, 8, %s" % (u1, u1))
    A("v_lshl_add_u32 %s, %s, 10, %s" % (u0, u0, u1))
    A("v_xor_b32 %s, %s, %s" % (u1, vG, vN))
    A("v_lshl_add_u32 %s, %s, 4, %s" % (u0, u1, u0))
    A("s_lshl_b32 %s, %s, 13" % (t1, sW))
    A("v_add_u32 v%d, %s, %s" % (KA, t1, u0))
    for s_ in range(1, 4):
        A("v_xor_b32 v%d, %d, v%d" % (KA + s_, s_ << 6, KA))
    if o.get("cheap", 0) & 1:
        A("v_and_b32 %s, 0x3fff, %s" % (vWO0, vWO0)); A("v_or_b32 %s, 0x1000, %s" % (vWO0, vWO0)); A("v_mov_b32 %s, %s" % (vWO1, vWO0))
    if o.get("cheap", 0) & 2:
        A("v_and_b32 %s, 0x3fff, %s" % (vDN0, vDN0)); A("v_mov_b32 %s, %s" % (vDN1, vDN0))
    if o.get("cheap", 0) & 4:
        A("v_and_b32 %s, 0x3fff, %s" % (vV0, vV0)); A("s_mov_b32 s57, 0")
    if o["vdyn"]: A("v_mov_b32 v166, 0")
    for _ in range(o.get("delayA", 0)): A("s_nop 3")
    def issue_rest(WK_, W_):
        o_wk = o["WK"]; o["WK"] = WK_
        for i in range(nk_first, 8): kload(i)
        o["WK"] = o_wk
        if o["pretouch"] == "k": pretouch2()
        if o.get("xearly"):
            A("global_load_dword %s, %s, %s" % (vXP, vXF, sX)); issued[0] += 1
        for i in range(8 - o["vlate"]):
            ld, *step = vload(i)
            load(W_, ld)
            for t_ in step: A(t_)
    def vload(i):
        r = VR + i * 4
        seq = ["global_load_dwordx4 v[%d:%d], %s, %s %s" % (r, r + 3, vV0, sV, nt)]
        if i < 7:
            if rot(i) ^ rot(i + 1): seq.append("v_xor_b32 %s, %d, %s" % (vV0, (rot(i) ^ rot(i + 1)) << 10, vV0))
            if not perm: seq.append("v_add_u32 %s, %s, %s" % (vV0, "s57" if o.get("cheap", 0) & 4 and i % o.get("cheapm", 1) == 0 else "s42", vV0))
        return seq
    if o.get("bal"):
        C("a group that started well after others asks memory with a wider window")
        A("s_waitcnt vmcnt(%d)" % issued[0])
        A("v_sub_u32 v158, s90, v159")
        A("v_cmp_ne_u32 vcc, 0, v159")
        A("v_cmp_lt_i32 s[44:45], %d, v158" % o.get("theta", 40))
        A("s_and_b32 s62, vcc_lo, s44")
        A("s_and_b32 s62, s62, 0xff")
        A("s_bcnt1_i32_b32 s62, s62")
        A("s_cmp_ge_u32 s62, %d" % o.get("lateth", 2))
        A("s_cbranch_scc1 L_wide")
        keep = issued[0]
        issue_rest(o["WK"], o["W"])
        A("s_branch L_issued")
        LB("L_wide")
        issued[0] = keep
        issue_rest(o["WK"] + o["bal"], o["W"] + o["bal"])
        LB("L_issued")
    elif o.get("c3"):
        A("s_lshr_b32 %s, %s, 2" % (t0, sJ))
        A("s_cmp_eq_u32 %s, 3" % t0)
        A("s_cbranch_scc1 L_wide")
        keep = issued[0]
        issue_rest(o["WK"], o["W"])
        A("s_branch L_issued")
        LB("L_wide")
        issued[0] = keep
        issue_rest(o["WK"] + o["c3"], o["W"] + o.get("c3v", o["c3"]))
        LB("L_issued")
    else:
        issue_rest(o["WK"], o["W"])
    tail = []
    if o["lastfin"] != 1 and not o.get("xstag"): tail.append("global_load_dword %s, %s, %s" % (vXP, vXF, sX))
    for a in range(2):
        r = DNR + a * 4
        tail.append("global_load_dwordx4 v[%d:%d], %s, %s %s" % (r, r + 3, (vDN0, vDN1)[a], sDN, nt))
    for m in range(4):
        r = WOR + m * 4
        tail.append("global_load_dwordx4 v[%d:%d], %s, %s offset:%d %s" % (r, r + 3, (vWO0, vWO1)[m >> 1], sWO, (0, -4096)[(m & 1) == 0], nt))
    dnl = []
    if o.get("dnlate"):
        dnl = tail[1:1 + 2]
        if o["dnlate"] == 2: dnl = dnl[1:]
        for t_ in dnl: tail.remove(t_)
        tail.append(tail.pop(0))
    if isinstance(o["pretouch"], int):
        tail.insert(o["pretouch"], "global_load_dword v159, v158, %s sc1" % sWS)
    if o.get("xearly"):
        xl = [t_ for t_ in tail if vXP + "," in t_][0]; tail.remove(xl)
    taft = []
    for _ in range(o.get("tafter", 0)): taft.insert(0, tail.pop())
    tail[:0] = [vload(i) for i in range(8 - o["vlate"], 8)]
    nav = [-o["vlate"]]
    def tail_issue(n):
        for _ in range(n):
            if tail:
                t_ = tail.pop(0)
                for q_ in ([t_] if isinstance(t_, str) else t_): A(q_)
                nav[0] += 1
    sNE = "s63"
    def adaptive():
        C("a wave whose V loads have landed while it waited for q tops its window up with the weight loads")
        assert not o["vlate"] and not o["ntail0"] and not o["tsp"] and not o["tlag"] and len(tail) == 7
        A("s_getreg_b32 %s, hwreg(HW_REG_IB_STS, 0, 4)" % t0)
        A("s_sub_i32 %s, %d, %s" % (sNE, o["Wa"], t0))
        for k in range(min(7, o["Wa"])):
            A("s_cmp_le_i32 %s, %d" % (sNE, k))
            A("s_cbranch_scc1 L_topped")
            A(tail[k])
        LB("L_topped")
    A("s_waitcnt vmcnt(%d)" % (8 - o["vlate"]))
    for t in range(2):
        for s in range(4):
            r = KR + (t * 4 + s) * 4
            A("ds_read_b128 v[%d:%d], v%d offset:%d" % (r, r + 3, KA + s, L_K + t * 4096))
    tail_issue(o["ntail0"])
    stamp(2)
    A("s_waitcnt lgkmcnt(0)")
    if o["vdyn"]:
        assert o["vlate"] == 1 and "a" in o["tsp"]
        C("the last V load goes out when the window allows it or when q is there, whichever comes first")
        LB("L_vspin")
        A("ds_read_b32 v167, v166 offset:%d" % (L_FLAG + 12))
        A("s_getreg_b32 %s, hwreg(HW_REG_IB_STS, 0, 4)" % t0)
        A("s_cmp_lt_u32 %s, %d" % (t0, o["vdyn"]))
        A("s_cbranch_scc1 L_vnow")
        A("s_waitcnt lgkmcnt(0)")
        A("v_cmp_ne_u32 vcc, 1, v167")
        A("s_cbranch_vccnz L_vspin")
        A("s_branch L_vb1")
        LB("L_vnow")
        A(tail[0][0])
        LB("L_vb1")
    A("s_barrier")
    stamp(3)
    for s in range(4):
        A("ds_read_b128 v[%d:%d], %s offset:%d" % (QR + 4 * s, QR + 4 * s + 3, vQA, L_Q + s * 64))
    if "a" in o["tsp"]:
        if o["vdyn"]: A("s_cbranch_scc1 L_vdone")
        tail_issue(1)
        if o["vdyn"]: LB("L_vdone")
    if o["adap"] == "a": adaptive()
    A("s_mov_b32 s46, 0x%x" % SCALE)
    A("s_mov_b32 %s, 0xffff0000" % t1)
    A("s_mov_b32 s48, 0x%x" % LOG2E)
    for s in range(4):
        A("s_waitcnt lgkmcnt(%d)" % (3 - s))
        for t in range(2):
            mfma(SR + 4 * t, KR + (t * 4 + s) * 4, QR + 4 * s, None if s == 0 else SR + 4 * t)
    T = KR
    vH0, vH1, vFL, vTG = "v%d" % (T + 28), "v%d" % (T + 29), "v%d" % (T + 26), "v%d" % (T + 27)
    A("v_mov_b32 %s, %d" % (vFL, L_FLAG))
    A("s_lshl_b32 %s, %s, 5" % (t3, sW))
    A("v_mov_b32 v%d, %s" % (T + 31, t3))
    A("ds_read_b64 v[%d:%d], %s" % (T + 26, T + 27, vFL))
    if "b" in o["tsp"]:
        tail_issue(1); A("s_nop 1")
    elif o["adap"] == "b": adaptive()
    else: A("s_nop 2")
    C("scores: bf16(qk) -> * scale -> bf16   (the reference's two roundings)")
    for i in range(8):
        A("v_cvt_pk_bf16_f32 v%d, 0, v%d" % (SR + i, SR + i))
    for i in range(4):
        A("v_pk_mul_f32 %s, %s, s[46:47] op_sel_hi:[1,0]" % (P2(SR + 2 * i), P2(SR + 2 * i)))
    for i in range(8):
        A("v_cvt_pk_bf16_f32 v%d, 0, v%d" % (SR + i, SR + i))
    vm, vt, vl = "v%d" % (T + 4), "v%d" % (T + 6), "v%d" % (T + 5)
    A("v_max3_f32 %s, v%d, v%d, v%d" % (vm, SR, SR + 1, SR + 2))
    A("v_max3_f32 %s, v%d, v%d, v%d" % (vt, SR + 3, SR + 4, SR + 5))
    A("v_max3_f32 %s, %s, v%d, v%d" % (vm, vm, SR + 6, SR + 7))
    A("v_max_f32 %s, %s, %s" % (vm, vm, vt))
    allred(vm, vt, "v_max_f32", 16)
    if "c" in o["tsp"]: tail_issue(1)
    if o["adap"] == "c": adaptive()
    allred(vm, vt, "v_max_f32", 32)
    A("v_mul_f32 %s, s48, %s" % (vm, vm))
    for i in range(4):
        A("v_pk_fma_f32 %s, %s, s[48:49], %s op_sel_hi:[1,0,0] neg_lo:[0,0,1] neg_hi:[0,0,1]" % (P2(SR + 2 * i), P2(SR + 2 * i), P2(T + 4)))
    for i in range(8):
        A("v_exp_f32 v%d, v%d" % (SR + i, SR + i))
    if "d" in o["tsp"]: tail_issue(1)
    for i in range(4):
        A("v_cvt_pk_bf16_f32 v%d, v%d, v%d" % (T + 8 + i, SR + 2 * i, SR + 2 * i + 1))
    for i in range(8):
        for r in range(2):
            A("v_perm_b32 v%d, v%d, v%d, v%d" % (PA + 2 * i + r, T + 8 + (i >> 1), T + 8 + (i >> 1), SEL + 2 * (i & 1) + r))
    stamp(4)
    O0, O1, Y = QR, QR + 4, QR + 8
    def pv(i):
        assert 7 - i + nav[0] >= 0
        A("s_waitcnt vmcnt(%d)" % (7 - i + nav[0]))
        if o["adap"] and i < min(7, o["Wa"]):
            A("s_cmp_gt_i32 %s, %d" % (sNE, i))
            A("s_cbranch_scc1 L_had%d" % i)
            tail_issue(1)
            LB("L_had%d" % i)
        elif i >= o["tlag"]: tail_issue((2 if i < o.get("tdbl", 0) else 1) if i < o.get("tlast", 7) else 9)
        vr = VR + 4 * i
        mfma16(O0, PA + 2 * i, vr, None if i == 0 else O0)
        mfma16(O1, PA + 2 * i, vr + 2, None if i == 0 else O1)
    A("v_pk_add_f32 %s, %s, %s" % (P2(SR), P2(SR), P2(SR + 2)))
    A("v_pk_add_f32 %s, %s, %s" % (P2(SR + 4), P2(SR + 4), P2(SR + 6)))
    A("v_pk_add_f32 %s, %s, %s" % (P2(SR), P2(SR), P2(SR + 4)))
    A("v_add_f32 %s, v%d, v%d" % (vl, SR, SR + 1))
    allred(vl, vt, "v_add_f32", 16)
    allred(vl, vt, "v_add_f32", 32)
    A("ds_write_b64 %s, v[%d:%d] offset:%d" % (vMLW, T + 4, T + 5, L_ML))
    A("s_waitcnt lgkmcnt(0)")
    A("v_readfirstlane_b32 %s, %s" % (sFAST, vFL))
    A("v_readfirstlane_b32 %s, %s" % (sTAG, vTG))
    SO = 4
    def soffs():
        A("s_and_b32 %s, %s, 0x2000" % (t0, sFAST))
        A("v_add_u32 %s, %s, %s" % (vL3, t0, vL3))
        A("s_or_b32 s3, s3, %s" % t0)
        for k in range(1, 8): A("s_xor_b32 s%d, s3, 0x%x" % (SO + k - 1, k << 9))
    nshot = [0]
    SD = [12, 20, 44, 64, 72, 80, 88] if not o["stamps"] else None
    def sshot(bit):
        if o["lastfin"] < 2 or not (o.get("sshot", 2) & bit): return
        nshot[0] += 1
        A("s_bitcmp0_b32 %s, 1" % sFAST)
        A("s_cbranch_scc1 L_noshot%d" % nshot[0])
        for k in range(1, 8):
            if o["lastfin"] == 2: A("s_load_dword s%d, %s, s%d offset:12 %s" % (12 + k, sWS, SO + k - 1, o.get("sfl", "glc")))
            else: A("s_load_dwordx8 s[%d:%d], %s, s%d glc" % (SD[k - 1], SD[k - 1] + 7, sWS, SO + k - 1))
        LB("L_noshot%d" % nshot[0])
    HA = T + 16
    ML = T
    OB = T + 8
    G2 = SR
    vM, vLs = "v124", "v125"
    C("P V; each step's wait also clocks one load of x / w_down / wo")
    for i in range(o["b2"]): pv(i)
    if o.get("dbgb2"): A("s_memrealtime s[70:71]")
    A("s_barrier")
    if o.get("dbgb2"): A("s_memrealtime s[72:73]")
    A("ds_read_b128 v[%d:%d], v%d offset:%d" % (ML, ML + 3, T + 31, L_ML))
    A("ds_read_b128 v[%d:%d], v%d offset:%d" % (ML + 4, ML + 7, T + 31, L_ML + 16))
    if not o["hlate"]:
        A("ds_read_b32 %s, %s offset:%d" % (vH0, vHA, L_H))
        A("ds_read_b32 %s, %s offset:%d" % (vH1, vHA, L_H + 16))
    avote = o["vote"] and not o["lastfin"]
    if avote:
        A("v_mov_b32 v%d, 0" % (T + 30))
        A("ds_read_b32 v%d, v%d offset:%d" % (T + 30, T + 30, L_FLAG + 8))
    if not o["cq2"]:
        A("s_mov_b32 s54, 0x55555555")
        A("s_mov_b32 s55, 0x55555555")
    A("v_mov_b32 v%d, %s" % (G2 + 3, sTAG))
    A("s_waitcnt lgkmcnt(%d)" % ((0 if o["hlate"] else 2) + (1 if avote else 0)))
    A("v_max3_f32 %s, v%d, v%d, v%d" % (vM, ML, ML + 2, ML + 4))
    A("v_max_f32 %s, %s, v%d" % (vM, vM, ML + 6))
    for w_ in range(4):
        A("v_sub_f32 v%d, v%d, %s" % (ML + 2 * w_, ML + 2 * w_, vM))
    for w_ in range(4):
        A("v_exp_f32 v%d, v%d" % (ML + 2 * w_, ML + 2 * w_))
    A("s_waitcnt lgkmcnt(0)")
    A("v_mul_f32 %s, v%d, v%d" % (vLs, ML, ML + 1))
    for w_ in range(1, 4):
        A("v_fmac_f32 %s, v%d, v%d" % (vLs, ML + 2 * w_, ML + 2 * w_ + 1))
    def h_operands():
        for a in range(2):
            for r in range(4):
                A("v_and_b32 v%d, %s, v%d" % (HA + 4 * a + r, (vH0, vH1)[a], MK + r))
    if o["zw"]:
        A("v_lshlrev_b32 v166, 3, v0")
        A("v_mov_b32 v%d, 0" % HA)
        A("v_mov_b32 v%d, 0" % (HA + 1))
        A("ds_write_b64 v166, v[%d:%d] offset:%d" % (HA, HA + 1, L_Q))
    A("v_log_f32 v%d, %s" % (G2 + 2, vLs))
    A("v_rcp_f32 %s, %s" % (vLs, vLs))
    if not o["hlate"]: h_operands()
    else: A("s_nop 0")
    if avote: A("v_add_u32 %s, v%d, %s" % (vL3, T + 30, vL3))
    A("v_add_f32 v%d, v%d, %s" % (G2 + 2, G2 + 2, vM))
    for w_ in range(4):
        A("v_mul_f32 v%d, v%d, %s" % (ML + 2 * w_, ML + 2 * w_, vLs))
    for i in range(o["b2"], 8): pv(i)
    stamp(5)
    if o.get("nosync"):
        A("s_waitcnt vmcnt(0)")
        stamp(6)
        A("s_branch L_done")
    C("merge the four waves; wave w publishes head w: {o, o, log2 sum, tag}")
    A("s_nop 6")
    A("ds_write_b128 %s, v[%d:%d] offset:%d" % (vOW, O0, O0 + 3, L_O))
    A("ds_write_b128 %s, v[%d:%d] offset:%d" % (vOW, O1, O1 + 3, L_O + OH))
    A("s_waitcnt lgkmcnt(0)")
    A("s_barrier")
    if o["cq2"]:
        OB4, AC = VR, VR + 16
        A("s_mov_b32 exec_hi, 0")
        for w_ in range(4):
            A("ds_read_b128 v[%d:%d], %s offset:%d" % (OB4 + 4 * w_, OB4 + 4 * w_ + 3, vOR, L_O + w_ * OWV))
        A("s_bitcmp0_b32 %s, 0" % sFAST)
        for w_ in range(4):
            A("s_waitcnt lgkmcnt(%d)" % (3 - w_))
            for hf in range(2):
                if w_ == 0: A("v_pk_mul_f32 %s, %s, %s op_sel_hi:[1,0]" % (P2(AC + 2 * hf), P2(OB4 + 2 * hf), P2(ML)))
                else: A("v_pk_fma_f32 %s, %s, %s, %s op_sel_hi:[1,0,1]" % (P2(AC + 2 * hf), P2(OB4 + 4 * w_ + 2 * hf), P2(ML + 2 * w_), P2(AC + 2 * hf)))
    else:
        for w_ in range(4):
            A("ds_read_b64 v[%d:%d], %s offset:%d" % (OB + 2 * w_, OB + 2 * w_ + 1, vOR, L_O + w_ * 2048))
        A("s_bitcmp0_b32 %s, 0" % sFAST)
        for w_ in range(4):
            A("s_waitcnt lgkmcnt(%d)" % (3 - w_))
            op = "v_mul_f32" if w_ == 0 else "v_fmac_f32"
            A("%s v%d, v%d, v%d" % (op, G2, ML + 2 * w_, OB + 2 * w_))
            A("%s v%d, v%d, v%d" % (op, G2 + 1, ML + 2 * w_, OB + 2 * w_ + 1))
    tails = []
    def publish(addr, g, name):
        A("s_cbranch_scc1 L_slow_%s" % name)
        A("global_store_dwordx4 %s, v[%d:%d], %s %s" % (addr, g, g + 3, sWS, o.get("stfl", "")))
        LB("L_back_%s" % name)
        tails.append((name, addr, g))
    if o["cq2"]:
        A("v_cvt_pk_bf16_f32 v%d, v%d, v%d" % (G2, AC, AC + 1))
        A("v_cvt_pk_bf16_f32 v%d, v%d, v%d" % (G2 + 1, AC + 2, AC + 3))
    else:
        A("v_cvt_pk_bf16_f32 v%d, v%d, v%d" % (G2, G2, G2 + 1))
        A("s_nop 1")
        A("v_mov_b32_dpp v%d, v%d quad_perm:[1,1,3,3] %s" % (G2 + 1, G2, DPP))
        A("s_mov_b64 exec, s[54:55]")
    publish(vS2, G2, "h2")
    A("s_mov_b64 exec, -1")
    stamp(6)
    P = T
    def ask2(k):
        for i in range(2):
            A("global_load_dwordx4 v[%d:%d], %s, %s offset:%d sc1" % (VR + 8 * k + 4 * i, VR + 8 * k + 4 * i + 3, vL2, sWS, i * 1024))
    C("hand-off 2: 32 partial outputs for this workgroup's 16 rows of wo")
    if o["g2"]:
        A("s_cmp_lg_u32 %s, %d" % (sW, o["gw2"]))
        A("s_cselect_b64 exec, 0, -1")
        ask2(0)
        A("s_mov_b64 exec, -1")
    else:
        for i in range(2):
            A("global_load_dwordx4 v[%d:%d], %s, %s offset:%d %s" % (P + 4 * i, P + 4 * i + 3, vL2, sWS, i * 1024, o.get("p2fl", "sc1")))
    for t_ in dnl: A(t_)
    if o["hlate"]:
        A("s_barrier")
        A("ds_read_b32 %s, %s offset:%d" % (vH0, vHA, L_H))
        A("ds_read_b32 %s, %s offset:%d" % (vH1, vHA, L_H + 16))
    A("s_mov_b32 %s, %d" % (sCNT, o["spinmax"]))
    vTAG = "v127"
    sT2 = sTAG
    if o["reuse"]:
        sT2 = "s62"
        A("s_not_b32 %s, %s" % (t0, sTAG))
        A("s_lshl_b32 %s, %s, 24" % (t0, t0))
        A("s_and_b32 s62, %s, 0xffffff" % sTAG)
        A("s_or_b32 s62, s62, %s" % t0)
    A("v_mov_b32 %s, %s" % (vTAG, sT2))
    for k in range(4):
        A("s_mov_b32 s%d, 0x%x" % (56 + k, 0x07060500 | k))
        A("s_bfe_u32 s%d, %s, 0x%x" % (60 + k if k < 2 else 50 + k, sT2, 0x80000 | (8 * k)))
    TB = ["s60", "s61", "s52", "s53"]
    if o["hlate"]:
        A("s_waitcnt lgkmcnt(0)")
        h_operands()
    ndn_early = 2 - len(dnl)
    if o["lastfin"] >= 2: soffs()
    if o["g2"]:
        NP2 = o["g2"]
        if o["zw"]:
            A("v_lshlrev_b32 v126, 3, %s" % vHA)
            A("v_and_b32 v125, 3, v0")
            A("v_lshl_add_u32 v165, v125, 7, v126")
            A("v_and_b32 v125, 15, v0")
            A("v_cmp_gt_u32 vcc, 8, v125")
            A("v_lshlrev_b32 v124, 1, v125")
            A("v_sub_u32 v124, 14, v124")
            A("v_cndmask_b32 v124, 16, v124, vcc")
            A("v_add_u32 v126, v126, v124")
        else:
            A("v_lshlrev_b32 v126, 2, %s" % vHA)
            A("v_and_b32 v125, 3, v0")
            A("v_lshl_add_u32 v165, v125, 2, v126")
        A("s_cmp_lg_u32 %s, %d" % (sW, o["gw2"]))
        A("s_cbranch_scc1 L_wait_a")
        A("s_waitcnt vmcnt(2)")
        for k in range(1, NP2): ask2(k)
        for a in range(2):
            mfma(Y, HA + 4 * a, DNR + 4 * a, None if a == 0 else Y)
        LB("L_poll2b")
        for k in range(NP2):
            for i in range(2):
                a_ = VR + 8 * k + 4 * i
                A("s_waitcnt vmcnt(%d)" % (2 * NP2 - 1 - i))
                A("v_cmp_ne_u32 %s, %s, v%d" % (("vcc", "s[44:45]")[i], sTAG, a_ + 3))
                A("v_pk_mov_b32 %s, %s, %s op_sel:[0,1]" % (P2(P + 4 * i), P2(a_), P2(a_)))
                A("v_mov_b32 v%d, v%d" % (P + 4 * i + 2, a_ + 2))
            A("v_max_f32 %s, v%d, v%d" % (vM, VR + 8 * k + 2, VR + 8 * k + 6))
            A("s_or_b64 vcc, vcc, s[44:45]")
            A("s_and_b64 exec, exec, vcc")
            A("s_cbranch_scc0 L_got2b")
            ask2(k)
        A("s_sub_u32 %s, %s, 1" % (sCNT, sCNT))
        A("s_cbranch_scc0 L_poll2b")
        A("s_endpgm")
        LB("L_wait_a")
        A("s_waitcnt vmcnt(0)")
        for a in range(2):
            mfma(Y, HA + 4 * a, DNR + 4 * a, None if a == 0 else Y)
        A("s_barrier")
        if o["zw"]:
            for m in range(4):
                A("ds_read_b128 v[%d:%d], v126 offset:%d" % (T + 4 * m, T + 4 * m + 3, L_Q + 128 * m))
            A("s_bitcmp0_b32 %s, 0" % sFAST)
            for m in range(3):
                A("s_waitcnt lgkmcnt(%d)" % (3 - m))
                mfma(Y, T + 4 * m, WOR + 4 * m, Y)
            A("s_waitcnt lgkmcnt(0)")
            A("s_branch L_last_mfma2")
        else:
            A("ds_read_b128 v[%d:%d], v126 offset:%d" % (T + 24, T + 27, L_A))
            A("s_bitcmp0_b32 %s, 0" % sFAST)
            A("s_waitcnt lgkmcnt(0)")
            for m in range(4):
                for r in range(4):
                    A("v_and_b32 v%d, v%d, v%d" % (T + 4 * m + r, T + 24 + m, MK + r))
                if m > 0: mfma(Y, T + 4 * (m - 1), WOR + 4 * (m - 1), Y)
        if not o["zw"]: A("s_branch L_last_mfma")
        LB("L_got2b")
        A("s_mov_b64 exec, -1")
        A("v_max_f32_dpp %s, %s, %s row_ror:4 %s" % (vM, vM, vM, DPP))
        n_g2 = len(L)
    else:
        if o.get("mockx"): ndn_early = 0
        else: A("s_waitcnt vmcnt(%d)" % (3 + len(dnl)))
        if o.get("dbgwo"): A("s_memrealtime s[68:69]")
        for a in range(ndn_early):
            mfma(Y, HA + 4 * a, DNR + 4 * a, None if a == 0 else Y)
        if dnl:
            A("s_waitcnt vmcnt(%d)" % len(dnl))
            A("s_branch L_chk2b")
        else:
            A("s_branch L_chk2")
    LB("L_poll2")
    MS = ["s[44:45]", "s[46:47]"]
    if o["np2"]:
        C("still waiting for some producers: several asks in flight, only for the lanes whose tags were missing")
        NP2 = o["np2"]
        A("s_mov_b64 exec, vcc")
        for k in range(NP2): ask2(k)
        LB("L_poll2b")
        for k in range(NP2):
            for i in range(2):
                a_ = VR + 8 * k + 4 * i
                A("s_waitcnt vmcnt(%d)" % (2 * NP2 - 1 - i))
                A("v_cmp_ne_u32 %s, %s, v%d" % (("vcc", MS[0])[i], sTAG, a_ + 3))
                A("v_pk_mov_b32 %s, %s, %s op_sel:[0,1]" % (P2(P + 4 * i), P2(a_), P2(a_)))
                A("v_mov_b32 v%d, v%d" % (P + 4 * i + 2, a_ + 2))
            A("s_or_b64 vcc, vcc, %s" % MS[0])
            A("s_and_b64 exec, exec, vcc")
            A("s_cbranch_scc0 L_got2b")
            ask2(k)
        A("s_sub_u32 %s, %s, 1" % (sCNT, sCNT))
        A("s_cbranch_scc0 L_poll2b")
        A("s_endpgm")
        LB("L_got2b")
        A("s_mov_b64 exec, -1")
        A("v_max_f32 %s, v%d, v%d" % (vM, P + 2, P + 6))
        A("s_nop 1")
        A("v_max_f32_dpp %s, %s, %s row_ror:4 %s" % (vM, vM, vM, DPP))
        A("s_nop 0")
        A("s_branch L_got2")
    else:
        for i in range(2):
            if o["mask2"]: A("s_mov_b64 exec, %s" % MS[i])
            A("global_load_dwordx4 v[%d:%d], %s, %s offset:%d sc1" % (P + 4 * i, P + 4 * i + 3, vL2, sWS, i * 1024))
        if o["mask2"]: A("s_mov_b64 exec, -1")
        A("s_sub_u32 %s, %s, 1" % (sCNT, sCNT))
        A("s_cbranch_scc1 L_end")
    LB("L_chk2")
    A("s_waitcnt vmcnt(0)")
    LB("L_chk2b")
    A("v_max_f32 %s, v%d, v%d" % (vM, P + 2, P + 6))
    for i in range(2):
        A("v_cmp_ne_u32 %s, %s, v%d" % (MS[i], sTAG, P + 4 * i + 3))
    A("v_max_f32_dpp %s, %s, %s row_ror:4 %s" % (vM, vM, vM, DPP))
    A("s_or_b64 vcc, %s, %s" % (MS[0], MS[1]))
    A("s_cbranch_scc1 L_poll2")
    if o["np2"]: LB("L_got2")
    if o["g2"]: del L[n_g2:]
    stamp(7)
    if o.get("tpos", "g") == "g":
        for t_ in taft: A(t_)
    sshot(1)
    U = T + 8
    def unp(i, k):
        if k & 1: A("v_and_b32 v%d, %s, v%d" % (U + 4 * i + k, t1, P + 4 * i + (k >> 1)))
        else: A("v_lshlrev_b32 v%d, 16, v%d" % (U + 4 * i + k, P + 4 * i + (k >> 1)))
    vt2 = "v126"
    w0, w1 = "v120", "v122"
    den, tA, tB = "v126", "v124", "v123"
    if o["g2"]:
        unp(0, 0); unp(0, 1)
        A("v_max_f32_dpp %s, %s, %s row_ror:8 %s" % (vM, vM, vM, DPP))
        A("v_mov_b32 %s, %s" % (vt2, vM))
        unp(0, 2); unp(0, 3)
        A("v_permlane16_swap_b32 %s, %s" % (vt2, vM))
        A("v_max_f32 %s, %s, %s" % (vM, vM, vt2))
        A("v_mov_b32 %s, %s" % (vt2, vM))
        unp(1, 0); unp(1, 1)
        A("v_permlane32_swap_b32 %s, %s" % (vt2, vM))
        A("v_max_f32 %s, %s, %s" % (vM, vM, vt2))
        A("v_sub_f32 %s, v%d, %s" % (w0, P + 2, vM))
        A("v_sub_f32 %s, v%d, %s" % (w1, P + 6, vM))
        A("v_exp_f32 %s, %s" % (w0, w0))
        A("v_exp_f32 %s, %s" % (w1, w1))
        unp(1, 2)
        A("v_add_f32 %s, %s, %s" % (den, w0, w1))
        unp(1, 3)
        A("v_pk_mul_f32 %s, %s, v[120:121] op_sel_hi:[1,0]" % (P2(U), P2(U)))
        A("v_add_f32_dpp %s, %s, %s row_ror:4 %s" % (den, den, den, DPP))
        A("v_pk_mul_f32 %s, %s, v[120:121] op_sel_hi:[1,0]" % (P2(U + 2), P2(U + 2)))
        A("v_pk_fma_f32 %s, %s, v[122:123], %s op_sel_hi:[1,0,1]" % (P2(U), P2(U + 4), P2(U)))
        A("v_add_f32_dpp %s, %s, %s row_ror:8 %s" % (den, den, den, DPP))
        A("v_pk_fma_f32 %s, %s, v[122:123], %s op_sel_hi:[1,0,1]" % (P2(U + 2), P2(U + 6), P2(U + 2)))
    else:
        A("v_max_f32_dpp %s, %s, %s row_ror:8 %s" % (vM, vM, vM, DPP))
        A("v_mov_b32 %s, %s" % (vt2, vM))
        unp(0, 0); unp(0, 1)
        A("v_permlane16_swap_b32 %s, %s" % (vt2, vM))
        A("v_max_f32 %s, %s, %s" % (vM, vM, vt2))
        A("v_mov_b32 %s, %s" % (vt2, vM))
        unp(0, 2); unp(0, 3)
        A("v_permlane32_swap_b32 %s, %s" % (vt2, vM))
        A("v_max_f32 %s, %s, %s" % (vM, vM, vt2))
        w0, w1 = "v120", "v122"
        A("v_sub_f32 %s, v%d, %s" % (w0, P + 2, vM))
        A("v_sub_f32 %s, v%d, %s" % (w1, P + 6, vM))
        A("v_exp_f32 %s, %s" % (w0, w0))
        A("v_exp_f32 %s, %s" % (w1, w1))
        unp(1, 0)
        den, tA, tB = "v126", "v124", "v123"
        A("v_add_f32 %s, %s, %s" % (den, w0, w1))
        unp(1, 1); unp(1, 2)
        A("v_add_f32_dpp %s, %s, %s row_ror:4 %s" % (den, den, den, DPP))
        unp(1, 3)
        A("v_pk_mul_f32 %s, %s, v[120:121] op_sel_hi:[1,0]" % (P2(U), P2(U)))
        A("v_add_f32_dpp %s, %s, %s row_ror:8 %s" % (den, den, den, DPP))
        A("v_pk_mul_f32 %s, %s, v[120:121] op_sel_hi:[1,0]" % (P2(U + 2), P2(U + 2)))
        A("v_pk_fma_f32 %s, %s, v[122:123], %s op_sel_hi:[1,0,1]" % (P2(U), P2(U + 4), P2(U)))
        A("v_pk_fma_f32 %s, %s, v[122:123], %s op_sel_hi:[1,0,1]" % (P2(U + 2), P2(U + 6), P2(U + 2)))
    A("v_mov_b32 %s, %s" % (tA, den))
    A("s_bitcmp0_b32 %s, 0" % sFAST)
    A("v_permlane32_swap_b32 v%d, v%d" % (U, U + 2))
    A("v_permlane32_swap_b32 v%d, v%d" % (U + 1, U + 3))
    A("v_permlane32_swap_b32 %s, %s" % (tA, den))
    A("v_pk_add_f32 %s, %s, %s" % (P2(U), P2(U), P2(U + 2)))
    A("v_add_f32 %s, %s, %s" % (den, den, tA))
    A("s_mov_b32 %s, %d" % (sCNT, o["spinmax"]))
    A("v_permlane16_swap_b32 v%d, v%d" % (U, U + 1))
    A("v_mov_b32 %s, %s" % (tA, den))
    A("v_add_f32 v%d, v%d, v%d" % (U, U, U + 1))
    A("s_nop 0")
    A("v_permlane16_swap_b32 %s, %s" % (tA, den))
    A("v_add_f32_dpp v%d, v%d, v%d row_ror:4 %s" % (U, U, U, DPP))
    A("v_add_f32 %s, %s, %s" % (den, den, tA))
    A("v_rcp_f32 %s, %s" % (den, den))
    A("v_add_f32_dpp v%d, v%d, v%d row_ror:8 %s" % (U, U, U, DPP))
    a0 = "v125"
    A("v_mul_f32 %s, v%d, %s" % (a0, U, den))
    A("v_cvt_pk_bf16_f32 %s, %s, %s" % (a0, a0, a0))
    if o.get("mockx"):
        GX, PXS = 120, VR
        A("v_mov_b32 v%d, %s" % (GX + 3, sTAG))
        A("s_cmp_gt_u32 %s, 1" % sW)
        A("v_mov_b32_dpp v%d, %s quad_perm:[0,0,2,2] %s" % (GX, a0, DPP))
        A("v_mov_b32_dpp v%d, %s quad_perm:[1,1,3,3] %s" % (GX + 1, a0, DPP))
        A("s_cselect_b64 exec, 0, 15")
        A("global_store_dwordx4 %s, v[%d:%d], %s sc1" % (vS3, GX, GX + 3, sWS))
        A("s_mov_b64 exec, -1")
        stamp(1)
        if o.get("tpos") == "x":
            for t_ in taft: A(t_)
        A("s_mov_b64 exec, 0xff")
        LB("L_pollx")
        A("global_load_dwordx4 v[%d:%d], %s, %s sc1" % (PXS, PXS + 3, vL3, sWS))
        A("s_sub_u32 %s, %s, 1" % (sCNT, sCNT))
        A("s_cbranch_scc1 L_end")
        A("s_waitcnt vmcnt(0)")
        A("v_cmp_ne_u32 vcc, %s, v%d" % (sTAG, PXS + 3))
        A("v_mov_b32 %s, v%d" % (a0, PXS))
        A("s_and_b64 exec, exec, vcc")
        A("s_cbranch_scc1 L_pollx")
        A("s_mov_b64 exec, -1")
        stamp(10)
        A("s_bitcmp0_b32 %s, 0" % sFAST)
        for a in range(2):
            mfma(Y, HA + 4 * a, DNR + 4 * a, None if a == 0 else Y)
        ndn_early = 2
    if o["g2"]:
        if o.get("g2x"):
            A("s_mov_b32 exec_lo, 0x000f000f")
            A("s_mov_b32 exec_hi, 0x000f000f")
        if o["zw"]: A("ds_write_b16 v165, %s offset:%d" % (a0, L_Q + 14))
        else: A("ds_write_b32 v165, %s offset:%d" % (a0, L_A))
        if o.get("g2x"): A("s_mov_b64 exec, -1")
        A("s_waitcnt lgkmcnt(0)")
        A("s_barrier")
    else:
        A("s_nop 1")
    WA = T
    for m in range(4):
        for r in range(4):
            A("v_and_b32_dpp v%d, %s, v%d row_newbcast:%d %s" % (WA + 4 * m + r, a0, MK + r, m, DPP))
        if m > 0:
            mfma(Y, WA + 4 * (m - 1), WOR + 4 * (m - 1), Y if (m > 1 or ndn_early) else None)
    if dnl:
        A("s_waitcnt vmcnt(0)")
        for a in range(ndn_early, 2):
            mfma(Y, HA + 4 * a, DNR + 4 * a, Y)
    else:
        if o["g2"]: LB("L_last_mfma")
        A("s_nop 1")
        if o["zw"]: LB("L_last_mfma2")
    mfma(Y, WA + 12, WOR + 12, Y)
    A("s_mov_b32 exec_hi, 0")
    if o["reuse"] and not o["g2"]:
        A("s_barrier")
        A("s_nop 5")
    else:
        A("s_nop 6")
    for k in range(4):
        A("v_perm_b32 v%d, v%d, %s, s%d" % (Y + k, Y + k, vTAG, 56 + k))
    publish(vS25, Y, "h25")
    stamp(8)
    sshot(2)
    def tail_g25():
        PS = T + 16
        C("hand-off 3: one wave sums the group's 32 partial results for 16 columns")
        A("s_cmp_lg_u32 %s, %d" % (sW, o["gw"]))
        A("s_cbranch_scc1 L_done")
        A("s_mov_b64 exec, -1")
        if o.get("ack25") == 1: A("s_waitcnt vmcnt(0)")
        NP = o["np25"]
        PK = [PS, PS + 8, WOR, WOR + 8, DNR]
        def ask(k):
            A("global_load_dwordx4 v[%d:%d], %s, %s sc1" % (PK[k], PK[k] + 3, vL25, sWS))
            A("global_load_dwordx4 v[%d:%d], v164, %s sc1" % (PK[k] + 4, PK[k] + 7, sWS))
        def look(k):
            A("s_waitcnt vmcnt(%d)" % (2 * NP - 1))
            for q in range(4): A("v_xor_b32 v%d, %s, v%d" % (P + q, TB[q], PK[k] + q))
            A("v_or3_b32 %s, v%d, v%d, v%d" % (tA, P, P + 1, P + 2))
            A("s_waitcnt vmcnt(%d)" % (2 * NP - 2))
            for q in range(4): A("v_xor_b32 v%d, %s, v%d" % (P + 4 + q, TB[q], PK[k] + 4 + q))
            A("v_or3_b32 %s, %s, v%d, v%d" % (tA, tA, P + 3, P + 4))
            A("v_or3_b32 %s, %s, v%d, v%d" % (tA, tA, P + 5, P + 6))
            A("v_or_b32_sdwa %s, %s, v%d dst_sel:DWORD dst_unused:UNUSED_PAD src0_sel:BYTE_0 src1_sel:BYTE_0" % (tA, tA, P + 7))
            A("v_cmp_ne_u32 vcc, 0, %s" % tA)
            if o["t3"]:
                A("v_pk_add_f32 %s, %s, %s" % (P2(P), P2(P), P2(P + 4)))
                A("v_pk_add_f32 %s, %s, %s" % (P2(P + 2), P2(P + 2), P2(P + 6)))
            A("s_and_b64 exec, exec, vcc")
        def masks():
            if o["t3"]:
                A("s_mov_b32 s44, 0xff")
                A("s_mov_b32 s45, s44")
                A("s_lshr_b32 s41, %s, 2" % sJ)
            A("s_lshl_b32 s46, 0x01010101, %s" % sH)
            A("s_not_b32 s46, s46")
            A("s_mov_b32 s47, s46")
            if o["cq25"]:
                A("s_lshr_b32 s41, %s, 2" % sJ)
                A("s_and_b32 s41, s41, 6")
                A("s_bfe_u32 %s, %s, 0x10001" % (t0, sJ))
                A("s_or_b32 s41, s41, %s" % t0)
        if NP == 1:
            masks()
            LB("L_poll25")
            ask(0)
            A("s_sub_u32 %s, %s, 1" % (sCNT, sCNT))
            A("s_cbranch_scc1 L_end")
            look(0)
            A("s_cbranch_scc1 L_poll25")
        else:
            pre = o.get("pre25", 1)
            for k in range(NP):
                if k == pre:
                    if o.get("ack25") == 2: A("s_waitcnt vmcnt(%d)" % (2 * pre))
                    for _ in range(o.get("stag25", 0)): A("s_nop 7")
                ask(k)
            masks()
            LB("L_poll25")
            for k in range(NP):
                look(k)
                A("s_cbranch_scc0 L_got25")
                ask(k)
            A("s_sub_u32 %s, %s, 1" % (sCNT, sCNT))
            A("s_cbranch_scc0 L_poll25")
            A("s_endpgm")
            LB("L_got25")
        A("s_mov_b64 exec, -1")
        stamp(9)
        if o.get("ampm"): A("s_memrealtime s[86:87]")
        x_, y_ = "v%d" % P, "v%d" % (P + 1)
        def rors():
            for rot_ in (4, 8):
                A("v_add_f32_dpp %s, %s, %s row_ror:%d %s" % (x_, x_, x_, rot_, DPP))
                A("v_add_f32_dpp %s, %s, %s row_ror:%d %s" % (y_, y_, y_, rot_, DPP))
                if rot_ == 4: A("s_nop 0")
        if o["t3"]:
            assert o["finhi"] and not o["cq25"] and o.get("finx") is None
            A("v_permlane32_swap_b32 v%d, v%d" % (P, P + 2))
            A("v_permlane32_swap_b32 v%d, v%d" % (P + 1, P + 3))
            A("v_pk_add_f32 %s, %s, %s" % (P2(P + 4), P2(P), P2(P + 2)))
            A("v_pk_add_f32 %s, %s, %s" % (P2(P), P2(P), P2(P + 2)))
            A("v_mov_b32 v%d, %s" % (P + 3, sTAG))
            A("s_cmp_eq_u32 s41, %s" % sH)
            A("v_permlane16_swap_b32 v%d, %s" % (P + 4, x_))
            A("v_permlane16_swap_b32 v%d, %s" % (P + 5, y_))
            A("v_pk_add_f32 %s, %s, %s" % (P2(P), P2(P), P2(P + 4)))
            A("s_cbranch_scc1 L_final")
            A("s_nop 0")
            rors()
        else:
            A("v_pk_add_f32 %s, %s, %s" % (P2(P), P2(P), P2(P + 4)))
            A("v_pk_add_f32 %s, %s, %s" % (P2(P + 2), P2(P + 2), P2(P + 6)))
            if o["cq25"]:
                A("s_cmp_eq_u32 s41, %s" % sH)
                A("s_nop 0")
            elif o.get("finx") is not None:
                A("s_cmp_eq_u32 %s, %d" % (sH, o["finx"]))
                A("s_nop 0")
            else:
                A("s_lshr_b32 %s, %s, 2" % (t0, sJ) if o["finhi"] else "s_and_b32 %s, %s, 7" % (t0, sJ))
                A("s_cmp_eq_u32 %s, %s" % (t0, sH))
            A("v_permlane32_swap_b32 v%d, v%d" % (P, P + 2))
            A("v_permlane32_swap_b32 v%d, v%d" % (P + 1, P + 3))
            A("v_pk_add_f32 %s, %s, %s" % (P2(P), P2(P), P2(P + 2)))
            A("v_mov_b32 v%d, %s" % (P + 3, sTAG))
            A("s_mov_b32 s44, 0xff")
            for rot_ in (4, 8):
                A("v_add_f32_dpp %s, %s, %s row_ror:%d %s" % (x_, x_, x_, rot_, DPP))
                A("v_add_f32_dpp %s, %s, %s row_ror:%d %s" % (y_, y_, y_, rot_, DPP))
                if rot_ == 4: A("s_mov_b32 s45, s44")
            A("v_mov_b32 v%d, %s" % (P + 4, x_))
            A("v_mov_b32 v%d, %s" % (P + 5, y_))
            A("s_nop 0")
            A("v_permlane16_swap_b32 v%d, %s" % (P + 4, x_))
            A("v_permlane16_swap_b32 v%d, %s" % (P + 5, y_))
            A("v_pk_add_f32 %s, %s, %s" % (P2(P), P2(P), P2(P + 4)))
            A("s_cbranch_scc1 L_final")
        A("s_mov_b64 exec, s[44:45]")
        A("global_store_dwordx4 %s, v[%d:%d], %s sc1" % (vS3, P, P + 3, sWS))
        if o.get("clean"):
            C("the slots just read are dead: push them out of the cache now rather than at the end of the launch")
            A("s_mov_b64 exec, -1")
            for q in range(4): A("v_mov_b32 v%d, %s" % (P + 8 + q, sTAG))
            if o["clean"] & 2:
                A("s_bitcmp1_b32 %s, 0" % sJ)
                A("s_cbranch_scc1 L_done")
            if o["clean"] & 4:
                A("s_mov_b32 exec_lo, 0x11111111")
                A("s_mov_b32 exec_hi, 0x11111111")
            A("global_store_dwordx4 %s, v[%d:%d], %s sc1" % (vL25, P + 8, P + 11, sWS))
            A("global_store_dwordx4 v164, v[%d:%d], %s sc1" % (P + 8, P + 11, sWS))
        A("s_branch L_done")
        LB("L_final")
        C("hand-off 4: lane = (pair, quad, group); the four workgroups that finish one output line sit in one group")
        if o.get("stfin"): stamp(1)
        if o.get("xstag"): A("global_load_dword %s, %s, %s nt" % (vXP, vXF, sX))
        A("s_mov_b64 exec, s[46:47]")
        NP = o["np3"]
        PS = VR
        X = P + 4
        A("global_load_dwordx4 v[%d:%d], %s, %s sc1" % (PS, PS + 3, vL3, sWS))
        A("s_mov_b64 exec, -1")
        if o["t3"]:
            rors()
            A("s_nop 0")
        A("s_mov_b32 %s, %d" % (sCNT, o["spinmax"]))
        for q in range(4):
            for r in range(2):
                A("v_mov_b32_dpp v%d, v%d row_newbcast:%d row_mask:0x%x bank_mask:0x%x" % (X + r, P + r, q, (5, 10)[q >> 1], (3, 12)[q & 1]))
        if not o.get("xstag"):
            A("v_lshlrev_b32 v%d, 16, %s" % (P, vXP))
            A("v_and_b32 v%d, %s, %s" % (P + 1, t1, vXP))
            A("v_pk_add_f32 %s, %s, %s" % (P2(X), P2(X), P2(P)))
        if o["efull"]:
            A("v_lshlrev_b32 %s, 4, v0" % tA)
            for q in range(4): A("v_mov_b32 v%d, %s" % (P + 8 + q, sTAG))
        A("s_mov_b32 s44, 0x01010101")
        A("s_mov_b32 s45, s44")
        A("s_mov_b64 exec, s[46:47]")
        for k in range(1, NP):
            if o.get("xstag") and k == 1: A("s_waitcnt vmcnt(1)")
            for _ in range(o.get("stag3", 0) + (2 if k > 1 and o.get("stag3") else 0)): A("s_nop 7")
            A("global_load_dwordx4 v[%d:%d], %s, %s sc1" % (PS + 4 * k, PS + 4 * k + 3, vL3, sWS))
        LB("L_poll3")
        for k in range(NP):
            A("s_waitcnt vmcnt(%d)" % (NP - 1))
            A("v_cmp_ne_u32 vcc, %s, v%d" % (sTAG, PS + 4 * k + 3))
            A("v_mov_b32 v%d, v%d" % (X, PS + 4 * k))
            A("v_mov_b32 v%d, v%d" % (X + 1, PS + 4 * k + 1))
            A("s_and_b64 exec, exec, vcc")
            A("s_cbranch_scc0 L_got3")
            A("global_load_dwordx4 v[%d:%d], %s, %s sc1" % (PS + 4 * k, PS + 4 * k + 3, vL3, sWS))
        A("s_sub_u32 %s, %s, 1" % (sCNT, sCNT))
        A("s_cbranch_scc0 L_poll3")
        A("s_endpgm")
        LB("L_got3")
        stamp(10)
        if o.get("ampf"):
            A("s_waitcnt vmcnt(0)")
            A("s_memrealtime s[86:87]")
        A("s_mov_b64 exec, -1")
        x_, y_ = "v%d" % X, "v%d" % (X + 1)
        fl = ["s_cmp_lg_u32 s2, %d" % (o.get("finx") or 0), "s_nop 0"]
        if o.get("xstag"): fl = ["v_lshlrev_b32 %s, 16, %s" % (tA, vXP), "v_and_b32 %s, %s, %s" % (tB, t1, vXP)]
        for pat in ("quad_perm:[1,0,3,2]", "quad_perm:[2,3,0,1]", "row_half_mirror"):
            A("v_add_f32_dpp %s, %s, %s %s %s" % (x_, x_, x_, pat, DPP))
            A("v_add_f32_dpp %s, %s, %s %s %s" % (y_, y_, y_, pat, DPP))
            if fl: A(fl.pop(0))
        if o.get("xstag"):
            A("v_add_f32 %s, %s, %s" % (x_, x_, tA))
            A("v_add_f32 %s, %s, %s" % (y_, y_, tB))
            A("s_cmp_lg_u32 s2, 0")
        A("v_cvt_pk_bf16_f32 %s, %s, %s" % (x_, x_, y_))
        A("s_mov_b64 exec, s[44:45]")
        A("global_store_dword %s, %s, %s %s" % (vXF, x_, sOUT, o.get("ofl", "")))
        if o.get("ampf"):
            A("s_waitcnt vmcnt(0)")
            A("s_memrealtime s[88:89]")
            A("s_waitcnt lgkmcnt(0)")
            A("s_sub_u32 s88, s88, s86")
            A("s_mul_i32 s88, s88, 40")
            A("s_min_u32 s88, s88, 20000")
            A("s_add_u32 s88, s88, 1500")
            LB("L_fspin")
            A("s_memrealtime s[92:93]")
            A("s_waitcnt lgkmcnt(0)")
            A("s_sub_u32 s92, s92, s90")
            A("s_cmp_lt_u32 s92, s88")
            A("s_cbranch_scc1 L_fspin")
            A("s_cmp_lg_u32 s2, 0")
        A("s_cbranch_scc1 L_done")
        C("the next launch must not mistake this launch's hand-off words for its own")
        if o["efull"]:
            A("s_mov_b64 exec, 0xff")
            A("global_store_dwordx4 %s, v[%d:%d], %s %s" % (tA, P + 8, P + 11, sWS, o.get("efl", "")))
        else:
            A("s_mov_b64 exec, 1")
            A("v_mov_b32 %s, 0" % tA)
            A("v_mov_b32 %s, %s" % (tB, sTAG))
            A("global_store_dword %s, %s, %s %s" % (tA, tB, sWS, o.get("efl", "")))
    nkeep = len(L)
    NP = o["np25"]
    PS = T + 16
    if o.get("ack25") == 1: A("s_waitcnt vmcnt(0)")
    sshot(8)
    for _ in range(o.get("dly25", 0)): A("s_nop 7")
    for k in range(NP):
        if k == 1 and o.get("ack25") == 2: A("s_waitcnt vmcnt(1)")
        if k == 1:
            for _ in range(o.get("stag25", 0)): A("s_nop 7")
        A("global_load_dwordx4 v[%d:%d], %s, %s sc1" % (PS + 4 * k, PS + 4 * k + 3, vL25, sWS))
    sshot(4)
    LB("L_poll25")
    for k in range(NP):
        A("s_waitcnt vmcnt(%d)" % (NP - 1))
        for q in range(4):
            A("v_xor_b32 v%d, %s, v%d" % (P + q, TB[q], PS + 4 * k + q))
        A("v_or3_b32 %s, v%d, v%d, v%d" % (tA, P, P + 1, P + 2))
        A("v_or_b32_sdwa %s, %s, v%d dst_sel:DWORD dst_unused:UNUSED_PAD src0_sel:BYTE_0 src1_sel:BYTE_0" % (tA, tA, P + 3))
        A("v_cmp_ne_u32 vcc, 0, %s" % tA)
        if o["mask25"]:
            A("s_and_b64 exec, exec, vcc")
            A("s_cbranch_scc0 L_got25")
        else:
            A("s_cbranch_vccz L_got25")
        A("global_load_dwordx4 v[%d:%d], %s, %s sc1" % (PS + 4 * k, PS + 4 * k + 3, vL25, sWS))
    A("s_sub_u32 %s, %s, 1" % (sCNT, sCNT))
    A("s_cbranch_scc0 L_poll25")
    A("s_endpgm")
    LB("L_got25")
    A("s_mov_b64 exec, -1")
    stamp(9)
    if o.get("ampm"): A("s_memrealtime s[86:87]")
    x_, y_ = "v%d" % P, "v%d" % (P + 1)
    A("v_permlane16_swap_b32 v%d, v%d" % (P, P + 2))
    A("v_permlane16_swap_b32 v%d, v%d" % (P + 1, P + 3))
    A("v_add_f32 %s, %s, v%d" % (x_, x_, P + 2))
    A("v_add_f32 %s, %s, v%d" % (y_, y_, P + 3))
    fl = ["v_mov_b32 v%d, %s" % (P + 3, sTAG), "s_and_b32 %s, %s, 7" % (t0, sJ), "s_cmp_eq_u32 %s, %s" % (t0, sH), "s_nop 0"]
    if o["lastfin"]: fl = ["v_mov_b32 v%d, %s" % (P + 3, sTAG), "s_bitcmp1_b32 %s, 1" % sFAST, "s_nop 0", "s_nop 0"]
    for rot_ in (1, 2, 4, 8):
        A(fl.pop(0))
        A("v_add_f32_dpp %s, %s, %s row_ror:%d %s" % (x_, x_, x_, rot_, DPP))
        A("v_add_f32_dpp %s, %s, %s row_ror:%d %s" % (y_, y_, y_, rot_, DPP))
    def old_final():
        if o.get("ewg"): A("s_xor_b32 s63, s2, %d" % o["ewg"])
        if o.get("otouch"):
            A("global_load_dword v158, %s, %s" % (vXF, sOUT))
        if o.get("xstag"): A("global_load_dword %s, %s, %s %s" % (vXP, vXF, sX, o["xstag"] if isinstance(o["xstag"], str) else "nt"))
        A("s_lshl_b32 %s, 0x10001, %s" % (t0, sH))
        A("s_andn2_b32 exec_lo, 0xff00ff, %s" % t0)
        A("s_mov_b32 exec_hi, 0")
        A("s_mov_b32 %s, %d" % (sCNT, o["spinmax"]))
        NP = o["np3"]
        PS = VR
        if o["lastfin"] == 2 and o.get("sshot", 2):
            A("s_waitcnt lgkmcnt(0)")
            for k in range(1, 8): A("s_xor_b32 s%d, s%d, %s" % (12 + k, 12 + k, sTAG))
            A("s_or_b32 s13, s13, s14")
            A("s_or_b64 s[16:17], s[16:17], s[18:19]")
            A("s_or_b32 s13, s13, s15")
            A("s_or_b32 s16, s16, s17")
            if o["stamps"]: A("s_memrealtime s[68:69]")
            A("s_or_b32 s13, s13, s16")
            if o["stamps"]: A("s_cselect_b32 s66, 1, 2")
            A("s_cbranch_scc1 L_ask3")
            A("global_load_dwordx4 v[%d:%d], %s, %s %s" % (PS, PS + 3, vL3, sWS, o.get("hfl", "")))
            A("s_branch L_poll3")
            LB("L_ask3")
        for k in range(NP):
            if o.get("xstag") and k == 1: A("s_waitcnt vmcnt(1)")
            A("global_load_dwordx4 v[%d:%d], %s, %s sc1" % (PS + 4 * k, PS + 4 * k + 3, vL3, sWS))
        LB("L_poll3")
        for k in range(NP):
            A("s_waitcnt vmcnt(%d)" % (NP - 1))
            A("v_cmp_ne_u32 vcc, %s, v%d" % (sTAG, PS + 4 * k + 3))
            A("v_mov_b32 v%d, v%d" % (P, PS + 4 * k))
            A("v_mov_b32 v%d, v%d" % (P + 1, PS + 4 * k + 1))
            A("s_and_b64 exec, exec, vcc")
            A("s_cbranch_scc0 L_got3")
            A("global_load_dwordx4 v[%d:%d], %s, %s sc1" % (PS + 4 * k, PS + 4 * k + 3, vL3, sWS))
        A("s_sub_u32 %s, %s, 1" % (sCNT, sCNT))
        A("s_cbranch_scc0 L_poll3")
        A("s_endpgm")
        LB("L_got3")
        stamp(10)
        A("s_mov_b32 exec_lo, -1")
        A("v_lshlrev_b32 %s, 16, %s" % (tA, vXP))
        A("v_and_b32 %s, %s, %s" % (tB, t1, vXP))
        for pat in ("quad_perm:[1,0,3,2]", "quad_perm:[2,3,0,1]", "row_half_mirror"):
            A("v_add_f32_dpp %s, %s, %s %s %s" % (x_, x_, x_, pat, DPP))
            A("v_add_f32_dpp %s, %s, %s %s %s" % (y_, y_, y_, pat, DPP))
            if pat != "row_half_mirror": A("s_nop 0")
        A("v_add_f32 %s, %s, %s" % (x_, x_, tA))
        A("v_add_f32 %s, %s, %s" % (y_, y_, tB))
        if o.get("perturb"):
            import struct
            bits = struct.unpack("<I", struct.pack("<f", float(o["perturb"])))[0]
            if o.get("pall"):
                A("v_mul_f32 %s, 0x%x, %s" % (x_, bits, x_)); A("v_mul_f32 %s, 0x%x, %s" % (y_, bits, y_))
            else:
                A("s_or_b32 %s, s2, %s" % (t0, sW))
                A("s_cselect_b32 %s, 0, 0x%x" % (t0, bits))
                A("v_add_f32 %s, %s, %s" % (x_, t0, x_))
        A("v_cvt_pk_bf16_f32 %s, %s, %s" % (x_, x_, y_))
        A("s_mov_b64 exec, 0x10001")
        A("global_store_dword %s, %s, %s %s" % (vXF, x_, sOUT, o.get("ofl", "")))
        A("s_or_b32 %s, %s, %s" % (t0, sJ if o["lastfin"] else "s2" if not o.get("ewg") else "s63", sW))
        A("s_cbranch_scc1 L_done")
        C("the next launch must not mistake this launch's hand-off words for its own")
        A("v_mov_b32 %s, 0" % tA)
        A("v_mov_b32 %s, %s" % (tB, sTAG))
        A("global_store_dword %s, %s, %s %s" % (tA, tB, sWS, o.get("efl", "")))
    def diag_end():
        if o.get("ampm"):
            A("s_or_b32 %s, %s, %s" % (t0, sJ, sW))
            A("s_cbranch_scc1 L_nom")
            A("s_mov_b64 exec, -1")
            A("s_waitcnt lgkmcnt(0)")
            A("s_lshl_b32 %s, %s, 2" % (t0, sH))
            A("v_mov_b32 v2, %s" % t0)
            A("s_or_b32 s86, s86, 1")
            A("v_mov_b32 v3, s86")
            A("global_store_dword v2, v3, s[24:25] offset:192 sc1")
            A("s_cmp_lg_u32 s2, 0")
            A("s_cbranch_scc1 L_nom")
            A("v_and_b32 v2, 7, v0")
            A("v_lshlrev_b32 v2, 2, v2")
            A("s_movk_i32 s85, 1000")
            LB("L_mpoll")
            A("global_load_dword v3, v2, s[24:25] offset:192 sc1")
            A("global_load_dword v4, v2, s[24:25] offset:128 sc1")
            A("s_sub_u32 s85, s85, 1")
            A("s_cbranch_scc1 L_nom")
            A("s_waitcnt vmcnt(0)")
            A("v_cmp_eq_u32 vcc, 0, v3")
            A("s_cbranch_vccnz L_mpoll")
            for g_ in range(8): A("v_readlane_b32 s%d, v3, %d" % (64 + g_, g_))
            for g_ in range(8): A("v_readlane_b32 s%d, v4, %d" % (72 + g_, g_))
            A("s_nop 3")
            for g_ in range(16): A("s_sub_u32 s%d, s%d, s90" % (64 + g_, 64 + g_))
            md = o["ampm"]
            if md >= 10:
                for g_ in range(8): A("s_mov_b32 s%d, s%d" % (64 + g_, 72 + g_))
                md -= 10
            key = {1: 64, 2: 72}.get(md)
            A("s_mov_b32 s80, s64")
            A("s_mov_b32 s81, s%d" % (key or 64))
            A("s_mov_b32 s82, 0x80000000")
            for g_ in range(1, 8):
                if key:
                    A("s_cmp_gt_i32 s%d, s81" % (key + g_))
                    A("s_cselect_b32 s83, s80, s%d" % (64 + g_))
                    A("s_cselect_b32 s80, s%d, s80" % (64 + g_))
                    A("s_cselect_b32 s81, s%d, s81" % (key + g_))
                    A("s_max_i32 s82, s82, s83")
                else:
                    A("s_max_i32 s82, s82, s%d" % (64 + g_))
            A("s_sub_i32 s88, s80, s82")
            A("s_add_i32 s88, s88, 100")
            A("s_max_i32 s88, s88, 0")
            A("s_mul_i32 s88, s88, 20")
            A("s_min_u32 s88, s88, 20000")
            A("s_add_u32 s88, s88, 1500")
            LB("L_mspin")
            A("s_memrealtime s[92:93]")
            A("s_waitcnt lgkmcnt(0)")
            A("s_sub_u32 s92, s92, s90")
            A("s_cmp_lt_u32 s92, s88")
            A("s_cbranch_scc1 L_mspin")
            LB("L_nom")
        if o.get("lateh") is not None:
            A("s_or_b32 %s, s2, %s" % (t0, sW))
            A("s_cbranch_scc1 L_nolate")
            A("s_mov_b64 exec, -1")
            A("v_and_b32 v2, 7, v0")
            A("v_lshlrev_b32 v2, 2, v2")
            A("global_load_dword v3, v2, s[24:25] sc1")
            A("s_waitcnt vmcnt(0)")
            for g_ in range(8): A("v_readlane_b32 s%d, v3, %d" % (64 + g_, g_))
            A("s_nop 3")
            for g_ in range(8): A("s_sub_u32 s%d, s%d, s90" % (64 + g_, 64 + g_))
            A("s_mov_b32 s72, s64")
            for g_ in range(1, 8): A("s_min_i32 s72, s72, s%d" % (64 + g_))
            if o["lateh"] == 8:
                A("s_mov_b32 s88, s64")
                for g_ in range(1, 8): A("s_max_i32 s88, s88, s%d" % (64 + g_))
            else:
                A("s_mov_b32 s88, s%d" % (64 + o["lateh"]))
            A("s_sub_u32 s88, s88, s72")
            A("s_mul_i32 s88, s88, 20")
            A("s_min_u32 s88, s88, 20000")
            A("s_add_u32 s88, s88, 1500")
            A("s_add_u32 s88, s88, s72")
            LB("L_latespin")
            A("s_memrealtime s[92:93]")
            A("s_waitcnt lgkmcnt(0)")
            A("s_sub_u32 s92, s92, s90")
            A("s_cmp_lt_u32 s92, s88")
            A("s_cbranch_scc1 L_latespin")
            LB("L_nolate")
        amp_end("")
        if o.get("pad"):
            LB("L_padspin")
            A("s_memrealtime s[92:93]")
            A("s_waitcnt lgkmcnt(0)")
            A("s_sub_u32 s92, s92, s90")
            A("s_cmp_lt_u32 s92, %d" % o["pad"])
            A("s_cbranch_scc1 L_padspin")
    if o.get("mockx"):
        A("v_lshlrev_b32 %s, 16, %s" % (tA, vXP))
        A("v_and_b32 %s, %s, %s" % (tB, t1, vXP))
        A("v_add_f32 %s, %s, %s" % (x_, x_, tA))
        A("v_add_f32 %s, %s, %s" % (y_, y_, tB))
        A("v_cvt_pk_bf16_f32 %s, %s, %s" % (x_, x_, y_))
        A("s_mov_b64 exec, 0x10001")
        A("s_cbranch_scc0 L_done")
        A("global_store_dword %s, %s, %s" % (vXF, x_, sOUT))
        A("s_or_b32 %s, s2, %s" % (t0, sW))
        A("s_cbranch_scc1 L_done")
        A("v_mov_b32 %s, 0" % tA)
        A("v_mov_b32 %s, %s" % (tB, sTAG))
        A("global_store_dword %s, %s, %s" % (tA, tB, sWS))
        A("s_branch L_done")
    A("s_cbranch_scc1 L_final")
    A("s_mov_b64 exec, 0x%x" % (0x30003 if o["rep3"] or o["vote"] else 0x10001))
    A("global_store_dwordx4 %s, v[%d:%d], %s sc1" % (vS3, P, P + 3, sWS))
    if o.get("wb"):
        A("s_or_b32 %s, %s, %s" % (t0, sW, sJ) if o["wb"] == 1 else "s_and_b32 %s, %s, 3" % (t0, sW))
        A("s_cmp_lg_u32 %s, %d" % (t0, 8 if o["wb"] == 1 else 0))
        A("s_cbranch_scc1 L_done")
        A("buffer_wbl2 sc1")
    A("s_branch L_done")
    LB("L_final")
    if o["lastfin"] == 1:
        A("s_mov_b64 exec, 0x10001")
        A("ds_write_b128 %s, v[%d:%d] offset:%d" % (vL3, P, P + 3, L_FIN))
        A("s_waitcnt lgkmcnt(0)")
    else:
        old_final()
    if o["g25"]:
        del L[nkeep:]
        tail_g25()
    LB("L_done")
    diag_end()
    dump_stamps()
    A("s_endpgm")
    for name, addr, g in tails:
        LB("L_slow_%s" % name)
        A("global_store_dwordx4 %s, v[%d:%d], %s sc1" % (addr, g, g + 3, sWS))
        A("s_branch L_back_%s" % name)
    if o["lastfin"] == 1: unit_final()
    LB("L_end")
    A("s_endpgm")
    head = HEADER.format(lds=o.get("lds", LDS_BYTES), k=KNAME); foot = FOOTER.format(k=KNAME, vg=o.get("vg", 168), sg=96)
    if o["align"]: L = align_runs(L, head, foot, o.get("minrun", 3), o.get("nopmin", 6))
    return head + "\n".join(L) + foot


if __name__ == "__main__":
    kw = {}
    out = "parallel_sum__sliding_block_cached__swiglu_ffn__decode.s"
    for a in sys.argv[1:]:
        k, v = a.split("=", 1)
        if k == "out": out = v; continue
        try: v = int(v) if k != "nlv" else v
        except ValueError: pass
        kw[k] = v
    open(out, "w").write(gen(**kw))
```

```python
import sys

KNAME = "parallel_sum__sliding_block_cached__swiglu_ffn__decode_kernel"

HEADER = """; Kernarg layout for this problem (96 bytes, ptrs only, base s[0:1]):
;   offset  72: d_out     shape=(1, 1, 512) dtype=bfloat16
; @launch grid=(256,1,1) block=(320,1,1) lds={lds}
;
; out = x + attn(ln(x)) @ wo + swiglu(ln(x)) @ w_down in one launch, one workgroup per CU.
;               hand-off 2 regroups the 32 partial outputs per row (merged against the true maximum), wo / w_down rows,
.amdgcn_target "amdgcn-amd-amdhsa--gfx950"
.text
.globl {k}
.p2align 8
.type {k},@function
{k}:
"""
FOOTER = """
.section .rodata,"a"
.p2align 6
.amdhsa_kernel {k}
  .amdhsa_next_free_vgpr {vg}
  .amdhsa_next_free_sgpr {sg}
  .amdhsa_accum_offset {vg}
  .amdhsa_group_segment_fixed_size 0
  .amdhsa_kernarg_size 96
  .amdhsa_user_sgpr_count 2
  .amdhsa_user_sgpr_kernarg_segment_ptr 1
  .amdhsa_system_sgpr_workgroup_id_x 1
.end_amdhsa_kernel
"""

MB1A = 0x40000
MB1B = 0x80000
MB2 = 0x100000
MB25 = 0x400000
MB3 = 0x1C0000
STAMPS = 0x10000000
L_WQ = 0
L_FF = 16384
L_XN = 32768
L_Q = 33792
L_H = 34816
L_FLAG = 34848
L_VOTE = 34864
L_ML = 34880
L_TKT = 35008
L_A = 35008
L_FIN = L_XN
L_O = 35072
L_K = L_O + 8192
L_K = (L_K + 1023) // 1024 * 1024
LDS_BYTES = L_K + 32768
TAGC = 0x9E3779B9
LOG2E = 0x3FB8AA3B
SCALE = 0x3DB504F3
EPS = 0x3727C5AC
DPP = "row_mask:0xf bank_mask:0xf"

DEF = dict(stamps=False, spinmax=200000, WK=5, W=6, Wtail=8, b0pos=45, nt="nt", pretouch="k", atries=24,
           prefetch=True, b2=7, ntail0=0, tlag=0, mask2=False, pt1=True, rotm=4, rep3=False, tsp="a", auxearly=True, hlate=False, vote=True, np25=2, np3=6, ack25=2, align=1, unr=2, mask25=True, lperm=0, nlv="43434343", reuse=1, rp=2176, bonly=0, bdefer=4, bskip=1, lastfin=0, npu=1, stag=0, g25=1, gw=2, pt3=1, finhi=1, efull=1, stouch=0, cq2=0, cq25=0, vlate=1, idearly=0, adap="", Wa=6, stl=15, tw=0, stl2=0, stw=15, est=0, perm="", hrot=0, np2=0, g2=2, gw2=0, vdyn=0, t3=1, zw=0)


def _sizes(text):
    import subprocess, tempfile, os, re
    d = tempfile.mkdtemp()
    open(d + "/a.s", "w").write(text)
    subprocess.run(["clang", "-x", "assembler", "-target", "amdgcn-amd-amdhsa", "-mcpu=gfx950", "-c", d + "/a.s", "-o", d + "/a.o"], check=True)
    out = subprocess.run(["llvm-objdump", "-d", "--mcpu=gfx950", d + "/a.o"], capture_output=True, text=True).stdout
    r = []
    for ln in out.split("\n"):
        m = re.search(r"^\s+(\S+).*// ([0-9A-F]{12}): ((?:[0-9A-F]{8} ?)+)", ln)
        if m: r.append((m.group(1), 4 * len(m.group(3).split())))
    return r


def align_runs(L, head, foot, minrun=3, nopmin=6):
    ins = [i for i, l in enumerate(L) if l.startswith("    ") and not l.strip().startswith(";")]
    sz = _sizes(head + "\n".join(L) + foot)
    assert len(sz) == len(ins), (len(sz), len(ins))
    size = {i: s_[1] for i, s_ in zip(ins, sz)}
    mn = {i: s_[0] for i, s_ in zip(ins, sz)}
    out = list(L); extra = {}
    off = 0; k = 0
    while k < len(ins):
        i = ins[k]
        if size[i] == 8 and off % 8 == 4:
            run = 0
            while k + run < len(ins) and size[ins[k + run]] == 8: run += 1
            if run >= minrun:
                b = k - 1; done = False
                while b >= 0 and size[ins[b]] == 4:
                    j = ins[b]
                    if mn[j] == "s_nop" and int(out[j].split()[1]) >= 1:
                        out[j] = "    s_nop 0\n    s_nop %d" % (int(out[j].split()[1]) - 1)
                        size[j] = 8; off += 4; done = True
                        break
                    if mn[j].endswith("_e32") and not mn[j].startswith(("v_readfirstlane", "v_permlane")):
                        op = out[j].split()[0]
                        out[j] = out[j].replace(op, op.replace("_e32", "") + "_e64", 1)
                        size[j] = 8; off += 4; done = True
                        break
                    b -= 1
                if not done and run >= nopmin and k > 0 and not mn[ins[k - 1]].startswith(("s_branch", "s_endpgm")):
                    extra[i] = True; off += 4; done = True
                if not done and k > 0 and mn[ins[k - 1]].startswith(("s_branch", "s_endpgm")):
                    extra[ins[k - 1] + 1] = True; off += 4
            for q in range(run): off += 8
            k += run
            continue
        off += size[i]; k += 1
    res = []
    for i, l in enumerate(out):
        if i in extra: res.append("    s_nop 0")
        res.append(l)
    return res


def gen(**kw):
    o = dict(DEF); o.update(kw)
    MB3 = o.get("mb3", globals()["MB3"])
    if not o["g25"]: o.update(pt3=0, np25=1, ack25=1, np3=1, g2=0)
    L = []
    def A(s): L.append("    " + s)
    def LB(s): L.append(s + ":")
    def C(s): L.append("    ; " + s)
    nt = o["nt"]
    NSTAMP = 12
    role = ["U"]
    def stamp(i):
        if o.get("amp") == "%s%d" % (role[0], i): A("s_memrealtime s[88:89]" if not o.get("cyc") else "s_memtime s[88:89]")
        if o.get("ampg") == "%s%d" % (role[0], i): A("s_memrealtime s[86:87]")
        if o.get("amp0") == "%s%d" % (role[0], i): A("s_memrealtime s[86:87]" if not o.get("cyc") else "s_memtime s[86:87]")
        if o["stamps"] and (i in (0, 11) or o.get("sel") is None or ("%s%d" % (role[0], i)) in o["sel"].split(",")):
            A("s_memrealtime s[%d:%d]" % (64 + 2 * i, 65 + 2 * i))
    def mfma(d, a, b, c):
        A("v_mfma_f32_16x16x32_bf16 v[%d:%d], v[%d:%d], v[%d:%d], %s" % (d, d + 3, a, a + 3, b, b + 3, "0" if c is None else "v[%d:%d]" % (c, c + 3)))
    def mfma16(d, a, b, c):
        A("v_mfma_f32_16x16x16_bf16 v[%d:%d], v[%d:%d], v[%d:%d], %s" % (d, d + 3, a, a + 1, b, b + 1, "0" if c is None else "v[%d:%d]" % (c, c + 3)))
    def allred(v, tmp, op, which):
        A("v_mov_b32 %s, %s" % (tmp, v))
        A("s_nop 1")
        A("v_permlane%d_swap_b32 %s, %s" % (which, tmp, v))
        A("%s %s, %s, %s" % (op, v, v, tmp))
    sX, sK, sV, sWQ, sWO, sG, sU, sDN, sOUT, sWS = "s[4:5]", "s[6:7]", "s[8:9]", "s[10:11]", "s[12:13]", "s[16:17]", "s[18:19]", "s[20:21]", "s[22:23]", "s[26:27]"
    sW, sH, sJ, sTAG, sXCC, sCNT, sFAST = "s30", "s31", "s32", "s33", "s34", "s35", "s36"
    t0, t1, t2, t3 = "s37", "s38", "s39", "s40"
    def dump_stamps():
        if not o["stamps"]: return
        if role[0] == "U" and o.get("sel") is not None and "U" not in o["sel"]: return
        A("s_mov_b64 exec, 1")
        if o.get("endwait"): A("s_waitcnt vmcnt(0)")
        stamp(11)
        A("s_waitcnt lgkmcnt(0)")
        A("s_mul_i32 %s, s2, 5" % t0)
        A("s_add_u32 %s, %s, %s" % (t0, t0, sW))
        A("s_lshl_b32 %s, %s, 7" % (t0, t0))
        A("s_add_u32 %s, %s, 0x%x" % (t0, t0, STAMPS))
        A("v_mov_b32 v2, %s" % t0)
        for i in range(NSTAMP):
            A("v_mov_b32 v3, s%d" % (64 + 2 * i))
            A("global_store_dword v2, v3, %s offset:%d" % (sWS, 4 * i))
        A("v_mov_b32 v3, %s" % ("s63" if role[0] == "U" and o["vote"] else sCNT))
        A("global_store_dword v2, v3, %s offset:%d" % (sWS, 4 * NSTAMP))
        if o.get("dbgfail"):
            for q_, r_ in enumerate(("s84", "s62", "s63")):
                A("v_mov_b32 v3, %s" % r_)
                A("global_store_dword v2, v3, %s offset:%d" % (sWS, 4 * NSTAMP + 8 + 4 * q_))
        A("s_getreg_b32 %s, hwreg(HW_REG_HW_ID)" % t1)
        A("v_mov_b32 v3, %s" % t1)
        A("global_store_dword v2, v3, %s offset:%d" % (sWS, 4 * NSTAMP + 4))

    def amp_end(sfx):
        if o.get("ampg"):
            A("s_waitcnt vmcnt(0) lgkmcnt(0)")
            A("s_memrealtime s[88:89]")
            A("s_mov_b64 exec, -1")
            A("v_and_b32 v2, 7, v0")
            A("v_lshlrev_b32 v2, 2, v2")
            A("global_load_dword v3, v2, s[24:25] offset:128 sc1")
            A("s_waitcnt vmcnt(0) lgkmcnt(0)")
            for g_ in range(8): A("v_readlane_b32 s%d, v3, %d" % (64 + g_, g_))
            A("s_nop 3")
            if o["ampg"] != 1:
                for g_ in range(8): A("s_sub_u32 s%d, s86, s%d" % (64 + g_, 64 + g_))
                for g_ in range(1, 8): A("s_max_i32 s64, s64, s%d" % (64 + g_))
                A("s_sub_u32 s88, s86, s64")
                A("s_mul_i32 s64, s64, 10")
            else:
                for g_ in range(8): A("s_sub_u32 s%d, s88, s%d" % (64 + g_, 64 + g_))
                for g_ in range(1, 8): A("s_max_i32 s64, s64, s%d" % (64 + g_))
                A("s_mul_i32 s64, s64, 9")
            A("s_min_u32 s64, s64, 20000")
            A("s_add_u32 s64, s64, 1500")
            LB("L_ampgspin" + sfx)
            A("s_memrealtime s[92:93]")
            A("s_waitcnt lgkmcnt(0)")
            A("s_sub_u32 s92, s92, s88")
            A("s_cmp_lt_u32 s92, s64")
            A("s_cbranch_scc1 L_ampgspin" + sfx)
        if o.get("amp"):
            if o["amp"] == "end": A("s_memrealtime s[88:89]")
            A("s_waitcnt lgkmcnt(0)")
            A("s_sub_u32 s88, s88, %s" % ("s86" if o.get("amp0") else "s90"))
            A("s_mul_i32 s88, s88, %d" % o.get("ampk", 10))
            A("s_min_u32 s88, s88, 20000")
            A("s_add_u32 s88, s88, 1500")
            LB("L_ampspin" + sfx)
            A("s_memrealtime s[92:93]")
            A("s_waitcnt lgkmcnt(0)")
            A("s_sub_u32 s92, s92, s90")
            A("s_cmp_lt_u32 s92, s88")
            A("s_cbranch_scc1 L_ampspin" + sfx)
    nlv = [int(c) for c in str(o["nlv"])]
    assert len(nlv) == 8 and sum(nlv) == 28 and min(nlv) >= 0 and max(nlv) <= 4
    LUT_d = sum((4 - n) << (4 * i) for i, n in enumerate(nlv))
    LUT_D = sum((4 * i - sum(nlv[:i])) << (4 * i) for i in range(8))
    def ffn_share(l0, d):
        A("s_lshl_b32 %s, %s, 2" % (l0, sH))
        A("s_lshr_b32 %s, 0x%x, %s" % (d, LUT_D, l0))
        A("s_and_b32 %s, %s, 7" % (d, d))
        A("s_sub_u32 s3, %s, %s" % (l0, d))
        A("s_lshr_b32 %s, 0x%x, %s" % (d, LUT_d, l0))
        A("s_and_b32 %s, %s, 7" % (d, d))
    stamp(0)
    if o.get("pad") or o.get("bal") or o.get("amp") or o.get("ampg") or o.get("ampm") or o.get("ampf") or o.get("chkvote") is not None or o.get("lateh") is not None: A("s_memrealtime s[90:91]")
    A("s_cmp_ge_u32 s2, 256")
    A("s_cbranch_scc1 L_end")
    A("s_load_dwordx16 s[4:19], s[0:1], 0")
    A("s_load_dwordx8 s[20:27], s[0:1], 64")
    A("v_lshrrev_b32 v1, 6, v0")
    A("v_and_b32 v0, 63, v0")
    A("v_readfirstlane_b32 %s, v1" % sW)
    A("s_and_b32 %s, s2, 7" % sH)
    A("s_lshr_b32 %s, s2, 3" % sJ)
    if o.get("bal") or o.get("lateh") is not None or o.get("ampg") or o.get("ampm"):
        A("s_or_b32 %s, %s, %s" % (t0, sJ, sW))
        A("s_cbranch_scc1 L_noflag")
        A("s_lshl_b32 %s, %s, 2" % (t0, sH))
        A("v_mov_b32 v108, %s" % t0)
        A("s_waitcnt lgkmcnt(0)")
        A("s_or_b32 %s, s90, 1" % t0)
        A("v_mov_b32 v109, %s" % t0)
        A("global_store_dword v108, v109, s[24:25] offset:%d sc1" % (128 if o.get("ampg") or o.get("ampm") else 0))
        LB("L_noflag")
    A("s_cmp_eq_u32 %s, 4" % sW)
    A("s_cbranch_scc0 %s" % ("L_race" if o["vote"] else "L_attn"))

    C("wave 4: layernorm, one [128 x 64] tile of wq and one of gate/up, exchange of q and of the FFN hidden values")
    A("s_setprio 3")
    if o["idearly"] == 1:
        A("v_mov_b32 v2, 0")
        A("v_and_b32 v3, 12, v0")
        A("ds_write_b32 v3, v2 offset:%d" % L_VOTE)
    if o["prefetch"]:
        A("s_getpc_b64 s[28:29]")
        LB("L_pc")
        A("v_lshlrev_b32 v2, 7, v0")
        A("v_min_u32 v2, L_end-L_pc-%d, v2" % o.get("pfo", 448))
        A("global_load_dword v127, v2, s[28:29] offset:%d" % o.get("pfo", 448))
        if o.get("pf2", o["stamps"] or o.get("ampg")):
            A("v_mov_b32 v2, L_end-L_pc")
            A("v_lshlrev_b32 v3, 7, v0")
            A("v_min_u32 v3, 1024, v3")
            A("v_sub_u32 v2, v2, v3")
            A("global_load_dword v126, v2, s[28:29]")
    sQK, sNOFF = "s50", "s51"
    A("v_lshlrev_b32 v3, 4, v0")
    A("v_lshrrev_b32 v6, 3, v0")
    A("v_and_b32 v5, 2, v6")
    A("v_and_b32 v7, 7, v0")
    A("v_xor_b32 v5, v5, v7")
    A("v_lshlrev_b32 v7, 4, v5")
    A("s_and_b32 %s, %s, 3" % (sQK, sJ))
    A("s_lshl_b32 %s, %s, 10" % (t0, sH))
    if o["lperm"]:
        A("s_andn2_b32 %s, %s, 3" % (t1, sJ))
        A("s_lshr_b32 %s, 0x%x, %s" % (t1, o["lperm"], t1))
        A("s_and_b32 s55, %s, 7" % t1)
    else:
        A("s_lshr_b32 s55, %s, 2" % sJ)
    A("s_lshl_b32 %s, s55, 7" % t1)
    A("s_lshl_b32 %s, %s, 20" % (t2, sQK))
    A("s_add_u32 %s, %s, %s" % (t0, t0, t1))
    A("s_add_u32 %s, %s, %s" % (t0, t0, t2))
    A("v_lshl_add_u32 v4, v6, 13, v7")
    A("v_add_u32 v4, %s, v4" % t0)
    A("v_xor_b32 v5, 64, v4")
    A("v_add_u32 v5, 0x10000, v5")
    A("s_mov_b32 m0, %d" % L_WQ)
    A("s_mov_b32 %s, 0x20000" % t1)
    if o.get("ucontig"):
        A("s_lshl_b32 %s, s2, 10" % t0)
        A("v_add_u32 v4, %s, v3" % t0)
        A("v_add_u32 v5, 0x40000, v4")
        A("s_mov_b32 %s, 0x80000" % t1)
    A("s_movk_i32 s41, 1024")
    A("s_waitcnt lgkmcnt(0)")
    if o["est"] & 1: A("s_load_dword s60, %s, %s" % (sWQ, t2))
    if o["est"] & 2:
        A("s_load_dword s61, %s, 0" % sG)
        A("s_load_dword s62, %s, 0" % sU)
    if o["est"] & 4: A("s_load_dword s63, %s, 0" % sX)
    if not o.get("xlate"): A("global_load_dwordx4 v[8:11], v3, %s" % sX)
    if not o.get("elate"): A("s_load_dword %s, %s, 0" % (sTAG, sWS))
    def dma_loop(name, base, step):
        A("s_mov_b32 %s, %d" % (t2, 16 // o["unr"]))
        LB(name)
        for i in range(o["unr"]):
            vv = ("v4", "v5")[i & 1]
            A("global_load_lds_dwordx4 %s, %s %s" % (vv, base, nt))
            A("s_add_u32 m0, m0, s41")
            A("v_add_u32 %s, %s, %s" % (vv, step, vv))
        A("s_sub_u32 %s, %s, 1" % (t2, t2))
        A("s_cmp_lg_u32 %s, 0" % t2)
        A("s_cbranch_scc1 %s" % name)
    dma_loop("L_wq_loop", sWQ, t1)
    if o.get("elate") == 1: A("s_load_dword %s, %s, 0" % (sTAG, sWS))
    if o["b0pos"] == 16: A("s_barrier")
    ffn_share(t0, t3)
    A("s_lshr_b32 %s, %s, 3" % (t1, sJ))
    A("s_add_u32 %s, s3, %s" % (t0, t1))
    A("s_add_u32 %s, %s, %s" % (sNOFF, t1, t3))
    A("s_mul_i32 %s, %s, 3584" % (t1, sQK))
    A("s_add_u32 %s, %s, %s" % (t0, t0, t1))
    A("s_lshl_b32 %s, %s, 7" % (t0, t0))
    A("v_mul_u32_u24 v4, 3584, v6")
    A("v_add3_u32 v4, v4, v7, %s" % t0)
    A("v_xor_b32 v5, 64, v4")
    A("v_add_u32 v5, %d, v5" % (8 * 3584))
    A("s_mov_b32 %s, %d" % (t1, 16 * 3584))
    if o.get("ucontig"):
        A("s_lshr_b32 %s, s2, 1" % t0)
        A("s_min_u32 %s, %s, 111" % (t0, t0))
        A("s_lshl_b32 %s, %s, 10" % (t0, t0))
        A("v_add_u32 v4, %s, v3" % t0)
        A("v_add_u32 v5, %d, v4" % (112 * 1024))
        A("s_mov_b32 %s, %d" % (t1, 224 * 1024))
    A("s_bitcmp0_b32 %s, %d" % (("s2", 0) if o.get("ucontig") else (sJ, 2)))
    A("s_cselect_b64 s[42:43], %s, %s" % (sG, sU))
    A("s_cmp_ge_u32 %s, 4" % sNOFF)
    A("s_cselect_b64 exec, 1, -1")
    dma_loop("L_ff_loop", "s[42:43]", t1)
    if o.get("elate") == 2: A("s_load_dword %s, %s, 0" % (sTAG, sWS))
    A("s_mov_b64 exec, -1")
    if o["vote"]:
        A("s_branch L_unit2")
        LB("L_race")
        if o["tw"]:
            A("s_bitcmp1_b32 %s, 1" % sW)
            A("s_cbranch_scc1 L_norace")
        C("which of the two copies of the last hand-off lives nearer to this die: race two cold scalar loads of this wave's own lines")
        A("s_lshl_b32 %s, s2, 2" % t0)
        A("s_add_u32 %s, %s, %s" % (t0, t0, sW))
        A("s_lshr_b32 %s, %s, 6" % (t1, t0))
        A("s_lshl_b32 %s, %s, 14" % (t1, t1))
        A("s_and_b32 %s, %s, 63" % (t0, t0))
        A("s_lshl_b32 %s, %s, 7" % (t0, t0))
        A("s_add_u32 %s, %s, %s" % (t0, t0, t1))
        if MB3 == 0x200000: A("s_bitset1_b32 %s, 21" % t0)
        else: A("s_or_b32 %s, %s, 0x%x" % (t0, t0, MB3))
        A("s_lshl_b32 %s, %s, 13" % (t1, sW))
        A("s_and_b32 %s, %s, 0x2000" % (t1, t1))
        A("s_or_b32 s46, %s, %s" % (t0, t1))
        A("s_xor_b32 s47, s46, 0x2000")
        A("s_movk_i32 s28, 0x5bd1")
        A("s_movk_i32 s29, 0x5bd1")
        A("s_waitcnt lgkmcnt(0)")
        if o.get("dlyr"):
            A("s_mov_b32 s60, %d" % o["dlyr"])
            LB("L_dlyr")
            A("s_nop 15")
            A("s_sub_u32 s60, s60, 1")
            A("s_cbranch_scc0 L_dlyr")
        A("s_load_dword s28, %s, s46" % sWS)
        A("s_load_dword s29, %s, s47" % sWS)
        A("s_waitcnt lgkmcnt(1)")
        A("s_mov_b64 s[48:49], s[28:29]")
        LB("L_race_done")
        A("s_cmpk_lg_i32 s48, 0x5bd1")
        A("s_cselect_b32 %s, 1, 0" % t0)
        A("s_cmpk_lg_i32 s49, 0x5bd1")
        A("s_cselect_b32 %s, 1, 0" % t2)
        A("s_sub_i32 %s, %s, %s" % (t0, t0, t2))
        A("s_sub_i32 %s, 0, %s" % (t2, t0))
        A("s_cmp_eq_u32 %s, 0" % t1)
        A("s_cselect_b32 %s, %s, %s" % (t0, t0, t2))
        A("s_lshl_b32 %s, %s, 2" % (t2, sW))
        A("v_mov_b32 v158, %s" % t2)
        A("v_mov_b32 v159, %s" % t0)
        A("ds_write_b32 v158, v159 offset:%d" % L_VOTE)
        if o["tw"]: A("s_waitcnt lgkmcnt(1)")
        A("s_branch L_attn")
        LB("L_unit2")
    if o["pt1"]:
        C("pull this workgroup's own hand-off lines into L2 before anyone polls them")
        A("s_lshl_b32 %s, %s, 15" % (t0, sH))
        A("s_lshl_b32 %s, %s, 8" % (t1, sJ))
        A("s_add_u32 %s, %s, %s" % (t0, t0, t1))
        A("s_add_u32 %s, %s, 0x%x" % (t0, t0, MB1A))
        A("v_and_b32 v33, 1, v0")
        A("v_bfe_u32 v32, v0, 1, 1")
        A("v_lshlrev_b32 v33, 7, v33")
        A("v_lshl_add_u32 v33, v32, 13, v33")
        A("s_mul_i32 %s, %s, 240" % (t1, sJ))
        A("s_sub_u32 %s, 0x4000, %s" % (t1, t1))
        A("v_cmp_lt_u32 vcc, 3, v0")
        A("v_mov_b32 v32, %s" % t1)
        A("s_nop 0")
        A("v_cndmask_b32 v33, v33, v32, vcc")
        A("v_add_u32 v33, %s, v33" % t0)
        A("global_load_dword v119, v33, %s sc1" % sWS)
    def tlbwarm():
        C("first touch of the pages the later loads use (address translation early, off their queue)")
        A("s_lshl_b32 %s, %s, 24" % (t0, sH))
        A("s_add_u32 %s, %s, 0xF00000" % (t0, t0))
        A("v_mov_b32 v112, %s" % t0)
        A("s_lshl_b32 %s, %s, 19" % (t0, sH))
        A("v_mov_b32 v113, %s" % t0)
        A("s_mul_i32 %s, %s, 0x38000" % (t0, sH))
        A("v_mov_b32 v114, %s" % t0)
        A("v_mov_b32 v115, 0x%x" % MB3)
        A("s_mov_b64 exec, 1")
        A("global_load_dword v116, v112, %s" % sK)
        A("global_load_dword v117, v112, %s" % sV)
        A("global_load_dword v118, v113, %s" % sWO)
        A("global_load_dword v111, v114, %s" % sDN)
        A("global_load_dword v110, v115, %s" % sWS)
        A("s_mov_b64 exec, -1")
    NW = 1 if o["pt1"] else 0
    if o.get("tlbw") == 2:
        tlbwarm(); NW += 5
    if o["b0pos"] == 32:
        if o.get("b0wait") is not None: A("s_waitcnt vmcnt(%d)" % o["b0wait"])
        A("s_barrier")
    stamp(1)
    XF = 12
    A("s_mov_b32 %s, 0xffff0000" % t1)
    A("s_waitcnt vmcnt(%d)" % (32 + NW))
    stamp(2)
    C("layernorm with the reference's bf16 roundings")
    for i in range(4):
        A("v_lshlrev_b32 v%d, 16, v%d" % (XF + 2 * i, 8 + i))
        A("v_and_b32 v%d, %s, v%d" % (XF + 2 * i + 1, t1, 8 + i))
    fill = []
    def F(s): fill.append(s)
    def nop2():
        n = 0
        while fill and n < 2:
            A(fill.pop(0)); n += 1
        if n < 2: A("s_nop %d" % (1 - n))
    TRB = 120
    vAX, vS1, vL1, vL1x, vL1a, vF, vTN, vTB = "v34", "v35", "v36", "v37", "v38", "v39", "v124", "v125"
    sRP, sB1 = "s52", "s53"
    F("v_lshrrev_b32 v126, 4, v0")
    F("v_bfe_u32 v4, v0, 2, 2")
    F("v_lshl_add_u32 v5, v126, 3, v4")
    F("v_and_b32 v6, 3, v0")
    F("v_lshlrev_b32 v7, 3, v6")
    F("v_lshl_add_u32 v5, v5, 7, v7")
    F("v_bfe_u32 v4, v0, 3, 2")
    for ct in range(4):
        F("v_xor_b32 v7, %d, v4" % ct)
        F("v_lshl_add_u32 v%d, v7, 5, v5" % (TRB + ct))
    F("s_lshl_b32 %s, %s, 8" % (t0, sQK))
    F("v_lshl_add_u32 %s, v126, 4, %s" % (vAX, t0))
    F("s_lshl_b32 %s, %s, 15" % (sB1, sH))
    F("s_add_u32 %s, %s, 0x%x" % (sB1, sB1, MB1A))
    def wavesum(v, tmp):
        for rot in (1, 2, 4, 8):
            nop2()
            A("v_add_f32_dpp %s, %s, %s row_ror:%d %s" % (v, v, v, rot, DPP))
        for which in (16, 32):
            A("v_mov_b32 %s, %s" % (tmp, v))
            nop2()
            A("v_permlane%d_swap_b32 %s, %s" % (which, tmp, v))
            A("v_add_f32 %s, %s, %s" % (v, v, tmp))
    def P2(r): return "v[%d:%d]" % (r, r + 1)
    A("v_pk_add_f32 v[22:23], %s, %s" % (P2(XF), P2(XF + 2)))
    A("v_pk_add_f32 v[24:25], %s, %s" % (P2(XF + 4), P2(XF + 6)))
    A("v_pk_add_f32 v[22:23], v[22:23], v[24:25]")
    A("v_add_f32 v22, v22, v23")
    wavesum("v22", "v23")
    A("v_mul_f32 v22, 0x3b000000, v22")
    DV = 24
    for i in range(4):
        A("v_pk_add_f32 %s, %s, v[22:23] op_sel_hi:[1,0] neg_lo:[0,1] neg_hi:[0,1]" % (P2(DV + 2 * i), P2(XF + 2 * i)))
    A("v_cvt_pk_bf16_f32 v22, 0, v22")
    A("v_pk_mul_f32 v[32:33], %s, %s" % (P2(DV), P2(DV)))
    for i in range(1, 4):
        A("v_pk_fma_f32 v[32:33], %s, %s, v[32:33]" % (P2(DV + 2 * i), P2(DV + 2 * i)))
    A("v_add_f32 v32, v32, v33")
    pre = ["v_pk_add_f32 %s, %s, v[22:23] op_sel_hi:[1,0] neg_lo:[0,1] neg_hi:[0,1]" % (P2(XF + 2 * i), P2(XF + 2 * i)) for i in range(4)]
    pre += ["v_cvt_pk_bf16_f32 v%d, 0, v%d" % (XF + i, XF + i) for i in range(8)]
    rest = fill[:]; fill[:] = pre
    wavesum("v32", "v33")
    fill[:] = fill + rest
    A("v_mul_f32 v32, 0x3b000000, v32")
    A("v_cvt_pk_bf16_f32 v32, 0, v32")
    A("v_add_f32 v32, 0x%x, v32" % EPS)
    A("v_cvt_pk_bf16_f32 v32, 0, v32")
    A("v_sqrt_f32 v32, v32")
    A(fill.pop(0))
    A("v_cvt_pk_bf16_f32 v32, 0, v32")
    A("v_rcp_f32 v32, v32")
    A(fill.pop(0))
    for i in range(4):
        A("v_pk_mul_f32 %s, %s, v[32:33] op_sel_hi:[1,0]" % (P2(XF + 2 * i), P2(XF + 2 * i)))
    for i in range(4):
        A("v_cvt_pk_bf16_f32 v%d, v%d, v%d" % (8 + i, XF + 2 * i, XF + 2 * i + 1))
    A("ds_write_b128 v3, v[8:11] offset:%d" % L_XN)
    if o["vdyn"]:
        A("v_mov_b32 v110, 0")
        A("v_mov_b32 v111, 1")
        A("ds_write_b32 v110, v110 offset:%d" % (L_FLAG + 12))
    while fill: A(fill.pop(0))
    A("s_lshl_b32 %s, s55, 2" % t2)
    A("s_add_u32 s55, %s, %s" % (t2, sQK))
    A("s_lshl_b32 %s, s55, 8" % t2)
    A("s_add_u32 %s, %s, %s" % (t2, t2, sB1))
    A("v_lshrrev_b32 v4, 2, v0")
    A("v_lshl_add_u32 %s, v4, 4, %s" % (vS1, t2))
    A("s_waitcnt lgkmcnt(0)")
    AF = 40
    for m in range(4):
        A("ds_read_b128 v[%d:%d], %s offset:%d" % (AF + 4 * m, AF + 4 * m + 3, vAX, L_XN + m * 64))
    A("s_add_u32 %s, %s, 0x%x" % (sTAG, sTAG, TAGC))
    A("v_lshlrev_b32 v4, 2, v6")
    A("v_lshrrev_b32 %s, v4, %s" % (vTN, sTAG))
    A("v_and_b32 %s, 15, %s" % (vTN, vTN))
    A("v_lshlrev_b32 v4, 3, v6")
    A("v_lshrrev_b32 %s, v4, %s" % (vTB, sTAG))
    A("v_and_b32 %s, 0xff, %s" % (vTB, vTB))
    A("s_mov_b32 s44, 0")
    A("s_mov_b32 s45, -1")
    XG = 28
    def die_id():
        if o["vote"]:
            assert o["b0pos"] <= 47 and not o["hlate"]
            A("v_mov_b32 v4, 0")
            A("ds_read_b128 v[112:115], v4 offset:%d" % L_VOTE)
        if o["lastfin"]:
            assert o["vote"]
            A("ds_read_b32 v116, v4 offset:%d" % L_TKT)
        A("s_getreg_b32 %s, hwreg(HW_REG_XCC_ID, 0, 4)" % sXCC)
        A("s_and_b32 %s, %s, 0xff" % (t0, sTAG))
        A("s_lshl_b32 %s, %s, 8" % (t2, sXCC))
        A("s_or_b32 s54, %s, %s" % (t0, t2))
        A("v_mov_b32 v%d, s54" % XG)
        for k in range(1, 4):
            A("s_bfe_u32 %s, %s, 0x%x" % (t0, sTAG, 0x80000 | (8 * k)))
            A("v_mov_b32 v%d, %s" % (XG + k, t0))
        if o["vote"]:
            A("s_waitcnt lgkmcnt(0)")
            A("v_add3_u32 v112, v112, v113, v114")
            A("v_add_u32 v112, v112, v115")
            A("v_lshl_add_u32 v%d, v112, 8, v%d" % (XG + 1, XG + 1))
        if o["lastfin"]:
            A("v_lshl_add_u32 v%d, v116, 8, v%d" % (XG + 2, XG + 2))
        A("s_lshl_b32 %s, %s, 4" % (t2, sJ))
        A("s_add_u32 %s, %s, %s" % (t2, t2, sB1))
        A("s_add_u32 %s, %s, 0x4000" % (t2, t2))
        A("v_mov_b32 v22, %s" % t2)
        A("v_add_u32 v109, 0x%x, v22" % (MB1B - MB1A))
        A("s_mov_b64 exec, 1")
        if o["bonly"]:
            A("global_store_dwordx4 v22, v[%d:%d], %s sc1" % (XG, XG + 3, sWS))
        else:
            A("global_store_dwordx4 v22, v[%d:%d], %s" % (XG, XG + 3, sWS))
            if not o["bdefer"]: A("global_store_dwordx4 v109, v[%d:%d], %s sc1" % (XG, XG + 3, sWS))
        A("s_mov_b64 exec, -1")
    if o["idearly"]: die_id()
    if o["b0pos"] == 40: A("s_barrier")
    stamp(3)
    BF = 56
    D0 = 88
    GR = 24
    def gemv(lbase, vm0):
        def rd(m, ct):
            b = BF + 16 * (m & 1)
            for hh in range(2):
                A("ds_read_b64_tr_b16 v[%d:%d], v%d offset:%d" % (b + 4 * ct + 2 * hh, b + 4 * ct + 2 * hh + 1, TRB + ct, lbase + m * 4096 + hh * 512))
        A("s_waitcnt vmcnt(%d)" % (vm0 + 12))
        for ct in range(4): rd(0, ct)
        for m in range(4):
            b = BF + 16 * (m & 1)
            if m < 3: A("s_waitcnt vmcnt(%d)" % (vm0 + 8 - 4 * m))
            if lbase == L_WQ and o["b0pos"] == 41 + m: A("s_barrier")
            for ct in range(4):
                A("s_waitcnt lgkmcnt(%d)" % (6 if m < 3 else 6 - 2 * ct))
                mfma(D0 + 4 * ct, AF + 4 * m, b + 4 * ct, None if m == 0 else D0 + 4 * ct)
                if m < 3: rd(m + 1, ct)
    def pack(maskc, vt, GR, vS1):
        A("s_mov_b32 vcc_lo, 0xffff0000")
        A("s_mov_b32 vcc_hi, 0xffff0000")
        A("s_movk_i32 %s, 0x%x" % (t0, maskc))
        A("s_nop 2")
        A("v_cndmask_b32 v%d, v%d, v%d, vcc" % (GR, D0, D0 + 4))
        A("s_nop 0")
        A("v_cndmask_b32 v%d, v%d, v%d, vcc" % (GR + 1, D0 + 8, D0 + 12))
        A("v_cndmask_b32 v%d, v%d, v%d, s[44:45]" % (GR, GR, GR + 1))
        A("v_and_or_b32 v%d, v%d, %s, %s" % (GR, GR, t0, vt))
        if o["bdefer"]:
            A("s_nop 1")
        else:
            A("v_add_u32 v22, 0x%x, %s" % (MB1B - MB1A, vS1))
            A("s_nop 0")
        for k in range(1, 4):
            A("v_mov_b32_dpp v%d, v%d quad_perm:[%d,%d,%d,%d] %s" % (GR + k, GR, k, k, k, k, DPP))
        A("s_mov_b32 exec_lo, 0x11111111")
        A("s_mov_b32 exec_hi, 0x11111111")
        if o["bonly"]:
            A("global_store_dwordx4 %s, v[%d:%d], %s sc1" % (vS1, GR, GR + 3, sWS))
        else:
            A("global_store_dwordx4 %s, v[%d:%d], %s" % (vS1, GR, GR + 3, sWS))
            if not o["bdefer"]: A("global_store_dwordx4 v22, v[%d:%d], %s sc1" % (GR, GR + 3, sWS))
        A("s_mov_b64 exec, -1")
    C("q partial sums: [1 x 128] x [128 x 64]")
    gemv(L_WQ, 16 + NW + (1 if o["idearly"] else 0))
    if o["b0pos"] == 45: A("s_barrier")
    pack(0xfff0, vTN, GR, vS1)
    if o["b0pos"] == 47: A("s_barrier")
    stamp(4)
    if not o["idearly"]: die_id()
    if o["b0pos"] == 50: A("s_barrier")
    A("s_sub_i32 %s, %s, s55" % (t2, sJ))
    A("s_lshl_b32 %s, %s, 8" % (t2, t2))
    A("s_add_u32 %s, %s, 0x2000" % (t2, t2))
    A("v_add_u32 v108, %s, %s" % (t2, vS1))
    A("s_cmp_ge_u32 %s, 4" % sNOFF)
    A("s_cbranch_scc1 L_noff2")
    C("gate or up partial sums")
    gemv(L_FF, (2 if o['bonly'] or o['bdefer'] else 4) + NW)
    pack(0xff00, vTB, 104, "v108")
    LB("L_noff2")
    stamp(7)
    if o.get("nosync"):
        A("s_barrier")
        A("s_mov_b32 %s, 0" % sCNT)
        dump_stamps()
        A("s_endpgm")
    A("v_and_b32 v4, 15, v0")
    A("v_lshlrev_b32 v4, 4, v4")
    A("v_lshl_add_u32 v4, v126, 10, v4")
    A("s_add_u32 %s, %s, 2432" % (t0, sB1))
    A("v_add_u32 %s, %s, v4" % (vL1, t0))
    A("v_and_b32 v4, 31, v0")
    A("s_add_u32 %s, %s, 0x4000" % (t0, sB1))
    A("v_lshl_add_u32 %s, v4, 4, %s" % (vL1x, t0))
    A("s_lshl_b32 %s, %s, 1" % (t2, t3))
    A("s_sub_u32 %s, 8, %s" % (sRP, t2))
    A("s_mul_i32 %s, %s, %s" % (t2, sRP, sJ))
    A("s_sub_u32 %s, %s, 1" % (t0, sRP))
    A("v_and_b32 v4, 7, v0")
    A("v_min_u32 v4, %s, v4" % t0)
    A("v_add_u32 %s, %s, v4" % (vF, t2))
    A("v_lshrrev_b32 v4, 6, %s" % vF)
    A("v_bfe_u32 v5, v0, 3, 1")
    A("v_lshl_add_u32 v4, v4, 1, v5")
    A("v_lshl_add_u32 v4, v4, 2, v126")
    A("v_bfe_u32 v5, %s, 2, 4" % vF)
    A("v_lshlrev_b32 v5, 4, v5")
    A("v_lshl_add_u32 v4, v4, 8, v5")
    A("s_add_u32 %s, %s, 0x2000" % (t0, sB1))
    A("v_add_u32 %s, %s, v4" % (vL1a, t0))
    if min(nlv) == 0:
        A("s_cmp_lg_u32 %s, 0" % sRP)
        A("s_cbranch_scc1 L_has_ffn")
        A("v_mov_b32 %s, %s" % (vL1a, vL1x))
        LB("L_has_ffn")
    for k in range(4):
        A("s_bfe_u32 s%d, %s, 0x%x" % (56 + k, sTAG, 0x40000 | (4 * k)))
    A("s_movk_i32 s62, 255")
    A("s_mov_b32 s60, 0x0c0c0400")
    A("s_mov_b32 s61, 0x04000c0c")
    P = 40
    PX, PA_ = 72, 76
    A("s_mov_b32 %s, 0" % sCNT)
    def switch_copy(regs):
        A("s_add_u32 %s, %s, 1" % (sCNT, sCNT))
        if not o["bonly"]:
            if o.get("bskip"):
                A("s_cmp_ge_u32 %s, %d" % (sCNT, o["atries"]))
                A("s_cselect_b32 %s, 0x%x, 0" % (t0, MB1B ^ MB1A))
                for r in regs: A("v_xor_b32 %s, %s, %s" % (r, t0, r))
            else:
                A("s_cmp_eq_u32 %s, %d" % (sCNT, o["atries"]))
                A("s_cselect_b32 %s, 0x%x, 0" % (t0, MB1B - MB1A))
                for r in regs: A("v_add_u32 %s, %s, %s" % (r, t0, r))
        A("s_cmp_gt_u32 %s, %d" % (sCNT, o["spinmax"]))
        A("s_cbranch_scc1 L_end")
    def bytecheck(p, dst):
        A("v_perm_b32 v22, v%d, v%d, s60" % (p + 1, p))
        A("v_perm_b32 v23, v%d, v%d, s61" % (p + 3, p + 2))
        A("v_or_b32 v22, v22, v23")
        A("v_cmp_ne_u32 %s, %s, v22" % (dst, sTAG))
    for _ in range(o.get("dly1", 0)): A("s_nop 15")
    C("hand-off 1: the group's q partials, die ids and this workgroup's gate / up partials")
    stamp(9)
    if o.get("freeq"): A("s_branch L_got1")
    LB("L_poll1")
    stamp(8)
    for i in range(2):
        for q in range(4):
            r = P + 16 * i + 4 * q
            A("global_load_dwordx4 v[%d:%d], %s, %s offset:%d sc1" % (r, r + 3, vL1, sWS, i * 4096 + q * 256 - 2432))
    A("global_load_dwordx4 v[%d:%d], %s, %s sc1" % (PX, PX + 3, vL1x, sWS))
    A("global_load_dwordx4 v[%d:%d], %s, %s sc1" % (PA_, PA_ + 3, vL1a, sWS))
    switch_copy([vL1, vL1x, vL1a])
    for g_ in range(8):
        A("s_waitcnt vmcnt(%d)" % (9 - g_))
        for k in range(4):
            A("v_xor_b32 v%d, s%d, v%d" % (P + 4 * g_ + k, 56 + k, P + 4 * g_ + k))
        if g_ == 0:
            A("v_or3_b32 v21, v%d, v%d, v%d" % (P, P + 1, P + 2))
            A("v_or_b32 v21, v21, v%d" % (P + 3))
        else:
            A("v_or3_b32 v21, v21, v%d, v%d" % (P + 4 * g_, P + 4 * g_ + 1))
            A("v_or3_b32 v21, v21, v%d, v%d" % (P + 4 * g_ + 2, P + 4 * g_ + 3))
    A("v_and_b32 v21, 15, v21")
    A("s_waitcnt vmcnt(1)")
    bytecheck(PX, "vcc")
    A("v_cmp_ne_u32 s[46:47], 0, v21")
    if o.get("dbgfail"):
        A("s_cmp_eq_u32 %s, 1" % sCNT)
        A("s_cselect_b32 s84, vcc_lo, s84")
        A("s_cselect_b32 s62, s46, s62")
        A("s_cselect_b32 s63, s47, s63")
    A("s_or_b64 vcc, vcc, s[46:47]")
    def majority():
        A("v_cmp_gt_i32 vcc, 0, v%d" % (PX + 1))
        A("v_cmp_lt_i32 s[46:47], %s, v%d" % ("s62", PX + 1))
        A("s_bcnt1_i32_b32 %s, vcc_lo" % t0)
        A("s_bcnt1_i32_b32 %s, s46" % t2)
        A("s_cmp_gt_u32 %s, %s" % (t0, t2))
        A("s_cselect_b32 s55, 0x2000, 0")
        if o.get("voteinv"): A("s_xor_b32 s55, s55, 0x2000")
        if o["stamps"]:
            A("s_bcnt1_i32_b32 s63, vcc_lo")
            A("s_lshl_b32 %s, %s, 8" % (t2, t2))
            A("s_or_b32 s63, s63, %s" % t2)
    def publish_b(tag):
        C("write-through copies for peers that sit on another die")
        A("v_add_u32 v22, 0x%x, %s" % (MB1B - MB1A, vS1))
        A("v_add_u32 v23, 0x%x, v108" % (MB1B - MB1A))
        A("s_mov_b64 exec, 1")
        A("global_store_dwordx4 v109, v[%d:%d], %s sc1" % (XG, XG + 3, sWS))
        A("s_mov_b32 exec_lo, 0x11111111")
        A("s_mov_b32 exec_hi, 0x11111111")
        A("global_store_dwordx4 v22, v[%d:%d], %s sc1" % (GR, GR + 3, sWS))
        A("s_cmp_ge_u32 %s, 4" % sNOFF)
        A("s_cbranch_scc1 L_pb_%s" % tag)
        A("global_store_dwordx4 v23, v[104:107], %s sc1" % sWS)
        LB("L_pb_%s" % tag)
        A("s_mov_b64 exec, -1")
    if o["bdefer"]:
        A("s_cbranch_vccz L_got1")
        A("s_cmp_lg_u32 %s, %d" % (sCNT, o["bdefer"]))
        A("s_cbranch_scc1 L_poll1")
        publish_b("a")
        A("s_branch L_poll1")
        LB("L_got1")
    else:
        A("s_cbranch_vccnz L_poll1")
    stamp(5)
    if o["vdyn"]: A("ds_write_b32 v110, v111 offset:%d" % (L_FLAG + 12))
    for i in range(2):
        b = P + 16 * i
        for k in range(4):
            A("v_add_f32 v%d, v%d, v%d" % (b + k, b + k, b + 4 + k))
            A("v_add_f32 v%d, v%d, v%d" % (b + 8 + k, b + 8 + k, b + 12 + k))
        for k in range(4):
            A("v_add_f32 v%d, v%d, v%d" % (b + k, b + k, b + 8 + k))
        A("v_cvt_pk_bf16_f32 v%d, v%d, v%d" % (b, b, b + 1))
        A("v_cvt_pk_bf16_f32 v%d, v%d, v%d" % (b + 1, b + 2, b + 3))
    A("v_lshlrev_b32 v22, 3, v0")
    A("ds_write_b64 v22, v[%d:%d] offset:%d" % (P, P + 1, L_Q))
    A("ds_write_b64 v22, v[%d:%d] offset:%d" % (P + 16, P + 17, L_Q + 512))
    A("v_cmp_ne_u32 vcc, s54, v%d" % PX)
    A("s_cmp_eq_u64 vcc, 0")
    A("s_cselect_b32 %s, 1, 0" % sFAST)
    if o.get("forceslow"): A("s_mov_b32 %s, 0" % sFAST)
    if o.get("freeq"): A("s_mov_b32 %s, 1" % sFAST)
    if o["lastfin"]:
        A("v_readfirstlane_b32 %s, v%d" % (t0, PX + 2))
        if o["lastfin"] == 1:
            A("s_not_b32 %s, %s" % (t2, sTAG))
            A("v_mov_b32 v23, %s" % t2)
            A("v_lshlrev_b32 v22, 2, v0")
        A("s_lshr_b32 %s, %s, 8" % (t0, t0))
        A("s_cmp_eq_u32 %s, 7" % t0)
        A("s_cselect_b32 %s, 2, 0" % t0)
        if o.get("fixfin") is not None:
            A("s_cmp_eq_u32 %s, %d" % (sH, o["fixfin"]))
            A("s_cselect_b32 %s, 2, 0" % t0)
        A("s_or_b32 %s, %s, %s" % (sFAST, sFAST, t0))
        if o["lastfin"] == 1: A("ds_write_b32 v22, v23 offset:%d" % L_FIN)
        else:
            majority()
            A("s_or_b32 %s, %s, s55" % (sFAST, sFAST))
    A("v_mov_b32 v26, %s" % sFAST)
    A("v_mov_b32 v27, %s" % sTAG)
    A("v_mov_b32 v22, %d" % L_FLAG)
    A("ds_write_b64 v22, v[26:27]")
    if o["auxearly"] and not o.get("freeq"):
        A("s_waitcnt vmcnt(0)")
        bytecheck(PA_, "vcc")
        A("s_cbranch_vccz L_aux_b1")
        A("global_load_dwordx4 v[%d:%d], %s, %s sc1" % (PA_, PA_ + 3, vL1a, sWS))
        LB("L_aux_b1")
    A("s_waitcnt lgkmcnt(0)")
    A("s_barrier")
    if o["bdefer"]:
        A("s_cmp_gt_u32 %s, %d" % (sCNT, o["bdefer"]))
        A("s_cbranch_scc1 L_b_done")
        A("s_bitcmp1_b32 %s, 0" % sFAST if o.get("bskip") else "s_nop 0")
        if o.get("bskip"): A("s_cbranch_scc1 L_b_done")
        publish_b("b")
        LB("L_b_done")
    if o["vote"] and o["lastfin"] < 2: majority()
    if o["hlate"]:
        A("s_setprio %d" % o.get("hprio", 0))
        A("s_barrier")
        A("s_barrier")
    A("s_branch %s" % ("L_chk_aux" if not o.get("freeq") else "L_poll_aux" if o["freeq"] == 2 else "L_auxdone"))
    LB("L_poll_aux")
    A("global_load_dwordx4 v[%d:%d], %s, %s sc1" % (PA_, PA_ + 3, vL1a, sWS))
    switch_copy([vL1a])
    LB("L_chk_aux")
    A("s_waitcnt vmcnt(0)")
    bytecheck(PA_, "vcc")
    A("s_cbranch_vccnz L_poll_aux")
    if o.get("freeq"): LB("L_auxdone")
    C("h = bf16(bf16(silu(g)) * u)")
    A("s_movk_i32 %s, 0xff00" % t0)
    A("v_and_b32 v23, 1, %s" % vF)
    A("v_cmp_eq_u32 vcc, 0, v23")
    A("v_and_b32 v23, 2, %s" % vF)
    A("v_cmp_eq_u32 s[46:47], 0, v23")
    A("v_cndmask_b32 v24, v%d, v%d, vcc" % (PA_ + 1, PA_))
    A("v_cndmask_b32 v25, v%d, v%d, vcc" % (PA_ + 3, PA_ + 2))
    A("v_cndmask_b32 v24, v25, v24, s[46:47]")
    A("v_and_b32 v24, %s, v24" % t0)
    allred("v24", "v23", "v_add_f32", 16)
    allred("v24", "v23", "v_add_f32", 32)
    A("v_cvt_pk_bf16_f32 v24, v24, v24")
    A("v_and_b32 v24, %s, v24" % t1)
    A("v_mul_f32 v25, 0x%x, v24" % (LOG2E | 0x80000000))
    A("v_exp_f32 v25, v25")
    A("v_mov_b32_dpp v26, v24 row_ror:8 %s" % DPP)
    A("v_add_f32 v25, 1.0, v25")
    A("v_rcp_f32 v25, v25")
    A("v_cmp_le_u32 vcc, %s, v0" % sRP)
    A("v_mul_f32 v25, v24, v25")
    A("v_cvt_pk_bf16_f32 v25, v25, v25")
    A("v_and_b32 v25, %s, v25" % t1)
    A("v_mul_f32 v25, v25, v26")
    A("v_cvt_pk_bf16_f32 v25, v25, v25")
    A("v_cndmask_b32 v25, v25, 0, vcc")
    A("v_lshlrev_b32 v22, 2, v0")
    if o["vote"] and not o["lastfin"]:
        A("v_mov_b32 v26, s55")
        A("v_mov_b32 v27, 0")
        A("ds_write_b32 v27, v26 offset:%d" % (L_FLAG + 8))
    A("s_mov_b64 exec, 0xff")
    A("ds_write_b32 v22, v25 offset:%d" % L_H)
    A("s_waitcnt lgkmcnt(0)")
    stamp(6)
    if o["lastfin"] == 1:
        A("s_bitcmp1_b32 %s, 1" % sFAST)
        A("s_cbranch_scc1 L_ufin")
    if not o.get("nodumpU"): dump_stamps()
    A("s_endpgm")
    def unit_final():
        LB("L_ufin")
        C("last group: lane = (wave l>>4, pair (l>>3)&1, group l&7) gathers the eight groups' sums of this workgroup's 16 columns")
        A("s_mov_b64 exec, -1")
        A("s_setprio %d" % o.get("uprio", 0))
        vA3, vLF, vXO, vXV = "v4", "v5", "v6", "v7"
        FP, FS = 8, 40
        A("v_lshrrev_b32 %s, 3, v0" % vLF)
        A("s_lshl_b32 %s, %s, 5" % (t0, sJ))
        A("v_lshl_add_u32 %s, %s, 2, %s" % (vXO, vLF, t0))
        A("global_load_dword %s, %s, %s" % (vXV, vXO, sX))
        A("v_lshlrev_b32 %s, 4, %s" % (vLF, vLF))
        A("s_lshr_b32 %s, %s, 1" % (t0, sJ))
        A("s_lshl_b32 %s, %s, 14" % (t0, t0))
        A("s_and_b32 %s, %s, 1" % (t2, sJ))
        A("s_lshl_b32 %s, %s, 12" % (t2, t2))
        A("s_add_u32 %s, %s, %s" % (t0, t0, t2))
        A("s_add_u32 %s, %s, s55" % (t0, t0))
        A("s_add_u32 %s, %s, 0x%x" % (t0, t0, MB3))
        A("v_and_b32 v22, 7, v0")
        A("v_lshl_add_u32 %s, v22, 9, %s" % (vA3, t0))
        A("v_lshlrev_b32 v22, 7, v126")
        A("v_and_b32 v23, 16, %s" % vLF)
        A("v_add3_u32 %s, %s, v22, v23" % (vA3, vA3))
        A("s_lshl_b32 s44, 0x01010101, %s" % sH)
        A("s_mov_b32 s45, s44")
        A("s_not_b64 s[46:47], s[44:45]")
        A("s_mov_b32 %s, %d" % (sCNT, o["spinmax"]))
        A("s_barrier")
        A("s_barrier")
        A("s_waitcnt vmcnt(0)")
        A("v_lshlrev_b32 v22, 16, %s" % vXV)
        A("v_and_b32 v23, %s, %s" % (t1, vXV))
        def spf():
            C("pull the other groups' lines into this die's L2 over the scalar path (the vector path returns in order and is busy with the group's own hand-off)")
            for k in range(1, 8):
                for w_ in range(4):
                    A("s_load_dword s%d, %s, s%d offset:%d glc" % (6 + (4 * k + w_) % 16, sWS, 48 + k, 128 * w_))
        if o.get("spf"):
            for k in range(1, 8):
                A("s_xor_b32 s%d, %s, %d" % (48 + k, sH, k))
                A("s_lshl_b32 s%d, s%d, 9" % (48 + k, 48 + k))
                A("s_add_u32 s%d, s%d, %s" % (48 + k, 48 + k, t0))
        if o.get("spf", 0) & 2: spf()
        if o["reuse"]: A("s_barrier")
        if o.get("spf", 0) & 1: spf()
        NP = o["npu"]
        def own_read():
            A("s_mov_b64 exec, s[44:45]")
            A("ds_read_b128 v[%d:%d], %s offset:%d" % (FP, FP + 3, vLF, L_FIN))
        if o.get("uwait"):
            A("s_mov_b64 exec, s[44:45]")
            LB("L_uw")
            A("ds_read_b128 v[%d:%d], %s offset:%d" % (FP, FP + 3, vLF, L_FIN))
            A("s_sub_u32 %s, %s, 1" % (sCNT, sCNT))
            A("s_cbranch_scc1 L_end")
            A("s_waitcnt lgkmcnt(0)")
            A("v_cmp_ne_u32 vcc, %s, v%d" % (sTAG, FP + 3))
            if o["uwait"] == 1:
                A("s_cbranch_vccnz L_uw")
            else:
                A("s_cmp_eq_u64 vcc, s[44:45]")
                A("s_cbranch_scc1 L_uw")
        for k in range(NP):
            if k:
                for _ in range(o["stag"]):
                    own_read(); A("s_waitcnt lgkmcnt(0)")
            A("s_mov_b64 exec, s[46:47]")
            A("global_load_dwordx4 v[%d:%d], %s, %s sc1" % (FS + 4 * k, FS + 4 * k + 3, vA3, sWS))
        LB("L_upoll")
        for k in range(NP):
            own_read()
            A("s_mov_b64 exec, s[46:47]")
            A("s_waitcnt vmcnt(%d) lgkmcnt(0)" % (NP - 1))
            A("v_cmp_ne_u32 vcc, %s, v%d" % (sTAG, FS + 4 * k + 3))
            A("v_mov_b32 v%d, v%d" % (FP, FS + 4 * k))
            A("v_mov_b32 v%d, v%d" % (FP + 1, FS + 4 * k + 1))
            A("s_and_b64 s[46:47], exec, vcc")
            A("s_cbranch_scc0 L_ugot")
            A("s_mov_b64 exec, s[46:47]")
            A("global_load_dwordx4 v[%d:%d], %s, %s sc1" % (FS + 4 * k, FS + 4 * k + 3, vA3, sWS))
        A("s_sub_u32 %s, %s, 1" % (sCNT, sCNT))
        A("s_cbranch_scc0 L_upoll")
        A("s_endpgm")
        LB("L_uown")
        A("ds_read_b128 v[%d:%d], %s offset:%d" % (FP, FP + 3, vLF, L_FIN))
        A("s_sub_u32 %s, %s, 1" % (sCNT, sCNT))
        A("s_cbranch_scc1 L_end")
        A("s_waitcnt lgkmcnt(0)")
        LB("L_ugot")
        A("s_mov_b64 exec, s[44:45]")
        A("v_cmp_ne_u32 vcc, %s, v%d" % (sTAG, FP + 3))
        A("s_cbranch_vccnz L_uown")
        stamp(10)
        A("s_mov_b64 exec, -1")
        x_, y_ = "v%d" % FP, "v%d" % (FP + 1)
        for pat in ("quad_perm:[1,0,3,2]", "quad_perm:[2,3,0,1]", "row_half_mirror"):
            A("v_add_f32_dpp %s, %s, %s %s %s" % (x_, x_, x_, pat, DPP))
            A("v_add_f32_dpp %s, %s, %s %s %s" % (y_, y_, y_, pat, DPP))
            if pat != "row_half_mirror": A("s_nop 0")
        A("s_mov_b32 s44, 0x01010101")
        A("v_add_f32 %s, %s, v22" % (x_, x_))
        A("v_add_f32 %s, %s, v23" % (y_, y_))
        A("s_mov_b32 s45, s44")
        A("v_cvt_pk_bf16_f32 %s, %s, %s" % (x_, x_, y_))
        A("s_mov_b64 exec, s[44:45]")
        A("global_store_dword %s, %s, %s" % (vXO, x_, sOUT))
        A("s_cmp_lg_u32 %s, 0" % sJ)
        A("s_cbranch_scc1 L_udone")
        C("the next launch must not mistake this launch's hand-off words for its own")
        A("s_mov_b64 exec, 1")
        A("v_mov_b32 v22, 0")
        A("v_mov_b32 v23, %s" % sTAG)
        A("global_store_dword v22, v23, %s" % sWS)
        LB("L_udone")
        role[0] = "U"
        amp_end("u")
        dump_stamps()
        A("s_endpgm")

    role[0] = "A"
    if o.get("alignA"): L.append(".p2align %d" % o["alignA"])
    for _ in range(o.get("shiftA", 0)): A("s_nop 0")
    if o["tw"]:
        LB("L_norace")
        C("waves 2, 3: first touch of the pages that later loads use, over the scalar path (values unused), so that their address translation is not waited for")
        A("s_lshl_b32 %s, %s, 2" % (t2, sW))
        A("v_mov_b32 v158, %s" % t2)
        A("v_mov_b32 v159, 0")
        A("ds_write_b32 v158, v159 offset:%d" % L_VOTE)
        A("s_lshl_b32 %s, %s, 24" % (t0, sH))
        A("s_and_b32 %s, %s, 7" % (t2, sJ))
        A("s_lshl_b32 %s, %s, %d" % (t2, t2, 17 if o["stl"] & 64 else 10))
        A("s_add_u32 %s, %s, %s" % (t0, t0, t2))
        A("s_add_u32 %s, %s, 0xF00000" % (t0, t0))
        A("s_lshl_b32 %s, %s, 19" % (t2, sH))
        A("s_lshl_b32 %s, %s, 14" % (t3, sJ))
        A("s_add_u32 %s, %s, %s" % (t2, t2, t3))
        A("s_mul_i32 %s, s2, 7168" % t3)
        A("s_cmp_eq_u32 %s, 3" % sW)
        A("s_waitcnt lgkmcnt(0)")
        A("s_cbranch_scc1 L_touch3")
        if o["stl"] & 4:
            A("s_load_dword s62, %s, %s" % (sWO, t2))
            A("s_load_dword s63, %s, %s" % (sDN, t3))
        if o["stl"] & 8: A("s_load_dword s59, %s, 0" % sOUT)
        if o["stl"] & 128:
            A("s_lshl_b32 %s, s2, 12" % t2)
            A("s_add_u32 %s, %s, 0x%x" % (t2, t2, MB2))
            A("s_load_dword s58, %s, %s" % (sWS, t2))
        A("s_branch L_attn")
        LB("L_touch3")
        if o["stl"] & 1: A("s_load_dword s60, %s, %s" % (sK, t0))
        if o["stl"] & 2: A("s_load_dword s61, %s, %s" % (sV, t0))
    LB("L_attn")
    vK0, vK1, vV0, vV1 = "v2", "v3", "v4", "v5"
    vWO0, vWO1, vDN0, vDN1, vXF, vXP = "v6", "v7", "v8", "v9", "v10", "v1"
    vS2, vL2, vS25, vL25, vL3, vS3 = "v11", "v12", "v13", "v14", "v15", "v150"
    KR, VR, WOR, DNR, QR, SR, PA, MK = 16, 48, 80, 96, 104, 120, 128, 146
    vM0, vM1, vQA, vOW, vOR, vMLW, vHA = "v151", "v152", "v153", "v154", "v155", "v156", "v157"
    vN, vG, vN16, vP = "v120", "v121", "v122", "v123"
    u0, u1 = "v124", "v125"
    s4JW = "s41"
    C("K and V: load i = 1 KB block (4 keys) number 128 i + 4j + w of the head's window; K goes through LDS")
    A("s_lshl_b32 %s, %s, 24" % (t0, sH))
    A("s_lshl_b32 %s, %s, 2" % (s4JW, sJ))
    A("s_add_u32 %s, %s, %s" % (s4JW, s4JW, sW))
    if o["lastfin"]:
        C("arrival order of the eight groups (one counter in the zeroed debug words)")
        A("s_cmp_lg_u32 %s, 0" % s4JW)
        A("s_cbranch_scc1 L_notkt0")
        A("v_mov_b32 v158, 0")
        A("v_mov_b32 v159, 1")
        A("s_mov_b64 exec, 1")
        A("global_atomic_add v159, v158, v159, s[24:25] sc0 sc1")
        A("s_mov_b64 exec, -1")
        LB("L_notkt0")
    perm = o["perm"]
    if perm:
        assert sorted(perm) == sorted("wwjjjjjiii")
        src = []; cnt = {"w": 0, "j": 2}
        for p_, c_ in enumerate(perm):
            if c_ != "i": src.append((cnt[c_], p_)); cnt[c_] += 1
        src.sort(); runs = []
        for a_, p_ in src:
            if runs and runs[-1][0] + runs[-1][2] == a_ and runs[-1][1] + runs[-1][2] == p_: runs[-1][2] += 1
            else: runs.append([a_, p_, 1])
        for a_, p_, n_ in runs:
            A("s_bfe_u32 %s, %s, 0x%x" % (t2, s4JW, (n_ << 16) | a_))
            A("s_lshl_b32 %s, %s, %d" % (t2, t2, p_ + 10))
            A("s_add_u32 %s, %s, %s" % (t0, t0, t2))
        ipos = [p_ for p_, c_ in enumerate(perm) if c_ == "i"]
    else:
        A("s_lshl_b32 %s, %s, 10" % (t2, s4JW))
        A("s_add_u32 %s, %s, %s" % (t0, t0, t2))
    if o["hrot"]:
        A("s_mul_i32 %s, %s, %d" % (t2, sH, o["hrot"]))
        A("s_and_b32 %s, %s, %d" % (t2, t2, 1023 if perm else 127))
        A("s_lshl_b32 %s, %s, 10" % (t2, t2))
        A("s_xor_b32 %s, %s, %s" % (t0, t0, t2))
    A("s_add_u32 %s, %s, 0xF00000" % (t0, t0))
    A("v_and_b32 %s, 15, v0" % vN)
    A("v_lshrrev_b32 %s, 4, v0" % vG)
    A("v_lshlrev_b32 %s, 4, %s" % (vN16, vN))
    A("v_lshl_add_u32 %s, v0, 4, %s" % (vV0, t0))
    A("v_lshlrev_b32 %s, 6, %s" % (u0, vG))
    A("v_xor_b32 %s, %s, %s" % (vK0, u0, vV0))
    A("s_lshl_b32 %s, %s, 13" % (t1, sW))
    A("s_add_u32 m0, %s, %d" % (t1, L_K))
    A("s_mov_b32 s42, 0x20000")
    A("s_movk_i32 s43, 1024")
    if not o["vote"]: A("s_waitcnt lgkmcnt(0)")
    if o.get("tlbw") == 1:
        A("s_cmp_lg_u32 %s, 0" % sW)
        A("s_cbranch_scc1 L_notlb")
        tlbwarm()
        A("s_waitcnt vmcnt(0)")
        LB("L_notlb")
    if o["vote"] and not o["tw"]: A("s_waitcnt lgkmcnt(1)")
    if o["lastfin"]:
        A("s_cmp_lg_u32 %s, 0" % s4JW)
        A("s_cbranch_scc1 L_notkt")
        A("s_mov_b64 exec, 1")
        A("s_waitcnt vmcnt(0)")
        A("ds_write_b32 v158, v159 offset:%d" % L_TKT)
        A("s_mov_b64 exec, -1")
        A("s_waitcnt lgkmcnt(0)")
        LB("L_notkt")
    def touches(m, name):
        if not m or o["tw"]: return
        C("first touch of the pages the later loads use, over the scalar path (values unused)")
        if o["stw"]:
            A("s_and_b32 %s, %s, %d" % (t2, s4JW, o["stw"]))
            A("s_cbranch_scc1 %s" % name)
        if m & 1: A("s_load_dword s60, %s, %s" % (sK, t0))
        if m & 2: A("s_load_dword s61, %s, %s" % (sV, t0))
        if m & 4:
            A("s_lshl_b32 %s, %s, 19" % (t2, sH))
            A("s_lshl_b32 %s, %s, 14" % (t3, sJ))
            A("s_add_u32 %s, %s, %s" % (t2, t2, t3))
            A("s_load_dword s62, %s, %s" % (sWO, t2))
            A("s_mul_i32 %s, s2, 7168" % t2)
            A("s_load_dword s63, %s, %s" % (sDN, t2))
        if m & 8: A("s_load_dword s59, %s, 0" % sOUT)
        if m & 16:
            A("s_lshl_b32 %s, %s, 7" % (t2, sH))
            A("s_load_dword s59, %s, %s" % (sOUT, t2))
        if o["stw"]: LB(name)
    touches(o["stl"], "L_touched")
    if o["b0pos"]: A("s_barrier")
    stamp(1)
    issued = [0]
    def load(w, txt):
        if issued[0] >= w:
            A("s_waitcnt vmcnt(%d)" % (w - 1))
        A(txt); issued[0] += 1
    def rot(i):
        if not perm: return (i * o["rotm"]) & 127
        b_ = sum(((i >> q_) & 1) << ipos[q_] for q_ in range(3))
        r_ = (i * o["rotm"]) & 127
        opos = [p_ for p_ in range(10) if p_ not in ipos]
        return b_ ^ sum(((r_ >> q_) & 1) << opos[q_] for q_ in range(7))
    def kload(i):
        load(o["WK"], "global_load_lds_dwordx4 %s, %s %s" % (vK0, sK, nt))
        if i < 7:
            A("s_add_u32 m0, m0, s43")
            A("v_xor_b32 %s, %d, %s" % (vK0, (((i & 3) ^ ((i + 1) & 3)) << 4) | ((rot(i) ^ rot(i + 1)) << 10), vK0))
            if not perm: A("v_add_u32 %s, s42, %s" % (vK0, vK0))
    nk_first = min(o["WK"], 8)
    if o.get("bal"):
        A("v_and_b32 v158, 7, v0")
        A("v_lshlrev_b32 v158, 2, v158")
        A("global_load_dword v159, v158, s[24:25] sc1")
    for i in range(nk_first): kload(i)
    touches(o["stl2"], "L_touched2")
    C("address and mask setup in the shadow of the K loads")
    if o["stouch"]: A("s_load_dword s63, %s, 0" % sOUT)
    A("s_lshl_b32 %s, %s, 19" % (t0, sH))
    A("s_lshl_b32 %s, %s, 14" % (t2, sJ))
    A("s_add_u32 %s, %s, %s" % (t0, t0, t2))
    A("s_lshl_b32 %s, %s, 8" % (t3, sW))
    A("s_add_u32 %s, %s, %s" % (t0, t0, t3))
    A("s_add_u32 %s, %s, 0x1000" % (t0, t0))
    A("v_lshl_add_u32 %s, %s, 10, %s" % (vDN0, vG, vN16))
    A("v_add_u32 %s, %s, %s" % (vWO0, t0, vDN0))
    A("v_add_u32 %s, 0x2000, %s" % (vWO1, vWO0))
    ffn_share(t0, t2)
    A("s_lshl_b32 %s, s3, 6" % t0)
    A("s_lshl_b32 %s, %s, 1" % (t2, t2))
    A("s_sub_u32 %s, 8, %s" % (t1, t2))
    A("s_mul_i32 %s, %s, %s" % (t2, t1, sJ))
    A("s_add_u32 %s, %s, %s" % (t0, t0, t2))
    A("s_lshl_b32 %s, %s, 10" % (t0, t0))
    A("s_add_u32 %s, %s, %s" % (t0, t0, t3))
    A("s_sub_u32 %s, %s, 1" % (t1, t1))
    A("v_add_u32 %s, %s, %s" % (u1, t0, vN16))
    A("v_min_u32 %s, %s, %s" % (vDN0, t1, vG))
    A("v_lshl_add_u32 %s, %s, 10, %s" % (vDN0, vDN0, u1))
    A("v_add_u32 %s, 4, %s" % (vDN1, vG))
    A("v_min_u32 %s, %s, %s" % (vDN1, t1, vDN1))
    A("v_lshl_add_u32 %s, %s, 10, %s" % (vDN1, vDN1, u1))
    A("v_and_b32 %s, 1, v0" % vP)
    A("v_and_b32 %s, 1, %s" % (u0, vG))
    if o["g25"]:
        if o["cq25"]:
            A("s_lshr_b32 %s, %s, 3" % (t2, sJ))
            A("s_lshl_b32 %s, %s, 8" % (t2, t2))
            A("s_and_b32 %s, %s, 3" % (t0, sJ))
            A("s_lshl_b32 %s, %s, 6" % (t0, t0))
            A("s_add_u32 %s, %s, %s" % (t2, t2, t0))
            A("s_and_b32 %s, %s, 4" % (t0, sJ))
            A("s_lshl_b32 %s, %s, 1" % (t0, t0))
            A("s_add_u32 %s, %s, %s" % (t2, t2, t0))
        else:
            A("s_lshl_b32 %s, %s, 5" % (t2, sJ))
        A("v_bfe_u32 %s, v0, 3, 2" % u1)
        A("v_lshl_add_u32 %s, %s, %d, %s" % (vXF, u1, 4 if o["cq25"] else 3, t2))
        A("v_lshrrev_b32 %s, 5, v0" % u1)
        A("v_lshl_add_u32 %s, %s, 2, %s" % (vXF, u1, vXF))
    else:
        A("s_lshl_b32 %s, %s, 3" % (t2, s4JW))
        A("v_lshl_add_u32 %s, %s, 2, %s" % (vXF, u0, t2))
    RP = o["rp"]
    M25 = 0 if o["reuse"] else MB25 - MB2
    lay = 3 if o["reuse"] else o.get("lay25", 0)
    A("s_mul_i32 %s, %s, %d" % (t0, sH, 32 * RP))
    A("s_add_u32 %s, %s, 0x%x" % (t0, t0, MB2))
    A("s_mul_i32 %s, %s, %d" % (t1, sJ, RP))
    A("s_add_u32 %s, %s, %s" % (t1, t1, t0))
    A("s_mul_i32 %s, %s, %d" % (t2, sW, 8 * RP))
    A("s_lshl_b32 %s, %s, 6" % (t3, sJ))
    A("s_add_u32 %s, %s, %s" % (t0, t0, t3))
    A("s_add_u32 %s, %s, %s" % (t2, t2, t0))
    A("v_bfe_u32 %s, v0, 2, 3" % vS2 if o["cq2"] else "v_lshrrev_b32 %s, 3, v0" % vS2)
    A("v_mul_u32_u24 %s, %d, %s" % (vS2, RP, vS2))
    A("v_and_b32 %s, 3, v0" % u1 if o["cq2"] else "v_bfe_u32 %s, v0, 1, 2" % u1)
    A("v_lshlrev_b32 %s, 4, %s" % (u1, u1))
    A("v_add3_u32 %s, %s, %s, %s" % (vS2, vS2, u1, t2))
    A("v_lshl_add_u32 %s, v0, 4, %s" % (vL2, t1))
    A("s_lshl_b32 %s, %s, 4" % (t3, sW))
    A("v_and_b32 %s, 31, v0" % u1)
    if lay == 0:
        A("s_add_u32 %s, %s, %s" % (t1, t1, t3))
        A("s_add_u32 %s, %s, 0x%x" % (t1, t1, M25))
        A("v_lshl_add_u32 %s, %s, 6, %s" % (vL25, u1, t1))
        A("v_lshrrev_b32 %s, 1, %s" % (vS25, vN))
        A("v_mul_u32_u24 %s, %d, %s" % (vS25, RP, vS25))
        A("v_lshl_add_u32 %s, %s, 5, %s" % (vS25, vP, vS25))
        A("v_lshl_add_u32 %s, %s, 4, %s" % (vS25, u0, vS25))
        A("s_add_u32 %s, %s, 0x%x" % (t2, t2, M25))
        A("v_add_u32 %s, %s, %s" % (vS25, t2, vS25))
    else:
        if not o["g25"]: A("s_add_u32 %s, %s, %s" % (t0, t0, t3))
        if M25: A("s_add_u32 %s, %s, 0x%x" % (t0, t0, M25))
        if o["g25"]:
            A("v_lshrrev_b32 %s, 2, v0" % vL25)
            A("v_mul_u32_u24 %s, %d, %s" % (vL25, RP, vL25))
            A("v_and_b32 %s, 3, v0" % u1)
            A("v_lshlrev_b32 %s, 4, %s" % (u1, u1))
            A("v_add3_u32 %s, %s, %s, %s" % (vL25, vL25, u1, t0))
            A("v_add_u32 v164, %d, %s" % (16 * RP, vL25))
        else:
            A("v_mul_u32_u24 %s, %d, %s" % (vL25, RP, u1))
            A("v_add_u32 %s, %s, %s" % (vL25, t0, vL25))
        A("s_lshl_b32 %s, %s, 9" % (t3, sW))
        A("s_add_u32 %s, %s, %s" % (t1, t1, t3))
        if M25: A("s_add_u32 %s, %s, 0x%x" % (t1, t1, M25))
        if o["cq25"]:
            A("v_and_b32 %s, 31, v0" % vS25)
            A("v_lshl_add_u32 %s, %s, 4, %s" % (vS25, vS25, t1))
        else:
            A("v_lshl_add_u32 %s, %s, 5, %s" % (vS25, vN, t1))
            A("v_lshl_add_u32 %s, %s, 4, %s" % (vS25, u0, vS25))
    A("s_lshr_b32 %s, %s, 1" % (t0, sJ))
    A("s_lshl_b32 %s, %s, 14" % (t0, t0))
    A("s_and_b32 %s, %s, 1" % (t3, sJ))
    A("s_lshl_b32 %s, %s, 12" % (t3, t3))
    A("s_add_u32 %s, %s, %s" % (t0, t0, t3))
    if o["g25"]:
        A("s_add_u32 %s, %s, 0x%x" % (t0, t0, MB3))
        A("v_lshrrev_b32 %s, 3, v0" % u0)
        A("v_lshl_add_u32 %s, %s, 4, %s" % (u0, u0, t0))
        A("v_and_b32 %s, 7, v0" % vL3)
        A("v_lshl_add_u32 %s, %s, 9, %s" % (vL3, vL3, u0))
        A("s_lshl_b32 %s, %s, 9" % (t3, sH))
        A("s_add_u32 %s, %s, %s" % (t0, t0, t3))
        A("v_lshrrev_b32 %s, 5, v0" % u0)
        A("v_lshl_add_u32 %s, %s, 6, %s" % (u0, u0, u1))
        A("v_bfe_u32 %s, v0, 2, 1" % u1)
        A("v_lshlrev_b32 %s, 13, %s" % (u1, u1))
        A("v_add3_u32 %s, %s, %s, %s" % (vS3, u0, u1, t0))
        if o["pt3"]:
            A("s_and_b32 %s, %s, 1" % (t3, sW))
            A("s_lshl_b32 %s, %s, 6" % (t3, t3))
            A("s_add_u32 s3, %s, %s" % (t0, t3))
            A("s_lshr_b32 %s, %s, 1" % (t3, sW))
            A("s_lshl_b32 %s, %s, 13" % (t3, t3))
            A("s_add_u32 s3, s3, %s" % t3)
    else:
        A("s_lshl_b32 %s, %s, 7" % (t3, sW))
        A("s_add_u32 %s, %s, %s" % (t0, t0, t3))
        A("s_add_u32 %s, %s, 0x%x" % (t0, t0, MB3))
        if o["lastfin"] == 1:
            A("s_lshl_b32 %s, %s, 5" % (t3, sW))
            A("v_lshl_add_u32 %s, %s, 4, %s" % (vL3, u0, t3))
        if o["lastfin"] >= 2:
            A("s_lshl_b32 s3, %s, 9" % sH)
            A("s_add_u32 s3, s3, %s" % t0)
        A("v_lshl_add_u32 %s, %s, 4, %s" % (u0, u0, t0))
        if o["lastfin"] != 1:
            A("v_and_b32 %s, 7, v0" % u1)
            A("v_lshl_add_u32 %s, %s, 9, %s" % (vL3, u1, u0))
        A("s_lshl_b32 %s, %s, 9" % (t3, sH))
        A("v_lshl_add_u32 %s, %s, 13, %s" % (u0, vP, u0))
        A("v_add_u32 %s, %s, %s" % (vS3, t3, u0))
    if o.get("mockx"):
        A("s_lshr_b32 %s, %s, 1" % (t0, sJ))
        A("s_lshl_b32 %s, %s, 14" % (t0, t0))
        A("s_and_b32 %s, %s, 1" % (t3, sJ))
        A("s_lshl_b32 %s, %s, 12" % (t3, t3))
        A("s_add_u32 %s, %s, %s" % (t0, t0, t3))
        A("s_lshl_b32 %s, %s, 9" % (t3, sH))
        A("s_add_u32 %s, %s, %s" % (t0, t0, t3))
        A("s_and_b32 %s, %s, 1" % (t3, sW))
        A("s_lshl_b32 %s, %s, 13" % (t3, t3))
        A("s_add_u32 %s, %s, %s" % (t0, t0, t3))
        A("s_add_u32 %s, %s, 0x%x" % (t0, t0, MB3))
        A("v_and_b32 %s, 3, v0" % u0)
        A("v_lshl_add_u32 %s, %s, 4, %s" % (vS3, u0, t0))
        A("s_and_b32 %s, %s, 3" % (t0, sJ))
        A("s_lshl_b32 %s, %s, 2" % (t0, t0))
        A("s_add_u32 %s, %s, %s" % (t0, t0, sW))
        A("s_lshl_b32 %s, %s, 14" % (t0, t0))
        A("s_lshr_b32 %s, %s, 2" % (t3, sJ))
        A("s_lshl_b32 %s, %s, 9" % (t3, t3))
        A("s_add_u32 %s, %s, %s" % (t0, t0, t3))
        A("s_add_u32 %s, %s, 0x%x" % (t0, t0, MB3))
        A("v_lshl_add_u32 %s, %s, 4, %s" % (vL3, u0, t0))
        A("v_bfe_u32 %s, v0, 2, 1" % u0)
        A("v_lshl_add_u32 %s, %s, 12, %s" % (vL3, u0, vL3))
    A("v_lshlrev_b32 %s, 4, %s" % (u1, vP))
    def pretouch2():
        C("first touch of this workgroup's own hand-off lines (values unused), so that no wait on them starts with a miss to HBM")
        if o["reuse"]:
            A("s_lshl_b32 %s, %s, 9" % (t0, sW))
            A("v_lshlrev_b32 v158, 3, v0")
            A("v_sub_u32 v158, %s, v158" % vL2)
            A("v_add_u32 v158, %s, v158" % t0)
            if o["pt3"]: A("v_writelane_b32 v158, s3, 63")
        else:
            A("s_and_b32 %s, %s, 1" % (t0, sW))
            A("s_lshl_b32 %s, %s, 10" % (t0, t0))
            A("s_lshr_b32 %s, %s, 1" % (t3, sW))
            A("s_mul_i32 %s, %s, 0x%x" % (t3, t3, MB25 - MB2))
            A("s_add_u32 %s, %s, %s" % (t0, t0, t3))
            A("v_add_u32 v158, %s, %s" % (t0, vL2))
        if o["pretouch"] in ("r", "k"):
            if o.get("ptm") is not None:
                A("s_mov_b32 exec_lo, 0x%x" % (o["ptm"] & 0xffffffff))
                A("s_mov_b32 exec_hi, 0x%x" % (o["ptm"] >> 32))
            A("global_load_dword v159, v158, %s %s" % (sWS, o.get("ptfl", "sc1"))); issued[0] += 1
            if o.get("ptm") is not None: A("s_mov_b64 exec, -1")
        if o.get("otouch2", 0) & 1:
            A("global_load_dword v166, %s, %s" % (vXF, sOUT)); issued[0] += 1
        if o.get("otouch2", 0) & 2:
            A("global_load_dword v165, %s, %s sc1" % (vS3, sWS)); issued[0] += 1
    if o["pretouch"] == "r" or isinstance(o["pretouch"], int): pretouch2()
    A("v_mov_b32 %s, 0xffff" % u0)
    A("v_lshlrev_b32 %s, %s, %s" % (u0, u1, u0))
    A("v_and_b32 %s, 2, v0" % u1)
    A("v_cmp_eq_u32 vcc, 0, %s" % u1)
    A("v_lshrrev_b32 %s, 1, %s" % (u1, vN))
    A("v_lshlrev_b32 %s, 2, %s" % (vHA, vG))
    SEL = 160
    A("v_mov_b32 v%d, 0x0c0c0c0c" % (SEL + 2))
    A("v_mov_b32 v%d, 0x01000100" % (SEL + 3))
    A("v_bfi_b32 v%d, %s, v%d, v%d" % (SEL + 3, u0, SEL + 3, SEL + 2))
    A("v_cndmask_b32 v%d, v%d, v%d, vcc" % (SEL, SEL + 2, SEL + 3))
    A("v_cndmask_b32 v%d, v%d, v%d, vcc" % (SEL + 1, SEL + 3, SEL + 2))
    A("v_and_b32 v%d, 0x02020202, %s" % (SEL + 3, u0))
    A("v_cndmask_b32 v%d, 0, v%d, vcc" % (SEL + 2, SEL + 3))
    A("v_cndmask_b32 v%d, v%d, 0, vcc" % (SEL + 3, SEL + 3))
    A("v_add_u32 v%d, v%d, v%d" % (SEL + 2, SEL + 2, SEL))
    A("v_add_u32 v%d, v%d, v%d" % (SEL + 3, SEL + 3, SEL + 1))
    for r in range(4):
        A("v_cmp_eq_u32 s[%d:%d], %d, %s" % (44 + 2 * r, 45 + 2 * r, r, u1))
    A("v_lshrrev_b32 %s, 2, %s" % (vMLW, vN))
    A("v_lshlrev_b32 %s, 4, %s" % (u1, vG))
    A("v_lshl_add_u32 %s, %s, 8, %s" % (vQA, vMLW, u1))
    for r in range(4):
        A("v_cndmask_b32 v%d, 0, %s, s[%d:%d]" % (MK + r, u0, 44 + 2 * r, 45 + 2 * r))
    OH, OG, OWV = (384, 768, 3072) if o["cq2"] else (256, 512, 2048)
    if o["cq2"]:
        A("s_mul_i32 %s, %s, %d" % (t0, sW, OWV))
        A("v_mul_u32_u24 %s, %d, %s" % (vOW, OG, vG))
        A("v_add3_u32 %s, %s, %s, %s" % (vOW, vOW, vN16, t0))
    else:
        A("s_lshl_b32 %s, %s, 11" % (t0, sW))
        A("v_lshl_add_u32 %s, %s, 9, %s" % (vOW, vG, vN16))
        A("v_add_u32 %s, %s, %s" % (vOW, t0, vOW))
    A("s_lshl_b32 %s, %s, 3" % (t0, sW))
    A("v_lshl_add_u32 %s, %s, 5, %s" % (vMLW, vMLW, t0))
    if o["cq2"]:
        A("v_bfe_u32 %s, v0, 1, 4" % u1)
        A("v_lshlrev_b32 %s, 4, %s" % (u1, u1))
        A("v_mul_u32_u24 %s, %d, %s" % (u0, OH, vP))
        A("s_mul_i32 %s, %s, %d" % (t0, sW, OG))
        A("v_add3_u32 %s, %s, %s, %s" % (vOR, u0, u1, t0))
    else:
        A("v_bfe_u32 %s, v0, 1, 1" % u0)
        A("v_lshrrev_b32 %s, 2, v0" % u1)
        A("v_lshlrev_b32 %s, 4, %s" % (u1, u1))
        A("v_lshl_add_u32 %s, %s, 8, %s" % (u1, u0, u1))
        A("v_lshl_add_u32 %s, %s, 3, %s" % (u1, vP, u1))
        A("s_lshl_b32 %s, %s, 9" % (t0, sW))
        A("v_add_u32 %s, %s, %s" % (vOR, t0, u1))
    KA = 140
    A("v_and_b32 %s, 3, v0" % u0)
    A("v_lshrrev_b32 %s, 2, %s" % (u1, vN))
    A("v_lshlrev_b32 %s, 8, %s" % (u1, u1))
    A("v_lshl_add_u32 %s, %s, 10, %s" % (u0, u0, u1))
    A("v_xor_b32 %s, %s, %s" % (u1, vG, vN))
    A("v_lshl_add_u32 %s, %s, 4, %s" % (u0, u1, u0))
    A("s_lshl_b32 %s, %s, 13" % (t1, sW))
    A("v_add_u32 v%d, %s, %s" % (KA, t1, u0))
    for s_ in range(1, 4):
        A("v_xor_b32 v%d, %d, v%d" % (KA + s_, s_ << 6, KA))
    if o.get("cheap", 0) & 1:
        A("v_and_b32 %s, 0x3fff, %s" % (vWO0, vWO0)); A("v_or_b32 %s, 0x1000, %s" % (vWO0, vWO0)); A("v_mov_b32 %s, %s" % (vWO1, vWO0))
    if o.get("cheap", 0) & 2:
        A("v_and_b32 %s, 0x3fff, %s" % (vDN0, vDN0)); A("v_mov_b32 %s, %s" % (vDN1, vDN0))
    if o.get("cheap", 0) & 4:
        A("v_and_b32 %s, 0x3fff, %s" % (vV0, vV0)); A("s_mov_b32 s57, 0")
    if o["vdyn"]: A("v_mov_b32 v166, 0")
    for _ in range(o.get("delayA", 0)): A("s_nop 3")
    def issue_rest(WK_, W_):
        o_wk = o["WK"]; o["WK"] = WK_
        for i in range(nk_first, 8): kload(i)
        o["WK"] = o_wk
        if o["pretouch"] == "k": pretouch2()
        if o.get("xearly"):
            A("global_load_dword %s, %s, %s" % (vXP, vXF, sX)); issued[0] += 1
        for i in range(8 - o["vlate"]):
            ld, *step = vload(i)
            load(W_, ld)
            for t_ in step: A(t_)
    def vload(i):
        r = VR + i * 4
        seq = ["global_load_dwordx4 v[%d:%d], %s, %s %s" % (r, r + 3, vV0, sV, nt)]
        if i < 7:
            if rot(i) ^ rot(i + 1): seq.append("v_xor_b32 %s, %d, %s" % (vV0, (rot(i) ^ rot(i + 1)) << 10, vV0))
            if not perm: seq.append("v_add_u32 %s, %s, %s" % (vV0, "s57" if o.get("cheap", 0) & 4 and i % o.get("cheapm", 1) == 0 else "s42", vV0))
        return seq
    if o.get("bal"):
        C("a group that started well after others asks memory with a wider window")
        A("s_waitcnt vmcnt(%d)" % issued[0])
        A("v_sub_u32 v158, s90, v159")
        A("v_cmp_ne_u32 vcc, 0, v159")
        A("v_cmp_lt_i32 s[44:45], %d, v158" % o.get("theta", 40))
        A("s_and_b32 s62, vcc_lo, s44")
        A("s_and_b32 s62, s62, 0xff")
        A("s_bcnt1_i32_b32 s62, s62")
        A("s_cmp_ge_u32 s62, %d" % o.get("lateth", 2))
        A("s_cbranch_scc1 L_wide")
        keep = issued[0]
        issue_rest(o["WK"], o["W"])
        A("s_branch L_issued")
        LB("L_wide")
        issued[0] = keep
        issue_rest(o["WK"] + o["bal"], o["W"] + o["bal"])
        LB("L_issued")
    elif o.get("c3"):
        A("s_lshr_b32 %s, %s, 2" % (t0, sJ))
        A("s_cmp_eq_u32 %s, 3" % t0)
        A("s_cbranch_scc1 L_wide")
        keep = issued[0]
        issue_rest(o["WK"], o["W"])
        A("s_branch L_issued")
        LB("L_wide")
        issued[0] = keep
        issue_rest(o["WK"] + o["c3"], o["W"] + o.get("c3v", o["c3"]))
        LB("L_issued")
    else:
        issue_rest(o["WK"], o["W"])
    tail = []
    if o["lastfin"] != 1 and not o.get("xstag"): tail.append("global_load_dword %s, %s, %s" % (vXP, vXF, sX))
    for a in range(2):
        r = DNR + a * 4
        tail.append("global_load_dwordx4 v[%d:%d], %s, %s %s" % (r, r + 3, (vDN0, vDN1)[a], sDN, nt))
    for m in range(4):
        r = WOR + m * 4
        tail.append("global_load_dwordx4 v[%d:%d], %s, %s offset:%d %s" % (r, r + 3, (vWO0, vWO1)[m >> 1], sWO, (0, -4096)[(m & 1) == 0], nt))
    dnl = []
    if o.get("dnlate"):
        dnl = tail[1:1 + 2]
        if o["dnlate"] == 2: dnl = dnl[1:]
        for t_ in dnl: tail.remove(t_)
        tail.append(tail.pop(0))
    if isinstance(o["pretouch"], int):
        tail.insert(o["pretouch"], "global_load_dword v159, v158, %s sc1" % sWS)
    if o.get("xearly"):
        xl = [t_ for t_ in tail if vXP + "," in t_][0]; tail.remove(xl)
    taft = []
    for _ in range(o.get("tafter", 0)): taft.insert(0, tail.pop())
    tail[:0] = [vload(i) for i in range(8 - o["vlate"], 8)]
    nav = [-o["vlate"]]
    def tail_issue(n):
        for _ in range(n):
            if tail:
                t_ = tail.pop(0)
                for q_ in ([t_] if isinstance(t_, str) else t_): A(q_)
                nav[0] += 1
    sNE = "s63"
    def adaptive():
        C("a wave whose V loads have landed while it waited for q tops its window up with the weight loads")
        assert not o["vlate"] and not o["ntail0"] and not o["tsp"] and not o["tlag"] and len(tail) == 7
        A("s_getreg_b32 %s, hwreg(HW_REG_IB_STS, 0, 4)" % t0)
        A("s_sub_i32 %s, %d, %s" % (sNE, o["Wa"], t0))
        for k in range(min(7, o["Wa"])):
            A("s_cmp_le_i32 %s, %d" % (sNE, k))
            A("s_cbranch_scc1 L_topped")
            A(tail[k])
        LB("L_topped")
    A("s_waitcnt vmcnt(%d)" % (8 - o["vlate"]))
    for t in range(2):
        for s in range(4):
            r = KR + (t * 4 + s) * 4
            A("ds_read_b128 v[%d:%d], v%d offset:%d" % (r, r + 3, KA + s, L_K + t * 4096))
    tail_issue(o["ntail0"])
    stamp(2)
    A("s_waitcnt lgkmcnt(0)")
    if o["vdyn"]:
        assert o["vlate"] == 1 and "a" in o["tsp"]
        C("the last V load goes out when the window allows it or when q is there, whichever comes first")
        LB("L_vspin")
        A("ds_read_b32 v167, v166 offset:%d" % (L_FLAG + 12))
        A("s_getreg_b32 %s, hwreg(HW_REG_IB_STS, 0, 4)" % t0)
        A("s_cmp_lt_u32 %s, %d" % (t0, o["vdyn"]))
        A("s_cbranch_scc1 L_vnow")
        A("s_waitcnt lgkmcnt(0)")
        A("v_cmp_ne_u32 vcc, 1, v167")
        A("s_cbranch_vccnz L_vspin")
        A("s_branch L_vb1")
        LB("L_vnow")
        A(tail[0][0])
        LB("L_vb1")
    A("s_barrier")
    stamp(3)
    for s in range(4):
        A("ds_read_b128 v[%d:%d], %s offset:%d" % (QR + 4 * s, QR + 4 * s + 3, vQA, L_Q + s * 64))
    if "a" in o["tsp"]:
        if o["vdyn"]: A("s_cbranch_scc1 L_vdone")
        tail_issue(1)
        if o["vdyn"]: LB("L_vdone")
    if o["adap"] == "a": adaptive()
    A("s_mov_b32 s46, 0x%x" % SCALE)
    A("s_mov_b32 %s, 0xffff0000" % t1)
    A("s_mov_b32 s48, 0x%x" % LOG2E)
    for s in range(4):
        A("s_waitcnt lgkmcnt(%d)" % (3 - s))
        for t in range(2):
            mfma(SR + 4 * t, KR + (t * 4 + s) * 4, QR + 4 * s, None if s == 0 else SR + 4 * t)
    T = KR
    vH0, vH1, vFL, vTG = "v%d" % (T + 28), "v%d" % (T + 29), "v%d" % (T + 26), "v%d" % (T + 27)
    A("v_mov_b32 %s, %d" % (vFL, L_FLAG))
    A("s_lshl_b32 %s, %s, 5" % (t3, sW))
    A("v_mov_b32 v%d, %s" % (T + 31, t3))
    A("ds_read_b64 v[%d:%d], %s" % (T + 26, T + 27, vFL))
    if "b" in o["tsp"]:
        tail_issue(1); A("s_nop 1")
    elif o["adap"] == "b": adaptive()
    else: A("s_nop 2")
    C("scores: bf16(qk) -> * scale -> bf16   (the reference's two roundings)")
    for i in range(8):
        A("v_cvt_pk_bf16_f32 v%d, 0, v%d" % (SR + i, SR + i))
    for i in range(4):
        A("v_pk_mul_f32 %s, %s, s[46:47] op_sel_hi:[1,0]" % (P2(SR + 2 * i), P2(SR + 2 * i)))
    for i in range(8):
        A("v_cvt_pk_bf16_f32 v%d, 0, v%d" % (SR + i, SR + i))
    vm, vt, vl = "v%d" % (T + 4), "v%d" % (T + 6), "v%d" % (T + 5)
    A("v_max3_f32 %s, v%d, v%d, v%d" % (vm, SR, SR + 1, SR + 2))
    A("v_max3_f32 %s, v%d, v%d, v%d" % (vt, SR + 3, SR + 4, SR + 5))
    A("v_max3_f32 %s, %s, v%d, v%d" % (vm, vm, SR + 6, SR + 7))
    A("v_max_f32 %s, %s, %s" % (vm, vm, vt))
    allred(vm, vt, "v_max_f32", 16)
    if "c" in o["tsp"]: tail_issue(1)
    if o["adap"] == "c": adaptive()
    allred(vm, vt, "v_max_f32", 32)
    A("v_mul_f32 %s, s48, %s" % (vm, vm))
    for i in range(4):
        A("v_pk_fma_f32 %s, %s, s[48:49], %s op_sel_hi:[1,0,0] neg_lo:[0,0,1] neg_hi:[0,0,1]" % (P2(SR + 2 * i), P2(SR + 2 * i), P2(T + 4)))
    for i in range(8):
        A("v_exp_f32 v%d, v%d" % (SR + i, SR + i))
    if "d" in o["tsp"]: tail_issue(1)
    for i in range(4):
        A("v_cvt_pk_bf16_f32 v%d, v%d, v%d" % (T + 8 + i, SR + 2 * i, SR + 2 * i + 1))
    for i in range(8):
        for r in range(2):
            A("v_perm_b32 v%d, v%d, v%d, v%d" % (PA + 2 * i + r, T + 8 + (i >> 1), T + 8 + (i >> 1), SEL + 2 * (i & 1) + r))
    stamp(4)
    O0, O1, Y = QR, QR + 4, QR + 8
    def pv(i):
        assert 7 - i + nav[0] >= 0
        A("s_waitcnt vmcnt(%d)" % (7 - i + nav[0]))
        if o["adap"] and i < min(7, o["Wa"]):
            A("s_cmp_gt_i32 %s, %d" % (sNE, i))
            A("s_cbranch_scc1 L_had%d" % i)
            tail_issue(1)
            LB("L_had%d" % i)
        elif i >= o["tlag"]: tail_issue((2 if i < o.get("tdbl", 0) else 1) if i < o.get("tlast", 7) else 9)
        vr = VR + 4 * i
        mfma16(O0, PA + 2 * i, vr, None if i == 0 else O0)
        mfma16(O1, PA + 2 * i, vr + 2, None if i == 0 else O1)
    A("v_pk_add_f32 %s, %s, %s" % (P2(SR), P2(SR), P2(SR + 2)))
    A("v_pk_add_f32 %s, %s, %s" % (P2(SR + 4), P2(SR + 4), P2(SR + 6)))
    A("v_pk_add_f32 %s, %s, %s" % (P2(SR), P2(SR), P2(SR + 4)))
    A("v_add_f32 %s, v%d, v%d" % (vl, SR, SR + 1))
    allred(vl, vt, "v_add_f32", 16)
    allred(vl, vt, "v_add_f32", 32)
    A("ds_write_b64 %s, v[%d:%d] offset:%d" % (vMLW, T + 4, T + 5, L_ML))
    A("s_waitcnt lgkmcnt(0)")
    A("v_readfirstlane_b32 %s, %s" % (sFAST, vFL))
    A("v_readfirstlane_b32 %s, %s" % (sTAG, vTG))
    SO = 4
    def soffs():
        A("s_and_b32 %s, %s, 0x2000" % (t0, sFAST))
        A("v_add_u32 %s, %s, %s" % (vL3, t0, vL3))
        A("s_or_b32 s3, s3, %s" % t0)
        for k in range(1, 8): A("s_xor_b32 s%d, s3, 0x%x" % (SO + k - 1, k << 9))
    nshot = [0]
    SD = [12, 20, 44, 64, 72, 80, 88] if not o["stamps"] else None
    def sshot(bit):
        if o["lastfin"] < 2 or not (o.get("sshot", 2) & bit): return
        nshot[0] += 1
        A("s_bitcmp0_b32 %s, 1" % sFAST)
        A("s_cbranch_scc1 L_noshot%d" % nshot[0])
        for k in range(1, 8):
            if o["lastfin"] == 2: A("s_load_dword s%d, %s, s%d offset:12 %s" % (12 + k, sWS, SO + k - 1, o.get("sfl", "glc")))
            else: A("s_load_dwordx8 s[%d:%d], %s, s%d glc" % (SD[k - 1], SD[k - 1] + 7, sWS, SO + k - 1))
        LB("L_noshot%d" % nshot[0])
    HA = T + 16
    ML = T
    OB = T + 8
    G2 = SR
    vM, vLs = "v124", "v125"
    C("P V; each step's wait also clocks one load of x / w_down / wo")
    for i in range(o["b2"]): pv(i)
    if o.get("dbgb2"): A("s_memrealtime s[70:71]")
    A("s_barrier")
    if o.get("dbgb2"): A("s_memrealtime s[72:73]")
    A("ds_read_b128 v[%d:%d], v%d offset:%d" % (ML, ML + 3, T + 31, L_ML))
    A("ds_read_b128 v[%d:%d], v%d offset:%d" % (ML + 4, ML + 7, T + 31, L_ML + 16))
    if not o["hlate"]:
        A("ds_read_b32 %s, %s offset:%d" % (vH0, vHA, L_H))
        A("ds_read_b32 %s, %s offset:%d" % (vH1, vHA, L_H + 16))
    avote = o["vote"] and not o["lastfin"]
    if avote:
        A("v_mov_b32 v%d, 0" % (T + 30))
        A("ds_read_b32 v%d, v%d offset:%d" % (T + 30, T + 30, L_FLAG + 8))
    if not o["cq2"]:
        A("s_mov_b32 s54, 0x55555555")
        A("s_mov_b32 s55, 0x55555555")
    A("v_mov_b32 v%d, %s" % (G2 + 3, sTAG))
    A("s_waitcnt lgkmcnt(%d)" % ((0 if o["hlate"] else 2) + (1 if avote else 0)))
    A("v_max3_f32 %s, v%d, v%d, v%d" % (vM, ML, ML + 2, ML + 4))
    A("v_max_f32 %s, %s, v%d" % (vM, vM, ML + 6))
    for w_ in range(4):
        A("v_sub_f32 v%d, v%d, %s" % (ML + 2 * w_, ML + 2 * w_, vM))
    for w_ in range(4):
        A("v_exp_f32 v%d, v%d" % (ML + 2 * w_, ML + 2 * w_))
    A("s_waitcnt lgkmcnt(0)")
    A("v_mul_f32 %s, v%d, v%d" % (vLs, ML, ML + 1))
    for w_ in range(1, 4):
        A("v_fmac_f32 %s, v%d, v%d" % (vLs, ML + 2 * w_, ML + 2 * w_ + 1))
    def h_operands():
        for a in range(2):
            for r in range(4):
                A("v_and_b32 v%d, %s, v%d" % (HA + 4 * a + r, (vH0, vH1)[a], MK + r))
    if o["zw"]:
        A("v_lshlrev_b32 v166, 3, v0")
        A("v_mov_b32 v%d, 0" % HA)
        A("v_mov_b32 v%d, 0" % (HA + 1))
        A("ds_write_b64 v166, v[%d:%d] offset:%d" % (HA, HA + 1, L_Q))
    A("v_log_f32 v%d, %s" % (G2 + 2, vLs))
    A("v_rcp_f32 %s, %s" % (vLs, vLs))
    if not o["hlate"]: h_operands()
    else: A("s_nop 0")
    if avote: A("v_add_u32 %s, v%d, %s" % (vL3, T + 30, vL3))
    A("v_add_f32 v%d, v%d, %s" % (G2 + 2, G2 + 2, vM))
    for w_ in range(4):
        A("v_mul_f32 v%d, v%d, %s" % (ML + 2 * w_, ML + 2 * w_, vLs))
    for i in range(o["b2"], 8): pv(i)
    stamp(5)
    if o.get("nosync"):
        A("s_waitcnt vmcnt(0)")
        stamp(6)
        A("s_branch L_done")
    C("merge the four waves; wave w publishes head w: {o, o, log2 sum, tag}")
    A("s_nop 6")
    A("ds_write_b128 %s, v[%d:%d] offset:%d" % (vOW, O0, O0 + 3, L_O))
    A("ds_write_b128 %s, v[%d:%d] offset:%d" % (vOW, O1, O1 + 3, L_O + OH))
    A("s_waitcnt lgkmcnt(0)")
    A("s_barrier")
    if o["cq2"]:
        OB4, AC = VR, VR + 16
        A("s_mov_b32 exec_hi, 0")
        for w_ in range(4):
            A("ds_read_b128 v[%d:%d], %s offset:%d" % (OB4 + 4 * w_, OB4 + 4 * w_ + 3, vOR, L_O + w_ * OWV))
        A("s_bitcmp0_b32 %s, 0" % sFAST)
        for w_ in range(4):
            A("s_waitcnt lgkmcnt(%d)" % (3 - w_))
            for hf in range(2):
                if w_ == 0: A("v_pk_mul_f32 %s, %s, %s op_sel_hi:[1,0]" % (P2(AC + 2 * hf), P2(OB4 + 2 * hf), P2(ML)))
                else: A("v_pk_fma_f32 %s, %s, %s, %s op_sel_hi:[1,0,1]" % (P2(AC + 2 * hf), P2(OB4 + 4 * w_ + 2 * hf), P2(ML + 2 * w_), P2(AC + 2 * hf)))
    else:
        for w_ in range(4):
            A("ds_read_b64 v[%d:%d], %s offset:%d" % (OB + 2 * w_, OB + 2 * w_ + 1, vOR, L_O + w_ * 2048))
        A("s_bitcmp0_b32 %s, 0" % sFAST)
        for w_ in range(4):
            A("s_waitcnt lgkmcnt(%d)" % (3 - w_))
            op = "v_mul_f32" if w_ == 0 else "v_fmac_f32"
            A("%s v%d, v%d, v%d" % (op, G2, ML + 2 * w_, OB + 2 * w_))
            A("%s v%d, v%d, v%d" % (op, G2 + 1, ML + 2 * w_, OB + 2 * w_ + 1))
    tails = []
    def publish(addr, g, name):
        A("s_cbranch_scc1 L_slow_%s" % name)
        A("global_store_dwordx4 %s, v[%d:%d], %s %s" % (addr, g, g + 3, sWS, o.get("stfl", "")))
        LB("L_back_%s" % name)
        tails.append((name, addr, g))
    if o["cq2"]:
        A("v_cvt_pk_bf16_f32 v%d, v%d, v%d" % (G2, AC, AC + 1))
        A("v_cvt_pk_bf16_f32 v%d, v%d, v%d" % (G2 + 1, AC + 2, AC + 3))
    else:
        A("v_cvt_pk_bf16_f32 v%d, v%d, v%d" % (G2, G2, G2 + 1))
        A("s_nop 1")
        A("v_mov_b32_dpp v%d, v%d quad_perm:[1,1,3,3] %s" % (G2 + 1, G2, DPP))
        A("s_mov_b64 exec, s[54:55]")
    publish(vS2, G2, "h2")
    A("s_mov_b64 exec, -1")
    stamp(6)
    P = T
    def ask2(k):
        for i in range(2):
            A("global_load_dwordx4 v[%d:%d], %s, %s offset:%d sc1" % (VR + 8 * k + 4 * i, VR + 8 * k + 4 * i + 3, vL2, sWS, i * 1024))
    C("hand-off 2: 32 partial outputs for this workgroup's 16 rows of wo")
    if o["g2"]:
        A("s_cmp_lg_u32 %s, %d" % (sW, o["gw2"]))
        A("s_cselect_b64 exec, 0, -1")
        ask2(0)
        A("s_mov_b64 exec, -1")
    else:
        for i in range(2):
            A("global_load_dwordx4 v[%d:%d], %s, %s offset:%d %s" % (P + 4 * i, P + 4 * i + 3, vL2, sWS, i * 1024, o.get("p2fl", "sc1")))
    for t_ in dnl: A(t_)
    if o["hlate"]:
        A("s_barrier")
        A("ds_read_b32 %s, %s offset:%d" % (vH0, vHA, L_H))
        A("ds_read_b32 %s, %s offset:%d" % (vH1, vHA, L_H + 16))
    A("s_mov_b32 %s, %d" % (sCNT, o["spinmax"]))
    vTAG = "v127"
    sT2 = sTAG
    if o["reuse"]:
        sT2 = "s62"
        A("s_not_b32 %s, %s" % (t0, sTAG))
        A("s_lshl_b32 %s, %s, 24" % (t0, t0))
        A("s_and_b32 s62, %s, 0xffffff" % sTAG)
        A("s_or_b32 s62, s62, %s" % t0)
    A("v_mov_b32 %s, %s" % (vTAG, sT2))
    for k in range(4):
        A("s_mov_b32 s%d, 0x%x" % (56 + k, 0x07060500 | k))
        A("s_bfe_u32 s%d, %s, 0x%x" % (60 + k if k < 2 else 50 + k, sT2, 0x80000 | (8 * k)))
    TB = ["s60", "s61", "s52", "s53"]
    if o["hlate"]:
        A("s_waitcnt lgkmcnt(0)")
        h_operands()
    ndn_early = 2 - len(dnl)
    if o["lastfin"] >= 2: soffs()
    if o["g2"]:
        NP2 = o["g2"]
        if o["zw"]:
            A("v_lshlrev_b32 v126, 3, %s" % vHA)
            A("v_and_b32 v125, 3, v0")
            A("v_lshl_add_u32 v165, v125, 7, v126")
            A("v_and_b32 v125, 15, v0")
            A("v_cmp_gt_u32 vcc, 8, v125")
            A("v_lshlrev_b32 v124, 1, v125")
            A("v_sub_u32 v124, 14, v124")
            A("v_cndmask_b32 v124, 16, v124, vcc")
            A("v_add_u32 v126, v126, v124")
        else:
            A("v_lshlrev_b32 v126, 2, %s" % vHA)
            A("v_and_b32 v125, 3, v0")
            A("v_lshl_add_u32 v165, v125, 2, v126")
        A("s_cmp_lg_u32 %s, %d" % (sW, o["gw2"]))
        A("s_cbranch_scc1 L_wait_a")
        A("s_waitcnt vmcnt(2)")
        for k in range(1, NP2): ask2(k)
        for a in range(2):
            mfma(Y, HA + 4 * a, DNR + 4 * a, None if a == 0 else Y)
        LB("L_poll2b")
        for k in range(NP2):
            for i in range(2):
                a_ = VR + 8 * k + 4 * i
                A("s_waitcnt vmcnt(%d)" % (2 * NP2 - 1 - i))
                A("v_cmp_ne_u32 %s, %s, v%d" % (("vcc", "s[44:45]")[i], sTAG, a_ + 3))
                A("v_pk_mov_b32 %s, %s, %s op_sel:[0,1]" % (P2(P + 4 * i), P2(a_), P2(a_)))
                A("v_mov_b32 v%d, v%d" % (P + 4 * i + 2, a_ + 2))
            A("v_max_f32 %s, v%d, v%d" % (vM, VR + 8 * k + 2, VR + 8 * k + 6))
            A("s_or_b64 vcc, vcc, s[44:45]")
            A("s_and_b64 exec, exec, vcc")
            A("s_cbranch_scc0 L_got2b")
            ask2(k)
        A("s_sub_u32 %s, %s, 1" % (sCNT, sCNT))
        A("s_cbranch_scc0 L_poll2b")
        A("s_endpgm")
        LB("L_wait_a")
        A("s_waitcnt vmcnt(0)")
        for a in range(2):
            mfma(Y, HA + 4 * a, DNR + 4 * a, None if a == 0 else Y)
        A("s_barrier")
        if o["zw"]:
            for m in range(4):
                A("ds_read_b128 v[%d:%d], v126 offset:%d" % (T + 4 * m, T + 4 * m + 3, L_Q + 128 * m))
            A("s_bitcmp0_b32 %s, 0" % sFAST)
            for m in range(3):
                A("s_waitcnt lgkmcnt(%d)" % (3 - m))
                mfma(Y, T + 4 * m, WOR + 4 * m, Y)
            A("s_waitcnt lgkmcnt(0)")
            A("s_branch L_last_mfma2")
        else:
            A("ds_read_b128 v[%d:%d], v126 offset:%d" % (T + 24, T + 27, L_A))
            A("s_bitcmp0_b32 %s, 0" % sFAST)
            A("s_waitcnt lgkmcnt(0)")
            for m in range(4):
                for r in range(4):
                    A("v_and_b32 v%d, v%d, v%d" % (T + 4 * m + r, T + 24 + m, MK + r))
                if m > 0: mfma(Y, T + 4 * (m - 1), WOR + 4 * (m - 1), Y)
        if not o["zw"]: A("s_branch L_last_mfma")
        LB("L_got2b")
        A("s_mov_b64 exec, -1")
        A("v_max_f32_dpp %s, %s, %s row_ror:4 %s" % (vM, vM, vM, DPP))
        n_g2 = len(L)
    else:
        if o.get("mockx"): ndn_early = 0
        else: A("s_waitcnt vmcnt(%d)" % (3 + len(dnl)))
        if o.get("dbgwo"): A("s_memrealtime s[68:69]")
        for a in range(ndn_early):
            mfma(Y, HA + 4 * a, DNR + 4 * a, None if a == 0 else Y)
        if dnl:
            A("s_waitcnt vmcnt(%d)" % len(dnl))
            A("s_branch L_chk2b")
        else:
            A("s_branch L_chk2")
    LB("L_poll2")
    MS = ["s[44:45]", "s[46:47]"]
    if o["np2"]:
        C("still waiting for some producers: several asks in flight, only for the lanes whose tags were missing")
        NP2 = o["np2"]
        A("s_mov_b64 exec, vcc")
        for k in range(NP2): ask2(k)
        LB("L_poll2b")
        for k in range(NP2):
            for i in range(2):
                a_ = VR + 8 * k + 4 * i
                A("s_waitcnt vmcnt(%d)" % (2 * NP2 - 1 - i))
                A("v_cmp_ne_u32 %s, %s, v%d" % (("vcc", MS[0])[i], sTAG, a_ + 3))
                A("v_pk_mov_b32 %s, %s, %s op_sel:[0,1]" % (P2(P + 4 * i), P2(a_), P2(a_)))
                A("v_mov_b32 v%d, v%d" % (P + 4 * i + 2, a_ + 2))
            A("s_or_b64 vcc, vcc, %s" % MS[0])
            A("s_and_b64 exec, exec, vcc")
            A("s_cbranch_scc0 L_got2b")
            ask2(k)
        A("s_sub_u32 %s, %s, 1" % (sCNT, sCNT))
        A("s_cbranch_scc0 L_poll2b")
        A("s_endpgm")
        LB("L_got2b")
        A("s_mov_b64 exec, -1")
        A("v_max_f32 %s, v%d, v%d" % (vM, P + 2, P + 6))
        A("s_nop 1")
        A("v_max_f32_dpp %s, %s, %s row_ror:4 %s" % (vM, vM, vM, DPP))
        A("s_nop 0")
        A("s_branch L_got2")
    else:
        for i in range(2):
            if o["mask2"]: A("s_mov_b64 exec, %s" % MS[i])
            A("global_load_dwordx4 v[%d:%d], %s, %s offset:%d sc1" % (P + 4 * i, P + 4 * i + 3, vL2, sWS, i * 1024))
        if o["mask2"]: A("s_mov_b64 exec, -1")
        A("s_sub_u32 %s, %s, 1" % (sCNT, sCNT))
        A("s_cbranch_scc1 L_end")
    LB("L_chk2")
    A("s_waitcnt vmcnt(0)")
    LB("L_chk2b")
    A("v_max_f32 %s, v%d, v%d" % (vM, P + 2, P + 6))
    for i in range(2):
        A("v_cmp_ne_u32 %s, %s, v%d" % (MS[i], sTAG, P + 4 * i + 3))
    A("v_max_f32_dpp %s, %s, %s row_ror:4 %s" % (vM, vM, vM, DPP))
    A("s_or_b64 vcc, %s, %s" % (MS[0], MS[1]))
    A("s_cbranch_scc1 L_poll2")
    if o["np2"]: LB("L_got2")
    if o["g2"]: del L[n_g2:]
    stamp(7)
    if o.get("tpos", "g") == "g":
        for t_ in taft: A(t_)
    sshot(1)
    U = T + 8
    def unp(i, k):
        if k & 1: A("v_and_b32 v%d, %s, v%d" % (U + 4 * i + k, t1, P + 4 * i + (k >> 1)))
        else: A("v_lshlrev_b32 v%d, 16, v%d" % (U + 4 * i + k, P + 4 * i + (k >> 1)))
    vt2 = "v126"
    w0, w1 = "v120", "v122"
    den, tA, tB = "v126", "v124", "v123"
    if o["g2"]:
        unp(0, 0); unp(0, 1)
        A("v_max_f32_dpp %s, %s, %s row_ror:8 %s" % (vM, vM, vM, DPP))
        A("v_mov_b32 %s, %s" % (vt2, vM))
        unp(0, 2); unp(0, 3)
        A("v_permlane16_swap_b32 %s, %s" % (vt2, vM))
        A("v_max_f32 %s, %s, %s" % (vM, vM, vt2))
        A("v_mov_b32 %s, %s" % (vt2, vM))
        unp(1, 0); unp(1, 1)
        A("v_permlane32_swap_b32 %s, %s" % (vt2, vM))
        A("v_max_f32 %s, %s, %s" % (vM, vM, vt2))
        A("v_sub_f32 %s, v%d, %s" % (w0, P + 2, vM))
        A("v_sub_f32 %s, v%d, %s" % (w1, P + 6, vM))
        A("v_exp_f32 %s, %s" % (w0, w0))
        A("v_exp_f32 %s, %s" % (w1, w1))
        unp(1, 2)
        A("v_add_f32 %s, %s, %s" % (den, w0, w1))
        unp(1, 3)
        A("v_pk_mul_f32 %s, %s, v[120:121] op_sel_hi:[1,0]" % (P2(U), P2(U)))
        A("v_add_f32_dpp %s, %s, %s row_ror:4 %s" % (den, den, den, DPP))
        A("v_pk_mul_f32 %s, %s, v[120:121] op_sel_hi:[1,0]" % (P2(U + 2), P2(U + 2)))
        A("v_pk_fma_f32 %s, %s, v[122:123], %s op_sel_hi:[1,0,1]" % (P2(U), P2(U + 4), P2(U)))
        A("v_add_f32_dpp %s, %s, %s row_ror:8 %s" % (den, den, den, DPP))
        A("v_pk_fma_f32 %s, %s, v[122:123], %s op_sel_hi:[1,0,1]" % (P2(U + 2), P2(U + 6), P2(U + 2)))
    else:
        A("v_max_f32_dpp %s, %s, %s row_ror:8 %s" % (vM, vM, vM, DPP))
        A("v_mov_b32 %s, %s" % (vt2, vM))
        unp(0, 0); unp(0, 1)
        A("v_permlane16_swap_b32 %s, %s" % (vt2, vM))
        A("v_max_f32 %s, %s, %s" % (vM, vM, vt2))
        A("v_mov_b32 %s, %s" % (vt2, vM))
        unp(0, 2); unp(0, 3)
        A("v_permlane32_swap_b32 %s, %s" % (vt2, vM))
        A("v_max_f32 %s, %s, %s" % (vM, vM, vt2))
        w0, w1 = "v120", "v122"
        A("v_sub_f32 %s, v%d, %s" % (w0, P + 2, vM))
        A("v_sub_f32 %s, v%d, %s" % (w1, P + 6, vM))
        A("v_exp_f32 %s, %s" % (w0, w0))
        A("v_exp_f32 %s, %s" % (w1, w1))
        unp(1, 0)
        den, tA, tB = "v126", "v124", "v123"
        A("v_add_f32 %s, %s, %s" % (den, w0, w1))
        unp(1, 1); unp(1, 2)
        A("v_add_f32_dpp %s, %s, %s row_ror:4 %s" % (den, den, den, DPP))
        unp(1, 3)
        A("v_pk_mul_f32 %s, %s, v[120:121] op_sel_hi:[1,0]" % (P2(U), P2(U)))
        A("v_add_f32_dpp %s, %s, %s row_ror:8 %s" % (den, den, den, DPP))
        A("v_pk_mul_f32 %s, %s, v[120:121] op_sel_hi:[1,0]" % (P2(U + 2), P2(U + 2)))
        A("v_pk_fma_f32 %s, %s, v[122:123], %s op_sel_hi:[1,0,1]" % (P2(U), P2(U + 4), P2(U)))
        A("v_pk_fma_f32 %s, %s, v[122:123], %s op_sel_hi:[1,0,1]" % (P2(U + 2), P2(U + 6), P2(U + 2)))
    A("v_mov_b32 %s, %s" % (tA, den))
    A("s_bitcmp0_b32 %s, 0" % sFAST)
    A("v_permlane32_swap_b32 v%d, v%d" % (U, U + 2))
    A("v_permlane32_swap_b32 v%d, v%d" % (U + 1, U + 3))
    A("v_permlane32_swap_b32 %s, %s" % (tA, den))
    A("v_pk_add_f32 %s, %s, %s" % (P2(U), P2(U), P2(U + 2)))
    A("v_add_f32 %s, %s, %s" % (den, den, tA))
    A("s_mov_b32 %s, %d" % (sCNT, o["spinmax"]))
    A("v_permlane16_swap_b32 v%d, v%d" % (U, U + 1))
    A("v_mov_b32 %s, %s" % (tA, den))
    A("v_add_f32 v%d, v%d, v%d" % (U, U, U + 1))
    A("s_nop 0")
    A("v_permlane16_swap_b32 %s, %s" % (tA, den))
    A("v_add_f32_dpp v%d, v%d, v%d row_ror:4 %s" % (U, U, U, DPP))
    A("v_add_f32 %s, %s, %s" % (den, den, tA))
    A("v_rcp_f32 %s, %s" % (den, den))
    A("v_add_f32_dpp v%d, v%d, v%d row_ror:8 %s" % (U, U, U, DPP))
    a0 = "v125"
    A("v_mul_f32 %s, v%d, %s" % (a0, U, den))
    A("v_cvt_pk_bf16_f32 %s, %s, %s" % (a0, a0, a0))
    if o.get("mockx"):
        GX, PXS = 120, VR
        A("v_mov_b32 v%d, %s" % (GX + 3, sTAG))
        A("s_cmp_gt_u32 %s, 1" % sW)
        A("v_mov_b32_dpp v%d, %s quad_perm:[0,0,2,2] %s" % (GX, a0, DPP))
        A("v_mov_b32_dpp v%d, %s quad_perm:[1,1,3,3] %s" % (GX + 1, a0, DPP))
        A("s_cselect_b64 exec, 0, 15")
        A("global_store_dwordx4 %s, v[%d:%d], %s sc1" % (vS3, GX, GX + 3, sWS))
        A("s_mov_b64 exec, -1")
        stamp(1)
        if o.get("tpos") == "x":
            for t_ in taft: A(t_)
        A("s_mov_b64 exec, 0xff")
        LB("L_pollx")
        A("global_load_dwordx4 v[%d:%d], %s, %s sc1" % (PXS, PXS + 3, vL3, sWS))
        A("s_sub_u32 %s, %s, 1" % (sCNT, sCNT))
        A("s_cbranch_scc1 L_end")
        A("s_waitcnt vmcnt(0)")
        A("v_cmp_ne_u32 vcc, %s, v%d" % (sTAG, PXS + 3))
        A("v_mov_b32 %s, v%d" % (a0, PXS))
        A("s_and_b64 exec, exec, vcc")
        A("s_cbranch_scc1 L_pollx")
        A("s_mov_b64 exec, -1")
        stamp(10)
        A("s_bitcmp0_b32 %s, 0" % sFAST)
        for a in range(2):
            mfma(Y, HA + 4 * a, DNR + 4 * a, None if a == 0 else Y)
        ndn_early = 2
    if o["g2"]:
        if o.get("g2x"):
            A("s_mov_b32 exec_lo, 0x000f000f")
            A("s_mov_b32 exec_hi, 0x000f000f")
        if o["zw"]: A("ds_write_b16 v165, %s offset:%d" % (a0, L_Q + 14))
        else: A("ds_write_b32 v165, %s offset:%d" % (a0, L_A))
        if o.get("g2x"): A("s_mov_b64 exec, -1")
        A("s_waitcnt lgkmcnt(0)")
        A("s_barrier")
    else:
        A("s_nop 1")
    WA = T
    for m in range(4):
        for r in range(4):
            A("v_and_b32_dpp v%d, %s, v%d row_newbcast:%d %s" % (WA + 4 * m + r, a0, MK + r, m, DPP))
        if m > 0:
            mfma(Y, WA + 4 * (m - 1), WOR + 4 * (m - 1), Y if (m > 1 or ndn_early) else None)
    if dnl:
        A("s_waitcnt vmcnt(0)")
        for a in range(ndn_early, 2):
            mfma(Y, HA + 4 * a, DNR + 4 * a, Y)
    else:
        if o["g2"]: LB("L_last_mfma")
        A("s_nop 1")
        if o["zw"]: LB("L_last_mfma2")
    mfma(Y, WA + 12, WOR + 12, Y)
    A("s_mov_b32 exec_hi, 0")
    if o["reuse"] and not o["g2"]:
        A("s_barrier")
        A("s_nop 5")
    else:
        A("s_nop 6")
    for k in range(4):
        A("v_perm_b32 v%d, v%d, %s, s%d" % (Y + k, Y + k, vTAG, 56 + k))
    publish(vS25, Y, "h25")
    stamp(8)
    sshot(2)
    def tail_g25():
        PS = T + 16
        C("hand-off 3: one wave sums the group's 32 partial results for 16 columns")
        A("s_cmp_lg_u32 %s, %d" % (sW, o["gw"]))
        A("s_cbranch_scc1 L_done")
        A("s_mov_b64 exec, -1")
        if o.get("ack25") == 1: A("s_waitcnt vmcnt(0)")
        NP = o["np25"]
        PK = [PS, PS + 8, WOR, WOR + 8, DNR]
        def ask(k):
            A("global_load_dwordx4 v[%d:%d], %s, %s sc1" % (PK[k], PK[k] + 3, vL25, sWS))
            A("global_load_dwordx4 v[%d:%d], v164, %s sc1" % (PK[k] + 4, PK[k] + 7, sWS))
        def look(k):
            A("s_waitcnt vmcnt(%d)" % (2 * NP - 1))
            for q in range(4): A("v_xor_b32 v%d, %s, v%d" % (P + q, TB[q], PK[k] + q))
            A("v_or3_b32 %s, v%d, v%d, v%d" % (tA, P, P + 1, P + 2))
            A("s_waitcnt vmcnt(%d)" % (2 * NP - 2))
            for q in range(4): A("v_xor_b32 v%d, %s, v%d" % (P + 4 + q, TB[q], PK[k] + 4 + q))
            A("v_or3_b32 %s, %s, v%d, v%d" % (tA, tA, P + 3, P + 4))
            A("v_or3_b32 %s, %s, v%d, v%d" % (tA, tA, P + 5, P + 6))
            A("v_or_b32_sdwa %s, %s, v%d dst_sel:DWORD dst_unused:UNUSED_PAD src0_sel:BYTE_0 src1_sel:BYTE_0" % (tA, tA, P + 7))
            A("v_cmp_ne_u32 vcc, 0, %s" % tA)
            if o["t3"]:
                A("v_pk_add_f32 %s, %s, %s" % (P2(P), P2(P), P2(P + 4)))
                A("v_pk_add_f32 %s, %s, %s" % (P2(P + 2), P2(P + 2), P2(P + 6)))
            A("s_and_b64 exec, exec, vcc")
        def masks():
            if o["t3"]:
                A("s_mov_b32 s44, 0xff")
                A("s_mov_b32 s45, s44")
                A("s_lshr_b32 s41, %s, 2" % sJ)
            A("s_lshl_b32 s46, 0x01010101, %s" % sH)
            A("s_not_b32 s46, s46")
            A("s_mov_b32 s47, s46")
            if o["cq25"]:
                A("s_lshr_b32 s41, %s, 2" % sJ)
                A("s_and_b32 s41, s41, 6")
                A("s_bfe_u32 %s, %s, 0x10001" % (t0, sJ))
                A("s_or_b32 s41, s41, %s" % t0)
        if NP == 1:
            masks()
            LB("L_poll25")
            ask(0)
            A("s_sub_u32 %s, %s, 1" % (sCNT, sCNT))
            A("s_cbranch_scc1 L_end")
            look(0)
            A("s_cbranch_scc1 L_poll25")
        else:
            pre = o.get("pre25", 1)
            for k in range(NP):
                if k == pre:
                    if o.get("ack25") == 2: A("s_waitcnt vmcnt(%d)" % (2 * pre))
                    for _ in range(o.get("stag25", 0)): A("s_nop 7")
                ask(k)
            masks()
            LB("L_poll25")
            for k in range(NP):
                look(k)
                A("s_cbranch_scc0 L_got25")
                ask(k)
            A("s_sub_u32 %s, %s, 1" % (sCNT, sCNT))
            A("s_cbranch_scc0 L_poll25")
            A("s_endpgm")
            LB("L_got25")
        A("s_mov_b64 exec, -1")
        stamp(9)
        if o.get("ampm"): A("s_memrealtime s[86:87]")
        x_, y_ = "v%d" % P, "v%d" % (P + 1)
        def rors():
            for rot_ in (4, 8):
                A("v_add_f32_dpp %s, %s, %s row_ror:%d %s" % (x_, x_, x_, rot_, DPP))
                A("v_add_f32_dpp %s, %s, %s row_ror:%d %s" % (y_, y_, y_, rot_, DPP))
                if rot_ == 4: A("s_nop 0")
        if o["t3"]:
            assert o["finhi"] and not o["cq25"] and o.get("finx") is None
            A("v_permlane32_swap_b32 v%d, v%d" % (P, P + 2))
            A("v_permlane32_swap_b32 v%d, v%d" % (P + 1, P + 3))
            A("v_pk_add_f32 %s, %s, %s" % (P2(P + 4), P2(P), P2(P + 2)))
            A("v_pk_add_f32 %s, %s, %s" % (P2(P), P2(P), P2(P + 2)))
            A("v_mov_b32 v%d, %s" % (P + 3, sTAG))
            A("s_cmp_eq_u32 s41, %s" % sH)
            A("v_permlane16_swap_b32 v%d, %s" % (P + 4, x_))
            A("v_permlane16_swap_b32 v%d, %s" % (P + 5, y_))
            A("v_pk_add_f32 %s, %s, %s" % (P2(P), P2(P), P2(P + 4)))
            A("s_cbranch_scc1 L_final")
            A("s_nop 0")
            rors()
        else:
            A("v_pk_add_f32 %s, %s, %s" % (P2(P), P2(P), P2(P + 4)))
            A("v_pk_add_f32 %s, %s, %s" % (P2(P + 2), P2(P + 2), P2(P + 6)))
            if o["cq25"]:
                A("s_cmp_eq_u32 s41, %s" % sH)
                A("s_nop 0")
            elif o.get("finx") is not None:
                A("s_cmp_eq_u32 %s, %d" % (sH, o["finx"]))
                A("s_nop 0")
            else:
                A("s_lshr_b32 %s, %s, 2" % (t0, sJ) if o["finhi"] else "s_and_b32 %s, %s, 7" % (t0, sJ))
                A("s_cmp_eq_u32 %s, %s" % (t0, sH))
            A("v_permlane32_swap_b32 v%d, v%d" % (P, P + 2))
            A("v_permlane32_swap_b32 v%d, v%d" % (P + 1, P + 3))
            A("v_pk_add_f32 %s, %s, %s" % (P2(P), P2(P), P2(P + 2)))
            A("v_mov_b32 v%d, %s" % (P + 3, sTAG))
            A("s_mov_b32 s44, 0xff")
            for rot_ in (4, 8):
                A("v_add_f32_dpp %s, %s, %s row_ror:%d %s" % (x_, x_, x_, rot_, DPP))
                A("v_add_f32_dpp %s, %s, %s row_ror:%d %s" % (y_, y_, y_, rot_, DPP))
                if rot_ == 4: A("s_mov_b32 s45, s44")
            A("v_mov_b32 v%d, %s" % (P + 4, x_))
            A("v_mov_b32 v%d, %s" % (P + 5, y_))
            A("s_nop 0")
            A("v_permlane16_swap_b32 v%d, %s" % (P + 4, x_))
            A("v_permlane16_swap_b32 v%d, %s" % (P + 5, y_))
            A("v_pk_add_f32 %s, %s, %s" % (P2(P), P2(P), P2(P + 4)))
            A("s_cbranch_scc1 L_final")
        A("s_mov_b64 exec, s[44:45]")
        A("global_store_dwordx4 %s, v[%d:%d], %s sc1" % (vS3, P, P + 3, sWS))
        if o.get("clean"):
            C("the slots just read are dead: push them out of the cache now rather than at the end of the launch")
            A("s_mov_b64 exec, -1")
            for q in range(4): A("v_mov_b32 v%d, %s" % (P + 8 + q, sTAG))
            if o["clean"] & 2:
                A("s_bitcmp1_b32 %s, 0" % sJ)
                A("s_cbranch_scc1 L_done")
            if o["clean"] & 4:
                A("s_mov_b32 exec_lo, 0x11111111")
                A("s_mov_b32 exec_hi, 0x11111111")
            A("global_store_dwordx4 %s, v[%d:%d], %s sc1" % (vL25, P + 8, P + 11, sWS))
            A("global_store_dwordx4 v164, v[%d:%d], %s sc1" % (P + 8, P + 11, sWS))
        A("s_branch L_done")
        LB("L_final")
        C("hand-off 4: lane = (pair, quad, group); the four workgroups that finish one output line sit in one group")
        if o.get("stfin"): stamp(1)
        if o.get("xstag"): A("global_load_dword %s, %s, %s nt" % (vXP, vXF, sX))
        A("s_mov_b64 exec, s[46:47]")
        NP = o["np3"]
        PS = VR
        X = P + 4
        A("global_load_dwordx4 v[%d:%d], %s, %s sc1" % (PS, PS + 3, vL3, sWS))
        A("s_mov_b64 exec, -1")
        if o["t3"]:
            rors()
            A("s_nop 0")
        A("s_mov_b32 %s, %d" % (sCNT, o["spinmax"]))
        for q in range(4):
            for r in range(2):
                A("v_mov_b32_dpp v%d, v%d row_newbcast:%d row_mask:0x%x bank_mask:0x%x" % (X + r, P + r, q, (5, 10)[q >> 1], (3, 12)[q & 1]))
        if not o.get("xstag"):
            A("v_lshlrev_b32 v%d, 16, %s" % (P, vXP))
            A("v_and_b32 v%d, %s, %s" % (P + 1, t1, vXP))
            A("v_pk_add_f32 %s, %s, %s" % (P2(X), P2(X), P2(P)))
        if o["efull"]:
            A("v_lshlrev_b32 %s, 4, v0" % tA)
            for q in range(4): A("v_mov_b32 v%d, %s" % (P + 8 + q, sTAG))
        A("s_mov_b32 s44, 0x01010101")
        A("s_mov_b32 s45, s44")
        A("s_mov_b64 exec, s[46:47]")
        for k in range(1, NP):
            if o.get("xstag") and k == 1: A("s_waitcnt vmcnt(1)")
            for _ in range(o.get("stag3", 0) + (2 if k > 1 and o.get("stag3") else 0)): A("s_nop 7")
            A("global_load_dwordx4 v[%d:%d], %s, %s sc1" % (PS + 4 * k, PS + 4 * k + 3, vL3, sWS))
        LB("L_poll3")
        for k in range(NP):
            A("s_waitcnt vmcnt(%d)" % (NP - 1))
            A("v_cmp_ne_u32 vcc, %s, v%d" % (sTAG, PS + 4 * k + 3))
            A("v_mov_b32 v%d, v%d" % (X, PS + 4 * k))
            A("v_mov_b32 v%d, v%d" % (X + 1, PS + 4 * k + 1))
            A("s_and_b64 exec, exec, vcc")
            A("s_cbranch_scc0 L_got3")
            A("global_load_dwordx4 v[%d:%d], %s, %s sc1" % (PS + 4 * k, PS + 4 * k + 3, vL3, sWS))
        A("s_sub_u32 %s, %s, 1" % (sCNT, sCNT))
        A("s_cbranch_scc0 L_poll3")
        A("s_endpgm")
        LB("L_got3")
        stamp(10)
        if o.get("ampf"):
            A("s_waitcnt vmcnt(0)")
            A("s_memrealtime s[86:87]")
        A("s_mov_b64 exec, -1")
        x_, y_ = "v%d" % X, "v%d" % (X + 1)
        fl = ["s_cmp_lg_u32 s2, %d" % (o.get("finx") or 0), "s_nop 0"]
        if o.get("xstag"): fl = ["v_lshlrev_b32 %s, 16, %s" % (tA, vXP), "v_and_b32 %s, %s, %s" % (tB, t1, vXP)]
        for pat in ("quad_perm:[1,0,3,2]", "quad_perm:[2,3,0,1]", "row_half_mirror"):
            A("v_add_f32_dpp %s, %s, %s %s %s" % (x_, x_, x_, pat, DPP))
            A("v_add_f32_dpp %s, %s, %s %s %s" % (y_, y_, y_, pat, DPP))
            if fl: A(fl.pop(0))
        if o.get("xstag"):
            A("v_add_f32 %s, %s, %s" % (x_, x_, tA))
            A("v_add_f32 %s, %s, %s" % (y_, y_, tB))
            A("s_cmp_lg_u32 s2, 0")
        A("v_cvt_pk_bf16_f32 %s, %s, %s" % (x_, x_, y_))
        A("s_mov_b64 exec, s[44:45]")
        A("global_store_dword %s, %s, %s %s" % (vXF, x_, sOUT, o.get("ofl", "")))
        if o.get("chkvote") is not None:
            A("s_mov_b64 exec, s[44:45]")
            A("v_xor_b32 v74, 0x2000, %s" % vL3)
            A("s_waitcnt vmcnt(0)")
            A("s_mov_b32 s84, 0")
            for rep in range(6):
                for reg, op in ((vL3, "s_add_u32"), ("v74", "s_sub_u32")):
                    A("s_memrealtime s[86:87]")
                    A("s_waitcnt lgkmcnt(0)")
                    A("global_load_dword v75, %s, %s sc1" % (reg, sWS))
                    A("s_waitcnt vmcnt(0)")
                    A("s_memrealtime s[88:89]")
                    A("s_waitcnt lgkmcnt(0)")
                    A("s_sub_u32 s88, s88, s86")
                    A("%s s84, s84, s88" % op)
            A("s_cmp_gt_i32 s84, 0")
            A("s_cselect_b32 s88, 3500, 1500")
            if o["chkvote"] < 8:
                A("s_cmp_eq_u32 %s, %d" % (sH, o["chkvote"]))
                A("s_cselect_b32 s88, s88, 1500")
            LB("L_vspin2")
            A("s_memrealtime s[92:93]")
            A("s_waitcnt lgkmcnt(0)")
            A("s_sub_u32 s92, s92, s90")
            A("s_cmp_lt_u32 s92, s88")
            A("s_cbranch_scc1 L_vspin2")
            A("s_cmp_lg_u32 s2, 0")
        if o.get("ampf"):
            A("s_waitcnt vmcnt(0)")
            A("s_memrealtime s[88:89]")
            A("s_waitcnt lgkmcnt(0)")
            A("s_sub_u32 s88, s88, s86")
            A("s_mul_i32 s88, s88, 40")
            A("s_min_u32 s88, s88, 20000")
            A("s_add_u32 s88, s88, 1500")
            LB("L_fspin")
            A("s_memrealtime s[92:93]")
            A("s_waitcnt lgkmcnt(0)")
            A("s_sub_u32 s92, s92, s90")
            A("s_cmp_lt_u32 s92, s88")
            A("s_cbranch_scc1 L_fspin")
            A("s_cmp_lg_u32 s2, 0")
        A("s_cbranch_scc1 L_done")
        C("the next launch must not mistake this launch's hand-off words for its own")
        if o["efull"]:
            A("s_mov_b64 exec, 0xff")
            A("global_store_dwordx4 %s, v[%d:%d], %s %s" % (tA, P + 8, P + 11, sWS, o.get("efl", "")))
        else:
            A("s_mov_b64 exec, 1")
            A("v_mov_b32 %s, 0" % tA)
            A("v_mov_b32 %s, %s" % (tB, sTAG))
            A("global_store_dword %s, %s, %s %s" % (tA, tB, sWS, o.get("efl", "")))
    nkeep = len(L)
    NP = o["np25"]
    PS = T + 16
    if o.get("ack25") == 1: A("s_waitcnt vmcnt(0)")
    sshot(8)
    for _ in range(o.get("dly25", 0)): A("s_nop 7")
    for k in range(NP):
        if k == 1 and o.get("ack25") == 2: A("s_waitcnt vmcnt(1)")
        if k == 1:
            for _ in range(o.get("stag25", 0)): A("s_nop 7")
        A("global_load_dwordx4 v[%d:%d], %s, %s sc1" % (PS + 4 * k, PS + 4 * k + 3, vL25, sWS))
    sshot(4)
    LB("L_poll25")
    for k in range(NP):
        A("s_waitcnt vmcnt(%d)" % (NP - 1))
        for q in range(4):
            A("v_xor_b32 v%d, %s, v%d" % (P + q, TB[q], PS + 4 * k + q))
        A("v_or3_b32 %s, v%d, v%d, v%d" % (tA, P, P + 1, P + 2))
        A("v_or_b32_sdwa %s, %s, v%d dst_sel:DWORD dst_unused:UNUSED_PAD src0_sel:BYTE_0 src1_sel:BYTE_0" % (tA, tA, P + 3))
        A("v_cmp_ne_u32 vcc, 0, %s" % tA)
        if o["mask25"]:
            A("s_and_b64 exec, exec, vcc")
            A("s_cbranch_scc0 L_got25")
        else:
            A("s_cbranch_vccz L_got25")
        A("global_load_dwordx4 v[%d:%d], %s, %s sc1" % (PS + 4 * k, PS + 4 * k + 3, vL25, sWS))
    A("s_sub_u32 %s, %s, 1" % (sCNT, sCNT))
    A("s_cbranch_scc0 L_poll25")
    A("s_endpgm")
    LB("L_got25")
    A("s_mov_b64 exec, -1")
    stamp(9)
    if o.get("ampm"): A("s_memrealtime s[86:87]")
    x_, y_ = "v%d" % P, "v%d" % (P + 1)
    A("v_permlane16_swap_b32 v%d, v%d" % (P, P + 2))
    A("v_permlane16_swap_b32 v%d, v%d" % (P + 1, P + 3))
    A("v_add_f32 %s, %s, v%d" % (x_, x_, P + 2))
    A("v_add_f32 %s, %s, v%d" % (y_, y_, P + 3))
    fl = ["v_mov_b32 v%d, %s" % (P + 3, sTAG), "s_and_b32 %s, %s, 7" % (t0, sJ), "s_cmp_eq_u32 %s, %s" % (t0, sH), "s_nop 0"]
    if o["lastfin"]: fl = ["v_mov_b32 v%d, %s" % (P + 3, sTAG), "s_bitcmp1_b32 %s, 1" % sFAST, "s_nop 0", "s_nop 0"]
    for rot_ in (1, 2, 4, 8):
        A(fl.pop(0))
        A("v_add_f32_dpp %s, %s, %s row_ror:%d %s" % (x_, x_, x_, rot_, DPP))
        A("v_add_f32_dpp %s, %s, %s row_ror:%d %s" % (y_, y_, y_, rot_, DPP))
    def old_final():
        if o.get("ewg"): A("s_xor_b32 s63, s2, %d" % o["ewg"])
        if o.get("otouch"):
            A("global_load_dword v158, %s, %s" % (vXF, sOUT))
        if o.get("xstag"): A("global_load_dword %s, %s, %s %s" % (vXP, vXF, sX, o["xstag"] if isinstance(o["xstag"], str) else "nt"))
        A("s_lshl_b32 %s, 0x10001, %s" % (t0, sH))
        A("s_andn2_b32 exec_lo, 0xff00ff, %s" % t0)
        A("s_mov_b32 exec_hi, 0")
        A("s_mov_b32 %s, %d" % (sCNT, o["spinmax"]))
        NP = o["np3"]
        PS = VR
        if o["lastfin"] == 2 and o.get("sshot", 2):
            A("s_waitcnt lgkmcnt(0)")
            for k in range(1, 8): A("s_xor_b32 s%d, s%d, %s" % (12 + k, 12 + k, sTAG))
            A("s_or_b32 s13, s13, s14")
            A("s_or_b64 s[16:17], s[16:17], s[18:19]")
            A("s_or_b32 s13, s13, s15")
            A("s_or_b32 s16, s16, s17")
            if o["stamps"]: A("s_memrealtime s[68:69]")
            A("s_or_b32 s13, s13, s16")
            if o["stamps"]: A("s_cselect_b32 s66, 1, 2")
            A("s_cbranch_scc1 L_ask3")
            A("global_load_dwordx4 v[%d:%d], %s, %s %s" % (PS, PS + 3, vL3, sWS, o.get("hfl", "")))
            A("s_branch L_poll3")
            LB("L_ask3")
        for k in range(NP):
            if o.get("xstag") and k == 1: A("s_waitcnt vmcnt(1)")
            A("global_load_dwordx4 v[%d:%d], %s, %s sc1" % (PS + 4 * k, PS + 4 * k + 3, vL3, sWS))
        LB("L_poll3")
        for k in range(NP):
            A("s_waitcnt vmcnt(%d)" % (NP - 1))
            A("v_cmp_ne_u32 vcc, %s, v%d" % (sTAG, PS + 4 * k + 3))
            A("v_mov_b32 v%d, v%d" % (P, PS + 4 * k))
            A("v_mov_b32 v%d, v%d" % (P + 1, PS + 4 * k + 1))
            A("s_and_b64 exec, exec, vcc")
            A("s_cbranch_scc0 L_got3")
            A("global_load_dwordx4 v[%d:%d], %s, %s sc1" % (PS + 4 * k, PS + 4 * k + 3, vL3, sWS))
        A("s_sub_u32 %s, %s, 1" % (sCNT, sCNT))
        A("s_cbranch_scc0 L_poll3")
        A("s_endpgm")
        LB("L_got3")
        stamp(10)
        A("s_mov_b32 exec_lo, -1")
        A("v_lshlrev_b32 %s, 16, %s" % (tA, vXP))
        A("v_and_b32 %s, %s, %s" % (tB, t1, vXP))
        for pat in ("quad_perm:[1,0,3,2]", "quad_perm:[2,3,0,1]", "row_half_mirror"):
            A("v_add_f32_dpp %s, %s, %s %s %s" % (x_, x_, x_, pat, DPP))
            A("v_add_f32_dpp %s, %s, %s %s %s" % (y_, y_, y_, pat, DPP))
            if pat != "row_half_mirror": A("s_nop 0")
        A("v_add_f32 %s, %s, %s" % (x_, x_, tA))
        A("v_add_f32 %s, %s, %s" % (y_, y_, tB))
        if o.get("perturb"):
            import struct
            bits = struct.unpack("<I", struct.pack("<f", float(o["perturb"])))[0]
            if o.get("pall"):
                A("v_mul_f32 %s, 0x%x, %s" % (x_, bits, x_)); A("v_mul_f32 %s, 0x%x, %s" % (y_, bits, y_))
            else:
                A("s_or_b32 %s, s2, %s" % (t0, sW))
                A("s_cselect_b32 %s, 0, 0x%x" % (t0, bits))
                A("v_add_f32 %s, %s, %s" % (x_, t0, x_))
        A("v_cvt_pk_bf16_f32 %s, %s, %s" % (x_, x_, y_))
        A("s_mov_b64 exec, 0x10001")
        A("global_store_dword %s, %s, %s %s" % (vXF, x_, sOUT, o.get("ofl", "")))
        A("s_or_b32 %s, %s, %s" % (t0, sJ if o["lastfin"] else "s2" if not o.get("ewg") else "s63", sW))
        A("s_cbranch_scc1 L_done")
        C("the next launch must not mistake this launch's hand-off words for its own")
        A("v_mov_b32 %s, 0" % tA)
        A("v_mov_b32 %s, %s" % (tB, sTAG))
        A("global_store_dword %s, %s, %s %s" % (tA, tB, sWS, o.get("efl", "")))
    def diag_end():
        if o.get("ampm"):
            A("s_or_b32 %s, %s, %s" % (t0, sJ, sW))
            A("s_cbranch_scc1 L_nom")
            A("s_mov_b64 exec, -1")
            A("s_waitcnt lgkmcnt(0)")
            A("s_lshl_b32 %s, %s, 2" % (t0, sH))
            A("v_mov_b32 v2, %s" % t0)
            A("s_or_b32 s86, s86, 1")
            A("v_mov_b32 v3, s86")
            A("global_store_dword v2, v3, s[24:25] offset:192 sc1")
            A("s_cmp_lg_u32 s2, 0")
            A("s_cbranch_scc1 L_nom")
            A("v_and_b32 v2, 7, v0")
            A("v_lshlrev_b32 v2, 2, v2")
            A("s_movk_i32 s85, 1000")
            LB("L_mpoll")
            A("global_load_dword v3, v2, s[24:25] offset:192 sc1")
            A("global_load_dword v4, v2, s[24:25] offset:128 sc1")
            A("s_sub_u32 s85, s85, 1")
            A("s_cbranch_scc1 L_nom")
            A("s_waitcnt vmcnt(0)")
            A("v_cmp_eq_u32 vcc, 0, v3")
            A("s_cbranch_vccnz L_mpoll")
            for g_ in range(8): A("v_readlane_b32 s%d, v3, %d" % (64 + g_, g_))
            for g_ in range(8): A("v_readlane_b32 s%d, v4, %d" % (72 + g_, g_))
            A("s_nop 3")
            for g_ in range(16): A("s_sub_u32 s%d, s%d, s90" % (64 + g_, 64 + g_))
            md = o["ampm"]
            if md >= 10:
                for g_ in range(8): A("s_mov_b32 s%d, s%d" % (64 + g_, 72 + g_))
                md -= 10
            key = {1: 64, 2: 72}.get(md)
            A("s_mov_b32 s80, s64")
            A("s_mov_b32 s81, s%d" % (key or 64))
            A("s_mov_b32 s82, 0x80000000")
            for g_ in range(1, 8):
                if key:
                    A("s_cmp_gt_i32 s%d, s81" % (key + g_))
                    A("s_cselect_b32 s83, s80, s%d" % (64 + g_))
                    A("s_cselect_b32 s80, s%d, s80" % (64 + g_))
                    A("s_cselect_b32 s81, s%d, s81" % (key + g_))
                    A("s_max_i32 s82, s82, s83")
                else:
                    A("s_max_i32 s82, s82, s%d" % (64 + g_))
            A("s_sub_i32 s88, s80, s82")
            A("s_add_i32 s88, s88, 100")
            A("s_max_i32 s88, s88, 0")
            A("s_mul_i32 s88, s88, 20")
            A("s_min_u32 s88, s88, 20000")
            A("s_add_u32 s88, s88, 1500")
            LB("L_mspin")
            A("s_memrealtime s[92:93]")
            A("s_waitcnt lgkmcnt(0)")
            A("s_sub_u32 s92, s92, s90")
            A("s_cmp_lt_u32 s92, s88")
            A("s_cbranch_scc1 L_mspin")
            LB("L_nom")
        if o.get("lateh") is not None:
            A("s_or_b32 %s, s2, %s" % (t0, sW))
            A("s_cbranch_scc1 L_nolate")
            A("s_mov_b64 exec, -1")
            A("v_and_b32 v2, 7, v0")
            A("v_lshlrev_b32 v2, 2, v2")
            A("global_load_dword v3, v2, s[24:25] sc1")
            A("s_waitcnt vmcnt(0)")
            for g_ in range(8): A("v_readlane_b32 s%d, v3, %d" % (64 + g_, g_))
            A("s_nop 3")
            for g_ in range(8): A("s_sub_u32 s%d, s%d, s90" % (64 + g_, 64 + g_))
            A("s_mov_b32 s72, s64")
            for g_ in range(1, 8): A("s_min_i32 s72, s72, s%d" % (64 + g_))
            if o["lateh"] == 8:
                A("s_mov_b32 s88, s64")
                for g_ in range(1, 8): A("s_max_i32 s88, s88, s%d" % (64 + g_))
            else:
                A("s_mov_b32 s88, s%d" % (64 + o["lateh"]))
            A("s_sub_u32 s88, s88, s72")
            A("s_mul_i32 s88, s88, 20")
            A("s_min_u32 s88, s88, 20000")
            A("s_add_u32 s88, s88, 1500")
            A("s_add_u32 s88, s88, s72")
            LB("L_latespin")
            A("s_memrealtime s[92:93]")
            A("s_waitcnt lgkmcnt(0)")
            A("s_sub_u32 s92, s92, s90")
            A("s_cmp_lt_u32 s92, s88")
            A("s_cbranch_scc1 L_latespin")
            LB("L_nolate")
        amp_end("")
        if o.get("pad"):
            LB("L_padspin")
            A("s_memrealtime s[92:93]")
            A("s_waitcnt lgkmcnt(0)")
            A("s_sub_u32 s92, s92, s90")
            A("s_cmp_lt_u32 s92, %d" % o["pad"])
            A("s_cbranch_scc1 L_padspin")
    if o.get("mockx"):
        A("v_lshlrev_b32 %s, 16, %s" % (tA, vXP))
        A("v_and_b32 %s, %s, %s" % (tB, t1, vXP))
        A("v_add_f32 %s, %s, %s" % (x_, x_, tA))
        A("v_add_f32 %s, %s, %s" % (y_, y_, tB))
        A("v_cvt_pk_bf16_f32 %s, %s, %s" % (x_, x_, y_))
        A("s_mov_b64 exec, 0x10001")
        A("s_cbranch_scc0 L_done")
        A("global_store_dword %s, %s, %s" % (vXF, x_, sOUT))
        A("s_or_b32 %s, s2, %s" % (t0, sW))
        A("s_cbranch_scc1 L_done")
        A("v_mov_b32 %s, 0" % tA)
        A("v_mov_b32 %s, %s" % (tB, sTAG))
        A("global_store_dword %s, %s, %s" % (tA, tB, sWS))
        A("s_branch L_done")
    A("s_cbranch_scc1 L_final")
    A("s_mov_b64 exec, 0x%x" % (0x30003 if o["rep3"] or o["vote"] else 0x10001))
    A("global_store_dwordx4 %s, v[%d:%d], %s sc1" % (vS3, P, P + 3, sWS))
    if o.get("wb"):
        A("s_or_b32 %s, %s, %s" % (t0, sW, sJ) if o["wb"] == 1 else "s_and_b32 %s, %s, 3" % (t0, sW))
        A("s_cmp_lg_u32 %s, %d" % (t0, 8 if o["wb"] == 1 else 0))
        A("s_cbranch_scc1 L_done")
        A("buffer_wbl2 sc1")
    A("s_branch L_done")
    LB("L_final")
    if o["lastfin"] == 1:
        A("s_mov_b64 exec, 0x10001")
        A("ds_write_b128 %s, v[%d:%d] offset:%d" % (vL3, P, P + 3, L_FIN))
        A("s_waitcnt lgkmcnt(0)")
    else:
        old_final()
    if o["g25"]:
        del L[nkeep:]
        tail_g25()
    LB("L_done")
    diag_end()
    dump_stamps()
    A("s_endpgm")
    for name, addr, g in tails:
        LB("L_slow_%s" % name)
        A("global_store_dwordx4 %s, v[%d:%d], %s sc1" % (addr, g, g + 3, sWS))
        A("s_branch L_back_%s" % name)
    if o["lastfin"] == 1: unit_final()
    LB("L_end")
    A("s_endpgm")
    head = HEADER.format(lds=o.get("lds", LDS_BYTES), k=KNAME); foot = FOOTER.format(k=KNAME, vg=o.get("vg", 168), sg=96)
    if o["align"]: L = align_runs(L, head, foot, o.get("minrun", 3), o.get("nopmin", 6))
    return head + "\n".join(L) + foot


if __name__ == "__main__":
    kw = {}
    out = "parallel_sum__sliding_block_cached__swiglu_ffn__decode.s"
    for a in sys.argv[1:]:
        k, v = a.split("=", 1)
        if k == "out": out = v; continue
        try: v = int(v) if k != "nlv" else v
        except ValueError: pass
        kw[k] = v
    open(out, "w").write(gen(**kw))
```
